```python
import torch

def _softmax(x, axis=-1):
    return torch.softmax(x, dim=axis)
def _gelu(x):
    return torch.nn.functional.gelu(x, approximate="tanh")
def _silu(x):
    return torch.nn.functional.silu(x)
def _sigmoid(x):
    return torch.sigmoid(x)
def _layernorm(x, axis=-1, eps=1e-5):
    m = x.mean(dim=axis, keepdim=True)
    v = x.var(dim=axis, keepdim=True, unbiased=False)
    return (x - m) / torch.sqrt(v + eps)
def _scatter_add(tgt, idx, src, axis=0):
    return tgt.clone().index_add_(axis, idx, src)
def _segment_sum(src, seg, n):
    out = torch.zeros((n,) + src.shape[1:], dtype=src.dtype)
    return out.index_add_(0, seg, src)
def _pad(x, pw):
    flat = tuple(v for pair in reversed(pw) for v in pair)
    return torch.nn.functional.pad(x, flat)

kernel_name = 'parallel_sum__spectral_gfnet__glu_gated_reglu__prompt'

def setup_inputs():

    _w = (lambda a: (lambda t: t.to(torch.bfloat16) if t.is_floating_point() else t)(torch.as_tensor(a)))
    def _A_setup():
        B, S, D = 1, 2048, 640
        Df = D // 2 + 1
        return {
            "x": _w((lambda *s: torch.randn(*s, dtype=torch.bfloat16) * 0.05)(B, S, D)),
            "w_r": _w((lambda *s: torch.randn(*s, dtype=torch.bfloat16) * 0.4)(S, Df) * 0.02),
            "w_i": _w((lambda *s: torch.randn(*s, dtype=torch.bfloat16) * 0.4)(S, Df) * 0.02),
        }
    _A_in = _A_setup()

    def _B_setup():
        B, S, D, F = 1, 2048, 640, 1536
        return {
            "x": _w((lambda *s: torch.randn(*s, dtype=torch.bfloat16) * 0.05)(B, S, D)),
            "W_gate": _w((lambda *s: torch.randn(*s, dtype=torch.bfloat16) * 0.2)(D, F) * (2.0 / D) ** 0.5),
            "W_up": _w((lambda *s: torch.randn(*s, dtype=torch.bfloat16) * 0.2)(D, F) * (2.0 / D) ** 0.5),
            "W_down": _w((lambda *s: torch.randn(*s, dtype=torch.bfloat16) * 0.2)(F, D) * (1.0 / F) ** 0.5),
        }
    _B_in = _B_setup()

    return {
        "A_x": _A_in["x"],
        "A_w_r": _A_in["w_r"],
        "A_w_i": _A_in["w_i"],
        "B_x": _B_in["x"],
        "B_W_gate": _B_in["W_gate"],
        "B_W_up": _B_in["W_up"],
        "B_W_down": _B_in["W_down"],
    }

def reference(A_x, A_w_r, A_w_i, B_x, B_W_gate, B_W_up, B_W_down):
    def _A_ref(x, w_r, w_i):
        B, S, D = x.shape
        X = (lambda x, axes=(-2,-1): torch.fft.rfft2(x.float(), dim=axes))(x, axes=(-2, -1))
        W = w_r + 1j * w_i
        X = X * W
        y = (lambda x, s, axes=(-2,-1): torch.fft.irfft2(x, s=s, dim=axes).to(torch.bfloat16))(X, (S, D), axes=(-2, -1))
        return y

    def _B_ref(x, W_gate, W_up, W_down):
        gate = torch.einsum("bsd,df->bsf", x, W_gate)
        up = torch.einsum("bsd,df->bsf", x, W_up)
        gate = gate * (lambda x, dt: x.to(dt))(gate > 0, gate.dtype)
        h = gate * up
        return torch.einsum("bsf,fd->bsd", h, W_down)

    x = A_x
    xn = _layernorm(x, axis=-1)
    return x + _A_ref(xn, A_w_r, A_w_i) + _B_ref(xn, B_W_gate, B_W_up, B_W_down)
```

```python
class Asm:
    def __init__(self):
        self.lines = []
        self.nlabel = 0
    def __call__(self, s=""):
        for l in s.split("\n"):
            self.lines.append(l)
    def e(self, fmt, *a):
        self.lines.append("    " + (fmt % a if a else fmt))
    def label(self, name):
        self.lines.append(name + ":")
    def newlabel(self, base="L"):
        self.nlabel += 1
        return "%s_%d" % (base, self.nlabel)
    def c(self, s):
        self.lines.append("    ; " + s)
    def text(self):
        return "\n".join(self.lines) + "\n"

def v(n, cnt=1):
    return "v%d" % n if cnt == 1 else "v[%d:%d]" % (n, n + cnt - 1)
def a(n, cnt=1):
    return "a%d" % n if cnt == 1 else "a[%d:%d]" % (n, n + cnt - 1)
def s(n, cnt=1):
    return "s%d" % n if cnt == 1 else "s[%d:%d]" % (n, n + cnt - 1)
def r(n, cnt=1):
    return v(n, cnt) if n < 256 else a(n - 256, cnt)

def srd(A, d, bptr, nbytes):
    A.e("s_mov_b32 %s, %s", s(d), s(bptr))
    A.e("s_and_b32 %s, %s, 0xffff", s(d + 1), s(bptr + 1))
    A.e("s_mov_b32 %s, 0x%x", s(d + 2), nbytes)
    A.e("s_mov_b32 %s, 0x00020000", s(d + 3))

def kernel_header(A, name):
    A(".text")
    A(".globl %s" % name)
    A(".p2align 8")
    A(".type %s,@function" % name)
    A("%s:" % name)

def kernel_desc(A, name, vgpr, sgpr=102, accum=None, extra=""):
    if accum is None:
        accum = min(256, (vgpr + 3) // 4 * 4)
    A('.section .rodata,"a"')
    A(".p2align 6")
    A(".amdhsa_kernel %s" % name)
    A("  .amdhsa_next_free_vgpr %d" % vgpr)
    A("  .amdhsa_next_free_sgpr %d" % sgpr)
    A("  .amdhsa_accum_offset %d" % accum)
    A("  .amdhsa_group_segment_fixed_size 0")
    A("  .amdhsa_kernarg_size 80")
    A("  .amdhsa_user_sgpr_count 2")
    A("  .amdhsa_user_sgpr_kernarg_segment_ptr 1")
    A("  .amdhsa_system_sgpr_workgroup_id_x 1")
    A("  .amdhsa_float_denorm_mode_32 3")
    if extra:
        A(extra)
    A(".end_amdhsa_kernel")
```

```python
import sys
from asmlib import *
import tables as TB

NAME = "parallel_sum__spectral_gfnet__glu_gated_reglu__prompt"
A = Asm()
e = A.e

WS_H = 0
WS_T = 0x600000
WS_U = 0x8A0000
WS_STAT = 0xB40000
WS_CSP = 0xB44000
WS_STAMP = 0x2000000

SLAB = 49152
AUX = 3 * SLAB
LDS_P1 = AUX + 2048

sX, sG, sU, sWS, sTAB, sWR, sWI, sWD, sOUT = 8, 12, 16, 20, 24, 28, 32, 36, 40
sW, sRB, sCG, sLW = 44, 45, 46, 47
sTmp, sTmp2, sCnt, sDelta, sBuf, sSLAB = 48, 49, 50, 51, 52, 53
sAoff, sBoff, sM0 = 54, 55, 56
sWM, sWN, sGAM = 57, 58, 59
sK1, sJB = 60, 61
P = 64

STAMPS = "--stamps" in sys.argv


def prologue(nwg, srds):
    e("s_cmp_ge_u32 s2, %d", nwg)
    e("s_cbranch_scc1 %s", cur_end)
    e("s_load_dwordx16 %s, s[0:1], 0", s(P, 16))
    e("s_load_dwordx4 %s, s[0:1], 64", s(P + 16, 4))
    e("v_lshrrev_b32 v1, 6, v0")
    e("v_and_b32 v0, 63, v0")
    e("v_readfirstlane_b32 %s, v1", s(sW))
    if "TAB" in srds:
        e("s_getpc_b64 s[4:5]")
        e("s_add_u32 s4, s4, dft_tables@rel32@lo+4")
        e("s_addc_u32 s5, s5, dft_tables@rel32@hi+12")
        srd(A, sTAB, 4, TB.TAB_BYTES)
    e("s_and_b32 %s, %s, 3", s(sLW), s(sW))
    e("s_waitcnt lgkmcnt(0)")
    tab = {"X": (sX, P, 2048 * 1280), "WR": (sWR, P + 2, 2048 * 642), "WI": (sWI, P + 4, 2048 * 642),
           "G": (sG, P + 8, 640 * 3072), "U": (sU, P + 10, 640 * 3072), "WD": (sWD, P + 12, 1536 * 1280),
           "OUT": (sOUT, P + 14, 2048 * 1280), "WS": (sWS, P + 18, 1 << 28)}
    for k in srds:
        if k != "TAB":
            srd(A, *tab[k])


def p1_map():
    e("s_and_b32 s3, s2, 7")
    e("s_lshr_b32 %s, s2, 3", s(sTmp))
    e("s_and_b32 %s, s3, 1", s(sRB))
    e("s_lshl_b32 %s, %s, 3", s(sRB), s(sRB))
    e("s_and_b32 %s, %s, 7", s(sCnt), s(sTmp))
    e("s_add_u32 %s, %s, %s", s(sRB), s(sRB), s(sCnt))
    e("s_lshr_b32 %s, %s, 3", s(sTmp2), s(sTmp))
    e("s_lshr_b32 s3, s3, 1")
    e("s_lshl_b32 %s, s3, 2", s(sGAM))
    e("s_add_u32 %s, %s, %s", s(sGAM), s(sGAM), s(sTmp2))
    e("s_mul_i32 %s, s3, 3", s(sCG))
    e("s_add_u32 %s, %s, %s", s(sCG), s(sCG), s(sTmp2))
    e("s_cmp_eq_u32 %s, 3", s(sTmp2))
    e("s_cselect_b32 %s, s3, %s", s(sCG), s(sCG))


def dpp_sum16(r, tmp=None):
    for ctl in ("quad_perm:[1,0,3,2]", "quad_perm:[2,3,0,1]", "row_half_mirror", "row_mirror"):
        e("s_nop 1")
        e("v_add_f32_dpp %s, %s, %s %s row_mask:0xf bank_mask:0xf", v(r), v(r), v(r), ctl)


def sum32(r, tmp):
    dpp_sum16(r)
    e("v_mov_b32 %s, %s", v(tmp), v(r))
    e("s_nop 1")
    e("v_permlane16_swap_b32 %s, %s", v(r), v(tmp))
    e("s_nop 1")
    e("v_add_f32 %s, %s, %s", v(r), v(r), v(tmp))


def round_bf16(r):
    e("v_cvt_pk_bf16_f32 %s, %s, %s", v(r), v(r), v(r))
    e("v_and_b32 %s, 0xffff0000, %s", v(r), v(r))


def stats_issue(R):
    e("s_lshl_b32 %s, %s, 3", s(sTmp), s(sGAM))
    e("s_lshl_b32 %s, %s, 1", s(sTmp2), s(sLW))
    e("s_add_u32 %s, %s, %s", s(sTmp), s(sTmp), s(sTmp2))
    e("v_lshrrev_b32 %s, 5, v0", v(R + 10))
    e("v_add_u32 %s, %s, %s", v(R + 11), s(sTmp), v(R + 10))
    e("v_and_b32 %s, 31, %s", v(R + 10), v(R + 11))
    e("v_lshlrev_b32 %s, 6, %s", v(R + 10), v(R + 10))
    e("v_lshrrev_b32 %s, 5, %s", v(R + 12), v(R + 11))
    e("v_add_u32 %s, %s, %s", v(R + 10), v(R + 10), v(R + 12))
    e("s_lshl_b32 %s, %s, 2", s(sTmp), s(sRB))
    e("v_add_u32 %s, %s, %s", v(R + 10), s(sTmp), v(R + 10))
    e("v_mul_u32_u24 %s, 1280, %s", v(R + 10), v(R + 10))
    e("v_and_b32 %s, 31, v0", v(R + 12))
    e("v_lshl_add_u32 %s, %s, 3, %s", v(R + 10), v(R + 12), v(R + 10))
    for n in range(5):
        e("buffer_load_dwordx2 %s, %s, %s, 0 offen offset:%d", v(R + 2 * n, 2), v(R + 10), s(sX, 4), n * 256)


def stats_compute(R):
    F = R + 14
    for n in range(10):
        e("v_lshlrev_b32 %s, 16, %s", v(F + 2 * n), v(R + n))
        e("v_and_b32 %s, 0xffff0000, %s", v(F + 2 * n + 1), v(R + n))
    S_, T_ = R + 12, R + 13
    e("v_add_f32 %s, %s, %s", v(S_), v(F), v(F + 1))
    for n in range(2, 20):
        e("v_add_f32 %s, %s, %s", v(S_), v(S_), v(F + n))
    sum32(S_, T_)
    e("v_mul_f32 %s, 0x3acccccd, %s", v(S_), v(S_))
    for n in range(20):
        e("v_sub_f32 %s, %s, %s", v(F + n), v(F + n), v(S_))
    V_ = R + 0
    e("v_mul_f32 %s, %s, %s", v(V_), v(F), v(F))
    for n in range(1, 20):
        e("v_fmac_f32 %s, %s, %s", v(V_), v(F + n), v(F + n))
    sum32(V_, T_)
    e("v_mul_f32 %s, 0x3acccccd, %s", v(V_), v(V_))
    round_bf16(V_)
    e("v_add_f32 %s, 0x3727c5ac, %s", v(V_), v(V_))
    round_bf16(V_)
    e("v_sqrt_f32 %s, %s", v(V_), v(V_))
    e("s_nop 0")
    round_bf16(V_)
    e("v_rcp_f32 %s, %s", v(V_), v(V_))
    round_bf16(S_)
    e("v_and_b32 %s, 31, v0", v(T_))
    e("v_cmp_eq_u32 vcc, 1, %s", v(T_))
    e("v_lshlrev_b32 %s, 2, %s", v(R + 1), v(R + 11))
    e("v_lshl_add_u32 %s, %s, 9, %s", v(R + 1), v(T_), v(R + 1))
    e("v_cndmask_b32 %s, %s, %s, vcc", v(V_), v(V_), v(S_))
    e("v_cmp_gt_u32 vcc, 2, %s", v(T_))
    e("s_lshl_b32 %s, %s, 10", s(sTmp), s(sRB))
    e("s_add_u32 %s, %s, 0x%x", s(sTmp), s(sTmp), WS_STAT)
    e("s_and_saveexec_b64 s[4:5], vcc")
    e("buffer_store_dword %s, %s, %s, %s offen sc1", v(V_), v(R + 1), s(sWS, 4), s(sTmp))
    e("s_mov_b64 exec, s[4:5]")


def cols_issue(R):
    e("v_lshrrev_b32 %s, 4, v0", v(R + 20))
    e("v_mul_u32_u24 %s, 3072, %s", v(R + 20), v(R + 20))
    e("v_and_b32 %s, 15, v0", v(R + 21))
    e("v_lshl_add_u32 %s, %s, 3, %s", v(R + 20), v(R + 21), v(R + 20))
    e("s_mul_i32 %s, %s, %d", s(sTmp), s(sRB), 40 * 3072)
    e("s_lshl_b32 %s, %s, 8", s(sTmp2), s(sCG))
    e("s_add_u32 %s, %s, %s", s(sTmp), s(sTmp), s(sTmp2))
    e("s_and_b32 %s, %s, 1", s(sTmp2), s(sLW))
    e("s_lshl_b32 %s, %s, 7", s(sTmp2), s(sTmp2))
    e("s_add_u32 %s, %s, %s", s(sTmp), s(sTmp), s(sTmp2))
    lab, lab2 = A.newlabel("L_csu"), A.newlabel("L_csd")
    e("s_cmp_ge_u32 %s, 2", s(sLW))
    e("s_cbranch_scc1 %s", lab)
    for mat in range(2):
        if mat == 1:
            e("s_branch %s", lab2)
            A.label(lab)
        for n in range(10):
            e("buffer_load_dwordx2 %s, %s, %s, %s offen", v(R + 2 * n, 2), v(R + 20), s(sU if mat else sG, 4), s(sTmp))
            if n < 9:
                e("s_add_u32 %s, %s, %d", s(sTmp), s(sTmp), 4 * 3072)
    A.label(lab2)


def cols_compute(R):
    C_, T_ = R + 22, R + 26
    for n in range(10):
        D_ = C_ if n == 0 else T_
        e("v_lshlrev_b32 %s, 16, %s", v(D_), v(R + 2 * n))
        e("v_and_b32 %s, 0xffff0000, %s", v(D_ + 1), v(R + 2 * n))
        e("v_lshlrev_b32 %s, 16, %s", v(D_ + 2), v(R + 2 * n + 1))
        e("v_and_b32 %s, 0xffff0000, %s", v(D_ + 3), v(R + 2 * n + 1))
        if n:
            e("v_pk_add_f32 %s, %s, %s", v(C_, 2), v(C_, 2), v(T_, 2))
            e("v_pk_add_f32 %s, %s, %s", v(C_ + 2, 2), v(C_ + 2, 2), v(T_ + 2, 2))
    for op in ("v_permlane16_swap_b32", "v_permlane32_swap_b32"):
        for i in range(4):
            e("v_mov_b32 %s, %s", v(T_ + i), v(C_ + i))
        e("s_nop 1")
        for i in range(4):
            e("%s %s, %s", op, v(C_ + i), v(T_ + i))
        e("s_nop 1")
        for i in range(4):
            e("v_add_f32 %s, %s, %s", v(C_ + i), v(C_ + i), v(T_ + i))
    e("s_mul_i32 %s, %s, 12288", s(sTmp), s(sRB))
    e("s_lshl_b32 %s, %s, 10", s(sTmp2), s(sCG))
    e("s_add_u32 %s, %s, %s", s(sTmp), s(sTmp), s(sTmp2))
    e("s_lshl_b32 %s, %s, 8", s(sTmp2), s(sLW))
    e("s_add_u32 %s, %s, %s", s(sTmp), s(sTmp), s(sTmp2))
    e("s_add_u32 %s, %s, 0x%x", s(sTmp), s(sTmp), WS_CSP)
    e("v_lshlrev_b32 %s, 4, v0", v(T_))
    e("v_cmp_gt_u32 vcc, 16, v0")
    e("s_and_saveexec_b64 s[4:5], vcc")
    e("buffer_store_dwordx4 %s, %s, %s, %s offen sc1", v(C_, 4), v(T_), s(sWS, 4), s(sTmp))
    e("s_mov_b64 exec, s[4:5]")


vA0, vA1, vB, vLin = 2, 3, 4, 5


def loader_setup(kind):
    e("v_lshrrev_b32 v6, 3, v0")
    e("s_mov_b32 %s, 81920", s(sTmp))
    e("v_mul_lo_u32 v6, v6, %s", s(sTmp))
    e("v_and_b32 v7, 7, v0")
    e("v_lshrrev_b32 v8, 4, v0")
    e("v_xor_b32 v7, v7, v8")
    e("v_lshl_add_u32 %s, v7, 4, v6", v(vA0))
    e("v_xor_b32 %s, 64, %s", v(vA1), v(vA0))
    e("s_lshl_b32 %s, %s, 2", s(sAoff), s(sRB))
    e("s_add_u32 %s, %s, %s", s(sAoff), s(sAoff), s(sLW))
    e("s_mul_i32 %s, %s, 1280", s(sAoff), s(sAoff))
    e("s_mov_b32 %s, 0", s(sM0))
    if kind == "F":
        e("v_mul_u32_u24 v6, 3072, v8")
        e("v_and_b32 v7, 15, v0")
        e("v_lshlrev_b32 v8, 2, v8")
        e("v_xor_b32 v7, v7, v8")
        e("v_lshl_add_u32 %s, v7, 4, v6", v(vB))
        e("s_mul_i32 %s, %s, %d", s(sBoff), s(sLW), 16 * 3072)
        e("s_lshl_b32 %s, %s, 8", s(sTmp), s(sCG))
        e("s_add_u32 %s, %s, %s", s(sBoff), s(sBoff), s(sTmp))
    else:
        njb = kind
        e("v_lshlrev_b32 %s, 4, v0", v(vB))
        if njb == 6:
            e("s_mul_i32 %s, %s, %d", s(sBoff), s(sLW), 6 * 1024)
        else:
            e("s_mul_i32 %s, %s, %d", s(sBoff), s(sCG), 40 * 5 * 1024)
            e("s_mul_i32 %s, %s, %d", s(sTmp), s(sLW), 5 * 1024)
            e("s_add_u32 %s, %s, %s", s(sBoff), s(sBoff), s(sTmp))
            e("s_add_u32 %s, %s, %d", s(sBoff), s(sBoff), 40 * 1024)
    e("s_lshl_b32 %s, %s, 12", s(sWM), s(sLW))
    if kind == "F":
        e("s_add_u32 %s, %s, 16384", s(sWN), s(sWM))
    else:
        e("s_mul_i32 %s, %s, %d", s(sWN), s(sLW), kind * 1024)
        e("s_add_u32 %s, %s, 16384", s(sWN), s(sWN))


def loader_slab(kind):
    e("s_add_u32 %s, %s, %s", s(sTmp2), s(sM0), s(sWM))
    for q in range(4):
        e("s_add_u32 m0, %s, %d", s(sTmp2), q * 1024)
        e("s_add_u32 %s, %s, %d", s(sTmp), s(sAoff), q * 8 * 81920)
        e("buffer_load_dwordx4 %s, %s, %s offen lds", v(vA1 if q & 1 else vA0), s(sX, 4), s(sTmp))
    e("s_add_u32 %s, %s, %s", s(sTmp2), s(sM0), s(sWN))
    if kind == "F":
        for mat in range(2):
            for q in range(4):
                e("s_add_u32 m0, %s, %d", s(sTmp2), 16384 * mat + q * 1024)
                e("s_add_u32 %s, %s, %d", s(sTmp), s(sBoff), q * 4 * 3072)
                e("buffer_load_dwordx4 %s, %s, %s offen lds", v(vB), s(sU if mat else sG, 4), s(sTmp))
        step = 64 * 3072
    else:
        for tl in range(kind):
            if tl % 4 == 0:
                e("s_add_u32 m0, %s, %d", s(sTmp2), tl * 1024)
                e("s_add_u32 %s, %s, %d", s(sTmp), s(sBoff), tl * 1024)
            e("buffer_load_dwordx4 %s, %s, %s offen offset:%d lds", v(vB), s(sTAB, 4), s(sTmp), (tl % 4) * 1024)
        step = 4 * kind * 1024
    e("s_add_u32 %s, %s, 128", s(sAoff), s(sAoff))
    e("s_add_u32 %s, %s, %d", s(sBoff), s(sBoff), step)
    e("s_add_u32 %s, %s, %d", s(sM0), s(sM0), SLAB)
    e("s_cmp_ge_u32 %s, %d", s(sM0), 3 * SLAB)
    e("s_cselect_b32 %s, 0, %s", s(sM0), s(sM0))


def aux_issue(kind, R):
    e("v_and_b32 %s, 31, v0", v(R))
    e("v_lshrrev_b32 %s, 5, v0", v(R + 1))
    e("v_lshlrev_b32 %s, 2, %s", v(R), v(R))
    e("v_lshl_add_u32 %s, %s, 9, %s", v(R), v(R + 1), v(R))
    e("s_lshl_b32 %s, %s, 7", s(sTmp), s(sLW))
    e("v_add_u32 %s, %s, %s", v(R), s(sTmp), v(R))
    e("s_lshl_b32 %s, %s, 10", s(sTmp), s(sRB))
    e("s_add_u32 %s, %s, 0x%x", s(sTmp), s(sTmp), WS_STAT)
    e("buffer_load_dword %s, %s, %s, %s offen sc1", v(R + 2), v(R), s(sWS, 4), s(sTmp))
    if kind == "F":
        e("v_lshlrev_b32 %s, 2, v0", v(R + 1))
        e("s_lshl_b32 %s, %s, 8", s(sTmp), s(sLW))
        e("v_add_u32 %s, %s, %s", v(R + 1), s(sTmp), v(R + 1))
        e("s_lshl_b32 %s, %s, 10", s(sTmp), s(sCG))
        e("s_add_u32 %s, %s, 0x%x", s(sTmp), s(sTmp), WS_CSP)
        for n in range(16):
            e("buffer_load_dword %s, %s, %s, %s offen sc1", v(R + 3 + n), v(R + 1), s(sWS, 4), s(sTmp))
            if n < 15:
                e("s_add_u32 %s, %s, 12288", s(sTmp), s(sTmp))
        return 17
    return 1


def aux_finish(kind, R):
    e("v_add_u32 %s, %d, %s", v(R), AUX, v(R))
    e("ds_write_b32 %s, %s", v(R), v(R + 2))
    if kind == "F":
        for n in range(1, 16):
            e("v_add_f32 %s, %s, %s", v(R + 3), v(R + 3), v(R + 3 + n))
        e("v_add_u32 %s, %d, %s", v(R + 1), AUX + 1024, v(R + 1))
        e("ds_write_b32 %s, %s", v(R + 1), v(R + 3))
    e("s_waitcnt lgkmcnt(0)")


def loader(kind):
    nd = 12 if kind == "F" else 4 + kind
    loader_setup(kind)
    for i in range(3):
        loader_slab(kind)
    e("s_waitcnt vmcnt(%d)", 2 * nd)
    e("s_barrier")
    e("s_mov_b32 %s, 0", s(sCnt))
    lab = A.newlabel("L_ld")
    A.label(lab)
    e("s_waitcnt vmcnt(%d)", nd)
    e("s_barrier")
    loader_slab(kind)
    e("s_add_u32 %s, %s, 1", s(sCnt), s(sCnt))
    e("s_cmp_lt_u32 %s, 7", s(sCnt))
    e("s_cbranch_scc1 %s", lab)
    na = aux_issue(kind, 16)
    e("s_waitcnt vmcnt(%d)", nd + na)
    e("s_barrier")
    e("s_waitcnt vmcnt(0)")
    aux_finish(kind, 16)
    e("s_barrier")


def addr_advance(regs):
    e("s_add_u32 %s, %s, %d", s(sBuf), s(sBuf), SLAB)
    e("s_cmp_ge_u32 %s, %d", s(sBuf), 3 * SLAB)
    e("s_cselect_b32 %s, 0, %s", s(sBuf), s(sBuf))
    e("s_cselect_b32 %s, %d, %s", s(sDelta), (-2 * SLAB) & 0xffffffff, s(sSLAB))
    for r_ in regs:
        e("v_add_u32 %s, %s, %s", v(r_), s(sDelta), v(r_))


def step(mf, need, nreads, nxt, first_gap=0, pre=None, per_gap=2):
    issued, done = 0, 0
    for m in range(len(mf)):
        if need[m] > done:
            e("s_waitcnt lgkmcnt(%d)", min(15, nreads - need[m] + issued))
            done = need[m]
        mf[m]()
        if pre and m in pre:
            for f in pre[m]:
                f()
            if "bar" in pre and pre["bar"] == m:
                done = nreads
        if m >= first_gap:
            for k in range(per_gap):
                if issued < len(nxt):
                    nxt[issued]()
                    issued += 1
    assert issued == len(nxt), (issued, len(nxt))


def gemm_loop(mfmas, reads, need, areg, bar_gap, first_mfmas=None):
    nreads = len(reads(0, 0))
    e("s_mov_b32 %s, 0", s(sBuf))
    e("s_mov_b32 %s, %d", s(sSLAB), SLAB)
    e("s_barrier")
    for f in reads(0, 0):
        f()

    def bar():
        e("s_waitcnt lgkmcnt(0)")
        e("s_barrier")

    def slab(last):
        for t in range(3):
            step(mfmas(t & 1), need, nreads, reads((t + 1) & 1, t + 1))
        if last:
            step(mfmas(1), need, nreads, [])
        else:
            step(mfmas(1), need, nreads, reads(0, 0), first_gap=bar_gap + 1 if len(need) > 6 else bar_gap,
                 pre={0: [lambda: addr_advance(areg)] + ([bar] if bar_gap == 0 else []), **({bar_gap: [bar]} if bar_gap else {}), "bar": bar_gap})
    e("s_mov_b32 %s, 0", s(sCnt))
    lab = A.newlabel("L_gemm")
    A.label(lab)
    slab(False)
    e("s_add_u32 %s, %s, 1", s(sCnt), s(sCnt))
    e("s_cmp_lt_u32 %s, 9", s(sCnt))
    e("s_cbranch_scc1 %s", lab)
    slab(True)


vXA = 8


def x_addr(rowbase_sgpr):
    e("v_and_b32 v5, 31, v0")
    e("v_lshlrev_b32 v5, 7, v5")
    e("v_add_u32 v5, %s, v5", s(rowbase_sgpr))
    e("v_lshrrev_b32 v6, 5, v0")
    e("v_bfe_u32 v7, v0, 1, 3")
    e("v_xor_b32 v6, v6, v7")
    e("v_lshl_add_u32 %s, v6, 4, v5", v(vXA))
    for t in range(1, 4):
        e("v_xor_b32 %s, %d, %s", v(vXA + t), t << 5, v(vXA))


def p1_ffn():
    vWA, FR, ACC = 12, 16, 64
    e("s_and_b32 %s, %s, 1", s(sWM), s(sW))
    e("s_lshr_b32 %s, %s, 1", s(sWN), s(sW))
    e("s_lshl_b32 %s, %s, 13", s(sTmp), s(sWM))
    x_addr(sTmp)
    e("v_lshrrev_b32 v5, 5, v0")
    e("v_bfe_u32 v6, v0, 2, 2")
    e("v_lshl_add_u32 v5, v5, 3, v6")
    e("v_lshlrev_b32 v5, 8, v5")
    e("s_lshl_b32 %s, %s, 1", s(sTmp), s(sWN))
    e("v_xor_b32 v6, %s, v6", s(sTmp))
    e("v_lshl_add_u32 v5, v6, 6, v5")
    e("v_bfe_u32 v6, v0, 4, 1")
    e("v_lshl_add_u32 v5, v6, 5, v5")
    e("v_and_b32 v6, 3, v0")
    e("v_lshl_add_u32 %s, v6, 3, v5", v(vWA))
    e("v_xor_b32 %s, 64, %s", v(vWA + 1), v(vWA))
    for i in range(128):
        e("v_mov_b32 %s, 0", v(ACC + i))

    def acc(mat, ft, st): return ACC + ((mat * 2 + ft) * 2 + st) * 16
    def xf(p, st): return FR + p * 24 + st * 4
    def wf(p, mat, ft): return FR + p * 24 + 8 + (mat * 2 + ft) * 4

    def reads(p, t):
        def rx(st): return lambda: e("ds_read_b128 %s, %s offset:%d", v(xf(p, st), 4), v(vXA + t), st * 4096)
        def rw(mat, ft, rd): return lambda: e("ds_read_b64_tr_b16 %s, %s offset:%d", v(wf(p, mat, ft) + 2 * rd, 2), v(vWA + ft), 16384 * (1 + mat) + t * 4096 + rd * 1024)
        return [rx(0), rw(0, 0, 0), rw(0, 0, 1), rx(1), rw(1, 0, 0), rw(1, 0, 1), rw(0, 1, 0), rw(0, 1, 1), rw(1, 1, 0), rw(1, 1, 1)]
    morder = [(0, 0, 0), (0, 0, 1), (1, 0, 0), (1, 0, 1), (0, 1, 0), (0, 1, 1), (1, 1, 0), (1, 1, 1)]

    def mfmas(p):
        return [(lambda m=m: e("v_mfma_f32_32x32x16_bf16 %s, %s, %s, %s", v(acc(*m), 16), v(wf(p, m[0], m[1]), 4), v(xf(p, m[2]), 4), v(acc(*m), 16))) for m in morder]
    gemm_loop(mfmas, reads, [3, 4, 6, 6, 8, 8, 10, 10], [vXA + i for i in range(6)], 1)

    e("v_and_b32 v5, 31, v0")
    e("v_lshlrev_b32 v5, 2, v5")
    e("s_lshl_b32 %s, %s, 8", s(sTmp), s(sWM))
    e("s_add_u32 %s, %s, %d", s(sTmp), s(sTmp), AUX)
    e("v_add_u32 v5, %s, v5", s(sTmp))
    e("ds_read_b32 v16, v5")
    e("ds_read_b32 v18, v5 offset:128")
    e("ds_read_b32 v20, v5 offset:512")
    e("ds_read_b32 v22, v5 offset:640")
    e("v_lshrrev_b32 v6, 5, v0")
    e("v_lshlrev_b32 v6, 4, v6")
    e("s_lshl_b32 %s, %s, 8", s(sTmp), s(sWN))
    e("s_add_u32 %s, %s, %d", s(sTmp), s(sTmp), AUX + 1024)
    e("v_add_u32 v6, %s, v6", s(sTmp))
    CS = 192
    for ft in range(2):
        for mat in range(2):
            for jj in range(4):
                e("ds_read_b128 %s, v6 offset:%d", v(CS + (ft * 2 + mat) * 16 + jj * 4, 4), mat * 512 + ft * 128 + jj * 32)
    e("s_lshl_b32 %s, %s, 2", s(sTmp), s(sRB))
    e("s_lshl_b32 s3, %s, 1", s(sWM))
    e("s_add_u32 %s, %s, s3", s(sTmp), s(sTmp))
    e("s_mul_i32 %s, %s, %d", s(sTmp), s(sTmp), 48 * 2048)
    e("s_lshl_b32 s3, %s, 2", s(sCG))
    e("s_lshl_b32 %s, %s, 1", s(sCnt), s(sWN))
    e("s_add_u32 s3, s3, %s", s(sCnt))
    e("s_lshl_b32 s3, s3, 11")
    e("s_add_u32 %s, %s, s3", s(sDelta), s(sTmp))
    e("v_bfe_u32 v5, v0, 4, 1")
    e("v_lshlrev_b32 v5, 10, v5")
    e("v_lshrrev_b32 v6, 5, v0")
    e("v_lshl_add_u32 v5, v6, 8, v5")
    e("v_and_b32 v6, 15, v0")
    e("v_lshl_add_u32 v5, v6, 4, v5")
    e("s_waitcnt lgkmcnt(8)")
    e("v_mul_f32 v16, v16, v16")
    e("v_mul_f32 v18, v18, v18")
    for ft in range(2):
        if ft == 1:
            e("s_waitcnt lgkmcnt(0)")
        for st in range(2):
            g0, u0 = acc(0, ft, st), acc(1, ft, st)
            cg_, cu_ = CS + (ft * 2) * 16, CS + (ft * 2 + 1) * 16
            rr, mm = 16 + 2 * st, 20 + 2 * st
            for i in range(0, 16, 2):
                e("v_pk_fma_f32 %s, %s, %s, %s op_sel_hi:[1,0,1] neg_lo:[0,1,0] neg_hi:[0,1,0]", v(g0 + i, 2), v(cg_ + i, 2), v(mm, 2), v(g0 + i, 2))
                e("v_pk_fma_f32 %s, %s, %s, %s op_sel_hi:[1,0,1] neg_lo:[0,1,0] neg_hi:[0,1,0]", v(u0 + i, 2), v(cu_ + i, 2), v(mm, 2), v(u0 + i, 2))
            for i in range(16):
                e("v_max_f32 %s, 0, %s", v(g0 + i), v(g0 + i))
            for i in range(0, 16, 2):
                e("v_pk_mul_f32 %s, %s, %s op_sel_hi:[1,0]", v(u0 + i, 2), v(u0 + i, 2), v(rr, 2))
            for i in range(0, 16, 2):
                e("v_pk_mul_f32 %s, %s, %s", v(g0 + i, 2), v(g0 + i, 2), v(u0 + i, 2))
            for i in range(8):
                e("v_cvt_pk_bf16_f32 %s, %s, %s", v(u0 + i), v(g0 + 2 * i), v(g0 + 2 * i + 1))
            e("s_add_u32 %s, %s, %d", s(sTmp), s(sDelta), WS_H + st * 48 * 2048 + ft * 2048)
            for q in range(2):
                e("buffer_store_dwordx4 %s, v5, %s, %s offen offset:%d sc1", v(u0 + 4 * q, 4), s(sWS, 4), s(sTmp), q * 512)


def p1_dft(njb):
    vCA, FR, ACC, FC = 12, 16, 80, 176
    e("s_lshl_b32 %s, %s, 12", s(sTmp), s(sW))
    x_addr(sTmp)
    e("v_lshlrev_b32 %s, 4, v0", v(vCA))
    for i in range(16 * njb):
        e("v_mov_b32 %s, 0", v(ACC + i))
    e("s_lshl_b32 %s, %s, 2", s(sK1), s(sRB))
    e("s_add_u32 %s, %s, %s", s(sK1), s(sK1), s(sW))
    e("v_and_b32 v5, 31, v0")
    e("v_lshrrev_b32 v6, 5, v0")
    e("v_lshlrev_b32 v6, 8, v6")
    e("v_add_u32 v6, %s, v6", s(sK1))
    e("v_mul_u32_u24 v6, v6, v5")
    for kap in range(2):
        for i2 in range(4):
            for b in range(2):
                i = 2 * i2 + b
                s0 = 16 * kap + 8 * (i >> 2) + (i & 3)
                e("v_mul_u32_u24 v7, %d, v5", 64 * s0)
                e("v_add_u32 v7, v7, v6")
                e("v_and_b32 v7, 0x7ff, v7")
                e("v_cvt_f32_u32 v7, v7")
                e("v_mul_f32 v7, 0x3a000000, v7")
                e("v_cos_f32 %s, v7", v(14 + b))
                e("v_sin_f32 %s, v7", v(16 + b))
            e("s_nop 0")
            e("v_cvt_pk_bf16_f32 %s, v14, v15", v(FC + kap * 4 + i2))
            e("v_cvt_pk_bf16_f32 %s, -v16, -v17", v(FC + 8 + kap * 4 + i2))

    per = 4 + 4 * njb
    def xf(p): return FR + p * 28
    def cf(p, tl): return FR + p * 28 + 4 + 4 * tl

    def reads(p, t):
        ops = [lambda: e("ds_read_b128 %s, %s", v(xf(p), 4), v(vXA + t))]
        for tl in range(njb):
            ops.append(lambda tl=tl: e("ds_read_b128 %s, %s offset:%d", v(cf(p, tl), 4), v(vCA), 16384 + (t * njb + tl) * 1024))
        return ops

    def mfmas(p):
        return [(lambda tl=tl: e("v_mfma_f32_32x32x16_bf16 %s, %s, %s, %s", v(ACC + 16 * tl, 16), v(xf(p), 4), v(cf(p, tl), 4), v(ACC + 16 * tl, 16))) for tl in range(njb)]
    gemm_loop(mfmas, reads, [2 + tl for tl in range(njb)], [vXA + i for i in range(5)], 0)

    RR, MM = 16, 32
    e("v_lshrrev_b32 v6, 5, v0")
    e("v_lshlrev_b32 v6, 4, v6")
    e("s_lshl_b32 %s, %s, 7", s(sTmp), s(sW))
    e("s_add_u32 %s, %s, %d", s(sTmp), s(sTmp), AUX)
    e("v_add_u32 v6, %s, v6", s(sTmp))
    for jj in range(4):
        e("ds_read_b128 %s, v6 offset:%d", v(RR + 4 * jj, 4), jj * 32)
    if njb == 6:
        for jj in range(4):
            e("ds_read_b128 %s, v6 offset:%d", v(MM + 4 * jj, 4), 512 + jj * 32)
        e("v_and_b32 v7, 31, v0")
        e("v_cmp_eq_u32 vcc, 0, v7")
        e("v_mov_b32 v7, 0")
        e("v_mov_b32 v13, 0x44200000")
        e("v_cndmask_b32 v7, v7, v13, vcc")
    e("v_and_b32 v5, 31, v0")
    e("v_mul_u32_u24 v5, %d, v5", 21 * 4096)
    e("v_lshrrev_b32 v6, 5, v0")
    e("v_lshl_add_u32 v5, v6, 4, v5")
    if njb == 6:
        e("s_mov_b32 %s, 0", s(sJB))
    else:
        e("s_mul_i32 %s, %s, 5", s(sJB), s(sCG))
        e("s_add_u32 %s, %s, 1", s(sJB), s(sJB))
    e("s_lshl_b32 %s, %s, 12", s(sDelta), s(sJB))
    e("s_lshl_b32 %s, %s, 6", s(sTmp), s(sK1))
    e("s_add_u32 %s, %s, %s", s(sDelta), s(sDelta), s(sTmp))
    e("s_add_u32 %s, %s, 0x%x", s(sDelta), s(sDelta), WS_T)
    e("s_waitcnt lgkmcnt(0)")
    PQ = [192, 224]
    AF = [48, 56]
    OUTP = 64
    def scale_pack(tl):
        a0 = ACC + 16 * tl
        if njb == 6 and tl == 0:
            for i in range(16):
                e("v_fma_f32 %s, -%s, v7, %s", v(a0 + i), v(MM + i), v(a0 + i))
        for i in range(0, 16, 2):
            e("v_pk_mul_f32 %s, %s, %s", v(a0 + i, 2), v(a0 + i, 2), v(RR + i, 2))
        for i in range(8):
            e("v_cvt_pk_bf16_f32 %s, %s, %s", v(AF[tl & 1] + i), v(a0 + 2 * i), v(a0 + 2 * i + 1))
    def stage(tl):
        p0, af = PQ[tl & 1], AF[tl & 1]
        e("s_nop 1")
        for mat in range(2):
            d = p0 + 16 * mat
            e("v_mfma_f32_32x32x16_bf16 %s, %s, %s, 0", v(d, 16), v(af, 4), v(FC + 8 * mat, 4))
            e("v_mfma_f32_32x32x16_bf16 %s, %s, %s, %s", v(d, 16), v(af + 4, 4), v(FC + 8 * mat + 4, 4), v(d, 16))
    def finish(tl):
        p0 = PQ[tl & 1]
        q0 = p0 + 16
        for q in range(2):
            for i in range(4):
                e("v_sub_f32 %s, %s, %s", v(p0 + 8 * q + i), v(p0 + 8 * q + i), v(q0 + 8 * q + 4 + i))
                e("v_add_f32 %s, %s, %s", v(p0 + 8 * q + 4 + i), v(p0 + 8 * q + 4 + i), v(q0 + 8 * q + i))
        for i in range(8):
            e("v_cvt_pk_bf16_f32 %s, %s, %s", v(q0 + i), v(p0 + 2 * i), v(p0 + 2 * i + 1))
        e("s_add_u32 %s, %s, %d", s(sTmp), s(sDelta), tl * 4096)
        for q in range(2):
            e("buffer_store_dwordx4 %s, v5, %s, %s offen offset:%d sc1", v(q0 + 4 * q, 4), s(sWS, 4), s(sTmp), q * 32)
    scale_pack(0)
    stage(0)
    for tl in range(njb):
        if tl + 1 < njb:
            scale_pack(tl + 1)
            stage(tl + 1)
        else:
            e("s_nop 15")
        finish(tl)


def mid(ldsbase_sgpr):
    FC, WV, DF, XA, UA, TW = 64, 128, 16, 160, 192, 40
    vL, vT, vWo = 5, 6, 7
    e("v_lshlrev_b32 %s, 4, v0", v(vL))
    e("s_mul_i32 %s, %s, 21", s(sTmp), s(sK1))
    e("s_add_u32 %s, %s, %s", s(sTmp), s(sTmp), s(sJB))
    e("s_lshl_b32 %s, %s, 12", s(sTmp), s(sTmp))
    e("s_add_u32 %s, %s, 0x%x", s(sTmp), s(sTmp), WS_T)
    e("s_mov_b32 m0, %s", s(ldsbase_sgpr))
    e("s_nop 0")
    for n in range(4):
        e("buffer_load_dwordx4 %s, %s, %s offen offset:%d sc1 lds", v(vL), s(sWS, 4), s(sTmp), n * 1024)
    for n in range(16):
        if n % 4 == 0:
            e("s_mov_b32 %s, %d", s(sTmp), TB.F64_OFF + n * 1024)
        e("buffer_load_dwordx4 %s, %s, %s, %s offen offset:%d", v(FC + 4 * n, 4), v(vL), s(sTAB, 4), s(sTmp), (n % 4) * 1024)
    for i in range(32):
        e("v_mov_b32 %s, 0", v(WV + i))
    e("v_lshrrev_b32 %s, 4, v0", v(vWo))
    e("v_mul_u32_u24 %s, %d, %s", v(vWo), 4 * 32 * 642, v(vWo))
    e("v_and_b32 v8, 15, v0")
    e("v_lshl_add_u32 %s, v8, 1, %s", v(vWo), v(vWo))
    e("s_mul_i32 %s, %s, 642", s(sDelta), s(sK1))
    e("s_lshl_b32 %s, %s, 5", s(sTmp), s(sJB))
    e("s_add_u32 %s, %s, %s", s(sDelta), s(sDelta), s(sTmp))
    for mt in range(4):
        for i in range(4):
            e("s_add_u32 %s, %s, %d", s(sTmp), s(sDelta), 32 * (16 * mt + i) * 642)
            e("buffer_load_short_d16_hi %s, %s, %s, %s offen", v(WV + 4 * mt + i), v(vWo), s(sWR, 4), s(sTmp))
            e("buffer_load_short_d16_hi %s, %s, %s, %s offen", v(WV + 16 + 4 * mt + i), v(vWo), s(sWI, 4), s(sTmp))
    for nt in range(4):
        e("v_add_u32 v9, %d, v8", 16 * nt)
        e("v_mul_u32_u24 v9, %s, v9", s(sK1))
        e("v_cvt_f32_u32 v9, v9")
        e("v_mul_f32 v9, 0x3a000000, v9")
        e("v_cos_f32 %s, v9", v(TW + 2 * nt))
        e("v_sin_f32 %s, v9", v(TW + 2 * nt + 1))
        e("s_nop 0")
        e("v_mul_f32 %s, 0x3a000000, %s", v(TW + 2 * nt), v(TW + 2 * nt))
        e("v_mul_f32 %s, 0x3a000000, %s", v(TW + 2 * nt + 1), v(TW + 2 * nt + 1))
    e("v_lshrrev_b32 %s, 2, v0", v(vT))
    e("v_lshlrev_b32 %s, 6, %s", v(vT), v(vT))
    e("v_and_b32 v9, 3, v0")
    e("v_lshl_add_u32 %s, v9, 4, %s", v(vT), v(vT))
    e("v_add_u32 %s, %s, %s", v(vT), s(ldsbase_sgpr), v(vT))
    e("v_mul_u32_u24 v10, %d, v8", 21 * 2048)
    e("v_lshrrev_b32 v9, 4, v0")
    e("v_lshl_add_u32 v10, v9, 4, v10")
    e("s_waitcnt vmcnt(48)")
    for ri in range(2):
        for kap in range(2):
            for rd in range(2):
                e("ds_read_b64_tr_b16 %s, %s offset:%d", v(DF + 8 * ri + 4 * kap + 2 * rd, 2), v(vT), kap * 2048 + rd * 1024 + ri * 8)
    e("s_waitcnt lgkmcnt(0)")
    for i in range(8):
        e("v_xor_b32 %s, 0x80008000, %s", v(DF + 16 + i), v(DF + 8 + i))
    e("s_waitcnt vmcnt(32)")
    def F(ri, t, kap): return FC + ((ri * 4 + t) * 2 + kap) * 4
    def mm(d, a_, b_, first):
        e("v_mfma_f32_16x16x32_bf16 %s, %s, %s, %s", v(d, 4), v(a_, 4), v(b_, 4), "0" if first else v(d, 4))
    Tre, Tim, Tni = DF, DF + 8, DF + 16
    for mt in range(4):
        xr, xi = XA + 4 * mt, XA + 16 + 4 * mt
        for kap in range(2):
            mm(xr, F(0, mt, kap), Tre + 4 * kap, kap == 0)
            mm(xi, F(1, mt, kap), Tre + 4 * kap, kap == 0)
        for kap in range(2):
            mm(xr, F(1, mt, kap), Tni + 4 * kap, False)
            mm(xi, F(0, mt, kap), Tim + 4 * kap, False)
    e("s_waitcnt vmcnt(0)")
    e("s_nop 7")
    for n in range(16):
        xr, xi, wr, wi = XA + n, XA + 16 + n, WV + n, WV + 16 + n
        e("v_mul_f32 %s, %s, %s", v(UA + n), v(xr), v(wr))
        e("v_mul_f32 %s, %s, %s", v(UA + 16 + n), v(xr), v(wi))
        e("v_fma_f32 %s, -%s, %s, %s", v(UA + n), v(xi), v(wi), v(UA + n))
        e("v_fmac_f32 %s, %s, %s", v(UA + 16 + n), v(xi), v(wr))
    Yre, Yim, Ynr = DF, DF + 8, DF + 16
    for n in range(8):
        e("v_cvt_pk_bf16_f32 %s, %s, %s", v(Yre + n), v(UA + 2 * n), v(UA + 2 * n + 1))
        e("v_cvt_pk_bf16_f32 %s, %s, %s", v(Yim + n), v(UA + 16 + 2 * n), v(UA + 16 + 2 * n + 1))
        e("v_xor_b32 %s, 0x80008000, %s", v(Ynr + n), v(Yre + n))
    e("s_nop 1")
    for nt in range(4):
        ur, ui = UA + 4 * nt, UA + 16 + 4 * nt
        for kap in range(2):
            mm(ur, Yre + 4 * kap, F(0, nt, kap), kap == 0)
            mm(ui, Yim + 4 * kap, F(0, nt, kap), kap == 0)
        for kap in range(2):
            mm(ur, Yim + 4 * kap, F(1, nt, kap), False)
            mm(ui, Ynr + 4 * kap, F(1, nt, kap), False)
    e("s_lshl_b32 %s, %s, 5", s(sDelta), s(sJB))
    e("s_add_u32 %s, %s, %s", s(sDelta), s(sDelta), s(sK1))
    e("s_lshl_b32 %s, %s, 6", s(sDelta), s(sDelta))
    e("s_add_u32 %s, %s, 0x%x", s(sDelta), s(sDelta), WS_U)
    e("s_nop 4")
    for nt in range(4):
        ur, ui, tc, ts = UA + 4 * nt, UA + 16 + 4 * nt, TW + 2 * nt, TW + 2 * nt + 1
        o = XA + 8 * nt
        for i in range(4):
            e("v_mul_f32 %s, %s, %s", v(o + i), v(ur + i), v(tc))
            e("v_mul_f32 %s, %s, %s", v(o + 4 + i), v(ur + i), v(ts))
            e("v_fma_f32 %s, -%s, %s, %s", v(o + i), v(ui + i), v(ts), v(o + i))
            e("v_fmac_f32 %s, %s, %s", v(o + 4 + i), v(ui + i), v(tc))
        pk = WV + 4 * nt
        for i in range(4):
            e("v_cvt_pk_bf16_f32 %s, %s, %s", v(pk + i), v(o + 2 * i), v(o + 2 * i + 1))
        e("s_add_u32 %s, %s, %d", s(sTmp), s(sDelta), nt * 16 * 21 * 2048)
        e("buffer_store_dwordx4 %s, v10, %s, %s offen sc1", v(pk, 4), s(sWS, 4), s(sTmp))


def p3():
    sP, sHo, sWo, sUo, sCo, sLB = 45, 54, 55, 56, 57, 58
    vL, vWD, vTW, vTU, vO = 5, 6, 11, 12, 13
    WF, GC, RS, XR, ACC = 16, 64, 96, 96 + 40, 176
    e("s_and_b32 s3, s2, 7")
    e("s_lshr_b32 %s, s2, 3", s(sTmp))
    e("s_lshr_b32 %s, s3, 1", s(sP))
    e("s_lshl_b32 %s, %s, 3", s(sP), s(sP))
    e("s_and_b32 %s, %s, 7", s(sTmp2), s(sTmp))
    e("s_add_u32 %s, %s, %s", s(sP), s(sP), s(sTmp2))
    e("s_and_b32 s3, s3, 1")
    e("s_lshl_b32 s3, s3, 2")
    e("s_lshr_b32 %s, %s, 3", s(sTmp), s(sTmp))
    e("s_add_u32 %s, s3, %s", s(sGAM), s(sTmp))
    e("v_lshlrev_b32 %s, 4, v0", v(vL))
    for n in range(5):
        e("v_add_u32 v14, %d, v0", 64 * n)
        e("v_mul_u32_u24 v15, 6554, v14")
        e("v_lshrrev_b32 v15, 16, v15")
        e("v_mul_u32_u24 %s, 1120, v15", v(vWD + n))
        e("v_lshl_add_u32 %s, v14, 4, %s", v(vWD + n), v(vWD + n))
    e("s_mul_i32 %s, %s, 40960", s(sLB), s(sW))
    e("s_mul_i32 %s, %s, %d", s(sHo), s(sP), 2 * 48 * 2048)
    e("s_lshl_b32 %s, %s, 11", s(sTmp), s(sW))
    e("s_add_u32 %s, %s, %s", s(sHo), s(sHo), s(sTmp))
    e("s_mul_i32 %s, %s, 40960", s(sWo), s(sW))
    e("s_mul_i32 %s, %s, 160", s(sTmp), s(sGAM))
    e("s_add_u32 %s, %s, %s", s(sWo), s(sWo), s(sTmp))
    e("s_mul_i32 %s, %s, %d", s(sUo), s(sP), 2 * 21 * 2048)
    e("s_lshl_b32 %s, %s, 11", s(sTmp), s(sW))
    e("s_add_u32 %s, %s, %s", s(sUo), s(sUo), s(sTmp))
    e("s_add_u32 %s, %s, 0x%x", s(sUo), s(sUo), WS_U)
    e("s_mul_i32 %s, %s, 21", s(sCo), s(sGAM))
    e("s_add_u32 %s, %s, %s", s(sCo), s(sCo), s(sW))
    e("s_mul_i32 %s, %s, 5120", s(sCo), s(sCo))
    e("s_add_u32 %s, %s, %d", s(sCo), s(sCo), TB.CI_OFF)
    e("s_cmp_eq_u32 %s, 0", s(sW))
    e("s_cselect_b32 %s, 0, 0x20000000", s(sCnt))

    NI = 18
    def dma(i):
        ops = []
        slot = (i % 4) * 5120
        if i < 12:
            for n in range(5):
                def f(n=n):
                    e("s_add_u32 m0, %s, %d", s(sLB), slot + n * 1024)
                    if n == 0:
                        e("s_add_u32 %s, %s, %d", s(sTmp2), s(sWo), i * 4 * 40960)
                    else:
                        e("s_nop 0")
                    e("buffer_load_dwordx4 %s, %s, %s offen lds", v(vWD + n), s(sWD, 4), s(sTmp2))
                ops.append(f)
        else:
            z = i - 12
            for u in range(2):
                for n in range(2):
                    def f(u=u, n=n):
                        if n == 0:
                            e("s_add_u32 m0, %s, %d", s(sLB), slot + u * 2048)
                            e("s_add_u32 %s, %s, %d", s(sTmp2), s(sUo), z * 4 * 2048 + u * 21 * 2048)
                            if z == 5:
                                e("s_add_u32 %s, %s, %s", s(sTmp2), s(sTmp2), s(sCnt))
                        e("buffer_load_dwordx4 %s, %s, %s offen offset:%d sc1 lds", v(vL), s(sWS, 4), s(sTmp2), n * 1024)
                    ops.append(f)
        return ops
    def regloads(i):
        ops = []
        rs = RS + (i % 4) * 20
        if i < 12:
            for u in range(2):
                for t in range(2):
                    def f(u=u, t=t):
                        if t == 0:
                            e("s_add_u32 %s, %s, %d", s(sTmp), s(sHo), WS_H + i * 4 * 2048 + u * 48 * 2048)
                        e("buffer_load_dwordx4 %s, %s, %s, %s offen offset:%d sc1", v(rs + (2 * u + t) * 4, 4), v(vL), s(sWS, 4), s(sTmp), t * 1024)
                    ops.append(f)
        else:
            z = i - 12
            for ct in range(5):
                def f(ct=ct):
                    if ct % 4 == 0:
                        e("s_add_u32 %s, %s, %d", s(sTmp), s(sCo), z * 4 * 5120 + ct * 1024)
                        if z == 5:
                            e("s_add_u32 %s, %s, %s", s(sTmp), s(sTmp), s(sCnt))
                    e("buffer_load_dwordx4 %s, %s, %s, %s offen offset:%d", v(rs + ct * 4, 4), v(vL), s(sTAB, 4), s(sTmp), (ct % 4) * 1024)
                ops.append(f)
        return ops
    for i in range(3):
        for f in dma(i) + regloads(i):
            f()
        if i == 0:
            for n in range(8):
                if n % 4 == 0:
                    e("s_mov_b32 %s, %d", s(sTmp), TB.G32_OFF + n * 1024)
                e("buffer_load_dwordx4 %s, %s, %s, %s offen offset:%d", v(GC + 4 * n, 4), v(vL), s(sTAB, 4), s(sTmp), (n % 4) * 1024)
            e("v_and_b32 v14, 15, v0")
            e("v_mul_u32_u24 v14, 81920, v14")
            e("v_lshrrev_b32 v15, 4, v0")
            e("v_lshl_add_u32 %s, v15, 3, v14", v(vO))
            e("s_and_b32 %s, %s, 1", s(sTmp), s(sW))
            e("s_lshl_b32 %s, %s, 10", s(sTmp), s(sTmp))
            e("s_lshl_b32 %s, %s, 1", s(sDelta), s(sP))
            e("s_add_u32 %s, %s, %s", s(sTmp), s(sTmp), s(sDelta))
            e("s_lshr_b32 %s, %s, 1", s(sDelta), s(sW))
            e("s_add_u32 %s, %s, %s", s(sTmp), s(sTmp), s(sDelta))
            e("s_mul_i32 %s, %s, 1280", s(sTmp), s(sTmp))
            e("s_mul_i32 %s, %s, 160", s(sDelta), s(sGAM))
            e("s_add_u32 %s, %s, %s", s(sDelta), s(sDelta), s(sTmp))
    e("v_lshrrev_b32 v14, 5, v0")
    e("v_lshlrev_b32 v14, 4, v14")
    e("v_bfe_u32 v15, v0, 2, 3")
    e("v_add_u32 v14, v14, v15")
    e("v_mul_u32_u24 v14, 160, v14")
    e("v_and_b32 v15, 3, v0")
    e("v_lshl_add_u32 v14, v15, 3, v14")
    e("v_add_u32 %s, %s, v14", v(vTW), s(sLB))
    e("v_lshrrev_b32 v14, 5, v0")
    e("v_lshlrev_b32 v14, 3, v14")
    e("v_bfe_u32 v1, v0, 2, 2")
    e("v_add_u32 v14, v14, v1")
    e("v_lshlrev_b32 v14, 6, v14")
    e("v_lshl_add_u32 v14, v15, 4, v14")
    e("v_bfe_u32 v1, v0, 4, 1")
    e("v_lshl_add_u32 v14, v1, 3, v14")
    e("v_add_u32 %s, %s, v14", v(vTU), s(sLB))

    def mm(d, a_, b_, first=False):
        e("v_mfma_f32_16x16x32_bf16 %s, %s, %s, %s", v(d, 4), v(a_, 4), v(b_, 4), "0" if first else v(d, 4))
    def acc(ct, rt): return ACC + (ct * 4 + rt) * 4
    for i in range(NI):
        slot = (i % 4) * 5120
        rs = RS + (i % 4) * 20
        later = min(NI - 1, i + 2) - i
        e("s_waitcnt vmcnt(%d)", 9 * later + (8 if i == 0 else 0) + (5 if i >= 16 else 0))
        nd = dma(i + 3) if i + 3 < NI else []
        nr = regloads(i + 3) if i + 3 < NI else []
        if i == 15:
            nr = [(lambda ct=ct: e("buffer_load_dwordx2 %s, %s, %s, %s offen offset:%d", v(XR + 2 * ct, 2), v(vO), s(sX, 4), s(sDelta), ct * 32)) for ct in range(5)]
        if i < 12:
            for ct in range(5):
                for rd in range(2):
                    e("ds_read_b64_tr_b16 %s, %s offset:%d", v(WF + 4 * ct + 2 * rd, 2), v(vTW), slot + rd * 1280 + ct * 32)
            for f in nd:
                f()
            for ct in range(5):
                e("s_waitcnt lgkmcnt(%d)", 8 - 2 * ct)
                for rt in range(4):
                    mm(acc(ct, rt), WF + 4 * ct, rs + 4 * rt, i == 0)
                if ct < len(nr):
                    nr[ct]()
        else:
            UF, ZT, PK = 16, 32, 48
            for u in range(2):
                for kap in range(2):
                    for rd in range(2):
                        e("ds_read_b64_tr_b16 %s, %s offset:%d", v(UF + 8 * u + 4 * kap + 2 * rd, 2), v(vTU), slot + u * 2048 + kap * 1024 + rd * 256)
            for f in nd:
                f()
            def G(ro, nh, kap): return GC + ((ro * 2 + nh) * 2 + kap) * 4
            for u in range(2):
                e("s_waitcnt lgkmcnt(%d)", 4 - 4 * u)
                if u == 1:
                    pass
                for kap in range(2):
                    for nh in range(2):
                        for ro in range(2):
                            mm(ZT + (nh * 2 + ro) * 4, UF + 8 * u + 4 * kap, G(ro, nh, kap), kap == 0)
                e("s_nop 7")
                for nh in range(2):
                    for k in range(4):
                        e("v_cvt_pk_bf16_f32 %s, %s, %s", v(PK + (2 * u + nh) * 4 + k), v(ZT + nh * 8 + 2 * k), v(ZT + nh * 8 + 2 * k + 1))
            e("s_nop 1")
            for ct in range(5):
                for rt in range(4):
                    mm(acc(ct, rt), rs + 4 * ct, PK + 4 * rt)
                if ct < len(nr):
                    nr[ct]()
    e("v_add_u32 v14, %s, %s", s(sLB), v(vL))
    e("s_nop 6")
    for ct in range(5):
        for rt in range(4):
            e("ds_write_b128 v14, %s offset:%d", v(acc(ct, rt), 4), (rt * 5 + ct) * 1024)
    e("s_mul_i32 %s, %s, 5120", s(sTmp), s(sW))
    e("v_add_u32 v14, %s, %s", s(sTmp), v(vL))
    e("v_add_u32 v15, %d, v14", 2 * 40960)
    e("s_waitcnt lgkmcnt(0)")
    e("s_barrier")
    for ct in range(5):
        for sw in range(4):
            e("ds_read_b128 %s, %s offset:%d", v(ACC + (ct * 4 + sw) * 4, 4), "v15" if sw >= 2 else "v14", (sw & 1) * 40960 + ct * 1024)
    for ct in range(5):
        b = ACC + ct * 16
        e("s_waitcnt lgkmcnt(%d)%s", min(15, 16 - 4 * ct), " vmcnt(0)" if ct == 0 else "")
        for k in (0, 2):
            e("v_pk_add_f32 %s, %s, %s", v(b + k, 2), v(b + k, 2), v(b + 4 + k, 2))
            e("v_pk_add_f32 %s, %s, %s", v(b + 8 + k, 2), v(b + 8 + k, 2), v(b + 12 + k, 2))
        x0 = XR + 2 * ct
        e("v_lshlrev_b32 %s, 16, %s", v(b + 4), v(x0))
        e("v_and_b32 %s, 0xffff0000, %s", v(b + 5), v(x0))
        e("v_lshlrev_b32 %s, 16, %s", v(b + 6), v(x0 + 1))
        e("v_and_b32 %s, 0xffff0000, %s", v(b + 7), v(x0 + 1))
        for k in (0, 2):
            e("v_pk_add_f32 %s, %s, %s", v(b + k, 2), v(b + k, 2), v(b + 8 + k, 2))
        for k in (0, 2):
            e("v_pk_add_f32 %s, %s, %s", v(b + k, 2), v(b + k, 2), v(b + 4 + k, 2))
        e("v_cvt_pk_bf16_f32 %s, %s, %s", v(b + 8), v(b), v(b + 1))
        e("v_cvt_pk_bf16_f32 %s, %s, %s", v(b + 9), v(b + 2), v(b + 3))
        e("buffer_store_dwordx2 %s, %s, %s, %s offen offset:%d", v(b + 8, 2), v(vO), s(sOUT, 4), s(sDelta), ct * 32)


hdr = open("cdna_kernels/%s.s.ref" % NAME).read().split("; Override launch")[0]
A(hdr.rstrip())
A("; @launch kernel=k0_kernel grid=(256,1,1) block=(256,1,1) lds=0")
A("; @launch kernel=k1_kernel grid=(256,1,1) block=(512,1,1) lds=%d" % LDS_P1)
A("; @launch kernel=k2_kernel grid=(256,1,1) block=(192,1,1) lds=12288")
A("; @launch kernel=k3_kernel grid=(256,1,1) block=(256,1,1) lds=163840")
A('.amdgcn_target "amdgcn-amd-amdhsa--gfx950"')

kernel_header(A, "k0_kernel")
cur_end = "L_k0_end"
prologue(256, ["X", "G", "U", "WS"])
p1_map()
e("s_cmp_eq_u32 %s, 3", s(sTmp2))
e("s_cselect_b32 s62, 1, 0")
stats_issue(16)
e("s_cmp_eq_u32 s62, 1")
e("s_cbranch_scc1 L_k0_nocs")
cols_issue(64)
e("s_waitcnt vmcnt(0)")
cols_compute(64)
A.label("L_k0_nocs")
e("s_waitcnt vmcnt(0)")
stats_compute(16)
A.label(cur_end)
e("s_endpgm")

kernel_header(A, "k1_kernel")
cur_end = "L_k1_end"
prologue(256, ["X", "G", "U", "WS", "TAB"])
p1_map()
e("s_cmp_eq_u32 %s, 3", s(sTmp2))
e("s_cbranch_scc1 L_k1_dft")
e("s_cmp_ge_u32 %s, 4", s(sW))
e("s_cbranch_scc0 L_k1_ffn_c")
loader("F")
e("s_endpgm")
A.label("L_k1_ffn_c")
p1_ffn()
e("s_endpgm")
A.label("L_k1_dft")
e("s_cmp_eq_u32 %s, 0", s(sCG))
e("s_cbranch_scc1 L_k1_dft6")
for njb in (5, 6):
    if njb == 6:
        A.label("L_k1_dft6")
    e("s_cmp_ge_u32 %s, 4", s(sW))
    e("s_cbranch_scc0 L_k1_dft%d_c", njb)
    loader(njb)
    e("s_endpgm")
    A.label("L_k1_dft%d_c" % njb)
    p1_dft(njb)
    e("s_endpgm")
A.label(cur_end)
e("s_endpgm")

kernel_header(A, "k2_kernel")
cur_end = "L_k2_end"
prologue(256, ["WR", "WI", "WS", "TAB"])
e("s_and_b32 s3, s2, 7")
e("s_lshr_b32 %s, s2, 3", s(sTmp))
e("s_lshl_b32 %s, s3, 2", s(sK1))
e("s_lshr_b32 %s, %s, 3", s(sTmp2), s(sTmp))
e("s_add_u32 %s, %s, %s", s(sK1), s(sK1), s(sTmp2))
e("s_and_b32 %s, %s, 7", s(sTmp), s(sTmp))
e("s_cmp_eq_u32 %s, 7", s(sTmp))
e("s_cbranch_scc1 %s", cur_end)
e("s_mul_i32 %s, %s, 3", s(sJB), s(sTmp))
e("s_add_u32 %s, %s, %s", s(sJB), s(sJB), s(sW))
e("s_lshl_b32 s62, %s, 12", s(sW))
mid(62)
A.label(cur_end)
e("s_endpgm")

kernel_header(A, "k3_kernel")
cur_end = "L_k3_end"
prologue(256, ["X", "WD", "OUT", "WS", "TAB"])
p3()
A.label(cur_end)
e("s_endpgm")

for k in ("k0_kernel", "k1_kernel", "k2_kernel", "k3_kernel"):
    kernel_desc(A, k, 256, accum=256)
TB.emit_tables(A)
out = [x for x in sys.argv[1:] if not x.startswith("--")]
open(out[0] if out else "v1.s", "w").write(A.text())
```

```python
import sys
from asmlib import *
import tables as TB

NAME = "parallel_sum__spectral_gfnet__glu_gated_reglu__prompt"
A = Asm()
e = A.e

WS_FS = 0x0000
WS_FT = 0x1000
WS_FH = 0x2000
WS_FU = 0x4000
WS_EP = 0x6000
WS_STAT = 0x8000
WS_CSP = 0x10000
WS_H = 0x40000
WS_T = 0x640000
WS_U = 0x8E0000
WS_STAMP = 0x2000000

SLAB = 49152
AUX = 3 * SLAB
MIDL = AUX + 2048
P3L = SLAB
LDS_ALL = 163840

sX, sG, sU, sWS, sTAB, sWR, sWI, sWD, sOUT = 8, 12, 16, 20, 24, 28, 32, 36, 40
sW, sRB, sCG, sLW = 44, 45, 46, 47
sTmp, sTmp2, sCnt, sDelta, sBuf, sSLAB = 48, 49, 50, 51, 52, 53
sAoff, sBoff, sM0 = 54, 55, 56
sWM, sWN, sGAM = 57, 58, 59
sK1, sJB = 60, 61
sTAG, sSpin = 62, 63
P = 64

STAMPS = "--stamps" in sys.argv


nstamp = [0]
def stamp(i):
    if STAMPS:
        e("%s %s", "s_memtime" if "--cyc" in sys.argv else "s_memrealtime", s(84 + 2 * i, 2))
def stamps_flush():
    if not STAMPS:
        return
    e("s_waitcnt lgkmcnt(0)")
    for i in range(8):
        e("v_mov_b32 %s, %s", v(16 + i), s(84 + 2 * i))
    e("s_lshl_b32 s3, s2, 3")
    e("s_add_u32 s3, s3, %s", s(sW))
    e("s_lshl_b32 s3, s3, 5")
    e("s_add_u32 s3, s3, 0x%x", WS_STAMP)
    e("v_mov_b32 v5, 0")
    e("buffer_store_dwordx4 v[16:19], v5, %s, s3 offen", s(sWS, 4))
    e("buffer_store_dwordx4 v[20:23], v5, %s, s3 offen offset:16", s(sWS, 4))

def make_tag():
    e("s_mul_i32 %s, %s, 0x9E3779B1", s(sTAG), s(sTAG))
    e("s_add_u32 %s, %s, 0x7F4A7C15", s(sTAG), s(sTAG))

def flag_store(soff, t0, t1):
    e("v_mov_b32 %s, %s", v(t0), s(sTAG))
    e("v_mov_b32 %s, 0", v(t1))
    e("s_mov_b64 exec, 1")
    e("buffer_store_dword %s, %s, %s, %s offen sc1", v(t0), v(t1), s(sWS, 4), s(soff))
    e("s_mov_b64 exec, -1")

def poll_issue(dst, n, vaddr, base):
    e("s_mov_b32 %s, 0x%x", s(sTmp), base)
    e("buffer_load_dword%s %s, %s, %s, %s offen sc1", "" if n == 1 else "x%d" % n, v(dst, n), v(vaddr), s(sWS, 4), s(sTmp))

def poll_check(dst, n, vaddr, base):
    top, done = A.newlabel("L_poll"), A.newlabel("L_polld")
    e("s_mov_b32 %s, 0", s(sSpin))
    A.label(top)
    e("v_cmp_ne_u32 vcc, %s, %s", s(sTAG), v(dst))
    for i in range(1, n):
        e("v_cmp_ne_u32 s[4:5], %s, %s", s(sTAG), v(dst + i))
        e("s_or_b64 vcc, vcc, s[4:5]")
    e("s_cmp_eq_u64 vcc, 0")
    e("s_cbranch_scc1 %s", done)
    e("s_add_u32 %s, %s, 1", s(sSpin), s(sSpin))
    e("s_cmp_ge_u32 %s, 40000", s(sSpin))
    e("s_cbranch_scc1 %s", done)
    poll_issue(dst, n, vaddr, base)
    e("s_waitcnt vmcnt(0)")
    e("s_branch %s", top)
    A.label(done)


def prologue(nwg, srds):
    e("s_cmp_ge_u32 s2, %d", nwg)
    e("s_cbranch_scc1 %s", cur_end)
    e("s_load_dwordx16 %s, s[0:1], 0", s(P, 16))
    e("s_load_dwordx4 %s, s[0:1], 64", s(P + 16, 4))
    e("v_lshrrev_b32 v1, 6, v0")
    e("v_and_b32 v0, 63, v0")
    e("v_readfirstlane_b32 %s, v1", s(sW))
    if "TAB" in srds:
        e("s_getpc_b64 s[4:5]")
        e("s_add_u32 s4, s4, dft_tables@rel32@lo+4")
        e("s_addc_u32 s5, s5, dft_tables@rel32@hi+12")
        srd(A, sTAB, 4, TB.TAB_BYTES)
    e("s_and_b32 %s, %s, 3", s(sLW), s(sW))
    e("s_waitcnt lgkmcnt(0)")
    tab = {"X": (sX, P, 2048 * 1280), "WR": (sWR, P + 2, 2048 * 642), "WI": (sWI, P + 4, 2048 * 642),
           "G": (sG, P + 8, 640 * 3072), "U": (sU, P + 10, 640 * 3072), "WD": (sWD, P + 12, 1536 * 1280),
           "OUT": (sOUT, P + 14, 2048 * 1280), "WS": (sWS, P + 18, 1 << 28)}
    e("s_load_dword %s, %s, 0x%x", s(sTAG), s(P + 18, 2), WS_EP)
    for k in srds:
        if k != "TAB":
            srd(A, *tab[k])


def p1_map():
    e("s_and_b32 s3, s2, 7")
    e("s_lshr_b32 %s, s2, 3", s(sTmp))
    e("s_and_b32 %s, s3, 1", s(sRB))
    e("s_lshl_b32 %s, %s, 3", s(sRB), s(sRB))
    e("s_and_b32 %s, %s, 7", s(sCnt), s(sTmp))
    e("s_add_u32 %s, %s, %s", s(sRB), s(sRB), s(sCnt))
    e("s_lshr_b32 %s, %s, 3", s(sTmp2), s(sTmp))
    e("s_lshr_b32 s3, s3, 1")
    e("s_lshl_b32 %s, s3, 2", s(sGAM))
    e("s_add_u32 %s, %s, %s", s(sGAM), s(sGAM), s(sTmp2))
    e("s_mul_i32 %s, s3, 3", s(sCG))
    e("s_add_u32 %s, %s, %s", s(sCG), s(sCG), s(sTmp2))
    e("s_cmp_eq_u32 %s, 3", s(sTmp2))
    e("s_cselect_b32 %s, s3, %s", s(sCG), s(sCG))


def dpp_sum16(r, tmp=None):
    for ctl in ("quad_perm:[1,0,3,2]", "quad_perm:[2,3,0,1]", "row_half_mirror", "row_mirror"):
        e("s_nop 1")
        e("v_add_f32_dpp %s, %s, %s %s row_mask:0xf bank_mask:0xf", v(r), v(r), v(r), ctl)


def sum32(r, tmp):
    dpp_sum16(r)
    e("v_mov_b32 %s, %s", v(tmp), v(r))
    e("s_nop 1")
    e("v_permlane16_swap_b32 %s, %s", v(r), v(tmp))
    e("s_nop 1")
    e("v_add_f32 %s, %s, %s", v(r), v(r), v(tmp))


def round_bf16(r):
    e("v_cvt_pk_bf16_f32 %s, %s, %s", v(r), v(r), v(r))
    e("v_and_b32 %s, 0xffff0000, %s", v(r), v(r))


def stats_issue(R):
    e("s_lshl_b32 %s, %s, 3", s(sTmp), s(sGAM))
    e("s_lshl_b32 %s, %s, 1", s(sTmp2), s(sLW))
    e("s_add_u32 %s, %s, %s", s(sTmp), s(sTmp), s(sTmp2))
    e("v_lshrrev_b32 %s, 5, v0", v(R + 10))
    e("v_add_u32 %s, %s, %s", v(R + 11), s(sTmp), v(R + 10))
    e("v_and_b32 %s, 31, %s", v(R + 10), v(R + 11))
    e("v_lshlrev_b32 %s, 6, %s", v(R + 10), v(R + 10))
    e("v_lshrrev_b32 %s, 5, %s", v(R + 12), v(R + 11))
    e("v_add_u32 %s, %s, %s", v(R + 10), v(R + 10), v(R + 12))
    e("s_lshl_b32 %s, %s, 2", s(sTmp), s(sRB))
    e("v_add_u32 %s, %s, %s", v(R + 10), s(sTmp), v(R + 10))
    e("v_mul_u32_u24 %s, 1280, %s", v(R + 10), v(R + 10))
    e("v_and_b32 %s, 31, v0", v(R + 12))
    e("v_lshl_add_u32 %s, %s, 3, %s", v(R + 10), v(R + 12), v(R + 10))
    for n in range(5):
        e("buffer_load_dwordx2 %s, %s, %s, 0 offen offset:%d", v(R + 2 * n, 2), v(R + 10), s(sX, 4), n * 256)


def stats_compute(R):
    F = R + 14
    for n in range(10):
        e("v_lshlrev_b32 %s, 16, %s", v(F + 2 * n), v(R + n))
        e("v_and_b32 %s, 0xffff0000, %s", v(F + 2 * n + 1), v(R + n))
    S_, T_ = R + 12, R + 13
    e("v_add_f32 %s, %s, %s", v(S_), v(F), v(F + 1))
    for n in range(2, 20):
        e("v_add_f32 %s, %s, %s", v(S_), v(S_), v(F + n))
    sum32(S_, T_)
    e("v_mul_f32 %s, 0x3acccccd, %s", v(S_), v(S_))
    for n in range(20):
        e("v_sub_f32 %s, %s, %s", v(F + n), v(F + n), v(S_))
    V_ = R + 0
    e("v_mul_f32 %s, %s, %s", v(V_), v(F), v(F))
    for n in range(1, 20):
        e("v_fmac_f32 %s, %s, %s", v(V_), v(F + n), v(F + n))
    sum32(V_, T_)
    e("v_mul_f32 %s, 0x3acccccd, %s", v(V_), v(V_))
    round_bf16(V_)
    e("v_add_f32 %s, 0x3727c5ac, %s", v(V_), v(V_))
    round_bf16(V_)
    e("v_sqrt_f32 %s, %s", v(V_), v(V_))
    e("s_nop 0")
    round_bf16(V_)
    e("v_rcp_f32 %s, %s", v(V_), v(V_))
    round_bf16(S_)
    e("v_and_b32 %s, 31, v0", v(T_))
    e("v_cmp_eq_u32 vcc, 1, %s", v(T_))
    e("v_lshlrev_b32 %s, 2, %s", v(R + 1), v(R + 11))
    e("v_lshl_add_u32 %s, %s, 9, %s", v(R + 1), v(T_), v(R + 1))
    e("v_cndmask_b32 %s, %s, %s, vcc", v(V_), v(V_), v(S_))
    e("v_cmp_gt_u32 vcc, 2, %s", v(T_))
    e("s_lshl_b32 %s, %s, 10", s(sTmp), s(sRB))
    e("s_add_u32 %s, %s, 0x%x", s(sTmp), s(sTmp), WS_STAT)
    e("s_and_saveexec_b64 s[4:5], vcc")
    e("buffer_store_dword %s, %s, %s, %s offen sc1", v(V_), v(R + 1), s(sWS, 4), s(sTmp))
    e("s_mov_b64 exec, s[4:5]")


def cols_issue(R):
    e("v_lshrrev_b32 %s, 4, v0", v(R + 20))
    e("v_mul_u32_u24 %s, 3072, %s", v(R + 20), v(R + 20))
    e("v_and_b32 %s, 15, v0", v(R + 21))
    e("v_lshl_add_u32 %s, %s, 3, %s", v(R + 20), v(R + 21), v(R + 20))
    e("s_mul_i32 %s, %s, %d", s(sTmp), s(sRB), 40 * 3072)
    e("s_lshl_b32 %s, %s, 8", s(sTmp2), s(sCG))
    e("s_add_u32 %s, %s, %s", s(sTmp), s(sTmp), s(sTmp2))
    e("s_and_b32 %s, %s, 1", s(sTmp2), s(sLW))
    e("s_lshl_b32 %s, %s, 7", s(sTmp2), s(sTmp2))
    e("s_add_u32 %s, %s, %s", s(sTmp), s(sTmp), s(sTmp2))
    lab, lab2 = A.newlabel("L_csu"), A.newlabel("L_csd")
    e("s_cmp_ge_u32 %s, 2", s(sLW))
    e("s_cbranch_scc1 %s", lab)
    for mat in range(2):
        if mat == 1:
            e("s_branch %s", lab2)
            A.label(lab)
        for n in range(10):
            e("buffer_load_dwordx2 %s, %s, %s, %s offen", v(R + 2 * n, 2), v(R + 20), s(sU if mat else sG, 4), s(sTmp))
            if n < 9:
                e("s_add_u32 %s, %s, %d", s(sTmp), s(sTmp), 4 * 3072)
    A.label(lab2)


def cols_compute(R):
    C_, T_ = R + 22, R + 26
    for n in range(10):
        D_ = C_ if n == 0 else T_
        e("v_lshlrev_b32 %s, 16, %s", v(D_), v(R + 2 * n))
        e("v_and_b32 %s, 0xffff0000, %s", v(D_ + 1), v(R + 2 * n))
        e("v_lshlrev_b32 %s, 16, %s", v(D_ + 2), v(R + 2 * n + 1))
        e("v_and_b32 %s, 0xffff0000, %s", v(D_ + 3), v(R + 2 * n + 1))
        if n:
            e("v_pk_add_f32 %s, %s, %s", v(C_, 2), v(C_, 2), v(T_, 2))
            e("v_pk_add_f32 %s, %s, %s", v(C_ + 2, 2), v(C_ + 2, 2), v(T_ + 2, 2))
    for op in ("v_permlane16_swap_b32", "v_permlane32_swap_b32"):
        for i in range(4):
            e("v_mov_b32 %s, %s", v(T_ + i), v(C_ + i))
        e("s_nop 1")
        for i in range(4):
            e("%s %s, %s", op, v(C_ + i), v(T_ + i))
        e("s_nop 1")
        for i in range(4):
            e("v_add_f32 %s, %s, %s", v(C_ + i), v(C_ + i), v(T_ + i))
    e("s_mul_i32 %s, %s, 12288", s(sTmp), s(sRB))
    e("s_lshl_b32 %s, %s, 10", s(sTmp2), s(sCG))
    e("s_add_u32 %s, %s, %s", s(sTmp), s(sTmp), s(sTmp2))
    e("s_lshl_b32 %s, %s, 8", s(sTmp2), s(sLW))
    e("s_add_u32 %s, %s, %s", s(sTmp), s(sTmp), s(sTmp2))
    e("s_add_u32 %s, %s, 0x%x", s(sTmp), s(sTmp), WS_CSP)
    e("v_lshlrev_b32 %s, 4, v0", v(T_))
    e("v_cmp_gt_u32 vcc, 16, v0")
    e("s_and_saveexec_b64 s[4:5], vcc")
    e("buffer_store_dwordx4 %s, %s, %s, %s offen sc1", v(C_, 4), v(T_), s(sWS, 4), s(sTmp))
    e("s_mov_b64 exec, s[4:5]")


vA0, vA1, vB, vLin = 2, 3, 4, 5


def loader_setup(kind):
    e("v_lshrrev_b32 v6, 3, v0")
    e("s_mov_b32 %s, 81920", s(sTmp))
    e("v_mul_lo_u32 v6, v6, %s", s(sTmp))
    e("v_and_b32 v7, 7, v0")
    e("v_lshrrev_b32 v8, 4, v0")
    e("v_xor_b32 v7, v7, v8")
    e("v_lshl_add_u32 %s, v7, 4, v6", v(vA0))
    e("v_xor_b32 %s, 64, %s", v(vA1), v(vA0))
    e("s_lshl_b32 %s, %s, 2", s(sAoff), s(sRB))
    e("s_add_u32 %s, %s, %s", s(sAoff), s(sAoff), s(sLW))
    e("s_mul_i32 %s, %s, 1280", s(sAoff), s(sAoff))
    e("s_mov_b32 %s, 0", s(sM0))
    if kind == "F":
        e("v_mul_u32_u24 v6, 3072, v8")
        e("v_and_b32 v7, 15, v0")
        e("v_lshlrev_b32 v8, 2, v8")
        e("v_xor_b32 v7, v7, v8")
        e("v_lshl_add_u32 %s, v7, 4, v6", v(vB))
        e("s_mul_i32 %s, %s, %d", s(sBoff), s(sLW), 16 * 3072)
        e("s_lshl_b32 %s, %s, 8", s(sTmp), s(sCG))
        e("s_add_u32 %s, %s, %s", s(sBoff), s(sBoff), s(sTmp))
    else:
        njb = kind
        e("v_lshlrev_b32 %s, 4, v0", v(vB))
        if njb == 6:
            e("s_mul_i32 %s, %s, %d", s(sBoff), s(sLW), 6 * 1024)
        else:
            e("s_mul_i32 %s, %s, %d", s(sBoff), s(sCG), 40 * 5 * 1024)
            e("s_mul_i32 %s, %s, %d", s(sTmp), s(sLW), 5 * 1024)
            e("s_add_u32 %s, %s, %s", s(sBoff), s(sBoff), s(sTmp))
            e("s_add_u32 %s, %s, %d", s(sBoff), s(sBoff), 40 * 1024)
    e("s_lshl_b32 %s, %s, 12", s(sWM), s(sLW))
    if kind == "F":
        e("s_add_u32 %s, %s, 16384", s(sWN), s(sWM))
    else:
        e("s_mul_i32 %s, %s, %d", s(sWN), s(sLW), kind * 1024)
        e("s_add_u32 %s, %s, 16384", s(sWN), s(sWN))


def loader_slab(kind):
    e("s_add_u32 %s, %s, %s", s(sTmp2), s(sM0), s(sWM))
    for q in range(4):
        e("s_add_u32 m0, %s, %d", s(sTmp2), q * 1024)
        e("s_add_u32 %s, %s, %d", s(sTmp), s(sAoff), q * 8 * 81920)
        e("buffer_load_dwordx4 %s, %s, %s offen lds", v(vA1 if q & 1 else vA0), s(sX, 4), s(sTmp))
    e("s_add_u32 %s, %s, %s", s(sTmp2), s(sM0), s(sWN))
    if kind == "F":
        for mat in range(2):
            for q in range(4):
                e("s_add_u32 m0, %s, %d", s(sTmp2), 16384 * mat + q * 1024)
                e("s_add_u32 %s, %s, %d", s(sTmp), s(sBoff), q * 4 * 3072)
                e("buffer_load_dwordx4 %s, %s, %s offen lds", v(vB), s(sU if mat else sG, 4), s(sTmp))
        step = 64 * 3072
    else:
        for tl in range(kind):
            if tl % 4 == 0:
                e("s_add_u32 m0, %s, %d", s(sTmp2), tl * 1024)
                e("s_add_u32 %s, %s, %d", s(sTmp), s(sBoff), tl * 1024)
            e("buffer_load_dwordx4 %s, %s, %s offen offset:%d lds", v(vB), s(sTAB, 4), s(sTmp), (tl % 4) * 1024)
        step = 4 * kind * 1024
    e("s_add_u32 %s, %s, 128", s(sAoff), s(sAoff))
    e("s_add_u32 %s, %s, %d", s(sBoff), s(sBoff), step)
    e("s_add_u32 %s, %s, %d", s(sM0), s(sM0), SLAB)
    e("s_cmp_ge_u32 %s, %d", s(sM0), 3 * SLAB)
    e("s_cselect_b32 %s, 0, %s", s(sM0), s(sM0))


def aux_issue(kind, R):
    e("v_and_b32 %s, 31, v0", v(R))
    e("v_lshrrev_b32 %s, 5, v0", v(R + 1))
    e("v_lshlrev_b32 %s, 2, %s", v(R), v(R))
    e("v_lshl_add_u32 %s, %s, 9, %s", v(R), v(R + 1), v(R))
    e("s_lshl_b32 %s, %s, 7", s(sTmp), s(sLW))
    e("v_add_u32 %s, %s, %s", v(R), s(sTmp), v(R))
    e("s_lshl_b32 %s, %s, 10", s(sTmp), s(sRB))
    e("s_add_u32 %s, %s, 0x%x", s(sTmp), s(sTmp), WS_STAT)
    e("buffer_load_dword %s, %s, %s, %s offen sc1", v(R + 2), v(R), s(sWS, 4), s(sTmp))
    if kind == "F":
        e("v_lshlrev_b32 %s, 2, v0", v(R + 1))
        e("s_lshl_b32 %s, %s, 8", s(sTmp), s(sLW))
        e("v_add_u32 %s, %s, %s", v(R + 1), s(sTmp), v(R + 1))
        e("s_lshl_b32 %s, %s, 10", s(sTmp), s(sCG))
        e("s_add_u32 %s, %s, 0x%x", s(sTmp), s(sTmp), WS_CSP)
        for n in range(16):
            e("buffer_load_dword %s, %s, %s, %s offen sc1", v(R + 3 + n), v(R + 1), s(sWS, 4), s(sTmp))
            if n < 15:
                e("s_add_u32 %s, %s, 12288", s(sTmp), s(sTmp))
        return 17
    return 1


def aux_finish(kind, R):
    e("v_add_u32 %s, %d, %s", v(R), AUX, v(R))
    e("ds_write_b32 %s, %s", v(R), v(R + 2))
    if kind == "F":
        for n in range(1, 16):
            e("v_add_f32 %s, %s, %s", v(R + 3), v(R + 3), v(R + 3 + n))
        e("v_add_u32 %s, %d, %s", v(R + 1), AUX + 1024, v(R + 1))
        e("ds_write_b32 %s, %s", v(R + 1), v(R + 3))
    e("s_waitcnt lgkmcnt(0)")


def loader(kind):
    F = kind == "F"
    nd = 12 if F else 4 + kind
    nside = 15 if F else 5
    nst = 2 if F else 1
    loader_setup(kind)
    loader_slab(kind)
    stats_issue(16)
    if F:
        cols_issue(64)
    loader_slab(kind)
    loader_slab(kind)
    stamp(1)
    e("s_waitcnt vmcnt(%d) lgkmcnt(0)", 2 * nd + nside)
    e("s_barrier")
    stamp(2)
    make_tag()
    e("s_waitcnt vmcnt(%d)", 2 * nd)
    stats_compute(16)
    e("s_waitcnt vmcnt(%d)", nd + 1)
    e("s_barrier")
    loader_slab(kind)
    if F:
        cols_compute(64)
    e("s_waitcnt vmcnt(%d)", nd + (1 if F else 0))
    e("s_barrier")
    loader_slab(kind)
    e("s_waitcnt vmcnt(%d)", nd)
    e("s_barrier")
    e("s_lshl_b32 %s, %s, 4", s(sCnt), s(sRB))
    e("s_add_u32 %s, %s, %s", s(sCnt), s(sCnt), s(sGAM))
    e("s_lshl_b32 %s, %s, 2", s(sCnt), s(sCnt))
    e("s_add_u32 %s, %s, %s", s(sCnt), s(sCnt), s(sLW))
    e("s_lshl_b32 %s, %s, 2", s(sCnt), s(sCnt))
    flag_store(sCnt, 16, 17)
    loader_slab(kind)
    e("v_and_b32 v16, 15, v0")
    e("s_lshl_b32 %s, %s, 2", s(sTmp), s(sRB))
    e("s_add_u32 %s, %s, %s", s(sTmp), s(sTmp), s(sLW))
    e("s_lshl_b32 %s, %s, 4", s(sTmp), s(sTmp))
    e("v_add_u32 v17, %s, v16", s(sTmp))
    if F:
        e("s_lshl_b32 %s, %s, 2", s(sTmp), s(sGAM))
        e("s_add_u32 %s, %s, %s", s(sTmp), s(sTmp), s(sLW))
        e("v_lshlrev_b32 v16, 6, v16")
        e("v_add_u32 v16, %s, v16", s(sTmp))
        e("v_cmp_gt_u32 vcc, 16, v0")
        e("s_nop 1")
        e("v_cndmask_b32 v17, v16, v17, vcc")
    e("v_lshlrev_b32 v40, 2, v17")
    e("s_mov_b32 %s, 3", s(sCnt))
    lab = A.newlabel("L_ld")
    A.label(lab)
    e("s_waitcnt vmcnt(%d)", nd)
    e("s_barrier")
    loader_slab(kind)
    e("s_add_u32 %s, %s, 1", s(sCnt), s(sCnt))
    e("s_cmp_lt_u32 %s, 6", s(sCnt))
    e("s_cbranch_scc1 %s", lab)
    e("s_waitcnt vmcnt(%d)", nd)
    e("s_barrier")
    poll_issue(41, 1, 40, WS_FS)
    loader_slab(kind)
    e("s_waitcnt vmcnt(%d)", nd)
    poll_check(41, 1, 40, WS_FS)
    aux_issue(kind, 16)
    e("s_barrier")
    e("s_waitcnt vmcnt(0)")
    aux_finish(kind, 16)
    e("s_barrier")
    stamp(3)
    e("s_branch L_mid")


def addr_advance(regs):
    e("s_add_u32 %s, %s, %d", s(sBuf), s(sBuf), SLAB)
    e("s_cmp_ge_u32 %s, %d", s(sBuf), 3 * SLAB)
    e("s_cselect_b32 %s, 0, %s", s(sBuf), s(sBuf))
    e("s_cselect_b32 %s, %d, %s", s(sDelta), (-2 * SLAB) & 0xffffffff, s(sSLAB))
    for r_ in regs:
        e("v_add_u32 %s, %s, %s", v(r_), s(sDelta), v(r_))


def step(mf, need, nreads, nxt, first_gap=0, pre=None, per_gap=2):
    issued, done = 0, 0
    for m in range(len(mf)):
        if need[m] > done:
            e("s_waitcnt lgkmcnt(%d)", min(15, nreads - need[m] + issued))
            done = need[m]
        mf[m]()
        if pre and m in pre:
            for f in pre[m]:
                f()
            if "bar" in pre and pre["bar"] == m:
                done = nreads
        if m >= first_gap:
            for k in range(per_gap):
                if issued < len(nxt):
                    nxt[issued]()
                    issued += 1
    assert issued == len(nxt), (issued, len(nxt))


def gemm_loop(mfmas, reads, need, areg, bar_gap, last_extra=None):
    nreads = len(reads(0, 0))
    e("s_mov_b32 %s, 0", s(sBuf))
    e("s_mov_b32 %s, %d", s(sSLAB), SLAB)
    e("s_waitcnt lgkmcnt(0)")
    make_tag()
    stamp(1)
    e("s_barrier")
    stamp(2)
    for f in reads(0, 0):
        f()

    def bar():
        e("s_waitcnt lgkmcnt(0)")
        e("s_barrier")

    def slab(last):
        ex = list(last_extra) if (last and last_extra) else []
        nm = len(need)
        def take(k):
            out = {}
            for g in range(nm - 1, -1, -1):
                if len(out) < k and ex:
                    out[g] = None
            for g in sorted(out):
                out[g] = [ex.pop(0)]
            return out
        per = (len(ex) + 3) // 4
        for t in range(3):
            step(mfmas(t & 1), need, nreads, reads((t + 1) & 1, t + 1), pre=take(min(per, len(ex))))
        if last:
            step(mfmas(1), need, nreads, [], pre=take(len(ex)))
            assert not ex
        else:
            step(mfmas(1), need, nreads, reads(0, 0), first_gap=bar_gap + 1 if len(need) > 6 else bar_gap,
                 pre={0: [lambda: addr_advance(areg)] + ([bar] if bar_gap == 0 else []), **({bar_gap: [bar]} if bar_gap else {}), "bar": bar_gap})
    e("s_mov_b32 %s, 0", s(sCnt))
    lab = A.newlabel("L_gemm")
    A.label(lab)
    slab(False)
    e("s_add_u32 %s, %s, 1", s(sCnt), s(sCnt))
    e("s_cmp_lt_u32 %s, 9", s(sCnt))
    e("s_cbranch_scc1 %s", lab)
    slab(True)


vXA = 8


def x_addr(rowbase_sgpr):
    e("v_and_b32 v5, 31, v0")
    e("v_lshlrev_b32 v5, 7, v5")
    e("v_add_u32 v5, %s, v5", s(rowbase_sgpr))
    e("v_lshrrev_b32 v6, 5, v0")
    e("v_bfe_u32 v7, v0, 1, 3")
    e("v_xor_b32 v6, v6, v7")
    e("v_lshl_add_u32 %s, v6, 4, v5", v(vXA))
    for t in range(1, 4):
        e("v_xor_b32 %s, %d, %s", v(vXA + t), t << 5, v(vXA))


def p1_ffn():
    vWA, FR, ACC = 12, 16, 64
    p3_early_setup()
    e("s_and_b32 %s, %s, 1", s(sWM), s(sW))
    e("s_lshr_b32 %s, %s, 1", s(sWN), s(sW))
    e("s_lshl_b32 %s, %s, 13", s(sTmp), s(sWM))
    x_addr(sTmp)
    e("v_lshrrev_b32 v5, 5, v0")
    e("v_bfe_u32 v6, v0, 2, 2")
    e("v_lshl_add_u32 v5, v5, 3, v6")
    e("v_lshlrev_b32 v5, 8, v5")
    e("s_lshl_b32 %s, %s, 1", s(sTmp), s(sWN))
    e("v_xor_b32 v6, %s, v6", s(sTmp))
    e("v_lshl_add_u32 v5, v6, 6, v5")
    e("v_bfe_u32 v6, v0, 4, 1")
    e("v_lshl_add_u32 v5, v6, 5, v5")
    e("v_and_b32 v6, 3, v0")
    e("v_lshl_add_u32 %s, v6, 3, v5", v(vWA))
    e("v_xor_b32 %s, 64, %s", v(vWA + 1), v(vWA))
    for i in range(128):
        e("v_mov_b32 %s, 0", v(ACC + i))

    def acc(mat, ft, st): return ACC + ((mat * 2 + ft) * 2 + st) * 16
    def xf(p, st): return FR + p * 24 + st * 4
    def wf(p, mat, ft): return FR + p * 24 + 8 + (mat * 2 + ft) * 4

    def reads(p, t):
        def rx(st): return lambda: e("ds_read_b128 %s, %s offset:%d", v(xf(p, st), 4), v(vXA + t), st * 4096)
        def rw(mat, ft, rd): return lambda: e("ds_read_b64_tr_b16 %s, %s offset:%d", v(wf(p, mat, ft) + 2 * rd, 2), v(vWA + ft), 16384 * (1 + mat) + t * 4096 + rd * 1024)
        return [rx(0), rw(0, 0, 0), rw(0, 0, 1), rx(1), rw(1, 0, 0), rw(1, 0, 1), rw(0, 1, 0), rw(0, 1, 1), rw(1, 1, 0), rw(1, 1, 1)]
    morder = [(0, 0, 0), (0, 0, 1), (1, 0, 0), (1, 0, 1), (0, 1, 0), (0, 1, 1), (1, 1, 0), (1, 1, 1)]

    def mfmas(p):
        return [(lambda m=m: e("v_mfma_f32_32x32x16_bf16 %s, %s, %s, %s", v(acc(*m), 16), v(wf(p, m[0], m[1]), 4), v(xf(p, m[2]), 4), v(acc(*m), 16))) for m in morder]
    gemm_loop(mfmas, reads, [3, 4, 6, 6, 8, 8, 10, 10], [vXA + i for i in range(6)], 1, p3_early_ops())
    stamp(3)

    e("v_and_b32 v5, 31, v0")
    e("v_lshlrev_b32 v5, 2, v5")
    e("s_lshl_b32 %s, %s, 8", s(sTmp), s(sWM))
    e("s_add_u32 %s, %s, %d", s(sTmp), s(sTmp), AUX)
    e("v_add_u32 v5, %s, v5", s(sTmp))
    e("ds_read_b32 v16, v5")
    e("ds_read_b32 v18, v5 offset:128")
    e("ds_read_b32 v20, v5 offset:512")
    e("ds_read_b32 v22, v5 offset:640")
    e("v_lshrrev_b32 v6, 5, v0")
    e("v_lshlrev_b32 v6, 4, v6")
    e("s_lshl_b32 %s, %s, 8", s(sTmp), s(sWN))
    e("s_add_u32 %s, %s, %d", s(sTmp), s(sTmp), AUX + 1024)
    e("v_add_u32 v6, %s, v6", s(sTmp))
    CS = 192
    for ft in range(2):
        for mat in range(2):
            for jj in range(4):
                e("ds_read_b128 %s, v6 offset:%d", v(CS + (ft * 2 + mat) * 16 + jj * 4, 4), mat * 512 + ft * 128 + jj * 32)
    e("s_lshl_b32 %s, %s, 2", s(sTmp), s(sRB))
    e("s_lshl_b32 s3, %s, 1", s(sWM))
    e("s_add_u32 %s, %s, s3", s(sTmp), s(sTmp))
    e("s_mul_i32 %s, %s, %d", s(sTmp), s(sTmp), 48 * 2048)
    e("s_lshl_b32 s3, %s, 2", s(sCG))
    e("s_lshl_b32 %s, %s, 1", s(sCnt), s(sWN))
    e("s_add_u32 s3, s3, %s", s(sCnt))
    e("s_lshl_b32 s3, s3, 11")
    e("s_add_u32 %s, %s, s3", s(sDelta), s(sTmp))
    e("v_bfe_u32 v5, v0, 4, 1")
    e("v_lshlrev_b32 v5, 10, v5")
    e("v_lshrrev_b32 v6, 5, v0")
    e("v_lshl_add_u32 v5, v6, 8, v5")
    e("v_and_b32 v6, 15, v0")
    e("v_lshl_add_u32 v5, v6, 4, v5")
    e("s_waitcnt lgkmcnt(8)")
    e("v_mul_f32 v16, v16, v16")
    e("v_mul_f32 v18, v18, v18")
    for ft in range(2):
        if ft == 1:
            e("s_waitcnt lgkmcnt(0)")
        for st in range(2):
            g0, u0 = acc(0, ft, st), acc(1, ft, st)
            cg_, cu_ = CS + (ft * 2) * 16, CS + (ft * 2 + 1) * 16
            rr, mm = 16 + 2 * st, 20 + 2 * st
            for i in range(0, 16, 2):
                e("v_pk_fma_f32 %s, %s, %s, %s op_sel_hi:[1,0,1] neg_lo:[0,1,0] neg_hi:[0,1,0]", v(g0 + i, 2), v(cg_ + i, 2), v(mm, 2), v(g0 + i, 2))
                e("v_pk_fma_f32 %s, %s, %s, %s op_sel_hi:[1,0,1] neg_lo:[0,1,0] neg_hi:[0,1,0]", v(u0 + i, 2), v(cu_ + i, 2), v(mm, 2), v(u0 + i, 2))
            for i in range(16):
                e("v_max_f32 %s, 0, %s", v(g0 + i), v(g0 + i))
            for i in range(0, 16, 2):
                e("v_pk_mul_f32 %s, %s, %s op_sel_hi:[1,0]", v(u0 + i, 2), v(u0 + i, 2), v(rr, 2))
            for i in range(0, 16, 2):
                e("v_pk_mul_f32 %s, %s, %s", v(g0 + i, 2), v(g0 + i, 2), v(u0 + i, 2))
            for i in range(8):
                e("v_cvt_pk_bf16_f32 %s, %s, %s", v(u0 + i), v(g0 + 2 * i), v(g0 + 2 * i + 1))
            e("s_add_u32 %s, %s, %d", s(sTmp), s(sDelta), WS_H + st * 48 * 2048 + ft * 2048)
            for q in range(2):
                e("buffer_store_dwordx4 %s, v5, %s, %s offen offset:%d sc1", v(u0 + 4 * q, 4), s(sWS, 4), s(sTmp), q * 512)
    e("s_lshl_b32 %s, %s, 1", s(sK1), s(sRB))
    e("s_add_u32 %s, %s, %s", s(sK1), s(sK1), s(sWM))
    e("s_lshl_b32 %s, %s, 1", s(sK1), s(sK1))
    e("s_add_u32 %s, %s, %s", s(sK1), s(sK1), s(sWN))
    e("s_lshl_b32 %s, %s, 4", s(sK1), s(sK1))
    e("s_add_u32 %s, %s, %s", s(sK1), s(sK1), s(sCG))
    e("s_lshl_b32 %s, %s, 2", s(sK1), s(sK1))
    e("s_add_u32 %s, %s, 0x%x", s(sK1), s(sK1), WS_FH)
    e("s_branch L_p3")


def p1_dft(njb):
    vCA, FR, ACC, FC = 12, 16, 80, 176
    p3_early_setup()
    e("s_lshl_b32 %s, %s, 12", s(sTmp), s(sW))
    x_addr(sTmp)
    e("v_lshlrev_b32 %s, 4, v0", v(vCA))
    for i in range(16 * njb):
        e("v_mov_b32 %s, 0", v(ACC + i))
    e("s_lshl_b32 %s, %s, 2", s(sK1), s(sRB))
    e("s_add_u32 %s, %s, %s", s(sK1), s(sK1), s(sW))
    e("v_and_b32 v5, 31, v0")
    e("v_lshrrev_b32 v6, 5, v0")
    e("v_lshlrev_b32 v6, 8, v6")
    e("v_add_u32 v6, %s, v6", s(sK1))
    e("v_mul_u32_u24 v6, v6, v5")
    for kap in range(2):
        for i2 in range(4):
            for b in range(2):
                i = 2 * i2 + b
                s0 = 16 * kap + 8 * (i >> 2) + (i & 3)
                e("v_mul_u32_u24 v7, %d, v5", 64 * s0)
                e("v_add_u32 v7, v7, v6")
                e("v_and_b32 v7, 0x7ff, v7")
                e("v_cvt_f32_u32 v7, v7")
                e("v_mul_f32 v7, 0x3a000000, v7")
                e("v_cos_f32 %s, v7", v(18 + b))
                e("v_sin_f32 %s, v7", v(16 + b))
            e("s_nop 0")
            e("v_cvt_pk_bf16_f32 %s, v18, v19", v(FC + kap * 4 + i2))
            e("v_cvt_pk_bf16_f32 %s, -v16, -v17", v(FC + 8 + kap * 4 + i2))

    per = 4 + 4 * njb
    def xf(p): return FR + p * 28
    def cf(p, tl): return FR + p * 28 + 4 + 4 * tl

    def reads(p, t):
        ops = [lambda: e("ds_read_b128 %s, %s", v(xf(p), 4), v(vXA + t))]
        for tl in range(njb):
            ops.append(lambda tl=tl: e("ds_read_b128 %s, %s offset:%d", v(cf(p, tl), 4), v(vCA), 16384 + (t * njb + tl) * 1024))
        return ops

    def mfmas(p):
        return [(lambda tl=tl: e("v_mfma_f32_32x32x16_bf16 %s, %s, %s, %s", v(ACC + 16 * tl, 16), v(xf(p), 4), v(cf(p, tl), 4), v(ACC + 16 * tl, 16))) for tl in range(njb)]
    gemm_loop(mfmas, reads, [2 + tl for tl in range(njb)], [vXA + i for i in range(5)], 0, p3_early_ops())
    stamp(3)

    RR, MM = 16, 32
    e("v_lshrrev_b32 v6, 5, v0")
    e("v_lshlrev_b32 v6, 4, v6")
    e("s_lshl_b32 %s, %s, 7", s(sTmp), s(sW))
    e("s_add_u32 %s, %s, %d", s(sTmp), s(sTmp), AUX)
    e("v_add_u32 v6, %s, v6", s(sTmp))
    for jj in range(4):
        e("ds_read_b128 %s, v6 offset:%d", v(RR + 4 * jj, 4), jj * 32)
    if njb == 6:
        for jj in range(4):
            e("ds_read_b128 %s, v6 offset:%d", v(MM + 4 * jj, 4), 512 + jj * 32)
        e("v_and_b32 v7, 31, v0")
        e("v_cmp_eq_u32 vcc, 0, v7")
        e("v_mov_b32 v7, 0")
        e("v_mov_b32 v13, 0x44200000")
        e("v_cndmask_b32 v7, v7, v13, vcc")
    e("v_and_b32 v5, 31, v0")
    e("v_mul_u32_u24 v5, %d, v5", 21 * 4096)
    e("v_lshrrev_b32 v6, 5, v0")
    e("v_lshl_add_u32 v5, v6, 4, v5")
    if njb == 6:
        e("s_mov_b32 %s, 0", s(sJB))
    else:
        e("s_mul_i32 %s, %s, 5", s(sJB), s(sCG))
        e("s_add_u32 %s, %s, 1", s(sJB), s(sJB))
    e("s_lshl_b32 %s, %s, 12", s(sDelta), s(sJB))
    e("s_lshl_b32 %s, %s, 6", s(sTmp), s(sK1))
    e("s_add_u32 %s, %s, %s", s(sDelta), s(sDelta), s(sTmp))
    e("s_add_u32 %s, %s, 0x%x", s(sDelta), s(sDelta), WS_T)
    e("s_waitcnt lgkmcnt(0)")
    PQ = [192, 224]
    AF = [48, 56]
    OUTP = 64
    def scale_pack(tl):
        a0 = ACC + 16 * tl
        if njb == 6 and tl == 0:
            for i in range(16):
                e("v_fma_f32 %s, -%s, v7, %s", v(a0 + i), v(MM + i), v(a0 + i))
        for i in range(0, 16, 2):
            e("v_pk_mul_f32 %s, %s, %s", v(a0 + i, 2), v(a0 + i, 2), v(RR + i, 2))
        for i in range(8):
            e("v_cvt_pk_bf16_f32 %s, %s, %s", v(AF[tl & 1] + i), v(a0 + 2 * i), v(a0 + 2 * i + 1))
    def stage(tl):
        p0, af = PQ[tl & 1], AF[tl & 1]
        e("s_nop 1")
        for mat in range(2):
            d = p0 + 16 * mat
            e("v_mfma_f32_32x32x16_bf16 %s, %s, %s, 0", v(d, 16), v(af, 4), v(FC + 8 * mat, 4))
            e("v_mfma_f32_32x32x16_bf16 %s, %s, %s, %s", v(d, 16), v(af + 4, 4), v(FC + 8 * mat + 4, 4), v(d, 16))
    def finish(tl):
        p0 = PQ[tl & 1]
        q0 = p0 + 16
        for q in range(2):
            for i in range(4):
                e("v_sub_f32 %s, %s, %s", v(p0 + 8 * q + i), v(p0 + 8 * q + i), v(q0 + 8 * q + 4 + i))
                e("v_add_f32 %s, %s, %s", v(p0 + 8 * q + 4 + i), v(p0 + 8 * q + 4 + i), v(q0 + 8 * q + i))
        for i in range(8):
            e("v_cvt_pk_bf16_f32 %s, %s, %s", v(q0 + i), v(p0 + 2 * i), v(p0 + 2 * i + 1))
        e("s_add_u32 %s, %s, %d", s(sTmp), s(sDelta), tl * 4096)
        for q in range(2):
            e("buffer_store_dwordx4 %s, v5, %s, %s offen offset:%d sc1", v(q0 + 4 * q, 4), s(sWS, 4), s(sTmp), q * 32)
    scale_pack(0)
    stage(0)
    for tl in range(njb):
        if tl + 1 < njb:
            scale_pack(tl + 1)
            stage(tl + 1)
        else:
            e("s_nop 15")
        finish(tl)
    e("s_lshl_b32 %s, %s, 6", s(sTmp), s(sCG))
    e("s_add_u32 %s, %s, %s", s(sK1), s(sK1), s(sTmp))
    e("s_lshl_b32 %s, %s, 2", s(sK1), s(sK1))
    e("s_add_u32 %s, %s, 0x%x", s(sK1), s(sK1), WS_FT)
    e("s_branch L_p3")


def mid(ldsbase_sgpr):
    FC, WV, DF, XA, UA, TW = 64, 128, 16, 160, 192, 40
    vL, vT, vWo = 5, 6, 7
    e("v_lshlrev_b32 %s, 4, v0", v(vL))
    for n in range(16):
        if n % 4 == 0:
            e("s_mov_b32 %s, %d", s(sTmp), TB.F64_OFF + n * 1024)
        e("buffer_load_dwordx4 %s, %s, %s, %s offen offset:%d", v(FC + 4 * n, 4), v(vL), s(sTAB, 4), s(sTmp), (n % 4) * 1024)
    for i in range(32):
        e("v_mov_b32 %s, 0", v(WV + i))
    e("v_lshrrev_b32 %s, 4, v0", v(vWo))
    e("v_mul_u32_u24 %s, %d, %s", v(vWo), 4 * 32 * 642, v(vWo))
    e("v_and_b32 v8, 15, v0")
    e("v_lshl_add_u32 %s, v8, 1, %s", v(vWo), v(vWo))
    e("s_mul_i32 %s, %s, 642", s(sDelta), s(sK1))
    e("s_lshl_b32 %s, %s, 5", s(sTmp), s(sJB))
    e("s_add_u32 %s, %s, %s", s(sDelta), s(sDelta), s(sTmp))
    for mt in range(4):
        for i in range(4):
            e("s_add_u32 %s, %s, %d", s(sTmp), s(sDelta), 32 * (16 * mt + i) * 642)
            e("buffer_load_short_d16_hi %s, %s, %s, %s offen", v(WV + 4 * mt + i), v(vWo), s(sWR, 4), s(sTmp))
            e("buffer_load_short_d16_hi %s, %s, %s, %s offen", v(WV + 16 + 4 * mt + i), v(vWo), s(sWI, 4), s(sTmp))
    for nt in range(4):
        e("v_add_u32 v9, %d, v8", 16 * nt)
        e("v_mul_u32_u24 v9, %s, v9", s(sK1))
        e("v_cvt_f32_u32 v9, v9")
        e("v_mul_f32 v9, 0x3a000000, v9")
        e("v_cos_f32 %s, v9", v(TW + 2 * nt))
        e("v_sin_f32 %s, v9", v(TW + 2 * nt + 1))
        e("s_nop 0")
        e("v_mul_f32 %s, 0x3a000000, %s", v(TW + 2 * nt), v(TW + 2 * nt))
        e("v_mul_f32 %s, 0x3a000000, %s", v(TW + 2 * nt + 1), v(TW + 2 * nt + 1))
    e("v_lshrrev_b32 %s, 2, v0", v(vT))
    e("v_lshlrev_b32 %s, 6, %s", v(vT), v(vT))
    e("v_and_b32 v9, 3, v0")
    e("v_lshl_add_u32 %s, v9, 4, %s", v(vT), v(vT))
    e("v_add_u32 %s, %s, %s", v(vT), s(ldsbase_sgpr), v(vT))
    e("v_mul_u32_u24 v10, %d, v8", 21 * 2048)
    e("v_lshrrev_b32 v9, 4, v0")
    e("v_lshl_add_u32 v10, v9, 4, v10")
    e("s_add_u32 %s, %s, 4", s(sCnt), s(sJB))
    e("s_mul_i32 %s, %s, 52", s(sCnt), s(sCnt))
    e("s_lshr_b32 %s, %s, 8", s(sCnt), s(sCnt))
    e("s_max_u32 %s, %s, 1", s(sCnt), s(sCnt))
    e("s_sub_u32 %s, %s, 1", s(sCnt), s(sCnt))
    e("s_lshl_b32 %s, %s, 8", s(sCnt), s(sCnt))
    e("v_lshlrev_b32 v11, 2, v0")
    e("v_add_u32 v11, %s, v11", s(sCnt))
    poll_issue(12, 1, 11, WS_FT)
    e("s_waitcnt vmcnt(0)")
    poll_check(12, 1, 11, WS_FT)
    stamp(4)
    e("s_mul_i32 %s, %s, 21", s(sTmp), s(sK1))
    e("s_add_u32 %s, %s, %s", s(sTmp), s(sTmp), s(sJB))
    e("s_lshl_b32 %s, %s, 12", s(sTmp), s(sTmp))
    e("s_add_u32 %s, %s, 0x%x", s(sTmp), s(sTmp), WS_T)
    e("s_mov_b32 m0, %s", s(ldsbase_sgpr))
    e("s_nop 0")
    for n in range(4):
        e("buffer_load_dwordx4 %s, %s, %s offen offset:%d sc1 lds", v(vL), s(sWS, 4), s(sTmp), n * 1024)
    lab = A.newlabel("L_noep")
    e("s_lshl_b32 %s, s2, 3", s(sTmp))
    e("s_add_u32 %s, %s, %s", s(sTmp), s(sTmp), s(sLW))
    e("s_cmp_eq_u32 %s, 0", s(sTmp))
    e("s_cbranch_scc0 %s", lab)
    e("s_mov_b32 %s, 0x%x", s(sTmp), WS_EP)
    flag_store(sTmp, 12, 13)
    A.label(lab)
    e("s_waitcnt vmcnt(0)")
    for ri in range(2):
        for kap in range(2):
            for rd in range(2):
                e("ds_read_b64_tr_b16 %s, %s offset:%d", v(DF + 8 * ri + 4 * kap + 2 * rd, 2), v(vT), kap * 2048 + rd * 1024 + ri * 8)
    e("s_waitcnt lgkmcnt(0)")
    for i in range(8):
        e("v_xor_b32 %s, 0x80008000, %s", v(DF + 16 + i), v(DF + 8 + i))
    stamp(5)
    def F(ri, t, kap): return FC + ((ri * 4 + t) * 2 + kap) * 4
    def mm(d, a_, b_, first):
        e("v_mfma_f32_16x16x32_bf16 %s, %s, %s, %s", v(d, 4), v(a_, 4), v(b_, 4), "0" if first else v(d, 4))
    Tre, Tim, Tni = DF, DF + 8, DF + 16
    for mt in range(4):
        xr, xi = XA + 4 * mt, XA + 16 + 4 * mt
        for kap in range(2):
            mm(xr, F(0, mt, kap), Tre + 4 * kap, kap == 0)
            mm(xi, F(1, mt, kap), Tre + 4 * kap, kap == 0)
        for kap in range(2):
            mm(xr, F(1, mt, kap), Tni + 4 * kap, False)
            mm(xi, F(0, mt, kap), Tim + 4 * kap, False)
    e("s_waitcnt vmcnt(0)")
    e("s_nop 7")
    for n in range(16):
        xr, xi, wr, wi = XA + n, XA + 16 + n, WV + n, WV + 16 + n
        e("v_mul_f32 %s, %s, %s", v(UA + n), v(xr), v(wr))
        e("v_mul_f32 %s, %s, %s", v(UA + 16 + n), v(xr), v(wi))
        e("v_fma_f32 %s, -%s, %s, %s", v(UA + n), v(xi), v(wi), v(UA + n))
        e("v_fmac_f32 %s, %s, %s", v(UA + 16 + n), v(xi), v(wr))
    Yre, Yim, Ynr = DF, DF + 8, DF + 16
    for n in range(8):
        e("v_cvt_pk_bf16_f32 %s, %s, %s", v(Yre + n), v(UA + 2 * n), v(UA + 2 * n + 1))
        e("v_cvt_pk_bf16_f32 %s, %s, %s", v(Yim + n), v(UA + 16 + 2 * n), v(UA + 16 + 2 * n + 1))
        e("v_xor_b32 %s, 0x80008000, %s", v(Ynr + n), v(Yre + n))
    e("s_nop 1")
    for nt in range(4):
        ur, ui = UA + 4 * nt, UA + 16 + 4 * nt
        for kap in range(2):
            mm(ur, Yre + 4 * kap, F(0, nt, kap), kap == 0)
            mm(ui, Yim + 4 * kap, F(0, nt, kap), kap == 0)
        for kap in range(2):
            mm(ur, Yim + 4 * kap, F(1, nt, kap), False)
            mm(ui, Ynr + 4 * kap, F(1, nt, kap), False)
    e("s_lshl_b32 %s, %s, 5", s(sDelta), s(sJB))
    e("s_add_u32 %s, %s, %s", s(sDelta), s(sDelta), s(sK1))
    e("s_lshl_b32 %s, %s, 6", s(sDelta), s(sDelta))
    e("s_add_u32 %s, %s, 0x%x", s(sDelta), s(sDelta), WS_U)
    e("s_nop 4")
    for nt in range(4):
        ur, ui, tc, ts = UA + 4 * nt, UA + 16 + 4 * nt, TW + 2 * nt, TW + 2 * nt + 1
        o = XA + 8 * nt
        for i in range(4):
            e("v_mul_f32 %s, %s, %s", v(o + i), v(ur + i), v(tc))
            e("v_mul_f32 %s, %s, %s", v(o + 4 + i), v(ur + i), v(ts))
            e("v_fma_f32 %s, -%s, %s, %s", v(o + i), v(ui + i), v(ts), v(o + i))
            e("v_fmac_f32 %s, %s, %s", v(o + 4 + i), v(ui + i), v(tc))
        pk = WV + 4 * nt
        for i in range(4):
            e("v_cvt_pk_bf16_f32 %s, %s, %s", v(pk + i), v(o + 2 * i), v(o + 2 * i + 1))
        e("s_add_u32 %s, %s, %d", s(sTmp), s(sDelta), nt * 16 * 21 * 2048)
        e("buffer_store_dwordx4 %s, v10, %s, %s offen sc1", v(pk, 4), s(sWS, 4), s(sTmp))
    e("s_lshl_b32 %s, %s, 5", s(sTmp), s(sJB))
    e("s_add_u32 %s, %s, %s", s(sTmp), s(sTmp), s(sK1))
    e("s_lshl_b32 %s, %s, 2", s(sTmp), s(sTmp))
    e("s_add_u32 %s, %s, 0x%x", s(sTmp), s(sTmp), WS_FU)
    stamp(6)
    e("s_waitcnt vmcnt(0)")
    flag_store(sTmp, 12, 13)
    stamp(7)


sP, sG3, sHo, sWo, sUo, sCo, sLB, sOOB, sOo = 64, 65, 66, 67, 68, 69, 70, 71, 72
vWD = [1, 2, 3, 4, 14]


def p3_early_setup():
    e("s_and_b32 s3, s2, 7")
    e("s_lshr_b32 %s, s2, 3", s(sTmp))
    e("s_lshr_b32 %s, s3, 1", s(sP))
    e("s_lshl_b32 %s, %s, 3", s(sP), s(sP))
    e("s_and_b32 %s, %s, 7", s(sTmp2), s(sTmp))
    e("s_add_u32 %s, %s, %s", s(sP), s(sP), s(sTmp2))
    e("s_and_b32 s3, s3, 1")
    e("s_lshl_b32 s3, s3, 2")
    e("s_lshr_b32 %s, %s, 3", s(sTmp), s(sTmp))
    e("s_add_u32 %s, s3, %s", s(sG3), s(sTmp))
    for n in range(5):
        e("v_add_u32 v5, %d, v0", 64 * n)
        e("v_mul_u32_u24 v6, 6554, v5")
        e("v_lshrrev_b32 v6, 16, v6")
        e("v_mul_u32_u24 v6, 1120, v6")
        e("v_lshl_add_u32 %s, v5, 4, v6", v(vWD[n]))
    e("s_mul_i32 %s, %s, 20480", s(sLB), s(sW))
    e("s_add_u32 %s, %s, %d", s(sLB), s(sLB), P3L)
    e("s_mul_i32 %s, %s, %d", s(sHo), s(sP), 2 * 48 * 2048)
    e("s_lshl_b32 %s, %s, 11", s(sTmp), s(sW))
    e("s_add_u32 %s, %s, %s", s(sHo), s(sHo), s(sTmp))
    e("s_mul_i32 %s, %s, 40960", s(sWo), s(sW))
    e("s_mul_i32 %s, %s, 160", s(sTmp), s(sG3))
    e("s_add_u32 %s, %s, %s", s(sWo), s(sWo), s(sTmp))
    e("s_mul_i32 %s, %s, %d", s(sUo), s(sP), 2 * 21 * 2048)
    e("s_lshl_b32 %s, %s, 11", s(sTmp), s(sW))
    e("s_add_u32 %s, %s, %s", s(sUo), s(sUo), s(sTmp))
    e("s_add_u32 %s, %s, 0x%x", s(sUo), s(sUo), WS_U)
    e("s_mul_i32 %s, %s, 21", s(sCo), s(sG3))
    e("s_add_u32 %s, %s, %s", s(sCo), s(sCo), s(sW))
    e("s_mul_i32 %s, %s, 5120", s(sCo), s(sCo))
    e("s_add_u32 %s, %s, %d", s(sCo), s(sCo), TB.CI_OFF)
    e("s_cmp_eq_u32 %s, 0", s(sW))
    e("s_cselect_b32 %s, 0, 0x20000000", s(sOOB))
    e("s_and_b32 %s, %s, 1", s(sTmp), s(sW))
    e("s_lshl_b32 %s, %s, 10", s(sTmp), s(sTmp))
    e("s_lshl_b32 %s, %s, 1", s(sOo), s(sP))
    e("s_add_u32 %s, %s, %s", s(sTmp), s(sTmp), s(sOo))
    e("s_lshr_b32 %s, %s, 1", s(sOo), s(sW))
    e("s_add_u32 %s, %s, %s", s(sTmp), s(sTmp), s(sOo))
    e("s_mul_i32 %s, %s, 1280", s(sTmp), s(sTmp))
    e("s_mul_i32 %s, %s, 160", s(sOo), s(sG3))
    e("s_add_u32 %s, %s, %s", s(sOo), s(sOo), s(sTmp))


vL3 = 5
def p3_dma(i):
    ops = []
    slot = (i % 4) * 5120
    if i < 12:
        for n in range(5):
            def f(n=n):
                e("s_add_u32 m0, %s, %d", s(sLB), slot + n * 1024)
                if n == 0:
                    e("s_add_u32 %s, %s, %d", s(sTmp2), s(sWo), i * 4 * 40960)
                else:
                    e("s_nop 0")
                e("buffer_load_dwordx4 %s, %s, %s offen lds", v(vWD[n]), s(sWD, 4), s(sTmp2))
            ops.append(f)
    else:
        z = i - 12
        for u in range(2):
            for n in range(2):
                def f(u=u, n=n):
                    if n == 0:
                        e("s_add_u32 m0, %s, %d", s(sLB), slot + u * 2048)
                        e("s_add_u32 %s, %s, %d", s(sTmp2), s(sUo), z * 4 * 2048 + u * 21 * 2048)
                        if z == 5:
                            e("s_add_u32 %s, %s, %s", s(sTmp2), s(sTmp2), s(sOOB))
                    e("buffer_load_dwordx4 %s, %s, %s offen offset:%d sc1 lds", v(vL3), s(sWS, 4), s(sTmp2), n * 1024)
                ops.append(f)
    return ops


def p3_early_ops():
    return p3_dma(0) + p3_dma(1) + p3_dma(2)


def p3():
    vL, vTW, vTU, vO, vPH, vPU = vL3, 11, 12, 13, 6, 7
    WF, GC, RS, XR, ACC = 16, 64, 96, 96 + 40, 176
    NI = 18
    dma = p3_dma
    def regloads(i):
        ops = []
        rs = RS + (i % 4) * 20
        if i < 12:
            for u in range(2):
                for t in range(2):
                    def f(u=u, t=t):
                        if t == 0:
                            e("s_add_u32 %s, %s, %d", s(sTmp), s(sHo), WS_H + i * 4 * 2048 + u * 48 * 2048)
                        e("buffer_load_dwordx4 %s, %s, %s, %s offen offset:%d sc1", v(rs + (2 * u + t) * 4, 4), v(vL), s(sWS, 4), s(sTmp), t * 1024)
                    ops.append(f)
        else:
            z = i - 12
            for ct in range(5):
                def f(ct=ct):
                    if ct % 4 == 0:
                        e("s_add_u32 %s, %s, %d", s(sTmp), s(sCo), z * 4 * 5120 + ct * 1024)
                        if z == 5:
                            e("s_add_u32 %s, %s, %s", s(sTmp), s(sTmp), s(sOOB))
                    e("buffer_load_dwordx4 %s, %s, %s, %s offen offset:%d", v(rs + ct * 4, 4), v(vL), s(sTAB, 4), s(sTmp), (ct % 4) * 1024)
                ops.append(f)
        return ops
    e("v_lshlrev_b32 %s, 4, v0", v(vL))
    for n in range(8):
        if n % 4 == 0:
            e("s_mov_b32 %s, %d", s(sTmp), TB.G32_OFF + n * 1024)
        e("buffer_load_dwordx4 %s, %s, %s, %s offen offset:%d", v(GC + 4 * n, 4), v(vL), s(sTAB, 4), s(sTmp), (n % 4) * 1024)
    e("v_and_b32 v8, 15, v0")
    e("v_mul_u32_u24 v8, 81920, v8")
    e("v_lshrrev_b32 v15, 4, v0")
    e("v_lshl_add_u32 %s, v15, 3, v8", v(vO))
    e("s_lshl_b32 %s, %s, 1", s(sTmp), s(sP))
    e("s_lshr_b32 %s, %s, 1", s(sTmp2), s(sW))
    e("s_add_u32 %s, %s, %s", s(sTmp), s(sTmp), s(sTmp2))
    e("s_lshl_b32 %s, %s, 4", s(sTmp), s(sTmp))
    e("v_min_u32 v8, 11, v0")
    e("v_add_u32 v8, %s, v8", s(sTmp))
    e("v_lshlrev_b32 %s, 2, v8", v(vPH))
    e("v_lshrrev_b32 v8, 3, v0")
    e("v_lshlrev_b32 v8, 2, v8")
    e("v_add_u32 v8, %s, v8", s(sW))
    e("v_cmp_lt_u32 vcc, 20, v8")
    e("v_mov_b32 v9, %s", s(sW))
    e("v_and_b32 v10, 7, v0")
    e("v_cndmask_b32 v8, v8, v9, vcc")
    e("v_lshlrev_b32 v8, 7, v8")
    e("v_lshl_add_u32 %s, v10, 4, v8", v(vPU))
    e("v_lshrrev_b32 v8, 5, v0")
    e("v_lshlrev_b32 v8, 4, v8")
    e("v_bfe_u32 v9, v0, 2, 3")
    e("v_add_u32 v8, v8, v9")
    e("v_mul_u32_u24 v8, 160, v8")
    e("v_and_b32 v9, 3, v0")
    e("v_lshl_add_u32 v8, v9, 3, v8")
    e("v_add_u32 %s, %s, v8", v(vTW), s(sLB))
    e("v_lshrrev_b32 v8, 5, v0")
    e("v_lshlrev_b32 v8, 3, v8")
    e("v_bfe_u32 v10, v0, 2, 2")
    e("v_add_u32 v8, v8, v10")
    e("v_lshlrev_b32 v8, 6, v8")
    e("v_lshl_add_u32 v8, v9, 4, v8")
    e("v_bfe_u32 v10, v0, 4, 1")
    e("v_lshl_add_u32 v8, v10, 3, v8")
    e("v_add_u32 %s, %s, v8", v(vTU), s(sLB))

    stamp(4)
    e("s_waitcnt vmcnt(8)")
    flag_store(sK1, 8, 9)
    stamp(5)
    poll_issue(36, 1, vPH, WS_FH)
    e("s_waitcnt vmcnt(0)")
    poll_check(36, 1, vPH, WS_FH)
    stamp(6)
    for i in range(3):
        for f in regloads(i):
            f()

    def mm(d, a_, b_, first=False):
        e("v_mfma_f32_16x16x32_bf16 %s, %s, %s, %s", v(d, 4), v(a_, 4), v(b_, 4), "0" if first else v(d, 4))
    def acc(ct, rt): return ACC + (ct * 4 + rt) * 4
    for i in range(NI):
        slot = (i % 4) * 5120
        rs = RS + (i % 4) * 20
        later = min(NI - 1, i + 2) - i
        e("s_waitcnt vmcnt(%d)", {0: 8, 1: 13, 8: 19}.get(i, 9 * later + (5 if i >= 16 else 0)))
        if i == 7:
            poll_issue(36, 4, vPU, WS_FU)
        if i == 9:
            poll_check(36, 4, vPU, WS_FU)
        nd = dma(i + 3) if i + 3 < NI else []
        nr = regloads(i + 3) if i + 3 < NI else []
        if i == 15:
            nr = [(lambda ct=ct: e("buffer_load_dwordx2 %s, %s, %s, %s offen offset:%d", v(XR + 2 * ct, 2), v(vO), s(sX, 4), s(sOo), ct * 32)) for ct in range(5)]
        if i < 12:
            for ct in range(5):
                for rd in range(2):
                    e("ds_read_b64_tr_b16 %s, %s offset:%d", v(WF + 4 * ct + 2 * rd, 2), v(vTW), slot + rd * 1280 + ct * 32)
            for f in nd:
                f()
            for ct in range(5):
                e("s_waitcnt lgkmcnt(%d)", 8 - 2 * ct)
                for rt in range(4):
                    mm(acc(ct, rt), WF + 4 * ct, rs + 4 * rt, i == 0)
                if ct < len(nr):
                    nr[ct]()
        else:
            UF, ZT, PK = 16, 32, 48
            for u in range(2):
                for kap in range(2):
                    for rd in range(2):
                        e("ds_read_b64_tr_b16 %s, %s offset:%d", v(UF + 8 * u + 4 * kap + 2 * rd, 2), v(vTU), slot + u * 2048 + kap * 1024 + rd * 256)
            for f in nd:
                f()
            def G(ro, nh, kap): return GC + ((ro * 2 + nh) * 2 + kap) * 4
            for u in range(2):
                e("s_waitcnt lgkmcnt(%d)", 4 - 4 * u)
                if u == 1:
                    pass
                for kap in range(2):
                    for nh in range(2):
                        for ro in range(2):
                            mm(ZT + (nh * 2 + ro) * 4, UF + 8 * u + 4 * kap, G(ro, nh, kap), kap == 0)
                e("s_nop 7")
                for nh in range(2):
                    for k in range(4):
                        e("v_cvt_pk_bf16_f32 %s, %s, %s", v(PK + (2 * u + nh) * 4 + k), v(ZT + nh * 8 + 2 * k), v(ZT + nh * 8 + 2 * k + 1))
            e("s_nop 1")
            for ct in range(5):
                for rt in range(4):
                    mm(acc(ct, rt), rs + 4 * ct, PK + 4 * rt)
                if ct < len(nr):
                    nr[ct]()
    e("v_add_u32 v14, %s, %s", s(sLB), v(vL))
    e("s_nop 6")
    for ct in range(5):
        for rt in range(4):
            e("ds_write_b128 v14, %s offset:%d", v(acc(ct, rt), 4), (rt * 5 + ct) * 1024)
    e("s_mul_i32 %s, %s, 5120", s(sTmp), s(sW))
    e("s_add_u32 %s, %s, %d", s(sTmp), s(sTmp), P3L)
    e("v_add_u32 v14, %s, %s", s(sTmp), v(vL))
    e("v_add_u32 v15, %d, v14", 2 * 20480)
    stamp(7)
    e("s_waitcnt lgkmcnt(0)")
    e("s_barrier")
    for ct in range(5):
        for sw in range(4):
            e("ds_read_b128 %s, %s offset:%d", v(ACC + (ct * 4 + sw) * 4, 4), "v15" if sw >= 2 else "v14", (sw & 1) * 20480 + ct * 1024)
    for ct in range(5):
        b = ACC + ct * 16
        e("s_waitcnt lgkmcnt(%d)%s", min(15, 16 - 4 * ct), " vmcnt(0)" if ct == 0 else "")
        for k in (0, 2):
            e("v_pk_add_f32 %s, %s, %s", v(b + k, 2), v(b + k, 2), v(b + 4 + k, 2))
            e("v_pk_add_f32 %s, %s, %s", v(b + 8 + k, 2), v(b + 8 + k, 2), v(b + 12 + k, 2))
        x0 = XR + 2 * ct
        e("v_lshlrev_b32 %s, 16, %s", v(b + 4), v(x0))
        e("v_and_b32 %s, 0xffff0000, %s", v(b + 5), v(x0))
        e("v_lshlrev_b32 %s, 16, %s", v(b + 6), v(x0 + 1))
        e("v_and_b32 %s, 0xffff0000, %s", v(b + 7), v(x0 + 1))
        for k in (0, 2):
            e("v_pk_add_f32 %s, %s, %s", v(b + k, 2), v(b + k, 2), v(b + 8 + k, 2))
        for k in (0, 2):
            e("v_pk_add_f32 %s, %s, %s", v(b + k, 2), v(b + k, 2), v(b + 4 + k, 2))
        e("v_cvt_pk_bf16_f32 %s, %s, %s", v(b + 8), v(b), v(b + 1))
        e("v_cvt_pk_bf16_f32 %s, %s, %s", v(b + 9), v(b + 2), v(b + 3))
        e("buffer_store_dwordx2 %s, %s, %s, %s offen offset:%d", v(b + 8, 2), v(vO), s(sOUT, 4), s(sOo), ct * 32)


hdr = open("cdna_kernels/%s.s.ref" % NAME).read().split("; Override launch")[0]
A(hdr.rstrip())
A("; @launch grid=(256,1,1) block=(512,1,1) lds=%d" % LDS_ALL)
A('.amdgcn_target "amdgcn-amd-amdhsa--gfx950"')
KN = NAME + "_kernel"
kernel_header(A, KN)
cur_end = "L_end"
stamp(0)
prologue(256, ["X", "G", "U", "WS", "TAB", "WR", "WI", "WD", "OUT"])
p1_map()
e("s_cmp_eq_u32 %s, 3", s(sTmp2))
e("s_cbranch_scc1 L_k1_dft")
e("s_cmp_ge_u32 %s, 4", s(sW))
e("s_cbranch_scc0 L_k1_ffn_c")
loader("F")
A.label("L_k1_ffn_c")
p1_ffn()
A.label("L_k1_dft")
e("s_cmp_eq_u32 %s, 0", s(sCG))
e("s_cbranch_scc1 L_k1_dft6")
for njb in (5, 6):
    if njb == 6:
        A.label("L_k1_dft6")
    e("s_cmp_ge_u32 %s, 4", s(sW))
    e("s_cbranch_scc0 L_k1_dft%d_c", njb)
    loader(njb)
    A.label("L_k1_dft%d_c" % njb)
    p1_dft(njb)

A.label("L_mid")
e("s_and_b32 s3, s2, 7")
e("s_lshr_b32 %s, s2, 3", s(sTmp))
e("s_lshl_b32 %s, s3, 2", s(sK1))
e("s_lshr_b32 %s, %s, 3", s(sTmp2), s(sTmp))
e("s_add_u32 %s, %s, %s", s(sK1), s(sK1), s(sTmp2))
e("s_and_b32 %s, %s, 7", s(sTmp), s(sTmp))
e("s_cmp_eq_u32 %s, 7", s(sTmp))
e("s_cbranch_scc1 L_fin")
e("s_cmp_eq_u32 %s, 3", s(sLW))
e("s_cbranch_scc1 L_fin")
e("s_mul_i32 %s, %s, 3", s(sJB), s(sTmp))
e("s_add_u32 %s, %s, %s", s(sJB), s(sJB), s(sLW))
e("s_lshl_b32 %s, %s, 12", s(sBuf), s(sLW))
e("s_add_u32 %s, %s, %d", s(sBuf), s(sBuf), MIDL)
mid(sBuf)
e("s_branch L_fin")

A.label("L_p3")
p3()
A.label("L_fin")
if STAMPS:
    e("s_waitcnt vmcnt(0)")
    e("%s s[100:101]", "s_memtime" if "--cyc" in sys.argv else "s_memrealtime")
    e("s_waitcnt lgkmcnt(0)")
    e("s_cmp_lt_u32 %s, 4", s(sW))
    e("s_cselect_b32 s86, s100, s86")
stamps_flush()
A.label(cur_end)
e("s_endpgm")

kernel_desc(A, KN, 256, accum=256)
TB.emit_tables(A)
out = [x for x in sys.argv[1:] if not x.startswith("--")]
open(out[0] if out else "v2.s", "w").write(A.text())
```

```python
import sys
from asmlib import *
import tables4 as TB

NAME = "parallel_sum__spectral_gfnet__glu_gated_reglu__prompt"
A = Asm()
e = A.e


def opt(name, default):
    for x in sys.argv:
        if x.startswith("--%s=" % name):
            return int(x.split("=")[1])
    return default


STAMPS = "--stamps" in sys.argv
SLEEP = opt("sleep", 4)

WS_EP = 0x0000
WS_FS = 0x1000
WS_FSC = WS_FS + 128 * 128
WS_FT = 0xC000
WS_FU = 0xE000
WS_FH = 0x10000
WS_STAT = 0x28000
WS_CSP = 0x30000
WS_H = 0x60000
WS_T = 0x660000
WS_U = 0x900000
WS_STAMP = 0x2000000

SLAB = 49152
AUX = 3 * SLAB
CE0, CES = 49152, 15360
CL0, CLS = 0, 5120
LE0, LES = 110592, 8192
LL0, LLS = 20480, 4096
LGO = AUX + 2048
LDS_ALL = AUX + 2048 + 64

sX, sG, sU, sWS, sTAB, sWR, sWI, sWD, sOUT = 8, 12, 16, 20, 24, 28, 32, 36, 40
sW, sRB, sCG, sLW = 44, 45, 46, 47
sTmp, sTmp2, sCnt, sDelta, sBuf, sSLAB = 48, 49, 50, 51, 52, 53
sAoff, sBoff, sM0 = 54, 55, 56
sWM, sWN, sFlag = 57, 58, 59
sK1, sJB, sTAG, sSpin = 60, 61, 62, 63
P = 64
sP, sG3, sHo, sWo, sUo, sCo, sLB, sLB2, sOo, sOc, sOOB = 64, 65, 66, 67, 68, 69, 70, 71, 72, 73, 74
sSgn, sS2, sNU, sWcol, sPar = 76, 78, 79, 80, 81
SRDS = {"X": (sX, P, 2048 * 1280), "WR": (sWR, P + 2, 2048 * 642), "WI": (sWI, P + 4, 2048 * 642),
        "G": (sG, P + 8, 640 * 3072), "U": (sU, P + 10, 640 * 3072), "WD": (sWD, P + 12, 1536 * 1280),
        "OUT": (sOUT, P + 14, 2048 * 1280), "WS": (sWS, P + 18, 1 << 28)}


class VQ:
    def __init__(self):
        self.q = []
    def issue(self, tag, n=1):
        self.q += [tag] * n
    def wait(self, *tags, extra=""):
        last = max([i for i, t in enumerate(self.q) if t in tags], default=-1)
        n = len(self.q) - 1 - last
        assert n <= 63, n
        e("s_waitcnt vmcnt(%d)%s", n, extra)
        self.q = self.q[last + 1:]
    def drain(self):
        self.q = []


def stamp(i):
    if STAMPS:
        e("%s %s", "s_memtime" if "--cyc" in sys.argv else "s_memrealtime", s(84 + 2 * i, 2))


def make_tag():
    e("s_mul_i32 %s, %s, 0x9E3779B1", s(sTAG), s(sTAG))
    e("s_add_u32 %s, %s, 0x7F4A7C15", s(sTAG), s(sTAG))


def flag_store(soff, t0, t1):
    e("v_mov_b32 %s, %s", v(t0), s(sTAG))
    e("v_mov_b32 %s, 0", v(t1))
    e("s_mov_b64 exec, 1")
    e("buffer_store_dword %s, %s, %s, %s offen sc1", v(t0), v(t1), s(sWS, 4), s(soff))
    e("s_mov_b64 exec, -1")


def poll_issue(dst, n, vaddr, base):
    e("s_mov_b32 %s, 0x%x", s(sTmp), base)
    e("buffer_load_dword%s %s, %s, %s, %s offen sc1", "" if n == 1 else "x%d" % n, v(dst, n), v(vaddr), s(sWS, 4), s(sTmp))


def poll_check(dst, n, vaddr, base):
    top, done = A.newlabel("L_poll"), A.newlabel("L_polld")
    e("s_mov_b32 %s, 0", s(sSpin))
    A.label(top)
    e("v_cmp_ne_u32 vcc, %s, %s", s(sTAG), v(dst))
    for i in range(1, n):
        e("v_cmp_ne_u32 s[4:5], %s, %s", s(sTAG), v(dst + i))
        e("s_or_b64 vcc, vcc, s[4:5]")
    e("s_cmp_eq_u64 vcc, 0")
    e("s_cbranch_scc1 %s", done)
    e("s_add_u32 %s, %s, 1", s(sSpin), s(sSpin))
    e("s_cmp_ge_u32 %s, 40000", s(sSpin))
    e("s_cbranch_scc1 %s", done)
    if SLEEP:
        e("s_sleep %d", SLEEP)
    poll_issue(dst, n, vaddr, base)
    e("s_waitcnt vmcnt(0)")
    e("s_branch %s", top)
    A.label(done)


def karg_wait(first, rest=()):
    e("s_waitcnt lgkmcnt(0)")
    for k in first:
        srd(A, *SRDS[k])
    e("s_load_dword %s, %s, 0x%x", s(sTAG), s(P + 18, 2), WS_EP)
    for k in rest:
        srd(A, *SRDS[k])


def tab_srd():
    e("s_getpc_b64 s[4:5]")
    e("s_add_u32 s4, s4, dft_tables@rel32@lo+4")
    e("s_addc_u32 s5, s5, dft_tables@rel32@hi+12")
    srd(A, sTAB, 4, TB.TAB_BYTES)


def dpp_sum16(r_):
    for ctl in ("quad_perm:[1,0,3,2]", "quad_perm:[2,3,0,1]", "row_half_mirror", "row_mirror"):
        e("s_nop 1")
        e("v_add_f32_dpp %s, %s, %s %s row_mask:0xf bank_mask:0xf", v(r_), v(r_), v(r_), ctl)


def round_bf16(r_):
    e("v_cvt_pk_bf16_f32 %s, %s, %s", v(r_), v(r_), v(r_))
    e("v_and_b32 %s, 0xffff0000, %s", v(r_), v(r_))


def mm16(d, a_, b_, first=False):
    e("v_mfma_f32_16x16x32_bf16 %s, %s, %s, %s", v(d, 4), v(a_, 4), v(b_, 4), "0" if first else v(d, 4))


def stats_addr(R):
    e("s_lshl_b32 %s, %s, 2", s(sTmp), s(sCG))
    e("s_add_u32 %s, %s, %s", s(sTmp), s(sTmp), s(sW))
    e("s_lshl_b32 %s, %s, 2", s(sTmp), s(sTmp))
    e("v_lshrrev_b32 %s, 4, v0", v(R + 20))
    e("v_add_u32 %s, %s, %s", v(R + 21), s(sTmp), v(R + 20))
    e("v_and_b32 %s, 31, %s", v(R + 20), v(R + 21))
    e("v_lshlrev_b32 %s, 6, %s", v(R + 20), v(R + 20))
    e("v_lshrrev_b32 %s, 5, %s", v(R + 22), v(R + 21))
    e("v_add_u32 %s, %s, %s", v(R + 20), v(R + 20), v(R + 22))
    e("s_lshl_b32 %s, %s, 2", s(sTmp), s(sRB))
    e("v_add_u32 %s, %s, %s", v(R + 20), s(sTmp), v(R + 20))
    e("v_mul_u32_u24 %s, 1280, %s", v(R + 20), v(R + 20))
    e("v_and_b32 %s, 15, v0", v(R + 22))
    e("v_lshl_add_u32 %s, %s, 4, %s", v(R + 20), v(R + 22), v(R + 20))


def stats_issue(R):
    for n in range(5):
        e("buffer_load_dwordx4 %s, %s, %s, 0 offen offset:%d", v(R + 4 * n, 4), v(R + 20), s(sX, 4), n * 256)


def stats_compute(R):
    F = R + 24
    S_, V_, T_ = R + 64, R + 66, R + 22
    for n in range(20):
        e("v_lshlrev_b32 %s, 16, %s", v(F + 2 * n), v(R + n))
        e("v_and_b32 %s, 0xffff0000, %s", v(F + 2 * n + 1), v(R + n))
    e("v_pk_add_f32 %s, %s, %s", v(S_, 2), v(F, 2), v(F + 2, 2))
    for n in range(2, 20):
        e("v_pk_add_f32 %s, %s, %s", v(S_, 2), v(S_, 2), v(F + 2 * n, 2))
    e("v_add_f32 %s, %s, %s", v(S_), v(S_), v(S_ + 1))
    dpp_sum16(S_)
    e("v_mul_f32 %s, 0x3acccccd, %s", v(S_), v(S_))
    for n in range(20):
        e("v_pk_add_f32 %s, %s, %s op_sel_hi:[1,0] neg_lo:[0,1] neg_hi:[0,1]", v(F + 2 * n, 2), v(F + 2 * n, 2), v(S_, 2))
    e("v_pk_mul_f32 %s, %s, %s", v(V_, 2), v(F, 2), v(F, 2))
    for n in range(1, 20):
        e("v_pk_fma_f32 %s, %s, %s, %s", v(V_, 2), v(F + 2 * n, 2), v(F + 2 * n, 2), v(V_, 2))
    e("v_add_f32 %s, %s, %s", v(V_), v(V_), v(V_ + 1))
    dpp_sum16(V_)
    e("v_mul_f32 %s, 0x3acccccd, %s", v(V_), v(V_))
    round_bf16(V_)
    e("v_add_f32 %s, 0x3727c5ac, %s", v(V_), v(V_))
    round_bf16(V_)
    e("v_sqrt_f32 %s, %s", v(V_), v(V_))
    e("s_nop 0")
    round_bf16(V_)
    e("v_rcp_f32 %s, %s", v(V_), v(V_))
    round_bf16(S_)
    e("v_and_b32 %s, 15, v0", v(T_))
    e("v_cmp_eq_u32 vcc, 1, %s", v(T_))
    e("v_lshlrev_b32 %s, 2, %s", v(R + 1), v(R + 21))
    e("v_lshl_add_u32 %s, %s, 9, %s", v(R + 1), v(T_), v(R + 1))
    e("v_cndmask_b32 %s, %s, %s, vcc", v(V_), v(V_), v(S_))
    e("v_cmp_gt_u32 vcc, 2, %s", v(T_))
    e("s_lshl_b32 %s, %s, 10", s(sTmp), s(sRB))
    e("s_add_u32 %s, %s, 0x%x", s(sTmp), s(sTmp), WS_STAT)
    e("s_and_saveexec_b64 s[4:5], vcc")
    e("buffer_store_dword %s, %s, %s, %s offen sc1", v(V_), v(R + 1), s(sWS, 4), s(sTmp))
    e("s_mov_b64 exec, s[4:5]")


def cols_issue(R):
    e("v_lshrrev_b32 %s, 4, v0", v(R + 20))
    e("v_mul_u32_u24 %s, 3072, %s", v(R + 20), v(R + 20))
    e("v_and_b32 %s, 15, v0", v(R + 21))
    e("v_lshl_add_u32 %s, %s, 3, %s", v(R + 20), v(R + 21), v(R + 20))
    e("s_mul_i32 %s, %s, %d", s(sTmp), s(sRB), 40 * 3072)
    e("s_lshl_b32 %s, %s, 8", s(sTmp2), s(sCG))
    e("s_add_u32 %s, %s, %s", s(sTmp), s(sTmp), s(sTmp2))
    e("s_and_b32 %s, %s, 1", s(sTmp2), s(sLW))
    e("s_lshl_b32 %s, %s, 7", s(sTmp2), s(sTmp2))
    e("s_add_u32 %s, %s, %s", s(sTmp), s(sTmp), s(sTmp2))
    lab, lab2 = A.newlabel("L_csu"), A.newlabel("L_csd")
    e("s_cmp_ge_u32 %s, 2", s(sLW))
    e("s_cbranch_scc1 %s", lab)
    for mat in range(2):
        if mat == 1:
            e("s_branch %s", lab2)
            A.label(lab)
        for n in range(10):
            e("buffer_load_dwordx2 %s, %s, %s, %s offen", v(R + 2 * n, 2), v(R + 20), s(sU if mat else sG, 4), s(sTmp))
            if n < 9:
                e("s_add_u32 %s, %s, %d", s(sTmp), s(sTmp), 4 * 3072)
    A.label(lab2)


def cols_compute(R):
    C_, T_ = R + 22, R + 26
    for n in range(10):
        D_ = C_ if n == 0 else T_
        e("v_lshlrev_b32 %s, 16, %s", v(D_), v(R + 2 * n))
        e("v_and_b32 %s, 0xffff0000, %s", v(D_ + 1), v(R + 2 * n))
        e("v_lshlrev_b32 %s, 16, %s", v(D_ + 2), v(R + 2 * n + 1))
        e("v_and_b32 %s, 0xffff0000, %s", v(D_ + 3), v(R + 2 * n + 1))
        if n:
            e("v_pk_add_f32 %s, %s, %s", v(C_, 2), v(C_, 2), v(T_, 2))
            e("v_pk_add_f32 %s, %s, %s", v(C_ + 2, 2), v(C_ + 2, 2), v(T_ + 2, 2))
    for op in ("v_permlane16_swap_b32", "v_permlane32_swap_b32"):
        for i in range(4):
            e("v_mov_b32 %s, %s", v(T_ + i), v(C_ + i))
        e("s_nop 1")
        for i in range(4):
            e("%s %s, %s", op, v(C_ + i), v(T_ + i))
        e("s_nop 1")
        for i in range(4):
            e("v_add_f32 %s, %s, %s", v(C_ + i), v(C_ + i), v(T_ + i))
    e("s_mul_i32 %s, %s, 12288", s(sTmp), s(sRB))
    e("s_lshl_b32 %s, %s, 10", s(sTmp2), s(sCG))
    e("s_add_u32 %s, %s, %s", s(sTmp), s(sTmp), s(sTmp2))
    e("s_lshl_b32 %s, %s, 8", s(sTmp2), s(sLW))
    e("s_add_u32 %s, %s, %s", s(sTmp), s(sTmp), s(sTmp2))
    e("s_add_u32 %s, %s, 0x%x", s(sTmp), s(sTmp), WS_CSP)
    e("v_lshlrev_b32 %s, 4, v0", v(T_))
    e("v_cmp_gt_u32 vcc, 16, v0")
    e("s_and_saveexec_b64 s[4:5], vcc")
    e("buffer_store_dwordx4 %s, %s, %s, %s offen sc1", v(C_, 4), v(T_), s(sWS, 4), s(sTmp))
    e("s_mov_b64 exec, s[4:5]")


def aux_poll_addr(ffn, dst):
    e("s_lshl_b32 %s, %s, 2", s(sTmp), s(sRB))
    e("s_add_u32 %s, %s, %s", s(sTmp), s(sTmp), s(sLW))
    e("s_lshl_b32 %s, %s, 1", s(sTmp), s(sTmp))
    e("v_and_b32 v6, 1, v0")
    e("v_add_u32 v6, %s, v6", s(sTmp))
    if ffn:
        e("s_lshl_b32 %s, %s, 4", s(sTmp), s(sCG))
        e("s_add_u32 %s, %s, 128", s(sTmp), s(sTmp))
        e("v_and_b32 v7, 15, v0")
        e("v_add_u32 v7, %s, v7", s(sTmp))
        e("v_cmp_gt_u32 vcc, 16, v0")
        e("s_nop 1")
        e("v_cndmask_b32 v6, v7, v6, vcc")
    e("v_lshlrev_b32 %s, 7, v6", v(dst))


def aux_issue(ffn, R):
    e("v_and_b32 %s, 31, v0", v(R))
    e("v_lshrrev_b32 %s, 5, v0", v(R + 1))
    e("v_lshlrev_b32 %s, 2, %s", v(R), v(R))
    e("v_lshl_add_u32 %s, %s, 9, %s", v(R), v(R + 1), v(R))
    e("s_lshl_b32 %s, %s, 7", s(sTmp), s(sLW))
    e("v_add_u32 %s, %s, %s", v(R), s(sTmp), v(R))
    e("s_lshl_b32 %s, %s, 10", s(sTmp), s(sRB))
    e("s_add_u32 %s, %s, 0x%x", s(sTmp), s(sTmp), WS_STAT)
    e("buffer_load_dword %s, %s, %s, %s offen sc1", v(R + 2), v(R), s(sWS, 4), s(sTmp))
    if ffn:
        e("v_lshlrev_b32 %s, 2, v0", v(R + 1))
        e("s_lshl_b32 %s, %s, 8", s(sTmp), s(sLW))
        e("v_add_u32 %s, %s, %s", v(R + 1), s(sTmp), v(R + 1))
        e("s_lshl_b32 %s, %s, 10", s(sTmp), s(sCG))
        e("s_add_u32 %s, %s, 0x%x", s(sTmp), s(sTmp), WS_CSP)
        for n in range(16):
            e("buffer_load_dword %s, %s, %s, %s offen sc1", v(R + 3 + n), v(R + 1), s(sWS, 4), s(sTmp))
            if n < 15:
                e("s_add_u32 %s, %s, 12288", s(sTmp), s(sTmp))
        return 17
    return 1


def aux_finish(ffn, R):
    e("v_add_u32 %s, %d, %s", v(R), AUX, v(R))
    e("ds_write_b32 %s, %s", v(R), v(R + 2))
    if ffn:
        for n in range(1, 16):
            e("v_add_f32 %s, %s, %s", v(R + 3), v(R + 3), v(R + 3 + n))
        e("v_add_u32 %s, %d, %s", v(R + 1), AUX + 1024, v(R + 1))
        e("ds_write_b32 %s, %s", v(R + 1), v(R + 3))
    e("s_waitcnt lgkmcnt(0)")


def p3_map():
    e("s_and_b32 s3, s2, 7")
    e("s_lshr_b32 %s, s2, 3", s(sTmp))
    e("s_lshr_b32 %s, s3, 1", s(sP))
    e("s_lshl_b32 %s, %s, 3", s(sP), s(sP))
    e("s_and_b32 %s, %s, 7", s(sTmp2), s(sTmp))
    e("s_add_u32 %s, %s, %s", s(sP), s(sP), s(sTmp2))
    e("s_and_b32 s3, s3, 1")
    e("s_lshl_b32 s3, s3, 2")
    e("s_lshr_b32 %s, %s, 3", s(sTmp), s(sTmp))
    e("s_add_u32 %s, s3, %s", s(sG3), s(sTmp))


ZG, ZC, ZA = 64, 96, 168


def z_setup():
    p3_map()
    e("s_mul_i32 %s, %s, %d", s(sLB), s(sLW), LES)
    e("s_add_u32 %s, %s, %d", s(sLB), s(sLB), LE0)
    e("s_mul_i32 %s, %s, %d", s(sLB2), s(sLW), LLS)
    e("s_add_u32 %s, %s, %d", s(sLB2), s(sLB2), LL0)
    e("s_lshl_b32 %s, %s, 7", s(sUo), s(sP))
    e("s_lshl_b32 %s, %s, 12", s(sTmp), s(sLW))
    e("s_add_u32 %s, %s, %s", s(sUo), s(sUo), s(sTmp))
    e("s_add_u32 %s, %s, 0x%x", s(sUo), s(sUo), WS_U)
    e("s_mul_i32 %s, %s, 21", s(sCo), s(sG3))
    e("s_add_u32 %s, %s, %s", s(sCo), s(sCo), s(sLW))
    e("s_mul_i32 %s, %s, 3072", s(sCo), s(sCo))
    e("s_add_u32 %s, %s, %d", s(sCo), s(sCo), TB.CI_OFF)
    e("s_cmp_eq_u32 %s, 0", s(sLW))
    e("s_cselect_b32 %s, 0, 0x20000000", s(sOOB))


def z_ci_loads(z, vL):
    e("s_add_u32 %s, %s, %d", s(sTmp), s(sCo), z * 4 * 3072)
    if z == 5:
        e("s_add_u32 %s, %s, %s", s(sTmp), s(sTmp), s(sOOB))
    for c3 in range(3):
        e("buffer_load_dwordx4 %s, %s, %s, %s offen offset:%d", v(ZC + z * 12 + c3 * 4, 4), v(vL), s(sTAB, 4), s(sTmp), c3 * 1024)


def z_gconst():
    e("v_and_b32 v48, 15, v0")
    e("v_lshrrev_b32 v49, 5, v0")
    e("v_mul_u32_u24 v49, v49, v48")
    e("v_bfe_u32 v50, v0, 4, 1")
    e("v_add_u32 v49, v49, v50")
    e("v_cvt_f32_u32 v49, v49")
    e("v_mul_f32 v49, 0.25, v49" if False else "v_mul_f32 v49, 0x3e800000, v49")
    e("v_cvt_f32_u32 v50, v48")
    e("v_mul_f32 v50, 0x3d000000, v50")
    e("v_and_b32 v51, 1, v48")
    e("v_mul_u32_u24 v51, 0x8000, v51")
    e("v_lshl_or_b32 v51, v51, 16, v51")
    for ro in range(2):
        if ro:
            e("v_add_f32 v49, 0xbe800000, v49")
        e("v_mov_b32 v52, v49")
        for i2 in range(4):
            e("v_cos_f32 v53, v52")
            e("v_add_f32 v52, v52, v50")
            e("v_cos_f32 v54, v52")
            e("v_add_f32 v52, v52, v50")
            b = ZG + ro * 16 + i2
            e("v_cvt_pk_bf16_f32 %s, v53, v54", v(b))
            e("v_xor_b32 %s, v51, %s", v(b + 4), v(b))
            e("v_xor_b32 %s, 0x80000000, %s", v(b + 8), v(b))
            e("v_xor_b32 %s, 0x80000000, %s", v(b + 12), v(b + 4))


def zpart():
    vL, vUG, vTU, vTU1, vTU2, vTU3, vPU = 5, 6, 7, 8, 9, 10, 11
    UF, ZT, PK = 16, 32, 48
    e("v_lshlrev_b32 %s, 4, v0", v(vL))
    e("v_lshlrev_b32 %s, 7, v0", v(vPU))
    lab0 = A.newlabel("L_nofup")
    e("s_cmp_lg_u32 %s, 0", s(sLW))
    e("s_cbranch_scc1 %s", lab0)
    poll_issue(UF, 1, vPU, WS_FU)
    A.label(lab0)
    e("v_lshrrev_b32 v12, 3, v0")
    e("v_mul_u32_u24 v12, %d, v12", 21 * 4096)
    e("v_lshrrev_b32 v13, 2, v0")
    e("v_lshrrev_b32 v14, 4, v0")
    e("v_xor_b32 v13, v13, v14")
    e("v_and_b32 v13, 1, v13")
    e("v_lshl_add_u32 v12, v13, 6, v12")
    e("v_and_b32 v13, 3, v0")
    e("v_lshl_add_u32 %s, v13, 4, v12", v(vUG))
    e("v_lshrrev_b32 v12, 5, v0")
    e("v_lshlrev_b32 v12, 3, v12")
    e("v_bfe_u32 v14, v0, 2, 2")
    e("v_add_u32 v12, v12, v14")
    e("v_lshlrev_b32 v12, 7, v12")
    e("v_lshl_add_u32 v12, v13, 4, v12")
    e("v_bfe_u32 v14, v0, 4, 1")
    e("v_lshl_add_u32 v12, v14, 3, v12")
    e("v_bfe_u32 v14, v0, 3, 1")
    e("v_lshl_add_u32 v12, v14, 6, v12")
    e("v_add_u32 %s, %s, v12", v(vTU), s(sLB))
    e("v_xor_b32 %s, 64, %s", v(vTU1), v(vTU))
    e("v_add_u32 %s, %s, v12", v(vTU2), s(sLB2))
    e("v_xor_b32 %s, 64, %s", v(vTU3), v(vTU2))
    e("s_waitcnt vmcnt(0)")
    e("v_mov_b32 v12, %d", LGO)
    lab1, lab2 = A.newlabel("L_lgo"), A.newlabel("L_lgod")
    e("s_cmp_lg_u32 %s, 0", s(sLW))
    e("s_cbranch_scc1 %s", lab1)
    poll_check(UF, 1, vPU, WS_FU)
    e("v_mov_b32 v13, 1")
    e("ds_write_b32 v12, v13")
    e("s_branch %s", lab2)
    A.label(lab1)
    e("s_sleep 2")
    e("ds_read_b32 v13, v12")
    e("s_waitcnt lgkmcnt(0)")
    e("v_cmp_eq_u32 vcc, 0, v13")
    e("s_cbranch_vccnz %s", lab1)
    A.label(lab2)
    stamp(6)
    q = VQ()

    def udma(z):
        sl = z % 3
        for n in range(4):
            e("s_add_u32 m0, %s, %d", s(sLB2 if sl == 2 else sLB), (0 if sl == 2 else sl * 4096) + n * 1024)
            e("s_add_u32 %s, %s, %d", s(sTmp2), s(sUo), z * 4 * 4096 + n * 8 * 21 * 4096)
            if z == 5:
                e("s_add_u32 %s, %s, %s", s(sTmp2), s(sTmp2), s(sOOB))
            e("buffer_load_dwordx4 %s, %s, %s offen sc1 lds", v(vUG), s(sWS, 4), s(sTmp2))
        q.issue("u%d" % z, 4)
    for z in range(3):
        udma(z)

    def G(ro, nh, kap): return ZG + ((ro * 2 + nh) * 2 + kap) * 4
    for z in range(6):
        sl = z % 3
        q.wait("u%d" % z)
        for u in range(2):
            base = (vTU2, vTU3)[u] if sl == 2 else (vTU, vTU1)[u]
            for kap in range(2):
                for rd in range(2):
                    e("ds_read_b64_tr_b16 %s, %s offset:%d", v(UF + 8 * u + 4 * kap + 2 * rd, 2), v(base), (0 if sl == 2 else sl * 4096) + kap * 2048 + rd * 512)
        for u in range(2):
            e("s_waitcnt lgkmcnt(%d)", 4 - 4 * u)
            for kap in range(2):
                for nh in range(2):
                    for ro in range(2):
                        mm16(ZT + (nh * 2 + ro) * 4, UF + 8 * u + 4 * kap, G(ro, nh, kap), kap == 0)
            if u == 1 and z + 3 < 6:
                udma(z + 3)
            else:
                e("s_nop 7")
            for nh in range(2):
                for k in range(4):
                    e("v_cvt_pk_bf16_f32 %s, %s, %s", v(PK + (2 * u + nh) * 4 + k), v(ZT + nh * 8 + 2 * k), v(ZT + nh * 8 + 2 * k + 1))
        e("s_nop 1")
        for c3 in range(3):
            for rt in range(4):
                mm16(ZA + (c3 * 4 + rt) * 4, ZC + z * 12 + c3 * 4, PK + 4 * rt, z == 0)
    e("v_add_u32 v12, %s, %s", s(sLB), v(vL))
    e("v_add_u32 v13, %s, %s", s(sLB2), v(vL))
    e("s_nop 5")
    for c3 in range(3):
        for rt in range(4):
            e("ds_write_b128 %s, %s offset:%d", "v13" if c3 == 2 else "v12", v(ZA + (c3 * 4 + rt) * 4, 4), (0 if c3 == 2 else c3 * 4096) + rt * 1024)
    e("s_waitcnt lgkmcnt(0)")
    stamp(7)
    e("s_barrier")


vA0, vA1, vB0, vB1 = 2, 3, 4, 1


def lgo_init():
    e("v_mov_b32 v12, %d", LGO)
    e("v_mov_b32 v13, 0")
    e("ds_write_b32 v12, v13")


def x_src_scalar():
    e("s_lshl_b32 %s, %s, 2", s(sAoff), s(sRB))
    e("s_add_u32 %s, %s, %s", s(sAoff), s(sAoff), s(sLW))
    e("s_mul_i32 %s, %s, 1280", s(sAoff), s(sAoff))


def ffn_loader():
    e("v_lshrrev_b32 v6, 3, v0")
    e("v_mul_u32_u24 v6, 81920, v6")
    e("v_and_b32 v7, 7, v0")
    e("v_lshrrev_b32 v8, 4, v0")
    e("v_xor_b32 v7, v7, v8")
    e("v_lshl_add_u32 %s, v7, 4, v6", v(vA0))
    e("v_xor_b32 %s, 64, %s", v(vA1), v(vA0))
    e("v_mul_u32_u24 v6, 3072, v8")
    e("v_and_b32 v7, 15, v0")
    e("v_lshlrev_b32 v8, 2, v8")
    e("v_xor_b32 v7, v7, v8")
    e("v_lshl_add_u32 %s, v7, 4, v6", v(vB0))
    e("v_xor_b32 %s, 32, %s", v(vB1), v(vB0))
    x_src_scalar()
    e("s_mul_i32 %s, %s, %d", s(sBoff), s(sLW), 16 * 3072)
    e("s_lshl_b32 %s, %s, 8", s(sTmp), s(sCG))
    e("s_add_u32 %s, %s, %s", s(sBoff), s(sBoff), s(sTmp))
    e("s_lshl_b32 %s, %s, 12", s(sM0), s(sLW))
    tab_srd()
    e("s_waitcnt lgkmcnt(0)")
    for k in ("X", "G", "U"):
        srd(A, *SRDS[k])
    q = VQ()

    def slab(i):
        b = (i % 3) * SLAB
        for n in range(4):
            e("s_add_u32 m0, %s, %d", s(sM0), b + n * 1024)
            e("s_add_u32 %s, %s, %d", s(sTmp), s(sAoff), n * 8 * 81920 + i * 128)
            e("buffer_load_dwordx4 %s, %s, %s offen lds", v(vA1 if n & 1 else vA0), s(sX, 4), s(sTmp))
        for mat in range(2):
            for n in range(4):
                e("s_add_u32 m0, %s, %d", s(sM0), b + 16384 * (1 + mat) + n * 1024)
                e("s_add_u32 %s, %s, %d", s(sTmp), s(sBoff), (i * 64 + n * 4) * 3072)
                e("buffer_load_dwordx4 %s, %s, %s offen lds", v(vB1 if n & 2 else vB0), s(sU if mat else sG, 4), s(sTmp))
        q.issue("s%d" % i, 12)
    slab(0)
    lgo_init()
    e("s_load_dword %s, %s, 0x%x", s(sTAG), s(P + 18, 2), WS_EP)
    srd(A, *SRDS["WS"])
    slab(1)
    stamp(1)
    q.wait("s0", extra=" lgkmcnt(0)")
    e("s_barrier")
    stamp(2)
    cols_issue(16); q.issue("c", 10)
    slab(2)
    e("s_waitcnt lgkmcnt(0)")
    make_tag()
    z_setup()
    e("v_lshlrev_b32 v5, 4, v0")
    aux_poll_addr(True, 15)
    q.wait("s1")
    e("s_barrier")
    slab(3)
    q.wait("c")
    cols_compute(16); q.issue("cs")
    q.wait("s2")
    e("s_barrier")
    slab(4)
    z_gconst()
    q.wait("s3", "cs")
    e("s_barrier")
    lab = A.newlabel("L_nocf")
    e("s_cmp_lg_u32 %s, 0", s(sLW))
    e("s_cbranch_scc1 %s", lab)
    e("s_lshl_b32 %s, %s, 4", s(sCnt), s(sCG))
    e("s_add_u32 %s, %s, %s", s(sCnt), s(sCnt), s(sRB))
    e("s_lshl_b32 %s, %s, 7", s(sCnt), s(sCnt))
    e("s_add_u32 %s, %s, 0x%x", s(sCnt), s(sCnt), WS_FSC)
    flag_store(sCnt, 16, 17)
    A.label(lab)
    slab(5)
    zs = {3: [0], 4: [1, 2], 5: [3, 4], 6: [5]}
    for b in range(3, 7):
        q.wait("s%d" % (b + 1))
        e("s_barrier")
        if b == 6:
            poll_issue(40, 1, 15, WS_FS); q.issue("p")
        slab(b + 3)
        for z in zs[b]:
            z_ci_loads(z, 5); q.issue("ci", 3)
    q.wait("s8", "p")
    poll_check(40, 1, 15, WS_FS)
    aux_issue(True, 16)
    e("s_barrier")
    e("s_waitcnt vmcnt(0)")
    aux_finish(True, 16)
    e("s_barrier")
    stamp(3)
    e("s_barrier")
    e("s_branch L_zpart")


def dft_loader(njb):
    XR = 64
    vW0, vW1 = 6, 7
    e("v_lshrrev_b32 v8, 3, v0")
    e("v_mul_u32_u24 v9, 81920, v8")
    e("v_and_b32 v10, 7, v0")
    e("v_lshl_add_u32 %s, v10, 4, v9", v(vA0))
    e("v_lshrrev_b32 v9, 4, v0")
    e("v_xor_b32 v10, v10, v9")
    e("v_lshlrev_b32 v8, 7, v8")
    e("v_lshl_add_u32 v8, v10, 4, v8")
    e("s_lshl_b32 %s, %s, 12", s(sTmp), s(sLW))
    e("v_add_u32 %s, %s, v8", v(vW0), s(sTmp))
    e("v_xor_b32 %s, 64, %s", v(vW1), v(vW0))
    e("v_add_u32 v8, %d, %s", 2 * SLAB, v(vW0))
    e("v_add_u32 v9, %d, %s", 2 * SLAB, v(vW1))
    e("v_lshlrev_b32 %s, 4, v0", v(vB0))
    x_src_scalar()
    if njb == 6:
        e("s_mul_i32 %s, %s, %d", s(sBoff), s(sLW), 6 * 1024)
    else:
        e("s_mul_i32 %s, %s, %d", s(sBoff), s(sCG), 20 * 5 * 1024)
        e("s_mul_i32 %s, %s, %d", s(sTmp), s(sLW), 5 * 1024)
        e("s_add_u32 %s, %s, %s", s(sBoff), s(sBoff), s(sTmp))
        e("s_add_u32 %s, %s, %d", s(sBoff), s(sBoff), 20 * 1024)
    e("s_mul_i32 %s, %s, %d", s(sM0), s(sLW), njb * 1024)
    e("s_add_u32 %s, %s, 16384", s(sM0), s(sM0))
    tab_srd()
    e("s_waitcnt lgkmcnt(0)")
    srd(A, *SRDS["X"])
    q = VQ()

    def xl(i):
        for n in range(4):
            e("s_add_u32 %s, %s, %d", s(sTmp), s(sAoff), n * 8 * 81920 + i * 128)
            for hf in range(2):
                e("buffer_load_dwordx4 %s, %s, %s, %s offen offset:%d", v(XR + i * 32 + n * 8 + hf * 4, 4), v(vA0), s(sX, 4), s(sTmp), hf * 640)
        q.issue("x%d" % i, 8)

    def cl(i):
        for tl in range(njb):
            if tl % 4 == 0:
                e("s_add_u32 m0, %s, %d", s(sM0), (i % 3) * SLAB + tl * 1024)
                e("s_add_u32 %s, %s, %d", s(sTmp), s(sBoff), i * 4 * njb * 1024 + tl * 1024)
            e("buffer_load_dwordx4 %s, %s, %s offen offset:%d lds", v(vB0), s(sTAB, 4), s(sTmp), (tl % 4) * 1024)
        q.issue("c%d" % i, njb)

    def fold(i):
        for n in range(4):
            a0 = XR + i * 32 + n * 8
            for d in range(4):
                t = 16 + 4 * (d & 1)
                e("v_lshlrev_b32 %s, 16, %s", v(t), v(a0 + d))
                e("v_and_b32 %s, 0xffff0000, %s", v(t + 1), v(a0 + d))
                e("v_lshlrev_b32 %s, 16, %s", v(t + 2), v(a0 + 4 + d))
                e("v_and_b32 %s, 0xffff0000, %s", v(t + 3), v(a0 + 4 + d))
                e("v_pk_fma_f32 %s, %s, %s, %s", v(t, 2), v(t + 2, 2), s(sSgn, 2), v(t, 2))
                e("v_cvt_pk_bf16_f32 %s, %s, %s", v(a0 + d), v(t), v(t + 1))
            b = i % 3
            base = ((vW0, vW1) if b < 2 else (8, 9))[n & 1]
            e("ds_write_b128 %s, %s offset:%d", v(base), v(a0, 4), (b * SLAB if b < 2 else 0) + n * 1024)
    xl(0); cl(0)
    lgo_init()
    e("s_load_dword %s, %s, 0x%x", s(sTAG), s(P + 18, 2), WS_EP)
    for k in ("WS", "WR", "WI"):
        srd(A, *SRDS[k])
    e("s_cmp_ge_u32 %s, 2", s(sCG))
    e("s_cselect_b32 %s, -1.0, 1.0", s(sSgn))
    e("s_mov_b32 %s, %s", s(sSgn + 1), s(sSgn))
    xl(1); cl(1)
    stamp(1)
    q.wait("x0"); fold(0)
    q.wait("c0", extra=" lgkmcnt(0)")
    e("s_barrier")
    stamp(2)
    make_tag()
    xl(2); cl(2)
    aux_poll_addr(False, 15)
    e("s_lshl_b32 %s, %s, 12", s(sTmp), s(sLW))
    e("v_add_u32 %s, %d, v8", v(vW0), (-2 * SLAB) & 0xffffffff)
    e("v_add_u32 %s, %d, v9", v(vW1), (-2 * SLAB) & 0xffffffff)
    q.wait("x1"); fold(1)
    q.wait("c1", extra=" lgkmcnt(0)")
    e("s_barrier")
    xl(3); cl(3)
    q.wait("x2"); fold(2)
    q.wait("c2", extra=" lgkmcnt(0)")
    e("s_barrier")
    xl(4); cl(4)
    poll_issue(40, 1, 15, WS_FS); q.issue("p")
    q.wait("x3"); fold(3)
    q.wait("c3", extra=" lgkmcnt(0)")
    e("s_barrier")
    q.wait("x4"); fold(4)
    q.wait("p")
    poll_check(40, 1, 15, WS_FS)
    aux_issue(False, 24)
    e("s_waitcnt vmcnt(0)")
    aux_finish(False, 24)
    e("s_barrier")
    stamp(3)
    z_setup()
    e("s_barrier")
    e("s_branch L_dft_l")


def addr_advance(regs):
    e("s_add_u32 %s, %s, %d", s(sBuf), s(sBuf), SLAB)
    e("s_cmp_ge_u32 %s, %d", s(sBuf), 3 * SLAB)
    e("s_cselect_b32 %s, 0, %s", s(sBuf), s(sBuf))
    e("s_cselect_b32 %s, %d, %s", s(sDelta), (-2 * SLAB) & 0xffffffff, s(sSLAB))
    for r_ in regs:
        e("v_add_u32 %s, %s, %s", v(r_), s(sDelta), v(r_))


def gemm_loop(nslab, NT, mfmas, reads, need, areg, bar_gap, per_gap, last_extra=(), first_hook=None):
    nreads = len(reads(0, 0))
    nm = len(need)

    def step(mf, nxt, first_gap=0, pre=None, barg=None):
        issued, done = 0, 0
        for m in range(nm):
            if need[m] > done:
                allowed = nreads - need[m] + issued
                e("s_waitcnt lgkmcnt(%d)", min(15, allowed))
                done = need[m] if allowed <= 15 else min(nreads, nreads + issued - 15)
            mf[m]()
            if pre and m in pre:
                for f in pre[m]:
                    f()
                if m == barg:
                    done = nreads
            if m >= first_gap:
                for k in range(per_gap):
                    if issued < len(nxt):
                        nxt[issued]()
                        issued += 1
        assert issued == len(nxt), (issued, len(nxt))

    def bar(vm=False):
        e("s_waitcnt lgkmcnt(0)%s", " vmcnt(0)" if vm else "")
        e("s_barrier")

    def merge(*ds):
        out = {}
        for d in ds:
            for k, x in d.items():
                out.setdefault(k, [])
                out[k] += x
        return out

    def spread(ops):
        out = {}
        for n, f in enumerate(ops):
            g = nm - 1 - (len(ops) - 1 - n) * max(1, (nm - bar_gap - 1) // max(1, len(ops)))
            out.setdefault(max(g, 0), []).append(f)
        return out

    def slab(last):
        ex = list(last_extra) if last else []
        per = (len(ex) + NT - 1) // NT
        for t in range(NT - 1):
            step(mfmas(t & 1), reads((t + 1) & 1, t + 1), pre=spread(ex[t * per:(t + 1) * per]))
        if last:
            step(mfmas(1), [], pre=merge({bar_gap: [bar]}, spread(ex[(NT - 1) * per:])), barg=bar_gap)
        else:
            hooks = {bar_gap: [lambda: bar(first_hook is not None)] + ([first_hook] if first_hook else [])}
            step(mfmas(1), reads(0, 0), first_gap=bar_gap + (1 if bar_gap else 0), pre=merge({0: [lambda: addr_advance(areg)]}, hooks), barg=bar_gap)
    e("s_mov_b32 %s, 0", s(sBuf))
    e("s_mov_b32 %s, %d", s(sSLAB), SLAB)
    e("s_mov_b32 %s, 0", s(sCnt))
    e("s_waitcnt lgkmcnt(0)")
    make_tag()
    e("s_barrier")
    stamp(2)
    for f in reads(0, 0):
        f()
    lab = A.newlabel("L_gemm")
    A.label(lab)
    slab(False)
    e("s_add_u32 %s, %s, 1", s(sCnt), s(sCnt))
    e("s_cmp_lt_u32 %s, %d", s(sCnt), nslab - 1)
    e("s_cbranch_scc1 %s", lab)
    slab(True)
    stamp(3)


vWD = [1, 2, 3, 4, 14]


def p3c_setup():
    p3_map()
    e("s_lshr_b32 %s, %s, 1", s(sOc), s(sG3))
    e("s_and_b32 %s, %s, 1", s(sTmp), s(sG3))
    e("s_mul_i32 %s, %s, 20", s(sTmp), s(sTmp))
    e("s_add_u32 %s, %s, %s", s(sOc), s(sOc), s(sTmp))
    e("s_add_u32 %s, %s, 16", s(sOc), s(sOc))
    e("s_lshl_b32 %s, %s, 5", s(sOc), s(sOc))
    e("s_lshl_b32 %s, %s, 6", s(sOo), s(sG3))
    e("s_add_u32 %s, %s, %d", s(sTmp2), s(sOo), 640 - 64)
    e("s_sub_u32 %s, %s, 128", s(sTmp), s(sOc))
    for n in range(5):
        e("v_add_u32 v5, %d, v0", 64 * n)
        e("v_mul_u32_u24 v6, 6554, v5")
        e("v_lshrrev_b32 v6, 16, v6")
        e("v_mul_u32_u24 v7, 10, v6")
        e("v_sub_u32 v5, v5, v7")
        e("v_mul_u32_u24 v6, 1280, v6")
        e("v_lshl_add_u32 v6, v5, 4, v6")
        e("v_mov_b32 v7, %s", s(sOo))
        e("v_mov_b32 v15, %s", s(sTmp2))
        e("v_cmp_lt_u32 vcc, 3, v5")
        e("s_nop 1")
        e("v_cndmask_b32 v7, v7, v15, vcc")
        e("v_mov_b32 v15, %s", s(sTmp))
        e("v_cmp_lt_u32 vcc, 7, v5")
        e("s_nop 1")
        e("v_cndmask_b32 v7, v7, v15, vcc")
        e("v_add_u32 %s, v6, v7", v(vWD[n]))
    e("s_mul_i32 %s, %s, %d", s(sLB), s(sW), CES)
    e("s_add_u32 %s, %s, %d", s(sLB), s(sLB), CE0)
    e("s_mul_i32 %s, %s, %d", s(sLB2), s(sW), CLS)
    e("s_mul_i32 %s, %s, %d", s(sHo), s(sP), 2 * 48 * 2048)
    e("s_lshl_b32 %s, %s, 11", s(sTmp), s(sW))
    e("s_add_u32 %s, %s, %s", s(sHo), s(sHo), s(sTmp))
    e("s_mul_i32 %s, %s, 40960", s(sWo), s(sW))
    e("s_and_b32 %s, %s, 1", s(sTmp), s(sW))
    e("s_lshl_b32 %s, %s, 10", s(sTmp), s(sTmp))
    e("s_lshl_b32 %s, %s, 1", s(sTmp2), s(sP))
    e("s_add_u32 %s, %s, %s", s(sTmp), s(sTmp), s(sTmp2))
    e("s_lshr_b32 %s, %s, 1", s(sTmp2), s(sW))
    e("s_add_u32 %s, %s, %s", s(sTmp), s(sTmp), s(sTmp2))
    e("s_mul_i32 %s, %s, 1280", s(sTmp), s(sTmp))
    e("s_add_u32 %s, %s, %s", s(sOo), s(sOo), s(sTmp))
    e("s_add_u32 %s, %s, %s", s(sOc), s(sOc), s(sTmp))


def p3_dma(i):
    ops = []
    sl = i % 4
    for n in range(5):
        def f(n=n):
            e("s_add_u32 m0, %s, %d", s(sLB2 if sl == 3 else sLB), (0 if sl == 3 else sl * 5120) + n * 1024)
            if n == 0:
                e("s_add_u32 %s, %s, %d", s(sTmp2), s(sWo), i * 4 * 40960)
            else:
                e("s_nop 0")
            e("buffer_load_dwordx4 %s, %s, %s offen lds", v(vWD[n]), s(sWD, 4), s(sTmp2))
        ops.append(f)
    return ops


def p3c():
    vL, vTW, vTW3, vO, vPH = 5, 11, 12, 13, 6
    WF, RS, XR, ACC = 16, 96, 96, 176
    NI = 12
    e("v_lshlrev_b32 %s, 4, v0", v(vL))
    e("v_and_b32 v8, 15, v0")
    e("v_mul_u32_u24 v8, 81920, v8")
    e("v_lshrrev_b32 v9, 4, v0")
    e("v_lshl_add_u32 %s, v9, 3, v8", v(vO))
    e("s_lshl_b32 %s, %s, 1", s(sTmp), s(sP))
    e("s_lshr_b32 %s, %s, 1", s(sTmp2), s(sW))
    e("s_add_u32 %s, %s, %s", s(sTmp), s(sTmp), s(sTmp2))
    e("s_mul_i32 %s, %s, 12", s(sTmp), s(sTmp))
    e("v_min_u32 v8, 11, v0")
    e("v_add_u32 v8, %s, v8", s(sTmp))
    e("v_lshlrev_b32 %s, 7, v8", v(vPH))
    e("v_lshrrev_b32 v8, 2, v0")
    e("v_mul_u32_u24 v8, 160, v8")
    e("v_and_b32 v9, 3, v0")
    e("v_lshl_add_u32 v8, v9, 3, v8")
    e("v_add_u32 %s, %s, v8", v(vTW), s(sLB))
    e("v_add_u32 %s, %s, v8", v(vTW3), s(sLB2))
    stamp(4)
    lab = A.newlabel("L_nofh")
    e("s_cmp_ge_u32 s2, 192")
    e("s_cbranch_scc1 %s", lab)
    e("s_waitcnt vmcnt(0)")
    flag_store(sFlag, 8, 9)
    A.label(lab)
    stamp(5)
    poll_issue(36, 1, vPH, WS_FH)
    e("s_waitcnt vmcnt(0)")
    poll_check(36, 1, vPH, WS_FH)
    stamp(6)
    q = VQ()

    def regloads(i):
        ops = []
        rs = RS + (i % 4) * 20
        for u in range(2):
            for t in range(2):
                def f(u=u, t=t):
                    if t == 0:
                        e("s_add_u32 %s, %s, %d", s(sTmp), s(sHo), WS_H + i * 4 * 2048 + u * 48 * 2048)
                    e("buffer_load_dwordx4 %s, %s, %s, %s offen offset:%d sc1", v(rs + (2 * u + t) * 4, 4), v(vL), s(sWS, 4), s(sTmp), t * 1024)
                    q.issue("i%d" % i)
                ops.append(f)
        return ops
    for i in range(3):
        for f in regloads(i):
            f()
    OFF = [(sOo, 0), (sOo, 32), (sOo, 640), (sOo, 672), (sOc, 0)]

    def acc(ct, rt): return ACC + (ct * 4 + rt) * 4
    for i in range(NI):
        sl = i % 4
        rs = RS + sl * 20
        q.wait("i%d" % i)
        nr = []
        for ct in range(5):
            for rd in range(2):
                e("ds_read_b64_tr_b16 %s, %s offset:%d", v(WF + 4 * ct + 2 * rd, 2), v(vTW3 if sl == 3 else vTW), (0 if sl == 3 else sl * 5120) + rd * 2560 + ct * 32)
        if i + 3 < NI:
            for f in p3_dma(i + 3):
                f()
            q.issue("i%d" % (i + 3), 5)
            nr = regloads(i + 3)
        if i == 9:
            def xl(ct):
                e("buffer_load_dwordx2 %s, %s, %s, %s offen offset:%d", v(XR + 2 * ct, 2), v(vO), s(sX, 4), s(OFF[ct][0]), OFF[ct][1])
                q.issue("x")
            nr = [(lambda ct=ct: xl(ct)) for ct in range(5)]
        for ct in range(5):
            e("s_waitcnt lgkmcnt(%d)", 8 - 2 * ct)
            for rt in range(4):
                mm16(acc(ct, rt), WF + 4 * ct, rs + 4 * rt, i == 0)
            if ct < len(nr):
                nr[ct]()
    e("v_add_u32 v8, %s, %s", s(sLB), v(vL))
    e("v_add_u32 v9, %s, %s", s(sLB2), v(vL))
    e("s_cmp_eq_u32 %s, 3", s(sW))
    e("s_mul_i32 %s, %s, 5120", s(sTmp), s(sW))
    e("s_nop 3")
    for rt in range(4):
        for ct in range(5):
            e("ds_write_b128 %s, %s offset:%d", "v9" if rt == 3 else "v8", v(acc(ct, rt), 4), (0 if rt == 3 else rt * 5120) + ct * 1024)
    e("s_add_u32 %s, %s, %d", s(sTmp), s(sTmp), CE0)
    e("s_cmp_eq_u32 %s, 3", s(sW))
    e("s_cselect_b32 %s, %d, %s", s(sTmp), CL0, s(sTmp))
    e("s_mov_b32 %s, %d", s(sTmp2), CES)
    e("s_cselect_b32 %s, %d, %s", s(sTmp2), CLS, s(sTmp2))
    e("v_add_u32 v16, %s, %s", s(sTmp), v(vL))
    for sw in range(1, 4):
        e("v_add_u32 %s, %s, %s", v(16 + sw), s(sTmp2), v(15 + sw))
    e("s_lshl_b32 %s, %s, 10", s(sTmp), s(sW))
    e("v_add_u32 v20, %s, %s", s(sTmp), v(vL))
    e("v_add_u32 v21, %d, v20", LL0)
    e("v_add_u32 v20, %d, v20", LE0)
    e("s_waitcnt lgkmcnt(0)")
    stamp(7)
    e("s_barrier")
    LP = 112
    order = []
    for c3 in range(3):
        for lw in range(4):
            e("ds_read_b128 %s, %s offset:%d", v(LP + (c3 * 4 + lw) * 4, 4), "v21" if c3 == 2 else "v20", lw * LLS if c3 == 2 else lw * LES + c3 * 4096)
    for ct in range(5):
        for sw in range(4):
            e("ds_read_b128 %s, %s offset:%d", v(ACC + (ct * 4 + sw) * 4, 4), v(16 + sw), ct * 1024)
    e("s_waitcnt lgkmcnt(15)")
    for c3 in range(3):
        b = LP + c3 * 16
        for k in (0, 2):
            e("v_pk_add_f32 %s, %s, %s", v(b + k, 2), v(b + k, 2), v(b + 8 + k, 2))
            e("v_pk_add_f32 %s, %s, %s", v(b + 4 + k, 2), v(b + 4 + k, 2), v(b + 12 + k, 2))
        for k in (0, 2):
            if c3 < 2:
                e("v_pk_add_f32 %s, %s, %s neg_lo:[0,1] neg_hi:[0,1]", v(b + 8 + k, 2), v(b + k, 2), v(b + 4 + k, 2))
            e("v_pk_add_f32 %s, %s, %s", v(b + k, 2), v(b + k, 2), v(b + 4 + k, 2))
    zsrc = [LP, LP + 16, LP + 8, LP + 24, LP + 32]
    e("s_waitcnt vmcnt(0)")
    for ct in range(5):
        b = ACC + ct * 16
        e("s_waitcnt lgkmcnt(%d)", min(15, 16 - 4 * ct))
        for k in (0, 2):
            e("v_pk_add_f32 %s, %s, %s", v(b + k, 2), v(b + k, 2), v(b + 4 + k, 2))
            e("v_pk_add_f32 %s, %s, %s", v(b + 8 + k, 2), v(b + 8 + k, 2), v(b + 12 + k, 2))
        x0 = XR + 2 * ct
        e("v_lshlrev_b32 %s, 16, %s", v(b + 4), v(x0))
        e("v_and_b32 %s, 0xffff0000, %s", v(b + 5), v(x0))
        e("v_lshlrev_b32 %s, 16, %s", v(b + 6), v(x0 + 1))
        e("v_and_b32 %s, 0xffff0000, %s", v(b + 7), v(x0 + 1))
        for k in (0, 2):
            e("v_pk_add_f32 %s, %s, %s", v(b + k, 2), v(b + k, 2), v(b + 8 + k, 2))
            e("v_pk_add_f32 %s, %s, %s", v(b + 4 + k, 2), v(b + 4 + k, 2), v(zsrc[ct] + k, 2))
        for k in (0, 2):
            e("v_pk_add_f32 %s, %s, %s", v(b + k, 2), v(b + k, 2), v(b + 4 + k, 2))
        e("v_cvt_pk_bf16_f32 %s, %s, %s", v(b + 8), v(b), v(b + 1))
        e("v_cvt_pk_bf16_f32 %s, %s, %s", v(b + 9), v(b + 2), v(b + 3))
        e("buffer_store_dwordx2 %s, %s, %s, %s offen offset:%d", v(b + 8, 2), v(vO), s(sOUT, 4), s(OFF[ct][0]), OFF[ct][1])
    lab = A.newlabel("L_noep")
    e("s_lshl_b32 %s, s2, 3", s(sTmp))
    e("s_add_u32 %s, %s, %s", s(sTmp), s(sTmp), s(sW))
    e("s_cmp_eq_u32 %s, 0", s(sTmp))
    e("s_cbranch_scc0 %s", lab)
    e("s_mov_b32 %s, 0x%x", s(sTmp), WS_EP)
    flag_store(sTmp, 8, 9)
    A.label(lab)


def p1_ffn():
    vXA, vWA, FR, ACC = 8, 10, 16, 112
    stats_addr(16)
    e("s_and_b32 %s, %s, 1", s(sWM), s(sW))
    e("s_lshr_b32 %s, %s, 1", s(sWN), s(sW))
    karg_wait(["X"], ["WS", "WD", "OUT"])
    lab = A.newlabel("L_nost")
    e("s_cmp_ge_u32 %s, 8", s(sCG))
    e("s_cbranch_scc1 %s", lab)
    stats_issue(16)
    A.label(lab)
    for i in range(128):
        e("v_mov_b32 %s, 0", v(ACC + i))
    p3c_setup()
    e("v_and_b32 v5, 15, v0")
    e("v_lshlrev_b32 v5, 7, v5")
    e("s_lshl_b32 %s, %s, 13", s(sTmp), s(sWM))
    e("v_add_u32 v5, %s, v5", s(sTmp))
    e("v_lshrrev_b32 v6, 4, v0")
    e("v_bfe_u32 v7, v0, 1, 3")
    e("v_xor_b32 v6, v6, v7")
    e("v_lshl_add_u32 %s, v6, 4, v5", v(vXA))
    e("v_xor_b32 %s, 64, %s", v(vXA + 1), v(vXA))
    e("v_lshrrev_b32 v5, 4, v0")
    e("v_bfe_u32 v6, v0, 2, 2")
    e("v_lshl_add_u32 v7, v5, 3, v6")
    e("v_lshlrev_b32 v7, 8, v7")
    e("v_and_b32 v5, 1, v5")
    e("v_lshl_add_u32 v5, v6, 1, v5")
    e("s_lshl_b32 %s, %s, 2", s(sTmp), s(sWN))
    e("v_xor_b32 v5, %s, v5", s(sTmp))
    e("v_lshl_add_u32 v7, v5, 5, v7")
    e("v_and_b32 v6, 3, v0")
    e("v_lshl_add_u32 %s, v6, 3, v7", v(vWA))
    for ft in range(1, 4):
        e("v_xor_b32 %s, %d, %s", v(vWA + ft), ft << 5, v(vWA))
    e("s_lshl_b32 %s, %s, 3", s(sFlag), s(sRB))
    e("s_add_u32 %s, %s, %s", s(sFlag), s(sFlag), s(sCG))
    e("s_lshl_b32 %s, %s, 7", s(sFlag), s(sFlag))
    e("s_add_u32 %s, %s, 0x%x", s(sFlag), s(sFlag), WS_FS)
    e("s_mov_b32 %s, 1", s(sNU))
    lab = A.newlabel("L_nost")
    e("s_cmp_ge_u32 %s, 8", s(sCG))
    e("s_cbranch_scc1 %s", lab)
    e("s_mov_b32 %s, %s", s(sNU), s(sW))
    e("s_waitcnt vmcnt(0)")
    stats_compute(16)
    A.label(lab)
    stamp(1)

    def hook():
        lab = A.newlabel("L_nofl")
        e("s_cmp_lg_u32 %s, 0", s(sNU))
        e("s_cbranch_scc1 %s", lab)
        e("s_mov_b32 %s, 1", s(sNU))
        flag_store(sFlag, 5, 6)
        A.label(lab)

    def acc(mat, ft, st): return ACC + ((mat * 4 + ft) * 4 + st) * 4
    def xf(p, st): return FR + p * 48 + st * 4
    def wf(p, mat, ft): return FR + p * 48 + 16 + (mat * 4 + ft) * 4
    keys = [("x", 0), ("w", 0, 0), ("w", 0, 0), ("x", 1), ("x", 2), ("x", 3)]
    for ft in range(4):
        for mat in range(2):
            if (mat, ft) != (0, 0):
                keys += [("w", mat, ft)] * 2

    def reads(p, t):
        out, seen = [], {}
        for k in keys:
            if k[0] == "x":
                out.append(lambda st=k[1]: e("ds_read_b128 %s, %s offset:%d", v(xf(p, st), 4), v(vXA + t), st * 2048))
            else:
                rd = seen.get(k, 0); seen[k] = rd + 1
                out.append(lambda mat=k[1], ft=k[2], rd=rd: e("ds_read_b64_tr_b16 %s, %s offset:%d", v(wf(p, mat, ft) + 2 * rd, 2), v(vWA + ft), 16384 * (1 + mat) + t * 8192 + rd * 1024))
        return out
    morder, n = [], 0
    for ft in range(4):
        for mat in range(2):
            morder += [(mat, ft, st) for st in ([0, 1, 2, 3] if n % 2 == 0 else [3, 2, 1, 0])]
            n += 1
    need = [max(i + 1 for i, k in enumerate(keys) if k == ("x", m[2]) or k == ("w", m[0], m[1])) for m in morder]

    def mfmas(p):
        return [(lambda m=m: mm16(acc(*m), wf(p, m[0], m[1]), xf(p, m[2]))) for m in morder]
    gemm_loop(10, 2, mfmas, reads, need, [8, 9, 10, 11, 12, 13], 3, 1, p3_dma(0) + p3_dma(1) + p3_dma(2), hook)

    RM, CS = 16, 32
    e("v_and_b32 v5, 15, v0")
    e("v_lshlrev_b32 v5, 2, v5")
    e("s_lshl_b32 %s, %s, 8", s(sTmp), s(sWM))
    e("s_add_u32 %s, %s, %d", s(sTmp), s(sTmp), AUX)
    e("v_add_u32 v5, %s, v5", s(sTmp))
    for st in range(4):
        e("ds_read_b32 %s, v5 offset:%d", v(RM + 4 * st), st * 64)
        e("ds_read_b32 %s, v5 offset:%d", v(RM + 4 * st + 2), 512 + st * 64)
    e("v_lshrrev_b32 v6, 4, v0")
    e("v_lshlrev_b32 v6, 4, v6")
    e("s_lshl_b32 %s, %s, 8", s(sTmp), s(sWN))
    e("s_add_u32 %s, %s, %d", s(sTmp), s(sTmp), AUX + 1024)
    e("v_add_u32 v6, %s, v6", s(sTmp))
    for ft in range(4):
        for mat in range(2):
            e("ds_read_b128 %s, v6 offset:%d", v(CS + (mat * 4 + ft) * 4, 4), mat * 512 + ft * 64)
    e("s_lshl_b32 %s, %s, 1", s(sFlag), s(sRB))
    e("s_add_u32 %s, %s, %s", s(sFlag), s(sFlag), s(sWM))
    e("s_mul_i32 %s, %s, %d", s(sTmp), s(sFlag), 2 * 48 * 2048)
    e("s_lshl_b32 s3, %s, 2", s(sCG))
    e("s_lshl_b32 %s, %s, 1", s(sCnt), s(sWN))
    e("s_add_u32 s3, s3, %s", s(sCnt))
    e("s_lshl_b32 s3, s3, 11")
    e("s_add_u32 %s, %s, s3", s(sDelta), s(sTmp))
    e("s_lshl_b32 %s, %s, 1", s(sFlag), s(sFlag))
    e("s_add_u32 %s, %s, %s", s(sFlag), s(sFlag), s(sWN))
    e("s_mul_i32 %s, %s, 12", s(sFlag), s(sFlag))
    e("s_add_u32 %s, %s, %s", s(sFlag), s(sFlag), s(sCG))
    e("s_lshl_b32 %s, %s, 7", s(sFlag), s(sFlag))
    e("s_add_u32 %s, %s, 0x%x", s(sFlag), s(sFlag), WS_FH)
    e("v_lshlrev_b32 v5, 4, v0")
    e("s_waitcnt lgkmcnt(4)")
    for st in range(4):
        e("v_mul_f32 %s, %s, %s", v(RM + 4 * st), v(RM + 4 * st), v(RM + 4 * st))
    for ph in range(2):
        if ph == 1:
            e("s_waitcnt lgkmcnt(0)")
        for st in range(4):
            rr, mm_ = RM + 4 * st, RM + 4 * st + 2
            o = 64 + ((ph * 4 + st) & 3) * 4
            for fi in range(2):
                ft = 2 * ph + fi
                g0, u0 = acc(0, ft, st), acc(1, ft, st)
                for k in (0, 2):
                    e("v_pk_fma_f32 %s, %s, %s, %s op_sel_hi:[1,0,1] neg_lo:[0,1,0] neg_hi:[0,1,0]", v(g0 + k, 2), v(CS + ft * 4 + k, 2), v(mm_, 2), v(g0 + k, 2))
                    e("v_pk_fma_f32 %s, %s, %s, %s op_sel_hi:[1,0,1] neg_lo:[0,1,0] neg_hi:[0,1,0]", v(u0 + k, 2), v(CS + 16 + ft * 4 + k, 2), v(mm_, 2), v(u0 + k, 2))
                for k in range(4):
                    e("v_max_f32 %s, 0, %s", v(g0 + k), v(g0 + k))
                for k in (0, 2):
                    e("v_pk_mul_f32 %s, %s, %s op_sel_hi:[1,0]", v(u0 + k, 2), v(u0 + k, 2), v(rr, 2))
                for k in (0, 2):
                    e("v_pk_mul_f32 %s, %s, %s", v(g0 + k, 2), v(g0 + k, 2), v(u0 + k, 2))
                for k in range(2):
                    e("v_cvt_pk_bf16_f32 %s, %s, %s", v(o + 2 * fi + k), v(g0 + 2 * k), v(g0 + 2 * k + 1))
            e("s_add_u32 %s, %s, %d", s(sTmp), s(sDelta), WS_H + (st >> 1) * 48 * 2048 + ph * 2048)
            e("buffer_store_dwordx4 %s, v5, %s, %s offen offset:%d sc1", v(o, 4), s(sWS, 4), s(sTmp), (st & 1) * 1024)
    e("s_branch L_p3c")


def p1_dft(njb):
    vXA, vCA, FR, ACC, FC = 8, 12, 16, 80, 176
    e("s_lshl_b32 %s, %s, 12", s(sTmp), s(sW))
    e("v_and_b32 v5, 31, v0")
    e("v_lshlrev_b32 v5, 7, v5")
    e("v_add_u32 v5, %s, v5", s(sTmp))
    e("v_lshrrev_b32 v6, 5, v0")
    e("v_bfe_u32 v7, v0, 1, 3")
    e("v_xor_b32 v6, v6, v7")
    e("v_lshl_add_u32 %s, v6, 4, v5", v(vXA))
    for t in range(1, 4):
        e("v_xor_b32 %s, %d, %s", v(vXA + t), t << 5, v(vXA))
    e("v_lshlrev_b32 %s, 4, v0", v(vCA))
    tab_srd()
    karg_wait([], ["X", "WS", "WR", "WI", "WD", "OUT"])
    p3c_setup()
    for i in range(16 * njb):
        e("v_mov_b32 %s, 0", v(ACC + i))
    e("s_lshl_b32 %s, %s, 2", s(sS2), s(sRB))
    e("s_add_u32 %s, %s, %s", s(sS2), s(sS2), s(sW))
    e("v_and_b32 v5, 31, v0")
    e("v_lshrrev_b32 v6, 5, v0")
    e("v_lshlrev_b32 v6, 8, v6")
    e("v_add_u32 v6, %s, v6", s(sS2))
    e("v_mul_u32_u24 v6, v6, v5")
    for kap in range(2):
        for i2 in range(4):
            for b in range(2):
                i = 2 * i2 + b
                s0 = 16 * kap + 8 * (i >> 2) + (i & 3)
                e("v_mul_u32_u24 v7, %d, v5", 64 * s0)
                e("v_add_u32 v7, v7, v6")
                e("v_and_b32 v7, 0x7ff, v7")
                e("v_cvt_f32_u32 v7, v7")
                e("v_mul_f32 v7, 0x3a000000, v7")
                e("v_cos_f32 %s, v7", v(18 + b))
                e("v_sin_f32 %s, v7", v(16 + b))
            e("s_nop 0")
            e("v_cvt_pk_bf16_f32 %s, v18, v19", v(FC + kap * 4 + i2))
            e("v_cvt_pk_bf16_f32 %s, -v16, -v17", v(FC + 8 + kap * 4 + i2))
    stamp(1)

    def xf(p): return FR + p * 28
    def cf(p, tl): return FR + p * 28 + 4 + 4 * tl

    def reads(p, t):
        ops = [lambda: e("ds_read_b128 %s, %s", v(xf(p), 4), v(vXA + t))]
        for tl in range(njb):
            ops.append(lambda tl=tl: e("ds_read_b128 %s, %s offset:%d", v(cf(p, tl), 4), v(vCA), 16384 + (t * njb + tl) * 1024))
        return ops

    def mfmas(p):
        return [(lambda tl=tl: e("v_mfma_f32_32x32x16_bf16 %s, %s, %s, %s", v(ACC + 16 * tl, 16), v(xf(p), 4), v(cf(p, tl), 4), v(ACC + 16 * tl, 16))) for tl in range(njb)]
    gemm_loop(5, 4, mfmas, reads, [2 + tl for tl in range(njb)], [vXA + i for i in range(5)], 0, 2)

    RR, MM = 16, 32
    e("v_lshrrev_b32 v6, 5, v0")
    e("v_lshlrev_b32 v6, 4, v6")
    e("s_lshl_b32 %s, %s, 7", s(sTmp), s(sW))
    e("s_add_u32 %s, %s, %d", s(sTmp), s(sTmp), AUX)
    e("v_add_u32 v6, %s, v6", s(sTmp))
    for jj in range(4):
        e("ds_read_b128 %s, v6 offset:%d", v(RR + 4 * jj, 4), jj * 32)
    if njb == 6:
        for jj in range(4):
            e("ds_read_b128 %s, v6 offset:%d", v(MM + 4 * jj, 4), 512 + jj * 32)
        e("v_and_b32 v7, 31, v0")
        e("v_cmp_eq_u32 vcc, 0, v7")
        e("v_mov_b32 v7, 0")
        e("v_mov_b32 v13, 0x44200000")
        e("v_cndmask_b32 v7, v7, v13, vcc")
    e("v_and_b32 v5, 15, v0")
    e("v_lshlrev_b32 v5, 6, v5")
    e("v_bfe_u32 v6, v0, 4, 1")
    e("v_lshl_add_u32 v5, v6, 5, v5")
    e("v_lshrrev_b32 v6, 5, v0")
    e("v_lshl_add_u32 v5, v6, 4, v5")
    if njb == 6:
        e("s_mov_b32 %s, 0", s(sJB))
    else:
        e("s_cmp_eq_u32 %s, 1", s(sCG))
        e("s_cselect_b32 %s, 12, 11", s(sJB))
        e("s_cmp_eq_u32 %s, 2", s(sCG))
        e("s_cselect_b32 %s, 1, %s", s(sJB), s(sJB))
    e("s_mul_i32 %s, %s, 21", s(sDelta), s(sS2))
    e("s_add_u32 %s, %s, %s", s(sDelta), s(sDelta), s(sJB))
    e("s_lshl_b32 %s, %s, 11", s(sDelta), s(sDelta))
    e("s_add_u32 %s, %s, 0x%x", s(sDelta), s(sDelta), WS_T)
    e("s_waitcnt lgkmcnt(0)")
    PQ, AF = [192, 224], [48, 56]

    def scale_pack(tl):
        a0 = ACC + 16 * tl
        if njb == 6 and tl == 0:
            for i in range(16):
                e("v_fma_f32 %s, -%s, v7, %s", v(a0 + i), v(MM + i), v(a0 + i))
        for i in range(0, 16, 2):
            e("v_pk_mul_f32 %s, %s, %s", v(a0 + i, 2), v(a0 + i, 2), v(RR + i, 2))
        for i in range(8):
            e("v_cvt_pk_bf16_f32 %s, %s, %s", v(AF[tl & 1] + i), v(a0 + 2 * i), v(a0 + 2 * i + 1))

    def stage(tl):
        p0, af = PQ[tl & 1], AF[tl & 1]
        e("s_nop 1")
        for mat in range(2):
            d = p0 + 16 * mat
            e("v_mfma_f32_32x32x16_bf16 %s, %s, %s, 0", v(d, 16), v(af, 4), v(FC + 8 * mat, 4))
            e("v_mfma_f32_32x32x16_bf16 %s, %s, %s, %s", v(d, 16), v(af + 4, 4), v(FC + 8 * mat + 4, 4), v(d, 16))

    def finish(tl):
        p0 = PQ[tl & 1]
        q0 = p0 + 16
        for q in range(2):
            for i in range(4):
                e("v_sub_f32 %s, %s, %s", v(p0 + 8 * q + i), v(p0 + 8 * q + i), v(q0 + 8 * q + 4 + i))
                e("v_add_f32 %s, %s, %s", v(p0 + 8 * q + 4 + i), v(p0 + 8 * q + 4 + i), v(q0 + 8 * q + i))
        for i in range(8):
            e("v_cvt_pk_bf16_f32 %s, %s, %s", v(q0 + i), v(p0 + 2 * i), v(p0 + 2 * i + 1))
        e("s_add_u32 %s, %s, %d", s(sTmp), s(sDelta), tl * 4096)
        e("s_nop 0")
        for i in range(4):
            e("v_permlane16_swap_b32 %s, %s", v(q0 + i), v(q0 + 4 + i))
        for q in range(2):
            e("buffer_store_dwordx4 %s, v5, %s, %s offen offset:%d sc1", v(q0 + 4 * q, 4), s(sWS, 4), s(sTmp), q * 1024)
    scale_pack(0)
    stage(0)
    for tl in range(njb):
        if tl + 1 < njb:
            scale_pack(tl + 1)
            stage(tl + 1)
        else:
            e("s_nop 15")
        finish(tl)
    e("s_lshl_b32 %s, %s, 4", s(sFlag), s(sCG))
    e("s_add_u32 %s, %s, %s", s(sFlag), s(sFlag), s(sRB))
    e("s_lshl_b32 %s, %s, 7", s(sFlag), s(sFlag))
    e("s_add_u32 %s, %s, 0x%x", s(sFlag), s(sFlag), WS_FT)
    e("s_branch L_dft_c")


def mid_k1():
    e("s_and_b32 s3, s2, 7")
    e("s_lshl_b32 %s, s3, 2", s(sK1))
    e("s_bfe_u32 s3, s2, 0x20004")
    e("s_add_u32 %s, %s, s3", s(sK1), s(sK1))
    e("s_bfe_u32 s3, s2, 0x10003")


def mid():
    FC, WV, DF, XA, UA, TW, PD = 64, 128, 16, 160, 192, 40, 48
    vL, vT, vWr, vUo, vP, vTG = 5, 6, 7, 10, 11, 15
    e("v_lshlrev_b32 %s, 4, v0", v(vL))
    e("v_bfe_u32 v8, v0, 2, 2")
    e("v_lshrrev_b32 v9, 4, v0")
    e("v_lshl_add_u32 v8, v8, 2, v9")
    e("v_mul_u32_u24 v8, %d, v8", 32 * 642)
    e("v_and_b32 v9, 3, v0")
    e("v_lshl_add_u32 v12, v9, 4, v8")
    e("s_mul_i32 %s, %s, 642", s(sDelta), s(sK1))
    e("s_add_u32 %s, %s, %s", s(sDelta), s(sDelta), s(sWcol))
    for arr in range(2):
        for n in range(4):
            e("s_add_u32 m0, %s, %d", s(sLB), arr * 4096 + n * 1024)
            e("s_add_u32 %s, %s, %d", s(sTmp), s(sDelta), 512 * n * 642)
            e("buffer_load_dwordx4 v12, %s, %s offen lds", s(sWI if arr else sWR, 4), s(sTmp))
    for n in range(16):
        if n % 4 == 0:
            e("s_mov_b32 %s, %d", s(sTmp), TB.F64_OFF + n * 1024)
        e("buffer_load_dwordx4 %s, %s, %s, %s offen offset:%d", v(FC + 4 * n, 4), v(vL), s(sTAB, 4), s(sTmp), (n % 4) * 1024)
    e("s_waitcnt vmcnt(24)")
    e("s_barrier")
    lab = A.newlabel("L_noft")
    e("s_cmp_lg_u32 %s, 0", s(sW))
    e("s_cbranch_scc1 %s", lab)
    flag_store(sFlag, 12, 13)
    e("v_lshlrev_b32 %s, 7, v0", v(vP))
    poll_issue(PD, 1, vP, WS_FT)
    A.label(lab)
    for i in range(32):
        e("v_mov_b32 %s, 0", v(WV + i))
    e("v_and_b32 v8, 15, v0")
    for nt in range(4):
        e("v_add_u32 v12, %d, v8", 16 * nt)
        e("v_mul_u32_u24 v12, %s, v12", s(sK1))
        e("v_cvt_f32_u32 v12, v12")
        e("v_mul_f32 v12, 0x3a000000, v12")
        e("v_cos_f32 %s, v12", v(TW + 2 * nt))
        e("v_sin_f32 %s, v12", v(TW + 2 * nt + 1))
        e("s_nop 0")
        e("v_mul_f32 %s, 0x3a000000, %s", v(TW + 2 * nt), v(TW + 2 * nt))
        e("v_mul_f32 %s, 0x3a000000, %s", v(TW + 2 * nt + 1), v(TW + 2 * nt + 1))
    e("v_lshrrev_b32 v12, 2, v0")
    e("v_lshlrev_b32 %s, 6, v12", v(vT))
    e("v_lshl_add_u32 %s, v9, 4, %s", v(vT), v(vT))
    e("v_add_u32 %s, %s, %s", v(vT), s(sM0), v(vT))
    e("v_mul_u32_u24 v12, 43008, v12")
    e("v_lshl_add_u32 %s, v9, 4, v12", v(vTG))
    e("v_lshrrev_b32 v9, 4, v0")
    e("v_lshlrev_b32 %s, 6, v8", v(vUo))
    e("v_lshl_add_u32 %s, v9, 4, %s", v(vUo), v(vUo))
    e("v_lshlrev_b32 v12, 6, v9")
    e("v_lshl_add_u32 v12, v8, 2, v12")
    e("s_add_u32 %s, %s, %s", s(sTmp), s(sLB), s(sPar))
    e("v_add_u32 %s, %s, v12", v(vWr), s(sTmp))
    e("s_waitcnt vmcnt(0)")
    lab = A.newlabel("L_noft")
    e("s_cmp_lg_u32 %s, 0", s(sW))
    e("s_cbranch_scc1 %s", lab)
    poll_check(PD, 1, vP, WS_FT)
    A.label(lab)
    e("s_barrier")
    stamp(4)
    e("s_lshl_b32 %s, %s, 5", s(sCnt), s(sJB))
    e("s_add_u32 %s, %s, %s", s(sCnt), s(sCnt), s(sK1))
    e("s_lshl_b32 %s, %s, 6", s(sCnt), s(sCnt))
    lab = A.newlabel("L_oneT")
    for un in range(2):
        if un == 1:
            e("s_cmp_eq_u32 %s, 1", s(sNU))
            e("s_cbranch_scc1 %s", lab)
        for n in range(4):
            e("s_add_u32 m0, %s, %d", s(sLB2 if un else sM0), n * 1024)
            e("s_add_u32 %s, %s, %d", s(sTmp), s(sCnt), WS_T + un * 2048 + n * 16 * 43008)
            e("buffer_load_dwordx4 %s, %s, %s offen sc1 lds", v(vTG), s(sWS, 4), s(sTmp))
    A.label(lab)
    e("s_waitcnt vmcnt(0)")
    stamp(5)
    top = A.newlabel("L_unit")
    A.label(top)
    for ri in range(2):
        for kap in range(2):
            for rd in range(2):
                e("ds_read_b64_tr_b16 %s, %s offset:%d", v(DF + 8 * ri + 4 * kap + 2 * rd, 2), v(vT), kap * 2048 + rd * 1024 + ri * 8)
    e("s_waitcnt lgkmcnt(0)")
    for i in range(8):
        e("v_xor_b32 %s, 0x80008000, %s", v(DF + 16 + i), v(DF + 8 + i))

    def F(ri, t, kap): return FC + ((ri * 4 + t) * 2 + kap) * 4
    wreads = [(arr, mt, i) for mt in range(4) for i in range(4) for arr in range(2)]

    def wr():
        arr, mt, i = wreads.pop(0)
        e("ds_read_u16_d16_hi %s, %s offset:%d", v(WV + arr * 16 + 4 * mt + i), v(vWr), arr * 4096 + mt * 1024 + i * 256)
    Tre, Tim, Tni = DF, DF + 8, DF + 16
    for mt in range(4):
        xr, xi = XA + 4 * mt, XA + 16 + 4 * mt
        for kap in range(2):
            mm16(xr, F(0, mt, kap), Tre + 4 * kap, kap == 0); wr()
            mm16(xi, F(1, mt, kap), Tre + 4 * kap, kap == 0); wr()
        for kap in range(2):
            mm16(xr, F(1, mt, kap), Tni + 4 * kap); wr()
            mm16(xi, F(0, mt, kap), Tim + 4 * kap); wr()
    e("s_waitcnt lgkmcnt(0)")
    e("s_nop 5")
    for n in range(16):
        xr, xi, w_r, w_i = XA + n, XA + 16 + n, WV + n, WV + 16 + n
        e("v_mul_f32 %s, %s, %s", v(UA + n), v(xr), v(w_r))
        e("v_mul_f32 %s, %s, %s", v(UA + 16 + n), v(xr), v(w_i))
        e("v_fma_f32 %s, -%s, %s, %s", v(UA + n), v(xi), v(w_i), v(UA + n))
        e("v_fmac_f32 %s, %s, %s", v(UA + 16 + n), v(xi), v(w_r))
    Yre, Yim, Ynr = DF, DF + 8, DF + 16
    for n in range(8):
        e("v_cvt_pk_bf16_f32 %s, %s, %s", v(Yre + n), v(UA + 2 * n), v(UA + 2 * n + 1))
        e("v_cvt_pk_bf16_f32 %s, %s, %s", v(Yim + n), v(UA + 16 + 2 * n), v(UA + 16 + 2 * n + 1))
        e("v_xor_b32 %s, 0x80008000, %s", v(Ynr + n), v(Yre + n))
    e("s_nop 1")
    for nt in range(4):
        ur, ui = UA + 4 * nt, UA + 16 + 4 * nt
        for kap in range(2):
            mm16(ur, Yre + 4 * kap, F(0, nt, kap), kap == 0)
            mm16(ui, Yim + 4 * kap, F(0, nt, kap), kap == 0)
        for kap in range(2):
            mm16(ur, Yim + 4 * kap, F(1, nt, kap))
            mm16(ui, Ynr + 4 * kap, F(1, nt, kap))
    e("s_mul_i32 %s, %s, 21", s(sDelta), s(sK1))
    e("s_add_u32 %s, %s, %s", s(sDelta), s(sDelta), s(sJB))
    e("s_lshl_b32 %s, %s, 12", s(sDelta), s(sDelta))
    e("s_add_u32 %s, %s, 0x%x", s(sDelta), s(sDelta), WS_U)
    e("s_nop 4")
    for nt in range(4):
        ur, ui, tc, ts = UA + 4 * nt, UA + 16 + 4 * nt, TW + 2 * nt, TW + 2 * nt + 1
        o = XA + 8 * nt
        for i in range(4):
            e("v_mul_f32 %s, %s, %s", v(o + i), v(ur + i), v(tc))
            e("v_mul_f32 %s, %s, %s", v(o + 4 + i), v(ur + i), v(ts))
            e("v_fma_f32 %s, -%s, %s, %s", v(o + i), v(ui + i), v(ts), v(o + i))
            e("v_fmac_f32 %s, %s, %s", v(o + 4 + i), v(ui + i), v(tc))
        pk = 224 + 4 * nt
        for i in range(4):
            e("v_cvt_pk_bf16_f32 %s, %s, %s", v(pk + i), v(o + 2 * i), v(o + 2 * i + 1))
        e("buffer_store_dwordx4 %s, %s, %s, %s offen offset:%d sc1", v(pk, 4), v(vUo), s(sWS, 4), s(sDelta), nt * 1024)
    done = A.newlabel("L_unitd")
    e("s_cmp_eq_u32 %s, 2", s(sNU))
    e("s_cbranch_scc0 %s", done)
    e("s_mov_b32 %s, 3", s(sNU))
    e("s_add_u32 %s, %s, 1", s(sJB), s(sJB))
    e("v_add_u32 %s, 2, %s", v(vWr), v(vWr))
    e("s_sub_u32 %s, %s, %s", s(sTmp), s(sLB2), s(sM0))
    e("v_add_u32 %s, %s, %s", v(vT), s(sTmp), v(vT))
    e("s_branch %s", top)
    A.label(done)


hdr = open("cdna_kernels/%s.s.ref" % NAME).read().split("; Override launch")[0]
A(hdr.rstrip())
A("; @launch grid=(256,1,1) block=(512,1,1) lds=%d" % LDS_ALL)
A('.amdgcn_target "amdgcn-amd-amdhsa--gfx950"')
KN = NAME + "_kernel"
kernel_header(A, KN)
stamp(0)
e("s_cmp_ge_u32 s2, 256")
e("s_cbranch_scc1 L_end")
e("s_load_dwordx16 %s, s[0:1], 0", s(P, 16))
e("s_load_dwordx4 %s, s[0:1], 64", s(P + 16, 4))
e("v_lshrrev_b32 v1, 6, v0")
e("v_and_b32 v0, 63, v0")
e("v_readfirstlane_b32 %s, v1", s(sW))
e("s_and_b32 s3, s2, 1")
e("s_lshl_b32 %s, s3, 3", s(sRB))
e("s_bfe_u32 s3, s2, 0x30003")
e("s_add_u32 %s, %s, s3", s(sRB), s(sRB))
e("s_lshr_b32 %s, s2, 6", s(sTmp2))
e("s_bfe_u32 s3, s2, 0x20001")
e("s_mul_i32 %s, s3, 3", s(sCG))
e("s_add_u32 %s, %s, %s", s(sCG), s(sCG), s(sTmp2))
e("s_and_b32 %s, %s, 3", s(sLW), s(sW))
e("s_cmp_eq_u32 %s, 3", s(sTmp2))
e("s_cbranch_scc1 L_dft")
e("s_cmp_ge_u32 %s, 4", s(sW))
e("s_cbranch_scc0 L_ffn_c")
ffn_loader()
A.label("L_ffn_c")
p1_ffn()
A.label("L_dft")
e("s_mov_b32 %s, s3", s(sCG))
e("s_cmp_eq_u32 s3, 0")
e("s_cbranch_scc1 L_dft6")
for njb in (5, 6):
    if njb == 6:
        A.label("L_dft6")
    e("s_cmp_ge_u32 %s, 4", s(sW))
    e("s_cbranch_scc0 L_dft%d_c", njb)
    dft_loader(njb)
    A.label("L_dft%d_c" % njb)
    p1_dft(njb)

A.label("L_dft_c")
mid_k1()
e("s_lshl_b32 s3, s3, 2")
e("s_add_u32 s3, s3, %s", s(sW))
e("s_lshl_b32 %s, s3, 1", s(sJB))
e("s_lshl_b32 %s, s3, 6", s(sWcol))
e("s_mov_b32 %s, 0", s(sPar))
e("s_mov_b32 %s, 2", s(sNU))
e("s_add_u32 %s, %s, 8192", s(sM0), s(sLB))
e("s_mov_b32 %s, 1", s(sCnt))
e("s_branch L_mid")

A.label("L_dft_l")
mid_k1()
e("s_add_u32 %s, %s, s3", s(sTmp), s(sLW))
e("s_cmp_ge_u32 %s, 3", s(sTmp))
e("s_cbranch_scc1 L_dft_l3")
e("s_add_u32 s3, s3, 8")
e("s_lshl_b32 %s, s3, 1", s(sJB))
e("s_add_u32 %s, %s, %s", s(sJB), s(sJB), s(sLW))
e("s_lshl_b32 %s, s3, 6", s(sWcol))
e("s_lshl_b32 %s, %s, 1", s(sPar), s(sLW))
e("s_cmp_eq_u32 %s, 2", s(sLW))
e("s_cselect_b32 %s, 20, %s", s(sJB), s(sJB))
e("s_cselect_b32 %s, 638, %s", s(sWcol), s(sWcol))
e("s_cselect_b32 %s, 2, %s", s(sPar), s(sPar))
e("s_mov_b32 %s, 1", s(sNU))
e("s_mov_b32 %s, %s", s(sM0), s(sLB2))
e("s_mov_b32 %s, 0", s(sCnt))
A.label("L_mid")
mid()
e("s_waitcnt vmcnt(0)")
e("s_barrier")
e("s_cmp_ge_u32 %s, 4", s(sW))
e("s_cbranch_scc1 L_dft_l2")
e("s_cmp_lg_u32 %s, 0", s(sW))
e("s_cbranch_scc1 L_nofu")
e("s_lshl_b32 %s, s2, 7", s(sFlag))
e("s_add_u32 %s, %s, %d", s(sFlag), s(sFlag), WS_FU - 192 * 128)
flag_store(sFlag, 12, 13)
A.label("L_nofu")
for f in p3_dma(0) + p3_dma(1) + p3_dma(2):
    f()
A.label("L_p3c")
p3c()
e("s_branch L_fin")

A.label("L_dft_l3")
for i in range(3):
    e("s_barrier")
A.label("L_dft_l2")
e("v_lshlrev_b32 v5, 4, v0")
for z in range(6):
    z_ci_loads(z, 5)
z_gconst()
A.label("L_zpart")
zpart()
A.label("L_fin")
if STAMPS:
    e("s_waitcnt vmcnt(0)")
    e("%s s[100:101]", "s_memtime" if "--cyc" in sys.argv else "s_memrealtime")
    e("s_waitcnt lgkmcnt(0)")
    for i in range(9):
        e("v_mov_b32 %s, %s", v(16 + i), s(84 + 2 * i))
    e("s_lshl_b32 s3, s2, 3")
    e("s_add_u32 s3, s3, %s", s(sW))
    e("s_lshl_b32 s3, s3, 6")
    e("s_add_u32 s3, s3, 0x%x", WS_STAMP)
    e("v_mov_b32 v5, 0")
    for i in range(3):
        e("buffer_store_dwordx4 %s, v5, %s, s3 offen offset:%d", v(16 + 4 * i, 4), s(sWS, 4), 16 * i)
A.label("L_end")
e("s_endpgm")

kernel_desc(A, KN, 256, accum=256)
TB.emit_tables(A)
out = [x for x in sys.argv[1:] if not x.startswith("--")]
open(out[0] if out else "v5.s", "w").write(A.text())
```

```python
import sys
from asmlib import *
import tables9 as TB

NAME = "parallel_sum__spectral_gfnet__glu_gated_reglu__prompt"
A = Asm()
e = A.e


def opt(name, default):
    for x in sys.argv:
        if x.startswith("--%s=" % name):
            return int(x.split("=")[1])
    return default


STAMPS = "--stamps" in sys.argv
SLEEP = opt("sleep", 4)
ROTA, ROTB = opt("rota", 1), opt("rotb", 3)
CIP1 = opt("cip1", 0)
DROT = opt("drot", 1)
WSP = opt("wsp", 0)
PRL = opt("prl", 0)
WARM = opt("warm", 2)
FOLD = opt("fold", 1)
NFIX = opt("nfix", 2)

WS_EP = 0x0000
WS_FS = 0x1000
WS_FSC = WS_FS + 128 * 128
WS_FT = 0xC000
WS_FU = 0xE000
WS_FH = 0x10000
WS_FW = 0x2C000
WS_STAT = 0x28000
WS_CSP = 0x30000
WS_H = 0x60000
WS_T = 0x660000
WS_U = 0x900000
WS_WD = 0xBA0000
WS_STAMP = 0x2000000

SLAB = 49152
AUX = 3 * SLAB
ZU0, ZUS = 0, 16384
CP0 = 65536
LGO = AUX + 2048
FR_L, FI_L = 40960, AUX + 2048 + 128
MW0, MWA = 98304, 22272
MT0, MT1, MTL = 0, 16384, 49152
RPK = FI_L
LDS_ALL = FI_L + 12288

sX, sG, sU, sWS, sTAB, sWR, sWI, sWD, sOUT = 8, 12, 16, 20, 24, 28, 32, 36, 40
sW, sRB, sCG, sLW = 44, 45, 46, 47
sTmp, sTmp2, sCnt, sDelta, sBuf, sSLAB = 48, 49, 50, 51, 52, 53
sAoff, sBoff, sM0 = 54, 55, 56
sWM, sWN, sFlag = 57, 58, 59
sK1, sJB, sTAG, sSpin = 60, 61, 62, 63
P = 64
sP, sG3, sHo, sWo, sUo, sCo, sLB, sLB2, sOo, sOc, sOOB = 64, 65, 66, 67, 68, 69, 70, 71, 72, 73, 74
sSgn, sS2, sNU, sWcol, sPar = 76, 78, 79, 80, 81
sWa, sWb, sWc, sMW = 6, 7, 75, 80
SRDS = {"X": (sX, P, 2048 * 1280), "WR": (sWR, P + 2, 2048 * 642), "WI": (sWI, P + 4, 2048 * 642),
        "G": (sG, P + 8, 640 * 3072), "U": (sU, P + 10, 640 * 3072), "WD": (sWD, P + 12, 1536 * 1280),
        "OUT": (sOUT, P + 14, 2048 * 1280), "WS": (sWS, P + 18, 1 << 28)}


class VQ:
    def __init__(self):
        self.q = []
    def issue(self, tag, n=1):
        self.q += [tag] * n
    def wait(self, *tags, extra=""):
        last = max([i for i, t in enumerate(self.q) if t in tags], default=-1)
        n = len(self.q) - 1 - last
        assert n <= 63, n
        e("s_waitcnt vmcnt(%d)%s", n, extra)
        self.q = self.q[last + 1:]
    def drain(self):
        self.q = []


STN = {}
for x in sys.argv:
    if x.startswith("--st="):
        for i_, grp in enumerate(x[5:].split(",")):
            for nm in grp.split("+"):
                STN[nm] = i_ + 1
STN["start"] = 0


def cap(fn):
    keep, A.lines = A.lines, []
    fn()
    out, A.lines = A.lines, keep
    return out


def weave(main, groups, skip=0):
    n = len(groups)
    step = (len(main) - skip) / (n + 0.001) if n else 0
    k = 0
    for i, ln in enumerate(main):
        while k < n and i >= skip + k * step:
            A.lines += groups[k]
            k += 1
        A.lines.append(ln)
    while k < n:
        A.lines += groups[k]
        k += 1


def stamp(nm):
    if STAMPS and nm in STN:
        e("%s %s", "s_memtime" if "--cyc" in sys.argv else "s_memrealtime", s(84 + 2 * STN[nm], 2))


def make_tag():
    e("s_mul_i32 %s, %s, 0x9E3779B1", s(sTAG), s(sTAG))
    e("s_add_u32 %s, %s, 0x7F4A7C15", s(sTAG), s(sTAG))


def flag_store(soff, t0, t1):
    e("v_mov_b32 %s, %s", v(t0), s(sTAG))
    e("v_mov_b32 %s, 0", v(t1))
    e("s_mov_b64 exec, 1")
    e("buffer_store_dword %s, %s, %s, %s offen sc1", v(t0), v(t1), s(sWS, 4), s(soff))
    e("s_mov_b64 exec, -1")


def poll_issue(dst, n, vaddr, base):
    e("s_mov_b32 %s, 0x%x", s(sTmp), base)
    e("buffer_load_dword%s %s, %s, %s, %s offen sc1", "" if n == 1 else "x%d" % n, v(dst, n), v(vaddr), s(sWS, 4), s(sTmp))


def poll_check(dst, n, vaddr, base):
    top, done = A.newlabel("L_poll"), A.newlabel("L_polld")
    e("s_mov_b32 %s, 0", s(sSpin))
    A.label(top)
    e("v_cmp_ne_u32 vcc, %s, %s", s(sTAG), v(dst))
    for i in range(1, n):
        e("v_cmp_ne_u32 s[4:5], %s, %s", s(sTAG), v(dst + i))
        e("s_or_b64 vcc, vcc, s[4:5]")
    e("s_cmp_eq_u64 vcc, 0")
    e("s_cbranch_scc1 %s", done)
    e("s_add_u32 %s, %s, 1", s(sSpin), s(sSpin))
    e("s_cmp_ge_u32 %s, 40000", s(sSpin))
    e("s_cbranch_scc1 %s", done)
    if SLEEP:
        e("s_sleep %d", SLEEP)
    poll_issue(dst, n, vaddr, base)
    e("s_waitcnt vmcnt(0)")
    e("s_branch %s", top)
    A.label(done)


def karg_wait(first, rest=()):
    e("s_waitcnt lgkmcnt(0)")
    for k in first:
        srd(A, *SRDS[k])
    e("s_load_dword %s, %s, 0x%x", s(sTAG), s(P + 18, 2), WS_EP)
    for k in rest:
        srd(A, *SRDS[k])


def tab_srd():
    e("s_getpc_b64 s[4:5]")
    e("s_add_u32 s4, s4, dft_tables@rel32@lo+4")
    e("s_addc_u32 s5, s5, dft_tables@rel32@hi+12")
    srd(A, sTAB, 4, TB.TAB_BYTES)


def dpp_sum16(r_):
    for ctl in ("quad_perm:[1,0,3,2]", "quad_perm:[2,3,0,1]", "row_half_mirror", "row_mirror"):
        e("s_nop 1")
        e("v_add_f32_dpp %s, %s, %s %s row_mask:0xf bank_mask:0xf", v(r_), v(r_), v(r_), ctl)


def round_bf16(r_):
    e("v_cvt_pk_bf16_f32 %s, %s, %s", v(r_), v(r_), v(r_))
    e("v_and_b32 %s, 0xffff0000, %s", v(r_), v(r_))


def mm16(d, a_, b_, first=False):
    e("v_mfma_f32_16x16x32_bf16 %s, %s, %s, %s", v(d, 4), v(a_, 4), v(b_, 4), "0" if first else v(d, 4))


def stats_addr(R):
    e("s_lshl_b32 %s, %s, 2", s(sTmp), s(sCG))
    e("s_add_u32 %s, %s, %s", s(sTmp), s(sTmp), s(sW))
    e("s_lshl_b32 %s, %s, 2", s(sTmp), s(sTmp))
    e("v_lshrrev_b32 %s, 4, v0", v(R + 20))
    e("v_add_u32 %s, %s, %s", v(R + 21), s(sTmp), v(R + 20))
    e("v_and_b32 %s, 31, %s", v(R + 20), v(R + 21))
    e("v_lshlrev_b32 %s, 6, %s", v(R + 20), v(R + 20))
    e("v_lshrrev_b32 %s, 5, %s", v(R + 22), v(R + 21))
    e("v_add_u32 %s, %s, %s", v(R + 20), v(R + 20), v(R + 22))
    e("s_lshl_b32 %s, %s, 2", s(sTmp), s(sRB))
    e("v_add_u32 %s, %s, %s", v(R + 20), s(sTmp), v(R + 20))
    e("v_mul_u32_u24 %s, 1280, %s", v(R + 20), v(R + 20))
    e("v_and_b32 %s, 15, v0", v(R + 22))
    e("v_lshl_add_u32 %s, %s, 4, %s", v(R + 20), v(R + 22), v(R + 20))


def stats_issue(R):
    for n in range(5):
        e("buffer_load_dwordx4 %s, %s, %s, 0 offen offset:%d", v(R + 4 * n, 4), v(R + 20), s(sX, 4), n * 256)


def stats_compute(R):
    F = R + 24
    S_, V_, T_ = R + 64, R + 66, R + 22
    for n in range(20):
        e("v_lshlrev_b32 %s, 16, %s", v(F + 2 * n), v(R + n))
        e("v_and_b32 %s, 0xffff0000, %s", v(F + 2 * n + 1), v(R + n))
    e("v_pk_add_f32 %s, %s, %s", v(S_, 2), v(F, 2), v(F + 2, 2))
    for n in range(2, 20):
        e("v_pk_add_f32 %s, %s, %s", v(S_, 2), v(S_, 2), v(F + 2 * n, 2))
    e("v_add_f32 %s, %s, %s", v(S_), v(S_), v(S_ + 1))
    dpp_sum16(S_)
    e("v_mul_f32 %s, 0x3acccccd, %s", v(S_), v(S_))
    for n in range(20):
        e("v_pk_add_f32 %s, %s, %s op_sel_hi:[1,0] neg_lo:[0,1] neg_hi:[0,1]", v(F + 2 * n, 2), v(F + 2 * n, 2), v(S_, 2))
    e("v_pk_mul_f32 %s, %s, %s", v(V_, 2), v(F, 2), v(F, 2))
    for n in range(1, 20):
        e("v_pk_fma_f32 %s, %s, %s, %s", v(V_, 2), v(F + 2 * n, 2), v(F + 2 * n, 2), v(V_, 2))
    e("v_add_f32 %s, %s, %s", v(V_), v(V_), v(V_ + 1))
    dpp_sum16(V_)
    e("v_mul_f32 %s, 0x3acccccd, %s", v(V_), v(V_))
    round_bf16(V_)
    e("v_add_f32 %s, 0x3727c5ac, %s", v(V_), v(V_))
    round_bf16(V_)
    e("v_sqrt_f32 %s, %s", v(V_), v(V_))
    e("s_nop 0")
    round_bf16(V_)
    e("v_rcp_f32 %s, %s", v(V_), v(V_))
    round_bf16(S_)
    e("v_and_b32 %s, 15, v0", v(T_))
    e("v_cmp_eq_u32 vcc, 1, %s", v(T_))
    e("v_lshlrev_b32 %s, 2, %s", v(R + 1), v(R + 21))
    e("v_lshl_add_u32 %s, %s, 9, %s", v(R + 1), v(T_), v(R + 1))
    e("v_cndmask_b32 %s, %s, %s, vcc", v(V_), v(V_), v(S_))
    e("v_cmp_gt_u32 vcc, 2, %s", v(T_))
    e("s_lshl_b32 %s, %s, 10", s(sTmp), s(sRB))
    e("s_add_u32 %s, %s, 0x%x", s(sTmp), s(sTmp), WS_STAT)
    e("s_and_saveexec_b64 s[4:5], vcc")
    e("buffer_store_dword %s, %s, %s, %s offen sc1", v(V_), v(R + 1), s(sWS, 4), s(sTmp))
    e("s_mov_b64 exec, s[4:5]")


def cols_issue(R):
    e("v_lshrrev_b32 %s, 3, v0", v(R + 20))
    e("v_mul_u32_u24 %s, 3072, %s", v(R + 20), v(R + 20))
    e("v_and_b32 %s, 7, v0", v(R + 21))
    e("v_lshl_add_u32 %s, %s, 4, %s", v(R + 20), v(R + 21), v(R + 20))
    e("s_mul_i32 %s, %s, %d", s(sTmp), s(sRB), 40 * 3072)
    e("s_lshl_b32 %s, %s, 8", s(sTmp2), s(sCG))
    e("s_add_u32 %s, %s, %s", s(sTmp), s(sTmp), s(sTmp2))
    e("s_and_b32 %s, %s, 1", s(sTmp2), s(sLW))
    e("s_lshl_b32 %s, %s, 7", s(sTmp2), s(sTmp2))
    e("s_add_u32 %s, %s, %s", s(sTmp), s(sTmp), s(sTmp2))
    lab, lab2 = A.newlabel("L_csu"), A.newlabel("L_csd")
    e("s_cmp_ge_u32 %s, 2", s(sLW))
    e("s_cbranch_scc1 %s", lab)
    for mat in range(2):
        if mat == 1:
            e("s_branch %s", lab2)
            A.label(lab)
        for n in range(5):
            e("buffer_load_dwordx4 %s, %s, %s, %s offen", v(R + 4 * n, 4), v(R + 20), s(sU if mat else sG, 4), s(sTmp))
            if n < 4:
                e("s_add_u32 %s, %s, %d", s(sTmp), s(sTmp), 8 * 3072)
    A.label(lab2)


def cols_compute(R):
    C_, T_ = R + 24, R + 32
    for n in range(5):
        D_ = C_ if n == 0 else T_
        for d in range(4):
            e("v_lshlrev_b32 %s, 16, %s", v(D_ + 2 * d), v(R + 4 * n + d))
            e("v_and_b32 %s, 0xffff0000, %s", v(D_ + 2 * d + 1), v(R + 4 * n + d))
        if n:
            for d in range(4):
                e("v_pk_add_f32 %s, %s, %s", v(C_ + 2 * d, 2), v(C_ + 2 * d, 2), v(T_ + 2 * d, 2))
    e("s_nop 1")
    for i in range(8):
        e("v_add_f32_dpp %s, %s, %s row_ror:8 row_mask:0xf bank_mask:0xf", v(C_ + i), v(C_ + i), v(C_ + i))
    for op in ("v_permlane16_swap_b32", "v_permlane32_swap_b32"):
        for i in range(8):
            e("v_mov_b32 %s, %s", v(T_ + i), v(C_ + i))
        for i in range(8):
            e("%s %s, %s", op, v(C_ + i), v(T_ + i))
        for i in range(8):
            e("v_add_f32 %s, %s, %s", v(C_ + i), v(C_ + i), v(T_ + i))


def cols_store(R):
    C_, T_ = R + 24, R + 32
    e("v_cmp_gt_u32 vcc, 8, v0")
    e("s_mul_i32 %s, %s, 12288", s(sTmp), s(sRB))
    e("s_lshl_b32 %s, %s, 10", s(sTmp2), s(sCG))
    for i in range(4):
        e("v_cndmask_b32 %s, %s, %s, vcc", v(C_ + i), v(C_ + 4 + i), v(C_ + i))
    e("s_add_u32 %s, %s, %s", s(sTmp), s(sTmp), s(sTmp2))
    e("s_lshl_b32 %s, %s, 8", s(sTmp2), s(sLW))
    e("s_add_u32 %s, %s, %s", s(sTmp), s(sTmp), s(sTmp2))
    e("s_add_u32 %s, %s, 0x%x", s(sTmp), s(sTmp), WS_CSP)
    e("v_and_b32 %s, 7, v0", v(T_))
    e("v_lshlrev_b32 %s, 5, %s", v(T_), v(T_))
    e("v_bfe_u32 %s, v0, 3, 1", v(T_ + 1))
    e("v_lshl_add_u32 %s, %s, 4, %s", v(T_), v(T_ + 1), v(T_))
    e("v_cmp_gt_u32 vcc, 16, v0")
    e("s_and_saveexec_b64 s[4:5], vcc")
    e("buffer_store_dwordx4 %s, %s, %s, %s offen sc1", v(C_, 4), v(T_), s(sWS, 4), s(sTmp))
    e("s_mov_b64 exec, s[4:5]")


def aux_poll_addr(ffn, dst):
    e("s_lshl_b32 %s, %s, 2", s(sTmp), s(sRB))
    e("s_add_u32 %s, %s, %s", s(sTmp), s(sTmp), s(sLW))
    e("s_lshl_b32 %s, %s, 1", s(sTmp), s(sTmp))
    e("v_and_b32 v6, 1, v0")
    e("v_add_u32 v6, %s, v6", s(sTmp))
    if ffn:
        e("s_and_b32 %s, s2, 0xc6", s(sTmp))
        e("s_add_u32 %s, %s, 128", s(sTmp), s(sTmp))
        e("v_and_b32 v7, 7, v0")
        e("v_lshlrev_b32 v7, 3, v7")
        e("v_bfe_u32 v12, v0, 3, 1")
        e("v_add3_u32 v7, v7, v12, %s", s(sTmp))
        e("v_cmp_gt_u32 vcc, 16, v0")
        e("s_nop 1")
        e("v_cndmask_b32 v6, v7, v6, vcc")
    e("v_lshlrev_b32 %s, 7, v6", v(dst))


def fw_poll_addr(dst):
    e("s_lshl_b32 %s, %s, 6", s(sTmp), s(sLW))
    e("v_add_u32 %s, %s, v0", v(dst), s(sTmp))
    e("v_min_u32 %s, 159, %s", v(dst), v(dst))
    e("v_lshlrev_b32 %s, 7, %s", v(dst), v(dst))


def aux_issue(ffn, R):
    e("v_and_b32 %s, 31, v0", v(R))
    e("v_lshrrev_b32 %s, 5, v0", v(R + 1))
    e("v_lshlrev_b32 %s, 2, %s", v(R), v(R))
    e("v_lshl_add_u32 %s, %s, 9, %s", v(R), v(R + 1), v(R))
    e("s_lshl_b32 %s, %s, 7", s(sTmp), s(sLW))
    e("v_add_u32 %s, %s, %s", v(R), s(sTmp), v(R))
    e("s_lshl_b32 %s, %s, 10", s(sTmp), s(sRB))
    e("s_add_u32 %s, %s, 0x%x", s(sTmp), s(sTmp), WS_STAT)
    e("buffer_load_dword %s, %s, %s, %s offen sc1", v(R + 2), v(R), s(sWS, 4), s(sTmp))
    if ffn:
        e("v_lshrrev_b32 %s, 4, v0", v(R + 1))
        e("v_mul_u32_u24 %s, 12288, %s", v(R + 1), v(R + 1))
        e("v_and_b32 %s, 15, v0", v(R + 3))
        e("v_lshl_add_u32 %s, %s, 4, %s", v(R + 1), v(R + 3), v(R + 1))
        e("s_lshl_b32 %s, %s, 8", s(sTmp), s(sLW))
        e("s_lshl_b32 %s, %s, 10", s(sTmp2), s(sCG))
        e("s_add_u32 %s, %s, %s", s(sTmp), s(sTmp), s(sTmp2))
        e("s_add_u32 %s, %s, 0x%x", s(sTmp), s(sTmp), WS_CSP)
        for n in range(4):
            e("buffer_load_dwordx4 %s, %s, %s, %s offen sc1", v(R + 4 + 4 * n, 4), v(R + 1), s(sWS, 4), s(sTmp))
            if n < 3:
                e("s_add_u32 %s, %s, %d", s(sTmp), s(sTmp), 4 * 12288)


def aux_finish(ffn, R):
    e("v_add_u32 %s, %d, %s", v(R), AUX, v(R))
    e("ds_write_b32 %s, %s", v(R), v(R + 2))
    if ffn:
        C_, T_ = R + 4, R + 8
        for n in range(1, 4):
            for k in (0, 2):
                e("v_pk_add_f32 %s, %s, %s", v(C_ + k, 2), v(C_ + k, 2), v(C_ + 4 * n + k, 2))
        for op in ("v_permlane16_swap_b32", "v_permlane32_swap_b32"):
            for i in range(4):
                e("v_mov_b32 %s, %s", v(T_ + i), v(C_ + i))
            e("s_nop 0")
            for i in range(4):
                e("%s %s, %s", op, v(C_ + i), v(T_ + i))
            e("s_nop 0")
            for i in range(4):
                e("v_add_f32 %s, %s, %s", v(C_ + i), v(C_ + i), v(T_ + i))
        e("s_lshl_b32 %s, %s, 8", s(sTmp), s(sLW))
        e("s_add_u32 %s, %s, %d", s(sTmp), s(sTmp), AUX + 1024)
        e("v_lshl_add_u32 %s, %s, 4, %s", v(R + 1), v(R + 3), s(sTmp))
        e("ds_write_b128 %s, %s", v(R + 1), v(C_, 4))
    e("s_waitcnt lgkmcnt(0)")


def p3_map():
    e("s_and_b32 s3, s2, 7")
    e("s_lshr_b32 %s, s2, 3", s(sTmp))
    e("s_lshr_b32 %s, s3, 1", s(sP))
    e("s_lshl_b32 %s, %s, 3", s(sP), s(sP))
    e("s_and_b32 %s, %s, 7", s(sTmp2), s(sTmp))
    e("s_add_u32 %s, %s, %s", s(sP), s(sP), s(sTmp2))
    e("s_and_b32 s3, s3, 1")
    e("s_lshl_b32 s3, s3, 2")
    e("s_lshr_b32 %s, %s, 3", s(sTmp), s(sTmp))
    e("s_add_u32 %s, s3, %s", s(sG3), s(sTmp))


ZG, ZC, ZA = 64, 128, 200


def z_setup():
    p3_map()
    e("s_mul_i32 %s, %s, %d", s(sLB), s(sLW), ZUS)
    e("s_lshl_b32 %s, %s, 7", s(sUo), s(sP))
    e("s_lshl_b32 %s, %s, 12", s(sTmp), s(sLW))
    e("s_add_u32 %s, %s, %s", s(sUo), s(sUo), s(sTmp))
    e("s_add_u32 %s, %s, 0x%x", s(sUo), s(sUo), WS_U)
    e("s_mul_i32 %s, %s, 21", s(sCo), s(sG3))
    e("s_add_u32 %s, %s, %s", s(sCo), s(sCo), s(sLW))
    e("s_mul_i32 %s, %s, 3072", s(sCo), s(sCo))
    e("s_add_u32 %s, %s, %d", s(sCo), s(sCo), TB.CI_OFF)
    e("s_cmp_eq_u32 %s, 0", s(sLW))
    e("s_cselect_b32 %s, 0, 0x20000000", s(sOOB))
    e("s_lshl_b32 %s, %s, 1", s(sS2), s(sP))


def z_ci_loads(z, vL):
    e("s_add_u32 %s, %s, %d", s(sTmp), s(sCo), z * 4 * 3072)
    if z == 5:
        e("s_add_u32 %s, %s, %s", s(sTmp), s(sTmp), s(sOOB))
    for c3 in range(3):
        e("buffer_load_dwordx4 %s, %s, %s, %s offen offset:%d", v(ZC + z * 12 + c3 * 4, 4), v(vL), s(sTAB, 4), s(sTmp), c3 * 1024)


def ZGr(u, ro, nh, kap): return ZG + (((u * 2 + ro) * 2 + nh) * 2 + kap) * 4


def z_gconst():
    e("v_and_b32 v56, 15, v0")
    e("v_lshlrev_b32 v56, 6, v56")
    e("v_add_u32 v56, %s, v56", s(sS2))
    e("v_cvt_f32_u32 v56, v56")
    e("v_mul_f32 v56, 0x3a000000, v56")
    e("v_lshrrev_b32 v57, 5, v0")
    e("v_lshlrev_b32 v57, 3, v57")
    e("v_cvt_f32_u32 v57, v57")
    e("v_bfe_u32 v58, v0, 4, 1")
    e("v_cvt_f32_u32 v58, v58")
    e("v_mul_f32 v58, 0x3e800000, v58")
    for u in range(2):
        if u:
            e("v_add_f32 v56, 0x3a000000, v56")
        for kap in range(2):
            if kap:
                e("v_add_f32 v59, 0x41800000, v57")
                e("v_fma_f32 v59, v59, v56, v58")
            else:
                e("v_fma_f32 v59, v57, v56, v58")
            for ro in range(2):
                if ro:
                    e("v_add_f32 v60, 0xbe800000, v59")
                else:
                    e("v_mov_b32 v60, v59")
                for i2 in range(4):
                    e("v_cos_f32 v61, v60")
                    e("v_add_f32 v60, v60, v56")
                    e("v_cos_f32 v62, v60")
                    e("v_add_f32 v60, v60, v56")
                    b = ZGr(u, ro, 0, kap) + i2
                    e("v_cvt_pk_bf16_f32 %s, v61, v62", v(b))
                    e("v_xor_b32 %s, 0x80000000, %s", v(b + 8), v(b))


def fu_poll_issue():
    e("v_lshlrev_b32 v11, 7, v0")
    lab0 = A.newlabel("L_nofup")
    e("s_cmp_lg_u32 %s, 0", s(sLW))
    e("s_cbranch_scc1 %s", lab0)
    poll_issue(16, 1, 11, WS_FU)
    A.label(lab0)


def zpart():
    vL, vUG, vTU, vTU1, vPU = 5, 6, 7, 8, 11
    UF, ZT = 16, 32
    e("v_lshlrev_b32 %s, 4, v0", v(vL))
    e("v_lshrrev_b32 v12, 3, v0")
    e("v_mul_u32_u24 v12, %d, v12", 21 * 4096)
    e("v_lshrrev_b32 v13, 2, v0")
    e("v_lshrrev_b32 v14, 4, v0")
    e("v_xor_b32 v13, v13, v14")
    e("v_and_b32 v13, 1, v13")
    e("v_lshl_add_u32 v12, v13, 6, v12")
    e("v_and_b32 v13, 3, v0")
    e("v_lshl_add_u32 %s, v13, 4, v12", v(vUG))
    e("v_lshrrev_b32 v12, 5, v0")
    e("v_lshlrev_b32 v12, 3, v12")
    e("v_bfe_u32 v14, v0, 2, 2")
    e("v_add_u32 v12, v12, v14")
    e("v_lshlrev_b32 v12, 7, v12")
    e("v_lshl_add_u32 v12, v13, 4, v12")
    e("v_bfe_u32 v14, v0, 4, 1")
    e("v_lshl_add_u32 v12, v14, 3, v12")
    e("v_bfe_u32 v14, v0, 3, 1")
    e("v_lshl_add_u32 v12, v14, 6, v12")
    e("v_add_u32 %s, %s, v12", v(vTU), s(sLB))
    e("v_xor_b32 %s, 64, %s", v(vTU1), v(vTU))
    e("v_mov_b32 v12, %d", LGO)
    lab1, lab2 = A.newlabel("L_lgo"), A.newlabel("L_lgod")
    e("s_cmp_lg_u32 %s, 0", s(sLW))
    e("s_cbranch_scc1 %s", lab1)
    e("s_waitcnt vmcnt(0)")
    poll_check(UF, 1, vPU, WS_FU)
    e("v_mov_b32 v13, 1")
    e("ds_write_b32 v12, v13")
    e("s_branch %s", lab2)
    A.label(lab1)
    e("s_sleep 1")
    e("ds_read_b32 v13, v12")
    e("s_waitcnt lgkmcnt(0)")
    e("v_cmp_ne_u32 vcc, 1, v13")
    e("s_cbranch_vccnz %s", lab1)
    A.label(lab2)
    stamp("zU")
    q = VQ()

    def udma(z):
        for n in range(4):
            e("s_add_u32 m0, %s, %d", s(sLB), (z % 4) * 4096 + n * 1024)
            e("s_add_u32 %s, %s, %d", s(sTmp2), s(sUo), z * 4 * 4096 + n * 8 * 21 * 4096)
            if z == 5:
                e("s_add_u32 %s, %s, %s", s(sTmp2), s(sTmp2), s(sOOB))
            e("buffer_load_dwordx4 %s, %s, %s offen sc1 lds", v(vUG), s(sWS, 4), s(sTmp2))
        q.issue("u%d" % z, 4)
    for z in range(4):
        udma(z)
    for z in range(6):
        q.wait("u%d" % z)
        stamp("z%d" % z)
        for u in range(2):
            for kap in range(2):
                for rd in range(2):
                    e("ds_read_b64_tr_b16 %s, %s offset:%d", v(UF + 8 * u + 4 * kap + 2 * rd, 2), v(vTU1 if u else vTU), (z % 4) * 4096 + kap * 2048 + rd * 512)
        for u in range(2):
            e("s_waitcnt lgkmcnt(%d)", 4 - 4 * u)
            for kap in range(2):
                for nh in range(2):
                    for ro in range(2):
                        mm16(ZT + u * 16 + (nh * 2 + ro) * 4, UF + 8 * u + 4 * kap, ZGr(u, ro, nh, kap), kap == 0)
        if z + 4 < 6:
            udma(z + 4)
        for u in range(2):
            for nh in range(2):
                for k in range(4):
                    e("v_cvt_pk_bf16_f32 %s, %s, %s", v(UF + (2 * u + nh) * 4 + k), v(ZT + u * 16 + nh * 8 + 2 * k), v(ZT + u * 16 + nh * 8 + 2 * k + 1))
        e("s_nop 0")
        for rt in range(4):
            for c3 in range(3):
                mm16(ZA + (c3 * 4 + rt) * 4, ZC + z * 12 + c3 * 4, UF + 4 * rt, z == 0)
    e("v_add_u32 v12, %s, %s", s(sLB), v(vL))
    for rt in range(4):
        for c3 in range(3):
            if rt == 3 and c3 == 0:
                e("s_nop 1")
            e("ds_write_b128 v12, %s offset:%d", v(ZA + (c3 * 4 + rt) * 4, 4), c3 * 4096 + rt * 1024)
    e("s_waitcnt lgkmcnt(0)")
    stamp("zend")
    e("s_barrier")


vA0, vA1, vB0, vB1 = 2, 3, 4, 1


def lgo_init():
    e("v_mov_b32 v12, %d", LGO)
    e("v_mov_b32 v13, 0")
    e("ds_write_b32 v12, v13")
    e("ds_write_b32 v12, v13 offset:4")


def x_src_scalar():
    e("s_lshl_b32 %s, %s, 2", s(sAoff), s(sRB))
    e("s_add_u32 %s, %s, %s", s(sAoff), s(sAoff), s(sLW))
    e("s_mul_i32 %s, %s, 1280", s(sAoff), s(sAoff))


def ffn_loader():
    if PRL & 2:
        e("s_setprio 2")
    e("v_lshrrev_b32 v6, 3, v0")
    e("v_mul_u32_u24 v6, 81920, v6")
    e("v_and_b32 v7, 7, v0")
    e("v_lshrrev_b32 v8, 4, v0")
    e("v_xor_b32 v7, v7, v8")
    e("v_lshl_add_u32 %s, v7, 4, v6", v(vA0))
    e("v_xor_b32 %s, 64, %s", v(vA1), v(vA0))
    e("v_mul_u32_u24 v6, 3072, v8")
    e("v_and_b32 v7, 15, v0")
    e("v_lshlrev_b32 v8, 2, v8")
    e("v_xor_b32 v7, v7, v8")
    e("v_lshl_add_u32 %s, v7, 4, v6", v(vB0))
    e("v_xor_b32 %s, 32, %s", v(vB1), v(vB0))
    x_src_scalar()
    e("s_mul_i32 %s, %s, %d", s(sBoff), s(sLW), 16 * 3072)
    e("s_lshl_b32 %s, %s, 8", s(sTmp), s(sCG))
    e("s_add_u32 %s, %s, %s", s(sBoff), s(sBoff), s(sTmp))
    e("s_lshl_b32 %s, %s, 12", s(sM0), s(sLW))
    e("s_bfe_u32 %s, s2, 0x30003", s(sJB))
    e("s_mul_i32 %s, %s, %d", s(sJB), s(sJB), ROTA)
    e("s_lshr_b32 %s, s2, 6", s(sTmp))
    e("s_mul_i32 %s, %s, %d", s(sTmp), s(sTmp), ROTB)
    e("s_add_u32 %s, %s, %s", s(sJB), s(sJB), s(sTmp))
    NR = 10 - NFIX
    for _ in range((7 * ROTA + 2 * ROTB) // NR):
        e("s_cmp_ge_u32 %s, %d", s(sJB), NR)
        e("s_cselect_b32 %s, %d, 0", s(sTmp), NR)
        e("s_sub_u32 %s, %s, %s", s(sJB), s(sJB), s(sTmp))
    tab_srd()
    stamp("l_pre")
    e("s_waitcnt lgkmcnt(0)")
    stamp("l_k")
    for k in ("X", "G", "U"):
        srd(A, *SRDS[k])
    q = VQ()

    def slab_groups(i):
        b = (i % 3) * SLAB
        gs = []

        def head():
            if i < NFIX:
                e("s_add_u32 %s, %s, %d", s(sWM), s(sAoff), i * 128)
                e("s_add_u32 %s, %s, %d", s(sWN), s(sBoff), i * 64 * 3072)
            else:
                e("s_add_u32 %s, %s, %d", s(sTmp), s(sJB), NFIX)
                e("s_lshl_b32 %s, %s, 7", s(sWM), s(sTmp))
                e("s_add_u32 %s, %s, %s", s(sWM), s(sWM), s(sAoff))
                e("s_mul_i32 %s, %s, %d", s(sWN), s(sTmp), 64 * 3072)
                e("s_add_u32 %s, %s, %s", s(sWN), s(sWN), s(sBoff))
                e("s_add_u32 %s, %s, 1", s(sJB), s(sJB))
                e("s_cmp_eq_u32 %s, %d", s(sJB), NR)
                e("s_cselect_b32 %s, 0, %s", s(sJB), s(sJB))
        for n in range(4):
            def f(n=n):
                if n == 0:
                    head()
                e("s_add_u32 m0, %s, %d", s(sM0), b + n * 1024)
                e("s_add_u32 %s, %s, %d", s(sTmp), s(sWM), n * 8 * 81920)
                e("buffer_load_dwordx4 %s, %s, %s offen lds", v(vA1 if n & 1 else vA0), s(sX, 4), s(sTmp))
            gs.append(cap(f))
        for mat in range(2):
            for n in range(4):
                def f(n=n, mat=mat):
                    e("s_add_u32 m0, %s, %d", s(sM0), b + 16384 * (1 + mat) + n * 1024)
                    e("s_add_u32 %s, %s, %d", s(sTmp), s(sWN), n * 4 * 3072)
                    e("buffer_load_dwordx4 %s, %s, %s offen lds", v(vB1 if n & 2 else vB0), s(sU if mat else sG, 4), s(sTmp))
                gs.append(cap(f))
        q.issue("s%d" % i, 12)
        return gs

    def slab(i, main=()):
        weave(list(main), slab_groups(i))

    def wait2(n):
        la, lb = A.newlabel("L_w2"), A.newlabel("L_w2")
        e("s_cmp_ge_u32 %s, 48", s(sPar))
        e("s_cbranch_scc1 %s", la)
        e("s_waitcnt vmcnt(%d)", n + 4)
        e("s_branch %s", lb)
        A.label(la)
        e("s_waitcnt vmcnt(%d)", n)
        A.label(lb)

    def bar(b):
        stamp("fl_a%d" % b)
        e("s_barrier")
        stamp("fl_b%d" % b)
    slab(0)
    stamp("l_s0")
    lgo_init()
    e("s_load_dword %s, %s, 0x%x", s(sTAG), s(P + 18, 2), WS_EP)
    srd(A, *SRDS["WS"])
    for k in ("WD", "WR", "WI"):
        srd(A, *SRDS[k])
    slab(1)
    stamp("l_iss")
    q.wait("s0", extra=" lgkmcnt(0)")
    e("s_barrier")
    stamp("l_bi")
    repack_dma()
    cols_issue(16); q.issue("c", 5)
    slab(2)
    if WARM == 3:
        warm_touch(); q.issue("wt", 2)
    make_tag()
    z_setup()
    e("v_lshlrev_b32 v5, 4, v0")
    fw_poll_addr(10)
    aux_poll_addr(True, 15)
    n_ = 19 if WARM == 3 else 17
    wait2(n_)
    q.q = q.q[-n_:]
    bar(0)
    q.wait("c")
    slab(3, cap(lambda: cols_compute(16)))
    cols_store(16); q.issue("cs")
    q.wait("s2")
    bar(1)
    slab(4)
    repack_finish()
    wait2(12)
    q.q = ["s4"] * 12
    bar(2)
    gl = cap(z_gconst)
    th = len(gl) // 3
    slab(5, gl[:th])
    if WARM == 2:
        warm_touch(); q.issue("wt", 2)
    q.wait("s4")
    bar(3)
    lab = A.newlabel("L_nocf")
    e("s_cmp_lg_u32 %s, 0", s(sLW))
    e("s_cbranch_scc1 %s", lab)
    e("s_lshl_b32 %s, s2, 7", s(sCnt))
    e("s_add_u32 %s, %s, 0x%x", s(sCnt), s(sCnt), WS_FSC)
    flag_store(sCnt, 16, 17)
    A.label(lab)
    slab(6, gl[th:2 * th])
    q.wait("s5")
    bar(4)
    slab(7, gl[2 * th:])
    q.wait("s6")
    bar(5)
    poll_issue(40, 1, 15, WS_FS); poll_issue(41, 1, 10, WS_FSC); q.issue("p", 2)
    slab(8)
    if CIP1:
        z_ci_loads(4, 5); z_ci_loads(5, 5); q.issue("ci", 6)
    q.wait("s7", "p")
    bar(6)
    poll_check(40, 1, 15, WS_FS)
    poll_check(41, 1, 10, WS_FSC)
    stamp("fl_chk")
    aux_issue(True, 16); q.issue("aux", 5)
    slab(9)
    q.wait("s8")
    bar(7)
    q.wait("aux")
    stamp("fl_aux")
    q.wait("s9")
    stamp("fl_s9")
    aux_finish(True, 16)
    bar(8)
    e("v_mov_b32 v12, %d", LGO)
    lab = A.newlabel("L_hout")
    A.label(lab)
    e("s_sleep 1")
    e("ds_read_b32 v13, v12 offset:4")
    e("s_waitcnt lgkmcnt(0)")
    e("v_cmp_ne_u32 vcc, 4, v13")
    e("s_cbranch_vccnz %s", lab)
    fu_poll_issue()
    if not CIP1:
        for z in range(6):
            z_ci_loads(z, 5)
    e("s_branch L_zpart")


def wspec_dma():
    mid_k1()
    e("v_mul_u32_u24 v12, 3121, v0")
    e("v_lshrrev_b32 v12, 16, v12")
    e("v_mul_u32_u24 v12, %d, v12", 32 * 642 - 336)
    e("v_lshl_add_u32 v12, v0, 4, v12")
    e("s_mul_i32 %s, %s, 642", s(sDelta), s(sK1))
    e("s_mul_i32 s3, s3, 306")
    e("s_add_u32 %s, %s, s3", s(sDelta), s(sDelta))
    e("s_and_b32 %s, %s, 1", s(sTmp), s(sLW))
    e("s_mul_i32 %s, %s, %d", s(sCnt), s(sTmp), 11 * 1008)
    e("s_mul_i32 %s, %s, %d", s(sTmp), s(sTmp), 33 * 32 * 642)
    e("s_add_u32 %s, %s, %s", s(sDelta), s(sDelta), s(sTmp))
    lab, lab2 = A.newlabel("L_wi"), A.newlabel("L_wd")
    e("s_cmp_ge_u32 %s, 2", s(sLW))
    e("s_cbranch_scc1 %s", lab)
    for arr in range(2):
        if arr:
            e("s_branch %s", lab2)
            A.label(lab)
        for n in range(11):
            e("s_add_u32 m0, %s, %d", s(sCnt), MW0 + arr * MWA + n * 1008)
            e("s_add_u32 %s, %s, %d", s(sTmp), s(sDelta), n * 3 * 32 * 642)
            e("buffer_load_dwordx4 v12, %s, %s offen lds", s(sWI if arr else sWR, 4), s(sTmp))
    A.label(lab2)


def repack_dma():
    e("v_lshrrev_b32 v12, 3, v0")
    e("v_mul_u32_u24 v13, 1280, v12")
    e("v_bfe_u32 v14, v0, 4, 2")
    e("v_lshlrev_b32 v14, 1, v14")
    e("v_and_b32 v12, 7, v0")
    e("v_xor_b32 v12, v12, v14")
    e("v_lshl_add_u32 v12, v12, 4, v13")
    e("s_mul_i32 %s, s2, 3", s(sCnt))
    e("s_add_u32 %s, %s, %s", s(sCnt), s(sCnt), s(sLW))
    e("s_cmp_eq_u32 %s, 3", s(sLW))
    e("s_cselect_b32 %s, 480, %s", s(sCnt), s(sCnt))
    e("s_mul_i32 %s, %s, 52429", s(sBuf), s(sCnt))
    e("s_lshr_b32 %s, %s, 19", s(sBuf), s(sBuf))
    e("s_mul_i32 %s, %s, 10", s(sTmp), s(sBuf))
    e("s_sub_u32 %s, %s, %s", s(sCnt), s(sCnt), s(sTmp))
    e("s_mul_i32 %s, %s, 40960", s(sDelta), s(sBuf))
    e("s_lshl_b32 %s, %s, 7", s(sTmp), s(sCnt))
    e("s_add_u32 %s, %s, %s", s(sDelta), s(sDelta), s(sTmp))
    e("s_min_u32 %s, %s, 2", s(sWa), s(sLW))
    e("s_lshl_b32 %s, %s, 12", s(sWa), s(sWa))
    e("s_add_u32 %s, %s, %d", s(sWa), s(sWa), RPK)
    lab = A.newlabel("L_norp")
    e("s_cmp_ge_u32 %s, 48", s(sBuf))
    e("s_cbranch_scc1 %s", lab)
    for n in range(4):
        e("s_add_u32 m0, %s, %d", s(sWa), n * 1024)
        e("s_add_u32 %s, %s, %d", s(sTmp), s(sDelta), n * 8 * 1280)
        e("buffer_load_dwordx4 v12, %s, %s offen lds", s(sWD, 4), s(sTmp))
    A.label(lab)
    e("s_mul_i32 %s, %s, %d", s(sWb), s(sCnt), 4 * 49152)
    e("s_lshl_b32 %s, %s, 10", s(sTmp), s(sBuf))
    e("s_add_u32 %s, %s, %s", s(sWb), s(sWb), s(sTmp))
    e("s_add_u32 %s, %s, 0x%x", s(sWb), s(sWb), WS_WD)
    e("s_mov_b32 %s, %s", s(sPar), s(sBuf))


def repack_finish():
    lab = A.newlabel("L_norp")
    e("s_cmp_ge_u32 %s, 48", s(sPar))
    e("s_cbranch_scc1 %s", lab)
    e("v_lshrrev_b32 v56, 2, v0")
    e("v_lshlrev_b32 v56, 7, v56")
    e("v_and_b32 v57, 3, v0")
    e("v_lshl_add_u32 v56, v57, 3, v56")
    e("v_bfe_u32 v57, v0, 3, 2")
    e("v_lshl_add_u32 v56, v57, 5, v56")
    e("v_add_u32 v56, %s, v56", s(sWa))
    for tq in range(1, 4):
        e("v_xor_b32 %s, %d, v56", v(56 + tq), tq << 5)
    for tq in range(4):
        for rd in range(2):
            e("ds_read_b64_tr_b16 %s, %s offset:%d", v(16 + tq * 4 + 2 * rd, 2), v(56 + tq), rd * 2048)
    for n in range(4):
        e("s_waitcnt lgkmcnt(%d)", 6 - 2 * n)
        e("s_add_u32 %s, %s, %d", s(sTmp), s(sWb), n * 49152)
        e("buffer_store_dwordx4 %s, v5, %s, %s offen sc1", v(16 + n * 4, 4), s(sWS, 4), s(sTmp))
    A.label(lab)


def dft_loader(njb):
    if PRL & 1:
        e("s_setprio 2")
    XR = 64
    vW0, vW1 = 6, 7
    sRot = [50, 51, 52, 57, 58]
    e("v_lshrrev_b32 v8, 3, v0")
    e("v_mul_u32_u24 v9, 81920, v8")
    e("v_and_b32 v10, 7, v0")
    e("v_lshl_add_u32 %s, v10, 4, v9", v(vA0))
    e("v_lshrrev_b32 v9, 4, v0")
    e("v_xor_b32 v10, v10, v9")
    e("v_lshlrev_b32 v8, 7, v8")
    e("v_lshl_add_u32 v8, v10, 4, v8")
    e("s_lshl_b32 %s, %s, 12", s(sTmp), s(sLW))
    e("v_add_u32 %s, %s, v8", v(vW0), s(sTmp))
    e("v_xor_b32 %s, 64, %s", v(vW1), v(vW0))
    e("v_add_u32 v8, %d, %s", 2 * SLAB, v(vW0))
    e("v_add_u32 v9, %d, %s", 2 * SLAB, v(vW1))
    e("v_lshlrev_b32 %s, 4, v0", v(vB0))
    x_src_scalar()
    if njb == 6:
        e("s_mul_i32 %s, %s, %d", s(sBoff), s(sLW), 6 * 1024)
    else:
        e("s_mul_i32 %s, %s, %d", s(sBoff), s(sCG), 20 * 5 * 1024)
        e("s_mul_i32 %s, %s, %d", s(sTmp), s(sLW), 5 * 1024)
        e("s_add_u32 %s, %s, %s", s(sBoff), s(sBoff), s(sTmp))
        e("s_add_u32 %s, %s, %d", s(sBoff), s(sBoff), 20 * 1024)
    e("s_bfe_u32 %s, s2, 0x30003", s(sJB))
    e("s_cmp_ge_u32 %s, 5", s(sJB))
    e("s_cselect_b32 %s, 5, 0", s(sTmp))
    e("s_sub_u32 %s, %s, %s", s(sJB), s(sJB), s(sTmp))
    if not DROT:
        e("s_mov_b32 %s, 0", s(sJB))
    for i in range(5):
        e("s_add_u32 %s, %s, %d", s(sTmp), s(sJB), i)
        e("s_cmp_ge_u32 %s, 5", s(sTmp))
        e("s_cselect_b32 %s, 5, 0", s(sTmp2))
        e("s_sub_u32 %s, %s, %s", s(sRot[i]), s(sTmp), s(sTmp2))
    e("s_mul_i32 %s, %s, %d", s(sM0), s(sLW), njb * 1024)
    e("s_add_u32 %s, %s, 16384", s(sM0), s(sM0))
    tab_srd()
    stamp("l_pre")
    e("s_waitcnt lgkmcnt(0)")
    stamp("l_k")
    srd(A, *SRDS["X"])
    q = VQ()

    def xl(i):
        gs = []
        for n in range(4):
            for hf in range(2):
                def f(n=n, hf=hf):
                    if n == 0 and hf == 0:
                        e("s_lshl_b32 %s, %s, 7", s(sFlag), s(sRot[i]))
                        e("s_add_u32 %s, %s, %s", s(sFlag), s(sFlag), s(sAoff))
                    e("s_add_u32 %s, %s, %d", s(sTmp), s(sFlag), n * 8 * 81920)
                    e("buffer_load_dwordx4 %s, %s, %s, %s offen offset:%d", v(XR + i * 32 + n * 8 + hf * 4, 4), v(vA0), s(sX, 4), s(sTmp), hf * 640)
                gs.append(cap(f))
        q.issue("x%d" % i, 8)
        return gs

    def cl(i):
        gs = []
        for tl in range(njb):
            def f(tl=tl):
                e("s_add_u32 m0, %s, %d", s(sM0), (i % 3) * SLAB + tl * 1024)
                if tl == 0:
                    e("s_mul_i32 %s, %s, %d", s(sSLAB), s(sRot[i]), 4 * njb * 1024)
                    e("s_add_u32 %s, %s, %s", s(sSLAB), s(sSLAB), s(sBoff))
                e("s_add_u32 %s, %s, %d", s(sTmp), s(sSLAB), tl * 1024)
                e("buffer_load_dwordx4 %s, %s, %s offen lds", v(vB0), s(sTAB, 4), s(sTmp))
            gs.append(cap(f))
        q.issue("c%d" % i, njb)
        return gs

    def fl():
        gs = []
        for n in range(4):
            def f(n=n):
                e("s_lshl_b32 %s, %s, 11", s(sTmp), s(sLW))
                e("s_add_u32 m0, %s, %d", s(sTmp), (FI_L if n & 2 else FR_L) + (n & 1) * 1024)
                e("s_add_u32 %s, %s, %d", s(sTmp), s(sTmp), TB.F64_OFF + (n >> 1) * 8192 + (n & 1) * 1024)
                e("buffer_load_dwordx4 %s, %s, %s offen lds", v(vB0), s(sTAB, 4), s(sTmp))
            gs.append(cap(f))
        q.issue("f", 4)
        return gs

    def fold(i):
        for n in range(4):
            a0 = XR + i * 32 + n * 8
            if FOLD == 0:
                for d in range(4):
                    t = 16 + 4 * (d & 1)
                    e("v_lshlrev_b32 %s, 16, %s", v(t), v(a0 + d))
                    e("v_and_b32 %s, 0xffff0000, %s", v(t + 1), v(a0 + d))
                    e("v_lshlrev_b32 %s, 16, %s", v(t + 2), v(a0 + 4 + d))
                    e("v_and_b32 %s, 0xffff0000, %s", v(t + 3), v(a0 + 4 + d))
                    e("v_pk_fma_f32 %s, %s, %s, %s", v(t, 2), v(t + 2, 2), s(sSgn, 2), v(t, 2))
                    e("v_cvt_pk_bf16_f32 %s, %s, %s", v(a0 + d), v(t), v(t + 1))
            else:
                T = 28 + 8 * (n & 1)
                for d in range(4):
                    e("v_lshlrev_b32 %s, 16, %s", v(T + d), v(a0 + d))
                    e("v_lshlrev_b32 %s, 16, %s", v(T + 4 + d), v(a0 + 4 + d))
                for d in range(8):
                    e("v_and_b32 %s, %s, %s", v(a0 + d), v(44), v(a0 + d))
                if FOLD == 1:
                    for d in range(4):
                        e("v_fmac_f32 %s, %s, %s", v(T + d), s(sSgn), v(T + 4 + d))
                    for d in range(4):
                        e("v_fmac_f32 %s, %s, %s", v(a0 + d), s(sSgn), v(a0 + 4 + d))
                else:
                    for d in (0, 2):
                        e("v_pk_fma_f32 %s, %s, %s, %s", v(T + d, 2), v(T + 4 + d, 2), s(sSgn, 2), v(T + d, 2))
                    for d in (0, 2):
                        e("v_pk_fma_f32 %s, %s, %s, %s", v(a0 + d, 2), v(a0 + 4 + d, 2), s(sSgn, 2), v(a0 + d, 2))
                for d in range(4):
                    e("v_cvt_pk_bf16_f32 %s, %s, %s", v(a0 + d), v(T + d), v(a0 + d))
            b = i % 3
            base = ((vW0, vW1) if b < 2 else (8, 9))[n & 1]
            e("ds_write_b128 %s, %s offset:%d", v(base), v(a0, 4), (b * SLAB if b < 2 else 0) + n * 1024)

    def bar(b):
        stamp("dl_a%s" % b)
        e("s_barrier")
        stamp("dl_b%s" % b)
    weave([], xl(0) + cl(0))
    stamp("l_s0")
    lgo_init()
    e("s_load_dword %s, %s, 0x%x", s(sTAG), s(P + 18, 2), WS_EP)
    for k in ("WS", "WR", "WI"):
        srd(A, *SRDS[k])
    e("s_cmp_ge_u32 %s, 2", s(sCG))
    e("s_cselect_b32 %s, -1.0, 1.0", s(sSgn))
    e("s_mov_b32 %s, %s", s(sSgn + 1), s(sSgn))
    weave([], xl(1))
    e("v_mov_b32 v44, 0xffff0000")
    aux_poll_addr(False, 15)
    e("v_add_u32 %s, %d, v8", v(vW0), (-2 * SLAB) & 0xffffffff)
    e("v_add_u32 %s, %d, v9", v(vW1), (-2 * SLAB) & 0xffffffff)
    fw_poll_addr(10)
    stamp("l_iss")
    q.wait("x0")
    stamp("dl_x0")
    weave(cap(lambda: fold(0)), cl(1) + xl(2))
    q.wait("c0", extra=" lgkmcnt(0)")
    e("s_barrier")
    stamp("l_bi")
    make_tag()
    q.wait("x1")
    weave(cap(lambda: fold(1)), cl(2) + xl(3))
    q.wait("c1", extra=" lgkmcnt(0)")
    bar(0)
    q.wait("x2")
    stamp("dl_x2")
    weave(cap(lambda: fold(2)), cl(3) + xl(4))
    stamp("dl_f2")
    poll_issue(46, 1, 15, WS_FS); q.issue("p")
    q.wait("c2", extra=" lgkmcnt(0)")
    bar(1)
    q.wait("x3")
    stamp("dl_x3")
    weave(cap(lambda: fold(3)), cl(4) + fl())
    stamp("dl_f3")
    q.wait("p")
    poll_check(46, 1, 15, WS_FS)
    aux_issue(False, 24); q.issue("aux")
    e("s_waitcnt lgkmcnt(0)")
    bar(2)
    fold(4)
    q.wait("aux")
    aux_finish(False, 24)
    bar(3)
    poll_issue(41, 1, 10, WS_FSC)
    z_setup()
    if WSP == 0:
        wspec_dma()
    e("s_barrier")
    if WSP == 1:
        wspec_dma()
        e("s_waitcnt vmcnt(11)")
    else:
        e("s_waitcnt vmcnt(0)")
    poll_check(41, 1, 10, WS_FSC)
    e("s_branch L_dft_l")


def addr_advance(regs):
    e("s_add_u32 %s, %s, %d", s(sBuf), s(sBuf), SLAB)
    e("s_cmp_ge_u32 %s, %d", s(sBuf), 3 * SLAB)
    e("s_cselect_b32 %s, 0, %s", s(sBuf), s(sBuf))
    e("s_cselect_b32 %s, %d, %s", s(sDelta), (-2 * SLAB) & 0xffffffff, s(sSLAB))
    for r_ in regs:
        e("v_add_u32 %s, %s, %s", v(r_), s(sDelta), v(r_))


def gemm_loop(nslab, NT, mfmas, reads, need, areg, bar_gap, per_gap, last_extra=(), first_hook=None):
    nreads = len(reads(0, 0))
    nm = len(need)

    def step(mf, nxt, first_gap=0, pre=None, barg=None):
        issued, done = 0, 0
        for m in range(nm):
            if need[m] > done:
                allowed = nreads - need[m] + issued
                e("s_waitcnt lgkmcnt(%d)", min(15, allowed))
                done = need[m] if allowed <= 15 else min(nreads, nreads + issued - 15)
            mf[m]()
            if pre and m in pre:
                for f in pre[m]:
                    f()
                if m == barg:
                    done = nreads
            if m >= first_gap:
                for k in range(per_gap):
                    if issued < len(nxt):
                        nxt[issued]()
                        issued += 1
        assert issued == len(nxt), (issued, len(nxt))

    def bar(vm=False):
        e("s_waitcnt lgkmcnt(0)%s", " vmcnt(0)" if vm else "")
        e("s_barrier")

    def merge(*ds):
        out = {}
        for d in ds:
            for k, x in d.items():
                out.setdefault(k, [])
                out[k] += x
        return out

    def spread(ops):
        out = {}
        for n, f in enumerate(ops):
            g = nm - 1 - (len(ops) - 1 - n) * max(1, (nm - bar_gap - 1) // max(1, len(ops)))
            out.setdefault(max(g, 0), []).append(f)
        return out

    def slab(last):
        ex = list(last_extra) if last else []
        per = (len(ex) + NT - 1) // NT
        for t in range(NT - 1):
            step(mfmas(t & 1), reads((t + 1) & 1, t + 1), pre=spread(ex[t * per:(t + 1) * per]))
        if last:
            step(mfmas(1), [], pre=spread(ex[(NT - 1) * per:]))
        else:
            hooks = {bar_gap: [lambda: bar(first_hook is not None)] + ([first_hook] if first_hook else [])}
            step(mfmas(1), reads(0, 0), first_gap=bar_gap + (1 if bar_gap else 0), pre=merge({0: [lambda: addr_advance(areg)]}, hooks), barg=bar_gap)
    e("s_mov_b32 %s, 0", s(sBuf))
    e("s_mov_b32 %s, %d", s(sSLAB), SLAB)
    e("s_mov_b32 %s, 0", s(sCnt))
    e("s_waitcnt lgkmcnt(0)")
    make_tag()
    e("s_barrier")
    stamp("c_bi")
    for f in reads(0, 0):
        f()
    lab = A.newlabel("L_gemm")
    A.label(lab)
    slab(False)
    e("s_add_u32 %s, %s, 1", s(sCnt), s(sCnt))
    e("s_cmp_lt_u32 %s, %d", s(sCnt), nslab - 1)
    e("s_cbranch_scc1 %s", lab)
    slab(True)
    stamp("c_le")


vWD = [1, 2, 3, 4, 14]


def p3c_setup():
    p3_map()
    e("s_lshr_b32 %s, %s, 1", s(sOc), s(sG3))
    e("s_and_b32 %s, %s, 1", s(sTmp), s(sG3))
    e("s_mul_i32 %s, %s, 20", s(sTmp), s(sTmp))
    e("s_add_u32 %s, %s, %s", s(sOc), s(sOc), s(sTmp))
    e("s_add_u32 %s, %s, 16", s(sOc), s(sOc))
    e("s_lshl_b32 %s, %s, 5", s(sOc), s(sOc))
    e("s_lshl_b32 %s, %s, 6", s(sOo), s(sG3))
    e("s_lshl_b32 %s, %s, 10", s(sTmp), s(sW))
    e("s_add_u32 %s, %s, 0x%x", s(sTmp), s(sTmp), WS_WD)
    e("s_mul_i32 %s, %s, %d", s(sWa), s(sG3), 2 * 49152)
    e("s_add_u32 %s, %s, %s", s(sWa), s(sWa), s(sTmp))
    e("s_mul_i32 %s, %s, %d", s(sWc), s(sOc), 49152 // 32)
    e("s_add_u32 %s, %s, %s", s(sWc), s(sWc), s(sTmp))
    e("s_mul_i32 %s, %s, %d", s(sHo), s(sP), 2 * 48 * 2048)
    e("s_lshl_b32 %s, %s, 11", s(sTmp), s(sW))
    e("s_add_u32 %s, %s, %s", s(sHo), s(sHo), s(sTmp))
    e("s_and_b32 %s, %s, 1", s(sTmp), s(sW))
    e("s_lshl_b32 %s, %s, 10", s(sTmp), s(sTmp))
    e("s_lshl_b32 %s, %s, 1", s(sTmp2), s(sP))
    e("s_add_u32 %s, %s, %s", s(sTmp), s(sTmp), s(sTmp2))
    e("s_lshr_b32 %s, %s, 1", s(sTmp2), s(sW))
    e("s_add_u32 %s, %s, %s", s(sTmp), s(sTmp), s(sTmp2))
    e("s_mul_i32 %s, %s, 1280", s(sTmp), s(sTmp))
    e("s_add_u32 %s, %s, %s", s(sOo), s(sOo), s(sTmp))
    e("s_add_u32 %s, %s, %s", s(sOc), s(sOc), s(sTmp))


def p3c():
    vL, vO, vPH = 5, 13, 6
    RS, XR, ACC = 16, 16, 176
    NI = 12
    q = VQ()
    e("v_lshlrev_b32 %s, 4, v0", v(vL))
    sHr = [50, 51, 52, 53]
    for rho in range(4):
        e("s_add_u32 %s, %s, %d", s(sTmp), s(sW), rho)
        e("s_bfe_u32 %s, %s, 0x10001", s(sTmp2), s(sTmp))
        e("s_mul_i32 %s, %s, %d", s(sTmp2), s(sTmp2), 48 * 2048)
        e("s_and_b32 %s, %s, 1", s(sTmp), s(sTmp))
        e("s_lshl_b32 %s, %s, 10", s(sTmp), s(sTmp))
        e("s_add_u32 %s, %s, %s", s(sTmp), s(sTmp), s(sTmp2))
        e("s_add_u32 %s, %s, %s", s(sHr[rho]), s(sTmp), s(sHo))

    def wload(i, ct):
        base, off = [(sWa, 0), (sWa, 49152), (sWa, 20 * 49152), (sWa, 21 * 49152), (sWc, 0)][ct]
        e("s_add_u32 %s, %s, %d", s(sTmp), s(base), off + i * 4096)
        e("buffer_load_dwordx4 %s, %s, %s, %s offen sc1", v(RS + (i % 4) * 36 + ct * 4, 4), v(vL), s(sWS, 4), s(sTmp))
        q.issue("i%d" % i)

    def hload(i):
        for rho in range(4):
            e("s_add_u32 %s, %s, %d", s(sTmp), s(sHr[rho]), WS_H + i * 4 * 2048)
            e("buffer_load_dwordx4 %s, %s, %s, %s offen sc1", v(RS + (i % 4) * 36 + 20 + rho * 4, 4), v(vL), s(sWS, 4), s(sTmp))
            q.issue("i%d" % i)
    stamp("p3_in")
    e("v_and_b32 v8, 15, v0")
    e("v_mul_u32_u24 v8, 81920, v8")
    e("v_lshrrev_b32 v9, 4, v0")
    e("v_lshl_add_u32 %s, v9, 3, v8", v(vO))
    e("s_lshl_b32 %s, %s, 1", s(sTmp), s(sP))
    e("s_lshr_b32 %s, %s, 1", s(sTmp2), s(sW))
    e("s_add_u32 %s, %s, %s", s(sTmp), s(sTmp), s(sTmp2))
    e("s_mul_i32 %s, %s, 12", s(sTmp), s(sTmp))
    e("v_min_u32 v8, 11, v0")
    e("v_add_u32 v8, %s, v8", s(sTmp))
    e("v_lshlrev_b32 %s, 7, v8", v(vPH))
    lab = A.newlabel("L_nofh")
    e("s_cmp_ge_u32 s2, 192")
    e("s_cbranch_scc1 %s", lab)
    e("v_mov_b32 v11, %d", LGO)
    e("v_mov_b32 v12, 1")
    e("s_waitcnt vmcnt(0)")
    flag_store(sFlag, 8, 9)
    e("s_mov_b64 exec, 1")
    e("ds_add_u32 v11, v12 offset:4")
    e("s_mov_b64 exec, -1")
    A.label(lab)
    stamp("p3_fl")
    for i in range(4):
        for ct in range(5):
            wload(i, ct)
    poll_issue(10, 1, vPH, WS_FH)
    e("s_waitcnt vmcnt(0)")
    poll_check(10, 1, vPH, WS_FH)
    stamp("p3_fh")
    q.drain()
    for i in range(4):
        hload(i)
    OFF = [(sOo, 0), (sOo, 32), (sOo, 640), (sOo, 672), (sOc, 0)]

    def acc(ct, rt): return ACC + (ct * 4 + rt) * 4
    for i in range(NI):
        rs = RS + (i % 4) * 36
        q.wait("i%d" % i)
        stamp("i%d" % i)
        for ct in range(5):
            for rt in range(4):
                mm16(acc(ct, rt), rs + 4 * ct, rs + 20 + 4 * rt, i == 0)
            if i + 4 < NI:
                wload(i + 4, ct)
            if i == 9:
                e("buffer_load_dwordx2 %s, %s, %s, %s offen offset:%d", v(XR + 2 * ct, 2), v(vO), s(sX, 4), s(OFF[ct][0]), OFF[ct][1])
                q.issue("x")
        if i + 4 < NI:
            hload(i + 4)
    for rho in range(1, 4):
        e("s_add_u32 %s, %s, %d", s(sTmp), s(sW), rho)
        e("s_and_b32 %s, %s, 3", s(sTmp), s(sTmp))
        e("s_mul_i32 %s, %s, 15360", s(sTmp), s(sTmp))
        e("s_add_u32 %s, %s, %d", s(sTmp), s(sTmp), CP0 + (rho - 1) * 5120)
        e("v_add_u32 %s, %s, %s", v(7 + rho), s(sTmp), v(vL))
    for ct in range(5):
        for rho in range(1, 4):
            e("ds_write_b128 %s, %s offset:%d", v(7 + rho), v(acc(ct, rho), 4), ct * 1024)
    e("s_mul_i32 %s, %s, 15360", s(sTmp), s(sW))
    e("s_add_u32 %s, %s, %d", s(sTmp), s(sTmp), CP0)
    e("v_add_u32 v26, %s, %s", s(sTmp), v(vL))
    e("s_lshl_b32 %s, %s, 10", s(sTmp), s(sW))
    e("v_add_u32 v27, %s, %s", s(sTmp), v(vL))
    e("s_waitcnt vmcnt(0)")
    for ct in range(5):
        x0, b = XR + 2 * ct, 28 + 4 * ct
        e("v_lshlrev_b32 %s, 16, %s", v(b), v(x0))
        e("v_and_b32 %s, 0xffff0000, %s", v(b + 1), v(x0))
        e("v_lshlrev_b32 %s, 16, %s", v(b + 2), v(x0 + 1))
        e("v_and_b32 %s, 0xffff0000, %s", v(b + 3), v(x0 + 1))
        for k in (0, 2):
            e("v_pk_add_f32 %s, %s, %s", v(acc(ct, 0) + k, 2), v(acc(ct, 0) + k, 2), v(b + k, 2))
    e("s_waitcnt lgkmcnt(0)")
    stamp("p3_end")
    e("s_barrier")
    stamp("p3_bar")
    LP = 48
    for c3 in range(3):
        for lw in range(4):
            e("ds_read_b128 %s, v27 offset:%d", v(LP + (c3 * 4 + lw) * 4, 4), ZU0 + lw * ZUS + c3 * 4096)
    for ct in range(5):
        for k in range(3):
            e("ds_read_b128 %s, v26 offset:%d", v(acc(ct, k + 1), 4), k * 5120 + ct * 1024)
    e("s_waitcnt lgkmcnt(15)")
    for c3 in range(3):
        b = LP + c3 * 16
        for k in (0, 2):
            e("v_pk_add_f32 %s, %s, %s", v(b + k, 2), v(b + k, 2), v(b + 8 + k, 2))
            e("v_pk_add_f32 %s, %s, %s", v(b + 4 + k, 2), v(b + 4 + k, 2), v(b + 12 + k, 2))
        for k in (0, 2):
            if c3 < 2:
                e("v_pk_add_f32 %s, %s, %s neg_lo:[0,1] neg_hi:[0,1]", v(b + 8 + k, 2), v(b + k, 2), v(b + 4 + k, 2))
            e("v_pk_add_f32 %s, %s, %s", v(b + k, 2), v(b + k, 2), v(b + 4 + k, 2))
    zsrc = [LP, LP + 16, LP + 8, LP + 24, LP + 32]
    for ct in range(5):
        b = acc(ct, 0)
        e("s_waitcnt lgkmcnt(%d)", 12 - 3 * ct)
        for k in (0, 2):
            e("v_pk_add_f32 %s, %s, %s", v(b + k, 2), v(b + k, 2), v(zsrc[ct] + k, 2))
            e("v_pk_add_f32 %s, %s, %s", v(b + 4 + k, 2), v(b + 4 + k, 2), v(b + 8 + k, 2))
        for k in (0, 2):
            e("v_pk_add_f32 %s, %s, %s", v(b + k, 2), v(b + k, 2), v(b + 12 + k, 2))
        for k in (0, 2):
            e("v_pk_add_f32 %s, %s, %s", v(b + k, 2), v(b + k, 2), v(b + 4 + k, 2))
        e("v_cvt_pk_bf16_f32 %s, %s, %s", v(b + 8), v(b), v(b + 1))
        e("v_cvt_pk_bf16_f32 %s, %s, %s", v(b + 9), v(b + 2), v(b + 3))
        e("buffer_store_dwordx2 %s, %s, %s, %s offen offset:%d", v(b + 8, 2), v(vO), s(sOUT, 4), s(OFF[ct][0]), OFF[ct][1])
    lab = A.newlabel("L_noep")
    e("s_lshl_b32 %s, s2, 3", s(sTmp))
    e("s_add_u32 %s, %s, %s", s(sTmp), s(sTmp), s(sW))
    e("s_cmp_eq_u32 %s, 0", s(sTmp))
    e("s_cbranch_scc0 %s", lab)
    e("s_mov_b32 %s, 0x%x", s(sTmp), WS_EP)
    flag_store(sTmp, 8, 9)
    A.label(lab)


def warm_touch():
    e("s_lshl_b32 %s, s2, 1", s(sTmp))
    e("s_and_b32 %s, %s, 1", s(sTmp2), s(sLW))
    e("s_add_u32 %s, %s, %s", s(sTmp), s(sTmp), s(sTmp2))
    e("s_mul_i32 %s, %s, %d", s(sTmp), s(sTmp), 27 * 128)
    e("v_min_u32 v12, 26, v0")
    e("v_lshlrev_b32 v12, 7, v12")
    lab, lab2 = A.newlabel("L_wt"), A.newlabel("L_wt")
    e("s_cmp_ge_u32 %s, 2", s(sLW))
    e("s_cbranch_scc1 %s", lab)
    e("buffer_load_dword v250, v12, %s, %s offen", s(sWR, 4), s(sTmp))
    e("s_branch %s", lab2)
    A.label(lab)
    e("buffer_load_dword v250, v12, %s, %s offen", s(sWI, 4), s(sTmp))
    A.label(lab2)
    e("s_lshl_b32 %s, s2, 2", s(sTmp))
    e("s_add_u32 %s, %s, %s", s(sTmp), s(sTmp), s(sLW))
    e("s_mul_i32 %s, %s, %d", s(sTmp), s(sTmp), 6 * 128)
    e("s_add_u32 %s, %s, %d", s(sTmp), s(sTmp), TB.CI_OFF)
    e("v_min_u32 v12, 5, v0")
    e("v_lshlrev_b32 v12, 7, v12")
    e("buffer_load_dword v251, v12, %s, %s offen", s(sTAB, 4), s(sTmp))


def p1_ffn():
    vXA, vWA, FR, ACC = 8, 10, 16, 112
    stats_addr(16)
    e("s_and_b32 %s, %s, 1", s(sWM), s(sW))
    e("s_lshr_b32 %s, %s, 1", s(sWN), s(sW))
    tab_srd()
    karg_wait(["X"], ["WS", "OUT", "WR", "WI"])
    lab = A.newlabel("L_nost")
    e("s_cmp_ge_u32 %s, 8", s(sCG))
    e("s_cbranch_scc1 %s", lab)
    stats_issue(16)
    A.label(lab)
    e("s_lshl_b32 %s, %s, 3", s(sFlag), s(sRB))
    e("s_add_u32 %s, %s, %s", s(sFlag), s(sFlag), s(sCG))
    e("s_lshl_b32 %s, %s, 7", s(sFlag), s(sFlag))
    e("s_add_u32 %s, %s, 0x%x", s(sFlag), s(sFlag), WS_FS)
    if WARM == 1:
        warm_touch()
    for i in range(128):
        e("v_mov_b32 %s, 0", v(ACC + i))
    p3c_setup()
    e("v_and_b32 v5, 15, v0")
    e("v_lshlrev_b32 v5, 7, v5")
    e("s_lshl_b32 %s, %s, 13", s(sTmp), s(sWM))
    e("v_add_u32 v5, %s, v5", s(sTmp))
    e("v_lshrrev_b32 v6, 4, v0")
    e("v_bfe_u32 v7, v0, 1, 3")
    e("v_xor_b32 v6, v6, v7")
    e("v_lshl_add_u32 %s, v6, 4, v5", v(vXA))
    e("v_xor_b32 %s, 64, %s", v(vXA + 1), v(vXA))
    e("v_lshrrev_b32 v5, 4, v0")
    e("v_bfe_u32 v6, v0, 2, 2")
    e("v_lshl_add_u32 v7, v5, 3, v6")
    e("v_lshlrev_b32 v7, 8, v7")
    e("v_and_b32 v5, 1, v5")
    e("v_lshl_add_u32 v5, v6, 1, v5")
    e("s_lshl_b32 %s, %s, 2", s(sTmp), s(sWN))
    e("v_xor_b32 v5, %s, v5", s(sTmp))
    e("v_lshl_add_u32 v7, v5, 5, v7")
    e("v_and_b32 v6, 3, v0")
    e("v_lshl_add_u32 %s, v6, 3, v7", v(vWA))
    for ft in range(1, 4):
        e("v_xor_b32 %s, %d, %s", v(vWA + ft), ft << 5, v(vWA))
    e("s_mov_b32 %s, 1", s(sNU))
    lab = A.newlabel("L_nost")
    e("s_cmp_ge_u32 %s, 8", s(sCG))
    e("s_cbranch_scc1 %s", lab)
    e("s_mov_b32 %s, %s", s(sNU), s(sW))
    e("s_waitcnt vmcnt(%d)", 2 if WARM == 1 else 0)
    stats_compute(16)
    A.label(lab)
    stamp("c_set")

    def hook():
        lab = A.newlabel("L_nofl")
        e("s_cmp_lg_u32 %s, 0", s(sNU))
        e("s_cbranch_scc1 %s", lab)
        e("s_mov_b32 %s, 1", s(sNU))
        flag_store(sFlag, 5, 6)
        A.label(lab)

    def acc(mat, ft, st): return ACC + ((mat * 4 + ft) * 4 + st) * 4
    def xf(p, st): return FR + p * 48 + st * 4
    def wf(p, mat, ft): return FR + p * 48 + 16 + (mat * 4 + ft) * 4
    keys = [("x", 0), ("w", 0, 0), ("w", 0, 0), ("x", 1), ("x", 2), ("x", 3)]
    for ft in range(4):
        for mat in range(2):
            if (mat, ft) != (0, 0):
                keys += [("w", mat, ft)] * 2

    def reads(p, t):
        out, seen = [], {}
        for k in keys:
            if k[0] == "x":
                out.append(lambda st=k[1]: e("ds_read_b128 %s, %s offset:%d", v(xf(p, st), 4), v(vXA + t), st * 2048))
            else:
                rd = seen.get(k, 0); seen[k] = rd + 1
                out.append(lambda mat=k[1], ft=k[2], rd=rd: e("ds_read_b64_tr_b16 %s, %s offset:%d", v(wf(p, mat, ft) + 2 * rd, 2), v(vWA + ft), 16384 * (1 + mat) + t * 8192 + rd * 1024))
        return out
    morder, n = [], 0
    for ft in range(4):
        for mat in range(2):
            morder += [(mat, ft, st) for st in ([0, 1, 2, 3] if n % 2 == 0 else [3, 2, 1, 0])]
            n += 1
    need = [max(i + 1 for i, k in enumerate(keys) if k == ("x", m[2]) or k == ("w", m[0], m[1])) for m in morder]

    def mfmas(p):
        return [(lambda m=m: mm16(acc(*m), wf(p, m[0], m[1]), xf(p, m[2]))) for m in morder]
    gemm_loop(10, 2, mfmas, reads, need, [8, 9, 10, 11, 12, 13], 3, 1, (), hook)

    RM, CS = 16, 32
    e("v_and_b32 v5, 15, v0")
    e("v_lshlrev_b32 v5, 2, v5")
    e("s_lshl_b32 %s, %s, 8", s(sTmp), s(sWM))
    e("s_add_u32 %s, %s, %d", s(sTmp), s(sTmp), AUX)
    e("v_add_u32 v5, %s, v5", s(sTmp))
    for st in range(4):
        e("ds_read_b32 %s, v5 offset:%d", v(RM + 4 * st), st * 64)
        e("ds_read_b32 %s, v5 offset:%d", v(RM + 4 * st + 2), 512 + st * 64)
    e("v_lshrrev_b32 v6, 4, v0")
    e("v_lshlrev_b32 v6, 4, v6")
    e("s_lshl_b32 %s, %s, 8", s(sTmp), s(sWN))
    e("s_add_u32 %s, %s, %d", s(sTmp), s(sTmp), AUX + 1024)
    e("v_add_u32 v6, %s, v6", s(sTmp))
    for ft in range(4):
        for mat in range(2):
            e("ds_read_b128 %s, v6 offset:%d", v(CS + (mat * 4 + ft) * 4, 4), mat * 512 + ft * 64)
    e("s_lshl_b32 %s, %s, 1", s(sFlag), s(sRB))
    e("s_add_u32 %s, %s, %s", s(sFlag), s(sFlag), s(sWM))
    e("s_mul_i32 %s, %s, %d", s(sTmp), s(sFlag), 2 * 48 * 2048)
    e("s_lshl_b32 s3, %s, 2", s(sCG))
    e("s_lshl_b32 %s, %s, 1", s(sCnt), s(sWN))
    e("s_add_u32 s3, s3, %s", s(sCnt))
    e("s_lshl_b32 s3, s3, 11")
    e("s_add_u32 %s, %s, s3", s(sDelta), s(sTmp))
    e("s_lshl_b32 %s, %s, 1", s(sFlag), s(sFlag))
    e("s_add_u32 %s, %s, %s", s(sFlag), s(sFlag), s(sWN))
    e("s_mul_i32 %s, %s, 12", s(sFlag), s(sFlag))
    e("s_add_u32 %s, %s, %s", s(sFlag), s(sFlag), s(sCG))
    e("s_lshl_b32 %s, %s, 7", s(sFlag), s(sFlag))
    e("s_add_u32 %s, %s, 0x%x", s(sFlag), s(sFlag), WS_FH)
    e("v_lshlrev_b32 v5, 4, v0")
    e("s_waitcnt lgkmcnt(4)")
    for st in range(4):
        e("v_mul_f32 %s, %s, %s", v(RM + 4 * st), v(RM + 4 * st), v(RM + 4 * st))
    for ph in range(2):
        if ph == 1:
            e("s_waitcnt lgkmcnt(0)")
        for st in range(4):
            rr, mm_ = RM + 4 * st, RM + 4 * st + 2
            o = 64 + ((ph * 4 + st) & 3) * 4
            for fi in range(2):
                ft = 2 * ph + fi
                g0, u0 = acc(0, ft, st), acc(1, ft, st)
                for k in (0, 2):
                    e("v_pk_fma_f32 %s, %s, %s, %s op_sel_hi:[1,0,1] neg_lo:[0,1,0] neg_hi:[0,1,0]", v(g0 + k, 2), v(CS + ft * 4 + k, 2), v(mm_, 2), v(g0 + k, 2))
                    e("v_pk_fma_f32 %s, %s, %s, %s op_sel_hi:[1,0,1] neg_lo:[0,1,0] neg_hi:[0,1,0]", v(u0 + k, 2), v(CS + 16 + ft * 4 + k, 2), v(mm_, 2), v(u0 + k, 2))
                for k in range(4):
                    e("v_max_f32 %s, 0, %s", v(g0 + k), v(g0 + k))
                for k in (0, 2):
                    e("v_pk_mul_f32 %s, %s, %s op_sel_hi:[1,0]", v(u0 + k, 2), v(u0 + k, 2), v(rr, 2))
                for k in (0, 2):
                    e("v_pk_mul_f32 %s, %s, %s", v(g0 + k, 2), v(g0 + k, 2), v(u0 + k, 2))
                for k in range(2):
                    e("v_cvt_pk_bf16_f32 %s, %s, %s", v(o + 2 * fi + k), v(g0 + 2 * k), v(g0 + 2 * k + 1))
            e("s_add_u32 %s, %s, %d", s(sTmp), s(sDelta), WS_H + (st >> 1) * 48 * 2048 + ph * 2048)
            e("buffer_store_dwordx4 %s, v5, %s, %s offen offset:%d sc1", v(o, 4), s(sWS, 4), s(sTmp), (st & 1) * 1024)
    stamp("c_ep")
    e("s_branch L_p3c")


def p1_dft(njb):
    vXA, vCA, FR, ACC, FC = 8, 12, 16, 80, 176
    e("s_lshl_b32 %s, %s, 12", s(sTmp), s(sW))
    e("v_and_b32 v5, 31, v0")
    e("v_lshlrev_b32 v5, 7, v5")
    e("v_add_u32 v5, %s, v5", s(sTmp))
    e("v_lshrrev_b32 v6, 5, v0")
    e("v_bfe_u32 v7, v0, 1, 3")
    e("v_xor_b32 v6, v6, v7")
    e("v_lshl_add_u32 %s, v6, 4, v5", v(vXA))
    for t in range(1, 4):
        e("v_xor_b32 %s, %d, %s", v(vXA + t), t << 5, v(vXA))
    e("v_lshlrev_b32 %s, 4, v0", v(vCA))
    tab_srd()
    karg_wait([], ["X", "WS", "OUT"])
    p3c_setup()
    for i in range(16 * njb):
        e("v_mov_b32 %s, 0", v(ACC + i))
    e("s_lshl_b32 %s, %s, 2", s(sS2), s(sRB))
    e("s_add_u32 %s, %s, %s", s(sS2), s(sS2), s(sW))
    e("v_and_b32 v5, 31, v0")
    e("v_lshrrev_b32 v6, 5, v0")
    e("v_lshlrev_b32 v6, 8, v6")
    e("v_add_u32 v6, %s, v6", s(sS2))
    e("v_mul_u32_u24 v6, v6, v5")
    for kap in range(2):
        for i2 in range(4):
            for b in range(2):
                i = 2 * i2 + b
                s0 = 16 * kap + 8 * (i >> 2) + (i & 3)
                e("v_mul_u32_u24 v7, %d, v5", 64 * s0)
                e("v_add_u32 v7, v7, v6")
                e("v_and_b32 v7, 0x7ff, v7")
                e("v_cvt_f32_u32 v7, v7")
                e("v_mul_f32 v7, 0x3a000000, v7")
                e("v_cos_f32 %s, v7", v(18 + b))
                e("v_sin_f32 %s, v7", v(16 + b))
            e("s_nop 0")
            e("v_cvt_pk_bf16_f32 %s, v18, v19", v(FC + kap * 4 + i2))
            e("v_cvt_pk_bf16_f32 %s, -v16, -v17", v(FC + 8 + kap * 4 + i2))
    stamp("c_set")

    def xf(p): return FR + p * 28
    def cf(p, tl): return FR + p * 28 + 4 + 4 * tl

    def reads(p, t):
        ops = [lambda: e("ds_read_b128 %s, %s", v(xf(p), 4), v(vXA + t))]
        for tl in range(njb):
            ops.append(lambda tl=tl: e("ds_read_b128 %s, %s offset:%d", v(cf(p, tl), 4), v(vCA), 16384 + (t * njb + tl) * 1024))
        return ops

    def mfmas(p):
        return [(lambda tl=tl: e("v_mfma_f32_32x32x16_bf16 %s, %s, %s, %s", v(ACC + 16 * tl, 16), v(xf(p), 4), v(cf(p, tl), 4), v(ACC + 16 * tl, 16))) for tl in range(njb)]
    gemm_loop(5, 4, mfmas, reads, [2 + tl for tl in range(njb)], [vXA + i for i in range(5)], 0, 2)

    RR, MM = 16, 32
    e("v_lshrrev_b32 v6, 5, v0")
    e("v_lshlrev_b32 v6, 4, v6")
    e("s_lshl_b32 %s, %s, 7", s(sTmp), s(sW))
    e("s_add_u32 %s, %s, %d", s(sTmp), s(sTmp), AUX)
    e("v_add_u32 v6, %s, v6", s(sTmp))
    for jj in range(4):
        e("ds_read_b128 %s, v6 offset:%d", v(RR + 4 * jj, 4), jj * 32)
    if njb == 6:
        for jj in range(4):
            e("ds_read_b128 %s, v6 offset:%d", v(MM + 4 * jj, 4), 512 + jj * 32)
        e("v_and_b32 v7, 31, v0")
        e("v_cmp_eq_u32 vcc, 0, v7")
        e("v_mov_b32 v7, 0")
        e("v_mov_b32 v13, 0x44200000")
        e("v_cndmask_b32 v7, v7, v13, vcc")
    e("v_and_b32 v5, 15, v0")
    e("v_lshlrev_b32 v5, 6, v5")
    e("v_bfe_u32 v6, v0, 4, 1")
    e("v_lshl_add_u32 v5, v6, 5, v5")
    e("v_lshrrev_b32 v6, 5, v0")
    e("v_lshl_add_u32 v5, v6, 4, v5")
    if njb == 6:
        e("s_mov_b32 %s, 0", s(sJB))
    else:
        e("s_cmp_eq_u32 %s, 1", s(sCG))
        e("s_cselect_b32 %s, 12, 11", s(sJB))
        e("s_cmp_eq_u32 %s, 2", s(sCG))
        e("s_cselect_b32 %s, 1, %s", s(sJB), s(sJB))
    e("s_mul_i32 %s, %s, 21", s(sDelta), s(sS2))
    e("s_add_u32 %s, %s, %s", s(sDelta), s(sDelta), s(sJB))
    e("s_lshl_b32 %s, %s, 11", s(sDelta), s(sDelta))
    e("s_add_u32 %s, %s, 0x%x", s(sDelta), s(sDelta), WS_T)
    e("s_waitcnt lgkmcnt(0)")
    PQ, AF = [192, 224], [48, 56]

    def scale_pack(tl):
        a0 = ACC + 16 * tl
        if njb == 6 and tl == 0:
            for i in range(16):
                e("v_fma_f32 %s, -%s, v7, %s", v(a0 + i), v(MM + i), v(a0 + i))
        for i in range(0, 16, 2):
            e("v_pk_mul_f32 %s, %s, %s", v(a0 + i, 2), v(a0 + i, 2), v(RR + i, 2))
        for i in range(8):
            e("v_cvt_pk_bf16_f32 %s, %s, %s", v(AF[tl & 1] + i), v(a0 + 2 * i), v(a0 + 2 * i + 1))

    def stage(tl):
        p0, af = PQ[tl & 1], AF[tl & 1]
        e("s_nop 1")
        for mat in range(2):
            d = p0 + 16 * mat
            e("v_mfma_f32_32x32x16_bf16 %s, %s, %s, 0", v(d, 16), v(af, 4), v(FC + 8 * mat, 4))
            e("v_mfma_f32_32x32x16_bf16 %s, %s, %s, %s", v(d, 16), v(af + 4, 4), v(FC + 8 * mat + 4, 4), v(d, 16))

    def finish(tl):
        p0 = PQ[tl & 1]
        q0 = p0 + 16
        for q in range(2):
            for i in range(4):
                e("v_sub_f32 %s, %s, %s", v(p0 + 8 * q + i), v(p0 + 8 * q + i), v(q0 + 8 * q + 4 + i))
                e("v_add_f32 %s, %s, %s", v(p0 + 8 * q + 4 + i), v(p0 + 8 * q + 4 + i), v(q0 + 8 * q + i))
        for i in range(8):
            e("v_cvt_pk_bf16_f32 %s, %s, %s", v(q0 + i), v(p0 + 2 * i), v(p0 + 2 * i + 1))
        e("s_add_u32 %s, %s, %d", s(sTmp), s(sDelta), tl * 4096)
        e("s_nop 0")
        for i in range(4):
            e("v_permlane16_swap_b32 %s, %s", v(q0 + i), v(q0 + 4 + i))
        for q in range(2):
            e("buffer_store_dwordx4 %s, v5, %s, %s offen offset:%d sc1", v(q0 + 4 * q, 4), s(sWS, 4), s(sTmp), q * 1024)
    scale_pack(0)
    stage(0)
    for tl in range(njb):
        if tl + 1 < njb:
            scale_pack(tl + 1)
            stage(tl + 1)
        else:
            e("s_nop 15")
        finish(tl)
    e("s_lshl_b32 %s, %s, 4", s(sFlag), s(sCG))
    e("s_add_u32 %s, %s, %s", s(sFlag), s(sFlag), s(sRB))
    e("s_lshl_b32 %s, %s, 7", s(sFlag), s(sFlag))
    e("s_add_u32 %s, %s, 0x%x", s(sFlag), s(sFlag), WS_FT)
    e("s_branch L_dft_c")


def mid_k1():
    e("s_and_b32 s3, s2, 7")
    e("s_lshl_b32 %s, s3, 2", s(sK1))
    e("s_bfe_u32 s3, s2, 0x20004")
    e("s_add_u32 %s, %s, s3", s(sK1), s(sK1))
    e("s_bfe_u32 s3, s2, 0x10003")


def mid():
    FC, WV, DF, XA, UA, TW, PD = 64, 128, 16, 160, 192, 40, 48
    vL, vT, vWr, vUo, vP, vTG = 5, 6, 7, 10, 11, 15
    e("v_lshlrev_b32 %s, 4, v0", v(vL))
    e("v_and_b32 v9, 3, v0")
    e("v_add_u32 v12, %d, %s", FI_L, v(vL))
    for n in range(16):
        e("ds_read_b128 %s, %s offset:%d", v(FC + 4 * n, 4), "v12" if n >= 8 else v(vL), (n & 7) * 1024 + (0 if n >= 8 else FR_L))
    for i in range(32):
        e("v_mov_b32 %s, 0", v(WV + i))
    e("v_and_b32 v8, 15, v0")
    e("v_lshrrev_b32 v12, 2, v0")
    e("v_lshlrev_b32 %s, 6, v12", v(vT))
    e("v_lshl_add_u32 %s, v9, 4, %s", v(vT), v(vT))
    e("v_add_u32 %s, %s, %s", v(vT), s(sM0), v(vT))
    e("v_mul_u32_u24 v12, 43008, v12")
    e("v_lshl_add_u32 %s, v9, 4, v12", v(vTG))
    e("v_lshrrev_b32 v9, 4, v0")
    e("v_lshlrev_b32 %s, 6, v8", v(vUo))
    e("v_lshl_add_u32 %s, v9, 4, %s", v(vUo), v(vUo))
    e("v_mul_u32_u24 v12, %d, v9", 4 * 336)
    e("v_lshl_add_u32 v12, v8, 2, v12")
    e("s_add_u32 %s, %s, %s", s(sTmp), s(sMW), s(sPar))
    e("v_add_u32 %s, %s, v12", v(vWr), s(sTmp))
    e("s_waitcnt vmcnt(0) lgkmcnt(0)")
    lab = A.newlabel("L_noft")
    e("s_cmp_lg_u32 %s, 0", s(sW))
    e("s_cbranch_scc1 %s", lab)
    poll_check(PD, 1, vP, WS_FT)
    A.label(lab)
    e("s_barrier")
    stamp("m_B")
    e("s_lshl_b32 %s, %s, 5", s(sCnt), s(sJB))
    e("s_add_u32 %s, %s, %s", s(sCnt), s(sCnt), s(sK1))
    e("s_lshl_b32 %s, %s, 6", s(sCnt), s(sCnt))
    lab = A.newlabel("L_oneT")
    for un in range(2):
        if un == 1:
            e("s_cmp_eq_u32 %s, 1", s(sNU))
            e("s_cbranch_scc1 %s", lab)
        for n in range(4):
            e("s_add_u32 m0, %s, %d", s(sM0), un * (MT1 - MT0) + n * 1024)
            e("s_add_u32 %s, %s, %d", s(sTmp), s(sCnt), WS_T + un * 2048 + n * 16 * 43008)
            e("buffer_load_dwordx4 %s, %s, %s offen sc1 lds", v(vTG), s(sWS, 4), s(sTmp))
    A.label(lab)
    e("s_waitcnt vmcnt(0)")
    stamp("m_T")
    top = A.newlabel("L_unit")
    A.label(top)
    for ri in range(2):
        for kap in range(2):
            for rd in range(2):
                e("ds_read_b64_tr_b16 %s, %s offset:%d", v(DF + 8 * ri + 4 * kap + 2 * rd, 2), v(vT), kap * 2048 + rd * 1024 + ri * 8)
    e("s_waitcnt lgkmcnt(0)")
    for i in range(8):
        e("v_xor_b32 %s, 0x80008000, %s", v(DF + 16 + i), v(DF + 8 + i))

    def F(ri, t, kap): return FC + ((ri * 4 + t) * 2 + kap) * 4
    wreads = [(arr, mt, i) for mt in range(4) for i in range(4) for arr in range(2)]

    def wr():
        arr, mt, i = wreads.pop(0)
        e("ds_read_u16_d16_hi %s, %s offset:%d", v(WV + arr * 16 + 4 * mt + i), v(vWr), arr * MWA + (16 * mt + i) * 336)
    Tre, Tim, Tni = DF, DF + 8, DF + 16
    for mt in range(4):
        xr, xi = XA + 4 * mt, XA + 16 + 4 * mt
        for kap in range(2):
            mm16(xr, F(0, mt, kap), Tre + 4 * kap, kap == 0); wr()
            mm16(xi, F(1, mt, kap), Tre + 4 * kap, kap == 0); wr()
        for kap in range(2):
            mm16(xr, F(1, mt, kap), Tni + 4 * kap); wr()
            mm16(xi, F(0, mt, kap), Tim + 4 * kap); wr()
    e("s_waitcnt lgkmcnt(0)")
    e("s_nop 5")
    for n in range(0, 16, 2):
        xr, xi, w_r, w_i = XA + n, XA + 16 + n, WV + n, WV + 16 + n
        e("v_pk_mul_f32 %s, %s, %s", v(UA + n, 2), v(xr, 2), v(w_r, 2))
        e("v_pk_mul_f32 %s, %s, %s", v(UA + 16 + n, 2), v(xr, 2), v(w_i, 2))
        e("v_pk_fma_f32 %s, %s, %s, %s neg_lo:[1,0,0] neg_hi:[1,0,0]", v(UA + n, 2), v(xi, 2), v(w_i, 2), v(UA + n, 2))
        e("v_pk_fma_f32 %s, %s, %s, %s", v(UA + 16 + n, 2), v(xi, 2), v(w_r, 2), v(UA + 16 + n, 2))
    Yre, Yim, Ynr = DF, DF + 8, DF + 16
    for n in range(8):
        e("v_cvt_pk_bf16_f32 %s, %s, %s", v(Yre + n), v(UA + 2 * n), v(UA + 2 * n + 1))
        e("v_cvt_pk_bf16_f32 %s, %s, %s", v(Yim + n), v(UA + 16 + 2 * n), v(UA + 16 + 2 * n + 1))
        e("v_xor_b32 %s, 0x80008000, %s", v(Ynr + n), v(Yre + n))
    e("s_nop 1")
    for nt in range(4):
        ur, ui = UA + 4 * nt, UA + 16 + 4 * nt
        for kap in range(2):
            mm16(ur, Yre + 4 * kap, F(0, nt, kap), kap == 0)
            mm16(ui, Yim + 4 * kap, F(0, nt, kap), kap == 0)
        for kap in range(2):
            mm16(ur, Yim + 4 * kap, F(1, nt, kap))
            mm16(ui, Ynr + 4 * kap, F(1, nt, kap))
    e("s_mul_i32 %s, %s, 21", s(sDelta), s(sK1))
    e("s_add_u32 %s, %s, %s", s(sDelta), s(sDelta), s(sJB))
    e("s_lshl_b32 %s, %s, 12", s(sDelta), s(sDelta))
    e("s_add_u32 %s, %s, 0x%x", s(sDelta), s(sDelta), WS_U)
    for nt in range(4):
        ur, ui, pk = UA + 4 * nt, UA + 16 + 4 * nt, 224 + 4 * nt
        if nt == 2:
            e("s_nop 1")
        e("v_cvt_pk_bf16_f32 %s, %s, %s", v(pk), v(ur), v(ur + 1))
        e("v_cvt_pk_bf16_f32 %s, %s, %s", v(pk + 1), v(ur + 2), v(ur + 3))
        e("v_cvt_pk_bf16_f32 %s, %s, %s", v(pk + 2), v(ui), v(ui + 1))
        e("v_cvt_pk_bf16_f32 %s, %s, %s", v(pk + 3), v(ui + 2), v(ui + 3))
        e("buffer_store_dwordx4 %s, %s, %s, %s offen offset:%d sc1", v(pk, 4), v(vUo), s(sWS, 4), s(sDelta), nt * 1024)
    done = A.newlabel("L_unitd")
    e("s_cmp_eq_u32 %s, 2", s(sNU))
    e("s_cbranch_scc0 %s", done)
    stamp("m_u1")
    e("s_mov_b32 %s, 3", s(sNU))
    e("s_add_u32 %s, %s, 1", s(sJB), s(sJB))
    e("v_add_u32 %s, 2, %s", v(vWr), v(vWr))
    e("v_add_u32 %s, %d, %s", v(vT), MT1 - MT0, v(vT))
    e("s_branch %s", top)
    A.label(done)


hdr = open("cdna_kernels/%s.s.ref" % NAME).read().split("; Override launch")[0]
A(hdr.rstrip())
A("; @launch grid=(256,1,1) block=(512,1,1) lds=%d" % LDS_ALL)
A('.amdgcn_target "amdgcn-amd-amdhsa--gfx950"')
KN = NAME + "_kernel"
kernel_header(A, KN)
stamp("start")
if STAMPS:
    for i in range(1, 9):
        e("s_mov_b32 %s, 0", s(84 + 2 * i))
e("s_cmp_ge_u32 s2, 256")
e("s_cbranch_scc1 L_end")
e("s_load_dwordx16 %s, s[0:1], 0", s(P, 16))
e("s_load_dwordx4 %s, s[0:1], 64", s(P + 16, 4))
e("v_lshrrev_b32 v1, 6, v0")
e("v_and_b32 v0, 63, v0")
e("v_readfirstlane_b32 %s, v1", s(sW))
e("s_and_b32 s3, s2, 1")
e("s_lshl_b32 %s, s3, 3", s(sRB))
e("s_bfe_u32 s3, s2, 0x30003")
e("s_add_u32 %s, %s, s3", s(sRB), s(sRB))
e("s_lshr_b32 %s, s2, 6", s(sTmp2))
e("s_bfe_u32 s3, s2, 0x20001")
e("s_mul_i32 %s, s3, 3", s(sCG))
e("s_add_u32 %s, %s, %s", s(sCG), s(sCG), s(sTmp2))
e("s_and_b32 %s, %s, 3", s(sLW), s(sW))
e("s_cmp_eq_u32 %s, 3", s(sTmp2))
e("s_cbranch_scc1 L_dft")
e("s_cmp_ge_u32 %s, 4", s(sW))
e("s_cbranch_scc0 L_ffn_c")
ffn_loader()
A.label("L_ffn_c")
p1_ffn()
A.label("L_dft")
e("s_mov_b32 %s, s3", s(sCG))
e("s_cmp_eq_u32 s3, 0")
e("s_cbranch_scc1 L_dft6")
for njb in (5, 6):
    if njb == 6:
        A.label("L_dft6")
    e("s_cmp_ge_u32 %s, 4", s(sW))
    e("s_cbranch_scc0 L_dft%d_c", njb)
    dft_loader(njb)
    A.label("L_dft%d_c" % njb)
    p1_dft(njb)

A.label("L_dft_c")
stamp("dc_ep")
e("s_waitcnt vmcnt(0)")
stamp("dc_st")
e("s_barrier")
e("s_cmp_lg_u32 %s, 0", s(sW))
e("s_cbranch_scc1 L_noft")
flag_store(sFlag, 12, 13)
e("v_lshlrev_b32 v11, 7, v0")
poll_issue(48, 1, 11, WS_FT)
A.label("L_noft")
mid_k1()
e("s_mul_i32 %s, s3, 14", s(sMW))
e("s_lshl_b32 %s, %s, 6", s(sTmp), s(sW))
e("s_add_u32 %s, %s, %s", s(sMW), s(sMW), s(sTmp))
e("s_add_u32 %s, %s, %d", s(sMW), s(sMW), MW0)
e("s_mul_i32 s3, s3, 5")
e("s_add_u32 s3, s3, %s", s(sW))
e("s_lshl_b32 %s, s3, 1", s(sJB))
e("s_mov_b32 %s, 0", s(sPar))
e("s_mov_b32 %s, 2", s(sNU))
e("s_lshl_b32 %s, %s, 12", s(sM0), s(sW))
e("s_branch L_mid")

A.label("L_dft_l")
mid_k1()
e("s_add_u32 %s, s3, 2", s(sTmp))
e("s_cmp_ge_u32 %s, %s", s(sLW), s(sTmp))
e("s_cbranch_scc1 L_dft_l3")
e("s_mul_i32 %s, s3, 14", s(sMW))
e("s_add_u32 %s, %s, %d", s(sMW), s(sMW), MW0 + 256)
e("s_mul_i32 s3, s3, 10")
e("s_add_u32 s3, s3, 8")
e("s_add_u32 %s, s3, %s", s(sJB), s(sLW))
e("s_lshl_b32 %s, %s, 1", s(sPar), s(sLW))
e("s_cmp_eq_u32 %s, 2", s(sLW))
e("s_cselect_b32 %s, 64, %s", s(sPar), s(sPar))
e("s_mov_b32 %s, 1", s(sNU))
e("s_lshl_b32 %s, %s, 12", s(sM0), s(sLW))
e("s_add_u32 %s, %s, %d", s(sM0), s(sM0), MTL)
A.label("L_mid")
mid()
stamp("m_end")
e("s_waitcnt vmcnt(0)")
stamp("m_st")
e("s_barrier")
e("s_cmp_ge_u32 %s, 4", s(sW))
e("s_cbranch_scc1 L_dft_l2")
e("s_cmp_lg_u32 %s, 0", s(sW))
e("s_cbranch_scc1 L_nofu")
e("s_lshl_b32 %s, s2, 7", s(sFlag))
e("s_add_u32 %s, %s, %d", s(sFlag), s(sFlag), WS_FU - 192 * 128)
flag_store(sFlag, 12, 13)
A.label("L_nofu")
A.label("L_p3c")
p3c()
e("s_branch L_fin")

A.label("L_dft_l3")
e("s_waitcnt vmcnt(0)")
for i in range(2):
    e("s_barrier")
A.label("L_dft_l2")
e("v_lshlrev_b32 v5, 4, v0")
for z in range(6):
    z_ci_loads(z, 5)
z_gconst()
fu_poll_issue()
A.label("L_zpart")
zpart()
A.label("L_fin")
if STAMPS:
    stamp("issued_out")
    e("s_waitcnt vmcnt(0)")
    e("%s s[100:101]", "s_memtime" if "--cyc" in sys.argv else "s_memrealtime")
    e("s_waitcnt lgkmcnt(0)")
    for i in range(9):
        e("v_mov_b32 %s, %s", v(16 + i), s(84 + 2 * i))
    e("s_lshl_b32 s3, s2, 3")
    e("s_add_u32 s3, s3, %s", s(sW))
    e("s_lshl_b32 s3, s3, 6")
    e("s_add_u32 s3, s3, 0x%x", WS_STAMP)
    e("v_mov_b32 v5, 0")
    for i in range(3):
        e("buffer_store_dwordx4 %s, v5, %s, s3 offen offset:%d", v(16 + 4 * i, 4), s(sWS, 4), 16 * i)
A.label("L_end")
e("s_endpgm")

kernel_desc(A, KN, 256, accum=256)
TB.emit_tables(A)
out = [x for x in sys.argv[1:] if not x.startswith("--")]
open(out[0] if out else "v11.s", "w").write(A.text())
```

```python
import sys
from asmlib import *
import tables9 as TB

NAME = "parallel_sum__spectral_gfnet__glu_gated_reglu__prompt"
A = Asm()
e = A.e


def opt(name, default):
    for x in sys.argv:
        if x.startswith("--%s=" % name):
            return int(x.split("=")[1])
    return default


STAMPS = "--stamps" in sys.argv
SLEEP = opt("sleep", 4)
ROTA, ROTB = opt("rota", 1), opt("rotb", 3)
CIP1 = opt("cip1", 0)
DROT = opt("drot", 1)
WSP = opt("wsp", 0)
PRL = opt("prl", 0)
WARM = opt("warm", 2)
FOLD = opt("fold", 1)
NFIX = opt("nfix", 2)

WS_EP = 0x0000
WS_FS = 0x1000
WS_FSC = WS_FS + 128 * 128
WS_FT = 0xC000
WS_FU = 0xE000
WS_FH = 0x10000
WS_FW = 0x2C000
WS_STAT = 0x28000
WS_CSP = 0x30000
WS_H = 0x60000
WS_T = 0x660000
WS_U = 0x900000
WS_WD = 0xBA0000
WS_STAMP = 0x2000000

SLAB = 49152
AUX = 3 * SLAB
ZU0, ZUS = 0, 16384
CP0 = 65536
LGO = AUX + 2048
FR_L, FI_L = 40960, AUX + 2048 + 128
MW0, MWA = 98304, 22272
MT0, MT1, MTL = 0, 16384, 49152
RPK = FI_L
LDS_ALL = FI_L + 12288

sX, sG, sU, sWS, sTAB, sWR, sWI, sWD, sOUT = 8, 12, 16, 20, 24, 28, 32, 36, 40
sW, sRB, sCG, sLW = 44, 45, 46, 47
sTmp, sTmp2, sCnt, sDelta, sBuf, sSLAB = 48, 49, 50, 51, 52, 53
sAoff, sBoff, sM0 = 54, 55, 56
sWM, sWN, sFlag = 57, 58, 59
sK1, sJB, sTAG, sSpin = 60, 61, 62, 63
P = 64
sP, sG3, sHo, sWo, sUo, sCo, sLB, sLB2, sOo, sOc, sOOB = 64, 65, 66, 67, 68, 69, 70, 71, 72, 73, 74
sSgn, sS2, sNU, sWcol, sPar = 76, 78, 79, 80, 81
sWa, sWb, sWc, sMW = 6, 7, 75, 80
SRDS = {"X": (sX, P, 2048 * 1280), "WR": (sWR, P + 2, 2048 * 642), "WI": (sWI, P + 4, 2048 * 642),
        "G": (sG, P + 8, 640 * 3072), "U": (sU, P + 10, 640 * 3072), "WD": (sWD, P + 12, 1536 * 1280),
        "OUT": (sOUT, P + 14, 2048 * 1280), "WS": (sWS, P + 18, 1 << 28)}


class VQ:
    def __init__(self):
        self.q = []
    def issue(self, tag, n=1):
        self.q += [tag] * n
    def wait(self, *tags, extra=""):
        last = max([i for i, t in enumerate(self.q) if t in tags], default=-1)
        n = len(self.q) - 1 - last
        assert n <= 63, n
        e("s_waitcnt vmcnt(%d)%s", n, extra)
        self.q = self.q[last + 1:]
    def drain(self):
        self.q = []


STN = {}
for x in sys.argv:
    if x.startswith("--st="):
        for i_, grp in enumerate(x[5:].split(",")):
            for nm in grp.split("+"):
                STN[nm] = i_ + 1
STN["start"] = 0


def cap(fn):
    keep, A.lines = A.lines, []
    fn()
    out, A.lines = A.lines, keep
    return out


def weave(main, groups, skip=0):
    n = len(groups)
    step = (len(main) - skip) / (n + 0.001) if n else 0
    k = 0
    for i, ln in enumerate(main):
        while k < n and i >= skip + k * step:
            A.lines += groups[k]
            k += 1
        A.lines.append(ln)
    while k < n:
        A.lines += groups[k]
        k += 1


def stamp(nm):
    if STAMPS and nm in STN:
        e("%s %s", "s_memtime" if "--cyc" in sys.argv else "s_memrealtime", s(84 + 2 * STN[nm], 2))


def make_tag():
    e("s_mul_i32 %s, %s, 0x9E3779B1", s(sTAG), s(sTAG))
    e("s_add_u32 %s, %s, 0x7F4A7C15", s(sTAG), s(sTAG))


def flag_store(soff, t0, t1):
    e("v_mov_b32 %s, %s", v(t0), s(sTAG))
    e("v_mov_b32 %s, 0", v(t1))
    e("s_mov_b64 exec, 1")
    e("buffer_store_dword %s, %s, %s, %s offen sc1", v(t0), v(t1), s(sWS, 4), s(soff))
    e("s_mov_b64 exec, -1")


def poll_issue(dst, n, vaddr, base):
    e("s_mov_b32 %s, 0x%x", s(sTmp), base)
    e("buffer_load_dword%s %s, %s, %s, %s offen sc1", "" if n == 1 else "x%d" % n, v(dst, n), v(vaddr), s(sWS, 4), s(sTmp))


def poll_check(dst, n, vaddr, base):
    top, done = A.newlabel("L_poll"), A.newlabel("L_polld")
    e("s_mov_b32 %s, 0", s(sSpin))
    A.label(top)
    e("v_cmp_ne_u32 vcc, %s, %s", s(sTAG), v(dst))
    for i in range(1, n):
        e("v_cmp_ne_u32 s[4:5], %s, %s", s(sTAG), v(dst + i))
        e("s_or_b64 vcc, vcc, s[4:5]")
    e("s_cmp_eq_u64 vcc, 0")
    e("s_cbranch_scc1 %s", done)
    e("s_add_u32 %s, %s, 1", s(sSpin), s(sSpin))
    e("s_cmp_ge_u32 %s, 40000", s(sSpin))
    e("s_cbranch_scc1 %s", done)
    if SLEEP:
        e("s_sleep %d", SLEEP)
    poll_issue(dst, n, vaddr, base)
    e("s_waitcnt vmcnt(0)")
    e("s_branch %s", top)
    A.label(done)


def karg_wait(first, rest=()):
    e("s_waitcnt lgkmcnt(0)")
    for k in first:
        srd(A, *SRDS[k])
    e("s_load_dword %s, %s, 0x%x", s(sTAG), s(P + 18, 2), WS_EP)
    for k in rest:
        srd(A, *SRDS[k])


def tab_srd():
    e("s_getpc_b64 s[4:5]")
    e("s_add_u32 s4, s4, dft_tables@rel32@lo+4")
    e("s_addc_u32 s5, s5, dft_tables@rel32@hi+12")
    srd(A, sTAB, 4, TB.TAB_BYTES)


def dpp_sum16(r_):
    for ctl in ("quad_perm:[1,0,3,2]", "quad_perm:[2,3,0,1]", "row_half_mirror", "row_mirror"):
        e("s_nop 1")
        e("v_add_f32_dpp %s, %s, %s %s row_mask:0xf bank_mask:0xf", v(r_), v(r_), v(r_), ctl)


def round_bf16(r_):
    e("v_cvt_pk_bf16_f32 %s, %s, %s", v(r_), v(r_), v(r_))
    e("v_and_b32 %s, 0xffff0000, %s", v(r_), v(r_))


def mm16(d, a_, b_, first=False):
    e("v_mfma_f32_16x16x32_bf16 %s, %s, %s, %s", v(d, 4), v(a_, 4), v(b_, 4), "0" if first else v(d, 4))


def stats_addr(R):
    e("s_lshl_b32 %s, %s, 2", s(sTmp), s(sCG))
    e("s_add_u32 %s, %s, %s", s(sTmp), s(sTmp), s(sW))
    e("s_lshl_b32 %s, %s, 2", s(sTmp), s(sTmp))
    e("v_lshrrev_b32 %s, 4, v0", v(R + 20))
    e("v_add_u32 %s, %s, %s", v(R + 21), s(sTmp), v(R + 20))
    e("v_and_b32 %s, 31, %s", v(R + 20), v(R + 21))
    e("v_lshlrev_b32 %s, 6, %s", v(R + 20), v(R + 20))
    e("v_lshrrev_b32 %s, 5, %s", v(R + 22), v(R + 21))
    e("v_add_u32 %s, %s, %s", v(R + 20), v(R + 20), v(R + 22))
    e("s_lshl_b32 %s, %s, 2", s(sTmp), s(sRB))
    e("v_add_u32 %s, %s, %s", v(R + 20), s(sTmp), v(R + 20))
    e("v_mul_u32_u24 %s, 1280, %s", v(R + 20), v(R + 20))
    e("v_and_b32 %s, 15, v0", v(R + 22))
    e("v_lshl_add_u32 %s, %s, 4, %s", v(R + 20), v(R + 22), v(R + 20))


def stats_issue(R):
    for n in range(5):
        e("buffer_load_dwordx4 %s, %s, %s, 0 offen offset:%d", v(R + 4 * n, 4), v(R + 20), s(sX, 4), n * 256)


def stats_compute(R):
    F = R + 24
    S_, V_, T_ = R + 64, R + 66, R + 22
    for n in range(20):
        e("v_lshlrev_b32 %s, 16, %s", v(F + 2 * n), v(R + n))
        e("v_and_b32 %s, 0xffff0000, %s", v(F + 2 * n + 1), v(R + n))
    e("v_pk_add_f32 %s, %s, %s", v(S_, 2), v(F, 2), v(F + 2, 2))
    for n in range(2, 20):
        e("v_pk_add_f32 %s, %s, %s", v(S_, 2), v(S_, 2), v(F + 2 * n, 2))
    e("v_add_f32 %s, %s, %s", v(S_), v(S_), v(S_ + 1))
    dpp_sum16(S_)
    e("v_mul_f32 %s, 0x3acccccd, %s", v(S_), v(S_))
    for n in range(20):
        e("v_pk_add_f32 %s, %s, %s op_sel_hi:[1,0] neg_lo:[0,1] neg_hi:[0,1]", v(F + 2 * n, 2), v(F + 2 * n, 2), v(S_, 2))
    e("v_pk_mul_f32 %s, %s, %s", v(V_, 2), v(F, 2), v(F, 2))
    for n in range(1, 20):
        e("v_pk_fma_f32 %s, %s, %s, %s", v(V_, 2), v(F + 2 * n, 2), v(F + 2 * n, 2), v(V_, 2))
    e("v_add_f32 %s, %s, %s", v(V_), v(V_), v(V_ + 1))
    dpp_sum16(V_)
    e("v_mul_f32 %s, 0x3acccccd, %s", v(V_), v(V_))
    round_bf16(V_)
    e("v_add_f32 %s, 0x3727c5ac, %s", v(V_), v(V_))
    round_bf16(V_)
    e("v_sqrt_f32 %s, %s", v(V_), v(V_))
    e("s_nop 0")
    round_bf16(V_)
    e("v_rcp_f32 %s, %s", v(V_), v(V_))
    round_bf16(S_)
    e("v_and_b32 %s, 15, v0", v(T_))
    e("v_cmp_eq_u32 vcc, 1, %s", v(T_))
    e("v_lshlrev_b32 %s, 2, %s", v(R + 1), v(R + 21))
    e("v_lshl_add_u32 %s, %s, 9, %s", v(R + 1), v(T_), v(R + 1))
    e("v_cndmask_b32 %s, %s, %s, vcc", v(V_), v(V_), v(S_))
    e("v_cmp_gt_u32 vcc, 2, %s", v(T_))
    e("s_lshl_b32 %s, %s, 10", s(sTmp), s(sRB))
    e("s_add_u32 %s, %s, 0x%x", s(sTmp), s(sTmp), WS_STAT)
    e("s_and_saveexec_b64 s[4:5], vcc")
    e("buffer_store_dword %s, %s, %s, %s offen sc1", v(V_), v(R + 1), s(sWS, 4), s(sTmp))
    e("s_mov_b64 exec, s[4:5]")


def cols_issue(R):
    e("v_lshrrev_b32 %s, 3, v0", v(R + 20))
    e("v_mul_u32_u24 %s, 3072, %s", v(R + 20), v(R + 20))
    e("v_and_b32 %s, 7, v0", v(R + 21))
    e("v_lshl_add_u32 %s, %s, 4, %s", v(R + 20), v(R + 21), v(R + 20))
    e("s_mul_i32 %s, %s, %d", s(sTmp), s(sRB), 40 * 3072)
    e("s_lshl_b32 %s, %s, 8", s(sTmp2), s(sCG))
    e("s_add_u32 %s, %s, %s", s(sTmp), s(sTmp), s(sTmp2))
    e("s_and_b32 %s, %s, 1", s(sTmp2), s(sLW))
    e("s_lshl_b32 %s, %s, 7", s(sTmp2), s(sTmp2))
    e("s_add_u32 %s, %s, %s", s(sTmp), s(sTmp), s(sTmp2))
    lab, lab2 = A.newlabel("L_csu"), A.newlabel("L_csd")
    e("s_cmp_ge_u32 %s, 2", s(sLW))
    e("s_cbranch_scc1 %s", lab)
    for mat in range(2):
        if mat == 1:
            e("s_branch %s", lab2)
            A.label(lab)
        for n in range(5):
            e("buffer_load_dwordx4 %s, %s, %s, %s offen", v(R + 4 * n, 4), v(R + 20), s(sU if mat else sG, 4), s(sTmp))
            if n < 4:
                e("s_add_u32 %s, %s, %d", s(sTmp), s(sTmp), 8 * 3072)
    A.label(lab2)


def cols_compute(R):
    C_, T_ = R + 24, R + 32
    for n in range(5):
        D_ = C_ if n == 0 else T_
        for d in range(4):
            e("v_lshlrev_b32 %s, 16, %s", v(D_ + 2 * d), v(R + 4 * n + d))
            e("v_and_b32 %s, 0xffff0000, %s", v(D_ + 2 * d + 1), v(R + 4 * n + d))
        if n:
            for d in range(4):
                e("v_pk_add_f32 %s, %s, %s", v(C_ + 2 * d, 2), v(C_ + 2 * d, 2), v(T_ + 2 * d, 2))
    e("s_nop 1")
    for i in range(8):
        e("v_add_f32_dpp %s, %s, %s row_ror:8 row_mask:0xf bank_mask:0xf", v(C_ + i), v(C_ + i), v(C_ + i))
    for op in ("v_permlane16_swap_b32", "v_permlane32_swap_b32"):
        for i in range(8):
            e("v_mov_b32 %s, %s", v(T_ + i), v(C_ + i))
        for i in range(8):
            e("%s %s, %s", op, v(C_ + i), v(T_ + i))
        for i in range(8):
            e("v_add_f32 %s, %s, %s", v(C_ + i), v(C_ + i), v(T_ + i))


def cols_store(R):
    C_, T_ = R + 24, R + 32
    e("v_cmp_gt_u32 vcc, 8, v0")
    e("s_mul_i32 %s, %s, 12288", s(sTmp), s(sRB))
    e("s_lshl_b32 %s, %s, 10", s(sTmp2), s(sCG))
    for i in range(4):
        e("v_cndmask_b32 %s, %s, %s, vcc", v(C_ + i), v(C_ + 4 + i), v(C_ + i))
    e("s_add_u32 %s, %s, %s", s(sTmp), s(sTmp), s(sTmp2))
    e("s_lshl_b32 %s, %s, 8", s(sTmp2), s(sLW))
    e("s_add_u32 %s, %s, %s", s(sTmp), s(sTmp), s(sTmp2))
    e("s_add_u32 %s, %s, 0x%x", s(sTmp), s(sTmp), WS_CSP)
    e("v_and_b32 %s, 7, v0", v(T_))
    e("v_lshlrev_b32 %s, 5, %s", v(T_), v(T_))
    e("v_bfe_u32 %s, v0, 3, 1", v(T_ + 1))
    e("v_lshl_add_u32 %s, %s, 4, %s", v(T_), v(T_ + 1), v(T_))
    e("v_cmp_gt_u32 vcc, 16, v0")
    e("s_and_saveexec_b64 s[4:5], vcc")
    e("buffer_store_dwordx4 %s, %s, %s, %s offen sc1", v(C_, 4), v(T_), s(sWS, 4), s(sTmp))
    e("s_mov_b64 exec, s[4:5]")


def aux_poll_addr(ffn, dst):
    e("s_lshl_b32 %s, %s, 2", s(sTmp), s(sRB))
    e("s_add_u32 %s, %s, %s", s(sTmp), s(sTmp), s(sLW))
    e("s_lshl_b32 %s, %s, 1", s(sTmp), s(sTmp))
    e("v_and_b32 v6, 1, v0")
    e("v_add_u32 v6, %s, v6", s(sTmp))
    if ffn:
        e("s_and_b32 %s, s2, 0xc6", s(sTmp))
        e("s_add_u32 %s, %s, 128", s(sTmp), s(sTmp))
        e("v_and_b32 v7, 7, v0")
        e("v_lshlrev_b32 v7, 3, v7")
        e("v_bfe_u32 v12, v0, 3, 1")
        e("v_add3_u32 v7, v7, v12, %s", s(sTmp))
        e("v_cmp_gt_u32 vcc, 16, v0")
        e("s_nop 1")
        e("v_cndmask_b32 v6, v7, v6, vcc")
    e("v_lshlrev_b32 %s, 7, v6", v(dst))


def fw_poll_addr(dst):
    e("s_lshl_b32 %s, %s, 6", s(sTmp), s(sLW))
    e("v_add_u32 %s, %s, v0", v(dst), s(sTmp))
    e("v_min_u32 %s, 159, %s", v(dst), v(dst))
    e("v_lshlrev_b32 %s, 7, %s", v(dst), v(dst))


def aux_issue(ffn, R):
    e("v_and_b32 %s, 31, v0", v(R))
    e("v_lshrrev_b32 %s, 5, v0", v(R + 1))
    e("v_lshlrev_b32 %s, 2, %s", v(R), v(R))
    e("v_lshl_add_u32 %s, %s, 9, %s", v(R), v(R + 1), v(R))
    e("s_lshl_b32 %s, %s, 7", s(sTmp), s(sLW))
    e("v_add_u32 %s, %s, %s", v(R), s(sTmp), v(R))
    e("s_lshl_b32 %s, %s, 10", s(sTmp), s(sRB))
    e("s_add_u32 %s, %s, 0x%x", s(sTmp), s(sTmp), WS_STAT)
    e("buffer_load_dword %s, %s, %s, %s offen sc1", v(R + 2), v(R), s(sWS, 4), s(sTmp))
    if ffn:
        e("v_lshrrev_b32 %s, 4, v0", v(R + 1))
        e("v_mul_u32_u24 %s, 12288, %s", v(R + 1), v(R + 1))
        e("v_and_b32 %s, 15, v0", v(R + 3))
        e("v_lshl_add_u32 %s, %s, 4, %s", v(R + 1), v(R + 3), v(R + 1))
        e("s_lshl_b32 %s, %s, 8", s(sTmp), s(sLW))
        e("s_lshl_b32 %s, %s, 10", s(sTmp2), s(sCG))
        e("s_add_u32 %s, %s, %s", s(sTmp), s(sTmp), s(sTmp2))
        e("s_add_u32 %s, %s, 0x%x", s(sTmp), s(sTmp), WS_CSP)
        for n in range(4):
            e("buffer_load_dwordx4 %s, %s, %s, %s offen sc1", v(R + 4 + 4 * n, 4), v(R + 1), s(sWS, 4), s(sTmp))
            if n < 3:
                e("s_add_u32 %s, %s, %d", s(sTmp), s(sTmp), 4 * 12288)


def aux_finish(ffn, R):
    e("v_add_u32 %s, %d, %s", v(R), AUX, v(R))
    e("ds_write_b32 %s, %s", v(R), v(R + 2))
    if ffn:
        C_, T_ = R + 4, R + 8
        for n in range(1, 4):
            for k in (0, 2):
                e("v_pk_add_f32 %s, %s, %s", v(C_ + k, 2), v(C_ + k, 2), v(C_ + 4 * n + k, 2))
        for op in ("v_permlane16_swap_b32", "v_permlane32_swap_b32"):
            for i in range(4):
                e("v_mov_b32 %s, %s", v(T_ + i), v(C_ + i))
            e("s_nop 0")
            for i in range(4):
                e("%s %s, %s", op, v(C_ + i), v(T_ + i))
            e("s_nop 0")
            for i in range(4):
                e("v_add_f32 %s, %s, %s", v(C_ + i), v(C_ + i), v(T_ + i))
        e("s_lshl_b32 %s, %s, 8", s(sTmp), s(sLW))
        e("s_add_u32 %s, %s, %d", s(sTmp), s(sTmp), AUX + 1024)
        e("v_lshl_add_u32 %s, %s, 4, %s", v(R + 1), v(R + 3), s(sTmp))
        e("ds_write_b128 %s, %s", v(R + 1), v(C_, 4))
    e("s_waitcnt lgkmcnt(0)")


def p3_map():
    e("s_and_b32 s3, s2, 7")
    e("s_lshr_b32 %s, s2, 3", s(sTmp))
    e("s_lshr_b32 %s, s3, 1", s(sP))
    e("s_lshl_b32 %s, %s, 3", s(sP), s(sP))
    e("s_and_b32 %s, %s, 7", s(sTmp2), s(sTmp))
    e("s_add_u32 %s, %s, %s", s(sP), s(sP), s(sTmp2))
    e("s_and_b32 s3, s3, 1")
    e("s_lshl_b32 s3, s3, 2")
    e("s_lshr_b32 %s, %s, 3", s(sTmp), s(sTmp))
    e("s_add_u32 %s, s3, %s", s(sG3), s(sTmp))


ZG, ZC, ZA = 64, 128, 200


def z_setup():
    p3_map()
    e("s_mul_i32 %s, %s, %d", s(sLB), s(sLW), ZUS)
    e("s_lshl_b32 %s, %s, 7", s(sUo), s(sP))
    e("s_lshl_b32 %s, %s, 12", s(sTmp), s(sLW))
    e("s_add_u32 %s, %s, %s", s(sUo), s(sUo), s(sTmp))
    e("s_add_u32 %s, %s, 0x%x", s(sUo), s(sUo), WS_U)
    e("s_mul_i32 %s, %s, 21", s(sCo), s(sG3))
    e("s_add_u32 %s, %s, %s", s(sCo), s(sCo), s(sLW))
    e("s_mul_i32 %s, %s, 3072", s(sCo), s(sCo))
    e("s_add_u32 %s, %s, %d", s(sCo), s(sCo), TB.CI_OFF)
    e("s_cmp_eq_u32 %s, 0", s(sLW))
    e("s_cselect_b32 %s, 0, 0x20000000", s(sOOB))
    e("s_lshl_b32 %s, %s, 1", s(sS2), s(sP))


def z_ci_loads(z, vL):
    e("s_add_u32 %s, %s, %d", s(sTmp), s(sCo), z * 4 * 3072)
    if z == 5:
        e("s_add_u32 %s, %s, %s", s(sTmp), s(sTmp), s(sOOB))
    for c3 in range(3):
        e("buffer_load_dwordx4 %s, %s, %s, %s offen offset:%d", v(ZC + z * 12 + c3 * 4, 4), v(vL), s(sTAB, 4), s(sTmp), c3 * 1024)


def ZGr(u, ro, nh, kap): return ZG + (((u * 2 + ro) * 2 + nh) * 2 + kap) * 4


def z_gconst():
    e("v_and_b32 v56, 15, v0")
    e("v_lshlrev_b32 v56, 6, v56")
    e("v_add_u32 v56, %s, v56", s(sS2))
    e("v_cvt_f32_u32 v56, v56")
    e("v_mul_f32 v56, 0x3a000000, v56")
    e("v_lshrrev_b32 v57, 5, v0")
    e("v_lshlrev_b32 v57, 3, v57")
    e("v_cvt_f32_u32 v57, v57")
    e("v_bfe_u32 v58, v0, 4, 1")
    e("v_cvt_f32_u32 v58, v58")
    e("v_mul_f32 v58, 0x3e800000, v58")
    for u in range(2):
        if u:
            e("v_add_f32 v56, 0x3a000000, v56")
        for kap in range(2):
            if kap:
                e("v_add_f32 v59, 0x41800000, v57")
                e("v_fma_f32 v59, v59, v56, v58")
            else:
                e("v_fma_f32 v59, v57, v56, v58")
            for ro in range(2):
                if ro:
                    e("v_add_f32 v60, 0xbe800000, v59")
                else:
                    e("v_mov_b32 v60, v59")
                for i2 in range(4):
                    e("v_cos_f32 v61, v60")
                    e("v_add_f32 v60, v60, v56")
                    e("v_cos_f32 v62, v60")
                    e("v_add_f32 v60, v60, v56")
                    b = ZGr(u, ro, 0, kap) + i2
                    e("v_cvt_pk_bf16_f32 %s, v61, v62", v(b))
                    e("v_xor_b32 %s, 0x80000000, %s", v(b + 8), v(b))


def fu_poll_issue():
    e("v_lshlrev_b32 v11, 7, v0")
    lab0 = A.newlabel("L_nofup")
    e("s_cmp_lg_u32 %s, 0", s(sLW))
    e("s_cbranch_scc1 %s", lab0)
    poll_issue(16, 1, 11, WS_FU)
    A.label(lab0)


def zpart():
    vL, vUG, vTU, vTU1, vPU = 5, 6, 7, 8, 11
    UF, ZT = 16, 32
    e("v_lshlrev_b32 %s, 4, v0", v(vL))
    e("v_lshrrev_b32 v12, 3, v0")
    e("v_mul_u32_u24 v12, %d, v12", 21 * 4096)
    e("v_lshrrev_b32 v13, 2, v0")
    e("v_lshrrev_b32 v14, 4, v0")
    e("v_xor_b32 v13, v13, v14")
    e("v_and_b32 v13, 1, v13")
    e("v_lshl_add_u32 v12, v13, 6, v12")
    e("v_and_b32 v13, 3, v0")
    e("v_lshl_add_u32 %s, v13, 4, v12", v(vUG))
    e("v_lshrrev_b32 v12, 5, v0")
    e("v_lshlrev_b32 v12, 3, v12")
    e("v_bfe_u32 v14, v0, 2, 2")
    e("v_add_u32 v12, v12, v14")
    e("v_lshlrev_b32 v12, 7, v12")
    e("v_lshl_add_u32 v12, v13, 4, v12")
    e("v_bfe_u32 v14, v0, 4, 1")
    e("v_lshl_add_u32 v12, v14, 3, v12")
    e("v_bfe_u32 v14, v0, 3, 1")
    e("v_lshl_add_u32 v12, v14, 6, v12")
    e("v_add_u32 %s, %s, v12", v(vTU), s(sLB))
    e("v_xor_b32 %s, 64, %s", v(vTU1), v(vTU))
    e("v_mov_b32 v12, %d", LGO)
    lab1, lab2 = A.newlabel("L_lgo"), A.newlabel("L_lgod")
    e("s_cmp_lg_u32 %s, 0", s(sLW))
    e("s_cbranch_scc1 %s", lab1)
    e("s_waitcnt vmcnt(0)")
    poll_check(UF, 1, vPU, WS_FU)
    e("v_mov_b32 v13, 1")
    e("ds_write_b32 v12, v13")
    e("s_branch %s", lab2)
    A.label(lab1)
    e("s_sleep 1")
    e("ds_read_b32 v13, v12")
    e("s_waitcnt lgkmcnt(0)")
    e("v_cmp_ne_u32 vcc, 1, v13")
    e("s_cbranch_vccnz %s", lab1)
    A.label(lab2)
    stamp("zU")
    q = VQ()

    def udma(z):
        for n in range(4):
            e("s_add_u32 m0, %s, %d", s(sLB), (z % 4) * 4096 + n * 1024)
            e("s_add_u32 %s, %s, %d", s(sTmp2), s(sUo), z * 4 * 4096 + n * 8 * 21 * 4096)
            if z == 5:
                e("s_add_u32 %s, %s, %s", s(sTmp2), s(sTmp2), s(sOOB))
            e("buffer_load_dwordx4 %s, %s, %s offen sc1 lds", v(vUG), s(sWS, 4), s(sTmp2))
        q.issue("u%d" % z, 4)
    for z in range(4):
        udma(z)
    for z in range(6):
        q.wait("u%d" % z)
        stamp("z%d" % z)
        for u in range(2):
            for kap in range(2):
                for rd in range(2):
                    e("ds_read_b64_tr_b16 %s, %s offset:%d", v(UF + 8 * u + 4 * kap + 2 * rd, 2), v(vTU1 if u else vTU), (z % 4) * 4096 + kap * 2048 + rd * 512)
        for u in range(2):
            e("s_waitcnt lgkmcnt(%d)", 4 - 4 * u)
            for kap in range(2):
                for nh in range(2):
                    for ro in range(2):
                        mm16(ZT + u * 16 + (nh * 2 + ro) * 4, UF + 8 * u + 4 * kap, ZGr(u, ro, nh, kap), kap == 0)
        if z + 4 < 6:
            udma(z + 4)
        for u in range(2):
            for nh in range(2):
                for k in range(4):
                    e("v_cvt_pk_bf16_f32 %s, %s, %s", v(UF + (2 * u + nh) * 4 + k), v(ZT + u * 16 + nh * 8 + 2 * k), v(ZT + u * 16 + nh * 8 + 2 * k + 1))
        e("s_nop 0")
        for rt in range(4):
            for c3 in range(3):
                mm16(ZA + (c3 * 4 + rt) * 4, ZC + z * 12 + c3 * 4, UF + 4 * rt, z == 0)
    e("v_add_u32 v12, %s, %s", s(sLB), v(vL))
    for rt in range(4):
        for c3 in range(3):
            if rt == 3 and c3 == 0:
                e("s_nop 1")
            e("ds_write_b128 v12, %s offset:%d", v(ZA + (c3 * 4 + rt) * 4, 4), c3 * 4096 + rt * 1024)
    e("s_waitcnt lgkmcnt(0)")
    stamp("zend")
    e("s_barrier")


vA0, vA1, vB0, vB1 = 2, 3, 4, 1


def lgo_init():
    e("v_mov_b32 v12, %d", LGO)
    e("v_mov_b32 v13, 0")
    e("ds_write_b32 v12, v13")
    e("ds_write_b32 v12, v13 offset:4")


def x_src_scalar():
    e("s_lshl_b32 %s, %s, 2", s(sAoff), s(sRB))
    e("s_add_u32 %s, %s, %s", s(sAoff), s(sAoff), s(sLW))
    e("s_mul_i32 %s, %s, 1280", s(sAoff), s(sAoff))


def ffn_loader():
    if PRL & 2:
        e("s_setprio 2")
    e("v_lshrrev_b32 v6, 3, v0")
    e("v_mul_u32_u24 v6, 81920, v6")
    e("v_and_b32 v7, 7, v0")
    e("v_lshrrev_b32 v8, 4, v0")
    e("v_xor_b32 v7, v7, v8")
    e("v_lshl_add_u32 %s, v7, 4, v6", v(vA0))
    e("v_xor_b32 %s, 64, %s", v(vA1), v(vA0))
    e("v_mul_u32_u24 v6, 3072, v8")
    e("v_and_b32 v7, 15, v0")
    e("v_lshlrev_b32 v8, 2, v8")
    e("v_xor_b32 v7, v7, v8")
    e("v_lshl_add_u32 %s, v7, 4, v6", v(vB0))
    e("v_xor_b32 %s, 32, %s", v(vB1), v(vB0))
    x_src_scalar()
    e("s_mul_i32 %s, %s, %d", s(sBoff), s(sLW), 16 * 3072)
    e("s_lshl_b32 %s, %s, 8", s(sTmp), s(sCG))
    e("s_add_u32 %s, %s, %s", s(sBoff), s(sBoff), s(sTmp))
    e("s_lshl_b32 %s, %s, 12", s(sM0), s(sLW))
    e("s_bfe_u32 %s, s2, 0x30003", s(sJB))
    e("s_mul_i32 %s, %s, %d", s(sJB), s(sJB), ROTA)
    e("s_lshr_b32 %s, s2, 6", s(sTmp))
    e("s_mul_i32 %s, %s, %d", s(sTmp), s(sTmp), ROTB)
    e("s_add_u32 %s, %s, %s", s(sJB), s(sJB), s(sTmp))
    NR = 10 - NFIX
    for _ in range((7 * ROTA + 2 * ROTB) // NR):
        e("s_cmp_ge_u32 %s, %d", s(sJB), NR)
        e("s_cselect_b32 %s, %d, 0", s(sTmp), NR)
        e("s_sub_u32 %s, %s, %s", s(sJB), s(sJB), s(sTmp))
    tab_srd()
    stamp("l_pre")
    e("s_waitcnt lgkmcnt(0)")
    stamp("l_k")
    for k in ("X", "G", "U"):
        srd(A, *SRDS[k])
    q = VQ()

    def slab_groups(i):
        b = (i % 3) * SLAB
        gs = []

        def head():
            if i < NFIX:
                e("s_add_u32 %s, %s, %d", s(sWM), s(sAoff), i * 128)
                e("s_add_u32 %s, %s, %d", s(sWN), s(sBoff), i * 64 * 3072)
            else:
                e("s_add_u32 %s, %s, %d", s(sTmp), s(sJB), NFIX)
                e("s_lshl_b32 %s, %s, 7", s(sWM), s(sTmp))
                e("s_add_u32 %s, %s, %s", s(sWM), s(sWM), s(sAoff))
                e("s_mul_i32 %s, %s, %d", s(sWN), s(sTmp), 64 * 3072)
                e("s_add_u32 %s, %s, %s", s(sWN), s(sWN), s(sBoff))
                e("s_add_u32 %s, %s, 1", s(sJB), s(sJB))
                e("s_cmp_eq_u32 %s, %d", s(sJB), NR)
                e("s_cselect_b32 %s, 0, %s", s(sJB), s(sJB))
        for n in range(4):
            def f(n=n):
                if n == 0:
                    head()
                e("s_add_u32 m0, %s, %d", s(sM0), b + n * 1024)
                e("s_add_u32 %s, %s, %d", s(sTmp), s(sWM), n * 8 * 81920)
                e("buffer_load_dwordx4 %s, %s, %s offen lds", v(vA1 if n & 1 else vA0), s(sX, 4), s(sTmp))
            gs.append(cap(f))
        for mat in range(2):
            for n in range(4):
                def f(n=n, mat=mat):
                    e("s_add_u32 m0, %s, %d", s(sM0), b + 16384 * (1 + mat) + n * 1024)
                    e("s_add_u32 %s, %s, %d", s(sTmp), s(sWN), n * 4 * 3072)
                    e("buffer_load_dwordx4 %s, %s, %s offen lds", v(vB1 if n & 2 else vB0), s(sU if mat else sG, 4), s(sTmp))
                gs.append(cap(f))
        q.issue("s%d" % i, 12)
        return gs

    def slab(i, main=()):
        weave(list(main), slab_groups(i))

    def wait2(n):
        la, lb = A.newlabel("L_w2"), A.newlabel("L_w2")
        e("s_cmp_ge_u32 %s, 48", s(sPar))
        e("s_cbranch_scc1 %s", la)
        e("s_waitcnt vmcnt(%d)", n + 4)
        e("s_branch %s", lb)
        A.label(la)
        e("s_waitcnt vmcnt(%d)", n)
        A.label(lb)

    def bar(b):
        stamp("fl_a%d" % b)
        e("s_barrier")
        stamp("fl_b%d" % b)
    slab(0)
    stamp("l_s0")
    lgo_init()
    e("s_load_dword %s, %s, 0x%x", s(sTAG), s(P + 18, 2), WS_EP)
    srd(A, *SRDS["WS"])
    for k in ("WD", "WR", "WI"):
        srd(A, *SRDS[k])
    slab(1)
    stamp("l_iss")
    q.wait("s0", extra=" lgkmcnt(0)")
    e("s_barrier")
    stamp("l_bi")
    repack_dma()
    cols_issue(16); q.issue("c", 5)
    slab(2)
    if WARM == 3:
        warm_touch(); q.issue("wt", 2)
    make_tag()
    z_setup()
    e("v_lshlrev_b32 v5, 4, v0")
    fw_poll_addr(10)
    aux_poll_addr(True, 15)
    n_ = 19 if WARM == 3 else 17
    wait2(n_)
    q.q = q.q[-n_:]
    bar(0)
    q.wait("c")
    slab(3, cap(lambda: cols_compute(16)))
    cols_store(16); q.issue("cs")
    q.wait("s2")
    bar(1)
    slab(4)
    repack_finish()
    wait2(12)
    q.q = ["s4"] * 12
    bar(2)
    gl = cap(z_gconst)
    th = len(gl) // 3
    slab(5, gl[:th])
    if WARM == 2:
        warm_touch(); q.issue("wt", 2)
    q.wait("s4")
    bar(3)
    lab = A.newlabel("L_nocf")
    e("s_cmp_lg_u32 %s, 0", s(sLW))
    e("s_cbranch_scc1 %s", lab)
    e("s_lshl_b32 %s, s2, 7", s(sCnt))
    e("s_add_u32 %s, %s, 0x%x", s(sCnt), s(sCnt), WS_FSC)
    flag_store(sCnt, 16, 17)
    A.label(lab)
    slab(6, gl[th:2 * th])
    q.wait("s5")
    bar(4)
    slab(7, gl[2 * th:])
    q.wait("s6")
    bar(5)
    poll_issue(40, 1, 15, WS_FS); poll_issue(41, 1, 10, WS_FSC); q.issue("p", 2)
    slab(8)
    if CIP1:
        z_ci_loads(4, 5); z_ci_loads(5, 5); q.issue("ci", 6)
    q.wait("s7", "p")
    bar(6)
    poll_check(40, 1, 15, WS_FS)
    poll_check(41, 1, 10, WS_FSC)
    stamp("fl_chk")
    aux_issue(True, 16); q.issue("aux", 5)
    slab(9)
    q.wait("s8")
    bar(7)
    q.wait("aux")
    stamp("fl_aux")
    q.wait("s9")
    stamp("fl_s9")
    aux_finish(True, 16)
    bar(8)
    e("v_mov_b32 v12, %d", LGO)
    lab = A.newlabel("L_hout")
    A.label(lab)
    e("s_sleep 1")
    e("ds_read_b32 v13, v12 offset:4")
    e("s_waitcnt lgkmcnt(0)")
    e("v_cmp_ne_u32 vcc, 4, v13")
    e("s_cbranch_vccnz %s", lab)
    fu_poll_issue()
    if not CIP1:
        for z in range(6):
            z_ci_loads(z, 5)
    e("s_branch L_zpart")


def wspec_dma():
    mid_k1()
    e("v_mul_u32_u24 v12, 3121, v0")
    e("v_lshrrev_b32 v12, 16, v12")
    e("v_mul_u32_u24 v12, %d, v12", 32 * 642 - 336)
    e("v_lshl_add_u32 v12, v0, 4, v12")
    e("s_mul_i32 %s, %s, 642", s(sDelta), s(sK1))
    e("s_mul_i32 s3, s3, 306")
    e("s_add_u32 %s, %s, s3", s(sDelta), s(sDelta))
    e("s_and_b32 %s, %s, 1", s(sTmp), s(sLW))
    e("s_mul_i32 %s, %s, %d", s(sCnt), s(sTmp), 11 * 1008)
    e("s_mul_i32 %s, %s, %d", s(sTmp), s(sTmp), 33 * 32 * 642)
    e("s_add_u32 %s, %s, %s", s(sDelta), s(sDelta), s(sTmp))
    lab, lab2 = A.newlabel("L_wi"), A.newlabel("L_wd")
    e("s_cmp_ge_u32 %s, 2", s(sLW))
    e("s_cbranch_scc1 %s", lab)
    for arr in range(2):
        if arr:
            e("s_branch %s", lab2)
            A.label(lab)
        for n in range(11):
            e("s_add_u32 m0, %s, %d", s(sCnt), MW0 + arr * MWA + n * 1008)
            e("s_add_u32 %s, %s, %d", s(sTmp), s(sDelta), n * 3 * 32 * 642)
            e("buffer_load_dwordx4 v12, %s, %s offen lds", s(sWI if arr else sWR, 4), s(sTmp))
    A.label(lab2)


def repack_dma():
    e("v_lshrrev_b32 v12, 3, v0")
    e("v_mul_u32_u24 v13, 1280, v12")
    e("v_bfe_u32 v14, v0, 4, 2")
    e("v_lshlrev_b32 v14, 1, v14")
    e("v_and_b32 v12, 7, v0")
    e("v_xor_b32 v12, v12, v14")
    e("v_lshl_add_u32 v12, v12, 4, v13")
    e("s_mul_i32 %s, s2, 3", s(sCnt))
    e("s_add_u32 %s, %s, %s", s(sCnt), s(sCnt), s(sLW))
    e("s_cmp_eq_u32 %s, 3", s(sLW))
    e("s_cselect_b32 %s, 480, %s", s(sCnt), s(sCnt))
    e("s_mul_i32 %s, %s, 52429", s(sBuf), s(sCnt))
    e("s_lshr_b32 %s, %s, 19", s(sBuf), s(sBuf))
    e("s_mul_i32 %s, %s, 10", s(sTmp), s(sBuf))
    e("s_sub_u32 %s, %s, %s", s(sCnt), s(sCnt), s(sTmp))
    e("s_mul_i32 %s, %s, 40960", s(sDelta), s(sBuf))
    e("s_lshl_b32 %s, %s, 7", s(sTmp), s(sCnt))
    e("s_add_u32 %s, %s, %s", s(sDelta), s(sDelta), s(sTmp))
    e("s_min_u32 %s, %s, 2", s(sWa), s(sLW))
    e("s_lshl_b32 %s, %s, 12", s(sWa), s(sWa))
    e("s_add_u32 %s, %s, %d", s(sWa), s(sWa), RPK)
    lab = A.newlabel("L_norp")
    e("s_cmp_ge_u32 %s, 48", s(sBuf))
    e("s_cbranch_scc1 %s", lab)
    for n in range(4):
        e("s_add_u32 m0, %s, %d", s(sWa), n * 1024)
        e("s_add_u32 %s, %s, %d", s(sTmp), s(sDelta), n * 8 * 1280)
        e("buffer_load_dwordx4 v12, %s, %s offen lds", s(sWD, 4), s(sTmp))
    A.label(lab)
    e("s_mul_i32 %s, %s, %d", s(sWb), s(sCnt), 4 * 49152)
    e("s_lshl_b32 %s, %s, 10", s(sTmp), s(sBuf))
    e("s_add_u32 %s, %s, %s", s(sWb), s(sWb), s(sTmp))
    e("s_add_u32 %s, %s, 0x%x", s(sWb), s(sWb), WS_WD)
    e("s_mov_b32 %s, %s", s(sPar), s(sBuf))


def repack_finish():
    lab = A.newlabel("L_norp")
    e("s_cmp_ge_u32 %s, 48", s(sPar))
    e("s_cbranch_scc1 %s", lab)
    e("v_lshrrev_b32 v56, 2, v0")
    e("v_lshlrev_b32 v56, 7, v56")
    e("v_and_b32 v57, 3, v0")
    e("v_lshl_add_u32 v56, v57, 3, v56")
    e("v_bfe_u32 v57, v0, 3, 2")
    e("v_lshl_add_u32 v56, v57, 5, v56")
    e("v_add_u32 v56, %s, v56", s(sWa))
    for tq in range(1, 4):
        e("v_xor_b32 %s, %d, v56", v(56 + tq), tq << 5)
    for tq in range(4):
        for rd in range(2):
            e("ds_read_b64_tr_b16 %s, %s offset:%d", v(16 + tq * 4 + 2 * rd, 2), v(56 + tq), rd * 2048)
    for n in range(4):
        e("s_waitcnt lgkmcnt(%d)", 6 - 2 * n)
        e("s_add_u32 %s, %s, %d", s(sTmp), s(sWb), n * 49152)
        e("buffer_store_dwordx4 %s, v5, %s, %s offen sc1", v(16 + n * 4, 4), s(sWS, 4), s(sTmp))
    A.label(lab)


def dft_loader(njb):
    if PRL & 1:
        e("s_setprio 2")
    XR = 64
    vW0, vW1 = 6, 7
    sRot = [50, 51, 52, 57, 58]
    e("v_lshrrev_b32 v8, 3, v0")
    e("v_mul_u32_u24 v9, 81920, v8")
    e("v_and_b32 v10, 7, v0")
    e("v_lshl_add_u32 %s, v10, 4, v9", v(vA0))
    e("v_lshrrev_b32 v9, 4, v0")
    e("v_xor_b32 v10, v10, v9")
    e("v_lshlrev_b32 v8, 7, v8")
    e("v_lshl_add_u32 v8, v10, 4, v8")
    e("s_lshl_b32 %s, %s, 12", s(sTmp), s(sLW))
    e("v_add_u32 %s, %s, v8", v(vW0), s(sTmp))
    e("v_xor_b32 %s, 64, %s", v(vW1), v(vW0))
    e("v_add_u32 v8, %d, %s", 2 * SLAB, v(vW0))
    e("v_add_u32 v9, %d, %s", 2 * SLAB, v(vW1))
    e("v_lshlrev_b32 %s, 4, v0", v(vB0))
    x_src_scalar()
    if njb == 6:
        e("s_mul_i32 %s, %s, %d", s(sBoff), s(sLW), 6 * 1024)
    else:
        e("s_mul_i32 %s, %s, %d", s(sBoff), s(sCG), 20 * 5 * 1024)
        e("s_mul_i32 %s, %s, %d", s(sTmp), s(sLW), 5 * 1024)
        e("s_add_u32 %s, %s, %s", s(sBoff), s(sBoff), s(sTmp))
        e("s_add_u32 %s, %s, %d", s(sBoff), s(sBoff), 20 * 1024)
    e("s_bfe_u32 %s, s2, 0x30003", s(sJB))
    e("s_cmp_ge_u32 %s, 5", s(sJB))
    e("s_cselect_b32 %s, 5, 0", s(sTmp))
    e("s_sub_u32 %s, %s, %s", s(sJB), s(sJB), s(sTmp))
    if not DROT:
        e("s_mov_b32 %s, 0", s(sJB))
    for i in range(5):
        e("s_add_u32 %s, %s, %d", s(sTmp), s(sJB), i)
        e("s_cmp_ge_u32 %s, 5", s(sTmp))
        e("s_cselect_b32 %s, 5, 0", s(sTmp2))
        e("s_sub_u32 %s, %s, %s", s(sRot[i]), s(sTmp), s(sTmp2))
    e("s_mul_i32 %s, %s, %d", s(sM0), s(sLW), njb * 1024)
    e("s_add_u32 %s, %s, 16384", s(sM0), s(sM0))
    tab_srd()
    stamp("l_pre")
    e("s_waitcnt lgkmcnt(0)")
    stamp("l_k")
    srd(A, *SRDS["X"])
    q = VQ()

    def xl(i):
        gs = []
        for n in range(4):
            for hf in range(2):
                def f(n=n, hf=hf):
                    if n == 0 and hf == 0:
                        e("s_lshl_b32 %s, %s, 7", s(sFlag), s(sRot[i]))
                        e("s_add_u32 %s, %s, %s", s(sFlag), s(sFlag), s(sAoff))
                    e("s_add_u32 %s, %s, %d", s(sTmp), s(sFlag), n * 8 * 81920)
                    e("buffer_load_dwordx4 %s, %s, %s, %s offen offset:%d", v(XR + i * 32 + n * 8 + hf * 4, 4), v(vA0), s(sX, 4), s(sTmp), hf * 640)
                gs.append(cap(f))
        q.issue("x%d" % i, 8)
        return gs

    def cl(i):
        gs = []
        for tl in range(njb):
            def f(tl=tl):
                e("s_add_u32 m0, %s, %d", s(sM0), (i % 3) * SLAB + tl * 1024)
                if tl == 0:
                    e("s_mul_i32 %s, %s, %d", s(sSLAB), s(sRot[i]), 4 * njb * 1024)
                    e("s_add_u32 %s, %s, %s", s(sSLAB), s(sSLAB), s(sBoff))
                e("s_add_u32 %s, %s, %d", s(sTmp), s(sSLAB), tl * 1024)
                e("buffer_load_dwordx4 %s, %s, %s offen lds", v(vB0), s(sTAB, 4), s(sTmp))
            gs.append(cap(f))
        q.issue("c%d" % i, njb)
        return gs

    def fl():
        gs = []
        for n in range(4):
            def f(n=n):
                e("s_lshl_b32 %s, %s, 11", s(sTmp), s(sLW))
                e("s_add_u32 m0, %s, %d", s(sTmp), (FI_L if n & 2 else FR_L) + (n & 1) * 1024)
                e("s_add_u32 %s, %s, %d", s(sTmp), s(sTmp), TB.F64_OFF + (n >> 1) * 8192 + (n & 1) * 1024)
                e("buffer_load_dwordx4 %s, %s, %s offen lds", v(vB0), s(sTAB, 4), s(sTmp))
            gs.append(cap(f))
        q.issue("f", 4)
        return gs

    def fold(i):
        for n in range(4):
            a0 = XR + i * 32 + n * 8
            if FOLD == 0:
                for d in range(4):
                    t = 16 + 4 * (d & 1)
                    e("v_lshlrev_b32 %s, 16, %s", v(t), v(a0 + d))
                    e("v_and_b32 %s, 0xffff0000, %s", v(t + 1), v(a0 + d))
                    e("v_lshlrev_b32 %s, 16, %s", v(t + 2), v(a0 + 4 + d))
                    e("v_and_b32 %s, 0xffff0000, %s", v(t + 3), v(a0 + 4 + d))
                    e("v_pk_fma_f32 %s, %s, %s, %s", v(t, 2), v(t + 2, 2), s(sSgn, 2), v(t, 2))
                    e("v_cvt_pk_bf16_f32 %s, %s, %s", v(a0 + d), v(t), v(t + 1))
            else:
                T = 28 + 8 * (n & 1)
                for d in range(4):
                    e("v_lshlrev_b32 %s, 16, %s", v(T + d), v(a0 + d))
                    e("v_lshlrev_b32 %s, 16, %s", v(T + 4 + d), v(a0 + 4 + d))
                for d in range(8):
                    e("v_and_b32 %s, %s, %s", v(a0 + d), v(44), v(a0 + d))
                if FOLD == 1:
                    for d in range(4):
                        e("v_fmac_f32 %s, %s, %s", v(T + d), s(sSgn), v(T + 4 + d))
                    for d in range(4):
                        e("v_fmac_f32 %s, %s, %s", v(a0 + d), s(sSgn), v(a0 + 4 + d))
                else:
                    for d in (0, 2):
                        e("v_pk_fma_f32 %s, %s, %s, %s", v(T + d, 2), v(T + 4 + d, 2), s(sSgn, 2), v(T + d, 2))
                    for d in (0, 2):
                        e("v_pk_fma_f32 %s, %s, %s, %s", v(a0 + d, 2), v(a0 + 4 + d, 2), s(sSgn, 2), v(a0 + d, 2))
                for d in range(4):
                    e("v_cvt_pk_bf16_f32 %s, %s, %s", v(a0 + d), v(T + d), v(a0 + d))
            b = i % 3
            base = ((vW0, vW1) if b < 2 else (8, 9))[n & 1]
            e("ds_write_b128 %s, %s offset:%d", v(base), v(a0, 4), (b * SLAB if b < 2 else 0) + n * 1024)

    def bar(b):
        stamp("dl_a%s" % b)
        e("s_barrier")
        stamp("dl_b%s" % b)
    weave([], xl(0) + cl(0))
    stamp("l_s0")
    lgo_init()
    e("s_load_dword %s, %s, 0x%x", s(sTAG), s(P + 18, 2), WS_EP)
    for k in ("WS", "WR", "WI"):
        srd(A, *SRDS[k])
    e("s_cmp_ge_u32 %s, 2", s(sCG))
    e("s_cselect_b32 %s, -1.0, 1.0", s(sSgn))
    e("s_mov_b32 %s, %s", s(sSgn + 1), s(sSgn))
    weave([], xl(1))
    e("v_mov_b32 v44, 0xffff0000")
    aux_poll_addr(False, 15)
    e("v_add_u32 %s, %d, v8", v(vW0), (-2 * SLAB) & 0xffffffff)
    e("v_add_u32 %s, %d, v9", v(vW1), (-2 * SLAB) & 0xffffffff)
    fw_poll_addr(10)
    stamp("l_iss")
    q.wait("x0")
    stamp("dl_x0")
    weave(cap(lambda: fold(0)), cl(1) + xl(2))
    q.wait("c0", extra=" lgkmcnt(0)")
    e("s_barrier")
    stamp("l_bi")
    make_tag()
    q.wait("x1")
    weave(cap(lambda: fold(1)), cl(2) + xl(3))
    q.wait("c1", extra=" lgkmcnt(0)")
    bar(0)
    q.wait("x2")
    stamp("dl_x2")
    weave(cap(lambda: fold(2)), cl(3) + xl(4))
    stamp("dl_f2")
    poll_issue(46, 1, 15, WS_FS); q.issue("p")
    q.wait("c2", extra=" lgkmcnt(0)")
    bar(1)
    q.wait("x3")
    stamp("dl_x3")
    weave(cap(lambda: fold(3)), cl(4) + fl())
    stamp("dl_f3")
    q.wait("p")
    poll_check(46, 1, 15, WS_FS)
    aux_issue(False, 24); q.issue("aux")
    e("s_waitcnt lgkmcnt(0)")
    bar(2)
    fold(4)
    q.wait("aux")
    aux_finish(False, 24)
    bar(3)
    poll_issue(41, 1, 10, WS_FSC)
    z_setup()
    if WSP == 0:
        wspec_dma()
    e("s_barrier")
    if WSP == 1:
        wspec_dma()
        e("s_waitcnt vmcnt(11)")
    else:
        e("s_waitcnt vmcnt(0)")
    poll_check(41, 1, 10, WS_FSC)
    e("s_branch L_dft_l")


def addr_advance(regs):
    e("s_add_u32 %s, %s, %d", s(sBuf), s(sBuf), SLAB)
    e("s_cmp_ge_u32 %s, %d", s(sBuf), 3 * SLAB)
    e("s_cselect_b32 %s, 0, %s", s(sBuf), s(sBuf))
    e("s_cselect_b32 %s, %d, %s", s(sDelta), (-2 * SLAB) & 0xffffffff, s(sSLAB))
    for r_ in regs:
        e("v_add_u32 %s, %s, %s", v(r_), s(sDelta), v(r_))


def gemm_loop(nslab, NT, mfmas, reads, need, areg, bar_gap, per_gap, last_extra=(), first_hook=None):
    nreads = len(reads(0, 0))
    nm = len(need)

    def step(mf, nxt, first_gap=0, pre=None, barg=None):
        issued, done = 0, 0
        for m in range(nm):
            if need[m] > done:
                allowed = nreads - need[m] + issued
                e("s_waitcnt lgkmcnt(%d)", min(15, allowed))
                done = need[m] if allowed <= 15 else min(nreads, nreads + issued - 15)
            mf[m]()
            if pre and m in pre:
                for f in pre[m]:
                    f()
                if m == barg:
                    done = nreads
            if m >= first_gap:
                for k in range(per_gap):
                    if issued < len(nxt):
                        nxt[issued]()
                        issued += 1
        assert issued == len(nxt), (issued, len(nxt))

    def bar(vm=False):
        e("s_waitcnt lgkmcnt(0)%s", " vmcnt(0)" if vm else "")
        e("s_barrier")

    def merge(*ds):
        out = {}
        for d in ds:
            for k, x in d.items():
                out.setdefault(k, [])
                out[k] += x
        return out

    def spread(ops):
        out = {}
        for n, f in enumerate(ops):
            g = nm - 1 - (len(ops) - 1 - n) * max(1, (nm - bar_gap - 1) // max(1, len(ops)))
            out.setdefault(max(g, 0), []).append(f)
        return out

    def slab(last):
        ex = list(last_extra) if last else []
        per = (len(ex) + NT - 1) // NT
        for t in range(NT - 1):
            step(mfmas(t & 1), reads((t + 1) & 1, t + 1), pre=spread(ex[t * per:(t + 1) * per]))
        if last:
            step(mfmas(1), [], pre=spread(ex[(NT - 1) * per:]))
        else:
            hooks = {bar_gap: [lambda: bar(first_hook is not None)] + ([first_hook] if first_hook else [])}
            step(mfmas(1), reads(0, 0), first_gap=bar_gap + (1 if bar_gap else 0), pre=merge({0: [lambda: addr_advance(areg)]}, hooks), barg=bar_gap)
    e("s_mov_b32 %s, 0", s(sBuf))
    e("s_mov_b32 %s, %d", s(sSLAB), SLAB)
    e("s_mov_b32 %s, 0", s(sCnt))
    e("s_waitcnt lgkmcnt(0)")
    make_tag()
    e("s_barrier")
    stamp("c_bi")
    for f in reads(0, 0):
        f()
    lab = A.newlabel("L_gemm")
    A.label(lab)
    slab(False)
    e("s_add_u32 %s, %s, 1", s(sCnt), s(sCnt))
    e("s_cmp_lt_u32 %s, %d", s(sCnt), nslab - 1)
    e("s_cbranch_scc1 %s", lab)
    slab(True)
    stamp("c_le")


vWD = [1, 2, 3, 4, 14]


def p3c_setup():
    p3_map()
    e("s_lshr_b32 %s, %s, 1", s(sOc), s(sG3))
    e("s_and_b32 %s, %s, 1", s(sTmp), s(sG3))
    e("s_mul_i32 %s, %s, 20", s(sTmp), s(sTmp))
    e("s_add_u32 %s, %s, %s", s(sOc), s(sOc), s(sTmp))
    e("s_add_u32 %s, %s, 16", s(sOc), s(sOc))
    e("s_lshl_b32 %s, %s, 5", s(sOc), s(sOc))
    e("s_lshl_b32 %s, %s, 6", s(sOo), s(sG3))
    e("s_lshl_b32 %s, %s, 10", s(sTmp), s(sW))
    e("s_add_u32 %s, %s, 0x%x", s(sTmp), s(sTmp), WS_WD)
    e("s_mul_i32 %s, %s, %d", s(sWa), s(sG3), 2 * 49152)
    e("s_add_u32 %s, %s, %s", s(sWa), s(sWa), s(sTmp))
    e("s_mul_i32 %s, %s, %d", s(sWc), s(sOc), 49152 // 32)
    e("s_add_u32 %s, %s, %s", s(sWc), s(sWc), s(sTmp))
    e("s_mul_i32 %s, %s, %d", s(sHo), s(sP), 2 * 48 * 2048)
    e("s_lshl_b32 %s, %s, 11", s(sTmp), s(sW))
    e("s_add_u32 %s, %s, %s", s(sHo), s(sHo), s(sTmp))
    e("s_and_b32 %s, %s, 1", s(sTmp), s(sW))
    e("s_lshl_b32 %s, %s, 10", s(sTmp), s(sTmp))
    e("s_lshl_b32 %s, %s, 1", s(sTmp2), s(sP))
    e("s_add_u32 %s, %s, %s", s(sTmp), s(sTmp), s(sTmp2))
    e("s_lshr_b32 %s, %s, 1", s(sTmp2), s(sW))
    e("s_add_u32 %s, %s, %s", s(sTmp), s(sTmp), s(sTmp2))
    e("s_mul_i32 %s, %s, 1280", s(sTmp), s(sTmp))
    e("s_add_u32 %s, %s, %s", s(sOo), s(sOo), s(sTmp))
    e("s_add_u32 %s, %s, %s", s(sOc), s(sOc), s(sTmp))


def p3c():
    vL, vO, vPH = 5, 13, 6
    RS, XR, ACC = 16, 16, 176
    NI = 12
    q = VQ()
    e("v_lshlrev_b32 %s, 4, v0", v(vL))
    sHr = [50, 51, 52, 53]
    for rho in range(4):
        e("s_add_u32 %s, %s, %d", s(sTmp), s(sW), rho)
        e("s_bfe_u32 %s, %s, 0x10001", s(sTmp2), s(sTmp))
        e("s_mul_i32 %s, %s, %d", s(sTmp2), s(sTmp2), 48 * 2048)
        e("s_and_b32 %s, %s, 1", s(sTmp), s(sTmp))
        e("s_lshl_b32 %s, %s, 10", s(sTmp), s(sTmp))
        e("s_add_u32 %s, %s, %s", s(sTmp), s(sTmp), s(sTmp2))
        e("s_add_u32 %s, %s, %s", s(sHr[rho]), s(sTmp), s(sHo))

    def wload(i, ct):
        base, off = [(sWa, 0), (sWa, 49152), (sWa, 20 * 49152), (sWa, 21 * 49152), (sWc, 0)][ct]
        e("s_add_u32 %s, %s, %d", s(sTmp), s(base), off + i * 4096)
        e("buffer_load_dwordx4 %s, %s, %s, %s offen sc1", v(RS + (i % 4) * 36 + ct * 4, 4), v(vL), s(sWS, 4), s(sTmp))
        q.issue("i%d" % i)

    def hload(i):
        for rho in range(4):
            e("s_add_u32 %s, %s, %d", s(sTmp), s(sHr[rho]), WS_H + i * 4 * 2048)
            e("buffer_load_dwordx4 %s, %s, %s, %s offen sc1", v(RS + (i % 4) * 36 + 20 + rho * 4, 4), v(vL), s(sWS, 4), s(sTmp))
            q.issue("i%d" % i)
    stamp("p3_in")
    e("v_and_b32 v8, 15, v0")
    e("v_mul_u32_u24 v8, 81920, v8")
    e("v_lshrrev_b32 v9, 4, v0")
    e("v_lshl_add_u32 %s, v9, 3, v8", v(vO))
    e("s_lshl_b32 %s, %s, 1", s(sTmp), s(sP))
    e("s_lshr_b32 %s, %s, 1", s(sTmp2), s(sW))
    e("s_add_u32 %s, %s, %s", s(sTmp), s(sTmp), s(sTmp2))
    e("s_mul_i32 %s, %s, 12", s(sTmp), s(sTmp))
    e("v_min_u32 v8, 11, v0")
    e("v_add_u32 v8, %s, v8", s(sTmp))
    e("v_lshlrev_b32 %s, 7, v8", v(vPH))
    lab = A.newlabel("L_nofh")
    e("s_cmp_ge_u32 s2, 192")
    e("s_cbranch_scc1 %s", lab)
    e("v_mov_b32 v11, %d", LGO)
    e("v_mov_b32 v12, 1")
    e("s_waitcnt vmcnt(0)")
    flag_store(sFlag, 8, 9)
    e("s_mov_b64 exec, 1")
    e("ds_add_u32 v11, v12 offset:4")
    e("s_mov_b64 exec, -1")
    A.label(lab)
    stamp("p3_fl")
    for i in range(4):
        for ct in range(5):
            wload(i, ct)
    poll_issue(10, 1, vPH, WS_FH)
    e("s_waitcnt vmcnt(0)")
    poll_check(10, 1, vPH, WS_FH)
    stamp("p3_fh")
    q.drain()
    for i in range(4):
        hload(i)
    OFF = [(sOo, 0), (sOo, 32), (sOo, 640), (sOo, 672), (sOc, 0)]

    def acc(ct, rt): return ACC + (ct * 4 + rt) * 4
    for i in range(NI):
        rs = RS + (i % 4) * 36
        q.wait("i%d" % i)
        stamp("i%d" % i)
        for ct in range(5):
            for rt in range(4):
                mm16(acc(ct, rt), rs + 4 * ct, rs + 20 + 4 * rt, i == 0)
            if i + 4 < NI:
                wload(i + 4, ct)
            if i == 9:
                e("buffer_load_dwordx2 %s, %s, %s, %s offen offset:%d", v(XR + 2 * ct, 2), v(vO), s(sX, 4), s(OFF[ct][0]), OFF[ct][1])
                q.issue("x")
        if i + 4 < NI:
            hload(i + 4)
    for rho in range(1, 4):
        e("s_add_u32 %s, %s, %d", s(sTmp), s(sW), rho)
        e("s_and_b32 %s, %s, 3", s(sTmp), s(sTmp))
        e("s_mul_i32 %s, %s, 15360", s(sTmp), s(sTmp))
        e("s_add_u32 %s, %s, %d", s(sTmp), s(sTmp), CP0 + (rho - 1) * 5120)
        e("v_add_u32 %s, %s, %s", v(7 + rho), s(sTmp), v(vL))
    for ct in range(5):
        for rho in range(1, 4):
            e("ds_write_b128 %s, %s offset:%d", v(7 + rho), v(acc(ct, rho), 4), ct * 1024)
    e("s_mul_i32 %s, %s, 15360", s(sTmp), s(sW))
    e("s_add_u32 %s, %s, %d", s(sTmp), s(sTmp), CP0)
    e("v_add_u32 v26, %s, %s", s(sTmp), v(vL))
    e("s_lshl_b32 %s, %s, 10", s(sTmp), s(sW))
    e("v_add_u32 v27, %s, %s", s(sTmp), v(vL))
    e("s_waitcnt vmcnt(0)")
    for ct in range(5):
        x0, b = XR + 2 * ct, 28 + 4 * ct
        e("v_lshlrev_b32 %s, 16, %s", v(b), v(x0))
        e("v_and_b32 %s, 0xffff0000, %s", v(b + 1), v(x0))
        e("v_lshlrev_b32 %s, 16, %s", v(b + 2), v(x0 + 1))
        e("v_and_b32 %s, 0xffff0000, %s", v(b + 3), v(x0 + 1))
        for k in (0, 2):
            e("v_pk_add_f32 %s, %s, %s", v(acc(ct, 0) + k, 2), v(acc(ct, 0) + k, 2), v(b + k, 2))
    e("s_waitcnt lgkmcnt(0)")
    stamp("p3_end")
    e("s_barrier")
    stamp("p3_bar")
    LP = 48
    for c3 in range(3):
        for lw in range(4):
            e("ds_read_b128 %s, v27 offset:%d", v(LP + (c3 * 4 + lw) * 4, 4), ZU0 + lw * ZUS + c3 * 4096)
    for ct in range(5):
        for k in range(3):
            e("ds_read_b128 %s, v26 offset:%d", v(acc(ct, k + 1), 4), k * 5120 + ct * 1024)
    e("s_waitcnt lgkmcnt(15)")
    for c3 in range(3):
        b = LP + c3 * 16
        for k in (0, 2):
            e("v_pk_add_f32 %s, %s, %s", v(b + k, 2), v(b + k, 2), v(b + 8 + k, 2))
            e("v_pk_add_f32 %s, %s, %s", v(b + 4 + k, 2), v(b + 4 + k, 2), v(b + 12 + k, 2))
        for k in (0, 2):
            if c3 < 2:
                e("v_pk_add_f32 %s, %s, %s neg_lo:[0,1] neg_hi:[0,1]", v(b + 8 + k, 2), v(b + k, 2), v(b + 4 + k, 2))
            e("v_pk_add_f32 %s, %s, %s", v(b + k, 2), v(b + k, 2), v(b + 4 + k, 2))
    zsrc = [LP, LP + 16, LP + 8, LP + 24, LP + 32]
    for ct in range(5):
        b = acc(ct, 0)
        e("s_waitcnt lgkmcnt(%d)", 12 - 3 * ct)
        for k in (0, 2):
            e("v_pk_add_f32 %s, %s, %s", v(b + k, 2), v(b + k, 2), v(zsrc[ct] + k, 2))
            e("v_pk_add_f32 %s, %s, %s", v(b + 4 + k, 2), v(b + 4 + k, 2), v(b + 8 + k, 2))
        for k in (0, 2):
            e("v_pk_add_f32 %s, %s, %s", v(b + k, 2), v(b + k, 2), v(b + 12 + k, 2))
        for k in (0, 2):
            e("v_pk_add_f32 %s, %s, %s", v(b + k, 2), v(b + k, 2), v(b + 4 + k, 2))
        e("v_cvt_pk_bf16_f32 %s, %s, %s", v(b + 8), v(b), v(b + 1))
        e("v_cvt_pk_bf16_f32 %s, %s, %s", v(b + 9), v(b + 2), v(b + 3))
        e("buffer_store_dwordx2 %s, %s, %s, %s offen offset:%d", v(b + 8, 2), v(vO), s(sOUT, 4), s(OFF[ct][0]), OFF[ct][1])
    lab = A.newlabel("L_noep")
    e("s_lshl_b32 %s, s2, 3", s(sTmp))
    e("s_add_u32 %s, %s, %s", s(sTmp), s(sTmp), s(sW))
    e("s_cmp_eq_u32 %s, 0", s(sTmp))
    e("s_cbranch_scc0 %s", lab)
    e("s_mov_b32 %s, 0x%x", s(sTmp), WS_EP)
    flag_store(sTmp, 8, 9)
    A.label(lab)


def warm_touch():
    e("s_lshl_b32 %s, s2, 1", s(sTmp))
    e("s_and_b32 %s, %s, 1", s(sTmp2), s(sLW))
    e("s_add_u32 %s, %s, %s", s(sTmp), s(sTmp), s(sTmp2))
    e("s_mul_i32 %s, %s, %d", s(sTmp), s(sTmp), 27 * 128)
    e("v_min_u32 v12, 26, v0")
    e("v_lshlrev_b32 v12, 7, v12")
    lab, lab2 = A.newlabel("L_wt"), A.newlabel("L_wt")
    e("s_cmp_ge_u32 %s, 2", s(sLW))
    e("s_cbranch_scc1 %s", lab)
    e("buffer_load_dword v250, v12, %s, %s offen", s(sWR, 4), s(sTmp))
    e("s_branch %s", lab2)
    A.label(lab)
    e("buffer_load_dword v250, v12, %s, %s offen", s(sWI, 4), s(sTmp))
    A.label(lab2)
    e("s_lshl_b32 %s, s2, 2", s(sTmp))
    e("s_add_u32 %s, %s, %s", s(sTmp), s(sTmp), s(sLW))
    e("s_mul_i32 %s, %s, %d", s(sTmp), s(sTmp), 6 * 128)
    e("s_add_u32 %s, %s, %d", s(sTmp), s(sTmp), TB.CI_OFF)
    e("v_min_u32 v12, 5, v0")
    e("v_lshlrev_b32 v12, 7, v12")
    e("buffer_load_dword v251, v12, %s, %s offen", s(sTAB, 4), s(sTmp))


def p1_ffn():
    vXA, vWA, FR, ACC = 8, 10, 16, 112
    stats_addr(16)
    e("s_and_b32 %s, %s, 1", s(sWM), s(sW))
    e("s_lshr_b32 %s, %s, 1", s(sWN), s(sW))
    tab_srd()
    karg_wait(["X"], ["WS", "OUT", "WR", "WI"])
    lab = A.newlabel("L_nost")
    e("s_cmp_ge_u32 %s, 8", s(sCG))
    e("s_cbranch_scc1 %s", lab)
    stats_issue(16)
    A.label(lab)
    e("s_lshl_b32 %s, %s, 3", s(sFlag), s(sRB))
    e("s_add_u32 %s, %s, %s", s(sFlag), s(sFlag), s(sCG))
    e("s_lshl_b32 %s, %s, 7", s(sFlag), s(sFlag))
    e("s_add_u32 %s, %s, 0x%x", s(sFlag), s(sFlag), WS_FS)
    if WARM == 1:
        warm_touch()
    for i in range(128):
        e("v_mov_b32 %s, 0", v(ACC + i))
    p3c_setup()
    e("v_and_b32 v5, 15, v0")
    e("v_lshlrev_b32 v5, 7, v5")
    e("s_lshl_b32 %s, %s, 13", s(sTmp), s(sWM))
    e("v_add_u32 v5, %s, v5", s(sTmp))
    e("v_lshrrev_b32 v6, 4, v0")
    e("v_bfe_u32 v7, v0, 1, 3")
    e("v_xor_b32 v6, v6, v7")
    e("v_lshl_add_u32 %s, v6, 4, v5", v(vXA))
    e("v_xor_b32 %s, 64, %s", v(vXA + 1), v(vXA))
    e("v_lshrrev_b32 v5, 4, v0")
    e("v_bfe_u32 v6, v0, 2, 2")
    e("v_lshl_add_u32 v7, v5, 3, v6")
    e("v_lshlrev_b32 v7, 8, v7")
    e("v_and_b32 v5, 1, v5")
    e("v_lshl_add_u32 v5, v6, 1, v5")
    e("s_lshl_b32 %s, %s, 2", s(sTmp), s(sWN))
    e("v_xor_b32 v5, %s, v5", s(sTmp))
    e("v_lshl_add_u32 v7, v5, 5, v7")
    e("v_and_b32 v6, 3, v0")
    e("v_lshl_add_u32 %s, v6, 3, v7", v(vWA))
    for ft in range(1, 4):
        e("v_xor_b32 %s, %d, %s", v(vWA + ft), ft << 5, v(vWA))
    e("s_mov_b32 %s, 1", s(sNU))
    lab = A.newlabel("L_nost")
    e("s_cmp_ge_u32 %s, 8", s(sCG))
    e("s_cbranch_scc1 %s", lab)
    e("s_mov_b32 %s, %s", s(sNU), s(sW))
    e("s_waitcnt vmcnt(%d)", 2 if WARM == 1 else 0)
    stats_compute(16)
    A.label(lab)
    stamp("c_set")

    def hook():
        lab = A.newlabel("L_nofl")
        e("s_cmp_lg_u32 %s, 0", s(sNU))
        e("s_cbranch_scc1 %s", lab)
        e("s_mov_b32 %s, 1", s(sNU))
        flag_store(sFlag, 5, 6)
        A.label(lab)

    def acc(mat, ft, st): return ACC + ((mat * 4 + ft) * 4 + st) * 4
    def xf(p, st): return FR + p * 48 + st * 4
    def wf(p, mat, ft): return FR + p * 48 + 16 + (mat * 4 + ft) * 4
    keys = [("x", 0), ("w", 0, 0), ("w", 0, 0), ("x", 1), ("x", 2), ("x", 3)]
    for ft in range(4):
        for mat in range(2):
            if (mat, ft) != (0, 0):
                keys += [("w", mat, ft)] * 2

    def reads(p, t):
        out, seen = [], {}
        for k in keys:
            if k[0] == "x":
                out.append(lambda st=k[1]: e("ds_read_b128 %s, %s offset:%d", v(xf(p, st), 4), v(vXA + t), st * 2048))
            else:
                rd = seen.get(k, 0); seen[k] = rd + 1
                out.append(lambda mat=k[1], ft=k[2], rd=rd: e("ds_read_b64_tr_b16 %s, %s offset:%d", v(wf(p, mat, ft) + 2 * rd, 2), v(vWA + ft), 16384 * (1 + mat) + t * 8192 + rd * 1024))
        return out
    morder, n = [], 0
    for ft in range(4):
        for mat in range(2):
            morder += [(mat, ft, st) for st in ([0, 1, 2, 3] if n % 2 == 0 else [3, 2, 1, 0])]
            n += 1
    need = [max(i + 1 for i, k in enumerate(keys) if k == ("x", m[2]) or k == ("w", m[0], m[1])) for m in morder]

    def mfmas(p):
        return [(lambda m=m: mm16(acc(*m), wf(p, m[0], m[1]), xf(p, m[2]))) for m in morder]
    gemm_loop(10, 2, mfmas, reads, need, [8, 9, 10, 11, 12, 13], 3, 1, (), hook)

    RM, CS = 16, 32
    e("v_and_b32 v5, 15, v0")
    e("v_lshlrev_b32 v5, 2, v5")
    e("s_lshl_b32 %s, %s, 8", s(sTmp), s(sWM))
    e("s_add_u32 %s, %s, %d", s(sTmp), s(sTmp), AUX)
    e("v_add_u32 v5, %s, v5", s(sTmp))
    for st in range(4):
        e("ds_read_b32 %s, v5 offset:%d", v(RM + 4 * st), st * 64)
        e("ds_read_b32 %s, v5 offset:%d", v(RM + 4 * st + 2), 512 + st * 64)
    e("v_lshrrev_b32 v6, 4, v0")
    e("v_lshlrev_b32 v6, 4, v6")
    e("s_lshl_b32 %s, %s, 8", s(sTmp), s(sWN))
    e("s_add_u32 %s, %s, %d", s(sTmp), s(sTmp), AUX + 1024)
    e("v_add_u32 v6, %s, v6", s(sTmp))
    for ft in range(4):
        for mat in range(2):
            e("ds_read_b128 %s, v6 offset:%d", v(CS + (mat * 4 + ft) * 4, 4), mat * 512 + ft * 64)
    e("s_lshl_b32 %s, %s, 1", s(sFlag), s(sRB))
    e("s_add_u32 %s, %s, %s", s(sFlag), s(sFlag), s(sWM))
    e("s_mul_i32 %s, %s, %d", s(sTmp), s(sFlag), 2 * 48 * 2048)
    e("s_lshl_b32 s3, %s, 2", s(sCG))
    e("s_lshl_b32 %s, %s, 1", s(sCnt), s(sWN))
    e("s_add_u32 s3, s3, %s", s(sCnt))
    e("s_lshl_b32 s3, s3, 11")
    e("s_add_u32 %s, %s, s3", s(sDelta), s(sTmp))
    e("s_lshl_b32 %s, %s, 1", s(sFlag), s(sFlag))
    e("s_add_u32 %s, %s, %s", s(sFlag), s(sFlag), s(sWN))
    e("s_mul_i32 %s, %s, 12", s(sFlag), s(sFlag))
    e("s_add_u32 %s, %s, %s", s(sFlag), s(sFlag), s(sCG))
    e("s_lshl_b32 %s, %s, 7", s(sFlag), s(sFlag))
    e("s_add_u32 %s, %s, 0x%x", s(sFlag), s(sFlag), WS_FH)
    e("v_lshlrev_b32 v5, 4, v0")
    e("s_waitcnt lgkmcnt(4)")
    for st in range(4):
        e("v_mul_f32 %s, %s, %s", v(RM + 4 * st), v(RM + 4 * st), v(RM + 4 * st))
    for ph in range(2):
        if ph == 1:
            e("s_waitcnt lgkmcnt(0)")
        for st in range(4):
            rr, mm_ = RM + 4 * st, RM + 4 * st + 2
            o = 64 + ((ph * 4 + st) & 3) * 4
            for fi in range(2):
                ft = 2 * ph + fi
                g0, u0 = acc(0, ft, st), acc(1, ft, st)
                for k in (0, 2):
                    e("v_pk_fma_f32 %s, %s, %s, %s op_sel_hi:[1,0,1] neg_lo:[0,1,0] neg_hi:[0,1,0]", v(g0 + k, 2), v(CS + ft * 4 + k, 2), v(mm_, 2), v(g0 + k, 2))
                    e("v_pk_fma_f32 %s, %s, %s, %s op_sel_hi:[1,0,1] neg_lo:[0,1,0] neg_hi:[0,1,0]", v(u0 + k, 2), v(CS + 16 + ft * 4 + k, 2), v(mm_, 2), v(u0 + k, 2))
                for k in range(4):
                    e("v_max_f32 %s, 0, %s", v(g0 + k), v(g0 + k))
                for k in (0, 2):
                    e("v_pk_mul_f32 %s, %s, %s op_sel_hi:[1,0]", v(u0 + k, 2), v(u0 + k, 2), v(rr, 2))
                for k in (0, 2):
                    e("v_pk_mul_f32 %s, %s, %s", v(g0 + k, 2), v(g0 + k, 2), v(u0 + k, 2))
                for k in range(2):
                    e("v_cvt_pk_bf16_f32 %s, %s, %s", v(o + 2 * fi + k), v(g0 + 2 * k), v(g0 + 2 * k + 1))
            e("s_add_u32 %s, %s, %d", s(sTmp), s(sDelta), WS_H + (st >> 1) * 48 * 2048 + ph * 2048)
            e("buffer_store_dwordx4 %s, v5, %s, %s offen offset:%d sc1", v(o, 4), s(sWS, 4), s(sTmp), (st & 1) * 1024)
    stamp("c_ep")
    e("s_branch L_p3c")


def p1_dft(njb):
    vXA, vCA, FR, ACC, FC = 8, 12, 16, 80, 176
    e("s_lshl_b32 %s, %s, 12", s(sTmp), s(sW))
    e("v_and_b32 v5, 31, v0")
    e("v_lshlrev_b32 v5, 7, v5")
    e("v_add_u32 v5, %s, v5", s(sTmp))
    e("v_lshrrev_b32 v6, 5, v0")
    e("v_bfe_u32 v7, v0, 1, 3")
    e("v_xor_b32 v6, v6, v7")
    e("v_lshl_add_u32 %s, v6, 4, v5", v(vXA))
    for t in range(1, 4):
        e("v_xor_b32 %s, %d, %s", v(vXA + t), t << 5, v(vXA))
    e("v_lshlrev_b32 %s, 4, v0", v(vCA))
    tab_srd()
    karg_wait([], ["X", "WS", "OUT"])
    p3c_setup()
    for i in range(16 * njb):
        e("v_mov_b32 %s, 0", v(ACC + i))
    e("s_lshl_b32 %s, %s, 2", s(sS2), s(sRB))
    e("s_add_u32 %s, %s, %s", s(sS2), s(sS2), s(sW))
    e("v_and_b32 v5, 31, v0")
    e("v_lshrrev_b32 v6, 5, v0")
    e("v_lshlrev_b32 v6, 8, v6")
    e("v_add_u32 v6, %s, v6", s(sS2))
    e("v_mul_u32_u24 v6, v6, v5")
    for kap in range(2):
        for i2 in range(4):
            for b in range(2):
                i = 2 * i2 + b
                s0 = 16 * kap + 8 * (i >> 2) + (i & 3)
                e("v_mul_u32_u24 v7, %d, v5", 64 * s0)
                e("v_add_u32 v7, v7, v6")
                e("v_and_b32 v7, 0x7ff, v7")
                e("v_cvt_f32_u32 v7, v7")
                e("v_mul_f32 v7, 0x3a000000, v7")
                e("v_cos_f32 %s, v7", v(18 + b))
                e("v_sin_f32 %s, v7", v(16 + b))
            e("s_nop 0")
            e("v_cvt_pk_bf16_f32 %s, v18, v19", v(FC + kap * 4 + i2))
            e("v_cvt_pk_bf16_f32 %s, -v16, -v17", v(FC + 8 + kap * 4 + i2))
    stamp("c_set")

    def xf(p): return FR + p * 28
    def cf(p, tl): return FR + p * 28 + 4 + 4 * tl

    def reads(p, t):
        ops = [lambda: e("ds_read_b128 %s, %s", v(xf(p), 4), v(vXA + t))]
        for tl in range(njb):
            ops.append(lambda tl=tl: e("ds_read_b128 %s, %s offset:%d", v(cf(p, tl), 4), v(vCA), 16384 + (t * njb + tl) * 1024))
        return ops

    def mfmas(p):
        return [(lambda tl=tl: e("v_mfma_f32_32x32x16_bf16 %s, %s, %s, %s", v(ACC + 16 * tl, 16), v(xf(p), 4), v(cf(p, tl), 4), v(ACC + 16 * tl, 16))) for tl in range(njb)]
    gemm_loop(5, 4, mfmas, reads, [2 + tl for tl in range(njb)], [vXA + i for i in range(5)], 0, 2)

    RR, MM = 16, 32
    e("v_lshrrev_b32 v6, 5, v0")
    e("v_lshlrev_b32 v6, 4, v6")
    e("s_lshl_b32 %s, %s, 7", s(sTmp), s(sW))
    e("s_add_u32 %s, %s, %d", s(sTmp), s(sTmp), AUX)
    e("v_add_u32 v6, %s, v6", s(sTmp))
    for jj in range(4):
        e("ds_read_b128 %s, v6 offset:%d", v(RR + 4 * jj, 4), jj * 32)
    if njb == 6:
        for jj in range(4):
            e("ds_read_b128 %s, v6 offset:%d", v(MM + 4 * jj, 4), 512 + jj * 32)
        e("v_and_b32 v7, 31, v0")
        e("v_cmp_eq_u32 vcc, 0, v7")
        e("v_mov_b32 v7, 0")
        e("v_mov_b32 v13, 0x44200000")
        e("v_cndmask_b32 v7, v7, v13, vcc")
    e("v_and_b32 v5, 15, v0")
    e("v_lshlrev_b32 v5, 6, v5")
    e("v_bfe_u32 v6, v0, 4, 1")
    e("v_lshl_add_u32 v5, v6, 5, v5")
    e("v_lshrrev_b32 v6, 5, v0")
    e("v_lshl_add_u32 v5, v6, 4, v5")
    if njb == 6:
        e("s_mov_b32 %s, 0", s(sJB))
    else:
        e("s_cmp_eq_u32 %s, 1", s(sCG))
        e("s_cselect_b32 %s, 12, 11", s(sJB))
        e("s_cmp_eq_u32 %s, 2", s(sCG))
        e("s_cselect_b32 %s, 1, %s", s(sJB), s(sJB))
    e("s_mul_i32 %s, %s, 21", s(sDelta), s(sS2))
    e("s_add_u32 %s, %s, %s", s(sDelta), s(sDelta), s(sJB))
    e("s_lshl_b32 %s, %s, 11", s(sDelta), s(sDelta))
    e("s_add_u32 %s, %s, 0x%x", s(sDelta), s(sDelta), WS_T)
    e("s_waitcnt lgkmcnt(0)")
    PQ, AF = [192, 224], [48, 56]

    def scale_pack(tl):
        a0 = ACC + 16 * tl
        if njb == 6 and tl == 0:
            for i in range(16):
                e("v_fma_f32 %s, -%s, v7, %s", v(a0 + i), v(MM + i), v(a0 + i))
        for i in range(0, 16, 2):
            e("v_pk_mul_f32 %s, %s, %s", v(a0 + i, 2), v(a0 + i, 2), v(RR + i, 2))
        for i in range(8):
            e("v_cvt_pk_bf16_f32 %s, %s, %s", v(AF[tl & 1] + i), v(a0 + 2 * i), v(a0 + 2 * i + 1))

    def stage(tl):
        p0, af = PQ[tl & 1], AF[tl & 1]
        e("s_nop 1")
        for mat in range(2):
            d = p0 + 16 * mat
            e("v_mfma_f32_32x32x16_bf16 %s, %s, %s, 0", v(d, 16), v(af, 4), v(FC + 8 * mat, 4))
            e("v_mfma_f32_32x32x16_bf16 %s, %s, %s, %s", v(d, 16), v(af + 4, 4), v(FC + 8 * mat + 4, 4), v(d, 16))

    def finish(tl):
        p0 = PQ[tl & 1]
        q0 = p0 + 16
        for q in range(2):
            for i in range(4):
                e("v_sub_f32 %s, %s, %s", v(p0 + 8 * q + i), v(p0 + 8 * q + i), v(q0 + 8 * q + 4 + i))
                e("v_add_f32 %s, %s, %s", v(p0 + 8 * q + 4 + i), v(p0 + 8 * q + 4 + i), v(q0 + 8 * q + i))
        for i in range(8):
            e("v_cvt_pk_bf16_f32 %s, %s, %s", v(q0 + i), v(p0 + 2 * i), v(p0 + 2 * i + 1))
        e("s_add_u32 %s, %s, %d", s(sTmp), s(sDelta), tl * 4096)
        e("s_nop 0")
        for i in range(4):
            e("v_permlane16_swap_b32 %s, %s", v(q0 + i), v(q0 + 4 + i))
        for q in range(2):
            e("buffer_store_dwordx4 %s, v5, %s, %s offen offset:%d sc1", v(q0 + 4 * q, 4), s(sWS, 4), s(sTmp), q * 1024)
    scale_pack(0)
    stage(0)
    for tl in range(njb):
        if tl + 1 < njb:
            scale_pack(tl + 1)
            stage(tl + 1)
        else:
            e("s_nop 15")
        finish(tl)
    e("s_lshl_b32 %s, %s, 4", s(sFlag), s(sCG))
    e("s_add_u32 %s, %s, %s", s(sFlag), s(sFlag), s(sRB))
    e("s_lshl_b32 %s, %s, 7", s(sFlag), s(sFlag))
    e("s_add_u32 %s, %s, 0x%x", s(sFlag), s(sFlag), WS_FT)
    e("s_branch L_dft_c")


def mid_k1():
    e("s_and_b32 s3, s2, 7")
    e("s_lshl_b32 %s, s3, 2", s(sK1))
    e("s_bfe_u32 s3, s2, 0x20004")
    e("s_add_u32 %s, %s, s3", s(sK1), s(sK1))
    e("s_bfe_u32 s3, s2, 0x10003")


def mid():
    FC, WV, DF, XA, UA, TW, PD = 64, 128, 16, 160, 192, 40, 48
    vL, vT, vWr, vUo, vP, vTG = 5, 6, 7, 10, 11, 15
    e("v_lshlrev_b32 %s, 4, v0", v(vL))
    e("v_and_b32 v9, 3, v0")
    e("v_add_u32 v12, %d, %s", FI_L, v(vL))
    for n in range(16):
        e("ds_read_b128 %s, %s offset:%d", v(FC + 4 * n, 4), "v12" if n >= 8 else v(vL), (n & 7) * 1024 + (0 if n >= 8 else FR_L))
    for i in range(32):
        e("v_mov_b32 %s, 0", v(WV + i))
    e("v_and_b32 v8, 15, v0")
    e("v_lshrrev_b32 v12, 2, v0")
    e("v_lshlrev_b32 %s, 6, v12", v(vT))
    e("v_lshl_add_u32 %s, v9, 4, %s", v(vT), v(vT))
    e("v_add_u32 %s, %s, %s", v(vT), s(sM0), v(vT))
    e("v_mul_u32_u24 v12, 43008, v12")
    e("v_lshl_add_u32 %s, v9, 4, v12", v(vTG))
    e("v_lshrrev_b32 v9, 4, v0")
    e("v_lshlrev_b32 %s, 6, v8", v(vUo))
    e("v_lshl_add_u32 %s, v9, 4, %s", v(vUo), v(vUo))
    e("v_mul_u32_u24 v12, %d, v9", 4 * 336)
    e("v_lshl_add_u32 v12, v8, 2, v12")
    e("s_add_u32 %s, %s, %s", s(sTmp), s(sMW), s(sPar))
    e("v_add_u32 %s, %s, v12", v(vWr), s(sTmp))
    e("s_waitcnt vmcnt(0) lgkmcnt(0)")
    lab = A.newlabel("L_noft")
    e("s_cmp_lg_u32 %s, 0", s(sW))
    e("s_cbranch_scc1 %s", lab)
    poll_check(PD, 1, vP, WS_FT)
    A.label(lab)
    e("s_barrier")
    stamp("m_B")
    e("s_lshl_b32 %s, %s, 5", s(sCnt), s(sJB))
    e("s_add_u32 %s, %s, %s", s(sCnt), s(sCnt), s(sK1))
    e("s_lshl_b32 %s, %s, 6", s(sCnt), s(sCnt))
    lab = A.newlabel("L_oneT")
    for un in range(2):
        if un == 1:
            e("s_cmp_eq_u32 %s, 1", s(sNU))
            e("s_cbranch_scc1 %s", lab)
        for n in range(4):
            e("s_add_u32 m0, %s, %d", s(sM0), un * (MT1 - MT0) + n * 1024)
            e("s_add_u32 %s, %s, %d", s(sTmp), s(sCnt), WS_T + un * 2048 + n * 16 * 43008)
            e("buffer_load_dwordx4 %s, %s, %s offen sc1 lds", v(vTG), s(sWS, 4), s(sTmp))
    A.label(lab)
    e("s_waitcnt vmcnt(0)")
    stamp("m_T")
    top = A.newlabel("L_unit")
    A.label(top)
    for ri in range(2):
        for kap in range(2):
            for rd in range(2):
                e("ds_read_b64_tr_b16 %s, %s offset:%d", v(DF + 8 * ri + 4 * kap + 2 * rd, 2), v(vT), kap * 2048 + rd * 1024 + ri * 8)
    e("s_waitcnt lgkmcnt(0)")
    for i in range(8):
        e("v_xor_b32 %s, 0x80008000, %s", v(DF + 16 + i), v(DF + 8 + i))

    def F(ri, t, kap): return FC + ((ri * 4 + t) * 2 + kap) * 4
    wreads = [(arr, mt, i) for mt in range(4) for i in range(4) for arr in range(2)]

    def wr():
        arr, mt, i = wreads.pop(0)
        e("ds_read_u16_d16_hi %s, %s offset:%d", v(WV + arr * 16 + 4 * mt + i), v(vWr), arr * MWA + (16 * mt + i) * 336)
    Tre, Tim, Tni = DF, DF + 8, DF + 16
    for mt in range(4):
        xr, xi = XA + 4 * mt, XA + 16 + 4 * mt
        for kap in range(2):
            mm16(xr, F(0, mt, kap), Tre + 4 * kap, kap == 0); wr()
            mm16(xi, F(1, mt, kap), Tre + 4 * kap, kap == 0); wr()
        for kap in range(2):
            mm16(xr, F(1, mt, kap), Tni + 4 * kap); wr()
            mm16(xi, F(0, mt, kap), Tim + 4 * kap); wr()
    e("s_waitcnt lgkmcnt(0)")
    e("s_nop 5")
    for n in range(0, 16, 2):
        xr, xi, w_r, w_i = XA + n, XA + 16 + n, WV + n, WV + 16 + n
        e("v_pk_mul_f32 %s, %s, %s", v(UA + n, 2), v(xr, 2), v(w_r, 2))
        e("v_pk_mul_f32 %s, %s, %s", v(UA + 16 + n, 2), v(xr, 2), v(w_i, 2))
        e("v_pk_fma_f32 %s, %s, %s, %s neg_lo:[1,0,0] neg_hi:[1,0,0]", v(UA + n, 2), v(xi, 2), v(w_i, 2), v(UA + n, 2))
        e("v_pk_fma_f32 %s, %s, %s, %s", v(UA + 16 + n, 2), v(xi, 2), v(w_r, 2), v(UA + 16 + n, 2))
    Yre, Yim, Ynr = DF, DF + 8, DF + 16
    for n in range(8):
        e("v_cvt_pk_bf16_f32 %s, %s, %s", v(Yre + n), v(UA + 2 * n), v(UA + 2 * n + 1))
        e("v_cvt_pk_bf16_f32 %s, %s, %s", v(Yim + n), v(UA + 16 + 2 * n), v(UA + 16 + 2 * n + 1))
        e("v_xor_b32 %s, 0x80008000, %s", v(Ynr + n), v(Yre + n))
    e("s_nop 1")
    for nt in range(4):
        ur, ui = UA + 4 * nt, UA + 16 + 4 * nt
        for kap in range(2):
            mm16(ur, Yre + 4 * kap, F(0, nt, kap), kap == 0)
            mm16(ui, Yim + 4 * kap, F(0, nt, kap), kap == 0)
        for kap in range(2):
            mm16(ur, Yim + 4 * kap, F(1, nt, kap))
            mm16(ui, Ynr + 4 * kap, F(1, nt, kap))
    e("s_mul_i32 %s, %s, 21", s(sDelta), s(sK1))
    e("s_add_u32 %s, %s, %s", s(sDelta), s(sDelta), s(sJB))
    e("s_lshl_b32 %s, %s, 12", s(sDelta), s(sDelta))
    e("s_add_u32 %s, %s, 0x%x", s(sDelta), s(sDelta), WS_U)
    for nt in range(4):
        ur, ui, pk = UA + 4 * nt, UA + 16 + 4 * nt, 224 + 4 * nt
        if nt == 2:
            e("s_nop 1")
        e("v_cvt_pk_bf16_f32 %s, %s, %s", v(pk), v(ur), v(ur + 1))
        e("v_cvt_pk_bf16_f32 %s, %s, %s", v(pk + 1), v(ur + 2), v(ur + 3))
        e("v_cvt_pk_bf16_f32 %s, %s, %s", v(pk + 2), v(ui), v(ui + 1))
        e("v_cvt_pk_bf16_f32 %s, %s, %s", v(pk + 3), v(ui + 2), v(ui + 3))
        e("buffer_store_dwordx4 %s, %s, %s, %s offen offset:%d sc1", v(pk, 4), v(vUo), s(sWS, 4), s(sDelta), nt * 1024)
    done = A.newlabel("L_unitd")
    e("s_cmp_eq_u32 %s, 2", s(sNU))
    e("s_cbranch_scc0 %s", done)
    stamp("m_u1")
    e("s_mov_b32 %s, 3", s(sNU))
    e("s_add_u32 %s, %s, 1", s(sJB), s(sJB))
    e("v_add_u32 %s, 2, %s", v(vWr), v(vWr))
    e("v_add_u32 %s, %d, %s", v(vT), MT1 - MT0, v(vT))
    e("s_branch %s", top)
    A.label(done)


hdr = open("cdna_kernels/%s.s.ref" % NAME).read().split("; Override launch")[0]
A(hdr.rstrip())
A("; @launch grid=(256,1,1) block=(512,1,1) lds=%d" % LDS_ALL)
A('.amdgcn_target "amdgcn-amd-amdhsa--gfx950"')
KN = NAME + "_kernel"
kernel_header(A, KN)
stamp("start")
if STAMPS:
    for i in range(1, 9):
        e("s_mov_b32 %s, 0", s(84 + 2 * i))
e("s_cmp_ge_u32 s2, 256")
e("s_cbranch_scc1 L_end")
e("s_load_dwordx16 %s, s[0:1], 0", s(P, 16))
e("s_load_dwordx4 %s, s[0:1], 64", s(P + 16, 4))
e("v_lshrrev_b32 v1, 6, v0")
e("v_and_b32 v0, 63, v0")
e("v_readfirstlane_b32 %s, v1", s(sW))
e("s_and_b32 s3, s2, 1")
e("s_lshl_b32 %s, s3, 3", s(sRB))
e("s_bfe_u32 s3, s2, 0x30003")
e("s_add_u32 %s, %s, s3", s(sRB), s(sRB))
e("s_lshr_b32 %s, s2, 6", s(sTmp2))
e("s_bfe_u32 s3, s2, 0x20001")
e("s_mul_i32 %s, s3, 3", s(sCG))
e("s_add_u32 %s, %s, %s", s(sCG), s(sCG), s(sTmp2))
e("s_and_b32 %s, %s, 3", s(sLW), s(sW))
e("s_cmp_eq_u32 %s, 3", s(sTmp2))
e("s_cbranch_scc1 L_dft")
e("s_cmp_ge_u32 %s, 4", s(sW))
e("s_cbranch_scc0 L_ffn_c")
ffn_loader()
A.label("L_ffn_c")
p1_ffn()
A.label("L_dft")
e("s_mov_b32 %s, s3", s(sCG))
e("s_cmp_eq_u32 s3, 0")
e("s_cbranch_scc1 L_dft6")
for njb in (5, 6):
    if njb == 6:
        A.label("L_dft6")
    e("s_cmp_ge_u32 %s, 4", s(sW))
    e("s_cbranch_scc0 L_dft%d_c", njb)
    dft_loader(njb)
    A.label("L_dft%d_c" % njb)
    p1_dft(njb)

A.label("L_dft_c")
stamp("dc_ep")
e("s_waitcnt vmcnt(0)")
stamp("dc_st")
e("s_barrier")
e("s_cmp_lg_u32 %s, 0", s(sW))
e("s_cbranch_scc1 L_noft")
flag_store(sFlag, 12, 13)
e("v_lshlrev_b32 v11, 7, v0")
poll_issue(48, 1, 11, WS_FT)
A.label("L_noft")
mid_k1()
e("s_mul_i32 %s, s3, 14", s(sMW))
e("s_lshl_b32 %s, %s, 6", s(sTmp), s(sW))
e("s_add_u32 %s, %s, %s", s(sMW), s(sMW), s(sTmp))
e("s_add_u32 %s, %s, %d", s(sMW), s(sMW), MW0)
e("s_mul_i32 s3, s3, 5")
e("s_add_u32 s3, s3, %s", s(sW))
e("s_lshl_b32 %s, s3, 1", s(sJB))
e("s_mov_b32 %s, 0", s(sPar))
e("s_mov_b32 %s, 2", s(sNU))
e("s_lshl_b32 %s, %s, 12", s(sM0), s(sW))
e("s_branch L_mid")

A.label("L_dft_l")
mid_k1()
e("s_add_u32 %s, s3, 2", s(sTmp))
e("s_cmp_ge_u32 %s, %s", s(sLW), s(sTmp))
e("s_cbranch_scc1 L_dft_l3")
e("s_mul_i32 %s, s3, 14", s(sMW))
e("s_add_u32 %s, %s, %d", s(sMW), s(sMW), MW0 + 256)
e("s_mul_i32 s3, s3, 10")
e("s_add_u32 s3, s3, 8")
e("s_add_u32 %s, s3, %s", s(sJB), s(sLW))
e("s_lshl_b32 %s, %s, 1", s(sPar), s(sLW))
e("s_cmp_eq_u32 %s, 2", s(sLW))
e("s_cselect_b32 %s, 64, %s", s(sPar), s(sPar))
e("s_mov_b32 %s, 1", s(sNU))
e("s_lshl_b32 %s, %s, 12", s(sM0), s(sLW))
e("s_add_u32 %s, %s, %d", s(sM0), s(sM0), MTL)
A.label("L_mid")
mid()
stamp("m_end")
e("s_waitcnt vmcnt(0)")
stamp("m_st")
e("s_barrier")
e("s_cmp_ge_u32 %s, 4", s(sW))
e("s_cbranch_scc1 L_dft_l2")
e("s_cmp_lg_u32 %s, 0", s(sW))
e("s_cbranch_scc1 L_nofu")
e("s_lshl_b32 %s, s2, 7", s(sFlag))
e("s_add_u32 %s, %s, %d", s(sFlag), s(sFlag), WS_FU - 192 * 128)
flag_store(sFlag, 12, 13)
A.label("L_nofu")
A.label("L_p3c")
p3c()
e("s_branch L_fin")

A.label("L_dft_l3")
e("s_waitcnt vmcnt(0)")
for i in range(2):
    e("s_barrier")
A.label("L_dft_l2")
e("v_lshlrev_b32 v5, 4, v0")
for z in range(6):
    z_ci_loads(z, 5)
z_gconst()
fu_poll_issue()
A.label("L_zpart")
zpart()
A.label("L_fin")
if STAMPS and "--dbg" not in sys.argv:
    stamp("issued_out")
    e("s_waitcnt vmcnt(0)")
    e("%s s[100:101]", "s_memtime" if "--cyc" in sys.argv else "s_memrealtime")
    e("s_waitcnt lgkmcnt(0)")
    for i in range(9):
        e("v_mov_b32 %s, %s", v(16 + i), s(84 + 2 * i))
    e("s_lshl_b32 s3, s2, 3")
    e("s_add_u32 s3, s3, %s", s(sW))
    e("s_lshl_b32 s3, s3, 6")
    e("s_add_u32 s3, s3, 0x%x", WS_STAMP)
    e("v_mov_b32 v5, 0")
    for i in range(3):
        e("buffer_store_dwordx4 %s, v5, %s, s3 offen offset:%d", v(16 + 4 * i, 4), s(sWS, 4), 16 * i)
if "--dbg" in sys.argv:
    e("s_load_dwordx2 s[4:5], s[0:1], 64")
    e("s_waitcnt vmcnt(0) lgkmcnt(0)")
    e("s_memrealtime s[100:101]")
    srd(A, 8, 4, 256)
    e("s_waitcnt lgkmcnt(0)")
    e("s_mov_b64 exec, 1")
    e("s_not_b32 s84, s84")
    e("s_cmp_ge_u32 s2, 192")
    e("s_cselect_b32 s3, 32, 0")
    for i in range(8):
        k = [0, 8, 1, 2, 3, 4, 5, 6][i]
        e("v_mov_b32 v16, %s", s(84 + 2 * k))
        e("v_mov_b32 v17, %d", 4 * i)
        e("buffer_atomic_umax v16, v17, s[8:11], s3 offen sc1")
A.label("L_end")
e("s_endpgm")

kernel_desc(A, KN, 256, accum=256)
TB.emit_tables(A)
out = [x for x in sys.argv[1:] if not x.startswith("--")]
open(out[0] if out else "v11.s", "w").write(A.text())
```

```python
import sys
from asmlib import *
import tables9 as TB

NAME = "parallel_sum__spectral_gfnet__glu_gated_reglu__prompt"
A = Asm()
e = A.e


def opt(name, default):
    for x in sys.argv:
        if x.startswith("--%s=" % name):
            return int(x.split("=")[1])
    return default


STAMPS = "--stamps" in sys.argv
SLEEP = opt("sleep", 4)
ROTA, ROTB = opt("rota", 1), opt("rotb", 3)
CIP1 = opt("cip1", 0)
DROT = opt("drot", 1)
WSP = opt("wsp", 2)
PRL = opt("prl", 0)
WARM = opt("warm", 2)
FOLD = opt("fold", 1)
POLL1 = opt("poll1", 0)
CIL = opt("cil", 1)
STG = opt("stg", 1)
ZPR = opt("zpr", 3)
R3A, R3B, RZ = opt("r3a", 0), opt("r3b", 0), opt("rz", 0)
OUTF = ["", " sc1", " nt", " sc0 sc1"][opt("outf", 0)]
NFIX = opt("nfix", 0)

WS_EP = 0x0000
WS_FS = 0x1000
WS_FSC = WS_FS + 128 * 128
WS_FT = 0xC000
WS_FU = 0xE000
WS_FH = 0x10000
WS_FW = 0x50000
WS_STAT = 0x28000
WS_CSP = 0x30000
WS_H = 0x60000
WS_T = 0x660000
WS_U = 0x900000
WS_WD = 0xBA0000
WS_STAMP = 0x2000000

SLAB = 49152
AUX = 3 * SLAB
ZU0, ZUS = 0, 16384
CP0, CPS = 65536, 20480
LGO = AUX + 2048
FR_L, FI_L = 90112, AUX + 2048 + 128
MW0, MWA = 0, 22272
MT0 = 45056
RPK = FI_L
LDS_ALL = FI_L + 12288

sX, sG, sU, sWS, sTAB, sWR, sWI, sWD, sOUT = 8, 12, 16, 20, 24, 28, 32, 36, 40
sW, sRB, sCG, sLW = 44, 45, 46, 47
sTmp, sTmp2, sCnt, sDelta, sBuf, sSLAB = 48, 49, 50, 51, 52, 53
sAoff, sBoff, sM0 = 54, 55, 56
sWM, sWN, sFlag = 57, 58, 59
sK1, sJB, sTAG, sSpin = 60, 61, 62, 63
P = 64
sP, sG3, sHo, sWo, sUo, sCo, sLB, sLB2, sOo, sOc, sOOB = 64, 65, 66, 67, 68, 69, 70, 71, 72, 73, 74
sSgn, sS2, sNU, sWcol, sPar = 76, 78, 79, 80, 81
sWa, sWb, sWc, sMW = 6, 7, 75, 80
sR3, sRZ, sI4 = 82, 83, 67
SRDS = {"X": (sX, P, 2048 * 1280), "WR": (sWR, P + 2, 2048 * 642), "WI": (sWI, P + 4, 2048 * 642),
        "G": (sG, P + 8, 640 * 3072), "U": (sU, P + 10, 640 * 3072), "WD": (sWD, P + 12, 1536 * 1280),
        "OUT": (sOUT, P + 14, 2048 * 1280), "WS": (sWS, P + 18, 1 << 28)}


class VQ:
    def __init__(self):
        self.q = []
    def issue(self, tag, n=1):
        self.q += [tag] * n
    def wait(self, *tags, extra=""):
        last = max([i for i, t in enumerate(self.q) if t in tags], default=-1)
        n = len(self.q) - 1 - last
        assert n <= 63, n
        e("s_waitcnt vmcnt(%d)%s", n, extra)
        self.q = self.q[last + 1:]
    def drain(self):
        self.q = []


STN = {}
for x in sys.argv:
    if x.startswith("--st="):
        for i_, grp in enumerate(x[5:].split(",")):
            for nm in grp.split("+"):
                STN[nm] = i_ + 1
STN["start"] = 0


def cap(fn):
    keep, A.lines = A.lines, []
    fn()
    out, A.lines = A.lines, keep
    return out


def weave(main, groups, skip=0):
    n = len(groups)
    step = (len(main) - skip) / (n + 0.001) if n else 0
    k = 0
    for i, ln in enumerate(main):
        while k < n and i >= skip + k * step:
            A.lines += groups[k]
            k += 1
        A.lines.append(ln)
    while k < n:
        A.lines += groups[k]
        k += 1


def stamp(nm):
    if STAMPS and nm in STN:
        e("%s %s", "s_memtime" if "--cyc" in sys.argv else "s_memrealtime", s(84 + 2 * STN[nm], 2))


def make_tag():
    e("s_mul_i32 %s, %s, 0x9E3779B1", s(sTAG), s(sTAG))
    e("s_add_u32 %s, %s, 0x7F4A7C15", s(sTAG), s(sTAG))


def flag_store(soff, t0, t1):
    e("v_mov_b32 %s, %s", v(t0), s(sTAG))
    e("v_mov_b32 %s, 0", v(t1))
    e("s_mov_b64 exec, 1")
    e("buffer_store_dword %s, %s, %s, %s offen sc1", v(t0), v(t1), s(sWS, 4), s(soff))
    e("s_mov_b64 exec, -1")


def poll_issue(dst, n, vaddr, base):
    e("s_mov_b32 %s, 0x%x", s(sTmp), base)
    e("buffer_load_dword%s %s, %s, %s, %s offen sc1", "" if n == 1 else "x%d" % n, v(dst, n), v(vaddr), s(sWS, 4), s(sTmp))


def poll_check(dst, n, vaddr, base):
    top, done = A.newlabel("L_poll"), A.newlabel("L_polld")
    e("s_mov_b32 %s, 0", s(sSpin))
    A.label(top)
    e("v_cmp_ne_u32 vcc, %s, %s", s(sTAG), v(dst))
    for i in range(1, n):
        e("v_cmp_ne_u32 s[4:5], %s, %s", s(sTAG), v(dst + i))
        e("s_or_b64 vcc, vcc, s[4:5]")
    e("s_cmp_eq_u64 vcc, 0")
    e("s_cbranch_scc1 %s", done)
    e("s_add_u32 %s, %s, 1", s(sSpin), s(sSpin))
    e("s_cmp_ge_u32 %s, 40000", s(sSpin))
    e("s_cbranch_scc1 %s", done)
    if SLEEP:
        e("s_sleep %d", SLEEP)
    poll_issue(dst, n, vaddr, base)
    e("s_waitcnt vmcnt(0)")
    e("s_branch %s", top)
    A.label(done)


def karg_wait(first, rest=()):
    e("s_waitcnt lgkmcnt(0)")
    for k in first:
        srd(A, *SRDS[k])
    e("s_load_dword %s, %s, 0x%x", s(sTAG), s(P + 18, 2), WS_EP)
    for k in rest:
        srd(A, *SRDS[k])


def tab_srd():
    e("s_getpc_b64 s[4:5]")
    e("s_add_u32 s4, s4, dft_tables@rel32@lo+4")
    e("s_addc_u32 s5, s5, dft_tables@rel32@hi+12")
    srd(A, sTAB, 4, TB.TAB_BYTES)


def dpp_sum16(r_):
    for ctl in ("quad_perm:[1,0,3,2]", "quad_perm:[2,3,0,1]", "row_half_mirror", "row_mirror"):
        e("s_nop 1")
        e("v_add_f32_dpp %s, %s, %s %s row_mask:0xf bank_mask:0xf", v(r_), v(r_), v(r_), ctl)


def round_bf16(r_):
    e("v_cvt_pk_bf16_f32 %s, %s, %s", v(r_), v(r_), v(r_))
    e("v_and_b32 %s, 0xffff0000, %s", v(r_), v(r_))


def mm16(d, a_, b_, first=False):
    e("v_mfma_f32_16x16x32_bf16 %s, %s, %s, %s", v(d, 4), v(a_, 4), v(b_, 4), "0" if first else v(d, 4))


def stats_addr(R):
    e("s_lshl_b32 %s, %s, 2", s(sTmp), s(sCG))
    e("s_add_u32 %s, %s, %s", s(sTmp), s(sTmp), s(sW))
    e("s_lshl_b32 %s, %s, 2", s(sTmp), s(sTmp))
    e("v_lshrrev_b32 %s, 4, v0", v(R + 20))
    e("v_add_u32 %s, %s, %s", v(R + 21), s(sTmp), v(R + 20))
    e("v_and_b32 %s, 31, %s", v(R + 20), v(R + 21))
    e("v_lshlrev_b32 %s, 6, %s", v(R + 20), v(R + 20))
    e("v_lshrrev_b32 %s, 5, %s", v(R + 22), v(R + 21))
    e("v_add_u32 %s, %s, %s", v(R + 20), v(R + 20), v(R + 22))
    e("s_lshl_b32 %s, %s, 2", s(sTmp), s(sRB))
    e("v_add_u32 %s, %s, %s", v(R + 20), s(sTmp), v(R + 20))
    e("v_mul_u32_u24 %s, 1280, %s", v(R + 20), v(R + 20))
    e("v_and_b32 %s, 15, v0", v(R + 22))
    e("v_lshl_add_u32 %s, %s, 4, %s", v(R + 20), v(R + 22), v(R + 20))


def stats_issue(R):
    for n in range(5):
        e("buffer_load_dwordx4 %s, %s, %s, 0 offen offset:%d", v(R + 4 * n, 4), v(R + 20), s(sX, 4), n * 256)


def stats_compute(R):
    F = R + 24
    S_, V_, T_ = R + 64, R + 66, R + 22
    for n in range(20):
        e("v_lshlrev_b32 %s, 16, %s", v(F + 2 * n), v(R + n))
        e("v_and_b32 %s, 0xffff0000, %s", v(F + 2 * n + 1), v(R + n))
    e("v_pk_add_f32 %s, %s, %s", v(S_, 2), v(F, 2), v(F + 2, 2))
    for n in range(2, 20):
        e("v_pk_add_f32 %s, %s, %s", v(S_, 2), v(S_, 2), v(F + 2 * n, 2))
    e("v_add_f32 %s, %s, %s", v(S_), v(S_), v(S_ + 1))
    dpp_sum16(S_)
    e("v_mul_f32 %s, 0x3acccccd, %s", v(S_), v(S_))
    for n in range(20):
        e("v_pk_add_f32 %s, %s, %s op_sel_hi:[1,0] neg_lo:[0,1] neg_hi:[0,1]", v(F + 2 * n, 2), v(F + 2 * n, 2), v(S_, 2))
    e("v_pk_mul_f32 %s, %s, %s", v(V_, 2), v(F, 2), v(F, 2))
    for n in range(1, 20):
        e("v_pk_fma_f32 %s, %s, %s, %s", v(V_, 2), v(F + 2 * n, 2), v(F + 2 * n, 2), v(V_, 2))
    e("v_add_f32 %s, %s, %s", v(V_), v(V_), v(V_ + 1))
    dpp_sum16(V_)
    e("v_mul_f32 %s, 0x3acccccd, %s", v(V_), v(V_))
    round_bf16(V_)
    e("v_add_f32 %s, 0x3727c5ac, %s", v(V_), v(V_))
    round_bf16(V_)
    e("v_sqrt_f32 %s, %s", v(V_), v(V_))
    e("s_nop 0")
    round_bf16(V_)
    e("v_rcp_f32 %s, %s", v(V_), v(V_))
    round_bf16(S_)
    e("v_and_b32 %s, 15, v0", v(T_))
    e("v_cmp_eq_u32 vcc, 1, %s", v(T_))
    e("v_lshlrev_b32 %s, 2, %s", v(R + 1), v(R + 21))
    e("v_lshl_add_u32 %s, %s, 9, %s", v(R + 1), v(T_), v(R + 1))
    e("v_cndmask_b32 %s, %s, %s, vcc", v(V_), v(V_), v(S_))
    e("v_cmp_gt_u32 vcc, 2, %s", v(T_))
    e("s_lshl_b32 %s, %s, 10", s(sTmp), s(sRB))
    e("s_add_u32 %s, %s, 0x%x", s(sTmp), s(sTmp), WS_STAT)
    e("s_and_saveexec_b64 s[4:5], vcc")
    e("buffer_store_dword %s, %s, %s, %s offen sc1", v(V_), v(R + 1), s(sWS, 4), s(sTmp))
    e("s_mov_b64 exec, s[4:5]")


def aux_poll_addr(ffn, dst):
    e("s_lshl_b32 %s, %s, 2", s(sTmp), s(sRB))
    e("s_add_u32 %s, %s, %s", s(sTmp), s(sTmp), s(sLW))
    e("s_lshl_b32 %s, %s, 1", s(sTmp), s(sTmp))
    e("v_and_b32 v6, 1, v0")
    e("v_add_u32 v6, %s, v6", s(sTmp))
    if ffn:
        e("s_and_b32 %s, s2, 0xc6", s(sTmp))
        e("s_add_u32 %s, %s, 128", s(sTmp), s(sTmp))
        e("v_and_b32 v7, 7, v0")
        e("v_bfe_u32 v12, v0, 3, 1")
        e("v_mul_u32_u24 v13, 6, v12")
        e("v_or_b32 v7, v7, v13")
        e("v_lshlrev_b32 v7, 3, v7")
        e("v_add3_u32 v7, v7, v12, %s", s(sTmp))
        e("v_cmp_gt_u32 vcc, 16, v0")
        e("s_nop 1")
        e("v_cndmask_b32 v6, v7, v6, vcc")
    e("v_lshlrev_b32 %s, 7, v6", v(dst))


def fw_poll_addr(dst):
    e("s_lshl_b32 %s, %s, 6", s(sTmp), s(sLW))
    e("v_add_u32 %s, %s, v0", v(dst), s(sTmp))
    e("v_min_u32 %s, 159, %s", v(dst), v(dst))
    e("v_lshlrev_b32 %s, 7, %s", v(dst), v(dst))


def aux_issue(ffn, R):
    e("v_and_b32 %s, 31, v0", v(R))
    e("v_lshrrev_b32 %s, 5, v0", v(R + 1))
    e("v_lshlrev_b32 %s, 2, %s", v(R), v(R))
    e("v_lshl_add_u32 %s, %s, 9, %s", v(R), v(R + 1), v(R))
    e("s_lshl_b32 %s, %s, 7", s(sTmp), s(sLW))
    e("v_add_u32 %s, %s, %s", v(R), s(sTmp), v(R))
    e("s_lshl_b32 %s, %s, 10", s(sTmp), s(sRB))
    e("s_add_u32 %s, %s, 0x%x", s(sTmp), s(sTmp), WS_STAT)
    e("buffer_load_dword %s, %s, %s, %s offen sc1", v(R + 2), v(R), s(sWS, 4), s(sTmp))
    if ffn:
        e("v_lshrrev_b32 %s, 4, v0", v(R + 1))
        e("v_mul_u32_u24 %s, 12288, %s", v(R + 1), v(R + 1))
        e("v_and_b32 %s, 15, v0", v(R + 3))
        e("v_lshl_add_u32 %s, %s, 4, %s", v(R + 1), v(R + 3), v(R + 1))
        e("s_lshl_b32 %s, %s, 8", s(sTmp), s(sLW))
        e("s_lshl_b32 %s, %s, 10", s(sTmp2), s(sCG))
        e("s_add_u32 %s, %s, %s", s(sTmp), s(sTmp), s(sTmp2))
        e("s_add_u32 %s, %s, 0x%x", s(sTmp), s(sTmp), WS_CSP)
        e("v_lshrrev_b32 %s, 5, v0", v(R + 16))
        e("v_lshl_add_u32 %s, %s, 29, %s", v(R + 16), v(R + 16), v(R + 1))
        for n in range(3):
            e("buffer_load_dwordx4 %s, %s, %s, %s offen sc1", v(R + 4 + 4 * n, 4), v(R + 16 if n == 2 else R + 1), s(sWS, 4), s(sTmp))
            if n < 2:
                e("s_add_u32 %s, %s, %d", s(sTmp), s(sTmp), 4 * 12288)


def aux_finish(ffn, R):
    e("v_add_u32 %s, %d, %s", v(R), AUX, v(R))
    e("ds_write_b32 %s, %s", v(R), v(R + 2))
    if ffn:
        C_, T_ = R + 4, R + 8
        for n in range(1, 3):
            for k in (0, 2):
                e("v_pk_add_f32 %s, %s, %s", v(C_ + k, 2), v(C_ + k, 2), v(C_ + 4 * n + k, 2))
        for op in ("v_permlane16_swap_b32", "v_permlane32_swap_b32"):
            for i in range(4):
                e("v_mov_b32 %s, %s", v(T_ + i), v(C_ + i))
            e("s_nop 0")
            for i in range(4):
                e("%s %s, %s", op, v(C_ + i), v(T_ + i))
            e("s_nop 0")
            for i in range(4):
                e("v_add_f32 %s, %s, %s", v(C_ + i), v(C_ + i), v(T_ + i))
        e("s_lshl_b32 %s, %s, 8", s(sTmp), s(sLW))
        e("s_add_u32 %s, %s, %d", s(sTmp), s(sTmp), AUX + 1024)
        e("v_lshl_add_u32 %s, %s, 4, %s", v(R + 1), v(R + 3), s(sTmp))
        e("ds_write_b128 %s, %s", v(R + 1), v(C_, 4))
    e("s_waitcnt lgkmcnt(0)")


def p3_map():
    e("s_and_b32 s3, s2, 7")
    e("s_lshr_b32 %s, s2, 3", s(sTmp))
    e("s_lshr_b32 %s, s3, 1", s(sP))
    e("s_lshl_b32 %s, %s, 3", s(sP), s(sP))
    e("s_and_b32 %s, %s, 7", s(sTmp2), s(sTmp))
    e("s_add_u32 %s, %s, %s", s(sP), s(sP), s(sTmp2))
    e("s_and_b32 s3, s3, 1")
    e("s_lshl_b32 s3, s3, 2")
    e("s_lshr_b32 %s, %s, 3", s(sTmp), s(sTmp))
    e("s_add_u32 %s, s3, %s", s(sG3), s(sTmp))


ZG, ZC, ZA = 64, 128, 200


def z_setup():
    p3_map()
    e("s_mul_i32 %s, %s, %d", s(sLB), s(sLW), ZUS)
    e("s_lshl_b32 %s, %s, 7", s(sUo), s(sP))
    e("s_lshl_b32 %s, %s, 12", s(sTmp), s(sLW))
    e("s_add_u32 %s, %s, %s", s(sUo), s(sUo), s(sTmp))
    e("s_add_u32 %s, %s, 0x%x", s(sUo), s(sUo), WS_U)
    e("s_mul_i32 %s, %s, 21", s(sCo), s(sG3))
    e("s_add_u32 %s, %s, %s", s(sCo), s(sCo), s(sLW))
    e("s_mul_i32 %s, %s, 3072", s(sCo), s(sCo))
    e("s_add_u32 %s, %s, %d", s(sCo), s(sCo), TB.CI_OFF)
    e("s_lshl_b32 %s, %s, 1", s(sS2), s(sP))


def wd_bases(wreg):
    e("s_lshr_b32 %s, %s, 1", s(sOc), s(sG3))
    e("s_and_b32 %s, %s, 1", s(sTmp), s(sG3))
    e("s_mul_i32 %s, %s, 20", s(sTmp), s(sTmp))
    e("s_add_u32 %s, %s, %s", s(sOc), s(sOc), s(sTmp))
    e("s_add_u32 %s, %s, 16", s(sOc), s(sOc))
    e("s_lshl_b32 %s, %s, 5", s(sOc), s(sOc))
    e("s_lshl_b32 %s, %s, 10", s(sTmp), s(wreg))
    e("s_add_u32 %s, %s, 0x%x", s(sTmp), s(sTmp), WS_WD)
    e("s_mul_i32 %s, %s, %d", s(sWa), s(sG3), 2 * 49152)
    e("s_add_u32 %s, %s, %s", s(sWa), s(sWa), s(sTmp))
    e("s_mul_i32 %s, %s, %d", s(sWc), s(sOc), 49152 // 32)
    e("s_add_u32 %s, %s, %s", s(sWc), s(sWc), s(sTmp))


def rot3():
    e("s_and_b32 %s, %s, 3", s(sR3), s(sG3))
    e("s_mul_i32 %s, %s, %d", s(sR3), s(sR3), R3A)
    e("s_and_b32 %s, %s, 7", s(sTmp), s(sP))
    e("s_mul_i32 %s, %s, %d", s(sTmp), s(sTmp), R3B)
    e("s_add_u32 %s, %s, %s", s(sR3), s(sR3), s(sTmp))
    for _ in range((3 * R3A + 7 * R3B) // 12):
        e("s_cmp_ge_u32 %s, 12", s(sR3))
        e("s_cselect_b32 %s, 12, 0", s(sTmp))
        e("s_sub_u32 %s, %s, %s", s(sR3), s(sR3), s(sTmp))


def item4(i, dst):
    e("s_add_u32 %s, %s, %d", s(dst), s(sR3), i)
    e("s_cmp_ge_u32 %s, 12", s(dst))
    e("s_cselect_b32 %s, 12, 0", s(sTmp))
    e("s_sub_u32 %s, %s, %s", s(dst), s(dst), s(sTmp))
    e("s_lshl_b32 %s, %s, 12", s(dst), s(dst))


WOFF = [(0, 0), (0, 49152), (0, 20 * 49152), (0, 21 * 49152), (1, 0)]


def stage_wd(i0, i1):
    e("s_mul_i32 %s, %s, %d", s(sSLAB), s(sLW), CPS)
    rot3()
    for i in range(i0, i1):
        item4(i, sI4)
        e("s_add_u32 %s, %s, %s", s(sTmp2), s(sI4), s(sWa))
        for ct in range(5):
            e("s_add_u32 m0, %s, %d", s(sSLAB), CP0 + i * 5120 + ct * 1024)
            if ct < 4:
                e("s_add_u32 %s, %s, %d", s(sTmp), s(sTmp2), WOFF[ct][1])
            else:
                e("s_add_u32 %s, %s, %s", s(sTmp), s(sI4), s(sWc))
            e("buffer_load_dwordx4 v5, %s, %s offen sc1 lds", s(sWS, 4), s(sTmp))


def z_ci_all():
    for z in range(6):
        z_ci_loads(z, 5)


def stage_done(n):
    e("s_lshl_b32 %s, %s, 2", s(sTmp), s(sLW))
    e("s_add_u32 %s, %s, %d", s(sTmp), s(sTmp), LGO + 16)
    e("v_mov_b32 v12, %s", s(sTmp))
    e("v_mov_b32 v13, 1")
    e("s_waitcnt vmcnt(%d)", n)
    e("ds_write_b32 v12, v13")


def z_item(z, mul, base, dst):
    e("s_and_b32 %s, %s, 3", s(dst), s(sG3))
    e("s_mul_i32 %s, %s, %d", s(dst), s(dst), RZ)
    e("s_add_u32 %s, %s, %d", s(dst), s(dst), z)
    e("s_cmp_ge_u32 %s, 6", s(dst))
    e("s_cselect_b32 %s, 6, 0", s(sTmp))
    e("s_sub_u32 %s, %s, %s", s(dst), s(dst), s(sTmp))
    e("s_lshl_b32 %s, %s, 2", s(sTmp), s(dst))
    e("s_add_u32 %s, %s, %s", s(sTmp), s(sTmp), s(sLW))
    e("s_cmp_gt_u32 %s, 20", s(sTmp))
    e("s_cselect_b32 %s, 0x20000000, %s", s(sTmp), s(base))
    e("s_mul_i32 %s, %s, %d", s(dst), s(dst), mul)
    e("s_add_u32 %s, %s, %s", s(dst), s(dst), s(sTmp))


def z_ci_loads(z, vL):
    z_item(z, 4 * 3072, sCo, sRZ)
    for c3 in range(3):
        e("buffer_load_dwordx4 %s, %s, %s, %s offen offset:%d", v(ZC + z * 12 + c3 * 4, 4), v(vL), s(sTAB, 4), s(sRZ), c3 * 1024)


def ZGr(u, ro, nh, kap): return ZG + (((u * 2 + ro) * 2 + nh) * 2 + kap) * 4


def z_gconst():
    e("v_and_b32 v56, 15, v0")
    e("v_lshlrev_b32 v56, 6, v56")
    e("v_add_u32 v56, %s, v56", s(sS2))
    e("v_cvt_f32_u32 v56, v56")
    e("v_mul_f32 v56, 0x3a000000, v56")
    e("v_lshrrev_b32 v57, 5, v0")
    e("v_lshlrev_b32 v57, 3, v57")
    e("v_cvt_f32_u32 v57, v57")
    e("v_bfe_u32 v58, v0, 4, 1")
    e("v_cvt_f32_u32 v58, v58")
    e("v_mul_f32 v58, 0x3e800000, v58")
    for u in range(2):
        if u:
            e("v_add_f32 v56, 0x3a000000, v56")
        for kap in range(2):
            if kap:
                e("v_add_f32 v59, 0x41800000, v57")
                e("v_fma_f32 v59, v59, v56, v58")
            else:
                e("v_fma_f32 v59, v57, v56, v58")
            for ro in range(2):
                if ro:
                    e("v_add_f32 v60, 0xbe800000, v59")
                else:
                    e("v_mov_b32 v60, v59")
                for i2 in range(4):
                    e("v_cos_f32 v61, v60")
                    e("v_add_f32 v60, v60, v56")
                    e("v_cos_f32 v62, v60")
                    e("v_add_f32 v60, v60, v56")
                    b = ZGr(u, ro, 0, kap) + i2
                    e("v_cvt_pk_bf16_f32 %s, v61, v62", v(b))
                    e("v_xor_b32 %s, 0x80000000, %s", v(b + 8), v(b))


def fu_poll_issue():
    e("v_lshlrev_b32 v11, 7, v0")
    lab0 = A.newlabel("L_nofup")
    e("s_cmp_lg_u32 %s, 0", s(sLW))
    e("s_cbranch_scc1 %s", lab0)
    poll_issue(16, 1, 11, WS_FU)
    A.label(lab0)


def zpart():
    vL, vUG, vTU, vTU1, vPU = 5, 6, 7, 8, 11
    UF, ZT = 16, 32
    e("v_lshlrev_b32 %s, 4, v0", v(vL))
    e("v_lshrrev_b32 v12, 3, v0")
    e("v_mul_u32_u24 v12, %d, v12", 21 * 4096)
    e("v_lshrrev_b32 v13, 2, v0")
    e("v_lshrrev_b32 v14, 4, v0")
    e("v_xor_b32 v13, v13, v14")
    e("v_and_b32 v13, 1, v13")
    e("v_lshl_add_u32 v12, v13, 6, v12")
    e("v_and_b32 v13, 3, v0")
    e("v_lshl_add_u32 %s, v13, 4, v12", v(vUG))
    e("v_lshrrev_b32 v12, 5, v0")
    e("v_lshlrev_b32 v12, 3, v12")
    e("v_bfe_u32 v14, v0, 2, 2")
    e("v_add_u32 v12, v12, v14")
    e("v_lshlrev_b32 v12, 7, v12")
    e("v_lshl_add_u32 v12, v13, 4, v12")
    e("v_bfe_u32 v14, v0, 4, 1")
    e("v_lshl_add_u32 v12, v14, 3, v12")
    e("v_bfe_u32 v14, v0, 3, 1")
    e("v_lshl_add_u32 v12, v14, 6, v12")
    e("v_add_u32 %s, %s, v12", v(vTU), s(sLB))
    e("v_xor_b32 %s, 64, %s", v(vTU1), v(vTU))
    e("v_mov_b32 v12, %d", LGO)
    lab1, lab2 = A.newlabel("L_lgo"), A.newlabel("L_lgod")
    e("s_cmp_lg_u32 %s, 0", s(sLW))
    e("s_cbranch_scc1 %s", lab1)
    e("s_waitcnt vmcnt(0)")
    poll_check(UF, 1, vPU, WS_FU)
    e("v_mov_b32 v13, 1")
    e("ds_write_b32 v12, v13")
    e("s_branch %s", lab2)
    A.label(lab1)
    e("s_sleep 1")
    e("ds_read_b32 v13, v12")
    e("s_waitcnt lgkmcnt(0)")
    e("v_cmp_ne_u32 vcc, 1, v13")
    e("s_cbranch_vccnz %s", lab1)
    A.label(lab2)
    stamp("zU")
    if ZPR:
        e("s_setprio %d", ZPR)
    q = VQ()

    def udma(z):
        z_item(z, 4 * 4096, sUo, sRZ)
        for n in range(4):
            e("s_add_u32 m0, %s, %d", s(sLB), (z % 4) * 4096 + n * 1024)
            e("s_add_u32 %s, %s, %d", s(sTmp2), s(sRZ), n * 8 * 21 * 4096)
            e("buffer_load_dwordx4 %s, %s, %s offen sc1 lds", v(vUG), s(sWS, 4), s(sTmp2))
        q.issue("u%d" % z, 4)
    for z in range(4):
        udma(z)
    for z in range(6):
        q.wait("u%d" % z)
        stamp("z%d" % z)
        for u in range(2):
            for kap in range(2):
                for rd in range(2):
                    e("ds_read_b64_tr_b16 %s, %s offset:%d", v(UF + 8 * u + 4 * kap + 2 * rd, 2), v(vTU1 if u else vTU), (z % 4) * 4096 + kap * 2048 + rd * 512)
        for u in range(2):
            e("s_waitcnt lgkmcnt(%d)", 4 - 4 * u)
            for kap in range(2):
                for nh in range(2):
                    for ro in range(2):
                        mm16(ZT + u * 16 + (nh * 2 + ro) * 4, UF + 8 * u + 4 * kap, ZGr(u, ro, nh, kap), kap == 0)
        if z + 4 < 6:
            udma(z + 4)
        for u in range(2):
            for nh in range(2):
                for k in range(4):
                    e("v_cvt_pk_bf16_f32 %s, %s, %s", v(UF + (2 * u + nh) * 4 + k), v(ZT + u * 16 + nh * 8 + 2 * k), v(ZT + u * 16 + nh * 8 + 2 * k + 1))
        e("s_nop 0")
        for rt in range(4):
            for c3 in range(3):
                mm16(ZA + (c3 * 4 + rt) * 4, ZC + z * 12 + c3 * 4, UF + 4 * rt, z == 0)
    e("v_add_u32 v12, %s, %s", s(sLB), v(vL))
    for rt in range(4):
        for c3 in range(3):
            if rt == 3 and c3 == 0:
                e("s_nop 1")
            e("ds_write_b128 v12, %s offset:%d", v(ZA + (c3 * 4 + rt) * 4, 4), c3 * 4096 + rt * 1024)
    e("s_waitcnt lgkmcnt(0)")
    stamp("zend")
    e("s_barrier")


vA0, vA1, vB0, vB1 = 2, 3, 4, 1


def lgo_init():
    e("v_mov_b32 v12, %d", LGO)
    e("v_mov_b32 v13, 0")
    e("ds_write_b32 v12, v13")
    e("ds_write_b32 v12, v13 offset:4")
    for i in range(4):
        e("ds_write_b32 v12, v13 offset:%d", 16 + 4 * i)


def k_offset(dst):
    e("s_bfe_u32 %s, s2, 0x30003", s(dst))
    e("s_lshr_b32 %s, s2, 6", s(sTmp))
    e("s_mul_i32 %s, %s, 3", s(sTmp), s(sTmp))
    e("s_add_u32 %s, %s, %s", s(dst), s(dst), s(sTmp))
    e("s_and_b32 %s, s2, 1", s(sTmp))
    e("s_lshl_b32 %s, %s, 1", s(sTmp), s(sTmp))
    e("s_add_u32 %s, %s, %s", s(dst), s(dst), s(sTmp))
    e("s_cmp_ge_u32 %s, 10", s(dst))
    e("s_cselect_b32 %s, 10, 0", s(sTmp))
    e("s_sub_u32 %s, %s, %s", s(dst), s(dst), s(sTmp))


def x_src_scalar():
    e("s_lshl_b32 %s, %s, 2", s(sAoff), s(sRB))
    e("s_add_u32 %s, %s, %s", s(sAoff), s(sAoff), s(sLW))
    e("s_mul_i32 %s, %s, 1280", s(sAoff), s(sAoff))


def ffn_loader():
    if PRL & 2:
        e("s_setprio 2")
    e("v_lshrrev_b32 v6, 3, v0")
    e("v_mul_u32_u24 v6, 81920, v6")
    e("v_and_b32 v7, 7, v0")
    e("v_lshrrev_b32 v8, 4, v0")
    e("v_xor_b32 v7, v7, v8")
    e("v_lshl_add_u32 %s, v7, 4, v6", v(vA0))
    e("v_xor_b32 %s, 64, %s", v(vA1), v(vA0))
    e("v_mul_u32_u24 v6, 3072, v8")
    e("v_and_b32 v7, 15, v0")
    e("v_lshlrev_b32 v8, 2, v8")
    e("v_xor_b32 v7, v7, v8")
    e("v_lshl_add_u32 %s, v7, 4, v6", v(vB0))
    e("v_xor_b32 %s, 32, %s", v(vB1), v(vB0))
    x_src_scalar()
    e("s_mul_i32 %s, %s, %d", s(sBoff), s(sLW), 16 * 3072)
    e("s_lshl_b32 %s, %s, 8", s(sTmp), s(sCG))
    e("s_add_u32 %s, %s, %s", s(sBoff), s(sBoff), s(sTmp))
    e("s_lshl_b32 %s, %s, 12", s(sM0), s(sLW))
    k_offset(sJB)
    NR = 10
    tab_srd()
    stamp("l_pre")
    e("s_waitcnt lgkmcnt(0)")
    stamp("l_k")
    for k in ("X", "G", "U"):
        srd(A, *SRDS[k])
    q = VQ()

    def slab_groups(i):
        b = (i % 3) * SLAB
        gs = []

        def head():
            if i < NFIX:
                e("s_add_u32 %s, %s, %d", s(sWM), s(sAoff), i * 128)
                e("s_add_u32 %s, %s, %d", s(sWN), s(sBoff), i * 64 * 3072)
            else:
                e("s_add_u32 %s, %s, %d", s(sTmp), s(sJB), NFIX)
                e("s_lshl_b32 %s, %s, 7", s(sWM), s(sTmp))
                e("s_add_u32 %s, %s, %s", s(sWM), s(sWM), s(sAoff))
                e("s_mul_i32 %s, %s, %d", s(sWN), s(sTmp), 64 * 3072)
                e("s_add_u32 %s, %s, %s", s(sWN), s(sWN), s(sBoff))
                e("s_add_u32 %s, %s, 1", s(sJB), s(sJB))
                e("s_cmp_eq_u32 %s, %d", s(sJB), NR)
                e("s_cselect_b32 %s, 0, %s", s(sJB), s(sJB))
        for n in range(4):
            def f(n=n):
                if n == 0:
                    head()
                e("s_add_u32 m0, %s, %d", s(sM0), b + n * 1024)
                e("s_add_u32 %s, %s, %d", s(sTmp), s(sWM), n * 8 * 81920)
                e("buffer_load_dwordx4 %s, %s, %s offen lds", v(vA1 if n & 1 else vA0), s(sX, 4), s(sTmp))
            gs.append(cap(f))
        for mat in range(2):
            for n in range(4):
                def f(n=n, mat=mat):
                    e("s_add_u32 m0, %s, %d", s(sM0), b + 16384 * (1 + mat) + n * 1024)
                    e("s_add_u32 %s, %s, %d", s(sTmp), s(sWN), n * 4 * 3072)
                    e("buffer_load_dwordx4 %s, %s, %s offen lds", v(vB1 if n & 2 else vB0), s(sU if mat else sG, 4), s(sTmp))
                gs.append(cap(f))
        q.issue("s%d" % i, 12)
        return gs

    def slab(i, main=()):
        weave(list(main), slab_groups(i))

    def wait2(n):
        la, lb = A.newlabel("L_w2"), A.newlabel("L_w2")
        e("s_cmp_ge_u32 %s, 48", s(sPar))
        e("s_cbranch_scc1 %s", la)
        e("s_waitcnt vmcnt(%d)", n + 4)
        e("s_branch %s", lb)
        A.label(la)
        e("s_waitcnt vmcnt(%d)", n)
        A.label(lb)

    def bar(b):
        stamp("fl_a%d" % b)
        e("s_barrier")
        stamp("fl_b%d" % b)
    slab(0)
    stamp("l_s0")
    lgo_init()
    e("s_load_dword %s, %s, 0x%x", s(sTAG), s(P + 18, 2), WS_EP)
    for k in ("WS", "WD", "WR", "WI"):
        srd(A, *SRDS[k])
    z_setup()
    e("v_lshlrev_b32 v5, 4, v0")
    fw_poll_addr(10)
    aux_poll_addr(True, 15)
    slab(1, cap(z_gconst))
    stamp("l_iss")
    q.wait("s0", extra=" lgkmcnt(0)")
    e("s_barrier")
    stamp("l_bi")
    make_tag()
    slab(2)
    repack_dma()
    wait2(12)
    q.q = ["s2"] * 12
    bar(0)
    slab(3)
    wait2(12)
    q.q = ["s3"] * 12
    bar(1)
    slab(4)
    e("s_waitcnt vmcnt(24)")
    repack_finish()
    wait2(12)
    q.q = ["s4"] * 12
    bar(2)
    slab(5)
    if WARM == 2:
        warm_touch(); q.issue("wt", 2)
    q.wait("s4")
    bar(3)
    lab = A.newlabel("L_nocf")
    e("s_cmp_lg_u32 %s, 0", s(sLW))
    e("s_cbranch_scc1 %s", lab)
    e("s_lshl_b32 %s, s2, 7", s(sCnt))
    e("s_add_u32 %s, %s, 0x%x", s(sCnt), s(sCnt), WS_FW)
    flag_store(sCnt, 16, 17)
    A.label(lab)
    slab(6)
    q.wait("s5")
    bar(4)
    slab(7)
    q.wait("s6")
    bar(5)
    poll_issue(40, 1, 15, WS_FS); poll_issue(41, 1, 10, WS_FW); q.issue("p", 2)
    slab(8)
    q.wait("s7", "p")
    bar(6)
    poll_check(40, 1, 15, WS_FS)
    poll_check(41, 1, 10, WS_FW)
    aux_issue(True, 16); q.issue("aux", 4)
    slab(9)
    q.wait("s8")
    bar(7)
    q.wait("aux")
    aux_finish(True, 16)
    q.wait("s9")
    bar(8)
    wd_bases(sLW)
    stage_wd(0, 4)
    if CIL == 0:
        z_ci_all()
    stage_done(18 if CIL == 0 else 0)
    e("v_mov_b32 v12, %d", LGO)
    lab = A.newlabel("L_hout")
    A.label(lab)
    e("s_sleep 1")
    e("ds_read_b32 v13, v12 offset:4")
    e("s_waitcnt lgkmcnt(0)")
    e("v_cmp_ne_u32 vcc, 4, v13")
    e("s_cbranch_vccnz %s", lab)
    fu_poll_issue()
    if CIL == 1:
        z_ci_all()
    e("s_branch L_zpart")


def wspec_dma():
    mid_k1()
    e("v_mul_u32_u24 v12, 3121, v0")
    e("v_lshrrev_b32 v12, 16, v12")
    e("v_mul_u32_u24 v12, %d, v12", 32 * 642 - 336)
    e("v_lshl_add_u32 v12, v0, 4, v12")
    e("s_mul_i32 %s, %s, 642", s(sDelta), s(sK1))
    e("s_mul_i32 s3, s3, 306")
    e("s_add_u32 %s, %s, s3", s(sDelta), s(sDelta))
    e("s_and_b32 %s, %s, 1", s(sTmp), s(sLW))
    e("s_mul_i32 %s, %s, %d", s(sCnt), s(sTmp), 11 * 1008)
    e("s_mul_i32 %s, %s, %d", s(sTmp), s(sTmp), 33 * 32 * 642)
    e("s_add_u32 %s, %s, %s", s(sDelta), s(sDelta), s(sTmp))
    if WSP == 2:
        e("s_cmp_ge_u32 %s, 2", s(sLW))
        e("s_cselect_b32 %s, %s, %s", s(sWR), s(sWI), s(sWR))
        e("s_cselect_b32 %s, %s, %s", s(sWR + 1), s(sWI + 1), s(sWR + 1))
        e("s_cselect_b32 %s, %d, 0", s(sTmp), MWA)
        e("s_add_u32 %s, %s, %s", s(sCnt), s(sCnt), s(sTmp))
        gs = []
        for n in range(11):
            def f(n=n):
                e("s_add_u32 m0, %s, %d", s(sCnt), MW0 + n * 1008)
                e("s_add_u32 %s, %s, %d", s(sTmp), s(sDelta), n * 3 * 32 * 642)
                e("buffer_load_dwordx4 v12, %s, %s offen lds", s(sWR, 4), s(sTmp))
            gs.append(cap(f))
        return gs
    lab, lab2 = A.newlabel("L_wi"), A.newlabel("L_wd")
    e("s_cmp_ge_u32 %s, 2", s(sLW))
    e("s_cbranch_scc1 %s", lab)
    for arr in range(2):
        if arr:
            e("s_branch %s", lab2)
            A.label(lab)
        for n in range(11):
            e("s_add_u32 m0, %s, %d", s(sCnt), MW0 + arr * MWA + n * 1008)
            e("s_add_u32 %s, %s, %d", s(sTmp), s(sDelta), n * 3 * 32 * 642)
            e("buffer_load_dwordx4 v12, %s, %s offen lds", s(sWI if arr else sWR, 4), s(sTmp))
    A.label(lab2)


def repack_dma():
    e("v_lshrrev_b32 v12, 3, v0")
    e("v_mul_u32_u24 v13, 1280, v12")
    e("v_bfe_u32 v14, v0, 4, 2")
    e("v_lshlrev_b32 v14, 1, v14")
    e("v_and_b32 v12, 7, v0")
    e("v_xor_b32 v12, v12, v14")
    e("v_lshl_add_u32 v12, v12, 4, v13")
    e("s_mul_i32 %s, s2, 3", s(sCnt))
    e("s_add_u32 %s, %s, %s", s(sCnt), s(sCnt), s(sLW))
    e("s_cmp_eq_u32 %s, 3", s(sLW))
    e("s_cselect_b32 %s, 480, %s", s(sCnt), s(sCnt))
    e("s_mul_i32 %s, %s, 52429", s(sBuf), s(sCnt))
    e("s_lshr_b32 %s, %s, 19", s(sBuf), s(sBuf))
    e("s_mul_i32 %s, %s, 10", s(sTmp), s(sBuf))
    e("s_sub_u32 %s, %s, %s", s(sCnt), s(sCnt), s(sTmp))
    e("s_mul_i32 %s, %s, 40960", s(sDelta), s(sBuf))
    e("s_lshl_b32 %s, %s, 7", s(sTmp), s(sCnt))
    e("s_add_u32 %s, %s, %s", s(sDelta), s(sDelta), s(sTmp))
    e("s_min_u32 %s, %s, 2", s(sWa), s(sLW))
    e("s_lshl_b32 %s, %s, 12", s(sWa), s(sWa))
    e("s_add_u32 %s, %s, %d", s(sWa), s(sWa), RPK)
    lab = A.newlabel("L_norp")
    e("s_cmp_ge_u32 %s, 48", s(sBuf))
    e("s_cbranch_scc1 %s", lab)
    for n in range(4):
        e("s_add_u32 m0, %s, %d", s(sWa), n * 1024)
        e("s_add_u32 %s, %s, %d", s(sTmp), s(sDelta), n * 8 * 1280)
        e("buffer_load_dwordx4 v12, %s, %s offen lds", s(sWD, 4), s(sTmp))
    A.label(lab)
    e("s_mul_i32 %s, %s, %d", s(sWb), s(sCnt), 4 * 49152)
    e("s_lshl_b32 %s, %s, 10", s(sTmp), s(sBuf))
    e("s_add_u32 %s, %s, %s", s(sWb), s(sWb), s(sTmp))
    e("s_add_u32 %s, %s, 0x%x", s(sWb), s(sWb), WS_WD)
    e("s_mov_b32 %s, %s", s(sPar), s(sBuf))


def repack_finish():
    lab = A.newlabel("L_norp")
    e("s_cmp_ge_u32 %s, 48", s(sPar))
    e("s_cbranch_scc1 %s", lab)
    e("v_lshrrev_b32 v56, 2, v0")
    e("v_lshlrev_b32 v56, 7, v56")
    e("v_and_b32 v57, 3, v0")
    e("v_lshl_add_u32 v56, v57, 3, v56")
    e("v_bfe_u32 v57, v0, 3, 2")
    e("v_lshl_add_u32 v56, v57, 5, v56")
    e("v_add_u32 v56, %s, v56", s(sWa))
    for tq in range(1, 4):
        e("v_xor_b32 %s, %d, v56", v(56 + tq), tq << 5)
    for tq in range(4):
        for rd in range(2):
            e("ds_read_b64_tr_b16 %s, %s offset:%d", v(16 + tq * 4 + 2 * rd, 2), v(56 + tq), rd * 2048)
    for n in range(4):
        e("s_waitcnt lgkmcnt(%d)", 6 - 2 * n)
        e("s_add_u32 %s, %s, %d", s(sTmp), s(sWb), n * 49152)
        e("buffer_store_dwordx4 %s, v5, %s, %s offen sc1", v(16 + n * 4, 4), s(sWS, 4), s(sTmp))
    A.label(lab)


def dft_loader(njb):
    if PRL & 1:
        e("s_setprio 2")
    XR = 64
    vW0, vW1 = 6, 7
    sRot = [50, 51, 52, 57, 58]
    e("v_lshrrev_b32 v8, 3, v0")
    e("v_mul_u32_u24 v9, 81920, v8")
    e("v_and_b32 v10, 7, v0")
    e("v_lshl_add_u32 %s, v10, 4, v9", v(vA0))
    e("v_lshrrev_b32 v9, 4, v0")
    e("v_xor_b32 v10, v10, v9")
    e("v_lshlrev_b32 v8, 7, v8")
    e("v_lshl_add_u32 v8, v10, 4, v8")
    e("s_lshl_b32 %s, %s, 12", s(sTmp), s(sLW))
    e("v_add_u32 %s, %s, v8", v(vW0), s(sTmp))
    e("v_xor_b32 %s, 64, %s", v(vW1), v(vW0))
    e("v_add_u32 v8, %d, %s", 2 * SLAB, v(vW0))
    e("v_add_u32 v9, %d, %s", 2 * SLAB, v(vW1))
    e("v_lshlrev_b32 %s, 4, v0", v(vB0))
    x_src_scalar()
    if njb == 6:
        e("s_mul_i32 %s, %s, %d", s(sBoff), s(sLW), 6 * 1024)
    else:
        e("s_mul_i32 %s, %s, %d", s(sBoff), s(sCG), 20 * 5 * 1024)
        e("s_mul_i32 %s, %s, %d", s(sTmp), s(sLW), 5 * 1024)
        e("s_add_u32 %s, %s, %s", s(sBoff), s(sBoff), s(sTmp))
        e("s_add_u32 %s, %s, %d", s(sBoff), s(sBoff), 20 * 1024)
    e("s_bfe_u32 %s, s2, 0x30003", s(sJB))
    e("s_cmp_ge_u32 %s, 5", s(sJB))
    e("s_cselect_b32 %s, 5, 0", s(sTmp))
    e("s_sub_u32 %s, %s, %s", s(sJB), s(sJB), s(sTmp))
    if not DROT:
        e("s_mov_b32 %s, 0", s(sJB))
    for i in range(5):
        e("s_add_u32 %s, %s, %d", s(sTmp), s(sJB), i)
        e("s_cmp_ge_u32 %s, 5", s(sTmp))
        e("s_cselect_b32 %s, 5, 0", s(sTmp2))
        e("s_sub_u32 %s, %s, %s", s(sRot[i]), s(sTmp), s(sTmp2))
    e("s_mul_i32 %s, %s, %d", s(sM0), s(sLW), njb * 1024)
    e("s_add_u32 %s, %s, 16384", s(sM0), s(sM0))
    tab_srd()
    stamp("l_pre")
    e("s_waitcnt lgkmcnt(0)")
    stamp("l_k")
    srd(A, *SRDS["X"])
    q = VQ()

    def xl(i):
        gs = []
        for n in range(4):
            for hf in range(2):
                def f(n=n, hf=hf):
                    if n == 0 and hf == 0:
                        e("s_lshl_b32 %s, %s, 7", s(sFlag), s(sRot[i]))
                        e("s_add_u32 %s, %s, %s", s(sFlag), s(sFlag), s(sAoff))
                    e("s_add_u32 %s, %s, %d", s(sTmp), s(sFlag), n * 8 * 81920)
                    e("buffer_load_dwordx4 %s, %s, %s, %s offen offset:%d", v(XR + i * 32 + n * 8 + hf * 4, 4), v(vA0), s(sX, 4), s(sTmp), hf * 640)
                gs.append(cap(f))
        q.issue("x%d" % i, 8)
        return gs

    def cl(i):
        gs = []
        for tl in range(njb):
            def f(tl=tl):
                e("s_add_u32 m0, %s, %d", s(sM0), ((i + 1) % 3) * SLAB + tl * 1024)
                if tl == 0:
                    e("s_mul_i32 %s, %s, %d", s(sSLAB), s(sRot[i]), 4 * njb * 1024)
                    e("s_add_u32 %s, %s, %s", s(sSLAB), s(sSLAB), s(sBoff))
                e("s_add_u32 %s, %s, %d", s(sTmp), s(sSLAB), tl * 1024)
                e("buffer_load_dwordx4 %s, %s, %s offen lds", v(vB0), s(sTAB, 4), s(sTmp))
            gs.append(cap(f))
        q.issue("c%d" % i, njb)
        return gs

    def fl():
        gs = []
        for n in range(4):
            def f(n=n):
                e("s_lshl_b32 %s, %s, 11", s(sTmp), s(sLW))
                e("s_add_u32 m0, %s, %d", s(sTmp), (FI_L if n & 2 else FR_L) + (n & 1) * 1024)
                e("s_add_u32 %s, %s, %d", s(sTmp), s(sTmp), TB.F64_OFF + (n >> 1) * 8192 + (n & 1) * 1024)
                e("buffer_load_dwordx4 %s, %s, %s offen lds", v(vB0), s(sTAB, 4), s(sTmp))
            gs.append(cap(f))
        q.issue("f", 4)
        return gs

    def fold(i):
        for n in range(4):
            a0 = XR + i * 32 + n * 8
            if FOLD == 0:
                for d in range(4):
                    t = 16 + 4 * (d & 1)
                    e("v_lshlrev_b32 %s, 16, %s", v(t), v(a0 + d))
                    e("v_and_b32 %s, 0xffff0000, %s", v(t + 1), v(a0 + d))
                    e("v_lshlrev_b32 %s, 16, %s", v(t + 2), v(a0 + 4 + d))
                    e("v_and_b32 %s, 0xffff0000, %s", v(t + 3), v(a0 + 4 + d))
                    e("v_pk_fma_f32 %s, %s, %s, %s", v(t, 2), v(t + 2, 2), s(sSgn, 2), v(t, 2))
                    e("v_cvt_pk_bf16_f32 %s, %s, %s", v(a0 + d), v(t), v(t + 1))
            else:
                T = 28 + 8 * (n & 1)
                for d in range(4):
                    e("v_lshlrev_b32 %s, 16, %s", v(T + d), v(a0 + d))
                    e("v_lshlrev_b32 %s, 16, %s", v(T + 4 + d), v(a0 + 4 + d))
                for d in range(8):
                    e("v_and_b32 %s, %s, %s", v(a0 + d), v(44), v(a0 + d))
                if FOLD == 1:
                    for d in range(4):
                        e("v_fmac_f32 %s, %s, %s", v(T + d), s(sSgn), v(T + 4 + d))
                    for d in range(4):
                        e("v_fmac_f32 %s, %s, %s", v(a0 + d), s(sSgn), v(a0 + 4 + d))
                else:
                    for d in (0, 2):
                        e("v_pk_fma_f32 %s, %s, %s, %s", v(T + d, 2), v(T + 4 + d, 2), s(sSgn, 2), v(T + d, 2))
                    for d in (0, 2):
                        e("v_pk_fma_f32 %s, %s, %s, %s", v(a0 + d, 2), v(a0 + 4 + d, 2), s(sSgn, 2), v(a0 + d, 2))
                for d in range(4):
                    e("v_cvt_pk_bf16_f32 %s, %s, %s", v(a0 + d), v(T + d), v(a0 + d))
            b = (i + 1) % 3
            base = ((vW0, vW1) if b < 2 else (8, 9))[n & 1]
            e("ds_write_b128 %s, %s offset:%d", v(base), v(a0, 4), (b * SLAB if b < 2 else 0) + n * 1024)

    def bar(b):
        stamp("dl_a%s" % b)
        e("s_barrier")
        stamp("dl_b%s" % b)
    weave([], xl(0) + cl(0))
    stamp("l_s0")
    lgo_init()
    e("s_load_dword %s, %s, 0x%x", s(sTAG), s(P + 18, 2), WS_EP)
    for k in ("WS", "WR", "WI"):
        srd(A, *SRDS[k])
    e("s_cmp_ge_u32 %s, 2", s(sCG))
    e("s_cselect_b32 %s, -1.0, 1.0", s(sSgn))
    e("s_mov_b32 %s, %s", s(sSgn + 1), s(sSgn))
    weave([], xl(1))
    e("v_mov_b32 v44, 0xffff0000")
    aux_poll_addr(False, 15)
    e("v_add_u32 %s, %d, v8", v(vW0), (-2 * SLAB) & 0xffffffff)
    e("v_add_u32 %s, %d, v9", v(vW1), (-2 * SLAB) & 0xffffffff)
    fw_poll_addr(10)
    stamp("l_iss")
    q.wait("x0")
    stamp("dl_x0")
    weave(cap(lambda: fold(0)), cl(1) + xl(2))
    q.wait("c0", extra=" lgkmcnt(0)")
    e("s_barrier")
    stamp("l_bi")
    make_tag()
    q.wait("x1")
    weave(cap(lambda: fold(1)), cl(2) + xl(3))
    q.wait("c1", extra=" lgkmcnt(0)")
    bar(0)
    q.wait("x2")
    stamp("dl_x2")
    weave(cap(lambda: fold(2)), cl(3) + xl(4))
    stamp("dl_f2")
    poll_issue(46, 1, 15, WS_FS); q.issue("p")
    q.wait("c2", extra=" lgkmcnt(0)")
    bar(1)
    q.wait("x3")
    stamp("dl_x3")
    weave(cap(lambda: fold(3)), cl(4) + fl())
    stamp("dl_f3")
    q.wait("p")
    poll_check(46, 1, 15, WS_FS)
    aux_issue(False, 24); q.issue("aux")
    e("s_waitcnt lgkmcnt(0)")
    bar(2)
    if WSP == 2:
        gs = wspec_dma()
        weave(cap(lambda: fold(4)), gs)
        q.issue("w", 11)
    else:
        fold(4)
    q.wait("aux")
    aux_finish(False, 24)
    bar(3)
    poll_issue(41, 1, 10, WS_FW)
    z_setup()
    wd_bases(sLW)
    if WSP == 0:
        wspec_dma()
    e("s_barrier")
    if WSP == 1:
        wspec_dma()
        e("s_waitcnt vmcnt(11)")
    else:
        e("s_waitcnt vmcnt(0)")
    poll_check(41, 1, 10, WS_FW)
    e("s_branch L_dft_l")


def addr_advance(regs):
    e("s_add_u32 %s, %s, %d", s(sBuf), s(sBuf), SLAB)
    e("s_cmp_ge_u32 %s, %d", s(sBuf), 3 * SLAB)
    e("s_cselect_b32 %s, 0, %s", s(sBuf), s(sBuf))
    e("s_cselect_b32 %s, %d, %s", s(sDelta), (-2 * SLAB) & 0xffffffff, s(sSLAB))
    for r_ in regs:
        e("v_add_u32 %s, %s, %s", v(r_), s(sDelta), v(r_))


def gemm_loop(nslab, NT, mfmas, reads, need, areg, bar_gap, per_gap, last_extra=(), first_hook=None, peel=None, buf0=0):
    nreads = len(reads(0, 0))
    nm = len(need)

    def step(mf, nxt, first_gap=0, pre=None, barg=None):
        issued, done = 0, 0
        for m in range(nm):
            if need[m] > done:
                allowed = nreads - need[m] + issued
                e("s_waitcnt lgkmcnt(%d)", min(15, allowed))
                done = need[m] if allowed <= 15 else min(nreads, nreads + issued - 15)
            mf[m]()
            if pre and m in pre:
                for f in pre[m]:
                    f()
                if m == barg:
                    done = nreads
            if m >= first_gap:
                for k in range(per_gap):
                    if issued < len(nxt):
                        nxt[issued]()
                        issued += 1
        assert issued == len(nxt), (issued, len(nxt))

    def bar(vm=False):
        e("s_waitcnt lgkmcnt(0)%s", " vmcnt(0)" if vm else "")
        e("s_barrier")

    def merge(*ds):
        out = {}
        for d in ds:
            for k, x in d.items():
                out.setdefault(k, [])
                out[k] += x
        return out

    def spread(ops):
        out = {}
        for n, f in enumerate(ops):
            g = nm - 1 - (len(ops) - 1 - n) * max(1, (nm - bar_gap - 1) // max(1, len(ops)))
            out.setdefault(max(g, 0), []).append(f)
        return out

    def slab(last, peeled=False):
        if peeled:
            for t in range(NT - 1):
                step(mfmas(t & 1, t == 0), reads((t + 1) & 1, t + 1), pre=peel[t])
            step(mfmas(1), reads(0, 0), first_gap=bar_gap + (1 if bar_gap else 0),
                 pre=merge({0: [lambda: addr_advance(areg)]}, {bar_gap: [lambda: bar(True)]}, peel[NT - 1]), barg=bar_gap)
            return
        ex = list(last_extra) if last else []
        per = (len(ex) + NT - 1) // NT
        for t in range(NT - 1):
            step(mfmas(t & 1), reads((t + 1) & 1, t + 1), pre=spread(ex[t * per:(t + 1) * per]))
        if last:
            step(mfmas(1), [], pre=spread(ex[(NT - 1) * per:]))
        else:
            hooks = {bar_gap: [lambda: bar(first_hook is not None)] + ([first_hook] if first_hook else [])}
            step(mfmas(1), reads(0, 0), first_gap=bar_gap + (1 if bar_gap else 0), pre=merge({0: [lambda: addr_advance(areg)]}, hooks), barg=bar_gap)
    e("s_mov_b32 %s, %d", s(sBuf), buf0)
    e("s_mov_b32 %s, %d", s(sSLAB), SLAB)
    e("s_mov_b32 %s, %d", s(sCnt), 1 if peel else 0)
    e("s_waitcnt lgkmcnt(0)")
    make_tag()
    e("s_barrier")
    stamp("c_bi")
    for f in reads(0, 0):
        f()
    if peel:
        slab(False, True)
    lab = A.newlabel("L_gemm")
    A.label(lab)
    slab(False)
    e("s_add_u32 %s, %s, 1", s(sCnt), s(sCnt))
    e("s_cmp_lt_u32 %s, %d", s(sCnt), nslab - 1)
    e("s_cbranch_scc1 %s", lab)
    slab(True)
    stamp("c_le")


vWD = [1, 2, 3, 4, 14]


def p3c_setup():
    p3_map()
    wd_bases(sW)
    e("s_lshl_b32 %s, %s, 6", s(sOo), s(sG3))
    e("s_mul_i32 %s, %s, %d", s(sHo), s(sP), 2 * 48 * 2048)
    e("s_lshl_b32 %s, %s, 11", s(sTmp), s(sW))
    e("s_add_u32 %s, %s, %s", s(sHo), s(sHo), s(sTmp))
    e("s_and_b32 %s, %s, 1", s(sTmp), s(sW))
    e("s_lshl_b32 %s, %s, 10", s(sTmp), s(sTmp))
    e("s_lshl_b32 %s, %s, 1", s(sTmp2), s(sP))
    e("s_add_u32 %s, %s, %s", s(sTmp), s(sTmp), s(sTmp2))
    e("s_lshr_b32 %s, %s, 1", s(sTmp2), s(sW))
    e("s_add_u32 %s, %s, %s", s(sTmp), s(sTmp), s(sTmp2))
    e("s_mul_i32 %s, %s, 1280", s(sTmp), s(sTmp))
    e("s_add_u32 %s, %s, %s", s(sOo), s(sOo), s(sTmp))
    e("s_add_u32 %s, %s, %s", s(sOc), s(sOc), s(sTmp))


def p3c():
    vL, vO, vPH, vWJ = 1, 2, 3, 4
    RS, XR, WJ, ACC = 8, 8, 152, 176
    NI = 12
    q = VQ()
    e("v_lshlrev_b32 %s, 4, v0", v(vL))
    sHr = [50, 51, 52, 53]
    for rho in range(4):
        e("s_add_u32 %s, %s, %d", s(sTmp), s(sW), rho)
        e("s_bfe_u32 %s, %s, 0x10001", s(sTmp2), s(sTmp))
        e("s_mul_i32 %s, %s, %d", s(sTmp2), s(sTmp2), 48 * 2048)
        e("s_and_b32 %s, %s, 1", s(sTmp), s(sTmp))
        e("s_lshl_b32 %s, %s, 10", s(sTmp), s(sTmp))
        e("s_add_u32 %s, %s, %s", s(sTmp), s(sTmp), s(sTmp2))
        e("s_add_u32 %s, %s, %s", s(sTmp), s(sTmp), s(sHo))
        e("s_add_u32 %s, %s, %d", s(sHr[rho]), s(sTmp), WS_H)

    rot3()

    def wload(i, ct):
        if ct == 0:
            item4(i, sI4)
            e("s_add_u32 %s, %s, %s", s(sTmp2), s(sI4), s(sWa))
        if ct < 4:
            e("s_add_u32 %s, %s, %d", s(sTmp), s(sTmp2), WOFF[ct][1])
        else:
            e("s_add_u32 %s, %s, %s", s(sTmp), s(sI4), s(sWc))
        e("buffer_load_dwordx4 %s, %s, %s, %s offen sc1", v(RS + (i % 4) * 36 + ct * 4, 4), v(vL), s(sWS, 4), s(sTmp))
        q.issue("i%d" % i)

    def hload(i):
        item4(i, sRZ)
        e("s_lshl_b32 %s, %s, 1", s(sRZ), s(sRZ))
        for rho in range(4):
            e("s_add_u32 %s, %s, %s", s(sTmp), s(sHr[rho]), s(sRZ))
            e("buffer_load_dwordx4 %s, %s, %s, %s offen sc1", v(RS + (i % 4) * 36 + 20 + rho * 4, 4), v(vL), s(sWS, 4), s(sTmp))
            q.issue("i%d" % i)

    def wj(i, ct):
        e("ds_read_b128 %s, %s offset:%d", v(WJ + 4 * ct, 4), v(vWJ), i * 5120 + ct * 1024)
    stamp("p3_in")
    e("v_and_b32 v5, 15, v0")
    e("v_mul_u32_u24 v5, 81920, v5")
    e("v_lshrrev_b32 v6, 4, v0")
    e("v_lshl_add_u32 %s, v6, 3, v5", v(vO))
    e("s_lshl_b32 %s, %s, 1", s(sTmp), s(sP))
    e("s_lshr_b32 %s, %s, 1", s(sTmp2), s(sW))
    e("s_add_u32 %s, %s, %s", s(sTmp), s(sTmp), s(sTmp2))
    e("s_mul_i32 %s, %s, 12", s(sTmp), s(sTmp))
    e("v_min_u32 v5, 11, v0")
    e("v_add_u32 v5, %s, v5", s(sTmp))
    e("v_lshlrev_b32 %s, 7, v5", v(vPH))
    e("s_mul_i32 %s, %s, %d", s(sTmp), s(sW), CPS)
    e("s_add_u32 %s, %s, %d", s(sTmp), s(sTmp), CP0)
    e("v_add_u32 %s, %s, %s", v(vWJ), s(sTmp), v(vL))
    lab = A.newlabel("L_nofh")
    e("s_cmp_ge_u32 s2, 192")
    e("s_cbranch_scc1 %s", lab)
    e("v_mov_b32 v7, %d", LGO)
    e("v_mov_b32 v172, 1")
    e("s_waitcnt vmcnt(0)")
    flag_store(sFlag, 5, 6)
    e("s_mov_b64 exec, 1")
    e("ds_add_u32 v7, v172 offset:4")
    e("s_mov_b64 exec, -1")
    A.label(lab)
    stamp("p3_fl")
    if POLL1:
        poll_issue(7, 1, vPH, WS_FH)
    for i in range(4, 8):
        for ct in range(5):
            wload(i, ct)
    e("s_lshl_b32 %s, %s, 2", s(sTmp), s(sW))
    e("s_add_u32 %s, %s, %d", s(sTmp), s(sTmp), LGO + 16)
    e("v_mov_b32 v5, %s", s(sTmp))
    if POLL1:
        e("s_waitcnt vmcnt(20)")
    else:
        poll_issue(7, 1, vPH, WS_FH)
        e("s_waitcnt vmcnt(0)")
        q.drain()
    poll_check(7, 1, vPH, WS_FH)
    stamp("p3_fh")
    for i in range(4):
        hload(i)
    lab = A.newlabel("L_wst")
    A.label(lab)
    e("ds_read_b32 v6, v5")
    e("s_waitcnt lgkmcnt(0)")
    e("v_cmp_eq_u32 vcc, 0, v6")
    e("s_cbranch_vccnz %s", lab)
    for ct in range(5):
        wj(0, ct)
    OFF = [(sOo, 0), (sOo, 32), (sOo, 640), (sOo, 672), (sOc, 0)]

    def acc(ct, rt): return ACC + (ct * 4 + rt) * 4
    for i in range(NI):
        rs = RS + (i % 4) * 36
        q.wait("i%d" % i)
        stamp("i%d" % i)
        for ct in range(5):
            if i < 4:
                e("s_waitcnt lgkmcnt(%d)", 4 if i < 3 else 4 - ct)
            for rt in range(4):
                mm16(acc(ct, rt), WJ + 4 * ct if i < 4 else rs + 4 * ct, rs + 20 + 4 * rt, i == 0)
            if i < 3:
                wj(i + 1, ct)
            if 4 <= i < 8:
                wload(i + 4, ct)
            if i == 9:
                e("buffer_load_dwordx2 %s, %s, %s, %s offen offset:%d", v(XR + 2 * ct, 2), v(vO), s(sX, 4), s(OFF[ct][0]), OFF[ct][1])
                q.issue("x")
        if i + 4 < NI:
            hload(i + 4)
    for rho in range(1, 4):
        e("s_sub_u32 %s, %s, %d", s(sTmp), s(sW), rho)
        e("s_and_b32 %s, %s, 3", s(sTmp), s(sTmp))
        e("s_mul_i32 %s, %s, %d", s(sTmp), s(sTmp), CPS)
        e("s_add_u32 %s, %s, %d", s(sTmp), s(sTmp), CP0 + (rho - 1) * 5120)
        e("v_add_u32 %s, %s, %s", v(40 + rho), s(sTmp), v(vL))
    for ct in range(5):
        for rho in range(1, 4):
            e("ds_write_b128 %s, %s offset:%d", v(vWJ), v(acc(ct, rho), 4), (rho - 1) * 5120 + ct * 1024)
    e("s_lshl_b32 %s, %s, 10", s(sTmp), s(sW))
    e("v_add_u32 v40, %s, %s", s(sTmp), v(vL))
    e("s_waitcnt vmcnt(0)")
    for ct in range(5):
        x0, b = XR + 2 * ct, 20 + 4 * ct
        e("v_lshlrev_b32 %s, 16, %s", v(b), v(x0))
        e("v_and_b32 %s, 0xffff0000, %s", v(b + 1), v(x0))
        e("v_lshlrev_b32 %s, 16, %s", v(b + 2), v(x0 + 1))
        e("v_and_b32 %s, 0xffff0000, %s", v(b + 3), v(x0 + 1))
        for k in (0, 2):
            e("v_pk_add_f32 %s, %s, %s", v(acc(ct, 0) + k, 2), v(acc(ct, 0) + k, 2), v(b + k, 2))
    e("s_waitcnt lgkmcnt(0)")
    stamp("p3_end")
    e("s_barrier")
    stamp("p3_bar")
    LP = 48
    for c3 in range(3):
        for lw in range(4):
            e("ds_read_b128 %s, v40 offset:%d", v(LP + (c3 * 4 + lw) * 4, 4), ZU0 + lw * ZUS + c3 * 4096)
    for ct in range(5):
        for k in range(1, 4):
            e("ds_read_b128 %s, %s offset:%d", v(acc(ct, k), 4), v(40 + k), ct * 1024)
    e("s_waitcnt lgkmcnt(15)")
    for c3 in range(3):
        b = LP + c3 * 16
        for k in (0, 2):
            e("v_pk_add_f32 %s, %s, %s", v(b + k, 2), v(b + k, 2), v(b + 8 + k, 2))
            e("v_pk_add_f32 %s, %s, %s", v(b + 4 + k, 2), v(b + 4 + k, 2), v(b + 12 + k, 2))
        for k in (0, 2):
            if c3 < 2:
                e("v_pk_add_f32 %s, %s, %s neg_lo:[0,1] neg_hi:[0,1]", v(b + 8 + k, 2), v(b + k, 2), v(b + 4 + k, 2))
            e("v_pk_add_f32 %s, %s, %s", v(b + k, 2), v(b + k, 2), v(b + 4 + k, 2))
    zsrc = [LP, LP + 16, LP + 8, LP + 24, LP + 32]
    for ct in range(5):
        b = acc(ct, 0)
        e("s_waitcnt lgkmcnt(%d)", 12 - 3 * ct)
        for k in (0, 2):
            e("v_pk_add_f32 %s, %s, %s", v(b + k, 2), v(b + k, 2), v(zsrc[ct] + k, 2))
            e("v_pk_add_f32 %s, %s, %s", v(b + 4 + k, 2), v(b + 4 + k, 2), v(b + 8 + k, 2))
        for k in (0, 2):
            e("v_pk_add_f32 %s, %s, %s", v(b + k, 2), v(b + k, 2), v(b + 12 + k, 2))
        for k in (0, 2):
            e("v_pk_add_f32 %s, %s, %s", v(b + k, 2), v(b + k, 2), v(b + 4 + k, 2))
        e("v_cvt_pk_bf16_f32 %s, %s, %s", v(b + 8), v(b), v(b + 1))
        e("v_cvt_pk_bf16_f32 %s, %s, %s", v(b + 9), v(b + 2), v(b + 3))
        e("buffer_store_dwordx2 %s, %s, %s, %s offen offset:%d%s", v(b + 8, 2), v(vO), s(sOUT, 4), s(OFF[ct][0]), OFF[ct][1], OUTF)
    lab = A.newlabel("L_noep")
    e("s_lshl_b32 %s, s2, 3", s(sTmp))
    e("s_add_u32 %s, %s, %s", s(sTmp), s(sTmp), s(sW))
    e("s_cmp_eq_u32 %s, 0", s(sTmp))
    e("s_cbranch_scc0 %s", lab)
    e("s_mov_b32 %s, 0x%x", s(sTmp), WS_EP)
    flag_store(sTmp, 5, 6)
    A.label(lab)


def warm_touch():
    e("s_lshl_b32 %s, s2, 1", s(sTmp))
    e("s_and_b32 %s, %s, 1", s(sTmp2), s(sLW))
    e("s_add_u32 %s, %s, %s", s(sTmp), s(sTmp), s(sTmp2))
    e("s_mul_i32 %s, %s, %d", s(sTmp), s(sTmp), 27 * 128)
    e("v_min_u32 v12, 26, v0")
    e("v_lshlrev_b32 v12, 7, v12")
    lab, lab2 = A.newlabel("L_wt"), A.newlabel("L_wt")
    e("s_cmp_ge_u32 %s, 2", s(sLW))
    e("s_cbranch_scc1 %s", lab)
    e("buffer_load_dword v250, v12, %s, %s offen", s(sWR, 4), s(sTmp))
    e("s_branch %s", lab2)
    A.label(lab)
    e("buffer_load_dword v250, v12, %s, %s offen", s(sWI, 4), s(sTmp))
    A.label(lab2)
    e("s_lshl_b32 %s, s2, 2", s(sTmp))
    e("s_add_u32 %s, %s, %s", s(sTmp), s(sTmp), s(sLW))
    e("s_mul_i32 %s, %s, %d", s(sTmp), s(sTmp), 6 * 128)
    e("s_add_u32 %s, %s, %d", s(sTmp), s(sTmp), TB.CI_OFF)
    e("v_min_u32 v12, 5, v0")
    e("v_lshlrev_b32 v12, 7, v12")
    e("buffer_load_dword v251, v12, %s, %s offen", s(sTAB, 4), s(sTmp))


def p1_ffn():
    vXA, vWA, FR, ACC = 8, 10, 16, 112
    stats_addr(16)
    e("s_and_b32 %s, %s, 1", s(sWM), s(sW))
    e("s_lshr_b32 %s, %s, 1", s(sWN), s(sW))
    karg_wait(["X"], ["WS", "OUT"])
    lab = A.newlabel("L_nost")
    e("s_cmp_ge_u32 %s, 8", s(sCG))
    e("s_cbranch_scc1 %s", lab)
    stats_issue(16)
    A.label(lab)
    e("s_lshl_b32 %s, %s, 3", s(sFlag), s(sRB))
    e("s_add_u32 %s, %s, %s", s(sFlag), s(sFlag), s(sCG))
    e("s_lshl_b32 %s, %s, 7", s(sFlag), s(sFlag))
    e("s_add_u32 %s, %s, 0x%x", s(sFlag), s(sFlag), WS_FS)
    p3c_setup()
    e("v_and_b32 v5, 15, v0")
    e("v_lshlrev_b32 v5, 7, v5")
    e("s_lshl_b32 %s, %s, 13", s(sTmp), s(sWM))
    e("v_add_u32 v5, %s, v5", s(sTmp))
    e("v_lshrrev_b32 v6, 4, v0")
    e("v_bfe_u32 v7, v0, 1, 3")
    e("v_xor_b32 v6, v6, v7")
    e("v_lshl_add_u32 %s, v6, 4, v5", v(vXA))
    e("v_xor_b32 %s, 64, %s", v(vXA + 1), v(vXA))
    e("v_lshrrev_b32 v5, 4, v0")
    e("v_bfe_u32 v6, v0, 2, 2")
    e("v_lshl_add_u32 v7, v5, 3, v6")
    e("v_lshlrev_b32 v7, 8, v7")
    e("v_and_b32 v5, 1, v5")
    e("v_lshl_add_u32 v5, v6, 1, v5")
    e("s_lshl_b32 %s, %s, 2", s(sTmp), s(sWN))
    e("v_xor_b32 v5, %s, v5", s(sTmp))
    e("v_lshl_add_u32 v7, v5, 5, v7")
    e("v_and_b32 v6, 3, v0")
    e("v_lshl_add_u32 %s, v6, 3, v7", v(vWA))
    for ft in range(1, 4):
        e("v_xor_b32 %s, %d, %s", v(vWA + ft), ft << 5, v(vWA))
    lab = A.newlabel("L_nost")
    e("s_cmp_ge_u32 %s, 8", s(sCG))
    e("s_cbranch_scc1 %s", lab)
    e("s_waitcnt vmcnt(0)")
    stats_compute(16)
    A.label(lab)
    k_offset(sK1)
    e("s_mul_i32 %s, %s, 12288", s(sK1), s(sK1))
    e("s_lshl_b32 %s, %s, 2", s(sTmp), s(sCG))
    e("s_lshl_b32 %s, %s, 1", s(sTmp2), s(sWM))
    e("s_add_u32 %s, %s, %s", s(sTmp), s(sTmp), s(sTmp2))
    e("s_add_u32 %s, %s, %s", s(sTmp), s(sTmp), s(sWN))
    e("s_lshl_b32 %s, %s, 8", s(sTmp), s(sTmp))
    e("s_add_u32 %s, %s, %s", s(sK1), s(sK1), s(sTmp))
    e("s_add_u32 %s, %s, 0x%x", s(sK1), s(sK1), WS_CSP)
    e("s_bfe_u32 %s, s2, 0x20004", s(sTmp))
    e("s_cmp_eq_u32 %s, 3", s(sTmp))
    e("s_cselect_b32 %s, 0, s2", s(sTmp))
    e("s_and_b32 %s, %s, 1", s(sPar), s(sTmp))
    e("s_or_b32 %s, %s, %s", s(sNU), s(sPar), s(sW))
    for i in range(4):
        e("v_mov_b32 %s, 0x3f803f80", v(2 + i))
    e("v_and_b32 v14, 48, v0")
    stamp("c_set")

    def stat_flag():
        lab = A.newlabel("L_nofl")
        e("s_lshr_b32 %s, %s, 3", s(sTmp), s(sCG))
        e("s_or_b32 %s, %s, %s", s(sTmp), s(sTmp), s(sW))
        e("s_cbranch_scc1 %s", lab)
        flag_store(sFlag, 6, 7)
        A.label(lab)

    def cs_mfma(p, first):
        la, lb = A.newlabel("L_csm"), A.newlabel("L_csm")
        e("s_cmp_eq_u32 %s, 1", s(sWM))
        e("s_cbranch_scc1 %s", la)
        for mat in range(2):
            if mat:
                e("s_branch %s", lb)
                A.label(la)
            for ft in range(4):
                mm16(240 + 4 * ft, wf(p, mat, ft), 2, first)
        A.label(lb)

    def cs_store():
        lab = A.newlabel("L_nocs")
        e("s_cmp_lg_u32 %s, 0", s(sPar))
        e("s_cbranch_scc1 %s", lab)
        e("s_mov_b32 exec_lo, 0x00010001")
        e("s_mov_b32 exec_hi, 0x00010001")
        for ft in range(4):
            e("buffer_store_dwordx4 %s, v14, %s, %s offen offset:%d sc1", v(240 + 4 * ft, 4), s(sWS, 4), s(sK1), ft * 64)
        e("s_mov_b64 exec, -1")
        A.label(lab)

    def hook():
        lab = A.newlabel("L_nofl")
        e("s_cmp_lg_u32 %s, 0", s(sNU))
        e("s_cbranch_scc1 %s", lab)
        e("s_mov_b32 %s, 1", s(sNU))
        e("s_lshl_b32 %s, s2, 7", s(sTmp))
        e("s_add_u32 %s, %s, 0x%x", s(sTmp), s(sTmp), WS_FSC)
        flag_store(sTmp, 6, 7)
        A.label(lab)

    def acc(mat, ft, st): return ACC + ((mat * 4 + ft) * 4 + st) * 4
    def xf(p, st): return FR + p * 48 + st * 4
    def wf(p, mat, ft): return FR + p * 48 + 16 + (mat * 4 + ft) * 4
    keys = [("x", 0), ("w", 0, 0), ("w", 0, 0), ("x", 1), ("x", 2), ("x", 3)]
    for ft in range(4):
        for mat in range(2):
            if (mat, ft) != (0, 0):
                keys += [("w", mat, ft)] * 2

    def reads(p, t):
        out, seen = [], {}
        for k in keys:
            if k[0] == "x":
                out.append(lambda st=k[1]: e("ds_read_b128 %s, %s offset:%d", v(xf(p, st), 4), v(vXA + t), st * 2048))
            else:
                rd = seen.get(k, 0); seen[k] = rd + 1
                out.append(lambda mat=k[1], ft=k[2], rd=rd: e("ds_read_b64_tr_b16 %s, %s offset:%d", v(wf(p, mat, ft) + 2 * rd, 2), v(vWA + ft), 16384 * (1 + mat) + t * 8192 + rd * 1024))
        return out
    morder, n = [], 0
    for ft in range(4):
        for mat in range(2):
            morder += [(mat, ft, st) for st in ([0, 1, 2, 3] if n % 2 == 0 else [3, 2, 1, 0])]
            n += 1
    need = [max(i + 1 for i, k in enumerate(keys) if k == ("x", m[2]) or k == ("w", m[0], m[1])) for m in morder]

    def mfmas(p, first=False):
        return [(lambda m=m: mm16(acc(*m), wf(p, m[0], m[1]), xf(p, m[2]), first)) for m in morder]
    peel = [{31: [lambda: cs_mfma(0, True)]}, {3: [stat_flag], 8: [lambda: cs_mfma(1, False)], 30: [cs_store]}]
    gemm_loop(10, 2, mfmas, reads, need, [8, 9, 10, 11, 12, 13], 3, 1, (), hook, peel)

    RM, CS = 16, 32
    e("v_and_b32 v5, 15, v0")
    e("v_lshlrev_b32 v5, 2, v5")
    e("s_lshl_b32 %s, %s, 8", s(sTmp), s(sWM))
    e("s_add_u32 %s, %s, %d", s(sTmp), s(sTmp), AUX)
    e("v_add_u32 v5, %s, v5", s(sTmp))
    for st in range(4):
        e("ds_read_b32 %s, v5 offset:%d", v(RM + 4 * st), st * 64)
        e("ds_read_b32 %s, v5 offset:%d", v(RM + 4 * st + 2), 512 + st * 64)
    e("v_lshrrev_b32 v6, 4, v0")
    e("v_lshlrev_b32 v6, 4, v6")
    e("s_lshl_b32 %s, %s, 8", s(sTmp), s(sWN))
    e("s_add_u32 %s, %s, %d", s(sTmp), s(sTmp), AUX + 1024)
    e("v_add_u32 v6, %s, v6", s(sTmp))
    for ft in range(4):
        for mat in range(2):
            e("ds_read_b128 %s, v6 offset:%d", v(CS + (mat * 4 + ft) * 4, 4), mat * 512 + ft * 64)
    e("s_lshl_b32 %s, %s, 1", s(sFlag), s(sRB))
    e("s_add_u32 %s, %s, %s", s(sFlag), s(sFlag), s(sWM))
    e("s_mul_i32 %s, %s, %d", s(sTmp), s(sFlag), 2 * 48 * 2048)
    e("s_lshl_b32 s3, %s, 2", s(sCG))
    e("s_lshl_b32 %s, %s, 1", s(sCnt), s(sWN))
    e("s_add_u32 s3, s3, %s", s(sCnt))
    e("s_lshl_b32 s3, s3, 11")
    e("s_add_u32 %s, %s, s3", s(sDelta), s(sTmp))
    e("s_lshl_b32 %s, %s, 1", s(sFlag), s(sFlag))
    e("s_add_u32 %s, %s, %s", s(sFlag), s(sFlag), s(sWN))
    e("s_mul_i32 %s, %s, 12", s(sFlag), s(sFlag))
    e("s_add_u32 %s, %s, %s", s(sFlag), s(sFlag), s(sCG))
    e("s_lshl_b32 %s, %s, 7", s(sFlag), s(sFlag))
    e("s_add_u32 %s, %s, 0x%x", s(sFlag), s(sFlag), WS_FH)
    e("v_lshlrev_b32 v5, 4, v0")
    e("s_waitcnt lgkmcnt(4)")
    for st in range(4):
        e("v_mul_f32 %s, %s, %s", v(RM + 4 * st), v(RM + 4 * st), v(RM + 4 * st))
    for ph in range(2):
        if ph == 1:
            e("s_waitcnt lgkmcnt(0)")
        for st in range(4):
            rr, mm_ = RM + 4 * st, RM + 4 * st + 2
            o = 64 + ((ph * 4 + st) & 3) * 4
            for fi in range(2):
                ft = 2 * ph + fi
                g0, u0 = acc(0, ft, st), acc(1, ft, st)
                for k in (0, 2):
                    e("v_pk_fma_f32 %s, %s, %s, %s op_sel_hi:[1,0,1] neg_lo:[0,1,0] neg_hi:[0,1,0]", v(g0 + k, 2), v(CS + ft * 4 + k, 2), v(mm_, 2), v(g0 + k, 2))
                    e("v_pk_fma_f32 %s, %s, %s, %s op_sel_hi:[1,0,1] neg_lo:[0,1,0] neg_hi:[0,1,0]", v(u0 + k, 2), v(CS + 16 + ft * 4 + k, 2), v(mm_, 2), v(u0 + k, 2))
                for k in range(4):
                    e("v_max_f32 %s, 0, %s", v(g0 + k), v(g0 + k))
                for k in (0, 2):
                    e("v_pk_mul_f32 %s, %s, %s op_sel_hi:[1,0]", v(u0 + k, 2), v(u0 + k, 2), v(rr, 2))
                for k in (0, 2):
                    e("v_pk_mul_f32 %s, %s, %s", v(g0 + k, 2), v(g0 + k, 2), v(u0 + k, 2))
                for k in range(2):
                    e("v_cvt_pk_bf16_f32 %s, %s, %s", v(o + 2 * fi + k), v(g0 + 2 * k), v(g0 + 2 * k + 1))
            e("s_add_u32 %s, %s, %d", s(sTmp), s(sDelta), WS_H + (st >> 1) * 48 * 2048 + ph * 2048)
            e("buffer_store_dwordx4 %s, v5, %s, %s offen offset:%d sc1", v(o, 4), s(sWS, 4), s(sTmp), (st & 1) * 1024)
    stamp("c_ep")
    e("s_branch L_p3c")


def p1_dft(njb):
    vXA, vCA, FR, ACC, FC, CO, SI = 8, 12, 16, 80, 208, 176, 192
    e("s_lshl_b32 %s, %s, 12", s(sTmp), s(sW))
    e("s_add_u32 %s, %s, %d", s(sTmp), s(sTmp), SLAB)
    e("v_and_b32 v5, 31, v0")
    e("v_lshlrev_b32 v5, 7, v5")
    e("v_add_u32 v5, %s, v5", s(sTmp))
    e("v_lshrrev_b32 v6, 5, v0")
    e("v_bfe_u32 v7, v0, 1, 3")
    e("v_xor_b32 v6, v6, v7")
    e("v_lshl_add_u32 %s, v6, 4, v5", v(vXA))
    for t in range(1, 4):
        e("v_xor_b32 %s, %d, %s", v(vXA + t), t << 5, v(vXA))
    e("v_lshlrev_b32 %s, 4, v0", v(vCA))
    e("v_add_u32 %s, %d, %s", v(vCA), SLAB, v(vCA))
    tab_srd()
    karg_wait([], ["X", "WS", "OUT"])
    p3c_setup()
    for i in range(16 * njb):
        e("v_mov_b32 %s, 0", v(ACC + i))
    e("s_lshl_b32 %s, %s, 2", s(sS2), s(sRB))
    e("s_add_u32 %s, %s, %s", s(sS2), s(sS2), s(sW))
    e("v_and_b32 v5, 31, v0")
    e("v_lshrrev_b32 v6, 5, v0")
    e("v_lshlrev_b32 v6, 8, v6")
    e("v_add_u32 v6, %s, v6", s(sS2))
    e("v_mul_u32_u24 v6, v6, v5")
    for kap in range(2):
        for i2 in range(4):
            for b in range(2):
                i = 2 * i2 + b
                s0 = 16 * kap + 8 * (i >> 2) + (i & 3)
                e("v_mul_u32_u24 v7, %d, v5", 64 * s0)
                e("v_add_u32 v7, v7, v6")
                e("v_and_b32 v7, 0x7ff, v7")
                e("v_cvt_f32_u32 v7, v7")
                e("v_mul_f32 v7, 0x3a000000, v7")
                e("v_cos_f32 %s, v7", v(CO + 8 * kap + i))
                e("v_sin_f32 %s, v7", v(SI + 8 * kap + i))
    stamp("c_set")

    def xf(p): return FR + p * 28
    def cf(p, tl): return FR + p * 28 + 4 + 4 * tl

    def reads(p, t):
        ops = [lambda: e("ds_read_b128 %s, %s", v(xf(p), 4), v(vXA + t))]
        for tl in range(njb):
            ops.append(lambda tl=tl: e("ds_read_b128 %s, %s offset:%d", v(cf(p, tl), 4), v(vCA), 16384 + (t * njb + tl) * 1024))
        return ops

    def mfmas(p):
        return [(lambda tl=tl: e("v_mfma_f32_32x32x16_bf16 %s, %s, %s, %s", v(ACC + 16 * tl, 16), v(xf(p), 4), v(cf(p, tl), 4), v(ACC + 16 * tl, 16))) for tl in range(njb)]
    gemm_loop(5, 4, mfmas, reads, [2 + tl for tl in range(njb)], [vXA + i for i in range(5)], 0, 2, buf0=SLAB)

    RR, MM = 16, 32
    e("v_lshrrev_b32 v6, 5, v0")
    e("v_lshlrev_b32 v6, 4, v6")
    e("s_lshl_b32 %s, %s, 7", s(sTmp), s(sW))
    e("s_add_u32 %s, %s, %d", s(sTmp), s(sTmp), AUX)
    e("v_add_u32 v6, %s, v6", s(sTmp))
    for jj in range(4):
        e("ds_read_b128 %s, v6 offset:%d", v(RR + 4 * jj, 4), jj * 32)
    if njb == 6:
        for jj in range(4):
            e("ds_read_b128 %s, v6 offset:%d", v(MM + 4 * jj, 4), 512 + jj * 32)
        e("v_and_b32 v7, 31, v0")
        e("v_cmp_eq_u32 vcc, 0, v7")
        e("v_mov_b32 v7, 0")
        e("v_mov_b32 v13, 0x44200000")
        e("v_cndmask_b32 v7, v7, v13, vcc")
    e("v_and_b32 v5, 15, v0")
    e("v_lshlrev_b32 v5, 6, v5")
    e("v_bfe_u32 v6, v0, 4, 1")
    e("v_lshl_add_u32 v5, v6, 5, v5")
    e("v_lshrrev_b32 v6, 5, v0")
    e("v_lshl_add_u32 v5, v6, 4, v5")
    if njb == 6:
        e("s_mov_b32 %s, 0", s(sJB))
    else:
        e("s_cmp_eq_u32 %s, 1", s(sCG))
        e("s_cselect_b32 %s, 12, 11", s(sJB))
        e("s_cmp_eq_u32 %s, 2", s(sCG))
        e("s_cselect_b32 %s, 1, %s", s(sJB), s(sJB))
    e("s_mul_i32 %s, %s, 21", s(sDelta), s(sS2))
    e("s_add_u32 %s, %s, %s", s(sDelta), s(sDelta), s(sJB))
    e("s_lshl_b32 %s, %s, 11", s(sDelta), s(sDelta))
    e("s_add_u32 %s, %s, 0x%x", s(sDelta), s(sDelta), WS_T)
    e("v_bfe_u32 v6, v0, 3, 1")
    e("v_cmp_eq_u32 vcc, 0, v6")
    e("v_mov_b32 v6, 0")
    e("v_mov_b32 v13, 0x80008000")
    e("v_cndmask_b32 v6, v6, v13, vcc")
    DD, AF = [224, 240], [48, 64]

    def pack(tl):
        a0, af = ACC + 16 * tl, AF[tl & 1]
        if njb == 6 and tl == 0:
            for i in range(16):
                e("v_fma_f32 %s, -%s, v7, %s", v(a0 + i), v(MM + i), v(a0 + i))
        for i in range(8):
            e("v_cvt_pk_bf16_f32 %s, %s, %s", v(af + i), v(a0 + 2 * i), v(a0 + 2 * i + 1))
        for i in range(8):
            e("v_xor_b32_dpp %s, %s, v6 row_ror:8 row_mask:0xf bank_mask:0xf", v(af + 8 + i), v(af + i))

    def stage(tl):
        d, af = DD[tl & 1], AF[tl & 1]
        for k in range(4):
            e("v_mfma_f32_32x32x16_bf16 %s, %s, %s, %s", v(d, 16), v(af + 4 * k, 4), v(FC + 4 * k, 4), v(d, 16) if k else "0")

    def finish(tl):
        d = DD[tl & 1]
        for i in range(8):
            e("v_cvt_pk_bf16_f32 %s, %s, %s", v(d + i), v(d + 2 * i), v(d + 2 * i + 1))
        e("s_add_u32 %s, %s, %d", s(sTmp), s(sDelta), tl * 4096)
        e("s_nop 0")
        for i in range(4):
            e("v_permlane16_swap_b32 %s, %s", v(d + i), v(d + 4 + i))
        for q in range(2):
            e("buffer_store_dwordx4 %s, v5, %s, %s offen offset:%d sc1", v(d + 4 * q, 4), s(sWS, 4), s(sTmp), q * 1024)
    if njb == 5:
        pack(0)
    e("s_waitcnt lgkmcnt(0)")
    for i in range(0, 16, 2):
        e("v_pk_mul_f32 %s, %s, %s", v(CO + i, 2), v(CO + i, 2), v(RR + i, 2))
        e("v_pk_mul_f32 %s, %s, %s neg_lo:[1,0] neg_hi:[1,0]", v(SI + i, 2), v(SI + i, 2), v(RR + i, 2))
    for i in range(8):
        e("v_cvt_pk_bf16_f32 %s, %s, %s", v(FC + i), v(CO + 2 * i), v(CO + 2 * i + 1))
        e("v_cvt_pk_bf16_f32 %s, %s, %s", v(FC + 8 + i), v(SI + 2 * i), v(SI + 2 * i + 1))
    if njb == 6:
        pack(0)
    else:
        e("s_nop 1")
    stage(0)
    for tl in range(njb):
        if tl + 1 < njb:
            pack(tl + 1)
            stage(tl + 1)
        else:
            e("s_nop 15")
        finish(tl)
    e("s_lshl_b32 %s, %s, 4", s(sFlag), s(sCG))
    e("s_add_u32 %s, %s, %s", s(sFlag), s(sFlag), s(sRB))
    e("s_lshl_b32 %s, %s, 7", s(sFlag), s(sFlag))
    e("s_add_u32 %s, %s, 0x%x", s(sFlag), s(sFlag), WS_FT)
    e("s_branch L_dft_c")


def mid_k1():
    e("s_and_b32 s3, s2, 7")
    e("s_lshl_b32 %s, s3, 2", s(sK1))
    e("s_bfe_u32 s3, s2, 0x20004")
    e("s_add_u32 %s, %s, s3", s(sK1), s(sK1))
    e("s_bfe_u32 s3, s2, 0x10003")


def mid():
    FC, WV, DF, XA, UA, TW, PD = 64, 128, 16, 160, 192, 40, 48
    vL, vT, vWr, vUo, vP, vTG = 5, 6, 7, 10, 11, 15
    e("v_lshlrev_b32 %s, 4, v0", v(vL))
    e("v_and_b32 v9, 3, v0")
    e("v_add_u32 v12, %d, %s", FI_L, v(vL))
    e("v_add_u32 v13, %d, %s", FR_L, v(vL))
    for n in range(16):
        e("ds_read_b128 %s, %s offset:%d", v(FC + 4 * n, 4), "v12" if n >= 8 else "v13", (n & 7) * 1024)
    for i in range(32):
        e("v_mov_b32 %s, 0", v(WV + i))
    e("v_and_b32 v8, 15, v0")
    e("v_lshrrev_b32 v12, 2, v0")
    e("v_lshlrev_b32 %s, 6, v12", v(vT))
    e("v_lshl_add_u32 %s, v9, 4, %s", v(vT), v(vT))
    e("v_add_u32 %s, %s, %s", v(vT), s(sM0), v(vT))
    e("v_mul_u32_u24 v12, 43008, v12")
    e("v_lshl_add_u32 %s, v9, 4, v12", v(vTG))
    e("v_lshrrev_b32 v9, 4, v0")
    e("v_lshlrev_b32 %s, 6, v8", v(vUo))
    e("v_lshl_add_u32 %s, v9, 4, %s", v(vUo), v(vUo))
    e("v_mul_u32_u24 v12, %d, v9", 4 * 336)
    e("v_lshl_add_u32 v12, v8, 2, v12")
    e("s_add_u32 %s, %s, %s", s(sTmp), s(sMW), s(sPar))
    e("v_add_u32 %s, %s, v12", v(vWr), s(sTmp))
    e("s_waitcnt vmcnt(0) lgkmcnt(0)")
    lab = A.newlabel("L_noft")
    e("s_cmp_lg_u32 %s, 0", s(sW))
    e("s_cbranch_scc1 %s", lab)
    poll_check(PD, 1, vP, WS_FT)
    A.label(lab)
    e("s_barrier")
    stamp("m_B")
    e("s_lshl_b32 %s, %s, 5", s(sCnt), s(sJB))
    e("s_add_u32 %s, %s, %s", s(sCnt), s(sCnt), s(sK1))
    e("s_lshl_b32 %s, %s, 6", s(sCnt), s(sCnt))
    lab = A.newlabel("L_oneT")
    for un in range(2):
        if un == 1:
            e("s_cmp_eq_u32 %s, 1", s(sNU))
            e("s_cbranch_scc1 %s", lab)
        for n in range(4):
            e("s_add_u32 m0, %s, %d", s(sLB2 if un else sM0), n * 1024)
            e("s_add_u32 %s, %s, %d", s(sTmp), s(sCnt), WS_T + un * 2048 + n * 16 * 43008)
            e("buffer_load_dwordx4 %s, %s, %s offen sc1 lds", v(vTG), s(sWS, 4), s(sTmp))
    e("s_waitcnt vmcnt(4)")
    e("s_branch %s", lab + "b")
    A.label(lab)
    e("s_waitcnt vmcnt(0)")
    A.label(lab + "b")
    stamp("m_T")
    top = A.newlabel("L_unit")
    A.label(top)
    for ri in range(2):
        for kap in range(2):
            for rd in range(2):
                e("ds_read_b64_tr_b16 %s, %s offset:%d", v(DF + 8 * ri + 4 * kap + 2 * rd, 2), v(vT), kap * 2048 + rd * 1024 + ri * 8)
    e("s_waitcnt lgkmcnt(0)")
    for i in range(8):
        e("v_xor_b32 %s, 0x80008000, %s", v(DF + 16 + i), v(DF + 8 + i))

    def F(ri, t, kap): return FC + ((ri * 4 + t) * 2 + kap) * 4
    wreads = [(arr, mt, i) for mt in range(4) for i in range(4) for arr in range(2)]

    def wr():
        arr, mt, i = wreads.pop(0)
        e("ds_read_u16_d16_hi %s, %s offset:%d", v(WV + arr * 16 + 4 * mt + i), v(vWr), arr * MWA + (16 * mt + i) * 336)
    Tre, Tim, Tni = DF, DF + 8, DF + 16
    for mt in range(4):
        xr, xi = XA + 4 * mt, XA + 16 + 4 * mt
        for kap in range(2):
            mm16(xr, F(0, mt, kap), Tre + 4 * kap, kap == 0); wr()
            mm16(xi, F(1, mt, kap), Tre + 4 * kap, kap == 0); wr()
        for kap in range(2):
            mm16(xr, F(1, mt, kap), Tni + 4 * kap); wr()
            mm16(xi, F(0, mt, kap), Tim + 4 * kap); wr()
    e("s_waitcnt lgkmcnt(0)")
    e("s_nop 5")
    for n in range(0, 16, 2):
        xr, xi, w_r, w_i = XA + n, XA + 16 + n, WV + n, WV + 16 + n
        e("v_pk_mul_f32 %s, %s, %s", v(UA + n, 2), v(xr, 2), v(w_r, 2))
        e("v_pk_mul_f32 %s, %s, %s", v(UA + 16 + n, 2), v(xr, 2), v(w_i, 2))
        e("v_pk_fma_f32 %s, %s, %s, %s neg_lo:[1,0,0] neg_hi:[1,0,0]", v(UA + n, 2), v(xi, 2), v(w_i, 2), v(UA + n, 2))
        e("v_pk_fma_f32 %s, %s, %s, %s", v(UA + 16 + n, 2), v(xi, 2), v(w_r, 2), v(UA + 16 + n, 2))
    Yre, Yim, Ynr = DF, DF + 8, DF + 16
    for n in range(8):
        e("v_cvt_pk_bf16_f32 %s, %s, %s", v(Yre + n), v(UA + 2 * n), v(UA + 2 * n + 1))
        e("v_cvt_pk_bf16_f32 %s, %s, %s", v(Yim + n), v(UA + 16 + 2 * n), v(UA + 16 + 2 * n + 1))
        e("v_xor_b32 %s, 0x80008000, %s", v(Ynr + n), v(Yre + n))
    e("s_nop 1")
    for nt in range(4):
        ur, ui = UA + 4 * nt, UA + 16 + 4 * nt
        for kap in range(2):
            mm16(ur, Yre + 4 * kap, F(0, nt, kap), kap == 0)
            mm16(ui, Yim + 4 * kap, F(0, nt, kap), kap == 0)
        for kap in range(2):
            mm16(ur, Yim + 4 * kap, F(1, nt, kap))
            mm16(ui, Ynr + 4 * kap, F(1, nt, kap))
    e("s_mul_i32 %s, %s, 21", s(sDelta), s(sK1))
    e("s_add_u32 %s, %s, %s", s(sDelta), s(sDelta), s(sJB))
    e("s_lshl_b32 %s, %s, 12", s(sDelta), s(sDelta))
    e("s_add_u32 %s, %s, 0x%x", s(sDelta), s(sDelta), WS_U)
    for nt in range(4):
        ur, ui, pk = UA + 4 * nt, UA + 16 + 4 * nt, 224 + 4 * nt
        if nt == 2:
            e("s_nop 1")
        e("v_cvt_pk_bf16_f32 %s, %s, %s", v(pk), v(ur), v(ur + 1))
        e("v_cvt_pk_bf16_f32 %s, %s, %s", v(pk + 1), v(ur + 2), v(ur + 3))
        e("v_cvt_pk_bf16_f32 %s, %s, %s", v(pk + 2), v(ui), v(ui + 1))
        e("v_cvt_pk_bf16_f32 %s, %s, %s", v(pk + 3), v(ui + 2), v(ui + 3))
        e("buffer_store_dwordx4 %s, %s, %s, %s offen offset:%d sc1", v(pk, 4), v(vUo), s(sWS, 4), s(sDelta), nt * 1024)
    done = A.newlabel("L_unitd")
    e("s_cmp_eq_u32 %s, 2", s(sNU))
    e("s_cbranch_scc0 %s", done)
    stamp("m_u1")
    e("s_mov_b32 %s, 3", s(sNU))
    e("s_add_u32 %s, %s, 1", s(sJB), s(sJB))
    e("v_add_u32 %s, 2, %s", v(vWr), v(vWr))
    e("s_sub_u32 %s, %s, %s", s(sTmp), s(sLB2), s(sM0))
    e("v_add_u32 %s, %s, %s", v(vT), s(sTmp), v(vT))
    e("s_waitcnt vmcnt(4)")
    e("s_branch %s", top)
    A.label(done)


hdr = open("cdna_kernels/%s.s.ref" % NAME).read().split("; Override launch")[0]
A(hdr.rstrip())
A("; @launch grid=(256,1,1) block=(512,1,1) lds=%d" % LDS_ALL)
A('.amdgcn_target "amdgcn-amd-amdhsa--gfx950"')
KN = NAME + "_kernel"
kernel_header(A, KN)
stamp("start")
if STAMPS:
    for i in range(1, 9):
        e("s_mov_b32 %s, 0", s(84 + 2 * i))
e("s_cmp_ge_u32 s2, 256")
e("s_cbranch_scc1 L_end")
e("s_load_dwordx16 %s, s[0:1], 0", s(P, 16))
e("s_load_dwordx4 %s, s[0:1], 64", s(P + 16, 4))
e("v_lshrrev_b32 v1, 6, v0")
e("v_and_b32 v0, 63, v0")
e("v_readfirstlane_b32 %s, v1", s(sW))
e("s_and_b32 s3, s2, 1")
e("s_lshl_b32 %s, s3, 3", s(sRB))
e("s_bfe_u32 s3, s2, 0x30003")
e("s_add_u32 %s, %s, s3", s(sRB), s(sRB))
e("s_lshr_b32 %s, s2, 6", s(sTmp2))
e("s_bfe_u32 s3, s2, 0x20001")
e("s_mul_i32 %s, s3, 3", s(sCG))
e("s_add_u32 %s, %s, %s", s(sCG), s(sCG), s(sTmp2))
e("s_and_b32 %s, %s, 3", s(sLW), s(sW))
e("s_cmp_eq_u32 %s, 3", s(sTmp2))
e("s_cbranch_scc1 L_dft")
e("s_cmp_ge_u32 %s, 4", s(sW))
e("s_cbranch_scc0 L_ffn_c")
ffn_loader()
A.label("L_ffn_c")
p1_ffn()
A.label("L_dft")
e("s_mov_b32 %s, s3", s(sCG))
e("s_cmp_eq_u32 s3, 0")
e("s_cbranch_scc1 L_dft6")
for njb in (5, 6):
    if njb == 6:
        A.label("L_dft6")
    e("s_cmp_ge_u32 %s, 4", s(sW))
    e("s_cbranch_scc0 L_dft%d_c", njb)
    dft_loader(njb)
    A.label("L_dft%d_c" % njb)
    p1_dft(njb)

A.label("L_dft_c")
stamp("dc_ep")
e("s_waitcnt vmcnt(0)")
stamp("dc_st")
e("s_barrier")
e("s_cmp_lg_u32 %s, 0", s(sW))
e("s_cbranch_scc1 L_noft")
flag_store(sFlag, 12, 13)
e("v_lshlrev_b32 v11, 7, v0")
poll_issue(48, 1, 11, WS_FT)
A.label("L_noft")
mid_k1()
e("s_mul_i32 %s, s3, 14", s(sMW))
e("s_lshl_b32 %s, %s, 6", s(sTmp), s(sW))
e("s_add_u32 %s, %s, %s", s(sMW), s(sMW), s(sTmp))
e("s_add_u32 %s, %s, %d", s(sMW), s(sMW), MW0)
e("s_mul_i32 s3, s3, 5")
e("s_add_u32 s3, s3, %s", s(sW))
e("s_lshl_b32 %s, s3, 1", s(sJB))
e("s_mov_b32 %s, 0", s(sPar))
e("s_mov_b32 %s, 2", s(sNU))
e("s_lshl_b32 %s, %s, 12", s(sM0), s(sW))
e("s_add_u32 %s, %s, %d", s(sM0), s(sM0), MT0)
e("s_mul_i32 %s, %s, %d", s(sLB2), s(sW), CPS)
e("s_add_u32 %s, %s, %d", s(sLB2), s(sLB2), CP0 + 15360)
e("s_branch L_mid")

A.label("L_dft_l")
mid_k1()
e("s_add_u32 %s, s3, 2", s(sTmp))
e("s_cmp_ge_u32 %s, %s", s(sLW), s(sTmp))
e("s_cbranch_scc1 L_dft_l3")
e("s_mul_i32 %s, s3, 14", s(sMW))
e("s_add_u32 %s, %s, %d", s(sMW), s(sMW), MW0 + 256)
e("s_mul_i32 s3, s3, 10")
e("s_add_u32 s3, s3, 8")
e("s_add_u32 %s, s3, %s", s(sJB), s(sLW))
e("s_lshl_b32 %s, %s, 1", s(sPar), s(sLW))
e("s_cmp_eq_u32 %s, 2", s(sLW))
e("s_cselect_b32 %s, 64, %s", s(sPar), s(sPar))
e("s_mov_b32 %s, 1", s(sNU))
e("s_lshl_b32 %s, %s, 12", s(sM0), s(sLW))
e("s_add_u32 %s, %s, %d", s(sM0), s(sM0), FI_L)
A.label("L_mid")
mid()
stamp("m_end")
e("s_cmp_ge_u32 %s, 4", s(sW))
e("s_cbranch_scc1 L_dft_l2")
e("s_waitcnt vmcnt(0)")
stamp("m_st")
e("s_barrier")
e("s_cmp_lg_u32 %s, 0", s(sW))
e("s_cbranch_scc1 L_nofu")
e("s_lshl_b32 %s, s2, 7", s(sFlag))
e("s_add_u32 %s, %s, %d", s(sFlag), s(sFlag), WS_FU - 192 * 128)
flag_store(sFlag, 12, 13)
A.label("L_nofu")
A.label("L_p3c")
p3c()
e("s_branch L_fin")

A.label("L_dft_l3")
e("v_lshlrev_b32 v5, 4, v0")
e("s_waitcnt vmcnt(0)")
e("s_barrier")
z_gconst()
if STG:
    stage_wd(0, 3)
if STG == 2:
    z_ci_all()
e("s_branch L_dft_l4")
A.label("L_dft_l2")
if STG:
    stage_wd(0, 3)
if STG == 2:
    z_ci_all()
z_gconst()
e("s_waitcnt vmcnt(%d)", [0, 15, 33][STG])
A.label("L_dft_l4")
e("s_barrier")
fu_poll_issue()
stage_wd(3 if STG else 0, 4)
if STG != 2:
    z_ci_all()
stage_done(0 if STG == 2 else 18)
A.label("L_zpart")
zpart()
A.label("L_fin")
if STAMPS and "--dbg" not in sys.argv:
    stamp("issued_out")
    e("s_waitcnt vmcnt(0)")
    e("%s s[100:101]", "s_memtime" if "--cyc" in sys.argv else "s_memrealtime")
    e("s_waitcnt lgkmcnt(0)")
    for i in range(9):
        e("v_mov_b32 %s, %s", v(16 + i), s(84 + 2 * i))
    e("s_lshl_b32 s3, s2, 3")
    e("s_add_u32 s3, s3, %s", s(sW))
    e("s_lshl_b32 s3, s3, 6")
    e("s_add_u32 s3, s3, 0x%x", WS_STAMP)
    e("v_mov_b32 v5, 0")
    for i in range(3):
        e("buffer_store_dwordx4 %s, v5, %s, s3 offen offset:%d", v(16 + 4 * i, 4), s(sWS, 4), 16 * i)
if "--dbg" in sys.argv:
    e("s_load_dwordx2 s[4:5], s[0:1], 64")
    e("s_waitcnt vmcnt(0) lgkmcnt(0)")
    e("s_memrealtime s[100:101]")
    srd(A, 8, 4, 256)
    e("s_waitcnt lgkmcnt(0)")
    e("s_mov_b64 exec, 1")
    e("s_not_b32 s84, s84")
    e("s_cmp_ge_u32 s2, 192")
    e("s_cselect_b32 s3, 32, 0")
    for i in range(8):
        k = [0, 8, 1, 2, 3, 4, 5, 6][i]
        e("v_mov_b32 v16, %s", s(84 + 2 * k))
        e("v_mov_b32 v17, %d", 4 * i)
        e("buffer_atomic_umax v16, v17, s[8:11], s3 offen sc1")
A.label("L_end")
e("s_endpgm")

kernel_desc(A, KN, 256, accum=256)
TB.emit_tables(A)
out = [x for x in sys.argv[1:] if not x.startswith("--")]
open(out[0] if out else "v14.s", "w").write(A.text())
```

```python
import sys
from asmlib import *
import tables19 as TB

NAME = "parallel_sum__spectral_gfnet__glu_gated_reglu__prompt"
A = Asm()
e = A.e


def opt(name, default):
    for x in sys.argv:
        if x.startswith("--%s=" % name):
            return int(x.split("=")[1])
    return default


STAMPS = "--stamps" in sys.argv
SLEEP = opt("sleep", 4)
ROTA, ROTB = opt("rota", 1), opt("rotb", 3)
CIP1 = opt("cip1", 0)
DROT = opt("drot", 0)
WSP = opt("wsp", 2)
PRL = opt("prl", 0)
WARM = opt("warm", 0)
FOLD = opt("fold", 1)
POLL1 = opt("poll1", 0)
CIL = opt("cil", 1)
STG = opt("stg", 1)
ZPR = opt("zpr", 3)
MPR = opt("mpr", 0)
CT = opt("ct", 3)
DS = opt("ds", 1)
MAP8, PF3 = opt("map8", 0), opt("pf3", 0)
R3A, R3B, RZ = opt("r3a", 0), opt("r3b", 0), opt("rz", 0)
OUTF = ["", " sc1", " nt", " sc0 sc1"][opt("outf", 0)]
NFIX = opt("nfix", 0)

WS_EP = 0x0000
WS_FS = 0x1000
WS_FSC = WS_FS + 128 * 128
WS_FT = 0xC000
WS_FU = 0xE000
WS_FH = 0x10000
WS_FW = 0x50000
WS_STAT = 0x28000
WS_CSP = 0x30000
WS_H = 0x60000
WS_T = 0x660000
WS_U = 0x900000
WS_WD = 0xBA0000
WS_STAMP = 0x2000000

SLAB = 49152
AUX = 3 * SLAB
ZU0, ZUS = 0, 16384
CP0, CPS = 65536, 20480
LGO = AUX + 2048
FR_L, FI_L = 90112, AUX + 2048 + 128
MW0, MWA = 0, 22272
MT0 = 45056
RPK = FI_L
LDS_ALL = FI_L + 12288

sX, sG, sU, sWS, sTAB, sWR, sWI, sWD, sOUT = 8, 12, 16, 20, 24, 28, 32, 36, 40
sW, sRB, sCG, sLW = 44, 45, 46, 47
sTmp, sTmp2, sCnt, sDelta, sBuf, sSLAB = 48, 49, 50, 51, 52, 53
sAoff, sBoff, sM0 = 54, 55, 56
sWM, sWN, sFlag = 57, 58, 59
sK1, sJB, sTAG, sSpin = 60, 61, 62, 63
P = 64
sP, sG3, sHo, sWo, sUo, sCo, sLB, sLB2, sOo, sOc, sOOB = 64, 65, 66, 67, 68, 69, 70, 71, 72, 73, 74
sSgn, sS2, sNU, sWcol, sPar = 76, 78, 79, 80, 81
sWa, sWb, sWc, sMW = 6, 7, 75, 80
sR3, sRZ, sI4 = 82, 83, 67
SRDS = {"X": (sX, P, 2048 * 1280), "WR": (sWR, P + 2, 2048 * 642), "WI": (sWI, P + 4, 2048 * 642),
        "G": (sG, P + 8, 640 * 3072), "U": (sU, P + 10, 640 * 3072), "WD": (sWD, P + 12, 1536 * 1280),
        "OUT": (sOUT, P + 14, 2048 * 1280), "WS": (sWS, P + 18, 1 << 28)}


class VQ:
    def __init__(self):
        self.q = []
    def issue(self, tag, n=1):
        self.q += [tag] * n
    def wait(self, *tags, extra=""):
        last = max([i for i, t in enumerate(self.q) if t in tags], default=-1)
        n = len(self.q) - 1 - last
        assert n <= 63, n
        e("s_waitcnt vmcnt(%d)%s", n, extra)
        self.q = self.q[last + 1:]
    def drain(self):
        self.q = []


STN = {}
for x in sys.argv:
    if x.startswith("--st="):
        for i_, grp in enumerate(x[5:].split(",")):
            for nm in grp.split("+"):
                STN[nm] = i_ + 1
STN["start"] = 0


def cap(fn):
    keep, A.lines = A.lines, []
    fn()
    out, A.lines = A.lines, keep
    return out


def weave(main, groups, skip=0):
    n = len(groups)
    step = (len(main) - skip) / (n + 0.001) if n else 0
    k = 0
    for i, ln in enumerate(main):
        while k < n and i >= skip + k * step:
            A.lines += groups[k]
            k += 1
        A.lines.append(ln)
    while k < n:
        A.lines += groups[k]
        k += 1


COLD = []


def rare(cond, fn):
    la, lb = A.newlabel("L_rare"), A.newlabel("L_back")
    e("%s %s", cond, la)
    A.label(lb)
    body = cap(fn)
    COLD.append(["%s:" % la] + body + ["    s_branch %s" % lb])


def flush_cold():
    while COLD:
        A.lines += COLD.pop(0)


def stamp(nm):
    if STAMPS and nm in STN:
        e("%s %s", "s_memtime" if "--cyc" in sys.argv else "s_memrealtime", s(84 + 2 * STN[nm], 2))


def make_tag():
    e("s_mul_i32 %s, %s, 0x9E3779B1", s(sTAG), s(sTAG))
    e("s_add_u32 %s, %s, 0x7F4A7C15", s(sTAG), s(sTAG))


def flag_store(soff, t0, t1):
    e("v_mov_b32 %s, %s", v(t0), s(sTAG))
    e("v_mov_b32 %s, 0", v(t1))
    e("s_mov_b64 exec, 1")
    e("buffer_store_dword %s, %s, %s, %s offen sc1", v(t0), v(t1), s(sWS, 4), s(soff))
    e("s_mov_b64 exec, -1")


def poll_issue(dst, n, vaddr, base):
    e("s_mov_b32 %s, 0x%x", s(sTmp), base)
    e("buffer_load_dword%s %s, %s, %s, %s offen sc1", "" if n == 1 else "x%d" % n, v(dst, n), v(vaddr), s(sWS, 4), s(sTmp))


def poll_check(dst, n, vaddr, base):
    assert n == 1

    def spin():
        top, done = A.newlabel("L_poll"), A.newlabel("L_polld")
        e("s_mov_b32 %s, 0", s(sSpin))
        A.label(top)
        if SLEEP:
            e("s_sleep %d", SLEEP)
        poll_issue(dst, n, vaddr, base)
        e("s_add_u32 %s, %s, 1", s(sSpin), s(sSpin))
        e("s_cmp_ge_u32 %s, %d", s(sSpin), opt("spin", 40000))
        e("s_waitcnt vmcnt(0)")
        e("s_cbranch_scc1 %s", done)
        e("v_cmp_ne_u32 vcc, %s, %s", s(sTAG), v(dst))
        e("s_cbranch_vccnz %s", top)
        A.label(done)
    e("v_cmp_ne_u32 vcc, %s, %s", s(sTAG), v(dst))
    rare("s_cbranch_vccnz", spin)


def karg_wait(first, rest=()):
    e("s_waitcnt lgkmcnt(0)")
    for k in first:
        srd(A, *SRDS[k])
    e("s_load_dword %s, %s, 0x%x", s(sTAG), s(P + 18, 2), WS_EP)
    for k in rest:
        srd(A, *SRDS[k])


def tab_srd():
    e("s_getpc_b64 s[4:5]")
    e("s_add_u32 s4, s4, dft_tables@rel32@lo+4")
    e("s_addc_u32 s5, s5, dft_tables@rel32@hi+12")
    srd(A, sTAB, 4, TB.TAB_BYTES)


def dpp_sum16(r_):
    for ctl in ("quad_perm:[1,0,3,2]", "quad_perm:[2,3,0,1]", "row_half_mirror", "row_mirror"):
        e("s_nop 1")
        e("v_add_f32_dpp %s, %s, %s %s row_mask:0xf bank_mask:0xf", v(r_), v(r_), v(r_), ctl)


def round_bf16(r_):
    e("v_cvt_pk_bf16_f32 %s, %s, %s", v(r_), v(r_), v(r_))
    e("v_and_b32 %s, 0xffff0000, %s", v(r_), v(r_))


def mm16(d, a_, b_, first=False):
    e("v_mfma_f32_16x16x32_bf16 %s, %s, %s, %s", v(d, 4), v(a_, 4), v(b_, 4), "0" if first else v(d, 4))


def stats_addr(R):
    e("s_lshl_b32 %s, %s, 2", s(sTmp), s(sCG))
    e("s_add_u32 %s, %s, %s", s(sTmp), s(sTmp), s(sW))
    e("s_lshl_b32 %s, %s, 2", s(sTmp), s(sTmp))
    e("v_lshrrev_b32 %s, 4, v0", v(R + 20))
    e("v_add_u32 %s, %s, %s", v(R + 21), s(sTmp), v(R + 20))
    e("v_and_b32 %s, 31, %s", v(R + 20), v(R + 21))
    e("v_lshlrev_b32 %s, 6, %s", v(R + 20), v(R + 20))
    e("v_lshrrev_b32 %s, 5, %s", v(R + 22), v(R + 21))
    e("v_add_u32 %s, %s, %s", v(R + 20), v(R + 20), v(R + 22))
    e("s_lshl_b32 %s, %s, 2", s(sTmp), s(sRB))
    e("v_add_u32 %s, %s, %s", v(R + 20), s(sTmp), v(R + 20))
    e("v_mul_u32_u24 %s, 1280, %s", v(R + 20), v(R + 20))
    e("v_and_b32 %s, 15, v0", v(R + 22))
    e("v_lshl_add_u32 %s, %s, 4, %s", v(R + 20), v(R + 22), v(R + 20))


def stats_issue(R):
    for n in range(5):
        e("buffer_load_dwordx4 %s, %s, %s, 0 offen offset:%d", v(R + 4 * n, 4), v(R + 20), s(sX, 4), n * 256)


def stats_compute(R):
    F = R + 24
    S_, V_, T_ = R + 64, R + 66, R + 22
    for n in range(20):
        e("v_lshlrev_b32 %s, 16, %s", v(F + 2 * n), v(R + n))
        e("v_and_b32 %s, 0xffff0000, %s", v(F + 2 * n + 1), v(R + n))
    e("v_pk_add_f32 %s, %s, %s", v(S_, 2), v(F, 2), v(F + 2, 2))
    for n in range(2, 20):
        e("v_pk_add_f32 %s, %s, %s", v(S_, 2), v(S_, 2), v(F + 2 * n, 2))
    e("v_add_f32 %s, %s, %s", v(S_), v(S_), v(S_ + 1))
    dpp_sum16(S_)
    e("v_mul_f32 %s, 0x3acccccd, %s", v(S_), v(S_))
    for n in range(20):
        e("v_pk_add_f32 %s, %s, %s op_sel_hi:[1,0] neg_lo:[0,1] neg_hi:[0,1]", v(F + 2 * n, 2), v(F + 2 * n, 2), v(S_, 2))
    e("v_pk_mul_f32 %s, %s, %s", v(V_, 2), v(F, 2), v(F, 2))
    for n in range(1, 20):
        e("v_pk_fma_f32 %s, %s, %s, %s", v(V_, 2), v(F + 2 * n, 2), v(F + 2 * n, 2), v(V_, 2))
    e("v_add_f32 %s, %s, %s", v(V_), v(V_), v(V_ + 1))
    dpp_sum16(V_)
    e("v_mul_f32 %s, 0x3acccccd, %s", v(V_), v(V_))
    round_bf16(V_)
    e("v_add_f32 %s, 0x3727c5ac, %s", v(V_), v(V_))
    round_bf16(V_)
    e("v_sqrt_f32 %s, %s", v(V_), v(V_))
    e("s_nop 0")
    round_bf16(V_)
    e("v_rcp_f32 %s, %s", v(V_), v(V_))
    round_bf16(S_)
    e("v_and_b32 %s, 15, v0", v(T_))
    e("v_cmp_eq_u32 vcc, 1, %s", v(T_))
    e("v_lshlrev_b32 %s, 2, %s", v(R + 1), v(R + 21))
    e("v_lshl_add_u32 %s, %s, 9, %s", v(R + 1), v(T_), v(R + 1))
    e("v_cndmask_b32 %s, %s, %s, vcc", v(V_), v(V_), v(S_))
    e("v_cmp_gt_u32 vcc, 2, %s", v(T_))
    e("s_lshl_b32 %s, %s, 10", s(sTmp), s(sRB))
    e("s_add_u32 %s, %s, 0x%x", s(sTmp), s(sTmp), WS_STAT)
    e("s_and_saveexec_b64 s[4:5], vcc")
    e("buffer_store_dword %s, %s, %s, %s offen sc1", v(V_), v(R + 1), s(sWS, 4), s(sTmp))
    e("s_mov_b64 exec, s[4:5]")


def aux_poll_addr(ffn, dst):
    e("s_lshl_b32 %s, %s, 2", s(sTmp), s(sRB))
    e("s_add_u32 %s, %s, %s", s(sTmp), s(sTmp), s(sLW))
    e("s_lshl_b32 %s, %s, 1", s(sTmp), s(sTmp))
    e("v_and_b32 v6, 1, v0")
    e("v_add_u32 v6, %s, v6", s(sTmp))
    if ffn:
        e("s_and_b32 %s, s2, 0xc6", s(sTmp))
        e("s_add_u32 %s, %s, 128", s(sTmp), s(sTmp))
        e("v_and_b32 v7, 7, v0")
        e("v_bfe_u32 v12, v0, 3, 1")
        e("v_min_u32 v7, 4, v7")
        e("v_lshlrev_b32 v7, 3, v7")
        e("v_add3_u32 v7, v7, v12, %s", s(sTmp))
        e("v_cmp_gt_u32 vcc, 16, v0")
        e("s_nop 1")
        e("v_cndmask_b32 v6, v7, v6, vcc")
    e("v_lshlrev_b32 %s, 7, v6", v(dst))


def fw_poll_addr(dst):
    e("s_lshl_b32 %s, %s, 6", s(sTmp), s(sLW))
    e("v_add_u32 %s, %s, v0", v(dst), s(sTmp))
    e("v_min_u32 %s, 159, %s", v(dst), v(dst))
    e("v_lshlrev_b32 %s, 7, %s", v(dst), v(dst))


def aux_addr(ffn, R):
    e("v_and_b32 %s, 31, v0", v(R))
    e("v_lshrrev_b32 %s, 5, v0", v(R + 1))
    e("v_lshlrev_b32 %s, 2, %s", v(R), v(R))
    e("v_lshl_add_u32 %s, %s, 9, %s", v(R), v(R + 1), v(R))
    e("s_lshl_b32 %s, %s, 7", s(sTmp), s(sLW))
    e("v_add_u32 %s, %s, %s", v(R), s(sTmp), v(R))
    if ffn:
        e("v_lshrrev_b32 %s, 4, v0", v(R + 1))
        e("v_mul_u32_u24 %s, 12288, %s", v(R + 1), v(R + 1))
        e("v_and_b32 %s, 15, v0", v(R + 3))
        e("v_lshl_add_u32 %s, %s, 4, %s", v(R + 1), v(R + 3), v(R + 1))
        e("s_lshl_b32 %s, %s, 8", s(sTmp), s(sLW))
        e("s_lshl_b32 %s, %s, 10", s(sTmp2), s(sCG))
        e("s_add_u32 %s, %s, %s", s(sTmp), s(sTmp), s(sTmp2))
        e("v_add_u32 %s, %s, %s", v(R + 1), s(sTmp), v(R + 1))
        e("v_lshrrev_b32 %s, 5, v0", v(R + 16))
        e("v_lshl_add_u32 %s, %s, 29, %s", v(R + 16), v(R + 16), v(R + 1))


def aux_issue(ffn, R):
    e("s_lshl_b32 %s, %s, 10", s(sTmp), s(sRB))
    e("s_add_u32 %s, %s, 0x%x", s(sTmp), s(sTmp), WS_STAT)
    e("buffer_load_dword %s, %s, %s, %s offen sc1", v(R + 2), v(R), s(sWS, 4), s(sTmp))
    if ffn:
        for n in range(3):
            e("s_mov_b32 %s, 0x%x", s(sTmp), WS_CSP + n * 4 * 12288)
            e("buffer_load_dwordx4 %s, %s, %s, %s offen sc1", v(R + 4 + 4 * n, 4), v(R + 16 if n == 2 else R + 1), s(sWS, 4), s(sTmp))


def aux_finish(ffn, R):
    e("v_add_u32 %s, %d, %s", v(R), AUX, v(R))
    e("ds_write_b32 %s, %s", v(R), v(R + 2))
    if ffn:
        C_, T_ = R + 4, R + 8
        for n in range(1, 3):
            for k in (0, 2):
                e("v_pk_add_f32 %s, %s, %s", v(C_ + k, 2), v(C_ + k, 2), v(C_ + 4 * n + k, 2))
        for op in ("v_permlane16_swap_b32", "v_permlane32_swap_b32"):
            for i in range(4):
                e("v_mov_b32 %s, %s", v(T_ + i), v(C_ + i))
            e("s_nop 0")
            for i in range(4):
                e("%s %s, %s", op, v(C_ + i), v(T_ + i))
            e("s_nop 0")
            for i in range(4):
                e("v_add_f32 %s, %s, %s", v(C_ + i), v(C_ + i), v(T_ + i))
        e("s_lshl_b32 %s, %s, 8", s(sTmp), s(sLW))
        e("s_add_u32 %s, %s, %d", s(sTmp), s(sTmp), AUX + 1024)
        e("v_lshl_add_u32 %s, %s, 4, %s", v(R + 1), v(R + 3), s(sTmp))
        e("ds_write_b128 %s, %s", v(R + 1), v(C_, 4))
    e("s_waitcnt lgkmcnt(0)")


def p3_map():
    if MAP8:
        e("s_and_b32 %s, s2, 7", s(sP))
        e("s_lshl_b32 %s, %s, 2", s(sP), s(sP))
        e("s_bfe_u32 s3, s2, 0x20003")
        e("s_add_u32 %s, %s, s3", s(sP), s(sP))
        e("s_lshr_b32 %s, s2, 5", s(sG3))
        return
    e("s_and_b32 s3, s2, 7")
    e("s_lshr_b32 %s, s2, 3", s(sTmp))
    e("s_lshr_b32 %s, s3, 1", s(sP))
    e("s_lshl_b32 %s, %s, 3", s(sP), s(sP))
    e("s_and_b32 %s, %s, 7", s(sTmp2), s(sTmp))
    e("s_add_u32 %s, %s, %s", s(sP), s(sP), s(sTmp2))
    e("s_and_b32 s3, s3, 1")
    e("s_lshl_b32 s3, s3, 2")
    e("s_lshr_b32 %s, %s, 3", s(sTmp), s(sTmp))
    e("s_add_u32 %s, s3, %s", s(sG3), s(sTmp))


ZG, ZC, ZAB = [160, 224], 64, [136, 192, 208]


def ZAr(c3, rt): return ZAB[c3] + 4 * rt


def z_setup():
    p3_map()
    e("s_mul_i32 %s, %s, %d", s(sLB), s(sLW), ZUS)
    e("s_lshl_b32 %s, %s, 7", s(sUo), s(sP))
    e("s_lshl_b32 %s, %s, 12", s(sTmp), s(sLW))
    e("s_add_u32 %s, %s, %s", s(sUo), s(sUo), s(sTmp))
    e("s_add_u32 %s, %s, 0x%x", s(sUo), s(sUo), WS_U)
    e("s_mul_i32 %s, %s, 21", s(sCo), s(sG3))
    e("s_add_u32 %s, %s, %s", s(sCo), s(sCo), s(sLW))
    e("s_mul_i32 %s, %s, 3072", s(sCo), s(sCo))
    e("s_add_u32 %s, %s, %d", s(sCo), s(sCo), TB.CI_OFF)
    e("s_lshl_b32 %s, %s, 1", s(sS2), s(sP))


def wd_bases(wreg):
    e("s_lshr_b32 %s, %s, 1", s(sOc), s(sG3))
    e("s_and_b32 %s, %s, 1", s(sTmp), s(sG3))
    e("s_mul_i32 %s, %s, 20", s(sTmp), s(sTmp))
    e("s_add_u32 %s, %s, %s", s(sOc), s(sOc), s(sTmp))
    e("s_add_u32 %s, %s, 16", s(sOc), s(sOc))
    e("s_lshl_b32 %s, %s, 5", s(sOc), s(sOc))
    e("s_lshl_b32 %s, %s, 10", s(sTmp), s(wreg))
    e("s_add_u32 %s, %s, 0x%x", s(sTmp), s(sTmp), WS_WD)
    e("s_mul_i32 %s, %s, %d", s(sWa), s(sG3), 2 * 49152)
    e("s_add_u32 %s, %s, %s", s(sWa), s(sWa), s(sTmp))
    e("s_mul_i32 %s, %s, %d", s(sWc), s(sOc), 49152 // 32)
    e("s_add_u32 %s, %s, %s", s(sWc), s(sWc), s(sTmp))


def rot3():
    e("s_and_b32 %s, %s, 3", s(sR3), s(sG3))
    e("s_mul_i32 %s, %s, %d", s(sR3), s(sR3), R3A)
    e("s_and_b32 %s, %s, 7", s(sTmp), s(sP))
    e("s_mul_i32 %s, %s, %d", s(sTmp), s(sTmp), R3B)
    e("s_add_u32 %s, %s, %s", s(sR3), s(sR3), s(sTmp))
    for _ in range((3 * R3A + 7 * R3B) // 12):
        e("s_cmp_ge_u32 %s, 12", s(sR3))
        e("s_cselect_b32 %s, 12, 0", s(sTmp))
        e("s_sub_u32 %s, %s, %s", s(sR3), s(sR3), s(sTmp))


def item4(i, dst):
    e("s_add_u32 %s, %s, %d", s(dst), s(sR3), i)
    e("s_cmp_ge_u32 %s, 12", s(dst))
    e("s_cselect_b32 %s, 12, 0", s(sTmp))
    e("s_sub_u32 %s, %s, %s", s(dst), s(dst), s(sTmp))
    e("s_lshl_b32 %s, %s, 12", s(dst), s(dst))


WOFF = [(0, 0), (0, 49152), (0, 20 * 49152), (0, 21 * 49152), (1, 0)]


def stage_wd(i0, i1):
    e("s_mul_i32 %s, %s, %d", s(sSLAB), s(sLW), CPS)
    rot3()
    for i in range(i0, i1):
        item4(i, sI4)
        e("s_add_u32 %s, %s, %s", s(sTmp2), s(sI4), s(sWa))
        for ct in range(5):
            e("s_add_u32 m0, %s, %d", s(sSLAB), CP0 + i * 5120 + ct * 1024)
            if ct < 4:
                e("s_add_u32 %s, %s, %d", s(sTmp), s(sTmp2), WOFF[ct][1])
            else:
                e("s_add_u32 %s, %s, %s", s(sTmp), s(sI4), s(sWc))
            e("buffer_load_dwordx4 v5, %s, %s offen sc1 lds", s(sWS, 4), s(sTmp))


def z_ci_all():
    for z in range(6):
        z_ci_loads(z, 5)


def stage_done(n):
    e("s_lshl_b32 %s, %s, 2", s(sTmp), s(sLW))
    e("s_add_u32 %s, %s, %d", s(sTmp), s(sTmp), LGO + 16)
    e("v_mov_b32 v12, %s", s(sTmp))
    e("v_mov_b32 v13, 1")
    e("s_waitcnt vmcnt(%d)", n)
    e("ds_write_b32 v12, v13")


def z_item(z, mul, base, dst):
    e("s_and_b32 %s, %s, 3", s(dst), s(sG3))
    e("s_mul_i32 %s, %s, %d", s(dst), s(dst), RZ)
    e("s_add_u32 %s, %s, %d", s(dst), s(dst), z)
    e("s_cmp_ge_u32 %s, 6", s(dst))
    e("s_cselect_b32 %s, 6, 0", s(sTmp))
    e("s_sub_u32 %s, %s, %s", s(dst), s(dst), s(sTmp))
    e("s_lshl_b32 %s, %s, 2", s(sTmp), s(dst))
    e("s_add_u32 %s, %s, %s", s(sTmp), s(sTmp), s(sLW))
    e("s_cmp_gt_u32 %s, 20", s(sTmp))
    e("s_cselect_b32 %s, 0x20000000, %s", s(sTmp), s(base))
    e("s_mul_i32 %s, %s, %d", s(dst), s(dst), mul)
    e("s_add_u32 %s, %s, %s", s(dst), s(dst), s(sTmp))


def z_ci_loads(z, vL):
    z_item(z, 4 * 3072, sCo, sRZ)
    for c3 in range(3):
        e("buffer_load_dwordx4 %s, %s, %s, %s offen offset:%d", v(ZC + z * 12 + c3 * 4, 4), v(vL), s(sTAB, 4), s(sRZ), c3 * 1024)


def ZGr(u, ro, nh, kap): return ZG[u] + ((ro * 2 + nh) * 2 + kap) * 4


def z_gconst():
    e("v_and_b32 v56, 15, v0")
    e("v_lshlrev_b32 v56, 6, v56")
    e("v_add_u32 v56, %s, v56", s(sS2))
    e("v_cvt_f32_u32 v56, v56")
    e("v_mul_f32 v56, 0x3a000000, v56")
    e("v_lshrrev_b32 v57, 5, v0")
    e("v_lshlrev_b32 v57, 3, v57")
    e("v_cvt_f32_u32 v57, v57")
    e("v_bfe_u32 v58, v0, 4, 1")
    e("v_cvt_f32_u32 v58, v58")
    e("v_mul_f32 v58, 0x3e800000, v58")
    for u in range(2):
        if u:
            e("v_add_f32 v56, 0x3a000000, v56")
        for kap in range(2):
            if kap:
                e("v_add_f32 v59, 0x41800000, v57")
                e("v_fma_f32 v59, v59, v56, v58")
            else:
                e("v_fma_f32 v59, v57, v56, v58")
            for ro in range(2):
                if ro:
                    e("v_add_f32 v60, 0xbe800000, v59")
                else:
                    e("v_mov_b32 v60, v59")
                for i2 in range(4):
                    e("v_cos_f32 v61, v60")
                    e("v_add_f32 v60, v60, v56")
                    e("v_cos_f32 v62, v60")
                    e("v_add_f32 v60, v60, v56")
                    b = ZGr(u, ro, 0, kap) + i2
                    e("v_cvt_pk_bf16_f32 %s, v61, v62", v(b))
                    e("v_xor_b32 %s, 0x80000000, %s", v(b + 8), v(b))


def fu_poll_issue():
    e("v_lshlrev_b32 v11, 7, v0")
    lab0 = A.newlabel("L_nofup")
    e("s_cmp_lg_u32 %s, 0", s(sLW))
    e("s_cbranch_scc1 %s", lab0)
    poll_issue(16, 1, 11, WS_FU)
    A.label(lab0)


def zpart():
    vL, vUG, vTU, vTU1, vPU = 5, 6, 7, 8, 11
    UF, ZT = 16, 32
    e("v_lshlrev_b32 %s, 4, v0", v(vL))
    e("v_lshrrev_b32 v12, 3, v0")
    e("v_mul_u32_u24 v12, %d, v12", 21 * 4096)
    e("v_lshrrev_b32 v13, 2, v0")
    e("v_lshrrev_b32 v14, 4, v0")
    e("v_xor_b32 v13, v13, v14")
    e("v_and_b32 v13, 1, v13")
    e("v_lshl_add_u32 v12, v13, 6, v12")
    e("v_and_b32 v13, 3, v0")
    e("v_lshl_add_u32 %s, v13, 4, v12", v(vUG))
    e("v_lshrrev_b32 v12, 5, v0")
    e("v_lshlrev_b32 v12, 3, v12")
    e("v_bfe_u32 v14, v0, 2, 2")
    e("v_add_u32 v12, v12, v14")
    e("v_lshlrev_b32 v12, 7, v12")
    e("v_lshl_add_u32 v12, v13, 4, v12")
    e("v_bfe_u32 v14, v0, 4, 1")
    e("v_lshl_add_u32 v12, v14, 3, v12")
    e("v_bfe_u32 v14, v0, 3, 1")
    e("v_lshl_add_u32 v12, v14, 6, v12")
    e("v_add_u32 %s, %s, v12", v(vTU), s(sLB))
    e("v_xor_b32 %s, 64, %s", v(vTU1), v(vTU))
    e("v_mov_b32 v12, %d", LGO)
    lab1, lab2 = A.newlabel("L_lgo"), A.newlabel("L_lgod")
    e("s_cmp_lg_u32 %s, 0", s(sLW))
    e("s_cbranch_scc1 %s", lab1)
    e("s_waitcnt vmcnt(0)")
    poll_check(UF, 1, vPU, WS_FU)
    e("v_mov_b32 v13, 1")
    e("ds_write_b32 v12, v13")
    e("s_branch %s", lab2)
    A.label(lab1)
    e("s_sleep 1")
    e("ds_read_b32 v13, v12")
    e("s_waitcnt lgkmcnt(0)")
    e("v_cmp_ne_u32 vcc, 1, v13")
    e("s_cbranch_vccnz %s", lab1)
    A.label(lab2)
    stamp("zU")
    if ZPR:
        e("s_setprio %d", ZPR)
    q = VQ()

    def udma(z):
        z_item(z, 4 * 4096, sUo, sRZ)
        for n in range(4):
            e("s_add_u32 m0, %s, %d", s(sLB), (z % 4) * 4096 + n * 1024)
            e("s_add_u32 %s, %s, %d", s(sTmp2), s(sRZ), n * 8 * 21 * 4096)
            e("buffer_load_dwordx4 %s, %s, %s offen sc1 lds", v(vUG), s(sWS, 4), s(sTmp2))
        q.issue("u%d" % z, 4)
    for z in range(4):
        udma(z)
    def ureads(z):
        q.wait("u%d" % z)
        stamp("z%d" % z)
        for u in range(2):
            for kap in range(2):
                for rd in range(2):
                    e("ds_read_b64_tr_b16 %s, %s offset:%d", v(UF + 8 * u + 4 * kap + 2 * rd, 2), v(vTU1 if u else vTU), (z % 4) * 4096 + kap * 2048 + rd * 512)
    ureads(0)
    for z in range(6):
        for u in range(2):
            e("s_waitcnt lgkmcnt(%d)", 4 - 4 * u)
            for kap in range(2):
                for nh in range(2):
                    for ro in range(2):
                        mm16(ZT + u * 16 + (nh * 2 + ro) * 4, UF + 8 * u + 4 * kap, ZGr(u, ro, nh, kap), kap == 0)
        if z + 4 < 6:
            udma(z + 4)
        if z + 1 < 6:
            ureads(z + 1)
        for rt in range(4):
            b = ZT + rt * 8
            for k in range(4):
                e("v_cvt_pk_bf16_f32 %s, %s, %s", v(b + k), v(b + 2 * k), v(b + 2 * k + 1))
        e("s_nop 0")
        for rt in range(4):
            for c3 in range(3):
                mm16(ZAr(c3, rt), ZC + z * 12 + c3 * 4, ZT + rt * 8, z == 0)
    e("v_add_u32 v12, %s, %s", s(sLB), v(vL))
    for rt in range(4):
        for c3 in range(3):
            if rt == 3 and c3 == 0:
                e("s_nop 1")
            e("ds_write_b128 v12, %s offset:%d", v(ZAr(c3, rt), 4), c3 * 4096 + rt * 1024)
    e("s_waitcnt lgkmcnt(0)")
    stamp("zend")
    e("s_barrier")


vA0, vA1, vB0, vB1 = 2, 3, 4, 1


def lgo_init():
    e("v_mov_b32 v12, %d", LGO)
    e("v_mov_b32 v13, 0")
    e("ds_write_b32 v12, v13")
    e("ds_write_b32 v12, v13 offset:4")
    for i in range(4):
        e("ds_write_b32 v12, v13 offset:%d", 16 + 4 * i)


def k_offset(dst):
    e("s_and_b32 %s, s2, 1", s(dst))
    e("s_mul_i32 %s, %s, 5", s(dst), s(dst))
    e("s_bfe_u32 %s, s2, 0x10003", s(sTmp))
    e("s_mul_i32 %s, %s, 3", s(sTmp), s(sTmp))
    e("s_add_u32 %s, %s, %s", s(dst), s(dst), s(sTmp))


def x_src_scalar():
    e("s_lshl_b32 %s, %s, 2", s(sAoff), s(sRB))
    e("s_add_u32 %s, %s, %s", s(sAoff), s(sAoff), s(sLW))
    e("s_mul_i32 %s, %s, 1280", s(sAoff), s(sAoff))


def ffn_loader():
    if PRL & 2:
        e("s_setprio 2")
    e("v_lshrrev_b32 v6, 3, v0")
    e("v_mul_u32_u24 v6, 81920, v6")
    e("v_and_b32 v7, 7, v0")
    e("v_lshrrev_b32 v8, 4, v0")
    e("v_xor_b32 v7, v7, v8")
    e("v_lshl_add_u32 %s, v7, 4, v6", v(vA0))
    e("v_xor_b32 %s, 64, %s", v(vA1), v(vA0))
    e("v_mul_u32_u24 v6, 3072, v8")
    e("v_and_b32 v7, 15, v0")
    e("v_lshlrev_b32 v8, 2, v8")
    e("v_xor_b32 v7, v7, v8")
    e("v_lshl_add_u32 %s, v7, 4, v6", v(vB0))
    e("v_xor_b32 %s, 32, %s", v(vB1), v(vB0))
    x_src_scalar()
    e("s_mul_i32 %s, %s, %d", s(sBoff), s(sLW), 16 * 3072)
    e("s_lshl_b32 %s, %s, 8", s(sTmp), s(sCG))
    e("s_add_u32 %s, %s, %s", s(sBoff), s(sBoff), s(sTmp))
    e("s_lshl_b32 %s, %s, 12", s(sM0), s(sLW))
    k_offset(sJB)
    XR_ = opt("xrot", 0)
    if XR_:
        e("s_bfe_u32 %s, s2, 0x20003", s(sJB))
        e("s_mul_i32 %s, %s, 5", s(sJB), s(sJB))
        e("s_add_u32 %s, %s, 1", s(sJB), s(sJB))
        e("s_lshr_b32 %s, %s, 1", s(sJB), s(sJB))
        if XR_ & 4:
            e("s_mov_b32 %s, 0", s(sJB))
        e("s_lshr_b32 %s, s2, 6", s(sTmp))
        e("s_mul_i32 %s, %s, %d", s(sTmp), s(sTmp), (XR_ & 3) - 1)
        e("s_add_u32 %s, %s, %s", s(sJB), s(sJB), s(sTmp))
        e("s_cmp_ge_u32 %s, 10", s(sJB))
        e("s_cselect_b32 %s, 10, 0", s(sTmp))
        e("s_sub_u32 %s, %s, %s", s(sJB), s(sJB), s(sTmp))
    NR = 10
    tab_srd()
    stamp("l_pre")
    e("s_waitcnt lgkmcnt(0)")
    stamp("l_k")
    for k in ("X", "G", "U"):
        srd(A, *SRDS[k])
    q = VQ()

    def slab_groups(i):
        b = (i % 3) * SLAB
        gs = []

        def head():
            if i < NFIX:
                e("s_add_u32 %s, %s, %d", s(sWM), s(sAoff), i * 128)
                e("s_add_u32 %s, %s, %d", s(sWN), s(sBoff), i * 64 * 3072)
            else:
                e("s_add_u32 %s, %s, %d", s(sTmp), s(sJB), NFIX)
                e("s_lshl_b32 %s, %s, 7", s(sWM), s(sTmp))
                e("s_add_u32 %s, %s, %s", s(sWM), s(sWM), s(sAoff))
                e("s_mul_i32 %s, %s, %d", s(sWN), s(sTmp), 64 * 3072)
                e("s_add_u32 %s, %s, %s", s(sWN), s(sWN), s(sBoff))
                e("s_add_u32 %s, %s, 1", s(sJB), s(sJB))
                e("s_cmp_eq_u32 %s, %d", s(sJB), NR)
                e("s_cselect_b32 %s, 0, %s", s(sJB), s(sJB))
        for n in range(4):
            def f(n=n):
                if n == 0:
                    head()
                e("s_add_u32 m0, %s, %d", s(sM0), b + n * 1024)
                e("s_add_u32 %s, %s, %d", s(sTmp), s(sWM), n * 8 * 81920)
                e("buffer_load_dwordx4 %s, %s, %s offen lds", v(vA1 if n & 1 else vA0), s(sX, 4), s(sTmp))
            gs.append(cap(f))
        for mat in range(2):
            for n in range(4):
                def f(n=n, mat=mat):
                    e("s_add_u32 m0, %s, %d", s(sM0), b + 16384 * (1 + mat) + n * 1024)
                    e("s_add_u32 %s, %s, %d", s(sTmp), s(sWN), n * 4 * 3072)
                    e("buffer_load_dwordx4 %s, %s, %s offen lds", v(vB1 if n & 2 else vB0), s(sU if mat else sG, 4), s(sTmp))
                gs.append(cap(f))
        q.issue("s%d" % i, 12)
        return gs

    def slab(i, main=()):
        weave(list(main), slab_groups(i))

    def wait2(n):
        la, lb = A.newlabel("L_w2"), A.newlabel("L_w2")
        e("s_cmp_ge_u32 %s, 48", s(sPar))
        e("s_cbranch_scc1 %s", la)
        e("s_waitcnt vmcnt(%d)", n + 4)
        e("s_branch %s", lb)
        A.label(la)
        e("s_waitcnt vmcnt(%d)", n)
        A.label(lb)

    def bar(b):
        stamp("fl_a%d" % b)
        e("s_barrier")
        stamp("fl_b%d" % b)
    slab(0)
    stamp("l_s0")
    lgo_init()
    e("s_load_dword %s, %s, 0x%x", s(sTAG), s(P + 18, 2), WS_EP)
    for k in ("WS", "WD", "WR", "WI"):
        srd(A, *SRDS[k])
    z_setup()
    e("v_lshlrev_b32 v5, 4, v0")
    fw_poll_addr(10)
    aux_poll_addr(True, 15)
    aux_addr(True, 36)
    slab(1, cap(z_gconst))
    stamp("l_iss")
    q.wait("s0", extra=" lgkmcnt(0)")
    e("s_barrier")
    stamp("l_bi")
    make_tag()
    slab(2)
    repack_dma()
    wait2(12)
    q.q = ["s2"] * 12
    bar(0)
    slab(3)
    wait2(12)
    q.q = ["s3"] * 12
    bar(1)
    slab(4)
    e("s_waitcnt vmcnt(24)")
    repack_finish()
    wait2(12)
    q.q = ["s4"] * 12
    bar(2)
    slab(5)
    if WARM == 2:
        warm_touch(); q.issue("wt", 2)
    q.wait("s4")
    bar(3)
    lab = A.newlabel("L_nocf")
    e("s_cmp_lg_u32 %s, 0", s(sLW))
    e("s_cbranch_scc1 %s", lab)
    e("s_lshl_b32 %s, s2, 7", s(sCnt))
    e("s_add_u32 %s, %s, 0x%x", s(sCnt), s(sCnt), WS_FW)
    flag_store(sCnt, 16, 17)
    A.label(lab)
    slab(6)
    q.wait("s5")
    bar(4)
    slab(7)
    if PF3:
        q.issue("pf", pf3(1))
    q.wait("s6")
    bar(5)
    poll_issue(34, 1, 15, WS_FS); poll_issue(35, 1, 10, WS_FW); q.issue("p", 2)
    slab(8)
    q.wait("s7")
    bar(6)
    slab(9)
    q.wait("p")
    poll_check(34, 1, 15, WS_FS)
    poll_check(35, 1, 10, WS_FW)
    aux_issue(True, 36); q.issue("aux", 4)
    q.wait("s8")
    bar(7)
    q.wait("aux")
    aux_finish(True, 36)
    bar(8)
    wd_bases(sLW)
    stage_wd(0, 4)
    if CIL == 0:
        z_ci_all()
    stage_done(18 if CIL == 0 else 0)
    e("v_mov_b32 v12, %d", LGO)
    lab = A.newlabel("L_hout")
    A.label(lab)
    e("s_sleep 1")
    e("ds_read_b32 v13, v12 offset:4")
    e("s_waitcnt lgkmcnt(0)")
    e("v_cmp_ne_u32 vcc, 4, v13")
    e("s_cbranch_vccnz %s", lab)
    fu_poll_issue()
    if CIL == 1:
        z_ci_all()
    e("s_branch L_zpart")


def wspec_shift(dst):
    e("s_mul_i32 %s, %s, 642", s(sDelta), s(sK1))
    e("s_mul_i32 %s, s3, 320", s(sTmp))
    e("s_add_u32 %s, %s, %s", s(sDelta), s(sDelta), s(sTmp))
    e("s_and_b32 %s, %s, 15", s(dst), s(sDelta))


def wspec_dma():
    mid_k1()
    e("v_mul_u32_u24 v12, 3121, v0")
    e("v_lshrrev_b32 v12, 16, v12")
    e("v_mul_u32_u24 v12, %d, v12", 32 * 642 - 336)
    e("v_lshl_add_u32 v12, v0, 4, v12")
    wspec_shift(sTmp2)
    e("s_sub_u32 %s, %s, %s", s(sDelta), s(sDelta), s(sTmp2))
    e("s_and_b32 %s, %s, 1", s(sTmp), s(sLW))
    e("s_mul_i32 %s, %s, %d", s(sCnt), s(sTmp), 11 * 1008)
    e("s_mul_i32 %s, %s, %d", s(sTmp), s(sTmp), 33 * 32 * 642)
    e("s_add_u32 %s, %s, %s", s(sDelta), s(sDelta), s(sTmp))
    e("s_cmp_ge_u32 %s, 2", s(sLW))
    e("s_cselect_b32 %s, %s, %s", s(sWR), s(sWI), s(sWR))
    e("s_cselect_b32 %s, %s, %s", s(sWR + 1), s(sWI + 1), s(sWR + 1))
    e("s_cselect_b32 %s, %d, 0", s(sTmp), MWA)
    e("s_add_u32 %s, %s, %s", s(sCnt), s(sCnt), s(sTmp))
    gs = []
    for n in range(11):
        def f(n=n):
            e("s_add_u32 m0, %s, %d", s(sCnt), MW0 + n * 1008)
            e("s_add_u32 %s, %s, %d", s(sTmp), s(sDelta), n * 3 * 32 * 642)
            e("buffer_load_dwordx4 v12, %s, %s offen lds", s(sWR, 4), s(sTmp))
        gs.append(cap(f))
    return gs


def repack_dma():
    e("v_lshrrev_b32 v12, 3, v0")
    e("v_mul_u32_u24 v13, 1280, v12")
    e("v_bfe_u32 v14, v0, 4, 2")
    e("v_lshlrev_b32 v14, 1, v14")
    e("v_and_b32 v12, 7, v0")
    e("v_xor_b32 v12, v12, v14")
    e("v_lshl_add_u32 v12, v12, 4, v13")
    e("s_mul_i32 %s, s2, 3", s(sCnt))
    e("s_add_u32 %s, %s, %s", s(sCnt), s(sCnt), s(sLW))
    e("s_cmp_eq_u32 %s, 3", s(sLW))
    e("s_cselect_b32 %s, 480, %s", s(sCnt), s(sCnt))
    e("s_mul_i32 %s, %s, 52429", s(sBuf), s(sCnt))
    e("s_lshr_b32 %s, %s, 19", s(sBuf), s(sBuf))
    e("s_mul_i32 %s, %s, 10", s(sTmp), s(sBuf))
    e("s_sub_u32 %s, %s, %s", s(sCnt), s(sCnt), s(sTmp))
    e("s_mul_i32 %s, %s, 40960", s(sDelta), s(sBuf))
    e("s_lshl_b32 %s, %s, 7", s(sTmp), s(sCnt))
    e("s_add_u32 %s, %s, %s", s(sDelta), s(sDelta), s(sTmp))
    e("s_min_u32 %s, %s, 2", s(sWa), s(sLW))
    e("s_lshl_b32 %s, %s, 12", s(sWa), s(sWa))
    e("s_add_u32 %s, %s, %d", s(sWa), s(sWa), RPK)
    lab = A.newlabel("L_norp")
    e("s_cmp_ge_u32 %s, 48", s(sBuf))
    e("s_cbranch_scc1 %s", lab)
    for n in range(4):
        e("s_add_u32 m0, %s, %d", s(sWa), n * 1024)
        e("s_add_u32 %s, %s, %d", s(sTmp), s(sDelta), n * 8 * 1280)
        e("buffer_load_dwordx4 v12, %s, %s offen lds", s(sWD, 4), s(sTmp))
    A.label(lab)
    e("s_mul_i32 %s, %s, %d", s(sWb), s(sCnt), 4 * 49152)
    e("s_lshl_b32 %s, %s, 10", s(sTmp), s(sBuf))
    e("s_add_u32 %s, %s, %s", s(sWb), s(sWb), s(sTmp))
    e("s_add_u32 %s, %s, 0x%x", s(sWb), s(sWb), WS_WD)
    e("s_mov_b32 %s, %s", s(sPar), s(sBuf))


def repack_finish():
    lab = A.newlabel("L_norp")
    e("s_cmp_ge_u32 %s, 48", s(sPar))
    e("s_cbranch_scc1 %s", lab)
    e("v_lshrrev_b32 v56, 2, v0")
    e("v_lshlrev_b32 v56, 7, v56")
    e("v_and_b32 v57, 3, v0")
    e("v_lshl_add_u32 v56, v57, 3, v56")
    e("v_bfe_u32 v57, v0, 3, 2")
    e("v_lshl_add_u32 v56, v57, 5, v56")
    e("v_add_u32 v56, %s, v56", s(sWa))
    for tq in range(1, 4):
        e("v_xor_b32 %s, %d, v56", v(56 + tq), tq << 5)
    for tq in range(4):
        for rd in range(2):
            e("ds_read_b64_tr_b16 %s, %s offset:%d", v(16 + tq * 4 + 2 * rd, 2), v(56 + tq), rd * 2048)
    for n in range(4):
        e("s_waitcnt lgkmcnt(%d)", 6 - 2 * n)
        e("s_add_u32 %s, %s, %d", s(sTmp), s(sWb), n * 49152)
        e("buffer_store_dwordx4 %s, v5, %s, %s offen sc1", v(16 + n * 4, 4), s(sWS, 4), s(sTmp))
    A.label(lab)


def dft_loader():
    if PRL & 1:
        e("s_setprio 2")
    XR = 64
    vW0, vW1 = 6, 7
    e("v_lshrrev_b32 v8, 3, v0")
    e("v_mul_u32_u24 v9, 81920, v8")
    e("v_and_b32 v10, 7, v0")
    e("v_lshl_add_u32 %s, v10, 4, v9", v(vA0))
    e("v_lshrrev_b32 v9, 4, v0")
    e("v_xor_b32 v10, v10, v9")
    e("v_lshlrev_b32 v8, 7, v8")
    e("v_lshl_add_u32 v8, v10, 4, v8")
    e("s_lshl_b32 %s, %s, 12", s(sTmp), s(sLW))
    e("v_add_u32 %s, %s, v8", v(vW0), s(sTmp))
    e("v_xor_b32 %s, 64, %s", v(vW1), v(vW0))
    e("v_add_u32 v8, %d, %s", 2 * SLAB, v(vW0))
    e("v_add_u32 v9, %d, %s", 2 * SLAB, v(vW1))
    e("v_lshlrev_b32 %s, 4, v0", v(vB0))
    x_src_scalar()
    tab_srd()
    stamp("l_pre")
    e("s_waitcnt lgkmcnt(0)")
    stamp("l_k")
    srd(A, *SRDS["X"])
    q = VQ()

    def xl(i):
        gs = []
        for n in range(4):
            for hf in range(2):
                def f(n=n, hf=hf):
                    e("s_add_u32 %s, %s, %d", s(sTmp), s(sAoff), n * 8 * 81920 + i * 128)
                    e("buffer_load_dwordx4 %s, %s, %s, %s offen offset:%d", v(XR + i * 32 + n * 8 + hf * 4, 4), v(vA0), s(sX, 4), s(sTmp), hf * 640)
                gs.append(cap(f))
        q.issue("x%d" % i, 8)
        return gs

    def fl():
        gs = []
        for n in range(2):
            def f(n=n):
                e("s_lshl_b32 %s, %s, 11", s(sTmp), s(sLW))
                e("s_add_u32 m0, %s, %d", s(sTmp), FR_L + n * 1024)
                e("s_add_u32 %s, %s, %d", s(sTmp), s(sTmp), TB.F64_OFF + n * 1024)
                e("buffer_load_dwordx4 %s, %s, %s offen lds", v(vB0), s(sTAB, 4), s(sTmp))
            gs.append(cap(f))
        q.issue("f", 2)
        return gs

    def fold(i):
        for n in range(4):
            a0 = XR + i * 32 + n * 8
            if FOLD == 0:
                for d in range(4):
                    t = 16 + 4 * (d & 1)
                    e("v_lshlrev_b32 %s, 16, %s", v(t), v(a0 + d))
                    e("v_and_b32 %s, 0xffff0000, %s", v(t + 1), v(a0 + d))
                    e("v_lshlrev_b32 %s, 16, %s", v(t + 2), v(a0 + 4 + d))
                    e("v_and_b32 %s, 0xffff0000, %s", v(t + 3), v(a0 + 4 + d))
                    e("v_pk_fma_f32 %s, %s, %s, %s", v(t, 2), v(t + 2, 2), s(sSgn, 2), v(t, 2))
                    e("v_cvt_pk_bf16_f32 %s, %s, %s", v(a0 + d), v(t), v(t + 1))
            else:
                T = 28 + 8 * (n & 1)
                for d in range(4):
                    e("v_lshlrev_b32 %s, 16, %s", v(T + d), v(a0 + d))
                    e("v_lshlrev_b32 %s, 16, %s", v(T + 4 + d), v(a0 + 4 + d))
                for d in range(8):
                    e("v_and_b32 %s, %s, %s", v(a0 + d), v(44), v(a0 + d))
                if FOLD == 1:
                    for d in range(4):
                        e("v_fmac_f32 %s, %s, %s", v(T + d), s(sSgn), v(T + 4 + d))
                    for d in range(4):
                        e("v_fmac_f32 %s, %s, %s", v(a0 + d), s(sSgn), v(a0 + 4 + d))
                else:
                    for d in (0, 2):
                        e("v_pk_fma_f32 %s, %s, %s, %s", v(T + d, 2), v(T + 4 + d, 2), s(sSgn, 2), v(T + d, 2))
                    for d in (0, 2):
                        e("v_pk_fma_f32 %s, %s, %s, %s", v(a0 + d, 2), v(a0 + 4 + d, 2), s(sSgn, 2), v(a0 + d, 2))
                for d in range(4):
                    e("v_cvt_pk_bf16_f32 %s, %s, %s", v(a0 + d), v(T + d), v(a0 + d))
            b = (i + 1) % 3
            base = ((vW0, vW1) if b < 2 else (8, 9))[n & 1]
            e("ds_write_b128 %s, %s offset:%d", v(base), v(a0, 4), (b * SLAB if b < 2 else 0) + n * 1024)

    def bar(b):
        stamp("dl_a%s" % b)
        e("s_barrier")
        stamp("dl_b%s" % b)
    weave([], xl(0))
    stamp("l_s0")
    lgo_init()
    e("s_load_dword %s, %s, 0x%x", s(sTAG), s(P + 18, 2), WS_EP)
    for k in ("WS", "WR", "WI"):
        srd(A, *SRDS[k])
    e("s_cmp_ge_u32 %s, 2", s(sCG))
    e("s_cselect_b32 %s, -1.0, 1.0", s(sSgn))
    weave([], xl(1))
    e("v_mov_b32 v44, 0xffff0000")
    aux_poll_addr(False, 15)
    e("v_add_u32 %s, %d, v8", v(vW0), (-2 * SLAB) & 0xffffffff)
    e("v_add_u32 %s, %d, v9", v(vW1), (-2 * SLAB) & 0xffffffff)
    fw_poll_addr(10)
    aux_addr(False, 24)
    stamp("l_iss")
    q.wait("x0")
    stamp("dl_x0")
    weave(cap(lambda: fold(0)), xl(2) if DS == 0 else [])
    e("s_waitcnt lgkmcnt(0)")
    e("s_barrier")
    stamp("l_bi")
    make_tag()
    q.wait("x1")
    weave(cap(lambda: fold(1)), xl(3) if DS == 0 else xl(2) + xl(3))
    e("s_waitcnt lgkmcnt(0)")
    bar(0)
    q.wait("x2")
    weave(cap(lambda: fold(2)), xl(4))
    poll_issue(46, 1, 15, WS_FS); q.issue("p")
    e("s_waitcnt lgkmcnt(0)")
    bar(1)
    q.wait("x3")
    weave(cap(lambda: fold(3)), fl())
    q.wait("p")
    poll_check(46, 1, 15, WS_FS)
    aux_issue(False, 24); q.issue("aux")
    e("s_waitcnt lgkmcnt(0)")
    bar(2)
    gs = wspec_dma()
    if WSP == 2:
        weave(cap(lambda: fold(4)), gs)
        q.issue("w", 11)
    else:
        fold(4)
    q.wait("aux")
    aux_finish(False, 24)
    bar(3)
    poll_issue(41, 1, 10, WS_FW)
    if WSP == 0:
        weave([], gs)
    z_setup()
    wd_bases(sLW)
    z_gconst()
    e("s_barrier")
    if WSP == 1:
        weave([], gs)
        e("s_waitcnt vmcnt(11)")
    else:
        e("s_waitcnt vmcnt(0)")
    poll_check(41, 1, 10, WS_FW)
    e("s_branch L_dft_l")


def addr_advance(regs):
    e("s_add_u32 %s, %s, %d", s(sBuf), s(sBuf), SLAB)
    e("s_cmp_ge_u32 %s, %d", s(sBuf), 3 * SLAB)
    e("s_cselect_b32 %s, 0, %s", s(sBuf), s(sBuf))
    e("s_cselect_b32 %s, %d, %s", s(sDelta), (-2 * SLAB) & 0xffffffff, s(sSLAB))
    for r_ in regs:
        e("v_add_u32 %s, %s, %s", v(r_), s(sDelta), v(r_))


def gemm_loop(nslab, NT, mfmas, reads, need, areg, bar_gap, per_gap, last_extra=(), first_hook=None, peel=None, buf0=0, body=None, unroll=None, hooks=None):
    nreads = len(reads(0, 0))
    nm = len(need)

    def step(mf, nxt, first_gap=0, pre=None, barg=None):
        issued, done = 0, 0
        for m in range(nm):
            if need[m] > done:
                allowed = nreads - need[m] + issued
                e("s_waitcnt lgkmcnt(%d)", min(15, allowed))
                done = need[m] if allowed <= 15 else min(nreads, nreads + issued - 15)
            mf[m]()
            if pre and m in pre:
                for f in pre[m]:
                    f()
                if m == barg:
                    done = nreads
            if m >= first_gap:
                for k in range(per_gap):
                    if issued < len(nxt):
                        nxt[issued]()
                        issued += 1
        assert issued == len(nxt), (issued, len(nxt))

    def bar(vm=False):
        e("s_waitcnt lgkmcnt(0)%s", " vmcnt(0)" if vm else "")
        e("s_barrier")

    def merge(*ds):
        out = {}
        for d in ds:
            for k, x in d.items():
                out.setdefault(k, [])
                out[k] += x
        return out

    def spread(ops):
        out = {}
        for n, f in enumerate(ops):
            g = nm - 1 - (len(ops) - 1 - n) * max(1, (nm - bar_gap - 1) // max(1, len(ops)))
            out.setdefault(max(g, 0), []).append(f)
        return out

    def slab(last, peeled=False):
        if peeled:
            for t in range(NT - 1):
                step(mfmas(t & 1, t == 0), reads((t + 1) & 1, t + 1), pre=peel[t])
            step(mfmas(1), reads(0, 0), first_gap=bar_gap + (1 if bar_gap else 0),
                 pre=merge({0: [lambda: addr_advance(areg)]}, {bar_gap: [lambda: bar(True)]}, peel[NT - 1]), barg=bar_gap)
            return
        ex = list(last_extra) if last else []
        per = (len(ex) + NT - 1) // NT
        for t in range(NT - 1):
            step(mfmas(t & 1), reads((t + 1) & 1, t + 1), pre=merge(spread(ex[t * per:(t + 1) * per]), body[t] if body and not last else {}))
        if last:
            step(mfmas(1), [], pre=spread(ex[(NT - 1) * per:]))
        else:
            hooks = {bar_gap: ([first_hook[0]] if first_hook else []) + [bar] + ([first_hook[1]] if first_hook else [])}
            step(mfmas(1), reads(0, 0), first_gap=bar_gap + (1 if bar_gap else 0), pre=merge({0: [lambda: addr_advance(areg)]}, hooks, body[NT - 1] if body else {}), barg=bar_gap)
    e("s_mov_b32 %s, %d", s(sBuf), buf0)
    e("s_mov_b32 %s, %d", s(sSLAB), SLAB)
    e("s_mov_b32 %s, 0", s(sCnt))
    e("s_waitcnt lgkmcnt(0)%s", " vmcnt(%d)" % unroll[0][0] if unroll and unroll[0][0] is not None else "")
    make_tag()
    e("s_barrier")
    stamp("c_bi")
    for f in reads(0, 0):
        f()
    if unroll:
        ops = unroll[0][1]
        for i in range(nslab):
            per = (len(ops) + NT - 2) // (NT - 1)
            hk = hooks[i] if hooks else [{}] * NT
            for t in range(NT - 1):
                step(mfmas(t & 1, i == 0 and t == 0), reads((t + 1) & 1, t + 1), pre=merge(spread(ops[t * per:(t + 1) * per]), hk[t]))
            if i == nslab - 1:
                step(mfmas(1), [])
            else:
                vm, ops = unroll[i + 1]

                def ubar(vm=vm):
                    e("s_waitcnt lgkmcnt(0)%s", "" if vm is None else " vmcnt(%d)" % vm)
                    e("s_barrier")

                def adv(i=i):
                    nb = (buf0 // SLAB + i + 1) % 3
                    for r_ in areg:
                        e("v_add_u32 %s, %d, %s", v(r_), (SLAB if nb else -2 * SLAB) & 0xffffffff, v(r_))
                step(mfmas(1), reads(0, 0), first_gap=bar_gap + (1 if bar_gap else 0),
                     pre=merge({0: [adv]}, {bar_gap: [ubar]}, hk[NT - 1]), barg=bar_gap)
        stamp("c_le")
        return
    if peel:
        slab(False, True)
        e("s_mov_b32 %s, 1", s(sCnt))
    lab = A.newlabel("L_gemm")
    A.label(lab)
    slab(False)
    e("s_add_u32 %s, %s, 1", s(sCnt), s(sCnt))
    e("s_cmp_lt_u32 %s, %d", s(sCnt), nslab - 1)
    e("s_cbranch_scc1 %s", lab)
    slab(True)
    stamp("c_le")


vWD = [1, 2, 3, 4, 14]


def p3c_setup():
    p3_map()
    wd_bases(sW)
    e("s_lshl_b32 %s, %s, 6", s(sOo), s(sG3))
    e("s_mul_i32 %s, %s, %d", s(sHo), s(sP), 2 * 48 * 2048)
    e("s_lshl_b32 %s, %s, 11", s(sTmp), s(sW))
    e("s_add_u32 %s, %s, %s", s(sHo), s(sHo), s(sTmp))
    e("s_and_b32 %s, %s, 1", s(sTmp), s(sW))
    e("s_lshl_b32 %s, %s, 10", s(sTmp), s(sTmp))
    e("s_lshl_b32 %s, %s, 1", s(sTmp2), s(sP))
    e("s_add_u32 %s, %s, %s", s(sTmp), s(sTmp), s(sTmp2))
    e("s_lshr_b32 %s, %s, 1", s(sTmp2), s(sW))
    e("s_add_u32 %s, %s, %s", s(sTmp), s(sTmp), s(sTmp2))
    e("s_mul_i32 %s, %s, 1280", s(sTmp), s(sTmp))
    e("s_add_u32 %s, %s, %s", s(sOo), s(sOo), s(sTmp))
    e("s_add_u32 %s, %s, %s", s(sOc), s(sOc), s(sTmp))


def p3c():
    vL, vO, vPH, vWJ = 1, 2, 3, 4
    RS, XR, WJ, ACC = 8, 8, 152, 176
    NI = 12
    q = VQ()
    e("v_lshlrev_b32 %s, 4, v0", v(vL))
    sHr = [50, 51, 52, 53]
    for rho in range(4):
        e("s_add_u32 %s, %s, %d", s(sTmp), s(sW), rho)
        e("s_bfe_u32 %s, %s, 0x10001", s(sTmp2), s(sTmp))
        e("s_mul_i32 %s, %s, %d", s(sTmp2), s(sTmp2), 48 * 2048)
        e("s_and_b32 %s, %s, 1", s(sTmp), s(sTmp))
        e("s_lshl_b32 %s, %s, 10", s(sTmp), s(sTmp))
        e("s_add_u32 %s, %s, %s", s(sTmp), s(sTmp), s(sTmp2))
        e("s_add_u32 %s, %s, %s", s(sTmp), s(sTmp), s(sHo))
        e("s_add_u32 %s, %s, %d", s(sHr[rho]), s(sTmp), WS_H)

    rot3()

    def wload(i, ct):
        if ct == 0:
            item4(i, sI4)
            e("s_add_u32 %s, %s, %s", s(sTmp2), s(sI4), s(sWa))
        if ct < 4:
            e("s_add_u32 %s, %s, %d", s(sTmp), s(sTmp2), WOFF[ct][1])
        else:
            e("s_add_u32 %s, %s, %s", s(sTmp), s(sI4), s(sWc))
        e("buffer_load_dwordx4 %s, %s, %s, %s offen sc1", v(RS + (i % 4) * 36 + ct * 4, 4), v(vL), s(sWS, 4), s(sTmp))
        q.issue("i%d" % i)

    def hload(i):
        item4(i, sRZ)
        e("s_lshl_b32 %s, %s, 1", s(sRZ), s(sRZ))
        for rho in range(4):
            e("s_add_u32 %s, %s, %s", s(sTmp), s(sHr[rho]), s(sRZ))
            e("buffer_load_dwordx4 %s, %s, %s, %s offen sc1", v(RS + (i % 4) * 36 + 20 + rho * 4, 4), v(vL), s(sWS, 4), s(sTmp))
            q.issue("i%d" % i)

    def wj(i, ct):
        e("ds_read_b128 %s, %s offset:%d", v(WJ + 4 * ct, 4), v(vWJ), i * 5120 + ct * 1024)
    stamp("p3_in")
    e("v_and_b32 v5, 15, v0")
    e("v_mul_u32_u24 v5, 81920, v5")
    e("v_lshrrev_b32 v6, 4, v0")
    e("v_lshl_add_u32 %s, v6, 3, v5", v(vO))
    e("s_lshl_b32 %s, %s, 1", s(sTmp), s(sP))
    e("s_lshr_b32 %s, %s, 1", s(sTmp2), s(sW))
    e("s_add_u32 %s, %s, %s", s(sTmp), s(sTmp), s(sTmp2))
    e("s_mul_i32 %s, %s, 12", s(sTmp), s(sTmp))
    e("v_min_u32 v5, 11, v0")
    e("v_add_u32 v5, %s, v5", s(sTmp))
    e("v_lshlrev_b32 %s, 7, v5", v(vPH))
    e("s_mul_i32 %s, %s, %d", s(sTmp), s(sW), CPS)
    e("s_add_u32 %s, %s, %d", s(sTmp), s(sTmp), CP0)
    e("v_add_u32 %s, %s, %s", v(vWJ), s(sTmp), v(vL))
    lab = A.newlabel("L_nofh")
    e("s_cmp_ge_u32 s2, 192")
    e("s_cbranch_scc1 %s", lab)
    e("v_mov_b32 v7, %d", LGO)
    e("v_mov_b32 v172, 1")
    e("s_waitcnt vmcnt(0)")
    flag_store(sFlag, 5, 6)
    e("s_mov_b64 exec, 1")
    e("ds_add_u32 v7, v172 offset:4")
    e("s_mov_b64 exec, -1")
    A.label(lab)
    stamp("p3_fl")
    poll_issue(7, 1, vPH, WS_FH)
    e("s_lshl_b32 %s, %s, 2", s(sTmp), s(sW))
    e("s_add_u32 %s, %s, %d", s(sTmp), s(sTmp), LGO + 16)
    e("v_mov_b32 v5, %s", s(sTmp))
    late, join = A.newlabel("L_hlate"), A.newlabel("L_hjoin")
    e("s_waitcnt vmcnt(0)")
    e("v_cmp_ne_u32 vcc, %s, v7", s(sTAG))
    e("s_cbranch_vccnz %s", late)
    e("s_mov_b32 %s, 1", s(sNU))
    for i in range(4):
        hload(i)
    for i in range(4, 8):
        for ct in range(5):
            wload(i, ct)
    e("s_branch %s", join)
    A.label(late)
    e("s_mov_b32 %s, 0", s(sNU))
    for i in range(4, 8):
        for ct in range(5):
            wload(i, ct)
    poll_check(7, 1, vPH, WS_FH)
    q.drain()
    for i in range(4):
        hload(i)
    A.label(join)
    stamp("p3_fh")
    lab = A.newlabel("L_wst")
    A.label(lab)
    e("ds_read_b32 v6, v5")
    e("s_waitcnt lgkmcnt(0)")
    e("v_cmp_eq_u32 vcc, 0, v6")
    e("s_cbranch_vccnz %s", lab)
    for ct in range(5):
        wj(0, ct)
    OFF = [(sOo, 0), (sOo, 32), (sOo, 640), (sOo, 672), (sOc, 0)]

    def acc(ct, rt): return ACC + (ct * 4 + rt) * 4
    for i in range(NI):
        rs = RS + (i % 4) * 36
        if i < 4:
            la, lb = A.newlabel("L_w3"), A.newlabel("L_w3")
            e("s_cmp_eq_u32 %s, 0", s(sNU))
            e("s_cbranch_scc1 %s", la)
            e("s_waitcnt vmcnt(32)")
            e("s_branch %s", lb)
            A.label(la)
            q.wait("i%d" % i)
            A.label(lb)
        else:
            q.wait("i%d" % i)
        stamp("i%d" % i)
        for ct in range(5):
            if i < 4:
                e("s_waitcnt lgkmcnt(%d)", 4 if i < 3 else 4 - ct)
            for rt in range(4):
                mm16(acc(ct, rt), WJ + 4 * ct if i < 4 else rs + 4 * ct, rs + 20 + 4 * rt, i == 0)
            if i < 3:
                wj(i + 1, ct)
            if 4 <= i < 8:
                wload(i + 4, ct)
            if i == 9:
                e("buffer_load_dwordx2 %s, %s, %s, %s offen offset:%d", v(XR + 2 * ct, 2), v(vO), s(sX, 4), s(OFF[ct][0]), OFF[ct][1])
                q.issue("x")
        if i + 4 < NI:
            hload(i + 4)
    for rho in range(1, 4):
        e("s_sub_u32 %s, %s, %d", s(sTmp), s(sW), rho)
        e("s_and_b32 %s, %s, 3", s(sTmp), s(sTmp))
        e("s_mul_i32 %s, %s, %d", s(sTmp), s(sTmp), CPS)
        e("s_add_u32 %s, %s, %d", s(sTmp), s(sTmp), CP0 + (rho - 1) * 5120)
        e("v_add_u32 %s, %s, %s", v(40 + rho), s(sTmp), v(vL))
    for ct in range(5):
        for rho in range(1, 4):
            e("ds_write_b128 %s, %s offset:%d", v(vWJ), v(acc(ct, rho), 4), (rho - 1) * 5120 + ct * 1024)
    e("s_lshl_b32 %s, %s, 10", s(sTmp), s(sW))
    e("v_add_u32 v40, %s, %s", s(sTmp), v(vL))
    e("s_waitcnt vmcnt(0)")
    for ct in range(5):
        x0, b = XR + 2 * ct, 20 + 4 * ct
        e("v_lshlrev_b32 %s, 16, %s", v(b), v(x0))
        e("v_and_b32 %s, 0xffff0000, %s", v(b + 1), v(x0))
        e("v_lshlrev_b32 %s, 16, %s", v(b + 2), v(x0 + 1))
        e("v_and_b32 %s, 0xffff0000, %s", v(b + 3), v(x0 + 1))
        for k in (0, 2):
            e("v_pk_add_f32 %s, %s, %s", v(acc(ct, 0) + k, 2), v(acc(ct, 0) + k, 2), v(b + k, 2))
    e("s_waitcnt lgkmcnt(0)")
    stamp("p3_end")
    e("s_barrier")
    stamp("p3_bar")
    LP = 48
    for c3 in range(3):
        for lw in range(4):
            e("ds_read_b128 %s, v40 offset:%d", v(LP + (c3 * 4 + lw) * 4, 4), ZU0 + lw * ZUS + c3 * 4096)
    for ct in range(5):
        for k in range(1, 4):
            e("ds_read_b128 %s, %s offset:%d", v(acc(ct, k), 4), v(40 + k), ct * 1024)
    e("s_waitcnt lgkmcnt(15)")
    for c3 in range(3):
        b = LP + c3 * 16
        for k in (0, 2):
            e("v_pk_add_f32 %s, %s, %s", v(b + k, 2), v(b + k, 2), v(b + 8 + k, 2))
            e("v_pk_add_f32 %s, %s, %s", v(b + 4 + k, 2), v(b + 4 + k, 2), v(b + 12 + k, 2))
        for k in (0, 2):
            if c3 < 2:
                e("v_pk_add_f32 %s, %s, %s neg_lo:[0,1] neg_hi:[0,1]", v(b + 8 + k, 2), v(b + k, 2), v(b + 4 + k, 2))
            e("v_pk_add_f32 %s, %s, %s", v(b + k, 2), v(b + k, 2), v(b + 4 + k, 2))
    zsrc = [LP, LP + 16, LP + 8, LP + 24, LP + 32]
    for ct in range(5):
        b = acc(ct, 0)
        e("s_waitcnt lgkmcnt(%d)", 12 - 3 * ct)
        for k in (0, 2):
            e("v_pk_add_f32 %s, %s, %s", v(b + k, 2), v(b + k, 2), v(zsrc[ct] + k, 2))
            e("v_pk_add_f32 %s, %s, %s", v(b + 4 + k, 2), v(b + 4 + k, 2), v(b + 8 + k, 2))
        for k in (0, 2):
            e("v_pk_add_f32 %s, %s, %s", v(b + k, 2), v(b + k, 2), v(b + 12 + k, 2))
        for k in (0, 2):
            e("v_pk_add_f32 %s, %s, %s", v(b + k, 2), v(b + k, 2), v(b + 4 + k, 2))
        e("v_cvt_pk_bf16_f32 %s, %s, %s", v(b + 8), v(b), v(b + 1))
        e("v_cvt_pk_bf16_f32 %s, %s, %s", v(b + 9), v(b + 2), v(b + 3))
        e("buffer_store_dwordx2 %s, %s, %s, %s offen offset:%d%s", v(b + 8, 2), v(vO), s(sOUT, 4), s(OFF[ct][0]), OFF[ct][1], OUTF)
    lab = A.newlabel("L_noep")
    e("s_lshl_b32 %s, s2, 3", s(sTmp))
    e("s_add_u32 %s, %s, %s", s(sTmp), s(sTmp), s(sW))
    e("s_cmp_eq_u32 %s, 0", s(sTmp))
    e("s_cbranch_scc0 %s", lab)
    e("s_mov_b32 %s, 0x%x", s(sTmp), WS_EP)
    flag_store(sTmp, 5, 6)
    A.label(lab)


def pf3(part):
    e("s_lshr_b32 %s, s2, 3", s(sCnt))
    e("s_lshl_b32 %s, %s, 2", s(sCnt), s(sCnt))
    e("s_add_u32 %s, %s, %s", s(sCnt), s(sCnt), s(sLW))
    ntau = 40 if MAP8 else 20
    n = 0
    if part == 0:
        per = (ntau * 256 + 95) // 96
        for k in range((per + 63) // 64):
            e("s_mul_i32 %s, %s, %d", s(sTmp), s(sCnt), per)
            e("v_min_u32 v12, %d, v0", min(63, per - 64 * k - 1))
            e("v_add_u32 v12, %s, v12", s(sTmp))
            if k:
                e("v_add_u32 v12, %d, v12", 64 * k)
            e("v_lshrrev_b32 v13, 8, v12")
            e("v_and_b32 v12, 255, v12")
            if not MAP8:
                e("s_and_b32 %s, s2, 1", s(sTmp))
                e("s_lshl_b32 %s, %s, 3", s(sTmp2), s(sTmp))
                e("s_lshl_b32 %s, %s, 1", s(sTmp), s(sTmp))
                e("s_add_u32 %s, %s, 16", s(sTmp), s(sTmp))
                e("v_cmp_gt_u32 vcc, 16, v13")
                e("v_and_b32 v14, 7, v13")
                e("v_add_u32 v14, %s, v14", s(sTmp2))
                e("v_bfe_u32 v17, v13, 3, 1")
                e("v_mad_u32_u24 v14, v17, 20, v14")
                e("v_and_b32 v16, 1, v13")
                e("v_add_u32 v16, %s, v16", s(sTmp))
                e("v_bfe_u32 v17, v13, 1, 1")
                e("v_mad_u32_u24 v16, v17, 20, v16")
                e("v_cndmask_b32 v13, v16, v14, vcc")
            e("v_mul_u32_u24 v13, 49152, v13")
            e("v_lshl_add_u32 v12, v12, 7, v13")
            e("s_mov_b32 %s, 0x%x", s(sTmp), WS_WD + 16384)
            e("buffer_load_dword v62, v12, %s, %s offen sc1", s(sWS, 4), s(sTmp))
            n += 1
    else:
        per = (4032 if MAP8 else 2016) // 96
        e("s_mul_i32 %s, %s, %d", s(sTmp), s(sCnt), per * 128)
        if not MAP8:
            e("s_and_b32 %s, s2, 1", s(sTmp2))
            e("s_mul_i32 %s, %s, %d", s(sTmp2), s(sTmp2), 4 * 63 * 1024)
            e("s_add_u32 %s, %s, %s", s(sTmp), s(sTmp), s(sTmp2))
        e("s_add_u32 %s, %s, %d", s(sTmp), s(sTmp), TB.CI_OFF)
        e("v_min_u32 v12, %d, v0", per - 1)
        e("v_lshlrev_b32 v12, 7, v12")
        e("buffer_load_dword v63, v12, %s, %s offen", s(sTAB, 4), s(sTmp))
        n = 1
    return n


def code_touch():
    lab = A.newlabel("L_ct")
    e("s_getpc_b64 s[4:5]")
    A.label(lab)
    e("s_sub_u32 s4, s4, %s - %s", lab, NAME + "_kernel")
    e("s_subb_u32 s5, s5, 0")
    e("s_mov_b32 %s, s4", s(sG))
    e("s_and_b32 %s, s5, 0xffff", s(sG + 1))
    e("s_mov_b32 %s, L_code_end - %s", s(sG + 2), NAME + "_kernel")
    e("s_mov_b32 %s, 0x00020000", s(sG + 3))
    if CT == 3:
        e("s_lshr_b32 %s, s2, 3", s(sTmp))
    else:
        e("s_bfe_u32 %s, s2, 0x30003", s(sTmp))
        e("s_lshl_b32 %s, %s, 2", s(sTmp), s(sTmp))
        e("s_add_u32 %s, %s, %s", s(sTmp), s(sTmp), s(sW))
    e("s_lshl_b32 %s, %s, 11", s(sTmp), s(sTmp))
    e("v_and_b32 v5, 15, v0")
    e("v_lshlrev_b32 v5, 7, v5")
    e("buffer_load_dword v15, v5, %s, %s offen", s(sG, 4), s(sTmp))


def warm_touch():
    e("s_lshl_b32 %s, s2, 1", s(sTmp))
    e("s_and_b32 %s, %s, 1", s(sTmp2), s(sLW))
    e("s_add_u32 %s, %s, %s", s(sTmp), s(sTmp), s(sTmp2))
    e("s_mul_i32 %s, %s, %d", s(sTmp), s(sTmp), 27 * 128)
    e("v_min_u32 v12, 26, v0")
    e("v_lshlrev_b32 v12, 7, v12")
    lab, lab2 = A.newlabel("L_wt"), A.newlabel("L_wt")
    e("s_cmp_ge_u32 %s, 2", s(sLW))
    e("s_cbranch_scc1 %s", lab)
    e("buffer_load_dword v250, v12, %s, %s offen", s(sWR, 4), s(sTmp))
    e("s_branch %s", lab2)
    A.label(lab)
    e("buffer_load_dword v250, v12, %s, %s offen", s(sWI, 4), s(sTmp))
    A.label(lab2)
    e("s_lshl_b32 %s, s2, 2", s(sTmp))
    e("s_add_u32 %s, %s, %s", s(sTmp), s(sTmp), s(sLW))
    e("s_mul_i32 %s, %s, %d", s(sTmp), s(sTmp), 6 * 128)
    e("s_add_u32 %s, %s, %d", s(sTmp), s(sTmp), TB.CI_OFF)
    e("v_min_u32 v12, 5, v0")
    e("v_lshlrev_b32 v12, 7, v12")
    e("buffer_load_dword v251, v12, %s, %s offen", s(sTAB, 4), s(sTmp))


def p1_ffn():
    vXA, vWA, FR, ACC = 8, 10, 16, 112
    stats_addr(16)
    e("s_and_b32 %s, %s, 1", s(sWM), s(sW))
    e("s_lshr_b32 %s, %s, 1", s(sWN), s(sW))
    karg_wait(["X"], ["WS", "OUT"])
    lab = A.newlabel("L_nost")
    e("s_cmp_ge_u32 %s, 8", s(sCG))
    e("s_cbranch_scc1 %s", lab)
    stats_issue(16)
    A.label(lab)
    e("s_lshl_b32 %s, %s, 3", s(sFlag), s(sRB))
    e("s_add_u32 %s, %s, %s", s(sFlag), s(sFlag), s(sCG))
    e("s_lshl_b32 %s, %s, 7", s(sFlag), s(sFlag))
    e("s_add_u32 %s, %s, 0x%x", s(sFlag), s(sFlag), WS_FS)
    p3c_setup()
    e("v_and_b32 v5, 15, v0")
    e("v_lshlrev_b32 v5, 7, v5")
    e("s_lshl_b32 %s, %s, 13", s(sTmp), s(sWM))
    e("v_add_u32 v5, %s, v5", s(sTmp))
    e("v_lshrrev_b32 v6, 4, v0")
    e("v_bfe_u32 v7, v0, 1, 3")
    e("v_xor_b32 v6, v6, v7")
    e("v_lshl_add_u32 %s, v6, 4, v5", v(vXA))
    e("v_xor_b32 %s, 64, %s", v(vXA + 1), v(vXA))
    e("v_lshrrev_b32 v5, 4, v0")
    e("v_bfe_u32 v6, v0, 2, 2")
    e("v_lshl_add_u32 v7, v5, 3, v6")
    e("v_lshlrev_b32 v7, 8, v7")
    e("v_and_b32 v5, 1, v5")
    e("v_lshl_add_u32 v5, v6, 1, v5")
    e("s_lshl_b32 %s, %s, 2", s(sTmp), s(sWN))
    e("v_xor_b32 v5, %s, v5", s(sTmp))
    e("v_lshl_add_u32 v7, v5, 5, v7")
    e("v_and_b32 v6, 3, v0")
    e("v_lshl_add_u32 %s, v6, 3, v7", v(vWA))
    for ft in range(1, 4):
        e("v_xor_b32 %s, %d, %s", v(vWA + ft), ft << 5, v(vWA))
    lab = A.newlabel("L_nost")
    e("s_cmp_ge_u32 %s, 8", s(sCG))
    e("s_cbranch_scc1 %s", lab)
    e("s_waitcnt vmcnt(0)")
    stats_compute(16)
    A.label(lab)
    k_offset(sK1)
    e("s_bfe_u32 %s, s2, 0x20004", s(sPar))
    e("s_add_u32 %s, %s, %s", s(sK1), s(sK1), s(sPar))
    e("s_mul_i32 %s, %s, 12288", s(sK1), s(sK1))
    e("s_lshl_b32 %s, %s, 2", s(sTmp), s(sCG))
    e("s_lshl_b32 %s, %s, 1", s(sTmp2), s(sWM))
    e("s_add_u32 %s, %s, %s", s(sTmp), s(sTmp), s(sTmp2))
    e("s_add_u32 %s, %s, %s", s(sTmp), s(sTmp), s(sWN))
    e("s_lshl_b32 %s, %s, 8", s(sTmp), s(sTmp))
    e("s_add_u32 %s, %s, %s", s(sK1), s(sK1), s(sTmp))
    e("s_add_u32 %s, %s, 0x%x", s(sK1), s(sK1), WS_CSP)
    e("s_bfe_u32 %s, s2, 0x30003", s(sTmp))
    e("s_cmp_ge_u32 %s, 5", s(sTmp))
    e("s_cselect_b32 %s, 100, %s", s(sPar), s(sPar))
    e("s_cmp_lg_u32 %s, 0", s(sW))
    e("s_cselect_b32 %s, 100, %s", s(sNU), s(sPar))
    for i in range(4):
        e("v_mov_b32 %s, 0x3f803f80", v(2 + i))
    e("v_and_b32 v14, 48, v0")
    stamp("c_set")

    def stat_flag():
        e("s_lshr_b32 %s, %s, 3", s(sTmp), s(sCG))
        e("s_or_b32 %s, %s, %s", s(sTmp), s(sTmp), s(sW))
        rare("s_cbranch_scc0", lambda: flag_store(sFlag, 6, 7))

    def cs_mfma(it, p):
        def body():
            la, lb = A.newlabel("L_csm"), A.newlabel("L_csm")
            e("s_cmp_eq_u32 %s, 1", s(sWM))
            e("s_cbranch_scc1 %s", la)
            for mat in range(2):
                if mat:
                    e("s_branch %s", lb)
                    A.label(la)
                for ft in range(4):
                    mm16(240 + 4 * ft, wf(p, mat, ft), 2, p == 0)
            A.label(lb)
        e("s_cmp_eq_u32 %s, %d", s(sPar), it)
        rare("s_cbranch_scc1", body)

    def cs_store(it):
        def body():
            e("s_mov_b32 exec_lo, 0x00010001")
            e("s_mov_b32 exec_hi, 0x00010001")
            for ft in range(4):
                e("buffer_store_dwordx4 %s, v14, %s, %s offen offset:%d sc1", v(240 + 4 * ft, 4), s(sWS, 4), s(sK1), ft * 64)
            e("s_mov_b64 exec, -1")
        e("s_cmp_eq_u32 %s, %d", s(sPar), it)
        rare("s_cbranch_scc1", body)

    def cs_wait(it):
        e("s_cmp_eq_u32 %s, %d", s(sPar), it)
        rare("s_cbranch_scc1", lambda: e("s_waitcnt vmcnt(0)"))

    def cs_flag(it):
        def body():
            e("s_lshl_b32 %s, s2, 7", s(sTmp))
            e("s_add_u32 %s, %s, 0x%x", s(sTmp), s(sTmp), WS_FSC)
            flag_store(sTmp, 6, 7)
        e("s_cmp_eq_u32 %s, %d", s(sNU), it)
        rare("s_cbranch_scc1", body)

    def acc(mat, ft, st): return ACC + ((mat * 4 + ft) * 4 + st) * 4
    def xf(p, st): return FR + p * 48 + st * 4
    def wf(p, mat, ft): return FR + p * 48 + 16 + (mat * 4 + ft) * 4
    keys = [("x", 0), ("w", 0, 0), ("w", 0, 0), ("x", 1), ("x", 2), ("x", 3)]
    for ft in range(4):
        for mat in range(2):
            if (mat, ft) != (0, 0):
                keys += [("w", mat, ft)] * 2

    def reads(p, t):
        out, seen = [], {}
        for k in keys:
            if k[0] == "x":
                out.append(lambda st=k[1]: e("ds_read_b128 %s, %s offset:%d", v(xf(p, st), 4), v(vXA + t), st * 2048))
            else:
                rd = seen.get(k, 0); seen[k] = rd + 1
                out.append(lambda mat=k[1], ft=k[2], rd=rd: e("ds_read_b64_tr_b16 %s, %s offset:%d", v(wf(p, mat, ft) + 2 * rd, 2), v(vWA + ft), 16384 * (1 + mat) + t * 8192 + rd * 1024))
        return out
    morder, n = [], 0
    for ft in range(4):
        for mat in range(2):
            morder += [(mat, ft, st) for st in ([0, 1, 2, 3] if n % 2 == 0 else [3, 2, 1, 0])]
            n += 1
    need = [max(i + 1 for i, k in enumerate(keys) if k == ("x", m[2]) or k == ("w", m[0], m[1])) for m in morder]

    def mfmas(p, first=False):
        return [(lambda m=m: mm16(acc(*m), wf(p, m[0], m[1]), xf(p, m[2]), first)) for m in morder]
    hooks = []
    for it in range(10):
        h0, h1 = {}, {}
        if it < 3:
            h0[31] = [lambda it=it: cs_mfma(it, 0)]
            h1[8] = [lambda it=it: cs_mfma(it, 1)]
            h1[30] = [lambda it=it: cs_store(it)]
        if it == 0:
            h1[3] = [stat_flag]
        if 2 <= it <= 4:
            h1[2] = [lambda it=it: cs_wait(it - 2)]
            h1[3] = [lambda it=it: cs_flag(it - 2)]
        hooks.append([h0, h1])
    vmw = [0] + [None] * 9
    gemm_loop(10, 2, mfmas, reads, need, [8, 9, 10, 11, 12, 13], 3, 1, unroll=[(None, [])] + [(vmw[i], []) for i in range(9)], hooks=hooks)

    RM, CS = 16, 32
    e("v_and_b32 v5, 15, v0")
    e("v_lshlrev_b32 v5, 2, v5")
    e("s_lshl_b32 %s, %s, 8", s(sTmp), s(sWM))
    e("s_add_u32 %s, %s, %d", s(sTmp), s(sTmp), AUX)
    e("v_add_u32 v5, %s, v5", s(sTmp))
    for st in range(4):
        e("ds_read_b32 %s, v5 offset:%d", v(RM + 4 * st), st * 64)
        e("ds_read_b32 %s, v5 offset:%d", v(RM + 4 * st + 2), 512 + st * 64)
    e("v_lshrrev_b32 v6, 4, v0")
    e("v_lshlrev_b32 v6, 4, v6")
    e("s_lshl_b32 %s, %s, 8", s(sTmp), s(sWN))
    e("s_add_u32 %s, %s, %d", s(sTmp), s(sTmp), AUX + 1024)
    e("v_add_u32 v6, %s, v6", s(sTmp))
    for ft in range(4):
        for mat in range(2):
            e("ds_read_b128 %s, v6 offset:%d", v(CS + (mat * 4 + ft) * 4, 4), mat * 512 + ft * 64)
    e("s_lshl_b32 %s, %s, 1", s(sFlag), s(sRB))
    e("s_add_u32 %s, %s, %s", s(sFlag), s(sFlag), s(sWM))
    e("s_mul_i32 %s, %s, %d", s(sTmp), s(sFlag), 2 * 48 * 2048)
    e("s_lshl_b32 s3, %s, 2", s(sCG))
    e("s_lshl_b32 %s, %s, 1", s(sCnt), s(sWN))
    e("s_add_u32 s3, s3, %s", s(sCnt))
    e("s_lshl_b32 s3, s3, 11")
    e("s_add_u32 %s, %s, s3", s(sDelta), s(sTmp))
    e("s_lshl_b32 %s, %s, 1", s(sFlag), s(sFlag))
    e("s_add_u32 %s, %s, %s", s(sFlag), s(sFlag), s(sWN))
    e("s_mul_i32 %s, %s, 12", s(sFlag), s(sFlag))
    e("s_add_u32 %s, %s, %s", s(sFlag), s(sFlag), s(sCG))
    e("s_lshl_b32 %s, %s, 7", s(sFlag), s(sFlag))
    e("s_add_u32 %s, %s, 0x%x", s(sFlag), s(sFlag), WS_FH)
    e("v_lshlrev_b32 v5, 4, v0")
    e("s_waitcnt lgkmcnt(4)")
    for st in range(4):
        e("v_mul_f32 %s, %s, %s", v(RM + 4 * st), v(RM + 4 * st), v(RM + 4 * st))
    for ph in range(2):
        if ph == 1:
            e("s_waitcnt lgkmcnt(0)")
        for st in range(4):
            rr, mm_ = RM + 4 * st, RM + 4 * st + 2
            o = 64 + ((ph * 4 + st) & 3) * 4
            for fi in range(2):
                ft = 2 * ph + fi
                g0, u0 = acc(0, ft, st), acc(1, ft, st)
                for k in (0, 2):
                    e("v_pk_fma_f32 %s, %s, %s, %s op_sel_hi:[1,0,1] neg_lo:[0,1,0] neg_hi:[0,1,0]", v(g0 + k, 2), v(CS + ft * 4 + k, 2), v(mm_, 2), v(g0 + k, 2))
                    e("v_pk_fma_f32 %s, %s, %s, %s op_sel_hi:[1,0,1] neg_lo:[0,1,0] neg_hi:[0,1,0]", v(u0 + k, 2), v(CS + 16 + ft * 4 + k, 2), v(mm_, 2), v(u0 + k, 2))
                for k in range(4):
                    e("v_max_f32 %s, 0, %s", v(g0 + k), v(g0 + k))
                for k in (0, 2):
                    e("v_pk_mul_f32 %s, %s, %s op_sel_hi:[1,0]", v(u0 + k, 2), v(u0 + k, 2), v(rr, 2))
                for k in (0, 2):
                    e("v_pk_mul_f32 %s, %s, %s", v(g0 + k, 2), v(g0 + k, 2), v(u0 + k, 2))
                for k in range(2):
                    e("v_cvt_pk_bf16_f32 %s, %s, %s", v(o + 2 * fi + k), v(g0 + 2 * k), v(g0 + 2 * k + 1))
            e("s_add_u32 %s, %s, %d", s(sTmp), s(sDelta), WS_H + (st >> 1) * 48 * 2048 + ph * 2048)
            e("buffer_store_dwordx4 %s, v5, %s, %s offen offset:%d sc1", v(o, 4), s(sWS, 4), s(sTmp), (st & 1) * 1024)
    stamp("c_ep")
    e("s_branch L_p3c")


def p1_dft():
    njb = 5
    vXA, vCA, FR, ACC, FC, CO, SI = 8, 12, 16, 80, 208, 176, 192
    tab_srd()
    e("v_lshlrev_b32 v13, 4, v0")
    e("s_mul_i32 %s, %s, %d", s(sBoff), s(sCG), 20 * 5 * 1024)
    e("s_mul_i32 %s, %s, %d", s(sM0), s(sW), 5 * 1024)
    e("s_add_u32 %s, %s, %s", s(sBoff), s(sBoff), s(sM0))
    e("s_add_u32 %s, %s, 16384", s(sM0), s(sM0))

    def cl(i):
        ops = []
        for tl in range(njb):
            def f(tl=tl):
                e("s_add_u32 m0, %s, %d", s(sM0), ((i + 1) % 3) * SLAB + tl * 1024)
                e("s_add_u32 %s, %s, %d", s(sTmp), s(sBoff), i * 4 * njb * 1024 + tl * 1024)
                e("buffer_load_dwordx4 v13, %s, %s offen lds", s(sTAB, 4), s(sTmp))
            ops.append(f)
        return ops
    if CT == 1:
        code_touch()
    for f in cl(0):
        f()
    if CT == 2:
        code_touch()
    e("s_lshl_b32 %s, %s, 12", s(sTmp), s(sW))
    e("s_add_u32 %s, %s, %d", s(sTmp), s(sTmp), SLAB)
    e("v_and_b32 v5, 31, v0")
    e("v_lshlrev_b32 v5, 7, v5")
    e("v_add_u32 v5, %s, v5", s(sTmp))
    e("v_lshrrev_b32 v6, 5, v0")
    e("v_bfe_u32 v7, v0, 1, 3")
    e("v_xor_b32 v6, v6, v7")
    e("v_lshl_add_u32 %s, v6, 4, v5", v(vXA))
    for t in range(1, 4):
        e("v_xor_b32 %s, %d, %s", v(vXA + t), t << 5, v(vXA))
    e("v_add_u32 %s, %d, v13", v(vCA), SLAB)
    karg_wait([], ["X", "WS", "OUT"])
    p3c_setup()
    e("s_lshl_b32 %s, %s, 2", s(sS2), s(sRB))
    e("s_add_u32 %s, %s, %s", s(sS2), s(sS2), s(sW))
    e("v_and_b32 v5, 31, v0")
    e("v_lshrrev_b32 v6, 5, v0")
    e("v_lshlrev_b32 v6, 8, v6")
    e("v_add_u32 v6, %s, v6", s(sS2))
    e("v_mul_u32_u24 v6, v6, v5")

    def consts():
        for kap in range(2):
            for i in range(8):
                s0 = 16 * kap + 8 * (i >> 2) + (i & 3)
                e("v_mul_u32_u24 v7, %d, v5", 64 * s0)
                e("v_add_u32 v7, v7, v6")
                e("v_and_b32 v7, 0x7ff, v7")
                e("v_cvt_f32_u32 v7, v7")
                e("v_mul_f32 v7, 0x3a000000, v7")
                e("v_cos_f32 %s, v7", v(CO + 8 * kap + i))
                e("v_sin_f32 %s, v7", v(SI + 8 * kap + i))
    weave(cap(consts), [cap(f) for f in (cl(1) + cl(2) if DS == 0 else cl(1))], skip=40 if DS == 0 else 70)
    stamp("c_set")

    def xf(p): return FR + p * 24
    def cf(p, tl): return FR + p * 24 + 4 + 4 * tl

    def reads(p, t):
        ops = [lambda: e("ds_read_b128 %s, %s", v(xf(p), 4), v(vXA + t))]
        for tl in range(njb):
            ops.append(lambda tl=tl: e("ds_read_b128 %s, %s offset:%d", v(cf(p, tl), 4), v(vCA), 16384 + (t * njb + tl) * 1024))
        return ops

    def mfmas(p, first=False):
        return [(lambda tl=tl: e("v_mfma_f32_32x32x16_bf16 %s, %s, %s, %s", v(ACC + 16 * tl, 16), v(xf(p), 4), v(cf(p, tl), 4), "0" if first else v(ACC + 16 * tl, 16))) for tl in range(njb)]
    gemm_loop(5, 4, mfmas, reads, [2 + tl for tl in range(njb)], [vXA + i for i in range(5)], 0, 2, buf0=SLAB,
              unroll=[(10, []) if DS == 0 else (5, cl(2)), (5, cl(3)), (5, cl(4)), (5, []), (0, [])])

    RR, MM = 16, 32
    e("v_lshrrev_b32 v6, 5, v0")
    e("v_lshlrev_b32 v6, 4, v6")
    e("s_lshl_b32 %s, %s, 7", s(sTmp), s(sW))
    e("s_add_u32 %s, %s, %d", s(sTmp), s(sTmp), AUX)
    e("v_add_u32 v7, %s, v6", s(sTmp))
    for jj in range(4):
        e("ds_read_b128 %s, v7 offset:%d", v(RR + 4 * jj, 4), jj * 32)
    e("v_and_b32 v5, 15, v0")
    e("v_lshlrev_b32 v5, 6, v5")
    e("v_bfe_u32 v6, v0, 4, 1")
    e("v_lshl_add_u32 v5, v6, 5, v5")
    e("v_lshrrev_b32 v6, 5, v0")
    e("v_lshl_add_u32 v5, v6, 4, v5")
    e("s_and_b32 %s, %s, 1", s(sJB), s(sCG))
    e("s_mul_i32 %s, %s, 10", s(sJB), s(sJB))
    e("s_lshr_b32 %s, %s, 1", s(sTmp), s(sCG))
    e("s_add_u32 %s, %s, %s", s(sJB), s(sJB), s(sTmp))
    e("s_mul_i32 %s, %s, 21", s(sDelta), s(sS2))
    e("s_add_u32 %s, %s, %s", s(sDelta), s(sDelta), s(sJB))
    e("s_lshl_b32 %s, %s, 11", s(sDelta), s(sDelta))
    e("s_add_u32 %s, %s, 0x%x", s(sDelta), s(sDelta), WS_T)
    e("s_lshl_b32 %s, %s, 4", s(sFlag), s(sCG))
    e("s_add_u32 %s, %s, %s", s(sFlag), s(sFlag), s(sRB))
    e("s_lshl_b32 %s, %s, 7", s(sFlag), s(sFlag))
    e("s_add_u32 %s, %s, 0x%x", s(sFlag), s(sFlag), WS_FT)
    e("v_bfe_u32 v6, v0, 3, 1")
    e("v_cmp_eq_u32 vcc, 0, v6")
    e("v_mov_b32 v6, 0")
    e("v_mov_b32 v13, 0x80008000")
    e("v_cndmask_b32 v6, v6, v13, vcc")
    DD, AF, AN = [224, 240], [48, 64], 32

    def epilogue(first):
        order = [1, 2, 3, 4, 0, 5] if first else [0, 1, 2, 3, 4]

        def pack(n):
            tl = order[n]
            if tl == 5:
                e("s_nop 1")
                return
            a0, af = ACC + 16 * tl, AF[n & 1]
            if first and tl == 0:
                for i in range(16):
                    e("v_fma_f32 %s, -%s, v7, %s", v(a0 + i), v(MM + i), v(a0 + i))
            for i in range(8):
                e("v_cvt_pk_bf16_f32 %s, %s, %s", v(af + i), v(a0 + 2 * i), v(a0 + 2 * i + 1))
            if first and tl == 0:
                for i in range(8):
                    e("v_and_b32_dpp %s, %s, v14 row_ror:8 row_mask:0xf bank_mask:0xf", v(AN + i), v(af + i))
                    e("v_and_b32 %s, v15, %s", v(AN + 8 + i), v(af + i))
                for i in range(8):
                    e("v_bfi_b32 %s, v15, 0, %s", v(af + i), v(af + i))
            for i in range(8):
                e("v_xor_b32_dpp %s, %s, v6 row_ror:8 row_mask:0xf bank_mask:0xf", v(af + 8 + i), v(af + i))

        def stage(n):
            d, af = DD[n & 1], AN if order[n] == 5 else AF[n & 1]
            for k in range(4):
                e("v_mfma_f32_32x32x16_bf16 %s, %s, %s, %s", v(d, 16), v(af + 4 * k, 4), v(FC + 4 * k, 4), v(d, 16) if k else "0")

        def finish(n):
            d = DD[n & 1]
            for i in range(8):
                e("v_cvt_pk_bf16_f32 %s, %s, %s", v(d + i), v(d + 2 * i), v(d + 2 * i + 1))
            e("s_add_u32 %s, %s, %d", s(sTmp), s(sDelta), 20 * 2048 if order[n] == 5 else order[n] * 4096)
            e("s_nop 0")
            for i in range(4):
                e("v_permlane16_swap_b32 %s, %s", v(d + i), v(d + 4 + i))
            for q in range(2):
                e("buffer_store_dwordx4 %s, v5, %s, %s offen offset:%d sc1", v(d + 4 * q, 4), s(sWS, 4), s(sTmp), q * 1024)
        if first:
            for jj in range(4):
                e("ds_read_b128 %s, v7 offset:%d", v(MM + 4 * jj, 4), 512 + jj * 32)
            e("v_and_b32 v15, 31, v0")
            e("v_cmp_eq_u32 vcc, 0, v15")
            e("v_cmp_eq_u32 s[4:5], 8, v15")
            e("v_mov_b32 v13, 0x44200000")
            e("v_cndmask_b32 v14, 0, -1, vcc")
            e("v_cndmask_b32 v15, 0, -1, s[4:5]")
        pack(0)
        e("s_waitcnt lgkmcnt(0)")
        if first:
            e("v_and_b32 v7, v13, v14")
        for i in range(0, 16, 2):
            e("v_pk_mul_f32 %s, %s, %s", v(CO + i, 2), v(CO + i, 2), v(RR + i, 2))
            e("v_pk_mul_f32 %s, %s, %s neg_lo:[1,0] neg_hi:[1,0]", v(SI + i, 2), v(SI + i, 2), v(RR + i, 2))
        for i in range(8):
            e("v_cvt_pk_bf16_f32 %s, %s, %s", v(FC + i), v(CO + 2 * i), v(CO + 2 * i + 1))
            e("v_cvt_pk_bf16_f32 %s, %s, %s", v(FC + 8 + i), v(SI + 2 * i), v(SI + 2 * i + 1))
        e("s_nop 1")
        stage(0)
        for n in range(len(order)):
            if n + 1 < len(order):
                pack(n + 1)
                stage(n + 1)
                if order[n + 1] == 5:
                    e("s_nop 7")
            else:
                e("s_nop 15")
            finish(n)
    e("s_cmp_eq_u32 %s, 0", s(sCG))
    e("s_cbranch_scc1 L_dft_e0")
    epilogue(False)
    e("s_branch L_dft_c")
    A.label("L_dft_e0")
    epilogue(True)


def mid_k1():
    e("s_and_b32 s3, s2, 7")
    e("s_lshl_b32 %s, s3, 2", s(sK1))
    e("s_bfe_u32 s3, s2, 0x20004")
    e("s_add_u32 %s, %s, s3", s(sK1), s(sK1))
    e("s_bfe_u32 s3, s2, 0x10003")


def mid():
    FC, PD = 64, 48
    XU, WY, DF = [128, 160], [192, 224], [16, 40]
    vL, vT, vWr, vUo, vP, vTG = 5, 6, 7, 10, 11, 15
    e("v_lshlrev_b32 %s, 4, v0", v(vL))
    e("v_and_b32 v9, 3, v0")
    e("v_add_u32 v13, %d, %s", FR_L, v(vL))
    for n in range(8):
        e("ds_read_b128 %s, v13 offset:%d", v(FC + 4 * n, 4), n * 1024)
    for i in range(32):
        e("v_mov_b32 %s, 0", v(WY[0] + i))
    e("v_and_b32 v8, 15, v0")
    e("v_lshrrev_b32 v12, 2, v0")
    e("v_lshlrev_b32 %s, 6, v12", v(vT))
    e("v_lshl_add_u32 %s, v9, 4, %s", v(vT), v(vT))
    e("v_add_u32 %s, %s, %s", v(vT), s(sM0), v(vT))
    e("v_and_b32 v13, 12, v12")
    e("v_bfe_u32 v14, v0, 3, 1")
    e("v_lshl_add_u32 v13, v14, 4, v13")
    e("v_bfe_u32 v14, v0, 2, 1")
    e("v_lshl_add_u32 v13, v14, 1, v13")
    e("v_mul_u32_u24 v12, 43008, v13")
    e("v_lshl_add_u32 %s, v9, 4, v12", v(vTG))
    e("v_lshrrev_b32 v9, 4, v0")
    e("v_lshlrev_b32 %s, 6, v8", v(vUo))
    e("v_lshl_add_u32 %s, v9, 4, %s", v(vUo), v(vUo))
    e("v_mul_u32_u24 v12, %d, v9", 4 * 336)
    e("v_lshl_add_u32 v12, v8, 2, v12")
    e("s_add_u32 %s, %s, %s", s(sTmp), s(sMW), s(sPar))
    e("v_add_u32 %s, %s, v12", v(vWr), s(sTmp))
    e("s_waitcnt vmcnt(0) lgkmcnt(0)")
    lab = A.newlabel("L_noft")
    e("s_cmp_lg_u32 %s, 0", s(sW))
    e("s_cbranch_scc1 %s", lab)
    poll_check(PD, 1, vP, WS_FT)
    A.label(lab)
    e("s_barrier")
    stamp("m_B")
    e("s_lshl_b32 %s, %s, 5", s(sCnt), s(sJB))
    e("s_add_u32 %s, %s, %s", s(sCnt), s(sCnt), s(sK1))
    e("s_lshl_b32 %s, %s, 6", s(sCnt), s(sCnt))
    e("s_mul_i32 %s, %s, 21", s(sDelta), s(sK1))
    e("s_add_u32 %s, %s, %s", s(sDelta), s(sDelta), s(sJB))
    e("s_lshl_b32 %s, %s, 12", s(sDelta), s(sDelta))
    e("s_add_u32 %s, %s, 0x%x", s(sDelta), s(sDelta), WS_U)

    def gather(un):
        for n in range(4):
            e("s_add_u32 m0, %s, %d", s(sLB2 if un else sM0), n * 1024)
            e("s_add_u32 %s, %s, %d", s(sTmp), s(sCnt), WS_T + un * 2048 + (32 * (n & 1) + (n >> 1)) * 43008)
            e("buffer_load_dwordx4 %s, %s, %s offen sc1 lds", v(vTG), s(sWS, 4), s(sTmp))

    def F(ri, t, par): return FC + ((ri * 2 + t) * 2 + par) * 4

    def R(u):
        for ri in range(2):
            for kap in range(2):
                for rd in range(2):
                    e("ds_read_b64_tr_b16 %s, %s offset:%d", v(DF[u] + 8 * ri + 4 * kap + 2 * rd, 2), v(14 if u else vT), kap * 2048 + rd * 1024 + ri * 8)

    def N(u):
        for i in range(8):
            e("v_xor_b32 %s, 0x80008000, %s", v(DF[u] + 16 + i), v(DF[u] + 8 + i))

    def WR(u):
        for mt in range(4):
            for i in range(4):
                for arr in range(2):
                    e("ds_read_u16_d16_hi %s, %s offset:%d", v(WY[u] + arr * 16 + 4 * mt + i), v(vWr), arr * MWA + (16 * mt + i) * 336 + 2 * u)

    def SA(u):
        Tre, Tim, Tni = DF[u], DF[u] + 8, DF[u] + 16
        for t in range(2):
            for step in range(2):
                for par in range(2):
                    xr, xi = XU[u] + 4 * (t + 2 * par), XU[u] + 16 + 4 * (t + 2 * par)
                    if step == 0:
                        mm16(xr, F(0, t, par), Tre + 4 * par, True)
                        mm16(xi, F(1, t, par), Tre + 4 * par, True)
                    else:
                        mm16(xr, F(1, t, par), Tni + 4 * par)
                        mm16(xi, F(0, t, par), Tim + 4 * par)

    def BF(u):
        for t in range(2):
            for b in (XU[u] + 4 * t, XU[u] + 4 * t + 2, XU[u] + 16 + 4 * t, XU[u] + 18 + 4 * t):
                e("v_pk_add_f32 %s, %s, %s", v(b, 2), v(b, 2), v(b + 8, 2))
            for b in (XU[u] + 4 * t, XU[u] + 4 * t + 2, XU[u] + 16 + 4 * t, XU[u] + 18 + 4 * t):
                e("v_pk_fma_f32 %s, %s, 2.0, %s op_sel_hi:[1,0,1] neg_lo:[1,0,0] neg_hi:[1,0,0]", v(b + 8, 2), v(b + 8, 2), v(b, 2))

    def YP(u):
        BF(u)
        for n in range(0, 16, 4):
            for k in (0, 2):
                e("v_pk_mul_f32 %s, %s, %s", v(8 if k else 12, 2), v(XU[u] + 16 + n + k, 2), v(WY[u] + 16 + n + k, 2))
            for k in (0, 2):
                e("v_pk_mul_f32 %s, %s, %s", v(WY[u] + 16 + n + k, 2), v(XU[u] + n + k, 2), v(WY[u] + 16 + n + k, 2))
            for k in (0, 2):
                e("v_pk_fma_f32 %s, %s, %s, %s", v(WY[u] + 16 + n + k, 2), v(XU[u] + 16 + n + k, 2), v(WY[u] + n + k, 2), v(WY[u] + 16 + n + k, 2))
            for k in (0, 2):
                e("v_pk_fma_f32 %s, %s, %s, %s neg_lo:[0,0,1] neg_hi:[0,0,1]", v(WY[u] + n + k, 2), v(XU[u] + n + k, 2), v(WY[u] + n + k, 2), v(8 if k else 12, 2))

    def CV(u):
        for mt in range(4):
            for par in range(2):
                w_r, w_i = WY[u] + 4 * mt + par, WY[u] + 16 + 4 * mt + par
                e("v_cvt_pk_bf16_f32 %s, %s, %s", v(DF[u] + 8 + 4 * par + mt), v(w_i), v(w_i + 2))
                e("v_cvt_pk_bf16_f32 %s, %s, %s", v(DF[u] + 4 * par + mt), v(w_r), v(w_r + 2))
            for par in range(2):
                e("v_xor_b32 %s, 0x80008000, %s", v(DF[u] + 16 + 4 * par + mt), v(DF[u] + 4 * par + mt))

    def SB(u):
        Yre, Yim, Ynr = DF[u], DF[u] + 8, DF[u] + 16
        for t in range(2):
            for step in range(2):
                for par in range(2):
                    ur, ui = XU[u] + 4 * (t + 2 * par), XU[u] + 16 + 4 * (t + 2 * par)
                    if step == 0:
                        mm16(ur, Yre + 4 * par, F(0, t, par), True)
                        mm16(ui, Yim + 4 * par, F(0, t, par), True)
                    else:
                        mm16(ur, Yim + 4 * par, F(1, t, par))
                        mm16(ui, Ynr + 4 * par, F(1, t, par))

    def O(u):
        if u:
            e("s_add_u32 %s, %s, 4096", s(sDelta), s(sDelta))
        for nt in range(4):
            ur, ui = XU[u] + 4 * nt, XU[u] + 16 + 4 * nt
            e("v_cvt_pk_bf16_f32 %s, %s, %s", v(ur), v(ur), v(ur + 1))
            e("v_cvt_pk_bf16_f32 %s, %s, %s", v(ur + 1), v(ur + 2), v(ur + 3))
            e("v_cvt_pk_bf16_f32 %s, %s, %s", v(ur + 2), v(ui), v(ui + 1))
            e("v_cvt_pk_bf16_f32 %s, %s, %s", v(ur + 3), v(ui + 2), v(ui + 3))
            e("buffer_store_dwordx4 %s, %s, %s, %s offen offset:%d sc1", v(ur, 4), v(vUo), s(sWS, 4), s(sDelta), nt * 1024)

    def lines(*fs):
        return [[ln] for f in fs for ln in cap(f)]

    def mix(a_, b_):
        out = []
        for i in range(max(len(a_), len(b_))):
            out += a_[i:i + 1] + b_[i:i + 1]
        return out
    one, done = A.newlabel("L_one"), A.newlabel("L_midd")
    gather(0)
    e("s_cmp_eq_u32 %s, 1", s(sNU))
    e("s_cbranch_scc1 %s", one)
    gather(1)
    for i in range(32):
        e("v_mov_b32 %s, 0", v(WY[1] + i))
    e("s_sub_u32 %s, %s, %s", s(sTmp), s(sLB2), s(sM0))
    e("v_add_u32 v14, %s, %s", s(sTmp), v(vT))
    e("s_waitcnt vmcnt(4)")
    stamp("m_T")
    R(0)
    WR(0)
    e("s_waitcnt lgkmcnt(15)")
    e("s_waitcnt vmcnt(0)")
    N(0)
    w1 = lines(lambda: WR(1))
    weave(cap(lambda: SA(0)), lines(lambda: R(1)) + w1[:24], skip=1)
    e("s_waitcnt lgkmcnt(15)")
    N(1)
    YP(0)
    weave(cap(lambda: SA(1)), mix(lines(lambda: CV(0)), w1[24:]), skip=1)
    e("s_waitcnt lgkmcnt(0)")
    e("s_nop 6")
    stamp("m_u1")
    YP(1)
    weave(cap(lambda: SB(0)), lines(lambda: CV(1)), skip=1)
    e("s_nop 6")
    BF(0)
    weave(cap(lambda: SB(1)), lines(lambda: O(0)), skip=1)
    e("s_nop 7")
    BF(1)
    O(1)
    e("s_branch %s", done)
    A.label(one)
    e("s_waitcnt vmcnt(0)")
    stamp("m_T")
    R(0)
    WR(0)
    e("s_waitcnt lgkmcnt(15)")
    N(0)
    e("s_nop 0")
    SA(0)
    e("s_waitcnt lgkmcnt(0)")
    e("s_nop 6")
    YP(0)
    CV(0)
    e("s_nop 1")
    SB(0)
    e("s_nop 7")
    BF(0)
    O(0)
    A.label(done)


hdr = open("cdna_kernels/%s.s.ref" % NAME).read().split("; Override launch")[0]
A(hdr.rstrip())
A("; @launch grid=(256,1,1) block=(512,1,1) lds=%d" % LDS_ALL)
A('.amdgcn_target "amdgcn-amd-amdhsa--gfx950"')
KN = NAME + "_kernel"
kernel_header(A, KN)
stamp("start")
if STAMPS:
    for i in range(1, 9):
        e("s_mov_b32 %s, 0", s(84 + 2 * i))
e("s_cmp_ge_u32 s2, 256")
e("s_cbranch_scc1 L_end")
e("s_load_dwordx16 %s, s[0:1], 0", s(P, 16))
e("s_load_dwordx4 %s, s[0:1], 64", s(P + 16, 4))
e("v_lshrrev_b32 v1, 6, v0")
e("v_and_b32 v0, 63, v0")
e("v_readfirstlane_b32 %s, v1", s(sW))
if CT == 3:
    e("s_cmp_lg_u32 %s, 0", s(sW))
    e("s_cbranch_scc1 L_noct")
    code_touch()
    A.label("L_noct")
e("s_and_b32 s3, s2, 1")
e("s_lshl_b32 %s, s3, 3", s(sRB))
e("s_bfe_u32 s3, s2, 0x30003")
e("s_add_u32 %s, %s, s3", s(sRB), s(sRB))
e("s_lshr_b32 %s, s2, 6", s(sTmp2))
e("s_bfe_u32 s3, s2, 0x20001")
e("s_mul_i32 %s, s3, 3", s(sCG))
e("s_add_u32 %s, %s, %s", s(sCG), s(sCG), s(sTmp2))
e("s_and_b32 %s, %s, 3", s(sLW), s(sW))
e("s_cmp_eq_u32 %s, 3", s(sTmp2))
e("s_cbranch_scc1 L_dft")
e("s_cmp_ge_u32 %s, 4", s(sW))
e("s_cbranch_scc0 L_ffn_c")
ffn_loader()
A.label("L_ffn_c")
p1_ffn()
A.label("L_dft")
if opt("nodft", 0):
    e("s_endpgm")
e("s_mov_b32 %s, s3", s(sCG))
e("s_cmp_ge_u32 %s, 4", s(sW))
e("s_cbranch_scc0 L_dftc")
dft_loader()
A.label("L_dftc")
p1_dft()
A.label("L_dft_c")
stamp("dc_ep")
e("s_waitcnt vmcnt(0)")
stamp("dc_st")
e("s_barrier")
e("s_cmp_lg_u32 %s, 0", s(sW))
e("s_cbranch_scc1 L_noft")
flag_store(sFlag, 12, 13)
e("v_lshlrev_b32 v11, 7, v0")
poll_issue(48, 1, 11, WS_FT)
A.label("L_noft")
mid_k1()
wspec_shift(sMW)
e("s_lshl_b32 %s, %s, 6", s(sTmp), s(sW))
e("s_add_u32 %s, %s, %s", s(sMW), s(sMW), s(sTmp))
e("s_add_u32 %s, %s, %d", s(sMW), s(sMW), MW0)
e("s_mul_i32 s3, s3, 5")
e("s_add_u32 s3, s3, %s", s(sW))
e("s_lshl_b32 %s, s3, 1", s(sJB))
e("s_mov_b32 %s, 0", s(sPar))
e("s_mov_b32 %s, 2", s(sNU))
e("s_lshl_b32 %s, %s, 12", s(sM0), s(sW))
e("s_add_u32 %s, %s, %d", s(sM0), s(sM0), MT0)
e("s_mul_i32 %s, %s, %d", s(sLB2), s(sW), CPS)
e("s_add_u32 %s, %s, %d", s(sLB2), s(sLB2), CP0 + 15360)
e("s_branch L_mid")

A.label("L_dft_l")
mid_k1()
e("s_add_u32 %s, s3, 2", s(sTmp))
e("s_cmp_ge_u32 %s, %s", s(sLW), s(sTmp))
e("s_cbranch_scc1 L_dft_l3")
wspec_shift(sMW)
e("s_add_u32 %s, %s, %d", s(sMW), s(sMW), MW0 + 256)
e("s_mul_i32 s3, s3, 10")
e("s_add_u32 s3, s3, 8")
e("s_add_u32 %s, s3, %s", s(sJB), s(sLW))
e("s_lshl_b32 %s, %s, 1", s(sPar), s(sLW))
e("s_cmp_eq_u32 %s, 2", s(sLW))
e("s_cselect_b32 %s, 64, %s", s(sPar), s(sPar))
e("s_mov_b32 %s, 1", s(sNU))
e("s_lshl_b32 %s, %s, 12", s(sM0), s(sLW))
e("s_add_u32 %s, %s, %d", s(sM0), s(sM0), FI_L)
A.label("L_mid")
mid()
stamp("m_end")
e("s_cmp_ge_u32 %s, 4", s(sW))
e("s_cbranch_scc1 L_dft_l2")
e("s_waitcnt vmcnt(0)")
stamp("m_st")
e("s_barrier")
e("s_cmp_lg_u32 %s, 0", s(sW))
e("s_cbranch_scc1 L_nofu")
e("s_lshl_b32 %s, s2, 7", s(sFlag))
e("s_add_u32 %s, %s, %d", s(sFlag), s(sFlag), WS_FU - 192 * 128)
flag_store(sFlag, 12, 13)
A.label("L_nofu")
A.label("L_p3c")
p3c()
e("s_branch L_fin")

A.label("L_dft_l3")
e("v_lshlrev_b32 v5, 4, v0")
e("s_waitcnt vmcnt(0)")
e("s_barrier")
e("s_branch L_dft_l4")
A.label("L_dft_l2")
if STG:
    stage_wd(0, 3)
e("s_waitcnt vmcnt(%d)", 15 if STG else 0)
e("s_barrier")
e("s_branch L_dft_l5")
A.label("L_dft_l4")
e("s_barrier")
if STG:
    stage_wd(0, 3)
A.label("L_dft_l5")
stage_wd(3 if STG else 0, 4)
fu_poll_issue()
z_ci_all()
stage_done(18)
A.label("L_zpart")
zpart()
A.label("L_fin")
if STAMPS and "--dbg" not in sys.argv:
    stamp("issued_out")
    e("s_waitcnt vmcnt(0)")
    e("%s s[100:101]", "s_memtime" if "--cyc" in sys.argv else "s_memrealtime")
    e("s_waitcnt lgkmcnt(0)")
    for i in range(9):
        e("v_mov_b32 %s, %s", v(16 + i), s(84 + 2 * i))
    e("s_lshl_b32 s3, s2, 3")
    e("s_add_u32 s3, s3, %s", s(sW))
    e("s_lshl_b32 s3, s3, 6")
    e("s_add_u32 s3, s3, 0x%x", WS_STAMP)
    e("v_mov_b32 v5, 0")
    for i in range(3):
        e("buffer_store_dwordx4 %s, v5, %s, s3 offen offset:%d", v(16 + 4 * i, 4), s(sWS, 4), 16 * i)
if "--dbg" in sys.argv:
    e("s_load_dwordx2 s[4:5], s[0:1], 64")
    e("s_waitcnt vmcnt(0) lgkmcnt(0)")
    e("s_memrealtime s[100:101]")
    srd(A, 8, 4, 256)
    e("s_waitcnt lgkmcnt(0)")
    e("s_mov_b64 exec, 1")
    e("s_not_b32 s84, s84")
    e("s_cmp_ge_u32 s2, 192")
    e("s_cselect_b32 s3, 32, 0")
    for i in range(8):
        k = [0, 8, 1, 2, 3, 4, 5, 6][i]
        e("v_mov_b32 v16, %s", s(84 + 2 * k))
        e("v_mov_b32 v17, %d", 4 * i)
        e("buffer_atomic_umax v16, v17, s[8:11], s3 offen sc1")
A.label("L_end")
e("s_endpgm")
flush_cold()
A.label("L_code_end")

kernel_desc(A, KN, 256, accum=256)
TB.emit_tables(A)
out = [x for x in sys.argv[1:] if not x.startswith("--")]
open(out[0] if out else "v21.s", "w").write(A.text())
```

```python
import sys
from asmlib import *
import tables19 as TB

NAME = "parallel_sum__spectral_gfnet__glu_gated_reglu__prompt"
A = Asm()
e = A.e


def opt(name, default):
    for x in sys.argv:
        if x.startswith("--%s=" % name):
            return int(x.split("=")[1])
    return default


STAMPS = "--stamps" in sys.argv
SLEEP = opt("sleep", 4)
ROTA, ROTB = opt("rota", 1), opt("rotb", 3)
CIP1 = opt("cip1", 0)
DROT = opt("drot", 0)
WSP = opt("wsp", 2)
PRL = opt("prl", 0)
WARM = opt("warm", 0)
FOLD = opt("fold", 1)
POLL1 = opt("poll1", 0)
CIL = opt("cil", 1)
STG = opt("stg", 1)
ZPR = opt("zpr", 3)
MPR = opt("mpr", 0)
CT = opt("ct", 3)
DS = opt("ds", 1)
MAP8, PF3 = opt("map8", 0), opt("pf3", 0)
R3A, R3B, RZ = opt("r3a", 0), opt("r3b", 0), opt("rz", 0)
OUTF = ["", " sc1", " nt", " sc0 sc1"][opt("outf", 0)]
NFIX = opt("nfix", 0)

WS_EP = 0x0000
WS_FS = 0x1000
WS_FSC = WS_FS + 128 * 128
WS_FT = 0xC000
WS_FU = 0xE000
WS_FH = 0x10000
WS_FW = 0x50000
WS_STAT = 0x28000
WS_CSP = 0x30000
WS_H = 0x60000
WS_T = 0x660000
TSTR, USTR = 43008 + opt("tpad", 128), 86016 + opt("upad", 128)
WS_U = 0x910000
WS_WD = 0xBC0000
WS_STAMP = 0x2000000

SLAB = 49152
AUX = 3 * SLAB
ZU0, ZUS = 0, 16384
CP0, CPS = 65536, 20480
LGO = AUX + 2048
XB = CP0 + 10240
CBASE, CSTR = [0, 20480, CP0, CP0 + 5120, 45056], [5120, 5120, CPS, CPS, 5120]
FR_L, FI_L = AUX + 2048 + 128, AUX + 2048 + 128
MW0, MWA = 0, 22272
MT0 = 45056
RPK = FI_L
LDS_ALL = FI_L + 12288

sX, sG, sU, sWS, sTAB, sWR, sWI, sWD, sOUT = 8, 12, 16, 20, 24, 28, 32, 36, 40
sW, sRB, sCG, sLW = 44, 45, 46, 47
sTmp, sTmp2, sCnt, sDelta, sBuf, sSLAB = 48, 49, 50, 51, 52, 53
sAoff, sBoff, sM0 = 54, 55, 56
sWM, sWN, sFlag = 57, 58, 59
sK1, sJB, sTAG, sSpin = 60, 61, 62, 63
P = 64
sP, sG3, sHo, sWo, sUo, sCo, sLB, sLB2, sOo, sOc, sOOB = 64, 65, 66, 67, 68, 69, 70, 71, 72, 73, 74
sSgn, sS2, sNU, sWcol, sPar = 76, 78, 79, 80, 81
sWa, sWb, sWc, sMW = 6, 7, 75, 80
sR3, sRZ, sI4 = 82, 83, 67
SRDS = {"X": (sX, P, 2048 * 1280), "WR": (sWR, P + 2, 2048 * 642), "WI": (sWI, P + 4, 2048 * 642),
        "G": (sG, P + 8, 640 * 3072), "U": (sU, P + 10, 640 * 3072), "WD": (sWD, P + 12, 1536 * 1280),
        "OUT": (sOUT, P + 14, 2048 * 1280), "WS": (sWS, P + 18, 1 << 28)}


class VQ:
    def __init__(self):
        self.q = []
    def issue(self, tag, n=1):
        self.q += [tag] * n
    def wait(self, *tags, extra=""):
        last = max([i for i, t in enumerate(self.q) if t in tags], default=-1)
        n = len(self.q) - 1 - last
        assert n <= 63, n
        e("s_waitcnt vmcnt(%d)%s", n, extra)
        self.q = self.q[last + 1:]
    def drain(self):
        self.q = []


STN = {}
for x in sys.argv:
    if x.startswith("--st="):
        for i_, grp in enumerate(x[5:].split(",")):
            for nm in grp.split("+"):
                STN[nm] = i_ + 1
STN["start"] = 0


def cap(fn):
    keep, A.lines = A.lines, []
    fn()
    out, A.lines = A.lines, keep
    return out


def weave(main, groups, skip=0):
    n = len(groups)
    step = (len(main) - skip) / (n + 0.001) if n else 0
    k = 0
    for i, ln in enumerate(main):
        while k < n and i >= skip + k * step:
            A.lines += groups[k]
            k += 1
        A.lines.append(ln)
    while k < n:
        A.lines += groups[k]
        k += 1


COLD = []


def rare(cond, fn):
    la, lb = A.newlabel("L_rare"), A.newlabel("L_back")
    e("%s %s", cond, la)
    A.label(lb)
    body = cap(fn)
    COLD.append(["%s:" % la] + body + ["    s_branch %s" % lb])


def flush_cold():
    while COLD:
        A.lines += COLD.pop(0)


def stamp(nm):
    if STAMPS and nm in STN:
        e("%s %s", "s_memtime" if "--cyc" in sys.argv else "s_memrealtime", s(84 + 2 * STN[nm], 2))


def make_tag():
    e("s_mul_i32 %s, %s, 0x9E3779B1", s(sTAG), s(sTAG))
    e("s_add_u32 %s, %s, 0x7F4A7C15", s(sTAG), s(sTAG))


def flag_store(soff, t0, t1):
    e("v_mov_b32 %s, %s", v(t0), s(sTAG))
    e("v_mov_b32 %s, 0", v(t1))
    e("s_mov_b64 exec, 1")
    e("buffer_store_dword %s, %s, %s, %s offen sc1", v(t0), v(t1), s(sWS, 4), s(soff))
    e("s_mov_b64 exec, -1")


def poll_issue(dst, n, vaddr, base):
    e("s_mov_b32 %s, 0x%x", s(sTmp), base)
    e("buffer_load_dword%s %s, %s, %s, %s offen sc1", "" if n == 1 else "x%d" % n, v(dst, n), v(vaddr), s(sWS, 4), s(sTmp))


def poll_check(dst, n, vaddr, base):
    assert n == 1

    def spin():
        top, done = A.newlabel("L_poll"), A.newlabel("L_polld")
        e("s_mov_b32 %s, 0", s(sSpin))
        A.label(top)
        if SLEEP:
            e("s_sleep %d", SLEEP)
        poll_issue(dst, n, vaddr, base)
        e("s_add_u32 %s, %s, 1", s(sSpin), s(sSpin))
        e("s_cmp_ge_u32 %s, %d", s(sSpin), opt("spin", 40000))
        e("s_waitcnt vmcnt(0)")
        e("s_cbranch_scc1 %s", done)
        e("v_cmp_ne_u32 vcc, %s, %s", s(sTAG), v(dst))
        e("s_cbranch_vccnz %s", top)
        A.label(done)
    e("v_cmp_ne_u32 vcc, %s, %s", s(sTAG), v(dst))
    rare("s_cbranch_vccnz", spin)


def karg_wait(first, rest=()):
    e("s_waitcnt lgkmcnt(0)")
    for k in first:
        srd(A, *SRDS[k])
    e("s_load_dword %s, %s, 0x%x", s(sTAG), s(P + 18, 2), WS_EP)
    for k in rest:
        srd(A, *SRDS[k])


def tab_srd():
    e("s_getpc_b64 s[4:5]")
    e("s_add_u32 s4, s4, dft_tables@rel32@lo+4")
    e("s_addc_u32 s5, s5, dft_tables@rel32@hi+12")
    srd(A, sTAB, 4, TB.TAB_BYTES)


def dpp_sum16(r_):
    for ctl in ("quad_perm:[1,0,3,2]", "quad_perm:[2,3,0,1]", "row_half_mirror", "row_mirror"):
        e("s_nop 1")
        e("v_add_f32_dpp %s, %s, %s %s row_mask:0xf bank_mask:0xf", v(r_), v(r_), v(r_), ctl)


def round_bf16(r_):
    e("v_cvt_pk_bf16_f32 %s, %s, %s", v(r_), v(r_), v(r_))
    e("v_and_b32 %s, 0xffff0000, %s", v(r_), v(r_))


def mm16(d, a_, b_, first=False):
    e("v_mfma_f32_16x16x32_bf16 %s, %s, %s, %s", v(d, 4), v(a_, 4), v(b_, 4), "0" if first else v(d, 4))


def stats_addr(R):
    e("s_lshl_b32 %s, %s, 2", s(sTmp), s(sCG))
    e("s_add_u32 %s, %s, %s", s(sTmp), s(sTmp), s(sW))
    e("s_lshl_b32 %s, %s, 2", s(sTmp), s(sTmp))
    e("v_lshrrev_b32 %s, 4, v0", v(R + 20))
    e("v_add_u32 %s, %s, %s", v(R + 21), s(sTmp), v(R + 20))
    e("v_and_b32 %s, 31, %s", v(R + 20), v(R + 21))
    e("v_lshlrev_b32 %s, 6, %s", v(R + 20), v(R + 20))
    e("v_lshrrev_b32 %s, 5, %s", v(R + 22), v(R + 21))
    e("v_add_u32 %s, %s, %s", v(R + 20), v(R + 20), v(R + 22))
    e("s_lshl_b32 %s, %s, 2", s(sTmp), s(sRB))
    e("v_add_u32 %s, %s, %s", v(R + 20), s(sTmp), v(R + 20))
    e("v_mul_u32_u24 %s, 1280, %s", v(R + 20), v(R + 20))
    e("v_and_b32 %s, 15, v0", v(R + 22))
    e("v_lshl_add_u32 %s, %s, 4, %s", v(R + 20), v(R + 22), v(R + 20))


def stats_issue(R):
    for n in range(5):
        e("buffer_load_dwordx4 %s, %s, %s, 0 offen offset:%d", v(R + 4 * n, 4), v(R + 20), s(sX, 4), n * 256)


def stats_compute(R):
    F = R + 24
    S_, V_, T_ = R + 64, R + 66, R + 22
    for n in range(20):
        e("v_lshlrev_b32 %s, 16, %s", v(F + 2 * n), v(R + n))
        e("v_and_b32 %s, 0xffff0000, %s", v(F + 2 * n + 1), v(R + n))
    e("v_pk_add_f32 %s, %s, %s", v(S_, 2), v(F, 2), v(F + 2, 2))
    for n in range(2, 20):
        e("v_pk_add_f32 %s, %s, %s", v(S_, 2), v(S_, 2), v(F + 2 * n, 2))
    e("v_add_f32 %s, %s, %s", v(S_), v(S_), v(S_ + 1))
    dpp_sum16(S_)
    e("v_mul_f32 %s, 0x3acccccd, %s", v(S_), v(S_))
    for n in range(20):
        e("v_pk_add_f32 %s, %s, %s op_sel_hi:[1,0] neg_lo:[0,1] neg_hi:[0,1]", v(F + 2 * n, 2), v(F + 2 * n, 2), v(S_, 2))
    e("v_pk_mul_f32 %s, %s, %s", v(V_, 2), v(F, 2), v(F, 2))
    for n in range(1, 20):
        e("v_pk_fma_f32 %s, %s, %s, %s", v(V_, 2), v(F + 2 * n, 2), v(F + 2 * n, 2), v(V_, 2))
    e("v_add_f32 %s, %s, %s", v(V_), v(V_), v(V_ + 1))
    dpp_sum16(V_)
    e("v_mul_f32 %s, 0x3acccccd, %s", v(V_), v(V_))
    round_bf16(V_)
    e("v_add_f32 %s, 0x3727c5ac, %s", v(V_), v(V_))
    round_bf16(V_)
    e("v_sqrt_f32 %s, %s", v(V_), v(V_))
    e("s_nop 0")
    round_bf16(V_)
    e("v_rcp_f32 %s, %s", v(V_), v(V_))
    round_bf16(S_)
    e("v_and_b32 %s, 15, v0", v(T_))
    e("v_cmp_eq_u32 vcc, 1, %s", v(T_))
    e("v_lshlrev_b32 %s, 2, %s", v(R + 1), v(R + 21))
    e("v_lshl_add_u32 %s, %s, 9, %s", v(R + 1), v(T_), v(R + 1))
    e("v_cndmask_b32 %s, %s, %s, vcc", v(V_), v(V_), v(S_))
    e("v_cmp_gt_u32 vcc, 2, %s", v(T_))
    e("s_lshl_b32 %s, %s, 10", s(sTmp), s(sRB))
    e("s_add_u32 %s, %s, 0x%x", s(sTmp), s(sTmp), WS_STAT)
    e("s_and_saveexec_b64 s[4:5], vcc")
    e("buffer_store_dword %s, %s, %s, %s offen sc1", v(V_), v(R + 1), s(sWS, 4), s(sTmp))
    e("s_mov_b64 exec, s[4:5]")


def aux_poll_addr(ffn, dst):
    e("s_lshl_b32 %s, %s, 2", s(sTmp), s(sRB))
    e("s_add_u32 %s, %s, %s", s(sTmp), s(sTmp), s(sLW))
    e("s_lshl_b32 %s, %s, 1", s(sTmp), s(sTmp))
    e("v_and_b32 v6, 1, v0")
    e("v_add_u32 v6, %s, v6", s(sTmp))
    if ffn:
        e("s_and_b32 %s, s2, 0xc6", s(sTmp))
        e("s_add_u32 %s, %s, 128", s(sTmp), s(sTmp))
        e("v_and_b32 v7, 7, v0")
        e("v_bfe_u32 v12, v0, 3, 1")
        e("v_min_u32 v7, 4, v7")
        e("v_lshlrev_b32 v7, 3, v7")
        e("v_add3_u32 v7, v7, v12, %s", s(sTmp))
        e("v_cmp_gt_u32 vcc, 16, v0")
        e("s_nop 1")
        e("v_cndmask_b32 v6, v7, v6, vcc")
    e("v_lshlrev_b32 %s, 7, v6", v(dst))


def fw_poll_addr(dst):
    e("s_lshl_b32 %s, %s, 6", s(sTmp), s(sLW))
    e("v_add_u32 %s, %s, v0", v(dst), s(sTmp))
    e("v_min_u32 %s, 159, %s", v(dst), v(dst))
    e("v_lshlrev_b32 %s, 7, %s", v(dst), v(dst))


def aux_addr(ffn, R):
    e("v_and_b32 %s, 31, v0", v(R))
    e("v_lshrrev_b32 %s, 5, v0", v(R + 1))
    e("v_lshlrev_b32 %s, 2, %s", v(R), v(R))
    e("v_lshl_add_u32 %s, %s, 9, %s", v(R), v(R + 1), v(R))
    e("s_lshl_b32 %s, %s, 7", s(sTmp), s(sLW))
    e("v_add_u32 %s, %s, %s", v(R), s(sTmp), v(R))
    if ffn:
        e("v_lshrrev_b32 %s, 4, v0", v(R + 1))
        e("v_mul_u32_u24 %s, 12288, %s", v(R + 1), v(R + 1))
        e("v_and_b32 %s, 15, v0", v(R + 3))
        e("v_lshl_add_u32 %s, %s, 4, %s", v(R + 1), v(R + 3), v(R + 1))
        e("s_lshl_b32 %s, %s, 8", s(sTmp), s(sLW))
        e("s_lshl_b32 %s, %s, 10", s(sTmp2), s(sCG))
        e("s_add_u32 %s, %s, %s", s(sTmp), s(sTmp), s(sTmp2))
        e("v_add_u32 %s, %s, %s", v(R + 1), s(sTmp), v(R + 1))
        e("v_lshrrev_b32 %s, 5, v0", v(R + 16))
        e("v_lshl_add_u32 %s, %s, 29, %s", v(R + 16), v(R + 16), v(R + 1))


def aux_issue(ffn, R):
    e("s_lshl_b32 %s, %s, 10", s(sTmp), s(sRB))
    e("s_add_u32 %s, %s, 0x%x", s(sTmp), s(sTmp), WS_STAT)
    e("buffer_load_dword %s, %s, %s, %s offen sc1", v(R + 2), v(R), s(sWS, 4), s(sTmp))
    if ffn:
        for n in range(3):
            e("s_mov_b32 %s, 0x%x", s(sTmp), WS_CSP + n * 4 * 12288)
            e("buffer_load_dwordx4 %s, %s, %s, %s offen sc1", v(R + 4 + 4 * n, 4), v(R + 16 if n == 2 else R + 1), s(sWS, 4), s(sTmp))


def aux_finish(ffn, R):
    e("v_add_u32 %s, %d, %s", v(R), AUX, v(R))
    e("ds_write_b32 %s, %s", v(R), v(R + 2))
    if ffn:
        C_, T_ = R + 4, R + 8
        for n in range(1, 3):
            for k in (0, 2):
                e("v_pk_add_f32 %s, %s, %s", v(C_ + k, 2), v(C_ + k, 2), v(C_ + 4 * n + k, 2))
        for op in ("v_permlane16_swap_b32", "v_permlane32_swap_b32"):
            for i in range(4):
                e("v_mov_b32 %s, %s", v(T_ + i), v(C_ + i))
            e("s_nop 0")
            for i in range(4):
                e("%s %s, %s", op, v(C_ + i), v(T_ + i))
            e("s_nop 0")
            for i in range(4):
                e("v_add_f32 %s, %s, %s", v(C_ + i), v(C_ + i), v(T_ + i))
        e("s_lshl_b32 %s, %s, 8", s(sTmp), s(sLW))
        e("s_add_u32 %s, %s, %d", s(sTmp), s(sTmp), AUX + 1024)
        e("v_lshl_add_u32 %s, %s, 4, %s", v(R + 1), v(R + 3), s(sTmp))
        e("ds_write_b128 %s, %s", v(R + 1), v(C_, 4))
    e("s_waitcnt lgkmcnt(0)")


def p3_map():
    if MAP8:
        e("s_and_b32 %s, s2, 7", s(sP))
        e("s_lshl_b32 %s, %s, 2", s(sP), s(sP))
        e("s_bfe_u32 s3, s2, 0x20003")
        e("s_add_u32 %s, %s, s3", s(sP), s(sP))
        e("s_lshr_b32 %s, s2, 5", s(sG3))
        return
    e("s_and_b32 s3, s2, 7")
    e("s_lshr_b32 %s, s2, 3", s(sTmp))
    e("s_lshr_b32 %s, s3, 1", s(sP))
    e("s_lshl_b32 %s, %s, 3", s(sP), s(sP))
    e("s_and_b32 %s, %s, 7", s(sTmp2), s(sTmp))
    e("s_add_u32 %s, %s, %s", s(sP), s(sP), s(sTmp2))
    e("s_and_b32 s3, s3, 1")
    e("s_lshl_b32 s3, s3, 2")
    e("s_lshr_b32 %s, %s, 3", s(sTmp), s(sTmp))
    e("s_add_u32 %s, s3, %s", s(sG3), s(sTmp))


ZG, ZC, ZAB = [160, 224], 64, [136, 192, 208]


def ZAr(c3, rt): return ZAB[c3] + 4 * rt


def z_setup():
    p3_map()
    e("s_mul_i32 %s, %s, %d", s(sLB), s(sLW), ZUS)
    e("s_lshl_b32 %s, %s, 7", s(sUo), s(sP))
    e("s_lshl_b32 %s, %s, 12", s(sTmp), s(sLW))
    e("s_add_u32 %s, %s, %s", s(sUo), s(sUo), s(sTmp))
    e("s_add_u32 %s, %s, 0x%x", s(sUo), s(sUo), WS_U)
    e("s_mul_i32 %s, %s, 21", s(sCo), s(sG3))
    e("s_add_u32 %s, %s, %s", s(sCo), s(sCo), s(sLW))
    e("s_mul_i32 %s, %s, 3072", s(sCo), s(sCo))
    e("s_add_u32 %s, %s, %d", s(sCo), s(sCo), TB.CI_OFF)
    e("s_lshl_b32 %s, %s, 1", s(sS2), s(sP))


def wd_bases(wreg):
    e("s_lshr_b32 %s, %s, 1", s(sOc), s(sG3))
    e("s_and_b32 %s, %s, 1", s(sTmp), s(sG3))
    e("s_mul_i32 %s, %s, 20", s(sTmp), s(sTmp))
    e("s_add_u32 %s, %s, %s", s(sOc), s(sOc), s(sTmp))
    e("s_add_u32 %s, %s, 16", s(sOc), s(sOc))
    e("s_lshl_b32 %s, %s, 5", s(sOc), s(sOc))
    e("s_lshl_b32 %s, %s, 10", s(sTmp), s(wreg))
    e("s_add_u32 %s, %s, 0x%x", s(sTmp), s(sTmp), WS_WD)
    e("s_mul_i32 %s, %s, %d", s(sWa), s(sG3), 2 * 49152)
    e("s_add_u32 %s, %s, %s", s(sWa), s(sWa), s(sTmp))
    e("s_mul_i32 %s, %s, %d", s(sWc), s(sOc), 49152 // 32)
    e("s_add_u32 %s, %s, %s", s(sWc), s(sWc), s(sTmp))


def rot3():
    e("s_and_b32 %s, %s, 3", s(sR3), s(sG3))
    e("s_mul_i32 %s, %s, %d", s(sR3), s(sR3), R3A)
    e("s_and_b32 %s, %s, 7", s(sTmp), s(sP))
    e("s_mul_i32 %s, %s, %d", s(sTmp), s(sTmp), R3B)
    e("s_add_u32 %s, %s, %s", s(sR3), s(sR3), s(sTmp))
    for _ in range((3 * R3A + 7 * R3B) // 12):
        e("s_cmp_ge_u32 %s, 12", s(sR3))
        e("s_cselect_b32 %s, 12, 0", s(sTmp))
        e("s_sub_u32 %s, %s, %s", s(sR3), s(sR3), s(sTmp))


def item4(i, dst):
    e("s_add_u32 %s, %s, %d", s(dst), s(sR3), i)
    e("s_cmp_ge_u32 %s, 12", s(dst))
    e("s_cselect_b32 %s, 12, 0", s(sTmp))
    e("s_sub_u32 %s, %s, %s", s(dst), s(dst), s(sTmp))
    e("s_lshl_b32 %s, %s, 12", s(dst), s(dst))


WOFF = [(0, 0), (0, 49152), (0, 20 * 49152), (0, 21 * 49152), (1, 0)]


def stage_all():
    rot3()
    for i in range(3):
        item4(i, sI4)
        for w in range(4):
            e("s_add_u32 %s, %s, %d", s(sCnt), s(sI4), ((w - 3) * 1024) & 0xffffffff)
            e("s_add_u32 %s, %s, %s", s(sTmp2), s(sCnt), s(sWa))
            for ct in range(5):
                e("s_mov_b32 m0, %d", CP0 + w * CPS + i * 5120 + ct * 1024)
                if ct < 4:
                    e("s_add_u32 %s, %s, %d", s(sTmp), s(sTmp2), WOFF[ct][1])
                else:
                    e("s_add_u32 %s, %s, %s", s(sTmp), s(sCnt), s(sWc))
                e("buffer_load_dwordx4 v5, %s, %s offen sc1 lds", s(sWS, 4), s(sTmp))


def stage_wd(i0, i1):
    e("s_mul_i32 %s, %s, %d", s(sSLAB), s(sLW), CPS)
    rot3()
    for i in range(i0, i1):
        item4(i, sI4)
        e("s_add_u32 %s, %s, %s", s(sTmp2), s(sI4), s(sWa))
        for ct in range(5):
            e("s_add_u32 m0, %s, %d", s(sSLAB), CP0 + i * 5120 + ct * 1024)
            if ct < 4:
                e("s_add_u32 %s, %s, %d", s(sTmp), s(sTmp2), WOFF[ct][1])
            else:
                e("s_add_u32 %s, %s, %s", s(sTmp), s(sI4), s(sWc))
            e("buffer_load_dwordx4 v5, %s, %s offen sc1 lds", s(sWS, 4), s(sTmp))


def z_ci_sub(idx):
    for z in range(6):
        c = [c3 for c3 in range(3) if z * 3 + c3 in idx]
        if c:
            z_item(z, 4 * 3072, sCo, sRZ)
        for c3 in c:
            e("buffer_load_dwordx4 %s, v5, %s, %s offen offset:%d", v(ZC + z * 12 + c3 * 4, 4), s(sTAB, 4), s(sRZ), c3 * 1024)


def z_ci_all():
    for z in range(6):
        z_ci_loads(z, 5)


def stage_done(n):
    e("s_lshl_b32 %s, %s, 2", s(sTmp), s(sLW))
    e("s_add_u32 %s, %s, %d", s(sTmp), s(sTmp), LGO + 16)
    e("v_mov_b32 v12, %s", s(sTmp))
    e("v_mov_b32 v13, 1")
    e("s_waitcnt vmcnt(%d)", n)
    e("ds_write_b32 v12, v13")


def z_item(z, mul, base, dst):
    e("s_and_b32 %s, %s, 3", s(dst), s(sG3))
    e("s_mul_i32 %s, %s, %d", s(dst), s(dst), RZ)
    e("s_add_u32 %s, %s, %d", s(dst), s(dst), z)
    e("s_cmp_ge_u32 %s, 6", s(dst))
    e("s_cselect_b32 %s, 6, 0", s(sTmp))
    e("s_sub_u32 %s, %s, %s", s(dst), s(dst), s(sTmp))
    e("s_lshl_b32 %s, %s, 2", s(sTmp), s(dst))
    e("s_add_u32 %s, %s, %s", s(sTmp), s(sTmp), s(sLW))
    e("s_cmp_gt_u32 %s, 20", s(sTmp))
    e("s_cselect_b32 %s, 0x20000000, %s", s(sTmp), s(base))
    e("s_mul_i32 %s, %s, %d", s(dst), s(dst), mul)
    e("s_add_u32 %s, %s, %s", s(dst), s(dst), s(sTmp))


def z_ci_loads(z, vL):
    z_item(z, 4 * 3072, sCo, sRZ)
    for c3 in range(3):
        e("buffer_load_dwordx4 %s, %s, %s, %s offen offset:%d", v(ZC + z * 12 + c3 * 4, 4), v(vL), s(sTAB, 4), s(sRZ), c3 * 1024)


def ZGr(u, ro, nh, kap): return ZG[u] + ((ro * 2 + nh) * 2 + kap) * 4


def z_gconst():
    e("v_and_b32 v56, 15, v0")
    e("v_lshlrev_b32 v56, 6, v56")
    e("v_add_u32 v56, %s, v56", s(sS2))
    e("v_cvt_f32_u32 v56, v56")
    e("v_mul_f32 v56, 0x3a000000, v56")
    e("v_lshrrev_b32 v57, 5, v0")
    e("v_lshlrev_b32 v57, 3, v57")
    e("v_cvt_f32_u32 v57, v57")
    e("v_bfe_u32 v58, v0, 4, 1")
    e("v_cvt_f32_u32 v58, v58")
    e("v_mul_f32 v58, 0x3e800000, v58")
    for u in range(2):
        if u:
            e("v_add_f32 v56, 0x3a000000, v56")
        for kap in range(2):
            if kap:
                e("v_add_f32 v59, 0x41800000, v57")
                e("v_fma_f32 v59, v59, v56, v58")
            else:
                e("v_fma_f32 v59, v57, v56, v58")
            for ro in range(2):
                if ro:
                    e("v_add_f32 v60, 0xbe800000, v59")
                else:
                    e("v_mov_b32 v60, v59")
                for i2 in range(4):
                    e("v_cos_f32 v61, v60")
                    e("v_add_f32 v60, v60, v56")
                    e("v_cos_f32 v62, v60")
                    e("v_add_f32 v60, v60, v56")
                    b = ZGr(u, ro, 0, kap) + i2
                    e("v_cvt_pk_bf16_f32 %s, v61, v62", v(b))
                    e("v_xor_b32 %s, 0x80000000, %s", v(b + 8), v(b))


def fu_poll_issue():
    e("v_lshlrev_b32 v11, 7, v0")
    lab0 = A.newlabel("L_nofup")
    e("s_cmp_lg_u32 %s, 0", s(sLW))
    e("s_cbranch_scc1 %s", lab0)
    poll_issue(16, 1, 11, WS_FU)
    A.label(lab0)


def zpart():
    vL, vUG, vTU, vTU1, vPU = 5, 6, 7, 8, 11
    UF, ZT = 16, 32
    e("v_lshlrev_b32 %s, 4, v0", v(vL))
    e("v_lshrrev_b32 v12, 3, v0")
    e("v_mul_u32_u24 v12, %d, v12", USTR)
    e("v_lshrrev_b32 v13, 2, v0")
    e("v_lshrrev_b32 v14, 4, v0")
    e("v_xor_b32 v13, v13, v14")
    e("v_and_b32 v13, 1, v13")
    e("v_lshl_add_u32 v12, v13, 6, v12")
    e("v_and_b32 v13, 3, v0")
    e("v_lshl_add_u32 %s, v13, 4, v12", v(vUG))
    e("v_lshrrev_b32 v12, 5, v0")
    e("v_lshlrev_b32 v12, 3, v12")
    e("v_bfe_u32 v14, v0, 2, 2")
    e("v_add_u32 v12, v12, v14")
    e("v_lshlrev_b32 v12, 7, v12")
    e("v_lshl_add_u32 v12, v13, 4, v12")
    e("v_bfe_u32 v14, v0, 4, 1")
    e("v_lshl_add_u32 v12, v14, 3, v12")
    e("v_bfe_u32 v14, v0, 3, 1")
    e("v_lshl_add_u32 v12, v14, 6, v12")
    e("v_add_u32 %s, %s, v12", v(vTU), s(sLB))
    e("v_xor_b32 %s, 64, %s", v(vTU1), v(vTU))
    e("v_mov_b32 v12, %d", LGO)
    lab1, lab2 = A.newlabel("L_lgo"), A.newlabel("L_lgod")
    e("s_cmp_lg_u32 %s, 0", s(sLW))
    e("s_cbranch_scc1 %s", lab1)
    e("s_waitcnt vmcnt(0)")
    poll_check(UF, 1, vPU, WS_FU)
    e("v_mov_b32 v13, 1")
    e("ds_write_b32 v12, v13")
    e("s_branch %s", lab2)
    A.label(lab1)
    e("s_sleep 1")
    e("ds_read_b32 v13, v12")
    e("s_waitcnt lgkmcnt(0)")
    e("v_cmp_ne_u32 vcc, 1, v13")
    e("s_cbranch_vccnz %s", lab1)
    A.label(lab2)
    stamp("zU")
    if ZPR:
        e("s_setprio %d", ZPR)
    q = VQ()

    def udma(z):
        z_item(z, 4 * 4096, sUo, sRZ)
        for n in range(4):
            e("s_add_u32 m0, %s, %d", s(sLB), (z % 4) * 4096 + n * 1024)
            e("s_add_u32 %s, %s, %d", s(sTmp2), s(sRZ), n * 8 * USTR)
            e("buffer_load_dwordx4 %s, %s, %s offen sc1 lds", v(vUG), s(sWS, 4), s(sTmp2))
        q.issue("u%d" % z, 4)
    for z in range(4):
        udma(z)
    def ureads(z):
        q.wait("u%d" % z)
        stamp("z%d" % z)
        for u in range(2):
            for kap in range(2):
                for rd in range(2):
                    e("ds_read_b64_tr_b16 %s, %s offset:%d", v(UF + 8 * u + 4 * kap + 2 * rd, 2), v(vTU1 if u else vTU), (z % 4) * 4096 + kap * 2048 + rd * 512)
    ureads(0)
    for z in range(6):
        for u in range(2):
            e("s_waitcnt lgkmcnt(%d)", 4 - 4 * u)
            for kap in range(2):
                for nh in range(2):
                    for ro in range(2):
                        mm16(ZT + u * 16 + (nh * 2 + ro) * 4, UF + 8 * u + 4 * kap, ZGr(u, ro, nh, kap), kap == 0)
        if z + 4 < 6:
            udma(z + 4)
        if z + 1 < 6:
            ureads(z + 1)
        for rt in range(4):
            b = ZT + rt * 8
            for k in range(4):
                e("v_cvt_pk_bf16_f32 %s, %s, %s", v(b + k), v(b + 2 * k), v(b + 2 * k + 1))
        e("s_nop 0")
        for rt in range(4):
            for c3 in range(3):
                mm16(ZAr(c3, rt), ZC + z * 12 + c3 * 4, ZT + rt * 8, z == 0)
    e("v_add_u32 v12, %s, %s", s(sLB), v(vL))
    for rt in range(4):
        for c3 in range(3):
            if rt == 3 and c3 == 0:
                e("s_nop 1")
            e("ds_write_b128 v12, %s offset:%d", v(ZAr(c3, rt), 4), c3 * 4096 + rt * 1024)
    e("s_waitcnt lgkmcnt(0)")
    stamp("zend")
    e("s_barrier")


vA0, vA1, vB0, vB1 = 2, 3, 4, 1


def lgo_init():
    e("v_mov_b32 v12, %d", LGO)
    e("v_mov_b32 v13, 0")
    e("ds_write_b32 v12, v13")
    e("ds_write_b32 v12, v13 offset:4")
    e("ds_write_b32 v12, v13 offset:8")
    e("ds_write_b32 v12, v13 offset:12")
    for i in range(4):
        e("ds_write_b32 v12, v13 offset:%d", 16 + 4 * i)


def k_offset(dst):
    e("s_and_b32 %s, s2, 1", s(dst))
    e("s_mul_i32 %s, %s, 5", s(dst), s(dst))
    e("s_bfe_u32 %s, s2, 0x10003", s(sTmp))
    e("s_mul_i32 %s, %s, 3", s(sTmp), s(sTmp))
    e("s_add_u32 %s, %s, %s", s(dst), s(dst), s(sTmp))
    if KG:
        e("s_lshr_b32 %s, s2, 6", s(sTmp))
        e("s_lshl_b32 %s, %s, 2", s(sTmp), s(sTmp))
        e("s_lshr_b32 %s, 0x%x, %s", s(sTmp), KG, s(sTmp))
        e("s_and_b32 %s, %s, 15", s(sTmp), s(sTmp))
        e("s_add_u32 %s, %s, %s", s(dst), s(dst), s(sTmp))
        mod10(dst)


KG = int(str(opt("kg", 250)), 16)


def mod10(dst):
    e("s_cmp_ge_u32 %s, 10", s(dst))
    e("s_cselect_b32 %s, 10, 0", s(sTmp))
    e("s_sub_u32 %s, %s, %s", s(dst), s(dst), s(sTmp))


def x_src_scalar():
    e("s_lshl_b32 %s, %s, 2", s(sAoff), s(sRB))
    e("s_add_u32 %s, %s, %s", s(sAoff), s(sAoff), s(sLW))
    e("s_mul_i32 %s, %s, 1280", s(sAoff), s(sAoff))


def ffn_loader():
    if PRL & 2:
        e("s_setprio 2")
    e("v_lshrrev_b32 v6, 3, v0")
    e("v_mul_u32_u24 v6, 81920, v6")
    e("v_and_b32 v7, 7, v0")
    e("v_lshrrev_b32 v8, 4, v0")
    e("v_xor_b32 v7, v7, v8")
    e("v_lshl_add_u32 %s, v7, 4, v6", v(vA0))
    e("v_xor_b32 %s, 64, %s", v(vA1), v(vA0))
    e("v_mul_u32_u24 v6, 3072, v8")
    e("v_and_b32 v7, 15, v0")
    e("v_lshlrev_b32 v8, 2, v8")
    e("v_xor_b32 v7, v7, v8")
    e("v_lshl_add_u32 %s, v7, 4, v6", v(vB0))
    e("v_xor_b32 %s, 32, %s", v(vB1), v(vB0))
    x_src_scalar()
    e("s_mul_i32 %s, %s, %d", s(sBoff), s(sLW), 16 * 3072)
    e("s_lshl_b32 %s, %s, 8", s(sTmp), s(sCG))
    e("s_add_u32 %s, %s, %s", s(sBoff), s(sBoff), s(sTmp))
    e("s_lshl_b32 %s, %s, 12", s(sM0), s(sLW))
    k_offset(sJB)
    XR_ = opt("xrot", 0)
    if XR_:
        e("s_bfe_u32 %s, s2, 0x20003", s(sJB))
        e("s_mul_i32 %s, %s, 5", s(sJB), s(sJB))
        e("s_add_u32 %s, %s, 1", s(sJB), s(sJB))
        e("s_lshr_b32 %s, %s, 1", s(sJB), s(sJB))
        if XR_ & 4:
            e("s_mov_b32 %s, 0", s(sJB))
        e("s_lshr_b32 %s, s2, 6", s(sTmp))
        e("s_mul_i32 %s, %s, %d", s(sTmp), s(sTmp), (XR_ & 3) - 1)
        e("s_add_u32 %s, %s, %s", s(sJB), s(sJB), s(sTmp))
        e("s_cmp_ge_u32 %s, 10", s(sJB))
        e("s_cselect_b32 %s, 10, 0", s(sTmp))
        e("s_sub_u32 %s, %s, %s", s(sJB), s(sJB), s(sTmp))
    NR = 10
    tab_srd()
    stamp("l_pre")
    e("s_waitcnt lgkmcnt(0)")
    stamp("l_k")
    for k in ("X", "G", "U"):
        srd(A, *SRDS[k])
    q = VQ()

    def slab_groups(i):
        b = (i % 3) * SLAB
        gs = []

        def head():
            if i < NFIX:
                e("s_add_u32 %s, %s, %d", s(sWM), s(sAoff), i * 128)
                e("s_add_u32 %s, %s, %d", s(sWN), s(sBoff), i * 64 * 3072)
            else:
                e("s_add_u32 %s, %s, %d", s(sTmp), s(sJB), NFIX)
                e("s_lshl_b32 %s, %s, 7", s(sWM), s(sTmp))
                e("s_add_u32 %s, %s, %s", s(sWM), s(sWM), s(sAoff))
                e("s_mul_i32 %s, %s, %d", s(sWN), s(sTmp), 64 * 3072)
                e("s_add_u32 %s, %s, %s", s(sWN), s(sWN), s(sBoff))
                e("s_add_u32 %s, %s, 1", s(sJB), s(sJB))
                e("s_cmp_eq_u32 %s, %d", s(sJB), NR)
                e("s_cselect_b32 %s, 0, %s", s(sJB), s(sJB))
        for n in range(4):
            def f(n=n):
                if n == 0:
                    head()
                e("s_add_u32 m0, %s, %d", s(sM0), b + n * 1024)
                e("s_add_u32 %s, %s, %d", s(sTmp), s(sWM), n * 8 * 81920)
                e("buffer_load_dwordx4 %s, %s, %s offen lds", v(vA1 if n & 1 else vA0), s(sX, 4), s(sTmp))
            gs.append(cap(f))
        for mat in range(2):
            for n in range(4):
                def f(n=n, mat=mat):
                    e("s_add_u32 m0, %s, %d", s(sM0), b + 16384 * (1 + mat) + n * 1024)
                    e("s_add_u32 %s, %s, %d", s(sTmp), s(sWN), n * 4 * 3072)
                    e("buffer_load_dwordx4 %s, %s, %s offen lds", v(vB1 if n & 2 else vB0), s(sU if mat else sG, 4), s(sTmp))
                gs.append(cap(f))
        q.issue("s%d" % i, 12)
        return gs

    def slab(i, main=()):
        weave(list(main), slab_groups(i))

    def wait2(n):
        la, lb = A.newlabel("L_w2"), A.newlabel("L_w2")
        e("s_cmp_ge_u32 %s, 48", s(sPar))
        e("s_cbranch_scc1 %s", la)
        e("s_waitcnt vmcnt(%d)", n + 4)
        e("s_branch %s", lb)
        A.label(la)
        e("s_waitcnt vmcnt(%d)", n)
        A.label(lb)

    def bar(b):
        stamp("fl_a%d" % b)
        e("s_barrier")
        stamp("fl_b%d" % b)
    slab(0)
    stamp("l_s0")
    lgo_init()
    e("s_load_dword %s, %s, 0x%x", s(sTAG), s(P + 18, 2), WS_EP)
    for k in ("WS", "WD", "WR", "WI"):
        srd(A, *SRDS[k])
    z_setup()
    e("v_lshlrev_b32 v5, 4, v0")
    fw_poll_addr(10)
    aux_poll_addr(True, 15)
    aux_addr(True, 36)
    slab(1, cap(z_gconst))
    stamp("l_iss")
    q.wait("s0", extra=" lgkmcnt(0)")
    e("s_barrier")
    stamp("l_bi")
    make_tag()
    slab(2)
    repack_dma()
    wait2(12)
    q.q = ["s2"] * 12
    bar(0)
    slab(3)
    wait2(12)
    q.q = ["s3"] * 12
    bar(1)
    slab(4)
    e("s_waitcnt vmcnt(24)")
    repack_finish()
    wait2(12)
    q.q = ["s4"] * 12
    bar(2)
    slab(5)
    if WARM == 2:
        warm_touch(); q.issue("wt", 2)
    q.wait("s4")
    bar(3)
    lab = A.newlabel("L_nocf")
    e("s_cmp_lg_u32 %s, 0", s(sLW))
    e("s_cbranch_scc1 %s", lab)
    e("s_lshl_b32 %s, s2, 7", s(sCnt))
    e("s_add_u32 %s, %s, 0x%x", s(sCnt), s(sCnt), WS_FW)
    flag_store(sCnt, 16, 17)
    A.label(lab)
    slab(6)
    q.wait("s5")
    bar(4)
    slab(7)
    if PF3:
        q.issue("pf", pf3(1))
    q.wait("s6")
    bar(5)
    poll_issue(34, 1, 15, WS_FS); poll_issue(35, 1, 10, WS_FW); q.issue("p", 2)
    slab(8)
    q.wait("s7")
    bar(6)
    slab(9)
    q.wait("p")
    poll_check(34, 1, 15, WS_FS)
    poll_check(35, 1, 10, WS_FW)
    aux_issue(True, 36); q.issue("aux", 4)
    q.wait("s8")
    bar(7)
    q.wait("aux")
    aux_finish(True, 36)
    bar(8)
    wd_bases(sLW)
    stage_wd(0, 4)
    if CIL == 0:
        z_ci_all()
    stage_done(18 if CIL == 0 else 0)
    e("v_mov_b32 v12, %d", LGO)
    lab = A.newlabel("L_hout")
    A.label(lab)
    e("s_sleep 1")
    e("ds_read_b32 v13, v12 offset:4")
    e("s_waitcnt lgkmcnt(0)")
    e("v_cmp_ne_u32 vcc, 4, v13")
    e("s_cbranch_vccnz %s", lab)
    fu_poll_issue()
    if CIL == 1:
        z_ci_all()
    e("s_branch L_zpart")


def wspec_shift(dst):
    e("s_mul_i32 %s, %s, 642", s(sDelta), s(sK1))
    e("s_mul_i32 %s, s3, 320", s(sTmp))
    e("s_add_u32 %s, %s, %s", s(sDelta), s(sDelta), s(sTmp))
    e("s_and_b32 %s, %s, 15", s(dst), s(sDelta))


def wspec_dma():
    mid_k1()
    e("v_mul_u32_u24 v12, 3121, v0")
    e("v_lshrrev_b32 v12, 16, v12")
    e("v_mul_u32_u24 v12, %d, v12", 32 * 642 - 336)
    e("v_lshl_add_u32 v12, v0, 4, v12")
    wspec_shift(sTmp2)
    e("s_sub_u32 %s, %s, %s", s(sDelta), s(sDelta), s(sTmp2))
    e("s_and_b32 %s, %s, 1", s(sTmp), s(sLW))
    e("s_mul_i32 %s, %s, %d", s(sCnt), s(sTmp), 11 * 1008)
    e("s_mul_i32 %s, %s, %d", s(sTmp), s(sTmp), 33 * 32 * 642)
    e("s_add_u32 %s, %s, %s", s(sDelta), s(sDelta), s(sTmp))
    e("s_cmp_ge_u32 %s, 2", s(sLW))
    e("s_cselect_b32 %s, %s, %s", s(sWR), s(sWI), s(sWR))
    e("s_cselect_b32 %s, %s, %s", s(sWR + 1), s(sWI + 1), s(sWR + 1))
    e("s_cselect_b32 %s, %d, 0", s(sTmp), MWA)
    e("s_add_u32 %s, %s, %s", s(sCnt), s(sCnt), s(sTmp))
    gs = []
    for n in range(11):
        def f(n=n):
            e("s_add_u32 m0, %s, %d", s(sCnt), MW0 + n * 1008)
            e("s_add_u32 %s, %s, %d", s(sTmp), s(sDelta), n * 3 * 32 * 642)
            e("buffer_load_dwordx4 v12, %s, %s offen lds", s(sWR, 4), s(sTmp))
        gs.append(cap(f))
    return gs


def repack_dma():
    e("v_lshrrev_b32 v12, 3, v0")
    e("v_mul_u32_u24 v13, 1280, v12")
    e("v_bfe_u32 v14, v0, 4, 2")
    e("v_lshlrev_b32 v14, 1, v14")
    e("v_and_b32 v12, 7, v0")
    e("v_xor_b32 v12, v12, v14")
    e("v_lshl_add_u32 v12, v12, 4, v13")
    e("s_mul_i32 %s, s2, 3", s(sCnt))
    e("s_add_u32 %s, %s, %s", s(sCnt), s(sCnt), s(sLW))
    e("s_cmp_eq_u32 %s, 3", s(sLW))
    e("s_cselect_b32 %s, 480, %s", s(sCnt), s(sCnt))
    e("s_mul_i32 %s, %s, 52429", s(sBuf), s(sCnt))
    e("s_lshr_b32 %s, %s, 19", s(sBuf), s(sBuf))
    e("s_mul_i32 %s, %s, 10", s(sTmp), s(sBuf))
    e("s_sub_u32 %s, %s, %s", s(sCnt), s(sCnt), s(sTmp))
    e("s_mul_i32 %s, %s, 40960", s(sDelta), s(sBuf))
    e("s_lshl_b32 %s, %s, 7", s(sTmp), s(sCnt))
    e("s_add_u32 %s, %s, %s", s(sDelta), s(sDelta), s(sTmp))
    e("s_min_u32 %s, %s, 2", s(sWa), s(sLW))
    e("s_lshl_b32 %s, %s, 12", s(sWa), s(sWa))
    e("s_add_u32 %s, %s, %d", s(sWa), s(sWa), RPK)
    lab = A.newlabel("L_norp")
    e("s_cmp_ge_u32 %s, 48", s(sBuf))
    e("s_cbranch_scc1 %s", lab)
    for n in range(4):
        e("s_add_u32 m0, %s, %d", s(sWa), n * 1024)
        e("s_add_u32 %s, %s, %d", s(sTmp), s(sDelta), n * 8 * 1280)
        e("buffer_load_dwordx4 v12, %s, %s offen lds", s(sWD, 4), s(sTmp))
    A.label(lab)
    e("s_mul_i32 %s, %s, %d", s(sWb), s(sCnt), 4 * 49152)
    e("s_lshl_b32 %s, %s, 10", s(sTmp), s(sBuf))
    e("s_add_u32 %s, %s, %s", s(sWb), s(sWb), s(sTmp))
    e("s_add_u32 %s, %s, 0x%x", s(sWb), s(sWb), WS_WD)
    e("s_mov_b32 %s, %s", s(sPar), s(sBuf))


def repack_finish():
    lab = A.newlabel("L_norp")
    e("s_cmp_ge_u32 %s, 48", s(sPar))
    e("s_cbranch_scc1 %s", lab)
    e("v_lshrrev_b32 v56, 2, v0")
    e("v_lshlrev_b32 v56, 7, v56")
    e("v_and_b32 v57, 3, v0")
    e("v_lshl_add_u32 v56, v57, 3, v56")
    e("v_bfe_u32 v57, v0, 3, 2")
    e("v_lshl_add_u32 v56, v57, 5, v56")
    e("v_add_u32 v56, %s, v56", s(sWa))
    for tq in range(1, 4):
        e("v_xor_b32 %s, %d, v56", v(56 + tq), tq << 5)
    for tq in range(4):
        for rd in range(2):
            e("ds_read_b64_tr_b16 %s, %s offset:%d", v(16 + tq * 4 + 2 * rd, 2), v(56 + tq), rd * 2048)
    for n in range(4):
        e("s_waitcnt lgkmcnt(%d)", 6 - 2 * n)
        e("s_add_u32 %s, %s, %d", s(sTmp), s(sWb), n * 49152)
        e("buffer_store_dwordx4 %s, v5, %s, %s offen sc1", v(16 + n * 4, 4), s(sWS, 4), s(sTmp))
    A.label(lab)


def fold_group(a0, T, vM, vaddr, off):
    for d in range(4):
        e("v_lshlrev_b32 %s, 16, %s", v(T + d), v(a0 + d))
        e("v_lshlrev_b32 %s, 16, %s", v(T + 4 + d), v(a0 + 4 + d))
    for d in range(8):
        e("v_and_b32 %s, %s, %s", v(a0 + d), v(vM), v(a0 + d))
    for d in range(4):
        e("v_fmac_f32 %s, %s, %s", v(T + d), s(sSgn), v(T + 4 + d))
    for d in range(4):
        e("v_fmac_f32 %s, %s, %s", v(a0 + d), s(sSgn), v(a0 + 4 + d))
    for d in range(4):
        e("v_cvt_pk_bf16_f32 %s, %s, %s", v(a0 + d), v(T + d), v(a0 + d))
    e("ds_write_b128 %s, %s offset:%d", v(vaddr), v(a0, 4), off)


def fold_addr(src, w0, w2):
    e("v_lshrrev_b32 %s, 3, v0", v(w2))
    e("v_mul_u32_u24 %s, 81920, %s", v(w2 + 1), v(w2))
    e("v_and_b32 %s, 7, v0", v(w0))
    e("v_lshl_add_u32 %s, %s, 4, %s", v(src), v(w0), v(w2 + 1))
    e("v_lshrrev_b32 %s, 4, v0", v(w2 + 1))
    e("v_xor_b32 %s, %s, %s", v(w0), v(w0), v(w2 + 1))
    e("v_lshlrev_b32 %s, 7, %s", v(w2), v(w2))
    e("v_lshl_add_u32 %s, %s, 4, %s", v(w2), v(w0), v(w2))
    e("s_mul_i32 %s, %s, %d", s(sTmp), s(sLW), CPS)
    e("s_add_u32 %s, %s, %d", s(sTmp), s(sTmp), XB)
    e("v_add_u32 %s, %s, %s", v(w0), s(sTmp), v(w2))
    e("v_xor_b32 %s, 64, %s", v(w0 + 1), v(w0))


XO = opt("xo", 0)
CI_EARLY = list(range(8, 16))
CI_LATE = [i for i in range(18) if i not in CI_EARLY]
LX = opt("lx", 0)
CX = opt("cx", 2)
MWE = opt("mwe", 0)
EH = opt("eh", 0)
EST = opt("est", 3)
ECI = opt("eci", 1)
EFH = opt("efh", 1)
NL = opt("nl", 2)


def dft_loader():
    if PRL & 1:
        e("s_setprio 2")
    XR = 64
    vW0, vW1 = 8, 9
    fold_addr(vA0, vW0, 6)
    e("v_lshlrev_b32 %s, 4, v0", v(vB0))
    x_src_scalar()
    tab_srd()
    stamp("l_pre")
    e("s_waitcnt lgkmcnt(0)")
    stamp("l_k")
    srd(A, *SRDS["X"])
    q = VQ()

    def xl(i):
        gs = []
        for n in range(NL):
            for hf in range(2):
                def f(n=n, hf=hf):
                    e("s_add_u32 %s, %s, %d", s(sTmp), s(sAoff), n * 8 * 81920 + i * 128)
                    e("buffer_load_dwordx4 %s, %s, %s, %s offen offset:%d", v(XR + i * 32 + n * 8 + hf * 4, 4), v(vA0), s(sX, 4), s(sTmp), hf * 640)
                gs.append(cap(f))
        q.issue("x%d" % i, 2 * NL)
        return gs

    def fl():
        gs = []
        for n in range(2):
            def f(n=n):
                e("s_lshl_b32 %s, %s, 11", s(sTmp), s(sLW))
                e("s_add_u32 m0, %s, %d", s(sTmp), FR_L + n * 1024)
                e("s_add_u32 %s, %s, %d", s(sTmp), s(sTmp), TB.F64_OFF + n * 1024)
                e("buffer_load_dwordx4 %s, %s, %s offen lds", v(vB0), s(sTAB, 4), s(sTmp))
            gs.append(cap(f))
        q.issue("f", 2)
        return gs

    def fold(i):
        for n in range(NL):
            fold_group(XR + i * 32 + n * 8, 28 + 8 * (n & 1), 44, (vW0, vW1)[n & 1], (1 - (i & 1)) * 5120 + n * 1024)

    def bar(b):
        stamp("dl_a%s" % b)
        e("s_barrier")
        stamp("dl_b%s" % b)
    weave([], xl(0))
    stamp("l_s0")
    lgo_init()
    e("s_load_dword %s, %s, 0x%x", s(sTAG), s(P + 18, 2), WS_EP)
    for k in ("WS", "WR", "WI"):
        srd(A, *SRDS[k])
    e("s_cmp_ge_u32 %s, 2", s(sCG))
    e("s_cselect_b32 %s, -1.0, 1.0", s(sSgn))
    weave([], xl(1) + (xl(2) if LX >= 1 else []) + (xl(3) if LX >= 2 else []))
    e("v_mov_b32 v44, 0xffff0000")
    aux_poll_addr(False, 15)
    fw_poll_addr(10)
    aux_addr(False, 24)
    stamp("l_iss")
    q.wait("x0")
    stamp("dl_x0")
    fold(0)
    e("s_waitcnt lgkmcnt(0)")
    e("s_barrier")
    stamp("l_bi")
    make_tag()
    q.wait("x1")
    weave(cap(lambda: fold(1)), (xl(2) if LX < 1 else []) + (xl(3) if LX < 2 else []) + (xl(4) if LX >= 1 else []))
    e("s_waitcnt lgkmcnt(0)")
    bar(0)
    q.wait("x2")
    stamp("dl_x2")
    weave(cap(lambda: fold(2)), xl(4) if LX < 1 else [])
    stamp("dl_f2")
    poll_issue(46, 1, 15, WS_FS); q.issue("p")
    e("s_waitcnt lgkmcnt(0)")
    bar(1)
    q.wait("x3")
    stamp("dl_x3")
    weave(cap(lambda: fold(3)), fl())
    stamp("dl_f3")
    q.wait("p")
    poll_check(46, 1, 15, WS_FS)
    aux_issue(False, 24); q.issue("aux")
    e("s_waitcnt lgkmcnt(0)")
    bar(2)
    gs = wspec_dma()
    if WSP == 2:
        weave(cap(lambda: fold(4)), gs)
        q.issue("w", 11)
    else:
        fold(4)
    q.wait("aux")
    aux_finish(False, 24)
    bar(3)
    poll_issue(41, 1, 10, WS_FW)
    if WSP == 0:
        weave([], gs)
    z_setup()
    wd_bases(sLW)
    e("v_lshlrev_b32 v5, 4, v0")
    if EST >= 3:
        if ECI:
            z_ci_sub(CI_EARLY)
            lab = A.newlabel("L_cil")
            e("s_bfe_u32 %s, s2, 0x10003", s(sTmp))
            e("s_add_u32 %s, %s, 2", s(sTmp), s(sTmp))
            e("s_cmp_lt_u32 %s, %s", s(sLW), s(sTmp))
            e("s_cbranch_scc1 %s", lab)
            z_ci_sub(CI_LATE)
            A.label(lab)
        z_gconst()
        stamp("dl_g")
        e("s_branch L_dft_l")
        return
    if ECI == 2:
        z_ci_sub(CI_EARLY)
    if EST:
        e("s_waitcnt vmcnt(%d)", len(CI_EARLY) if ECI == 2 else 0)
        poll_check(41, 1, 10, WS_FW)
        stamp("dl_fw")
        stage_wd(0, 3)
    if ECI == 1:
        z_ci_sub(CI_EARLY)
    stamp("dl_st")
    z_gconst()
    stamp("dl_g")
    if not EST:
        e("s_waitcnt vmcnt(0)")
        poll_check(41, 1, 10, WS_FW)
    e("s_branch L_dft_l")


def addr_advance(regs):
    e("s_add_u32 %s, %s, %d", s(sBuf), s(sBuf), SLAB)
    e("s_cmp_ge_u32 %s, %d", s(sBuf), 3 * SLAB)
    e("s_cselect_b32 %s, 0, %s", s(sBuf), s(sBuf))
    e("s_cselect_b32 %s, %d, %s", s(sDelta), (-2 * SLAB) & 0xffffffff, s(sSLAB))
    for r_ in regs:
        e("v_add_u32 %s, %s, %s", v(r_), s(sDelta), v(r_))


def gemm_loop(nslab, NT, mfmas, reads, need, areg, bar_gap, per_gap, last_extra=(), first_hook=None, peel=None, buf0=0, body=None, unroll=None, hooks=None, loop_from=None, fills=None, advf=None, last_bar=False):
    nreads = len(reads(0, 0))
    nm = len(need)

    def step(mf, nxt, first_gap=0, pre=None, barg=None):
        issued, done = 0, 0
        for m in range(nm):
            if need[m] > done:
                allowed = nreads - need[m] + issued
                e("s_waitcnt lgkmcnt(%d)", min(15, allowed))
                done = need[m] if allowed <= 15 else min(nreads, nreads + issued - 15)
            mf[m]()
            if pre and m in pre:
                for f in pre[m]:
                    f()
                if m == barg:
                    done = nreads
            if m >= first_gap:
                for k in range(per_gap):
                    if issued < len(nxt):
                        nxt[issued]()
                        issued += 1
        assert issued == len(nxt), (issued, len(nxt))

    def bar(vm=False):
        e("s_waitcnt lgkmcnt(0)%s", " vmcnt(0)" if vm else "")
        e("s_barrier")

    def merge(*ds):
        out = {}
        for d in ds:
            for k, x in d.items():
                out.setdefault(k, [])
                out[k] += x
        return out

    def spread(ops):
        out = {}
        for n, f in enumerate(ops):
            g = nm - 1 - (len(ops) - 1 - n) * max(1, (nm - bar_gap - 1) // max(1, len(ops)))
            out.setdefault(max(g, 0), []).append(f)
        return out

    def slab(last, peeled=False):
        if peeled:
            for t in range(NT - 1):
                step(mfmas(t & 1, t == 0), reads((t + 1) & 1, t + 1), pre=peel[t])
            step(mfmas(1), reads(0, 0), first_gap=bar_gap + (1 if bar_gap else 0),
                 pre=merge({0: [lambda: addr_advance(areg)]}, {bar_gap: [lambda: bar(True)]}, peel[NT - 1]), barg=bar_gap)
            return
        ex = list(last_extra) if last else []
        per = (len(ex) + NT - 1) // NT
        for t in range(NT - 1):
            step(mfmas(t & 1), reads((t + 1) & 1, t + 1), pre=merge(spread(ex[t * per:(t + 1) * per]), body[t] if body and not last else {}))
        if last:
            step(mfmas(1), [], pre=spread(ex[(NT - 1) * per:]))
        else:
            hooks = {bar_gap: ([first_hook[0]] if first_hook else []) + [bar] + ([first_hook[1]] if first_hook else [])}
            step(mfmas(1), reads(0, 0), first_gap=bar_gap + (1 if bar_gap else 0), pre=merge({0: [lambda: addr_advance(areg)]}, hooks, body[NT - 1] if body else {}), barg=bar_gap)
    e("s_mov_b32 %s, %d", s(sBuf), buf0)
    e("s_mov_b32 %s, %d", s(sSLAB), SLAB)
    e("s_mov_b32 %s, 0", s(sCnt))
    e("s_waitcnt lgkmcnt(0)%s", " vmcnt(%d)" % unroll[0][0] if unroll and unroll[0][0] is not None else "")
    make_tag()
    e("s_barrier")
    stamp("c_bi")
    for f in reads(0, 0):
        f()
    if unroll:
        ops = unroll[0][1]
        for i in range(nslab):
            if loop_from is not None and loop_from < i < nslab - 1:
                continue
            if loop_from is not None and i == loop_from:
                e("s_mov_b32 %s, %d", s(sBuf), ((buf0 // SLAB + i) % 3) * SLAB)
                e("s_mov_b32 %s, %d", s(sCnt), i)
                lab = A.newlabel("L_gemm")
                A.label(lab)
                slab(False)
                e("s_add_u32 %s, %s, 1", s(sCnt), s(sCnt))
                e("s_cmp_lt_u32 %s, %d", s(sCnt), nslab - 1)
                e("s_cbranch_scc1 %s", lab)
                continue
            per = (len(ops) + NT - 2) // (NT - 1)
            hk = hooks[i] if hooks else [{}] * NT
            if fills:
                gs = fills(i)
                ngap = (NT - 1) * nm
                hk = [{} for _ in range(NT)]
                for k, g in enumerate(gs):
                    pos = min(ngap - 1, k * ngap // max(1, len(gs)))
                    hk[pos // nm].setdefault(pos % nm, []).append(lambda g=g: A.lines.extend(g))
            for t in range(NT - 1):
                step(mfmas(t & 1, i == 0 and t == 0), reads((t + 1) & 1, t + 1), pre=merge(spread(ops[t * per:(t + 1) * per]), hk[t]))
            if i == nslab - 1:
                if last_bar:
                    step(mfmas(1), [], pre={bar_gap: [bar]}, barg=bar_gap)
                else:
                    step(mfmas(1), [])
            else:
                vm, ops = unroll[i + 1]
                if callable(vm):
                    vm = vm()

                def ubar(vm=vm):
                    e("s_waitcnt lgkmcnt(0)%s", "" if vm is None else " vmcnt(%d)" % vm)
                    e("s_barrier")

                def adv(i=i):
                    if advf:
                        return advf(i)
                    nb = (buf0 // SLAB + i + 1) % 3
                    for r_ in areg:
                        e("v_add_u32 %s, %d, %s", v(r_), (SLAB if nb else -2 * SLAB) & 0xffffffff, v(r_))
                step(mfmas(1), reads(0, 0), first_gap=bar_gap + (1 if bar_gap else 0),
                     pre=merge({0: [adv]}, {bar_gap: [ubar]}, hk[NT - 1]), barg=bar_gap)
        stamp("c_le")
        return
    if peel:
        slab(False, True)
        e("s_mov_b32 %s, 1", s(sCnt))
    lab = A.newlabel("L_gemm")
    A.label(lab)
    slab(False)
    e("s_add_u32 %s, %s, 1", s(sCnt), s(sCnt))
    e("s_cmp_lt_u32 %s, %d", s(sCnt), nslab - 1)
    e("s_cbranch_scc1 %s", lab)
    slab(True)
    stamp("c_le")


vWD = [1, 2, 3, 4, 14]


def p3c_setup():
    p3_map()
    wd_bases(sW)
    e("s_lshl_b32 %s, %s, 6", s(sOo), s(sG3))
    e("s_mul_i32 %s, %s, %d", s(sHo), s(sP), 2 * 48 * 2048)
    e("s_lshl_b32 %s, %s, 11", s(sTmp), s(sW))
    e("s_add_u32 %s, %s, %s", s(sHo), s(sHo), s(sTmp))
    e("s_and_b32 %s, %s, 1", s(sTmp), s(sW))
    e("s_lshl_b32 %s, %s, 10", s(sTmp), s(sTmp))
    e("s_lshl_b32 %s, %s, 1", s(sTmp2), s(sP))
    e("s_add_u32 %s, %s, %s", s(sTmp), s(sTmp), s(sTmp2))
    e("s_lshr_b32 %s, %s, 1", s(sTmp2), s(sW))
    e("s_add_u32 %s, %s, %s", s(sTmp), s(sTmp), s(sTmp2))
    e("s_mul_i32 %s, %s, 1280", s(sTmp), s(sTmp))
    e("s_add_u32 %s, %s, %s", s(sOo), s(sOo), s(sTmp))
    e("s_add_u32 %s, %s, %s", s(sOc), s(sOc), s(sTmp))


def fh_addr():
    e("s_lshl_b32 %s, %s, 1", s(sTmp), s(sP))
    e("s_lshr_b32 %s, %s, 1", s(sTmp2), s(sW))
    e("s_add_u32 %s, %s, %s", s(sTmp), s(sTmp), s(sTmp2))
    e("s_mul_i32 %s, %s, 12", s(sTmp), s(sTmp))
    e("v_min_u32 v5, 11, v0")
    e("v_add_u32 v5, %s, v5", s(sTmp))
    e("v_lshlrev_b32 v3, 7, v5")


sHr = [50, 51, 52, 53]


def p3_pre():
    vL = 1
    e("v_lshlrev_b32 %s, 4, v0", v(vL))
    for rho in range(4):
        e("s_add_u32 %s, %s, %d", s(sTmp), s(sW), rho)
        e("s_bfe_u32 %s, %s, 0x10001", s(sTmp2), s(sTmp))
        e("s_mul_i32 %s, %s, %d", s(sTmp2), s(sTmp2), 48 * 2048)
        e("s_and_b32 %s, %s, 1", s(sTmp), s(sTmp))
        e("s_lshl_b32 %s, %s, 10", s(sTmp), s(sTmp))
        e("s_add_u32 %s, %s, %s", s(sTmp), s(sTmp), s(sTmp2))
        e("s_add_u32 %s, %s, %s", s(sTmp), s(sTmp), s(sHo))
        e("s_add_u32 %s, %s, %d", s(sHr[rho]), s(sTmp), WS_H)

    rot3()


def hload_(i):
    item4(i, sRZ)
    e("s_lshl_b32 %s, %s, 1", s(sRZ), s(sRZ))
    for rho in range(4):
        e("s_add_u32 %s, %s, %s", s(sTmp), s(sHr[rho]), s(sRZ))
        e("buffer_load_dwordx4 %s, v1, %s, %s offen sc1", v(8 + (i % 4) * 36 + 20 + rho * 4, 4), s(sWS, 4), s(sTmp))


def p3c():
    vL, vO, vPH, vWJ = 1, 2, 3, 4
    RS, XR, WJ, ACC = 8, 8, 152, 176
    NI = 12
    q = VQ()
    def wload(i, ct):
        if ct == 0:
            item4(i, sI4)
            e("s_add_u32 %s, %s, %s", s(sTmp2), s(sI4), s(sWa))
        if ct < 4:
            e("s_add_u32 %s, %s, %d", s(sTmp), s(sTmp2), WOFF[ct][1])
        else:
            e("s_add_u32 %s, %s, %s", s(sTmp), s(sI4), s(sWc))
        e("buffer_load_dwordx4 %s, %s, %s, %s offen sc1", v(RS + (i % 4) * 36 + ct * 4, 4), v(vL), s(sWS, 4), s(sTmp))
        q.issue("i%d" % i)

    def hload(i):
        hload_(i)
        q.issue("i%d" % i, 4)

    def wj(i, ct):
        e("ds_read_b128 %s, %s offset:%d", v(WJ + 4 * ct, 4), v(vWJ), i * 5120 + ct * 1024)
    stamp("p3_in")
    e("v_and_b32 v5, 15, v0")
    e("v_mul_u32_u24 v5, 81920, v5")
    e("v_lshrrev_b32 v6, 4, v0")
    e("v_lshl_add_u32 %s, v6, 3, v5", v(vO))
    fh_addr()
    e("s_mul_i32 %s, %s, %d", s(sTmp), s(sW), CPS)
    e("s_add_u32 %s, %s, %d", s(sTmp), s(sTmp), CP0)
    e("v_add_u32 %s, %s, %s", v(vWJ), s(sTmp), v(vL))
    lab = A.newlabel("L_nofh")
    e("s_cmp_ge_u32 s2, 192")
    e("s_cbranch_scc1 %s", lab)
    e("v_mov_b32 v7, %d", LGO)
    e("v_mov_b32 v172, 1")
    e("s_waitcnt vmcnt(0)")
    flag_store(sFlag, 5, 6)
    e("s_mov_b64 exec, 1")
    e("ds_add_u32 v7, v172 offset:4")
    e("s_mov_b64 exec, -1")
    if EFH:
        poll_issue(7, 1, vPH, WS_FH)
        e("s_waitcnt vmcnt(0)")
    A.label(lab)
    stamp("p3_fl")
    if not EFH:
        poll_issue(7, 1, vPH, WS_FH)
    e("s_lshl_b32 %s, %s, 2", s(sTmp), s(sW))
    e("s_add_u32 %s, %s, %d", s(sTmp), s(sTmp), LGO + 16)
    e("v_mov_b32 v5, %s", s(sTmp))
    late, join = A.newlabel("L_hlate"), A.newlabel("L_hjoin")
    if not EFH:
        e("s_waitcnt vmcnt(0)")
    early = A.newlabel("L_hearly")
    if EH:
        e("s_cmp_eq_u32 %s, 2", s(sNU))
        e("s_cbranch_scc1 %s", early)
    e("v_cmp_ne_u32 vcc, %s, v7", s(sTAG))
    e("s_cbranch_vccnz %s", late)
    for i in range(EH):
        hload(i)
    A.label(early)
    e("s_mov_b32 %s, 1", s(sNU))
    for i in range(EH, 4):
        hload(i)
    for i in range(4, 8):
        for ct in range(5):
            wload(i, ct)
    e("s_branch %s", join)
    A.label(late)
    e("s_mov_b32 %s, 0", s(sNU))
    for i in range(4, 8):
        for ct in range(5):
            wload(i, ct)
    poll_check(7, 1, vPH, WS_FH)
    q.drain()
    for i in range(4):
        hload(i)
    A.label(join)
    stamp("p3_fh")

    def staged(br):
        lab, skip = A.newlabel("L_wst"), A.newlabel("L_wsk")
        if br:
            e("s_cmp_ge_u32 s2, 192")
            e("%s %s", br, skip)
        A.label(lab)
        e("ds_read_b32 v6, v5")
        e("s_waitcnt lgkmcnt(0)")
        e("v_cmp_eq_u32 vcc, 0, v6")
        e("s_cbranch_vccnz %s", lab)
        A.label(skip)
    staged("s_cbranch_scc1" if EST else None)
    for ct in range(5):
        wj(0, ct)
    OFF = [(sOo, 0), (sOo, 32), (sOo, 640), (sOo, 672), (sOc, 0)]

    def acc(ct, rt): return ACC + (ct * 4 + rt) * 4
    for i in range(NI):
        rs = RS + (i % 4) * 36
        if i < 4:
            la, lb = A.newlabel("L_w3"), A.newlabel("L_w3")
            e("s_cmp_eq_u32 %s, 0", s(sNU))
            e("s_cbranch_scc1 %s", la)
            e("s_waitcnt vmcnt(32)")
            e("s_branch %s", lb)
            A.label(la)
            q.wait("i%d" % i)
            A.label(lb)
        else:
            q.wait("i%d" % i)
        stamp("i%d" % i)
        if i == 2 and EST:
            staged("s_cbranch_scc0")
        for ct in range(5):
            if i < 4:
                e("s_waitcnt lgkmcnt(%d)", 4 if i < 3 else 4 - ct)
            for rt in range(4):
                mm16(acc(ct, rt), WJ + 4 * ct if i < 4 else rs + 4 * ct, rs + 20 + 4 * rt, i == 0)
            if i < 3:
                wj(i + 1, ct)
            if 4 <= i < 8:
                wload(i + 4, ct)
            if i == 9:
                e("buffer_load_dwordx2 %s, %s, %s, %s offen offset:%d", v(XR + 2 * ct, 2), v(vO), s(sX, 4), s(OFF[ct][0]), OFF[ct][1])
                q.issue("x")
        if i + 4 < NI:
            hload(i + 4)
    for rho in range(1, 4):
        e("s_sub_u32 %s, %s, %d", s(sTmp), s(sW), rho)
        e("s_and_b32 %s, %s, 3", s(sTmp), s(sTmp))
        e("s_mul_i32 %s, %s, %d", s(sTmp), s(sTmp), CPS)
        e("s_add_u32 %s, %s, %d", s(sTmp), s(sTmp), CP0 + (rho - 1) * 5120)
        e("v_add_u32 %s, %s, %s", v(40 + rho), s(sTmp), v(vL))
    for ct in range(5):
        for rho in range(1, 4):
            e("ds_write_b128 %s, %s offset:%d", v(vWJ), v(acc(ct, rho), 4), (rho - 1) * 5120 + ct * 1024)
    e("s_lshl_b32 %s, %s, 10", s(sTmp), s(sW))
    e("v_add_u32 v40, %s, %s", s(sTmp), v(vL))
    e("s_waitcnt vmcnt(0)")
    for ct in range(5):
        x0, b = XR + 2 * ct, 20 + 4 * ct
        e("v_lshlrev_b32 %s, 16, %s", v(b), v(x0))
        e("v_and_b32 %s, 0xffff0000, %s", v(b + 1), v(x0))
        e("v_lshlrev_b32 %s, 16, %s", v(b + 2), v(x0 + 1))
        e("v_and_b32 %s, 0xffff0000, %s", v(b + 3), v(x0 + 1))
        for k in (0, 2):
            e("v_pk_add_f32 %s, %s, %s", v(acc(ct, 0) + k, 2), v(acc(ct, 0) + k, 2), v(b + k, 2))
    e("s_waitcnt lgkmcnt(0)")
    stamp("p3_end")
    e("s_barrier")
    stamp("p3_bar")
    LP = 48
    for c3 in range(3):
        for lw in range(4):
            e("ds_read_b128 %s, v40 offset:%d", v(LP + (c3 * 4 + lw) * 4, 4), ZU0 + lw * ZUS + c3 * 4096)
    for ct in range(5):
        for k in range(1, 4):
            e("ds_read_b128 %s, %s offset:%d", v(acc(ct, k), 4), v(40 + k), ct * 1024)
    e("s_waitcnt lgkmcnt(15)")
    for c3 in range(3):
        b = LP + c3 * 16
        for k in (0, 2):
            e("v_pk_add_f32 %s, %s, %s", v(b + k, 2), v(b + k, 2), v(b + 8 + k, 2))
            e("v_pk_add_f32 %s, %s, %s", v(b + 4 + k, 2), v(b + 4 + k, 2), v(b + 12 + k, 2))
        for k in (0, 2):
            if c3 < 2:
                e("v_pk_add_f32 %s, %s, %s neg_lo:[0,1] neg_hi:[0,1]", v(b + 8 + k, 2), v(b + k, 2), v(b + 4 + k, 2))
            e("v_pk_add_f32 %s, %s, %s", v(b + k, 2), v(b + k, 2), v(b + 4 + k, 2))
    zsrc = [LP, LP + 16, LP + 8, LP + 24, LP + 32]
    for ct in range(5):
        b = acc(ct, 0)
        e("s_waitcnt lgkmcnt(%d)", 12 - 3 * ct)
        for k in (0, 2):
            e("v_pk_add_f32 %s, %s, %s", v(b + k, 2), v(b + k, 2), v(zsrc[ct] + k, 2))
            e("v_pk_add_f32 %s, %s, %s", v(b + 4 + k, 2), v(b + 4 + k, 2), v(b + 8 + k, 2))
        for k in (0, 2):
            e("v_pk_add_f32 %s, %s, %s", v(b + k, 2), v(b + k, 2), v(b + 12 + k, 2))
        for k in (0, 2):
            e("v_pk_add_f32 %s, %s, %s", v(b + k, 2), v(b + k, 2), v(b + 4 + k, 2))
        e("v_cvt_pk_bf16_f32 %s, %s, %s", v(b + 8), v(b), v(b + 1))
        e("v_cvt_pk_bf16_f32 %s, %s, %s", v(b + 9), v(b + 2), v(b + 3))
        e("buffer_store_dwordx2 %s, %s, %s, %s offen offset:%d%s", v(b + 8, 2), v(vO), s(sOUT, 4), s(OFF[ct][0]), OFF[ct][1], OUTF)
    lab = A.newlabel("L_noep")
    e("s_lshl_b32 %s, s2, 3", s(sTmp))
    e("s_add_u32 %s, %s, %s", s(sTmp), s(sTmp), s(sW))
    e("s_cmp_eq_u32 %s, 0", s(sTmp))
    e("s_cbranch_scc0 %s", lab)
    e("s_mov_b32 %s, 0x%x", s(sTmp), WS_EP)
    flag_store(sTmp, 5, 6)
    A.label(lab)


def pf3(part):
    e("s_lshr_b32 %s, s2, 3", s(sCnt))
    e("s_lshl_b32 %s, %s, 2", s(sCnt), s(sCnt))
    e("s_add_u32 %s, %s, %s", s(sCnt), s(sCnt), s(sLW))
    ntau = 40 if MAP8 else 20
    n = 0
    if part == 0:
        per = (ntau * 256 + 95) // 96
        for k in range((per + 63) // 64):
            e("s_mul_i32 %s, %s, %d", s(sTmp), s(sCnt), per)
            e("v_min_u32 v12, %d, v0", min(63, per - 64 * k - 1))
            e("v_add_u32 v12, %s, v12", s(sTmp))
            if k:
                e("v_add_u32 v12, %d, v12", 64 * k)
            e("v_lshrrev_b32 v13, 8, v12")
            e("v_and_b32 v12, 255, v12")
            if not MAP8:
                e("s_and_b32 %s, s2, 1", s(sTmp))
                e("s_lshl_b32 %s, %s, 3", s(sTmp2), s(sTmp))
                e("s_lshl_b32 %s, %s, 1", s(sTmp), s(sTmp))
                e("s_add_u32 %s, %s, 16", s(sTmp), s(sTmp))
                e("v_cmp_gt_u32 vcc, 16, v13")
                e("v_and_b32 v14, 7, v13")
                e("v_add_u32 v14, %s, v14", s(sTmp2))
                e("v_bfe_u32 v17, v13, 3, 1")
                e("v_mad_u32_u24 v14, v17, 20, v14")
                e("v_and_b32 v16, 1, v13")
                e("v_add_u32 v16, %s, v16", s(sTmp))
                e("v_bfe_u32 v17, v13, 1, 1")
                e("v_mad_u32_u24 v16, v17, 20, v16")
                e("v_cndmask_b32 v13, v16, v14, vcc")
            e("v_mul_u32_u24 v13, 49152, v13")
            e("v_lshl_add_u32 v12, v12, 7, v13")
            e("s_mov_b32 %s, 0x%x", s(sTmp), WS_WD + 16384)
            e("buffer_load_dword v62, v12, %s, %s offen sc1", s(sWS, 4), s(sTmp))
            n += 1
    else:
        per = (4032 if MAP8 else 2016) // 96
        e("s_mul_i32 %s, %s, %d", s(sTmp), s(sCnt), per * 128)
        if not MAP8:
            e("s_and_b32 %s, s2, 1", s(sTmp2))
            e("s_mul_i32 %s, %s, %d", s(sTmp2), s(sTmp2), 4 * 63 * 1024)
            e("s_add_u32 %s, %s, %s", s(sTmp), s(sTmp), s(sTmp2))
        e("s_add_u32 %s, %s, %d", s(sTmp), s(sTmp), TB.CI_OFF)
        e("v_min_u32 v12, %d, v0", per - 1)
        e("v_lshlrev_b32 v12, 7, v12")
        e("buffer_load_dword v63, v12, %s, %s offen", s(sTAB, 4), s(sTmp))
        n = 1
    return n


def code_touch():
    lab = A.newlabel("L_ct")
    e("s_getpc_b64 s[4:5]")
    A.label(lab)
    e("s_sub_u32 s4, s4, %s - %s", lab, NAME + "_kernel")
    e("s_subb_u32 s5, s5, 0")
    e("s_mov_b32 %s, s4", s(sG))
    e("s_and_b32 %s, s5, 0xffff", s(sG + 1))
    e("s_mov_b32 %s, L_code_end - %s", s(sG + 2), NAME + "_kernel")
    e("s_mov_b32 %s, 0x00020000", s(sG + 3))
    if CT == 3:
        e("s_lshr_b32 %s, s2, 3", s(sTmp))
    else:
        e("s_bfe_u32 %s, s2, 0x30003", s(sTmp))
        e("s_lshl_b32 %s, %s, 2", s(sTmp), s(sTmp))
        e("s_add_u32 %s, %s, %s", s(sTmp), s(sTmp), s(sW))
    e("s_lshl_b32 %s, %s, 11", s(sTmp), s(sTmp))
    e("v_and_b32 v5, 15, v0")
    e("v_lshlrev_b32 v5, 7, v5")
    e("buffer_load_dword v15, v5, %s, %s offen", s(sG, 4), s(sTmp))


def warm_touch():
    e("s_lshl_b32 %s, s2, 1", s(sTmp))
    e("s_and_b32 %s, %s, 1", s(sTmp2), s(sLW))
    e("s_add_u32 %s, %s, %s", s(sTmp), s(sTmp), s(sTmp2))
    e("s_mul_i32 %s, %s, %d", s(sTmp), s(sTmp), 27 * 128)
    e("v_min_u32 v12, 26, v0")
    e("v_lshlrev_b32 v12, 7, v12")
    lab, lab2 = A.newlabel("L_wt"), A.newlabel("L_wt")
    e("s_cmp_ge_u32 %s, 2", s(sLW))
    e("s_cbranch_scc1 %s", lab)
    e("buffer_load_dword v250, v12, %s, %s offen", s(sWR, 4), s(sTmp))
    e("s_branch %s", lab2)
    A.label(lab)
    e("buffer_load_dword v250, v12, %s, %s offen", s(sWI, 4), s(sTmp))
    A.label(lab2)
    e("s_lshl_b32 %s, s2, 2", s(sTmp))
    e("s_add_u32 %s, %s, %s", s(sTmp), s(sTmp), s(sLW))
    e("s_mul_i32 %s, %s, %d", s(sTmp), s(sTmp), 6 * 128)
    e("s_add_u32 %s, %s, %d", s(sTmp), s(sTmp), TB.CI_OFF)
    e("v_min_u32 v12, 5, v0")
    e("v_lshlrev_b32 v12, 7, v12")
    e("buffer_load_dword v251, v12, %s, %s offen", s(sTAB, 4), s(sTmp))


def p1_ffn():
    vXA, vWA, FR, ACC = 8, 10, 16, 112
    stats_addr(16)
    e("s_and_b32 %s, %s, 1", s(sWM), s(sW))
    e("s_lshr_b32 %s, %s, 1", s(sWN), s(sW))
    karg_wait(["X"], ["WS", "OUT"])
    lab = A.newlabel("L_nost")
    e("s_cmp_ge_u32 %s, 8", s(sCG))
    e("s_cbranch_scc1 %s", lab)
    stats_issue(16)
    A.label(lab)
    e("s_lshl_b32 %s, %s, 3", s(sFlag), s(sRB))
    e("s_add_u32 %s, %s, %s", s(sFlag), s(sFlag), s(sCG))
    e("s_lshl_b32 %s, %s, 7", s(sFlag), s(sFlag))
    e("s_add_u32 %s, %s, 0x%x", s(sFlag), s(sFlag), WS_FS)
    p3c_setup()
    e("v_and_b32 v5, 15, v0")
    e("v_lshlrev_b32 v5, 7, v5")
    e("s_lshl_b32 %s, %s, 13", s(sTmp), s(sWM))
    e("v_add_u32 v5, %s, v5", s(sTmp))
    e("v_lshrrev_b32 v6, 4, v0")
    e("v_bfe_u32 v7, v0, 1, 3")
    e("v_xor_b32 v6, v6, v7")
    e("v_lshl_add_u32 %s, v6, 4, v5", v(vXA))
    e("v_xor_b32 %s, 64, %s", v(vXA + 1), v(vXA))
    e("v_lshrrev_b32 v5, 4, v0")
    e("v_bfe_u32 v6, v0, 2, 2")
    e("v_lshl_add_u32 v7, v5, 3, v6")
    e("v_lshlrev_b32 v7, 8, v7")
    e("v_and_b32 v5, 1, v5")
    e("v_lshl_add_u32 v5, v6, 1, v5")
    e("s_lshl_b32 %s, %s, 2", s(sTmp), s(sWN))
    e("v_xor_b32 v5, %s, v5", s(sTmp))
    e("v_lshl_add_u32 v7, v5, 5, v7")
    e("v_and_b32 v6, 3, v0")
    e("v_lshl_add_u32 %s, v6, 3, v7", v(vWA))
    for ft in range(1, 4):
        e("v_xor_b32 %s, %d, %s", v(vWA + ft), ft << 5, v(vWA))
    lab = A.newlabel("L_nost")
    e("s_cmp_ge_u32 %s, 8", s(sCG))
    e("s_cbranch_scc1 %s", lab)
    e("s_waitcnt vmcnt(0)")
    stats_compute(16)
    A.label(lab)
    k_offset(sK1)
    e("s_bfe_u32 %s, s2, 0x20004", s(sPar))
    e("s_add_u32 %s, %s, %s", s(sK1), s(sK1), s(sPar))
    if KG:
        mod10(sK1)
    e("s_mul_i32 %s, %s, 12288", s(sK1), s(sK1))
    e("s_lshl_b32 %s, %s, 2", s(sTmp), s(sCG))
    e("s_lshl_b32 %s, %s, 1", s(sTmp2), s(sWM))
    e("s_add_u32 %s, %s, %s", s(sTmp), s(sTmp), s(sTmp2))
    e("s_add_u32 %s, %s, %s", s(sTmp), s(sTmp), s(sWN))
    e("s_lshl_b32 %s, %s, 8", s(sTmp), s(sTmp))
    e("s_add_u32 %s, %s, %s", s(sK1), s(sK1), s(sTmp))
    e("s_add_u32 %s, %s, 0x%x", s(sK1), s(sK1), WS_CSP)
    e("s_bfe_u32 %s, s2, 0x30003", s(sTmp))
    e("s_cmp_ge_u32 %s, 5", s(sTmp))
    e("s_cselect_b32 %s, 100, %s", s(sPar), s(sPar))
    e("s_cmp_lg_u32 %s, 0", s(sW))
    e("s_cselect_b32 %s, 100, %s", s(sNU), s(sPar))
    for i in range(4):
        e("v_mov_b32 %s, 0x3f803f80", v(2 + i))
    e("v_and_b32 v14, 48, v0")
    stamp("c_set")

    def stat_flag():
        e("s_lshr_b32 %s, %s, 3", s(sTmp), s(sCG))
        e("s_or_b32 %s, %s, %s", s(sTmp), s(sTmp), s(sW))
        rare("s_cbranch_scc0", lambda: flag_store(sFlag, 6, 7))

    def cs_mfma(it, p):
        def body():
            la, lb = A.newlabel("L_csm"), A.newlabel("L_csm")
            e("s_cmp_eq_u32 %s, 1", s(sWM))
            e("s_cbranch_scc1 %s", la)
            for mat in range(2):
                if mat:
                    e("s_branch %s", lb)
                    A.label(la)
                for ft in range(4):
                    mm16(240 + 4 * ft, wf(p, mat, ft), 2, p == 0)
            A.label(lb)
        e("s_cmp_eq_u32 %s, %d", s(sPar), it)
        rare("s_cbranch_scc1", body)

    def cs_store(it):
        def body():
            e("s_mov_b32 exec_lo, 0x00010001")
            e("s_mov_b32 exec_hi, 0x00010001")
            for ft in range(4):
                e("buffer_store_dwordx4 %s, v14, %s, %s offen offset:%d sc1", v(240 + 4 * ft, 4), s(sWS, 4), s(sK1), ft * 64)
            e("s_mov_b64 exec, -1")
        e("s_cmp_eq_u32 %s, %d", s(sPar), it)
        rare("s_cbranch_scc1", body)

    def cs_wait(it):
        e("s_cmp_eq_u32 %s, %d", s(sPar), it)
        rare("s_cbranch_scc1", lambda: e("s_waitcnt vmcnt(0)"))

    def cs_flag(it):
        def body():
            e("s_lshl_b32 %s, s2, 7", s(sTmp))
            e("s_add_u32 %s, %s, 0x%x", s(sTmp), s(sTmp), WS_FSC)
            flag_store(sTmp, 6, 7)
        e("s_cmp_eq_u32 %s, %d", s(sNU), it)
        rare("s_cbranch_scc1", body)

    def acc(mat, ft, st): return ACC + ((mat * 4 + ft) * 4 + st) * 4
    def xf(p, st): return FR + p * 48 + st * 4
    def wf(p, mat, ft): return FR + p * 48 + 16 + (mat * 4 + ft) * 4
    keys = [("x", 0), ("w", 0, 0), ("w", 0, 0), ("x", 1), ("x", 2), ("x", 3)]
    for ft in range(4):
        for mat in range(2):
            if (mat, ft) != (0, 0):
                keys += [("w", mat, ft)] * 2

    def reads(p, t):
        out, seen = [], {}
        for k in keys:
            if k[0] == "x":
                out.append(lambda st=k[1]: e("ds_read_b128 %s, %s offset:%d", v(xf(p, st), 4), v(vXA + t), st * 2048))
            else:
                rd = seen.get(k, 0); seen[k] = rd + 1
                out.append(lambda mat=k[1], ft=k[2], rd=rd: e("ds_read_b64_tr_b16 %s, %s offset:%d", v(wf(p, mat, ft) + 2 * rd, 2), v(vWA + ft), 16384 * (1 + mat) + t * 8192 + rd * 1024))
        return out
    morder, n = [], 0
    for ft in range(4):
        for mat in range(2):
            morder += [(mat, ft, st) for st in ([0, 1, 2, 3] if n % 2 == 0 else [3, 2, 1, 0])]
            n += 1
    need = [max(i + 1 for i, k in enumerate(keys) if k == ("x", m[2]) or k == ("w", m[0], m[1])) for m in morder]

    def mfmas(p, first=False):
        return [(lambda m=m: mm16(acc(*m), wf(p, m[0], m[1]), xf(p, m[2]), first)) for m in morder]
    hooks = []
    for it in range(10):
        h0, h1 = {}, {}
        if it < 3:
            h0[31] = [lambda it=it: cs_mfma(it, 0)]
            h1[8] = [lambda it=it: cs_mfma(it, 1)]
            h1[30] = [lambda it=it: cs_store(it)]
        if it == 0:
            h1[3] = [stat_flag]
        if 2 <= it <= 4:
            h1[2] = [lambda it=it: cs_wait(it - 2)]
            h1[3] = [lambda it=it: cs_flag(it - 2)]
        hooks.append([h0, h1])
    vmw = [0] + [None] * 9
    gemm_loop(10, 2, mfmas, reads, need, [8, 9, 10, 11, 12, 13], 3, 1, unroll=[(None, [])] + [(vmw[i], []) for i in range(9)], hooks=hooks, loop_from=5 if opt("loop", 1) else None)

    RM, CS = 16, 32
    e("v_and_b32 v5, 15, v0")
    e("v_lshlrev_b32 v5, 2, v5")
    e("s_lshl_b32 %s, %s, 8", s(sTmp), s(sWM))
    e("s_add_u32 %s, %s, %d", s(sTmp), s(sTmp), AUX)
    e("v_add_u32 v5, %s, v5", s(sTmp))
    for st in range(4):
        e("ds_read_b32 %s, v5 offset:%d", v(RM + 4 * st), st * 64)
        e("ds_read_b32 %s, v5 offset:%d", v(RM + 4 * st + 2), 512 + st * 64)
    e("v_lshrrev_b32 v6, 4, v0")
    e("v_lshlrev_b32 v6, 4, v6")
    e("s_lshl_b32 %s, %s, 8", s(sTmp), s(sWN))
    e("s_add_u32 %s, %s, %d", s(sTmp), s(sTmp), AUX + 1024)
    e("v_add_u32 v6, %s, v6", s(sTmp))
    for ft in range(4):
        for mat in range(2):
            e("ds_read_b128 %s, v6 offset:%d", v(CS + (mat * 4 + ft) * 4, 4), mat * 512 + ft * 64)
    e("s_lshl_b32 %s, %s, 1", s(sFlag), s(sRB))
    e("s_add_u32 %s, %s, %s", s(sFlag), s(sFlag), s(sWM))
    e("s_mul_i32 %s, %s, %d", s(sTmp), s(sFlag), 2 * 48 * 2048)
    e("s_lshl_b32 s3, %s, 2", s(sCG))
    e("s_lshl_b32 %s, %s, 1", s(sCnt), s(sWN))
    e("s_add_u32 s3, s3, %s", s(sCnt))
    e("s_lshl_b32 s3, s3, 11")
    e("s_add_u32 %s, %s, s3", s(sDelta), s(sTmp))
    e("s_lshl_b32 %s, %s, 1", s(sFlag), s(sFlag))
    e("s_add_u32 %s, %s, %s", s(sFlag), s(sFlag), s(sWN))
    e("s_mul_i32 %s, %s, 12", s(sFlag), s(sFlag))
    e("s_add_u32 %s, %s, %s", s(sFlag), s(sFlag), s(sCG))
    e("s_lshl_b32 %s, %s, 7", s(sFlag), s(sFlag))
    e("s_add_u32 %s, %s, 0x%x", s(sFlag), s(sFlag), WS_FH)
    e("v_lshlrev_b32 v5, 4, v0")
    e("s_waitcnt lgkmcnt(4)")
    for st in range(4):
        e("v_mul_f32 %s, %s, %s", v(RM + 4 * st), v(RM + 4 * st), v(RM + 4 * st))
    for ph in range(2):
        if ph == 1:
            e("s_waitcnt lgkmcnt(0)")
        for st in range(4):
            rr, mm_ = RM + 4 * st, RM + 4 * st + 2
            o = 64 + ((ph * 4 + st) & 3) * 4
            for fi in range(2):
                ft = 2 * ph + fi
                g0, u0 = acc(0, ft, st), acc(1, ft, st)
                for k in (0, 2):
                    e("v_pk_fma_f32 %s, %s, %s, %s op_sel_hi:[1,0,1] neg_lo:[0,1,0] neg_hi:[0,1,0]", v(g0 + k, 2), v(CS + ft * 4 + k, 2), v(mm_, 2), v(g0 + k, 2))
                    e("v_pk_fma_f32 %s, %s, %s, %s op_sel_hi:[1,0,1] neg_lo:[0,1,0] neg_hi:[0,1,0]", v(u0 + k, 2), v(CS + 16 + ft * 4 + k, 2), v(mm_, 2), v(u0 + k, 2))
                for k in range(4):
                    e("v_max_f32 %s, 0, %s", v(g0 + k), v(g0 + k))
                for k in (0, 2):
                    e("v_pk_mul_f32 %s, %s, %s op_sel_hi:[1,0]", v(u0 + k, 2), v(u0 + k, 2), v(rr, 2))
                for k in (0, 2):
                    e("v_pk_mul_f32 %s, %s, %s", v(g0 + k, 2), v(g0 + k, 2), v(u0 + k, 2))
                for k in range(2):
                    e("v_cvt_pk_bf16_f32 %s, %s, %s", v(o + 2 * fi + k), v(g0 + 2 * k), v(g0 + 2 * k + 1))
            e("s_add_u32 %s, %s, %d", s(sTmp), s(sDelta), WS_H + (st >> 1) * 48 * 2048 + ph * 2048)
            e("buffer_store_dwordx4 %s, v5, %s, %s offen offset:%d sc1", v(o, 4), s(sWS, 4), s(sTmp), (st & 1) * 1024)
    stamp("c_ep")
    p3_pre()
    e("s_mov_b32 %s, 0", s(sNU))
    e("s_branch L_p3c")


def p1_dft():
    njb = 5
    vXA, vCA, FR, ACC, FC, CO, SI = 8, 12, 16, 80, 208, 176, 192
    tab_srd()
    e("v_lshlrev_b32 v13, 4, v0")
    e("s_mul_i32 %s, %s, %d", s(sBoff), s(sCG), 20 * 5 * 1024)
    e("s_mul_i32 %s, %s, %d", s(sM0), s(sW), 5 * 1024)
    e("s_add_u32 %s, %s, %s", s(sBoff), s(sBoff), s(sM0))
    e("s_lshl_b32 %s, %s, 2", s(sWM), s(sM0))
    cur = [0]

    def cl(i):
        ops = []
        for tl in range(njb):
            def f(tl=tl):
                e("s_add_u32 m0, %s, %d", s(sM0 if CSTR[i] == 5120 else sWM), CBASE[i] + tl * 1024)
                e("s_add_u32 %s, %s, %d", s(sTmp), s(sBoff), i * 4 * njb * 1024 + tl * 1024)
                e("buffer_load_dwordx4 v13, %s, %s offen lds", s(sTAB, 4), s(sTmp))
            ops.append(f)
        return ops
    q = VQ()
    XC = [224, 240, 160, 208, 224]
    NC = 4 - NL

    def xc(i):
        gs = []
        for n in range(NL, 4):
            for hf in range(2):
                def f(n=n, hf=hf):
                    e("s_add_u32 %s, %s, %d", s(sTmp), s(sAoff), n * 8 * 81920 + i * 128)
                    e("buffer_load_dwordx4 %s, v14, %s, %s offen offset:%d", v(XC[i] + (n - NL) * 8 + hf * 4, 4), s(sX, 4), s(sTmp), hf * 640)
                gs.append(cap(f))
        q.issue("x%d" % i, 2 * NC)
        return gs

    def cg(i):
        q.issue("c%d" % i, njb)
        return [cap(f) for f in cl(i)]

    def foldc(i):
        for n in range(NL, 4):
            fold_group(XC[i] + (n - NL) * 8, 64, 72, (1, 2)[n & 1], (1 - (i & 1)) * 5120 + n * 1024)
    if XO == 1:
        weave([], cg(0))
    fold_addr(14, 1, 3)
    x_src_scalar()
    e("s_waitcnt lgkmcnt(0)")
    srd(A, *SRDS["X"])
    weave([], xc(0) + (cg(0) if XO == 0 else []) + xc(1))
    e("s_mul_i32 %s, %s, %d", s(sTmp), s(sW), CPS)
    e("s_add_u32 %s, %s, %d", s(sTmp), s(sTmp), XB + 5120)
    e("v_and_b32 v5, 31, v0")
    e("v_lshlrev_b32 v5, 7, v5")
    e("v_add_u32 v5, %s, v5", s(sTmp))
    e("v_lshrrev_b32 v6, 5, v0")
    e("v_bfe_u32 v7, v0, 1, 3")
    e("v_xor_b32 v6, v6, v7")
    e("v_lshl_add_u32 %s, v6, 4, v5", v(vXA))
    for t in range(1, 4):
        e("v_xor_b32 %s, %d, %s", v(vXA + t), t << 5, v(vXA))
    e("v_mov_b32 %s, v13", v(vCA))
    e("v_add_u32 v3, %d, v13", CP0 + 3 * CPS)
    karg_wait([], ["WS", "OUT"])
    p3c_setup()
    e("s_cmp_ge_u32 %s, 2", s(sCG))
    e("s_cselect_b32 %s, -1.0, 1.0", s(sSgn))
    e("v_mov_b32 v72, 0xffff0000")
    e("s_lshl_b32 %s, %s, 2", s(sS2), s(sRB))
    e("s_add_u32 %s, %s, %s", s(sS2), s(sS2), s(sW))
    e("v_and_b32 v5, 31, v0")
    e("v_lshrrev_b32 v6, 5, v0")
    e("v_lshlrev_b32 v6, 8, v6")
    e("v_add_u32 v6, %s, v6", s(sS2))
    e("v_mul_u32_u24 v6, v6, v5")

    def consts():
        for kap in range(2):
            for i in range(8):
                s0 = 16 * kap + 8 * (i >> 2) + (i & 3)
                e("v_mul_u32_u24 v7, %d, v5", 64 * s0)
                e("v_add_u32 v7, v7, v6")
                e("v_and_b32 v7, 0x7ff, v7")
                e("v_cvt_f32_u32 v7, v7")
                e("v_mul_f32 v7, 0x3a000000, v7")
                e("v_cos_f32 %s, v7", v(CO + 8 * kap + i))
                e("v_sin_f32 %s, v7", v(SI + 8 * kap + i))
    if CX == 0:
        weave(cap(consts), cg(1) + xc(2) + cg(2) + xc(3) + cg(3), skip=10)
        q.wait("x0")
        weave(cap(lambda: foldc(0)), cg(4))
        weave([], xc(4))
        late = {}
    elif CX == 1:
        weave(cap(consts), cg(1) + xc(2) + cg(2), skip=40)
        q.wait("x0")
        weave(cap(lambda: foldc(0)), xc(3) + cg(3))
        late = {0: lambda: xc(4) + cg(4)}
    else:
        weave(cap(consts), cg(1) + xc(2), skip=60)
        q.wait("x0")
        weave(cap(lambda: foldc(0)), cg(2))
        late = {0: lambda: xc(3) + cg(3), 1: lambda: xc(4) + cg(4)}
    stamp("c_set")

    def xf(p): return FR + p * 24
    def cf(p, tl): return FR + p * 24 + 4 + 4 * tl

    def reads(p, t):
        ops = [lambda: e("ds_read_b128 %s, %s", v(xf(p), 4), v(vXA + t))]
        for tl in range(njb):
            if t == 3 and CSTR[cur[0]] == CPS:
                ops.append(lambda tl=tl, o=CBASE[cur[0]] - CP0: e("ds_read_b128 %s, v3 offset:%d", v(cf(p, tl), 4), o + tl * 1024))
            else:
                ops.append(lambda tl=tl, st=CSTR[cur[0]]: e("ds_read_b128 %s, %s offset:%d", v(cf(p, tl), 4), v(vCA), t * st + tl * 1024))
        return ops

    def mfmas(p, first=False):
        return [(lambda tl=tl: e("v_mfma_f32_32x32x16_bf16 %s, %s, %s, %s", v(ACC + 16 * tl, 16), v(xf(p), 4), v(cf(p, tl), 4), "0" if first else v(ACC + 16 * tl, 16))) for tl in range(njb)]

    def vmc(tag):
        last = max([i for i, x in enumerate(q.q) if x == tag], default=-1)
        if last < 0:
            return None
        n = len(q.q) - 1 - last
        q.q = q.q[last + 1:]
        return n

    def fills(i):
        cur[0] = i
        if i == 4:
            return []
        w = cap(lambda: q.wait("x%d" % (i + 1))) if NC else []
        mem = late[i]() if i in late else []
        work = [[ln] for ln in cap(lambda: foldc(i + 1))]
        out, k = [w], 0
        for n, g in enumerate(work):
            out.append(g)
            if n % 5 == 4 and k < len(mem):
                out.append(mem[k]); k += 1
        return out + mem[k:]

    def advf(i):
        for t in range(4):
            e("v_add_u32 %s, %d, %s", v(vXA + t), (5120 if i & 1 else -5120) & 0xffffffff, v(vXA + t))
        e("v_add_u32 %s, %d, %s", v(vCA), (CBASE[i + 1] - CBASE[i]) & 0xffffffff, v(vCA))
    gemm_loop(5, 4, mfmas, reads, [2 + tl for tl in range(njb)], [vXA + i for i in range(5)], 0, 2, buf0=SLAB, advf=advf,
              unroll=[(vmc("c0"), [])] + [((lambda i=i: vmc("c%d" % i)), []) for i in range(1, 5)], fills=fills)

    RR, MM = 16, 32
    e("v_lshrrev_b32 v6, 5, v0")
    e("v_lshlrev_b32 v6, 4, v6")
    e("s_lshl_b32 %s, %s, 7", s(sTmp), s(sW))
    e("s_add_u32 %s, %s, %d", s(sTmp), s(sTmp), AUX)
    e("v_add_u32 v7, %s, v6", s(sTmp))
    for jj in range(4):
        e("ds_read_b128 %s, v7 offset:%d", v(RR + 4 * jj, 4), jj * 32)
    e("v_and_b32 v5, 15, v0")
    e("v_lshlrev_b32 v5, 6, v5")
    e("v_bfe_u32 v6, v0, 4, 1")
    e("v_lshl_add_u32 v5, v6, 5, v5")
    e("v_lshrrev_b32 v6, 5, v0")
    e("v_lshl_add_u32 v5, v6, 4, v5")
    e("s_and_b32 %s, %s, 1", s(sJB), s(sCG))
    e("s_mul_i32 %s, %s, 10", s(sJB), s(sJB))
    e("s_lshr_b32 %s, %s, 1", s(sTmp), s(sCG))
    e("s_add_u32 %s, %s, %s", s(sJB), s(sJB), s(sTmp))
    e("s_mul_i32 %s, %s, %d", s(sDelta), s(sS2), TSTR)
    e("s_lshl_b32 %s, %s, 11", s(sTmp), s(sJB))
    e("s_add_u32 %s, %s, %s", s(sDelta), s(sDelta), s(sTmp))
    e("s_add_u32 %s, %s, 0x%x", s(sDelta), s(sDelta), WS_T)
    e("s_lshl_b32 %s, %s, 4", s(sFlag), s(sCG))
    e("s_add_u32 %s, %s, %s", s(sFlag), s(sFlag), s(sRB))
    e("s_lshl_b32 %s, %s, 7", s(sFlag), s(sFlag))
    e("s_add_u32 %s, %s, 0x%x", s(sFlag), s(sFlag), WS_FT)
    e("v_bfe_u32 v6, v0, 3, 1")
    e("v_cmp_eq_u32 vcc, 0, v6")
    e("v_mov_b32 v6, 0")
    e("v_mov_b32 v13, 0x80008000")
    e("v_cndmask_b32 v6, v6, v13, vcc")
    DD, AF, AN = [224, 240], [48, 64], 32

    def epilogue(first):
        order = [1, 2, 3, 4, 0, 5] if first else [0, 1, 2, 3, 4]

        def pack(n):
            tl = order[n]
            if tl == 5:
                e("s_nop 1")
                return
            a0, af = ACC + 16 * tl, AF[n & 1]
            if first and tl == 0:
                for i in range(16):
                    e("v_fma_f32 %s, -%s, v7, %s", v(a0 + i), v(MM + i), v(a0 + i))
            for i in range(8):
                e("v_cvt_pk_bf16_f32 %s, %s, %s", v(af + i), v(a0 + 2 * i), v(a0 + 2 * i + 1))
            if first and tl == 0:
                for i in range(8):
                    e("v_and_b32_dpp %s, %s, v14 row_ror:8 row_mask:0xf bank_mask:0xf", v(AN + i), v(af + i))
                    e("v_and_b32 %s, v15, %s", v(AN + 8 + i), v(af + i))
                for i in range(8):
                    e("v_bfi_b32 %s, v15, 0, %s", v(af + i), v(af + i))
            for i in range(8):
                e("v_xor_b32_dpp %s, %s, v6 row_ror:8 row_mask:0xf bank_mask:0xf", v(af + 8 + i), v(af + i))

        def stage(n):
            d, af = DD[n & 1], AN if order[n] == 5 else AF[n & 1]
            for k in range(4):
                e("v_mfma_f32_32x32x16_bf16 %s, %s, %s, %s", v(d, 16), v(af + 4 * k, 4), v(FC + 4 * k, 4), v(d, 16) if k else "0")

        def finish(n):
            d = DD[n & 1]
            for i in range(8):
                e("v_cvt_pk_bf16_f32 %s, %s, %s", v(d + i), v(d + 2 * i), v(d + 2 * i + 1))
            e("s_add_u32 %s, %s, %d", s(sTmp), s(sDelta), 20 * 2048 if order[n] == 5 else order[n] * 4096)
            e("s_nop 0")
            for i in range(4):
                e("v_permlane16_swap_b32 %s, %s", v(d + i), v(d + 4 + i))
            for q in range(2):
                e("buffer_store_dwordx4 %s, v5, %s, %s offen offset:%d sc1", v(d + 4 * q, 4), s(sWS, 4), s(sTmp), q * 1024)
        if first:
            for jj in range(4):
                e("ds_read_b128 %s, v7 offset:%d", v(MM + 4 * jj, 4), 512 + jj * 32)
            e("v_and_b32 v15, 31, v0")
            e("v_cmp_eq_u32 vcc, 0, v15")
            e("v_cmp_eq_u32 s[4:5], 8, v15")
            e("v_mov_b32 v13, 0x44200000")
            e("v_cndmask_b32 v14, 0, -1, vcc")
            e("v_cndmask_b32 v15, 0, -1, s[4:5]")
        pack(0)
        e("s_waitcnt lgkmcnt(0)")
        if first:
            e("v_and_b32 v7, v13, v14")
        for i in range(0, 16, 2):
            e("v_pk_mul_f32 %s, %s, %s", v(CO + i, 2), v(CO + i, 2), v(RR + i, 2))
            e("v_pk_mul_f32 %s, %s, %s neg_lo:[1,0] neg_hi:[1,0]", v(SI + i, 2), v(SI + i, 2), v(RR + i, 2))
        for i in range(8):
            e("v_cvt_pk_bf16_f32 %s, %s, %s", v(FC + i), v(CO + 2 * i), v(CO + 2 * i + 1))
            e("v_cvt_pk_bf16_f32 %s, %s, %s", v(FC + 8 + i), v(SI + 2 * i), v(SI + 2 * i + 1))
        e("s_nop 1")
        stage(0)
        for n in range(len(order)):
            if n + 1 < len(order):
                pack(n + 1)
                stage(n + 1)
                if order[n + 1] == 5:
                    e("s_nop 7")
            else:
                e("s_nop 15")
            finish(n)
    e("s_cmp_eq_u32 %s, 0", s(sCG))
    e("s_cbranch_scc1 L_dft_e0")
    epilogue(False)
    e("s_branch L_dft_c")
    A.label("L_dft_e0")
    epilogue(True)


def mid_k1():
    e("s_and_b32 s3, s2, 7")
    e("s_lshl_b32 %s, s3, 2", s(sK1))
    e("s_bfe_u32 s3, s2, 0x20004")
    e("s_add_u32 %s, %s, s3", s(sK1), s(sK1))
    e("s_bfe_u32 s3, s2, 0x10003")


def mid():
    FC, PD = 64, 48
    XU, WY, DF = [128, 160], [192, 224], [16, 40]
    vL, vT, vWr, vUo, vP, vTG = 5, 6, 7, 10, 11, 15
    e("v_lshlrev_b32 %s, 4, v0", v(vL))
    e("v_and_b32 v9, 3, v0")
    e("v_add_u32 v13, %d, %s", FR_L, v(vL))
    for n in range(8):
        e("ds_read_b128 %s, v13 offset:%d", v(FC + 4 * n, 4), n * 1024)
    for i in range(32):
        e("v_mov_b32 %s, 0", v(WY[0] + i))
    e("v_and_b32 v8, 15, v0")
    e("v_lshrrev_b32 v12, 2, v0")
    e("v_lshlrev_b32 %s, 6, v12", v(vT))
    e("v_lshl_add_u32 %s, v9, 4, %s", v(vT), v(vT))
    e("v_add_u32 %s, %s, %s", v(vT), s(sM0), v(vT))
    e("v_and_b32 v13, 12, v12")
    e("v_bfe_u32 v14, v0, 3, 1")
    e("v_lshl_add_u32 v13, v14, 4, v13")
    e("v_bfe_u32 v14, v0, 2, 1")
    e("v_lshl_add_u32 v13, v14, 1, v13")
    e("v_mul_u32_u24 v12, %d, v13", TSTR)
    e("v_lshl_add_u32 %s, v9, 4, v12", v(vTG))
    e("v_lshrrev_b32 v9, 4, v0")
    e("v_lshlrev_b32 %s, 6, v8", v(vUo))
    e("v_lshl_add_u32 %s, v9, 4, %s", v(vUo), v(vUo))
    e("v_mul_u32_u24 v12, %d, v9", 4 * 336)
    e("v_lshl_add_u32 v12, v8, 2, v12")
    e("s_add_u32 %s, %s, %s", s(sTmp), s(sMW), s(sPar))
    e("v_add_u32 %s, %s, v12", v(vWr), s(sTmp))
    e("s_waitcnt vmcnt(0) lgkmcnt(0)")
    lab = A.newlabel("L_noft")
    e("s_cmp_lg_u32 %s, 3", s(sWN))
    e("s_cbranch_scc1 %s", lab)
    poll_check(PD, 1, vP, WS_FT)
    A.label(lab)
    e("s_barrier")
    stamp("m_B")
    e("s_lshl_b32 %s, %s, 5", s(sCnt), s(sJB))
    e("s_add_u32 %s, %s, %s", s(sCnt), s(sCnt), s(sK1))
    e("s_lshl_b32 %s, %s, 6", s(sCnt), s(sCnt))
    e("s_mul_i32 %s, %s, %d", s(sDelta), s(sK1), USTR)
    e("s_lshl_b32 %s, %s, 12", s(sTmp), s(sJB))
    e("s_add_u32 %s, %s, %s", s(sDelta), s(sDelta), s(sTmp))
    e("s_add_u32 %s, %s, 0x%x", s(sDelta), s(sDelta), WS_U)

    def gather(un):
        for n in range(4):
            e("s_add_u32 m0, %s, %d", s(sLB2 if un else sM0), n * 1024)
            e("s_add_u32 %s, %s, %d", s(sTmp), s(sCnt), WS_T + un * 2048 + (32 * (n & 1) + (n >> 1)) * TSTR)
            e("buffer_load_dwordx4 %s, %s, %s offen sc1 lds", v(vTG), s(sWS, 4), s(sTmp))

    def gathered():
        if EST == 3:
            e("v_mov_b32 v12, %d", LGO)
            e("v_mov_b32 v13, 1")
            e("s_mov_b64 exec, 1")
            e("ds_add_u32 v12, v13 offset:8")
            e("s_mov_b64 exec, -1")

    def F(ri, t, par): return FC + ((ri * 2 + t) * 2 + par) * 4

    def R(u):
        for ri in range(2):
            for kap in range(2):
                for rd in range(2):
                    e("ds_read_b64_tr_b16 %s, %s offset:%d", v(DF[u] + 8 * ri + 4 * kap + 2 * rd, 2), v(14 if u else vT), kap * 2048 + rd * 1024 + ri * 8)

    def N(u):
        for i in range(8):
            e("v_xor_b32 %s, 0x80008000, %s", v(DF[u] + 16 + i), v(DF[u] + 8 + i))

    def WR(u):
        for mt in range(4):
            for i in range(4):
                for arr in range(2):
                    e("ds_read_u16_d16_hi %s, %s offset:%d", v(WY[u] + arr * 16 + 4 * mt + i), v(vWr), arr * MWA + (16 * mt + i) * 336 + 2 * u)

    def SA(u):
        Tre, Tim, Tni = DF[u], DF[u] + 8, DF[u] + 16
        for t in range(2):
            for step in range(2):
                for par in range(2):
                    xr, xi = XU[u] + 4 * (t + 2 * par), XU[u] + 16 + 4 * (t + 2 * par)
                    if step == 0:
                        mm16(xr, F(0, t, par), Tre + 4 * par, True)
                        mm16(xi, F(1, t, par), Tre + 4 * par, True)
                    else:
                        mm16(xr, F(1, t, par), Tni + 4 * par)
                        mm16(xi, F(0, t, par), Tim + 4 * par)

    def BF(u):
        for t in range(2):
            for b in (XU[u] + 4 * t, XU[u] + 4 * t + 2, XU[u] + 16 + 4 * t, XU[u] + 18 + 4 * t):
                e("v_pk_add_f32 %s, %s, %s", v(b, 2), v(b, 2), v(b + 8, 2))
            for b in (XU[u] + 4 * t, XU[u] + 4 * t + 2, XU[u] + 16 + 4 * t, XU[u] + 18 + 4 * t):
                e("v_pk_fma_f32 %s, %s, 2.0, %s op_sel_hi:[1,0,1] neg_lo:[1,0,0] neg_hi:[1,0,0]", v(b + 8, 2), v(b + 8, 2), v(b, 2))

    def YP(u):
        BF(u)
        for n in range(0, 16, 4):
            for k in (0, 2):
                e("v_pk_mul_f32 %s, %s, %s", v(8 if k else 12, 2), v(XU[u] + 16 + n + k, 2), v(WY[u] + 16 + n + k, 2))
            for k in (0, 2):
                e("v_pk_mul_f32 %s, %s, %s", v(WY[u] + 16 + n + k, 2), v(XU[u] + n + k, 2), v(WY[u] + 16 + n + k, 2))
            for k in (0, 2):
                e("v_pk_fma_f32 %s, %s, %s, %s", v(WY[u] + 16 + n + k, 2), v(XU[u] + 16 + n + k, 2), v(WY[u] + n + k, 2), v(WY[u] + 16 + n + k, 2))
            for k in (0, 2):
                e("v_pk_fma_f32 %s, %s, %s, %s neg_lo:[0,0,1] neg_hi:[0,0,1]", v(WY[u] + n + k, 2), v(XU[u] + n + k, 2), v(WY[u] + n + k, 2), v(8 if k else 12, 2))

    def CV(u):
        for mt in range(4):
            for par in range(2):
                w_r, w_i = WY[u] + 4 * mt + par, WY[u] + 16 + 4 * mt + par
                e("v_cvt_pk_bf16_f32 %s, %s, %s", v(DF[u] + 8 + 4 * par + mt), v(w_i), v(w_i + 2))
                e("v_cvt_pk_bf16_f32 %s, %s, %s", v(DF[u] + 4 * par + mt), v(w_r), v(w_r + 2))
            for par in range(2):
                e("v_xor_b32 %s, 0x80008000, %s", v(DF[u] + 16 + 4 * par + mt), v(DF[u] + 4 * par + mt))

    def SB(u):
        Yre, Yim, Ynr = DF[u], DF[u] + 8, DF[u] + 16
        for t in range(2):
            for step in range(2):
                for par in range(2):
                    ur, ui = XU[u] + 4 * (t + 2 * par), XU[u] + 16 + 4 * (t + 2 * par)
                    if step == 0:
                        mm16(ur, Yre + 4 * par, F(0, t, par), True)
                        mm16(ui, Yim + 4 * par, F(0, t, par), True)
                    else:
                        mm16(ur, Yim + 4 * par, F(1, t, par))
                        mm16(ui, Ynr + 4 * par, F(1, t, par))

    def O(u):
        if u:
            e("s_add_u32 %s, %s, 4096", s(sDelta), s(sDelta))
        for nt in range(4):
            ur, ui = XU[u] + 4 * nt, XU[u] + 16 + 4 * nt
            e("v_cvt_pk_bf16_f32 %s, %s, %s", v(ur), v(ur), v(ur + 1))
            e("v_cvt_pk_bf16_f32 %s, %s, %s", v(ur + 1), v(ur + 2), v(ur + 3))
            e("v_cvt_pk_bf16_f32 %s, %s, %s", v(ur + 2), v(ui), v(ui + 1))
            e("v_cvt_pk_bf16_f32 %s, %s, %s", v(ur + 3), v(ui + 2), v(ui + 3))
            e("buffer_store_dwordx4 %s, %s, %s, %s offen offset:%d sc1", v(ur, 4), v(vUo), s(sWS, 4), s(sDelta), nt * 1024)

    def lines(*fs):
        return [[ln] for f in fs for ln in cap(f)]

    def mix(a_, b_):
        out = []
        for i in range(max(len(a_), len(b_))):
            out += a_[i:i + 1] + b_[i:i + 1]
        return out
    one, done = A.newlabel("L_one"), A.newlabel("L_midd")
    gather(0)
    e("s_cmp_eq_u32 %s, 1", s(sNU))
    e("s_cbranch_scc1 %s", one)
    gather(1)
    gathered()
    for i in range(32):
        e("v_mov_b32 %s, 0", v(WY[1] + i))
    e("s_sub_u32 %s, %s, %s", s(sTmp), s(sLB2), s(sM0))
    e("v_add_u32 v14, %s, %s", s(sTmp), v(vT))
    if MWE:
        WR(0)
        WR(1)
    e("s_waitcnt vmcnt(4)")
    stamp("m_T")
    R(0)
    if not MWE:
        WR(0)
    e("s_waitcnt lgkmcnt(%d)", 0 if MWE else 15)
    if not MWE:
        e("s_waitcnt vmcnt(0)")
    N(0)
    if MWE:
        e("s_waitcnt vmcnt(0)")
    w1 = lines(lambda: WR(1)) if not MWE else []
    weave(cap(lambda: SA(0)), lines(lambda: R(1)) + w1[:24], skip=1)
    e("s_waitcnt lgkmcnt(%d)", 0 if MWE else 15)
    N(1)
    YP(0)
    weave(cap(lambda: SA(1)), mix(lines(lambda: CV(0)), w1[24:]), skip=1)
    e("s_waitcnt lgkmcnt(0)")
    e("s_nop 6")
    stamp("m_u1")
    if EH:
        poll_issue(4, 1, 3, WS_FH)
    YP(1)
    weave(cap(lambda: SB(0)), lines(lambda: CV(1)), skip=1)
    e("s_nop 6")
    BF(0)
    weave(cap(lambda: SB(1)), lines(lambda: O(0)), skip=1)
    e("s_nop 7")
    BF(1)
    O(1)
    e("s_branch %s", done)
    A.label(one)
    gathered()
    if MWE:
        WR(0)
    e("s_waitcnt vmcnt(0)")
    stamp("m_T")
    R(0)
    if not MWE:
        WR(0)
    e("s_waitcnt lgkmcnt(%d)", 0 if MWE else 15)
    N(0)
    e("s_nop 0")
    SA(0)
    e("s_waitcnt lgkmcnt(0)")
    e("s_nop 6")
    YP(0)
    CV(0)
    e("s_nop 1")
    SB(0)
    e("s_nop 7")
    BF(0)
    O(0)
    A.label(done)


hdr = open("cdna_kernels/%s.s.ref" % NAME).read().split("; Override launch")[0]
A(hdr.rstrip())
A("; @launch grid=(256,1,1) block=(512,1,1) lds=%d" % LDS_ALL)
A('.amdgcn_target "amdgcn-amd-amdhsa--gfx950"')
KN = NAME + "_kernel"
kernel_header(A, KN)
stamp("start")
if STAMPS:
    for i in range(1, 9):
        e("s_mov_b32 %s, 0", s(84 + 2 * i))
e("s_cmp_ge_u32 s2, 256")
e("s_cbranch_scc1 L_end")
e("s_load_dwordx16 %s, s[0:1], 0", s(P, 16))
e("s_load_dwordx4 %s, s[0:1], 64", s(P + 16, 4))
e("v_lshrrev_b32 v1, 6, v0")
e("v_and_b32 v0, 63, v0")
e("v_readfirstlane_b32 %s, v1", s(sW))
if CT == 3:
    e("s_cmp_lg_u32 %s, 0", s(sW))
    e("s_cbranch_scc1 L_noct")
    code_touch()
    A.label("L_noct")
e("s_and_b32 s3, s2, 1")
e("s_lshl_b32 %s, s3, 3", s(sRB))
e("s_bfe_u32 s3, s2, 0x30003")
e("s_add_u32 %s, %s, s3", s(sRB), s(sRB))
e("s_lshr_b32 %s, s2, 6", s(sTmp2))
e("s_bfe_u32 s3, s2, 0x20001")
e("s_mul_i32 %s, s3, 3", s(sCG))
e("s_add_u32 %s, %s, %s", s(sCG), s(sCG), s(sTmp2))
e("s_and_b32 %s, %s, 3", s(sLW), s(sW))
e("s_cmp_eq_u32 %s, 3", s(sTmp2))
e("s_cbranch_scc1 L_dft")
e("s_cmp_ge_u32 %s, 4", s(sW))
e("s_cbranch_scc0 L_ffn_c")
ffn_loader()
A.label("L_ffn_c")
p1_ffn()
A.label("L_dft")
if opt("nodft", 0):
    e("s_endpgm")
e("s_mov_b32 %s, s3", s(sCG))
e("s_cmp_ge_u32 %s, 4", s(sW))
e("s_cbranch_scc0 L_dftc")
dft_loader()
A.label("L_dftc")
p1_dft()
A.label("L_dft_c")
stamp("dc_ep")
e("s_waitcnt vmcnt(0)")
stamp("dc_st")
e("v_mov_b32 v12, %d", LGO)
e("v_mov_b32 v13, 1")
e("s_mov_b64 exec, 1")
e("ds_add_rtn_u32 v13, v12, v13 offset:4")
e("s_mov_b64 exec, -1")
e("v_lshlrev_b32 v11, 7, v0")
e("s_waitcnt lgkmcnt(0)")
e("v_readfirstlane_b32 %s, v13", s(sWN))
e("s_cmp_lg_u32 %s, 3", s(sWN))
e("s_cbranch_scc1 L_noft")
flag_store(sFlag, 12, 13)
poll_issue(48, 1, 11, WS_FT)
if EST == 4:
    e("v_mov_b32 v12, %d", LGO)
    e("v_mov_b32 v13, 1")
    e("ds_write_b32 v12, v13 offset:12")
A.label("L_noft")
if EH:
    fh_addr()
mid_k1()
wspec_shift(sMW)
e("s_lshl_b32 %s, %s, 6", s(sTmp), s(sW))
e("s_add_u32 %s, %s, %s", s(sMW), s(sMW), s(sTmp))
e("s_add_u32 %s, %s, %d", s(sMW), s(sMW), MW0)
e("s_mul_i32 s3, s3, 5")
e("s_add_u32 s3, s3, %s", s(sW))
e("s_lshl_b32 %s, s3, 1", s(sJB))
e("s_mov_b32 %s, 0", s(sPar))
e("s_mov_b32 %s, 2", s(sNU))
e("s_lshl_b32 %s, %s, 12", s(sM0), s(sW))
e("s_add_u32 %s, %s, %d", s(sM0), s(sM0), MT0)
e("s_mul_i32 %s, %s, %d", s(sLB2), s(sW), CPS)
e("s_add_u32 %s, %s, %d", s(sLB2), s(sLB2), CP0 + 15360)
e("s_branch L_mid")

A.label("L_dft_l")
e("s_mov_b32 %s, 0", s(sWN))
e("v_lshlrev_b32 v11, 7, v0")
mid_k1()
e("s_add_u32 %s, s3, 2", s(sTmp))
e("s_cmp_ge_u32 %s, %s", s(sLW), s(sTmp))
e("s_cbranch_scc1 L_dft_l3")
wspec_shift(sMW)
e("s_add_u32 %s, %s, %d", s(sMW), s(sMW), MW0 + 256)
e("s_mul_i32 s3, s3, 10")
e("s_add_u32 s3, s3, 8")
e("s_add_u32 %s, s3, %s", s(sJB), s(sLW))
e("s_lshl_b32 %s, %s, 1", s(sPar), s(sLW))
e("s_cmp_eq_u32 %s, 2", s(sLW))
e("s_cselect_b32 %s, 64, %s", s(sPar), s(sPar))
e("s_mov_b32 %s, 1", s(sNU))
e("s_lshl_b32 %s, %s, 12", s(sM0), s(sLW))
e("s_add_u32 %s, %s, %d", s(sM0), s(sM0), FI_L)
A.label("L_mid")
mid()
stamp("m_end")
e("s_cmp_ge_u32 %s, 4", s(sW))
e("s_cbranch_scc1 L_dft_l2")
p3_pre()
if EH:
    e("s_waitcnt vmcnt(8)")
    e("v_cmp_ne_u32 vcc, %s, v4", s(sTAG))
    e("s_cbranch_vccnz L_eh0")
    for i in range(EH):
        hload_(i)
    e("s_mov_b32 %s, 2", s(sNU))
    e("s_waitcnt vmcnt(%d)", 4 * EH)
    e("s_branch L_eh1")
    A.label("L_eh0")
e("s_mov_b32 %s, 0", s(sNU))
if EFH:
    if not EH:
        fh_addr()
    poll_issue(7, 1, 3, WS_FH)
e("s_waitcnt vmcnt(0)")
A.label("L_eh1")
stamp("m_st")
e("s_barrier")
e("s_cmp_lg_u32 %s, 0", s(sW))
e("s_cbranch_scc1 L_nofu")
e("s_lshl_b32 %s, s2, 7", s(sFlag))
e("s_add_u32 %s, %s, %d", s(sFlag), s(sFlag), WS_FU - 192 * 128)
flag_store(sFlag, 12, 13)
A.label("L_nofu")
A.label("L_p3c")
p3c()
e("s_branch L_fin")

A.label("L_dft_l3")
e("v_lshlrev_b32 v5, 4, v0")
if EST:
    if ECI and EST < 3:
        z_ci_sub(CI_LATE)
    e("s_waitcnt vmcnt(0)")
    if EST >= 3:
        poll_check(41, 1, 10, WS_FW)
    if EST == 4:
        e("s_cmp_lg_u32 %s, 3", s(sLW))
        e("s_cbranch_scc1 L_dft_l7")
        e("v_mov_b32 v12, %d", LGO)
        A.label("L_dft_l8")
        e("ds_read_b32 v13, v12 offset:12")
        e("s_waitcnt lgkmcnt(0)")
        e("v_cmp_ne_u32 vcc, 1, v13")
        e("s_cbranch_vccnz L_dft_l8")
        stage_all()
        stamp("dl_st")
        A.label("L_dft_l7")
    e("s_barrier")
    if EST == 4:
        e("s_waitcnt vmcnt(0)")
    if EST == 3:
        e("s_cmp_lg_u32 %s, 3", s(sLW))
        e("s_cbranch_scc1 L_dft_l7")
        e("v_mov_b32 v12, %d", LGO)
        e("s_add_u32 s3, s3, 6")
        A.label("L_dft_l8")
        e("ds_read_b32 v13, v12 offset:8")
        e("s_waitcnt lgkmcnt(0)")
        e("v_cmp_ne_u32 vcc, s3, v13")
        e("s_cbranch_vccnz L_dft_l8")
        stage_all()
        e("s_waitcnt vmcnt(0)")
        stamp("dl_st")
        A.label("L_dft_l7")
    e("s_barrier")
    stage_wd(3, 4)
    if ECI:
        stage_done(0)
        e("v_lshlrev_b32 v11, 7, v0")
        e("s_branch L_dft_l6")
    else:
        e("s_branch L_dft_l5")
    A.label("L_dft_l2")
    e("s_waitcnt vmcnt(0)")
    e("s_barrier")
    stage_wd(3, 4)
    A.label("L_dft_l5")
    fu_poll_issue()
    z_ci_sub(CI_LATE if ECI else range(18))
    stage_done(len(CI_LATE) if ECI else 18)
    A.label("L_dft_l6")
else:
    e("s_waitcnt vmcnt(0)")
    e("s_barrier")
    e("s_branch L_dft_l4")
    A.label("L_dft_l2")
    stage_wd(0, 3)
    e("s_waitcnt vmcnt(15)")
    e("s_barrier")
    e("s_branch L_dft_l5")
    A.label("L_dft_l4")
    e("s_barrier")
    stage_wd(0, 3)
    A.label("L_dft_l5")
    stage_wd(3, 4)
    fu_poll_issue()
    z_ci_sub(CI_LATE if ECI else range(18))
    stage_done(len(CI_LATE) if ECI else 18)
A.label("L_zpart")
zpart()
A.label("L_fin")
if STAMPS and "--dbg" not in sys.argv:
    stamp("issued_out")
    e("s_waitcnt vmcnt(0)")
    e("%s s[100:101]", "s_memtime" if "--cyc" in sys.argv else "s_memrealtime")
    e("s_waitcnt lgkmcnt(0)")
    for i in range(9):
        e("v_mov_b32 %s, %s", v(16 + i), s(84 + 2 * i))
    e("s_lshl_b32 s3, s2, 3")
    e("s_add_u32 s3, s3, %s", s(sW))
    e("s_lshl_b32 s3, s3, 6")
    e("s_add_u32 s3, s3, 0x%x", WS_STAMP)
    e("v_mov_b32 v5, 0")
    for i in range(3):
        e("buffer_store_dwordx4 %s, v5, %s, s3 offen offset:%d", v(16 + 4 * i, 4), s(sWS, 4), 16 * i)
if "--dbg" in sys.argv:
    e("s_load_dwordx2 s[4:5], s[0:1], 64")
    e("s_waitcnt vmcnt(0) lgkmcnt(0)")
    e("s_memrealtime s[100:101]")
    srd(A, 8, 4, 256)
    e("s_waitcnt lgkmcnt(0)")
    e("s_mov_b64 exec, 1")
    e("s_not_b32 s84, s84")
    e("s_cmp_ge_u32 s2, 192")
    e("s_cselect_b32 s3, 32, 0")
    for i in range(8):
        k = [0, 8, 1, 2, 3, 4, 5, 6][i]
        e("v_mov_b32 v16, %s", s(84 + 2 * k))
        e("v_mov_b32 v17, %d", 4 * i)
        e("buffer_atomic_umax v16, v17, s[8:11], s3 offen sc1")
A.label("L_end")
e("s_endpgm")
flush_cold()
A.label("L_code_end")

kernel_desc(A, KN, 256, accum=256)
TB.emit_tables(A)
out = [x for x in sys.argv[1:] if not x.startswith("--")]
open(out[0] if out else "v26.s", "w").write(A.text())
```

```python
import sys
from asmlib import *
import tables19 as TB

NAME = "parallel_sum__spectral_gfnet__glu_gated_reglu__prompt"
A = Asm()
e = A.e


def opt(name, default):
    for x in sys.argv:
        if x.startswith("--%s=" % name):
            return int(x.split("=")[1])
    return default


STAMPS = "--stamps" in sys.argv
SLEEP = opt("sleep", 4)
ROTA, ROTB = opt("rota", 1), opt("rotb", 3)
CIP1 = opt("cip1", 0)
DROT = opt("drot", 0)
WSP = opt("wsp", 2)
PRL = opt("prl", 0)
WARM = opt("warm", 0)
FOLD = opt("fold", 1)
POLL1 = opt("poll1", 0)
CIL = opt("cil", 1)
STG = opt("stg", 1)
ZPR = opt("zpr", 3)
MPR = opt("mpr", 0)
CT = opt("ct", 3)
DS = opt("ds", 1)
PPT, PPG, OWN = opt("ppt", 4), opt("ppg", 2), opt("own", 1)
EPR, ZGL, EPI = opt("epr", 0), opt("zgl", 0), opt("epi", 1)
XQ = opt("xq", 1)
TP = opt("tp", 3)
ZIL, ZSK, FIL = opt("zil", 1), opt("zsk", 1), opt("fil", 1)
MAP8, PF3, PFP = opt("map8", 0), opt("pf3", 3), opt("pfp", 1)
R3A, R3B, RZ = opt("r3a", 0), opt("r3b", 0), opt("rz", 0)
OUTF = ["", " sc1", " nt", " sc0 sc1"][opt("outf", 0)]
NFIX = opt("nfix", 0)

WS_EP = 0x0000
WS_FS = 0x1000
WS_FSC = WS_FS + 128 * 128
WS_FT = 0xC000
WS_FU = 0xE000
WS_FH = 0x10000
WS_FW = 0x50000
WS_STAT = 0x28000
WS_CSP = 0x30000
WS_H = 0x60000
WS_T = 0x660000
TSTR, USTR = 43008 + opt("tpad", 128), 86016 + opt("upad", 128)
WS_U = 0x910000
WS_WD = 0xBC0000
WS_STAMP = 0x2000000

SLAB = 49152
AUX = 3 * SLAB
ZU0, ZUS = 0, 16384
CP0, CPS = 65536, 20480
LGO = AUX + 2048
XB = CP0 + 10240
CBASE, CSTR = [0, 20480, CP0, CP0 + 5120, 45056], [5120, 5120, CPS, CPS, 5120]
FR_L, FI_L = AUX + 2048 + 128, AUX + 2048 + 128
MW0, MWA = 0, 22272
MT0 = 45056
RPK = FI_L
LDS_ALL = FI_L + 12288

sX, sG, sU, sWS, sTAB, sWR, sWI, sWD, sOUT = 8, 12, 16, 20, 24, 28, 32, 36, 40
sW, sRB, sCG, sLW = 44, 45, 46, 47
sTmp, sTmp2, sCnt, sDelta, sBuf, sSLAB = 48, 49, 50, 51, 52, 53
sAoff, sBoff, sM0 = 54, 55, 56
sWM, sWN, sFlag = 57, 58, 59
sK1, sJB, sTAG, sSpin = 60, 61, 62, 63
P = 64
sP, sG3, sHo, sWo, sUo, sCo, sLB, sLB2, sOo, sOc, sOOB = 64, 65, 66, 67, 68, 69, 70, 71, 72, 73, 74
sSgn, sS2, sNU, sWcol, sPar = 76, 78, 79, 80, 81
sWa, sWb, sWc, sMW = 6, 7, 75, 80
sTB = 55
sR3, sRZ, sI4 = 82, 83, 67
SRDS = {"X": (sX, P, 2048 * 1280), "WR": (sWR, P + 2, 2048 * 642), "WI": (sWI, P + 4, 2048 * 642),
        "G": (sG, P + 8, 640 * 3072), "U": (sU, P + 10, 640 * 3072), "WD": (sWD, P + 12, 1536 * 1280),
        "OUT": (sOUT, P + 14, 2048 * 1280), "WS": (sWS, P + 18, 1 << 28)}


class VQ:
    def __init__(self):
        self.q = []
    def issue(self, tag, n=1):
        self.q += [tag] * n
    def wait(self, *tags, extra=""):
        last = max([i for i, t in enumerate(self.q) if t in tags], default=-1)
        n = len(self.q) - 1 - last
        assert n <= 63, n
        e("s_waitcnt vmcnt(%d)%s", n, extra)
        self.q = self.q[last + 1:]
    def drain(self):
        self.q = []


STN = {}
for x in sys.argv:
    if x.startswith("--st="):
        for i_, grp in enumerate(x[5:].split(",")):
            for nm in grp.split("+"):
                STN[nm] = i_ + 1
STN["start"] = 0


def cap(fn):
    keep, A.lines = A.lines, []
    fn()
    out, A.lines = A.lines, keep
    return out


def weave(main, groups, skip=0):
    n = len(groups)
    step = (len(main) - skip) / (n + 0.001) if n else 0
    k = 0
    for i, ln in enumerate(main):
        while k < n and i >= skip + k * step:
            A.lines += groups[k]
            k += 1
        A.lines.append(ln)
    while k < n:
        A.lines += groups[k]
        k += 1


COLD = []


def rare(cond, fn):
    la, lb = A.newlabel("L_rare"), A.newlabel("L_back")
    e("%s %s", cond, la)
    A.label(lb)
    body = cap(fn)
    COLD.append(["%s:" % la] + body + ["    s_branch %s" % lb])


def flush_cold():
    while COLD:
        A.lines += COLD.pop(0)


def stamp(nm):
    if STAMPS and nm in STN:
        e("%s %s", "s_memtime" if "--cyc" in sys.argv else "s_memrealtime", s(84 + 2 * STN[nm], 2))


def make_tag():
    e("s_mul_i32 %s, %s, 0x9E3779B1", s(sTAG), s(sTAG))
    e("s_add_u32 %s, %s, 0x7F4A7C15", s(sTAG), s(sTAG))


def flag_store(soff, t0, t1):
    e("v_mov_b32 %s, %s", v(t0), s(sTAG))
    e("v_mov_b32 %s, 0", v(t1))
    e("s_mov_b64 exec, 1")
    e("buffer_store_dword %s, %s, %s, %s offen sc1", v(t0), v(t1), s(sWS, 4), s(soff))
    e("s_mov_b64 exec, -1")


def poll_issue(dst, n, vaddr, base):
    e("s_mov_b32 %s, 0x%x", s(sTmp), base)
    e("buffer_load_dword%s %s, %s, %s, %s offen sc1", "" if n == 1 else "x%d" % n, v(dst, n), v(vaddr), s(sWS, 4), s(sTmp))


def poll_check(dst, n, vaddr, base):
    assert n == 1

    def spin():
        top, done = A.newlabel("L_poll"), A.newlabel("L_polld")
        e("s_mov_b32 %s, 0", s(sSpin))
        A.label(top)
        if SLEEP:
            e("s_sleep %d", SLEEP)
        poll_issue(dst, n, vaddr, base)
        e("s_add_u32 %s, %s, 1", s(sSpin), s(sSpin))
        e("s_cmp_ge_u32 %s, %d", s(sSpin), opt("spin", 40000))
        e("s_waitcnt vmcnt(0)")
        e("s_cbranch_scc1 %s", done)
        e("v_cmp_ne_u32 vcc, %s, %s", s(sTAG), v(dst))
        e("s_cbranch_vccnz %s", top)
        A.label(done)
    e("v_cmp_ne_u32 vcc, %s, %s", s(sTAG), v(dst))
    rare("s_cbranch_vccnz", spin)


def poll_check_pipe(dst, depth, vaddr, base, gap):
    def spin():
        top, done = A.newlabel("L_pp"), A.newlabel("L_ppd")
        e("s_mov_b32 %s, 0", s(sSpin))
        for k in range(1, depth):
            poll_issue(dst + k, 1, vaddr, base)
            e("s_sleep %d", gap)
        A.label(top)
        for k in range(depth):
            poll_issue(dst + k, 1, vaddr, base)
            e("s_waitcnt vmcnt(%d)", depth - 1)
            e("v_cmp_ne_u32 vcc, %s, %s", s(sTAG), v(dst + (k + 1) % depth))
            e("s_cbranch_vccz %s", done)
            e("s_sleep %d", gap)
        e("s_add_u32 %s, %s, 1", s(sSpin), s(sSpin))
        e("s_cmp_lt_u32 %s, %d", s(sSpin), opt("spin", 40000))
        e("s_cbranch_scc1 %s", top)
        A.label(done)
    e("v_cmp_ne_u32 vcc, %s, %s", s(sTAG), v(dst))
    rare("s_cbranch_vccnz", spin)


def karg_wait(first, rest=()):
    e("s_waitcnt lgkmcnt(0)")
    for k in first:
        srd(A, *SRDS[k])
    e("s_load_dword %s, %s, 0x%x", s(sTAG), s(P + 18, 2), WS_EP)
    for k in rest:
        srd(A, *SRDS[k])


def tab_srd():
    e("s_getpc_b64 s[4:5]")
    e("s_add_u32 s4, s4, dft_tables@rel32@lo+4")
    e("s_addc_u32 s5, s5, dft_tables@rel32@hi+12")
    srd(A, sTAB, 4, TB.TAB_BYTES)


def dpp_sum16(r_):
    for ctl in ("quad_perm:[1,0,3,2]", "quad_perm:[2,3,0,1]", "row_half_mirror", "row_mirror"):
        e("s_nop 1")
        e("v_add_f32_dpp %s, %s, %s %s row_mask:0xf bank_mask:0xf", v(r_), v(r_), v(r_), ctl)


def round_bf16(r_):
    e("v_cvt_pk_bf16_f32 %s, %s, %s", v(r_), v(r_), v(r_))
    e("v_and_b32 %s, 0xffff0000, %s", v(r_), v(r_))


def mm16(d, a_, b_, first=False):
    e("v_mfma_f32_16x16x32_bf16 %s, %s, %s, %s", v(d, 4), v(a_, 4), v(b_, 4), "0" if first else v(d, 4))


def stats_addr(R):
    e("s_lshl_b32 %s, %s, 2", s(sTmp), s(sCG))
    e("s_add_u32 %s, %s, %s", s(sTmp), s(sTmp), s(sW))
    e("s_lshl_b32 %s, %s, 2", s(sTmp), s(sTmp))
    e("v_lshrrev_b32 %s, 4, v0", v(R + 20))
    e("v_add_u32 %s, %s, %s", v(R + 21), s(sTmp), v(R + 20))
    e("v_and_b32 %s, 31, %s", v(R + 20), v(R + 21))
    e("v_lshlrev_b32 %s, 6, %s", v(R + 20), v(R + 20))
    e("v_lshrrev_b32 %s, 5, %s", v(R + 22), v(R + 21))
    e("v_add_u32 %s, %s, %s", v(R + 20), v(R + 20), v(R + 22))
    e("s_lshl_b32 %s, %s, 2", s(sTmp), s(sRB))
    e("v_add_u32 %s, %s, %s", v(R + 20), s(sTmp), v(R + 20))
    e("v_mul_u32_u24 %s, 1280, %s", v(R + 20), v(R + 20))
    e("v_and_b32 %s, 15, v0", v(R + 22))
    e("v_lshl_add_u32 %s, %s, 4, %s", v(R + 20), v(R + 22), v(R + 20))


def stats_issue(R):
    for n in range(5):
        e("buffer_load_dwordx4 %s, %s, %s, 0 offen offset:%d", v(R + 4 * n, 4), v(R + 20), s(sX, 4), n * 256)


def stats_compute(R):
    F = R + 24
    S_, V_, T_ = R + 64, R + 66, R + 22
    for n in range(20):
        e("v_lshlrev_b32 %s, 16, %s", v(F + 2 * n), v(R + n))
        e("v_and_b32 %s, 0xffff0000, %s", v(F + 2 * n + 1), v(R + n))
    e("v_pk_add_f32 %s, %s, %s", v(S_, 2), v(F, 2), v(F + 2, 2))
    for n in range(2, 20):
        e("v_pk_add_f32 %s, %s, %s", v(S_, 2), v(S_, 2), v(F + 2 * n, 2))
    e("v_add_f32 %s, %s, %s", v(S_), v(S_), v(S_ + 1))
    dpp_sum16(S_)
    e("v_mul_f32 %s, 0x3acccccd, %s", v(S_), v(S_))
    for n in range(20):
        e("v_pk_add_f32 %s, %s, %s op_sel_hi:[1,0] neg_lo:[0,1] neg_hi:[0,1]", v(F + 2 * n, 2), v(F + 2 * n, 2), v(S_, 2))
    e("v_pk_mul_f32 %s, %s, %s", v(V_, 2), v(F, 2), v(F, 2))
    for n in range(1, 20):
        e("v_pk_fma_f32 %s, %s, %s, %s", v(V_, 2), v(F + 2 * n, 2), v(F + 2 * n, 2), v(V_, 2))
    e("v_add_f32 %s, %s, %s", v(V_), v(V_), v(V_ + 1))
    dpp_sum16(V_)
    e("v_mul_f32 %s, 0x3acccccd, %s", v(V_), v(V_))
    round_bf16(V_)
    e("v_add_f32 %s, 0x3727c5ac, %s", v(V_), v(V_))
    round_bf16(V_)
    e("v_sqrt_f32 %s, %s", v(V_), v(V_))
    e("s_nop 0")
    round_bf16(V_)
    e("v_rcp_f32 %s, %s", v(V_), v(V_))
    round_bf16(S_)
    e("v_and_b32 %s, 15, v0", v(T_))
    e("v_cmp_eq_u32 vcc, 1, %s", v(T_))
    e("v_lshlrev_b32 %s, 2, %s", v(R + 1), v(R + 21))
    e("v_lshl_add_u32 %s, %s, 9, %s", v(R + 1), v(T_), v(R + 1))
    e("v_cndmask_b32 %s, %s, %s, vcc", v(V_), v(V_), v(S_))
    e("v_cmp_gt_u32 vcc, 2, %s", v(T_))
    e("s_lshl_b32 %s, %s, 10", s(sTmp), s(sRB))
    e("s_add_u32 %s, %s, 0x%x", s(sTmp), s(sTmp), WS_STAT)
    e("s_and_saveexec_b64 s[4:5], vcc")
    e("buffer_store_dword %s, %s, %s, %s offen sc1", v(V_), v(R + 1), s(sWS, 4), s(sTmp))
    e("s_mov_b64 exec, s[4:5]")


def aux_poll_addr(ffn, dst):
    e("s_lshl_b32 %s, %s, 2", s(sTmp), s(sRB))
    e("s_add_u32 %s, %s, %s", s(sTmp), s(sTmp), s(sLW))
    e("s_lshl_b32 %s, %s, 1", s(sTmp), s(sTmp))
    e("v_and_b32 v6, 1, v0")
    e("v_add_u32 v6, %s, v6", s(sTmp))
    if ffn:
        e("s_and_b32 %s, s2, 0xc6", s(sTmp))
        e("s_add_u32 %s, %s, 128", s(sTmp), s(sTmp))
        e("v_and_b32 v7, 7, v0")
        e("v_bfe_u32 v12, v0, 3, 1")
        e("v_min_u32 v7, 4, v7")
        e("v_lshlrev_b32 v7, 3, v7")
        e("v_add3_u32 v7, v7, v12, %s", s(sTmp))
        e("v_cmp_gt_u32 vcc, 16, v0")
        e("s_nop 1")
        e("v_cndmask_b32 v6, v7, v6, vcc")
    e("v_lshlrev_b32 %s, 7, v6", v(dst))


def fw_poll_addr(dst):
    e("s_lshl_b32 %s, %s, 6", s(sTmp), s(sLW))
    e("v_add_u32 %s, %s, v0", v(dst), s(sTmp))
    e("v_min_u32 %s, 159, %s", v(dst), v(dst))
    e("v_lshlrev_b32 %s, 7, %s", v(dst), v(dst))


def aux_addr(ffn, R):
    e("v_and_b32 %s, 31, v0", v(R))
    e("v_lshrrev_b32 %s, 5, v0", v(R + 1))
    e("v_lshlrev_b32 %s, 2, %s", v(R), v(R))
    e("v_lshl_add_u32 %s, %s, 9, %s", v(R), v(R + 1), v(R))
    e("s_lshl_b32 %s, %s, 7", s(sTmp), s(sLW))
    e("v_add_u32 %s, %s, %s", v(R), s(sTmp), v(R))
    if ffn:
        e("v_lshrrev_b32 %s, 4, v0", v(R + 1))
        e("v_mul_u32_u24 %s, 12288, %s", v(R + 1), v(R + 1))
        e("v_and_b32 %s, 15, v0", v(R + 3))
        e("v_lshl_add_u32 %s, %s, 4, %s", v(R + 1), v(R + 3), v(R + 1))
        e("s_lshl_b32 %s, %s, 8", s(sTmp), s(sLW))
        e("s_lshl_b32 %s, %s, 10", s(sTmp2), s(sCG))
        e("s_add_u32 %s, %s, %s", s(sTmp), s(sTmp), s(sTmp2))
        e("v_add_u32 %s, %s, %s", v(R + 1), s(sTmp), v(R + 1))
        e("v_lshrrev_b32 %s, 5, v0", v(R + 16))
        e("v_lshl_add_u32 %s, %s, 29, %s", v(R + 16), v(R + 16), v(R + 1))


def aux_issue(ffn, R):
    e("s_lshl_b32 %s, %s, 10", s(sTmp), s(sRB))
    e("s_add_u32 %s, %s, 0x%x", s(sTmp), s(sTmp), WS_STAT)
    e("buffer_load_dword %s, %s, %s, %s offen sc1", v(R + 2), v(R), s(sWS, 4), s(sTmp))
    if ffn:
        for n in range(3):
            e("s_mov_b32 %s, 0x%x", s(sTmp), WS_CSP + n * 4 * 12288)
            e("buffer_load_dwordx4 %s, %s, %s, %s offen sc1", v(R + 4 + 4 * n, 4), v(R + 16 if n == 2 else R + 1), s(sWS, 4), s(sTmp))


def aux_finish(ffn, R):
    e("v_add_u32 %s, %d, %s", v(R), AUX, v(R))
    e("ds_write_b32 %s, %s", v(R), v(R + 2))
    if ffn:
        C_, T_ = R + 4, R + 8
        for n in range(1, 3):
            for k in (0, 2):
                e("v_pk_add_f32 %s, %s, %s", v(C_ + k, 2), v(C_ + k, 2), v(C_ + 4 * n + k, 2))
        for op in ("v_permlane16_swap_b32", "v_permlane32_swap_b32"):
            for i in range(4):
                e("v_mov_b32 %s, %s", v(T_ + i), v(C_ + i))
            e("s_nop 0")
            for i in range(4):
                e("%s %s, %s", op, v(C_ + i), v(T_ + i))
            e("s_nop 0")
            for i in range(4):
                e("v_add_f32 %s, %s, %s", v(C_ + i), v(C_ + i), v(T_ + i))
        e("s_lshl_b32 %s, %s, 8", s(sTmp), s(sLW))
        e("s_add_u32 %s, %s, %d", s(sTmp), s(sTmp), AUX + 1024)
        e("v_lshl_add_u32 %s, %s, 4, %s", v(R + 1), v(R + 3), s(sTmp))
        e("ds_write_b128 %s, %s", v(R + 1), v(C_, 4))
    e("s_waitcnt lgkmcnt(0)")


def p3_map():
    if MAP8:
        e("s_and_b32 %s, s2, 7", s(sP))
        e("s_lshl_b32 %s, %s, 2", s(sP), s(sP))
        e("s_bfe_u32 s3, s2, 0x20003")
        e("s_add_u32 %s, %s, s3", s(sP), s(sP))
        e("s_lshr_b32 %s, s2, 5", s(sG3))
        return
    e("s_and_b32 s3, s2, 7")
    e("s_lshr_b32 %s, s2, 3", s(sTmp))
    e("s_lshr_b32 %s, s3, 1", s(sP))
    e("s_lshl_b32 %s, %s, 3", s(sP), s(sP))
    e("s_and_b32 %s, %s, 7", s(sTmp2), s(sTmp))
    e("s_add_u32 %s, %s, %s", s(sP), s(sP), s(sTmp2))
    e("s_and_b32 s3, s3, 1")
    e("s_lshl_b32 s3, s3, 2")
    e("s_lshr_b32 %s, %s, 3", s(sTmp), s(sTmp))
    e("s_add_u32 %s, s3, %s", s(sG3), s(sTmp))


ZG, ZC, ZAB = [160, 224], 64, [136, 192, 208]


def ZAr(c3, rt): return ZAB[c3] + 4 * rt


def z_setup():
    p3_map()
    e("s_mul_i32 %s, %s, %d", s(sLB), s(sLW), ZUS)
    e("s_lshl_b32 %s, %s, 7", s(sUo), s(sP))
    e("s_lshl_b32 %s, %s, 12", s(sTmp), s(sLW))
    e("s_add_u32 %s, %s, %s", s(sUo), s(sUo), s(sTmp))
    e("s_add_u32 %s, %s, 0x%x", s(sUo), s(sUo), WS_U)
    e("s_mul_i32 %s, %s, 21", s(sCo), s(sG3))
    e("s_add_u32 %s, %s, %s", s(sCo), s(sCo), s(sLW))
    e("s_mul_i32 %s, %s, 3072", s(sCo), s(sCo))
    e("s_add_u32 %s, %s, %d", s(sCo), s(sCo), TB.CI_OFF)
    e("s_lshl_b32 %s, %s, 1", s(sS2), s(sP))


def wd_bases(wreg):
    e("s_lshr_b32 %s, %s, 1", s(sOc), s(sG3))
    e("s_and_b32 %s, %s, 1", s(sTmp), s(sG3))
    e("s_mul_i32 %s, %s, 20", s(sTmp), s(sTmp))
    e("s_add_u32 %s, %s, %s", s(sOc), s(sOc), s(sTmp))
    e("s_add_u32 %s, %s, 16", s(sOc), s(sOc))
    e("s_lshl_b32 %s, %s, 5", s(sOc), s(sOc))
    e("s_lshl_b32 %s, %s, 10", s(sTmp), s(wreg))
    e("s_add_u32 %s, %s, 0x%x", s(sTmp), s(sTmp), WS_WD)
    e("s_mul_i32 %s, %s, %d", s(sWa), s(sG3), 2 * 49152)
    e("s_add_u32 %s, %s, %s", s(sWa), s(sWa), s(sTmp))
    e("s_mul_i32 %s, %s, %d", s(sWc), s(sOc), 49152 // 32)
    e("s_add_u32 %s, %s, %s", s(sWc), s(sWc), s(sTmp))


def rot3():
    e("s_and_b32 %s, %s, 3", s(sR3), s(sG3))
    e("s_mul_i32 %s, %s, %d", s(sR3), s(sR3), R3A)
    e("s_and_b32 %s, %s, 7", s(sTmp), s(sP))
    e("s_mul_i32 %s, %s, %d", s(sTmp), s(sTmp), R3B)
    e("s_add_u32 %s, %s, %s", s(sR3), s(sR3), s(sTmp))
    for _ in range((3 * R3A + 7 * R3B) // 12):
        e("s_cmp_ge_u32 %s, 12", s(sR3))
        e("s_cselect_b32 %s, 12, 0", s(sTmp))
        e("s_sub_u32 %s, %s, %s", s(sR3), s(sR3), s(sTmp))


def item4(i, dst):
    e("s_add_u32 %s, %s, %d", s(dst), s(sR3), i)
    e("s_cmp_ge_u32 %s, 12", s(dst))
    e("s_cselect_b32 %s, 12, 0", s(sTmp))
    e("s_sub_u32 %s, %s, %s", s(dst), s(dst), s(sTmp))
    e("s_lshl_b32 %s, %s, 12", s(dst), s(dst))


WOFF = [(0, 0), (0, 49152), (0, 20 * 49152), (0, 21 * 49152), (1, 0)]


def stage_all():
    rot3()
    for i in range(3):
        item4(i, sI4)
        for w in range(4):
            e("s_add_u32 %s, %s, %d", s(sCnt), s(sI4), ((w - 3) * 1024) & 0xffffffff)
            e("s_add_u32 %s, %s, %s", s(sTmp2), s(sCnt), s(sWa))
            for ct in range(5):
                e("s_mov_b32 m0, %d", CP0 + w * CPS + i * 5120 + ct * 1024)
                if ct < 4:
                    e("s_add_u32 %s, %s, %d", s(sTmp), s(sTmp2), WOFF[ct][1])
                else:
                    e("s_add_u32 %s, %s, %s", s(sTmp), s(sCnt), s(sWc))
                e("buffer_load_dwordx4 v5, %s, %s offen sc1 lds", s(sWS, 4), s(sTmp))


def stage_wd(i0, i1):
    e("s_mul_i32 %s, %s, %d", s(sSLAB), s(sLW), CPS)
    rot3()
    for i in range(i0, i1):
        item4(i, sI4)
        e("s_add_u32 %s, %s, %s", s(sTmp2), s(sI4), s(sWa))
        for ct in range(5):
            e("s_add_u32 m0, %s, %d", s(sSLAB), CP0 + i * 5120 + ct * 1024)
            if ct < 4:
                e("s_add_u32 %s, %s, %d", s(sTmp), s(sTmp2), WOFF[ct][1])
            else:
                e("s_add_u32 %s, %s, %s", s(sTmp), s(sI4), s(sWc))
            e("buffer_load_dwordx4 v5, %s, %s offen sc1 lds", s(sWS, 4), s(sTmp))


def z_ci_sub(idx):
    n = 0
    for z in range(6):
        c = [c3 for c3 in range(3) if z * 3 + c3 in idx]
        lab = A.newlabel("L_noc5")
        if c and z == 5 and ZSK:
            e("s_cmp_lg_u32 %s, 0", s(sLW))
            e("s_cbranch_scc1 %s", lab)
        else:
            n += len(c)
        if c:
            z_item(z, 4 * 3072, sCo, sRZ)
        for c3 in c:
            e("buffer_load_dwordx4 %s, v5, %s, %s offen offset:%d", v(ZC + z * 12 + c3 * 4, 4), s(sTAB, 4), s(sRZ), c3 * 1024)
        A.label(lab)
    return n


def z_ci_all():
    return z_ci_sub(range(18))


def stage_done(n):
    e("s_lshl_b32 %s, %s, 2", s(sTmp), s(sLW))
    e("s_add_u32 %s, %s, %d", s(sTmp), s(sTmp), LGO + 16)
    e("v_mov_b32 v12, %s", s(sTmp))
    e("v_mov_b32 v13, 1")
    e("s_waitcnt vmcnt(%d)", n)
    e("ds_write_b32 v12, v13")


def z_item(z, mul, base, dst):
    e("s_and_b32 %s, %s, 3", s(dst), s(sG3))
    e("s_mul_i32 %s, %s, %d", s(dst), s(dst), RZ)
    e("s_add_u32 %s, %s, %d", s(dst), s(dst), z)
    e("s_cmp_ge_u32 %s, 6", s(dst))
    e("s_cselect_b32 %s, 6, 0", s(sTmp))
    e("s_sub_u32 %s, %s, %s", s(dst), s(dst), s(sTmp))
    e("s_lshl_b32 %s, %s, 2", s(sTmp), s(dst))
    e("s_add_u32 %s, %s, %s", s(sTmp), s(sTmp), s(sLW))
    e("s_cmp_gt_u32 %s, 20", s(sTmp))
    e("s_cselect_b32 %s, 0x20000000, %s", s(sTmp), s(base))
    e("s_mul_i32 %s, %s, %d", s(dst), s(dst), mul)
    e("s_add_u32 %s, %s, %s", s(dst), s(dst), s(sTmp))


def z_ci_loads(z, vL):
    z_item(z, 4 * 3072, sCo, sRZ)
    for c3 in range(3):
        e("buffer_load_dwordx4 %s, %s, %s, %s offen offset:%d", v(ZC + z * 12 + c3 * 4, 4), v(vL), s(sTAB, 4), s(sRZ), c3 * 1024)


def ZGr(u, ro, nh, kap): return ZG[u] + ((ro * 2 + nh) * 2 + kap) * 4


def z_gconst():
    e("v_and_b32 v56, 15, v0")
    e("v_lshlrev_b32 v56, 6, v56")
    e("v_add_u32 v56, %s, v56", s(sS2))
    e("v_cvt_f32_u32 v56, v56")
    e("v_mul_f32 v56, 0x3a000000, v56")
    e("v_lshrrev_b32 v57, 5, v0")
    e("v_lshlrev_b32 v57, 3, v57")
    e("v_cvt_f32_u32 v57, v57")
    e("v_bfe_u32 v58, v0, 4, 1")
    e("v_cvt_f32_u32 v58, v58")
    e("v_mul_f32 v58, 0x3e800000, v58")
    for u in range(2):
        if u:
            e("v_add_f32 v56, 0x3a000000, v56")
        for kap in range(2):
            if kap:
                e("v_add_f32 v59, 0x41800000, v57")
                e("v_fma_f32 v59, v59, v56, v58")
            else:
                e("v_fma_f32 v59, v57, v56, v58")
            for ro in range(2):
                if ro:
                    e("v_add_f32 v60, 0xbe800000, v59")
                else:
                    e("v_mov_b32 v60, v59")
                for i2 in range(4):
                    e("v_cos_f32 v61, v60")
                    e("v_add_f32 v60, v60, v56")
                    e("v_cos_f32 v62, v60")
                    e("v_add_f32 v60, v60, v56")
                    b = ZGr(u, ro, 0, kap) + i2
                    e("v_cvt_pk_bf16_f32 %s, v61, v62", v(b))
                    e("v_xor_b32 %s, 0x80000000, %s", v(b + 8), v(b))


def fu_poll_issue():
    e("v_lshlrev_b32 v11, 7, v0")
    lab0 = A.newlabel("L_nofup")
    e("s_cmp_lg_u32 %s, 0", s(sLW))
    e("s_cbranch_scc1 %s", lab0)
    poll_issue(16, 1, 11, WS_FU)
    A.label(lab0)


def zpart():
    vL, vUG, vTU, vTU1, vPU = 5, 6, 7, 8, 11
    UF, ZT = 16, 32
    e("v_lshlrev_b32 %s, 4, v0", v(vL))
    e("v_lshrrev_b32 v12, 3, v0")
    e("v_mul_u32_u24 v12, %d, v12", USTR)
    e("v_lshrrev_b32 v13, 2, v0")
    e("v_lshrrev_b32 v14, 4, v0")
    e("v_xor_b32 v13, v13, v14")
    e("v_and_b32 v13, 1, v13")
    e("v_lshl_add_u32 v12, v13, 6, v12")
    e("v_and_b32 v13, 3, v0")
    e("v_lshl_add_u32 %s, v13, 4, v12", v(vUG))
    e("v_lshrrev_b32 v12, 5, v0")
    e("v_lshlrev_b32 v12, 3, v12")
    e("v_bfe_u32 v14, v0, 2, 2")
    e("v_add_u32 v12, v12, v14")
    e("v_lshlrev_b32 v12, 7, v12")
    e("v_lshl_add_u32 v12, v13, 4, v12")
    e("v_bfe_u32 v14, v0, 4, 1")
    e("v_lshl_add_u32 v12, v14, 3, v12")
    e("v_bfe_u32 v14, v0, 3, 1")
    e("v_lshl_add_u32 v12, v14, 6, v12")
    e("v_add_u32 %s, %s, v12", v(vTU), s(sLB))
    e("v_xor_b32 %s, 64, %s", v(vTU1), v(vTU))
    e("v_mov_b32 v12, %d", LGO)
    lab1, lab2 = A.newlabel("L_lgo"), A.newlabel("L_lgod")
    e("s_cmp_lg_u32 %s, 0", s(sLW))
    e("s_cbranch_scc1 %s", lab1)
    e("s_waitcnt vmcnt(0)")
    poll_check(UF, 1, vPU, WS_FU)
    e("v_mov_b32 v13, 1")
    e("ds_write_b32 v12, v13")
    e("s_branch %s", lab2)
    A.label(lab1)
    e("s_sleep 1")
    e("ds_read_b32 v13, v12")
    e("s_waitcnt lgkmcnt(0)")
    e("v_cmp_ne_u32 vcc, 1, v13")
    e("s_cbranch_vccnz %s", lab1)
    A.label(lab2)
    stamp("zU")
    if ZPR:
        e("s_setprio %d", ZPR)
    q = VQ()

    def udma(z):
        z_item(z, 4 * 4096, sUo, sRZ)
        for n in range(4):
            e("s_add_u32 m0, %s, %d", s(sLB), (z % 4) * 4096 + n * 1024)
            e("s_add_u32 %s, %s, %d", s(sTmp2), s(sRZ), n * 8 * USTR)
            e("buffer_load_dwordx4 %s, %s, %s offen sc1 lds", v(vUG), s(sWS, 4), s(sTmp2))
        q.issue("u%d" % z, 4)
    for z in range(4):
        udma(z)
    def ureads(z):
        q.wait("u%d" % z)
        stamp("z%d" % z)
        for u in range(2):
            for kap in range(2):
                for rd in range(2):
                    e("ds_read_b64_tr_b16 %s, %s offset:%d", v(UF + 8 * u + 4 * kap + 2 * rd, 2), v(vTU1 if u else vTU), (z % 4) * 4096 + kap * 2048 + rd * 512)
    ureads(0)
    skip5 = A.newlabel("L_noz5")

    def cv(rt):
        b = ZT + rt * 8
        return [cap(lambda k=k: e("v_cvt_pk_bf16_f32 %s, %s, %s", v(b + k), v(b + 2 * k), v(b + 2 * k + 1))) for k in range(4)]

    def s1(u):
        return [cap(lambda kap=kap, nh=nh, ro=ro: mm16(ZT + u * 16 + (nh * 2 + ro) * 4, UF + 8 * u + 4 * kap, ZGr(u, ro, nh, kap), kap == 0))
                for kap in range(2) for nh in range(2) for ro in range(2)]

    def s2(z, rt):
        return [cap(lambda c3=c3: mm16(ZAr(c3, rt), ZC + z * 12 + c3 * 4, ZT + rt * 8, z == 0)) for c3 in range(3)]

    def put(gs):
        for g in gs:
            A.lines += g
    for z in range(6):
        if z == 5 and ZSK:
            e("s_cmp_lg_u32 %s, 0", s(sLW))
            e("s_cbranch_scc1 %s", skip5)
        e("s_waitcnt lgkmcnt(4)")
        put(s1(0))
        e("s_waitcnt lgkmcnt(0)")
        m1 = s1(1)
        if not ZIL:
            put(m1)
        else:
            c0, c1 = cv(0), cv(1)
            put(m1[:5] + c0[:2] + m1[5:6] + c0[2:] + m1[6:7] + c1[:2] + m1[7:] + c1[2:])
        if z + 4 < 6:
            if z == 1 and ZSK:
                lab = A.newlabel("L_nou5")
                e("s_cmp_lg_u32 %s, 0", s(sLW))
                e("s_cbranch_scc1 %s", lab)
                udma(5)
                A.label(lab)
                q.q = q.q[:-4]
            else:
                udma(z + 4)
        if z + 1 < 6:
            if z == 4 and ZSK:
                lab = A.newlabel("L_nor5")
                e("s_cmp_lg_u32 %s, 0", s(sLW))
                e("s_cbranch_scc1 %s", lab)
                q.issue("u5", 4)
                ureads(5)
                A.label(lab)
            else:
                ureads(z + 1)
        if not ZIL:
            put(cv(0) + cv(1) + cv(2) + cv(3))
            e("s_nop 0")
            put(s2(z, 0) + s2(z, 1) + s2(z, 2) + s2(z, 3))
        else:
            if z == 5:
                e("s_nop 1")
            a0, a1, c2, c3_ = s2(z, 0), s2(z, 1), cv(2), cv(3)
            put(a0[:2] + c2[:2] + a0[2:] + c2[2:] + a1[:1] + c3_[:2] + a1[1:2] + c3_[2:] + a1[2:])
            e("s_nop 0")
            put(s2(z, 2) + s2(z, 3))
    A.label(skip5)
    e("v_add_u32 v12, %s, %s", s(sLB), v(vL))
    for rt in range(4):
        for c3 in range(3):
            if rt == 3 and c3 == 0:
                e("s_nop 1")
            e("ds_write_b128 v12, %s offset:%d", v(ZAr(c3, rt), 4), c3 * 4096 + rt * 1024)
    e("s_waitcnt lgkmcnt(0)")
    stamp("zend")
    e("s_barrier")


vA0, vA1, vB0, vB1 = 2, 3, 4, 1


def lgo_init():
    e("v_mov_b32 v12, %d", LGO)
    e("v_mov_b32 v13, 0")
    e("ds_write_b32 v12, v13")
    e("ds_write_b32 v12, v13 offset:4")
    e("ds_write_b32 v12, v13 offset:8")
    e("ds_write_b32 v12, v13 offset:12")
    for i in range(4):
        e("ds_write_b32 v12, v13 offset:%d", 16 + 4 * i)


def k_offset(dst):
    e("s_and_b32 %s, s2, 1", s(dst))
    e("s_mul_i32 %s, %s, 5", s(dst), s(dst))
    e("s_bfe_u32 %s, s2, 0x10003", s(sTmp))
    e("s_mul_i32 %s, %s, 3", s(sTmp), s(sTmp))
    e("s_add_u32 %s, %s, %s", s(dst), s(dst), s(sTmp))
    if KG:
        e("s_lshr_b32 %s, s2, 6", s(sTmp))
        e("s_lshl_b32 %s, %s, 2", s(sTmp), s(sTmp))
        e("s_lshr_b32 %s, 0x%x, %s", s(sTmp), KG, s(sTmp))
        e("s_and_b32 %s, %s, 15", s(sTmp), s(sTmp))
        e("s_add_u32 %s, %s, %s", s(dst), s(dst), s(sTmp))
        mod10(dst)


KG = int(str(opt("kg", 250)), 16)


def mod10(dst):
    e("s_cmp_ge_u32 %s, 10", s(dst))
    e("s_cselect_b32 %s, 10, 0", s(sTmp))
    e("s_sub_u32 %s, %s, %s", s(dst), s(dst), s(sTmp))


def x_src_scalar():
    e("s_lshl_b32 %s, %s, 2", s(sAoff), s(sRB))
    e("s_add_u32 %s, %s, %s", s(sAoff), s(sAoff), s(sLW))
    e("s_mul_i32 %s, %s, 1280", s(sAoff), s(sAoff))


def ffn_loader():
    if PRL & 2:
        e("s_setprio 2")
    e("v_lshrrev_b32 v6, 3, v0")
    e("v_mul_u32_u24 v6, 81920, v6")
    e("v_and_b32 v7, 7, v0")
    e("v_lshrrev_b32 v8, 4, v0")
    e("v_xor_b32 v7, v7, v8")
    e("v_lshl_add_u32 %s, v7, 4, v6", v(vA0))
    e("v_xor_b32 %s, 64, %s", v(vA1), v(vA0))
    e("v_mul_u32_u24 v6, 3072, v8")
    e("v_and_b32 v7, 15, v0")
    e("v_lshlrev_b32 v8, 2, v8")
    e("v_xor_b32 v7, v7, v8")
    e("v_lshl_add_u32 %s, v7, 4, v6", v(vB0))
    e("v_xor_b32 %s, 32, %s", v(vB1), v(vB0))
    x_src_scalar()
    e("s_mul_i32 %s, %s, %d", s(sBoff), s(sLW), 16 * 3072)
    e("s_lshl_b32 %s, %s, 8", s(sTmp), s(sCG))
    e("s_add_u32 %s, %s, %s", s(sBoff), s(sBoff), s(sTmp))
    e("s_lshl_b32 %s, %s, 12", s(sM0), s(sLW))
    k_offset(sJB)
    XR_ = opt("xrot", 0)
    if XR_:
        e("s_bfe_u32 %s, s2, 0x20003", s(sJB))
        e("s_mul_i32 %s, %s, 5", s(sJB), s(sJB))
        e("s_add_u32 %s, %s, 1", s(sJB), s(sJB))
        e("s_lshr_b32 %s, %s, 1", s(sJB), s(sJB))
        if XR_ & 4:
            e("s_mov_b32 %s, 0", s(sJB))
        e("s_lshr_b32 %s, s2, 6", s(sTmp))
        e("s_mul_i32 %s, %s, %d", s(sTmp), s(sTmp), (XR_ & 3) - 1)
        e("s_add_u32 %s, %s, %s", s(sJB), s(sJB), s(sTmp))
        e("s_cmp_ge_u32 %s, 10", s(sJB))
        e("s_cselect_b32 %s, 10, 0", s(sTmp))
        e("s_sub_u32 %s, %s, %s", s(sJB), s(sJB), s(sTmp))
    NR = 10
    tab_srd()
    stamp("l_pre")
    e("s_waitcnt lgkmcnt(0)")
    stamp("l_k")
    for k in ("X", "G", "U"):
        srd(A, *SRDS[k])
    q = VQ()

    def slab_groups(i):
        b = (i % 3) * SLAB
        gs = []

        def head():
            if i < NFIX:
                e("s_add_u32 %s, %s, %d", s(sWM), s(sAoff), i * 128)
                e("s_add_u32 %s, %s, %d", s(sWN), s(sBoff), i * 64 * 3072)
            else:
                e("s_add_u32 %s, %s, %d", s(sTmp), s(sJB), NFIX)
                e("s_lshl_b32 %s, %s, 7", s(sWM), s(sTmp))
                e("s_add_u32 %s, %s, %s", s(sWM), s(sWM), s(sAoff))
                e("s_mul_i32 %s, %s, %d", s(sWN), s(sTmp), 64 * 3072)
                e("s_add_u32 %s, %s, %s", s(sWN), s(sWN), s(sBoff))
                e("s_add_u32 %s, %s, 1", s(sJB), s(sJB))
                e("s_cmp_eq_u32 %s, %d", s(sJB), NR)
                e("s_cselect_b32 %s, 0, %s", s(sJB), s(sJB))
        for n in range(4):
            def f(n=n):
                if n == 0:
                    head()
                e("s_add_u32 m0, %s, %d", s(sM0), b + n * 1024)
                e("s_add_u32 %s, %s, %d", s(sTmp), s(sWM), n * 8 * 81920)
                e("buffer_load_dwordx4 %s, %s, %s offen lds", v(vA1 if n & 1 else vA0), s(sX, 4), s(sTmp))
            gs.append(cap(f))
        for mat in range(2):
            for n in range(4):
                def f(n=n, mat=mat):
                    e("s_add_u32 m0, %s, %d", s(sM0), b + 16384 * (1 + mat) + n * 1024)
                    e("s_add_u32 %s, %s, %d", s(sTmp), s(sWN), n * 4 * 3072)
                    e("buffer_load_dwordx4 %s, %s, %s offen lds", v(vB1 if n & 2 else vB0), s(sU if mat else sG, 4), s(sTmp))
                gs.append(cap(f))
        q.issue("s%d" % i, 12)
        return gs

    def slab(i, main=()):
        weave(list(main), slab_groups(i))

    def wait2(n):
        la, lb = A.newlabel("L_w2"), A.newlabel("L_w2")
        e("s_cmp_ge_u32 %s, 48", s(sPar))
        e("s_cbranch_scc1 %s", la)
        e("s_waitcnt vmcnt(%d)", n + 4)
        e("s_branch %s", lb)
        A.label(la)
        e("s_waitcnt vmcnt(%d)", n)
        A.label(lb)

    def bar(b):
        stamp("fl_a%d" % b)
        e("s_barrier")
        stamp("fl_b%d" % b)
    slab(0)
    stamp("l_s0")
    lgo_init()
    e("s_load_dword %s, %s, 0x%x", s(sTAG), s(P + 18, 2), WS_EP)
    for k in ("WS", "WD", "WR", "WI"):
        srd(A, *SRDS[k])
    z_setup()
    e("v_lshlrev_b32 v5, 4, v0")
    fw_poll_addr(10)
    aux_poll_addr(True, 15)
    aux_addr(True, 36)
    slab(1, cap(z_gconst))
    stamp("l_iss")
    q.wait("s0", extra=" lgkmcnt(0)")
    e("s_barrier")
    stamp("l_bi")
    make_tag()
    slab(2)
    repack_dma()
    wait2(12)
    q.q = ["s2"] * 12
    bar(0)
    slab(3)
    wait2(12)
    q.q = ["s3"] * 12
    bar(1)
    slab(4)
    e("s_waitcnt vmcnt(24)")
    repack_finish()
    wait2(12)
    q.q = ["s4"] * 12
    bar(2)
    slab(5)
    if WARM == 2:
        warm_touch(); q.issue("wt", 2)
    q.wait("s4")
    bar(3)
    lab = A.newlabel("L_nocf")
    e("s_cmp_lg_u32 %s, 0", s(sLW))
    e("s_cbranch_scc1 %s", lab)
    e("s_lshl_b32 %s, s2, 7", s(sCnt))
    e("s_add_u32 %s, %s, 0x%x", s(sCnt), s(sCnt), WS_FW)
    flag_store(sCnt, 16, 17)
    A.label(lab)
    slab(6)
    q.wait("s5")
    bar(4)
    slab(7)
    if PF3 & 1:
        pf3(1)
    if PF3 & 2:
        pf3(0)
    q.wait("s6")
    bar(5)
    poll_issue(34, 1, 15, WS_FS); poll_issue(35, 1, 10, WS_FW); q.issue("p", 2)
    slab(8)
    q.wait("s7")
    bar(6)
    slab(9)
    q.wait("p")
    poll_check(34, 1, 15, WS_FS)
    poll_check(35, 1, 10, WS_FW)
    aux_issue(True, 36); q.issue("aux", 4)
    if PFP == 0:
        pf3_go(q, PF3)
    q.wait("s8")
    bar(7)
    if PFP == 1:
        pf3_go(q, PF3)
    q.wait("aux")
    aux_finish(True, 36)
    bar(8)
    wd_bases(sLW)
    stage_wd(0, 4)
    if CIL == 0:
        z_ci_all()
    stage_done(18 if CIL == 0 else 0)
    e("v_mov_b32 v12, %d", LGO)
    lab = A.newlabel("L_hout")
    A.label(lab)
    e("s_sleep 1")
    e("ds_read_b32 v13, v12 offset:4")
    e("s_waitcnt lgkmcnt(0)")
    e("v_cmp_ne_u32 vcc, 4, v13")
    e("s_cbranch_vccnz %s", lab)
    fu_poll_issue()
    if CIL == 1:
        z_ci_all()
    e("s_branch L_zpart")


def wspec_shift(dst):
    e("s_mul_i32 %s, %s, 642", s(sDelta), s(sK1))
    e("s_mul_i32 %s, s3, 320", s(sTmp))
    e("s_add_u32 %s, %s, %s", s(sDelta), s(sDelta), s(sTmp))
    e("s_and_b32 %s, %s, 15", s(dst), s(sDelta))


def wspec_dma():
    mid_k1()
    e("v_mul_u32_u24 v12, 3121, v0")
    e("v_lshrrev_b32 v12, 16, v12")
    e("v_mul_u32_u24 v12, %d, v12", 32 * 642 - 336)
    e("v_lshl_add_u32 v12, v0, 4, v12")
    wspec_shift(sTmp2)
    e("s_sub_u32 %s, %s, %s", s(sDelta), s(sDelta), s(sTmp2))
    e("s_and_b32 %s, %s, 1", s(sTmp), s(sLW))
    e("s_mul_i32 %s, %s, %d", s(sCnt), s(sTmp), 11 * 1008)
    e("s_mul_i32 %s, %s, %d", s(sTmp), s(sTmp), 33 * 32 * 642)
    e("s_add_u32 %s, %s, %s", s(sDelta), s(sDelta), s(sTmp))
    e("s_cmp_ge_u32 %s, 2", s(sLW))
    e("s_cselect_b32 %s, %s, %s", s(sWR), s(sWI), s(sWR))
    e("s_cselect_b32 %s, %s, %s", s(sWR + 1), s(sWI + 1), s(sWR + 1))
    e("s_cselect_b32 %s, %d, 0", s(sTmp), MWA)
    e("s_add_u32 %s, %s, %s", s(sCnt), s(sCnt), s(sTmp))
    gs = []
    for n in range(11):
        def f(n=n):
            e("s_add_u32 m0, %s, %d", s(sCnt), MW0 + n * 1008)
            e("s_add_u32 %s, %s, %d", s(sTmp), s(sDelta), n * 3 * 32 * 642)
            e("buffer_load_dwordx4 v12, %s, %s offen lds", s(sWR, 4), s(sTmp))
        gs.append(cap(f))
    return gs


def repack_dma():
    e("v_lshrrev_b32 v12, 3, v0")
    e("v_mul_u32_u24 v13, 1280, v12")
    e("v_bfe_u32 v14, v0, 4, 2")
    e("v_lshlrev_b32 v14, 1, v14")
    e("v_and_b32 v12, 7, v0")
    e("v_xor_b32 v12, v12, v14")
    e("v_lshl_add_u32 v12, v12, 4, v13")
    e("s_mul_i32 %s, s2, 3", s(sCnt))
    e("s_add_u32 %s, %s, %s", s(sCnt), s(sCnt), s(sLW))
    e("s_cmp_eq_u32 %s, 3", s(sLW))
    e("s_cselect_b32 %s, 480, %s", s(sCnt), s(sCnt))
    e("s_mul_i32 %s, %s, 52429", s(sBuf), s(sCnt))
    e("s_lshr_b32 %s, %s, 19", s(sBuf), s(sBuf))
    e("s_mul_i32 %s, %s, 10", s(sTmp), s(sBuf))
    e("s_sub_u32 %s, %s, %s", s(sCnt), s(sCnt), s(sTmp))
    e("s_mul_i32 %s, %s, 40960", s(sDelta), s(sBuf))
    e("s_lshl_b32 %s, %s, 7", s(sTmp), s(sCnt))
    e("s_add_u32 %s, %s, %s", s(sDelta), s(sDelta), s(sTmp))
    e("s_min_u32 %s, %s, 2", s(sWa), s(sLW))
    e("s_lshl_b32 %s, %s, 12", s(sWa), s(sWa))
    e("s_add_u32 %s, %s, %d", s(sWa), s(sWa), RPK)
    lab = A.newlabel("L_norp")
    e("s_cmp_ge_u32 %s, 48", s(sBuf))
    e("s_cbranch_scc1 %s", lab)
    for n in range(4):
        e("s_add_u32 m0, %s, %d", s(sWa), n * 1024)
        e("s_add_u32 %s, %s, %d", s(sTmp), s(sDelta), n * 8 * 1280)
        e("buffer_load_dwordx4 v12, %s, %s offen lds", s(sWD, 4), s(sTmp))
    A.label(lab)
    e("s_mul_i32 %s, %s, %d", s(sWb), s(sCnt), 4 * 49152)
    e("s_lshl_b32 %s, %s, 10", s(sTmp), s(sBuf))
    e("s_add_u32 %s, %s, %s", s(sWb), s(sWb), s(sTmp))
    e("s_add_u32 %s, %s, 0x%x", s(sWb), s(sWb), WS_WD)
    e("s_mov_b32 %s, %s", s(sPar), s(sBuf))


def repack_finish():
    lab = A.newlabel("L_norp")
    e("s_cmp_ge_u32 %s, 48", s(sPar))
    e("s_cbranch_scc1 %s", lab)
    e("v_lshrrev_b32 v56, 2, v0")
    e("v_lshlrev_b32 v56, 7, v56")
    e("v_and_b32 v57, 3, v0")
    e("v_lshl_add_u32 v56, v57, 3, v56")
    e("v_bfe_u32 v57, v0, 3, 2")
    e("v_lshl_add_u32 v56, v57, 5, v56")
    e("v_add_u32 v56, %s, v56", s(sWa))
    for tq in range(1, 4):
        e("v_xor_b32 %s, %d, v56", v(56 + tq), tq << 5)
    for tq in range(4):
        for rd in range(2):
            e("ds_read_b64_tr_b16 %s, %s offset:%d", v(16 + tq * 4 + 2 * rd, 2), v(56 + tq), rd * 2048)
    for n in range(4):
        e("s_waitcnt lgkmcnt(%d)", 6 - 2 * n)
        e("s_add_u32 %s, %s, %d", s(sTmp), s(sWb), n * 49152)
        e("buffer_store_dwordx4 %s, v5, %s, %s offen sc1", v(16 + n * 4, 4), s(sWS, 4), s(sTmp))
    A.label(lab)


def fold_group(a0, T, vM, vaddr, off):
    for d in range(4):
        e("v_lshlrev_b32 %s, 16, %s", v(T + d), v(a0 + d))
        e("v_lshlrev_b32 %s, 16, %s", v(T + 4 + d), v(a0 + 4 + d))
    for d in range(8):
        e("v_and_b32 %s, %s, %s", v(a0 + d), v(vM), v(a0 + d))
    for d in range(4):
        e("v_fmac_f32 %s, %s, %s", v(T + d), s(sSgn), v(T + 4 + d))
    for d in range(4):
        e("v_fmac_f32 %s, %s, %s", v(a0 + d), s(sSgn), v(a0 + 4 + d))
    for d in range(4):
        e("v_cvt_pk_bf16_f32 %s, %s, %s", v(a0 + d), v(T + d), v(a0 + d))
    e("ds_write_b128 %s, %s offset:%d", v(vaddr), v(a0, 4), off)


def fold_addr(src, w0, w2):
    e("v_lshrrev_b32 %s, 3, v0", v(w2))
    e("v_mul_u32_u24 %s, 81920, %s", v(w2 + 1), v(w2))
    e("v_and_b32 %s, 7, v0", v(w0))
    e("v_lshl_add_u32 %s, %s, 4, %s", v(src), v(w0), v(w2 + 1))
    e("v_lshrrev_b32 %s, 4, v0", v(w2 + 1))
    e("v_xor_b32 %s, %s, %s", v(w0), v(w0), v(w2 + 1))
    e("v_lshlrev_b32 %s, 7, %s", v(w2), v(w2))
    e("v_lshl_add_u32 %s, %s, 4, %s", v(w2), v(w0), v(w2))
    e("s_mul_i32 %s, %s, %d", s(sTmp), s(sLW), CPS)
    e("s_add_u32 %s, %s, %d", s(sTmp), s(sTmp), XB)
    e("v_add_u32 %s, %s, %s", v(w0), s(sTmp), v(w2))
    e("v_xor_b32 %s, 64, %s", v(w0 + 1), v(w0))


XO = opt("xo", 0)
CI_EARLY = list(range(8, 16))
CI_LATE = [i for i in range(18) if i not in CI_EARLY]
LX = opt("lx", 0)
CX = opt("cx", 2)
MWE = opt("mwe", 1)
EH = opt("eh", 0)
EST = opt("est", 3)
ECI = opt("eci", 1)
EFH = opt("efh", 1)
NL = opt("nl", 2)


def dft_loader():
    if PRL & 1:
        e("s_setprio 2")
    XR = 64
    vW0, vW1 = 8, 9
    fold_addr(vA0, vW0, 6)
    e("v_lshlrev_b32 %s, 4, v0", v(vB0))
    x_src_scalar()
    tab_srd()
    stamp("l_pre")
    e("s_waitcnt lgkmcnt(0)")
    stamp("l_k")
    srd(A, *SRDS["X"])
    q = VQ()

    def xl(i):
        gs = []
        for n in range(NL):
            for hf in range(2):
                def f(n=n, hf=hf):
                    e("s_add_u32 %s, %s, %d", s(sTmp), s(sAoff), n * 8 * 81920 + i * 128)
                    e("buffer_load_dwordx4 %s, %s, %s, %s offen offset:%d", v(XR + i * 32 + n * 8 + hf * 4, 4), v(vA0), s(sX, 4), s(sTmp), hf * 640)
                gs.append(cap(f))
        q.issue("x%d" % i, 2 * NL)
        return gs

    def fl():
        gs = []
        for n in range(2):
            def f(n=n):
                e("s_lshl_b32 %s, %s, 11", s(sTmp), s(sLW))
                e("s_add_u32 m0, %s, %d", s(sTmp), FR_L + n * 1024)
                e("s_add_u32 %s, %s, %d", s(sTmp), s(sTmp), TB.F64_OFF + n * 1024)
                e("buffer_load_dwordx4 %s, %s, %s offen lds", v(vB0), s(sTAB, 4), s(sTmp))
            gs.append(cap(f))
        q.issue("f", 2)
        return gs

    def fold(i):
        for n in range(NL):
            fold_group(XR + i * 32 + n * 8, 28 + 8 * (n & 1), 44, (vW0, vW1)[n & 1], (1 - (i & 1)) * 5120 + n * 1024)

    def bar(b):
        stamp("dl_a%s" % b)
        e("s_barrier")
        stamp("dl_b%s" % b)
    weave([], xl(0))
    stamp("l_s0")
    lgo_init()
    e("s_load_dword %s, %s, 0x%x", s(sTAG), s(P + 18, 2), WS_EP)
    for k in ("WS", "WR", "WI", "OUT"):
        srd(A, *SRDS[k])
    e("s_cmp_ge_u32 %s, 2", s(sCG))
    e("s_cselect_b32 %s, -1.0, 1.0", s(sSgn))
    weave([], xl(1) + (xl(2) if LX >= 1 else []) + (xl(3) if LX >= 2 else []))
    e("v_mov_b32 v44, 0xffff0000")
    aux_poll_addr(False, 15)
    fw_poll_addr(10)
    aux_addr(False, 24)
    stamp("l_iss")
    q.wait("x0")
    stamp("dl_x0")
    fold(0)
    e("s_waitcnt lgkmcnt(0)")
    e("s_barrier")
    stamp("l_bi")
    make_tag()
    q.wait("x1")
    weave(cap(lambda: fold(1)), (xl(2) if LX < 1 else []) + (xl(3) if LX < 2 else []) + (xl(4) if LX >= 1 else []))
    e("s_waitcnt lgkmcnt(0)")
    bar(0)
    q.wait("x2")
    stamp("dl_x2")
    weave(cap(lambda: fold(2)), xl(4) if LX < 1 else [])
    stamp("dl_f2")
    poll_issue(46, 1, 15, WS_FS); q.issue("p")
    e("s_waitcnt lgkmcnt(0)")
    bar(1)
    q.wait("x3")
    stamp("dl_x3")
    weave(cap(lambda: fold(3)), fl())
    stamp("dl_f3")
    q.wait("p")
    poll_check(46, 1, 15, WS_FS)
    aux_issue(False, 24); q.issue("aux")
    e("s_waitcnt lgkmcnt(0)")
    bar(2)
    gs = wspec_dma()
    if WSP == 2:
        weave(cap(lambda: fold(4)), gs)
        q.issue("w", 11)
    else:
        fold(4)
    q.wait("aux")
    aux_finish(False, 24)
    bar(3)
    poll_issue(41, 1, 10, WS_FW)
    if WSP == 0:
        weave([], gs)
    z_setup()
    wd_bases(sLW)
    e("v_lshlrev_b32 v5, 4, v0")
    if EST >= 3:
        if ECI:
            z_ci_sub(CI_EARLY)
            lab = A.newlabel("L_cil")
            e("s_bfe_u32 %s, s2, 0x10003", s(sTmp))
            e("s_add_u32 %s, %s, 2", s(sTmp), s(sTmp))
            e("s_cmp_lt_u32 %s, %s", s(sLW), s(sTmp))
            e("s_cbranch_scc1 %s", lab)
            z_ci_sub(CI_LATE)
            A.label(lab)
        if ZGL:
            e("v_mov_b32 v12, %d", LGO)
            lab = A.newlabel("L_zgl")
            A.label(lab)
            e("s_sleep 2")
            e("ds_read_b32 v13, v12 offset:12")
            e("s_waitcnt lgkmcnt(0)")
            e("v_cmp_ne_u32 vcc, 1, v13")
            e("s_cbranch_vccnz %s", lab)
        z_gconst()
        stamp("dl_g")
        e("s_branch L_dft_l")
        return
    if ECI == 2:
        z_ci_sub(CI_EARLY)
    if EST:
        e("s_waitcnt vmcnt(%d)", len(CI_EARLY) if ECI == 2 else 0)
        poll_check(41, 1, 10, WS_FW)
        stamp("dl_fw")
        stage_wd(0, 3)
    if ECI == 1:
        z_ci_sub(CI_EARLY)
    stamp("dl_st")
    z_gconst()
    stamp("dl_g")
    if not EST:
        e("s_waitcnt vmcnt(0)")
        poll_check(41, 1, 10, WS_FW)
    e("s_branch L_dft_l")


def addr_advance(regs):
    e("s_add_u32 %s, %s, %d", s(sBuf), s(sBuf), SLAB)
    e("s_cmp_ge_u32 %s, %d", s(sBuf), 3 * SLAB)
    e("s_cselect_b32 %s, 0, %s", s(sBuf), s(sBuf))
    e("s_cselect_b32 %s, %d, %s", s(sDelta), (-2 * SLAB) & 0xffffffff, s(sSLAB))
    for r_ in regs:
        e("v_add_u32 %s, %s, %s", v(r_), s(sDelta), v(r_))


def gemm_loop(nslab, NT, mfmas, reads, need, areg, bar_gap, per_gap, last_extra=(), first_hook=None, peel=None, buf0=0, body=None, unroll=None, hooks=None, loop_from=None, fills=None, advf=None, last_bar=False):
    nreads = len(reads(0, 0))
    nm = len(need)

    def step(mf, nxt, first_gap=0, pre=None, barg=None):
        issued, done = 0, 0
        for m in range(nm):
            if need[m] > done:
                allowed = nreads - need[m] + issued
                e("s_waitcnt lgkmcnt(%d)", min(15, allowed))
                done = need[m] if allowed <= 15 else min(nreads, nreads + issued - 15)
            mf[m]()
            if pre and m in pre:
                for f in pre[m]:
                    f()
                if m == barg:
                    done = nreads
            if m >= first_gap:
                for k in range(per_gap):
                    if issued < len(nxt):
                        nxt[issued]()
                        issued += 1
        assert issued == len(nxt), (issued, len(nxt))

    def bar(vm=False):
        e("s_waitcnt lgkmcnt(0)%s", " vmcnt(0)" if vm else "")
        e("s_barrier")

    def merge(*ds):
        out = {}
        for d in ds:
            for k, x in d.items():
                out.setdefault(k, [])
                out[k] += x
        return out

    def spread(ops):
        out = {}
        for n, f in enumerate(ops):
            g = nm - 1 - (len(ops) - 1 - n) * max(1, (nm - bar_gap - 1) // max(1, len(ops)))
            out.setdefault(max(g, 0), []).append(f)
        return out

    def slab(last, peeled=False):
        if peeled:
            for t in range(NT - 1):
                step(mfmas(t & 1, t == 0), reads((t + 1) & 1, t + 1), pre=peel[t])
            step(mfmas(1), reads(0, 0), first_gap=bar_gap + (1 if bar_gap else 0),
                 pre=merge({0: [lambda: addr_advance(areg)]}, {bar_gap: [lambda: bar(True)]}, peel[NT - 1]), barg=bar_gap)
            return
        ex = list(last_extra) if last else []
        per = (len(ex) + NT - 1) // NT
        for t in range(NT - 1):
            step(mfmas(t & 1), reads((t + 1) & 1, t + 1), pre=merge(spread(ex[t * per:(t + 1) * per]), body[t] if body and not last else {}))
        if last:
            step(mfmas(1), [], pre=spread(ex[(NT - 1) * per:]))
        else:
            hooks = {bar_gap: ([first_hook[0]] if first_hook else []) + [bar] + ([first_hook[1]] if first_hook else [])}
            step(mfmas(1), reads(0, 0), first_gap=bar_gap + (1 if bar_gap else 0), pre=merge({0: [lambda: addr_advance(areg)]}, hooks, body[NT - 1] if body else {}), barg=bar_gap)
    e("s_mov_b32 %s, %d", s(sBuf), buf0)
    e("s_mov_b32 %s, %d", s(sSLAB), SLAB)
    e("s_mov_b32 %s, 0", s(sCnt))
    e("s_waitcnt lgkmcnt(0)%s", " vmcnt(%d)" % unroll[0][0] if unroll and unroll[0][0] is not None else "")
    make_tag()
    e("s_barrier")
    stamp("c_bi")
    for f in reads(0, 0):
        f()
    if unroll:
        ops = unroll[0][1]
        for i in range(nslab):
            if loop_from is not None and loop_from < i < nslab - 1:
                continue
            if loop_from is not None and i == loop_from:
                e("s_mov_b32 %s, %d", s(sBuf), ((buf0 // SLAB + i) % 3) * SLAB)
                e("s_mov_b32 %s, %d", s(sCnt), i)
                lab = A.newlabel("L_gemm")
                A.label(lab)
                slab(False)
                e("s_add_u32 %s, %s, 1", s(sCnt), s(sCnt))
                e("s_cmp_lt_u32 %s, %d", s(sCnt), nslab - 1)
                e("s_cbranch_scc1 %s", lab)
                continue
            per = (len(ops) + NT - 2) // (NT - 1)
            hk = hooks[i] if hooks else [{}] * NT
            if fills:
                gs = fills(i)
                ngap = (NT - 1) * nm
                hk = [{} for _ in range(NT)]
                for k, g in enumerate(gs):
                    pos = min(ngap - 1, k * ngap // max(1, len(gs)))
                    hk[pos // nm].setdefault(pos % nm, []).append(lambda g=g: A.lines.extend(g))
            for t in range(NT - 1):
                step(mfmas(t & 1, i == 0 and t == 0), reads((t + 1) & 1, t + 1), pre=merge(spread(ops[t * per:(t + 1) * per]), hk[t]))
            if i == nslab - 1:
                if last_bar:
                    step(mfmas(1), [], pre={bar_gap: [bar]}, barg=bar_gap)
                else:
                    step(mfmas(1), [])
            else:
                vm, ops = unroll[i + 1]
                if callable(vm):
                    vm = vm()

                def ubar(vm=vm):
                    e("s_waitcnt lgkmcnt(0)%s", "" if vm is None else " vmcnt(%d)" % vm)
                    e("s_barrier")

                def adv(i=i):
                    if advf:
                        return advf(i)
                    nb = (buf0 // SLAB + i + 1) % 3
                    for r_ in areg:
                        e("v_add_u32 %s, %d, %s", v(r_), (SLAB if nb else -2 * SLAB) & 0xffffffff, v(r_))
                step(mfmas(1), reads(0, 0), first_gap=bar_gap + (1 if bar_gap else 0),
                     pre=merge({0: [adv]}, {bar_gap: [ubar]}, hk[NT - 1]), barg=bar_gap)
        stamp("c_le")
        return
    if peel:
        slab(False, True)
        e("s_mov_b32 %s, 1", s(sCnt))
    lab = A.newlabel("L_gemm")
    A.label(lab)
    slab(False)
    e("s_add_u32 %s, %s, 1", s(sCnt), s(sCnt))
    e("s_cmp_lt_u32 %s, %d", s(sCnt), nslab - 1)
    e("s_cbranch_scc1 %s", lab)
    slab(True)
    stamp("c_le")


vWD = [1, 2, 3, 4, 14]


def p3c_setup():
    p3_map()
    wd_bases(sW)
    e("s_lshl_b32 %s, %s, 6", s(sOo), s(sG3))
    e("s_mul_i32 %s, %s, %d", s(sHo), s(sP), 2 * 48 * 2048)
    e("s_lshl_b32 %s, %s, 11", s(sTmp), s(sW))
    e("s_add_u32 %s, %s, %s", s(sHo), s(sHo), s(sTmp))
    e("s_and_b32 %s, %s, 1", s(sTmp), s(sW))
    e("s_lshl_b32 %s, %s, 10", s(sTmp), s(sTmp))
    e("s_lshl_b32 %s, %s, 1", s(sTmp2), s(sP))
    e("s_add_u32 %s, %s, %s", s(sTmp), s(sTmp), s(sTmp2))
    e("s_lshr_b32 %s, %s, 1", s(sTmp2), s(sW))
    e("s_add_u32 %s, %s, %s", s(sTmp), s(sTmp), s(sTmp2))
    e("s_mul_i32 %s, %s, 1280", s(sTmp), s(sTmp))
    e("s_add_u32 %s, %s, %s", s(sOo), s(sOo), s(sTmp))
    e("s_add_u32 %s, %s, %s", s(sOc), s(sOc), s(sTmp))


def fh_addr():
    e("s_lshl_b32 %s, %s, 1", s(sTmp), s(sP))
    e("s_lshr_b32 %s, %s, 1", s(sTmp2), s(sW))
    e("s_add_u32 %s, %s, %s", s(sTmp), s(sTmp), s(sTmp2))
    e("s_mul_i32 %s, %s, 12", s(sTmp), s(sTmp))
    e("v_min_u32 v5, 11, v0")
    e("v_add_u32 v5, %s, v5", s(sTmp))
    e("v_lshlrev_b32 v3, 7, v5")


sHr = [50, 51, 52, 53]


def p3_pre():
    vL = 1
    e("v_lshlrev_b32 %s, 4, v0", v(vL))
    for rho in range(4):
        e("s_add_u32 %s, %s, %d", s(sTmp), s(sW), rho)
        e("s_bfe_u32 %s, %s, 0x10001", s(sTmp2), s(sTmp))
        e("s_mul_i32 %s, %s, %d", s(sTmp2), s(sTmp2), 48 * 2048)
        e("s_and_b32 %s, %s, 1", s(sTmp), s(sTmp))
        e("s_lshl_b32 %s, %s, 10", s(sTmp), s(sTmp))
        e("s_add_u32 %s, %s, %s", s(sTmp), s(sTmp), s(sTmp2))
        e("s_add_u32 %s, %s, %s", s(sTmp), s(sTmp), s(sHo))
        e("s_add_u32 %s, %s, %d", s(sHr[rho]), s(sTmp), WS_H)

    rot3()


def hload_(i):
    item4(i, sRZ)
    e("s_lshl_b32 %s, %s, 1", s(sRZ), s(sRZ))
    for rho in range(4):
        e("s_add_u32 %s, %s, %s", s(sTmp), s(sHr[rho]), s(sRZ))
        e("buffer_load_dwordx4 %s, v1, %s, %s offen sc1", v(8 + (i % 4) * 36 + 20 + rho * 4, 4), s(sWS, 4), s(sTmp))


def p3c():
    vL, vO, vPH, vWJ = 1, 2, 3, 4
    RS, XR, WJ, ACC = 8, 8, 152, 176
    NI = 12
    q = VQ()
    def wload(i, ct):
        if ct == 0:
            item4(i, sI4)
            e("s_add_u32 %s, %s, %s", s(sTmp2), s(sI4), s(sWa))
        if ct < 4:
            e("s_add_u32 %s, %s, %d", s(sTmp), s(sTmp2), WOFF[ct][1])
        else:
            e("s_add_u32 %s, %s, %s", s(sTmp), s(sI4), s(sWc))
        e("buffer_load_dwordx4 %s, %s, %s, %s offen sc1", v(RS + (i % 4) * 36 + ct * 4, 4), v(vL), s(sWS, 4), s(sTmp))
        q.issue("i%d" % i)

    def hload(i):
        hload_(i)
        q.issue("i%d" % i, 4)

    def wj(i, ct):
        e("ds_read_b128 %s, %s offset:%d", v(WJ + 4 * ct, 4), v(vWJ), i * 5120 + ct * 1024)
    stamp("p3_in")
    if not XQ:
        e("v_and_b32 v5, 15, v0")
        e("v_mul_u32_u24 v5, 81920, v5")
        e("v_lshrrev_b32 v6, 4, v0")
        e("v_lshl_add_u32 %s, v6, 3, v5", v(vO))
    fh_addr()
    e("s_mul_i32 %s, %s, %d", s(sTmp), s(sW), CPS)
    e("s_add_u32 %s, %s, %d", s(sTmp), s(sTmp), CP0)
    e("v_add_u32 %s, %s, %s", v(vWJ), s(sTmp), v(vL))
    lab = A.newlabel("L_nofh")
    e("s_cmp_ge_u32 s2, 192")
    e("s_cbranch_scc1 %s", lab)
    e("v_mov_b32 v7, %d", LGO)
    e("v_mov_b32 v172, 1")
    e("s_waitcnt vmcnt(0)")
    flag_store(sFlag, 5, 6)
    e("s_mov_b64 exec, 1")
    e("ds_add_u32 v7, v172 offset:4")
    e("s_mov_b64 exec, -1")
    if EFH:
        poll_issue(7, 1, vPH, WS_FH)
        e("s_waitcnt vmcnt(0)")
    A.label(lab)
    stamp("p3_fl")
    if not EFH:
        poll_issue(7, 1, vPH, WS_FH)
    e("s_lshl_b32 %s, %s, 2", s(sTmp), s(sW))
    e("s_add_u32 %s, %s, %d", s(sTmp), s(sTmp), LGO + 16)
    e("v_mov_b32 v5, %s", s(sTmp))
    late, join = A.newlabel("L_hlate"), A.newlabel("L_hjoin")
    if not EFH:
        e("s_waitcnt vmcnt(0)")
    early = A.newlabel("L_hearly")
    if EH:
        e("s_cmp_eq_u32 %s, 2", s(sNU))
        e("s_cbranch_scc1 %s", early)
    e("v_cmp_ne_u32 vcc, %s, v7", s(sTAG))
    e("s_cbranch_vccnz %s", late)
    for i in range(EH):
        hload(i)
    A.label(early)
    e("s_mov_b32 %s, 1", s(sNU))
    for i in range(EH, 4):
        hload(i)
    for i in range(4, 8):
        for ct in range(5):
            wload(i, ct)
    e("s_branch %s", join)
    A.label(late)
    e("s_mov_b32 %s, 0", s(sNU))
    for i in range(4, 8):
        for ct in range(5):
            wload(i, ct)
    poll_check(7, 1, vPH, WS_FH)
    stamp("hp")
    q.drain()
    for i in range(4):
        hload(i)
    A.label(join)
    stamp("p3_fh")

    def staged(br):
        lab, skip = A.newlabel("L_wst"), A.newlabel("L_wsk")
        if br:
            e("s_cmp_ge_u32 s2, 192")
            e("%s %s", br, skip)
        A.label(lab)
        e("ds_read_b32 v6, v5")
        e("s_waitcnt lgkmcnt(0)")
        e("v_cmp_eq_u32 vcc, 0, v6")
        e("s_cbranch_vccnz %s", lab)
        A.label(skip)
    staged("s_cbranch_scc1" if EST else None)
    for ct in range(5):
        wj(0, ct)
    OFF = [(sOo, 0), (sOo, 32), (sOo, 640), (sOo, 672), (sOc, 0)]
    vXC, vD, vD1, vDC = 172, 173, 174, 175

    def xq_addr():
        e("v_lshrrev_b32 v6, 2, v0")
        e("v_mul_u32_u24 v6, 81920, v6")
        e("v_lshrrev_b32 v7, 4, v0")
        e("v_xor_b32 v7, v7, v0")
        e("v_and_b32 v7, 3, v7")
        e("v_lshl_add_u32 %s, v7, 4, v6", v(vO))
        e("v_bfe_u32 v6, v0, 1, 4")
        e("v_mul_u32_u24 v6, 81920, v6")
        e("v_and_b32 v7, 1, v0")
        e("v_lshl_add_u32 %s, v7, 4, v6", v(vXC))
        e("s_mul_i32 %s, %s, %d", s(sTB), s(sW), CPS)
        e("s_add_u32 %s, %s, %d", s(sTB), s(sTB), CP0 + 15360)
        e("v_and_b32 v6, 15, v0")
        e("v_lshrrev_b32 v7, 4, v0")
        e("v_lshlrev_b32 %s, 5, v6", v(vDC))
        e("v_lshl_add_u32 %s, v7, 3, %s", v(vDC), v(vDC))
        e("v_add_u32 %s, %s, %s", v(vDC), s(sTB), v(vDC))
        e("v_lshlrev_b32 v6, 6, v6")
        e("v_and_b32 v7, 1, v7")
        e("v_lshl_add_u32 v6, v7, 3, v6")
        e("v_lshrrev_b32 v7, 5, v0")
        e("v_bfe_u32 %s, v0, 2, 2", v(vD))
        e("v_xor_b32 v7, v7, %s", v(vD))
        e("v_lshl_add_u32 v6, v7, 4, v6")
        e("v_add_u32 %s, %s, v6", v(vD), s(sTB))
        e("v_xor_b32 %s, 32, %s", v(vD1), v(vD))

    def dl(ct): return ((vD, vD1)[ct & 1], (ct >> 1) * 1024) if ct < 4 else (vDC, 2048)

    def x_dma(k):
        e("s_add_u32 m0, %s, %d", s(sTB), k * 1024)
        if k < 2:
            e("buffer_load_dwordx4 %s, %s, %s offen offset:%d lds", v(vO), s(sX, 4), s(sOo), 0) if k == 0 else None
            if k == 1:
                e("s_add_u32 %s, %s, 640", s(sTmp), s(sOo))
                e("buffer_load_dwordx4 %s, %s, %s offen lds", v(vO), s(sX, 4), s(sTmp))
        else:
            e("s_mov_b32 exec_hi, 0")
            e("buffer_load_dwordx4 %s, %s, %s offen lds", v(vXC), s(sX, 4), s(sOc))
            e("s_mov_b32 exec_hi, -1")
        q.issue("x")

    def acc(ct, rt): return ACC + (ct * 4 + rt) * 4
    for i in range(NI):
        rs = RS + (i % 4) * 36
        if i < 4:
            la, lb = A.newlabel("L_w3"), A.newlabel("L_w3")
            e("s_cmp_eq_u32 %s, 0", s(sNU))
            e("s_cbranch_scc1 %s", la)
            e("s_waitcnt vmcnt(32)")
            e("s_branch %s", lb)
            A.label(la)
            q.wait("i%d" % i)
            A.label(lb)
        else:
            q.wait("i%d" % i)
        stamp("i%d" % i)
        if XQ and i == 10:
            for ct in range(5):
                e("ds_read_b64 %s, %s offset:%d", v(XR + 2 * ct, 2), v(dl(ct)[0]), dl(ct)[1])
        if XQ and i == 11:
            e("s_waitcnt lgkmcnt(0)")
        if i == 2 and EST:
            staged("s_cbranch_scc0")
        for ct in range(5):
            if i < 4:
                e("s_waitcnt lgkmcnt(%d)", 4 if i < 3 else 4 - ct)
            for rt in range(4):
                mm16(acc(ct, rt), WJ + 4 * ct if i < 4 else rs + 4 * ct, rs + 20 + 4 * rt, i == 0)
            if i < 3:
                wj(i + 1, ct)
            if 4 <= i < 8:
                wload(i + 4, ct)
            if i == NI - 1 and FIL and ct >= 2:
                for rho in range(1, 4):
                    e("ds_write_b128 %s, %s offset:%d", v(vWJ), v(acc(ct - 2, rho), 4), (rho - 1) * 5120 + (ct - 2) * 1024)
            if XQ and i == 3 and ct == 0:
                xq_addr()
            if XQ and i == 4 and ct >= 2:
                x_dma(ct - 2)
            if i == 9 and not XQ:
                e("buffer_load_dwordx2 %s, %s, %s, %s offen offset:%d", v(XR + 2 * ct, 2), v(vO), s(sX, 4), s(OFF[ct][0]), OFF[ct][1])
                q.issue("x")
        if i + 4 < NI:
            hload(i + 4)
    for rho in range(1, 4):
        e("s_sub_u32 %s, %s, %d", s(sTmp), s(sW), rho)
        e("s_and_b32 %s, %s, 3", s(sTmp), s(sTmp))
        e("s_mul_i32 %s, %s, %d", s(sTmp), s(sTmp), CPS)
        e("s_add_u32 %s, %s, %d", s(sTmp), s(sTmp), CP0 + (rho - 1) * 5120)
        e("v_add_u32 %s, %s, %s", v(40 + rho), s(sTmp), v(vL))
    for ct in range(3 if FIL else 0, 5):
        for rho in range(1, 4):
            e("ds_write_b128 %s, %s offset:%d", v(vWJ), v(acc(ct, rho), 4), (rho - 1) * 5120 + ct * 1024)
    e("s_lshl_b32 %s, %s, 10", s(sTmp), s(sW))
    e("v_add_u32 v40, %s, %s", s(sTmp), v(vL))
    e("s_waitcnt vmcnt(0)")
    for ct in range(5):
        x0, b = XR + 2 * ct, 20 + 4 * ct
        e("v_lshlrev_b32 %s, 16, %s", v(b), v(x0))
        e("v_and_b32 %s, 0xffff0000, %s", v(b + 1), v(x0))
        e("v_lshlrev_b32 %s, 16, %s", v(b + 2), v(x0 + 1))
        e("v_and_b32 %s, 0xffff0000, %s", v(b + 3), v(x0 + 1))
        for k in (0, 2):
            e("v_pk_add_f32 %s, %s, %s", v(acc(ct, 0) + k, 2), v(acc(ct, 0) + k, 2), v(b + k, 2))
    e("s_waitcnt lgkmcnt(0)")
    stamp("p3_end")
    e("s_barrier")
    stamp("p3_bar")
    LP = 48
    for c3 in range(3):
        for lw in range(4):
            e("ds_read_b128 %s, v40 offset:%d", v(LP + (c3 * 4 + lw) * 4, 4), ZU0 + lw * ZUS + c3 * 4096)
    for ct in range(5):
        for k in range(1, 4):
            e("ds_read_b128 %s, %s offset:%d", v(acc(ct, k), 4), v(40 + k), ct * 1024)
    e("s_waitcnt lgkmcnt(15)")
    for c3 in range(3):
        b = LP + c3 * 16
        for k in (0, 2):
            e("v_pk_add_f32 %s, %s, %s", v(b + k, 2), v(b + k, 2), v(b + 8 + k, 2))
            e("v_pk_add_f32 %s, %s, %s", v(b + 4 + k, 2), v(b + 4 + k, 2), v(b + 12 + k, 2))
        for k in (0, 2):
            if c3 < 2:
                e("v_pk_add_f32 %s, %s, %s neg_lo:[0,1] neg_hi:[0,1]", v(b + 8 + k, 2), v(b + k, 2), v(b + 4 + k, 2))
            e("v_pk_add_f32 %s, %s, %s", v(b + k, 2), v(b + k, 2), v(b + 4 + k, 2))
    zsrc = [LP, LP + 16, LP + 8, LP + 24, LP + 32]
    extra = 0
    for ct in range(5):
        b = acc(ct, 0)
        e("s_waitcnt lgkmcnt(%d)", 12 - 3 * ct + extra)
        for k in (0, 2):
            e("v_pk_add_f32 %s, %s, %s", v(b + k, 2), v(b + k, 2), v(zsrc[ct] + k, 2))
            e("v_pk_add_f32 %s, %s, %s", v(b + 4 + k, 2), v(b + 4 + k, 2), v(b + 8 + k, 2))
        for k in (0, 2):
            e("v_pk_add_f32 %s, %s, %s", v(b + k, 2), v(b + k, 2), v(b + 12 + k, 2))
        for k in (0, 2):
            e("v_pk_add_f32 %s, %s, %s", v(b + k, 2), v(b + k, 2), v(b + 4 + k, 2))
        e("v_cvt_pk_bf16_f32 %s, %s, %s", v(b + 8), v(b), v(b + 1))
        e("v_cvt_pk_bf16_f32 %s, %s, %s", v(b + 9), v(b + 2), v(b + 3))
        if not XQ:
            e("buffer_store_dwordx2 %s, %s, %s, %s offen offset:%d%s", v(b + 8, 2), v(vO), s(sOUT, 4), s(OFF[ct][0]), OFF[ct][1], OUTF)
            continue
        e("ds_write_b64 %s, %s offset:%d", v(dl(ct)[0]), v(b + 8, 2), dl(ct)[1] + 2560)
        extra += 1
        if ct in (1, 3, 4):
            e("ds_read_b128 %s, %s offset:%d", v(8 + 4 * (ct >> 1), 4), v(vWJ), 15360 + 2560 + (ct >> 1) * 1024)
            extra += 1
        if ct == 3:
            e("s_waitcnt lgkmcnt(3)")
            e("buffer_store_dwordx4 v[8:11], %s, %s, %s offen%s", v(vO), s(sOUT, 4), s(sOo), OUTF)
        if ct == 4:
            e("s_waitcnt lgkmcnt(2)")
            e("buffer_store_dwordx4 v[12:15], %s, %s, %s offen offset:640%s", v(vO), s(sOUT, 4), s(sOo), OUTF)
            e("s_waitcnt lgkmcnt(0)")
            e("s_mov_b32 exec_hi, 0")
            e("buffer_store_dwordx4 v[16:19], %s, %s, %s offen%s", v(vXC), s(sOUT, 4), s(sOc), OUTF)
            e("s_mov_b32 exec_hi, -1")
    lab = A.newlabel("L_noep")
    e("s_lshl_b32 %s, s2, 3", s(sTmp))
    e("s_add_u32 %s, %s, %s", s(sTmp), s(sTmp), s(sW))
    e("s_cmp_eq_u32 %s, 0", s(sTmp))
    e("s_cbranch_scc0 %s", lab)
    e("s_mov_b32 %s, 0x%x", s(sTmp), WS_EP)
    flag_store(sTmp, 5, 6)
    A.label(lab)


def pf3(part):
    e("s_lshr_b32 %s, s2, 3", s(sCnt))
    e("s_lshl_b32 %s, %s, 2", s(sCnt), s(sCnt))
    e("s_add_u32 %s, %s, %s", s(sCnt), s(sCnt), s(sLW))
    ntau = 40 if MAP8 else 20
    n = 0
    if part == 0:
        per = (ntau * 256 + 95) // 96
        for k in range((per + 63) // 64):
            e("s_mul_i32 %s, %s, %d", s(sTmp), s(sCnt), per)
            e("v_min_u32 v12, %d, v0", min(63, per - 64 * k - 1))
            e("v_add_u32 v12, %s, v12", s(sTmp))
            if k:
                e("v_add_u32 v12, %d, v12", 64 * k)
            e("v_lshrrev_b32 v13, 8, v12")
            e("v_and_b32 v12, 255, v12")
            if not MAP8:
                e("s_and_b32 %s, s2, 1", s(sTmp))
                e("s_lshl_b32 %s, %s, 3", s(sTmp2), s(sTmp))
                e("s_lshl_b32 %s, %s, 1", s(sTmp), s(sTmp))
                e("s_add_u32 %s, %s, 16", s(sTmp), s(sTmp))
                e("v_cmp_gt_u32 vcc, 16, v13")
                e("v_and_b32 v14, 7, v13")
                e("v_add_u32 v14, %s, v14", s(sTmp2))
                e("v_bfe_u32 v17, v13, 3, 1")
                e("v_mad_u32_u24 v14, v17, 20, v14")
                e("v_and_b32 v16, 1, v13")
                e("v_add_u32 v16, %s, v16", s(sTmp))
                e("v_bfe_u32 v17, v13, 1, 1")
                e("v_mad_u32_u24 v16, v17, 20, v16")
                e("v_cndmask_b32 v13, v16, v14, vcc")
            e("v_mul_u32_u24 v13, 49152, v13")
            e("v_lshl_add_u32 v60, v12, 7, v13")
            n += 1
    else:
        per = (4032 if MAP8 else 2016) // 96
        e("s_mul_i32 %s, %s, %d", s(sTmp), s(sCnt), per * 128)
        if not MAP8:
            e("s_and_b32 %s, s2, 1", s(sTmp2))
            e("s_mul_i32 %s, %s, %d", s(sTmp2), s(sTmp2), 4 * 63 * 1024)
            e("s_add_u32 %s, %s, %s", s(sTmp), s(sTmp), s(sTmp2))
        e("s_add_u32 %s, %s, %d", s(sTmp), s(sTmp), TB.CI_OFF)
        e("v_min_u32 v12, %d, v0", per - 1)
        e("v_lshlrev_b32 v12, 7, v12")
        e("v_add_u32 v61, %s, v12", s(sTmp))
        n = 1
    assert n == 1


def pf3_go(q, m):
    if m & 1:
        e("buffer_load_dword v63, v61, %s, 0 offen", s(sTAB, 4))
        q.issue("pf")
    if m & 2:
        e("s_mov_b32 %s, 0x%x", s(sTmp), WS_WD + 16384)
        e("buffer_load_dword v62, v60, %s, %s offen sc1", s(sWS, 4), s(sTmp))
        q.issue("pf")


def code_touch():
    lab = A.newlabel("L_ct")
    e("s_getpc_b64 s[4:5]")
    A.label(lab)
    e("s_sub_u32 s4, s4, %s - %s", lab, NAME + "_kernel")
    e("s_subb_u32 s5, s5, 0")
    e("s_mov_b32 %s, s4", s(sG))
    e("s_and_b32 %s, s5, 0xffff", s(sG + 1))
    e("s_mov_b32 %s, L_code_end - %s", s(sG + 2), NAME + "_kernel")
    e("s_mov_b32 %s, 0x00020000", s(sG + 3))
    if CT == 3:
        e("s_lshr_b32 %s, s2, 3", s(sTmp))
    else:
        e("s_bfe_u32 %s, s2, 0x30003", s(sTmp))
        e("s_lshl_b32 %s, %s, 2", s(sTmp), s(sTmp))
        e("s_add_u32 %s, %s, %s", s(sTmp), s(sTmp), s(sW))
    e("s_lshl_b32 %s, %s, 11", s(sTmp), s(sTmp))
    e("v_and_b32 v5, 15, v0")
    e("v_lshlrev_b32 v5, 7, v5")
    e("buffer_load_dword v15, v5, %s, %s offen", s(sG, 4), s(sTmp))


def warm_touch():
    e("s_lshl_b32 %s, s2, 1", s(sTmp))
    e("s_and_b32 %s, %s, 1", s(sTmp2), s(sLW))
    e("s_add_u32 %s, %s, %s", s(sTmp), s(sTmp), s(sTmp2))
    e("s_mul_i32 %s, %s, %d", s(sTmp), s(sTmp), 27 * 128)
    e("v_min_u32 v12, 26, v0")
    e("v_lshlrev_b32 v12, 7, v12")
    lab, lab2 = A.newlabel("L_wt"), A.newlabel("L_wt")
    e("s_cmp_ge_u32 %s, 2", s(sLW))
    e("s_cbranch_scc1 %s", lab)
    e("buffer_load_dword v250, v12, %s, %s offen", s(sWR, 4), s(sTmp))
    e("s_branch %s", lab2)
    A.label(lab)
    e("buffer_load_dword v250, v12, %s, %s offen", s(sWI, 4), s(sTmp))
    A.label(lab2)
    e("s_lshl_b32 %s, s2, 2", s(sTmp))
    e("s_add_u32 %s, %s, %s", s(sTmp), s(sTmp), s(sLW))
    e("s_mul_i32 %s, %s, %d", s(sTmp), s(sTmp), 6 * 128)
    e("s_add_u32 %s, %s, %d", s(sTmp), s(sTmp), TB.CI_OFF)
    e("v_min_u32 v12, 5, v0")
    e("v_lshlrev_b32 v12, 7, v12")
    e("buffer_load_dword v251, v12, %s, %s offen", s(sTAB, 4), s(sTmp))


def p1_ffn():
    vXA, vWA, FR, ACC = 8, 10, 16, 112
    stats_addr(16)
    e("s_and_b32 %s, %s, 1", s(sWM), s(sW))
    e("s_lshr_b32 %s, %s, 1", s(sWN), s(sW))
    karg_wait(["X"], ["WS", "OUT"])
    lab = A.newlabel("L_nost")
    e("s_cmp_ge_u32 %s, 8", s(sCG))
    e("s_cbranch_scc1 %s", lab)
    stats_issue(16)
    A.label(lab)
    e("s_lshl_b32 %s, %s, 3", s(sFlag), s(sRB))
    e("s_add_u32 %s, %s, %s", s(sFlag), s(sFlag), s(sCG))
    e("s_lshl_b32 %s, %s, 7", s(sFlag), s(sFlag))
    e("s_add_u32 %s, %s, 0x%x", s(sFlag), s(sFlag), WS_FS)
    p3c_setup()
    e("v_and_b32 v5, 15, v0")
    e("v_lshlrev_b32 v5, 7, v5")
    e("s_lshl_b32 %s, %s, 13", s(sTmp), s(sWM))
    e("v_add_u32 v5, %s, v5", s(sTmp))
    e("v_lshrrev_b32 v6, 4, v0")
    e("v_bfe_u32 v7, v0, 1, 3")
    e("v_xor_b32 v6, v6, v7")
    e("v_lshl_add_u32 %s, v6, 4, v5", v(vXA))
    e("v_xor_b32 %s, 64, %s", v(vXA + 1), v(vXA))
    e("v_lshrrev_b32 v5, 4, v0")
    e("v_bfe_u32 v6, v0, 2, 2")
    e("v_lshl_add_u32 v7, v5, 3, v6")
    e("v_lshlrev_b32 v7, 8, v7")
    e("v_and_b32 v5, 1, v5")
    e("v_lshl_add_u32 v5, v6, 1, v5")
    e("s_lshl_b32 %s, %s, 2", s(sTmp), s(sWN))
    e("v_xor_b32 v5, %s, v5", s(sTmp))
    e("v_lshl_add_u32 v7, v5, 5, v7")
    e("v_and_b32 v6, 3, v0")
    e("v_lshl_add_u32 %s, v6, 3, v7", v(vWA))
    for ft in range(1, 4):
        e("v_xor_b32 %s, %d, %s", v(vWA + ft), ft << 5, v(vWA))
    lab = A.newlabel("L_nost")
    e("s_cmp_ge_u32 %s, 8", s(sCG))
    e("s_cbranch_scc1 %s", lab)
    e("s_waitcnt vmcnt(0)")
    stats_compute(16)
    A.label(lab)
    k_offset(sK1)
    e("s_bfe_u32 %s, s2, 0x20004", s(sPar))
    e("s_add_u32 %s, %s, %s", s(sK1), s(sK1), s(sPar))
    if KG:
        mod10(sK1)
    e("s_mul_i32 %s, %s, 12288", s(sK1), s(sK1))
    e("s_lshl_b32 %s, %s, 2", s(sTmp), s(sCG))
    e("s_lshl_b32 %s, %s, 1", s(sTmp2), s(sWM))
    e("s_add_u32 %s, %s, %s", s(sTmp), s(sTmp), s(sTmp2))
    e("s_add_u32 %s, %s, %s", s(sTmp), s(sTmp), s(sWN))
    e("s_lshl_b32 %s, %s, 8", s(sTmp), s(sTmp))
    e("s_add_u32 %s, %s, %s", s(sK1), s(sK1), s(sTmp))
    e("s_add_u32 %s, %s, 0x%x", s(sK1), s(sK1), WS_CSP)
    e("s_bfe_u32 %s, s2, 0x30003", s(sTmp))
    e("s_cmp_ge_u32 %s, 5", s(sTmp))
    e("s_cselect_b32 %s, 100, %s", s(sPar), s(sPar))
    e("s_cmp_lg_u32 %s, 0", s(sW))
    e("s_cselect_b32 %s, 100, %s", s(sNU), s(sPar))
    for i in range(4):
        e("v_mov_b32 %s, 0x3f803f80", v(2 + i))
    e("v_and_b32 v14, 48, v0")
    stamp("c_set")

    def stat_flag():
        e("s_lshr_b32 %s, %s, 3", s(sTmp), s(sCG))
        e("s_or_b32 %s, %s, %s", s(sTmp), s(sTmp), s(sW))
        rare("s_cbranch_scc0", lambda: flag_store(sFlag, 6, 7))

    def cs_mfma(it, p):
        def body():
            la, lb = A.newlabel("L_csm"), A.newlabel("L_csm")
            e("s_cmp_eq_u32 %s, 1", s(sWM))
            e("s_cbranch_scc1 %s", la)
            for mat in range(2):
                if mat:
                    e("s_branch %s", lb)
                    A.label(la)
                for ft in range(4):
                    mm16(240 + 4 * ft, wf(p, mat, ft), 2, p == 0)
            A.label(lb)
        e("s_cmp_eq_u32 %s, %d", s(sPar), it)
        rare("s_cbranch_scc1", body)

    def cs_store(it):
        def body():
            e("s_mov_b32 exec_lo, 0x00010001")
            e("s_mov_b32 exec_hi, 0x00010001")
            for ft in range(4):
                e("buffer_store_dwordx4 %s, v14, %s, %s offen offset:%d sc1", v(240 + 4 * ft, 4), s(sWS, 4), s(sK1), ft * 64)
            e("s_mov_b64 exec, -1")
        e("s_cmp_eq_u32 %s, %d", s(sPar), it)
        rare("s_cbranch_scc1", body)

    def cs_wait(it):
        e("s_cmp_eq_u32 %s, %d", s(sPar), it)
        rare("s_cbranch_scc1", lambda: e("s_waitcnt vmcnt(0)"))

    def cs_flag(it):
        def body():
            e("s_lshl_b32 %s, s2, 7", s(sTmp))
            e("s_add_u32 %s, %s, 0x%x", s(sTmp), s(sTmp), WS_FSC)
            flag_store(sTmp, 6, 7)
        e("s_cmp_eq_u32 %s, %d", s(sNU), it)
        rare("s_cbranch_scc1", body)

    def acc(mat, ft, st): return ACC + ((mat * 4 + ft) * 4 + st) * 4
    def xf(p, st): return FR + p * 48 + st * 4
    def wf(p, mat, ft): return FR + p * 48 + 16 + (mat * 4 + ft) * 4
    keys = [("x", 0), ("w", 0, 0), ("w", 0, 0), ("x", 1), ("x", 2), ("x", 3)]
    for ft in range(4):
        for mat in range(2):
            if (mat, ft) != (0, 0):
                keys += [("w", mat, ft)] * 2

    def reads(p, t):
        out, seen = [], {}
        for k in keys:
            if k[0] == "x":
                out.append(lambda st=k[1]: e("ds_read_b128 %s, %s offset:%d", v(xf(p, st), 4), v(vXA + t), st * 2048))
            else:
                rd = seen.get(k, 0); seen[k] = rd + 1
                out.append(lambda mat=k[1], ft=k[2], rd=rd: e("ds_read_b64_tr_b16 %s, %s offset:%d", v(wf(p, mat, ft) + 2 * rd, 2), v(vWA + ft), 16384 * (1 + mat) + t * 8192 + rd * 1024))
        return out
    morder, n = [], 0
    for ft in range(4):
        for mat in range(2):
            morder += [(mat, ft, st) for st in ([0, 1, 2, 3] if n % 2 == 0 else [3, 2, 1, 0])]
            n += 1
    need = [max(i + 1 for i, k in enumerate(keys) if k == ("x", m[2]) or k == ("w", m[0], m[1])) for m in morder]

    def mfmas(p, first=False):
        return [(lambda m=m: mm16(acc(*m), wf(p, m[0], m[1]), xf(p, m[2]), first)) for m in morder]
    hooks = []
    for it in range(10):
        h0, h1 = {}, {}
        if it < 3:
            h0[31] = [lambda it=it: cs_mfma(it, 0)]
            h1[8] = [lambda it=it: cs_mfma(it, 1)]
            h1[30] = [lambda it=it: cs_store(it)]
        if it == 0:
            h1[3] = [stat_flag]
        if 2 <= it <= 4:
            h1[2] = [lambda it=it: cs_wait(it - 2)]
            h1[3] = [lambda it=it: cs_flag(it - 2)]
        hooks.append([h0, h1])
    vmw = [0] + [None] * 9
    gemm_loop(10, 2, mfmas, reads, need, [8, 9, 10, 11, 12, 13], 3, 1, unroll=[(None, [])] + [(vmw[i], []) for i in range(9)], hooks=hooks, loop_from=5 if opt("loop", 1) else None)

    RM, CS = 16, 32
    e("v_and_b32 v5, 15, v0")
    e("v_lshlrev_b32 v5, 2, v5")
    e("s_lshl_b32 %s, %s, 8", s(sTmp), s(sWM))
    e("s_add_u32 %s, %s, %d", s(sTmp), s(sTmp), AUX)
    e("v_add_u32 v5, %s, v5", s(sTmp))
    for st in range(4):
        e("ds_read_b32 %s, v5 offset:%d", v(RM + 4 * st), st * 64)
        e("ds_read_b32 %s, v5 offset:%d", v(RM + 4 * st + 2), 512 + st * 64)
    e("v_lshrrev_b32 v6, 4, v0")
    e("v_lshlrev_b32 v6, 4, v6")
    e("s_lshl_b32 %s, %s, 8", s(sTmp), s(sWN))
    e("s_add_u32 %s, %s, %d", s(sTmp), s(sTmp), AUX + 1024)
    e("v_add_u32 v6, %s, v6", s(sTmp))
    for ft in range(4):
        for mat in range(2):
            e("ds_read_b128 %s, v6 offset:%d", v(CS + (mat * 4 + ft) * 4, 4), mat * 512 + ft * 64)
    e("s_lshl_b32 %s, %s, 1", s(sFlag), s(sRB))
    e("s_add_u32 %s, %s, %s", s(sFlag), s(sFlag), s(sWM))
    e("s_mul_i32 %s, %s, %d", s(sTmp), s(sFlag), 2 * 48 * 2048)
    e("s_lshl_b32 s3, %s, 2", s(sCG))
    e("s_lshl_b32 %s, %s, 1", s(sCnt), s(sWN))
    e("s_add_u32 s3, s3, %s", s(sCnt))
    e("s_lshl_b32 s3, s3, 11")
    e("s_add_u32 %s, %s, s3", s(sDelta), s(sTmp))
    e("s_lshl_b32 %s, %s, 1", s(sFlag), s(sFlag))
    e("s_add_u32 %s, %s, %s", s(sFlag), s(sFlag), s(sWN))
    e("s_mul_i32 %s, %s, 12", s(sFlag), s(sFlag))
    e("s_add_u32 %s, %s, %s", s(sFlag), s(sFlag), s(sCG))
    e("s_lshl_b32 %s, %s, 7", s(sFlag), s(sFlag))
    e("s_add_u32 %s, %s, 0x%x", s(sFlag), s(sFlag), WS_FH)
    e("v_lshlrev_b32 v5, 4, v0")
    e("s_waitcnt lgkmcnt(4)")
    for st in range(4):
        e("v_mul_f32 %s, %s, %s", v(RM + 4 * st), v(RM + 4 * st), v(RM + 4 * st))
    for ph in range(2):
        if ph == 1:
            e("s_waitcnt lgkmcnt(0)")
        for st in range(4):
            rr, mm_ = RM + 4 * st, RM + 4 * st + 2
            o = 64 + ((ph * 4 + st) & 3) * 4
            for fi in range(2):
                ft = 2 * ph + fi
                g0, u0 = acc(0, ft, st), acc(1, ft, st)
                for k in (0, 2):
                    e("v_pk_fma_f32 %s, %s, %s, %s op_sel_hi:[1,0,1] neg_lo:[0,1,0] neg_hi:[0,1,0]", v(g0 + k, 2), v(CS + ft * 4 + k, 2), v(mm_, 2), v(g0 + k, 2))
                    e("v_pk_fma_f32 %s, %s, %s, %s op_sel_hi:[1,0,1] neg_lo:[0,1,0] neg_hi:[0,1,0]", v(u0 + k, 2), v(CS + 16 + ft * 4 + k, 2), v(mm_, 2), v(u0 + k, 2))
                for k in range(4):
                    e("v_max_f32 %s, 0, %s", v(g0 + k), v(g0 + k))
                for k in (0, 2):
                    e("v_pk_mul_f32 %s, %s, %s op_sel_hi:[1,0]", v(u0 + k, 2), v(u0 + k, 2), v(rr, 2))
                for k in (0, 2):
                    e("v_pk_mul_f32 %s, %s, %s", v(g0 + k, 2), v(g0 + k, 2), v(u0 + k, 2))
                for k in range(2):
                    e("v_cvt_pk_bf16_f32 %s, %s, %s", v(o + 2 * fi + k), v(g0 + 2 * k), v(g0 + 2 * k + 1))
            e("s_add_u32 %s, %s, %d", s(sTmp), s(sDelta), WS_H + (st >> 1) * 48 * 2048 + ph * 2048)
            e("buffer_store_dwordx4 %s, v5, %s, %s offen offset:%d sc1", v(o, 4), s(sWS, 4), s(sTmp), (st & 1) * 1024)
    stamp("c_ep")
    p3_pre()
    e("s_mov_b32 %s, 0", s(sNU))
    e("s_branch L_p3c")


def p1_dft():
    njb = 5
    vXA, vCA, FR, ACC, FC, CO, SI = 8, 12, 16, 80, 208, 176, 192
    tab_srd()
    e("v_lshlrev_b32 v13, 4, v0")
    e("s_mul_i32 %s, %s, %d", s(sBoff), s(sCG), 20 * 5 * 1024)
    e("s_mul_i32 %s, %s, %d", s(sM0), s(sW), 5 * 1024)
    e("s_add_u32 %s, %s, %s", s(sBoff), s(sBoff), s(sM0))
    e("s_lshl_b32 %s, %s, 2", s(sWM), s(sM0))
    cur = [0]

    def cl(i):
        ops = []
        for tl in range(njb):
            def f(tl=tl):
                e("s_add_u32 m0, %s, %d", s(sM0 if CSTR[i] == 5120 else sWM), CBASE[i] + tl * 1024)
                e("s_add_u32 %s, %s, %d", s(sTmp), s(sBoff), i * 4 * njb * 1024 + tl * 1024)
                e("buffer_load_dwordx4 v13, %s, %s offen lds", s(sTAB, 4), s(sTmp))
            ops.append(f)
        return ops
    q = VQ()
    XC = [224, 240, 160, 208, 224]
    NC = 4 - NL

    def xc(i):
        gs = []
        for n in range(NL, 4):
            for hf in range(2):
                def f(n=n, hf=hf):
                    e("s_add_u32 %s, %s, %d", s(sTmp), s(sAoff), n * 8 * 81920 + i * 128)
                    e("buffer_load_dwordx4 %s, v14, %s, %s offen offset:%d", v(XC[i] + (n - NL) * 8 + hf * 4, 4), s(sX, 4), s(sTmp), hf * 640)
                gs.append(cap(f))
        q.issue("x%d" % i, 2 * NC)
        return gs

    def cg(i):
        q.issue("c%d" % i, njb)
        return [cap(f) for f in cl(i)]

    def foldc(i):
        for n in range(NL, 4):
            fold_group(XC[i] + (n - NL) * 8, 64, 72, (1, 2)[n & 1], (1 - (i & 1)) * 5120 + n * 1024)
    if XO == 1:
        weave([], cg(0))
    fold_addr(14, 1, 3)
    x_src_scalar()
    stamp("dc_pre")
    e("s_waitcnt lgkmcnt(0)")
    stamp("dc_k")
    srd(A, *SRDS["X"])
    weave([], xc(0) + (cg(0) if XO == 0 else []) + xc(1))
    stamp("dc_i0")
    e("s_mul_i32 %s, %s, %d", s(sTmp), s(sW), CPS)
    e("s_add_u32 %s, %s, %d", s(sTmp), s(sTmp), XB + 5120)
    e("v_and_b32 v5, 31, v0")
    e("v_lshlrev_b32 v5, 7, v5")
    e("v_add_u32 v5, %s, v5", s(sTmp))
    e("v_lshrrev_b32 v6, 5, v0")
    e("v_bfe_u32 v7, v0, 1, 3")
    e("v_xor_b32 v6, v6, v7")
    e("v_lshl_add_u32 %s, v6, 4, v5", v(vXA))
    for t in range(1, 4):
        e("v_xor_b32 %s, %d, %s", v(vXA + t), t << 5, v(vXA))
    e("v_mov_b32 %s, v13", v(vCA))
    e("v_add_u32 v3, %d, v13", CP0 + 3 * CPS)
    karg_wait([], ["WS", "OUT"])
    p3c_setup()
    e("s_cmp_ge_u32 %s, 2", s(sCG))
    e("s_cselect_b32 %s, -1.0, 1.0", s(sSgn))
    e("v_mov_b32 v72, 0xffff0000")
    e("s_lshl_b32 %s, %s, 2", s(sS2), s(sRB))
    e("s_add_u32 %s, %s, %s", s(sS2), s(sS2), s(sW))
    e("v_and_b32 v5, 31, v0")
    e("v_lshrrev_b32 v6, 5, v0")
    e("v_lshlrev_b32 v6, 8, v6")
    e("v_add_u32 v6, %s, v6", s(sS2))
    e("v_mul_u32_u24 v6, v6, v5")

    def consts():
        for kap in range(2):
            for i in range(8):
                s0 = 16 * kap + 8 * (i >> 2) + (i & 3)
                e("v_mul_u32_u24 v7, %d, v5", 64 * s0)
                e("v_add_u32 v7, v7, v6")
                e("v_and_b32 v7, 0x7ff, v7")
                e("v_cvt_f32_u32 v7, v7")
                e("v_mul_f32 v7, 0x3a000000, v7")
                e("v_cos_f32 %s, v7", v(CO + 8 * kap + i))
                e("v_sin_f32 %s, v7", v(SI + 8 * kap + i))
    if CX == 0:
        weave(cap(consts), cg(1) + xc(2) + cg(2) + xc(3) + cg(3), skip=10)
        q.wait("x0")
        weave(cap(lambda: foldc(0)), cg(4))
        weave([], xc(4))
        late = {}
    elif CX == 1:
        weave(cap(consts), cg(1) + xc(2) + cg(2), skip=40)
        q.wait("x0")
        weave(cap(lambda: foldc(0)), xc(3) + cg(3))
        late = {0: lambda: xc(4) + cg(4)}
    else:
        stamp("dc_c0")
        weave(cap(consts), cg(1) + xc(2), skip=60)
        stamp("dc_c1")
        q.wait("x0")
        stamp("dc_x0")
        weave(cap(lambda: foldc(0)), cg(2))
        late = {0: lambda: xc(3) + cg(3), 1: lambda: xc(4) + cg(4)}
    stamp("c_set")

    def xf(p): return FR + p * 24
    def cf(p, tl): return FR + p * 24 + 4 + 4 * tl

    def reads(p, t):
        ops = [lambda: e("ds_read_b128 %s, %s", v(xf(p), 4), v(vXA + t))]
        for tl in range(njb):
            if t == 3 and CSTR[cur[0]] == CPS:
                ops.append(lambda tl=tl, o=CBASE[cur[0]] - CP0: e("ds_read_b128 %s, v3 offset:%d", v(cf(p, tl), 4), o + tl * 1024))
            else:
                ops.append(lambda tl=tl, st=CSTR[cur[0]]: e("ds_read_b128 %s, %s offset:%d", v(cf(p, tl), 4), v(vCA), t * st + tl * 1024))
        return ops

    def mfmas(p, first=False):
        return [(lambda tl=tl: e("v_mfma_f32_32x32x16_bf16 %s, %s, %s, %s", v(ACC + 16 * tl, 16), v(xf(p), 4), v(cf(p, tl), 4), "0" if first else v(ACC + 16 * tl, 16))) for tl in range(njb)]

    def vmc(tag):
        last = max([i for i, x in enumerate(q.q) if x == tag], default=-1)
        if last < 0:
            return None
        n = len(q.q) - 1 - last
        q.q = q.q[last + 1:]
        return n

    def fills(i):
        cur[0] = i
        if i == 4:
            return []
        w = cap(lambda: q.wait("x%d" % (i + 1))) if NC else []
        mem = late[i]() if i in late else []
        work = [[ln] for ln in cap(lambda: foldc(i + 1))]
        out, k = [w], 0
        for n, g in enumerate(work):
            out.append(g)
            if n % 5 == 4 and k < len(mem):
                out.append(mem[k]); k += 1
        return out + mem[k:]

    def advf(i):
        for t in range(4):
            e("v_add_u32 %s, %d, %s", v(vXA + t), (5120 if i & 1 else -5120) & 0xffffffff, v(vXA + t))
        e("v_add_u32 %s, %d, %s", v(vCA), (CBASE[i + 1] - CBASE[i]) & 0xffffffff, v(vCA))
    gemm_loop(5, 4, mfmas, reads, [2 + tl for tl in range(njb)], [vXA + i for i in range(5)], 0, 2, buf0=SLAB, advf=advf,
              unroll=[(vmc("c0"), [])] + [((lambda i=i: vmc("c%d" % i)), []) for i in range(1, 5)], fills=fills)

    if EPR:
        e("s_setprio %d", EPR)
    RR, MM = 16, 32
    e("v_lshrrev_b32 v6, 5, v0")
    e("v_lshlrev_b32 v6, 4, v6")
    e("s_lshl_b32 %s, %s, 7", s(sTmp), s(sW))
    e("s_add_u32 %s, %s, %d", s(sTmp), s(sTmp), AUX)
    e("v_add_u32 v7, %s, v6", s(sTmp))
    for jj in range(4):
        e("ds_read_b128 %s, v7 offset:%d", v(RR + 4 * jj, 4), jj * 32)
    e("v_and_b32 v5, 15, v0")
    e("v_lshlrev_b32 v5, 6, v5")
    e("v_bfe_u32 v6, v0, 4, 1")
    e("v_lshl_add_u32 v5, v6, 5, v5")
    e("v_lshrrev_b32 v6, 5, v0")
    e("v_lshl_add_u32 v5, v6, 4, v5")
    e("s_and_b32 %s, %s, 1", s(sJB), s(sCG))
    e("s_mul_i32 %s, %s, 10", s(sJB), s(sJB))
    e("s_lshr_b32 %s, %s, 1", s(sTmp), s(sCG))
    e("s_add_u32 %s, %s, %s", s(sJB), s(sJB), s(sTmp))
    e("s_mul_i32 %s, %s, %d", s(sDelta), s(sS2), TSTR)
    e("s_mul_i32 %s, %s, 10240", s(sTmp), s(sCG))
    if TP == 1:
        e("v_and_b32 v4, 15, v0")
        e("v_lshl_add_u32 v4, v4, 6, v5")
    elif TP == 3:
        e("s_mul_i32 %s, %s, %d", s(sTmp2), s(sW), CPS)
        e("s_add_u32 %s, %s, %d", s(sTmp2), s(sTmp2), CP0)
        e("v_bfe_u32 v1, v5, 4, 2")
        e("v_and_b32 v2, 7, v0")
        e("v_xor_b32 v1, v1, v2")
        e("v_and_b32 v4, 15, v0")
        e("v_lshlrev_b32 v4, 7, v4")
        e("v_lshl_add_u32 v1, v1, 4, v4")
        e("v_add_u32 v1, %s, v1", s(sTmp2))
        e("v_lshrrev_b32 v4, 3, v0")
        e("v_xor_b32 v3, v2, v4")
        e("v_lshlrev_b32 v4, 7, v4")
        e("v_lshl_add_u32 v3, v3, 4, v4")
        e("v_add_u32 v3, %s, v3", s(sTmp2))
        e("v_xor_b32 v2, 64, v1")
        e("v_lshlrev_b32 v4, 4, v0")
    else:
        e("v_and_b32 v4, 7, v0")
        e("v_lshlrev_b32 v4, 7, v4")
        e("v_and_b32 v1, 0x30, v5")
        e("v_add_u32 v4, v4, v1")
        e("v_bfe_u32 v1, v0, 3, 1")
        e("v_lshl_add_u32 v2, v1, 6, v4")
        e("v_xor_b32 v1, 1, v1")
        e("v_lshl_add_u32 v4, v1, 6, v4")
        e("s_mov_b32 s28, 0xff00ff00")
        e("s_mov_b32 s29, 0xff00ff00")
    e("s_add_u32 %s, %s, %s", s(sDelta), s(sDelta), s(sTmp))
    e("s_add_u32 %s, %s, 0x%x", s(sDelta), s(sDelta), WS_T)
    e("s_lshl_b32 %s, %s, 4", s(sFlag), s(sCG))
    e("s_add_u32 %s, %s, %s", s(sFlag), s(sFlag), s(sRB))
    e("s_lshl_b32 %s, %s, 7", s(sFlag), s(sFlag))
    e("s_add_u32 %s, %s, 0x%x", s(sFlag), s(sFlag), WS_FT)
    e("v_bfe_u32 v6, v0, 3, 1")
    e("v_cmp_eq_u32 vcc, 0, v6")
    e("v_mov_b32 v6, 0")
    e("v_mov_b32 v13, 0x80008000")
    e("v_cndmask_b32 v6, v6, v13, vcc")
    DD, AF, AN = [224, 240], [48, 64], 32

    def epilogue(first):
        order = ([4, 2, 3, 1, 0, 5] if TP >= 2 else [1, 2, 3, 4, 0, 5]) if first else [0, 1, 2, 3, 4]
        got, defer = set(), []

        def pack(n):
            tl = order[n]
            if tl == 5:
                e("s_nop 1")
                return
            a0, af = ACC + 16 * tl, AF[n & 1]
            if first and tl == 0:
                for i in range(16):
                    e("v_fma_f32 %s, -%s, v7, %s", v(a0 + i), v(MM + i), v(a0 + i))
            for i in range(8):
                e("v_cvt_pk_bf16_f32 %s, %s, %s", v(af + i), v(a0 + 2 * i), v(a0 + 2 * i + 1))
            if first and tl == 0:
                for i in range(8):
                    e("v_and_b32_dpp %s, %s, v14 row_ror:8 row_mask:0xf bank_mask:0xf", v(AN + i), v(af + i))
                    e("v_and_b32 %s, v15, %s", v(AN + 8 + i), v(af + i))
                for i in range(8):
                    e("v_bfi_b32 %s, v15, 0, %s", v(af + i), v(af + i))
            for i in range(8):
                e("v_xor_b32_dpp %s, %s, v6 row_ror:8 row_mask:0xf bank_mask:0xf", v(af + 8 + i), v(af + i))

        def stage(n):
            d, af = DD[n & 1], AN if order[n] == 5 else AF[n & 1]
            for k in range(4):
                e("v_mfma_f32_32x32x16_bf16 %s, %s, %s, %s", v(d, 16), v(af + 4 * k, 4), v(FC + 4 * k, 4), v(d, 16) if k else "0")

        def finish(n):
            d, tl = DD[n & 1], order[n]
            o = ACC + 16 * tl if TP == 2 and tl < 4 else d
            for i in range(8):
                e("v_cvt_pk_bf16_f32 %s, %s, %s", v(o + i), v(d + 2 * i), v(d + 2 * i + 1))
            e("s_add_u32 %s, %s, %d", s(sTmp), s(sDelta), 40960 if tl == 5 else (tl >> 1) * 4096)
            e("s_nop 0")
            for i in range(4):
                e("v_permlane16_swap_b32 %s, %s", v(o + i), v(o + 4 + i))
            if TP == 3 and tl < 4:
                for q in range(2):
                    e("ds_write_b128 %s, %s offset:%d", v(1 + (tl & 1)), v(d + 4 * q, 4), (tl >> 1) * 4096 + q * 2048)
                got.add(tl)
                if (tl ^ 1) in got:
                    for m in range(4):
                        e("ds_read_b128 %s, v3 offset:%d", v(ACC + 16 * tl + 4 * m, 4), (tl >> 1) * 4096 + m * 1024)

                    def later():
                        e("s_add_u32 %s, %s, %d", s(sTmp), s(sDelta), (tl >> 1) * 4096)
                        for m in range(4):
                            e("s_waitcnt lgkmcnt(%d)", 3 - m)
                            e("buffer_store_dwordx4 %s, v4, %s, %s offen offset:%d sc1", v(ACC + 16 * tl + 4 * m, 4), s(sWS, 4), s(sTmp), m * 1024)
                    defer.append(cap(later))
                return
            if TP == 2 and tl < 4:
                got.add(tl)
                if (tl ^ 1) not in got:
                    return
                a_, b_, t_ = ACC + 16 * (tl & 2), ACC + 16 * (tl | 1), ACC + 16 * tl + 8
                e("s_nop 0")
                for i in range(8):
                    e("v_mov_b32_dpp %s, %s row_ror:8 row_mask:0xf bank_mask:0xf", v(t_ + i), v(b_ + i))
                for q in range(2):
                    for i in range(4 * q, 4 * q + 4):
                        e("v_cndmask_b32 %s, %s, %s, s[28:29]", v(b_ + i), v(t_ + i), v(a_ + i))
                        e("v_cndmask_b32 %s, %s, %s, s[28:29]", v(a_ + i), v(a_ + i), v(t_ + i))
                    e("buffer_store_dwordx4 %s, v2, %s, %s offen offset:%d sc1", v(a_ + 4 * q, 4), s(sWS, 4), s(sTmp), q * 2048)
                    e("buffer_store_dwordx4 %s, v4, %s, %s offen offset:%d sc1", v(b_ + 4 * q, 4), s(sWS, 4), s(sTmp), q * 2048 + 1024)
                return
            for q in range(2):
                if tl < 4:
                    e("buffer_store_dwordx4 %s, v4, %s, %s offen offset:%d sc1", v(d + 4 * q, 4), s(sWS, 4), s(sTmp), q * 2048 + (tl & 1) * 64)
                else:
                    e("buffer_store_dwordx4 %s, v5, %s, %s offen offset:%d sc1", v(d + 4 * q, 4), s(sWS, 4), s(sTmp), q * 1024)
        if first:
            for jj in range(4):
                e("ds_read_b128 %s, v7 offset:%d", v(MM + 4 * jj, 4), 512 + jj * 32)
            e("v_and_b32 v15, 31, v0")
            e("v_cmp_eq_u32 vcc, 0, v15")
            e("v_cmp_eq_u32 s[4:5], 8, v15")
            e("v_mov_b32 v13, 0x44200000")
            e("v_cndmask_b32 v14, 0, -1, vcc")
            e("v_cndmask_b32 v15, 0, -1, s[4:5]")
        pack(0)
        e("s_waitcnt lgkmcnt(0)")
        if first:
            e("v_and_b32 v7, v13, v14")
        for i in range(0, 16, 2):
            e("v_pk_mul_f32 %s, %s, %s", v(CO + i, 2), v(CO + i, 2), v(RR + i, 2))
            e("v_pk_mul_f32 %s, %s, %s neg_lo:[1,0] neg_hi:[1,0]", v(SI + i, 2), v(SI + i, 2), v(RR + i, 2))
        for i in range(8):
            e("v_cvt_pk_bf16_f32 %s, %s, %s", v(FC + i), v(CO + 2 * i), v(CO + 2 * i + 1))
            e("v_cvt_pk_bf16_f32 %s, %s, %s", v(FC + 8 + i), v(SI + 2 * i), v(SI + 2 * i + 1))
        e("s_nop 1")
        if EPI:
            N_ = len(order)
            for n in range(-1, N_):
                S = cap(lambda: stage(n + 1)) if n + 1 < N_ else []
                P_ = cap(lambda: pack(n + 2)) if n + 2 < N_ else []
                D_ = defer.pop() if defer else []
                F_ = cap(lambda: finish(n)) if n >= 0 else []
                if not S:
                    A.lines += (D_ + ["    s_nop 7"] if D_ else ["    s_nop 15"]) + F_
                elif not F_:
                    k = (len(P_) + 2) // 3
                    A.lines += S[:1] + P_[:k] + S[1:2] + P_[k:2 * k] + S[2:3] + P_[2 * k:] + S[3:]
                else:
                    if len(P_) < 12:
                        P_ = P_ + ["    s_nop 10"]
                    k = 16 if len(F_) < 20 else 24
                    A.lines += S[:1] + P_ + D_ + S[1:2] + F_[:9] + S[2:3] + F_[9:k] + S[3:] + F_[k:]
            return
        stage(0)
        for n in range(len(order)):
            if n + 1 < len(order):
                pack(n + 1)
                stage(n + 1)
                if order[n + 1] == 5:
                    e("s_nop 7")
            else:
                e("s_nop 15")
            finish(n)
    e("s_cmp_eq_u32 %s, 0", s(sCG))
    e("s_cbranch_scc1 L_dft_e0")
    epilogue(False)
    e("s_branch L_dft_c")
    A.label("L_dft_e0")
    epilogue(True)


def mid_k1():
    e("s_and_b32 s3, s2, 7")
    e("s_lshl_b32 %s, s3, 2", s(sK1))
    e("s_bfe_u32 s3, s2, 0x20004")
    e("s_add_u32 %s, %s, s3", s(sK1), s(sK1))
    e("s_bfe_u32 s3, s2, 0x10003")


def mid():
    FC, PD = 64, 48
    XU, WY, DF = [128, 160], [192, 224], [16, 40]
    vL, vT, vWr, vUo, vP, vTG = 5, 6, 7, 10, 11, 15
    e("v_lshlrev_b32 %s, 4, v0", v(vL))
    e("v_and_b32 v9, 3, v0")
    e("v_add_u32 v13, %d, %s", FR_L, v(vL))
    for n in range(8):
        e("ds_read_b128 %s, v13 offset:%d", v(FC + 4 * n, 4), n * 1024)
    for i in range(32):
        e("v_mov_b32 %s, 0", v(WY[0] + i))
    e("v_and_b32 v8, 15, v0")
    e("v_lshrrev_b32 v12, 2, v0")
    e("v_lshlrev_b32 %s, 6, v12", v(vT))
    e("v_lshl_add_u32 %s, v9, 4, %s", v(vT), v(vT))
    e("v_add_u32 %s, %s, %s", v(vT), s(sM0), v(vT))
    e("v_and_b32 v13, 12, v12")
    e("v_bfe_u32 v14, v0, 3, 1")
    e("v_lshl_add_u32 v13, v14, 4, v13")
    e("v_bfe_u32 v14, v0, 2, 1")
    e("v_lshl_add_u32 v13, v14, 1, v13")
    e("v_mul_u32_u24 v12, %d, v13", TSTR)
    e("v_lshl_add_u32 %s, v9, 4, v12", v(vTG))
    e("v_lshrrev_b32 v9, 4, v0")
    e("v_lshlrev_b32 %s, 6, v8", v(vUo))
    e("v_lshl_add_u32 %s, v9, 4, %s", v(vUo), v(vUo))
    e("v_mul_u32_u24 v12, %d, v9", 4 * 336)
    e("v_lshl_add_u32 v12, v8, 2, v12")
    e("s_add_u32 %s, %s, %s", s(sTmp), s(sMW), s(sPar))
    e("v_add_u32 %s, %s, v12", v(vWr), s(sTmp))
    e("v_bfe_u32 v12, v0, 3, 1")
    e("v_lshlrev_b32 v12, 1, v12")
    e("v_bfe_u32 v13, v0, 4, 1")
    e("v_lshl_add_u32 v12, v13, 4, v12")
    e("v_lshrrev_b32 v14, 5, v0")
    e("v_lshl_add_u32 v12, v14, 2, v12")
    e("v_mul_u32_u24 v12, %d, v12", TSTR)
    e("v_bfe_u32 v14, v0, 2, 1")
    e("v_xor_b32 v13, v13, v14")
    e("v_lshl_add_u32 v12, v13, 6, v12")
    e("v_and_b32 v13, 3, v0")
    e("v_lshl_add_u32 v1, v13, 4, v12")
    e("v_lshrrev_b32 v12, 2, v0")
    e("v_lshlrev_b32 v12, 7, v12")
    e("v_lshl_add_u32 v12, v13, 4, v12")
    e("v_bfe_u32 v13, v0, 3, 1")
    e("v_lshl_add_u32 v12, v13, 6, v12")
    e("v_add_u32 v2, %s, v12", s(sM0))
    e("v_xor_b32 v4, 64, v2")
    e("v_add_u32 v8, %s, v12", s(sLB2))
    e("v_xor_b32 v9, 64, v8")
    e("s_waitcnt vmcnt(0) lgkmcnt(0)")
    lab = A.newlabel("L_noft")
    e("s_cmp_lg_u32 %s, 3", s(sWN))
    e("s_cbranch_scc1 %s", lab)
    if PPT:
        poll_check_pipe(PD, PPT, vP, WS_FT, PPG)
    else:
        poll_check(PD, 1, vP, WS_FT)
    A.label(lab)
    e("s_barrier")
    stamp("m_B")
    e("s_mul_i32 %s, %s, %d", s(sDelta), s(sK1), USTR)
    e("s_lshl_b32 %s, %s, 12", s(sTmp), s(sJB))
    e("s_add_u32 %s, %s, %s", s(sDelta), s(sDelta), s(sTmp))
    e("s_add_u32 %s, %s, 0x%x", s(sDelta), s(sDelta), WS_U)

    def gather(un):
        for n in range(4):
            e("s_add_u32 m0, %s, %d", s(sM0), n * 1024)
            e("s_add_u32 %s, %s, %d", s(sTmp), s(sTB), WS_T + (32 * (n & 1) + (n >> 1)) * TSTR)
            e("buffer_load_dwordx4 %s, %s, %s offen sc1 lds", v(vTG), s(sWS, 4), s(sTmp))

    def gather2():
        for kap in range(2):
            for n in range(4):
                e("s_add_u32 m0, %s, %d", s(sLB2 if kap else sM0), n * 1024)
                e("s_add_u32 %s, %s, %d", s(sTmp), s(sTB), WS_T + (32 * (n >> 1) + 8 * (n & 1) + kap) * TSTR)
                e("buffer_load_dwordx4 v1, %s, %s offen sc1 lds", s(sWS, 4), s(sTmp))

    def R2(u):
        for ri in range(2):
            for kap in range(2):
                for rd in range(2):
                    e("ds_read_b64_tr_b16 %s, %s offset:%d", v(DF[u] + 8 * ri + 4 * kap + 2 * rd, 2), v((2, 4, 8, 9)[kap * 2 + u]), rd * 2048 + ri * 8)

    def gathered():
        if EST == 3:
            e("v_mov_b32 v12, %d", LGO)
            e("v_mov_b32 v13, 1")
            e("s_mov_b64 exec, 1")
            e("ds_add_u32 v12, v13 offset:8")
            e("s_mov_b64 exec, -1")

    def F(ri, t, par): return FC + ((ri * 2 + t) * 2 + par) * 4

    def R(u):
        for ri in range(2):
            for kap in range(2):
                for rd in range(2):
                    e("ds_read_b64_tr_b16 %s, %s offset:%d", v(DF[u] + 8 * ri + 4 * kap + 2 * rd, 2), v(14 if u else vT), kap * 2048 + rd * 1024 + ri * 8)

    def N(u):
        for i in range(8):
            e("v_xor_b32 %s, 0x80008000, %s", v(DF[u] + 16 + i), v(DF[u] + 8 + i))

    def WR(u):
        for mt in range(4):
            for i in range(4):
                for arr in range(2):
                    e("ds_read_u16_d16_hi %s, %s offset:%d", v(WY[u] + arr * 16 + 4 * mt + i), v(vWr), arr * MWA + (16 * mt + i) * 336 + 64 * u)

    def SA(u):
        Tre, Tim, Tni = DF[u], DF[u] + 8, DF[u] + 16
        for t in range(2):
            for step in range(2):
                for par in range(2):
                    xr, xi = XU[u] + 4 * (t + 2 * par), XU[u] + 16 + 4 * (t + 2 * par)
                    if step == 0:
                        mm16(xr, F(0, t, par), Tre + 4 * par, True)
                        mm16(xi, F(1, t, par), Tre + 4 * par, True)
                    else:
                        mm16(xr, F(1, t, par), Tni + 4 * par)
                        mm16(xi, F(0, t, par), Tim + 4 * par)

    def BF(u):
        for t in range(2):
            for b in (XU[u] + 4 * t, XU[u] + 4 * t + 2, XU[u] + 16 + 4 * t, XU[u] + 18 + 4 * t):
                e("v_pk_add_f32 %s, %s, %s", v(b, 2), v(b, 2), v(b + 8, 2))
            for b in (XU[u] + 4 * t, XU[u] + 4 * t + 2, XU[u] + 16 + 4 * t, XU[u] + 18 + 4 * t):
                e("v_pk_fma_f32 %s, %s, 2.0, %s op_sel_hi:[1,0,1] neg_lo:[1,0,0] neg_hi:[1,0,0]", v(b + 8, 2), v(b + 8, 2), v(b, 2))

    def YP(u):
        BF(u)
        for n in range(0, 16, 4):
            for k in (0, 2):
                e("v_pk_mul_f32 %s, %s, %s", v(8 if k else 12, 2), v(XU[u] + 16 + n + k, 2), v(WY[u] + 16 + n + k, 2))
            for k in (0, 2):
                e("v_pk_mul_f32 %s, %s, %s", v(WY[u] + 16 + n + k, 2), v(XU[u] + n + k, 2), v(WY[u] + 16 + n + k, 2))
            for k in (0, 2):
                e("v_pk_fma_f32 %s, %s, %s, %s", v(WY[u] + 16 + n + k, 2), v(XU[u] + 16 + n + k, 2), v(WY[u] + n + k, 2), v(WY[u] + 16 + n + k, 2))
            for k in (0, 2):
                e("v_pk_fma_f32 %s, %s, %s, %s neg_lo:[0,0,1] neg_hi:[0,0,1]", v(WY[u] + n + k, 2), v(XU[u] + n + k, 2), v(WY[u] + n + k, 2), v(8 if k else 12, 2))

    def CV(u):
        for mt in range(4):
            for par in range(2):
                w_r, w_i = WY[u] + 4 * mt + par, WY[u] + 16 + 4 * mt + par
                e("v_cvt_pk_bf16_f32 %s, %s, %s", v(DF[u] + 8 + 4 * par + mt), v(w_i), v(w_i + 2))
                e("v_cvt_pk_bf16_f32 %s, %s, %s", v(DF[u] + 4 * par + mt), v(w_r), v(w_r + 2))
            for par in range(2):
                e("v_xor_b32 %s, 0x80008000, %s", v(DF[u] + 16 + 4 * par + mt), v(DF[u] + 4 * par + mt))

    def SB(u):
        Yre, Yim, Ynr = DF[u], DF[u] + 8, DF[u] + 16
        for t in range(2):
            for step in range(2):
                for par in range(2):
                    ur, ui = XU[u] + 4 * (t + 2 * par), XU[u] + 16 + 4 * (t + 2 * par)
                    if step == 0:
                        mm16(ur, Yre + 4 * par, F(0, t, par), True)
                        mm16(ui, Yim + 4 * par, F(0, t, par), True)
                    else:
                        mm16(ur, Yim + 4 * par, F(1, t, par))
                        mm16(ui, Ynr + 4 * par, F(1, t, par))

    def O(u):
        if u:
            e("s_add_u32 %s, %s, 8192", s(sDelta), s(sDelta))
        for nt in range(4):
            ur, ui = XU[u] + 4 * nt, XU[u] + 16 + 4 * nt
            e("v_cvt_pk_bf16_f32 %s, %s, %s", v(ur), v(ur), v(ur + 1))
            e("v_cvt_pk_bf16_f32 %s, %s, %s", v(ur + 1), v(ur + 2), v(ur + 3))
            e("v_cvt_pk_bf16_f32 %s, %s, %s", v(ur + 2), v(ui), v(ui + 1))
            e("v_cvt_pk_bf16_f32 %s, %s, %s", v(ur + 3), v(ui + 2), v(ui + 3))
            e("buffer_store_dwordx4 %s, %s, %s, %s offen offset:%d sc1", v(ur, 4), v(vUo), s(sWS, 4), s(sDelta), nt * 1024)

    def lines(*fs):
        return [[ln] for f in fs for ln in cap(f)]

    def mix(a_, b_):
        out = []
        for i in range(max(len(a_), len(b_))):
            out += a_[i:i + 1] + b_[i:i + 1]
        return out
    one, done = A.newlabel("L_one"), A.newlabel("L_midd")
    e("s_cmp_eq_u32 %s, 1", s(sNU))
    e("s_cbranch_scc1 %s", one)
    gather2()
    gathered()
    for i in range(32):
        e("v_mov_b32 %s, 0", v(WY[1] + i))
    if MWE:
        WR(0)
        WR(1)
    e("s_waitcnt vmcnt(0)")
    stamp("m_T")
    R2(0)
    if not MWE:
        WR(0)
    e("s_waitcnt lgkmcnt(%d)", 0 if MWE else 15)
    if not MWE:
        e("s_waitcnt vmcnt(0)")
    N(0)
    if MWE:
        e("s_waitcnt vmcnt(0)")
    w1 = lines(lambda: WR(1)) if not MWE else []
    weave(cap(lambda: SA(0)), lines(lambda: R2(1)) + w1[:24], skip=1)
    e("s_waitcnt lgkmcnt(%d)", 0 if MWE else 15)
    N(1)
    YP(0)
    weave(cap(lambda: SA(1)), mix(lines(lambda: CV(0)), w1[24:]), skip=1)
    e("s_waitcnt lgkmcnt(0)")
    e("s_nop 6")
    stamp("m_u1")
    if EH:
        poll_issue(4, 1, 3, WS_FH)
    YP(1)
    weave(cap(lambda: SB(0)), lines(lambda: CV(1)), skip=1)
    e("s_nop 6")
    BF(0)
    weave(cap(lambda: SB(1)), lines(lambda: O(0)), skip=1)
    e("s_nop 7")
    BF(1)
    O(1)
    e("s_branch %s", done)
    A.label(one)
    gather(0)
    gathered()
    if MWE:
        WR(0)
    e("s_waitcnt vmcnt(0)")
    stamp("m_T")
    R(0)
    if not MWE:
        WR(0)
    e("s_waitcnt lgkmcnt(%d)", 0 if MWE else 15)
    N(0)
    e("s_nop 0")
    SA(0)
    e("s_waitcnt lgkmcnt(0)")
    e("s_nop 6")
    YP(0)
    CV(0)
    e("s_nop 1")
    SB(0)
    e("s_nop 7")
    BF(0)
    O(0)
    A.label(done)


hdr = open("cdna_kernels/%s.s.ref" % NAME).read().split("; Override launch")[0]
A(hdr.rstrip())
A("; @launch grid=(256,1,1) block=(512,1,1) lds=%d" % LDS_ALL)
A('.amdgcn_target "amdgcn-amd-amdhsa--gfx950"')
KN = NAME + "_kernel"
kernel_header(A, KN)
stamp("start")
if STAMPS:
    for i in range(1, 9):
        e("s_mov_b32 %s, 0", s(84 + 2 * i))
e("s_cmp_ge_u32 s2, 256")
e("s_cbranch_scc1 L_end")
e("s_load_dwordx16 %s, s[0:1], 0", s(P, 16))
e("s_load_dwordx4 %s, s[0:1], 64", s(P + 16, 4))
e("v_lshrrev_b32 v1, 6, v0")
e("v_and_b32 v0, 63, v0")
e("v_readfirstlane_b32 %s, v1", s(sW))
if CT == 3:
    e("s_cmp_lg_u32 %s, 0", s(sW))
    e("s_cbranch_scc1 L_noct")
    code_touch()
    A.label("L_noct")
e("s_and_b32 s3, s2, 1")
e("s_lshl_b32 %s, s3, 3", s(sRB))
e("s_bfe_u32 s3, s2, 0x30003")
e("s_add_u32 %s, %s, s3", s(sRB), s(sRB))
e("s_lshr_b32 %s, s2, 6", s(sTmp2))
e("s_bfe_u32 s3, s2, 0x20001")
e("s_mul_i32 %s, s3, 3", s(sCG))
e("s_add_u32 %s, %s, %s", s(sCG), s(sCG), s(sTmp2))
e("s_and_b32 %s, %s, 3", s(sLW), s(sW))
e("s_cmp_eq_u32 %s, 3", s(sTmp2))
e("s_cbranch_scc1 L_dft")
e("s_cmp_ge_u32 %s, 4", s(sW))
e("s_cbranch_scc0 L_ffn_c")
ffn_loader()
A.label("L_ffn_c")
p1_ffn()
A.label("L_dft")
if opt("nodft", 0):
    e("s_endpgm")
e("s_mov_b32 %s, s3", s(sCG))
e("s_cmp_ge_u32 %s, 4", s(sW))
e("s_cbranch_scc0 L_dftc")
dft_loader()
A.label("L_dftc")
p1_dft()
A.label("L_dft_c")
stamp("dc_ep")
if EPR:
    e("s_setprio 0")
if ZGL:
    e("v_mov_b32 v12, %d", LGO)
    e("v_mov_b32 v13, 1")
    e("ds_write_b32 v12, v13 offset:12")
e("s_waitcnt vmcnt(0)")
stamp("dc_st")
e("v_mov_b32 v12, %d", LGO)
e("v_mov_b32 v13, 1")
e("s_mov_b64 exec, 1")
e("ds_add_rtn_u32 v13, v12, v13 offset:4")
e("s_mov_b64 exec, -1")
e("v_lshlrev_b32 v11, 7, v0")
e("s_waitcnt lgkmcnt(0)")
e("v_readfirstlane_b32 %s, v13", s(sWN))
e("s_cmp_lg_u32 %s, 3", s(sWN))
e("s_cbranch_scc1 L_noft")
flag_store(sFlag, 12, 13)
if OWN:
    e("s_sub_u32 %s, %s, 0x%x", s(sTmp), s(sFlag), WS_FT)
    e("v_cmp_eq_u32 vcc, %s, v11", s(sTmp))
    e("v_xor_b32 v12, 128, v11")
    e("v_cndmask_b32 v11, v11, v12, vcc")
poll_issue(48, 1, 11, WS_FT)
if EST == 4:
    e("v_mov_b32 v12, %d", LGO)
    e("v_mov_b32 v13, 1")
    e("ds_write_b32 v12, v13 offset:12")
A.label("L_noft")
if EH:
    fh_addr()
mid_k1()
wspec_shift(sMW)
e("s_and_b32 %s, %s, 1", s(sTmp2), s(sW))
e("s_lshl_b32 %s, %s, 7", s(sTmp), s(sTmp2))
e("s_add_u32 %s, %s, %s", s(sMW), s(sMW), s(sTmp))
e("s_add_u32 %s, %s, %d", s(sMW), s(sMW), MW0)
e("s_and_b32 %s, %s, 2", s(sPar), s(sW))
e("s_add_u32 %s, s3, %s", s(sTmp), s(sPar))
e("s_mul_i32 %s, %s, 10240", s(sTB), s(sTmp))
e("s_lshl_b32 %s, %s, 12", s(sTmp), s(sTmp2))
e("s_add_u32 %s, %s, %s", s(sTB), s(sTB), s(sTmp))
e("s_lshl_b32 %s, %s, 7", s(sTmp), s(sK1))
e("s_add_u32 %s, %s, %s", s(sTB), s(sTB), s(sTmp))
e("s_mul_i32 s3, s3, 10")
e("s_lshl_b32 %s, %s, 2", s(sTmp2), s(sTmp2))
e("s_add_u32 s3, s3, %s", s(sTmp2))
e("s_lshr_b32 %s, %s, 1", s(sTmp), s(sW))
e("s_add_u32 %s, s3, %s", s(sJB), s(sTmp))
e("s_mov_b32 %s, 2", s(sNU))
e("s_lshl_b32 %s, %s, 12", s(sM0), s(sW))
e("s_add_u32 %s, %s, %d", s(sM0), s(sM0), MT0)
e("s_mul_i32 %s, %s, %d", s(sLB2), s(sW), CPS)
e("s_add_u32 %s, %s, %d", s(sLB2), s(sLB2), CP0 + 15360)
e("s_branch L_mid")

A.label("L_dft_l")
e("s_mov_b32 %s, 0", s(sWN))
e("v_lshlrev_b32 v11, 7, v0")
mid_k1()
e("s_add_u32 %s, s3, 2", s(sTmp))
e("s_cmp_ge_u32 %s, %s", s(sLW), s(sTmp))
e("s_cbranch_scc1 L_dft_l3")
wspec_shift(sMW)
e("s_add_u32 %s, %s, %d", s(sMW), s(sMW), MW0 + 256)
e("s_lshl_b32 %s, %s, 1", s(sTmp), s(sLW))
e("s_add_u32 %s, %s, s3", s(sTmp), s(sTmp))
e("s_mul_i32 %s, %s, 10240", s(sTB), s(sTmp))
e("s_add_u32 %s, %s, 8192", s(sTB), s(sTB))
e("s_cmp_eq_u32 %s, 2", s(sLW))
e("s_cselect_b32 %s, 40960, %s", s(sTB), s(sTB))
e("s_lshl_b32 %s, %s, 6", s(sTmp), s(sK1))
e("s_add_u32 %s, %s, %s", s(sTB), s(sTB), s(sTmp))
e("s_mul_i32 s3, s3, 10")
e("s_add_u32 s3, s3, 8")
e("s_add_u32 %s, s3, %s", s(sJB), s(sLW))
e("s_lshl_b32 %s, %s, 1", s(sPar), s(sLW))
e("s_cmp_eq_u32 %s, 2", s(sLW))
e("s_cselect_b32 %s, 64, %s", s(sPar), s(sPar))
e("s_mov_b32 %s, 1", s(sNU))
e("s_lshl_b32 %s, %s, 12", s(sM0), s(sLW))
e("s_add_u32 %s, %s, %d", s(sM0), s(sM0), FI_L)
A.label("L_mid")
mid()
stamp("m_end")
e("s_cmp_ge_u32 %s, 4", s(sW))
e("s_cbranch_scc1 L_dft_l2")
p3_pre()
if EH:
    e("s_waitcnt vmcnt(8)")
    e("v_cmp_ne_u32 vcc, %s, v4", s(sTAG))
    e("s_cbranch_vccnz L_eh0")
    for i in range(EH):
        hload_(i)
    e("s_mov_b32 %s, 2", s(sNU))
    e("s_waitcnt vmcnt(%d)", 4 * EH)
    e("s_branch L_eh1")
    A.label("L_eh0")
e("s_mov_b32 %s, 0", s(sNU))
if EFH:
    if not EH:
        fh_addr()
    poll_issue(7, 1, 3, WS_FH)
e("s_waitcnt vmcnt(0)")
A.label("L_eh1")
stamp("m_st")
e("s_barrier")
e("s_cmp_lg_u32 %s, 0", s(sW))
e("s_cbranch_scc1 L_nofu")
e("s_lshl_b32 %s, s2, 7", s(sFlag))
e("s_add_u32 %s, %s, %d", s(sFlag), s(sFlag), WS_FU - 192 * 128)
flag_store(sFlag, 12, 13)
A.label("L_nofu")
A.label("L_p3c")
p3c()
e("s_branch L_fin")

A.label("L_dft_l3")
e("v_lshlrev_b32 v5, 4, v0")
if EST:
    if ECI and EST < 3:
        z_ci_sub(CI_LATE)
    e("s_waitcnt vmcnt(0)")
    if EST >= 3:
        poll_check(41, 1, 10, WS_FW)
    if EST == 4:
        e("s_cmp_lg_u32 %s, 3", s(sLW))
        e("s_cbranch_scc1 L_dft_l7")
        e("v_mov_b32 v12, %d", LGO)
        A.label("L_dft_l8")
        e("ds_read_b32 v13, v12 offset:12")
        e("s_waitcnt lgkmcnt(0)")
        e("v_cmp_ne_u32 vcc, 1, v13")
        e("s_cbranch_vccnz L_dft_l8")
        stage_all()
        stamp("dl_st")
        A.label("L_dft_l7")
    e("s_barrier")
    if EST == 4:
        e("s_waitcnt vmcnt(0)")
    if EST == 3:
        e("s_cmp_lg_u32 %s, 3", s(sLW))
        e("s_cbranch_scc1 L_dft_l7")
        e("v_mov_b32 v12, %d", LGO)
        e("s_add_u32 s3, s3, 6")
        A.label("L_dft_l8")
        e("ds_read_b32 v13, v12 offset:8")
        e("s_waitcnt lgkmcnt(0)")
        e("v_cmp_ne_u32 vcc, s3, v13")
        e("s_cbranch_vccnz L_dft_l8")
        stage_all()
        e("s_waitcnt vmcnt(0)")
        stamp("dl_st")
        A.label("L_dft_l7")
    e("s_barrier")
    stage_wd(3, 4)
    if ECI:
        stage_done(0)
        e("v_lshlrev_b32 v11, 7, v0")
        e("s_branch L_dft_l6")
    else:
        e("s_branch L_dft_l5")
    A.label("L_dft_l2")
    e("s_waitcnt vmcnt(0)")
    e("s_barrier")
    stage_wd(3, 4)
    A.label("L_dft_l5")
    fu_poll_issue()
    stage_done(z_ci_sub(CI_LATE if ECI else range(18)))
    A.label("L_dft_l6")
else:
    e("s_waitcnt vmcnt(0)")
    e("s_barrier")
    e("s_branch L_dft_l4")
    A.label("L_dft_l2")
    stage_wd(0, 3)
    e("s_waitcnt vmcnt(15)")
    e("s_barrier")
    e("s_branch L_dft_l5")
    A.label("L_dft_l4")
    e("s_barrier")
    stage_wd(0, 3)
    A.label("L_dft_l5")
    stage_wd(3, 4)
    fu_poll_issue()
    stage_done(z_ci_sub(CI_LATE if ECI else range(18)))
A.label("L_zpart")
zpart()
A.label("L_fin")
if STAMPS and "--dbg" not in sys.argv:
    stamp("issued_out")
    e("s_waitcnt vmcnt(0)")
    e("%s s[100:101]", "s_memtime" if "--cyc" in sys.argv else "s_memrealtime")
    e("s_waitcnt lgkmcnt(0)")
    for i in range(9):
        e("v_mov_b32 %s, %s", v(16 + i), s(84 + 2 * i))
    e("s_lshl_b32 s3, s2, 3")
    e("s_add_u32 s3, s3, %s", s(sW))
    e("s_lshl_b32 s3, s3, 6")
    e("s_add_u32 s3, s3, 0x%x", WS_STAMP)
    e("v_mov_b32 v5, 0")
    for i in range(3):
        e("buffer_store_dwordx4 %s, v5, %s, s3 offen offset:%d", v(16 + 4 * i, 4), s(sWS, 4), 16 * i)
if "--dbg" in sys.argv:
    e("s_load_dwordx2 s[4:5], s[0:1], 64")
    e("s_waitcnt vmcnt(0) lgkmcnt(0)")
    e("s_memrealtime s[100:101]")
    srd(A, 8, 4, 256)
    e("s_waitcnt lgkmcnt(0)")
    e("s_mov_b64 exec, 1")
    e("s_not_b32 s84, s84")
    e("s_cmp_ge_u32 s2, 192")
    e("s_cselect_b32 s3, 32, 0")
    for i in range(8):
        k = [0, 8, 1, 2, 3, 4, 5, 6][i]
        e("v_mov_b32 v16, %s", s(84 + 2 * k))
        e("v_mov_b32 v17, %d", 4 * i)
        e("buffer_atomic_umax v16, v17, s[8:11], s3 offen sc1")
A.label("L_end")
e("s_endpgm")
flush_cold()
A.label("L_code_end")

kernel_desc(A, KN, 256, accum=256)
TB.emit_tables(A)
out = [x for x in sys.argv[1:] if not x.startswith("--")]
open(out[0] if out else "v29.s", "w").write(A.text())
```

```python
import sys
from asmlib import *
import tables19 as TB

NAME = "parallel_sum__spectral_gfnet__glu_gated_reglu__prompt"
A = Asm()
e = A.e


def opt(name, default):
    for x in sys.argv:
        if x.startswith("--%s=" % name):
            return int(x.split("=")[1])
    return default


STAMPS = "--stamps" in sys.argv
SLEEP = opt("sleep", 4)
ROTA, ROTB = opt("rota", 1), opt("rotb", 3)
CIP1 = opt("cip1", 0)
DROT = opt("drot", 0)
WSP = opt("wsp", 2)
PRL = opt("prl", 0)
WARM = opt("warm", 0)
FOLD = opt("fold", 1)
POLL1 = opt("poll1", 0)
CIL = opt("cil", 1)
STG = opt("stg", 1)
ZPR = opt("zpr", 3)
MPR = opt("mpr", 0)
CT = opt("ct", 3)
DS = opt("ds", 1)
PPT, PPG, OWN = opt("ppt", 4), opt("ppg", 2), opt("own", 1)
EPR, ZGL, EPI = opt("epr", 0), opt("zgl", 0), opt("epi", 1)
XQ = opt("xq", 1)
TP = opt("tp", 3)
ZIL, ZSK, FIL = opt("zil", 1), opt("zsk", 1), opt("fil", 1)
MAP8, PF3, PFP = opt("map8", 0), opt("pf3", 3), opt("pfp", 1)
R3A, R3B, RZ = opt("r3a", 0), opt("r3b", 0), opt("rz", 0)
OUTF = ["", " sc1", " nt", " sc0 sc1"][opt("outf", 0)]
NFIX = opt("nfix", 0)

WS_EP = 0x0000
WS_FS = 0x1000
WS_FSC = WS_FS + 128 * 128
WS_FT = 0xC000
WS_FU = 0xE000
WS_FH = 0x10000
WS_FW = 0x50000
WS_STAT = 0x28000
WS_CSP = 0x30000
WS_H = 0x60000
WS_T = 0x660000
TSTR, USTR = 43008 + opt("tpad", 128), 86016 + opt("upad", 128)
WS_U = 0x910000
WS_WD = 0xBC0000
WS_STAMP = 0x2000000

SLAB = 49152
AUX = 3 * SLAB
ZU0, ZUS = 0, 16384
CP0, CPS = 65536, 20480
LGO = AUX + 2048
XB = CP0 + 10240
CBASE, CSTR = [0, 20480, CP0, CP0 + 5120, 45056], [5120, 5120, CPS, CPS, 5120]
FR_L, FI_L = AUX + 2048 + 128, AUX + 2048 + 128
MW0, MWA = 0, 22272
MT0 = 45056
RPK = FI_L
LDS_ALL = FI_L + 12288

sX, sG, sU, sWS, sTAB, sWR, sWI, sWD, sOUT = 8, 12, 16, 20, 24, 28, 32, 36, 40
sW, sRB, sCG, sLW = 44, 45, 46, 47
sTmp, sTmp2, sCnt, sDelta, sBuf, sSLAB = 48, 49, 50, 51, 52, 53
sAoff, sBoff, sM0 = 54, 55, 56
sWM, sWN, sFlag = 57, 58, 59
sK1, sJB, sTAG, sSpin = 60, 61, 62, 63
P = 64
sP, sG3, sHo, sWo, sUo, sCo, sLB, sLB2, sOo, sOc, sOOB = 64, 65, 66, 67, 68, 69, 70, 71, 72, 73, 74
sSgn, sS2, sNU, sWcol, sPar = 76, 78, 79, 80, 81
sWa, sWb, sWc, sMW = 6, 7, 75, 80
sTB = 55
sR3, sRZ, sI4 = 82, 83, 67
SRDS = {"X": (sX, P, 2048 * 1280), "WR": (sWR, P + 2, 2048 * 642), "WI": (sWI, P + 4, 2048 * 642),
        "G": (sG, P + 8, 640 * 3072), "U": (sU, P + 10, 640 * 3072), "WD": (sWD, P + 12, 1536 * 1280),
        "OUT": (sOUT, P + 14, 2048 * 1280), "WS": (sWS, P + 18, 1 << 28)}


class VQ:
    def __init__(self):
        self.q = []
    def issue(self, tag, n=1):
        self.q += [tag] * n
    def wait(self, *tags, extra=""):
        last = max([i for i, t in enumerate(self.q) if t in tags], default=-1)
        n = len(self.q) - 1 - last
        assert n <= 63, n
        e("s_waitcnt vmcnt(%d)%s", n, extra)
        self.q = self.q[last + 1:]
    def drain(self):
        self.q = []


STN = {}
for x in sys.argv:
    if x.startswith("--st="):
        for i_, grp in enumerate(x[5:].split(",")):
            for nm in grp.split("+"):
                STN[nm] = i_ + 1
STN["start"] = 0


def cap(fn):
    keep, A.lines = A.lines, []
    fn()
    out, A.lines = A.lines, keep
    return out


def weave(main, groups, skip=0):
    n = len(groups)
    step = (len(main) - skip) / (n + 0.001) if n else 0
    k = 0
    for i, ln in enumerate(main):
        while k < n and i >= skip + k * step:
            A.lines += groups[k]
            k += 1
        A.lines.append(ln)
    while k < n:
        A.lines += groups[k]
        k += 1


COLD = []


def rare(cond, fn):
    la, lb = A.newlabel("L_rare"), A.newlabel("L_back")
    e("%s %s", cond, la)
    A.label(lb)
    body = cap(fn)
    COLD.append(["%s:" % la] + body + ["    s_branch %s" % lb])


def flush_cold():
    while COLD:
        A.lines += COLD.pop(0)


def stamp(nm):
    if STAMPS and nm in STN:
        e("%s %s", "s_memtime" if "--cyc" in sys.argv else "s_memrealtime", s(84 + 2 * STN[nm], 2))


def make_tag():
    e("s_mul_i32 %s, %s, 0x9E3779B1", s(sTAG), s(sTAG))
    e("s_add_u32 %s, %s, 0x7F4A7C15", s(sTAG), s(sTAG))


def flag_store(soff, t0, t1):
    e("v_mov_b32 %s, %s", v(t0), s(sTAG))
    e("v_mov_b32 %s, 0", v(t1))
    e("s_mov_b64 exec, 1")
    e("buffer_store_dword %s, %s, %s, %s offen sc1", v(t0), v(t1), s(sWS, 4), s(soff))
    e("s_mov_b64 exec, -1")


def poll_issue(dst, n, vaddr, base):
    e("s_mov_b32 %s, 0x%x", s(sTmp), base)
    e("buffer_load_dword%s %s, %s, %s, %s offen sc1", "" if n == 1 else "x%d" % n, v(dst, n), v(vaddr), s(sWS, 4), s(sTmp))


def poll_check(dst, n, vaddr, base):
    assert n == 1

    def spin():
        top, done = A.newlabel("L_poll"), A.newlabel("L_polld")
        e("s_mov_b32 %s, 0", s(sSpin))
        A.label(top)
        if SLEEP:
            e("s_sleep %d", SLEEP)
        poll_issue(dst, n, vaddr, base)
        e("s_add_u32 %s, %s, 1", s(sSpin), s(sSpin))
        e("s_cmp_ge_u32 %s, %d", s(sSpin), opt("spin", 40000))
        e("s_waitcnt vmcnt(0)")
        e("s_cbranch_scc1 %s", done)
        e("v_cmp_ne_u32 vcc, %s, %s", s(sTAG), v(dst))
        e("s_cbranch_vccnz %s", top)
        A.label(done)
    e("v_cmp_ne_u32 vcc, %s, %s", s(sTAG), v(dst))
    rare("s_cbranch_vccnz", spin)


def poll_check_pipe(dst, depth, vaddr, base, gap):
    def spin():
        top, done = A.newlabel("L_pp"), A.newlabel("L_ppd")
        e("s_mov_b32 %s, 0", s(sSpin))
        for k in range(1, depth):
            poll_issue(dst + k, 1, vaddr, base)
            e("s_sleep %d", gap)
        A.label(top)
        for k in range(depth):
            poll_issue(dst + k, 1, vaddr, base)
            e("s_waitcnt vmcnt(%d)", depth - 1)
            e("v_cmp_ne_u32 vcc, %s, %s", s(sTAG), v(dst + (k + 1) % depth))
            e("s_cbranch_vccz %s", done)
            e("s_sleep %d", gap)
        e("s_add_u32 %s, %s, 1", s(sSpin), s(sSpin))
        e("s_cmp_lt_u32 %s, %d", s(sSpin), opt("spin", 40000))
        e("s_cbranch_scc1 %s", top)
        A.label(done)
    e("v_cmp_ne_u32 vcc, %s, %s", s(sTAG), v(dst))
    rare("s_cbranch_vccnz", spin)


def karg_wait(first, rest=()):
    e("s_waitcnt lgkmcnt(0)")
    for k in first:
        srd(A, *SRDS[k])
    e("s_load_dword %s, %s, 0x%x", s(sTAG), s(P + 18, 2), WS_EP)
    for k in rest:
        srd(A, *SRDS[k])


def tab_srd():
    e("s_getpc_b64 s[4:5]")
    e("s_add_u32 s4, s4, dft_tables@rel32@lo+4")
    e("s_addc_u32 s5, s5, dft_tables@rel32@hi+12")
    srd(A, sTAB, 4, TB.TAB_BYTES)


def dpp_sum16(r_):
    for ctl in ("quad_perm:[1,0,3,2]", "quad_perm:[2,3,0,1]", "row_half_mirror", "row_mirror"):
        e("s_nop 1")
        e("v_add_f32_dpp %s, %s, %s %s row_mask:0xf bank_mask:0xf", v(r_), v(r_), v(r_), ctl)


def round_bf16(r_):
    e("v_cvt_pk_bf16_f32 %s, %s, %s", v(r_), v(r_), v(r_))
    e("v_and_b32 %s, 0xffff0000, %s", v(r_), v(r_))


def mm16(d, a_, b_, first=False):
    e("v_mfma_f32_16x16x32_bf16 %s, %s, %s, %s", v(d, 4), v(a_, 4), v(b_, 4), "0" if first else v(d, 4))


def stats_addr(R):
    e("s_lshl_b32 %s, %s, 2", s(sTmp), s(sCG))
    e("s_add_u32 %s, %s, %s", s(sTmp), s(sTmp), s(sW))
    e("s_lshl_b32 %s, %s, 2", s(sTmp), s(sTmp))
    e("v_lshrrev_b32 %s, 4, v0", v(R + 20))
    e("v_add_u32 %s, %s, %s", v(R + 21), s(sTmp), v(R + 20))
    e("v_and_b32 %s, 31, %s", v(R + 20), v(R + 21))
    e("v_lshlrev_b32 %s, 6, %s", v(R + 20), v(R + 20))
    e("v_lshrrev_b32 %s, 5, %s", v(R + 22), v(R + 21))
    e("v_add_u32 %s, %s, %s", v(R + 20), v(R + 20), v(R + 22))
    e("s_lshl_b32 %s, %s, 2", s(sTmp), s(sRB))
    e("v_add_u32 %s, %s, %s", v(R + 20), s(sTmp), v(R + 20))
    e("v_mul_u32_u24 %s, 1280, %s", v(R + 20), v(R + 20))
    e("v_and_b32 %s, 15, v0", v(R + 22))
    e("v_lshl_add_u32 %s, %s, 4, %s", v(R + 20), v(R + 22), v(R + 20))


def stats_issue(R):
    for n in range(5):
        e("buffer_load_dwordx4 %s, %s, %s, 0 offen offset:%d", v(R + 4 * n, 4), v(R + 20), s(sX, 4), n * 256)


def stats_compute(R):
    F = R + 24
    S_, V_, T_ = R + 64, R + 66, R + 22
    for n in range(20):
        e("v_lshlrev_b32 %s, 16, %s", v(F + 2 * n), v(R + n))
        e("v_and_b32 %s, 0xffff0000, %s", v(F + 2 * n + 1), v(R + n))
    e("v_pk_add_f32 %s, %s, %s", v(S_, 2), v(F, 2), v(F + 2, 2))
    for n in range(2, 20):
        e("v_pk_add_f32 %s, %s, %s", v(S_, 2), v(S_, 2), v(F + 2 * n, 2))
    e("v_add_f32 %s, %s, %s", v(S_), v(S_), v(S_ + 1))
    dpp_sum16(S_)
    e("v_mul_f32 %s, 0x3acccccd, %s", v(S_), v(S_))
    for n in range(20):
        e("v_pk_add_f32 %s, %s, %s op_sel_hi:[1,0] neg_lo:[0,1] neg_hi:[0,1]", v(F + 2 * n, 2), v(F + 2 * n, 2), v(S_, 2))
    e("v_pk_mul_f32 %s, %s, %s", v(V_, 2), v(F, 2), v(F, 2))
    for n in range(1, 20):
        e("v_pk_fma_f32 %s, %s, %s, %s", v(V_, 2), v(F + 2 * n, 2), v(F + 2 * n, 2), v(V_, 2))
    e("v_add_f32 %s, %s, %s", v(V_), v(V_), v(V_ + 1))
    dpp_sum16(V_)
    e("v_mul_f32 %s, 0x3acccccd, %s", v(V_), v(V_))
    round_bf16(V_)
    e("v_add_f32 %s, 0x3727c5ac, %s", v(V_), v(V_))
    round_bf16(V_)
    e("v_sqrt_f32 %s, %s", v(V_), v(V_))
    e("s_nop 0")
    round_bf16(V_)
    e("v_rcp_f32 %s, %s", v(V_), v(V_))
    round_bf16(S_)
    e("v_and_b32 %s, 15, v0", v(T_))
    e("v_cmp_eq_u32 vcc, 1, %s", v(T_))
    e("v_lshlrev_b32 %s, 2, %s", v(R + 1), v(R + 21))
    e("v_lshl_add_u32 %s, %s, 9, %s", v(R + 1), v(T_), v(R + 1))
    e("v_cndmask_b32 %s, %s, %s, vcc", v(V_), v(V_), v(S_))
    e("v_cmp_gt_u32 vcc, 2, %s", v(T_))
    e("s_lshl_b32 %s, %s, 10", s(sTmp), s(sRB))
    e("s_add_u32 %s, %s, 0x%x", s(sTmp), s(sTmp), WS_STAT)
    e("s_and_saveexec_b64 s[4:5], vcc")
    e("buffer_store_dword %s, %s, %s, %s offen sc1", v(V_), v(R + 1), s(sWS, 4), s(sTmp))
    e("s_mov_b64 exec, s[4:5]")


def aux_poll_addr(ffn, dst):
    e("s_lshl_b32 %s, %s, 2", s(sTmp), s(sRB))
    e("s_add_u32 %s, %s, %s", s(sTmp), s(sTmp), s(sLW))
    e("s_lshl_b32 %s, %s, 1", s(sTmp), s(sTmp))
    e("v_and_b32 v6, 1, v0")
    e("v_add_u32 v6, %s, v6", s(sTmp))
    if ffn:
        e("s_and_b32 %s, s2, 0xc6", s(sTmp))
        e("s_add_u32 %s, %s, 128", s(sTmp), s(sTmp))
        e("v_and_b32 v7, 7, v0")
        e("v_bfe_u32 v12, v0, 3, 1")
        e("v_min_u32 v7, 4, v7")
        e("v_lshlrev_b32 v7, 3, v7")
        e("v_add3_u32 v7, v7, v12, %s", s(sTmp))
        e("v_cmp_gt_u32 vcc, 16, v0")
        e("s_nop 1")
        e("v_cndmask_b32 v6, v7, v6, vcc")
    e("v_lshlrev_b32 %s, 7, v6", v(dst))


def fw_poll_addr(dst):
    e("s_lshl_b32 %s, %s, 6", s(sTmp), s(sLW))
    e("v_add_u32 %s, %s, v0", v(dst), s(sTmp))
    e("v_min_u32 %s, 159, %s", v(dst), v(dst))
    e("v_lshlrev_b32 %s, 7, %s", v(dst), v(dst))


def aux_addr(ffn, R):
    e("v_and_b32 %s, 31, v0", v(R))
    e("v_lshrrev_b32 %s, 5, v0", v(R + 1))
    e("v_lshlrev_b32 %s, 2, %s", v(R), v(R))
    e("v_lshl_add_u32 %s, %s, 9, %s", v(R), v(R + 1), v(R))
    e("s_lshl_b32 %s, %s, 7", s(sTmp), s(sLW))
    e("v_add_u32 %s, %s, %s", v(R), s(sTmp), v(R))
    if ffn:
        e("v_lshrrev_b32 %s, 4, v0", v(R + 1))
        e("v_mul_u32_u24 %s, 12288, %s", v(R + 1), v(R + 1))
        e("v_and_b32 %s, 15, v0", v(R + 3))
        e("v_lshl_add_u32 %s, %s, 4, %s", v(R + 1), v(R + 3), v(R + 1))
        e("s_lshl_b32 %s, %s, 8", s(sTmp), s(sLW))
        e("s_lshl_b32 %s, %s, 10", s(sTmp2), s(sCG))
        e("s_add_u32 %s, %s, %s", s(sTmp), s(sTmp), s(sTmp2))
        e("v_add_u32 %s, %s, %s", v(R + 1), s(sTmp), v(R + 1))
        e("v_lshrrev_b32 %s, 5, v0", v(R + 16))
        e("v_lshl_add_u32 %s, %s, 29, %s", v(R + 16), v(R + 16), v(R + 1))


def aux_issue(ffn, R):
    e("s_lshl_b32 %s, %s, 10", s(sTmp), s(sRB))
    e("s_add_u32 %s, %s, 0x%x", s(sTmp), s(sTmp), WS_STAT)
    e("buffer_load_dword %s, %s, %s, %s offen sc1", v(R + 2), v(R), s(sWS, 4), s(sTmp))
    if ffn:
        for n in range(3):
            e("s_mov_b32 %s, 0x%x", s(sTmp), WS_CSP + n * 4 * 12288)
            e("buffer_load_dwordx4 %s, %s, %s, %s offen sc1", v(R + 4 + 4 * n, 4), v(R + 16 if n == 2 else R + 1), s(sWS, 4), s(sTmp))


def aux_finish(ffn, R):
    e("v_add_u32 %s, %d, %s", v(R), AUX, v(R))
    e("ds_write_b32 %s, %s", v(R), v(R + 2))
    if ffn:
        C_, T_ = R + 4, R + 8
        for n in range(1, 3):
            for k in (0, 2):
                e("v_pk_add_f32 %s, %s, %s", v(C_ + k, 2), v(C_ + k, 2), v(C_ + 4 * n + k, 2))
        for op in ("v_permlane16_swap_b32", "v_permlane32_swap_b32"):
            for i in range(4):
                e("v_mov_b32 %s, %s", v(T_ + i), v(C_ + i))
            e("s_nop 0")
            for i in range(4):
                e("%s %s, %s", op, v(C_ + i), v(T_ + i))
            e("s_nop 0")
            for i in range(4):
                e("v_add_f32 %s, %s, %s", v(C_ + i), v(C_ + i), v(T_ + i))
        e("s_lshl_b32 %s, %s, 8", s(sTmp), s(sLW))
        e("s_add_u32 %s, %s, %d", s(sTmp), s(sTmp), AUX + 1024)
        e("v_lshl_add_u32 %s, %s, 4, %s", v(R + 1), v(R + 3), s(sTmp))
        e("ds_write_b128 %s, %s", v(R + 1), v(C_, 4))
    e("s_waitcnt lgkmcnt(0)")


def p3_map():
    if MAP8:
        e("s_and_b32 %s, s2, 7", s(sP))
        e("s_lshl_b32 %s, %s, 2", s(sP), s(sP))
        e("s_bfe_u32 s3, s2, 0x20003")
        e("s_add_u32 %s, %s, s3", s(sP), s(sP))
        e("s_lshr_b32 %s, s2, 5", s(sG3))
        return
    e("s_and_b32 s3, s2, 7")
    e("s_lshr_b32 %s, s2, 3", s(sTmp))
    e("s_lshr_b32 %s, s3, 1", s(sP))
    e("s_lshl_b32 %s, %s, 3", s(sP), s(sP))
    e("s_and_b32 %s, %s, 7", s(sTmp2), s(sTmp))
    e("s_add_u32 %s, %s, %s", s(sP), s(sP), s(sTmp2))
    e("s_and_b32 s3, s3, 1")
    e("s_lshl_b32 s3, s3, 2")
    e("s_lshr_b32 %s, %s, 3", s(sTmp), s(sTmp))
    e("s_add_u32 %s, s3, %s", s(sG3), s(sTmp))


ZG, ZC, ZAB = [160, 224], 64, [136, 192, 208]


def ZAr(c3, rt): return ZAB[c3] + 4 * rt


def z_setup():
    p3_map()
    e("s_mul_i32 %s, %s, %d", s(sLB), s(sLW), ZUS)
    e("s_lshl_b32 %s, %s, 7", s(sUo), s(sP))
    e("s_lshl_b32 %s, %s, 12", s(sTmp), s(sLW))
    e("s_add_u32 %s, %s, %s", s(sUo), s(sUo), s(sTmp))
    e("s_add_u32 %s, %s, 0x%x", s(sUo), s(sUo), WS_U)
    e("s_mul_i32 %s, %s, 21", s(sCo), s(sG3))
    e("s_add_u32 %s, %s, %s", s(sCo), s(sCo), s(sLW))
    e("s_mul_i32 %s, %s, 3072", s(sCo), s(sCo))
    e("s_add_u32 %s, %s, %d", s(sCo), s(sCo), TB.CI_OFF)
    e("s_lshl_b32 %s, %s, 1", s(sS2), s(sP))


def wd_bases(wreg):
    e("s_lshr_b32 %s, %s, 1", s(sOc), s(sG3))
    e("s_and_b32 %s, %s, 1", s(sTmp), s(sG3))
    e("s_mul_i32 %s, %s, 20", s(sTmp), s(sTmp))
    e("s_add_u32 %s, %s, %s", s(sOc), s(sOc), s(sTmp))
    e("s_add_u32 %s, %s, 16", s(sOc), s(sOc))
    e("s_lshl_b32 %s, %s, 5", s(sOc), s(sOc))
    e("s_lshl_b32 %s, %s, 10", s(sTmp), s(wreg))
    e("s_add_u32 %s, %s, 0x%x", s(sTmp), s(sTmp), WS_WD)
    e("s_mul_i32 %s, %s, %d", s(sWa), s(sG3), 2 * 49152)
    e("s_add_u32 %s, %s, %s", s(sWa), s(sWa), s(sTmp))
    e("s_mul_i32 %s, %s, %d", s(sWc), s(sOc), 49152 // 32)
    e("s_add_u32 %s, %s, %s", s(sWc), s(sWc), s(sTmp))


def rot3():
    e("s_and_b32 %s, %s, 3", s(sR3), s(sG3))
    e("s_mul_i32 %s, %s, %d", s(sR3), s(sR3), R3A)
    e("s_and_b32 %s, %s, 7", s(sTmp), s(sP))
    e("s_mul_i32 %s, %s, %d", s(sTmp), s(sTmp), R3B)
    e("s_add_u32 %s, %s, %s", s(sR3), s(sR3), s(sTmp))
    for _ in range((3 * R3A + 7 * R3B) // 12):
        e("s_cmp_ge_u32 %s, 12", s(sR3))
        e("s_cselect_b32 %s, 12, 0", s(sTmp))
        e("s_sub_u32 %s, %s, %s", s(sR3), s(sR3), s(sTmp))


def item4(i, dst):
    e("s_add_u32 %s, %s, %d", s(dst), s(sR3), i)
    e("s_cmp_ge_u32 %s, 12", s(dst))
    e("s_cselect_b32 %s, 12, 0", s(sTmp))
    e("s_sub_u32 %s, %s, %s", s(dst), s(dst), s(sTmp))
    e("s_lshl_b32 %s, %s, 12", s(dst), s(dst))


WOFF = [(0, 0), (0, 49152), (0, 20 * 49152), (0, 21 * 49152), (1, 0)]


def stage_all():
    rot3()
    for i in range(3):
        item4(i, sI4)
        for w in range(4):
            e("s_add_u32 %s, %s, %d", s(sCnt), s(sI4), ((w - 3) * 1024) & 0xffffffff)
            e("s_add_u32 %s, %s, %s", s(sTmp2), s(sCnt), s(sWa))
            for ct in range(5):
                e("s_mov_b32 m0, %d", CP0 + w * CPS + i * 5120 + ct * 1024)
                if ct < 4:
                    e("s_add_u32 %s, %s, %d", s(sTmp), s(sTmp2), WOFF[ct][1])
                else:
                    e("s_add_u32 %s, %s, %s", s(sTmp), s(sCnt), s(sWc))
                e("buffer_load_dwordx4 v5, %s, %s offen sc1 lds", s(sWS, 4), s(sTmp))


def stage_wd(i0, i1):
    e("s_mul_i32 %s, %s, %d", s(sSLAB), s(sLW), CPS)
    rot3()
    for i in range(i0, i1):
        item4(i, sI4)
        e("s_add_u32 %s, %s, %s", s(sTmp2), s(sI4), s(sWa))
        for ct in range(5):
            e("s_add_u32 m0, %s, %d", s(sSLAB), CP0 + i * 5120 + ct * 1024)
            if ct < 4:
                e("s_add_u32 %s, %s, %d", s(sTmp), s(sTmp2), WOFF[ct][1])
            else:
                e("s_add_u32 %s, %s, %s", s(sTmp), s(sI4), s(sWc))
            e("buffer_load_dwordx4 v5, %s, %s offen sc1 lds", s(sWS, 4), s(sTmp))


def z_ci_sub(idx):
    n = 0
    for z in range(6):
        c = [c3 for c3 in range(3) if z * 3 + c3 in idx]
        lab = A.newlabel("L_noc5")
        if c and z == 5 and ZSK:
            e("s_cmp_lg_u32 %s, 0", s(sLW))
            e("s_cbranch_scc1 %s", lab)
        else:
            n += len(c)
        if c:
            z_item(z, 4 * 3072, sCo, sRZ)
        for c3 in c:
            e("buffer_load_dwordx4 %s, v5, %s, %s offen offset:%d", v(ZC + z * 12 + c3 * 4, 4), s(sTAB, 4), s(sRZ), c3 * 1024)
        A.label(lab)
    return n


def z_ci_all():
    return z_ci_sub(range(18))


def stage_done(n):
    e("s_lshl_b32 %s, %s, 2", s(sTmp), s(sLW))
    e("s_add_u32 %s, %s, %d", s(sTmp), s(sTmp), LGO + 16)
    e("v_mov_b32 v12, %s", s(sTmp))
    e("v_mov_b32 v13, 1")
    e("s_waitcnt vmcnt(%d)", n)
    e("ds_write_b32 v12, v13")


def z_item(z, mul, base, dst):
    e("s_and_b32 %s, %s, 3", s(dst), s(sG3))
    e("s_mul_i32 %s, %s, %d", s(dst), s(dst), RZ)
    e("s_add_u32 %s, %s, %d", s(dst), s(dst), z)
    e("s_cmp_ge_u32 %s, 6", s(dst))
    e("s_cselect_b32 %s, 6, 0", s(sTmp))
    e("s_sub_u32 %s, %s, %s", s(dst), s(dst), s(sTmp))
    e("s_lshl_b32 %s, %s, 2", s(sTmp), s(dst))
    e("s_add_u32 %s, %s, %s", s(sTmp), s(sTmp), s(sLW))
    e("s_cmp_gt_u32 %s, 20", s(sTmp))
    e("s_cselect_b32 %s, 0x20000000, %s", s(sTmp), s(base))
    e("s_mul_i32 %s, %s, %d", s(dst), s(dst), mul)
    e("s_add_u32 %s, %s, %s", s(dst), s(dst), s(sTmp))


def z_ci_loads(z, vL):
    z_item(z, 4 * 3072, sCo, sRZ)
    for c3 in range(3):
        e("buffer_load_dwordx4 %s, %s, %s, %s offen offset:%d", v(ZC + z * 12 + c3 * 4, 4), v(vL), s(sTAB, 4), s(sRZ), c3 * 1024)


def ZGr(u, ro, nh, kap): return ZG[u] + ((ro * 2 + nh) * 2 + kap) * 4


def z_gconst():
    e("v_and_b32 v56, 15, v0")
    e("v_lshlrev_b32 v56, 6, v56")
    e("v_add_u32 v56, %s, v56", s(sS2))
    e("v_cvt_f32_u32 v56, v56")
    e("v_mul_f32 v56, 0x3a000000, v56")
    e("v_lshrrev_b32 v57, 5, v0")
    e("v_lshlrev_b32 v57, 3, v57")
    e("v_cvt_f32_u32 v57, v57")
    e("v_bfe_u32 v58, v0, 4, 1")
    e("v_cvt_f32_u32 v58, v58")
    e("v_mul_f32 v58, 0x3e800000, v58")
    for u in range(2):
        if u:
            e("v_add_f32 v56, 0x3a000000, v56")
        for kap in range(2):
            if kap:
                e("v_add_f32 v59, 0x41800000, v57")
                e("v_fma_f32 v59, v59, v56, v58")
            else:
                e("v_fma_f32 v59, v57, v56, v58")
            for ro in range(2):
                if ro:
                    e("v_add_f32 v60, 0xbe800000, v59")
                else:
                    e("v_mov_b32 v60, v59")
                for i2 in range(4):
                    e("v_cos_f32 v61, v60")
                    e("v_add_f32 v60, v60, v56")
                    e("v_cos_f32 v62, v60")
                    e("v_add_f32 v60, v60, v56")
                    b = ZGr(u, ro, 0, kap) + i2
                    e("v_cvt_pk_bf16_f32 %s, v61, v62", v(b))
                    e("v_xor_b32 %s, 0x80000000, %s", v(b + 8), v(b))


def fu_poll_issue():
    e("v_lshlrev_b32 v11, 7, v0")
    lab0 = A.newlabel("L_nofup")
    e("s_cmp_lg_u32 %s, 0", s(sLW))
    e("s_cbranch_scc1 %s", lab0)
    poll_issue(16, 1, 11, WS_FU)
    A.label(lab0)


def zpart():
    vL, vUG, vTU, vTU1, vPU = 5, 6, 7, 8, 11
    UF, ZT = 16, 32
    e("v_lshlrev_b32 %s, 4, v0", v(vL))
    e("v_lshrrev_b32 v12, 3, v0")
    e("v_mul_u32_u24 v12, %d, v12", USTR)
    e("v_lshrrev_b32 v13, 2, v0")
    e("v_lshrrev_b32 v14, 4, v0")
    e("v_xor_b32 v13, v13, v14")
    e("v_and_b32 v13, 1, v13")
    e("v_lshl_add_u32 v12, v13, 6, v12")
    e("v_and_b32 v13, 3, v0")
    e("v_lshl_add_u32 %s, v13, 4, v12", v(vUG))
    e("v_lshrrev_b32 v12, 5, v0")
    e("v_lshlrev_b32 v12, 3, v12")
    e("v_bfe_u32 v14, v0, 2, 2")
    e("v_add_u32 v12, v12, v14")
    e("v_lshlrev_b32 v12, 7, v12")
    e("v_lshl_add_u32 v12, v13, 4, v12")
    e("v_bfe_u32 v14, v0, 4, 1")
    e("v_lshl_add_u32 v12, v14, 3, v12")
    e("v_bfe_u32 v14, v0, 3, 1")
    e("v_lshl_add_u32 v12, v14, 6, v12")
    e("v_add_u32 %s, %s, v12", v(vTU), s(sLB))
    e("v_xor_b32 %s, 64, %s", v(vTU1), v(vTU))
    e("v_mov_b32 v12, %d", LGO)
    lab1, lab2 = A.newlabel("L_lgo"), A.newlabel("L_lgod")
    e("s_cmp_lg_u32 %s, 0", s(sLW))
    e("s_cbranch_scc1 %s", lab1)
    e("s_waitcnt vmcnt(0)")
    poll_check(UF, 1, vPU, WS_FU)
    e("v_mov_b32 v13, 1")
    e("ds_write_b32 v12, v13")
    e("s_branch %s", lab2)
    A.label(lab1)
    e("s_sleep 1")
    e("ds_read_b32 v13, v12")
    e("s_waitcnt lgkmcnt(0)")
    e("v_cmp_ne_u32 vcc, 1, v13")
    e("s_cbranch_vccnz %s", lab1)
    A.label(lab2)
    stamp("zU")
    if ZPR:
        e("s_setprio %d", ZPR)
    q = VQ()

    def udma(z):
        z_item(z, 4 * 4096, sUo, sRZ)
        for n in range(4):
            e("s_add_u32 m0, %s, %d", s(sLB), (z % 4) * 4096 + n * 1024)
            e("s_add_u32 %s, %s, %d", s(sTmp2), s(sRZ), n * 8 * USTR)
            e("buffer_load_dwordx4 %s, %s, %s offen sc1 lds", v(vUG), s(sWS, 4), s(sTmp2))
        q.issue("u%d" % z, 4)
    for z in range(4):
        udma(z)
    def ureads(z):
        q.wait("u%d" % z)
        stamp("z%d" % z)
        for u in range(2):
            for kap in range(2):
                for rd in range(2):
                    e("ds_read_b64_tr_b16 %s, %s offset:%d", v(UF + 8 * u + 4 * kap + 2 * rd, 2), v(vTU1 if u else vTU), (z % 4) * 4096 + kap * 2048 + rd * 512)
    ureads(0)
    skip5 = A.newlabel("L_noz5")

    def cv(rt):
        b = ZT + rt * 8
        return [cap(lambda k=k: e("v_cvt_pk_bf16_f32 %s, %s, %s", v(b + k), v(b + 2 * k), v(b + 2 * k + 1))) for k in range(4)]

    def s1(u):
        return [cap(lambda kap=kap, nh=nh, ro=ro: mm16(ZT + u * 16 + (nh * 2 + ro) * 4, UF + 8 * u + 4 * kap, ZGr(u, ro, nh, kap), kap == 0))
                for kap in range(2) for nh in range(2) for ro in range(2)]

    def s2(z, rt):
        return [cap(lambda c3=c3: mm16(ZAr(c3, rt), ZC + z * 12 + c3 * 4, ZT + rt * 8, z == 0)) for c3 in range(3)]

    def put(gs):
        for g in gs:
            A.lines += g
    for z in range(6):
        if z == 5 and ZSK:
            e("s_cmp_lg_u32 %s, 0", s(sLW))
            e("s_cbranch_scc1 %s", skip5)
        e("s_waitcnt lgkmcnt(4)")
        put(s1(0))
        e("s_waitcnt lgkmcnt(0)")
        m1 = s1(1)
        if not ZIL:
            put(m1)
        else:
            c0, c1 = cv(0), cv(1)
            put(m1[:5] + c0[:2] + m1[5:6] + c0[2:] + m1[6:7] + c1[:2] + m1[7:] + c1[2:])
        if z + 4 < 6:
            if z == 1 and ZSK:
                lab = A.newlabel("L_nou5")
                e("s_cmp_lg_u32 %s, 0", s(sLW))
                e("s_cbranch_scc1 %s", lab)
                udma(5)
                A.label(lab)
                q.q = q.q[:-4]
            else:
                udma(z + 4)
        if z + 1 < 6:
            if z == 4 and ZSK:
                lab = A.newlabel("L_nor5")
                e("s_cmp_lg_u32 %s, 0", s(sLW))
                e("s_cbranch_scc1 %s", lab)
                q.issue("u5", 4)
                ureads(5)
                A.label(lab)
            else:
                ureads(z + 1)
        if not ZIL:
            put(cv(0) + cv(1) + cv(2) + cv(3))
            e("s_nop 0")
            put(s2(z, 0) + s2(z, 1) + s2(z, 2) + s2(z, 3))
        else:
            if z == 5:
                e("s_nop 1")
            a0, a1, c2, c3_ = s2(z, 0), s2(z, 1), cv(2), cv(3)
            put(a0[:2] + c2[:2] + a0[2:] + c2[2:] + a1[:1] + c3_[:2] + a1[1:2] + c3_[2:] + a1[2:])
            e("s_nop 0")
            put(s2(z, 2) + s2(z, 3))
    A.label(skip5)
    e("v_add_u32 v12, %s, %s", s(sLB), v(vL))
    for rt in range(4):
        for c3 in range(3):
            if rt == 3 and c3 == 0:
                e("s_nop 1")
            e("ds_write_b128 v12, %s offset:%d", v(ZAr(c3, rt), 4), c3 * 4096 + rt * 1024)
    e("s_waitcnt lgkmcnt(0)")
    stamp("zend")
    e("s_barrier")


vA0, vA1, vB0, vB1 = 2, 3, 4, 1


def lgo_init():
    e("v_mov_b32 v12, %d", LGO)
    e("v_mov_b32 v13, 0")
    e("ds_write_b32 v12, v13")
    e("ds_write_b32 v12, v13 offset:4")
    e("ds_write_b32 v12, v13 offset:8")
    e("ds_write_b32 v12, v13 offset:12")
    for i in range(4):
        e("ds_write_b32 v12, v13 offset:%d", 16 + 4 * i)


def k_offset(dst):
    e("s_and_b32 %s, s2, 1", s(dst))
    e("s_mul_i32 %s, %s, 5", s(dst), s(dst))
    e("s_bfe_u32 %s, s2, 0x10003", s(sTmp))
    e("s_mul_i32 %s, %s, 3", s(sTmp), s(sTmp))
    e("s_add_u32 %s, %s, %s", s(dst), s(dst), s(sTmp))
    if KG:
        e("s_lshr_b32 %s, s2, 6", s(sTmp))
        e("s_lshl_b32 %s, %s, 2", s(sTmp), s(sTmp))
        e("s_lshr_b32 %s, 0x%x, %s", s(sTmp), KG, s(sTmp))
        e("s_and_b32 %s, %s, 15", s(sTmp), s(sTmp))
        e("s_add_u32 %s, %s, %s", s(dst), s(dst), s(sTmp))
        mod10(dst)


KG = int(str(opt("kg", 250)), 16)


def mod10(dst):
    e("s_cmp_ge_u32 %s, 10", s(dst))
    e("s_cselect_b32 %s, 10, 0", s(sTmp))
    e("s_sub_u32 %s, %s, %s", s(dst), s(dst), s(sTmp))


def x_src_scalar():
    e("s_lshl_b32 %s, %s, 2", s(sAoff), s(sRB))
    e("s_add_u32 %s, %s, %s", s(sAoff), s(sAoff), s(sLW))
    e("s_mul_i32 %s, %s, 1280", s(sAoff), s(sAoff))


def ffn_loader():
    if PRL & 2:
        e("s_setprio 2")
    e("v_lshrrev_b32 v6, 3, v0")
    e("v_mul_u32_u24 v6, 81920, v6")
    e("v_and_b32 v7, 7, v0")
    e("v_lshrrev_b32 v8, 4, v0")
    e("v_xor_b32 v7, v7, v8")
    e("v_lshl_add_u32 %s, v7, 4, v6", v(vA0))
    e("v_xor_b32 %s, 64, %s", v(vA1), v(vA0))
    e("v_mul_u32_u24 v6, 3072, v8")
    e("v_and_b32 v7, 15, v0")
    e("v_lshlrev_b32 v8, 2, v8")
    e("v_xor_b32 v7, v7, v8")
    e("v_lshl_add_u32 %s, v7, 4, v6", v(vB0))
    e("v_xor_b32 %s, 32, %s", v(vB1), v(vB0))
    x_src_scalar()
    e("s_mul_i32 %s, %s, %d", s(sBoff), s(sLW), 16 * 3072)
    e("s_lshl_b32 %s, %s, 8", s(sTmp), s(sCG))
    e("s_add_u32 %s, %s, %s", s(sBoff), s(sBoff), s(sTmp))
    e("s_lshl_b32 %s, %s, 12", s(sM0), s(sLW))
    k_offset(sJB)
    XR_ = opt("xrot", 0)
    if XR_:
        e("s_bfe_u32 %s, s2, 0x20003", s(sJB))
        e("s_mul_i32 %s, %s, 5", s(sJB), s(sJB))
        e("s_add_u32 %s, %s, 1", s(sJB), s(sJB))
        e("s_lshr_b32 %s, %s, 1", s(sJB), s(sJB))
        if XR_ & 4:
            e("s_mov_b32 %s, 0", s(sJB))
        e("s_lshr_b32 %s, s2, 6", s(sTmp))
        e("s_mul_i32 %s, %s, %d", s(sTmp), s(sTmp), (XR_ & 3) - 1)
        e("s_add_u32 %s, %s, %s", s(sJB), s(sJB), s(sTmp))
        e("s_cmp_ge_u32 %s, 10", s(sJB))
        e("s_cselect_b32 %s, 10, 0", s(sTmp))
        e("s_sub_u32 %s, %s, %s", s(sJB), s(sJB), s(sTmp))
    NR = 10
    tab_srd()
    stamp("l_pre")
    e("s_waitcnt lgkmcnt(0)")
    stamp("l_k")
    for k in ("X", "G", "U"):
        srd(A, *SRDS[k])
    q = VQ()

    def slab_groups(i):
        b = (i % 3) * SLAB
        gs = []

        def head():
            if i < NFIX:
                e("s_add_u32 %s, %s, %d", s(sWM), s(sAoff), i * 128)
                e("s_add_u32 %s, %s, %d", s(sWN), s(sBoff), i * 64 * 3072)
            else:
                e("s_add_u32 %s, %s, %d", s(sTmp), s(sJB), NFIX)
                e("s_lshl_b32 %s, %s, 7", s(sWM), s(sTmp))
                e("s_add_u32 %s, %s, %s", s(sWM), s(sWM), s(sAoff))
                e("s_mul_i32 %s, %s, %d", s(sWN), s(sTmp), 64 * 3072)
                e("s_add_u32 %s, %s, %s", s(sWN), s(sWN), s(sBoff))
                e("s_add_u32 %s, %s, 1", s(sJB), s(sJB))
                e("s_cmp_eq_u32 %s, %d", s(sJB), NR)
                e("s_cselect_b32 %s, 0, %s", s(sJB), s(sJB))
        for n in range(4):
            def f(n=n):
                if n == 0:
                    head()
                e("s_add_u32 m0, %s, %d", s(sM0), b + n * 1024)
                e("s_add_u32 %s, %s, %d", s(sTmp), s(sWM), n * 8 * 81920)
                e("buffer_load_dwordx4 %s, %s, %s offen lds", v(vA1 if n & 1 else vA0), s(sX, 4), s(sTmp))
            gs.append(cap(f))
        for mat in range(2):
            for n in range(4):
                def f(n=n, mat=mat):
                    e("s_add_u32 m0, %s, %d", s(sM0), b + 16384 * (1 + mat) + n * 1024)
                    e("s_add_u32 %s, %s, %d", s(sTmp), s(sWN), n * 4 * 3072)
                    e("buffer_load_dwordx4 %s, %s, %s offen lds", v(vB1 if n & 2 else vB0), s(sU if mat else sG, 4), s(sTmp))
                gs.append(cap(f))
        q.issue("s%d" % i, 12)
        return gs

    def slab(i, main=()):
        weave(list(main), slab_groups(i))

    def wait2(n):
        la, lb = A.newlabel("L_w2"), A.newlabel("L_w2")
        e("s_cmp_ge_u32 %s, 48", s(sPar))
        e("s_cbranch_scc1 %s", la)
        e("s_waitcnt vmcnt(%d)", n + 4)
        e("s_branch %s", lb)
        A.label(la)
        e("s_waitcnt vmcnt(%d)", n)
        A.label(lb)

    def bar(b):
        stamp("fl_a%d" % b)
        e("s_barrier")
        stamp("fl_b%d" % b)
    slab(0)
    stamp("l_s0")
    lgo_init()
    e("s_load_dword %s, %s, 0x%x", s(sTAG), s(P + 18, 2), WS_EP)
    for k in ("WS", "WD", "WR", "WI"):
        srd(A, *SRDS[k])
    z_setup()
    e("v_lshlrev_b32 v5, 4, v0")
    fw_poll_addr(10)
    aux_poll_addr(True, 15)
    aux_addr(True, 36)
    slab(1, cap(z_gconst))
    stamp("l_iss")
    q.wait("s0", extra=" lgkmcnt(0)")
    e("s_barrier")
    stamp("l_bi")
    make_tag()
    slab(2)
    repack_dma()
    wait2(12)
    q.q = ["s2"] * 12
    bar(0)
    slab(3)
    wait2(12)
    q.q = ["s3"] * 12
    bar(1)
    slab(4)
    e("s_waitcnt vmcnt(24)")
    repack_finish()
    wait2(12)
    q.q = ["s4"] * 12
    bar(2)
    slab(5)
    if WARM == 2:
        warm_touch(); q.issue("wt", 2)
    q.wait("s4")
    bar(3)
    lab = A.newlabel("L_nocf")
    e("s_cmp_lg_u32 %s, 0", s(sLW))
    e("s_cbranch_scc1 %s", lab)
    e("s_lshl_b32 %s, s2, 7", s(sCnt))
    e("s_add_u32 %s, %s, 0x%x", s(sCnt), s(sCnt), WS_FW)
    flag_store(sCnt, 16, 17)
    A.label(lab)
    slab(6)
    q.wait("s5")
    bar(4)
    slab(7)
    if PF3 & 1:
        pf3(1)
    if PF3 & 2:
        pf3(0)
    q.wait("s6")
    bar(5)
    poll_issue(34, 1, 15, WS_FS); poll_issue(35, 1, 10, WS_FW); q.issue("p", 2)
    slab(8)
    q.wait("s7")
    bar(6)
    slab(9)
    q.wait("p")
    poll_check(34, 1, 15, WS_FS)
    poll_check(35, 1, 10, WS_FW)
    aux_issue(True, 36); q.issue("aux", 4)
    if PFP == 0:
        pf3_go(q, PF3)
    q.wait("s8")
    bar(7)
    if PFP == 1:
        pf3_go(q, PF3)
    q.wait("aux")
    aux_finish(True, 36)
    bar(8)
    wd_bases(sLW)
    stage_wd(0, 4)
    if CIL == 0:
        z_ci_all()
    stage_done(18 if CIL == 0 else 0)
    e("v_mov_b32 v12, %d", LGO)
    lab = A.newlabel("L_hout")
    A.label(lab)
    e("s_sleep 1")
    e("ds_read_b32 v13, v12 offset:4")
    e("s_waitcnt lgkmcnt(0)")
    e("v_cmp_ne_u32 vcc, 4, v13")
    e("s_cbranch_vccnz %s", lab)
    fu_poll_issue()
    if CIL == 1:
        z_ci_all()
    e("s_branch L_zpart")


def wspec_shift(dst):
    e("s_mul_i32 %s, %s, 642", s(sDelta), s(sK1))
    e("s_mul_i32 %s, s3, 320", s(sTmp))
    e("s_add_u32 %s, %s, %s", s(sDelta), s(sDelta), s(sTmp))
    e("s_and_b32 %s, %s, 15", s(dst), s(sDelta))


def wspec_dma():
    mid_k1()
    e("v_mul_u32_u24 v12, 3121, v0")
    e("v_lshrrev_b32 v12, 16, v12")
    e("v_mul_u32_u24 v12, %d, v12", 32 * 642 - 336)
    e("v_lshl_add_u32 v12, v0, 4, v12")
    wspec_shift(sTmp2)
    e("s_sub_u32 %s, %s, %s", s(sDelta), s(sDelta), s(sTmp2))
    e("s_and_b32 %s, %s, 1", s(sTmp), s(sLW))
    e("s_mul_i32 %s, %s, %d", s(sCnt), s(sTmp), 11 * 1008)
    e("s_mul_i32 %s, %s, %d", s(sTmp), s(sTmp), 33 * 32 * 642)
    e("s_add_u32 %s, %s, %s", s(sDelta), s(sDelta), s(sTmp))
    e("s_cmp_ge_u32 %s, 2", s(sLW))
    e("s_cselect_b32 %s, %s, %s", s(sWR), s(sWI), s(sWR))
    e("s_cselect_b32 %s, %s, %s", s(sWR + 1), s(sWI + 1), s(sWR + 1))
    e("s_cselect_b32 %s, %d, 0", s(sTmp), MWA)
    e("s_add_u32 %s, %s, %s", s(sCnt), s(sCnt), s(sTmp))
    gs = []
    for n in range(11):
        def f(n=n):
            e("s_add_u32 m0, %s, %d", s(sCnt), MW0 + n * 1008)
            e("s_add_u32 %s, %s, %d", s(sTmp), s(sDelta), n * 3 * 32 * 642)
            e("buffer_load_dwordx4 v12, %s, %s offen lds", s(sWR, 4), s(sTmp))
        gs.append(cap(f))
    return gs


def repack_dma():
    e("v_lshrrev_b32 v12, 3, v0")
    e("v_mul_u32_u24 v13, 1280, v12")
    e("v_bfe_u32 v14, v0, 4, 2")
    e("v_lshlrev_b32 v14, 1, v14")
    e("v_and_b32 v12, 7, v0")
    e("v_xor_b32 v12, v12, v14")
    e("v_lshl_add_u32 v12, v12, 4, v13")
    e("s_mul_i32 %s, s2, 3", s(sCnt))
    e("s_add_u32 %s, %s, %s", s(sCnt), s(sCnt), s(sLW))
    e("s_cmp_eq_u32 %s, 3", s(sLW))
    e("s_cselect_b32 %s, 480, %s", s(sCnt), s(sCnt))
    e("s_mul_i32 %s, %s, 52429", s(sBuf), s(sCnt))
    e("s_lshr_b32 %s, %s, 19", s(sBuf), s(sBuf))
    e("s_mul_i32 %s, %s, 10", s(sTmp), s(sBuf))
    e("s_sub_u32 %s, %s, %s", s(sCnt), s(sCnt), s(sTmp))
    e("s_mul_i32 %s, %s, 40960", s(sDelta), s(sBuf))
    e("s_lshl_b32 %s, %s, 7", s(sTmp), s(sCnt))
    e("s_add_u32 %s, %s, %s", s(sDelta), s(sDelta), s(sTmp))
    e("s_min_u32 %s, %s, 2", s(sWa), s(sLW))
    e("s_lshl_b32 %s, %s, 12", s(sWa), s(sWa))
    e("s_add_u32 %s, %s, %d", s(sWa), s(sWa), RPK)
    lab = A.newlabel("L_norp")
    e("s_cmp_ge_u32 %s, 48", s(sBuf))
    e("s_cbranch_scc1 %s", lab)
    for n in range(4):
        e("s_add_u32 m0, %s, %d", s(sWa), n * 1024)
        e("s_add_u32 %s, %s, %d", s(sTmp), s(sDelta), n * 8 * 1280)
        e("buffer_load_dwordx4 v12, %s, %s offen lds", s(sWD, 4), s(sTmp))
    A.label(lab)
    e("s_mul_i32 %s, %s, %d", s(sWb), s(sCnt), 4 * 49152)
    e("s_lshl_b32 %s, %s, 10", s(sTmp), s(sBuf))
    e("s_add_u32 %s, %s, %s", s(sWb), s(sWb), s(sTmp))
    e("s_add_u32 %s, %s, 0x%x", s(sWb), s(sWb), WS_WD)
    e("s_mov_b32 %s, %s", s(sPar), s(sBuf))


def repack_finish():
    lab = A.newlabel("L_norp")
    e("s_cmp_ge_u32 %s, 48", s(sPar))
    e("s_cbranch_scc1 %s", lab)
    e("v_lshrrev_b32 v56, 2, v0")
    e("v_lshlrev_b32 v56, 7, v56")
    e("v_and_b32 v57, 3, v0")
    e("v_lshl_add_u32 v56, v57, 3, v56")
    e("v_bfe_u32 v57, v0, 3, 2")
    e("v_lshl_add_u32 v56, v57, 5, v56")
    e("v_add_u32 v56, %s, v56", s(sWa))
    for tq in range(1, 4):
        e("v_xor_b32 %s, %d, v56", v(56 + tq), tq << 5)
    for tq in range(4):
        for rd in range(2):
            e("ds_read_b64_tr_b16 %s, %s offset:%d", v(16 + tq * 4 + 2 * rd, 2), v(56 + tq), rd * 2048)
    for n in range(4):
        e("s_waitcnt lgkmcnt(%d)", 6 - 2 * n)
        e("s_add_u32 %s, %s, %d", s(sTmp), s(sWb), n * 49152)
        e("buffer_store_dwordx4 %s, v5, %s, %s offen sc1", v(16 + n * 4, 4), s(sWS, 4), s(sTmp))
    A.label(lab)


def fold_group(a0, T, vM, vaddr, off):
    for d in range(4):
        e("v_lshlrev_b32 %s, 16, %s", v(T + d), v(a0 + d))
        e("v_lshlrev_b32 %s, 16, %s", v(T + 4 + d), v(a0 + 4 + d))
    for d in range(8):
        e("v_and_b32 %s, %s, %s", v(a0 + d), v(vM), v(a0 + d))
    for d in range(4):
        e("v_fmac_f32 %s, %s, %s", v(T + d), s(sSgn), v(T + 4 + d))
    for d in range(4):
        e("v_fmac_f32 %s, %s, %s", v(a0 + d), s(sSgn), v(a0 + 4 + d))
    for d in range(4):
        e("v_cvt_pk_bf16_f32 %s, %s, %s", v(a0 + d), v(T + d), v(a0 + d))
    e("ds_write_b128 %s, %s offset:%d", v(vaddr), v(a0, 4), off)


def fold_addr(src, w0, w2):
    e("v_lshrrev_b32 %s, 3, v0", v(w2))
    e("v_mul_u32_u24 %s, 81920, %s", v(w2 + 1), v(w2))
    e("v_and_b32 %s, 7, v0", v(w0))
    e("v_lshl_add_u32 %s, %s, 4, %s", v(src), v(w0), v(w2 + 1))
    e("v_lshrrev_b32 %s, 4, v0", v(w2 + 1))
    e("v_xor_b32 %s, %s, %s", v(w0), v(w0), v(w2 + 1))
    e("v_lshlrev_b32 %s, 7, %s", v(w2), v(w2))
    e("v_lshl_add_u32 %s, %s, 4, %s", v(w2), v(w0), v(w2))
    e("s_mul_i32 %s, %s, %d", s(sTmp), s(sLW), CPS)
    e("s_add_u32 %s, %s, %d", s(sTmp), s(sTmp), XB)
    e("v_add_u32 %s, %s, %s", v(w0), s(sTmp), v(w2))
    e("v_xor_b32 %s, 64, %s", v(w0 + 1), v(w0))


XO = opt("xo", 0)
CI_EARLY = list(range(8, 16))
CI_LATE = [i for i in range(18) if i not in CI_EARLY]
LX = opt("lx", 0)
CX = opt("cx", 2)
MWE = opt("mwe", 1)
EH = opt("eh", 0)
EST = opt("est", 3)
ECI = opt("eci", 1)
EFH = opt("efh", 1)
NL = opt("nl", 2)


def dft_loader():
    if PRL & 1:
        e("s_setprio 2")
    XR = 64
    vW0, vW1 = 8, 9
    fold_addr(vA0, vW0, 6)
    e("v_lshlrev_b32 %s, 4, v0", v(vB0))
    x_src_scalar()
    tab_srd()
    stamp("l_pre")
    e("s_waitcnt lgkmcnt(0)")
    stamp("l_k")
    srd(A, *SRDS["X"])
    q = VQ()

    def xl(i):
        gs = []
        for n in range(NL):
            for hf in range(2):
                def f(n=n, hf=hf):
                    e("s_add_u32 %s, %s, %d", s(sTmp), s(sAoff), n * 8 * 81920 + i * 128)
                    e("buffer_load_dwordx4 %s, %s, %s, %s offen offset:%d", v(XR + i * 32 + n * 8 + hf * 4, 4), v(vA0), s(sX, 4), s(sTmp), hf * 640)
                gs.append(cap(f))
        q.issue("x%d" % i, 2 * NL)
        return gs

    def fl():
        gs = []
        for n in range(2):
            def f(n=n):
                e("s_lshl_b32 %s, %s, 11", s(sTmp), s(sLW))
                e("s_add_u32 m0, %s, %d", s(sTmp), FR_L + n * 1024)
                e("s_add_u32 %s, %s, %d", s(sTmp), s(sTmp), TB.F64_OFF + n * 1024)
                e("buffer_load_dwordx4 %s, %s, %s offen lds", v(vB0), s(sTAB, 4), s(sTmp))
            gs.append(cap(f))
        q.issue("f", 2)
        return gs

    def fold(i):
        for n in range(NL):
            fold_group(XR + i * 32 + n * 8, 28 + 8 * (n & 1), 44, (vW0, vW1)[n & 1], (1 - (i & 1)) * 5120 + n * 1024)

    def bar(b):
        stamp("dl_a%s" % b)
        e("s_barrier")
        stamp("dl_b%s" % b)
    weave([], xl(0))
    stamp("l_s0")
    lgo_init()
    e("s_load_dword %s, %s, 0x%x", s(sTAG), s(P + 18, 2), WS_EP)
    for k in ("WS", "WR", "WI", "OUT"):
        srd(A, *SRDS[k])
    e("s_cmp_ge_u32 %s, 2", s(sCG))
    e("s_cselect_b32 %s, -1.0, 1.0", s(sSgn))
    weave([], xl(1) + (xl(2) if LX >= 1 else []) + (xl(3) if LX >= 2 else []))
    e("v_mov_b32 v44, 0xffff0000")
    aux_poll_addr(False, 15)
    fw_poll_addr(10)
    aux_addr(False, 24)
    stamp("l_iss")
    q.wait("x0")
    stamp("dl_x0")
    fold(0)
    e("s_waitcnt lgkmcnt(0)")
    e("s_barrier")
    stamp("l_bi")
    make_tag()
    q.wait("x1")
    weave(cap(lambda: fold(1)), (xl(2) if LX < 1 else []) + (xl(3) if LX < 2 else []) + (xl(4) if LX >= 1 else []))
    e("s_waitcnt lgkmcnt(0)")
    bar(0)
    q.wait("x2")
    stamp("dl_x2")
    weave(cap(lambda: fold(2)), xl(4) if LX < 1 else [])
    stamp("dl_f2")
    poll_issue(46, 1, 15, WS_FS); q.issue("p")
    e("s_waitcnt lgkmcnt(0)")
    bar(1)
    q.wait("x3")
    stamp("dl_x3")
    weave(cap(lambda: fold(3)), fl())
    stamp("dl_f3")
    q.wait("p")
    poll_check(46, 1, 15, WS_FS)
    aux_issue(False, 24); q.issue("aux")
    e("s_waitcnt lgkmcnt(0)")
    bar(2)
    gs = wspec_dma()
    if WSP == 2:
        weave(cap(lambda: fold(4)), gs)
        q.issue("w", 11)
    else:
        fold(4)
    q.wait("aux")
    aux_finish(False, 24)
    bar(3)
    poll_issue(41, 1, 10, WS_FW)
    if WSP == 0:
        weave([], gs)
    z_setup()
    wd_bases(sLW)
    e("v_lshlrev_b32 v5, 4, v0")
    if EST >= 3:
        if ECI:
            z_ci_sub(CI_EARLY)
            lab = A.newlabel("L_cil")
            e("s_bfe_u32 %s, s2, 0x10003", s(sTmp))
            e("s_add_u32 %s, %s, 2", s(sTmp), s(sTmp))
            e("s_cmp_lt_u32 %s, %s", s(sLW), s(sTmp))
            e("s_cbranch_scc1 %s", lab)
            z_ci_sub(CI_LATE)
            A.label(lab)
        if ZGL:
            e("v_mov_b32 v12, %d", LGO)
            lab = A.newlabel("L_zgl")
            A.label(lab)
            e("s_sleep 2")
            e("ds_read_b32 v13, v12 offset:12")
            e("s_waitcnt lgkmcnt(0)")
            e("v_cmp_ne_u32 vcc, 1, v13")
            e("s_cbranch_vccnz %s", lab)
        z_gconst()
        stamp("dl_g")
        e("s_branch L_dft_l")
        return
    if ECI == 2:
        z_ci_sub(CI_EARLY)
    if EST:
        e("s_waitcnt vmcnt(%d)", len(CI_EARLY) if ECI == 2 else 0)
        poll_check(41, 1, 10, WS_FW)
        stamp("dl_fw")
        stage_wd(0, 3)
    if ECI == 1:
        z_ci_sub(CI_EARLY)
    stamp("dl_st")
    z_gconst()
    stamp("dl_g")
    if not EST:
        e("s_waitcnt vmcnt(0)")
        poll_check(41, 1, 10, WS_FW)
    e("s_branch L_dft_l")


def addr_advance(regs):
    e("s_add_u32 %s, %s, %d", s(sBuf), s(sBuf), SLAB)
    e("s_cmp_ge_u32 %s, %d", s(sBuf), 3 * SLAB)
    e("s_cselect_b32 %s, 0, %s", s(sBuf), s(sBuf))
    e("s_cselect_b32 %s, %d, %s", s(sDelta), (-2 * SLAB) & 0xffffffff, s(sSLAB))
    for r_ in regs:
        e("v_add_u32 %s, %s, %s", v(r_), s(sDelta), v(r_))


def gemm_loop(nslab, NT, mfmas, reads, need, areg, bar_gap, per_gap, last_extra=(), first_hook=None, peel=None, buf0=0, body=None, unroll=None, hooks=None, loop_from=None, fills=None, advf=None, last_bar=False):
    nreads = len(reads(0, 0))
    nm = len(need)

    def step(mf, nxt, first_gap=0, pre=None, barg=None):
        issued, done = 0, 0
        for m in range(nm):
            if need[m] > done:
                allowed = nreads - need[m] + issued
                e("s_waitcnt lgkmcnt(%d)", min(15, allowed))
                done = need[m] if allowed <= 15 else min(nreads, nreads + issued - 15)
            mf[m]()
            if pre and m in pre:
                for f in pre[m]:
                    f()
                if m == barg:
                    done = nreads
            if m >= first_gap:
                for k in range(per_gap):
                    if issued < len(nxt):
                        nxt[issued]()
                        issued += 1
        assert issued == len(nxt), (issued, len(nxt))

    def bar(vm=False):
        e("s_waitcnt lgkmcnt(0)%s", " vmcnt(0)" if vm else "")
        e("s_barrier")

    def merge(*ds):
        out = {}
        for d in ds:
            for k, x in d.items():
                out.setdefault(k, [])
                out[k] += x
        return out

    def spread(ops):
        out = {}
        for n, f in enumerate(ops):
            g = nm - 1 - (len(ops) - 1 - n) * max(1, (nm - bar_gap - 1) // max(1, len(ops)))
            out.setdefault(max(g, 0), []).append(f)
        return out

    def slab(last, peeled=False):
        if peeled:
            for t in range(NT - 1):
                step(mfmas(t & 1, t == 0), reads((t + 1) & 1, t + 1), pre=peel[t])
            step(mfmas(1), reads(0, 0), first_gap=bar_gap + (1 if bar_gap else 0),
                 pre=merge({0: [lambda: addr_advance(areg)]}, {bar_gap: [lambda: bar(True)]}, peel[NT - 1]), barg=bar_gap)
            return
        ex = list(last_extra) if last else []
        per = (len(ex) + NT - 1) // NT
        for t in range(NT - 1):
            step(mfmas(t & 1), reads((t + 1) & 1, t + 1), pre=merge(spread(ex[t * per:(t + 1) * per]), body[t] if body and not last else {}))
        if last:
            step(mfmas(1), [], pre=spread(ex[(NT - 1) * per:]))
        else:
            hooks = {bar_gap: ([first_hook[0]] if first_hook else []) + [bar] + ([first_hook[1]] if first_hook else [])}
            step(mfmas(1), reads(0, 0), first_gap=bar_gap + (1 if bar_gap else 0), pre=merge({0: [lambda: addr_advance(areg)]}, hooks, body[NT - 1] if body else {}), barg=bar_gap)
    e("s_mov_b32 %s, %d", s(sBuf), buf0)
    e("s_mov_b32 %s, %d", s(sSLAB), SLAB)
    e("s_mov_b32 %s, 0", s(sCnt))
    e("s_waitcnt lgkmcnt(0)%s", " vmcnt(%d)" % unroll[0][0] if unroll and unroll[0][0] is not None else "")
    make_tag()
    e("s_barrier")
    stamp("c_bi")
    for f in reads(0, 0):
        f()
    if unroll:
        ops = unroll[0][1]
        for i in range(nslab):
            if loop_from is not None and loop_from < i < nslab - 1:
                continue
            if loop_from is not None and i == loop_from:
                e("s_mov_b32 %s, %d", s(sBuf), ((buf0 // SLAB + i) % 3) * SLAB)
                e("s_mov_b32 %s, %d", s(sCnt), i)
                lab = A.newlabel("L_gemm")
                A.label(lab)
                slab(False)
                e("s_add_u32 %s, %s, 1", s(sCnt), s(sCnt))
                e("s_cmp_lt_u32 %s, %d", s(sCnt), nslab - 1)
                e("s_cbranch_scc1 %s", lab)
                continue
            per = (len(ops) + NT - 2) // (NT - 1)
            hk = hooks[i] if hooks else [{}] * NT
            if fills:
                gs = fills(i)
                ngap = (NT - 1) * nm
                hk = [{} for _ in range(NT)]
                for k, g in enumerate(gs):
                    pos = min(ngap - 1, k * ngap // max(1, len(gs)))
                    hk[pos // nm].setdefault(pos % nm, []).append(lambda g=g: A.lines.extend(g))
            for t in range(NT - 1):
                step(mfmas(t & 1, i == 0 and t == 0), reads((t + 1) & 1, t + 1), pre=merge(spread(ops[t * per:(t + 1) * per]), hk[t]))
            if i == nslab - 1:
                if last_bar:
                    step(mfmas(1), [], pre={bar_gap: [bar]}, barg=bar_gap)
                else:
                    step(mfmas(1), [])
            else:
                vm, ops = unroll[i + 1]
                if callable(vm):
                    vm = vm()

                def ubar(vm=vm):
                    e("s_waitcnt lgkmcnt(0)%s", "" if vm is None else " vmcnt(%d)" % vm)
                    e("s_barrier")

                def adv(i=i):
                    if advf:
                        return advf(i)
                    nb = (buf0 // SLAB + i + 1) % 3
                    for r_ in areg:
                        e("v_add_u32 %s, %d, %s", v(r_), (SLAB if nb else -2 * SLAB) & 0xffffffff, v(r_))
                step(mfmas(1), reads(0, 0), first_gap=bar_gap + (1 if bar_gap else 0),
                     pre=merge({0: [adv]}, {bar_gap: [ubar]}, hk[NT - 1]), barg=bar_gap)
        stamp("c_le")
        return
    if peel:
        slab(False, True)
        e("s_mov_b32 %s, 1", s(sCnt))
    lab = A.newlabel("L_gemm")
    A.label(lab)
    slab(False)
    e("s_add_u32 %s, %s, 1", s(sCnt), s(sCnt))
    e("s_cmp_lt_u32 %s, %d", s(sCnt), nslab - 1)
    e("s_cbranch_scc1 %s", lab)
    slab(True)
    stamp("c_le")


vWD = [1, 2, 3, 4, 14]


def p3c_setup():
    p3_map()
    wd_bases(sW)
    e("s_lshl_b32 %s, %s, 6", s(sOo), s(sG3))
    e("s_mul_i32 %s, %s, %d", s(sHo), s(sP), 2 * 48 * 2048)
    e("s_lshl_b32 %s, %s, 11", s(sTmp), s(sW))
    e("s_add_u32 %s, %s, %s", s(sHo), s(sHo), s(sTmp))
    e("s_and_b32 %s, %s, 1", s(sTmp), s(sW))
    e("s_lshl_b32 %s, %s, 10", s(sTmp), s(sTmp))
    e("s_lshl_b32 %s, %s, 1", s(sTmp2), s(sP))
    e("s_add_u32 %s, %s, %s", s(sTmp), s(sTmp), s(sTmp2))
    e("s_lshr_b32 %s, %s, 1", s(sTmp2), s(sW))
    e("s_add_u32 %s, %s, %s", s(sTmp), s(sTmp), s(sTmp2))
    e("s_mul_i32 %s, %s, 1280", s(sTmp), s(sTmp))
    e("s_add_u32 %s, %s, %s", s(sOo), s(sOo), s(sTmp))
    e("s_add_u32 %s, %s, %s", s(sOc), s(sOc), s(sTmp))


def fh_addr():
    e("s_lshl_b32 %s, %s, 1", s(sTmp), s(sP))
    e("s_lshr_b32 %s, %s, 1", s(sTmp2), s(sW))
    e("s_add_u32 %s, %s, %s", s(sTmp), s(sTmp), s(sTmp2))
    e("s_mul_i32 %s, %s, 12", s(sTmp), s(sTmp))
    e("v_min_u32 v5, 11, v0")
    e("v_add_u32 v5, %s, v5", s(sTmp))
    e("v_lshlrev_b32 v3, 7, v5")


sHr = [50, 51, 52, 53]


def p3_pre():
    vL = 1
    e("v_lshlrev_b32 %s, 4, v0", v(vL))
    for rho in range(4):
        e("s_add_u32 %s, %s, %d", s(sTmp), s(sW), rho)
        e("s_bfe_u32 %s, %s, 0x10001", s(sTmp2), s(sTmp))
        e("s_mul_i32 %s, %s, %d", s(sTmp2), s(sTmp2), 48 * 2048)
        e("s_and_b32 %s, %s, 1", s(sTmp), s(sTmp))
        e("s_lshl_b32 %s, %s, 10", s(sTmp), s(sTmp))
        e("s_add_u32 %s, %s, %s", s(sTmp), s(sTmp), s(sTmp2))
        e("s_add_u32 %s, %s, %s", s(sTmp), s(sTmp), s(sHo))
        e("s_add_u32 %s, %s, %d", s(sHr[rho]), s(sTmp), WS_H)

    rot3()


def hload_(i):
    item4(i, sRZ)
    e("s_lshl_b32 %s, %s, 1", s(sRZ), s(sRZ))
    for rho in range(4):
        e("s_add_u32 %s, %s, %s", s(sTmp), s(sHr[rho]), s(sRZ))
        e("buffer_load_dwordx4 %s, v1, %s, %s offen sc1", v(8 + (i % 4) * 36 + 20 + rho * 4, 4), s(sWS, 4), s(sTmp))


def p3c():
    vL, vO, vPH, vWJ = 1, 2, 3, 4
    RS, XR, WJ, ACC = 8, 8, 152, 176
    NI = 12
    q = VQ()
    def wload(i, ct):
        if ct == 0:
            item4(i, sI4)
            e("s_add_u32 %s, %s, %s", s(sTmp2), s(sI4), s(sWa))
        if ct < 4:
            e("s_add_u32 %s, %s, %d", s(sTmp), s(sTmp2), WOFF[ct][1])
        else:
            e("s_add_u32 %s, %s, %s", s(sTmp), s(sI4), s(sWc))
        e("buffer_load_dwordx4 %s, %s, %s, %s offen sc1", v(RS + (i % 4) * 36 + ct * 4, 4), v(vL), s(sWS, 4), s(sTmp))
        q.issue("i%d" % i)

    def hload(i):
        hload_(i)
        q.issue("i%d" % i, 4)

    def wj(i, ct):
        e("ds_read_b128 %s, %s offset:%d", v(WJ + 4 * ct, 4), v(vWJ), i * 5120 + ct * 1024)
    stamp("p3_in")
    if not XQ:
        e("v_and_b32 v5, 15, v0")
        e("v_mul_u32_u24 v5, 81920, v5")
        e("v_lshrrev_b32 v6, 4, v0")
        e("v_lshl_add_u32 %s, v6, 3, v5", v(vO))
    fh_addr()
    e("s_mul_i32 %s, %s, %d", s(sTmp), s(sW), CPS)
    e("s_add_u32 %s, %s, %d", s(sTmp), s(sTmp), CP0)
    e("v_add_u32 %s, %s, %s", v(vWJ), s(sTmp), v(vL))
    lab = A.newlabel("L_nofh")
    e("s_cmp_ge_u32 s2, 192")
    e("s_cbranch_scc1 %s", lab)
    e("v_mov_b32 v7, %d", LGO)
    e("v_mov_b32 v172, 1")
    e("s_waitcnt vmcnt(0)")
    flag_store(sFlag, 5, 6)
    e("s_mov_b64 exec, 1")
    e("ds_add_u32 v7, v172 offset:4")
    e("s_mov_b64 exec, -1")
    if EFH:
        poll_issue(7, 1, vPH, WS_FH)
        e("s_waitcnt vmcnt(0)")
    A.label(lab)
    stamp("p3_fl")
    if not EFH:
        poll_issue(7, 1, vPH, WS_FH)
    e("s_lshl_b32 %s, %s, 2", s(sTmp), s(sW))
    e("s_add_u32 %s, %s, %d", s(sTmp), s(sTmp), LGO + 16)
    e("v_mov_b32 v5, %s", s(sTmp))
    late, join = A.newlabel("L_hlate"), A.newlabel("L_hjoin")
    if not EFH:
        e("s_waitcnt vmcnt(0)")
    early = A.newlabel("L_hearly")
    if EH:
        e("s_cmp_eq_u32 %s, 2", s(sNU))
        e("s_cbranch_scc1 %s", early)
    e("v_cmp_ne_u32 vcc, %s, v7", s(sTAG))
    e("s_cbranch_vccnz %s", late)
    for i in range(EH):
        hload(i)
    A.label(early)
    e("s_mov_b32 %s, 1", s(sNU))
    for i in range(EH, 4):
        hload(i)
    for i in range(4, 8):
        for ct in range(5):
            wload(i, ct)
    e("s_branch %s", join)
    A.label(late)
    e("s_mov_b32 %s, 0", s(sNU))
    for i in range(4, 8):
        for ct in range(5):
            wload(i, ct)
    poll_check(7, 1, vPH, WS_FH)
    stamp("hp")
    q.drain()
    for i in range(4):
        hload(i)
    A.label(join)
    stamp("p3_fh")

    def staged(br):
        lab, skip = A.newlabel("L_wst"), A.newlabel("L_wsk")
        if br:
            e("s_cmp_ge_u32 s2, 192")
            e("%s %s", br, skip)
        A.label(lab)
        e("ds_read_b32 v6, v5")
        e("s_waitcnt lgkmcnt(0)")
        e("v_cmp_eq_u32 vcc, 0, v6")
        e("s_cbranch_vccnz %s", lab)
        A.label(skip)
    staged("s_cbranch_scc1" if EST else None)
    for ct in range(5):
        wj(0, ct)
    OFF = [(sOo, 0), (sOo, 32), (sOo, 640), (sOo, 672), (sOc, 0)]
    vXC, vD, vD1, vDC = 172, 173, 174, 175

    def xq_addr():
        e("v_lshrrev_b32 v6, 2, v0")
        e("v_mul_u32_u24 v6, 81920, v6")
        e("v_lshrrev_b32 v7, 4, v0")
        e("v_xor_b32 v7, v7, v0")
        e("v_and_b32 v7, 3, v7")
        e("v_lshl_add_u32 %s, v7, 4, v6", v(vO))
        e("v_bfe_u32 v6, v0, 1, 4")
        e("v_mul_u32_u24 v6, 81920, v6")
        e("v_and_b32 v7, 1, v0")
        e("v_lshl_add_u32 %s, v7, 4, v6", v(vXC))
        e("s_mul_i32 %s, %s, %d", s(sTB), s(sW), CPS)
        e("s_add_u32 %s, %s, %d", s(sTB), s(sTB), CP0 + 15360)
        e("v_and_b32 v6, 15, v0")
        e("v_lshrrev_b32 v7, 4, v0")
        e("v_lshlrev_b32 %s, 5, v6", v(vDC))
        e("v_lshl_add_u32 %s, v7, 3, %s", v(vDC), v(vDC))
        e("v_add_u32 %s, %s, %s", v(vDC), s(sTB), v(vDC))
        e("v_lshlrev_b32 v6, 6, v6")
        e("v_and_b32 v7, 1, v7")
        e("v_lshl_add_u32 v6, v7, 3, v6")
        e("v_lshrrev_b32 v7, 5, v0")
        e("v_bfe_u32 %s, v0, 2, 2", v(vD))
        e("v_xor_b32 v7, v7, %s", v(vD))
        e("v_lshl_add_u32 v6, v7, 4, v6")
        e("v_add_u32 %s, %s, v6", v(vD), s(sTB))
        e("v_xor_b32 %s, 32, %s", v(vD1), v(vD))

    def dl(ct): return ((vD, vD1)[ct & 1], (ct >> 1) * 1024) if ct < 4 else (vDC, 2048)

    def x_dma(k):
        e("s_add_u32 m0, %s, %d", s(sTB), k * 1024)
        if k < 2:
            e("buffer_load_dwordx4 %s, %s, %s offen offset:%d lds", v(vO), s(sX, 4), s(sOo), 0) if k == 0 else None
            if k == 1:
                e("s_add_u32 %s, %s, 640", s(sTmp), s(sOo))
                e("buffer_load_dwordx4 %s, %s, %s offen lds", v(vO), s(sX, 4), s(sTmp))
        else:
            e("s_mov_b32 exec_hi, 0")
            e("buffer_load_dwordx4 %s, %s, %s offen lds", v(vXC), s(sX, 4), s(sOc))
            e("s_mov_b32 exec_hi, -1")
        q.issue("x")

    def acc(ct, rt): return ACC + (ct * 4 + rt) * 4
    for i in range(NI):
        rs = RS + (i % 4) * 36
        if i < 4:
            la, lb = A.newlabel("L_w3"), A.newlabel("L_w3")
            e("s_cmp_eq_u32 %s, 0", s(sNU))
            e("s_cbranch_scc1 %s", la)
            e("s_waitcnt vmcnt(32)")
            e("s_branch %s", lb)
            A.label(la)
            q.wait("i%d" % i)
            A.label(lb)
        else:
            q.wait("i%d" % i)
        stamp("i%d" % i)
        if XQ and i == 10:
            for ct in range(5):
                e("ds_read_b64 %s, %s offset:%d", v(XR + 2 * ct, 2), v(dl(ct)[0]), dl(ct)[1])
        if XQ and i == 11:
            e("s_waitcnt lgkmcnt(0)")
        if i == 2 and EST:
            staged("s_cbranch_scc0")
        for ct in range(5):
            if i < 4:
                e("s_waitcnt lgkmcnt(%d)", 4 if i < 3 else 4 - ct)
            for rt in range(4):
                mm16(acc(ct, rt), WJ + 4 * ct if i < 4 else rs + 4 * ct, rs + 20 + 4 * rt, i == 0)
            if i < 3:
                wj(i + 1, ct)
            if 4 <= i < 8:
                wload(i + 4, ct)
            if i == NI - 1 and FIL and ct >= 2:
                for rho in range(1, 4):
                    e("ds_write_b128 %s, %s offset:%d", v(vWJ), v(acc(ct - 2, rho), 4), (rho - 1) * 5120 + (ct - 2) * 1024)
            if XQ and i == 3 and ct == 0:
                xq_addr()
            if XQ and i == 4 and ct >= 2:
                x_dma(ct - 2)
            if i == 9 and not XQ:
                e("buffer_load_dwordx2 %s, %s, %s, %s offen offset:%d", v(XR + 2 * ct, 2), v(vO), s(sX, 4), s(OFF[ct][0]), OFF[ct][1])
                q.issue("x")
        if i + 4 < NI:
            hload(i + 4)
    for rho in range(1, 4):
        e("s_sub_u32 %s, %s, %d", s(sTmp), s(sW), rho)
        e("s_and_b32 %s, %s, 3", s(sTmp), s(sTmp))
        e("s_mul_i32 %s, %s, %d", s(sTmp), s(sTmp), CPS)
        e("s_add_u32 %s, %s, %d", s(sTmp), s(sTmp), CP0 + (rho - 1) * 5120)
        e("v_add_u32 %s, %s, %s", v(40 + rho), s(sTmp), v(vL))
    for ct in range(3 if FIL else 0, 5):
        for rho in range(1, 4):
            e("ds_write_b128 %s, %s offset:%d", v(vWJ), v(acc(ct, rho), 4), (rho - 1) * 5120 + ct * 1024)
    e("s_lshl_b32 %s, %s, 10", s(sTmp), s(sW))
    e("v_add_u32 v40, %s, %s", s(sTmp), v(vL))
    e("s_waitcnt vmcnt(0)")
    for ct in range(5):
        x0, b = XR + 2 * ct, 20 + 4 * ct
        e("v_lshlrev_b32 %s, 16, %s", v(b), v(x0))
        e("v_and_b32 %s, 0xffff0000, %s", v(b + 1), v(x0))
        e("v_lshlrev_b32 %s, 16, %s", v(b + 2), v(x0 + 1))
        e("v_and_b32 %s, 0xffff0000, %s", v(b + 3), v(x0 + 1))
        for k in (0, 2):
            e("v_pk_add_f32 %s, %s, %s", v(acc(ct, 0) + k, 2), v(acc(ct, 0) + k, 2), v(b + k, 2))
    e("s_waitcnt lgkmcnt(0)")
    stamp("p3_end")
    e("s_barrier")
    stamp("p3_bar")
    LP = 48
    for c3 in range(3):
        for lw in range(4):
            e("ds_read_b128 %s, v40 offset:%d", v(LP + (c3 * 4 + lw) * 4, 4), ZU0 + lw * ZUS + c3 * 4096)
    for ct in range(5):
        for k in range(1, 4):
            e("ds_read_b128 %s, %s offset:%d", v(acc(ct, k), 4), v(40 + k), ct * 1024)
    e("s_waitcnt lgkmcnt(15)")
    for c3 in range(3):
        b = LP + c3 * 16
        for k in (0, 2):
            e("v_pk_add_f32 %s, %s, %s", v(b + k, 2), v(b + k, 2), v(b + 8 + k, 2))
            e("v_pk_add_f32 %s, %s, %s", v(b + 4 + k, 2), v(b + 4 + k, 2), v(b + 12 + k, 2))
        for k in (0, 2):
            if c3 < 2:
                e("v_pk_add_f32 %s, %s, %s neg_lo:[0,1] neg_hi:[0,1]", v(b + 8 + k, 2), v(b + k, 2), v(b + 4 + k, 2))
            e("v_pk_add_f32 %s, %s, %s", v(b + k, 2), v(b + k, 2), v(b + 4 + k, 2))
    zsrc = [LP, LP + 16, LP + 8, LP + 24, LP + 32]
    extra = 0
    for ct in range(5):
        b = acc(ct, 0)
        e("s_waitcnt lgkmcnt(%d)", 12 - 3 * ct + extra)
        for k in (0, 2):
            e("v_pk_add_f32 %s, %s, %s", v(b + k, 2), v(b + k, 2), v(zsrc[ct] + k, 2))
            e("v_pk_add_f32 %s, %s, %s", v(b + 4 + k, 2), v(b + 4 + k, 2), v(b + 8 + k, 2))
        for k in (0, 2):
            e("v_pk_add_f32 %s, %s, %s", v(b + k, 2), v(b + k, 2), v(b + 12 + k, 2))
        for k in (0, 2):
            e("v_pk_add_f32 %s, %s, %s", v(b + k, 2), v(b + k, 2), v(b + 4 + k, 2))
        e("v_cvt_pk_bf16_f32 %s, %s, %s", v(b + 8), v(b), v(b + 1))
        e("v_cvt_pk_bf16_f32 %s, %s, %s", v(b + 9), v(b + 2), v(b + 3))
        if not XQ:
            e("buffer_store_dwordx2 %s, %s, %s, %s offen offset:%d%s", v(b + 8, 2), v(vO), s(sOUT, 4), s(OFF[ct][0]), OFF[ct][1], OUTF)
            continue
        e("ds_write_b64 %s, %s offset:%d", v(dl(ct)[0]), v(b + 8, 2), dl(ct)[1] + 2560)
        extra += 1
        if ct in (1, 3, 4):
            e("ds_read_b128 %s, %s offset:%d", v(8 + 4 * (ct >> 1), 4), v(vWJ), 15360 + 2560 + (ct >> 1) * 1024)
            extra += 1
        if ct == 3:
            e("s_waitcnt lgkmcnt(3)")
            e("buffer_store_dwordx4 v[8:11], %s, %s, %s offen%s", v(vO), s(sOUT, 4), s(sOo), OUTF)
        if ct == 4:
            e("s_waitcnt lgkmcnt(2)")
            e("buffer_store_dwordx4 v[12:15], %s, %s, %s offen offset:640%s", v(vO), s(sOUT, 4), s(sOo), OUTF)
            e("s_waitcnt lgkmcnt(0)")
            e("s_mov_b32 exec_hi, 0")
            e("buffer_store_dwordx4 v[16:19], %s, %s, %s offen%s", v(vXC), s(sOUT, 4), s(sOc), OUTF)
            e("s_mov_b32 exec_hi, -1")
    lab = A.newlabel("L_noep")
    e("s_lshl_b32 %s, s2, 3", s(sTmp))
    e("s_add_u32 %s, %s, %s", s(sTmp), s(sTmp), s(sW))
    e("s_cmp_eq_u32 %s, 0", s(sTmp))
    e("s_cbranch_scc0 %s", lab)
    e("s_mov_b32 %s, 0x%x", s(sTmp), WS_EP)
    flag_store(sTmp, 5, 6)
    A.label(lab)


def pf3(part):
    e("s_lshr_b32 %s, s2, 3", s(sCnt))
    e("s_lshl_b32 %s, %s, 2", s(sCnt), s(sCnt))
    e("s_add_u32 %s, %s, %s", s(sCnt), s(sCnt), s(sLW))
    ntau = 40 if MAP8 else 20
    n = 0
    if part == 0:
        per = (ntau * 256 + 95) // 96
        for k in range((per + 63) // 64):
            e("s_mul_i32 %s, %s, %d", s(sTmp), s(sCnt), per)
            e("v_min_u32 v12, %d, v0", min(63, per - 64 * k - 1))
            e("v_add_u32 v12, %s, v12", s(sTmp))
            if k:
                e("v_add_u32 v12, %d, v12", 64 * k)
            e("v_lshrrev_b32 v13, 8, v12")
            e("v_and_b32 v12, 255, v12")
            if not MAP8:
                e("s_and_b32 %s, s2, 1", s(sTmp))
                e("s_lshl_b32 %s, %s, 3", s(sTmp2), s(sTmp))
                e("s_lshl_b32 %s, %s, 1", s(sTmp), s(sTmp))
                e("s_add_u32 %s, %s, 16", s(sTmp), s(sTmp))
                e("v_cmp_gt_u32 vcc, 16, v13")
                e("v_and_b32 v14, 7, v13")
                e("v_add_u32 v14, %s, v14", s(sTmp2))
                e("v_bfe_u32 v17, v13, 3, 1")
                e("v_mad_u32_u24 v14, v17, 20, v14")
                e("v_and_b32 v16, 1, v13")
                e("v_add_u32 v16, %s, v16", s(sTmp))
                e("v_bfe_u32 v17, v13, 1, 1")
                e("v_mad_u32_u24 v16, v17, 20, v16")
                e("v_cndmask_b32 v13, v16, v14, vcc")
            e("v_mul_u32_u24 v13, 49152, v13")
            e("v_lshl_add_u32 v60, v12, 7, v13")
            n += 1
    else:
        per = (4032 if MAP8 else 2016) // 96
        e("s_mul_i32 %s, %s, %d", s(sTmp), s(sCnt), per * 128)
        if not MAP8:
            e("s_and_b32 %s, s2, 1", s(sTmp2))
            e("s_mul_i32 %s, %s, %d", s(sTmp2), s(sTmp2), 4 * 63 * 1024)
            e("s_add_u32 %s, %s, %s", s(sTmp), s(sTmp), s(sTmp2))
        e("s_add_u32 %s, %s, %d", s(sTmp), s(sTmp), TB.CI_OFF)
        e("v_min_u32 v12, %d, v0", per - 1)
        e("v_lshlrev_b32 v12, 7, v12")
        e("v_add_u32 v61, %s, v12", s(sTmp))
        n = 1
    assert n == 1


def pf3_go(q, m):
    if m & 1:
        e("buffer_load_dword v63, v61, %s, 0 offen", s(sTAB, 4))
        q.issue("pf")
    if m & 2:
        e("s_mov_b32 %s, 0x%x", s(sTmp), WS_WD + 16384)
        e("buffer_load_dword v62, v60, %s, %s offen sc1", s(sWS, 4), s(sTmp))
        q.issue("pf")


def code_touch():
    lab = A.newlabel("L_ct")
    e("s_getpc_b64 s[4:5]")
    A.label(lab)
    e("s_sub_u32 s4, s4, %s - %s", lab, NAME + "_kernel")
    e("s_subb_u32 s5, s5, 0")
    e("s_mov_b32 %s, s4", s(sG))
    e("s_and_b32 %s, s5, 0xffff", s(sG + 1))
    e("s_mov_b32 %s, L_code_end - %s", s(sG + 2), NAME + "_kernel")
    e("s_mov_b32 %s, 0x00020000", s(sG + 3))
    if CT == 3:
        e("s_lshr_b32 %s, s2, 3", s(sTmp))
    else:
        e("s_bfe_u32 %s, s2, 0x30003", s(sTmp))
        e("s_lshl_b32 %s, %s, 2", s(sTmp), s(sTmp))
        e("s_add_u32 %s, %s, %s", s(sTmp), s(sTmp), s(sW))
    e("s_lshl_b32 %s, %s, 11", s(sTmp), s(sTmp))
    e("v_and_b32 v5, 15, v0")
    e("v_lshlrev_b32 v5, 7, v5")
    e("buffer_load_dword v15, v5, %s, %s offen", s(sG, 4), s(sTmp))


def warm_touch():
    e("s_lshl_b32 %s, s2, 1", s(sTmp))
    e("s_and_b32 %s, %s, 1", s(sTmp2), s(sLW))
    e("s_add_u32 %s, %s, %s", s(sTmp), s(sTmp), s(sTmp2))
    e("s_mul_i32 %s, %s, %d", s(sTmp), s(sTmp), 27 * 128)
    e("v_min_u32 v12, 26, v0")
    e("v_lshlrev_b32 v12, 7, v12")
    lab, lab2 = A.newlabel("L_wt"), A.newlabel("L_wt")
    e("s_cmp_ge_u32 %s, 2", s(sLW))
    e("s_cbranch_scc1 %s", lab)
    e("buffer_load_dword v250, v12, %s, %s offen", s(sWR, 4), s(sTmp))
    e("s_branch %s", lab2)
    A.label(lab)
    e("buffer_load_dword v250, v12, %s, %s offen", s(sWI, 4), s(sTmp))
    A.label(lab2)
    e("s_lshl_b32 %s, s2, 2", s(sTmp))
    e("s_add_u32 %s, %s, %s", s(sTmp), s(sTmp), s(sLW))
    e("s_mul_i32 %s, %s, %d", s(sTmp), s(sTmp), 6 * 128)
    e("s_add_u32 %s, %s, %d", s(sTmp), s(sTmp), TB.CI_OFF)
    e("v_min_u32 v12, 5, v0")
    e("v_lshlrev_b32 v12, 7, v12")
    e("buffer_load_dword v251, v12, %s, %s offen", s(sTAB, 4), s(sTmp))


def p1_ffn():
    vXA, vWA, FR, ACC = 8, 10, 16, 112
    stats_addr(16)
    e("s_and_b32 %s, %s, 1", s(sWM), s(sW))
    e("s_lshr_b32 %s, %s, 1", s(sWN), s(sW))
    karg_wait(["X"], ["WS", "OUT"])
    lab = A.newlabel("L_nost")
    e("s_cmp_ge_u32 %s, 8", s(sCG))
    e("s_cbranch_scc1 %s", lab)
    stats_issue(16)
    A.label(lab)
    e("s_lshl_b32 %s, %s, 3", s(sFlag), s(sRB))
    e("s_add_u32 %s, %s, %s", s(sFlag), s(sFlag), s(sCG))
    e("s_lshl_b32 %s, %s, 7", s(sFlag), s(sFlag))
    e("s_add_u32 %s, %s, 0x%x", s(sFlag), s(sFlag), WS_FS)
    p3c_setup()
    e("v_and_b32 v5, 15, v0")
    e("v_lshlrev_b32 v5, 7, v5")
    e("s_lshl_b32 %s, %s, 13", s(sTmp), s(sWM))
    e("v_add_u32 v5, %s, v5", s(sTmp))
    e("v_lshrrev_b32 v6, 4, v0")
    e("v_bfe_u32 v7, v0, 1, 3")
    e("v_xor_b32 v6, v6, v7")
    e("v_lshl_add_u32 %s, v6, 4, v5", v(vXA))
    e("v_xor_b32 %s, 64, %s", v(vXA + 1), v(vXA))
    e("v_lshrrev_b32 v5, 4, v0")
    e("v_bfe_u32 v6, v0, 2, 2")
    e("v_lshl_add_u32 v7, v5, 3, v6")
    e("v_lshlrev_b32 v7, 8, v7")
    e("v_and_b32 v5, 1, v5")
    e("v_lshl_add_u32 v5, v6, 1, v5")
    e("s_lshl_b32 %s, %s, 2", s(sTmp), s(sWN))
    e("v_xor_b32 v5, %s, v5", s(sTmp))
    e("v_lshl_add_u32 v7, v5, 5, v7")
    e("v_and_b32 v6, 3, v0")
    e("v_lshl_add_u32 %s, v6, 3, v7", v(vWA))
    for ft in range(1, 4):
        e("v_xor_b32 %s, %d, %s", v(vWA + ft), ft << 5, v(vWA))
    lab = A.newlabel("L_nost")
    e("s_cmp_ge_u32 %s, 8", s(sCG))
    e("s_cbranch_scc1 %s", lab)
    e("s_waitcnt vmcnt(0)")
    stats_compute(16)
    A.label(lab)
    k_offset(sK1)
    e("s_bfe_u32 %s, s2, 0x20004", s(sPar))
    e("s_add_u32 %s, %s, %s", s(sK1), s(sK1), s(sPar))
    if KG:
        mod10(sK1)
    e("s_mul_i32 %s, %s, 12288", s(sK1), s(sK1))
    e("s_lshl_b32 %s, %s, 2", s(sTmp), s(sCG))
    e("s_lshl_b32 %s, %s, 1", s(sTmp2), s(sWM))
    e("s_add_u32 %s, %s, %s", s(sTmp), s(sTmp), s(sTmp2))
    e("s_add_u32 %s, %s, %s", s(sTmp), s(sTmp), s(sWN))
    e("s_lshl_b32 %s, %s, 8", s(sTmp), s(sTmp))
    e("s_add_u32 %s, %s, %s", s(sK1), s(sK1), s(sTmp))
    e("s_add_u32 %s, %s, 0x%x", s(sK1), s(sK1), WS_CSP)
    e("s_bfe_u32 %s, s2, 0x30003", s(sTmp))
    e("s_cmp_ge_u32 %s, 5", s(sTmp))
    e("s_cselect_b32 %s, 100, %s", s(sPar), s(sPar))
    e("s_cmp_lg_u32 %s, 0", s(sW))
    e("s_cselect_b32 %s, 100, %s", s(sNU), s(sPar))
    for i in range(4):
        e("v_mov_b32 %s, 0x3f803f80", v(2 + i))
    e("v_and_b32 v14, 48, v0")
    stamp("c_set")

    def stat_flag():
        e("s_lshr_b32 %s, %s, 3", s(sTmp), s(sCG))
        e("s_or_b32 %s, %s, %s", s(sTmp), s(sTmp), s(sW))
        rare("s_cbranch_scc0", lambda: flag_store(sFlag, 6, 7))

    def cs_mfma(it, p):
        def body():
            la, lb = A.newlabel("L_csm"), A.newlabel("L_csm")
            e("s_cmp_eq_u32 %s, 1", s(sWM))
            e("s_cbranch_scc1 %s", la)
            for mat in range(2):
                if mat:
                    e("s_branch %s", lb)
                    A.label(la)
                for ft in range(4):
                    mm16(240 + 4 * ft, wf(p, mat, ft), 2, p == 0)
            A.label(lb)
        e("s_cmp_eq_u32 %s, %d", s(sPar), it)
        rare("s_cbranch_scc1", body)

    def cs_store(it):
        def body():
            e("s_mov_b32 exec_lo, 0x00010001")
            e("s_mov_b32 exec_hi, 0x00010001")
            for ft in range(4):
                e("buffer_store_dwordx4 %s, v14, %s, %s offen offset:%d sc1", v(240 + 4 * ft, 4), s(sWS, 4), s(sK1), ft * 64)
            e("s_mov_b64 exec, -1")
        e("s_cmp_eq_u32 %s, %d", s(sPar), it)
        rare("s_cbranch_scc1", body)

    def cs_wait(it):
        e("s_cmp_eq_u32 %s, %d", s(sPar), it)
        rare("s_cbranch_scc1", lambda: e("s_waitcnt vmcnt(0)"))

    def cs_flag(it):
        def body():
            e("s_lshl_b32 %s, s2, 7", s(sTmp))
            e("s_add_u32 %s, %s, 0x%x", s(sTmp), s(sTmp), WS_FSC)
            flag_store(sTmp, 6, 7)
        e("s_cmp_eq_u32 %s, %d", s(sNU), it)
        rare("s_cbranch_scc1", body)

    def acc(mat, ft, st): return ACC + ((mat * 4 + ft) * 4 + st) * 4
    def xf(p, st): return FR + p * 48 + st * 4
    def wf(p, mat, ft): return FR + p * 48 + 16 + (mat * 4 + ft) * 4
    keys = [("x", 0), ("w", 0, 0), ("w", 0, 0), ("x", 1), ("x", 2), ("x", 3)]
    for ft in range(4):
        for mat in range(2):
            if (mat, ft) != (0, 0):
                keys += [("w", mat, ft)] * 2

    def reads(p, t):
        out, seen = [], {}
        for k in keys:
            if k[0] == "x":
                out.append(lambda st=k[1]: e("ds_read_b128 %s, %s offset:%d", v(xf(p, st), 4), v(vXA + t), st * 2048))
            else:
                rd = seen.get(k, 0); seen[k] = rd + 1
                out.append(lambda mat=k[1], ft=k[2], rd=rd: e("ds_read_b64_tr_b16 %s, %s offset:%d", v(wf(p, mat, ft) + 2 * rd, 2), v(vWA + ft), 16384 * (1 + mat) + t * 8192 + rd * 1024))
        return out
    morder, n = [], 0
    for ft in range(4):
        for mat in range(2):
            morder += [(mat, ft, st) for st in ([0, 1, 2, 3] if n % 2 == 0 else [3, 2, 1, 0])]
            n += 1
    need = [max(i + 1 for i, k in enumerate(keys) if k == ("x", m[2]) or k == ("w", m[0], m[1])) for m in morder]

    def mfmas(p, first=False):
        return [(lambda m=m: mm16(acc(*m), wf(p, m[0], m[1]), xf(p, m[2]), first)) for m in morder]
    hooks = []
    for it in range(10):
        h0, h1 = {}, {}
        if it < 3:
            h0[31] = [lambda it=it: cs_mfma(it, 0)]
            h1[8] = [lambda it=it: cs_mfma(it, 1)]
            h1[30] = [lambda it=it: cs_store(it)]
        if it == 0:
            h1[3] = [stat_flag]
        if 2 <= it <= 4:
            h1[2] = [lambda it=it: cs_wait(it - 2)]
            h1[3] = [lambda it=it: cs_flag(it - 2)]
        hooks.append([h0, h1])
    vmw = [0] + [None] * 9
    gemm_loop(10, 2, mfmas, reads, need, [8, 9, 10, 11, 12, 13], 3, 1, unroll=[(None, [])] + [(vmw[i], []) for i in range(9)], hooks=hooks, loop_from=5 if opt("loop", 1) else None)

    RM, CS = 16, 32
    e("v_and_b32 v5, 15, v0")
    e("v_lshlrev_b32 v5, 2, v5")
    e("s_lshl_b32 %s, %s, 8", s(sTmp), s(sWM))
    e("s_add_u32 %s, %s, %d", s(sTmp), s(sTmp), AUX)
    e("v_add_u32 v5, %s, v5", s(sTmp))
    for st in range(4):
        e("ds_read_b32 %s, v5 offset:%d", v(RM + 4 * st), st * 64)
        e("ds_read_b32 %s, v5 offset:%d", v(RM + 4 * st + 2), 512 + st * 64)
    e("v_lshrrev_b32 v6, 4, v0")
    e("v_lshlrev_b32 v6, 4, v6")
    e("s_lshl_b32 %s, %s, 8", s(sTmp), s(sWN))
    e("s_add_u32 %s, %s, %d", s(sTmp), s(sTmp), AUX + 1024)
    e("v_add_u32 v6, %s, v6", s(sTmp))
    for ft in range(4):
        for mat in range(2):
            e("ds_read_b128 %s, v6 offset:%d", v(CS + (mat * 4 + ft) * 4, 4), mat * 512 + ft * 64)
    e("s_lshl_b32 %s, %s, 1", s(sFlag), s(sRB))
    e("s_add_u32 %s, %s, %s", s(sFlag), s(sFlag), s(sWM))
    e("s_mul_i32 %s, %s, %d", s(sTmp), s(sFlag), 2 * 48 * 2048)
    e("s_lshl_b32 s3, %s, 2", s(sCG))
    e("s_lshl_b32 %s, %s, 1", s(sCnt), s(sWN))
    e("s_add_u32 s3, s3, %s", s(sCnt))
    e("s_lshl_b32 s3, s3, 11")
    e("s_add_u32 %s, %s, s3", s(sDelta), s(sTmp))
    e("s_lshl_b32 %s, %s, 1", s(sFlag), s(sFlag))
    e("s_add_u32 %s, %s, %s", s(sFlag), s(sFlag), s(sWN))
    e("s_mul_i32 %s, %s, 12", s(sFlag), s(sFlag))
    e("s_add_u32 %s, %s, %s", s(sFlag), s(sFlag), s(sCG))
    e("s_lshl_b32 %s, %s, 7", s(sFlag), s(sFlag))
    e("s_add_u32 %s, %s, 0x%x", s(sFlag), s(sFlag), WS_FH)
    e("v_lshlrev_b32 v5, 4, v0")
    e("s_waitcnt lgkmcnt(4)")
    for st in range(4):
        e("v_mul_f32 %s, %s, %s", v(RM + 4 * st), v(RM + 4 * st), v(RM + 4 * st))
    for ph in range(2):
        if ph == 1:
            e("s_waitcnt lgkmcnt(0)")
        for st in range(4):
            rr, mm_ = RM + 4 * st, RM + 4 * st + 2
            o = 64 + ((ph * 4 + st) & 3) * 4
            for fi in range(2):
                ft = 2 * ph + fi
                g0, u0 = acc(0, ft, st), acc(1, ft, st)
                for k in (0, 2):
                    e("v_pk_fma_f32 %s, %s, %s, %s op_sel_hi:[1,0,1] neg_lo:[0,1,0] neg_hi:[0,1,0]", v(g0 + k, 2), v(CS + ft * 4 + k, 2), v(mm_, 2), v(g0 + k, 2))
                    e("v_pk_fma_f32 %s, %s, %s, %s op_sel_hi:[1,0,1] neg_lo:[0,1,0] neg_hi:[0,1,0]", v(u0 + k, 2), v(CS + 16 + ft * 4 + k, 2), v(mm_, 2), v(u0 + k, 2))
                for k in range(4):
                    e("v_max_f32 %s, 0, %s", v(g0 + k), v(g0 + k))
                for k in (0, 2):
                    e("v_pk_mul_f32 %s, %s, %s op_sel_hi:[1,0]", v(u0 + k, 2), v(u0 + k, 2), v(rr, 2))
                for k in (0, 2):
                    e("v_pk_mul_f32 %s, %s, %s", v(g0 + k, 2), v(g0 + k, 2), v(u0 + k, 2))
                for k in range(2):
                    e("v_cvt_pk_bf16_f32 %s, %s, %s", v(o + 2 * fi + k), v(g0 + 2 * k), v(g0 + 2 * k + 1))
            e("s_add_u32 %s, %s, %d", s(sTmp), s(sDelta), WS_H + (st >> 1) * 48 * 2048 + ph * 2048)
            e("buffer_store_dwordx4 %s, v5, %s, %s offen offset:%d sc1", v(o, 4), s(sWS, 4), s(sTmp), (st & 1) * 1024)
    stamp("c_ep")
    p3_pre()
    e("s_mov_b32 %s, 0", s(sNU))
    e("s_branch L_p3c")


def p1_dft():
    njb = 5
    vXA, vCA, FR, ACC, FC, CO, SI = 8, 12, 16, 80, 208, 176, 192
    tab_srd()
    e("v_lshlrev_b32 v13, 4, v0")
    e("s_mul_i32 %s, %s, %d", s(sBoff), s(sCG), 20 * 5 * 1024)
    e("s_mul_i32 %s, %s, %d", s(sM0), s(sW), 5 * 1024)
    e("s_add_u32 %s, %s, %s", s(sBoff), s(sBoff), s(sM0))
    e("s_lshl_b32 %s, %s, 2", s(sWM), s(sM0))
    cur = [0]

    def cl(i):
        ops = []
        for tl in range(njb):
            def f(tl=tl):
                e("s_add_u32 m0, %s, %d", s(sM0 if CSTR[i] == 5120 else sWM), CBASE[i] + tl * 1024)
                e("s_add_u32 %s, %s, %d", s(sTmp), s(sBoff), i * 4 * njb * 1024 + tl * 1024)
                e("buffer_load_dwordx4 v13, %s, %s offen lds", s(sTAB, 4), s(sTmp))
            ops.append(f)
        return ops
    q = VQ()
    XC = [224, 240, 160, 208, 224]
    NC = 4 - NL

    def xc(i):
        gs = []
        for n in range(NL, 4):
            for hf in range(2):
                def f(n=n, hf=hf):
                    e("s_add_u32 %s, %s, %d", s(sTmp), s(sAoff), n * 8 * 81920 + i * 128)
                    e("buffer_load_dwordx4 %s, v14, %s, %s offen offset:%d", v(XC[i] + (n - NL) * 8 + hf * 4, 4), s(sX, 4), s(sTmp), hf * 640)
                gs.append(cap(f))
        q.issue("x%d" % i, 2 * NC)
        return gs

    def cg(i):
        q.issue("c%d" % i, njb)
        return [cap(f) for f in cl(i)]

    def foldc(i):
        for n in range(NL, 4):
            fold_group(XC[i] + (n - NL) * 8, 64, 72, (1, 2)[n & 1], (1 - (i & 1)) * 5120 + n * 1024)
    if XO == 1:
        weave([], cg(0))
    fold_addr(14, 1, 3)
    x_src_scalar()
    e("s_waitcnt lgkmcnt(0)")
    srd(A, *SRDS["X"])
    weave([], xc(0) + (cg(0) if XO == 0 else []) + xc(1))
    e("s_mul_i32 %s, %s, %d", s(sTmp), s(sW), CPS)
    e("s_add_u32 %s, %s, %d", s(sTmp), s(sTmp), XB + 5120)
    e("v_and_b32 v5, 31, v0")
    e("v_lshlrev_b32 v5, 7, v5")
    e("v_add_u32 v5, %s, v5", s(sTmp))
    e("v_lshrrev_b32 v6, 5, v0")
    e("v_bfe_u32 v7, v0, 1, 3")
    e("v_xor_b32 v6, v6, v7")
    e("v_lshl_add_u32 %s, v6, 4, v5", v(vXA))
    for t in range(1, 4):
        e("v_xor_b32 %s, %d, %s", v(vXA + t), t << 5, v(vXA))
    e("v_mov_b32 %s, v13", v(vCA))
    e("v_add_u32 v3, %d, v13", CP0 + 3 * CPS)
    karg_wait([], ["WS", "OUT"])
    p3c_setup()
    e("s_cmp_ge_u32 %s, 2", s(sCG))
    e("s_cselect_b32 %s, -1.0, 1.0", s(sSgn))
    e("v_mov_b32 v72, 0xffff0000")
    e("s_lshl_b32 %s, %s, 2", s(sS2), s(sRB))
    e("s_add_u32 %s, %s, %s", s(sS2), s(sS2), s(sW))
    e("v_and_b32 v5, 31, v0")
    e("v_lshrrev_b32 v6, 5, v0")
    e("v_lshlrev_b32 v6, 8, v6")
    e("v_add_u32 v6, %s, v6", s(sS2))
    e("v_mul_u32_u24 v6, v6, v5")

    def consts():
        for kap in range(2):
            for i in range(8):
                s0 = 16 * kap + 8 * (i >> 2) + (i & 3)
                e("v_mul_u32_u24 v7, %d, v5", 64 * s0)
                e("v_add_u32 v7, v7, v6")
                e("v_and_b32 v7, 0x7ff, v7")
                e("v_cvt_f32_u32 v7, v7")
                e("v_mul_f32 v7, 0x3a000000, v7")
                e("v_cos_f32 %s, v7", v(CO + 8 * kap + i))
                e("v_sin_f32 %s, v7", v(SI + 8 * kap + i))
    if CX == 0:
        weave(cap(consts), cg(1) + xc(2) + cg(2) + xc(3) + cg(3), skip=10)
        q.wait("x0")
        weave(cap(lambda: foldc(0)), cg(4))
        weave([], xc(4))
        late = {}
    elif CX == 1:
        weave(cap(consts), cg(1) + xc(2) + cg(2), skip=40)
        q.wait("x0")
        weave(cap(lambda: foldc(0)), xc(3) + cg(3))
        late = {0: lambda: xc(4) + cg(4)}
    else:
        weave(cap(consts), cg(1) + xc(2), skip=60)
        q.wait("x0")
        weave(cap(lambda: foldc(0)), cg(2))
        late = {0: lambda: xc(3) + cg(3), 1: lambda: xc(4) + cg(4)}
    stamp("c_set")

    def xf(p): return FR + p * 24
    def cf(p, tl): return FR + p * 24 + 4 + 4 * tl

    def reads(p, t):
        ops = [lambda: e("ds_read_b128 %s, %s", v(xf(p), 4), v(vXA + t))]
        for tl in range(njb):
            if t == 3 and CSTR[cur[0]] == CPS:
                ops.append(lambda tl=tl, o=CBASE[cur[0]] - CP0: e("ds_read_b128 %s, v3 offset:%d", v(cf(p, tl), 4), o + tl * 1024))
            else:
                ops.append(lambda tl=tl, st=CSTR[cur[0]]: e("ds_read_b128 %s, %s offset:%d", v(cf(p, tl), 4), v(vCA), t * st + tl * 1024))
        return ops

    def mfmas(p, first=False):
        return [(lambda tl=tl: e("v_mfma_f32_32x32x16_bf16 %s, %s, %s, %s", v(ACC + 16 * tl, 16), v(xf(p), 4), v(cf(p, tl), 4), "0" if first else v(ACC + 16 * tl, 16))) for tl in range(njb)]

    def vmc(tag):
        last = max([i for i, x in enumerate(q.q) if x == tag], default=-1)
        if last < 0:
            return None
        n = len(q.q) - 1 - last
        q.q = q.q[last + 1:]
        return n

    def fills(i):
        cur[0] = i
        if i == 4:
            return []
        w = cap(lambda: q.wait("x%d" % (i + 1))) if NC else []
        mem = late[i]() if i in late else []
        work = [[ln] for ln in cap(lambda: foldc(i + 1))]
        out, k = [w], 0
        for n, g in enumerate(work):
            out.append(g)
            if n % 5 == 4 and k < len(mem):
                out.append(mem[k]); k += 1
        return out + mem[k:]

    def advf(i):
        for t in range(4):
            e("v_add_u32 %s, %d, %s", v(vXA + t), (5120 if i & 1 else -5120) & 0xffffffff, v(vXA + t))
        e("v_add_u32 %s, %d, %s", v(vCA), (CBASE[i + 1] - CBASE[i]) & 0xffffffff, v(vCA))
    gemm_loop(5, 4, mfmas, reads, [2 + tl for tl in range(njb)], [vXA + i for i in range(5)], 0, 2, buf0=SLAB, advf=advf,
              unroll=[(vmc("c0"), [])] + [((lambda i=i: vmc("c%d" % i)), []) for i in range(1, 5)], fills=fills)

    if EPR:
        e("s_setprio %d", EPR)
    RR, MM = 16, 32
    e("v_lshrrev_b32 v6, 5, v0")
    e("v_lshlrev_b32 v6, 4, v6")
    e("s_lshl_b32 %s, %s, 7", s(sTmp), s(sW))
    e("s_add_u32 %s, %s, %d", s(sTmp), s(sTmp), AUX)
    e("v_add_u32 v7, %s, v6", s(sTmp))
    for jj in range(4):
        e("ds_read_b128 %s, v7 offset:%d", v(RR + 4 * jj, 4), jj * 32)
    e("v_and_b32 v5, 15, v0")
    e("v_lshlrev_b32 v5, 6, v5")
    e("v_bfe_u32 v6, v0, 4, 1")
    e("v_lshl_add_u32 v5, v6, 5, v5")
    e("v_lshrrev_b32 v6, 5, v0")
    e("v_lshl_add_u32 v5, v6, 4, v5")
    e("s_and_b32 %s, %s, 1", s(sJB), s(sCG))
    e("s_mul_i32 %s, %s, 10", s(sJB), s(sJB))
    e("s_lshr_b32 %s, %s, 1", s(sTmp), s(sCG))
    e("s_add_u32 %s, %s, %s", s(sJB), s(sJB), s(sTmp))
    e("s_mul_i32 %s, %s, %d", s(sDelta), s(sS2), TSTR)
    e("s_mul_i32 %s, %s, 10240", s(sTmp), s(sCG))
    if TP == 1:
        e("v_and_b32 v4, 15, v0")
        e("v_lshl_add_u32 v4, v4, 6, v5")
    elif TP == 3:
        e("s_mul_i32 %s, %s, %d", s(sTmp2), s(sW), CPS)
        e("s_add_u32 %s, %s, %d", s(sTmp2), s(sTmp2), CP0)
        e("v_bfe_u32 v1, v5, 4, 2")
        e("v_and_b32 v2, 7, v0")
        e("v_xor_b32 v1, v1, v2")
        e("v_and_b32 v4, 15, v0")
        e("v_lshlrev_b32 v4, 7, v4")
        e("v_lshl_add_u32 v1, v1, 4, v4")
        e("v_add_u32 v1, %s, v1", s(sTmp2))
        e("v_lshrrev_b32 v4, 3, v0")
        e("v_xor_b32 v3, v2, v4")
        e("v_lshlrev_b32 v4, 7, v4")
        e("v_lshl_add_u32 v3, v3, 4, v4")
        e("v_add_u32 v3, %s, v3", s(sTmp2))
        e("v_xor_b32 v2, 64, v1")
        e("v_lshlrev_b32 v4, 4, v0")
    else:
        e("v_and_b32 v4, 7, v0")
        e("v_lshlrev_b32 v4, 7, v4")
        e("v_and_b32 v1, 0x30, v5")
        e("v_add_u32 v4, v4, v1")
        e("v_bfe_u32 v1, v0, 3, 1")
        e("v_lshl_add_u32 v2, v1, 6, v4")
        e("v_xor_b32 v1, 1, v1")
        e("v_lshl_add_u32 v4, v1, 6, v4")
        e("s_mov_b32 s28, 0xff00ff00")
        e("s_mov_b32 s29, 0xff00ff00")
    e("s_add_u32 %s, %s, %s", s(sDelta), s(sDelta), s(sTmp))
    e("s_add_u32 %s, %s, 0x%x", s(sDelta), s(sDelta), WS_T)
    e("s_lshl_b32 %s, %s, 4", s(sFlag), s(sCG))
    e("s_add_u32 %s, %s, %s", s(sFlag), s(sFlag), s(sRB))
    e("s_lshl_b32 %s, %s, 7", s(sFlag), s(sFlag))
    e("s_add_u32 %s, %s, 0x%x", s(sFlag), s(sFlag), WS_FT)
    e("v_bfe_u32 v6, v0, 3, 1")
    e("v_cmp_eq_u32 vcc, 0, v6")
    e("v_mov_b32 v6, 0")
    e("v_mov_b32 v13, 0x80008000")
    e("v_cndmask_b32 v6, v6, v13, vcc")
    DD, AF, AN = [224, 240], [48, 64], 32

    def epilogue(first):
        order = ([4, 2, 3, 1, 0, 5] if TP >= 2 else [1, 2, 3, 4, 0, 5]) if first else [0, 1, 2, 3, 4]
        got, defer = set(), []

        def pack(n):
            tl = order[n]
            if tl == 5:
                e("s_nop 1")
                return
            a0, af = ACC + 16 * tl, AF[n & 1]
            if first and tl == 0:
                for i in range(16):
                    e("v_fma_f32 %s, -%s, v7, %s", v(a0 + i), v(MM + i), v(a0 + i))
            for i in range(8):
                e("v_cvt_pk_bf16_f32 %s, %s, %s", v(af + i), v(a0 + 2 * i), v(a0 + 2 * i + 1))
            if first and tl == 0:
                for i in range(8):
                    e("v_and_b32_dpp %s, %s, v14 row_ror:8 row_mask:0xf bank_mask:0xf", v(AN + i), v(af + i))
                    e("v_and_b32 %s, v15, %s", v(AN + 8 + i), v(af + i))
                for i in range(8):
                    e("v_bfi_b32 %s, v15, 0, %s", v(af + i), v(af + i))
            for i in range(8):
                e("v_xor_b32_dpp %s, %s, v6 row_ror:8 row_mask:0xf bank_mask:0xf", v(af + 8 + i), v(af + i))

        def stage(n):
            d, af = DD[n & 1], AN if order[n] == 5 else AF[n & 1]
            for k in range(4):
                e("v_mfma_f32_32x32x16_bf16 %s, %s, %s, %s", v(d, 16), v(af + 4 * k, 4), v(FC + 4 * k, 4), v(d, 16) if k else "0")

        def finish(n):
            d, tl = DD[n & 1], order[n]
            o = ACC + 16 * tl if TP == 2 and tl < 4 else d
            for i in range(8):
                e("v_cvt_pk_bf16_f32 %s, %s, %s", v(o + i), v(d + 2 * i), v(d + 2 * i + 1))
            e("s_add_u32 %s, %s, %d", s(sTmp), s(sDelta), 40960 if tl == 5 else (tl >> 1) * 4096)
            e("s_nop 0")
            for i in range(4):
                e("v_permlane16_swap_b32 %s, %s", v(o + i), v(o + 4 + i))
            if TP == 3 and tl < 4:
                for q in range(2):
                    e("ds_write_b128 %s, %s offset:%d", v(1 + (tl & 1)), v(d + 4 * q, 4), (tl >> 1) * 4096 + q * 2048)
                got.add(tl)
                if (tl ^ 1) in got:
                    for m in range(4):
                        e("ds_read_b128 %s, v3 offset:%d", v(ACC + 16 * tl + 4 * m, 4), (tl >> 1) * 4096 + m * 1024)

                    def later():
                        e("s_add_u32 %s, %s, %d", s(sTmp), s(sDelta), (tl >> 1) * 4096)
                        for m in range(4):
                            e("s_waitcnt lgkmcnt(%d)", 3 - m)
                            e("buffer_store_dwordx4 %s, v4, %s, %s offen offset:%d sc1", v(ACC + 16 * tl + 4 * m, 4), s(sWS, 4), s(sTmp), m * 1024)
                    defer.append(cap(later))
                return
            if TP == 2 and tl < 4:
                got.add(tl)
                if (tl ^ 1) not in got:
                    return
                a_, b_, t_ = ACC + 16 * (tl & 2), ACC + 16 * (tl | 1), ACC + 16 * tl + 8
                e("s_nop 0")
                for i in range(8):
                    e("v_mov_b32_dpp %s, %s row_ror:8 row_mask:0xf bank_mask:0xf", v(t_ + i), v(b_ + i))
                for q in range(2):
                    for i in range(4 * q, 4 * q + 4):
                        e("v_cndmask_b32 %s, %s, %s, s[28:29]", v(b_ + i), v(t_ + i), v(a_ + i))
                        e("v_cndmask_b32 %s, %s, %s, s[28:29]", v(a_ + i), v(a_ + i), v(t_ + i))
                    e("buffer_store_dwordx4 %s, v2, %s, %s offen offset:%d sc1", v(a_ + 4 * q, 4), s(sWS, 4), s(sTmp), q * 2048)
                    e("buffer_store_dwordx4 %s, v4, %s, %s offen offset:%d sc1", v(b_ + 4 * q, 4), s(sWS, 4), s(sTmp), q * 2048 + 1024)
                return
            for q in range(2):
                if tl < 4:
                    e("buffer_store_dwordx4 %s, v4, %s, %s offen offset:%d sc1", v(d + 4 * q, 4), s(sWS, 4), s(sTmp), q * 2048 + (tl & 1) * 64)
                else:
                    e("buffer_store_dwordx4 %s, v5, %s, %s offen offset:%d sc1", v(d + 4 * q, 4), s(sWS, 4), s(sTmp), q * 1024)
        if first:
            for jj in range(4):
                e("ds_read_b128 %s, v7 offset:%d", v(MM + 4 * jj, 4), 512 + jj * 32)
            e("v_and_b32 v15, 31, v0")
            e("v_cmp_eq_u32 vcc, 0, v15")
            e("v_cmp_eq_u32 s[4:5], 8, v15")
            e("v_mov_b32 v13, 0x44200000")
            e("v_cndmask_b32 v14, 0, -1, vcc")
            e("v_cndmask_b32 v15, 0, -1, s[4:5]")
        pack(0)
        e("s_waitcnt lgkmcnt(0)")
        if first:
            e("v_and_b32 v7, v13, v14")
        for i in range(0, 16, 2):
            e("v_pk_mul_f32 %s, %s, %s", v(CO + i, 2), v(CO + i, 2), v(RR + i, 2))
            e("v_pk_mul_f32 %s, %s, %s neg_lo:[1,0] neg_hi:[1,0]", v(SI + i, 2), v(SI + i, 2), v(RR + i, 2))
        for i in range(8):
            e("v_cvt_pk_bf16_f32 %s, %s, %s", v(FC + i), v(CO + 2 * i), v(CO + 2 * i + 1))
            e("v_cvt_pk_bf16_f32 %s, %s, %s", v(FC + 8 + i), v(SI + 2 * i), v(SI + 2 * i + 1))
        e("s_nop 1")
        if EPI:
            N_ = len(order)
            for n in range(-1, N_):
                S = cap(lambda: stage(n + 1)) if n + 1 < N_ else []
                P_ = cap(lambda: pack(n + 2)) if n + 2 < N_ else []
                D_ = defer.pop() if defer else []
                F_ = cap(lambda: finish(n)) if n >= 0 else []
                if not S:
                    A.lines += (D_ + ["    s_nop 7"] if D_ else ["    s_nop 15"]) + F_
                elif not F_:
                    k = (len(P_) + 2) // 3
                    A.lines += S[:1] + P_[:k] + S[1:2] + P_[k:2 * k] + S[2:3] + P_[2 * k:] + S[3:]
                else:
                    if len(P_) < 12:
                        P_ = P_ + ["    s_nop 10"]
                    k = 16 if len(F_) < 20 else 24
                    A.lines += S[:1] + P_ + D_ + S[1:2] + F_[:9] + S[2:3] + F_[9:k] + S[3:] + F_[k:]
            return
        stage(0)
        for n in range(len(order)):
            if n + 1 < len(order):
                pack(n + 1)
                stage(n + 1)
                if order[n + 1] == 5:
                    e("s_nop 7")
            else:
                e("s_nop 15")
            finish(n)
    e("s_cmp_eq_u32 %s, 0", s(sCG))
    e("s_cbranch_scc1 L_dft_e0")
    epilogue(False)
    e("s_branch L_dft_c")
    A.label("L_dft_e0")
    epilogue(True)


def mid_k1():
    e("s_and_b32 s3, s2, 7")
    e("s_lshl_b32 %s, s3, 2", s(sK1))
    e("s_bfe_u32 s3, s2, 0x20004")
    e("s_add_u32 %s, %s, s3", s(sK1), s(sK1))
    e("s_bfe_u32 s3, s2, 0x10003")


def mid():
    FC, PD = 64, 48
    XU, WY, DF = [128, 160], [192, 224], [16, 40]
    vL, vT, vWr, vUo, vP, vTG = 5, 6, 7, 10, 11, 15
    e("v_lshlrev_b32 %s, 4, v0", v(vL))
    e("v_and_b32 v9, 3, v0")
    e("v_add_u32 v13, %d, %s", FR_L, v(vL))
    for n in range(8):
        e("ds_read_b128 %s, v13 offset:%d", v(FC + 4 * n, 4), n * 1024)
    for i in range(32):
        e("v_mov_b32 %s, 0", v(WY[0] + i))
    e("v_and_b32 v8, 15, v0")
    e("v_lshrrev_b32 v12, 2, v0")
    e("v_lshlrev_b32 %s, 6, v12", v(vT))
    e("v_lshl_add_u32 %s, v9, 4, %s", v(vT), v(vT))
    e("v_add_u32 %s, %s, %s", v(vT), s(sM0), v(vT))
    e("v_and_b32 v13, 12, v12")
    e("v_bfe_u32 v14, v0, 3, 1")
    e("v_lshl_add_u32 v13, v14, 4, v13")
    e("v_bfe_u32 v14, v0, 2, 1")
    e("v_lshl_add_u32 v13, v14, 1, v13")
    e("v_mul_u32_u24 v12, %d, v13", TSTR)
    e("v_lshl_add_u32 %s, v9, 4, v12", v(vTG))
    e("v_lshrrev_b32 v9, 4, v0")
    e("v_lshlrev_b32 %s, 6, v8", v(vUo))
    e("v_lshl_add_u32 %s, v9, 4, %s", v(vUo), v(vUo))
    e("v_mul_u32_u24 v12, %d, v9", 4 * 336)
    e("v_lshl_add_u32 v12, v8, 2, v12")
    e("s_add_u32 %s, %s, %s", s(sTmp), s(sMW), s(sPar))
    e("v_add_u32 %s, %s, v12", v(vWr), s(sTmp))
    e("v_bfe_u32 v12, v0, 3, 1")
    e("v_lshlrev_b32 v12, 1, v12")
    e("v_bfe_u32 v13, v0, 4, 1")
    e("v_lshl_add_u32 v12, v13, 4, v12")
    e("v_lshrrev_b32 v14, 5, v0")
    e("v_lshl_add_u32 v12, v14, 2, v12")
    e("v_mul_u32_u24 v12, %d, v12", TSTR)
    e("v_bfe_u32 v14, v0, 2, 1")
    e("v_xor_b32 v13, v13, v14")
    e("v_lshl_add_u32 v12, v13, 6, v12")
    e("v_and_b32 v13, 3, v0")
    e("v_lshl_add_u32 v1, v13, 4, v12")
    e("v_lshrrev_b32 v12, 2, v0")
    e("v_lshlrev_b32 v12, 7, v12")
    e("v_lshl_add_u32 v12, v13, 4, v12")
    e("v_bfe_u32 v13, v0, 3, 1")
    e("v_lshl_add_u32 v12, v13, 6, v12")
    e("v_add_u32 v2, %s, v12", s(sM0))
    e("v_xor_b32 v4, 64, v2")
    e("v_add_u32 v8, %s, v12", s(sLB2))
    e("v_xor_b32 v9, 64, v8")
    e("s_waitcnt vmcnt(0) lgkmcnt(0)")
    lab = A.newlabel("L_noft")
    e("s_cmp_lg_u32 %s, 3", s(sWN))
    e("s_cbranch_scc1 %s", lab)
    if PPT:
        poll_check_pipe(PD, PPT, vP, WS_FT, PPG)
    else:
        poll_check(PD, 1, vP, WS_FT)
    A.label(lab)
    e("s_barrier")
    stamp("m_B")
    e("s_mul_i32 %s, %s, %d", s(sDelta), s(sK1), USTR)
    e("s_lshl_b32 %s, %s, 12", s(sTmp), s(sJB))
    e("s_add_u32 %s, %s, %s", s(sDelta), s(sDelta), s(sTmp))
    e("s_add_u32 %s, %s, 0x%x", s(sDelta), s(sDelta), WS_U)

    def gather(un):
        for n in range(4):
            e("s_add_u32 m0, %s, %d", s(sM0), n * 1024)
            e("s_add_u32 %s, %s, %d", s(sTmp), s(sTB), WS_T + (32 * (n & 1) + (n >> 1)) * TSTR)
            e("buffer_load_dwordx4 %s, %s, %s offen sc1 lds", v(vTG), s(sWS, 4), s(sTmp))

    def gather2():
        for kap in range(2):
            for n in range(4):
                e("s_add_u32 m0, %s, %d", s(sLB2 if kap else sM0), n * 1024)
                e("s_add_u32 %s, %s, %d", s(sTmp), s(sTB), WS_T + (32 * (n >> 1) + 8 * (n & 1) + kap) * TSTR)
                e("buffer_load_dwordx4 v1, %s, %s offen sc1 lds", s(sWS, 4), s(sTmp))

    def R2(u):
        for ri in range(2):
            for kap in range(2):
                for rd in range(2):
                    e("ds_read_b64_tr_b16 %s, %s offset:%d", v(DF[u] + 8 * ri + 4 * kap + 2 * rd, 2), v((2, 4, 8, 9)[kap * 2 + u]), rd * 2048 + ri * 8)

    def gathered():
        if EST == 3:
            e("v_mov_b32 v12, %d", LGO)
            e("v_mov_b32 v13, 1")
            e("s_mov_b64 exec, 1")
            e("ds_add_u32 v12, v13 offset:8")
            e("s_mov_b64 exec, -1")

    def F(ri, t, par): return FC + ((ri * 2 + t) * 2 + par) * 4

    def R(u):
        for ri in range(2):
            for kap in range(2):
                for rd in range(2):
                    e("ds_read_b64_tr_b16 %s, %s offset:%d", v(DF[u] + 8 * ri + 4 * kap + 2 * rd, 2), v(14 if u else vT), kap * 2048 + rd * 1024 + ri * 8)

    def N(u):
        for i in range(8):
            e("v_xor_b32 %s, 0x80008000, %s", v(DF[u] + 16 + i), v(DF[u] + 8 + i))

    def WR(u):
        for mt in range(4):
            for i in range(4):
                for arr in range(2):
                    e("ds_read_u16_d16_hi %s, %s offset:%d", v(WY[u] + arr * 16 + 4 * mt + i), v(vWr), arr * MWA + (16 * mt + i) * 336 + 64 * u)

    def SA(u):
        Tre, Tim, Tni = DF[u], DF[u] + 8, DF[u] + 16
        for t in range(2):
            for step in range(2):
                for par in range(2):
                    xr, xi = XU[u] + 4 * (t + 2 * par), XU[u] + 16 + 4 * (t + 2 * par)
                    if step == 0:
                        mm16(xr, F(0, t, par), Tre + 4 * par, True)
                        mm16(xi, F(1, t, par), Tre + 4 * par, True)
                    else:
                        mm16(xr, F(1, t, par), Tni + 4 * par)
                        mm16(xi, F(0, t, par), Tim + 4 * par)

    def BF(u):
        for t in range(2):
            for b in (XU[u] + 4 * t, XU[u] + 4 * t + 2, XU[u] + 16 + 4 * t, XU[u] + 18 + 4 * t):
                e("v_pk_add_f32 %s, %s, %s", v(b, 2), v(b, 2), v(b + 8, 2))
            for b in (XU[u] + 4 * t, XU[u] + 4 * t + 2, XU[u] + 16 + 4 * t, XU[u] + 18 + 4 * t):
                e("v_pk_fma_f32 %s, %s, 2.0, %s op_sel_hi:[1,0,1] neg_lo:[1,0,0] neg_hi:[1,0,0]", v(b + 8, 2), v(b + 8, 2), v(b, 2))

    def YP(u):
        BF(u)
        for n in range(0, 16, 4):
            for k in (0, 2):
                e("v_pk_mul_f32 %s, %s, %s", v(8 if k else 12, 2), v(XU[u] + 16 + n + k, 2), v(WY[u] + 16 + n + k, 2))
            for k in (0, 2):
                e("v_pk_mul_f32 %s, %s, %s", v(WY[u] + 16 + n + k, 2), v(XU[u] + n + k, 2), v(WY[u] + 16 + n + k, 2))
            for k in (0, 2):
                e("v_pk_fma_f32 %s, %s, %s, %s", v(WY[u] + 16 + n + k, 2), v(XU[u] + 16 + n + k, 2), v(WY[u] + n + k, 2), v(WY[u] + 16 + n + k, 2))
            for k in (0, 2):
                e("v_pk_fma_f32 %s, %s, %s, %s neg_lo:[0,0,1] neg_hi:[0,0,1]", v(WY[u] + n + k, 2), v(XU[u] + n + k, 2), v(WY[u] + n + k, 2), v(8 if k else 12, 2))

    def CV(u):
        for mt in range(4):
            for par in range(2):
                w_r, w_i = WY[u] + 4 * mt + par, WY[u] + 16 + 4 * mt + par
                e("v_cvt_pk_bf16_f32 %s, %s, %s", v(DF[u] + 8 + 4 * par + mt), v(w_i), v(w_i + 2))
                e("v_cvt_pk_bf16_f32 %s, %s, %s", v(DF[u] + 4 * par + mt), v(w_r), v(w_r + 2))
            for par in range(2):
                e("v_xor_b32 %s, 0x80008000, %s", v(DF[u] + 16 + 4 * par + mt), v(DF[u] + 4 * par + mt))

    def SB(u):
        Yre, Yim, Ynr = DF[u], DF[u] + 8, DF[u] + 16
        for t in range(2):
            for step in range(2):
                for par in range(2):
                    ur, ui = XU[u] + 4 * (t + 2 * par), XU[u] + 16 + 4 * (t + 2 * par)
                    if step == 0:
                        mm16(ur, Yre + 4 * par, F(0, t, par), True)
                        mm16(ui, Yim + 4 * par, F(0, t, par), True)
                    else:
                        mm16(ur, Yim + 4 * par, F(1, t, par))
                        mm16(ui, Ynr + 4 * par, F(1, t, par))

    def O(u):
        if u:
            e("s_add_u32 %s, %s, 8192", s(sDelta), s(sDelta))
        for nt in range(4):
            ur, ui = XU[u] + 4 * nt, XU[u] + 16 + 4 * nt
            e("v_cvt_pk_bf16_f32 %s, %s, %s", v(ur), v(ur), v(ur + 1))
            e("v_cvt_pk_bf16_f32 %s, %s, %s", v(ur + 1), v(ur + 2), v(ur + 3))
            e("v_cvt_pk_bf16_f32 %s, %s, %s", v(ur + 2), v(ui), v(ui + 1))
            e("v_cvt_pk_bf16_f32 %s, %s, %s", v(ur + 3), v(ui + 2), v(ui + 3))
            e("buffer_store_dwordx4 %s, %s, %s, %s offen offset:%d sc1", v(ur, 4), v(vUo), s(sWS, 4), s(sDelta), nt * 1024)

    def lines(*fs):
        return [[ln] for f in fs for ln in cap(f)]

    def mix(a_, b_):
        out = []
        for i in range(max(len(a_), len(b_))):
            out += a_[i:i + 1] + b_[i:i + 1]
        return out
    one, done = A.newlabel("L_one"), A.newlabel("L_midd")
    e("s_cmp_eq_u32 %s, 1", s(sNU))
    e("s_cbranch_scc1 %s", one)
    gather2()
    gathered()
    for i in range(32):
        e("v_mov_b32 %s, 0", v(WY[1] + i))
    if MWE:
        WR(0)
        WR(1)
    e("s_waitcnt vmcnt(0)")
    stamp("m_T")
    R2(0)
    if not MWE:
        WR(0)
    e("s_waitcnt lgkmcnt(%d)", 0 if MWE else 15)
    if not MWE:
        e("s_waitcnt vmcnt(0)")
    N(0)
    if MWE:
        e("s_waitcnt vmcnt(0)")
    w1 = lines(lambda: WR(1)) if not MWE else []
    weave(cap(lambda: SA(0)), lines(lambda: R2(1)) + w1[:24], skip=1)
    e("s_waitcnt lgkmcnt(%d)", 0 if MWE else 15)
    N(1)
    YP(0)
    weave(cap(lambda: SA(1)), mix(lines(lambda: CV(0)), w1[24:]), skip=1)
    e("s_waitcnt lgkmcnt(0)")
    e("s_nop 6")
    stamp("m_u1")
    if EH:
        poll_issue(4, 1, 3, WS_FH)
    YP(1)
    weave(cap(lambda: SB(0)), lines(lambda: CV(1)), skip=1)
    e("s_nop 6")
    BF(0)
    weave(cap(lambda: SB(1)), lines(lambda: O(0)), skip=1)
    e("s_nop 7")
    BF(1)
    O(1)
    e("s_branch %s", done)
    A.label(one)
    gather(0)
    gathered()
    if MWE:
        WR(0)
    e("s_waitcnt vmcnt(0)")
    stamp("m_T")
    R(0)
    if not MWE:
        WR(0)
    e("s_waitcnt lgkmcnt(%d)", 0 if MWE else 15)
    N(0)
    e("s_nop 0")
    SA(0)
    e("s_waitcnt lgkmcnt(0)")
    e("s_nop 6")
    YP(0)
    CV(0)
    e("s_nop 1")
    SB(0)
    e("s_nop 7")
    BF(0)
    O(0)
    A.label(done)


hdr = open("cdna_kernels/%s.s.ref" % NAME).read().split("; Override launch")[0]
A(hdr.rstrip())
A("; @launch grid=(256,1,1) block=(512,1,1) lds=%d" % LDS_ALL)
A('.amdgcn_target "amdgcn-amd-amdhsa--gfx950"')
KN = NAME + "_kernel"
kernel_header(A, KN)
stamp("start")
if STAMPS:
    for i in range(1, 9):
        e("s_mov_b32 %s, 0", s(84 + 2 * i))
e("s_cmp_ge_u32 s2, 256")
e("s_cbranch_scc1 L_end")
e("s_load_dwordx16 %s, s[0:1], 0", s(P, 16))
e("s_load_dwordx4 %s, s[0:1], 64", s(P + 16, 4))
e("v_lshrrev_b32 v1, 6, v0")
e("v_and_b32 v0, 63, v0")
e("v_readfirstlane_b32 %s, v1", s(sW))
if CT == 3:
    e("s_cmp_lg_u32 %s, 0", s(sW))
    e("s_cbranch_scc1 L_noct")
    code_touch()
    A.label("L_noct")
e("s_and_b32 s3, s2, 1")
e("s_lshl_b32 %s, s3, 3", s(sRB))
e("s_bfe_u32 s3, s2, 0x30003")
e("s_add_u32 %s, %s, s3", s(sRB), s(sRB))
e("s_lshr_b32 %s, s2, 6", s(sTmp2))
e("s_bfe_u32 s3, s2, 0x20001")
e("s_mul_i32 %s, s3, 3", s(sCG))
e("s_add_u32 %s, %s, %s", s(sCG), s(sCG), s(sTmp2))
e("s_and_b32 %s, %s, 3", s(sLW), s(sW))
e("s_cmp_eq_u32 %s, 3", s(sTmp2))
e("s_cbranch_scc1 L_dft")
e("s_cmp_ge_u32 %s, 4", s(sW))
e("s_cbranch_scc0 L_ffn_c")
ffn_loader()
A.label("L_ffn_c")
p1_ffn()
A.label("L_dft")
if opt("nodft", 0):
    e("s_endpgm")
e("s_mov_b32 %s, s3", s(sCG))
e("s_cmp_ge_u32 %s, 4", s(sW))
e("s_cbranch_scc0 L_dftc")
dft_loader()
A.label("L_dftc")
p1_dft()
A.label("L_dft_c")
stamp("dc_ep")
if EPR:
    e("s_setprio 0")
if ZGL:
    e("v_mov_b32 v12, %d", LGO)
    e("v_mov_b32 v13, 1")
    e("ds_write_b32 v12, v13 offset:12")
e("s_waitcnt vmcnt(0)")
stamp("dc_st")
e("v_mov_b32 v12, %d", LGO)
e("v_mov_b32 v13, 1")
e("s_mov_b64 exec, 1")
e("ds_add_rtn_u32 v13, v12, v13 offset:4")
e("s_mov_b64 exec, -1")
e("v_lshlrev_b32 v11, 7, v0")
e("s_waitcnt lgkmcnt(0)")
e("v_readfirstlane_b32 %s, v13", s(sWN))
e("s_cmp_lg_u32 %s, 3", s(sWN))
e("s_cbranch_scc1 L_noft")
flag_store(sFlag, 12, 13)
if OWN:
    e("s_sub_u32 %s, %s, 0x%x", s(sTmp), s(sFlag), WS_FT)
    e("v_cmp_eq_u32 vcc, %s, v11", s(sTmp))
    e("v_xor_b32 v12, 128, v11")
    e("v_cndmask_b32 v11, v11, v12, vcc")
poll_issue(48, 1, 11, WS_FT)
if EST == 4:
    e("v_mov_b32 v12, %d", LGO)
    e("v_mov_b32 v13, 1")
    e("ds_write_b32 v12, v13 offset:12")
A.label("L_noft")
if EH:
    fh_addr()
mid_k1()
wspec_shift(sMW)
e("s_and_b32 %s, %s, 1", s(sTmp2), s(sW))
e("s_lshl_b32 %s, %s, 7", s(sTmp), s(sTmp2))
e("s_add_u32 %s, %s, %s", s(sMW), s(sMW), s(sTmp))
e("s_add_u32 %s, %s, %d", s(sMW), s(sMW), MW0)
e("s_and_b32 %s, %s, 2", s(sPar), s(sW))
e("s_add_u32 %s, s3, %s", s(sTmp), s(sPar))
e("s_mul_i32 %s, %s, 10240", s(sTB), s(sTmp))
e("s_lshl_b32 %s, %s, 12", s(sTmp), s(sTmp2))
e("s_add_u32 %s, %s, %s", s(sTB), s(sTB), s(sTmp))
e("s_lshl_b32 %s, %s, 7", s(sTmp), s(sK1))
e("s_add_u32 %s, %s, %s", s(sTB), s(sTB), s(sTmp))
e("s_mul_i32 s3, s3, 10")
e("s_lshl_b32 %s, %s, 2", s(sTmp2), s(sTmp2))
e("s_add_u32 s3, s3, %s", s(sTmp2))
e("s_lshr_b32 %s, %s, 1", s(sTmp), s(sW))
e("s_add_u32 %s, s3, %s", s(sJB), s(sTmp))
e("s_mov_b32 %s, 2", s(sNU))
e("s_lshl_b32 %s, %s, 12", s(sM0), s(sW))
e("s_add_u32 %s, %s, %d", s(sM0), s(sM0), MT0)
e("s_mul_i32 %s, %s, %d", s(sLB2), s(sW), CPS)
e("s_add_u32 %s, %s, %d", s(sLB2), s(sLB2), CP0 + 15360)
e("s_branch L_mid")

A.label("L_dft_l")
e("s_mov_b32 %s, 0", s(sWN))
e("v_lshlrev_b32 v11, 7, v0")
mid_k1()
e("s_add_u32 %s, s3, 2", s(sTmp))
e("s_cmp_ge_u32 %s, %s", s(sLW), s(sTmp))
e("s_cbranch_scc1 L_dft_l3")
wspec_shift(sMW)
e("s_add_u32 %s, %s, %d", s(sMW), s(sMW), MW0 + 256)
e("s_lshl_b32 %s, %s, 1", s(sTmp), s(sLW))
e("s_add_u32 %s, %s, s3", s(sTmp), s(sTmp))
e("s_mul_i32 %s, %s, 10240", s(sTB), s(sTmp))
e("s_add_u32 %s, %s, 8192", s(sTB), s(sTB))
e("s_cmp_eq_u32 %s, 2", s(sLW))
e("s_cselect_b32 %s, 40960, %s", s(sTB), s(sTB))
e("s_lshl_b32 %s, %s, 6", s(sTmp), s(sK1))
e("s_add_u32 %s, %s, %s", s(sTB), s(sTB), s(sTmp))
e("s_mul_i32 s3, s3, 10")
e("s_add_u32 s3, s3, 8")
e("s_add_u32 %s, s3, %s", s(sJB), s(sLW))
e("s_lshl_b32 %s, %s, 1", s(sPar), s(sLW))
e("s_cmp_eq_u32 %s, 2", s(sLW))
e("s_cselect_b32 %s, 64, %s", s(sPar), s(sPar))
e("s_mov_b32 %s, 1", s(sNU))
e("s_lshl_b32 %s, %s, 12", s(sM0), s(sLW))
e("s_add_u32 %s, %s, %d", s(sM0), s(sM0), FI_L)
A.label("L_mid")
mid()
stamp("m_end")
e("s_cmp_ge_u32 %s, 4", s(sW))
e("s_cbranch_scc1 L_dft_l2")
p3_pre()
if EH:
    e("s_waitcnt vmcnt(8)")
    e("v_cmp_ne_u32 vcc, %s, v4", s(sTAG))
    e("s_cbranch_vccnz L_eh0")
    for i in range(EH):
        hload_(i)
    e("s_mov_b32 %s, 2", s(sNU))
    e("s_waitcnt vmcnt(%d)", 4 * EH)
    e("s_branch L_eh1")
    A.label("L_eh0")
e("s_mov_b32 %s, 0", s(sNU))
if EFH:
    if not EH:
        fh_addr()
    poll_issue(7, 1, 3, WS_FH)
e("s_waitcnt vmcnt(0)")
A.label("L_eh1")
stamp("m_st")
e("s_barrier")
e("s_cmp_lg_u32 %s, 0", s(sW))
e("s_cbranch_scc1 L_nofu")
e("s_lshl_b32 %s, s2, 7", s(sFlag))
e("s_add_u32 %s, %s, %d", s(sFlag), s(sFlag), WS_FU - 192 * 128)
flag_store(sFlag, 12, 13)
A.label("L_nofu")
A.label("L_p3c")
p3c()
e("s_branch L_fin")

A.label("L_dft_l3")
e("v_lshlrev_b32 v5, 4, v0")
if EST:
    if ECI and EST < 3:
        z_ci_sub(CI_LATE)
    e("s_waitcnt vmcnt(0)")
    if EST >= 3:
        poll_check(41, 1, 10, WS_FW)
    if EST == 4:
        e("s_cmp_lg_u32 %s, 3", s(sLW))
        e("s_cbranch_scc1 L_dft_l7")
        e("v_mov_b32 v12, %d", LGO)
        A.label("L_dft_l8")
        e("ds_read_b32 v13, v12 offset:12")
        e("s_waitcnt lgkmcnt(0)")
        e("v_cmp_ne_u32 vcc, 1, v13")
        e("s_cbranch_vccnz L_dft_l8")
        stage_all()
        stamp("dl_st")
        A.label("L_dft_l7")
    e("s_barrier")
    if EST == 4:
        e("s_waitcnt vmcnt(0)")
    if EST == 3:
        e("s_cmp_lg_u32 %s, 3", s(sLW))
        e("s_cbranch_scc1 L_dft_l7")
        e("v_mov_b32 v12, %d", LGO)
        e("s_add_u32 s3, s3, 6")
        A.label("L_dft_l8")
        e("ds_read_b32 v13, v12 offset:8")
        e("s_waitcnt lgkmcnt(0)")
        e("v_cmp_ne_u32 vcc, s3, v13")
        e("s_cbranch_vccnz L_dft_l8")
        stage_all()
        e("s_waitcnt vmcnt(0)")
        stamp("dl_st")
        A.label("L_dft_l7")
    e("s_barrier")
    stage_wd(3, 4)
    if ECI:
        stage_done(0)
        e("v_lshlrev_b32 v11, 7, v0")
        e("s_branch L_dft_l6")
    else:
        e("s_branch L_dft_l5")
    A.label("L_dft_l2")
    e("s_waitcnt vmcnt(0)")
    e("s_barrier")
    stage_wd(3, 4)
    A.label("L_dft_l5")
    fu_poll_issue()
    stage_done(z_ci_sub(CI_LATE if ECI else range(18)))
    A.label("L_dft_l6")
else:
    e("s_waitcnt vmcnt(0)")
    e("s_barrier")
    e("s_branch L_dft_l4")
    A.label("L_dft_l2")
    stage_wd(0, 3)
    e("s_waitcnt vmcnt(15)")
    e("s_barrier")
    e("s_branch L_dft_l5")
    A.label("L_dft_l4")
    e("s_barrier")
    stage_wd(0, 3)
    A.label("L_dft_l5")
    stage_wd(3, 4)
    fu_poll_issue()
    stage_done(z_ci_sub(CI_LATE if ECI else range(18)))
A.label("L_zpart")
zpart()
A.label("L_fin")
if STAMPS and "--dbg" not in sys.argv:
    stamp("issued_out")
    e("s_waitcnt vmcnt(0)")
    e("%s s[100:101]", "s_memtime" if "--cyc" in sys.argv else "s_memrealtime")
    e("s_waitcnt lgkmcnt(0)")
    for i in range(9):
        e("v_mov_b32 %s, %s", v(16 + i), s(84 + 2 * i))
    e("s_lshl_b32 s3, s2, 3")
    e("s_add_u32 s3, s3, %s", s(sW))
    e("s_lshl_b32 s3, s3, 6")
    e("s_add_u32 s3, s3, 0x%x", WS_STAMP)
    e("v_mov_b32 v5, 0")
    for i in range(3):
        e("buffer_store_dwordx4 %s, v5, %s, s3 offen offset:%d", v(16 + 4 * i, 4), s(sWS, 4), 16 * i)
if "--dbg" in sys.argv:
    e("s_load_dwordx2 s[4:5], s[0:1], 64")
    e("s_waitcnt vmcnt(0) lgkmcnt(0)")
    e("s_memrealtime s[100:101]")
    srd(A, 8, 4, 256)
    e("s_waitcnt lgkmcnt(0)")
    e("s_mov_b64 exec, 1")
    e("s_not_b32 s84, s84")
    e("s_cmp_ge_u32 s2, 192")
    e("s_cselect_b32 s3, 32, 0")
    for i in range(8):
        k = [0, 8, 1, 2, 3, 4, 5, 6][i]
        e("v_mov_b32 v16, %s", s(84 + 2 * k))
        e("v_mov_b32 v17, %d", 4 * i)
        e("buffer_atomic_umax v16, v17, s[8:11], s3 offen sc1")
A.label("L_end")
e("s_endpgm")
flush_cold()
A.label("L_code_end")

kernel_desc(A, KN, 256, accum=256)
TB.emit_tables(A)
out = [x for x in sys.argv[1:] if not x.startswith("--")]
open(out[0] if out else "v29.s", "w").write(A.text())
```

```python
import sys
from asmlib import *
import tables19 as TB

NAME = "parallel_sum__spectral_gfnet__glu_gated_reglu__prompt"
A = Asm()
e = A.e


def opt(name, default):
    for x in sys.argv:
        if x.startswith("--%s=" % name):
            return int(x.split("=")[1])
    return default


STAMPS = "--stamps" in sys.argv
SLEEP = opt("sleep", 4)
ROTA, ROTB = opt("rota", 1), opt("rotb", 3)
CIP1 = opt("cip1", 0)
DROT = opt("drot", 0)
WSP = opt("wsp", 2)
PRL = opt("prl", 0)
WARM = opt("warm", 0)
FOLD = opt("fold", 1)
POLL1 = opt("poll1", 0)
CIL = opt("cil", 1)
STG = opt("stg", 1)
ZPR = opt("zpr", 3)
MPR = opt("mpr", 0)
CT = opt("ct", 3)
DS = opt("ds", 1)
PPT, PPG, OWN = opt("ppt", 4), opt("ppg", 2), opt("own", 1)
EPR, ZGL, EPI = opt("epr", 0), opt("zgl", 0), opt("epi", 1)
XT = opt("xt", 0)
XQ = opt("xq", 1)
TP = opt("tp", 3)
ZIL, ZSK, FIL = opt("zil", 1), opt("zsk", 1), opt("fil", 1)
MAP8, PF3, PFP = opt("map8", 0), opt("pf3", 3), opt("pfp", 1)
R3A, R3B, RZ = opt("r3a", 0), opt("r3b", 0), opt("rz", 0)
OUTF = ["", " sc1", " nt", " sc0 sc1"][opt("outf", 0)]
NFIX = opt("nfix", 0)

WS_EP = 0x0000
WS_FS = 0x1000
WS_FSC = WS_FS + 128 * 128
WS_FT = 0xC000
WS_FU = 0xE000
WS_FH = 0x10000
WS_FW = 0x50000
WS_STAT = 0x28000
WS_CSP = 0x30000
WS_H = 0x60000
WS_T = 0x660000
TSTR, USTR = 43008 + opt("tpad", 128), 86016 + opt("upad", 128)
WS_U = 0x910000
WS_WD = 0xBC0000
WS_STAMP = 0x2000000

SLAB = 49152
AUX = 3 * SLAB
ZU0, ZUS = 0, 16384
CP0, CPS = 65536, 20480
LGO = AUX + 2048
XB = CP0 + 10240
CBASE, CSTR = [0, 20480, CP0, CP0 + 5120, 45056], [5120, 5120, CPS, CPS, 5120]
FR_L, FI_L = AUX + 2048 + 128, AUX + 2048 + 128
MW0, MWA = 0, 22272
MT0 = 45056
RPK = FI_L
LDS_ALL = FI_L + 12288

sX, sG, sU, sWS, sTAB, sWR, sWI, sWD, sOUT = 8, 12, 16, 20, 24, 28, 32, 36, 40
sW, sRB, sCG, sLW = 44, 45, 46, 47
sTmp, sTmp2, sCnt, sDelta, sBuf, sSLAB = 48, 49, 50, 51, 52, 53
sAoff, sBoff, sM0 = 54, 55, 56
sWM, sWN, sFlag = 57, 58, 59
sK1, sJB, sTAG, sSpin = 60, 61, 62, 63
P = 64
sP, sG3, sHo, sWo, sUo, sCo, sLB, sLB2, sOo, sOc, sOOB = 64, 65, 66, 67, 68, 69, 70, 71, 72, 73, 74
sSgn, sS2, sNU, sWcol, sPar = 76, 78, 79, 80, 81
sWa, sWb, sWc, sMW = 6, 7, 75, 80
sTB = 55
sR3, sRZ, sI4 = 82, 83, 67
SRDS = {"X": (sX, P, 2048 * 1280), "WR": (sWR, P + 2, 2048 * 642), "WI": (sWI, P + 4, 2048 * 642),
        "G": (sG, P + 8, 640 * 3072), "U": (sU, P + 10, 640 * 3072), "WD": (sWD, P + 12, 1536 * 1280),
        "OUT": (sOUT, P + 14, 2048 * 1280), "WS": (sWS, P + 18, 1 << 28)}


class VQ:
    def __init__(self):
        self.q = []
    def issue(self, tag, n=1):
        self.q += [tag] * n
    def wait(self, *tags, extra=""):
        last = max([i for i, t in enumerate(self.q) if t in tags], default=-1)
        n = len(self.q) - 1 - last
        assert n <= 63, n
        e("s_waitcnt vmcnt(%d)%s", n, extra)
        self.q = self.q[last + 1:]
    def drain(self):
        self.q = []


STN = {}
for x in sys.argv:
    if x.startswith("--st="):
        for i_, grp in enumerate(x[5:].split(",")):
            for nm in grp.split("+"):
                STN[nm] = i_ + 1
STN["start"] = 0


def cap(fn):
    keep, A.lines = A.lines, []
    fn()
    out, A.lines = A.lines, keep
    return out


def weave(main, groups, skip=0):
    n = len(groups)
    step = (len(main) - skip) / (n + 0.001) if n else 0
    k = 0
    for i, ln in enumerate(main):
        while k < n and i >= skip + k * step:
            A.lines += groups[k]
            k += 1
        A.lines.append(ln)
    while k < n:
        A.lines += groups[k]
        k += 1


COLD = []


def rare(cond, fn):
    la, lb = A.newlabel("L_rare"), A.newlabel("L_back")
    e("%s %s", cond, la)
    A.label(lb)
    body = cap(fn)
    COLD.append(["%s:" % la] + body + ["    s_branch %s" % lb])


def flush_cold():
    while COLD:
        A.lines += COLD.pop(0)


def stamp(nm):
    if STAMPS and nm in STN:
        e("%s %s", "s_memtime" if "--cyc" in sys.argv else "s_memrealtime", s(84 + 2 * STN[nm], 2))


def make_tag():
    e("s_mul_i32 %s, %s, 0x9E3779B1", s(sTAG), s(sTAG))
    e("s_add_u32 %s, %s, 0x7F4A7C15", s(sTAG), s(sTAG))


def flag_store(soff, t0, t1):
    e("v_mov_b32 %s, %s", v(t0), s(sTAG))
    e("v_mov_b32 %s, 0", v(t1))
    e("s_mov_b64 exec, 1")
    e("buffer_store_dword %s, %s, %s, %s offen sc1", v(t0), v(t1), s(sWS, 4), s(soff))
    e("s_mov_b64 exec, -1")


def poll_issue(dst, n, vaddr, base):
    e("s_mov_b32 %s, 0x%x", s(sTmp), base)
    e("buffer_load_dword%s %s, %s, %s, %s offen sc1", "" if n == 1 else "x%d" % n, v(dst, n), v(vaddr), s(sWS, 4), s(sTmp))


def poll_check(dst, n, vaddr, base):
    assert n == 1

    def spin():
        top, done = A.newlabel("L_poll"), A.newlabel("L_polld")
        e("s_mov_b32 %s, 0", s(sSpin))
        A.label(top)
        if SLEEP:
            e("s_sleep %d", SLEEP)
        poll_issue(dst, n, vaddr, base)
        e("s_add_u32 %s, %s, 1", s(sSpin), s(sSpin))
        e("s_cmp_ge_u32 %s, %d", s(sSpin), opt("spin", 40000))
        e("s_waitcnt vmcnt(0)")
        e("s_cbranch_scc1 %s", done)
        e("v_cmp_ne_u32 vcc, %s, %s", s(sTAG), v(dst))
        e("s_cbranch_vccnz %s", top)
        A.label(done)
    e("v_cmp_ne_u32 vcc, %s, %s", s(sTAG), v(dst))
    rare("s_cbranch_vccnz", spin)


def poll_check_pipe(dst, depth, vaddr, base, gap):
    def spin():
        top, done = A.newlabel("L_pp"), A.newlabel("L_ppd")
        e("s_mov_b32 %s, 0", s(sSpin))
        for k in range(1, depth):
            poll_issue(dst + k, 1, vaddr, base)
            e("s_sleep %d", gap)
        A.label(top)
        for k in range(depth):
            poll_issue(dst + k, 1, vaddr, base)
            e("s_waitcnt vmcnt(%d)", depth - 1)
            e("v_cmp_ne_u32 vcc, %s, %s", s(sTAG), v(dst + (k + 1) % depth))
            e("s_cbranch_vccz %s", done)
            e("s_sleep %d", gap)
        e("s_add_u32 %s, %s, 1", s(sSpin), s(sSpin))
        e("s_cmp_lt_u32 %s, %d", s(sSpin), opt("spin", 40000))
        e("s_cbranch_scc1 %s", top)
        A.label(done)
    e("v_cmp_ne_u32 vcc, %s, %s", s(sTAG), v(dst))
    rare("s_cbranch_vccnz", spin)


def karg_wait(first, rest=()):
    e("s_waitcnt lgkmcnt(0)")
    for k in first:
        srd(A, *SRDS[k])
    e("s_load_dword %s, %s, 0x%x", s(sTAG), s(P + 18, 2), WS_EP)
    for k in rest:
        srd(A, *SRDS[k])


def tab_srd():
    e("s_getpc_b64 s[4:5]")
    e("s_add_u32 s4, s4, dft_tables@rel32@lo+4")
    e("s_addc_u32 s5, s5, dft_tables@rel32@hi+12")
    srd(A, sTAB, 4, TB.TAB_BYTES)


def dpp_sum16(r_):
    for ctl in ("quad_perm:[1,0,3,2]", "quad_perm:[2,3,0,1]", "row_half_mirror", "row_mirror"):
        e("s_nop 1")
        e("v_add_f32_dpp %s, %s, %s %s row_mask:0xf bank_mask:0xf", v(r_), v(r_), v(r_), ctl)


def round_bf16(r_):
    e("v_cvt_pk_bf16_f32 %s, %s, %s", v(r_), v(r_), v(r_))
    e("v_and_b32 %s, 0xffff0000, %s", v(r_), v(r_))


def mm16(d, a_, b_, first=False):
    e("v_mfma_f32_16x16x32_bf16 %s, %s, %s, %s", v(d, 4), v(a_, 4), v(b_, 4), "0" if first else v(d, 4))


def stats_addr(R):
    e("s_lshl_b32 %s, %s, 2", s(sTmp), s(sCG))
    e("s_add_u32 %s, %s, %s", s(sTmp), s(sTmp), s(sW))
    e("s_lshl_b32 %s, %s, 2", s(sTmp), s(sTmp))
    e("v_lshrrev_b32 %s, 4, v0", v(R + 20))
    e("v_add_u32 %s, %s, %s", v(R + 21), s(sTmp), v(R + 20))
    e("v_and_b32 %s, 31, %s", v(R + 20), v(R + 21))
    e("v_lshlrev_b32 %s, 6, %s", v(R + 20), v(R + 20))
    e("v_lshrrev_b32 %s, 5, %s", v(R + 22), v(R + 21))
    e("v_add_u32 %s, %s, %s", v(R + 20), v(R + 20), v(R + 22))
    e("s_lshl_b32 %s, %s, 2", s(sTmp), s(sRB))
    e("v_add_u32 %s, %s, %s", v(R + 20), s(sTmp), v(R + 20))
    e("v_mul_u32_u24 %s, 1280, %s", v(R + 20), v(R + 20))
    e("v_and_b32 %s, 15, v0", v(R + 22))
    e("v_lshl_add_u32 %s, %s, 4, %s", v(R + 20), v(R + 22), v(R + 20))


def stats_issue(R):
    for n in range(5):
        e("buffer_load_dwordx4 %s, %s, %s, 0 offen offset:%d", v(R + 4 * n, 4), v(R + 20), s(sX, 4), n * 256)


def stats_compute(R):
    F = R + 24
    S_, V_, T_ = R + 64, R + 66, R + 22
    for n in range(20):
        e("v_lshlrev_b32 %s, 16, %s", v(F + 2 * n), v(R + n))
        e("v_and_b32 %s, 0xffff0000, %s", v(F + 2 * n + 1), v(R + n))
    e("v_pk_add_f32 %s, %s, %s", v(S_, 2), v(F, 2), v(F + 2, 2))
    for n in range(2, 20):
        e("v_pk_add_f32 %s, %s, %s", v(S_, 2), v(S_, 2), v(F + 2 * n, 2))
    e("v_add_f32 %s, %s, %s", v(S_), v(S_), v(S_ + 1))
    dpp_sum16(S_)
    e("v_mul_f32 %s, 0x3acccccd, %s", v(S_), v(S_))
    for n in range(20):
        e("v_pk_add_f32 %s, %s, %s op_sel_hi:[1,0] neg_lo:[0,1] neg_hi:[0,1]", v(F + 2 * n, 2), v(F + 2 * n, 2), v(S_, 2))
    e("v_pk_mul_f32 %s, %s, %s", v(V_, 2), v(F, 2), v(F, 2))
    for n in range(1, 20):
        e("v_pk_fma_f32 %s, %s, %s, %s", v(V_, 2), v(F + 2 * n, 2), v(F + 2 * n, 2), v(V_, 2))
    e("v_add_f32 %s, %s, %s", v(V_), v(V_), v(V_ + 1))
    dpp_sum16(V_)
    e("v_mul_f32 %s, 0x3acccccd, %s", v(V_), v(V_))
    round_bf16(V_)
    e("v_add_f32 %s, 0x3727c5ac, %s", v(V_), v(V_))
    round_bf16(V_)
    e("v_sqrt_f32 %s, %s", v(V_), v(V_))
    e("s_nop 0")
    round_bf16(V_)
    e("v_rcp_f32 %s, %s", v(V_), v(V_))
    round_bf16(S_)
    e("v_and_b32 %s, 15, v0", v(T_))
    e("v_cmp_eq_u32 vcc, 1, %s", v(T_))
    e("v_lshlrev_b32 %s, 2, %s", v(R + 1), v(R + 21))
    e("v_lshl_add_u32 %s, %s, 9, %s", v(R + 1), v(T_), v(R + 1))
    e("v_cndmask_b32 %s, %s, %s, vcc", v(V_), v(V_), v(S_))
    e("v_cmp_gt_u32 vcc, 2, %s", v(T_))
    e("s_lshl_b32 %s, %s, 10", s(sTmp), s(sRB))
    e("s_add_u32 %s, %s, 0x%x", s(sTmp), s(sTmp), WS_STAT)
    e("s_and_saveexec_b64 s[4:5], vcc")
    e("buffer_store_dword %s, %s, %s, %s offen sc1", v(V_), v(R + 1), s(sWS, 4), s(sTmp))
    e("s_mov_b64 exec, s[4:5]")


def aux_poll_addr(ffn, dst):
    e("s_lshl_b32 %s, %s, 2", s(sTmp), s(sRB))
    e("s_add_u32 %s, %s, %s", s(sTmp), s(sTmp), s(sLW))
    e("s_lshl_b32 %s, %s, 1", s(sTmp), s(sTmp))
    e("v_and_b32 v6, 1, v0")
    e("v_add_u32 v6, %s, v6", s(sTmp))
    if ffn:
        e("s_and_b32 %s, s2, 0xc6", s(sTmp))
        e("s_add_u32 %s, %s, 128", s(sTmp), s(sTmp))
        e("v_and_b32 v7, 7, v0")
        e("v_bfe_u32 v12, v0, 3, 1")
        e("v_min_u32 v7, 4, v7")
        e("v_lshlrev_b32 v7, 3, v7")
        e("v_add3_u32 v7, v7, v12, %s", s(sTmp))
        e("v_cmp_gt_u32 vcc, 16, v0")
        e("s_nop 1")
        e("v_cndmask_b32 v6, v7, v6, vcc")
    e("v_lshlrev_b32 %s, 7, v6", v(dst))


def fw_poll_addr(dst):
    e("s_lshl_b32 %s, %s, 6", s(sTmp), s(sLW))
    e("v_add_u32 %s, %s, v0", v(dst), s(sTmp))
    e("v_min_u32 %s, 159, %s", v(dst), v(dst))
    e("v_lshlrev_b32 %s, 7, %s", v(dst), v(dst))


def aux_addr(ffn, R):
    e("v_and_b32 %s, 31, v0", v(R))
    e("v_lshrrev_b32 %s, 5, v0", v(R + 1))
    e("v_lshlrev_b32 %s, 2, %s", v(R), v(R))
    e("v_lshl_add_u32 %s, %s, 9, %s", v(R), v(R + 1), v(R))
    e("s_lshl_b32 %s, %s, 7", s(sTmp), s(sLW))
    e("v_add_u32 %s, %s, %s", v(R), s(sTmp), v(R))
    if ffn:
        e("v_lshrrev_b32 %s, 4, v0", v(R + 1))
        e("v_mul_u32_u24 %s, 12288, %s", v(R + 1), v(R + 1))
        e("v_and_b32 %s, 15, v0", v(R + 3))
        e("v_lshl_add_u32 %s, %s, 4, %s", v(R + 1), v(R + 3), v(R + 1))
        e("s_lshl_b32 %s, %s, 8", s(sTmp), s(sLW))
        e("s_lshl_b32 %s, %s, 10", s(sTmp2), s(sCG))
        e("s_add_u32 %s, %s, %s", s(sTmp), s(sTmp), s(sTmp2))
        e("v_add_u32 %s, %s, %s", v(R + 1), s(sTmp), v(R + 1))
        e("v_lshrrev_b32 %s, 5, v0", v(R + 16))
        e("v_lshl_add_u32 %s, %s, 29, %s", v(R + 16), v(R + 16), v(R + 1))


def aux_issue(ffn, R):
    e("s_lshl_b32 %s, %s, 10", s(sTmp), s(sRB))
    e("s_add_u32 %s, %s, 0x%x", s(sTmp), s(sTmp), WS_STAT)
    e("buffer_load_dword %s, %s, %s, %s offen sc1", v(R + 2), v(R), s(sWS, 4), s(sTmp))
    if ffn:
        for n in range(3):
            e("s_mov_b32 %s, 0x%x", s(sTmp), WS_CSP + n * 4 * 12288)
            e("buffer_load_dwordx4 %s, %s, %s, %s offen sc1", v(R + 4 + 4 * n, 4), v(R + 16 if n == 2 else R + 1), s(sWS, 4), s(sTmp))


def aux_finish(ffn, R):
    e("v_add_u32 %s, %d, %s", v(R), AUX, v(R))
    e("ds_write_b32 %s, %s", v(R), v(R + 2))
    if ffn:
        C_, T_ = R + 4, R + 8
        for n in range(1, 3):
            for k in (0, 2):
                e("v_pk_add_f32 %s, %s, %s", v(C_ + k, 2), v(C_ + k, 2), v(C_ + 4 * n + k, 2))
        for op in ("v_permlane16_swap_b32", "v_permlane32_swap_b32"):
            for i in range(4):
                e("v_mov_b32 %s, %s", v(T_ + i), v(C_ + i))
            e("s_nop 0")
            for i in range(4):
                e("%s %s, %s", op, v(C_ + i), v(T_ + i))
            e("s_nop 0")
            for i in range(4):
                e("v_add_f32 %s, %s, %s", v(C_ + i), v(C_ + i), v(T_ + i))
        e("s_lshl_b32 %s, %s, 8", s(sTmp), s(sLW))
        e("s_add_u32 %s, %s, %d", s(sTmp), s(sTmp), AUX + 1024)
        e("v_lshl_add_u32 %s, %s, 4, %s", v(R + 1), v(R + 3), s(sTmp))
        e("ds_write_b128 %s, %s", v(R + 1), v(C_, 4))
    e("s_waitcnt lgkmcnt(0)")


def p3_map():
    if MAP8:
        e("s_and_b32 %s, s2, 7", s(sP))
        e("s_lshl_b32 %s, %s, 2", s(sP), s(sP))
        e("s_bfe_u32 s3, s2, 0x20003")
        e("s_add_u32 %s, %s, s3", s(sP), s(sP))
        e("s_lshr_b32 %s, s2, 5", s(sG3))
        return
    e("s_and_b32 s3, s2, 7")
    e("s_lshr_b32 %s, s2, 3", s(sTmp))
    e("s_lshr_b32 %s, s3, 1", s(sP))
    e("s_lshl_b32 %s, %s, 3", s(sP), s(sP))
    e("s_and_b32 %s, %s, 7", s(sTmp2), s(sTmp))
    e("s_add_u32 %s, %s, %s", s(sP), s(sP), s(sTmp2))
    e("s_and_b32 s3, s3, 1")
    e("s_lshl_b32 s3, s3, 2")
    e("s_lshr_b32 %s, %s, 3", s(sTmp), s(sTmp))
    e("s_add_u32 %s, s3, %s", s(sG3), s(sTmp))


ZG, ZC, ZAB = [160, 224], 64, [136, 192, 208]


def ZAr(c3, rt): return ZAB[c3] + 4 * rt


def z_setup():
    p3_map()
    e("s_mul_i32 %s, %s, %d", s(sLB), s(sLW), ZUS)
    e("s_lshl_b32 %s, %s, 7", s(sUo), s(sP))
    e("s_lshl_b32 %s, %s, 12", s(sTmp), s(sLW))
    e("s_add_u32 %s, %s, %s", s(sUo), s(sUo), s(sTmp))
    e("s_add_u32 %s, %s, 0x%x", s(sUo), s(sUo), WS_U)
    e("s_mul_i32 %s, %s, 21", s(sCo), s(sG3))
    e("s_add_u32 %s, %s, %s", s(sCo), s(sCo), s(sLW))
    e("s_mul_i32 %s, %s, 3072", s(sCo), s(sCo))
    e("s_add_u32 %s, %s, %d", s(sCo), s(sCo), TB.CI_OFF)
    e("s_lshl_b32 %s, %s, 1", s(sS2), s(sP))


def wd_bases(wreg):
    e("s_lshr_b32 %s, %s, 1", s(sOc), s(sG3))
    e("s_and_b32 %s, %s, 1", s(sTmp), s(sG3))
    e("s_mul_i32 %s, %s, 20", s(sTmp), s(sTmp))
    e("s_add_u32 %s, %s, %s", s(sOc), s(sOc), s(sTmp))
    e("s_add_u32 %s, %s, 16", s(sOc), s(sOc))
    e("s_lshl_b32 %s, %s, 5", s(sOc), s(sOc))
    e("s_lshl_b32 %s, %s, 10", s(sTmp), s(wreg))
    e("s_add_u32 %s, %s, 0x%x", s(sTmp), s(sTmp), WS_WD)
    e("s_mul_i32 %s, %s, %d", s(sWa), s(sG3), 2 * 49152)
    e("s_add_u32 %s, %s, %s", s(sWa), s(sWa), s(sTmp))
    e("s_mul_i32 %s, %s, %d", s(sWc), s(sOc), 49152 // 32)
    e("s_add_u32 %s, %s, %s", s(sWc), s(sWc), s(sTmp))


def rot3():
    e("s_and_b32 %s, %s, 3", s(sR3), s(sG3))
    e("s_mul_i32 %s, %s, %d", s(sR3), s(sR3), R3A)
    e("s_and_b32 %s, %s, 7", s(sTmp), s(sP))
    e("s_mul_i32 %s, %s, %d", s(sTmp), s(sTmp), R3B)
    e("s_add_u32 %s, %s, %s", s(sR3), s(sR3), s(sTmp))
    for _ in range((3 * R3A + 7 * R3B) // 12):
        e("s_cmp_ge_u32 %s, 12", s(sR3))
        e("s_cselect_b32 %s, 12, 0", s(sTmp))
        e("s_sub_u32 %s, %s, %s", s(sR3), s(sR3), s(sTmp))


def item4(i, dst):
    e("s_add_u32 %s, %s, %d", s(dst), s(sR3), i)
    e("s_cmp_ge_u32 %s, 12", s(dst))
    e("s_cselect_b32 %s, 12, 0", s(sTmp))
    e("s_sub_u32 %s, %s, %s", s(dst), s(dst), s(sTmp))
    e("s_lshl_b32 %s, %s, 12", s(dst), s(dst))


WOFF = [(0, 0), (0, 49152), (0, 20 * 49152), (0, 21 * 49152), (1, 0)]


def stage_all():
    rot3()
    for i in range(3):
        item4(i, sI4)
        for w in range(4):
            e("s_add_u32 %s, %s, %d", s(sCnt), s(sI4), ((w - 3) * 1024) & 0xffffffff)
            e("s_add_u32 %s, %s, %s", s(sTmp2), s(sCnt), s(sWa))
            for ct in range(5):
                e("s_mov_b32 m0, %d", CP0 + w * CPS + i * 5120 + ct * 1024)
                if ct < 4:
                    e("s_add_u32 %s, %s, %d", s(sTmp), s(sTmp2), WOFF[ct][1])
                else:
                    e("s_add_u32 %s, %s, %s", s(sTmp), s(sCnt), s(sWc))
                e("buffer_load_dwordx4 v5, %s, %s offen sc1 lds", s(sWS, 4), s(sTmp))


def stage_wd(i0, i1):
    e("s_mul_i32 %s, %s, %d", s(sSLAB), s(sLW), CPS)
    rot3()
    for i in range(i0, i1):
        item4(i, sI4)
        e("s_add_u32 %s, %s, %s", s(sTmp2), s(sI4), s(sWa))
        for ct in range(5):
            e("s_add_u32 m0, %s, %d", s(sSLAB), CP0 + i * 5120 + ct * 1024)
            if ct < 4:
                e("s_add_u32 %s, %s, %d", s(sTmp), s(sTmp2), WOFF[ct][1])
            else:
                e("s_add_u32 %s, %s, %s", s(sTmp), s(sI4), s(sWc))
            e("buffer_load_dwordx4 v5, %s, %s offen sc1 lds", s(sWS, 4), s(sTmp))


def z_ci_sub(idx):
    n = 0
    for z in range(6):
        c = [c3 for c3 in range(3) if z * 3 + c3 in idx]
        lab = A.newlabel("L_noc5")
        if c and z == 5 and ZSK:
            e("s_cmp_lg_u32 %s, 0", s(sLW))
            e("s_cbranch_scc1 %s", lab)
        else:
            n += len(c)
        if c:
            z_item(z, 4 * 3072, sCo, sRZ)
        for c3 in c:
            e("buffer_load_dwordx4 %s, v5, %s, %s offen offset:%d", v(ZC + z * 12 + c3 * 4, 4), s(sTAB, 4), s(sRZ), c3 * 1024)
        A.label(lab)
    return n


def z_ci_all():
    return z_ci_sub(range(18))


def stage_done(n):
    e("s_lshl_b32 %s, %s, 2", s(sTmp), s(sLW))
    e("s_add_u32 %s, %s, %d", s(sTmp), s(sTmp), LGO + 16)
    e("v_mov_b32 v12, %s", s(sTmp))
    e("v_mov_b32 v13, 1")
    e("s_waitcnt vmcnt(%d)", n)
    e("ds_write_b32 v12, v13")


def z_item(z, mul, base, dst):
    e("s_and_b32 %s, %s, 3", s(dst), s(sG3))
    e("s_mul_i32 %s, %s, %d", s(dst), s(dst), RZ)
    e("s_add_u32 %s, %s, %d", s(dst), s(dst), z)
    e("s_cmp_ge_u32 %s, 6", s(dst))
    e("s_cselect_b32 %s, 6, 0", s(sTmp))
    e("s_sub_u32 %s, %s, %s", s(dst), s(dst), s(sTmp))
    e("s_lshl_b32 %s, %s, 2", s(sTmp), s(dst))
    e("s_add_u32 %s, %s, %s", s(sTmp), s(sTmp), s(sLW))
    e("s_cmp_gt_u32 %s, 20", s(sTmp))
    e("s_cselect_b32 %s, 0x20000000, %s", s(sTmp), s(base))
    e("s_mul_i32 %s, %s, %d", s(dst), s(dst), mul)
    e("s_add_u32 %s, %s, %s", s(dst), s(dst), s(sTmp))


def z_ci_loads(z, vL):
    z_item(z, 4 * 3072, sCo, sRZ)
    for c3 in range(3):
        e("buffer_load_dwordx4 %s, %s, %s, %s offen offset:%d", v(ZC + z * 12 + c3 * 4, 4), v(vL), s(sTAB, 4), s(sRZ), c3 * 1024)


def ZGr(u, ro, nh, kap): return ZG[u] + ((ro * 2 + nh) * 2 + kap) * 4


def z_gconst():
    e("v_and_b32 v56, 15, v0")
    e("v_lshlrev_b32 v56, 6, v56")
    e("v_add_u32 v56, %s, v56", s(sS2))
    e("v_cvt_f32_u32 v56, v56")
    e("v_mul_f32 v56, 0x3a000000, v56")
    e("v_lshrrev_b32 v57, 5, v0")
    e("v_lshlrev_b32 v57, 3, v57")
    e("v_cvt_f32_u32 v57, v57")
    e("v_bfe_u32 v58, v0, 4, 1")
    e("v_cvt_f32_u32 v58, v58")
    e("v_mul_f32 v58, 0x3e800000, v58")
    for u in range(2):
        if u:
            e("v_add_f32 v56, 0x3a000000, v56")
        for kap in range(2):
            if kap:
                e("v_add_f32 v59, 0x41800000, v57")
                e("v_fma_f32 v59, v59, v56, v58")
            else:
                e("v_fma_f32 v59, v57, v56, v58")
            for ro in range(2):
                if ro:
                    e("v_add_f32 v60, 0xbe800000, v59")
                else:
                    e("v_mov_b32 v60, v59")
                for i2 in range(4):
                    e("v_cos_f32 v61, v60")
                    e("v_add_f32 v60, v60, v56")
                    e("v_cos_f32 v62, v60")
                    e("v_add_f32 v60, v60, v56")
                    b = ZGr(u, ro, 0, kap) + i2
                    e("v_cvt_pk_bf16_f32 %s, v61, v62", v(b))
                    e("v_xor_b32 %s, 0x80000000, %s", v(b + 8), v(b))


def fu_poll_issue():
    e("v_lshlrev_b32 v11, 7, v0")
    lab0 = A.newlabel("L_nofup")
    e("s_cmp_lg_u32 %s, 0", s(sLW))
    e("s_cbranch_scc1 %s", lab0)
    poll_issue(16, 1, 11, WS_FU)
    A.label(lab0)


def zpart():
    vL, vUG, vTU, vTU1, vPU = 5, 6, 7, 8, 11
    UF, ZT = 16, 32
    e("v_lshlrev_b32 %s, 4, v0", v(vL))
    e("v_lshrrev_b32 v12, 3, v0")
    e("v_mul_u32_u24 v12, %d, v12", USTR)
    e("v_lshrrev_b32 v13, 2, v0")
    e("v_lshrrev_b32 v14, 4, v0")
    e("v_xor_b32 v13, v13, v14")
    e("v_and_b32 v13, 1, v13")
    e("v_lshl_add_u32 v12, v13, 6, v12")
    e("v_and_b32 v13, 3, v0")
    e("v_lshl_add_u32 %s, v13, 4, v12", v(vUG))
    e("v_lshrrev_b32 v12, 5, v0")
    e("v_lshlrev_b32 v12, 3, v12")
    e("v_bfe_u32 v14, v0, 2, 2")
    e("v_add_u32 v12, v12, v14")
    e("v_lshlrev_b32 v12, 7, v12")
    e("v_lshl_add_u32 v12, v13, 4, v12")
    e("v_bfe_u32 v14, v0, 4, 1")
    e("v_lshl_add_u32 v12, v14, 3, v12")
    e("v_bfe_u32 v14, v0, 3, 1")
    e("v_lshl_add_u32 v12, v14, 6, v12")
    e("v_add_u32 %s, %s, v12", v(vTU), s(sLB))
    e("v_xor_b32 %s, 64, %s", v(vTU1), v(vTU))
    e("v_mov_b32 v12, %d", LGO)
    lab1, lab2 = A.newlabel("L_lgo"), A.newlabel("L_lgod")
    e("s_cmp_lg_u32 %s, 0", s(sLW))
    e("s_cbranch_scc1 %s", lab1)
    e("s_waitcnt vmcnt(0)")
    poll_check(UF, 1, vPU, WS_FU)
    e("v_mov_b32 v13, 1")
    e("ds_write_b32 v12, v13")
    e("s_branch %s", lab2)
    A.label(lab1)
    e("s_sleep 1")
    e("ds_read_b32 v13, v12")
    e("s_waitcnt lgkmcnt(0)")
    e("v_cmp_ne_u32 vcc, 1, v13")
    e("s_cbranch_vccnz %s", lab1)
    A.label(lab2)
    stamp("zU")
    if ZPR:
        e("s_setprio %d", ZPR)
    q = VQ()

    def udma(z):
        z_item(z, 4 * 4096, sUo, sRZ)
        for n in range(4):
            e("s_add_u32 m0, %s, %d", s(sLB), (z % 4) * 4096 + n * 1024)
            e("s_add_u32 %s, %s, %d", s(sTmp2), s(sRZ), n * 8 * USTR)
            e("buffer_load_dwordx4 %s, %s, %s offen sc1 lds", v(vUG), s(sWS, 4), s(sTmp2))
        q.issue("u%d" % z, 4)
    for z in range(4):
        udma(z)
    def ureads(z):
        q.wait("u%d" % z)
        stamp("z%d" % z)
        for u in range(2):
            for kap in range(2):
                for rd in range(2):
                    e("ds_read_b64_tr_b16 %s, %s offset:%d", v(UF + 8 * u + 4 * kap + 2 * rd, 2), v(vTU1 if u else vTU), (z % 4) * 4096 + kap * 2048 + rd * 512)
    ureads(0)
    skip5 = A.newlabel("L_noz5")

    def cv(rt):
        b = ZT + rt * 8
        return [cap(lambda k=k: e("v_cvt_pk_bf16_f32 %s, %s, %s", v(b + k), v(b + 2 * k), v(b + 2 * k + 1))) for k in range(4)]

    def s1(u):
        return [cap(lambda kap=kap, nh=nh, ro=ro: mm16(ZT + u * 16 + (nh * 2 + ro) * 4, UF + 8 * u + 4 * kap, ZGr(u, ro, nh, kap), kap == 0))
                for kap in range(2) for nh in range(2) for ro in range(2)]

    def s2(z, rt):
        return [cap(lambda c3=c3: mm16(ZAr(c3, rt), ZC + z * 12 + c3 * 4, ZT + rt * 8, z == 0)) for c3 in range(3)]

    def put(gs):
        for g in gs:
            A.lines += g
    for z in range(6):
        if z == 5 and ZSK:
            e("s_cmp_lg_u32 %s, 0", s(sLW))
            e("s_cbranch_scc1 %s", skip5)
        e("s_waitcnt lgkmcnt(4)")
        put(s1(0))
        e("s_waitcnt lgkmcnt(0)")
        m1 = s1(1)
        if not ZIL:
            put(m1)
        else:
            c0, c1 = cv(0), cv(1)
            put(m1[:5] + c0[:2] + m1[5:6] + c0[2:] + m1[6:7] + c1[:2] + m1[7:] + c1[2:])
        if z + 4 < 6:
            if z == 1 and ZSK:
                lab = A.newlabel("L_nou5")
                e("s_cmp_lg_u32 %s, 0", s(sLW))
                e("s_cbranch_scc1 %s", lab)
                udma(5)
                A.label(lab)
                q.q = q.q[:-4]
            else:
                udma(z + 4)
        if z + 1 < 6:
            if z == 4 and ZSK:
                lab = A.newlabel("L_nor5")
                e("s_cmp_lg_u32 %s, 0", s(sLW))
                e("s_cbranch_scc1 %s", lab)
                q.issue("u5", 4)
                ureads(5)
                A.label(lab)
            else:
                ureads(z + 1)
        if not ZIL:
            put(cv(0) + cv(1) + cv(2) + cv(3))
            e("s_nop 0")
            put(s2(z, 0) + s2(z, 1) + s2(z, 2) + s2(z, 3))
        else:
            if z == 5:
                e("s_nop 1")
            a0, a1, c2, c3_ = s2(z, 0), s2(z, 1), cv(2), cv(3)
            put(a0[:2] + c2[:2] + a0[2:] + c2[2:] + a1[:1] + c3_[:2] + a1[1:2] + c3_[2:] + a1[2:])
            e("s_nop 0")
            put(s2(z, 2) + s2(z, 3))
    A.label(skip5)
    e("v_add_u32 v12, %s, %s", s(sLB), v(vL))
    for rt in range(4):
        for c3 in range(3):
            if rt == 3 and c3 == 0:
                e("s_nop 1")
            e("ds_write_b128 v12, %s offset:%d", v(ZAr(c3, rt), 4), c3 * 4096 + rt * 1024)
    e("s_waitcnt lgkmcnt(0)")
    stamp("zend")
    e("s_barrier")


vA0, vA1, vB0, vB1 = 2, 3, 4, 1


def lgo_init():
    e("v_mov_b32 v12, %d", LGO)
    e("v_mov_b32 v13, 0")
    e("ds_write_b32 v12, v13")
    e("ds_write_b32 v12, v13 offset:4")
    e("ds_write_b32 v12, v13 offset:8")
    e("ds_write_b32 v12, v13 offset:12")
    for i in range(4):
        e("ds_write_b32 v12, v13 offset:%d", 16 + 4 * i)


def k_offset(dst):
    e("s_and_b32 %s, s2, 1", s(dst))
    e("s_mul_i32 %s, %s, 5", s(dst), s(dst))
    e("s_bfe_u32 %s, s2, 0x10003", s(sTmp))
    e("s_mul_i32 %s, %s, 3", s(sTmp), s(sTmp))
    e("s_add_u32 %s, %s, %s", s(dst), s(dst), s(sTmp))
    if KG:
        e("s_lshr_b32 %s, s2, 6", s(sTmp))
        e("s_lshl_b32 %s, %s, 2", s(sTmp), s(sTmp))
        e("s_lshr_b32 %s, 0x%x, %s", s(sTmp), KG, s(sTmp))
        e("s_and_b32 %s, %s, 15", s(sTmp), s(sTmp))
        e("s_add_u32 %s, %s, %s", s(dst), s(dst), s(sTmp))
        mod10(dst)


KG = int(str(opt("kg", 250)), 16)


def mod10(dst):
    e("s_cmp_ge_u32 %s, 10", s(dst))
    e("s_cselect_b32 %s, 10, 0", s(sTmp))
    e("s_sub_u32 %s, %s, %s", s(dst), s(dst), s(sTmp))


def x_src_scalar():
    e("s_lshl_b32 %s, %s, 2", s(sAoff), s(sRB))
    e("s_add_u32 %s, %s, %s", s(sAoff), s(sAoff), s(sLW))
    e("s_mul_i32 %s, %s, 1280", s(sAoff), s(sAoff))


def ffn_loader():
    if PRL & 2:
        e("s_setprio 2")
    e("v_lshrrev_b32 v6, 3, v0")
    e("v_mul_u32_u24 v6, 81920, v6")
    e("v_and_b32 v7, 7, v0")
    e("v_lshrrev_b32 v8, 4, v0")
    e("v_xor_b32 v7, v7, v8")
    e("v_lshl_add_u32 %s, v7, 4, v6", v(vA0))
    e("v_xor_b32 %s, 64, %s", v(vA1), v(vA0))
    e("v_mul_u32_u24 v6, 3072, v8")
    e("v_and_b32 v7, 15, v0")
    e("v_lshlrev_b32 v8, 2, v8")
    e("v_xor_b32 v7, v7, v8")
    e("v_lshl_add_u32 %s, v7, 4, v6", v(vB0))
    e("v_xor_b32 %s, 32, %s", v(vB1), v(vB0))
    x_src_scalar()
    e("s_mul_i32 %s, %s, %d", s(sBoff), s(sLW), 16 * 3072)
    e("s_lshl_b32 %s, %s, 8", s(sTmp), s(sCG))
    e("s_add_u32 %s, %s, %s", s(sBoff), s(sBoff), s(sTmp))
    e("s_lshl_b32 %s, %s, 12", s(sM0), s(sLW))
    k_offset(sJB)
    XR_ = opt("xrot", 0)
    if XR_:
        e("s_bfe_u32 %s, s2, 0x20003", s(sJB))
        e("s_mul_i32 %s, %s, 5", s(sJB), s(sJB))
        e("s_add_u32 %s, %s, 1", s(sJB), s(sJB))
        e("s_lshr_b32 %s, %s, 1", s(sJB), s(sJB))
        if XR_ & 4:
            e("s_mov_b32 %s, 0", s(sJB))
        e("s_lshr_b32 %s, s2, 6", s(sTmp))
        e("s_mul_i32 %s, %s, %d", s(sTmp), s(sTmp), (XR_ & 3) - 1)
        e("s_add_u32 %s, %s, %s", s(sJB), s(sJB), s(sTmp))
        e("s_cmp_ge_u32 %s, 10", s(sJB))
        e("s_cselect_b32 %s, 10, 0", s(sTmp))
        e("s_sub_u32 %s, %s, %s", s(sJB), s(sJB), s(sTmp))
    NR = 10
    tab_srd()
    stamp("l_pre")
    e("s_waitcnt lgkmcnt(0)")
    stamp("l_k")
    for k in ("X", "G", "U"):
        srd(A, *SRDS[k])
    q = VQ()

    def slab_groups(i):
        b = (i % 3) * SLAB
        gs = []

        def head():
            if i < NFIX:
                e("s_add_u32 %s, %s, %d", s(sWM), s(sAoff), i * 128)
                e("s_add_u32 %s, %s, %d", s(sWN), s(sBoff), i * 64 * 3072)
            else:
                e("s_add_u32 %s, %s, %d", s(sTmp), s(sJB), NFIX)
                e("s_lshl_b32 %s, %s, 7", s(sWM), s(sTmp))
                e("s_add_u32 %s, %s, %s", s(sWM), s(sWM), s(sAoff))
                e("s_mul_i32 %s, %s, %d", s(sWN), s(sTmp), 64 * 3072)
                e("s_add_u32 %s, %s, %s", s(sWN), s(sWN), s(sBoff))
                e("s_add_u32 %s, %s, 1", s(sJB), s(sJB))
                e("s_cmp_eq_u32 %s, %d", s(sJB), NR)
                e("s_cselect_b32 %s, 0, %s", s(sJB), s(sJB))
        for n in range(4):
            def f(n=n):
                if n == 0:
                    head()
                e("s_add_u32 m0, %s, %d", s(sM0), b + n * 1024)
                e("s_add_u32 %s, %s, %d", s(sTmp), s(sWM), n * 8 * 81920)
                e("buffer_load_dwordx4 %s, %s, %s offen lds", v(vA1 if n & 1 else vA0), s(sX, 4), s(sTmp))
            gs.append(cap(f))
        for mat in range(2):
            for n in range(4):
                def f(n=n, mat=mat):
                    e("s_add_u32 m0, %s, %d", s(sM0), b + 16384 * (1 + mat) + n * 1024)
                    e("s_add_u32 %s, %s, %d", s(sTmp), s(sWN), n * 4 * 3072)
                    e("buffer_load_dwordx4 %s, %s, %s offen lds", v(vB1 if n & 2 else vB0), s(sU if mat else sG, 4), s(sTmp))
                gs.append(cap(f))
        q.issue("s%d" % i, 12)
        return gs

    def slab(i, main=()):
        weave(list(main), slab_groups(i))

    def wait2(n):
        la, lb = A.newlabel("L_w2"), A.newlabel("L_w2")
        e("s_cmp_ge_u32 %s, 48", s(sPar))
        e("s_cbranch_scc1 %s", la)
        e("s_waitcnt vmcnt(%d)", n + 4)
        e("s_branch %s", lb)
        A.label(la)
        e("s_waitcnt vmcnt(%d)", n)
        A.label(lb)

    def bar(b):
        stamp("fl_a%d" % b)
        e("s_barrier")
        stamp("fl_b%d" % b)
    slab(0)
    stamp("l_s0")
    lgo_init()
    e("s_load_dword %s, %s, 0x%x", s(sTAG), s(P + 18, 2), WS_EP)
    for k in ("WS", "WD", "WR", "WI"):
        srd(A, *SRDS[k])
    z_setup()
    e("v_lshlrev_b32 v5, 4, v0")
    fw_poll_addr(10)
    aux_poll_addr(True, 15)
    aux_addr(True, 36)
    slab(1, cap(z_gconst))
    stamp("l_iss")
    q.wait("s0", extra=" lgkmcnt(0)")
    e("s_barrier")
    stamp("l_bi")
    make_tag()
    slab(2)
    repack_dma()
    wait2(12)
    q.q = ["s2"] * 12
    bar(0)
    slab(3)
    wait2(12)
    q.q = ["s3"] * 12
    bar(1)
    slab(4)
    e("s_waitcnt vmcnt(24)")
    repack_finish()
    wait2(12)
    q.q = ["s4"] * 12
    bar(2)
    slab(5)
    if WARM == 2:
        warm_touch(); q.issue("wt", 2)
    q.wait("s4")
    bar(3)
    lab = A.newlabel("L_nocf")
    e("s_cmp_lg_u32 %s, 0", s(sLW))
    e("s_cbranch_scc1 %s", lab)
    e("s_lshl_b32 %s, s2, 7", s(sCnt))
    e("s_add_u32 %s, %s, 0x%x", s(sCnt), s(sCnt), WS_FW)
    flag_store(sCnt, 16, 17)
    A.label(lab)
    slab(6)
    q.wait("s5")
    bar(4)
    slab(7)
    if PF3 & 1:
        pf3(1)
    if PF3 & 2:
        pf3(0)
    q.wait("s6")
    bar(5)
    poll_issue(34, 1, 15, WS_FS); poll_issue(35, 1, 10, WS_FW); q.issue("p", 2)
    slab(8)
    q.wait("s7")
    bar(6)
    slab(9)
    q.wait("p")
    poll_check(34, 1, 15, WS_FS)
    poll_check(35, 1, 10, WS_FW)
    aux_issue(True, 36); q.issue("aux", 4)
    if PFP == 0:
        pf3_go(q, PF3)
    q.wait("s8")
    bar(7)
    if PFP == 1:
        pf3_go(q, PF3)
    q.wait("aux")
    aux_finish(True, 36)
    bar(8)
    wd_bases(sLW)
    stage_wd(0, 4)
    if CIL == 0:
        z_ci_all()
    stage_done(18 if CIL == 0 else 0)
    e("v_mov_b32 v12, %d", LGO)
    lab = A.newlabel("L_hout")
    A.label(lab)
    e("s_sleep 1")
    e("ds_read_b32 v13, v12 offset:4")
    e("s_waitcnt lgkmcnt(0)")
    e("v_cmp_ne_u32 vcc, 4, v13")
    e("s_cbranch_vccnz %s", lab)
    fu_poll_issue()
    if CIL == 1:
        z_ci_all()
    e("s_branch L_zpart")


def wspec_shift(dst):
    e("s_mul_i32 %s, %s, 642", s(sDelta), s(sK1))
    e("s_mul_i32 %s, s3, 320", s(sTmp))
    e("s_add_u32 %s, %s, %s", s(sDelta), s(sDelta), s(sTmp))
    e("s_and_b32 %s, %s, 15", s(dst), s(sDelta))


def wspec_dma():
    mid_k1()
    e("v_mul_u32_u24 v12, 3121, v0")
    e("v_lshrrev_b32 v12, 16, v12")
    e("v_mul_u32_u24 v12, %d, v12", 32 * 642 - 336)
    e("v_lshl_add_u32 v12, v0, 4, v12")
    wspec_shift(sTmp2)
    e("s_sub_u32 %s, %s, %s", s(sDelta), s(sDelta), s(sTmp2))
    e("s_and_b32 %s, %s, 1", s(sTmp), s(sLW))
    e("s_mul_i32 %s, %s, %d", s(sCnt), s(sTmp), 11 * 1008)
    e("s_mul_i32 %s, %s, %d", s(sTmp), s(sTmp), 33 * 32 * 642)
    e("s_add_u32 %s, %s, %s", s(sDelta), s(sDelta), s(sTmp))
    e("s_cmp_ge_u32 %s, 2", s(sLW))
    e("s_cselect_b32 %s, %s, %s", s(sWR), s(sWI), s(sWR))
    e("s_cselect_b32 %s, %s, %s", s(sWR + 1), s(sWI + 1), s(sWR + 1))
    e("s_cselect_b32 %s, %d, 0", s(sTmp), MWA)
    e("s_add_u32 %s, %s, %s", s(sCnt), s(sCnt), s(sTmp))
    gs = []
    for n in range(11):
        def f(n=n):
            e("s_add_u32 m0, %s, %d", s(sCnt), MW0 + n * 1008)
            e("s_add_u32 %s, %s, %d", s(sTmp), s(sDelta), n * 3 * 32 * 642)
            e("buffer_load_dwordx4 v12, %s, %s offen lds", s(sWR, 4), s(sTmp))
        gs.append(cap(f))
    return gs


def repack_dma():
    e("v_lshrrev_b32 v12, 3, v0")
    e("v_mul_u32_u24 v13, 1280, v12")
    e("v_bfe_u32 v14, v0, 4, 2")
    e("v_lshlrev_b32 v14, 1, v14")
    e("v_and_b32 v12, 7, v0")
    e("v_xor_b32 v12, v12, v14")
    e("v_lshl_add_u32 v12, v12, 4, v13")
    e("s_mul_i32 %s, s2, 3", s(sCnt))
    e("s_add_u32 %s, %s, %s", s(sCnt), s(sCnt), s(sLW))
    e("s_cmp_eq_u32 %s, 3", s(sLW))
    e("s_cselect_b32 %s, 480, %s", s(sCnt), s(sCnt))
    e("s_mul_i32 %s, %s, 52429", s(sBuf), s(sCnt))
    e("s_lshr_b32 %s, %s, 19", s(sBuf), s(sBuf))
    e("s_mul_i32 %s, %s, 10", s(sTmp), s(sBuf))
    e("s_sub_u32 %s, %s, %s", s(sCnt), s(sCnt), s(sTmp))
    e("s_mul_i32 %s, %s, 40960", s(sDelta), s(sBuf))
    e("s_lshl_b32 %s, %s, 7", s(sTmp), s(sCnt))
    e("s_add_u32 %s, %s, %s", s(sDelta), s(sDelta), s(sTmp))
    e("s_min_u32 %s, %s, 2", s(sWa), s(sLW))
    e("s_lshl_b32 %s, %s, 12", s(sWa), s(sWa))
    e("s_add_u32 %s, %s, %d", s(sWa), s(sWa), RPK)
    lab = A.newlabel("L_norp")
    e("s_cmp_ge_u32 %s, 48", s(sBuf))
    e("s_cbranch_scc1 %s", lab)
    for n in range(4):
        e("s_add_u32 m0, %s, %d", s(sWa), n * 1024)
        e("s_add_u32 %s, %s, %d", s(sTmp), s(sDelta), n * 8 * 1280)
        e("buffer_load_dwordx4 v12, %s, %s offen lds", s(sWD, 4), s(sTmp))
    A.label(lab)
    e("s_mul_i32 %s, %s, %d", s(sWb), s(sCnt), 4 * 49152)
    e("s_lshl_b32 %s, %s, 10", s(sTmp), s(sBuf))
    e("s_add_u32 %s, %s, %s", s(sWb), s(sWb), s(sTmp))
    e("s_add_u32 %s, %s, 0x%x", s(sWb), s(sWb), WS_WD)
    e("s_mov_b32 %s, %s", s(sPar), s(sBuf))


def repack_finish():
    lab = A.newlabel("L_norp")
    e("s_cmp_ge_u32 %s, 48", s(sPar))
    e("s_cbranch_scc1 %s", lab)
    e("v_lshrrev_b32 v56, 2, v0")
    e("v_lshlrev_b32 v56, 7, v56")
    e("v_and_b32 v57, 3, v0")
    e("v_lshl_add_u32 v56, v57, 3, v56")
    e("v_bfe_u32 v57, v0, 3, 2")
    e("v_lshl_add_u32 v56, v57, 5, v56")
    e("v_add_u32 v56, %s, v56", s(sWa))
    for tq in range(1, 4):
        e("v_xor_b32 %s, %d, v56", v(56 + tq), tq << 5)
    for tq in range(4):
        for rd in range(2):
            e("ds_read_b64_tr_b16 %s, %s offset:%d", v(16 + tq * 4 + 2 * rd, 2), v(56 + tq), rd * 2048)
    for n in range(4):
        e("s_waitcnt lgkmcnt(%d)", 6 - 2 * n)
        e("s_add_u32 %s, %s, %d", s(sTmp), s(sWb), n * 49152)
        e("buffer_store_dwordx4 %s, v5, %s, %s offen sc1", v(16 + n * 4, 4), s(sWS, 4), s(sTmp))
    A.label(lab)


def fold_group(a0, T, vM, vaddr, off):
    for d in range(4):
        e("v_lshlrev_b32 %s, 16, %s", v(T + d), v(a0 + d))
        e("v_lshlrev_b32 %s, 16, %s", v(T + 4 + d), v(a0 + 4 + d))
    for d in range(8):
        e("v_and_b32 %s, %s, %s", v(a0 + d), v(vM), v(a0 + d))
    for d in range(4):
        e("v_fmac_f32 %s, %s, %s", v(T + d), s(sSgn), v(T + 4 + d))
    for d in range(4):
        e("v_fmac_f32 %s, %s, %s", v(a0 + d), s(sSgn), v(a0 + 4 + d))
    for d in range(4):
        e("v_cvt_pk_bf16_f32 %s, %s, %s", v(a0 + d), v(T + d), v(a0 + d))
    e("ds_write_b128 %s, %s offset:%d", v(vaddr), v(a0, 4), off)


def fold_addr(src, w0, w2):
    e("v_lshrrev_b32 %s, 3, v0", v(w2))
    e("v_mul_u32_u24 %s, 81920, %s", v(w2 + 1), v(w2))
    e("v_and_b32 %s, 7, v0", v(w0))
    e("v_lshl_add_u32 %s, %s, 4, %s", v(src), v(w0), v(w2 + 1))
    e("v_lshrrev_b32 %s, 4, v0", v(w2 + 1))
    e("v_xor_b32 %s, %s, %s", v(w0), v(w0), v(w2 + 1))
    e("v_lshlrev_b32 %s, 7, %s", v(w2), v(w2))
    e("v_lshl_add_u32 %s, %s, 4, %s", v(w2), v(w0), v(w2))
    e("s_mul_i32 %s, %s, %d", s(sTmp), s(sLW), CPS)
    e("s_add_u32 %s, %s, %d", s(sTmp), s(sTmp), XB)
    e("v_add_u32 %s, %s, %s", v(w0), s(sTmp), v(w2))
    e("v_xor_b32 %s, 64, %s", v(w0 + 1), v(w0))


XO = opt("xo", 0)
CI_EARLY = list(range(8, 16))
CI_LATE = [i for i in range(18) if i not in CI_EARLY]
LX = opt("lx", 0)
CX = opt("cx", 2)
MWE = opt("mwe", 1)
EH = opt("eh", 0)
EST = opt("est", 3)
ECI = opt("eci", 1)
EFH = opt("efh", 1)
NL = opt("nl", 2)


def dft_loader():
    if PRL & 1:
        e("s_setprio 2")
    XR = 64
    vW0, vW1 = 8, 9
    fold_addr(vA0, vW0, 6)
    e("v_lshlrev_b32 %s, 4, v0", v(vB0))
    x_src_scalar()
    tab_srd()
    stamp("l_pre")
    e("s_waitcnt lgkmcnt(0)")
    stamp("l_k")
    srd(A, *SRDS["X"])
    q = VQ()

    def ci_touch():
        e("s_bfe_u32 %s, s2, 0x30003", s(sCnt))
        e("s_lshl_b32 %s, %s, 2", s(sCnt), s(sCnt))
        e("s_add_u32 %s, %s, %s", s(sCnt), s(sCnt), s(sLW))
        e("s_mul_i32 %s, %s, %d", s(sTmp), s(sCnt), 63 * 128)
        e("s_and_b32 %s, s2, 1", s(sTmp2))
        e("s_mul_i32 %s, %s, %d", s(sTmp2), s(sTmp2), 4 * 63 * 1024)
        e("s_add_u32 %s, %s, %s", s(sTmp), s(sTmp), s(sTmp2))
        e("s_add_u32 %s, %s, %d", s(sTmp), s(sTmp), TB.CI_OFF)
        e("v_min_u32 v12, 62, v0")
        e("v_lshlrev_b32 v12, 7, v12")
        e("buffer_load_dword v45, v12, %s, %s offen", s(sTAB, 4), s(sTmp))
        e("s_lshl_b32 %s, %s, 8", s(sTmp), s(sCnt))
        e("s_add_u32 %s, %s, %d", s(sTmp), s(sTmp), TB.F64_OFF)
        e("v_and_b32 v12, 128, v12")
        e("buffer_load_dword v45, v12, %s, %s offen", s(sTAB, 4), s(sTmp))
        q.issue("t", 2)

    def xl(i):
        gs = []
        for n in range(NL):
            for hf in range(2):
                def f(n=n, hf=hf):
                    e("s_add_u32 %s, %s, %d", s(sTmp), s(sAoff), n * 8 * 81920 + i * 128)
                    e("buffer_load_dwordx4 %s, %s, %s, %s offen offset:%d", v(XR + i * 32 + n * 8 + hf * 4, 4), v(vA0), s(sX, 4), s(sTmp), hf * 640)
                gs.append(cap(f))
        q.issue("x%d" % i, 2 * NL)
        return gs

    def fl():
        gs = []
        for n in range(2):
            def f(n=n):
                e("s_lshl_b32 %s, %s, 11", s(sTmp), s(sLW))
                e("s_add_u32 m0, %s, %d", s(sTmp), FR_L + n * 1024)
                e("s_add_u32 %s, %s, %d", s(sTmp), s(sTmp), TB.F64_OFF + n * 1024)
                e("buffer_load_dwordx4 %s, %s, %s offen lds", v(vB0), s(sTAB, 4), s(sTmp))
            gs.append(cap(f))
        q.issue("f", 2)
        return gs

    def fold(i):
        for n in range(NL):
            fold_group(XR + i * 32 + n * 8, 28 + 8 * (n & 1), 44, (vW0, vW1)[n & 1], (1 - (i & 1)) * 5120 + n * 1024)

    def bar(b):
        stamp("dl_a%s" % b)
        e("s_barrier")
        stamp("dl_b%s" % b)
    weave([], xl(0))
    if XT & 32:
        ci_touch()
    stamp("l_s0")
    lgo_init()
    e("s_load_dword %s, %s, 0x%x", s(sTAG), s(P + 18, 2), WS_EP)
    for k in ("WS", "WR", "WI", "OUT"):
        srd(A, *SRDS[k])
    e("s_cmp_ge_u32 %s, 2", s(sCG))
    e("s_cselect_b32 %s, -1.0, 1.0", s(sSgn))
    weave([], xl(1) + (xl(2) if LX >= 1 else []) + (xl(3) if LX >= 2 else []))
    e("v_mov_b32 v44, 0xffff0000")
    aux_poll_addr(False, 15)
    fw_poll_addr(10)
    aux_addr(False, 24)
    stamp("l_iss")
    q.wait("x0")
    stamp("dl_x0")
    fold(0)
    e("s_waitcnt lgkmcnt(0)")
    e("s_barrier")
    stamp("l_bi")
    if XT & 64:
        ci_touch()
    make_tag()
    q.wait("x1")
    weave(cap(lambda: fold(1)), (xl(2) if LX < 1 else []) + (xl(3) if LX < 2 else []) + (xl(4) if LX >= 1 else []))
    e("s_waitcnt lgkmcnt(0)")
    bar(0)
    q.wait("x2")
    stamp("dl_x2")
    weave(cap(lambda: fold(2)), xl(4) if LX < 1 else [])
    stamp("dl_f2")
    poll_issue(46, 1, 15, WS_FS); q.issue("p")
    e("s_waitcnt lgkmcnt(0)")
    bar(1)
    q.wait("x3")
    stamp("dl_x3")
    weave(cap(lambda: fold(3)), fl())
    stamp("dl_f3")
    q.wait("p")
    poll_check(46, 1, 15, WS_FS)
    aux_issue(False, 24); q.issue("aux")
    e("s_waitcnt lgkmcnt(0)")
    bar(2)
    gs = wspec_dma()
    if WSP == 2:
        weave(cap(lambda: fold(4)), gs)
        q.issue("w", 11)
    else:
        fold(4)
    q.wait("aux")
    aux_finish(False, 24)
    bar(3)
    poll_issue(41, 1, 10, WS_FW)
    if WSP == 0:
        weave([], gs)
    z_setup()
    wd_bases(sLW)
    e("v_lshlrev_b32 v5, 4, v0")
    if EST >= 3:
        if ECI:
            z_ci_sub(CI_EARLY)
            lab = A.newlabel("L_cil")
            e("s_bfe_u32 %s, s2, 0x10003", s(sTmp))
            e("s_add_u32 %s, %s, 2", s(sTmp), s(sTmp))
            e("s_cmp_lt_u32 %s, %s", s(sLW), s(sTmp))
            e("s_cbranch_scc1 %s", lab)
            z_ci_sub(CI_LATE)
            A.label(lab)
        if ZGL:
            e("v_mov_b32 v12, %d", LGO)
            lab = A.newlabel("L_zgl")
            A.label(lab)
            e("s_sleep 2")
            e("ds_read_b32 v13, v12 offset:12")
            e("s_waitcnt lgkmcnt(0)")
            e("v_cmp_ne_u32 vcc, 1, v13")
            e("s_cbranch_vccnz %s", lab)
        z_gconst()
        stamp("dl_g")
        e("s_branch L_dft_l")
        return
    if ECI == 2:
        z_ci_sub(CI_EARLY)
    if EST:
        e("s_waitcnt vmcnt(%d)", len(CI_EARLY) if ECI == 2 else 0)
        poll_check(41, 1, 10, WS_FW)
        stamp("dl_fw")
        stage_wd(0, 3)
    if ECI == 1:
        z_ci_sub(CI_EARLY)
    stamp("dl_st")
    z_gconst()
    stamp("dl_g")
    if not EST:
        e("s_waitcnt vmcnt(0)")
        poll_check(41, 1, 10, WS_FW)
    e("s_branch L_dft_l")


def addr_advance(regs):
    e("s_add_u32 %s, %s, %d", s(sBuf), s(sBuf), SLAB)
    e("s_cmp_ge_u32 %s, %d", s(sBuf), 3 * SLAB)
    e("s_cselect_b32 %s, 0, %s", s(sBuf), s(sBuf))
    e("s_cselect_b32 %s, %d, %s", s(sDelta), (-2 * SLAB) & 0xffffffff, s(sSLAB))
    for r_ in regs:
        e("v_add_u32 %s, %s, %s", v(r_), s(sDelta), v(r_))


def gemm_loop(nslab, NT, mfmas, reads, need, areg, bar_gap, per_gap, last_extra=(), first_hook=None, peel=None, buf0=0, body=None, unroll=None, hooks=None, loop_from=None, fills=None, advf=None, last_bar=False):
    nreads = len(reads(0, 0))
    nm = len(need)

    def step(mf, nxt, first_gap=0, pre=None, barg=None):
        issued, done = 0, 0
        for m in range(nm):
            if need[m] > done:
                allowed = nreads - need[m] + issued
                e("s_waitcnt lgkmcnt(%d)", min(15, allowed))
                done = need[m] if allowed <= 15 else min(nreads, nreads + issued - 15)
            mf[m]()
            if pre and m in pre:
                for f in pre[m]:
                    f()
                if m == barg:
                    done = nreads
            if m >= first_gap:
                for k in range(per_gap):
                    if issued < len(nxt):
                        nxt[issued]()
                        issued += 1
        assert issued == len(nxt), (issued, len(nxt))

    def bar(vm=False):
        e("s_waitcnt lgkmcnt(0)%s", " vmcnt(0)" if vm else "")
        e("s_barrier")

    def merge(*ds):
        out = {}
        for d in ds:
            for k, x in d.items():
                out.setdefault(k, [])
                out[k] += x
        return out

    def spread(ops):
        out = {}
        for n, f in enumerate(ops):
            g = nm - 1 - (len(ops) - 1 - n) * max(1, (nm - bar_gap - 1) // max(1, len(ops)))
            out.setdefault(max(g, 0), []).append(f)
        return out

    def slab(last, peeled=False):
        if peeled:
            for t in range(NT - 1):
                step(mfmas(t & 1, t == 0), reads((t + 1) & 1, t + 1), pre=peel[t])
            step(mfmas(1), reads(0, 0), first_gap=bar_gap + (1 if bar_gap else 0),
                 pre=merge({0: [lambda: addr_advance(areg)]}, {bar_gap: [lambda: bar(True)]}, peel[NT - 1]), barg=bar_gap)
            return
        ex = list(last_extra) if last else []
        per = (len(ex) + NT - 1) // NT
        for t in range(NT - 1):
            step(mfmas(t & 1), reads((t + 1) & 1, t + 1), pre=merge(spread(ex[t * per:(t + 1) * per]), body[t] if body and not last else {}))
        if last:
            step(mfmas(1), [], pre=spread(ex[(NT - 1) * per:]))
        else:
            hooks = {bar_gap: ([first_hook[0]] if first_hook else []) + [bar] + ([first_hook[1]] if first_hook else [])}
            step(mfmas(1), reads(0, 0), first_gap=bar_gap + (1 if bar_gap else 0), pre=merge({0: [lambda: addr_advance(areg)]}, hooks, body[NT - 1] if body else {}), barg=bar_gap)
    e("s_mov_b32 %s, %d", s(sBuf), buf0)
    e("s_mov_b32 %s, %d", s(sSLAB), SLAB)
    e("s_mov_b32 %s, 0", s(sCnt))
    e("s_waitcnt lgkmcnt(0)%s", " vmcnt(%d)" % unroll[0][0] if unroll and unroll[0][0] is not None else "")
    make_tag()
    e("s_barrier")
    stamp("c_bi")
    for f in reads(0, 0):
        f()
    if unroll:
        ops = unroll[0][1]
        for i in range(nslab):
            if loop_from is not None and loop_from < i < nslab - 1:
                continue
            if loop_from is not None and i == loop_from:
                e("s_mov_b32 %s, %d", s(sBuf), ((buf0 // SLAB + i) % 3) * SLAB)
                e("s_mov_b32 %s, %d", s(sCnt), i)
                lab = A.newlabel("L_gemm")
                A.label(lab)
                slab(False)
                e("s_add_u32 %s, %s, 1", s(sCnt), s(sCnt))
                e("s_cmp_lt_u32 %s, %d", s(sCnt), nslab - 1)
                e("s_cbranch_scc1 %s", lab)
                continue
            per = (len(ops) + NT - 2) // (NT - 1)
            hk = hooks[i] if hooks else [{}] * NT
            if fills:
                gs = fills(i)
                ngap = (NT - 1) * nm
                hk = [{} for _ in range(NT)]
                for k, g in enumerate(gs):
                    pos = min(ngap - 1, k * ngap // max(1, len(gs)))
                    hk[pos // nm].setdefault(pos % nm, []).append(lambda g=g: A.lines.extend(g))
            for t in range(NT - 1):
                step(mfmas(t & 1, i == 0 and t == 0), reads((t + 1) & 1, t + 1), pre=merge(spread(ops[t * per:(t + 1) * per]), hk[t]))
            if i == nslab - 1:
                if last_bar:
                    step(mfmas(1), [], pre={bar_gap: [bar]}, barg=bar_gap)
                else:
                    step(mfmas(1), [])
            else:
                vm, ops = unroll[i + 1]
                if callable(vm):
                    vm = vm()

                def ubar(vm=vm):
                    e("s_waitcnt lgkmcnt(0)%s", "" if vm is None else " vmcnt(%d)" % vm)
                    e("s_barrier")

                def adv(i=i):
                    if advf:
                        return advf(i)
                    nb = (buf0 // SLAB + i + 1) % 3
                    for r_ in areg:
                        e("v_add_u32 %s, %d, %s", v(r_), (SLAB if nb else -2 * SLAB) & 0xffffffff, v(r_))
                step(mfmas(1), reads(0, 0), first_gap=bar_gap + (1 if bar_gap else 0),
                     pre=merge({0: [adv]}, {bar_gap: [ubar]}, hk[NT - 1]), barg=bar_gap)
        stamp("c_le")
        return
    if peel:
        slab(False, True)
        e("s_mov_b32 %s, 1", s(sCnt))
    lab = A.newlabel("L_gemm")
    A.label(lab)
    slab(False)
    e("s_add_u32 %s, %s, 1", s(sCnt), s(sCnt))
    e("s_cmp_lt_u32 %s, %d", s(sCnt), nslab - 1)
    e("s_cbranch_scc1 %s", lab)
    slab(True)
    stamp("c_le")


vWD = [1, 2, 3, 4, 14]


def p3c_setup():
    p3_map()
    wd_bases(sW)
    e("s_lshl_b32 %s, %s, 6", s(sOo), s(sG3))
    e("s_mul_i32 %s, %s, %d", s(sHo), s(sP), 2 * 48 * 2048)
    e("s_lshl_b32 %s, %s, 11", s(sTmp), s(sW))
    e("s_add_u32 %s, %s, %s", s(sHo), s(sHo), s(sTmp))
    e("s_and_b32 %s, %s, 1", s(sTmp), s(sW))
    e("s_lshl_b32 %s, %s, 10", s(sTmp), s(sTmp))
    e("s_lshl_b32 %s, %s, 1", s(sTmp2), s(sP))
    e("s_add_u32 %s, %s, %s", s(sTmp), s(sTmp), s(sTmp2))
    e("s_lshr_b32 %s, %s, 1", s(sTmp2), s(sW))
    e("s_add_u32 %s, %s, %s", s(sTmp), s(sTmp), s(sTmp2))
    e("s_mul_i32 %s, %s, 1280", s(sTmp), s(sTmp))
    e("s_add_u32 %s, %s, %s", s(sOo), s(sOo), s(sTmp))
    e("s_add_u32 %s, %s, %s", s(sOc), s(sOc), s(sTmp))


def fh_addr():
    e("s_lshl_b32 %s, %s, 1", s(sTmp), s(sP))
    e("s_lshr_b32 %s, %s, 1", s(sTmp2), s(sW))
    e("s_add_u32 %s, %s, %s", s(sTmp), s(sTmp), s(sTmp2))
    e("s_mul_i32 %s, %s, 12", s(sTmp), s(sTmp))
    e("v_min_u32 v5, 11, v0")
    e("v_add_u32 v5, %s, v5", s(sTmp))
    e("v_lshlrev_b32 v3, 7, v5")


sHr = [50, 51, 52, 53]


def p3_pre():
    vL = 1
    e("v_lshlrev_b32 %s, 4, v0", v(vL))
    for rho in range(4):
        e("s_add_u32 %s, %s, %d", s(sTmp), s(sW), rho)
        e("s_bfe_u32 %s, %s, 0x10001", s(sTmp2), s(sTmp))
        e("s_mul_i32 %s, %s, %d", s(sTmp2), s(sTmp2), 48 * 2048)
        e("s_and_b32 %s, %s, 1", s(sTmp), s(sTmp))
        e("s_lshl_b32 %s, %s, 10", s(sTmp), s(sTmp))
        e("s_add_u32 %s, %s, %s", s(sTmp), s(sTmp), s(sTmp2))
        e("s_add_u32 %s, %s, %s", s(sTmp), s(sTmp), s(sHo))
        e("s_add_u32 %s, %s, %d", s(sHr[rho]), s(sTmp), WS_H)

    rot3()


def hload_(i):
    item4(i, sRZ)
    e("s_lshl_b32 %s, %s, 1", s(sRZ), s(sRZ))
    for rho in range(4):
        e("s_add_u32 %s, %s, %s", s(sTmp), s(sHr[rho]), s(sRZ))
        e("buffer_load_dwordx4 %s, v1, %s, %s offen sc1", v(8 + (i % 4) * 36 + 20 + rho * 4, 4), s(sWS, 4), s(sTmp))


def p3c():
    vL, vO, vPH, vWJ = 1, 2, 3, 4
    RS, XR, WJ, ACC = 8, 8, 152, 176
    NI = 12
    q = VQ()
    def wload(i, ct):
        if ct == 0:
            item4(i, sI4)
            e("s_add_u32 %s, %s, %s", s(sTmp2), s(sI4), s(sWa))
        if ct < 4:
            e("s_add_u32 %s, %s, %d", s(sTmp), s(sTmp2), WOFF[ct][1])
        else:
            e("s_add_u32 %s, %s, %s", s(sTmp), s(sI4), s(sWc))
        e("buffer_load_dwordx4 %s, %s, %s, %s offen sc1", v(RS + (i % 4) * 36 + ct * 4, 4), v(vL), s(sWS, 4), s(sTmp))
        q.issue("i%d" % i)

    def hload(i):
        hload_(i)
        q.issue("i%d" % i, 4)

    def wj(i, ct):
        e("ds_read_b128 %s, %s offset:%d", v(WJ + 4 * ct, 4), v(vWJ), i * 5120 + ct * 1024)
    stamp("p3_in")
    if not XQ:
        e("v_and_b32 v5, 15, v0")
        e("v_mul_u32_u24 v5, 81920, v5")
        e("v_lshrrev_b32 v6, 4, v0")
        e("v_lshl_add_u32 %s, v6, 3, v5", v(vO))
    fh_addr()
    e("s_mul_i32 %s, %s, %d", s(sTmp), s(sW), CPS)
    e("s_add_u32 %s, %s, %d", s(sTmp), s(sTmp), CP0)
    e("v_add_u32 %s, %s, %s", v(vWJ), s(sTmp), v(vL))
    lab = A.newlabel("L_nofh")
    e("s_cmp_ge_u32 s2, 192")
    e("s_cbranch_scc1 %s", lab)
    e("v_mov_b32 v7, %d", LGO)
    e("v_mov_b32 v172, 1")
    e("s_waitcnt vmcnt(0)")
    flag_store(sFlag, 5, 6)
    e("s_mov_b64 exec, 1")
    e("ds_add_u32 v7, v172 offset:4")
    e("s_mov_b64 exec, -1")
    if EFH:
        poll_issue(7, 1, vPH, WS_FH)
        e("s_waitcnt vmcnt(0)")
    A.label(lab)
    stamp("p3_fl")
    if not EFH:
        poll_issue(7, 1, vPH, WS_FH)
    e("s_lshl_b32 %s, %s, 2", s(sTmp), s(sW))
    e("s_add_u32 %s, %s, %d", s(sTmp), s(sTmp), LGO + 16)
    e("v_mov_b32 v5, %s", s(sTmp))
    late, join = A.newlabel("L_hlate"), A.newlabel("L_hjoin")
    if not EFH:
        e("s_waitcnt vmcnt(0)")
    early = A.newlabel("L_hearly")
    if EH:
        e("s_cmp_eq_u32 %s, 2", s(sNU))
        e("s_cbranch_scc1 %s", early)
    e("v_cmp_ne_u32 vcc, %s, v7", s(sTAG))
    e("s_cbranch_vccnz %s", late)
    for i in range(EH):
        hload(i)
    A.label(early)
    e("s_mov_b32 %s, 1", s(sNU))
    for i in range(EH, 4):
        hload(i)
    for i in range(4, 8):
        for ct in range(5):
            wload(i, ct)
    e("s_branch %s", join)
    A.label(late)
    e("s_mov_b32 %s, 0", s(sNU))
    for i in range(4, 8):
        for ct in range(5):
            wload(i, ct)
    poll_check(7, 1, vPH, WS_FH)
    stamp("hp")
    q.drain()
    for i in range(4):
        hload(i)
    A.label(join)
    stamp("p3_fh")

    def staged(br):
        lab, skip = A.newlabel("L_wst"), A.newlabel("L_wsk")
        if br:
            e("s_cmp_ge_u32 s2, 192")
            e("%s %s", br, skip)
        A.label(lab)
        e("ds_read_b32 v6, v5")
        e("s_waitcnt lgkmcnt(0)")
        e("v_cmp_eq_u32 vcc, 0, v6")
        e("s_cbranch_vccnz %s", lab)
        A.label(skip)
    staged("s_cbranch_scc1" if EST else None)
    for ct in range(5):
        wj(0, ct)
    OFF = [(sOo, 0), (sOo, 32), (sOo, 640), (sOo, 672), (sOc, 0)]
    vXC, vD, vD1, vDC = 172, 173, 174, 175

    def xq_addr():
        e("v_lshrrev_b32 v6, 2, v0")
        e("v_mul_u32_u24 v6, 81920, v6")
        e("v_lshrrev_b32 v7, 4, v0")
        e("v_xor_b32 v7, v7, v0")
        e("v_and_b32 v7, 3, v7")
        e("v_lshl_add_u32 %s, v7, 4, v6", v(vO))
        e("v_bfe_u32 v6, v0, 1, 4")
        e("v_mul_u32_u24 v6, 81920, v6")
        e("v_and_b32 v7, 1, v0")
        e("v_lshl_add_u32 %s, v7, 4, v6", v(vXC))
        e("s_mul_i32 %s, %s, %d", s(sTB), s(sW), CPS)
        e("s_add_u32 %s, %s, %d", s(sTB), s(sTB), CP0 + 15360)
        e("v_and_b32 v6, 15, v0")
        e("v_lshrrev_b32 v7, 4, v0")
        e("v_lshlrev_b32 %s, 5, v6", v(vDC))
        e("v_lshl_add_u32 %s, v7, 3, %s", v(vDC), v(vDC))
        e("v_add_u32 %s, %s, %s", v(vDC), s(sTB), v(vDC))
        e("v_lshlrev_b32 v6, 6, v6")
        e("v_and_b32 v7, 1, v7")
        e("v_lshl_add_u32 v6, v7, 3, v6")
        e("v_lshrrev_b32 v7, 5, v0")
        e("v_bfe_u32 %s, v0, 2, 2", v(vD))
        e("v_xor_b32 v7, v7, %s", v(vD))
        e("v_lshl_add_u32 v6, v7, 4, v6")
        e("v_add_u32 %s, %s, v6", v(vD), s(sTB))
        e("v_xor_b32 %s, 32, %s", v(vD1), v(vD))

    def dl(ct): return ((vD, vD1)[ct & 1], (ct >> 1) * 1024) if ct < 4 else (vDC, 2048)

    def x_dma(k):
        e("s_add_u32 m0, %s, %d", s(sTB), k * 1024)
        if k < 2:
            e("buffer_load_dwordx4 %s, %s, %s offen offset:%d lds", v(vO), s(sX, 4), s(sOo), 0) if k == 0 else None
            if k == 1:
                e("s_add_u32 %s, %s, 640", s(sTmp), s(sOo))
                e("buffer_load_dwordx4 %s, %s, %s offen lds", v(vO), s(sX, 4), s(sTmp))
        else:
            e("s_mov_b32 exec_hi, 0")
            e("buffer_load_dwordx4 %s, %s, %s offen lds", v(vXC), s(sX, 4), s(sOc))
            e("s_mov_b32 exec_hi, -1")
        q.issue("x")

    def acc(ct, rt): return ACC + (ct * 4 + rt) * 4
    for i in range(NI):
        rs = RS + (i % 4) * 36
        if i < 4:
            la, lb = A.newlabel("L_w3"), A.newlabel("L_w3")
            e("s_cmp_eq_u32 %s, 0", s(sNU))
            e("s_cbranch_scc1 %s", la)
            e("s_waitcnt vmcnt(32)")
            e("s_branch %s", lb)
            A.label(la)
            q.wait("i%d" % i)
            A.label(lb)
        else:
            q.wait("i%d" % i)
        stamp("i%d" % i)
        if XQ and i == 10:
            for ct in range(5):
                e("ds_read_b64 %s, %s offset:%d", v(XR + 2 * ct, 2), v(dl(ct)[0]), dl(ct)[1])
        if XQ and i == 11:
            e("s_waitcnt lgkmcnt(0)")
        if i == 2 and EST:
            staged("s_cbranch_scc0")
        for ct in range(5):
            if i < 4:
                e("s_waitcnt lgkmcnt(%d)", 4 if i < 3 else 4 - ct)
            for rt in range(4):
                mm16(acc(ct, rt), WJ + 4 * ct if i < 4 else rs + 4 * ct, rs + 20 + 4 * rt, i == 0)
            if i < 3:
                wj(i + 1, ct)
            if 4 <= i < 8:
                wload(i + 4, ct)
            if i == NI - 1 and FIL and ct >= 2:
                for rho in range(1, 4):
                    e("ds_write_b128 %s, %s offset:%d", v(vWJ), v(acc(ct - 2, rho), 4), (rho - 1) * 5120 + (ct - 2) * 1024)
            if XQ and i == 3 and ct == 0:
                xq_addr()
            if XQ and i == 4 and ct >= 2:
                x_dma(ct - 2)
            if i == 9 and not XQ:
                e("buffer_load_dwordx2 %s, %s, %s, %s offen offset:%d", v(XR + 2 * ct, 2), v(vO), s(sX, 4), s(OFF[ct][0]), OFF[ct][1])
                q.issue("x")
        if i + 4 < NI:
            hload(i + 4)
    for rho in range(1, 4):
        e("s_sub_u32 %s, %s, %d", s(sTmp), s(sW), rho)
        e("s_and_b32 %s, %s, 3", s(sTmp), s(sTmp))
        e("s_mul_i32 %s, %s, %d", s(sTmp), s(sTmp), CPS)
        e("s_add_u32 %s, %s, %d", s(sTmp), s(sTmp), CP0 + (rho - 1) * 5120)
        e("v_add_u32 %s, %s, %s", v(40 + rho), s(sTmp), v(vL))
    for ct in range(3 if FIL else 0, 5):
        for rho in range(1, 4):
            e("ds_write_b128 %s, %s offset:%d", v(vWJ), v(acc(ct, rho), 4), (rho - 1) * 5120 + ct * 1024)
    e("s_lshl_b32 %s, %s, 10", s(sTmp), s(sW))
    e("v_add_u32 v40, %s, %s", s(sTmp), v(vL))
    e("s_waitcnt vmcnt(0)")
    for ct in range(5):
        x0, b = XR + 2 * ct, 20 + 4 * ct
        e("v_lshlrev_b32 %s, 16, %s", v(b), v(x0))
        e("v_and_b32 %s, 0xffff0000, %s", v(b + 1), v(x0))
        e("v_lshlrev_b32 %s, 16, %s", v(b + 2), v(x0 + 1))
        e("v_and_b32 %s, 0xffff0000, %s", v(b + 3), v(x0 + 1))
        for k in (0, 2):
            e("v_pk_add_f32 %s, %s, %s", v(acc(ct, 0) + k, 2), v(acc(ct, 0) + k, 2), v(b + k, 2))
    e("s_waitcnt lgkmcnt(0)")
    stamp("p3_end")
    e("s_barrier")
    stamp("p3_bar")
    LP = 48
    for c3 in range(3):
        for lw in range(4):
            e("ds_read_b128 %s, v40 offset:%d", v(LP + (c3 * 4 + lw) * 4, 4), ZU0 + lw * ZUS + c3 * 4096)
    for ct in range(5):
        for k in range(1, 4):
            e("ds_read_b128 %s, %s offset:%d", v(acc(ct, k), 4), v(40 + k), ct * 1024)
    e("s_waitcnt lgkmcnt(15)")
    for c3 in range(3):
        b = LP + c3 * 16
        for k in (0, 2):
            e("v_pk_add_f32 %s, %s, %s", v(b + k, 2), v(b + k, 2), v(b + 8 + k, 2))
            e("v_pk_add_f32 %s, %s, %s", v(b + 4 + k, 2), v(b + 4 + k, 2), v(b + 12 + k, 2))
        for k in (0, 2):
            if c3 < 2:
                e("v_pk_add_f32 %s, %s, %s neg_lo:[0,1] neg_hi:[0,1]", v(b + 8 + k, 2), v(b + k, 2), v(b + 4 + k, 2))
            e("v_pk_add_f32 %s, %s, %s", v(b + k, 2), v(b + k, 2), v(b + 4 + k, 2))
    zsrc = [LP, LP + 16, LP + 8, LP + 24, LP + 32]
    extra = 0
    for ct in range(5):
        b = acc(ct, 0)
        e("s_waitcnt lgkmcnt(%d)", 12 - 3 * ct + extra)
        for k in (0, 2):
            e("v_pk_add_f32 %s, %s, %s", v(b + k, 2), v(b + k, 2), v(zsrc[ct] + k, 2))
            e("v_pk_add_f32 %s, %s, %s", v(b + 4 + k, 2), v(b + 4 + k, 2), v(b + 8 + k, 2))
        for k in (0, 2):
            e("v_pk_add_f32 %s, %s, %s", v(b + k, 2), v(b + k, 2), v(b + 12 + k, 2))
        for k in (0, 2):
            e("v_pk_add_f32 %s, %s, %s", v(b + k, 2), v(b + k, 2), v(b + 4 + k, 2))
        e("v_cvt_pk_bf16_f32 %s, %s, %s", v(b + 8), v(b), v(b + 1))
        e("v_cvt_pk_bf16_f32 %s, %s, %s", v(b + 9), v(b + 2), v(b + 3))
        if not XQ:
            e("buffer_store_dwordx2 %s, %s, %s, %s offen offset:%d%s", v(b + 8, 2), v(vO), s(sOUT, 4), s(OFF[ct][0]), OFF[ct][1], OUTF)
            continue
        e("ds_write_b64 %s, %s offset:%d", v(dl(ct)[0]), v(b + 8, 2), dl(ct)[1] + 2560)
        extra += 1
        if ct in (1, 3, 4):
            e("ds_read_b128 %s, %s offset:%d", v(8 + 4 * (ct >> 1), 4), v(vWJ), 15360 + 2560 + (ct >> 1) * 1024)
            extra += 1
        if ct == 3:
            e("s_waitcnt lgkmcnt(3)")
            e("buffer_store_dwordx4 v[8:11], %s, %s, %s offen%s", v(vO), s(sOUT, 4), s(sOo), OUTF)
        if ct == 4:
            e("s_waitcnt lgkmcnt(2)")
            e("buffer_store_dwordx4 v[12:15], %s, %s, %s offen offset:640%s", v(vO), s(sOUT, 4), s(sOo), OUTF)
            e("s_waitcnt lgkmcnt(0)")
            e("s_mov_b32 exec_hi, 0")
            e("buffer_store_dwordx4 v[16:19], %s, %s, %s offen%s", v(vXC), s(sOUT, 4), s(sOc), OUTF)
            e("s_mov_b32 exec_hi, -1")
    lab = A.newlabel("L_noep")
    e("s_lshl_b32 %s, s2, 3", s(sTmp))
    e("s_add_u32 %s, %s, %s", s(sTmp), s(sTmp), s(sW))
    e("s_cmp_eq_u32 %s, 0", s(sTmp))
    e("s_cbranch_scc0 %s", lab)
    e("s_mov_b32 %s, 0x%x", s(sTmp), WS_EP)
    flag_store(sTmp, 5, 6)
    A.label(lab)


def pf3(part):
    e("s_lshr_b32 %s, s2, 3", s(sCnt))
    e("s_lshl_b32 %s, %s, 2", s(sCnt), s(sCnt))
    e("s_add_u32 %s, %s, %s", s(sCnt), s(sCnt), s(sLW))
    ntau = 40 if MAP8 else 20
    n = 0
    if part == 0:
        per = (ntau * 256 + 95) // 96
        for k in range((per + 63) // 64):
            e("s_mul_i32 %s, %s, %d", s(sTmp), s(sCnt), per)
            e("v_min_u32 v12, %d, v0", min(63, per - 64 * k - 1))
            e("v_add_u32 v12, %s, v12", s(sTmp))
            if k:
                e("v_add_u32 v12, %d, v12", 64 * k)
            e("v_lshrrev_b32 v13, 8, v12")
            e("v_and_b32 v12, 255, v12")
            if not MAP8:
                e("s_and_b32 %s, s2, 1", s(sTmp))
                e("s_lshl_b32 %s, %s, 3", s(sTmp2), s(sTmp))
                e("s_lshl_b32 %s, %s, 1", s(sTmp), s(sTmp))
                e("s_add_u32 %s, %s, 16", s(sTmp), s(sTmp))
                e("v_cmp_gt_u32 vcc, 16, v13")
                e("v_and_b32 v14, 7, v13")
                e("v_add_u32 v14, %s, v14", s(sTmp2))
                e("v_bfe_u32 v17, v13, 3, 1")
                e("v_mad_u32_u24 v14, v17, 20, v14")
                e("v_and_b32 v16, 1, v13")
                e("v_add_u32 v16, %s, v16", s(sTmp))
                e("v_bfe_u32 v17, v13, 1, 1")
                e("v_mad_u32_u24 v16, v17, 20, v16")
                e("v_cndmask_b32 v13, v16, v14, vcc")
            e("v_mul_u32_u24 v13, 49152, v13")
            e("v_lshl_add_u32 v60, v12, 7, v13")
            n += 1
    else:
        per = (4032 if MAP8 else 2016) // 96
        e("s_mul_i32 %s, %s, %d", s(sTmp), s(sCnt), per * 128)
        if not MAP8:
            e("s_and_b32 %s, s2, 1", s(sTmp2))
            e("s_mul_i32 %s, %s, %d", s(sTmp2), s(sTmp2), 4 * 63 * 1024)
            e("s_add_u32 %s, %s, %s", s(sTmp), s(sTmp), s(sTmp2))
        e("s_add_u32 %s, %s, %d", s(sTmp), s(sTmp), TB.CI_OFF)
        e("v_min_u32 v12, %d, v0", per - 1)
        e("v_lshlrev_b32 v12, 7, v12")
        e("v_add_u32 v61, %s, v12", s(sTmp))
        n = 1
    assert n == 1


def pf3_go(q, m):
    if m & 1:
        e("buffer_load_dword v63, v61, %s, 0 offen", s(sTAB, 4))
        q.issue("pf")
    if m & 2:
        e("s_mov_b32 %s, 0x%x", s(sTmp), WS_WD + 16384)
        e("buffer_load_dword v62, v60, %s, %s offen sc1", s(sWS, 4), s(sTmp))
        q.issue("pf")


def code_touch():
    lab = A.newlabel("L_ct")
    e("s_getpc_b64 s[4:5]")
    A.label(lab)
    e("s_sub_u32 s4, s4, %s - %s", lab, NAME + "_kernel")
    e("s_subb_u32 s5, s5, 0")
    e("s_mov_b32 %s, s4", s(sG))
    e("s_and_b32 %s, s5, 0xffff", s(sG + 1))
    e("s_mov_b32 %s, L_code_end - %s", s(sG + 2), NAME + "_kernel")
    e("s_mov_b32 %s, 0x00020000", s(sG + 3))
    if CT == 3:
        e("s_lshr_b32 %s, s2, 3", s(sTmp))
    else:
        e("s_bfe_u32 %s, s2, 0x30003", s(sTmp))
        e("s_lshl_b32 %s, %s, 2", s(sTmp), s(sTmp))
        e("s_add_u32 %s, %s, %s", s(sTmp), s(sTmp), s(sW))
    e("s_lshl_b32 %s, %s, 11", s(sTmp), s(sTmp))
    e("v_and_b32 v5, 15, v0")
    e("v_lshlrev_b32 v5, 7, v5")
    e("buffer_load_dword v15, v5, %s, %s offen", s(sG, 4), s(sTmp))


def warm_touch():
    e("s_lshl_b32 %s, s2, 1", s(sTmp))
    e("s_and_b32 %s, %s, 1", s(sTmp2), s(sLW))
    e("s_add_u32 %s, %s, %s", s(sTmp), s(sTmp), s(sTmp2))
    e("s_mul_i32 %s, %s, %d", s(sTmp), s(sTmp), 27 * 128)
    e("v_min_u32 v12, 26, v0")
    e("v_lshlrev_b32 v12, 7, v12")
    lab, lab2 = A.newlabel("L_wt"), A.newlabel("L_wt")
    e("s_cmp_ge_u32 %s, 2", s(sLW))
    e("s_cbranch_scc1 %s", lab)
    e("buffer_load_dword v250, v12, %s, %s offen", s(sWR, 4), s(sTmp))
    e("s_branch %s", lab2)
    A.label(lab)
    e("buffer_load_dword v250, v12, %s, %s offen", s(sWI, 4), s(sTmp))
    A.label(lab2)
    e("s_lshl_b32 %s, s2, 2", s(sTmp))
    e("s_add_u32 %s, %s, %s", s(sTmp), s(sTmp), s(sLW))
    e("s_mul_i32 %s, %s, %d", s(sTmp), s(sTmp), 6 * 128)
    e("s_add_u32 %s, %s, %d", s(sTmp), s(sTmp), TB.CI_OFF)
    e("v_min_u32 v12, 5, v0")
    e("v_lshlrev_b32 v12, 7, v12")
    e("buffer_load_dword v251, v12, %s, %s offen", s(sTAB, 4), s(sTmp))


def p1_ffn():
    vXA, vWA, FR, ACC = 8, 10, 16, 112

    def tab_touch():
        tab_srd()
        e("s_lshr_b32 %s, s2, 3", s(sJB))
        e("s_lshl_b32 %s, %s, 2", s(sJB), s(sJB))
        e("s_add_u32 %s, %s, %s", s(sJB), s(sJB), s(sW))
        e("s_mul_i32 %s, %s, 9", s(sTmp), s(sJB))
        e("v_min_u32 v5, 8, v0")
        e("v_add_u32 v5, %s, v5", s(sTmp))
        e("v_min_u32 v5, 799, v5")
        e("v_lshlrev_b32 v5, 7, v5")
        e("s_bfe_u32 %s, s2, 0x20001", s(sTmp))
        e("s_mul_i32 %s, %s, 102400", s(sTmp), s(sTmp))
        e("buffer_load_dword v1, v5, %s, %s offen", s(sTAB, 4), s(sTmp))
    if XT & 8:
        tab_touch()
    stats_addr(16)
    e("s_and_b32 %s, %s, 1", s(sWM), s(sW))
    e("s_lshr_b32 %s, %s, 1", s(sWN), s(sW))
    karg_wait(["X"], ["WS", "OUT"])
    lab = A.newlabel("L_nost")
    e("s_cmp_ge_u32 %s, 8", s(sCG))
    e("s_cbranch_scc1 %s", lab)
    stats_issue(16)
    A.label(lab)
    e("s_lshl_b32 %s, %s, 3", s(sFlag), s(sRB))
    e("s_add_u32 %s, %s, %s", s(sFlag), s(sFlag), s(sCG))
    e("s_lshl_b32 %s, %s, 7", s(sFlag), s(sFlag))
    e("s_add_u32 %s, %s, 0x%x", s(sFlag), s(sFlag), WS_FS)
    p3c_setup()
    e("v_and_b32 v5, 15, v0")
    e("v_lshlrev_b32 v5, 7, v5")
    e("s_lshl_b32 %s, %s, 13", s(sTmp), s(sWM))
    e("v_add_u32 v5, %s, v5", s(sTmp))
    e("v_lshrrev_b32 v6, 4, v0")
    e("v_bfe_u32 v7, v0, 1, 3")
    e("v_xor_b32 v6, v6, v7")
    e("v_lshl_add_u32 %s, v6, 4, v5", v(vXA))
    e("v_xor_b32 %s, 64, %s", v(vXA + 1), v(vXA))
    e("v_lshrrev_b32 v5, 4, v0")
    e("v_bfe_u32 v6, v0, 2, 2")
    e("v_lshl_add_u32 v7, v5, 3, v6")
    e("v_lshlrev_b32 v7, 8, v7")
    e("v_and_b32 v5, 1, v5")
    e("v_lshl_add_u32 v5, v6, 1, v5")
    e("s_lshl_b32 %s, %s, 2", s(sTmp), s(sWN))
    e("v_xor_b32 v5, %s, v5", s(sTmp))
    e("v_lshl_add_u32 v7, v5, 5, v7")
    e("v_and_b32 v6, 3, v0")
    e("v_lshl_add_u32 %s, v6, 3, v7", v(vWA))
    for ft in range(1, 4):
        e("v_xor_b32 %s, %d, %s", v(vWA + ft), ft << 5, v(vWA))
    nt = 0
    if XT & 1:
        e("s_lshr_b32 %s, s2, 6", s(sTmp))
        e("s_lshl_b32 %s, %s, 2", s(sTmp), s(sTmp))
        e("s_add_u32 %s, %s, %s", s(sTmp), s(sTmp), s(sW))
        e("s_mul_i32 %s, %s, 107", s(sTmp), s(sTmp))
        e("s_mul_i32 %s, %s, 5120", s(sTmp2), s(sRB))
        for k in range(2):
            e("v_min_u32 v5, %d, v0", 63 if k == 0 else 42)
            e("v_add_u32 v5, %s, v5", s(sTmp))
            if k:
                e("v_add_u32 v5, 64, v5")
            e("v_min_u32 v5, 0x4ff, v5")
            e("v_mul_u32_u24 v6, 6554, v5")
            e("v_lshrrev_b32 v6, 16, v6")
            e("v_mul_u32_u24 v7, 10, v6")
            e("v_sub_u32 v5, v5, v7")
            e("v_lshlrev_b32 v5, 7, v5")
            e("v_lshrrev_b32 v7, 2, v6")
            e("v_mul_u32_u24 v7, 81920, v7")
            e("v_add_u32 v5, v5, v7")
            e("v_and_b32 v6, 3, v6")
            e("v_mul_u32_u24 v6, 1280, v6")
            e("v_add_u32 v5, v5, v6")
            e("buffer_load_dword v1, v5, %s, %s offen", s(sX, 4), s(sTmp2))
        nt += 2
    if XT & 2 and not XT & 8:
        tab_touch()
        nt += 1
    if XT & 4:
        e("s_mul_i32 %s, %s, %d", s(sTmp), s(sJB), 21 * 128)
        e("s_and_b32 %s, s2, 1", s(sTmp2))
        e("s_mul_i32 %s, %s, %d", s(sTmp2), s(sTmp2), 4 * 63 * 1024)
        e("s_add_u32 %s, %s, %s", s(sTmp), s(sTmp), s(sTmp2))
        e("s_add_u32 %s, %s, %d", s(sTmp), s(sTmp), TB.CI_OFF)
        e("v_min_u32 v5, 20, v0")
        e("v_lshlrev_b32 v5, 7, v5")
        e("v_add_u32 v5, %s, v5", s(sTmp))
        e("s_and_b32 %s, %s, 63", s(sTmp), s(sJB))
        e("s_lshl_b32 %s, %s, 7", s(sTmp), s(sTmp))
        e("s_add_u32 %s, %s, %d", s(sTmp), s(sTmp), TB.F64_OFF)
        e("v_mov_b32 v6, %s", s(sTmp))
        e("v_cmp_lt_u32 vcc, 31, v0")
        e("v_cndmask_b32 v5, v5, v6, vcc")
        e("buffer_load_dword v1, v5, %s, 0 offen", s(sTAB, 4))
        nt += 1
    lab = A.newlabel("L_nost")
    e("s_cmp_ge_u32 %s, 8", s(sCG))
    e("s_cbranch_scc1 %s", lab)
    e("s_waitcnt vmcnt(%d)", nt)
    stats_compute(16)
    A.label(lab)
    k_offset(sK1)
    e("s_bfe_u32 %s, s2, 0x20004", s(sPar))
    e("s_add_u32 %s, %s, %s", s(sK1), s(sK1), s(sPar))
    if KG:
        mod10(sK1)
    e("s_mul_i32 %s, %s, 12288", s(sK1), s(sK1))
    e("s_lshl_b32 %s, %s, 2", s(sTmp), s(sCG))
    e("s_lshl_b32 %s, %s, 1", s(sTmp2), s(sWM))
    e("s_add_u32 %s, %s, %s", s(sTmp), s(sTmp), s(sTmp2))
    e("s_add_u32 %s, %s, %s", s(sTmp), s(sTmp), s(sWN))
    e("s_lshl_b32 %s, %s, 8", s(sTmp), s(sTmp))
    e("s_add_u32 %s, %s, %s", s(sK1), s(sK1), s(sTmp))
    e("s_add_u32 %s, %s, 0x%x", s(sK1), s(sK1), WS_CSP)
    e("s_bfe_u32 %s, s2, 0x30003", s(sTmp))
    e("s_cmp_ge_u32 %s, 5", s(sTmp))
    e("s_cselect_b32 %s, 100, %s", s(sPar), s(sPar))
    e("s_cmp_lg_u32 %s, 0", s(sW))
    e("s_cselect_b32 %s, 100, %s", s(sNU), s(sPar))
    for i in range(4):
        e("v_mov_b32 %s, 0x3f803f80", v(2 + i))
    e("v_and_b32 v14, 48, v0")
    stamp("c_set")

    def stat_flag():
        e("s_lshr_b32 %s, %s, 3", s(sTmp), s(sCG))
        e("s_or_b32 %s, %s, %s", s(sTmp), s(sTmp), s(sW))
        rare("s_cbranch_scc0", lambda: flag_store(sFlag, 6, 7))

    def cs_mfma(it, p):
        def body():
            la, lb = A.newlabel("L_csm"), A.newlabel("L_csm")
            e("s_cmp_eq_u32 %s, 1", s(sWM))
            e("s_cbranch_scc1 %s", la)
            for mat in range(2):
                if mat:
                    e("s_branch %s", lb)
                    A.label(la)
                for ft in range(4):
                    mm16(240 + 4 * ft, wf(p, mat, ft), 2, p == 0)
            A.label(lb)
        e("s_cmp_eq_u32 %s, %d", s(sPar), it)
        rare("s_cbranch_scc1", body)

    def cs_store(it):
        def body():
            e("s_mov_b32 exec_lo, 0x00010001")
            e("s_mov_b32 exec_hi, 0x00010001")
            for ft in range(4):
                e("buffer_store_dwordx4 %s, v14, %s, %s offen offset:%d sc1", v(240 + 4 * ft, 4), s(sWS, 4), s(sK1), ft * 64)
            e("s_mov_b64 exec, -1")
        e("s_cmp_eq_u32 %s, %d", s(sPar), it)
        rare("s_cbranch_scc1", body)

    def cs_wait(it):
        e("s_cmp_eq_u32 %s, %d", s(sPar), it)
        rare("s_cbranch_scc1", lambda: e("s_waitcnt vmcnt(0)"))

    def cs_flag(it):
        def body():
            e("s_lshl_b32 %s, s2, 7", s(sTmp))
            e("s_add_u32 %s, %s, 0x%x", s(sTmp), s(sTmp), WS_FSC)
            flag_store(sTmp, 6, 7)
        e("s_cmp_eq_u32 %s, %d", s(sNU), it)
        rare("s_cbranch_scc1", body)

    def acc(mat, ft, st): return ACC + ((mat * 4 + ft) * 4 + st) * 4
    def xf(p, st): return FR + p * 48 + st * 4
    def wf(p, mat, ft): return FR + p * 48 + 16 + (mat * 4 + ft) * 4
    keys = [("x", 0), ("w", 0, 0), ("w", 0, 0), ("x", 1), ("x", 2), ("x", 3)]
    for ft in range(4):
        for mat in range(2):
            if (mat, ft) != (0, 0):
                keys += [("w", mat, ft)] * 2

    def reads(p, t):
        out, seen = [], {}
        for k in keys:
            if k[0] == "x":
                out.append(lambda st=k[1]: e("ds_read_b128 %s, %s offset:%d", v(xf(p, st), 4), v(vXA + t), st * 2048))
            else:
                rd = seen.get(k, 0); seen[k] = rd + 1
                out.append(lambda mat=k[1], ft=k[2], rd=rd: e("ds_read_b64_tr_b16 %s, %s offset:%d", v(wf(p, mat, ft) + 2 * rd, 2), v(vWA + ft), 16384 * (1 + mat) + t * 8192 + rd * 1024))
        return out
    morder, n = [], 0
    for ft in range(4):
        for mat in range(2):
            morder += [(mat, ft, st) for st in ([0, 1, 2, 3] if n % 2 == 0 else [3, 2, 1, 0])]
            n += 1
    need = [max(i + 1 for i, k in enumerate(keys) if k == ("x", m[2]) or k == ("w", m[0], m[1])) for m in morder]

    def mfmas(p, first=False):
        return [(lambda m=m: mm16(acc(*m), wf(p, m[0], m[1]), xf(p, m[2]), first)) for m in morder]
    hooks = []
    for it in range(10):
        h0, h1 = {}, {}
        if it < 3:
            h0[31] = [lambda it=it: cs_mfma(it, 0)]
            h1[8] = [lambda it=it: cs_mfma(it, 1)]
            h1[30] = [lambda it=it: cs_store(it)]
        if it == 0:
            h1[3] = [stat_flag]
        if 2 <= it <= 4:
            h1[2] = [lambda it=it: cs_wait(it - 2)]
            h1[3] = [lambda it=it: cs_flag(it - 2)]
        hooks.append([h0, h1])
    vmw = [0] + [None] * 9
    gemm_loop(10, 2, mfmas, reads, need, [8, 9, 10, 11, 12, 13], 3, 1, unroll=[(None, [])] + [(vmw[i], []) for i in range(9)], hooks=hooks, loop_from=5 if opt("loop", 1) else None)

    RM, CS = 16, 32
    e("v_and_b32 v5, 15, v0")
    e("v_lshlrev_b32 v5, 2, v5")
    e("s_lshl_b32 %s, %s, 8", s(sTmp), s(sWM))
    e("s_add_u32 %s, %s, %d", s(sTmp), s(sTmp), AUX)
    e("v_add_u32 v5, %s, v5", s(sTmp))
    for st in range(4):
        e("ds_read_b32 %s, v5 offset:%d", v(RM + 4 * st), st * 64)
        e("ds_read_b32 %s, v5 offset:%d", v(RM + 4 * st + 2), 512 + st * 64)
    e("v_lshrrev_b32 v6, 4, v0")
    e("v_lshlrev_b32 v6, 4, v6")
    e("s_lshl_b32 %s, %s, 8", s(sTmp), s(sWN))
    e("s_add_u32 %s, %s, %d", s(sTmp), s(sTmp), AUX + 1024)
    e("v_add_u32 v6, %s, v6", s(sTmp))
    for ft in range(4):
        for mat in range(2):
            e("ds_read_b128 %s, v6 offset:%d", v(CS + (mat * 4 + ft) * 4, 4), mat * 512 + ft * 64)
    e("s_lshl_b32 %s, %s, 1", s(sFlag), s(sRB))
    e("s_add_u32 %s, %s, %s", s(sFlag), s(sFlag), s(sWM))
    e("s_mul_i32 %s, %s, %d", s(sTmp), s(sFlag), 2 * 48 * 2048)
    e("s_lshl_b32 s3, %s, 2", s(sCG))
    e("s_lshl_b32 %s, %s, 1", s(sCnt), s(sWN))
    e("s_add_u32 s3, s3, %s", s(sCnt))
    e("s_lshl_b32 s3, s3, 11")
    e("s_add_u32 %s, %s, s3", s(sDelta), s(sTmp))
    e("s_lshl_b32 %s, %s, 1", s(sFlag), s(sFlag))
    e("s_add_u32 %s, %s, %s", s(sFlag), s(sFlag), s(sWN))
    e("s_mul_i32 %s, %s, 12", s(sFlag), s(sFlag))
    e("s_add_u32 %s, %s, %s", s(sFlag), s(sFlag), s(sCG))
    e("s_lshl_b32 %s, %s, 7", s(sFlag), s(sFlag))
    e("s_add_u32 %s, %s, 0x%x", s(sFlag), s(sFlag), WS_FH)
    e("v_lshlrev_b32 v5, 4, v0")
    e("s_waitcnt lgkmcnt(4) vmcnt(0)")
    for st in range(4):
        e("v_mul_f32 %s, %s, %s", v(RM + 4 * st), v(RM + 4 * st), v(RM + 4 * st))
    for ph in range(2):
        if ph == 1:
            e("s_waitcnt lgkmcnt(0)")
        for st in range(4):
            rr, mm_ = RM + 4 * st, RM + 4 * st + 2
            o = 64 + ((ph * 4 + st) & 3) * 4
            for fi in range(2):
                ft = 2 * ph + fi
                g0, u0 = acc(0, ft, st), acc(1, ft, st)
                for k in (0, 2):
                    e("v_pk_fma_f32 %s, %s, %s, %s op_sel_hi:[1,0,1] neg_lo:[0,1,0] neg_hi:[0,1,0]", v(g0 + k, 2), v(CS + ft * 4 + k, 2), v(mm_, 2), v(g0 + k, 2))
                    e("v_pk_fma_f32 %s, %s, %s, %s op_sel_hi:[1,0,1] neg_lo:[0,1,0] neg_hi:[0,1,0]", v(u0 + k, 2), v(CS + 16 + ft * 4 + k, 2), v(mm_, 2), v(u0 + k, 2))
                for k in range(4):
                    e("v_max_f32 %s, 0, %s", v(g0 + k), v(g0 + k))
                for k in (0, 2):
                    e("v_pk_mul_f32 %s, %s, %s op_sel_hi:[1,0]", v(u0 + k, 2), v(u0 + k, 2), v(rr, 2))
                for k in (0, 2):
                    e("v_pk_mul_f32 %s, %s, %s", v(g0 + k, 2), v(g0 + k, 2), v(u0 + k, 2))
                for k in range(2):
                    e("v_cvt_pk_bf16_f32 %s, %s, %s", v(o + 2 * fi + k), v(g0 + 2 * k), v(g0 + 2 * k + 1))
            e("s_add_u32 %s, %s, %d", s(sTmp), s(sDelta), WS_H + (st >> 1) * 48 * 2048 + ph * 2048)
            e("buffer_store_dwordx4 %s, v5, %s, %s offen offset:%d sc1", v(o, 4), s(sWS, 4), s(sTmp), (st & 1) * 1024)
    stamp("c_ep")
    p3_pre()
    e("s_mov_b32 %s, 0", s(sNU))
    e("s_branch L_p3c")


def p1_dft():
    njb = 5
    vXA, vCA, FR, ACC, FC, CO, SI = 8, 12, 16, 80, 208, 176, 192
    tab_srd()
    e("v_lshlrev_b32 v13, 4, v0")
    e("s_mul_i32 %s, %s, %d", s(sBoff), s(sCG), 20 * 5 * 1024)
    e("s_mul_i32 %s, %s, %d", s(sM0), s(sW), 5 * 1024)
    e("s_add_u32 %s, %s, %s", s(sBoff), s(sBoff), s(sM0))
    e("s_lshl_b32 %s, %s, 2", s(sWM), s(sM0))
    cur = [0]

    def cl(i):
        ops = []
        for tl in range(njb):
            def f(tl=tl):
                e("s_add_u32 m0, %s, %d", s(sM0 if CSTR[i] == 5120 else sWM), CBASE[i] + tl * 1024)
                e("s_add_u32 %s, %s, %d", s(sTmp), s(sBoff), i * 4 * njb * 1024 + tl * 1024)
                e("buffer_load_dwordx4 v13, %s, %s offen lds", s(sTAB, 4), s(sTmp))
            ops.append(f)
        return ops
    q = VQ()
    XC = [224, 240, 160, 208, 224]
    NC = 4 - NL

    def xc(i):
        gs = []
        for n in range(NL, 4):
            for hf in range(2):
                def f(n=n, hf=hf):
                    e("s_add_u32 %s, %s, %d", s(sTmp), s(sAoff), n * 8 * 81920 + i * 128)
                    e("buffer_load_dwordx4 %s, v14, %s, %s offen offset:%d", v(XC[i] + (n - NL) * 8 + hf * 4, 4), s(sX, 4), s(sTmp), hf * 640)
                gs.append(cap(f))
        q.issue("x%d" % i, 2 * NC)
        return gs

    def cg(i):
        q.issue("c%d" % i, njb)
        return [cap(f) for f in cl(i)]

    def foldc(i):
        for n in range(NL, 4):
            fold_group(XC[i] + (n - NL) * 8, 64, 72, (1, 2)[n & 1], (1 - (i & 1)) * 5120 + n * 1024)
    if XT & 16:
        e("s_bfe_u32 %s, s2, 0x30003", s(sTmp))
        e("s_lshl_b32 %s, %s, 2", s(sTmp), s(sTmp))
        e("s_add_u32 %s, %s, %s", s(sTmp), s(sTmp), s(sW))
        e("s_mul_i32 %s, %s, 2560", s(sTmp), s(sTmp))
        e("s_mul_i32 %s, %s, 102400", s(sTmp2), s(sCG))
        e("s_add_u32 %s, %s, %s", s(sTmp), s(sTmp), s(sTmp2))
        e("s_add_u32 %s, %s, 20480", s(sTmp), s(sTmp))
        e("v_min_u32 v5, 19, v0")
        e("v_lshlrev_b32 v5, 7, v5")
        e("buffer_load_dword v15, v5, %s, %s offen", s(sTAB, 4), s(sTmp))
        q.issue("t")
    if XO == 1:
        weave([], cg(0))
    fold_addr(14, 1, 3)
    x_src_scalar()
    stamp("dc_pre")
    e("s_waitcnt lgkmcnt(0)")
    stamp("dc_k")
    srd(A, *SRDS["X"])
    weave([], xc(0) + (cg(0) if XO == 0 else []) + xc(1))
    stamp("dc_i0")
    e("s_mul_i32 %s, %s, %d", s(sTmp), s(sW), CPS)
    e("s_add_u32 %s, %s, %d", s(sTmp), s(sTmp), XB + 5120)
    e("v_and_b32 v5, 31, v0")
    e("v_lshlrev_b32 v5, 7, v5")
    e("v_add_u32 v5, %s, v5", s(sTmp))
    e("v_lshrrev_b32 v6, 5, v0")
    e("v_bfe_u32 v7, v0, 1, 3")
    e("v_xor_b32 v6, v6, v7")
    e("v_lshl_add_u32 %s, v6, 4, v5", v(vXA))
    for t in range(1, 4):
        e("v_xor_b32 %s, %d, %s", v(vXA + t), t << 5, v(vXA))
    e("v_mov_b32 %s, v13", v(vCA))
    e("v_add_u32 v3, %d, v13", CP0 + 3 * CPS)
    karg_wait([], ["WS", "OUT"])
    p3c_setup()
    e("s_cmp_ge_u32 %s, 2", s(sCG))
    e("s_cselect_b32 %s, -1.0, 1.0", s(sSgn))
    e("v_mov_b32 v72, 0xffff0000")
    e("s_lshl_b32 %s, %s, 2", s(sS2), s(sRB))
    e("s_add_u32 %s, %s, %s", s(sS2), s(sS2), s(sW))
    e("v_and_b32 v5, 31, v0")
    e("v_lshrrev_b32 v6, 5, v0")
    e("v_lshlrev_b32 v6, 8, v6")
    e("v_add_u32 v6, %s, v6", s(sS2))
    e("v_mul_u32_u24 v6, v6, v5")

    def consts():
        for kap in range(2):
            for i in range(8):
                s0 = 16 * kap + 8 * (i >> 2) + (i & 3)
                e("v_mul_u32_u24 v7, %d, v5", 64 * s0)
                e("v_add_u32 v7, v7, v6")
                e("v_and_b32 v7, 0x7ff, v7")
                e("v_cvt_f32_u32 v7, v7")
                e("v_mul_f32 v7, 0x3a000000, v7")
                e("v_cos_f32 %s, v7", v(CO + 8 * kap + i))
                e("v_sin_f32 %s, v7", v(SI + 8 * kap + i))
    if CX == 0:
        weave(cap(consts), cg(1) + xc(2) + cg(2) + xc(3) + cg(3), skip=10)
        q.wait("x0")
        weave(cap(lambda: foldc(0)), cg(4))
        weave([], xc(4))
        late = {}
    elif CX == 1:
        weave(cap(consts), cg(1) + xc(2) + cg(2), skip=40)
        q.wait("x0")
        weave(cap(lambda: foldc(0)), xc(3) + cg(3))
        late = {0: lambda: xc(4) + cg(4)}
    else:
        stamp("dc_c0")
        weave(cap(consts), cg(1) + xc(2), skip=60)
        stamp("dc_c1")
        q.wait("x0")
        stamp("dc_x0")
        weave(cap(lambda: foldc(0)), cg(2))
        late = {0: lambda: xc(3) + cg(3), 1: lambda: xc(4) + cg(4)}
    stamp("c_set")

    def xf(p): return FR + p * 24
    def cf(p, tl): return FR + p * 24 + 4 + 4 * tl

    def reads(p, t):
        ops = [lambda: e("ds_read_b128 %s, %s", v(xf(p), 4), v(vXA + t))]
        for tl in range(njb):
            if t == 3 and CSTR[cur[0]] == CPS:
                ops.append(lambda tl=tl, o=CBASE[cur[0]] - CP0: e("ds_read_b128 %s, v3 offset:%d", v(cf(p, tl), 4), o + tl * 1024))
            else:
                ops.append(lambda tl=tl, st=CSTR[cur[0]]: e("ds_read_b128 %s, %s offset:%d", v(cf(p, tl), 4), v(vCA), t * st + tl * 1024))
        return ops

    def mfmas(p, first=False):
        return [(lambda tl=tl: e("v_mfma_f32_32x32x16_bf16 %s, %s, %s, %s", v(ACC + 16 * tl, 16), v(xf(p), 4), v(cf(p, tl), 4), "0" if first else v(ACC + 16 * tl, 16))) for tl in range(njb)]

    def vmc(tag):
        last = max([i for i, x in enumerate(q.q) if x == tag], default=-1)
        if last < 0:
            return None
        n = len(q.q) - 1 - last
        q.q = q.q[last + 1:]
        return n

    def fills(i):
        cur[0] = i
        if i == 4:
            return []
        w = cap(lambda: q.wait("x%d" % (i + 1))) if NC else []
        mem = late[i]() if i in late else []
        work = [[ln] for ln in cap(lambda: foldc(i + 1))]
        out, k = [w], 0
        for n, g in enumerate(work):
            out.append(g)
            if n % 5 == 4 and k < len(mem):
                out.append(mem[k]); k += 1
        return out + mem[k:]

    def advf(i):
        for t in range(4):
            e("v_add_u32 %s, %d, %s", v(vXA + t), (5120 if i & 1 else -5120) & 0xffffffff, v(vXA + t))
        e("v_add_u32 %s, %d, %s", v(vCA), (CBASE[i + 1] - CBASE[i]) & 0xffffffff, v(vCA))
    gemm_loop(5, 4, mfmas, reads, [2 + tl for tl in range(njb)], [vXA + i for i in range(5)], 0, 2, buf0=SLAB, advf=advf,
              unroll=[(vmc("c0"), [])] + [((lambda i=i: vmc("c%d" % i)), []) for i in range(1, 5)], fills=fills)

    if EPR:
        e("s_setprio %d", EPR)
    RR, MM = 16, 32
    e("v_lshrrev_b32 v6, 5, v0")
    e("v_lshlrev_b32 v6, 4, v6")
    e("s_lshl_b32 %s, %s, 7", s(sTmp), s(sW))
    e("s_add_u32 %s, %s, %d", s(sTmp), s(sTmp), AUX)
    e("v_add_u32 v7, %s, v6", s(sTmp))
    for jj in range(4):
        e("ds_read_b128 %s, v7 offset:%d", v(RR + 4 * jj, 4), jj * 32)
    e("v_and_b32 v5, 15, v0")
    e("v_lshlrev_b32 v5, 6, v5")
    e("v_bfe_u32 v6, v0, 4, 1")
    e("v_lshl_add_u32 v5, v6, 5, v5")
    e("v_lshrrev_b32 v6, 5, v0")
    e("v_lshl_add_u32 v5, v6, 4, v5")
    e("s_and_b32 %s, %s, 1", s(sJB), s(sCG))
    e("s_mul_i32 %s, %s, 10", s(sJB), s(sJB))
    e("s_lshr_b32 %s, %s, 1", s(sTmp), s(sCG))
    e("s_add_u32 %s, %s, %s", s(sJB), s(sJB), s(sTmp))
    e("s_mul_i32 %s, %s, %d", s(sDelta), s(sS2), TSTR)
    e("s_mul_i32 %s, %s, 10240", s(sTmp), s(sCG))
    if TP == 1:
        e("v_and_b32 v4, 15, v0")
        e("v_lshl_add_u32 v4, v4, 6, v5")
    elif TP == 3:
        e("s_mul_i32 %s, %s, %d", s(sTmp2), s(sW), CPS)
        e("s_add_u32 %s, %s, %d", s(sTmp2), s(sTmp2), CP0)
        e("v_bfe_u32 v1, v5, 4, 2")
        e("v_and_b32 v2, 7, v0")
        e("v_xor_b32 v1, v1, v2")
        e("v_and_b32 v4, 15, v0")
        e("v_lshlrev_b32 v4, 7, v4")
        e("v_lshl_add_u32 v1, v1, 4, v4")
        e("v_add_u32 v1, %s, v1", s(sTmp2))
        e("v_lshrrev_b32 v4, 3, v0")
        e("v_xor_b32 v3, v2, v4")
        e("v_lshlrev_b32 v4, 7, v4")
        e("v_lshl_add_u32 v3, v3, 4, v4")
        e("v_add_u32 v3, %s, v3", s(sTmp2))
        e("v_xor_b32 v2, 64, v1")
        e("v_lshlrev_b32 v4, 4, v0")
    else:
        e("v_and_b32 v4, 7, v0")
        e("v_lshlrev_b32 v4, 7, v4")
        e("v_and_b32 v1, 0x30, v5")
        e("v_add_u32 v4, v4, v1")
        e("v_bfe_u32 v1, v0, 3, 1")
        e("v_lshl_add_u32 v2, v1, 6, v4")
        e("v_xor_b32 v1, 1, v1")
        e("v_lshl_add_u32 v4, v1, 6, v4")
        e("s_mov_b32 s28, 0xff00ff00")
        e("s_mov_b32 s29, 0xff00ff00")
    e("s_add_u32 %s, %s, %s", s(sDelta), s(sDelta), s(sTmp))
    e("s_add_u32 %s, %s, 0x%x", s(sDelta), s(sDelta), WS_T)
    e("s_lshl_b32 %s, %s, 4", s(sFlag), s(sCG))
    e("s_add_u32 %s, %s, %s", s(sFlag), s(sFlag), s(sRB))
    e("s_lshl_b32 %s, %s, 7", s(sFlag), s(sFlag))
    e("s_add_u32 %s, %s, 0x%x", s(sFlag), s(sFlag), WS_FT)
    e("v_bfe_u32 v6, v0, 3, 1")
    e("v_cmp_eq_u32 vcc, 0, v6")
    e("v_mov_b32 v6, 0")
    e("v_mov_b32 v13, 0x80008000")
    e("v_cndmask_b32 v6, v6, v13, vcc")
    DD, AF, AN = [224, 240], [48, 64], 32

    def epilogue(first):
        order = ([4, 2, 3, 1, 0, 5] if TP >= 2 else [1, 2, 3, 4, 0, 5]) if first else [0, 1, 2, 3, 4]
        got, defer = set(), []

        def pack(n):
            tl = order[n]
            if tl == 5:
                e("s_nop 1")
                return
            a0, af = ACC + 16 * tl, AF[n & 1]
            if first and tl == 0:
                for i in range(16):
                    e("v_fma_f32 %s, -%s, v7, %s", v(a0 + i), v(MM + i), v(a0 + i))
            for i in range(8):
                e("v_cvt_pk_bf16_f32 %s, %s, %s", v(af + i), v(a0 + 2 * i), v(a0 + 2 * i + 1))
            if first and tl == 0:
                for i in range(8):
                    e("v_and_b32_dpp %s, %s, v14 row_ror:8 row_mask:0xf bank_mask:0xf", v(AN + i), v(af + i))
                    e("v_and_b32 %s, v15, %s", v(AN + 8 + i), v(af + i))
                for i in range(8):
                    e("v_bfi_b32 %s, v15, 0, %s", v(af + i), v(af + i))
            for i in range(8):
                e("v_xor_b32_dpp %s, %s, v6 row_ror:8 row_mask:0xf bank_mask:0xf", v(af + 8 + i), v(af + i))

        def stage(n):
            d, af = DD[n & 1], AN if order[n] == 5 else AF[n & 1]
            for k in range(4):
                e("v_mfma_f32_32x32x16_bf16 %s, %s, %s, %s", v(d, 16), v(af + 4 * k, 4), v(FC + 4 * k, 4), v(d, 16) if k else "0")

        def finish(n):
            d, tl = DD[n & 1], order[n]
            o = ACC + 16 * tl if TP == 2 and tl < 4 else d
            for i in range(8):
                e("v_cvt_pk_bf16_f32 %s, %s, %s", v(o + i), v(d + 2 * i), v(d + 2 * i + 1))
            e("s_add_u32 %s, %s, %d", s(sTmp), s(sDelta), 40960 if tl == 5 else (tl >> 1) * 4096)
            e("s_nop 0")
            for i in range(4):
                e("v_permlane16_swap_b32 %s, %s", v(o + i), v(o + 4 + i))
            if TP == 3 and tl < 4:
                for q in range(2):
                    e("ds_write_b128 %s, %s offset:%d", v(1 + (tl & 1)), v(d + 4 * q, 4), (tl >> 1) * 4096 + q * 2048)
                got.add(tl)
                if (tl ^ 1) in got:
                    for m in range(4):
                        e("ds_read_b128 %s, v3 offset:%d", v(ACC + 16 * tl + 4 * m, 4), (tl >> 1) * 4096 + m * 1024)

                    def later():
                        e("s_add_u32 %s, %s, %d", s(sTmp), s(sDelta), (tl >> 1) * 4096)
                        for m in range(4):
                            e("s_waitcnt lgkmcnt(%d)", 3 - m)
                            e("buffer_store_dwordx4 %s, v4, %s, %s offen offset:%d sc1", v(ACC + 16 * tl + 4 * m, 4), s(sWS, 4), s(sTmp), m * 1024)
                    defer.append(cap(later))
                return
            if TP == 2 and tl < 4:
                got.add(tl)
                if (tl ^ 1) not in got:
                    return
                a_, b_, t_ = ACC + 16 * (tl & 2), ACC + 16 * (tl | 1), ACC + 16 * tl + 8
                e("s_nop 0")
                for i in range(8):
                    e("v_mov_b32_dpp %s, %s row_ror:8 row_mask:0xf bank_mask:0xf", v(t_ + i), v(b_ + i))
                for q in range(2):
                    for i in range(4 * q, 4 * q + 4):
                        e("v_cndmask_b32 %s, %s, %s, s[28:29]", v(b_ + i), v(t_ + i), v(a_ + i))
                        e("v_cndmask_b32 %s, %s, %s, s[28:29]", v(a_ + i), v(a_ + i), v(t_ + i))
                    e("buffer_store_dwordx4 %s, v2, %s, %s offen offset:%d sc1", v(a_ + 4 * q, 4), s(sWS, 4), s(sTmp), q * 2048)
                    e("buffer_store_dwordx4 %s, v4, %s, %s offen offset:%d sc1", v(b_ + 4 * q, 4), s(sWS, 4), s(sTmp), q * 2048 + 1024)
                return
            for q in range(2):
                if tl < 4:
                    e("buffer_store_dwordx4 %s, v4, %s, %s offen offset:%d sc1", v(d + 4 * q, 4), s(sWS, 4), s(sTmp), q * 2048 + (tl & 1) * 64)
                else:
                    e("buffer_store_dwordx4 %s, v5, %s, %s offen offset:%d sc1", v(d + 4 * q, 4), s(sWS, 4), s(sTmp), q * 1024)
        if first:
            for jj in range(4):
                e("ds_read_b128 %s, v7 offset:%d", v(MM + 4 * jj, 4), 512 + jj * 32)
            e("v_and_b32 v15, 31, v0")
            e("v_cmp_eq_u32 vcc, 0, v15")
            e("v_cmp_eq_u32 s[4:5], 8, v15")
            e("v_mov_b32 v13, 0x44200000")
            e("v_cndmask_b32 v14, 0, -1, vcc")
            e("v_cndmask_b32 v15, 0, -1, s[4:5]")
        pack(0)
        e("s_waitcnt lgkmcnt(0)")
        if first:
            e("v_and_b32 v7, v13, v14")
        for i in range(0, 16, 2):
            e("v_pk_mul_f32 %s, %s, %s", v(CO + i, 2), v(CO + i, 2), v(RR + i, 2))
            e("v_pk_mul_f32 %s, %s, %s neg_lo:[1,0] neg_hi:[1,0]", v(SI + i, 2), v(SI + i, 2), v(RR + i, 2))
        for i in range(8):
            e("v_cvt_pk_bf16_f32 %s, %s, %s", v(FC + i), v(CO + 2 * i), v(CO + 2 * i + 1))
            e("v_cvt_pk_bf16_f32 %s, %s, %s", v(FC + 8 + i), v(SI + 2 * i), v(SI + 2 * i + 1))
        e("s_nop 1")
        if EPI:
            N_ = len(order)
            for n in range(-1, N_):
                S = cap(lambda: stage(n + 1)) if n + 1 < N_ else []
                P_ = cap(lambda: pack(n + 2)) if n + 2 < N_ else []
                D_ = defer.pop() if defer else []
                F_ = cap(lambda: finish(n)) if n >= 0 else []
                if not S:
                    A.lines += (D_ + ["    s_nop 7"] if D_ else ["    s_nop 15"]) + F_
                elif not F_:
                    k = (len(P_) + 2) // 3
                    A.lines += S[:1] + P_[:k] + S[1:2] + P_[k:2 * k] + S[2:3] + P_[2 * k:] + S[3:]
                else:
                    if len(P_) < 12:
                        P_ = P_ + ["    s_nop 10"]
                    k = 16 if len(F_) < 20 else 24
                    A.lines += S[:1] + P_ + D_ + S[1:2] + F_[:9] + S[2:3] + F_[9:k] + S[3:] + F_[k:]
            return
        stage(0)
        for n in range(len(order)):
            if n + 1 < len(order):
                pack(n + 1)
                stage(n + 1)
                if order[n + 1] == 5:
                    e("s_nop 7")
            else:
                e("s_nop 15")
            finish(n)
    e("s_cmp_eq_u32 %s, 0", s(sCG))
    e("s_cbranch_scc1 L_dft_e0")
    epilogue(False)
    e("s_branch L_dft_c")
    A.label("L_dft_e0")
    epilogue(True)


def mid_k1():
    e("s_and_b32 s3, s2, 7")
    e("s_lshl_b32 %s, s3, 2", s(sK1))
    e("s_bfe_u32 s3, s2, 0x20004")
    e("s_add_u32 %s, %s, s3", s(sK1), s(sK1))
    e("s_bfe_u32 s3, s2, 0x10003")


def mid():
    FC, PD = 64, 48
    XU, WY, DF = [128, 160], [192, 224], [16, 40]
    vL, vT, vWr, vUo, vP, vTG = 5, 6, 7, 10, 11, 15
    e("v_lshlrev_b32 %s, 4, v0", v(vL))
    e("v_and_b32 v9, 3, v0")
    e("v_add_u32 v13, %d, %s", FR_L, v(vL))
    for n in range(8):
        e("ds_read_b128 %s, v13 offset:%d", v(FC + 4 * n, 4), n * 1024)
    for i in range(32):
        e("v_mov_b32 %s, 0", v(WY[0] + i))
    e("v_and_b32 v8, 15, v0")
    e("v_lshrrev_b32 v12, 2, v0")
    e("v_lshlrev_b32 %s, 6, v12", v(vT))
    e("v_lshl_add_u32 %s, v9, 4, %s", v(vT), v(vT))
    e("v_add_u32 %s, %s, %s", v(vT), s(sM0), v(vT))
    e("v_and_b32 v13, 12, v12")
    e("v_bfe_u32 v14, v0, 3, 1")
    e("v_lshl_add_u32 v13, v14, 4, v13")
    e("v_bfe_u32 v14, v0, 2, 1")
    e("v_lshl_add_u32 v13, v14, 1, v13")
    e("v_mul_u32_u24 v12, %d, v13", TSTR)
    e("v_lshl_add_u32 %s, v9, 4, v12", v(vTG))
    e("v_lshrrev_b32 v9, 4, v0")
    e("v_lshlrev_b32 %s, 6, v8", v(vUo))
    e("v_lshl_add_u32 %s, v9, 4, %s", v(vUo), v(vUo))
    e("v_mul_u32_u24 v12, %d, v9", 4 * 336)
    e("v_lshl_add_u32 v12, v8, 2, v12")
    e("s_add_u32 %s, %s, %s", s(sTmp), s(sMW), s(sPar))
    e("v_add_u32 %s, %s, v12", v(vWr), s(sTmp))
    e("v_bfe_u32 v12, v0, 3, 1")
    e("v_lshlrev_b32 v12, 1, v12")
    e("v_bfe_u32 v13, v0, 4, 1")
    e("v_lshl_add_u32 v12, v13, 4, v12")
    e("v_lshrrev_b32 v14, 5, v0")
    e("v_lshl_add_u32 v12, v14, 2, v12")
    e("v_mul_u32_u24 v12, %d, v12", TSTR)
    e("v_bfe_u32 v14, v0, 2, 1")
    e("v_xor_b32 v13, v13, v14")
    e("v_lshl_add_u32 v12, v13, 6, v12")
    e("v_and_b32 v13, 3, v0")
    e("v_lshl_add_u32 v1, v13, 4, v12")
    e("v_lshrrev_b32 v12, 2, v0")
    e("v_lshlrev_b32 v12, 7, v12")
    e("v_lshl_add_u32 v12, v13, 4, v12")
    e("v_bfe_u32 v13, v0, 3, 1")
    e("v_lshl_add_u32 v12, v13, 6, v12")
    e("v_add_u32 v2, %s, v12", s(sM0))
    e("v_xor_b32 v4, 64, v2")
    e("v_add_u32 v8, %s, v12", s(sLB2))
    e("v_xor_b32 v9, 64, v8")
    e("s_waitcnt vmcnt(0) lgkmcnt(0)")
    lab = A.newlabel("L_noft")
    e("s_cmp_lg_u32 %s, 3", s(sWN))
    e("s_cbranch_scc1 %s", lab)
    if PPT:
        poll_check_pipe(PD, PPT, vP, WS_FT, PPG)
    else:
        poll_check(PD, 1, vP, WS_FT)
    A.label(lab)
    e("s_barrier")
    stamp("m_B")
    e("s_mul_i32 %s, %s, %d", s(sDelta), s(sK1), USTR)
    e("s_lshl_b32 %s, %s, 12", s(sTmp), s(sJB))
    e("s_add_u32 %s, %s, %s", s(sDelta), s(sDelta), s(sTmp))
    e("s_add_u32 %s, %s, 0x%x", s(sDelta), s(sDelta), WS_U)

    def gather(un):
        for n in range(4):
            e("s_add_u32 m0, %s, %d", s(sM0), n * 1024)
            e("s_add_u32 %s, %s, %d", s(sTmp), s(sTB), WS_T + (32 * (n & 1) + (n >> 1)) * TSTR)
            e("buffer_load_dwordx4 %s, %s, %s offen sc1 lds", v(vTG), s(sWS, 4), s(sTmp))

    def gather2():
        for kap in range(2):
            for n in range(4):
                e("s_add_u32 m0, %s, %d", s(sLB2 if kap else sM0), n * 1024)
                e("s_add_u32 %s, %s, %d", s(sTmp), s(sTB), WS_T + (32 * (n >> 1) + 8 * (n & 1) + kap) * TSTR)
                e("buffer_load_dwordx4 v1, %s, %s offen sc1 lds", s(sWS, 4), s(sTmp))

    def R2(u):
        for ri in range(2):
            for kap in range(2):
                for rd in range(2):
                    e("ds_read_b64_tr_b16 %s, %s offset:%d", v(DF[u] + 8 * ri + 4 * kap + 2 * rd, 2), v((2, 4, 8, 9)[kap * 2 + u]), rd * 2048 + ri * 8)

    def gathered():
        if EST == 3:
            e("v_mov_b32 v12, %d", LGO)
            e("v_mov_b32 v13, 1")
            e("s_mov_b64 exec, 1")
            e("ds_add_u32 v12, v13 offset:8")
            e("s_mov_b64 exec, -1")

    def F(ri, t, par): return FC + ((ri * 2 + t) * 2 + par) * 4

    def R(u):
        for ri in range(2):
            for kap in range(2):
                for rd in range(2):
                    e("ds_read_b64_tr_b16 %s, %s offset:%d", v(DF[u] + 8 * ri + 4 * kap + 2 * rd, 2), v(14 if u else vT), kap * 2048 + rd * 1024 + ri * 8)

    def N(u):
        for i in range(8):
            e("v_xor_b32 %s, 0x80008000, %s", v(DF[u] + 16 + i), v(DF[u] + 8 + i))

    def WR(u):
        for mt in range(4):
            for i in range(4):
                for arr in range(2):
                    e("ds_read_u16_d16_hi %s, %s offset:%d", v(WY[u] + arr * 16 + 4 * mt + i), v(vWr), arr * MWA + (16 * mt + i) * 336 + 64 * u)

    def SA(u):
        Tre, Tim, Tni = DF[u], DF[u] + 8, DF[u] + 16
        for t in range(2):
            for step in range(2):
                for par in range(2):
                    xr, xi = XU[u] + 4 * (t + 2 * par), XU[u] + 16 + 4 * (t + 2 * par)
                    if step == 0:
                        mm16(xr, F(0, t, par), Tre + 4 * par, True)
                        mm16(xi, F(1, t, par), Tre + 4 * par, True)
                    else:
                        mm16(xr, F(1, t, par), Tni + 4 * par)
                        mm16(xi, F(0, t, par), Tim + 4 * par)

    def BF(u):
        for t in range(2):
            for b in (XU[u] + 4 * t, XU[u] + 4 * t + 2, XU[u] + 16 + 4 * t, XU[u] + 18 + 4 * t):
                e("v_pk_add_f32 %s, %s, %s", v(b, 2), v(b, 2), v(b + 8, 2))
            for b in (XU[u] + 4 * t, XU[u] + 4 * t + 2, XU[u] + 16 + 4 * t, XU[u] + 18 + 4 * t):
                e("v_pk_fma_f32 %s, %s, 2.0, %s op_sel_hi:[1,0,1] neg_lo:[1,0,0] neg_hi:[1,0,0]", v(b + 8, 2), v(b + 8, 2), v(b, 2))

    def YP(u):
        BF(u)
        for n in range(0, 16, 4):
            for k in (0, 2):
                e("v_pk_mul_f32 %s, %s, %s", v(8 if k else 12, 2), v(XU[u] + 16 + n + k, 2), v(WY[u] + 16 + n + k, 2))
            for k in (0, 2):
                e("v_pk_mul_f32 %s, %s, %s", v(WY[u] + 16 + n + k, 2), v(XU[u] + n + k, 2), v(WY[u] + 16 + n + k, 2))
            for k in (0, 2):
                e("v_pk_fma_f32 %s, %s, %s, %s", v(WY[u] + 16 + n + k, 2), v(XU[u] + 16 + n + k, 2), v(WY[u] + n + k, 2), v(WY[u] + 16 + n + k, 2))
            for k in (0, 2):
                e("v_pk_fma_f32 %s, %s, %s, %s neg_lo:[0,0,1] neg_hi:[0,0,1]", v(WY[u] + n + k, 2), v(XU[u] + n + k, 2), v(WY[u] + n + k, 2), v(8 if k else 12, 2))

    def CV(u):
        for mt in range(4):
            for par in range(2):
                w_r, w_i = WY[u] + 4 * mt + par, WY[u] + 16 + 4 * mt + par
                e("v_cvt_pk_bf16_f32 %s, %s, %s", v(DF[u] + 8 + 4 * par + mt), v(w_i), v(w_i + 2))
                e("v_cvt_pk_bf16_f32 %s, %s, %s", v(DF[u] + 4 * par + mt), v(w_r), v(w_r + 2))
            for par in range(2):
                e("v_xor_b32 %s, 0x80008000, %s", v(DF[u] + 16 + 4 * par + mt), v(DF[u] + 4 * par + mt))

    def SB(u):
        Yre, Yim, Ynr = DF[u], DF[u] + 8, DF[u] + 16
        for t in range(2):
            for step in range(2):
                for par in range(2):
                    ur, ui = XU[u] + 4 * (t + 2 * par), XU[u] + 16 + 4 * (t + 2 * par)
                    if step == 0:
                        mm16(ur, Yre + 4 * par, F(0, t, par), True)
                        mm16(ui, Yim + 4 * par, F(0, t, par), True)
                    else:
                        mm16(ur, Yim + 4 * par, F(1, t, par))
                        mm16(ui, Ynr + 4 * par, F(1, t, par))

    def O(u):
        if u:
            e("s_add_u32 %s, %s, 8192", s(sDelta), s(sDelta))
        for nt in range(4):
            ur, ui = XU[u] + 4 * nt, XU[u] + 16 + 4 * nt
            e("v_cvt_pk_bf16_f32 %s, %s, %s", v(ur), v(ur), v(ur + 1))
            e("v_cvt_pk_bf16_f32 %s, %s, %s", v(ur + 1), v(ur + 2), v(ur + 3))
            e("v_cvt_pk_bf16_f32 %s, %s, %s", v(ur + 2), v(ui), v(ui + 1))
            e("v_cvt_pk_bf16_f32 %s, %s, %s", v(ur + 3), v(ui + 2), v(ui + 3))
            e("buffer_store_dwordx4 %s, %s, %s, %s offen offset:%d sc1", v(ur, 4), v(vUo), s(sWS, 4), s(sDelta), nt * 1024)

    def lines(*fs):
        return [[ln] for f in fs for ln in cap(f)]

    def mix(a_, b_):
        out = []
        for i in range(max(len(a_), len(b_))):
            out += a_[i:i + 1] + b_[i:i + 1]
        return out
    one, done = A.newlabel("L_one"), A.newlabel("L_midd")
    e("s_cmp_eq_u32 %s, 1", s(sNU))
    e("s_cbranch_scc1 %s", one)
    gather2()
    gathered()
    for i in range(32):
        e("v_mov_b32 %s, 0", v(WY[1] + i))
    if MWE:
        WR(0)
        WR(1)
    e("s_waitcnt vmcnt(0)")
    stamp("m_T")
    R2(0)
    if not MWE:
        WR(0)
    e("s_waitcnt lgkmcnt(%d)", 0 if MWE else 15)
    if not MWE:
        e("s_waitcnt vmcnt(0)")
    N(0)
    if MWE:
        e("s_waitcnt vmcnt(0)")
    w1 = lines(lambda: WR(1)) if not MWE else []
    weave(cap(lambda: SA(0)), lines(lambda: R2(1)) + w1[:24], skip=1)
    e("s_waitcnt lgkmcnt(%d)", 0 if MWE else 15)
    N(1)
    YP(0)
    weave(cap(lambda: SA(1)), mix(lines(lambda: CV(0)), w1[24:]), skip=1)
    e("s_waitcnt lgkmcnt(0)")
    e("s_nop 6")
    stamp("m_u1")
    if EH:
        poll_issue(4, 1, 3, WS_FH)
    YP(1)
    weave(cap(lambda: SB(0)), lines(lambda: CV(1)), skip=1)
    e("s_nop 6")
    BF(0)
    weave(cap(lambda: SB(1)), lines(lambda: O(0)), skip=1)
    e("s_nop 7")
    BF(1)
    O(1)
    e("s_branch %s", done)
    A.label(one)
    gather(0)
    gathered()
    if MWE:
        WR(0)
    e("s_waitcnt vmcnt(0)")
    stamp("m_T")
    R(0)
    if not MWE:
        WR(0)
    e("s_waitcnt lgkmcnt(%d)", 0 if MWE else 15)
    N(0)
    e("s_nop 0")
    SA(0)
    e("s_waitcnt lgkmcnt(0)")
    e("s_nop 6")
    YP(0)
    CV(0)
    e("s_nop 1")
    SB(0)
    e("s_nop 7")
    BF(0)
    O(0)
    A.label(done)


hdr = open("cdna_kernels/%s.s.ref" % NAME).read().split("; Override launch")[0]
A(hdr.rstrip())
A("; @launch grid=(256,1,1) block=(512,1,1) lds=%d" % LDS_ALL)
A('.amdgcn_target "amdgcn-amd-amdhsa--gfx950"')
KN = NAME + "_kernel"
kernel_header(A, KN)
stamp("start")
if STAMPS:
    for i in range(1, 9):
        e("s_mov_b32 %s, 0", s(84 + 2 * i))
e("s_cmp_ge_u32 s2, 256")
e("s_cbranch_scc1 L_end")
e("s_load_dwordx16 %s, s[0:1], 0", s(P, 16))
e("s_load_dwordx4 %s, s[0:1], 64", s(P + 16, 4))
e("v_lshrrev_b32 v1, 6, v0")
e("v_and_b32 v0, 63, v0")
e("v_readfirstlane_b32 %s, v1", s(sW))
if CT == 3:
    e("s_cmp_lg_u32 %s, 0", s(sW))
    e("s_cbranch_scc1 L_noct")
    code_touch()
    A.label("L_noct")
e("s_and_b32 s3, s2, 1")
e("s_lshl_b32 %s, s3, 3", s(sRB))
e("s_bfe_u32 s3, s2, 0x30003")
e("s_add_u32 %s, %s, s3", s(sRB), s(sRB))
e("s_lshr_b32 %s, s2, 6", s(sTmp2))
e("s_bfe_u32 s3, s2, 0x20001")
e("s_mul_i32 %s, s3, 3", s(sCG))
e("s_add_u32 %s, %s, %s", s(sCG), s(sCG), s(sTmp2))
e("s_and_b32 %s, %s, 3", s(sLW), s(sW))
e("s_cmp_eq_u32 %s, 3", s(sTmp2))
e("s_cbranch_scc1 L_dft")
e("s_cmp_ge_u32 %s, 4", s(sW))
e("s_cbranch_scc0 L_ffn_c")
ffn_loader()
A.label("L_ffn_c")
p1_ffn()
A.label("L_dft")
if opt("nodft", 0):
    e("s_endpgm")
e("s_mov_b32 %s, s3", s(sCG))
e("s_cmp_ge_u32 %s, 4", s(sW))
e("s_cbranch_scc0 L_dftc")
dft_loader()
A.label("L_dftc")
p1_dft()
A.label("L_dft_c")
stamp("dc_ep")
if EPR:
    e("s_setprio 0")
if ZGL:
    e("v_mov_b32 v12, %d", LGO)
    e("v_mov_b32 v13, 1")
    e("ds_write_b32 v12, v13 offset:12")
e("s_waitcnt vmcnt(0)")
stamp("dc_st")
e("v_mov_b32 v12, %d", LGO)
e("v_mov_b32 v13, 1")
e("s_mov_b64 exec, 1")
e("ds_add_rtn_u32 v13, v12, v13 offset:4")
e("s_mov_b64 exec, -1")
e("v_lshlrev_b32 v11, 7, v0")
e("s_waitcnt lgkmcnt(0)")
e("v_readfirstlane_b32 %s, v13", s(sWN))
e("s_cmp_lg_u32 %s, 3", s(sWN))
e("s_cbranch_scc1 L_noft")
flag_store(sFlag, 12, 13)
if OWN:
    e("s_sub_u32 %s, %s, 0x%x", s(sTmp), s(sFlag), WS_FT)
    e("v_cmp_eq_u32 vcc, %s, v11", s(sTmp))
    e("v_xor_b32 v12, 128, v11")
    e("v_cndmask_b32 v11, v11, v12, vcc")
poll_issue(48, 1, 11, WS_FT)
if EST == 4:
    e("v_mov_b32 v12, %d", LGO)
    e("v_mov_b32 v13, 1")
    e("ds_write_b32 v12, v13 offset:12")
A.label("L_noft")
if EH:
    fh_addr()
mid_k1()
wspec_shift(sMW)
e("s_and_b32 %s, %s, 1", s(sTmp2), s(sW))
e("s_lshl_b32 %s, %s, 7", s(sTmp), s(sTmp2))
e("s_add_u32 %s, %s, %s", s(sMW), s(sMW), s(sTmp))
e("s_add_u32 %s, %s, %d", s(sMW), s(sMW), MW0)
e("s_and_b32 %s, %s, 2", s(sPar), s(sW))
e("s_add_u32 %s, s3, %s", s(sTmp), s(sPar))
e("s_mul_i32 %s, %s, 10240", s(sTB), s(sTmp))
e("s_lshl_b32 %s, %s, 12", s(sTmp), s(sTmp2))
e("s_add_u32 %s, %s, %s", s(sTB), s(sTB), s(sTmp))
e("s_lshl_b32 %s, %s, 7", s(sTmp), s(sK1))
e("s_add_u32 %s, %s, %s", s(sTB), s(sTB), s(sTmp))
e("s_mul_i32 s3, s3, 10")
e("s_lshl_b32 %s, %s, 2", s(sTmp2), s(sTmp2))
e("s_add_u32 s3, s3, %s", s(sTmp2))
e("s_lshr_b32 %s, %s, 1", s(sTmp), s(sW))
e("s_add_u32 %s, s3, %s", s(sJB), s(sTmp))
e("s_mov_b32 %s, 2", s(sNU))
e("s_lshl_b32 %s, %s, 12", s(sM0), s(sW))
e("s_add_u32 %s, %s, %d", s(sM0), s(sM0), MT0)
e("s_mul_i32 %s, %s, %d", s(sLB2), s(sW), CPS)
e("s_add_u32 %s, %s, %d", s(sLB2), s(sLB2), CP0 + 15360)
e("s_branch L_mid")

A.label("L_dft_l")
e("s_mov_b32 %s, 0", s(sWN))
e("v_lshlrev_b32 v11, 7, v0")
mid_k1()
e("s_add_u32 %s, s3, 2", s(sTmp))
e("s_cmp_ge_u32 %s, %s", s(sLW), s(sTmp))
e("s_cbranch_scc1 L_dft_l3")
wspec_shift(sMW)
e("s_add_u32 %s, %s, %d", s(sMW), s(sMW), MW0 + 256)
e("s_lshl_b32 %s, %s, 1", s(sTmp), s(sLW))
e("s_add_u32 %s, %s, s3", s(sTmp), s(sTmp))
e("s_mul_i32 %s, %s, 10240", s(sTB), s(sTmp))
e("s_add_u32 %s, %s, 8192", s(sTB), s(sTB))
e("s_cmp_eq_u32 %s, 2", s(sLW))
e("s_cselect_b32 %s, 40960, %s", s(sTB), s(sTB))
e("s_lshl_b32 %s, %s, 6", s(sTmp), s(sK1))
e("s_add_u32 %s, %s, %s", s(sTB), s(sTB), s(sTmp))
e("s_mul_i32 s3, s3, 10")
e("s_add_u32 s3, s3, 8")
e("s_add_u32 %s, s3, %s", s(sJB), s(sLW))
e("s_lshl_b32 %s, %s, 1", s(sPar), s(sLW))
e("s_cmp_eq_u32 %s, 2", s(sLW))
e("s_cselect_b32 %s, 64, %s", s(sPar), s(sPar))
e("s_mov_b32 %s, 1", s(sNU))
e("s_lshl_b32 %s, %s, 12", s(sM0), s(sLW))
e("s_add_u32 %s, %s, %d", s(sM0), s(sM0), FI_L)
A.label("L_mid")
mid()
stamp("m_end")
e("s_cmp_ge_u32 %s, 4", s(sW))
e("s_cbranch_scc1 L_dft_l2")
p3_pre()
if EH:
    e("s_waitcnt vmcnt(8)")
    e("v_cmp_ne_u32 vcc, %s, v4", s(sTAG))
    e("s_cbranch_vccnz L_eh0")
    for i in range(EH):
        hload_(i)
    e("s_mov_b32 %s, 2", s(sNU))
    e("s_waitcnt vmcnt(%d)", 4 * EH)
    e("s_branch L_eh1")
    A.label("L_eh0")
e("s_mov_b32 %s, 0", s(sNU))
if EFH:
    if not EH:
        fh_addr()
    poll_issue(7, 1, 3, WS_FH)
e("s_waitcnt vmcnt(0)")
A.label("L_eh1")
stamp("m_st")
e("s_barrier")
e("s_cmp_lg_u32 %s, 0", s(sW))
e("s_cbranch_scc1 L_nofu")
e("s_lshl_b32 %s, s2, 7", s(sFlag))
e("s_add_u32 %s, %s, %d", s(sFlag), s(sFlag), WS_FU - 192 * 128)
flag_store(sFlag, 12, 13)
A.label("L_nofu")
A.label("L_p3c")
p3c()
e("s_branch L_fin")

A.label("L_dft_l3")
e("v_lshlrev_b32 v5, 4, v0")
if EST:
    if ECI and EST < 3:
        z_ci_sub(CI_LATE)
    e("s_waitcnt vmcnt(0)")
    if EST >= 3:
        poll_check(41, 1, 10, WS_FW)
    if EST == 4:
        e("s_cmp_lg_u32 %s, 3", s(sLW))
        e("s_cbranch_scc1 L_dft_l7")
        e("v_mov_b32 v12, %d", LGO)
        A.label("L_dft_l8")
        e("ds_read_b32 v13, v12 offset:12")
        e("s_waitcnt lgkmcnt(0)")
        e("v_cmp_ne_u32 vcc, 1, v13")
        e("s_cbranch_vccnz L_dft_l8")
        stage_all()
        stamp("dl_st")
        A.label("L_dft_l7")
    e("s_barrier")
    if EST == 4:
        e("s_waitcnt vmcnt(0)")
    if EST == 3:
        e("s_cmp_lg_u32 %s, 3", s(sLW))
        e("s_cbranch_scc1 L_dft_l7")
        e("v_mov_b32 v12, %d", LGO)
        e("s_add_u32 s3, s3, 6")
        A.label("L_dft_l8")
        e("ds_read_b32 v13, v12 offset:8")
        e("s_waitcnt lgkmcnt(0)")
        e("v_cmp_ne_u32 vcc, s3, v13")
        e("s_cbranch_vccnz L_dft_l8")
        stage_all()
        e("s_waitcnt vmcnt(0)")
        stamp("dl_st")
        A.label("L_dft_l7")
    e("s_barrier")
    stage_wd(3, 4)
    if ECI:
        stage_done(0)
        e("v_lshlrev_b32 v11, 7, v0")
        e("s_branch L_dft_l6")
    else:
        e("s_branch L_dft_l5")
    A.label("L_dft_l2")
    e("s_waitcnt vmcnt(0)")
    e("s_barrier")
    stage_wd(3, 4)
    A.label("L_dft_l5")
    fu_poll_issue()
    stage_done(z_ci_sub(CI_LATE if ECI else range(18)))
    A.label("L_dft_l6")
else:
    e("s_waitcnt vmcnt(0)")
    e("s_barrier")
    e("s_branch L_dft_l4")
    A.label("L_dft_l2")
    stage_wd(0, 3)
    e("s_waitcnt vmcnt(15)")
    e("s_barrier")
    e("s_branch L_dft_l5")
    A.label("L_dft_l4")
    e("s_barrier")
    stage_wd(0, 3)
    A.label("L_dft_l5")
    stage_wd(3, 4)
    fu_poll_issue()
    stage_done(z_ci_sub(CI_LATE if ECI else range(18)))
A.label("L_zpart")
zpart()
A.label("L_fin")
if STAMPS and "--dbg" not in sys.argv:
    stamp("issued_out")
    e("s_waitcnt vmcnt(0)")
    e("%s s[100:101]", "s_memtime" if "--cyc" in sys.argv else "s_memrealtime")
    e("s_waitcnt lgkmcnt(0)")
    for i in range(9):
        e("v_mov_b32 %s, %s", v(16 + i), s(84 + 2 * i))
    e("s_lshl_b32 s3, s2, 3")
    e("s_add_u32 s3, s3, %s", s(sW))
    e("s_lshl_b32 s3, s3, 6")
    e("s_add_u32 s3, s3, 0x%x", WS_STAMP)
    e("v_mov_b32 v5, 0")
    for i in range(3):
        e("buffer_store_dwordx4 %s, v5, %s, s3 offen offset:%d", v(16 + 4 * i, 4), s(sWS, 4), 16 * i)
if "--dbg" in sys.argv:
    e("s_load_dwordx2 s[4:5], s[0:1], 64")
    e("s_waitcnt vmcnt(0) lgkmcnt(0)")
    e("s_memrealtime s[100:101]")
    srd(A, 8, 4, 256)
    e("s_waitcnt lgkmcnt(0)")
    e("s_mov_b64 exec, 1")
    e("s_not_b32 s84, s84")
    e("s_cmp_ge_u32 s2, 192")
    e("s_cselect_b32 s3, 32, 0")
    for i in range(8):
        k = [0, 8, 1, 2, 3, 4, 5, 6][i]
        e("v_mov_b32 v16, %s", s(84 + 2 * k))
        e("v_mov_b32 v17, %d", 4 * i)
        e("buffer_atomic_umax v16, v17, s[8:11], s3 offen sc1")
A.label("L_end")
e("s_endpgm")
flush_cold()
A.label("L_code_end")

kernel_desc(A, KN, 256, accum=256)
TB.emit_tables(A)
out = [x for x in sys.argv[1:] if not x.startswith("--")]
open(out[0] if out else "v29.s", "w").write(A.text())
```

```python
import sys
from asmlib import *
import tables19 as TB

NAME = "parallel_sum__spectral_gfnet__glu_gated_reglu__prompt"
A = Asm()
e = A.e


def opt(name, default):
    for x in sys.argv:
        if x.startswith("--%s=" % name):
            return int(x.split("=")[1])
    return default


STAMPS = "--stamps" in sys.argv
SLEEP = opt("sleep", 4)
ROTA, ROTB = opt("rota", 1), opt("rotb", 3)
CIP1 = opt("cip1", 0)
DROT = opt("drot", 0)
WSP = opt("wsp", 2)
PRL = opt("prl", 0)
WARM = opt("warm", 0)
FOLD = opt("fold", 1)
POLL1 = opt("poll1", 0)
CIL = opt("cil", 1)
STG = opt("stg", 1)
ZPR = opt("zpr", 3)
MPR = opt("mpr", 0)
CT = opt("ct", 3)
DS = opt("ds", 1)
PPT, PPG, OWN = opt("ppt", 4), opt("ppg", 2), opt("own", 1)
EPR, ZGL, EPI = opt("epr", 0), opt("zgl", 1), opt("epi", 1)
XT, WT = opt("xt", 0), opt("wt", 2)
TL, SG, WTN = opt("tl", 1), opt("sg", 0), opt("wtn", 4)
XQ = opt("xq", 1)
TP = opt("tp", 3)
ZIL, ZSK, FIL = opt("zil", 1), opt("zsk", 1), opt("fil", 1)
MAP8, PF3, PFP = opt("map8", 0), opt("pf3", 3), opt("pfp", 1)
R3A, R3B, RZ = opt("r3a", 0), opt("r3b", 0), opt("rz", 0)
OUTF = ["", " sc1", " nt", " sc0 sc1"][opt("outf", 0)]
NFIX = opt("nfix", 0)

WS_EP = 0x0000
WS_FS = 0x1000
WS_FSC = WS_FS + 128 * 128
WS_FT = 0xC000
WS_FU = 0xE000
WS_FH = 0x10000
WS_FW = 0x50000
WS_STAT = 0x28000
WS_CSP = 0x30000
WS_H = 0x60000
WS_T = 0x660000
TSTR, USTR = 43008 + opt("tpad", 128), 86016 + opt("upad", 128)
WS_U = 0x910000
WS_WD = 0xBC0000
WS_STAMP = 0x2000000

SLAB = 49152
AUX = 3 * SLAB
ZU0, ZUS = 0, 16384
CP0, CPS = 65536, 20480
LGO = AUX + 2048
XB = CP0 + 10240
CBASE, CSTR = [0, 20480, CP0, CP0 + 5120, 45056], [5120, 5120, CPS, CPS, 5120]
FR_L, FI_L = AUX + 2048 + 128, AUX + 2048 + 128
MW0, MWA = 0, 22272
MT0 = 45056
RPK = FI_L
LDS_ALL = FI_L + 12288

sX, sG, sU, sWS, sTAB, sWR, sWI, sWD, sOUT = 8, 12, 16, 20, 24, 28, 32, 36, 40
sW, sRB, sCG, sLW = 44, 45, 46, 47
sTmp, sTmp2, sCnt, sDelta, sBuf, sSLAB = 48, 49, 50, 51, 52, 53
sAoff, sBoff, sM0 = 54, 55, 56
sWM, sWN, sFlag = 57, 58, 59
sK1, sJB, sTAG, sSpin = 60, 61, 62, 63
P = 64
sP, sG3, sHo, sWo, sUo, sCo, sLB, sLB2, sOo, sOc, sOOB = 64, 65, 66, 67, 68, 69, 70, 71, 72, 73, 74
sSgn, sS2, sNU, sWcol, sPar = 76, 78, 79, 80, 81
sWa, sWb, sWc, sMW = 6, 7, 75, 80
sTB = 55
sR3, sRZ, sI4 = 82, 83, 67
SRDS = {"X": (sX, P, 2048 * 1280), "WR": (sWR, P + 2, 2048 * 642), "WI": (sWI, P + 4, 2048 * 642),
        "G": (sG, P + 8, 640 * 3072), "U": (sU, P + 10, 640 * 3072), "WD": (sWD, P + 12, 1536 * 1280),
        "OUT": (sOUT, P + 14, 2048 * 1280), "WS": (sWS, P + 18, 1 << 28)}


class VQ:
    def __init__(self):
        self.q = []
    def issue(self, tag, n=1):
        self.q += [tag] * n
    def wait(self, *tags, extra=""):
        last = max([i for i, t in enumerate(self.q) if t in tags], default=-1)
        n = len(self.q) - 1 - last
        assert n <= 63, n
        e("s_waitcnt vmcnt(%d)%s", n, extra)
        self.q = self.q[last + 1:]
    def drain(self):
        self.q = []


STN = {}
for x in sys.argv:
    if x.startswith("--st="):
        for i_, grp in enumerate(x[5:].split(",")):
            for nm in grp.split("+"):
                STN[nm] = i_ + 1
STN["start"] = 0


def cap(fn):
    keep, A.lines = A.lines, []
    fn()
    out, A.lines = A.lines, keep
    return out


def weave(main, groups, skip=0):
    n = len(groups)
    step = (len(main) - skip) / (n + 0.001) if n else 0
    k = 0
    for i, ln in enumerate(main):
        while k < n and i >= skip + k * step:
            A.lines += groups[k]
            k += 1
        A.lines.append(ln)
    while k < n:
        A.lines += groups[k]
        k += 1


COLD = []


def rare(cond, fn):
    la, lb = A.newlabel("L_rare"), A.newlabel("L_back")
    e("%s %s", cond, la)
    A.label(lb)
    body = cap(fn)
    COLD.append(["%s:" % la] + body + ["    s_branch %s" % lb])


def flush_cold():
    while COLD:
        A.lines += COLD.pop(0)


def stamp(nm):
    if STAMPS and nm in STN:
        e("%s %s", "s_memtime" if "--cyc" in sys.argv else "s_memrealtime", s(84 + 2 * STN[nm], 2))


def make_tag():
    e("s_mul_i32 %s, %s, 0x9E3779B1", s(sTAG), s(sTAG))
    e("s_add_u32 %s, %s, 0x7F4A7C15", s(sTAG), s(sTAG))


def flag_store(soff, t0, t1):
    e("v_mov_b32 %s, %s", v(t0), s(sTAG))
    e("v_mov_b32 %s, 0", v(t1))
    e("s_mov_b64 exec, 1")
    e("buffer_store_dword %s, %s, %s, %s offen sc1", v(t0), v(t1), s(sWS, 4), s(soff))
    e("s_mov_b64 exec, -1")


def poll_issue(dst, n, vaddr, base):
    e("s_mov_b32 %s, 0x%x", s(sTmp), base)
    e("buffer_load_dword%s %s, %s, %s, %s offen sc1", "" if n == 1 else "x%d" % n, v(dst, n), v(vaddr), s(sWS, 4), s(sTmp))


def poll_check(dst, n, vaddr, base):
    assert n == 1

    def spin():
        top, done = A.newlabel("L_poll"), A.newlabel("L_polld")
        e("s_mov_b32 %s, 0", s(sSpin))
        A.label(top)
        if SLEEP:
            e("s_sleep %d", SLEEP)
        poll_issue(dst, n, vaddr, base)
        e("s_add_u32 %s, %s, 1", s(sSpin), s(sSpin))
        e("s_cmp_ge_u32 %s, %d", s(sSpin), opt("spin", 40000))
        e("s_waitcnt vmcnt(0)")
        e("s_cbranch_scc1 %s", done)
        e("v_cmp_ne_u32 vcc, %s, %s", s(sTAG), v(dst))
        e("s_cbranch_vccnz %s", top)
        A.label(done)
    e("v_cmp_ne_u32 vcc, %s, %s", s(sTAG), v(dst))
    rare("s_cbranch_vccnz", spin)


def poll_check_pipe(dst, depth, vaddr, base, gap):
    def spin():
        top, done = A.newlabel("L_pp"), A.newlabel("L_ppd")
        e("s_mov_b32 %s, 0", s(sSpin))
        for k in range(1, depth):
            poll_issue(dst + k, 1, vaddr, base)
            e("s_sleep %d", gap)
        A.label(top)
        for k in range(depth):
            poll_issue(dst + k, 1, vaddr, base)
            e("s_waitcnt vmcnt(%d)", depth - 1)
            e("v_cmp_ne_u32 vcc, %s, %s", s(sTAG), v(dst + (k + 1) % depth))
            e("s_cbranch_vccz %s", done)
            e("s_sleep %d", gap)
        e("s_add_u32 %s, %s, 1", s(sSpin), s(sSpin))
        e("s_cmp_lt_u32 %s, %d", s(sSpin), opt("spin", 40000))
        e("s_cbranch_scc1 %s", top)
        A.label(done)
    e("v_cmp_ne_u32 vcc, %s, %s", s(sTAG), v(dst))
    rare("s_cbranch_vccnz", spin)


def karg_wait(first, rest=()):
    e("s_waitcnt lgkmcnt(0)")
    for k in first:
        srd(A, *SRDS[k])
    e("s_load_dword %s, %s, 0x%x", s(sTAG), s(P + 18, 2), WS_EP)
    for k in rest:
        srd(A, *SRDS[k])


def tab_srd():
    e("s_getpc_b64 s[4:5]")
    e("s_add_u32 s4, s4, dft_tables@rel32@lo+4")
    e("s_addc_u32 s5, s5, dft_tables@rel32@hi+12")
    srd(A, sTAB, 4, TB.TAB_BYTES)


def dpp_sum16(r_):
    for ctl in ("quad_perm:[1,0,3,2]", "quad_perm:[2,3,0,1]", "row_half_mirror", "row_mirror"):
        e("s_nop 1")
        e("v_add_f32_dpp %s, %s, %s %s row_mask:0xf bank_mask:0xf", v(r_), v(r_), v(r_), ctl)


def round_bf16(r_):
    e("v_cvt_pk_bf16_f32 %s, %s, %s", v(r_), v(r_), v(r_))
    e("v_and_b32 %s, 0xffff0000, %s", v(r_), v(r_))


def mm16(d, a_, b_, first=False):
    e("v_mfma_f32_16x16x32_bf16 %s, %s, %s, %s", v(d, 4), v(a_, 4), v(b_, 4), "0" if first else v(d, 4))


def stats_addr(R):
    e("s_lshl_b32 %s, %s, 2", s(sTmp), s(sCG))
    e("s_add_u32 %s, %s, %s", s(sTmp), s(sTmp), s(sW))
    e("s_lshl_b32 %s, %s, 2", s(sTmp), s(sTmp))
    e("v_lshrrev_b32 %s, 4, v0", v(R + 20))
    e("v_add_u32 %s, %s, %s", v(R + 21), s(sTmp), v(R + 20))
    e("v_and_b32 %s, 31, %s", v(R + 20), v(R + 21))
    e("v_lshlrev_b32 %s, 6, %s", v(R + 20), v(R + 20))
    e("v_lshrrev_b32 %s, 5, %s", v(R + 22), v(R + 21))
    e("v_add_u32 %s, %s, %s", v(R + 20), v(R + 20), v(R + 22))
    e("s_lshl_b32 %s, %s, 2", s(sTmp), s(sRB))
    e("v_add_u32 %s, %s, %s", v(R + 20), s(sTmp), v(R + 20))
    e("v_mul_u32_u24 %s, 1280, %s", v(R + 20), v(R + 20))
    e("v_and_b32 %s, 15, v0", v(R + 22))
    e("v_lshl_add_u32 %s, %s, 4, %s", v(R + 20), v(R + 22), v(R + 20))


def stats_issue(R):
    for n in range(5):
        e("buffer_load_dwordx4 %s, %s, %s, 0 offen offset:%d", v(R + 4 * n, 4), v(R + 20), s(sX, 4), n * 256)


def stats_compute(R):
    F = R + 24
    S_, V_, T_ = R + 64, R + 66, R + 22
    for n in range(20):
        e("v_lshlrev_b32 %s, 16, %s", v(F + 2 * n), v(R + n))
        e("v_and_b32 %s, 0xffff0000, %s", v(F + 2 * n + 1), v(R + n))
    e("v_pk_add_f32 %s, %s, %s", v(S_, 2), v(F, 2), v(F + 2, 2))
    for n in range(2, 20):
        e("v_pk_add_f32 %s, %s, %s", v(S_, 2), v(S_, 2), v(F + 2 * n, 2))
    e("v_add_f32 %s, %s, %s", v(S_), v(S_), v(S_ + 1))
    dpp_sum16(S_)
    e("v_mul_f32 %s, 0x3acccccd, %s", v(S_), v(S_))
    for n in range(20):
        e("v_pk_add_f32 %s, %s, %s op_sel_hi:[1,0] neg_lo:[0,1] neg_hi:[0,1]", v(F + 2 * n, 2), v(F + 2 * n, 2), v(S_, 2))
    e("v_pk_mul_f32 %s, %s, %s", v(V_, 2), v(F, 2), v(F, 2))
    for n in range(1, 20):
        e("v_pk_fma_f32 %s, %s, %s, %s", v(V_, 2), v(F + 2 * n, 2), v(F + 2 * n, 2), v(V_, 2))
    e("v_add_f32 %s, %s, %s", v(V_), v(V_), v(V_ + 1))
    dpp_sum16(V_)
    e("v_mul_f32 %s, 0x3acccccd, %s", v(V_), v(V_))
    round_bf16(V_)
    e("v_add_f32 %s, 0x3727c5ac, %s", v(V_), v(V_))
    round_bf16(V_)
    e("v_sqrt_f32 %s, %s", v(V_), v(V_))
    e("s_nop 0")
    round_bf16(V_)
    e("v_rcp_f32 %s, %s", v(V_), v(V_))
    round_bf16(S_)
    e("v_and_b32 %s, 15, v0", v(T_))
    e("v_cmp_eq_u32 vcc, 1, %s", v(T_))
    e("v_lshlrev_b32 %s, 2, %s", v(R + 1), v(R + 21))
    e("v_lshl_add_u32 %s, %s, 9, %s", v(R + 1), v(T_), v(R + 1))
    e("v_cndmask_b32 %s, %s, %s, vcc", v(V_), v(V_), v(S_))
    e("v_cmp_gt_u32 vcc, 2, %s", v(T_))
    e("s_lshl_b32 %s, %s, 10", s(sTmp), s(sRB))
    e("s_add_u32 %s, %s, 0x%x", s(sTmp), s(sTmp), WS_STAT)
    e("s_and_saveexec_b64 s[4:5], vcc")
    e("buffer_store_dword %s, %s, %s, %s offen sc1", v(V_), v(R + 1), s(sWS, 4), s(sTmp))
    e("s_mov_b64 exec, s[4:5]")


def aux_poll_addr(ffn, dst):
    e("s_lshl_b32 %s, %s, 2", s(sTmp), s(sRB))
    e("s_add_u32 %s, %s, %s", s(sTmp), s(sTmp), s(sLW))
    e("s_lshl_b32 %s, %s, 1", s(sTmp), s(sTmp))
    e("v_and_b32 v6, 1, v0")
    e("v_add_u32 v6, %s, v6", s(sTmp))
    if ffn:
        e("s_and_b32 %s, s2, 0xc6", s(sTmp))
        e("s_add_u32 %s, %s, 128", s(sTmp), s(sTmp))
        e("v_and_b32 v7, 7, v0")
        e("v_bfe_u32 v12, v0, 3, 1")
        e("v_min_u32 v7, 4, v7")
        e("v_lshlrev_b32 v7, 3, v7")
        e("v_add3_u32 v7, v7, v12, %s", s(sTmp))
        e("v_cmp_gt_u32 vcc, 16, v0")
        e("s_nop 1")
        e("v_cndmask_b32 v6, v7, v6, vcc")
    e("v_lshlrev_b32 %s, 7, v6", v(dst))


def fw_poll_addr(dst):
    e("s_lshl_b32 %s, %s, 6", s(sTmp), s(sLW))
    e("v_add_u32 %s, %s, v0", v(dst), s(sTmp))
    e("v_min_u32 %s, 159, %s", v(dst), v(dst))
    e("v_lshlrev_b32 %s, 7, %s", v(dst), v(dst))


def aux_addr(ffn, R):
    e("v_and_b32 %s, 31, v0", v(R))
    e("v_lshrrev_b32 %s, 5, v0", v(R + 1))
    e("v_lshlrev_b32 %s, 2, %s", v(R), v(R))
    e("v_lshl_add_u32 %s, %s, 9, %s", v(R), v(R + 1), v(R))
    e("s_lshl_b32 %s, %s, 7", s(sTmp), s(sLW))
    e("v_add_u32 %s, %s, %s", v(R), s(sTmp), v(R))
    if ffn:
        e("v_lshrrev_b32 %s, 4, v0", v(R + 1))
        e("v_mul_u32_u24 %s, 12288, %s", v(R + 1), v(R + 1))
        e("v_and_b32 %s, 15, v0", v(R + 3))
        e("v_lshl_add_u32 %s, %s, 4, %s", v(R + 1), v(R + 3), v(R + 1))
        e("s_lshl_b32 %s, %s, 8", s(sTmp), s(sLW))
        e("s_lshl_b32 %s, %s, 10", s(sTmp2), s(sCG))
        e("s_add_u32 %s, %s, %s", s(sTmp), s(sTmp), s(sTmp2))
        e("v_add_u32 %s, %s, %s", v(R + 1), s(sTmp), v(R + 1))
        e("v_lshrrev_b32 %s, 5, v0", v(R + 16))
        e("v_lshl_add_u32 %s, %s, 29, %s", v(R + 16), v(R + 16), v(R + 1))


def aux_issue(ffn, R):
    e("s_lshl_b32 %s, %s, 10", s(sTmp), s(sRB))
    e("s_add_u32 %s, %s, 0x%x", s(sTmp), s(sTmp), WS_STAT)
    e("buffer_load_dword %s, %s, %s, %s offen sc1", v(R + 2), v(R), s(sWS, 4), s(sTmp))
    if ffn:
        for n in range(3):
            e("s_mov_b32 %s, 0x%x", s(sTmp), WS_CSP + n * 4 * 12288)
            e("buffer_load_dwordx4 %s, %s, %s, %s offen sc1", v(R + 4 + 4 * n, 4), v(R + 16 if n == 2 else R + 1), s(sWS, 4), s(sTmp))


def aux_finish(ffn, R):
    e("v_add_u32 %s, %d, %s", v(R), AUX, v(R))
    e("ds_write_b32 %s, %s", v(R), v(R + 2))
    if ffn:
        C_, T_ = R + 4, R + 8
        for n in range(1, 3):
            for k in (0, 2):
                e("v_pk_add_f32 %s, %s, %s", v(C_ + k, 2), v(C_ + k, 2), v(C_ + 4 * n + k, 2))
        for op in ("v_permlane16_swap_b32", "v_permlane32_swap_b32"):
            for i in range(4):
                e("v_mov_b32 %s, %s", v(T_ + i), v(C_ + i))
            e("s_nop 0")
            for i in range(4):
                e("%s %s, %s", op, v(C_ + i), v(T_ + i))
            e("s_nop 0")
            for i in range(4):
                e("v_add_f32 %s, %s, %s", v(C_ + i), v(C_ + i), v(T_ + i))
        e("s_lshl_b32 %s, %s, 8", s(sTmp), s(sLW))
        e("s_add_u32 %s, %s, %d", s(sTmp), s(sTmp), AUX + 1024)
        e("v_lshl_add_u32 %s, %s, 4, %s", v(R + 1), v(R + 3), s(sTmp))
        e("ds_write_b128 %s, %s", v(R + 1), v(C_, 4))
    e("s_waitcnt lgkmcnt(0)")


def p3_map():
    if MAP8:
        e("s_and_b32 %s, s2, 7", s(sP))
        e("s_lshl_b32 %s, %s, 2", s(sP), s(sP))
        e("s_bfe_u32 s3, s2, 0x20003")
        e("s_add_u32 %s, %s, s3", s(sP), s(sP))
        e("s_lshr_b32 %s, s2, 5", s(sG3))
        return
    e("s_and_b32 s3, s2, 7")
    e("s_lshr_b32 %s, s2, 3", s(sTmp))
    e("s_lshr_b32 %s, s3, 1", s(sP))
    e("s_lshl_b32 %s, %s, 3", s(sP), s(sP))
    e("s_and_b32 %s, %s, 7", s(sTmp2), s(sTmp))
    e("s_add_u32 %s, %s, %s", s(sP), s(sP), s(sTmp2))
    e("s_and_b32 s3, s3, 1")
    e("s_lshl_b32 s3, s3, 2")
    e("s_lshr_b32 %s, %s, 3", s(sTmp), s(sTmp))
    e("s_add_u32 %s, s3, %s", s(sG3), s(sTmp))


ZG, ZC, ZAB = [160, 224], 64, [136, 192, 208]


def ZAr(c3, rt): return ZAB[c3] + 4 * rt


def z_setup():
    p3_map()
    e("s_mul_i32 %s, %s, %d", s(sLB), s(sLW), ZUS)
    e("s_lshl_b32 %s, %s, 7", s(sUo), s(sP))
    e("s_lshl_b32 %s, %s, 12", s(sTmp), s(sLW))
    e("s_add_u32 %s, %s, %s", s(sUo), s(sUo), s(sTmp))
    e("s_add_u32 %s, %s, 0x%x", s(sUo), s(sUo), WS_U)
    e("s_mul_i32 %s, %s, 21", s(sCo), s(sG3))
    e("s_add_u32 %s, %s, %s", s(sCo), s(sCo), s(sLW))
    e("s_mul_i32 %s, %s, 3072", s(sCo), s(sCo))
    e("s_add_u32 %s, %s, %d", s(sCo), s(sCo), TB.CI_OFF)
    e("s_lshl_b32 %s, %s, 1", s(sS2), s(sP))


def wd_bases(wreg):
    e("s_lshr_b32 %s, %s, 1", s(sOc), s(sG3))
    e("s_and_b32 %s, %s, 1", s(sTmp), s(sG3))
    e("s_mul_i32 %s, %s, 20", s(sTmp), s(sTmp))
    e("s_add_u32 %s, %s, %s", s(sOc), s(sOc), s(sTmp))
    e("s_add_u32 %s, %s, 16", s(sOc), s(sOc))
    e("s_lshl_b32 %s, %s, 5", s(sOc), s(sOc))
    e("s_lshl_b32 %s, %s, 10", s(sTmp), s(wreg))
    e("s_add_u32 %s, %s, 0x%x", s(sTmp), s(sTmp), WS_WD)
    e("s_mul_i32 %s, %s, %d", s(sWa), s(sG3), 2 * 49152)
    e("s_add_u32 %s, %s, %s", s(sWa), s(sWa), s(sTmp))
    e("s_mul_i32 %s, %s, %d", s(sWc), s(sOc), 49152 // 32)
    e("s_add_u32 %s, %s, %s", s(sWc), s(sWc), s(sTmp))


def rot3():
    e("s_and_b32 %s, %s, 3", s(sR3), s(sG3))
    e("s_mul_i32 %s, %s, %d", s(sR3), s(sR3), R3A)
    e("s_and_b32 %s, %s, 7", s(sTmp), s(sP))
    e("s_mul_i32 %s, %s, %d", s(sTmp), s(sTmp), R3B)
    e("s_add_u32 %s, %s, %s", s(sR3), s(sR3), s(sTmp))
    for _ in range((3 * R3A + 7 * R3B) // 12):
        e("s_cmp_ge_u32 %s, 12", s(sR3))
        e("s_cselect_b32 %s, 12, 0", s(sTmp))
        e("s_sub_u32 %s, %s, %s", s(sR3), s(sR3), s(sTmp))


def item4(i, dst):
    e("s_add_u32 %s, %s, %d", s(dst), s(sR3), i)
    e("s_cmp_ge_u32 %s, 12", s(dst))
    e("s_cselect_b32 %s, 12, 0", s(sTmp))
    e("s_sub_u32 %s, %s, %s", s(dst), s(dst), s(sTmp))
    e("s_lshl_b32 %s, %s, 12", s(dst), s(dst))


WOFF = [(0, 0), (0, 49152), (0, 20 * 49152), (0, 21 * 49152), (1, 0)]


def stage_all():
    rot3()
    for i in range(3):
        item4(i, sI4)
        for w in range(4):
            e("s_add_u32 %s, %s, %d", s(sCnt), s(sI4), ((w - 3) * 1024) & 0xffffffff)
            e("s_add_u32 %s, %s, %s", s(sTmp2), s(sCnt), s(sWa))
            for ct in range(5):
                e("s_mov_b32 m0, %d", CP0 + w * CPS + i * 5120 + ct * 1024)
                if ct < 4:
                    e("s_add_u32 %s, %s, %d", s(sTmp), s(sTmp2), WOFF[ct][1])
                else:
                    e("s_add_u32 %s, %s, %s", s(sTmp), s(sCnt), s(sWc))
                e("buffer_load_dwordx4 v5, %s, %s offen sc1 lds", s(sWS, 4), s(sTmp))


def stage_wd(i0, i1):
    e("s_mul_i32 %s, %s, %d", s(sSLAB), s(sLW), CPS)
    rot3()
    for i in range(i0, i1):
        item4(i, sI4)
        e("s_add_u32 %s, %s, %s", s(sTmp2), s(sI4), s(sWa))
        for ct in range(5):
            e("s_add_u32 m0, %s, %d", s(sSLAB), CP0 + i * 5120 + ct * 1024)
            if ct < 4:
                e("s_add_u32 %s, %s, %d", s(sTmp), s(sTmp2), WOFF[ct][1])
            else:
                e("s_add_u32 %s, %s, %s", s(sTmp), s(sI4), s(sWc))
            e("buffer_load_dwordx4 v5, %s, %s offen sc1 lds", s(sWS, 4), s(sTmp))


def z_ci_sub(idx):
    n = 0
    for z in range(6):
        c = [c3 for c3 in range(3) if z * 3 + c3 in idx]
        lab = A.newlabel("L_noc5")
        if c and z == 5 and ZSK:
            e("s_cmp_lg_u32 %s, 0", s(sLW))
            e("s_cbranch_scc1 %s", lab)
        else:
            n += len(c)
        if c:
            z_item(z, 4 * 3072, sCo, sRZ)
        for c3 in c:
            e("buffer_load_dwordx4 %s, v5, %s, %s offen offset:%d", v(ZC + z * 12 + c3 * 4, 4), s(sTAB, 4), s(sRZ), c3 * 1024)
        A.label(lab)
    return n


def z_ci_all():
    return z_ci_sub(range(18))


def stage_done(n):
    e("s_lshl_b32 %s, %s, 2", s(sTmp), s(sLW))
    e("s_add_u32 %s, %s, %d", s(sTmp), s(sTmp), LGO + 16)
    e("v_mov_b32 v12, %s", s(sTmp))
    e("v_mov_b32 v13, 1")
    e("s_waitcnt vmcnt(%d)", n)
    e("ds_write_b32 v12, v13")


def z_item(z, mul, base, dst):
    e("s_and_b32 %s, %s, 3", s(dst), s(sG3))
    e("s_mul_i32 %s, %s, %d", s(dst), s(dst), RZ)
    e("s_add_u32 %s, %s, %d", s(dst), s(dst), z)
    e("s_cmp_ge_u32 %s, 6", s(dst))
    e("s_cselect_b32 %s, 6, 0", s(sTmp))
    e("s_sub_u32 %s, %s, %s", s(dst), s(dst), s(sTmp))
    e("s_lshl_b32 %s, %s, 2", s(sTmp), s(dst))
    e("s_add_u32 %s, %s, %s", s(sTmp), s(sTmp), s(sLW))
    e("s_cmp_gt_u32 %s, 20", s(sTmp))
    e("s_cselect_b32 %s, 0x20000000, %s", s(sTmp), s(base))
    e("s_mul_i32 %s, %s, %d", s(dst), s(dst), mul)
    e("s_add_u32 %s, %s, %s", s(dst), s(dst), s(sTmp))


def z_ci_loads(z, vL):
    z_item(z, 4 * 3072, sCo, sRZ)
    for c3 in range(3):
        e("buffer_load_dwordx4 %s, %s, %s, %s offen offset:%d", v(ZC + z * 12 + c3 * 4, 4), v(vL), s(sTAB, 4), s(sRZ), c3 * 1024)


def ZGr(u, ro, nh, kap): return ZG[u] + ((ro * 2 + nh) * 2 + kap) * 4


def z_gconst():
    e("v_and_b32 v56, 15, v0")
    e("v_lshlrev_b32 v56, 6, v56")
    e("v_add_u32 v56, %s, v56", s(sS2))
    e("v_cvt_f32_u32 v56, v56")
    e("v_mul_f32 v56, 0x3a000000, v56")
    e("v_lshrrev_b32 v57, 5, v0")
    e("v_lshlrev_b32 v57, 3, v57")
    e("v_cvt_f32_u32 v57, v57")
    e("v_bfe_u32 v58, v0, 4, 1")
    e("v_cvt_f32_u32 v58, v58")
    e("v_mul_f32 v58, 0x3e800000, v58")
    for u in range(2):
        if u:
            e("v_add_f32 v56, 0x3a000000, v56")
        for kap in range(2):
            if kap:
                e("v_add_f32 v59, 0x41800000, v57")
                e("v_fma_f32 v59, v59, v56, v58")
            else:
                e("v_fma_f32 v59, v57, v56, v58")
            for ro in range(2):
                if ro:
                    e("v_add_f32 v60, 0xbe800000, v59")
                else:
                    e("v_mov_b32 v60, v59")
                for i2 in range(4):
                    e("v_cos_f32 v61, v60")
                    e("v_add_f32 v60, v60, v56")
                    e("v_cos_f32 v62, v60")
                    e("v_add_f32 v60, v60, v56")
                    b = ZGr(u, ro, 0, kap) + i2
                    e("v_cvt_pk_bf16_f32 %s, v61, v62", v(b))
                    e("v_xor_b32 %s, 0x80000000, %s", v(b + 8), v(b))


def fu_poll_issue():
    e("v_lshlrev_b32 v11, 7, v0")
    lab0 = A.newlabel("L_nofup")
    e("s_cmp_lg_u32 %s, 0", s(sLW))
    e("s_cbranch_scc1 %s", lab0)
    poll_issue(16, 1, 11, WS_FU)
    A.label(lab0)


def zpart():
    vL, vUG, vTU, vTU1, vPU = 5, 6, 7, 8, 11
    UF, ZT = 16, 32
    e("v_lshlrev_b32 %s, 4, v0", v(vL))
    e("v_lshrrev_b32 v12, 3, v0")
    e("v_mul_u32_u24 v12, %d, v12", USTR)
    e("v_lshrrev_b32 v13, 2, v0")
    e("v_lshrrev_b32 v14, 4, v0")
    e("v_xor_b32 v13, v13, v14")
    e("v_and_b32 v13, 1, v13")
    e("v_lshl_add_u32 v12, v13, 6, v12")
    e("v_and_b32 v13, 3, v0")
    e("v_lshl_add_u32 %s, v13, 4, v12", v(vUG))
    e("v_lshrrev_b32 v12, 5, v0")
    e("v_lshlrev_b32 v12, 3, v12")
    e("v_bfe_u32 v14, v0, 2, 2")
    e("v_add_u32 v12, v12, v14")
    e("v_lshlrev_b32 v12, 7, v12")
    e("v_lshl_add_u32 v12, v13, 4, v12")
    e("v_bfe_u32 v14, v0, 4, 1")
    e("v_lshl_add_u32 v12, v14, 3, v12")
    e("v_bfe_u32 v14, v0, 3, 1")
    e("v_lshl_add_u32 v12, v14, 6, v12")
    e("v_add_u32 %s, %s, v12", v(vTU), s(sLB))
    e("v_xor_b32 %s, 64, %s", v(vTU1), v(vTU))
    e("v_mov_b32 v12, %d", LGO)
    lab1, lab2 = A.newlabel("L_lgo"), A.newlabel("L_lgod")
    e("s_cmp_lg_u32 %s, 0", s(sLW))
    e("s_cbranch_scc1 %s", lab1)
    e("s_waitcnt vmcnt(0)")
    poll_check(UF, 1, vPU, WS_FU)
    e("v_mov_b32 v13, 1")
    e("ds_write_b32 v12, v13")
    e("s_branch %s", lab2)
    A.label(lab1)
    e("s_sleep 1")
    e("ds_read_b32 v13, v12")
    e("s_waitcnt lgkmcnt(0)")
    e("v_cmp_ne_u32 vcc, 1, v13")
    e("s_cbranch_vccnz %s", lab1)
    A.label(lab2)
    stamp("zU")
    if ZPR:
        e("s_setprio %d", ZPR)
    q = VQ()

    def udma(z):
        z_item(z, 4 * 4096, sUo, sRZ)
        for n in range(4):
            e("s_add_u32 m0, %s, %d", s(sLB), (z % 4) * 4096 + n * 1024)
            e("s_add_u32 %s, %s, %d", s(sTmp2), s(sRZ), n * 8 * USTR)
            e("buffer_load_dwordx4 %s, %s, %s offen sc1 lds", v(vUG), s(sWS, 4), s(sTmp2))
        q.issue("u%d" % z, 4)
    for z in range(4):
        udma(z)
    def ureads(z):
        q.wait("u%d" % z)
        stamp("z%d" % z)
        for u in range(2):
            for kap in range(2):
                for rd in range(2):
                    e("ds_read_b64_tr_b16 %s, %s offset:%d", v(UF + 8 * u + 4 * kap + 2 * rd, 2), v(vTU1 if u else vTU), (z % 4) * 4096 + kap * 2048 + rd * 512)
    ureads(0)
    skip5 = A.newlabel("L_noz5")

    def cv(rt):
        b = ZT + rt * 8
        return [cap(lambda k=k: e("v_cvt_pk_bf16_f32 %s, %s, %s", v(b + k), v(b + 2 * k), v(b + 2 * k + 1))) for k in range(4)]

    def s1(u):
        return [cap(lambda kap=kap, nh=nh, ro=ro: mm16(ZT + u * 16 + (nh * 2 + ro) * 4, UF + 8 * u + 4 * kap, ZGr(u, ro, nh, kap), kap == 0))
                for kap in range(2) for nh in range(2) for ro in range(2)]

    def s2(z, rt):
        return [cap(lambda c3=c3: mm16(ZAr(c3, rt), ZC + z * 12 + c3 * 4, ZT + rt * 8, z == 0)) for c3 in range(3)]

    def put(gs):
        for g in gs:
            A.lines += g
    for z in range(6):
        if z == 5 and ZSK:
            e("s_cmp_lg_u32 %s, 0", s(sLW))
            e("s_cbranch_scc1 %s", skip5)
        e("s_waitcnt lgkmcnt(4)")
        put(s1(0))
        e("s_waitcnt lgkmcnt(0)")
        m1 = s1(1)
        if not ZIL:
            put(m1)
        else:
            c0, c1 = cv(0), cv(1)
            put(m1[:5] + c0[:2] + m1[5:6] + c0[2:] + m1[6:7] + c1[:2] + m1[7:] + c1[2:])
        if z + 4 < 6:
            if z == 1 and ZSK:
                lab = A.newlabel("L_nou5")
                e("s_cmp_lg_u32 %s, 0", s(sLW))
                e("s_cbranch_scc1 %s", lab)
                udma(5)
                A.label(lab)
                q.q = q.q[:-4]
            else:
                udma(z + 4)
        if z + 1 < 6:
            if z == 4 and ZSK:
                lab = A.newlabel("L_nor5")
                e("s_cmp_lg_u32 %s, 0", s(sLW))
                e("s_cbranch_scc1 %s", lab)
                q.issue("u5", 4)
                ureads(5)
                A.label(lab)
            else:
                ureads(z + 1)
        if not ZIL:
            put(cv(0) + cv(1) + cv(2) + cv(3))
            e("s_nop 0")
            put(s2(z, 0) + s2(z, 1) + s2(z, 2) + s2(z, 3))
        else:
            if z == 5:
                e("s_nop 1")
            a0, a1, c2, c3_ = s2(z, 0), s2(z, 1), cv(2), cv(3)
            put(a0[:2] + c2[:2] + a0[2:] + c2[2:] + a1[:1] + c3_[:2] + a1[1:2] + c3_[2:] + a1[2:])
            e("s_nop 0")
            put(s2(z, 2) + s2(z, 3))
    A.label(skip5)
    e("v_add_u32 v12, %s, %s", s(sLB), v(vL))
    for rt in range(4):
        for c3 in range(3):
            if rt == 3 and c3 == 0:
                e("s_nop 1")
            e("ds_write_b128 v12, %s offset:%d", v(ZAr(c3, rt), 4), c3 * 4096 + rt * 1024)
    e("s_waitcnt lgkmcnt(0)")
    stamp("zend")
    e("s_barrier")


vA0, vA1, vB0, vB1 = 2, 3, 4, 1


def lgo_init():
    e("v_mov_b32 v12, %d", LGO)
    e("v_mov_b32 v13, 0")
    e("ds_write_b32 v12, v13")
    e("ds_write_b32 v12, v13 offset:4")
    e("ds_write_b32 v12, v13 offset:8")
    e("ds_write_b32 v12, v13 offset:12")
    for i in range(4):
        e("ds_write_b32 v12, v13 offset:%d", 16 + 4 * i)


def k_offset(dst):
    e("s_and_b32 %s, s2, 1", s(dst))
    e("s_mul_i32 %s, %s, 5", s(dst), s(dst))
    e("s_bfe_u32 %s, s2, 0x10003", s(sTmp))
    e("s_mul_i32 %s, %s, 3", s(sTmp), s(sTmp))
    e("s_add_u32 %s, %s, %s", s(dst), s(dst), s(sTmp))
    if KG:
        e("s_lshr_b32 %s, s2, 6", s(sTmp))
        e("s_lshl_b32 %s, %s, 2", s(sTmp), s(sTmp))
        e("s_lshr_b32 %s, 0x%x, %s", s(sTmp), KG, s(sTmp))
        e("s_and_b32 %s, %s, 15", s(sTmp), s(sTmp))
        e("s_add_u32 %s, %s, %s", s(dst), s(dst), s(sTmp))
        mod10(dst)


KG = int(str(opt("kg", 0)), 16)


def mod10(dst):
    e("s_cmp_ge_u32 %s, 10", s(dst))
    e("s_cselect_b32 %s, 10, 0", s(sTmp))
    e("s_sub_u32 %s, %s, %s", s(dst), s(dst), s(sTmp))


def x_src_scalar():
    e("s_lshl_b32 %s, %s, 2", s(sAoff), s(sRB))
    e("s_add_u32 %s, %s, %s", s(sAoff), s(sAoff), s(sLW))
    e("s_mul_i32 %s, %s, 1280", s(sAoff), s(sAoff))


def ffn_loader():
    if PRL & 2:
        e("s_setprio 2")
    e("v_lshrrev_b32 v6, 3, v0")
    e("v_mul_u32_u24 v6, 81920, v6")
    e("v_and_b32 v7, 7, v0")
    e("v_lshrrev_b32 v8, 4, v0")
    e("v_xor_b32 v7, v7, v8")
    e("v_lshl_add_u32 %s, v7, 4, v6", v(vA0))
    e("v_xor_b32 %s, 64, %s", v(vA1), v(vA0))
    e("v_mul_u32_u24 v6, 3072, v8")
    e("v_and_b32 v7, 15, v0")
    e("v_lshlrev_b32 v8, 2, v8")
    e("v_xor_b32 v7, v7, v8")
    e("v_lshl_add_u32 %s, v7, 4, v6", v(vB0))
    e("v_xor_b32 %s, 32, %s", v(vB1), v(vB0))
    x_src_scalar()
    e("s_mul_i32 %s, %s, %d", s(sBoff), s(sLW), 16 * 3072)
    e("s_lshl_b32 %s, %s, 8", s(sTmp), s(sCG))
    e("s_add_u32 %s, %s, %s", s(sBoff), s(sBoff), s(sTmp))
    e("s_lshl_b32 %s, %s, 12", s(sM0), s(sLW))
    k_offset(sJB)
    XR_ = opt("xrot", 0)
    if XR_:
        e("s_bfe_u32 %s, s2, 0x20003", s(sJB))
        e("s_mul_i32 %s, %s, 5", s(sJB), s(sJB))
        e("s_add_u32 %s, %s, 1", s(sJB), s(sJB))
        e("s_lshr_b32 %s, %s, 1", s(sJB), s(sJB))
        if XR_ & 4:
            e("s_mov_b32 %s, 0", s(sJB))
        e("s_lshr_b32 %s, s2, 6", s(sTmp))
        e("s_mul_i32 %s, %s, %d", s(sTmp), s(sTmp), (XR_ & 3) - 1)
        e("s_add_u32 %s, %s, %s", s(sJB), s(sJB), s(sTmp))
        e("s_cmp_ge_u32 %s, 10", s(sJB))
        e("s_cselect_b32 %s, 10, 0", s(sTmp))
        e("s_sub_u32 %s, %s, %s", s(sJB), s(sJB), s(sTmp))
    NR = 10
    tab_srd()
    stamp("l_pre")
    e("s_waitcnt lgkmcnt(0)")
    stamp("l_k")
    for k in ("X", "G", "U"):
        srd(A, *SRDS[k])
    q = VQ()

    def slab_groups(i):
        b = (i % 3) * SLAB
        gs = []

        def head():
            if i < NFIX:
                e("s_add_u32 %s, %s, %d", s(sWM), s(sAoff), i * 128)
                e("s_add_u32 %s, %s, %d", s(sWN), s(sBoff), i * 64 * 3072)
            else:
                e("s_add_u32 %s, %s, %d", s(sTmp), s(sJB), NFIX)
                e("s_lshl_b32 %s, %s, 7", s(sWM), s(sTmp))
                e("s_add_u32 %s, %s, %s", s(sWM), s(sWM), s(sAoff))
                e("s_mul_i32 %s, %s, %d", s(sWN), s(sTmp), 64 * 3072)
                e("s_add_u32 %s, %s, %s", s(sWN), s(sWN), s(sBoff))
                e("s_add_u32 %s, %s, 1", s(sJB), s(sJB))
                e("s_cmp_eq_u32 %s, %d", s(sJB), NR)
                e("s_cselect_b32 %s, 0, %s", s(sJB), s(sJB))
        for n in range(4):
            def f(n=n):
                if n == 0:
                    head()
                e("s_add_u32 m0, %s, %d", s(sM0), b + n * 1024)
                e("s_add_u32 %s, %s, %d", s(sTmp), s(sWM), n * 8 * 81920)
                e("buffer_load_dwordx4 %s, %s, %s offen lds", v(vA1 if n & 1 else vA0), s(sX, 4), s(sTmp))
            gs.append(cap(f))
        for mat in range(2):
            for n in range(4):
                def f(n=n, mat=mat):
                    e("s_add_u32 m0, %s, %d", s(sM0), b + 16384 * (1 + mat) + n * 1024)
                    e("s_add_u32 %s, %s, %d", s(sTmp), s(sWN), n * 4 * 3072)
                    e("buffer_load_dwordx4 %s, %s, %s offen lds", v(vB1 if n & 2 else vB0), s(sU if mat else sG, 4), s(sTmp))
                gs.append(cap(f))
        q.issue("s%d" % i, 12)
        return gs

    def slab(i, main=()):
        weave(list(main), slab_groups(i))

    def wait2(n):
        la, lb = A.newlabel("L_w2"), A.newlabel("L_w2")
        e("s_cmp_ge_u32 %s, 48", s(sPar))
        e("s_cbranch_scc1 %s", la)
        e("s_waitcnt vmcnt(%d)", n + 4)
        e("s_branch %s", lb)
        A.label(la)
        e("s_waitcnt vmcnt(%d)", n)
        A.label(lb)

    def bar(b):
        stamp("fl_a%d" % b)
        e("s_barrier")
        stamp("fl_b%d" % b)
    slab(0)
    stamp("l_s0")
    lgo_init()
    e("s_load_dword %s, %s, 0x%x", s(sTAG), s(P + 18, 2), WS_EP)
    for k in ("WS", "WD", "WR", "WI"):
        srd(A, *SRDS[k])
    z_setup()
    e("v_lshlrev_b32 v5, 4, v0")
    fw_poll_addr(10)
    aux_poll_addr(True, 15)
    aux_addr(True, 36)
    slab(1, cap(z_gconst))
    if WT:
        e("s_bfe_u32 %s, s2, 0x20001", s(sTmp))
        e("s_lshl_b32 %s, %s, 2", s(sTmp), s(sTmp))
        e("s_lshr_b32 %s, 0x9f51, %s", s(sTmp), s(sTmp))
        e("s_and_b32 %s, %s, 15", s(sNU), s(sTmp))
        e("s_cmp_gt_u32 %s, %s", s(sCG), s(sNU))
        e("s_cselect_b32 %s, 1, 0", s(sTmp))
        e("s_lshr_b32 %s, s2, 6", s(sCnt))
        e("s_sub_u32 %s, %s, %s", s(sCnt), s(sCnt), s(sTmp))
        e("s_lshl_b32 %s, %s, 3", s(sCnt), s(sCnt))
        e("s_bfe_u32 %s, s2, 0x30003", s(sTmp))
        e("s_add_u32 %s, %s, %s", s(sCnt), s(sCnt), s(sTmp))
        e("s_lshl_b32 %s, %s, 2", s(sCnt), s(sCnt))
        e("s_add_u32 %s, %s, %s", s(sCnt), s(sCnt), s(sLW))
        e("s_mul_i32 %s, %s, %d", s(sCnt), s(sCnt), WTN)
        e("s_and_b32 %s, s2, 1", s(sTmp))
        e("s_mul_i32 %s, %s, 320", s(sTmp), s(sTmp))
        e("s_add_u32 %s, %s, %s", s(sCnt), s(sCnt), s(sTmp))
        e("s_add_u32 %s, %s, %d", s(sCnt), s(sCnt), (10 - WTN) * 64)
        e("v_min_u32 v61, %d, v0", 2 * WTN - 1)
        e("v_lshrrev_b32 v60, 1, v61")
        e("v_add_u32 v60, %s, v60", s(sCnt))
        e("v_subrev_u32 v62, 640, v60")
        e("v_min_u32 v60, v60, v62")
        e("v_mul_u32_u24 v60, 3072, v60")
        e("v_and_b32 v61, 1, v61")
        e("v_lshl_add_u32 v60, v61, 7, v60")
        e("s_lshl_b32 %s, %s, 8", s(sTmp), s(sNU))
        e("s_cmp_eq_u32 %s, %s", s(sCG), s(sNU))
        e("s_cselect_b32 %s, 0x20000000, %s", s(sTmp), s(sTmp))
        e("s_cmp_eq_u32 %s, 15", s(sNU))
        e("s_cselect_b32 %s, 0x20000000, %s", s(sTmp), s(sTmp))
        e("v_add_u32 v60, %s, v60", s(sTmp))

    def wtouch():
        e("buffer_load_dword v62, v60, %s, 0 offen", s(sG, 4))
        e("buffer_load_dword v62, v60, %s, 0 offen", s(sU, 4))
    if WT == 2:
        wtouch(); q.issue("wt", 2)
    stamp("l_iss")
    q.wait("s0", extra=" lgkmcnt(0)")
    e("s_barrier")
    stamp("l_bi")
    make_tag()
    slab(2)
    if WT == 1:
        wtouch()
    repack_dma()
    wait2(14 if WT == 1 else 12)
    q.q = ["s2"] * 12
    bar(0)
    slab(3)
    wait2(14 if WT == 1 else 12)
    q.q = ["s3"] * 12
    bar(1)
    slab(4)
    e("s_waitcnt vmcnt(24)")
    repack_finish()
    wait2(12)
    q.q = ["s4"] * 12
    bar(2)
    slab(5)
    if WARM == 2:
        warm_touch(); q.issue("wt", 2)
    q.wait("s4")
    bar(3)
    lab = A.newlabel("L_nocf")
    e("s_cmp_lg_u32 %s, 0", s(sLW))
    e("s_cbranch_scc1 %s", lab)
    e("s_lshl_b32 %s, s2, 7", s(sCnt))
    e("s_add_u32 %s, %s, 0x%x", s(sCnt), s(sCnt), WS_FW)
    flag_store(sCnt, 16, 17)
    A.label(lab)
    slab(6)
    q.wait("s5")
    bar(4)
    slab(7)
    if PF3 & 1:
        pf3(1)
    if PF3 & 2:
        pf3(0)
    q.wait("s6")
    bar(5)
    if TL:
        slab(8)
        q.wait("s7")
        bar(6)
        poll_issue(34, 1, 15, WS_FS); poll_issue(35, 1, 10, WS_FW); q.issue("p", 2)
        slab(9)
        wd_bases(sLW)
        q.wait("s8")
        bar(7)
        q.wait("p")
        poll_check(34, 1, 15, WS_FS)
        poll_check(35, 1, 10, WS_FW)
        aux_issue(True, 36); q.issue("aux", 4)
        pf3_go(q, PF3)
        q.wait("s9")
        bar(8)
        stage_wd(0, SG); q.issue("sg", 5 * SG)
        q.wait("aux")
        aux_finish(True, 36)
        bar(9)
        if SG == 4:
            stage_done(0)
    else:
        poll_issue(34, 1, 15, WS_FS); poll_issue(35, 1, 10, WS_FW); q.issue("p", 2)
        slab(8)
        q.wait("s7")
        bar(6)
        slab(9)
        q.wait("p")
        poll_check(34, 1, 15, WS_FS)
        poll_check(35, 1, 10, WS_FW)
        aux_issue(True, 36); q.issue("aux", 4)
        if PFP == 0:
            pf3_go(q, PF3)
        q.wait("s8")
        bar(7)
        if PFP == 1:
            pf3_go(q, PF3)
        q.wait("aux")
        aux_finish(True, 36)
        bar(8)
        wd_bases(sLW)
        stage_wd(0, 4)
        if CIL == 0:
            z_ci_all()
        stage_done(18 if CIL == 0 else 0)
    e("v_mov_b32 v12, %d", LGO)
    lab = A.newlabel("L_hout")
    A.label(lab)
    e("s_sleep 1")
    e("ds_read_b32 v13, v12 offset:4")
    e("s_waitcnt lgkmcnt(0)")
    e("v_cmp_ne_u32 vcc, 4, v13")
    e("s_cbranch_vccnz %s", lab)
    if TL and SG < 4:
        stage_wd(SG, 4)
        fu_poll_issue()
        stage_done(z_ci_all())
    else:
        fu_poll_issue()
        if CIL == 1:
            z_ci_all()
    e("s_branch L_zpart")


def wspec_shift(dst):
    e("s_mul_i32 %s, %s, 642", s(sDelta), s(sK1))
    e("s_mul_i32 %s, s3, 320", s(sTmp))
    e("s_add_u32 %s, %s, %s", s(sDelta), s(sDelta), s(sTmp))
    e("s_and_b32 %s, %s, 15", s(dst), s(sDelta))


def wspec_dma():
    mid_k1()
    e("v_mul_u32_u24 v12, 3121, v0")
    e("v_lshrrev_b32 v12, 16, v12")
    e("v_mul_u32_u24 v12, %d, v12", 32 * 642 - 336)
    e("v_lshl_add_u32 v12, v0, 4, v12")
    wspec_shift(sTmp2)
    e("s_sub_u32 %s, %s, %s", s(sDelta), s(sDelta), s(sTmp2))
    e("s_and_b32 %s, %s, 1", s(sTmp), s(sLW))
    e("s_mul_i32 %s, %s, %d", s(sCnt), s(sTmp), 11 * 1008)
    e("s_mul_i32 %s, %s, %d", s(sTmp), s(sTmp), 33 * 32 * 642)
    e("s_add_u32 %s, %s, %s", s(sDelta), s(sDelta), s(sTmp))
    e("s_cmp_ge_u32 %s, 2", s(sLW))
    e("s_cselect_b32 %s, %s, %s", s(sWR), s(sWI), s(sWR))
    e("s_cselect_b32 %s, %s, %s", s(sWR + 1), s(sWI + 1), s(sWR + 1))
    e("s_cselect_b32 %s, %d, 0", s(sTmp), MWA)
    e("s_add_u32 %s, %s, %s", s(sCnt), s(sCnt), s(sTmp))
    gs = []
    for n in range(11):
        def f(n=n):
            e("s_add_u32 m0, %s, %d", s(sCnt), MW0 + n * 1008)
            e("s_add_u32 %s, %s, %d", s(sTmp), s(sDelta), n * 3 * 32 * 642)
            e("buffer_load_dwordx4 v12, %s, %s offen lds", s(sWR, 4), s(sTmp))
        gs.append(cap(f))
    return gs


def repack_dma():
    e("v_lshrrev_b32 v12, 3, v0")
    e("v_mul_u32_u24 v13, 1280, v12")
    e("v_bfe_u32 v14, v0, 4, 2")
    e("v_lshlrev_b32 v14, 1, v14")
    e("v_and_b32 v12, 7, v0")
    e("v_xor_b32 v12, v12, v14")
    e("v_lshl_add_u32 v12, v12, 4, v13")
    e("s_mul_i32 %s, s2, 3", s(sCnt))
    e("s_add_u32 %s, %s, %s", s(sCnt), s(sCnt), s(sLW))
    e("s_cmp_eq_u32 %s, 3", s(sLW))
    e("s_cselect_b32 %s, 480, %s", s(sCnt), s(sCnt))
    e("s_mul_i32 %s, %s, 52429", s(sBuf), s(sCnt))
    e("s_lshr_b32 %s, %s, 19", s(sBuf), s(sBuf))
    e("s_mul_i32 %s, %s, 10", s(sTmp), s(sBuf))
    e("s_sub_u32 %s, %s, %s", s(sCnt), s(sCnt), s(sTmp))
    e("s_mul_i32 %s, %s, 40960", s(sDelta), s(sBuf))
    e("s_lshl_b32 %s, %s, 7", s(sTmp), s(sCnt))
    e("s_add_u32 %s, %s, %s", s(sDelta), s(sDelta), s(sTmp))
    e("s_min_u32 %s, %s, 2", s(sWa), s(sLW))
    e("s_lshl_b32 %s, %s, 12", s(sWa), s(sWa))
    e("s_add_u32 %s, %s, %d", s(sWa), s(sWa), RPK)
    lab = A.newlabel("L_norp")
    e("s_cmp_ge_u32 %s, 48", s(sBuf))
    e("s_cbranch_scc1 %s", lab)
    for n in range(4):
        e("s_add_u32 m0, %s, %d", s(sWa), n * 1024)
        e("s_add_u32 %s, %s, %d", s(sTmp), s(sDelta), n * 8 * 1280)
        e("buffer_load_dwordx4 v12, %s, %s offen lds", s(sWD, 4), s(sTmp))
    A.label(lab)
    e("s_mul_i32 %s, %s, %d", s(sWb), s(sCnt), 4 * 49152)
    e("s_lshl_b32 %s, %s, 10", s(sTmp), s(sBuf))
    e("s_add_u32 %s, %s, %s", s(sWb), s(sWb), s(sTmp))
    e("s_add_u32 %s, %s, 0x%x", s(sWb), s(sWb), WS_WD)
    e("s_mov_b32 %s, %s", s(sPar), s(sBuf))


def repack_finish():
    lab = A.newlabel("L_norp")
    e("s_cmp_ge_u32 %s, 48", s(sPar))
    e("s_cbranch_scc1 %s", lab)
    e("v_lshrrev_b32 v56, 2, v0")
    e("v_lshlrev_b32 v56, 7, v56")
    e("v_and_b32 v57, 3, v0")
    e("v_lshl_add_u32 v56, v57, 3, v56")
    e("v_bfe_u32 v57, v0, 3, 2")
    e("v_lshl_add_u32 v56, v57, 5, v56")
    e("v_add_u32 v56, %s, v56", s(sWa))
    for tq in range(1, 4):
        e("v_xor_b32 %s, %d, v56", v(56 + tq), tq << 5)
    for tq in range(4):
        for rd in range(2):
            e("ds_read_b64_tr_b16 %s, %s offset:%d", v(16 + tq * 4 + 2 * rd, 2), v(56 + tq), rd * 2048)
    for n in range(4):
        e("s_waitcnt lgkmcnt(%d)", 6 - 2 * n)
        e("s_add_u32 %s, %s, %d", s(sTmp), s(sWb), n * 49152)
        e("buffer_store_dwordx4 %s, v5, %s, %s offen sc1", v(16 + n * 4, 4), s(sWS, 4), s(sTmp))
    A.label(lab)


def fold_group(a0, T, vM, vaddr, off):
    for d in range(4):
        e("v_lshlrev_b32 %s, 16, %s", v(T + d), v(a0 + d))
        e("v_lshlrev_b32 %s, 16, %s", v(T + 4 + d), v(a0 + 4 + d))
    for d in range(8):
        e("v_and_b32 %s, %s, %s", v(a0 + d), v(vM), v(a0 + d))
    for d in range(4):
        e("v_fmac_f32 %s, %s, %s", v(T + d), s(sSgn), v(T + 4 + d))
    for d in range(4):
        e("v_fmac_f32 %s, %s, %s", v(a0 + d), s(sSgn), v(a0 + 4 + d))
    for d in range(4):
        e("v_cvt_pk_bf16_f32 %s, %s, %s", v(a0 + d), v(T + d), v(a0 + d))
    e("ds_write_b128 %s, %s offset:%d", v(vaddr), v(a0, 4), off)


def fold_addr(src, w0, w2):
    e("v_lshrrev_b32 %s, 3, v0", v(w2))
    e("v_mul_u32_u24 %s, 81920, %s", v(w2 + 1), v(w2))
    e("v_and_b32 %s, 7, v0", v(w0))
    e("v_lshl_add_u32 %s, %s, 4, %s", v(src), v(w0), v(w2 + 1))
    e("v_lshrrev_b32 %s, 4, v0", v(w2 + 1))
    e("v_xor_b32 %s, %s, %s", v(w0), v(w0), v(w2 + 1))
    e("v_lshlrev_b32 %s, 7, %s", v(w2), v(w2))
    e("v_lshl_add_u32 %s, %s, 4, %s", v(w2), v(w0), v(w2))
    e("s_mul_i32 %s, %s, %d", s(sTmp), s(sLW), CPS)
    e("s_add_u32 %s, %s, %d", s(sTmp), s(sTmp), XB)
    e("v_add_u32 %s, %s, %s", v(w0), s(sTmp), v(w2))
    e("v_xor_b32 %s, 64, %s", v(w0 + 1), v(w0))


XO = opt("xo", 0)
CI_EARLY = list(range(8, 16))
CI_LATE = [i for i in range(18) if i not in CI_EARLY]
LX = opt("lx", 0)
CX = opt("cx", 2)
MWE = opt("mwe", 1)
EH = opt("eh", 0)
EST = opt("est", 3)
ECI = opt("eci", 3)
EFH = opt("efh", 1)
NL = opt("nl", 2)


def dft_loader():
    if PRL & 1:
        e("s_setprio 2")
    XR = 64
    vW0, vW1 = 8, 9
    fold_addr(vA0, vW0, 6)
    e("v_lshlrev_b32 %s, 4, v0", v(vB0))
    x_src_scalar()
    tab_srd()
    stamp("l_pre")
    e("s_waitcnt lgkmcnt(0)")
    stamp("l_k")
    srd(A, *SRDS["X"])
    q = VQ()

    def ci_touch():
        e("s_bfe_u32 %s, s2, 0x30003", s(sCnt))
        e("s_lshl_b32 %s, %s, 2", s(sCnt), s(sCnt))
        e("s_add_u32 %s, %s, %s", s(sCnt), s(sCnt), s(sLW))
        e("s_mul_i32 %s, %s, %d", s(sTmp), s(sCnt), 63 * 128)
        e("s_and_b32 %s, s2, 1", s(sTmp2))
        e("s_mul_i32 %s, %s, %d", s(sTmp2), s(sTmp2), 4 * 63 * 1024)
        e("s_add_u32 %s, %s, %s", s(sTmp), s(sTmp), s(sTmp2))
        e("s_add_u32 %s, %s, %d", s(sTmp), s(sTmp), TB.CI_OFF)
        e("v_min_u32 v12, 62, v0")
        e("v_lshlrev_b32 v12, 7, v12")
        e("buffer_load_dword v45, v12, %s, %s offen", s(sTAB, 4), s(sTmp))
        e("s_lshl_b32 %s, %s, 8", s(sTmp), s(sCnt))
        e("s_add_u32 %s, %s, %d", s(sTmp), s(sTmp), TB.F64_OFF)
        e("v_and_b32 v12, 128, v12")
        e("buffer_load_dword v45, v12, %s, %s offen", s(sTAB, 4), s(sTmp))
        q.issue("t", 2)

    def xl(i):
        gs = []
        for n in range(NL):
            for hf in range(2):
                def f(n=n, hf=hf):
                    e("s_add_u32 %s, %s, %d", s(sTmp), s(sAoff), n * 8 * 81920 + i * 128)
                    e("buffer_load_dwordx4 %s, %s, %s, %s offen offset:%d", v(XR + i * 32 + n * 8 + hf * 4, 4), v(vA0), s(sX, 4), s(sTmp), hf * 640)
                gs.append(cap(f))
        q.issue("x%d" % i, 2 * NL)
        return gs

    def fl():
        gs = []
        for n in range(2):
            def f(n=n):
                e("s_lshl_b32 %s, %s, 11", s(sTmp), s(sLW))
                e("s_add_u32 m0, %s, %d", s(sTmp), FR_L + n * 1024)
                e("s_add_u32 %s, %s, %d", s(sTmp), s(sTmp), TB.F64_OFF + n * 1024)
                e("buffer_load_dwordx4 %s, %s, %s offen lds", v(vB0), s(sTAB, 4), s(sTmp))
            gs.append(cap(f))
        q.issue("f", 2)
        return gs

    def fold(i):
        for n in range(NL):
            fold_group(XR + i * 32 + n * 8, 28 + 8 * (n & 1), 44, (vW0, vW1)[n & 1], (1 - (i & 1)) * 5120 + n * 1024)

    def bar(b):
        stamp("dl_a%s" % b)
        e("s_barrier")
        stamp("dl_b%s" % b)
    weave([], xl(0))
    if XT & 32:
        ci_touch()
    stamp("l_s0")
    lgo_init()
    e("s_load_dword %s, %s, 0x%x", s(sTAG), s(P + 18, 2), WS_EP)
    for k in ("WS", "WR", "WI", "OUT"):
        srd(A, *SRDS[k])
    e("s_cmp_ge_u32 %s, 2", s(sCG))
    e("s_cselect_b32 %s, -1.0, 1.0", s(sSgn))
    weave([], xl(1) + (xl(2) if LX >= 1 else []) + (xl(3) if LX >= 2 else []))
    e("v_mov_b32 v44, 0xffff0000")
    aux_poll_addr(False, 15)
    fw_poll_addr(10)
    aux_addr(False, 24)
    stamp("l_iss")
    q.wait("x0")
    stamp("dl_x0")
    fold(0)
    e("s_waitcnt lgkmcnt(0)")
    e("s_barrier")
    stamp("l_bi")
    if XT & 64:
        ci_touch()
    make_tag()
    q.wait("x1")
    weave(cap(lambda: fold(1)), (xl(2) if LX < 1 else []) + (xl(3) if LX < 2 else []) + (xl(4) if LX >= 1 else []))
    e("s_waitcnt lgkmcnt(0)")
    bar(0)
    q.wait("x2")
    stamp("dl_x2")
    weave(cap(lambda: fold(2)), xl(4) if LX < 1 else [])
    stamp("dl_f2")
    poll_issue(46, 1, 15, WS_FS); q.issue("p")
    e("s_waitcnt lgkmcnt(0)")
    bar(1)
    q.wait("x3")
    stamp("dl_x3")
    weave(cap(lambda: fold(3)), fl())
    stamp("dl_f3")
    q.wait("p")
    poll_check(46, 1, 15, WS_FS)
    aux_issue(False, 24); q.issue("aux")
    e("s_waitcnt lgkmcnt(0)")
    bar(2)
    gs = wspec_dma()
    if WSP == 2:
        weave(cap(lambda: fold(4)), gs)
        q.issue("w", 11)
    else:
        fold(4)
    q.wait("aux")
    aux_finish(False, 24)
    bar(3)
    poll_issue(41, 1, 10, WS_FW)
    if WSP == 0:
        weave([], gs)
    z_setup()
    wd_bases(sLW)
    e("v_lshlrev_b32 v5, 4, v0")
    if EST >= 3:
        if ECI and ECI < 3:
            z_ci_sub(CI_EARLY)
            lab = A.newlabel("L_cil")
            e("s_bfe_u32 %s, s2, 0x10003", s(sTmp))
            e("s_add_u32 %s, %s, 2", s(sTmp), s(sTmp))
            e("s_cmp_lt_u32 %s, %s", s(sLW), s(sTmp))
            e("s_cbranch_scc1 %s", lab)
            z_ci_sub(CI_LATE)
            A.label(lab)
        if ZGL:
            e("v_mov_b32 v12, %d", LGO)
            lab = A.newlabel("L_zgl")
            A.label(lab)
            e("s_sleep 2")
            e("ds_read_b32 v13, v12 offset:12")
            e("s_waitcnt lgkmcnt(0)")
            e("v_cmp_ne_u32 vcc, 1, v13")
            e("s_cbranch_vccnz %s", lab)
        z_gconst()
        stamp("dl_g")
        e("s_branch L_dft_l")
        return
    if ECI == 2:
        z_ci_sub(CI_EARLY)
    if EST:
        e("s_waitcnt vmcnt(%d)", len(CI_EARLY) if ECI == 2 else 0)
        poll_check(41, 1, 10, WS_FW)
        stamp("dl_fw")
        stage_wd(0, 3)
    if ECI == 1:
        z_ci_sub(CI_EARLY)
    stamp("dl_st")
    z_gconst()
    stamp("dl_g")
    if not EST:
        e("s_waitcnt vmcnt(0)")
        poll_check(41, 1, 10, WS_FW)
    e("s_branch L_dft_l")


def addr_advance(regs):
    e("s_add_u32 %s, %s, %d", s(sBuf), s(sBuf), SLAB)
    e("s_cmp_ge_u32 %s, %d", s(sBuf), 3 * SLAB)
    e("s_cselect_b32 %s, 0, %s", s(sBuf), s(sBuf))
    e("s_cselect_b32 %s, %d, %s", s(sDelta), (-2 * SLAB) & 0xffffffff, s(sSLAB))
    for r_ in regs:
        e("v_add_u32 %s, %s, %s", v(r_), s(sDelta), v(r_))


def gemm_loop(nslab, NT, mfmas, reads, need, areg, bar_gap, per_gap, last_extra=(), first_hook=None, peel=None, buf0=0, body=None, unroll=None, hooks=None, loop_from=None, fills=None, advf=None, last_bar=False):
    nreads = len(reads(0, 0))
    nm = len(need)

    def step(mf, nxt, first_gap=0, pre=None, barg=None):
        issued, done = 0, 0
        for m in range(nm):
            if need[m] > done:
                allowed = nreads - need[m] + issued
                e("s_waitcnt lgkmcnt(%d)", min(15, allowed))
                done = need[m] if allowed <= 15 else min(nreads, nreads + issued - 15)
            mf[m]()
            if pre and m in pre:
                for f in pre[m]:
                    f()
                if m == barg:
                    done = nreads
            if m >= first_gap:
                for k in range(per_gap):
                    if issued < len(nxt):
                        nxt[issued]()
                        issued += 1
        assert issued == len(nxt), (issued, len(nxt))

    def bar(vm=False):
        e("s_waitcnt lgkmcnt(0)%s", " vmcnt(0)" if vm else "")
        e("s_barrier")

    def merge(*ds):
        out = {}
        for d in ds:
            for k, x in d.items():
                out.setdefault(k, [])
                out[k] += x
        return out

    def spread(ops):
        out = {}
        for n, f in enumerate(ops):
            g = nm - 1 - (len(ops) - 1 - n) * max(1, (nm - bar_gap - 1) // max(1, len(ops)))
            out.setdefault(max(g, 0), []).append(f)
        return out

    def slab(last, peeled=False):
        if peeled:
            for t in range(NT - 1):
                step(mfmas(t & 1, t == 0), reads((t + 1) & 1, t + 1), pre=peel[t])
            step(mfmas(1), reads(0, 0), first_gap=bar_gap + (1 if bar_gap else 0),
                 pre=merge({0: [lambda: addr_advance(areg)]}, {bar_gap: [lambda: bar(True)]}, peel[NT - 1]), barg=bar_gap)
            return
        ex = list(last_extra) if last else []
        per = (len(ex) + NT - 1) // NT
        for t in range(NT - 1):
            step(mfmas(t & 1), reads((t + 1) & 1, t + 1), pre=merge(spread(ex[t * per:(t + 1) * per]), body[t] if body and not last else {}))
        if last:
            step(mfmas(1), [], pre=spread(ex[(NT - 1) * per:]))
        else:
            hooks = {bar_gap: ([first_hook[0]] if first_hook else []) + [bar] + ([first_hook[1]] if first_hook else [])}
            step(mfmas(1), reads(0, 0), first_gap=bar_gap + (1 if bar_gap else 0), pre=merge({0: [lambda: addr_advance(areg)]}, hooks, body[NT - 1] if body else {}), barg=bar_gap)
    e("s_mov_b32 %s, %d", s(sBuf), buf0)
    e("s_mov_b32 %s, %d", s(sSLAB), SLAB)
    e("s_mov_b32 %s, 0", s(sCnt))
    e("s_waitcnt lgkmcnt(0)%s", " vmcnt(%d)" % unroll[0][0] if unroll and unroll[0][0] is not None else "")
    make_tag()
    e("s_barrier")
    stamp("c_bi")
    for f in reads(0, 0):
        f()
    if unroll:
        ops = unroll[0][1]
        for i in range(nslab):
            if loop_from is not None and loop_from < i < nslab - 1:
                continue
            if loop_from is not None and i == loop_from:
                e("s_mov_b32 %s, %d", s(sBuf), ((buf0 // SLAB + i) % 3) * SLAB)
                e("s_mov_b32 %s, %d", s(sCnt), i)
                lab = A.newlabel("L_gemm")
                A.label(lab)
                slab(False)
                e("s_add_u32 %s, %s, 1", s(sCnt), s(sCnt))
                e("s_cmp_lt_u32 %s, %d", s(sCnt), nslab - 1)
                e("s_cbranch_scc1 %s", lab)
                continue
            per = (len(ops) + NT - 2) // (NT - 1)
            hk = hooks[i] if hooks else [{}] * NT
            if fills:
                gs = fills(i)
                ngap = (NT - 1) * nm
                hk = [{} for _ in range(NT)]
                for k, g in enumerate(gs):
                    pos = min(ngap - 1, k * ngap // max(1, len(gs)))
                    hk[pos // nm].setdefault(pos % nm, []).append(lambda g=g: A.lines.extend(g))
            for t in range(NT - 1):
                step(mfmas(t & 1, i == 0 and t == 0), reads((t + 1) & 1, t + 1), pre=merge(spread(ops[t * per:(t + 1) * per]), hk[t]))
            if i == nslab - 1:
                if last_bar:
                    step(mfmas(1), [], pre={bar_gap: [bar]}, barg=bar_gap)
                else:
                    step(mfmas(1), [])
            else:
                vm, ops = unroll[i + 1]
                if callable(vm):
                    vm = vm()

                def ubar(vm=vm):
                    e("s_waitcnt lgkmcnt(0)%s", "" if vm is None else " vmcnt(%d)" % vm)
                    e("s_barrier")

                def adv(i=i):
                    if advf:
                        return advf(i)
                    nb = (buf0 // SLAB + i + 1) % 3
                    for r_ in areg:
                        e("v_add_u32 %s, %d, %s", v(r_), (SLAB if nb else -2 * SLAB) & 0xffffffff, v(r_))
                step(mfmas(1), reads(0, 0), first_gap=bar_gap + (1 if bar_gap else 0),
                     pre=merge({0: [adv]}, {bar_gap: [ubar]}, hk[NT - 1]), barg=bar_gap)
        stamp("c_le")
        return
    if peel:
        slab(False, True)
        e("s_mov_b32 %s, 1", s(sCnt))
    lab = A.newlabel("L_gemm")
    A.label(lab)
    slab(False)
    e("s_add_u32 %s, %s, 1", s(sCnt), s(sCnt))
    e("s_cmp_lt_u32 %s, %d", s(sCnt), nslab - 1)
    e("s_cbranch_scc1 %s", lab)
    slab(True)
    stamp("c_le")


vWD = [1, 2, 3, 4, 14]


def p3c_setup():
    p3_map()
    wd_bases(sW)
    e("s_lshl_b32 %s, %s, 6", s(sOo), s(sG3))
    e("s_mul_i32 %s, %s, %d", s(sHo), s(sP), 2 * 48 * 2048)
    e("s_lshl_b32 %s, %s, 11", s(sTmp), s(sW))
    e("s_add_u32 %s, %s, %s", s(sHo), s(sHo), s(sTmp))
    e("s_and_b32 %s, %s, 1", s(sTmp), s(sW))
    e("s_lshl_b32 %s, %s, 10", s(sTmp), s(sTmp))
    e("s_lshl_b32 %s, %s, 1", s(sTmp2), s(sP))
    e("s_add_u32 %s, %s, %s", s(sTmp), s(sTmp), s(sTmp2))
    e("s_lshr_b32 %s, %s, 1", s(sTmp2), s(sW))
    e("s_add_u32 %s, %s, %s", s(sTmp), s(sTmp), s(sTmp2))
    e("s_mul_i32 %s, %s, 1280", s(sTmp), s(sTmp))
    e("s_add_u32 %s, %s, %s", s(sOo), s(sOo), s(sTmp))
    e("s_add_u32 %s, %s, %s", s(sOc), s(sOc), s(sTmp))


def fh_addr():
    e("s_lshl_b32 %s, %s, 1", s(sTmp), s(sP))
    e("s_lshr_b32 %s, %s, 1", s(sTmp2), s(sW))
    e("s_add_u32 %s, %s, %s", s(sTmp), s(sTmp), s(sTmp2))
    e("s_mul_i32 %s, %s, 12", s(sTmp), s(sTmp))
    e("v_min_u32 v5, 11, v0")
    e("v_add_u32 v5, %s, v5", s(sTmp))
    e("v_lshlrev_b32 v3, 7, v5")


sHr = [50, 51, 52, 53]


def p3_pre():
    vL = 1
    e("v_lshlrev_b32 %s, 4, v0", v(vL))
    for rho in range(4):
        e("s_add_u32 %s, %s, %d", s(sTmp), s(sW), rho)
        e("s_bfe_u32 %s, %s, 0x10001", s(sTmp2), s(sTmp))
        e("s_mul_i32 %s, %s, %d", s(sTmp2), s(sTmp2), 48 * 2048)
        e("s_and_b32 %s, %s, 1", s(sTmp), s(sTmp))
        e("s_lshl_b32 %s, %s, 10", s(sTmp), s(sTmp))
        e("s_add_u32 %s, %s, %s", s(sTmp), s(sTmp), s(sTmp2))
        e("s_add_u32 %s, %s, %s", s(sTmp), s(sTmp), s(sHo))
        e("s_add_u32 %s, %s, %d", s(sHr[rho]), s(sTmp), WS_H)

    rot3()


def hload_(i):
    item4(i, sRZ)
    e("s_lshl_b32 %s, %s, 1", s(sRZ), s(sRZ))
    for rho in range(4):
        e("s_add_u32 %s, %s, %s", s(sTmp), s(sHr[rho]), s(sRZ))
        e("buffer_load_dwordx4 %s, v1, %s, %s offen sc1", v(8 + (i % 4) * 36 + 20 + rho * 4, 4), s(sWS, 4), s(sTmp))


def p3c():
    vL, vO, vPH, vWJ = 1, 2, 3, 4
    RS, XR, WJ, ACC = 8, 8, 152, 176
    NI = 12
    q = VQ()
    def wload(i, ct):
        if ct == 0:
            item4(i, sI4)
            e("s_add_u32 %s, %s, %s", s(sTmp2), s(sI4), s(sWa))
        if ct < 4:
            e("s_add_u32 %s, %s, %d", s(sTmp), s(sTmp2), WOFF[ct][1])
        else:
            e("s_add_u32 %s, %s, %s", s(sTmp), s(sI4), s(sWc))
        e("buffer_load_dwordx4 %s, %s, %s, %s offen sc1", v(RS + (i % 4) * 36 + ct * 4, 4), v(vL), s(sWS, 4), s(sTmp))
        q.issue("i%d" % i)

    def hload(i):
        hload_(i)
        q.issue("i%d" % i, 4)

    def wj(i, ct):
        e("ds_read_b128 %s, %s offset:%d", v(WJ + 4 * ct, 4), v(vWJ), i * 5120 + ct * 1024)
    stamp("p3_in")
    if not XQ:
        e("v_and_b32 v5, 15, v0")
        e("v_mul_u32_u24 v5, 81920, v5")
        e("v_lshrrev_b32 v6, 4, v0")
        e("v_lshl_add_u32 %s, v6, 3, v5", v(vO))
    fh_addr()
    e("s_mul_i32 %s, %s, %d", s(sTmp), s(sW), CPS)
    e("s_add_u32 %s, %s, %d", s(sTmp), s(sTmp), CP0)
    e("v_add_u32 %s, %s, %s", v(vWJ), s(sTmp), v(vL))
    lab = A.newlabel("L_nofh")
    e("s_cmp_ge_u32 s2, 192")
    e("s_cbranch_scc1 %s", lab)
    e("v_mov_b32 v7, %d", LGO)
    e("v_mov_b32 v172, 1")
    e("s_waitcnt vmcnt(0)")
    flag_store(sFlag, 5, 6)
    e("s_mov_b64 exec, 1")
    e("ds_add_u32 v7, v172 offset:4")
    e("s_mov_b64 exec, -1")
    if EFH:
        poll_issue(7, 1, vPH, WS_FH)
        e("s_waitcnt vmcnt(0)")
    A.label(lab)
    stamp("p3_fl")
    if not EFH:
        poll_issue(7, 1, vPH, WS_FH)
    e("s_lshl_b32 %s, %s, 2", s(sTmp), s(sW))
    e("s_add_u32 %s, %s, %d", s(sTmp), s(sTmp), LGO + 16)
    e("v_mov_b32 v5, %s", s(sTmp))
    late, join = A.newlabel("L_hlate"), A.newlabel("L_hjoin")
    if not EFH:
        e("s_waitcnt vmcnt(0)")
    early = A.newlabel("L_hearly")
    if EH:
        e("s_cmp_eq_u32 %s, 2", s(sNU))
        e("s_cbranch_scc1 %s", early)
    e("v_cmp_ne_u32 vcc, %s, v7", s(sTAG))
    e("s_cbranch_vccnz %s", late)
    for i in range(EH):
        hload(i)
    A.label(early)
    e("s_mov_b32 %s, 1", s(sNU))
    for i in range(EH, 4):
        hload(i)
    for i in range(4, 8):
        for ct in range(5):
            wload(i, ct)
    e("s_branch %s", join)
    A.label(late)
    e("s_mov_b32 %s, 0", s(sNU))
    for i in range(4, 8):
        for ct in range(5):
            wload(i, ct)
    poll_check(7, 1, vPH, WS_FH)
    stamp("hp")
    q.drain()
    for i in range(4):
        hload(i)
    A.label(join)
    stamp("p3_fh")

    def staged(br):
        lab, skip = A.newlabel("L_wst"), A.newlabel("L_wsk")
        if br:
            e("s_cmp_ge_u32 s2, 192")
            e("%s %s", br, skip)
        A.label(lab)
        e("ds_read_b32 v6, v5")
        e("s_waitcnt lgkmcnt(0)")
        e("v_cmp_eq_u32 vcc, 0, v6")
        e("s_cbranch_vccnz %s", lab)
        A.label(skip)
    staged("s_cbranch_scc1" if EST else None)
    for ct in range(5):
        wj(0, ct)
    OFF = [(sOo, 0), (sOo, 32), (sOo, 640), (sOo, 672), (sOc, 0)]
    vXC, vD, vD1, vDC = 172, 173, 174, 175

    def xq_addr():
        e("v_lshrrev_b32 v6, 2, v0")
        e("v_mul_u32_u24 v6, 81920, v6")
        e("v_lshrrev_b32 v7, 4, v0")
        e("v_xor_b32 v7, v7, v0")
        e("v_and_b32 v7, 3, v7")
        e("v_lshl_add_u32 %s, v7, 4, v6", v(vO))
        e("v_bfe_u32 v6, v0, 1, 4")
        e("v_mul_u32_u24 v6, 81920, v6")
        e("v_and_b32 v7, 1, v0")
        e("v_lshl_add_u32 %s, v7, 4, v6", v(vXC))
        e("s_mul_i32 %s, %s, %d", s(sTB), s(sW), CPS)
        e("s_add_u32 %s, %s, %d", s(sTB), s(sTB), CP0 + 15360)
        e("v_and_b32 v6, 15, v0")
        e("v_lshrrev_b32 v7, 4, v0")
        e("v_lshlrev_b32 %s, 5, v6", v(vDC))
        e("v_lshl_add_u32 %s, v7, 3, %s", v(vDC), v(vDC))
        e("v_add_u32 %s, %s, %s", v(vDC), s(sTB), v(vDC))
        e("v_lshlrev_b32 v6, 6, v6")
        e("v_and_b32 v7, 1, v7")
        e("v_lshl_add_u32 v6, v7, 3, v6")
        e("v_lshrrev_b32 v7, 5, v0")
        e("v_bfe_u32 %s, v0, 2, 2", v(vD))
        e("v_xor_b32 v7, v7, %s", v(vD))
        e("v_lshl_add_u32 v6, v7, 4, v6")
        e("v_add_u32 %s, %s, v6", v(vD), s(sTB))
        e("v_xor_b32 %s, 32, %s", v(vD1), v(vD))

    def dl(ct): return ((vD, vD1)[ct & 1], (ct >> 1) * 1024) if ct < 4 else (vDC, 2048)

    def x_dma(k):
        e("s_add_u32 m0, %s, %d", s(sTB), k * 1024)
        if k < 2:
            e("buffer_load_dwordx4 %s, %s, %s offen offset:%d lds", v(vO), s(sX, 4), s(sOo), 0) if k == 0 else None
            if k == 1:
                e("s_add_u32 %s, %s, 640", s(sTmp), s(sOo))
                e("buffer_load_dwordx4 %s, %s, %s offen lds", v(vO), s(sX, 4), s(sTmp))
        else:
            e("s_mov_b32 exec_hi, 0")
            e("buffer_load_dwordx4 %s, %s, %s offen lds", v(vXC), s(sX, 4), s(sOc))
            e("s_mov_b32 exec_hi, -1")
        q.issue("x")

    def acc(ct, rt): return ACC + (ct * 4 + rt) * 4
    for i in range(NI):
        rs = RS + (i % 4) * 36
        if i < 4:
            la, lb = A.newlabel("L_w3"), A.newlabel("L_w3")
            e("s_cmp_eq_u32 %s, 0", s(sNU))
            e("s_cbranch_scc1 %s", la)
            e("s_waitcnt vmcnt(32)")
            e("s_branch %s", lb)
            A.label(la)
            q.wait("i%d" % i)
            A.label(lb)
        else:
            q.wait("i%d" % i)
        stamp("i%d" % i)
        if XQ and i == 10:
            for ct in range(5):
                e("ds_read_b64 %s, %s offset:%d", v(XR + 2 * ct, 2), v(dl(ct)[0]), dl(ct)[1])
        if XQ and i == 11:
            e("s_waitcnt lgkmcnt(0)")
        if i == 2 and EST:
            staged("s_cbranch_scc0")
        for ct in range(5):
            if i < 4:
                e("s_waitcnt lgkmcnt(%d)", 4 if i < 3 else 4 - ct)
            for rt in range(4):
                mm16(acc(ct, rt), WJ + 4 * ct if i < 4 else rs + 4 * ct, rs + 20 + 4 * rt, i == 0)
            if i < 3:
                wj(i + 1, ct)
            if 4 <= i < 8:
                wload(i + 4, ct)
            if i == NI - 1 and FIL and ct >= 2:
                for rho in range(1, 4):
                    e("ds_write_b128 %s, %s offset:%d", v(vWJ), v(acc(ct - 2, rho), 4), (rho - 1) * 5120 + (ct - 2) * 1024)
            if XQ and i == 3 and ct == 0:
                xq_addr()
            if XQ and i == 4 and ct >= 2:
                x_dma(ct - 2)
            if i == 9 and not XQ:
                e("buffer_load_dwordx2 %s, %s, %s, %s offen offset:%d", v(XR + 2 * ct, 2), v(vO), s(sX, 4), s(OFF[ct][0]), OFF[ct][1])
                q.issue("x")
        if i + 4 < NI:
            hload(i + 4)
    for rho in range(1, 4):
        e("s_sub_u32 %s, %s, %d", s(sTmp), s(sW), rho)
        e("s_and_b32 %s, %s, 3", s(sTmp), s(sTmp))
        e("s_mul_i32 %s, %s, %d", s(sTmp), s(sTmp), CPS)
        e("s_add_u32 %s, %s, %d", s(sTmp), s(sTmp), CP0 + (rho - 1) * 5120)
        e("v_add_u32 %s, %s, %s", v(40 + rho), s(sTmp), v(vL))
    for ct in range(3 if FIL else 0, 5):
        for rho in range(1, 4):
            e("ds_write_b128 %s, %s offset:%d", v(vWJ), v(acc(ct, rho), 4), (rho - 1) * 5120 + ct * 1024)
    e("s_lshl_b32 %s, %s, 10", s(sTmp), s(sW))
    e("v_add_u32 v40, %s, %s", s(sTmp), v(vL))
    e("s_waitcnt vmcnt(0)")
    for ct in range(5):
        x0, b = XR + 2 * ct, 20 + 4 * ct
        e("v_lshlrev_b32 %s, 16, %s", v(b), v(x0))
        e("v_and_b32 %s, 0xffff0000, %s", v(b + 1), v(x0))
        e("v_lshlrev_b32 %s, 16, %s", v(b + 2), v(x0 + 1))
        e("v_and_b32 %s, 0xffff0000, %s", v(b + 3), v(x0 + 1))
        for k in (0, 2):
            e("v_pk_add_f32 %s, %s, %s", v(acc(ct, 0) + k, 2), v(acc(ct, 0) + k, 2), v(b + k, 2))
    e("s_waitcnt lgkmcnt(0)")
    stamp("p3_end")
    e("s_barrier")
    stamp("p3_bar")
    LP = 48
    for c3 in range(3):
        for lw in range(4):
            e("ds_read_b128 %s, v40 offset:%d", v(LP + (c3 * 4 + lw) * 4, 4), ZU0 + lw * ZUS + c3 * 4096)
    for ct in range(5):
        for k in range(1, 4):
            e("ds_read_b128 %s, %s offset:%d", v(acc(ct, k), 4), v(40 + k), ct * 1024)
    e("s_waitcnt lgkmcnt(15)")
    for c3 in range(3):
        b = LP + c3 * 16
        for k in (0, 2):
            e("v_pk_add_f32 %s, %s, %s", v(b + k, 2), v(b + k, 2), v(b + 8 + k, 2))
            e("v_pk_add_f32 %s, %s, %s", v(b + 4 + k, 2), v(b + 4 + k, 2), v(b + 12 + k, 2))
        for k in (0, 2):
            if c3 < 2:
                e("v_pk_add_f32 %s, %s, %s neg_lo:[0,1] neg_hi:[0,1]", v(b + 8 + k, 2), v(b + k, 2), v(b + 4 + k, 2))
            e("v_pk_add_f32 %s, %s, %s", v(b + k, 2), v(b + k, 2), v(b + 4 + k, 2))
    zsrc = [LP, LP + 16, LP + 8, LP + 24, LP + 32]
    extra = 0
    for ct in range(5):
        b = acc(ct, 0)
        e("s_waitcnt lgkmcnt(%d)", 12 - 3 * ct + extra)
        for k in (0, 2):
            e("v_pk_add_f32 %s, %s, %s", v(b + k, 2), v(b + k, 2), v(zsrc[ct] + k, 2))
            e("v_pk_add_f32 %s, %s, %s", v(b + 4 + k, 2), v(b + 4 + k, 2), v(b + 8 + k, 2))
        for k in (0, 2):
            e("v_pk_add_f32 %s, %s, %s", v(b + k, 2), v(b + k, 2), v(b + 12 + k, 2))
        for k in (0, 2):
            e("v_pk_add_f32 %s, %s, %s", v(b + k, 2), v(b + k, 2), v(b + 4 + k, 2))
        e("v_cvt_pk_bf16_f32 %s, %s, %s", v(b + 8), v(b), v(b + 1))
        e("v_cvt_pk_bf16_f32 %s, %s, %s", v(b + 9), v(b + 2), v(b + 3))
        if not XQ:
            e("buffer_store_dwordx2 %s, %s, %s, %s offen offset:%d%s", v(b + 8, 2), v(vO), s(sOUT, 4), s(OFF[ct][0]), OFF[ct][1], OUTF)
            continue
        e("ds_write_b64 %s, %s offset:%d", v(dl(ct)[0]), v(b + 8, 2), dl(ct)[1] + 2560)
        extra += 1
        if ct in (1, 3, 4):
            e("ds_read_b128 %s, %s offset:%d", v(8 + 4 * (ct >> 1), 4), v(vWJ), 15360 + 2560 + (ct >> 1) * 1024)
            extra += 1
        if ct == 3:
            e("s_waitcnt lgkmcnt(3)")
            e("buffer_store_dwordx4 v[8:11], %s, %s, %s offen%s", v(vO), s(sOUT, 4), s(sOo), OUTF)
        if ct == 4:
            e("s_waitcnt lgkmcnt(2)")
            e("buffer_store_dwordx4 v[12:15], %s, %s, %s offen offset:640%s", v(vO), s(sOUT, 4), s(sOo), OUTF)
            e("s_waitcnt lgkmcnt(0)")
            e("s_mov_b32 exec_hi, 0")
            e("buffer_store_dwordx4 v[16:19], %s, %s, %s offen%s", v(vXC), s(sOUT, 4), s(sOc), OUTF)
            e("s_mov_b32 exec_hi, -1")
    lab = A.newlabel("L_noep")
    e("s_lshl_b32 %s, s2, 3", s(sTmp))
    e("s_add_u32 %s, %s, %s", s(sTmp), s(sTmp), s(sW))
    e("s_cmp_eq_u32 %s, 0", s(sTmp))
    e("s_cbranch_scc0 %s", lab)
    e("s_mov_b32 %s, 0x%x", s(sTmp), WS_EP)
    flag_store(sTmp, 5, 6)
    A.label(lab)


def pf3(part):
    e("s_lshr_b32 %s, s2, 3", s(sCnt))
    e("s_lshl_b32 %s, %s, 2", s(sCnt), s(sCnt))
    e("s_add_u32 %s, %s, %s", s(sCnt), s(sCnt), s(sLW))
    ntau = 40 if MAP8 else 20
    n = 0
    if part == 0:
        per = (ntau * 256 + 95) // 96
        for k in range((per + 63) // 64):
            e("s_mul_i32 %s, %s, %d", s(sTmp), s(sCnt), per)
            e("v_min_u32 v12, %d, v0", min(63, per - 64 * k - 1))
            e("v_add_u32 v12, %s, v12", s(sTmp))
            if k:
                e("v_add_u32 v12, %d, v12", 64 * k)
            e("v_lshrrev_b32 v13, 8, v12")
            e("v_and_b32 v12, 255, v12")
            if not MAP8:
                e("s_and_b32 %s, s2, 1", s(sTmp))
                e("s_lshl_b32 %s, %s, 3", s(sTmp2), s(sTmp))
                e("s_lshl_b32 %s, %s, 1", s(sTmp), s(sTmp))
                e("s_add_u32 %s, %s, 16", s(sTmp), s(sTmp))
                e("v_cmp_gt_u32 vcc, 16, v13")
                e("v_and_b32 v14, 7, v13")
                e("v_add_u32 v14, %s, v14", s(sTmp2))
                e("v_bfe_u32 v17, v13, 3, 1")
                e("v_mad_u32_u24 v14, v17, 20, v14")
                e("v_and_b32 v16, 1, v13")
                e("v_add_u32 v16, %s, v16", s(sTmp))
                e("v_bfe_u32 v17, v13, 1, 1")
                e("v_mad_u32_u24 v16, v17, 20, v16")
                e("v_cndmask_b32 v13, v16, v14, vcc")
            e("v_mul_u32_u24 v13, 49152, v13")
            e("v_lshl_add_u32 v60, v12, 7, v13")
            n += 1
    else:
        per = (4032 if MAP8 else 2016) // 96
        e("s_mul_i32 %s, %s, %d", s(sTmp), s(sCnt), per * 128)
        if not MAP8:
            e("s_and_b32 %s, s2, 1", s(sTmp2))
            e("s_mul_i32 %s, %s, %d", s(sTmp2), s(sTmp2), 4 * 63 * 1024)
            e("s_add_u32 %s, %s, %s", s(sTmp), s(sTmp), s(sTmp2))
        e("s_add_u32 %s, %s, %d", s(sTmp), s(sTmp), TB.CI_OFF)
        e("v_min_u32 v12, %d, v0", per - 1)
        e("v_lshlrev_b32 v12, 7, v12")
        e("v_add_u32 v61, %s, v12", s(sTmp))
        n = 1
    assert n == 1


def pf3_go(q, m):
    if m & 1:
        e("buffer_load_dword v63, v61, %s, 0 offen", s(sTAB, 4))
        q.issue("pf")
    if m & 2:
        e("s_mov_b32 %s, 0x%x", s(sTmp), WS_WD + 16384)
        e("buffer_load_dword v62, v60, %s, %s offen sc1", s(sWS, 4), s(sTmp))
        q.issue("pf")


def code_touch():
    lab = A.newlabel("L_ct")
    e("s_getpc_b64 s[4:5]")
    A.label(lab)
    e("s_sub_u32 s4, s4, %s - %s", lab, NAME + "_kernel")
    e("s_subb_u32 s5, s5, 0")
    e("s_mov_b32 %s, s4", s(sG))
    e("s_and_b32 %s, s5, 0xffff", s(sG + 1))
    e("s_mov_b32 %s, L_code_end - %s", s(sG + 2), NAME + "_kernel")
    e("s_mov_b32 %s, 0x00020000", s(sG + 3))
    if CT == 3:
        e("s_lshr_b32 %s, s2, 3", s(sTmp))
    else:
        e("s_bfe_u32 %s, s2, 0x30003", s(sTmp))
        e("s_lshl_b32 %s, %s, 2", s(sTmp), s(sTmp))
        e("s_add_u32 %s, %s, %s", s(sTmp), s(sTmp), s(sW))
    e("s_lshl_b32 %s, %s, 11", s(sTmp), s(sTmp))
    e("v_and_b32 v5, 15, v0")
    e("v_lshlrev_b32 v5, 7, v5")
    e("buffer_load_dword v15, v5, %s, %s offen", s(sG, 4), s(sTmp))


def warm_touch():
    e("s_lshl_b32 %s, s2, 1", s(sTmp))
    e("s_and_b32 %s, %s, 1", s(sTmp2), s(sLW))
    e("s_add_u32 %s, %s, %s", s(sTmp), s(sTmp), s(sTmp2))
    e("s_mul_i32 %s, %s, %d", s(sTmp), s(sTmp), 27 * 128)
    e("v_min_u32 v12, 26, v0")
    e("v_lshlrev_b32 v12, 7, v12")
    lab, lab2 = A.newlabel("L_wt"), A.newlabel("L_wt")
    e("s_cmp_ge_u32 %s, 2", s(sLW))
    e("s_cbranch_scc1 %s", lab)
    e("buffer_load_dword v250, v12, %s, %s offen", s(sWR, 4), s(sTmp))
    e("s_branch %s", lab2)
    A.label(lab)
    e("buffer_load_dword v250, v12, %s, %s offen", s(sWI, 4), s(sTmp))
    A.label(lab2)
    e("s_lshl_b32 %s, s2, 2", s(sTmp))
    e("s_add_u32 %s, %s, %s", s(sTmp), s(sTmp), s(sLW))
    e("s_mul_i32 %s, %s, %d", s(sTmp), s(sTmp), 6 * 128)
    e("s_add_u32 %s, %s, %d", s(sTmp), s(sTmp), TB.CI_OFF)
    e("v_min_u32 v12, 5, v0")
    e("v_lshlrev_b32 v12, 7, v12")
    e("buffer_load_dword v251, v12, %s, %s offen", s(sTAB, 4), s(sTmp))


def p1_ffn():
    vXA, vWA, FR, ACC = 8, 10, 16, 112

    def tab_touch():
        tab_srd()
        e("s_lshr_b32 %s, s2, 3", s(sJB))
        e("s_lshl_b32 %s, %s, 2", s(sJB), s(sJB))
        e("s_add_u32 %s, %s, %s", s(sJB), s(sJB), s(sW))
        e("s_mul_i32 %s, %s, 9", s(sTmp), s(sJB))
        e("v_min_u32 v5, 8, v0")
        e("v_add_u32 v5, %s, v5", s(sTmp))
        e("v_min_u32 v5, 799, v5")
        e("v_lshlrev_b32 v5, 7, v5")
        e("s_bfe_u32 %s, s2, 0x20001", s(sTmp))
        e("s_mul_i32 %s, %s, 102400", s(sTmp), s(sTmp))
        e("buffer_load_dword v1, v5, %s, %s offen", s(sTAB, 4), s(sTmp))
    if XT & 8:
        tab_touch()
    stats_addr(16)
    e("s_and_b32 %s, %s, 1", s(sWM), s(sW))
    e("s_lshr_b32 %s, %s, 1", s(sWN), s(sW))
    karg_wait(["X"], ["WS", "OUT"])
    lab = A.newlabel("L_nost")
    e("s_cmp_ge_u32 %s, 8", s(sCG))
    e("s_cbranch_scc1 %s", lab)
    stats_issue(16)
    A.label(lab)
    e("s_lshl_b32 %s, %s, 3", s(sFlag), s(sRB))
    e("s_add_u32 %s, %s, %s", s(sFlag), s(sFlag), s(sCG))
    e("s_lshl_b32 %s, %s, 7", s(sFlag), s(sFlag))
    e("s_add_u32 %s, %s, 0x%x", s(sFlag), s(sFlag), WS_FS)
    p3c_setup()
    e("v_and_b32 v5, 15, v0")
    e("v_lshlrev_b32 v5, 7, v5")
    e("s_lshl_b32 %s, %s, 13", s(sTmp), s(sWM))
    e("v_add_u32 v5, %s, v5", s(sTmp))
    e("v_lshrrev_b32 v6, 4, v0")
    e("v_bfe_u32 v7, v0, 1, 3")
    e("v_xor_b32 v6, v6, v7")
    e("v_lshl_add_u32 %s, v6, 4, v5", v(vXA))
    e("v_xor_b32 %s, 64, %s", v(vXA + 1), v(vXA))
    e("v_lshrrev_b32 v5, 4, v0")
    e("v_bfe_u32 v6, v0, 2, 2")
    e("v_lshl_add_u32 v7, v5, 3, v6")
    e("v_lshlrev_b32 v7, 8, v7")
    e("v_and_b32 v5, 1, v5")
    e("v_lshl_add_u32 v5, v6, 1, v5")
    e("s_lshl_b32 %s, %s, 2", s(sTmp), s(sWN))
    e("v_xor_b32 v5, %s, v5", s(sTmp))
    e("v_lshl_add_u32 v7, v5, 5, v7")
    e("v_and_b32 v6, 3, v0")
    e("v_lshl_add_u32 %s, v6, 3, v7", v(vWA))
    for ft in range(1, 4):
        e("v_xor_b32 %s, %d, %s", v(vWA + ft), ft << 5, v(vWA))
    nt = 0
    if XT & 1:
        e("s_lshr_b32 %s, s2, 6", s(sTmp))
        e("s_lshl_b32 %s, %s, 2", s(sTmp), s(sTmp))
        e("s_add_u32 %s, %s, %s", s(sTmp), s(sTmp), s(sW))
        e("s_mul_i32 %s, %s, 107", s(sTmp), s(sTmp))
        e("s_mul_i32 %s, %s, 5120", s(sTmp2), s(sRB))
        for k in range(2):
            e("v_min_u32 v5, %d, v0", 63 if k == 0 else 42)
            e("v_add_u32 v5, %s, v5", s(sTmp))
            if k:
                e("v_add_u32 v5, 64, v5")
            e("v_min_u32 v5, 0x4ff, v5")
            e("v_mul_u32_u24 v6, 6554, v5")
            e("v_lshrrev_b32 v6, 16, v6")
            e("v_mul_u32_u24 v7, 10, v6")
            e("v_sub_u32 v5, v5, v7")
            e("v_lshlrev_b32 v5, 7, v5")
            e("v_lshrrev_b32 v7, 2, v6")
            e("v_mul_u32_u24 v7, 81920, v7")
            e("v_add_u32 v5, v5, v7")
            e("v_and_b32 v6, 3, v6")
            e("v_mul_u32_u24 v6, 1280, v6")
            e("v_add_u32 v5, v5, v6")
            e("buffer_load_dword v1, v5, %s, %s offen", s(sX, 4), s(sTmp2))
        nt += 2
    if XT & 2 and not XT & 8:
        tab_touch()
        nt += 1
    if XT & 4:
        e("s_mul_i32 %s, %s, %d", s(sTmp), s(sJB), 21 * 128)
        e("s_and_b32 %s, s2, 1", s(sTmp2))
        e("s_mul_i32 %s, %s, %d", s(sTmp2), s(sTmp2), 4 * 63 * 1024)
        e("s_add_u32 %s, %s, %s", s(sTmp), s(sTmp), s(sTmp2))
        e("s_add_u32 %s, %s, %d", s(sTmp), s(sTmp), TB.CI_OFF)
        e("v_min_u32 v5, 20, v0")
        e("v_lshlrev_b32 v5, 7, v5")
        e("v_add_u32 v5, %s, v5", s(sTmp))
        e("s_and_b32 %s, %s, 63", s(sTmp), s(sJB))
        e("s_lshl_b32 %s, %s, 7", s(sTmp), s(sTmp))
        e("s_add_u32 %s, %s, %d", s(sTmp), s(sTmp), TB.F64_OFF)
        e("v_mov_b32 v6, %s", s(sTmp))
        e("v_cmp_lt_u32 vcc, 31, v0")
        e("v_cndmask_b32 v5, v5, v6, vcc")
        e("buffer_load_dword v1, v5, %s, 0 offen", s(sTAB, 4))
        nt += 1
    lab = A.newlabel("L_nost")
    e("s_cmp_ge_u32 %s, 8", s(sCG))
    e("s_cbranch_scc1 %s", lab)
    e("s_waitcnt vmcnt(%d)", nt)
    stats_compute(16)
    A.label(lab)
    k_offset(sK1)
    e("s_bfe_u32 %s, s2, 0x20004", s(sPar))
    e("s_add_u32 %s, %s, %s", s(sK1), s(sK1), s(sPar))
    if KG:
        mod10(sK1)
    e("s_mul_i32 %s, %s, 12288", s(sK1), s(sK1))
    e("s_lshl_b32 %s, %s, 2", s(sTmp), s(sCG))
    e("s_lshl_b32 %s, %s, 1", s(sTmp2), s(sWM))
    e("s_add_u32 %s, %s, %s", s(sTmp), s(sTmp), s(sTmp2))
    e("s_add_u32 %s, %s, %s", s(sTmp), s(sTmp), s(sWN))
    e("s_lshl_b32 %s, %s, 8", s(sTmp), s(sTmp))
    e("s_add_u32 %s, %s, %s", s(sK1), s(sK1), s(sTmp))
    e("s_add_u32 %s, %s, 0x%x", s(sK1), s(sK1), WS_CSP)
    e("s_bfe_u32 %s, s2, 0x30003", s(sTmp))
    e("s_cmp_ge_u32 %s, 5", s(sTmp))
    e("s_cselect_b32 %s, 100, %s", s(sPar), s(sPar))
    e("s_cmp_lg_u32 %s, 0", s(sW))
    e("s_cselect_b32 %s, 100, %s", s(sNU), s(sPar))
    for i in range(4):
        e("v_mov_b32 %s, 0x3f803f80", v(2 + i))
    e("v_and_b32 v14, 48, v0")
    stamp("c_set")

    def stat_flag():
        e("s_lshr_b32 %s, %s, 3", s(sTmp), s(sCG))
        e("s_or_b32 %s, %s, %s", s(sTmp), s(sTmp), s(sW))
        rare("s_cbranch_scc0", lambda: flag_store(sFlag, 6, 7))

    def cs_mfma(it, p):
        def body():
            la, lb = A.newlabel("L_csm"), A.newlabel("L_csm")
            e("s_cmp_eq_u32 %s, 1", s(sWM))
            e("s_cbranch_scc1 %s", la)
            for mat in range(2):
                if mat:
                    e("s_branch %s", lb)
                    A.label(la)
                for ft in range(4):
                    mm16(240 + 4 * ft, wf(p, mat, ft), 2, p == 0)
            A.label(lb)
        e("s_cmp_eq_u32 %s, %d", s(sPar), it)
        rare("s_cbranch_scc1", body)

    def cs_store(it):
        def body():
            e("s_mov_b32 exec_lo, 0x00010001")
            e("s_mov_b32 exec_hi, 0x00010001")
            for ft in range(4):
                e("buffer_store_dwordx4 %s, v14, %s, %s offen offset:%d sc1", v(240 + 4 * ft, 4), s(sWS, 4), s(sK1), ft * 64)
            e("s_mov_b64 exec, -1")
        e("s_cmp_eq_u32 %s, %d", s(sPar), it)
        rare("s_cbranch_scc1", body)

    def cs_wait(it):
        e("s_cmp_eq_u32 %s, %d", s(sPar), it)
        rare("s_cbranch_scc1", lambda: e("s_waitcnt vmcnt(0)"))

    def cs_flag(it):
        def body():
            e("s_lshl_b32 %s, s2, 7", s(sTmp))
            e("s_add_u32 %s, %s, 0x%x", s(sTmp), s(sTmp), WS_FSC)
            flag_store(sTmp, 6, 7)
        e("s_cmp_eq_u32 %s, %d", s(sNU), it)
        rare("s_cbranch_scc1", body)

    def acc(mat, ft, st): return ACC + ((mat * 4 + ft) * 4 + st) * 4
    def xf(p, st): return FR + p * 48 + st * 4
    def wf(p, mat, ft): return FR + p * 48 + 16 + (mat * 4 + ft) * 4
    keys = [("x", 0), ("w", 0, 0), ("w", 0, 0), ("x", 1), ("x", 2), ("x", 3)]
    for ft in range(4):
        for mat in range(2):
            if (mat, ft) != (0, 0):
                keys += [("w", mat, ft)] * 2

    def reads(p, t):
        out, seen = [], {}
        for k in keys:
            if k[0] == "x":
                out.append(lambda st=k[1]: e("ds_read_b128 %s, %s offset:%d", v(xf(p, st), 4), v(vXA + t), st * 2048))
            else:
                rd = seen.get(k, 0); seen[k] = rd + 1
                out.append(lambda mat=k[1], ft=k[2], rd=rd: e("ds_read_b64_tr_b16 %s, %s offset:%d", v(wf(p, mat, ft) + 2 * rd, 2), v(vWA + ft), 16384 * (1 + mat) + t * 8192 + rd * 1024))
        return out
    morder, n = [], 0
    for ft in range(4):
        for mat in range(2):
            morder += [(mat, ft, st) for st in ([0, 1, 2, 3] if n % 2 == 0 else [3, 2, 1, 0])]
            n += 1
    need = [max(i + 1 for i, k in enumerate(keys) if k == ("x", m[2]) or k == ("w", m[0], m[1])) for m in morder]

    def mfmas(p, first=False):
        return [(lambda m=m: mm16(acc(*m), wf(p, m[0], m[1]), xf(p, m[2]), first)) for m in morder]
    hooks = []
    for it in range(10):
        h0, h1 = {}, {}
        if it < 3:
            h0[31] = [lambda it=it: cs_mfma(it, 0)]
            h1[8] = [lambda it=it: cs_mfma(it, 1)]
            h1[30] = [lambda it=it: cs_store(it)]
        if it == 0:
            h1[3] = [stat_flag]
        if 2 <= it <= 4:
            h1[2] = [lambda it=it: cs_wait(it - 2)]
            h1[3] = [lambda it=it: cs_flag(it - 2)]
        hooks.append([h0, h1])
    vmw = [0] + [None] * 9
    gemm_loop(10, 2, mfmas, reads, need, [8, 9, 10, 11, 12, 13], 3, 1, unroll=[(None, [])] + [(vmw[i], []) for i in range(9)], hooks=hooks, loop_from=5 if opt("loop", 1) else None)

    RM, CS = 16, 32
    e("v_and_b32 v5, 15, v0")
    e("v_lshlrev_b32 v5, 2, v5")
    e("s_lshl_b32 %s, %s, 8", s(sTmp), s(sWM))
    e("s_add_u32 %s, %s, %d", s(sTmp), s(sTmp), AUX)
    e("v_add_u32 v5, %s, v5", s(sTmp))
    if TL:
        e("s_barrier")
        stamp("c_b9")
    for st in range(4):
        e("ds_read_b32 %s, v5 offset:%d", v(RM + 4 * st), st * 64)
        e("ds_read_b32 %s, v5 offset:%d", v(RM + 4 * st + 2), 512 + st * 64)
    e("v_lshrrev_b32 v6, 4, v0")
    e("v_lshlrev_b32 v6, 4, v6")
    e("s_lshl_b32 %s, %s, 8", s(sTmp), s(sWN))
    e("s_add_u32 %s, %s, %d", s(sTmp), s(sTmp), AUX + 1024)
    e("v_add_u32 v6, %s, v6", s(sTmp))
    for ft in range(4):
        for mat in range(2):
            e("ds_read_b128 %s, v6 offset:%d", v(CS + (mat * 4 + ft) * 4, 4), mat * 512 + ft * 64)
    e("s_lshl_b32 %s, %s, 1", s(sFlag), s(sRB))
    e("s_add_u32 %s, %s, %s", s(sFlag), s(sFlag), s(sWM))
    e("s_mul_i32 %s, %s, %d", s(sTmp), s(sFlag), 2 * 48 * 2048)
    e("s_lshl_b32 s3, %s, 2", s(sCG))
    e("s_lshl_b32 %s, %s, 1", s(sCnt), s(sWN))
    e("s_add_u32 s3, s3, %s", s(sCnt))
    e("s_lshl_b32 s3, s3, 11")
    e("s_add_u32 %s, %s, s3", s(sDelta), s(sTmp))
    e("s_lshl_b32 %s, %s, 1", s(sFlag), s(sFlag))
    e("s_add_u32 %s, %s, %s", s(sFlag), s(sFlag), s(sWN))
    e("s_mul_i32 %s, %s, 12", s(sFlag), s(sFlag))
    e("s_add_u32 %s, %s, %s", s(sFlag), s(sFlag), s(sCG))
    e("s_lshl_b32 %s, %s, 7", s(sFlag), s(sFlag))
    e("s_add_u32 %s, %s, 0x%x", s(sFlag), s(sFlag), WS_FH)
    e("v_lshlrev_b32 v5, 4, v0")
    e("s_waitcnt lgkmcnt(4) vmcnt(0)")
    for st in range(4):
        e("v_mul_f32 %s, %s, %s", v(RM + 4 * st), v(RM + 4 * st), v(RM + 4 * st))
    for ph in range(2):
        if ph == 1:
            e("s_waitcnt lgkmcnt(0)")
        for st in range(4):
            rr, mm_ = RM + 4 * st, RM + 4 * st + 2
            o = 64 + ((ph * 4 + st) & 3) * 4
            for fi in range(2):
                ft = 2 * ph + fi
                g0, u0 = acc(0, ft, st), acc(1, ft, st)
                for k in (0, 2):
                    e("v_pk_fma_f32 %s, %s, %s, %s op_sel_hi:[1,0,1] neg_lo:[0,1,0] neg_hi:[0,1,0]", v(g0 + k, 2), v(CS + ft * 4 + k, 2), v(mm_, 2), v(g0 + k, 2))
                    e("v_pk_fma_f32 %s, %s, %s, %s op_sel_hi:[1,0,1] neg_lo:[0,1,0] neg_hi:[0,1,0]", v(u0 + k, 2), v(CS + 16 + ft * 4 + k, 2), v(mm_, 2), v(u0 + k, 2))
                for k in range(4):
                    e("v_max_f32 %s, 0, %s", v(g0 + k), v(g0 + k))
                for k in (0, 2):
                    e("v_pk_mul_f32 %s, %s, %s op_sel_hi:[1,0]", v(u0 + k, 2), v(u0 + k, 2), v(rr, 2))
                for k in (0, 2):
                    e("v_pk_mul_f32 %s, %s, %s", v(g0 + k, 2), v(g0 + k, 2), v(u0 + k, 2))
                for k in range(2):
                    e("v_cvt_pk_bf16_f32 %s, %s, %s", v(o + 2 * fi + k), v(g0 + 2 * k), v(g0 + 2 * k + 1))
            e("s_add_u32 %s, %s, %d", s(sTmp), s(sDelta), WS_H + (st >> 1) * 48 * 2048 + ph * 2048)
            e("buffer_store_dwordx4 %s, v5, %s, %s offen offset:%d sc1", v(o, 4), s(sWS, 4), s(sTmp), (st & 1) * 1024)
    stamp("c_ep")
    p3_pre()
    e("s_mov_b32 %s, 0", s(sNU))
    e("s_branch L_p3c")


def p1_dft():
    njb = 5
    vXA, vCA, FR, ACC, FC, CO, SI = 8, 12, 16, 80, 208, 176, 192
    tab_srd()
    e("v_lshlrev_b32 v13, 4, v0")
    e("s_mul_i32 %s, %s, %d", s(sBoff), s(sCG), 20 * 5 * 1024)
    e("s_mul_i32 %s, %s, %d", s(sM0), s(sW), 5 * 1024)
    e("s_add_u32 %s, %s, %s", s(sBoff), s(sBoff), s(sM0))
    e("s_lshl_b32 %s, %s, 2", s(sWM), s(sM0))
    cur = [0]

    def cl(i):
        ops = []
        for tl in range(njb):
            def f(tl=tl):
                e("s_add_u32 m0, %s, %d", s(sM0 if CSTR[i] == 5120 else sWM), CBASE[i] + tl * 1024)
                e("s_add_u32 %s, %s, %d", s(sTmp), s(sBoff), i * 4 * njb * 1024 + tl * 1024)
                e("buffer_load_dwordx4 v13, %s, %s offen lds", s(sTAB, 4), s(sTmp))
            ops.append(f)
        return ops
    q = VQ()
    XC = [224, 240, 160, 208, 224]
    NC = 4 - NL

    def xc(i):
        gs = []
        for n in range(NL, 4):
            for hf in range(2):
                def f(n=n, hf=hf):
                    e("s_add_u32 %s, %s, %d", s(sTmp), s(sAoff), n * 8 * 81920 + i * 128)
                    e("buffer_load_dwordx4 %s, v14, %s, %s offen offset:%d", v(XC[i] + (n - NL) * 8 + hf * 4, 4), s(sX, 4), s(sTmp), hf * 640)
                gs.append(cap(f))
        q.issue("x%d" % i, 2 * NC)
        return gs

    def cg(i):
        q.issue("c%d" % i, njb)
        return [cap(f) for f in cl(i)]

    def foldc(i):
        for n in range(NL, 4):
            fold_group(XC[i] + (n - NL) * 8, 64, 72, (1, 2)[n & 1], (1 - (i & 1)) * 5120 + n * 1024)
    if XT & 16:
        e("s_bfe_u32 %s, s2, 0x30003", s(sTmp))
        e("s_lshl_b32 %s, %s, 2", s(sTmp), s(sTmp))
        e("s_add_u32 %s, %s, %s", s(sTmp), s(sTmp), s(sW))
        e("s_mul_i32 %s, %s, 2560", s(sTmp), s(sTmp))
        e("s_mul_i32 %s, %s, 102400", s(sTmp2), s(sCG))
        e("s_add_u32 %s, %s, %s", s(sTmp), s(sTmp), s(sTmp2))
        e("s_add_u32 %s, %s, 20480", s(sTmp), s(sTmp))
        e("v_min_u32 v5, 19, v0")
        e("v_lshlrev_b32 v5, 7, v5")
        e("buffer_load_dword v15, v5, %s, %s offen", s(sTAB, 4), s(sTmp))
        q.issue("t")
    if XO == 1:
        weave([], cg(0))
    fold_addr(14, 1, 3)
    x_src_scalar()
    stamp("dc_pre")
    e("s_waitcnt lgkmcnt(0)")
    stamp("dc_k")
    srd(A, *SRDS["X"])
    weave([], xc(0) + (cg(0) if XO == 0 else []) + xc(1))
    stamp("dc_i0")
    e("s_mul_i32 %s, %s, %d", s(sTmp), s(sW), CPS)
    e("s_add_u32 %s, %s, %d", s(sTmp), s(sTmp), XB + 5120)
    e("v_and_b32 v5, 31, v0")
    e("v_lshlrev_b32 v5, 7, v5")
    e("v_add_u32 v5, %s, v5", s(sTmp))
    e("v_lshrrev_b32 v6, 5, v0")
    e("v_bfe_u32 v7, v0, 1, 3")
    e("v_xor_b32 v6, v6, v7")
    e("v_lshl_add_u32 %s, v6, 4, v5", v(vXA))
    for t in range(1, 4):
        e("v_xor_b32 %s, %d, %s", v(vXA + t), t << 5, v(vXA))
    e("v_mov_b32 %s, v13", v(vCA))
    e("v_add_u32 v3, %d, v13", CP0 + 3 * CPS)
    karg_wait([], ["WS", "OUT"])
    p3c_setup()
    e("s_cmp_ge_u32 %s, 2", s(sCG))
    e("s_cselect_b32 %s, -1.0, 1.0", s(sSgn))
    e("v_mov_b32 v72, 0xffff0000")
    e("s_lshl_b32 %s, %s, 2", s(sS2), s(sRB))
    e("s_add_u32 %s, %s, %s", s(sS2), s(sS2), s(sW))
    e("v_and_b32 v5, 31, v0")
    e("v_lshrrev_b32 v6, 5, v0")
    e("v_lshlrev_b32 v6, 8, v6")
    e("v_add_u32 v6, %s, v6", s(sS2))
    e("v_mul_u32_u24 v6, v6, v5")

    def consts():
        for kap in range(2):
            for i in range(8):
                s0 = 16 * kap + 8 * (i >> 2) + (i & 3)
                e("v_mul_u32_u24 v7, %d, v5", 64 * s0)
                e("v_add_u32 v7, v7, v6")
                e("v_and_b32 v7, 0x7ff, v7")
                e("v_cvt_f32_u32 v7, v7")
                e("v_mul_f32 v7, 0x3a000000, v7")
                e("v_cos_f32 %s, v7", v(CO + 8 * kap + i))
                e("v_sin_f32 %s, v7", v(SI + 8 * kap + i))
    if CX == 0:
        weave(cap(consts), cg(1) + xc(2) + cg(2) + xc(3) + cg(3), skip=10)
        q.wait("x0")
        weave(cap(lambda: foldc(0)), cg(4))
        weave([], xc(4))
        late = {}
    elif CX == 1:
        weave(cap(consts), cg(1) + xc(2) + cg(2), skip=40)
        q.wait("x0")
        weave(cap(lambda: foldc(0)), xc(3) + cg(3))
        late = {0: lambda: xc(4) + cg(4)}
    else:
        stamp("dc_c0")
        weave(cap(consts), cg(1) + xc(2), skip=60)
        stamp("dc_c1")
        q.wait("x0")
        stamp("dc_x0")
        weave(cap(lambda: foldc(0)), cg(2))
        late = {0: lambda: xc(3) + cg(3), 1: lambda: xc(4) + cg(4)}
    stamp("c_set")

    def xf(p): return FR + p * 24
    def cf(p, tl): return FR + p * 24 + 4 + 4 * tl

    def reads(p, t):
        ops = [lambda: e("ds_read_b128 %s, %s", v(xf(p), 4), v(vXA + t))]
        for tl in range(njb):
            if t == 3 and CSTR[cur[0]] == CPS:
                ops.append(lambda tl=tl, o=CBASE[cur[0]] - CP0: e("ds_read_b128 %s, v3 offset:%d", v(cf(p, tl), 4), o + tl * 1024))
            else:
                ops.append(lambda tl=tl, st=CSTR[cur[0]]: e("ds_read_b128 %s, %s offset:%d", v(cf(p, tl), 4), v(vCA), t * st + tl * 1024))
        return ops

    def mfmas(p, first=False):
        return [(lambda tl=tl: e("v_mfma_f32_32x32x16_bf16 %s, %s, %s, %s", v(ACC + 16 * tl, 16), v(xf(p), 4), v(cf(p, tl), 4), "0" if first else v(ACC + 16 * tl, 16))) for tl in range(njb)]

    def vmc(tag):
        last = max([i for i, x in enumerate(q.q) if x == tag], default=-1)
        if last < 0:
            return None
        n = len(q.q) - 1 - last
        q.q = q.q[last + 1:]
        return n

    def fills(i):
        cur[0] = i
        if i == 4:
            return []
        w = cap(lambda: q.wait("x%d" % (i + 1))) if NC else []
        mem = late[i]() if i in late else []
        work = [[ln] for ln in cap(lambda: foldc(i + 1))]
        out, k = [w], 0
        for n, g in enumerate(work):
            out.append(g)
            if n % 5 == 4 and k < len(mem):
                out.append(mem[k]); k += 1
        return out + mem[k:]

    def advf(i):
        for t in range(4):
            e("v_add_u32 %s, %d, %s", v(vXA + t), (5120 if i & 1 else -5120) & 0xffffffff, v(vXA + t))
        e("v_add_u32 %s, %d, %s", v(vCA), (CBASE[i + 1] - CBASE[i]) & 0xffffffff, v(vCA))
    gemm_loop(5, 4, mfmas, reads, [2 + tl for tl in range(njb)], [vXA + i for i in range(5)], 0, 2, buf0=SLAB, advf=advf,
              unroll=[(vmc("c0"), [])] + [((lambda i=i: vmc("c%d" % i)), []) for i in range(1, 5)], fills=fills)

    if EPR:
        e("s_setprio %d", EPR)
    RR, MM = 16, 32
    e("v_lshrrev_b32 v6, 5, v0")
    e("v_lshlrev_b32 v6, 4, v6")
    e("s_lshl_b32 %s, %s, 7", s(sTmp), s(sW))
    e("s_add_u32 %s, %s, %d", s(sTmp), s(sTmp), AUX)
    e("v_add_u32 v7, %s, v6", s(sTmp))
    for jj in range(4):
        e("ds_read_b128 %s, v7 offset:%d", v(RR + 4 * jj, 4), jj * 32)
    e("v_and_b32 v5, 15, v0")
    e("v_lshlrev_b32 v5, 6, v5")
    e("v_bfe_u32 v6, v0, 4, 1")
    e("v_lshl_add_u32 v5, v6, 5, v5")
    e("v_lshrrev_b32 v6, 5, v0")
    e("v_lshl_add_u32 v5, v6, 4, v5")
    e("s_and_b32 %s, %s, 1", s(sJB), s(sCG))
    e("s_mul_i32 %s, %s, 10", s(sJB), s(sJB))
    e("s_lshr_b32 %s, %s, 1", s(sTmp), s(sCG))
    e("s_add_u32 %s, %s, %s", s(sJB), s(sJB), s(sTmp))
    e("s_mul_i32 %s, %s, %d", s(sDelta), s(sS2), TSTR)
    e("s_mul_i32 %s, %s, 10240", s(sTmp), s(sCG))
    if TP == 1:
        e("v_and_b32 v4, 15, v0")
        e("v_lshl_add_u32 v4, v4, 6, v5")
    elif TP == 3:
        e("s_mul_i32 %s, %s, %d", s(sTmp2), s(sW), CPS)
        e("s_add_u32 %s, %s, %d", s(sTmp2), s(sTmp2), CP0)
        e("v_bfe_u32 v1, v5, 4, 2")
        e("v_and_b32 v2, 7, v0")
        e("v_xor_b32 v1, v1, v2")
        e("v_and_b32 v4, 15, v0")
        e("v_lshlrev_b32 v4, 7, v4")
        e("v_lshl_add_u32 v1, v1, 4, v4")
        e("v_add_u32 v1, %s, v1", s(sTmp2))
        e("v_lshrrev_b32 v4, 3, v0")
        e("v_xor_b32 v3, v2, v4")
        e("v_lshlrev_b32 v4, 7, v4")
        e("v_lshl_add_u32 v3, v3, 4, v4")
        e("v_add_u32 v3, %s, v3", s(sTmp2))
        e("v_xor_b32 v2, 64, v1")
        e("v_lshlrev_b32 v4, 4, v0")
    else:
        e("v_and_b32 v4, 7, v0")
        e("v_lshlrev_b32 v4, 7, v4")
        e("v_and_b32 v1, 0x30, v5")
        e("v_add_u32 v4, v4, v1")
        e("v_bfe_u32 v1, v0, 3, 1")
        e("v_lshl_add_u32 v2, v1, 6, v4")
        e("v_xor_b32 v1, 1, v1")
        e("v_lshl_add_u32 v4, v1, 6, v4")
        e("s_mov_b32 s28, 0xff00ff00")
        e("s_mov_b32 s29, 0xff00ff00")
    e("s_add_u32 %s, %s, %s", s(sDelta), s(sDelta), s(sTmp))
    e("s_add_u32 %s, %s, 0x%x", s(sDelta), s(sDelta), WS_T)
    e("s_lshl_b32 %s, %s, 4", s(sFlag), s(sCG))
    e("s_add_u32 %s, %s, %s", s(sFlag), s(sFlag), s(sRB))
    e("s_lshl_b32 %s, %s, 7", s(sFlag), s(sFlag))
    e("s_add_u32 %s, %s, 0x%x", s(sFlag), s(sFlag), WS_FT)
    e("v_bfe_u32 v6, v0, 3, 1")
    e("v_cmp_eq_u32 vcc, 0, v6")
    e("v_mov_b32 v6, 0")
    e("v_mov_b32 v13, 0x80008000")
    e("v_cndmask_b32 v6, v6, v13, vcc")
    DD, AF, AN = [224, 240], [48, 64], 32

    def epilogue(first):
        order = ([4, 2, 3, 1, 0, 5] if TP >= 2 else [1, 2, 3, 4, 0, 5]) if first else [0, 1, 2, 3, 4]
        got, defer = set(), []

        def pack(n):
            tl = order[n]
            if tl == 5:
                e("s_nop 1")
                return
            a0, af = ACC + 16 * tl, AF[n & 1]
            if first and tl == 0:
                for i in range(16):
                    e("v_fma_f32 %s, -%s, v7, %s", v(a0 + i), v(MM + i), v(a0 + i))
            for i in range(8):
                e("v_cvt_pk_bf16_f32 %s, %s, %s", v(af + i), v(a0 + 2 * i), v(a0 + 2 * i + 1))
            if first and tl == 0:
                for i in range(8):
                    e("v_and_b32_dpp %s, %s, v14 row_ror:8 row_mask:0xf bank_mask:0xf", v(AN + i), v(af + i))
                    e("v_and_b32 %s, v15, %s", v(AN + 8 + i), v(af + i))
                for i in range(8):
                    e("v_bfi_b32 %s, v15, 0, %s", v(af + i), v(af + i))
            for i in range(8):
                e("v_xor_b32_dpp %s, %s, v6 row_ror:8 row_mask:0xf bank_mask:0xf", v(af + 8 + i), v(af + i))

        def stage(n):
            d, af = DD[n & 1], AN if order[n] == 5 else AF[n & 1]
            for k in range(4):
                e("v_mfma_f32_32x32x16_bf16 %s, %s, %s, %s", v(d, 16), v(af + 4 * k, 4), v(FC + 4 * k, 4), v(d, 16) if k else "0")

        def finish(n):
            d, tl = DD[n & 1], order[n]
            o = ACC + 16 * tl if TP == 2 and tl < 4 else d
            for i in range(8):
                e("v_cvt_pk_bf16_f32 %s, %s, %s", v(o + i), v(d + 2 * i), v(d + 2 * i + 1))
            e("s_add_u32 %s, %s, %d", s(sTmp), s(sDelta), 40960 if tl == 5 else (tl >> 1) * 4096)
            e("s_nop 0")
            for i in range(4):
                e("v_permlane16_swap_b32 %s, %s", v(o + i), v(o + 4 + i))
            if TP == 3 and tl < 4:
                for q in range(2):
                    e("ds_write_b128 %s, %s offset:%d", v(1 + (tl & 1)), v(d + 4 * q, 4), (tl >> 1) * 4096 + q * 2048)
                got.add(tl)
                if (tl ^ 1) in got:
                    for m in range(4):
                        e("ds_read_b128 %s, v3 offset:%d", v(ACC + 16 * tl + 4 * m, 4), (tl >> 1) * 4096 + m * 1024)

                    def later():
                        e("s_add_u32 %s, %s, %d", s(sTmp), s(sDelta), (tl >> 1) * 4096)
                        for m in range(4):
                            e("s_waitcnt lgkmcnt(%d)", 3 - m)
                            e("buffer_store_dwordx4 %s, v4, %s, %s offen offset:%d sc1", v(ACC + 16 * tl + 4 * m, 4), s(sWS, 4), s(sTmp), m * 1024)
                    defer.append(cap(later))
                return
            if TP == 2 and tl < 4:
                got.add(tl)
                if (tl ^ 1) not in got:
                    return
                a_, b_, t_ = ACC + 16 * (tl & 2), ACC + 16 * (tl | 1), ACC + 16 * tl + 8
                e("s_nop 0")
                for i in range(8):
                    e("v_mov_b32_dpp %s, %s row_ror:8 row_mask:0xf bank_mask:0xf", v(t_ + i), v(b_ + i))
                for q in range(2):
                    for i in range(4 * q, 4 * q + 4):
                        e("v_cndmask_b32 %s, %s, %s, s[28:29]", v(b_ + i), v(t_ + i), v(a_ + i))
                        e("v_cndmask_b32 %s, %s, %s, s[28:29]", v(a_ + i), v(a_ + i), v(t_ + i))
                    e("buffer_store_dwordx4 %s, v2, %s, %s offen offset:%d sc1", v(a_ + 4 * q, 4), s(sWS, 4), s(sTmp), q * 2048)
                    e("buffer_store_dwordx4 %s, v4, %s, %s offen offset:%d sc1", v(b_ + 4 * q, 4), s(sWS, 4), s(sTmp), q * 2048 + 1024)
                return
            for q in range(2):
                if tl < 4:
                    e("buffer_store_dwordx4 %s, v4, %s, %s offen offset:%d sc1", v(d + 4 * q, 4), s(sWS, 4), s(sTmp), q * 2048 + (tl & 1) * 64)
                else:
                    e("buffer_store_dwordx4 %s, v5, %s, %s offen offset:%d sc1", v(d + 4 * q, 4), s(sWS, 4), s(sTmp), q * 1024)
        if first:
            for jj in range(4):
                e("ds_read_b128 %s, v7 offset:%d", v(MM + 4 * jj, 4), 512 + jj * 32)
            e("v_and_b32 v15, 31, v0")
            e("v_cmp_eq_u32 vcc, 0, v15")
            e("v_cmp_eq_u32 s[4:5], 8, v15")
            e("v_mov_b32 v13, 0x44200000")
            e("v_cndmask_b32 v14, 0, -1, vcc")
            e("v_cndmask_b32 v15, 0, -1, s[4:5]")
        pack(0)
        e("s_waitcnt lgkmcnt(0)")
        if first:
            e("v_and_b32 v7, v13, v14")
        for i in range(0, 16, 2):
            e("v_pk_mul_f32 %s, %s, %s", v(CO + i, 2), v(CO + i, 2), v(RR + i, 2))
            e("v_pk_mul_f32 %s, %s, %s neg_lo:[1,0] neg_hi:[1,0]", v(SI + i, 2), v(SI + i, 2), v(RR + i, 2))
        for i in range(8):
            e("v_cvt_pk_bf16_f32 %s, %s, %s", v(FC + i), v(CO + 2 * i), v(CO + 2 * i + 1))
            e("v_cvt_pk_bf16_f32 %s, %s, %s", v(FC + 8 + i), v(SI + 2 * i), v(SI + 2 * i + 1))
        e("s_nop 1")
        if EPI:
            N_ = len(order)
            for n in range(-1, N_):
                S = cap(lambda: stage(n + 1)) if n + 1 < N_ else []
                P_ = cap(lambda: pack(n + 2)) if n + 2 < N_ else []
                D_ = defer.pop() if defer else []
                F_ = cap(lambda: finish(n)) if n >= 0 else []
                if not S:
                    A.lines += (D_ + ["    s_nop 7"] if D_ else ["    s_nop 15"]) + F_
                elif not F_:
                    k = (len(P_) + 2) // 3
                    A.lines += S[:1] + P_[:k] + S[1:2] + P_[k:2 * k] + S[2:3] + P_[2 * k:] + S[3:]
                else:
                    if len(P_) < 12:
                        P_ = P_ + ["    s_nop 10"]
                    k = 16 if len(F_) < 20 else 24
                    A.lines += S[:1] + P_ + D_ + S[1:2] + F_[:9] + S[2:3] + F_[9:k] + S[3:] + F_[k:]
            return
        stage(0)
        for n in range(len(order)):
            if n + 1 < len(order):
                pack(n + 1)
                stage(n + 1)
                if order[n + 1] == 5:
                    e("s_nop 7")
            else:
                e("s_nop 15")
            finish(n)
    e("s_cmp_eq_u32 %s, 0", s(sCG))
    e("s_cbranch_scc1 L_dft_e0")
    epilogue(False)
    e("s_branch L_dft_c")
    A.label("L_dft_e0")
    epilogue(True)


def mid_k1():
    e("s_and_b32 s3, s2, 7")
    e("s_lshl_b32 %s, s3, 2", s(sK1))
    e("s_bfe_u32 s3, s2, 0x20004")
    e("s_add_u32 %s, %s, s3", s(sK1), s(sK1))
    e("s_bfe_u32 s3, s2, 0x10003")


def mid():
    FC, PD = 64, 48
    XU, WY, DF = [128, 160], [192, 224], [16, 40]
    vL, vT, vWr, vUo, vP, vTG = 5, 6, 7, 10, 11, 15
    e("v_lshlrev_b32 %s, 4, v0", v(vL))
    e("v_and_b32 v9, 3, v0")
    e("v_add_u32 v13, %d, %s", FR_L, v(vL))
    for n in range(8):
        e("ds_read_b128 %s, v13 offset:%d", v(FC + 4 * n, 4), n * 1024)
    for i in range(32):
        e("v_mov_b32 %s, 0", v(WY[0] + i))
    e("v_and_b32 v8, 15, v0")
    e("v_lshrrev_b32 v12, 2, v0")
    e("v_lshlrev_b32 %s, 6, v12", v(vT))
    e("v_lshl_add_u32 %s, v9, 4, %s", v(vT), v(vT))
    e("v_add_u32 %s, %s, %s", v(vT), s(sM0), v(vT))
    e("v_and_b32 v13, 12, v12")
    e("v_bfe_u32 v14, v0, 3, 1")
    e("v_lshl_add_u32 v13, v14, 4, v13")
    e("v_bfe_u32 v14, v0, 2, 1")
    e("v_lshl_add_u32 v13, v14, 1, v13")
    e("v_mul_u32_u24 v12, %d, v13", TSTR)
    e("v_lshl_add_u32 %s, v9, 4, v12", v(vTG))
    e("v_lshrrev_b32 v9, 4, v0")
    e("v_lshlrev_b32 %s, 6, v8", v(vUo))
    e("v_lshl_add_u32 %s, v9, 4, %s", v(vUo), v(vUo))
    e("v_mul_u32_u24 v12, %d, v9", 4 * 336)
    e("v_lshl_add_u32 v12, v8, 2, v12")
    e("s_add_u32 %s, %s, %s", s(sTmp), s(sMW), s(sPar))
    e("v_add_u32 %s, %s, v12", v(vWr), s(sTmp))
    e("v_bfe_u32 v12, v0, 3, 1")
    e("v_lshlrev_b32 v12, 1, v12")
    e("v_bfe_u32 v13, v0, 4, 1")
    e("v_lshl_add_u32 v12, v13, 4, v12")
    e("v_lshrrev_b32 v14, 5, v0")
    e("v_lshl_add_u32 v12, v14, 2, v12")
    e("v_mul_u32_u24 v12, %d, v12", TSTR)
    e("v_bfe_u32 v14, v0, 2, 1")
    e("v_xor_b32 v13, v13, v14")
    e("v_lshl_add_u32 v12, v13, 6, v12")
    e("v_and_b32 v13, 3, v0")
    e("v_lshl_add_u32 v1, v13, 4, v12")
    e("v_lshrrev_b32 v12, 2, v0")
    e("v_lshlrev_b32 v12, 7, v12")
    e("v_lshl_add_u32 v12, v13, 4, v12")
    e("v_bfe_u32 v13, v0, 3, 1")
    e("v_lshl_add_u32 v12, v13, 6, v12")
    e("v_add_u32 v2, %s, v12", s(sM0))
    e("v_xor_b32 v4, 64, v2")
    e("v_add_u32 v8, %s, v12", s(sLB2))
    e("v_xor_b32 v9, 64, v8")
    e("s_waitcnt vmcnt(0) lgkmcnt(0)")
    lab = A.newlabel("L_noft")
    e("s_cmp_lg_u32 %s, 3", s(sWN))
    e("s_cbranch_scc1 %s", lab)
    if PPT:
        poll_check_pipe(PD, PPT, vP, WS_FT, PPG)
    else:
        poll_check(PD, 1, vP, WS_FT)
    A.label(lab)
    e("s_barrier")
    stamp("m_B")
    e("s_mul_i32 %s, %s, %d", s(sDelta), s(sK1), USTR)
    e("s_lshl_b32 %s, %s, 12", s(sTmp), s(sJB))
    e("s_add_u32 %s, %s, %s", s(sDelta), s(sDelta), s(sTmp))
    e("s_add_u32 %s, %s, 0x%x", s(sDelta), s(sDelta), WS_U)

    def gather(un):
        for n in range(4):
            e("s_add_u32 m0, %s, %d", s(sM0), n * 1024)
            e("s_add_u32 %s, %s, %d", s(sTmp), s(sTB), WS_T + (32 * (n & 1) + (n >> 1)) * TSTR)
            e("buffer_load_dwordx4 %s, %s, %s offen sc1 lds", v(vTG), s(sWS, 4), s(sTmp))

    def gather2():
        for kap in range(2):
            for n in range(4):
                e("s_add_u32 m0, %s, %d", s(sLB2 if kap else sM0), n * 1024)
                e("s_add_u32 %s, %s, %d", s(sTmp), s(sTB), WS_T + (32 * (n >> 1) + 8 * (n & 1) + kap) * TSTR)
                e("buffer_load_dwordx4 v1, %s, %s offen sc1 lds", s(sWS, 4), s(sTmp))

    def R2(u):
        for ri in range(2):
            for kap in range(2):
                for rd in range(2):
                    e("ds_read_b64_tr_b16 %s, %s offset:%d", v(DF[u] + 8 * ri + 4 * kap + 2 * rd, 2), v((2, 4, 8, 9)[kap * 2 + u]), rd * 2048 + ri * 8)

    def gathered():
        if EST == 3:
            e("v_mov_b32 v12, %d", LGO)
            e("v_mov_b32 v13, 1")
            e("s_mov_b64 exec, 1")
            e("ds_add_u32 v12, v13 offset:8")
            e("s_mov_b64 exec, -1")

    def F(ri, t, par): return FC + ((ri * 2 + t) * 2 + par) * 4

    def R(u):
        for ri in range(2):
            for kap in range(2):
                for rd in range(2):
                    e("ds_read_b64_tr_b16 %s, %s offset:%d", v(DF[u] + 8 * ri + 4 * kap + 2 * rd, 2), v(14 if u else vT), kap * 2048 + rd * 1024 + ri * 8)

    def N(u):
        for i in range(8):
            e("v_xor_b32 %s, 0x80008000, %s", v(DF[u] + 16 + i), v(DF[u] + 8 + i))

    def WR(u):
        for mt in range(4):
            for i in range(4):
                for arr in range(2):
                    e("ds_read_u16_d16_hi %s, %s offset:%d", v(WY[u] + arr * 16 + 4 * mt + i), v(vWr), arr * MWA + (16 * mt + i) * 336 + 64 * u)

    def SA(u):
        Tre, Tim, Tni = DF[u], DF[u] + 8, DF[u] + 16
        for t in range(2):
            for step in range(2):
                for par in range(2):
                    xr, xi = XU[u] + 4 * (t + 2 * par), XU[u] + 16 + 4 * (t + 2 * par)
                    if step == 0:
                        mm16(xr, F(0, t, par), Tre + 4 * par, True)
                        mm16(xi, F(1, t, par), Tre + 4 * par, True)
                    else:
                        mm16(xr, F(1, t, par), Tni + 4 * par)
                        mm16(xi, F(0, t, par), Tim + 4 * par)

    def BF(u):
        for t in range(2):
            for b in (XU[u] + 4 * t, XU[u] + 4 * t + 2, XU[u] + 16 + 4 * t, XU[u] + 18 + 4 * t):
                e("v_pk_add_f32 %s, %s, %s", v(b, 2), v(b, 2), v(b + 8, 2))
            for b in (XU[u] + 4 * t, XU[u] + 4 * t + 2, XU[u] + 16 + 4 * t, XU[u] + 18 + 4 * t):
                e("v_pk_fma_f32 %s, %s, 2.0, %s op_sel_hi:[1,0,1] neg_lo:[1,0,0] neg_hi:[1,0,0]", v(b + 8, 2), v(b + 8, 2), v(b, 2))

    def YP(u):
        BF(u)
        for n in range(0, 16, 4):
            for k in (0, 2):
                e("v_pk_mul_f32 %s, %s, %s", v(8 if k else 12, 2), v(XU[u] + 16 + n + k, 2), v(WY[u] + 16 + n + k, 2))
            for k in (0, 2):
                e("v_pk_mul_f32 %s, %s, %s", v(WY[u] + 16 + n + k, 2), v(XU[u] + n + k, 2), v(WY[u] + 16 + n + k, 2))
            for k in (0, 2):
                e("v_pk_fma_f32 %s, %s, %s, %s", v(WY[u] + 16 + n + k, 2), v(XU[u] + 16 + n + k, 2), v(WY[u] + n + k, 2), v(WY[u] + 16 + n + k, 2))
            for k in (0, 2):
                e("v_pk_fma_f32 %s, %s, %s, %s neg_lo:[0,0,1] neg_hi:[0,0,1]", v(WY[u] + n + k, 2), v(XU[u] + n + k, 2), v(WY[u] + n + k, 2), v(8 if k else 12, 2))

    def CV(u):
        for mt in range(4):
            for par in range(2):
                w_r, w_i = WY[u] + 4 * mt + par, WY[u] + 16 + 4 * mt + par
                e("v_cvt_pk_bf16_f32 %s, %s, %s", v(DF[u] + 8 + 4 * par + mt), v(w_i), v(w_i + 2))
                e("v_cvt_pk_bf16_f32 %s, %s, %s", v(DF[u] + 4 * par + mt), v(w_r), v(w_r + 2))
            for par in range(2):
                e("v_xor_b32 %s, 0x80008000, %s", v(DF[u] + 16 + 4 * par + mt), v(DF[u] + 4 * par + mt))

    def SB(u):
        Yre, Yim, Ynr = DF[u], DF[u] + 8, DF[u] + 16
        for t in range(2):
            for step in range(2):
                for par in range(2):
                    ur, ui = XU[u] + 4 * (t + 2 * par), XU[u] + 16 + 4 * (t + 2 * par)
                    if step == 0:
                        mm16(ur, Yre + 4 * par, F(0, t, par), True)
                        mm16(ui, Yim + 4 * par, F(0, t, par), True)
                    else:
                        mm16(ur, Yim + 4 * par, F(1, t, par))
                        mm16(ui, Ynr + 4 * par, F(1, t, par))

    def O(u):
        if u:
            e("s_add_u32 %s, %s, 8192", s(sDelta), s(sDelta))
        for nt in range(4):
            ur, ui = XU[u] + 4 * nt, XU[u] + 16 + 4 * nt
            e("v_cvt_pk_bf16_f32 %s, %s, %s", v(ur), v(ur), v(ur + 1))
            e("v_cvt_pk_bf16_f32 %s, %s, %s", v(ur + 1), v(ur + 2), v(ur + 3))
            e("v_cvt_pk_bf16_f32 %s, %s, %s", v(ur + 2), v(ui), v(ui + 1))
            e("v_cvt_pk_bf16_f32 %s, %s, %s", v(ur + 3), v(ui + 2), v(ui + 3))
            e("buffer_store_dwordx4 %s, %s, %s, %s offen offset:%d sc1", v(ur, 4), v(vUo), s(sWS, 4), s(sDelta), nt * 1024)

    def lines(*fs):
        return [[ln] for f in fs for ln in cap(f)]

    def mix(a_, b_):
        out = []
        for i in range(max(len(a_), len(b_))):
            out += a_[i:i + 1] + b_[i:i + 1]
        return out
    one, done = A.newlabel("L_one"), A.newlabel("L_midd")
    e("s_cmp_eq_u32 %s, 1", s(sNU))
    e("s_cbranch_scc1 %s", one)
    gather2()
    gathered()
    for i in range(32):
        e("v_mov_b32 %s, 0", v(WY[1] + i))
    if MWE:
        WR(0)
        WR(1)
    e("s_waitcnt vmcnt(0)")
    stamp("m_T")
    R2(0)
    if not MWE:
        WR(0)
    e("s_waitcnt lgkmcnt(%d)", 0 if MWE else 15)
    if not MWE:
        e("s_waitcnt vmcnt(0)")
    N(0)
    if MWE:
        e("s_waitcnt vmcnt(0)")
    w1 = lines(lambda: WR(1)) if not MWE else []
    weave(cap(lambda: SA(0)), lines(lambda: R2(1)) + w1[:24], skip=1)
    e("s_waitcnt lgkmcnt(%d)", 0 if MWE else 15)
    N(1)
    YP(0)
    weave(cap(lambda: SA(1)), mix(lines(lambda: CV(0)), w1[24:]), skip=1)
    e("s_waitcnt lgkmcnt(0)")
    e("s_nop 6")
    stamp("m_u1")
    if EH:
        poll_issue(4, 1, 3, WS_FH)
    YP(1)
    weave(cap(lambda: SB(0)), lines(lambda: CV(1)), skip=1)
    e("s_nop 6")
    BF(0)
    weave(cap(lambda: SB(1)), lines(lambda: O(0)), skip=1)
    e("s_nop 7")
    BF(1)
    O(1)
    e("s_branch %s", done)
    A.label(one)
    gather(0)
    gathered()
    nci = z_ci_sub(CI_EARLY) if ECI == 3 else 0
    if MWE:
        WR(0)
    e("s_waitcnt vmcnt(%d)", nci)
    stamp("m_T")
    R(0)
    if not MWE:
        WR(0)
    e("s_waitcnt lgkmcnt(%d)", 0 if MWE else 15)
    N(0)
    e("s_nop 0")
    SA(0)
    e("s_waitcnt lgkmcnt(0)")
    e("s_nop 6")
    YP(0)
    CV(0)
    e("s_nop 1")
    SB(0)
    e("s_nop 7")
    BF(0)
    O(0)
    A.label(done)


hdr = open("cdna_kernels/%s.s.ref" % NAME).read().split("; Override launch")[0]
A(hdr.rstrip())
A("; @launch grid=(256,1,1) block=(512,1,1) lds=%d" % LDS_ALL)
A('.amdgcn_target "amdgcn-amd-amdhsa--gfx950"')
KN = NAME + "_kernel"
kernel_header(A, KN)
stamp("start")
if STAMPS:
    for i in range(1, 9):
        e("s_mov_b32 %s, 0", s(84 + 2 * i))
e("s_cmp_ge_u32 s2, 256")
e("s_cbranch_scc1 L_end")
e("s_load_dwordx16 %s, s[0:1], 0", s(P, 16))
e("s_load_dwordx4 %s, s[0:1], 64", s(P + 16, 4))
e("v_lshrrev_b32 v1, 6, v0")
e("v_and_b32 v0, 63, v0")
e("v_readfirstlane_b32 %s, v1", s(sW))
if CT == 3:
    e("s_cmp_lg_u32 %s, 0", s(sW))
    e("s_cbranch_scc1 L_noct")
    code_touch()
    A.label("L_noct")
e("s_and_b32 s3, s2, 1")
e("s_lshl_b32 %s, s3, 3", s(sRB))
e("s_bfe_u32 s3, s2, 0x30003")
e("s_add_u32 %s, %s, s3", s(sRB), s(sRB))
e("s_lshr_b32 %s, s2, 6", s(sTmp2))
e("s_bfe_u32 s3, s2, 0x20001")
e("s_mul_i32 %s, s3, 3", s(sCG))
e("s_add_u32 %s, %s, %s", s(sCG), s(sCG), s(sTmp2))
if opt("cgr", 0):
    e("s_add_u32 %s, %s, %d", s(sCG), s(sCG), opt("cgr", 0))
    e("s_cmp_ge_u32 %s, 12", s(sCG))
    e("s_cselect_b32 %s, 12, 0", s(sTmp))
    e("s_sub_u32 %s, %s, %s", s(sCG), s(sCG), s(sTmp))
e("s_and_b32 %s, %s, 3", s(sLW), s(sW))
e("s_cmp_eq_u32 %s, 3", s(sTmp2))
e("s_cbranch_scc1 L_dft")
e("s_cmp_ge_u32 %s, 4", s(sW))
e("s_cbranch_scc0 L_ffn_c")
ffn_loader()
A.label("L_ffn_c")
p1_ffn()
A.label("L_dft")
if opt("nodft", 0):
    e("s_endpgm")
e("s_mov_b32 %s, s3", s(sCG))
e("s_cmp_ge_u32 %s, 4", s(sW))
e("s_cbranch_scc0 L_dftc")
dft_loader()
A.label("L_dftc")
p1_dft()
A.label("L_dft_c")
stamp("dc_ep")
if EPR:
    e("s_setprio 0")
if ZGL:
    e("v_mov_b32 v12, %d", LGO)
    e("v_mov_b32 v13, 1")
    e("ds_write_b32 v12, v13 offset:12")
e("s_waitcnt vmcnt(0)")
stamp("dc_st")
e("v_mov_b32 v12, %d", LGO)
e("v_mov_b32 v13, 1")
e("s_mov_b64 exec, 1")
e("ds_add_rtn_u32 v13, v12, v13 offset:4")
e("s_mov_b64 exec, -1")
e("v_lshlrev_b32 v11, 7, v0")
e("s_waitcnt lgkmcnt(0)")
e("v_readfirstlane_b32 %s, v13", s(sWN))
e("s_cmp_lg_u32 %s, 3", s(sWN))
e("s_cbranch_scc1 L_noft")
flag_store(sFlag, 12, 13)
if OWN:
    e("s_sub_u32 %s, %s, 0x%x", s(sTmp), s(sFlag), WS_FT)
    e("v_cmp_eq_u32 vcc, %s, v11", s(sTmp))
    e("v_xor_b32 v12, 128, v11")
    e("v_cndmask_b32 v11, v11, v12, vcc")
poll_issue(48, 1, 11, WS_FT)
if EST == 4:
    e("v_mov_b32 v12, %d", LGO)
    e("v_mov_b32 v13, 1")
    e("ds_write_b32 v12, v13 offset:12")
A.label("L_noft")
if EH:
    fh_addr()
mid_k1()
wspec_shift(sMW)
e("s_and_b32 %s, %s, 1", s(sTmp2), s(sW))
e("s_lshl_b32 %s, %s, 7", s(sTmp), s(sTmp2))
e("s_add_u32 %s, %s, %s", s(sMW), s(sMW), s(sTmp))
e("s_add_u32 %s, %s, %d", s(sMW), s(sMW), MW0)
e("s_and_b32 %s, %s, 2", s(sPar), s(sW))
e("s_add_u32 %s, s3, %s", s(sTmp), s(sPar))
e("s_mul_i32 %s, %s, 10240", s(sTB), s(sTmp))
e("s_lshl_b32 %s, %s, 12", s(sTmp), s(sTmp2))
e("s_add_u32 %s, %s, %s", s(sTB), s(sTB), s(sTmp))
e("s_lshl_b32 %s, %s, 7", s(sTmp), s(sK1))
e("s_add_u32 %s, %s, %s", s(sTB), s(sTB), s(sTmp))
e("s_mul_i32 s3, s3, 10")
e("s_lshl_b32 %s, %s, 2", s(sTmp2), s(sTmp2))
e("s_add_u32 s3, s3, %s", s(sTmp2))
e("s_lshr_b32 %s, %s, 1", s(sTmp), s(sW))
e("s_add_u32 %s, s3, %s", s(sJB), s(sTmp))
e("s_mov_b32 %s, 2", s(sNU))
e("s_lshl_b32 %s, %s, 12", s(sM0), s(sW))
e("s_add_u32 %s, %s, %d", s(sM0), s(sM0), MT0)
e("s_mul_i32 %s, %s, %d", s(sLB2), s(sW), CPS)
e("s_add_u32 %s, %s, %d", s(sLB2), s(sLB2), CP0 + 15360)
e("s_branch L_mid")

A.label("L_dft_l")
e("s_mov_b32 %s, 0", s(sWN))
e("v_lshlrev_b32 v11, 7, v0")
mid_k1()
e("s_add_u32 %s, s3, 2", s(sTmp))
e("s_cmp_ge_u32 %s, %s", s(sLW), s(sTmp))
e("s_cbranch_scc1 L_dft_l3")
wspec_shift(sMW)
e("s_add_u32 %s, %s, %d", s(sMW), s(sMW), MW0 + 256)
e("s_lshl_b32 %s, %s, 1", s(sTmp), s(sLW))
e("s_add_u32 %s, %s, s3", s(sTmp), s(sTmp))
e("s_mul_i32 %s, %s, 10240", s(sTB), s(sTmp))
e("s_add_u32 %s, %s, 8192", s(sTB), s(sTB))
e("s_cmp_eq_u32 %s, 2", s(sLW))
e("s_cselect_b32 %s, 40960, %s", s(sTB), s(sTB))
e("s_lshl_b32 %s, %s, 6", s(sTmp), s(sK1))
e("s_add_u32 %s, %s, %s", s(sTB), s(sTB), s(sTmp))
e("s_mul_i32 s3, s3, 10")
e("s_add_u32 s3, s3, 8")
e("s_add_u32 %s, s3, %s", s(sJB), s(sLW))
e("s_lshl_b32 %s, %s, 1", s(sPar), s(sLW))
e("s_cmp_eq_u32 %s, 2", s(sLW))
e("s_cselect_b32 %s, 64, %s", s(sPar), s(sPar))
e("s_mov_b32 %s, 1", s(sNU))
e("s_lshl_b32 %s, %s, 12", s(sM0), s(sLW))
e("s_add_u32 %s, %s, %d", s(sM0), s(sM0), FI_L)
A.label("L_mid")
mid()
stamp("m_end")
e("s_cmp_ge_u32 %s, 4", s(sW))
e("s_cbranch_scc1 L_dft_l2")
p3_pre()
if EH:
    e("s_waitcnt vmcnt(8)")
    e("v_cmp_ne_u32 vcc, %s, v4", s(sTAG))
    e("s_cbranch_vccnz L_eh0")
    for i in range(EH):
        hload_(i)
    e("s_mov_b32 %s, 2", s(sNU))
    e("s_waitcnt vmcnt(%d)", 4 * EH)
    e("s_branch L_eh1")
    A.label("L_eh0")
e("s_mov_b32 %s, 0", s(sNU))
if EFH:
    if not EH:
        fh_addr()
    poll_issue(7, 1, 3, WS_FH)
e("s_waitcnt vmcnt(0)")
A.label("L_eh1")
stamp("m_st")
e("s_barrier")
e("s_cmp_lg_u32 %s, 0", s(sW))
e("s_cbranch_scc1 L_nofu")
e("s_lshl_b32 %s, s2, 7", s(sFlag))
e("s_add_u32 %s, %s, %d", s(sFlag), s(sFlag), WS_FU - 192 * 128)
flag_store(sFlag, 12, 13)
A.label("L_nofu")
A.label("L_p3c")
p3c()
e("s_branch L_fin")

A.label("L_dft_l3")
e("v_lshlrev_b32 v5, 4, v0")
if EST:
    if ECI and EST < 3:
        z_ci_sub(CI_LATE)
    e("s_waitcnt vmcnt(0)")
    if EST >= 3:
        poll_check(41, 1, 10, WS_FW)
    if EST == 4:
        e("s_cmp_lg_u32 %s, 3", s(sLW))
        e("s_cbranch_scc1 L_dft_l7")
        e("v_mov_b32 v12, %d", LGO)
        A.label("L_dft_l8")
        e("ds_read_b32 v13, v12 offset:12")
        e("s_waitcnt lgkmcnt(0)")
        e("v_cmp_ne_u32 vcc, 1, v13")
        e("s_cbranch_vccnz L_dft_l8")
        stage_all()
        stamp("dl_st")
        A.label("L_dft_l7")
    e("s_barrier")
    if EST == 4:
        e("s_waitcnt vmcnt(0)")
    if EST == 3:
        if ECI < 3:
            e("s_cmp_lg_u32 %s, 3", s(sLW))
            e("s_cbranch_scc1 L_dft_l7")
        e("v_mov_b32 v12, %d", LGO)
        e("s_add_u32 s3, s3, 6")
        A.label("L_dft_l8")
        e("ds_read_b32 v13, v12 offset:8")
        e("s_waitcnt lgkmcnt(0)")
        e("v_cmp_ne_u32 vcc, s3, v13")
        e("s_cbranch_vccnz L_dft_l8")
        if ECI == 3:
            e("s_cmp_lg_u32 %s, 3", s(sLW))
            e("s_cbranch_scc1 L_dft_l7")
            stage_all()
            e("s_waitcnt vmcnt(40)")
            A.label("L_dft_l7")
            nci_ = z_ci_sub(range(18))
            e("s_waitcnt vmcnt(%d)", nci_)
            stamp("dl_st")
        else:
            stage_all()
            e("s_waitcnt vmcnt(0)")
            stamp("dl_st")
            A.label("L_dft_l7")
    e("s_barrier")
    stage_wd(3, 4)
    if ECI:
        stage_done(0)
        e("v_lshlrev_b32 v11, 7, v0")
        e("s_branch L_dft_l6")
    else:
        e("s_branch L_dft_l5")
    A.label("L_dft_l2")
    e("s_waitcnt vmcnt(0)")
    e("s_barrier")
    stage_wd(3, 4)
    A.label("L_dft_l5")
    fu_poll_issue()
    stage_done(z_ci_sub(CI_LATE if ECI else range(18)))
    A.label("L_dft_l6")
else:
    e("s_waitcnt vmcnt(0)")
    e("s_barrier")
    e("s_branch L_dft_l4")
    A.label("L_dft_l2")
    stage_wd(0, 3)
    e("s_waitcnt vmcnt(15)")
    e("s_barrier")
    e("s_branch L_dft_l5")
    A.label("L_dft_l4")
    e("s_barrier")
    stage_wd(0, 3)
    A.label("L_dft_l5")
    stage_wd(3, 4)
    fu_poll_issue()
    stage_done(z_ci_sub(CI_LATE if ECI else range(18)))
A.label("L_zpart")
zpart()
A.label("L_fin")
if STAMPS and "--dbg" not in sys.argv:
    stamp("issued_out")
    e("s_waitcnt vmcnt(0)")
    e("%s s[100:101]", "s_memtime" if "--cyc" in sys.argv else "s_memrealtime")
    e("s_waitcnt lgkmcnt(0)")
    for i in range(9):
        e("v_mov_b32 %s, %s", v(16 + i), s(84 + 2 * i))
    e("s_lshl_b32 s3, s2, 3")
    e("s_add_u32 s3, s3, %s", s(sW))
    e("s_lshl_b32 s3, s3, 6")
    e("s_add_u32 s3, s3, 0x%x", WS_STAMP)
    e("v_mov_b32 v5, 0")
    for i in range(3):
        e("buffer_store_dwordx4 %s, v5, %s, s3 offen offset:%d", v(16 + 4 * i, 4), s(sWS, 4), 16 * i)
if "--dbg" in sys.argv:
    e("s_load_dwordx2 s[4:5], s[0:1], 64")
    e("s_waitcnt vmcnt(0) lgkmcnt(0)")
    e("s_memrealtime s[100:101]")
    srd(A, 8, 4, 256)
    e("s_waitcnt lgkmcnt(0)")
    e("s_mov_b64 exec, 1")
    e("s_not_b32 s84, s84")
    e("s_cmp_ge_u32 s2, 192")
    e("s_cselect_b32 s3, 32, 0")
    for i in range(8):
        k = [0, 8, 1, 2, 3, 4, 5, 6][i]
        e("v_mov_b32 v16, %s", s(84 + 2 * k))
        e("v_mov_b32 v17, %d", 4 * i)
        e("buffer_atomic_umax v16, v17, s[8:11], s3 offen sc1")
A.label("L_end")
e("s_endpgm")
flush_cold()
A.label("L_code_end")

kernel_desc(A, KN, 256, accum=256)
TB.emit_tables(A)
out = [x for x in sys.argv[1:] if not x.startswith("--")]
open(out[0] if out else "v30.s", "w").write(A.text())
```

```python
import sys
from asmlib import *
import tables19 as TB
if "--cg=0" not in sys.argv:
    TB.drop_ci()

NAME = "parallel_sum__spectral_gfnet__glu_gated_reglu__prompt"
A = Asm()
e = A.e


def opt(name, default):
    for x in sys.argv:
        if x.startswith("--%s=" % name):
            return int(x.split("=")[1])
    return default


STAMPS = "--stamps" in sys.argv
SLEEP = opt("sleep", 4)
ROTA, ROTB = opt("rota", 1), opt("rotb", 3)
CIP1 = opt("cip1", 0)
DROT = opt("drot", 0)
WSP = opt("wsp", 2)
PRL = opt("prl", 0)
WARM = opt("warm", 0)
FOLD = opt("fold", 1)
POLL1 = opt("poll1", 0)
CIL = opt("cil", 1)
STG = opt("stg", 1)
ZPR = opt("zpr", 3)
MPR = opt("mpr", 0)
CT = opt("ct", 3)
DS = opt("ds", 1)
PPT, PPG, OWN = opt("ppt", 4), opt("ppg", 2), opt("own", 1)
EPR, ZGL, EPI = opt("epr", 0), opt("zgl", 1), opt("epi", 1)
XT, WT = opt("xt", 0), opt("wt", 2)
P3O = opt("p3o", 1)
CG = opt("cg", 1)
TL, SG, WTN = opt("tl", 1), opt("sg", 0), opt("wtn", 4)
XQ = opt("xq", 1)
TP = opt("tp", 3)
ZIL, ZSK, FIL = opt("zil", 1), opt("zsk", 1), opt("fil", 1)
MAP8, PF3, PFP = opt("map8", 0), opt("pf3", 2 if opt("cg", 1) else 3), opt("pfp", 1)
R3A, R3B, RZ = opt("r3a", 0), opt("r3b", 0), opt("rz", 0)
OUTF = ["", " sc1", " nt", " sc0 sc1"][opt("outf", 0)]
NFIX = opt("nfix", 0)

WS_EP = 0x0000
WS_FS = 0x1000
WS_FSC = WS_FS + 128 * 128
WS_FT = 0xC000
WS_FU = 0xE000
WS_FH = 0x10000
WS_FW = 0x50000
WS_STAT = 0x28000
WS_CSP = 0x30000
WS_H = 0x60000
WS_T = 0x660000
TSTR, USTR = 43008 + opt("tpad", 128), 86016 + opt("upad", 128)
WS_U = 0x910000
WS_WD = 0xBC0000
WS_STAMP = 0x2000000

SLAB = 49152
AUX = 3 * SLAB
ZU0, ZUS = 0, 16384
CP0, CPS = 65536, 20480
LGO = AUX + 2048
XB = CP0 + 10240
CBASE, CSTR = [0, 20480, CP0, CP0 + 5120, 45056], [5120, 5120, CPS, CPS, 5120]
FR_L, FI_L = AUX + 2048 + 128, AUX + 2048 + 128
MW0, MWA = 0, 22272
MT0 = 45056
RPK = FI_L
LDS_ALL = FI_L + 12288

sX, sG, sU, sWS, sTAB, sWR, sWI, sWD, sOUT = 8, 12, 16, 20, 24, 28, 32, 36, 40
sW, sRB, sCG, sLW = 44, 45, 46, 47
sTmp, sTmp2, sCnt, sDelta, sBuf, sSLAB = 48, 49, 50, 51, 52, 53
sAoff, sBoff, sM0 = 54, 55, 56
sWM, sWN, sFlag = 57, 58, 59
sK1, sJB, sTAG, sSpin = 60, 61, 62, 63
P = 64
sP, sG3, sHo, sWo, sUo, sCo, sLB, sLB2, sOo, sOc, sOOB = 64, 65, 66, 67, 68, 69, 70, 71, 72, 73, 74
sSgn, sS2, sNU, sWcol, sPar = 76, 78, 79, 80, 81
sWa, sWb, sWc, sMW = 6, 7, 75, 80
sTB = 55
sR3, sRZ, sI4 = 82, 83, 67
SRDS = {"X": (sX, P, 2048 * 1280), "WR": (sWR, P + 2, 2048 * 642), "WI": (sWI, P + 4, 2048 * 642),
        "G": (sG, P + 8, 640 * 3072), "U": (sU, P + 10, 640 * 3072), "WD": (sWD, P + 12, 1536 * 1280),
        "OUT": (sOUT, P + 14, 2048 * 1280), "WS": (sWS, P + 18, 1 << 28)}


class VQ:
    def __init__(self):
        self.q = []
    def issue(self, tag, n=1):
        self.q += [tag] * n
    def wait(self, *tags, extra=""):
        last = max([i for i, t in enumerate(self.q) if t in tags], default=-1)
        n = len(self.q) - 1 - last
        assert n <= 63, n
        e("s_waitcnt vmcnt(%d)%s", n, extra)
        self.q = self.q[last + 1:]
    def drain(self):
        self.q = []


STN = {}
for x in sys.argv:
    if x.startswith("--st="):
        for i_, grp in enumerate(x[5:].split(",")):
            for nm in grp.split("+"):
                STN[nm] = i_ + 1
STN["start"] = 0


def cap(fn):
    keep, A.lines = A.lines, []
    fn()
    out, A.lines = A.lines, keep
    return out


def weave(main, groups, skip=0):
    n = len(groups)
    step = (len(main) - skip) / (n + 0.001) if n else 0
    k = 0
    for i, ln in enumerate(main):
        while k < n and i >= skip + k * step:
            A.lines += groups[k]
            k += 1
        A.lines.append(ln)
    while k < n:
        A.lines += groups[k]
        k += 1


COLD = []


def rare(cond, fn):
    la, lb = A.newlabel("L_rare"), A.newlabel("L_back")
    e("%s %s", cond, la)
    A.label(lb)
    body = cap(fn)
    COLD.append(["%s:" % la] + body + ["    s_branch %s" % lb])


def flush_cold():
    while COLD:
        A.lines += COLD.pop(0)


def stamp(nm):
    if STAMPS and nm in STN:
        e("%s %s", "s_memtime" if "--cyc" in sys.argv else "s_memrealtime", s(84 + 2 * STN[nm], 2))


def make_tag():
    e("s_mul_i32 %s, %s, 0x9E3779B1", s(sTAG), s(sTAG))
    e("s_add_u32 %s, %s, 0x7F4A7C15", s(sTAG), s(sTAG))


def flag_store(soff, t0, t1):
    e("v_mov_b32 %s, %s", v(t0), s(sTAG))
    e("v_mov_b32 %s, 0", v(t1))
    e("s_mov_b64 exec, 1")
    e("buffer_store_dword %s, %s, %s, %s offen sc1", v(t0), v(t1), s(sWS, 4), s(soff))
    e("s_mov_b64 exec, -1")


def poll_issue(dst, n, vaddr, base):
    e("s_mov_b32 %s, 0x%x", s(sTmp), base)
    e("buffer_load_dword%s %s, %s, %s, %s offen sc1", "" if n == 1 else "x%d" % n, v(dst, n), v(vaddr), s(sWS, 4), s(sTmp))


def poll_check(dst, n, vaddr, base):
    assert n == 1

    def spin():
        top, done = A.newlabel("L_poll"), A.newlabel("L_polld")
        e("s_mov_b32 %s, 0", s(sSpin))
        A.label(top)
        if SLEEP:
            e("s_sleep %d", SLEEP)
        poll_issue(dst, n, vaddr, base)
        e("s_add_u32 %s, %s, 1", s(sSpin), s(sSpin))
        e("s_cmp_ge_u32 %s, %d", s(sSpin), opt("spin", 40000))
        e("s_waitcnt vmcnt(0)")
        e("s_cbranch_scc1 %s", done)
        e("v_cmp_ne_u32 vcc, %s, %s", s(sTAG), v(dst))
        e("s_cbranch_vccnz %s", top)
        A.label(done)
    e("v_cmp_ne_u32 vcc, %s, %s", s(sTAG), v(dst))
    rare("s_cbranch_vccnz", spin)


def poll_check_pipe(dst, depth, vaddr, base, gap):
    def spin():
        top, done = A.newlabel("L_pp"), A.newlabel("L_ppd")
        e("s_mov_b32 %s, 0", s(sSpin))
        for k in range(1, depth):
            poll_issue(dst + k, 1, vaddr, base)
            e("s_sleep %d", gap)
        A.label(top)
        for k in range(depth):
            poll_issue(dst + k, 1, vaddr, base)
            e("s_waitcnt vmcnt(%d)", depth - 1)
            e("v_cmp_ne_u32 vcc, %s, %s", s(sTAG), v(dst + (k + 1) % depth))
            e("s_cbranch_vccz %s", done)
            e("s_sleep %d", gap)
        e("s_add_u32 %s, %s, 1", s(sSpin), s(sSpin))
        e("s_cmp_lt_u32 %s, %d", s(sSpin), opt("spin", 40000))
        e("s_cbranch_scc1 %s", top)
        A.label(done)
    e("v_cmp_ne_u32 vcc, %s, %s", s(sTAG), v(dst))
    rare("s_cbranch_vccnz", spin)


def karg_wait(first, rest=()):
    e("s_waitcnt lgkmcnt(0)")
    for k in first:
        srd(A, *SRDS[k])
    e("s_load_dword %s, %s, 0x%x", s(sTAG), s(P + 18, 2), WS_EP)
    for k in rest:
        srd(A, *SRDS[k])


def tab_srd():
    e("s_getpc_b64 s[4:5]")
    e("s_add_u32 s4, s4, dft_tables@rel32@lo+4")
    e("s_addc_u32 s5, s5, dft_tables@rel32@hi+12")
    srd(A, sTAB, 4, TB.TAB_BYTES)


def dpp_sum16(r_):
    for ctl in ("quad_perm:[1,0,3,2]", "quad_perm:[2,3,0,1]", "row_half_mirror", "row_mirror"):
        e("s_nop 1")
        e("v_add_f32_dpp %s, %s, %s %s row_mask:0xf bank_mask:0xf", v(r_), v(r_), v(r_), ctl)


def round_bf16(r_):
    e("v_cvt_pk_bf16_f32 %s, %s, %s", v(r_), v(r_), v(r_))
    e("v_and_b32 %s, 0xffff0000, %s", v(r_), v(r_))


def mm16(d, a_, b_, first=False):
    e("v_mfma_f32_16x16x32_bf16 %s, %s, %s, %s", v(d, 4), v(a_, 4), v(b_, 4), "0" if first else v(d, 4))


def stats_addr(R):
    e("s_lshl_b32 %s, %s, 2", s(sTmp), s(sCG))
    e("s_add_u32 %s, %s, %s", s(sTmp), s(sTmp), s(sW))
    e("s_lshl_b32 %s, %s, 2", s(sTmp), s(sTmp))
    e("v_lshrrev_b32 %s, 4, v0", v(R + 20))
    e("v_add_u32 %s, %s, %s", v(R + 21), s(sTmp), v(R + 20))
    e("v_and_b32 %s, 31, %s", v(R + 20), v(R + 21))
    e("v_lshlrev_b32 %s, 6, %s", v(R + 20), v(R + 20))
    e("v_lshrrev_b32 %s, 5, %s", v(R + 22), v(R + 21))
    e("v_add_u32 %s, %s, %s", v(R + 20), v(R + 20), v(R + 22))
    e("s_lshl_b32 %s, %s, 2", s(sTmp), s(sRB))
    e("v_add_u32 %s, %s, %s", v(R + 20), s(sTmp), v(R + 20))
    e("v_mul_u32_u24 %s, 1280, %s", v(R + 20), v(R + 20))
    e("v_and_b32 %s, 15, v0", v(R + 22))
    e("v_lshl_add_u32 %s, %s, 4, %s", v(R + 20), v(R + 22), v(R + 20))


def stats_issue(R):
    for n in range(5):
        e("buffer_load_dwordx4 %s, %s, %s, 0 offen offset:%d", v(R + 4 * n, 4), v(R + 20), s(sX, 4), n * 256)


def stats_compute(R):
    F = R + 24
    S_, V_, T_ = R + 64, R + 66, R + 22
    for n in range(20):
        e("v_lshlrev_b32 %s, 16, %s", v(F + 2 * n), v(R + n))
        e("v_and_b32 %s, 0xffff0000, %s", v(F + 2 * n + 1), v(R + n))
    e("v_pk_add_f32 %s, %s, %s", v(S_, 2), v(F, 2), v(F + 2, 2))
    for n in range(2, 20):
        e("v_pk_add_f32 %s, %s, %s", v(S_, 2), v(S_, 2), v(F + 2 * n, 2))
    e("v_add_f32 %s, %s, %s", v(S_), v(S_), v(S_ + 1))
    dpp_sum16(S_)
    e("v_mul_f32 %s, 0x3acccccd, %s", v(S_), v(S_))
    for n in range(20):
        e("v_pk_add_f32 %s, %s, %s op_sel_hi:[1,0] neg_lo:[0,1] neg_hi:[0,1]", v(F + 2 * n, 2), v(F + 2 * n, 2), v(S_, 2))
    e("v_pk_mul_f32 %s, %s, %s", v(V_, 2), v(F, 2), v(F, 2))
    for n in range(1, 20):
        e("v_pk_fma_f32 %s, %s, %s, %s", v(V_, 2), v(F + 2 * n, 2), v(F + 2 * n, 2), v(V_, 2))
    e("v_add_f32 %s, %s, %s", v(V_), v(V_), v(V_ + 1))
    dpp_sum16(V_)
    e("v_mul_f32 %s, 0x3acccccd, %s", v(V_), v(V_))
    round_bf16(V_)
    e("v_add_f32 %s, 0x3727c5ac, %s", v(V_), v(V_))
    round_bf16(V_)
    e("v_sqrt_f32 %s, %s", v(V_), v(V_))
    e("s_nop 0")
    round_bf16(V_)
    e("v_rcp_f32 %s, %s", v(V_), v(V_))
    round_bf16(S_)
    e("v_and_b32 %s, 15, v0", v(T_))
    e("v_cmp_eq_u32 vcc, 1, %s", v(T_))
    e("v_lshlrev_b32 %s, 2, %s", v(R + 1), v(R + 21))
    e("v_lshl_add_u32 %s, %s, 9, %s", v(R + 1), v(T_), v(R + 1))
    e("v_cndmask_b32 %s, %s, %s, vcc", v(V_), v(V_), v(S_))
    e("v_cmp_gt_u32 vcc, 2, %s", v(T_))
    e("s_lshl_b32 %s, %s, 10", s(sTmp), s(sRB))
    e("s_add_u32 %s, %s, 0x%x", s(sTmp), s(sTmp), WS_STAT)
    e("s_and_saveexec_b64 s[4:5], vcc")
    e("buffer_store_dword %s, %s, %s, %s offen sc1", v(V_), v(R + 1), s(sWS, 4), s(sTmp))
    e("s_mov_b64 exec, s[4:5]")


def aux_poll_addr(ffn, dst):
    e("s_lshl_b32 %s, %s, 2", s(sTmp), s(sRB))
    e("s_add_u32 %s, %s, %s", s(sTmp), s(sTmp), s(sLW))
    e("s_lshl_b32 %s, %s, 1", s(sTmp), s(sTmp))
    e("v_and_b32 v6, 1, v0")
    e("v_add_u32 v6, %s, v6", s(sTmp))
    if ffn:
        e("s_and_b32 %s, s2, 0xc6", s(sTmp))
        e("s_add_u32 %s, %s, 128", s(sTmp), s(sTmp))
        e("v_and_b32 v7, 7, v0")
        e("v_bfe_u32 v12, v0, 3, 1")
        e("v_min_u32 v7, 4, v7")
        e("v_lshlrev_b32 v7, 3, v7")
        e("v_add3_u32 v7, v7, v12, %s", s(sTmp))
        e("v_cmp_gt_u32 vcc, 16, v0")
        e("s_nop 1")
        e("v_cndmask_b32 v6, v7, v6, vcc")
    e("v_lshlrev_b32 %s, 7, v6", v(dst))


def fw_poll_addr(dst):
    e("s_lshl_b32 %s, %s, 6", s(sTmp), s(sLW))
    e("v_add_u32 %s, %s, v0", v(dst), s(sTmp))
    e("v_min_u32 %s, 159, %s", v(dst), v(dst))
    e("v_lshlrev_b32 %s, 7, %s", v(dst), v(dst))


def aux_addr(ffn, R):
    e("v_and_b32 %s, 31, v0", v(R))
    e("v_lshrrev_b32 %s, 5, v0", v(R + 1))
    e("v_lshlrev_b32 %s, 2, %s", v(R), v(R))
    e("v_lshl_add_u32 %s, %s, 9, %s", v(R), v(R + 1), v(R))
    e("s_lshl_b32 %s, %s, 7", s(sTmp), s(sLW))
    e("v_add_u32 %s, %s, %s", v(R), s(sTmp), v(R))
    if ffn:
        e("v_lshrrev_b32 %s, 4, v0", v(R + 1))
        e("v_mul_u32_u24 %s, 12288, %s", v(R + 1), v(R + 1))
        e("v_and_b32 %s, 15, v0", v(R + 3))
        e("v_lshl_add_u32 %s, %s, 4, %s", v(R + 1), v(R + 3), v(R + 1))
        e("s_lshl_b32 %s, %s, 8", s(sTmp), s(sLW))
        e("s_lshl_b32 %s, %s, 10", s(sTmp2), s(sCG))
        e("s_add_u32 %s, %s, %s", s(sTmp), s(sTmp), s(sTmp2))
        e("v_add_u32 %s, %s, %s", v(R + 1), s(sTmp), v(R + 1))
        e("v_lshrrev_b32 %s, 5, v0", v(R + 16))
        e("v_lshl_add_u32 %s, %s, 29, %s", v(R + 16), v(R + 16), v(R + 1))


def aux_issue(ffn, R):
    e("s_lshl_b32 %s, %s, 10", s(sTmp), s(sRB))
    e("s_add_u32 %s, %s, 0x%x", s(sTmp), s(sTmp), WS_STAT)
    e("buffer_load_dword %s, %s, %s, %s offen sc1", v(R + 2), v(R), s(sWS, 4), s(sTmp))
    if ffn:
        for n in range(3):
            e("s_mov_b32 %s, 0x%x", s(sTmp), WS_CSP + n * 4 * 12288)
            e("buffer_load_dwordx4 %s, %s, %s, %s offen sc1", v(R + 4 + 4 * n, 4), v(R + 16 if n == 2 else R + 1), s(sWS, 4), s(sTmp))


def aux_finish(ffn, R):
    e("v_add_u32 %s, %d, %s", v(R), AUX, v(R))
    if CG and not ffn:
        e("s_mov_b32 exec_hi, 0")
        e("v_mul_f32 %s, 0x35cccccd, %s", v(R + 2), v(R + 2))
        e("s_mov_b32 exec_hi, -1")
    e("ds_write_b32 %s, %s", v(R), v(R + 2))
    if ffn:
        C_, T_ = R + 4, R + 8
        for n in range(1, 3):
            for k in (0, 2):
                e("v_pk_add_f32 %s, %s, %s", v(C_ + k, 2), v(C_ + k, 2), v(C_ + 4 * n + k, 2))
        for op in ("v_permlane16_swap_b32", "v_permlane32_swap_b32"):
            for i in range(4):
                e("v_mov_b32 %s, %s", v(T_ + i), v(C_ + i))
            e("s_nop 0")
            for i in range(4):
                e("%s %s, %s", op, v(C_ + i), v(T_ + i))
            e("s_nop 0")
            for i in range(4):
                e("v_add_f32 %s, %s, %s", v(C_ + i), v(C_ + i), v(T_ + i))
        e("s_lshl_b32 %s, %s, 8", s(sTmp), s(sLW))
        e("s_add_u32 %s, %s, %d", s(sTmp), s(sTmp), AUX + 1024)
        e("v_lshl_add_u32 %s, %s, 4, %s", v(R + 1), v(R + 3), s(sTmp))
        e("ds_write_b128 %s, %s", v(R + 1), v(C_, 4))
    e("s_waitcnt lgkmcnt(0)")


def p3_map():
    if MAP8:
        e("s_and_b32 %s, s2, 7", s(sP))
        e("s_lshl_b32 %s, %s, 2", s(sP), s(sP))
        e("s_bfe_u32 s3, s2, 0x20003")
        e("s_add_u32 %s, %s, s3", s(sP), s(sP))
        e("s_lshr_b32 %s, s2, 5", s(sG3))
        return
    e("s_and_b32 s3, s2, 7")
    e("s_lshr_b32 %s, s2, 3", s(sTmp))
    e("s_lshr_b32 %s, s3, 1", s(sP))
    e("s_lshl_b32 %s, %s, 3", s(sP), s(sP))
    e("s_and_b32 %s, %s, 7", s(sTmp2), s(sTmp))
    e("s_add_u32 %s, %s, %s", s(sP), s(sP), s(sTmp2))
    e("s_and_b32 s3, s3, 1")
    e("s_lshl_b32 s3, s3, 2")
    e("s_lshr_b32 %s, %s, 3", s(sTmp), s(sTmp))
    e("s_add_u32 %s, s3, %s", s(sG3), s(sTmp))


ZG, ZC, ZAB = [160, 224], 64, [136, 192, 208]


def ZAr(c3, rt): return ZAB[c3] + 4 * rt


def z_setup():
    p3_map()
    e("s_mul_i32 %s, %s, %d", s(sLB), s(sLW), ZUS)
    e("s_lshl_b32 %s, %s, 7", s(sUo), s(sP))
    e("s_lshl_b32 %s, %s, 12", s(sTmp), s(sLW))
    e("s_add_u32 %s, %s, %s", s(sUo), s(sUo), s(sTmp))
    e("s_add_u32 %s, %s, 0x%x", s(sUo), s(sUo), WS_U)
    e("s_mul_i32 %s, %s, 21", s(sCo), s(sG3))
    e("s_add_u32 %s, %s, %s", s(sCo), s(sCo), s(sLW))
    e("s_mul_i32 %s, %s, 3072", s(sCo), s(sCo))
    e("s_add_u32 %s, %s, %d", s(sCo), s(sCo), TB.CI_OFF)
    e("s_lshl_b32 %s, %s, 1", s(sS2), s(sP))


def wd_bases(wreg):
    e("s_lshr_b32 %s, %s, 1", s(sOc), s(sG3))
    e("s_and_b32 %s, %s, 1", s(sTmp), s(sG3))
    e("s_mul_i32 %s, %s, 20", s(sTmp), s(sTmp))
    e("s_add_u32 %s, %s, %s", s(sOc), s(sOc), s(sTmp))
    e("s_add_u32 %s, %s, 16", s(sOc), s(sOc))
    e("s_lshl_b32 %s, %s, 5", s(sOc), s(sOc))
    e("s_lshl_b32 %s, %s, 10", s(sTmp), s(wreg))
    e("s_add_u32 %s, %s, 0x%x", s(sTmp), s(sTmp), WS_WD)
    e("s_mul_i32 %s, %s, %d", s(sWa), s(sG3), 2 * 49152)
    e("s_add_u32 %s, %s, %s", s(sWa), s(sWa), s(sTmp))
    e("s_mul_i32 %s, %s, %d", s(sWc), s(sOc), 49152 // 32)
    e("s_add_u32 %s, %s, %s", s(sWc), s(sWc), s(sTmp))


def rot3():
    e("s_and_b32 %s, %s, 3", s(sR3), s(sG3))
    e("s_mul_i32 %s, %s, %d", s(sR3), s(sR3), R3A)
    e("s_and_b32 %s, %s, 7", s(sTmp), s(sP))
    e("s_mul_i32 %s, %s, %d", s(sTmp), s(sTmp), R3B)
    e("s_add_u32 %s, %s, %s", s(sR3), s(sR3), s(sTmp))
    for _ in range((3 * R3A + 7 * R3B) // 12):
        e("s_cmp_ge_u32 %s, 12", s(sR3))
        e("s_cselect_b32 %s, 12, 0", s(sTmp))
        e("s_sub_u32 %s, %s, %s", s(sR3), s(sR3), s(sTmp))


def item4(i, dst):
    e("s_add_u32 %s, %s, %d", s(dst), s(sR3), i)
    e("s_cmp_ge_u32 %s, 12", s(dst))
    e("s_cselect_b32 %s, 12, 0", s(sTmp))
    e("s_sub_u32 %s, %s, %s", s(dst), s(dst), s(sTmp))
    e("s_lshl_b32 %s, %s, 12", s(dst), s(dst))


WOFF = [(0, 0), (0, 49152), (0, 20 * 49152), (0, 21 * 49152), (1, 0)]


def stage_all():
    rot3()
    for i in range(3):
        item4(i, sI4)
        for w in range(4):
            e("s_add_u32 %s, %s, %d", s(sCnt), s(sI4), ((w - 3) * 1024) & 0xffffffff)
            e("s_add_u32 %s, %s, %s", s(sTmp2), s(sCnt), s(sWa))
            for ct in range(5):
                e("s_mov_b32 m0, %d", CP0 + w * CPS + i * 5120 + ct * 1024)
                if ct < 4:
                    e("s_add_u32 %s, %s, %d", s(sTmp), s(sTmp2), WOFF[ct][1])
                else:
                    e("s_add_u32 %s, %s, %s", s(sTmp), s(sCnt), s(sWc))
                e("buffer_load_dwordx4 v5, %s, %s offen sc1 lds", s(sWS, 4), s(sTmp))


def stage_wd(i0, i1):
    e("s_mul_i32 %s, %s, %d", s(sSLAB), s(sLW), CPS)
    rot3()
    for i in range(i0, i1):
        item4(i, sI4)
        e("s_add_u32 %s, %s, %s", s(sTmp2), s(sI4), s(sWa))
        for ct in range(5):
            e("s_add_u32 m0, %s, %d", s(sSLAB), CP0 + i * 5120 + ct * 1024)
            if ct < 4:
                e("s_add_u32 %s, %s, %d", s(sTmp), s(sTmp2), WOFF[ct][1])
            else:
                e("s_add_u32 %s, %s, %s", s(sTmp), s(sI4), s(sWc))
            e("buffer_load_dwordx4 v5, %s, %s offen sc1 lds", s(sWS, 4), s(sTmp))


def z_ci_sub(idx):
    n = 0
    for z in range(6):
        c = [c3 for c3 in range(3) if z * 3 + c3 in idx]
        lab = A.newlabel("L_noc5")
        if c and z == 5 and ZSK:
            e("s_cmp_lg_u32 %s, 0", s(sLW))
            e("s_cbranch_scc1 %s", lab)
        else:
            n += len(c)
        if c:
            z_item(z, 4 * 3072, sCo, sRZ)
        for c3 in c:
            e("buffer_load_dwordx4 %s, v5, %s, %s offen offset:%d", v(ZC + z * 12 + c3 * 4, 4), s(sTAB, 4), s(sRZ), c3 * 1024)
        A.label(lab)
    return n


def ci_setup():
    e("s_lshr_b32 %s, %s, 1", s(sRZ), s(sLW))
    e("s_lshl_b32 %s, %s, 5", s(sRZ), s(sRZ))
    e("s_and_b32 %s, %s, 1", s(sI4), s(sLW))
    e("s_add_u32 %s, %s, %s", s(sRZ), s(sRZ), s(sI4))
    e("v_lshrrev_b32 v146, 4, v0")
    e("v_lshl_add_u32 v147, v146, 3, %s", s(sRZ))
    e("v_cmp_eq_u32 vcc, 0, v147")
    e("v_cvt_f32_u32 v147, v147")
    e("v_cndmask_b32 v145, 1.0, 0.5, vcc")
    e("s_lshr_b32 %s, %s, 1", s(sRZ), s(sG3))
    e("s_and_b32 %s, %s, 1", s(sI4), s(sG3))
    e("s_mul_i32 %s, %s, 20", s(sI4), s(sI4))
    e("s_add_u32 %s, %s, %s", s(sRZ), s(sRZ), s(sI4))
    e("s_add_u32 %s, %s, 16", s(sRZ), s(sRZ))
    e("s_lshl_b32 %s, %s, 4", s(sRZ), s(sRZ))
    e("s_lshl_b32 %s, %s, 5", s(sI4), s(sG3))
    e("v_and_b32 v146, 15, v0")
    for c3 in range(3):
        e("v_add_u32 v148, %s, v146", s(sRZ if c3 == 2 else sI4))
        if c3 == 1:
            e("v_add_u32 v148, 16, v148")
        e("v_cvt_f32_u32 v148, v148")
        e("v_mul_f32 v149, v147, v148")
        e("v_mul_f32 v149, 0x3acccccd, v149")
        e("v_fract_f32 %s, v149", v(136 + c3))
        e("v_mul_f32 v149, 0x3dcccccd, v148")
        e("v_fract_f32 %s, v149", v(139 + c3))
        e("v_mul_f32 %s, 0x3b4ccccd, v148", v(142 + c3))


def ci_gen(idx):
    for n in idx:
        z, c3 = n // 3, n % 3
        o = ZC + z * 12 + c3 * 4
        if z == 5:
            e("v_and_b32 v146, 1, v0")
            e("v_lshlrev_b32 v146, 15, v146")
            e("v_or_b32 v146, 0x3f00, v146")
            e("v_cmp_gt_u32 vcc, 16, v0")
            e("v_cndmask_b32 %s, 0, v146, vcc", v(o))
            for k in range(1, 4):
                e("v_mov_b32 %s, 0", v(o + k))
            continue
        if z == 0:
            e("v_mov_b32 v146, %s", v(136 + c3))
        elif z == 3:
            e("v_fma_f32 v146, 4.0, %s, %s", v(139 + c3), v(136 + c3))
            e("v_sub_f32 v146, v146, %s", v(139 + c3))
        else:
            e("v_fma_f32 v146, %s, %s, %s", "%d.0" % z, v(139 + c3), v(136 + c3))
        for ii in range(4):
            e("v_cos_f32 %s, v146", v(148 + ii))
            e("v_sin_f32_e64 %s, -v146", v(152 + ii))
            if ii < 3:
                e("v_add_f32 v146, v146, %s", v(142 + c3))
        if z == 0:
            e("v_mul_f32 v148, v145, v148")
        for k in range(4):
            e("v_cvt_pk_bf16_f32 %s, %s, %s", v(o + k), v(148 + 2 * k), v(149 + 2 * k))


def z_ci_all():
    return z_ci_sub(range(18))


def stage_done(n):
    e("s_lshl_b32 %s, %s, 2", s(sTmp), s(sLW))
    e("s_add_u32 %s, %s, %d", s(sTmp), s(sTmp), LGO + 16)
    e("v_mov_b32 v12, %s", s(sTmp))
    e("v_mov_b32 v13, 1")
    e("s_waitcnt vmcnt(%d)", n)
    e("ds_write_b32 v12, v13")


def z_item(z, mul, base, dst):
    e("s_and_b32 %s, %s, 3", s(dst), s(sG3))
    e("s_mul_i32 %s, %s, %d", s(dst), s(dst), RZ)
    e("s_add_u32 %s, %s, %d", s(dst), s(dst), z)
    e("s_cmp_ge_u32 %s, 6", s(dst))
    e("s_cselect_b32 %s, 6, 0", s(sTmp))
    e("s_sub_u32 %s, %s, %s", s(dst), s(dst), s(sTmp))
    e("s_lshl_b32 %s, %s, 2", s(sTmp), s(dst))
    e("s_add_u32 %s, %s, %s", s(sTmp), s(sTmp), s(sLW))
    e("s_cmp_gt_u32 %s, 20", s(sTmp))
    e("s_cselect_b32 %s, 0x20000000, %s", s(sTmp), s(base))
    e("s_mul_i32 %s, %s, %d", s(dst), s(dst), mul)
    e("s_add_u32 %s, %s, %s", s(dst), s(dst), s(sTmp))


def z_ci_loads(z, vL):
    z_item(z, 4 * 3072, sCo, sRZ)
    for c3 in range(3):
        e("buffer_load_dwordx4 %s, %s, %s, %s offen offset:%d", v(ZC + z * 12 + c3 * 4, 4), v(vL), s(sTAB, 4), s(sRZ), c3 * 1024)


def ZGr(u, ro, nh, kap): return ZG[u] + ((ro * 2 + nh) * 2 + kap) * 4


def z_gconst():
    e("v_and_b32 v56, 15, v0")
    e("v_lshlrev_b32 v56, 6, v56")
    e("v_add_u32 v56, %s, v56", s(sS2))
    e("v_cvt_f32_u32 v56, v56")
    e("v_mul_f32 v56, 0x3a000000, v56")
    e("v_lshrrev_b32 v57, 5, v0")
    e("v_lshlrev_b32 v57, 3, v57")
    e("v_cvt_f32_u32 v57, v57")
    e("v_bfe_u32 v58, v0, 4, 1")
    e("v_cvt_f32_u32 v58, v58")
    e("v_mul_f32 v58, 0x3e800000, v58")
    for u in range(2):
        if u:
            e("v_add_f32 v56, 0x3a000000, v56")
        for kap in range(2):
            if kap:
                e("v_add_f32 v59, 0x41800000, v57")
                e("v_fma_f32 v59, v59, v56, v58")
            else:
                e("v_fma_f32 v59, v57, v56, v58")
            for ro in range(2):
                if ro:
                    e("v_add_f32 v60, 0xbe800000, v59")
                else:
                    e("v_mov_b32 v60, v59")
                for i2 in range(4):
                    e("v_cos_f32 v61, v60")
                    e("v_add_f32 v60, v60, v56")
                    e("v_cos_f32 v62, v60")
                    e("v_add_f32 v60, v60, v56")
                    b = ZGr(u, ro, 0, kap) + i2
                    e("v_cvt_pk_bf16_f32 %s, v61, v62", v(b))
                    e("v_xor_b32 %s, 0x80000000, %s", v(b + 8), v(b))


def fu_poll_issue():
    e("v_lshlrev_b32 v11, 7, v0")
    lab0 = A.newlabel("L_nofup")
    e("s_cmp_lg_u32 %s, 0", s(sLW))
    e("s_cbranch_scc1 %s", lab0)
    poll_issue(16, 1, 11, WS_FU)
    A.label(lab0)


def zpart():
    vL, vUG, vTU, vTU1, vPU = 5, 6, 7, 8, 11
    UF, ZT = 16, 32
    e("v_lshlrev_b32 %s, 4, v0", v(vL))
    e("v_lshrrev_b32 v12, 3, v0")
    e("v_mul_u32_u24 v12, %d, v12", USTR)
    e("v_lshrrev_b32 v13, 2, v0")
    e("v_lshrrev_b32 v14, 4, v0")
    e("v_xor_b32 v13, v13, v14")
    e("v_and_b32 v13, 1, v13")
    e("v_lshl_add_u32 v12, v13, 6, v12")
    e("v_and_b32 v13, 3, v0")
    e("v_lshl_add_u32 %s, v13, 4, v12", v(vUG))
    e("v_lshrrev_b32 v12, 5, v0")
    e("v_lshlrev_b32 v12, 3, v12")
    e("v_bfe_u32 v14, v0, 2, 2")
    e("v_add_u32 v12, v12, v14")
    e("v_lshlrev_b32 v12, 7, v12")
    e("v_lshl_add_u32 v12, v13, 4, v12")
    e("v_bfe_u32 v14, v0, 4, 1")
    e("v_lshl_add_u32 v12, v14, 3, v12")
    e("v_bfe_u32 v14, v0, 3, 1")
    e("v_lshl_add_u32 v12, v14, 6, v12")
    e("v_add_u32 %s, %s, v12", v(vTU), s(sLB))
    e("v_xor_b32 %s, 64, %s", v(vTU1), v(vTU))
    e("v_mov_b32 v12, %d", LGO)
    lab1, lab2 = A.newlabel("L_lgo"), A.newlabel("L_lgod")
    e("s_cmp_lg_u32 %s, 0", s(sLW))
    e("s_cbranch_scc1 %s", lab1)
    e("s_waitcnt vmcnt(0)")
    poll_check(UF, 1, vPU, WS_FU)
    e("v_mov_b32 v13, 1")
    e("ds_write_b32 v12, v13")
    e("s_branch %s", lab2)
    A.label(lab1)
    e("s_sleep 1")
    e("ds_read_b32 v13, v12")
    e("s_waitcnt lgkmcnt(0)")
    e("v_cmp_ne_u32 vcc, 1, v13")
    e("s_cbranch_vccnz %s", lab1)
    A.label(lab2)
    stamp("zU")
    if ZPR:
        e("s_setprio %d", ZPR)
    q = VQ()

    def udma(z):
        z_item(z, 4 * 4096, sUo, sRZ)
        for n in range(4):
            e("s_add_u32 m0, %s, %d", s(sLB), (z % 4) * 4096 + n * 1024)
            e("s_add_u32 %s, %s, %d", s(sTmp2), s(sRZ), n * 8 * USTR)
            e("buffer_load_dwordx4 %s, %s, %s offen sc1 lds", v(vUG), s(sWS, 4), s(sTmp2))
        q.issue("u%d" % z, 4)
    for z in range(4):
        udma(z)
    def ureads(z):
        q.wait("u%d" % z)
        stamp("z%d" % z)
        for u in range(2):
            for kap in range(2):
                for rd in range(2):
                    e("ds_read_b64_tr_b16 %s, %s offset:%d", v(UF + 8 * u + 4 * kap + 2 * rd, 2), v(vTU1 if u else vTU), (z % 4) * 4096 + kap * 2048 + rd * 512)
    ureads(0)
    skip5 = A.newlabel("L_noz5")

    def cv(rt):
        b = ZT + rt * 8
        return [cap(lambda k=k: e("v_cvt_pk_bf16_f32 %s, %s, %s", v(b + k), v(b + 2 * k), v(b + 2 * k + 1))) for k in range(4)]

    def s1(u):
        return [cap(lambda kap=kap, nh=nh, ro=ro: mm16(ZT + u * 16 + (nh * 2 + ro) * 4, UF + 8 * u + 4 * kap, ZGr(u, ro, nh, kap), kap == 0))
                for kap in range(2) for nh in range(2) for ro in range(2)]

    def s2(z, rt):
        return [cap(lambda c3=c3: mm16(ZAr(c3, rt), ZC + z * 12 + c3 * 4, ZT + rt * 8, z == 0)) for c3 in range(3)]

    def put(gs):
        for g in gs:
            A.lines += g
    for z in range(6):
        if z == 5 and ZSK:
            e("s_cmp_lg_u32 %s, 0", s(sLW))
            e("s_cbranch_scc1 %s", skip5)
        e("s_waitcnt lgkmcnt(4)")
        put(s1(0))
        e("s_waitcnt lgkmcnt(0)")
        m1 = s1(1)
        if not ZIL:
            put(m1)
        else:
            c0, c1 = cv(0), cv(1)
            put(m1[:5] + c0[:2] + m1[5:6] + c0[2:] + m1[6:7] + c1[:2] + m1[7:] + c1[2:])
        if z + 4 < 6:
            if z == 1 and ZSK:
                lab = A.newlabel("L_nou5")
                e("s_cmp_lg_u32 %s, 0", s(sLW))
                e("s_cbranch_scc1 %s", lab)
                udma(5)
                A.label(lab)
                q.q = q.q[:-4]
            else:
                udma(z + 4)
        if z + 1 < 6:
            if z == 4 and ZSK:
                lab = A.newlabel("L_nor5")
                e("s_cmp_lg_u32 %s, 0", s(sLW))
                e("s_cbranch_scc1 %s", lab)
                q.issue("u5", 4)
                ureads(5)
                A.label(lab)
            else:
                ureads(z + 1)
        if not ZIL:
            put(cv(0) + cv(1) + cv(2) + cv(3))
            e("s_nop 0")
            put(s2(z, 0) + s2(z, 1) + s2(z, 2) + s2(z, 3))
        else:
            if z == 5:
                e("s_nop 1")
            a0, a1, c2, c3_ = s2(z, 0), s2(z, 1), cv(2), cv(3)
            put(a0[:2] + c2[:2] + a0[2:] + c2[2:] + a1[:1] + c3_[:2] + a1[1:2] + c3_[2:] + a1[2:])
            e("s_nop 0")
            put(s2(z, 2) + s2(z, 3))
    A.label(skip5)
    e("v_add_u32 v12, %s, %s", s(sLB), v(vL))
    for rt in range(4):
        for c3 in range(3):
            if rt == 3 and c3 == 0:
                e("s_nop 1")
            e("ds_write_b128 v12, %s offset:%d", v(ZAr(c3, rt), 4), c3 * 4096 + rt * 1024)
    e("s_waitcnt lgkmcnt(0)")
    stamp("zend")
    e("s_barrier")


vA0, vA1, vB0, vB1 = 2, 3, 4, 1


def lgo_init():
    e("v_mov_b32 v12, %d", LGO)
    e("v_mov_b32 v13, 0")
    e("ds_write_b32 v12, v13")
    e("ds_write_b32 v12, v13 offset:4")
    e("ds_write_b32 v12, v13 offset:8")
    e("ds_write_b32 v12, v13 offset:12")
    for i in range(4):
        e("ds_write_b32 v12, v13 offset:%d", 16 + 4 * i)


def k_offset(dst):
    e("s_and_b32 %s, s2, 1", s(dst))
    e("s_mul_i32 %s, %s, 5", s(dst), s(dst))
    e("s_bfe_u32 %s, s2, 0x10003", s(sTmp))
    e("s_mul_i32 %s, %s, 3", s(sTmp), s(sTmp))
    e("s_add_u32 %s, %s, %s", s(dst), s(dst), s(sTmp))
    if KG:
        e("s_lshr_b32 %s, s2, 6", s(sTmp))
        e("s_lshl_b32 %s, %s, 2", s(sTmp), s(sTmp))
        e("s_lshr_b32 %s, 0x%x, %s", s(sTmp), KG, s(sTmp))
        e("s_and_b32 %s, %s, 15", s(sTmp), s(sTmp))
        e("s_add_u32 %s, %s, %s", s(dst), s(dst), s(sTmp))
        mod10(dst)


KG = int(str(opt("kg", 0)), 16)


def mod10(dst):
    e("s_cmp_ge_u32 %s, 10", s(dst))
    e("s_cselect_b32 %s, 10, 0", s(sTmp))
    e("s_sub_u32 %s, %s, %s", s(dst), s(dst), s(sTmp))


def x_src_scalar():
    e("s_lshl_b32 %s, %s, 2", s(sAoff), s(sRB))
    e("s_add_u32 %s, %s, %s", s(sAoff), s(sAoff), s(sLW))
    e("s_mul_i32 %s, %s, 1280", s(sAoff), s(sAoff))


def ffn_loader():
    if PRL & 2:
        e("s_setprio 2")
    e("v_lshrrev_b32 v6, 3, v0")
    e("v_mul_u32_u24 v6, 81920, v6")
    e("v_and_b32 v7, 7, v0")
    e("v_lshrrev_b32 v8, 4, v0")
    e("v_xor_b32 v7, v7, v8")
    e("v_lshl_add_u32 %s, v7, 4, v6", v(vA0))
    e("v_xor_b32 %s, 64, %s", v(vA1), v(vA0))
    e("v_mul_u32_u24 v6, 3072, v8")
    e("v_and_b32 v7, 15, v0")
    e("v_lshlrev_b32 v8, 2, v8")
    e("v_xor_b32 v7, v7, v8")
    e("v_lshl_add_u32 %s, v7, 4, v6", v(vB0))
    e("v_xor_b32 %s, 32, %s", v(vB1), v(vB0))
    x_src_scalar()
    e("s_mul_i32 %s, %s, %d", s(sBoff), s(sLW), 16 * 3072)
    e("s_lshl_b32 %s, %s, 8", s(sTmp), s(sCG))
    e("s_add_u32 %s, %s, %s", s(sBoff), s(sBoff), s(sTmp))
    e("s_lshl_b32 %s, %s, 12", s(sM0), s(sLW))
    k_offset(sJB)
    XR_ = opt("xrot", 0)
    if XR_:
        e("s_bfe_u32 %s, s2, 0x20003", s(sJB))
        e("s_mul_i32 %s, %s, 5", s(sJB), s(sJB))
        e("s_add_u32 %s, %s, 1", s(sJB), s(sJB))
        e("s_lshr_b32 %s, %s, 1", s(sJB), s(sJB))
        if XR_ & 4:
            e("s_mov_b32 %s, 0", s(sJB))
        e("s_lshr_b32 %s, s2, 6", s(sTmp))
        e("s_mul_i32 %s, %s, %d", s(sTmp), s(sTmp), (XR_ & 3) - 1)
        e("s_add_u32 %s, %s, %s", s(sJB), s(sJB), s(sTmp))
        e("s_cmp_ge_u32 %s, 10", s(sJB))
        e("s_cselect_b32 %s, 10, 0", s(sTmp))
        e("s_sub_u32 %s, %s, %s", s(sJB), s(sJB), s(sTmp))
    NR = 10
    tab_srd()
    stamp("l_pre")
    e("s_waitcnt lgkmcnt(0)")
    stamp("l_k")
    for k in ("X", "G", "U"):
        srd(A, *SRDS[k])
    q = VQ()

    def slab_groups(i):
        b = (i % 3) * SLAB
        gs = []

        def head():
            if i < NFIX:
                e("s_add_u32 %s, %s, %d", s(sWM), s(sAoff), i * 128)
                e("s_add_u32 %s, %s, %d", s(sWN), s(sBoff), i * 64 * 3072)
            else:
                e("s_add_u32 %s, %s, %d", s(sTmp), s(sJB), NFIX)
                e("s_lshl_b32 %s, %s, 7", s(sWM), s(sTmp))
                e("s_add_u32 %s, %s, %s", s(sWM), s(sWM), s(sAoff))
                e("s_mul_i32 %s, %s, %d", s(sWN), s(sTmp), 64 * 3072)
                e("s_add_u32 %s, %s, %s", s(sWN), s(sWN), s(sBoff))
                e("s_add_u32 %s, %s, 1", s(sJB), s(sJB))
                e("s_cmp_eq_u32 %s, %d", s(sJB), NR)
                e("s_cselect_b32 %s, 0, %s", s(sJB), s(sJB))
        for n in range(4):
            def f(n=n):
                if n == 0:
                    head()
                e("s_add_u32 m0, %s, %d", s(sM0), b + n * 1024)
                e("s_add_u32 %s, %s, %d", s(sTmp), s(sWM), n * 8 * 81920)
                e("buffer_load_dwordx4 %s, %s, %s offen lds", v(vA1 if n & 1 else vA0), s(sX, 4), s(sTmp))
            gs.append(cap(f))
        for mat in range(2):
            for n in range(4):
                def f(n=n, mat=mat):
                    e("s_add_u32 m0, %s, %d", s(sM0), b + 16384 * (1 + mat) + n * 1024)
                    e("s_add_u32 %s, %s, %d", s(sTmp), s(sWN), n * 4 * 3072)
                    e("buffer_load_dwordx4 %s, %s, %s offen lds", v(vB1 if n & 2 else vB0), s(sU if mat else sG, 4), s(sTmp))
                gs.append(cap(f))
        q.issue("s%d" % i, 12)
        return gs

    def slab(i, main=()):
        weave(list(main), slab_groups(i))

    def wait2(n):
        la, lb = A.newlabel("L_w2"), A.newlabel("L_w2")
        e("s_cmp_ge_u32 %s, 48", s(sPar))
        e("s_cbranch_scc1 %s", la)
        e("s_waitcnt vmcnt(%d)", n + 4)
        e("s_branch %s", lb)
        A.label(la)
        e("s_waitcnt vmcnt(%d)", n)
        A.label(lb)

    def bar(b):
        stamp("fl_a%d" % b)
        e("s_barrier")
        stamp("fl_b%d" % b)
    slab(0)
    stamp("l_s0")
    lgo_init()
    e("s_load_dword %s, %s, 0x%x", s(sTAG), s(P + 18, 2), WS_EP)
    for k in ("WS", "WD", "WR", "WI"):
        srd(A, *SRDS[k])
    z_setup()
    e("v_lshlrev_b32 v5, 4, v0")
    fw_poll_addr(10)
    aux_poll_addr(True, 15)
    aux_addr(True, 36)
    slab(1, cap(z_gconst))
    if WT:
        e("s_bfe_u32 %s, s2, 0x20001", s(sTmp))
        e("s_lshl_b32 %s, %s, 2", s(sTmp), s(sTmp))
        e("s_lshr_b32 %s, 0x9f51, %s", s(sTmp), s(sTmp))
        e("s_and_b32 %s, %s, 15", s(sNU), s(sTmp))
        e("s_cmp_gt_u32 %s, %s", s(sCG), s(sNU))
        e("s_cselect_b32 %s, 1, 0", s(sTmp))
        e("s_lshr_b32 %s, s2, 6", s(sCnt))
        e("s_sub_u32 %s, %s, %s", s(sCnt), s(sCnt), s(sTmp))
        e("s_lshl_b32 %s, %s, 3", s(sCnt), s(sCnt))
        e("s_bfe_u32 %s, s2, 0x30003", s(sTmp))
        e("s_add_u32 %s, %s, %s", s(sCnt), s(sCnt), s(sTmp))
        e("s_lshl_b32 %s, %s, 2", s(sCnt), s(sCnt))
        e("s_add_u32 %s, %s, %s", s(sCnt), s(sCnt), s(sLW))
        e("s_mul_i32 %s, %s, %d", s(sCnt), s(sCnt), WTN)
        e("s_and_b32 %s, s2, 1", s(sTmp))
        e("s_mul_i32 %s, %s, 320", s(sTmp), s(sTmp))
        e("s_add_u32 %s, %s, %s", s(sCnt), s(sCnt), s(sTmp))
        e("s_add_u32 %s, %s, %d", s(sCnt), s(sCnt), (10 - WTN) * 64)
        e("v_min_u32 v61, %d, v0", 2 * WTN - 1)
        e("v_lshrrev_b32 v60, 1, v61")
        e("v_add_u32 v60, %s, v60", s(sCnt))
        e("v_subrev_u32 v62, 640, v60")
        e("v_min_u32 v60, v60, v62")
        e("v_mul_u32_u24 v60, 3072, v60")
        e("v_and_b32 v61, 1, v61")
        e("v_lshl_add_u32 v60, v61, 7, v60")
        e("s_lshl_b32 %s, %s, 8", s(sTmp), s(sNU))
        e("s_cmp_eq_u32 %s, %s", s(sCG), s(sNU))
        e("s_cselect_b32 %s, 0x20000000, %s", s(sTmp), s(sTmp))
        e("s_cmp_eq_u32 %s, 15", s(sNU))
        e("s_cselect_b32 %s, 0x20000000, %s", s(sTmp), s(sTmp))
        e("v_add_u32 v60, %s, v60", s(sTmp))

    def wtouch():
        e("buffer_load_dword v62, v60, %s, 0 offen", s(sG, 4))
        e("buffer_load_dword v62, v60, %s, 0 offen", s(sU, 4))
    if WT == 2:
        wtouch(); q.issue("wt", 2)
    stamp("l_iss")
    q.wait("s0", extra=" lgkmcnt(0)")
    e("s_barrier")
    stamp("l_bi")
    make_tag()
    slab(2)
    if WT == 1:
        wtouch()
    repack_dma()
    wait2(14 if WT == 1 else 12)
    q.q = ["s2"] * 12
    bar(0)
    slab(3, cap(lambda: (ci_setup(), ci_gen([0, 1, 15, 16, 17]))) if CG else ())
    wait2(14 if WT == 1 else 12)
    q.q = ["s3"] * 12
    bar(1)
    slab(4)
    e("s_waitcnt vmcnt(24)")
    repack_finish()
    wait2(12)
    q.q = ["s4"] * 12
    bar(2)
    slab(5, cap(lambda: ci_gen([2, 3, 4])) if CG else ())
    if WARM == 2:
        warm_touch(); q.issue("wt", 2)
    q.wait("s4")
    bar(3)
    lab = A.newlabel("L_nocf")
    e("s_cmp_lg_u32 %s, 0", s(sLW))
    e("s_cbranch_scc1 %s", lab)
    e("s_lshl_b32 %s, s2, 7", s(sCnt))
    e("s_add_u32 %s, %s, 0x%x", s(sCnt), s(sCnt), WS_FW)
    flag_store(sCnt, 16, 17)
    A.label(lab)
    slab(6, cap(lambda: ci_gen([5, 6, 7])) if CG else ())
    q.wait("s5")
    bar(4)
    slab(7, cap(lambda: ci_gen([8, 9])) if CG else ())
    if PF3 & 1:
        pf3(1)
    if PF3 & 2:
        pf3(0)
    q.wait("s6")
    bar(5)
    if TL:
        slab(8, cap(lambda: ci_gen([10, 11, 12])) if CG else ())
        q.wait("s7")
        bar(6)
        poll_issue(34, 1, 15, WS_FS); poll_issue(35, 1, 10, WS_FW); q.issue("p", 2)
        slab(9, cap(lambda: ci_gen([13, 14])) if CG else ())
        wd_bases(sLW)
        if CIL == 2:
            q.issue("ci", z_ci_all())
        q.wait("s8")
        bar(7)
        q.wait("p")
        poll_check(34, 1, 15, WS_FS)
        poll_check(35, 1, 10, WS_FW)
        aux_issue(True, 36); q.issue("aux", 4)
        pf3_go(q, PF3)
        if CIL == 3:
            q.issue("ci", z_ci_all())
        q.wait("s9")
        bar(8)
        if CIL == 4:
            q.issue("ci", z_ci_all())
        stage_wd(0, SG); q.issue("sg", 5 * SG)
        q.wait("aux")
        aux_finish(True, 36)
        bar(9)
        if SG == 4:
            stage_done(0)
    else:
        poll_issue(34, 1, 15, WS_FS); poll_issue(35, 1, 10, WS_FW); q.issue("p", 2)
        slab(8)
        q.wait("s7")
        bar(6)
        slab(9)
        q.wait("p")
        poll_check(34, 1, 15, WS_FS)
        poll_check(35, 1, 10, WS_FW)
        aux_issue(True, 36); q.issue("aux", 4)
        if PFP == 0:
            pf3_go(q, PF3)
        q.wait("s8")
        bar(7)
        if PFP == 1:
            pf3_go(q, PF3)
        q.wait("aux")
        aux_finish(True, 36)
        bar(8)
        wd_bases(sLW)
        stage_wd(0, 4)
        if CIL == 0:
            z_ci_all()
        stage_done(18 if CIL == 0 else 0)
    e("v_mov_b32 v12, %d", LGO)
    lab = A.newlabel("L_hout")
    A.label(lab)
    e("s_sleep 1")
    e("ds_read_b32 v13, v12 offset:4")
    e("s_waitcnt lgkmcnt(0)")
    e("v_cmp_ne_u32 vcc, 4, v13")
    e("s_cbranch_vccnz %s", lab)
    if TL and SG < 4:
        stage_wd(SG, 4)
        if CIL >= 2 or CG:
            stage_done(0)
            fu_poll_issue()
        else:
            fu_poll_issue()
            stage_done(z_ci_all())
    else:
        fu_poll_issue()
        if CIL == 1 and not CG:
            z_ci_all()
    e("s_branch L_zpart")


def wspec_shift(dst):
    e("s_mul_i32 %s, %s, 642", s(sDelta), s(sK1))
    e("s_mul_i32 %s, s3, 320", s(sTmp))
    e("s_add_u32 %s, %s, %s", s(sDelta), s(sDelta), s(sTmp))
    e("s_and_b32 %s, %s, 15", s(dst), s(sDelta))


def wspec_dma():
    mid_k1()
    e("v_mul_u32_u24 v12, 3121, v0")
    e("v_lshrrev_b32 v12, 16, v12")
    e("v_mul_u32_u24 v12, %d, v12", 32 * 642 - 336)
    e("v_lshl_add_u32 v12, v0, 4, v12")
    wspec_shift(sTmp2)
    e("s_sub_u32 %s, %s, %s", s(sDelta), s(sDelta), s(sTmp2))
    e("s_and_b32 %s, %s, 1", s(sTmp), s(sLW))
    e("s_mul_i32 %s, %s, %d", s(sCnt), s(sTmp), 11 * 1008)
    e("s_mul_i32 %s, %s, %d", s(sTmp), s(sTmp), 33 * 32 * 642)
    e("s_add_u32 %s, %s, %s", s(sDelta), s(sDelta), s(sTmp))
    e("s_cmp_ge_u32 %s, 2", s(sLW))
    e("s_cselect_b32 %s, %s, %s", s(sWR), s(sWI), s(sWR))
    e("s_cselect_b32 %s, %s, %s", s(sWR + 1), s(sWI + 1), s(sWR + 1))
    e("s_cselect_b32 %s, %d, 0", s(sTmp), MWA)
    e("s_add_u32 %s, %s, %s", s(sCnt), s(sCnt), s(sTmp))
    gs = []
    for n in range(11):
        def f(n=n):
            e("s_add_u32 m0, %s, %d", s(sCnt), MW0 + n * 1008)
            e("s_add_u32 %s, %s, %d", s(sTmp), s(sDelta), n * 3 * 32 * 642)
            e("buffer_load_dwordx4 v12, %s, %s offen lds", s(sWR, 4), s(sTmp))
        gs.append(cap(f))
    return gs


def repack_dma():
    e("v_lshrrev_b32 v12, 3, v0")
    e("v_mul_u32_u24 v13, 1280, v12")
    e("v_bfe_u32 v14, v0, 4, 2")
    e("v_lshlrev_b32 v14, 1, v14")
    e("v_and_b32 v12, 7, v0")
    e("v_xor_b32 v12, v12, v14")
    e("v_lshl_add_u32 v12, v12, 4, v13")
    e("s_mul_i32 %s, s2, 3", s(sCnt))
    e("s_add_u32 %s, %s, %s", s(sCnt), s(sCnt), s(sLW))
    e("s_cmp_eq_u32 %s, 3", s(sLW))
    e("s_cselect_b32 %s, 480, %s", s(sCnt), s(sCnt))
    e("s_mul_i32 %s, %s, 52429", s(sBuf), s(sCnt))
    e("s_lshr_b32 %s, %s, 19", s(sBuf), s(sBuf))
    e("s_mul_i32 %s, %s, 10", s(sTmp), s(sBuf))
    e("s_sub_u32 %s, %s, %s", s(sCnt), s(sCnt), s(sTmp))
    e("s_mul_i32 %s, %s, 40960", s(sDelta), s(sBuf))
    e("s_lshl_b32 %s, %s, 7", s(sTmp), s(sCnt))
    e("s_add_u32 %s, %s, %s", s(sDelta), s(sDelta), s(sTmp))
    e("s_min_u32 %s, %s, 2", s(sWa), s(sLW))
    e("s_lshl_b32 %s, %s, 12", s(sWa), s(sWa))
    e("s_add_u32 %s, %s, %d", s(sWa), s(sWa), RPK)
    lab = A.newlabel("L_norp")
    e("s_cmp_ge_u32 %s, 48", s(sBuf))
    e("s_cbranch_scc1 %s", lab)
    for n in range(4):
        e("s_add_u32 m0, %s, %d", s(sWa), n * 1024)
        e("s_add_u32 %s, %s, %d", s(sTmp), s(sDelta), n * 8 * 1280)
        e("buffer_load_dwordx4 v12, %s, %s offen lds", s(sWD, 4), s(sTmp))
    A.label(lab)
    e("s_mul_i32 %s, %s, %d", s(sWb), s(sCnt), 4 * 49152)
    e("s_lshl_b32 %s, %s, 10", s(sTmp), s(sBuf))
    e("s_add_u32 %s, %s, %s", s(sWb), s(sWb), s(sTmp))
    e("s_add_u32 %s, %s, 0x%x", s(sWb), s(sWb), WS_WD)
    e("s_mov_b32 %s, %s", s(sPar), s(sBuf))


def repack_finish():
    lab = A.newlabel("L_norp")
    e("s_cmp_ge_u32 %s, 48", s(sPar))
    e("s_cbranch_scc1 %s", lab)
    e("v_lshrrev_b32 v56, 2, v0")
    e("v_lshlrev_b32 v56, 7, v56")
    e("v_and_b32 v57, 3, v0")
    e("v_lshl_add_u32 v56, v57, 3, v56")
    e("v_bfe_u32 v57, v0, 3, 2")
    e("v_lshl_add_u32 v56, v57, 5, v56")
    e("v_add_u32 v56, %s, v56", s(sWa))
    for tq in range(1, 4):
        e("v_xor_b32 %s, %d, v56", v(56 + tq), tq << 5)
    for tq in range(4):
        for rd in range(2):
            e("ds_read_b64_tr_b16 %s, %s offset:%d", v(16 + tq * 4 + 2 * rd, 2), v(56 + tq), rd * 2048)
    for n in range(4):
        e("s_waitcnt lgkmcnt(%d)", 6 - 2 * n)
        e("s_add_u32 %s, %s, %d", s(sTmp), s(sWb), n * 49152)
        e("buffer_store_dwordx4 %s, v5, %s, %s offen sc1", v(16 + n * 4, 4), s(sWS, 4), s(sTmp))
    A.label(lab)


def fold_group(a0, T, vM, vaddr, off):
    for d in range(4):
        e("v_lshlrev_b32 %s, 16, %s", v(T + d), v(a0 + d))
        e("v_lshlrev_b32 %s, 16, %s", v(T + 4 + d), v(a0 + 4 + d))
    for d in range(8):
        e("v_and_b32 %s, %s, %s", v(a0 + d), v(vM), v(a0 + d))
    for d in range(4):
        e("v_fmac_f32 %s, %s, %s", v(T + d), s(sSgn), v(T + 4 + d))
    for d in range(4):
        e("v_fmac_f32 %s, %s, %s", v(a0 + d), s(sSgn), v(a0 + 4 + d))
    for d in range(4):
        e("v_cvt_pk_bf16_f32 %s, %s, %s", v(a0 + d), v(T + d), v(a0 + d))
    e("ds_write_b128 %s, %s offset:%d", v(vaddr), v(a0, 4), off)


def fold_addr(src, w0, w2):
    e("v_lshrrev_b32 %s, 3, v0", v(w2))
    e("v_mul_u32_u24 %s, 81920, %s", v(w2 + 1), v(w2))
    e("v_and_b32 %s, 7, v0", v(w0))
    e("v_lshl_add_u32 %s, %s, 4, %s", v(src), v(w0), v(w2 + 1))
    e("v_lshrrev_b32 %s, 4, v0", v(w2 + 1))
    e("v_xor_b32 %s, %s, %s", v(w0), v(w0), v(w2 + 1))
    e("v_lshlrev_b32 %s, 7, %s", v(w2), v(w2))
    e("v_lshl_add_u32 %s, %s, 4, %s", v(w2), v(w0), v(w2))
    e("s_mul_i32 %s, %s, %d", s(sTmp), s(sLW), CPS)
    e("s_add_u32 %s, %s, %d", s(sTmp), s(sTmp), XB)
    e("v_add_u32 %s, %s, %s", v(w0), s(sTmp), v(w2))
    e("v_xor_b32 %s, 64, %s", v(w0 + 1), v(w0))


XO = opt("xo", 0)
CI_EARLY = list(range(8, 16))
CI_LATE = [i for i in range(18) if i not in CI_EARLY]
LX = opt("lx", 0)
CX = opt("cx", 2)
MWE = opt("mwe", 1)
EH = opt("eh", 0)
EST = opt("est", 3)
ECI = opt("eci", 3)
EFH = opt("efh", 1)
NL = opt("nl", 2)


def dft_loader():
    if PRL & 1:
        e("s_setprio 2")
    XR = 64
    vW0, vW1 = 8, 9
    fold_addr(vA0, vW0, 6)
    e("v_lshlrev_b32 %s, 4, v0", v(vB0))
    x_src_scalar()
    tab_srd()
    stamp("l_pre")
    e("s_waitcnt lgkmcnt(0)")
    stamp("l_k")
    srd(A, *SRDS["X"])
    q = VQ()

    def ci_touch():
        e("s_bfe_u32 %s, s2, 0x30003", s(sCnt))
        e("s_lshl_b32 %s, %s, 2", s(sCnt), s(sCnt))
        e("s_add_u32 %s, %s, %s", s(sCnt), s(sCnt), s(sLW))
        e("s_mul_i32 %s, %s, %d", s(sTmp), s(sCnt), 63 * 128)
        e("s_and_b32 %s, s2, 1", s(sTmp2))
        e("s_mul_i32 %s, %s, %d", s(sTmp2), s(sTmp2), 4 * 63 * 1024)
        e("s_add_u32 %s, %s, %s", s(sTmp), s(sTmp), s(sTmp2))
        e("s_add_u32 %s, %s, %d", s(sTmp), s(sTmp), TB.CI_OFF)
        e("v_min_u32 v12, 62, v0")
        e("v_lshlrev_b32 v12, 7, v12")
        e("buffer_load_dword v45, v12, %s, %s offen", s(sTAB, 4), s(sTmp))
        e("s_lshl_b32 %s, %s, 8", s(sTmp), s(sCnt))
        e("s_add_u32 %s, %s, %d", s(sTmp), s(sTmp), TB.F64_OFF)
        e("v_and_b32 v12, 128, v12")
        e("buffer_load_dword v45, v12, %s, %s offen", s(sTAB, 4), s(sTmp))
        q.issue("t", 2)

    def xl(i):
        gs = []
        for n in range(NL):
            for hf in range(2):
                def f(n=n, hf=hf):
                    e("s_add_u32 %s, %s, %d", s(sTmp), s(sAoff), n * 8 * 81920 + i * 128)
                    e("buffer_load_dwordx4 %s, %s, %s, %s offen offset:%d", v(XR + i * 32 + n * 8 + hf * 4, 4), v(vA0), s(sX, 4), s(sTmp), hf * 640)
                gs.append(cap(f))
        q.issue("x%d" % i, 2 * NL)
        return gs

    def fl():
        gs = []
        for n in range(2):
            def f(n=n):
                e("s_lshl_b32 %s, %s, 11", s(sTmp), s(sLW))
                e("s_add_u32 m0, %s, %d", s(sTmp), FR_L + n * 1024)
                e("s_add_u32 %s, %s, %d", s(sTmp), s(sTmp), TB.F64_OFF + n * 1024)
                e("buffer_load_dwordx4 %s, %s, %s offen lds", v(vB0), s(sTAB, 4), s(sTmp))
            gs.append(cap(f))
        q.issue("f", 2)
        return gs

    def fold(i):
        for n in range(NL):
            fold_group(XR + i * 32 + n * 8, 28 + 8 * (n & 1), 44, (vW0, vW1)[n & 1], (1 - (i & 1)) * 5120 + n * 1024)

    def bar(b):
        stamp("dl_a%s" % b)
        e("s_barrier")
        stamp("dl_b%s" % b)
    weave([], xl(0))
    if XT & 32:
        ci_touch()
    stamp("l_s0")
    lgo_init()
    e("s_load_dword %s, %s, 0x%x", s(sTAG), s(P + 18, 2), WS_EP)
    for k in ("WS", "WR", "WI", "OUT"):
        srd(A, *SRDS[k])
    e("s_cmp_ge_u32 %s, 2", s(sCG))
    e("s_cselect_b32 %s, -1.0, 1.0", s(sSgn))
    weave([], xl(1) + (xl(2) if LX >= 1 else []) + (xl(3) if LX >= 2 else []))
    e("v_mov_b32 v44, 0xffff0000")
    aux_poll_addr(False, 15)
    fw_poll_addr(10)
    aux_addr(False, 24)
    stamp("l_iss")
    q.wait("x0")
    stamp("dl_x0")
    fold(0)
    e("s_waitcnt lgkmcnt(0)")
    e("s_barrier")
    stamp("l_bi")
    if XT & 64:
        ci_touch()
    make_tag()
    q.wait("x1")
    weave(cap(lambda: fold(1)), (xl(2) if LX < 1 else []) + (xl(3) if LX < 2 else []) + (xl(4) if LX >= 1 else []))
    e("s_waitcnt lgkmcnt(0)")
    bar(0)
    q.wait("x2")
    stamp("dl_x2")
    weave(cap(lambda: fold(2)), xl(4) if LX < 1 else [])
    stamp("dl_f2")
    poll_issue(46, 1, 15, WS_FS); q.issue("p")
    e("s_waitcnt lgkmcnt(0)")
    bar(1)
    q.wait("x3")
    stamp("dl_x3")
    weave(cap(lambda: fold(3)), fl())
    stamp("dl_f3")
    q.wait("p")
    poll_check(46, 1, 15, WS_FS)
    aux_issue(False, 24); q.issue("aux")
    e("s_waitcnt lgkmcnt(0)")
    bar(2)
    gs = wspec_dma()
    if WSP == 2:
        weave(cap(lambda: fold(4)), gs)
        q.issue("w", 11)
    else:
        fold(4)
    q.wait("aux")
    aux_finish(False, 24)
    bar(3)
    poll_issue(41, 1, 10, WS_FW)
    if WSP == 0:
        weave([], gs)
    z_setup()
    wd_bases(sLW)
    e("v_lshlrev_b32 v5, 4, v0")
    if EST >= 3:
        if ECI and ECI < 3:
            z_ci_sub(CI_EARLY)
            lab = A.newlabel("L_cil")
            e("s_bfe_u32 %s, s2, 0x10003", s(sTmp))
            e("s_add_u32 %s, %s, 2", s(sTmp), s(sTmp))
            e("s_cmp_lt_u32 %s, %s", s(sLW), s(sTmp))
            e("s_cbranch_scc1 %s", lab)
            z_ci_sub(CI_LATE)
            A.label(lab)
        if CG == 1:
            ci_setup()
            ci_gen(CI_EARLY)
        if ZGL:
            e("v_mov_b32 v12, %d", LGO)
            lab = A.newlabel("L_zgl")
            A.label(lab)
            e("s_sleep 2")
            e("ds_read_b32 v13, v12 offset:12")
            e("s_waitcnt lgkmcnt(0)")
            e("v_cmp_ne_u32 vcc, 1, v13")
            e("s_cbranch_vccnz %s", lab)
        z_gconst()
        if CG == 2:
            ci_setup()
            ci_gen(CI_EARLY)
        stamp("dl_g")
        e("s_branch L_dft_l")
        return
    if ECI == 2:
        z_ci_sub(CI_EARLY)
    if EST:
        e("s_waitcnt vmcnt(%d)", len(CI_EARLY) if ECI == 2 else 0)
        poll_check(41, 1, 10, WS_FW)
        stamp("dl_fw")
        stage_wd(0, 3)
    if ECI == 1:
        z_ci_sub(CI_EARLY)
    stamp("dl_st")
    z_gconst()
    stamp("dl_g")
    if not EST:
        e("s_waitcnt vmcnt(0)")
        poll_check(41, 1, 10, WS_FW)
    e("s_branch L_dft_l")


def addr_advance(regs):
    e("s_add_u32 %s, %s, %d", s(sBuf), s(sBuf), SLAB)
    e("s_cmp_ge_u32 %s, %d", s(sBuf), 3 * SLAB)
    e("s_cselect_b32 %s, 0, %s", s(sBuf), s(sBuf))
    e("s_cselect_b32 %s, %d, %s", s(sDelta), (-2 * SLAB) & 0xffffffff, s(sSLAB))
    for r_ in regs:
        e("v_add_u32 %s, %s, %s", v(r_), s(sDelta), v(r_))


def gemm_loop(nslab, NT, mfmas, reads, need, areg, bar_gap, per_gap, last_extra=(), first_hook=None, peel=None, buf0=0, body=None, unroll=None, hooks=None, loop_from=None, fills=None, advf=None, last_bar=False):
    nreads = len(reads(0, 0))
    nm = len(need)

    def step(mf, nxt, first_gap=0, pre=None, barg=None):
        issued, done = 0, 0
        for m in range(nm):
            if need[m] > done:
                allowed = nreads - need[m] + issued
                e("s_waitcnt lgkmcnt(%d)", min(15, allowed))
                done = need[m] if allowed <= 15 else min(nreads, nreads + issued - 15)
            mf[m]()
            if pre and m in pre:
                for f in pre[m]:
                    f()
                if m == barg:
                    done = nreads
            if m >= first_gap:
                for k in range(per_gap):
                    if issued < len(nxt):
                        nxt[issued]()
                        issued += 1
        assert issued == len(nxt), (issued, len(nxt))

    def bar(vm=False):
        e("s_waitcnt lgkmcnt(0)%s", " vmcnt(0)" if vm else "")
        e("s_barrier")

    def merge(*ds):
        out = {}
        for d in ds:
            for k, x in d.items():
                out.setdefault(k, [])
                out[k] += x
        return out

    def spread(ops):
        out = {}
        for n, f in enumerate(ops):
            g = nm - 1 - (len(ops) - 1 - n) * max(1, (nm - bar_gap - 1) // max(1, len(ops)))
            out.setdefault(max(g, 0), []).append(f)
        return out

    def slab(last, peeled=False):
        if peeled:
            for t in range(NT - 1):
                step(mfmas(t & 1, t == 0), reads((t + 1) & 1, t + 1), pre=peel[t])
            step(mfmas(1), reads(0, 0), first_gap=bar_gap + (1 if bar_gap else 0),
                 pre=merge({0: [lambda: addr_advance(areg)]}, {bar_gap: [lambda: bar(True)]}, peel[NT - 1]), barg=bar_gap)
            return
        ex = list(last_extra) if last else []
        per = (len(ex) + NT - 1) // NT
        for t in range(NT - 1):
            step(mfmas(t & 1), reads((t + 1) & 1, t + 1), pre=merge(spread(ex[t * per:(t + 1) * per]), body[t] if body and not last else {}))
        if last:
            step(mfmas(1), [], pre=spread(ex[(NT - 1) * per:]))
        else:
            hooks = {bar_gap: ([first_hook[0]] if first_hook else []) + [bar] + ([first_hook[1]] if first_hook else [])}
            step(mfmas(1), reads(0, 0), first_gap=bar_gap + (1 if bar_gap else 0), pre=merge({0: [lambda: addr_advance(areg)]}, hooks, body[NT - 1] if body else {}), barg=bar_gap)
    e("s_mov_b32 %s, %d", s(sBuf), buf0)
    e("s_mov_b32 %s, %d", s(sSLAB), SLAB)
    e("s_mov_b32 %s, 0", s(sCnt))
    e("s_waitcnt lgkmcnt(0)%s", " vmcnt(%d)" % unroll[0][0] if unroll and unroll[0][0] is not None else "")
    make_tag()
    e("s_barrier")
    stamp("c_bi")
    for f in reads(0, 0):
        f()
    if unroll:
        ops = unroll[0][1]
        for i in range(nslab):
            if loop_from is not None and loop_from < i < nslab - 1:
                continue
            if loop_from is not None and i == loop_from:
                e("s_mov_b32 %s, %d", s(sBuf), ((buf0 // SLAB + i) % 3) * SLAB)
                e("s_mov_b32 %s, %d", s(sCnt), i)
                lab = A.newlabel("L_gemm")
                A.label(lab)
                slab(False)
                e("s_add_u32 %s, %s, 1", s(sCnt), s(sCnt))
                e("s_cmp_lt_u32 %s, %d", s(sCnt), nslab - 1)
                e("s_cbranch_scc1 %s", lab)
                continue
            per = (len(ops) + NT - 2) // (NT - 1)
            hk = hooks[i] if hooks else [{}] * NT
            if fills:
                gs = fills(i)
                ngap = (NT - 1) * nm
                hk = [{} for _ in range(NT)]
                for k, g in enumerate(gs):
                    pos = min(ngap - 1, k * ngap // max(1, len(gs)))
                    hk[pos // nm].setdefault(pos % nm, []).append(lambda g=g: A.lines.extend(g))
            for t in range(NT - 1):
                step(mfmas(t & 1, i == 0 and t == 0), reads((t + 1) & 1, t + 1), pre=merge(spread(ops[t * per:(t + 1) * per]), hk[t]))
            if i == nslab - 1:
                if last_bar:
                    step(mfmas(1), [], pre={bar_gap: [bar]}, barg=bar_gap)
                else:
                    step(mfmas(1), [])
            else:
                vm, ops = unroll[i + 1]
                if callable(vm):
                    vm = vm()

                def ubar(vm=vm):
                    e("s_waitcnt lgkmcnt(0)%s", "" if vm is None else " vmcnt(%d)" % vm)
                    e("s_barrier")

                def adv(i=i):
                    if advf:
                        return advf(i)
                    nb = (buf0 // SLAB + i + 1) % 3
                    for r_ in areg:
                        e("v_add_u32 %s, %d, %s", v(r_), (SLAB if nb else -2 * SLAB) & 0xffffffff, v(r_))
                step(mfmas(1), reads(0, 0), first_gap=bar_gap + (1 if bar_gap else 0),
                     pre=merge({0: [adv]}, {bar_gap: [ubar]}, hk[NT - 1]), barg=bar_gap)
        stamp("c_le")
        return
    if peel:
        slab(False, True)
        e("s_mov_b32 %s, 1", s(sCnt))
    lab = A.newlabel("L_gemm")
    A.label(lab)
    slab(False)
    e("s_add_u32 %s, %s, 1", s(sCnt), s(sCnt))
    e("s_cmp_lt_u32 %s, %d", s(sCnt), nslab - 1)
    e("s_cbranch_scc1 %s", lab)
    slab(True)
    stamp("c_le")


vWD = [1, 2, 3, 4, 14]


def p3c_setup():
    p3_map()
    wd_bases(sW)
    e("s_lshl_b32 %s, %s, 6", s(sOo), s(sG3))
    e("s_mul_i32 %s, %s, %d", s(sHo), s(sP), 2 * 48 * 2048)
    e("s_lshl_b32 %s, %s, 11", s(sTmp), s(sW))
    e("s_add_u32 %s, %s, %s", s(sHo), s(sHo), s(sTmp))
    e("s_and_b32 %s, %s, 1", s(sTmp), s(sW))
    e("s_lshl_b32 %s, %s, 10", s(sTmp), s(sTmp))
    e("s_lshl_b32 %s, %s, 1", s(sTmp2), s(sP))
    e("s_add_u32 %s, %s, %s", s(sTmp), s(sTmp), s(sTmp2))
    e("s_lshr_b32 %s, %s, 1", s(sTmp2), s(sW))
    e("s_add_u32 %s, %s, %s", s(sTmp), s(sTmp), s(sTmp2))
    e("s_mul_i32 %s, %s, 1280", s(sTmp), s(sTmp))
    e("s_add_u32 %s, %s, %s", s(sOo), s(sOo), s(sTmp))
    e("s_add_u32 %s, %s, %s", s(sOc), s(sOc), s(sTmp))


def fh_addr():
    e("s_lshl_b32 %s, %s, 1", s(sTmp), s(sP))
    e("s_lshr_b32 %s, %s, 1", s(sTmp2), s(sW))
    e("s_add_u32 %s, %s, %s", s(sTmp), s(sTmp), s(sTmp2))
    e("s_mul_i32 %s, %s, 12", s(sTmp), s(sTmp))
    e("v_min_u32 v5, 11, v0")
    e("v_add_u32 v5, %s, v5", s(sTmp))
    e("v_lshlrev_b32 v3, 7, v5")


sHr = [50, 51, 52, 53]


def p3_pre():
    vL = 1
    e("v_lshlrev_b32 %s, 4, v0", v(vL))
    for rho in range(4):
        e("s_add_u32 %s, %s, %d", s(sTmp), s(sW), rho)
        e("s_bfe_u32 %s, %s, 0x10001", s(sTmp2), s(sTmp))
        e("s_mul_i32 %s, %s, %d", s(sTmp2), s(sTmp2), 48 * 2048)
        e("s_and_b32 %s, %s, 1", s(sTmp), s(sTmp))
        e("s_lshl_b32 %s, %s, 10", s(sTmp), s(sTmp))
        e("s_add_u32 %s, %s, %s", s(sTmp), s(sTmp), s(sTmp2))
        e("s_add_u32 %s, %s, %s", s(sTmp), s(sTmp), s(sHo))
        e("s_add_u32 %s, %s, %d", s(sHr[rho]), s(sTmp), WS_H)

    rot3()


def hload_(i):
    item4(i, sRZ)
    e("s_lshl_b32 %s, %s, 1", s(sRZ), s(sRZ))
    for rho in range(4):
        e("s_add_u32 %s, %s, %s", s(sTmp), s(sHr[rho]), s(sRZ))
        e("buffer_load_dwordx4 %s, v1, %s, %s offen sc1", v(8 + (i % 4) * 36 + 20 + rho * 4, 4), s(sWS, 4), s(sTmp))


def p3c():
    vL, vO, vPH, vWJ = 1, 2, 3, 4
    RS, XR, WJ, ACC = 8, 8, 152, 176
    NI = 12
    q = VQ()
    def wload(i, ct):
        if ct == 0:
            item4(i, sI4)
            e("s_add_u32 %s, %s, %s", s(sTmp2), s(sI4), s(sWa))
        if ct < 4:
            e("s_add_u32 %s, %s, %d", s(sTmp), s(sTmp2), WOFF[ct][1])
        else:
            e("s_add_u32 %s, %s, %s", s(sTmp), s(sI4), s(sWc))
        e("buffer_load_dwordx4 %s, %s, %s, %s offen sc1", v(RS + (i % 4) * 36 + ct * 4, 4), v(vL), s(sWS, 4), s(sTmp))
        q.issue("i%d" % i)

    def hload(i):
        hload_(i)
        q.issue("i%d" % i, 4)

    def wj(i, ct):
        e("ds_read_b128 %s, %s offset:%d", v(WJ + 4 * ct, 4), v(vWJ), i * 5120 + ct * 1024)
    stamp("p3_in")
    if not XQ:
        e("v_and_b32 v5, 15, v0")
        e("v_mul_u32_u24 v5, 81920, v5")
        e("v_lshrrev_b32 v6, 4, v0")
        e("v_lshl_add_u32 %s, v6, 3, v5", v(vO))
    fh_addr()
    e("s_mul_i32 %s, %s, %d", s(sTmp), s(sW), CPS)
    e("s_add_u32 %s, %s, %d", s(sTmp), s(sTmp), CP0)
    e("v_add_u32 %s, %s, %s", v(vWJ), s(sTmp), v(vL))
    lab = A.newlabel("L_nofh")
    e("s_cmp_ge_u32 s2, 192")
    e("s_cbranch_scc1 %s", lab)
    e("v_mov_b32 v7, %d", LGO)
    e("v_mov_b32 v172, 1")
    e("s_waitcnt vmcnt(0)")
    flag_store(sFlag, 5, 6)
    e("s_mov_b64 exec, 1")
    e("ds_add_u32 v7, v172 offset:4")
    e("s_mov_b64 exec, -1")
    if EFH:
        poll_issue(7, 1, vPH, WS_FH)
        e("s_waitcnt vmcnt(0)")
    A.label(lab)
    stamp("p3_fl")
    if not EFH:
        poll_issue(7, 1, vPH, WS_FH)
    e("s_lshl_b32 %s, %s, 2", s(sTmp), s(sW))
    e("s_add_u32 %s, %s, %d", s(sTmp), s(sTmp), LGO + 16)
    e("v_mov_b32 v5, %s", s(sTmp))
    late, join = A.newlabel("L_hlate"), A.newlabel("L_hjoin")
    if not EFH:
        e("s_waitcnt vmcnt(0)")
    early = A.newlabel("L_hearly")
    if EH:
        e("s_cmp_eq_u32 %s, 2", s(sNU))
        e("s_cbranch_scc1 %s", early)
    e("v_cmp_ne_u32 vcc, %s, v7", s(sTAG))
    e("s_cbranch_vccnz %s", late)
    for i in range(EH):
        hload(i)
    A.label(early)
    e("s_mov_b32 %s, 1", s(sNU))
    for i in range(EH, 4):
        hload(i)
    for i in range(4, 8):
        for ct in range(5):
            if not P3O:
                wload(i, ct)
    qe = VQ()
    qe.q = list(q.q)
    e("s_branch %s", join)
    A.label(late)
    e("s_mov_b32 %s, 0", s(sNU))
    for i in range(4, 8):
        for ct in range(5):
            wload(i, ct)
    poll_check(7, 1, vPH, WS_FH)
    stamp("hp")
    q.drain()
    for i in range(4):
        hload(i)
    A.label(join)
    stamp("p3_fh")

    def staged(br):
        lab, skip = A.newlabel("L_wst"), A.newlabel("L_wsk")
        if br:
            e("s_cmp_ge_u32 s2, 192")
            e("%s %s", br, skip)
        A.label(lab)
        e("ds_read_b32 v6, v5")
        e("s_waitcnt lgkmcnt(0)")
        e("v_cmp_eq_u32 vcc, 0, v6")
        e("s_cbranch_vccnz %s", lab)
        A.label(skip)
    staged("s_cbranch_scc1" if EST else None)
    for ct in range(5):
        wj(0, ct)
    OFF = [(sOo, 0), (sOo, 32), (sOo, 640), (sOo, 672), (sOc, 0)]
    vXC, vD, vD1, vDC = 172, 173, 174, 175

    def xq_addr():
        e("v_lshrrev_b32 v6, 2, v0")
        e("v_mul_u32_u24 v6, 81920, v6")
        e("v_lshrrev_b32 v7, 4, v0")
        e("v_xor_b32 v7, v7, v0")
        e("v_and_b32 v7, 3, v7")
        e("v_lshl_add_u32 %s, v7, 4, v6", v(vO))
        e("v_bfe_u32 v6, v0, 1, 4")
        e("v_mul_u32_u24 v6, 81920, v6")
        e("v_and_b32 v7, 1, v0")
        e("v_lshl_add_u32 %s, v7, 4, v6", v(vXC))
        e("s_mul_i32 %s, %s, %d", s(sTB), s(sW), CPS)
        e("s_add_u32 %s, %s, %d", s(sTB), s(sTB), CP0 + 15360)
        e("v_and_b32 v6, 15, v0")
        e("v_lshrrev_b32 v7, 4, v0")
        e("v_lshlrev_b32 %s, 5, v6", v(vDC))
        e("v_lshl_add_u32 %s, v7, 3, %s", v(vDC), v(vDC))
        e("v_add_u32 %s, %s, %s", v(vDC), s(sTB), v(vDC))
        e("v_lshlrev_b32 v6, 6, v6")
        e("v_and_b32 v7, 1, v7")
        e("v_lshl_add_u32 v6, v7, 3, v6")
        e("v_lshrrev_b32 v7, 5, v0")
        e("v_bfe_u32 %s, v0, 2, 2", v(vD))
        e("v_xor_b32 v7, v7, %s", v(vD))
        e("v_lshl_add_u32 v6, v7, 4, v6")
        e("v_add_u32 %s, %s, v6", v(vD), s(sTB))
        e("v_xor_b32 %s, 32, %s", v(vD1), v(vD))

    def dl(ct): return ((vD, vD1)[ct & 1], (ct >> 1) * 1024) if ct < 4 else (vDC, 2048)

    def x_dma(k):
        e("s_add_u32 m0, %s, %d", s(sTB), k * 1024)
        if k < 2:
            e("buffer_load_dwordx4 %s, %s, %s offen offset:%d lds", v(vO), s(sX, 4), s(sOo), 0) if k == 0 else None
            if k == 1:
                e("s_add_u32 %s, %s, 640", s(sTmp), s(sOo))
                e("buffer_load_dwordx4 %s, %s, %s offen lds", v(vO), s(sX, 4), s(sTmp))
        else:
            e("s_mov_b32 exec_hi, 0")
            e("buffer_load_dwordx4 %s, %s, %s offen lds", v(vXC), s(sX, 4), s(sOc))
            e("s_mov_b32 exec_hi, -1")
        q.issue("x")

    def acc(ct, rt): return ACC + (ct * 4 + rt) * 4
    for i in range(NI):
        rs = RS + (i % 4) * 36
        n0 = len(q.q)
        if i < (8 if P3O else 4):
            la, lb = A.newlabel("L_w3"), A.newlabel("L_w3")
            e("s_cmp_eq_u32 %s, 0", s(sNU))
            e("s_cbranch_scc1 %s", la)
            if P3O:
                qe.wait("i%d" % i)
            else:
                e("s_waitcnt vmcnt(32)")
            e("s_branch %s", lb)
            A.label(la)
            q.wait("i%d" % i)
            A.label(lb)
        else:
            q.wait("i%d" % i)
        stamp("i%d" % i)
        n0 = len(q.q)
        if XQ and i == 10:
            for ct in range(5):
                e("ds_read_b64 %s, %s offset:%d", v(XR + 2 * ct, 2), v(dl(ct)[0]), dl(ct)[1])
        if XQ and i == 11:
            e("s_waitcnt lgkmcnt(0)")
        if i == 2 and EST:
            staged("s_cbranch_scc0")
        for ct in range(5):
            if i < 4:
                e("s_waitcnt lgkmcnt(%d)", 4 if i < 3 else 4 - ct)
            for rt in range(4):
                mm16(acc(ct, rt), WJ + 4 * ct if i < 4 else rs + 4 * ct, rs + 20 + 4 * rt, i == 0)
            if i < 3:
                wj(i + 1, ct)
            if 4 <= i < 8:
                wload(i + 4, ct)
            if i == NI - 1 and FIL and ct >= 2:
                for rho in range(1, 4):
                    e("ds_write_b128 %s, %s offset:%d", v(vWJ), v(acc(ct - 2, rho), 4), (rho - 1) * 5120 + (ct - 2) * 1024)
            if XQ and i == 3 and ct == 0:
                xq_addr()
            if XQ and i == 4 and ct >= 2:
                x_dma(ct - 2)
            if i == 9 and not XQ:
                e("buffer_load_dwordx2 %s, %s, %s, %s offen offset:%d", v(XR + 2 * ct, 2), v(vO), s(sX, 4), s(OFF[ct][0]), OFF[ct][1])
                q.issue("x")
        if P3O and i < 4:
            lab = A.newlabel("L_w4")
            e("s_cmp_eq_u32 %s, 0", s(sNU))
            e("s_cbranch_scc1 %s", lab)
            keep = list(q.q)
            for ct in range(5):
                wload(i + 4, ct)
            q.q = keep
            qe.issue("i%d" % (i + 4), 5)
            A.label(lab)
        if i + 4 < NI:
            hload(i + 4)
        qe.q += q.q[n0:]
    for rho in range(1, 4):
        e("s_sub_u32 %s, %s, %d", s(sTmp), s(sW), rho)
        e("s_and_b32 %s, %s, 3", s(sTmp), s(sTmp))
        e("s_mul_i32 %s, %s, %d", s(sTmp), s(sTmp), CPS)
        e("s_add_u32 %s, %s, %d", s(sTmp), s(sTmp), CP0 + (rho - 1) * 5120)
        e("v_add_u32 %s, %s, %s", v(40 + rho), s(sTmp), v(vL))
    for ct in range(3 if FIL else 0, 5):
        for rho in range(1, 4):
            e("ds_write_b128 %s, %s offset:%d", v(vWJ), v(acc(ct, rho), 4), (rho - 1) * 5120 + ct * 1024)
    e("s_lshl_b32 %s, %s, 10", s(sTmp), s(sW))
    e("v_add_u32 v40, %s, %s", s(sTmp), v(vL))
    e("s_waitcnt vmcnt(0)")
    for ct in range(5):
        x0, b = XR + 2 * ct, 20 + 4 * ct
        e("v_lshlrev_b32 %s, 16, %s", v(b), v(x0))
        e("v_and_b32 %s, 0xffff0000, %s", v(b + 1), v(x0))
        e("v_lshlrev_b32 %s, 16, %s", v(b + 2), v(x0 + 1))
        e("v_and_b32 %s, 0xffff0000, %s", v(b + 3), v(x0 + 1))
        for k in (0, 2):
            e("v_pk_add_f32 %s, %s, %s", v(acc(ct, 0) + k, 2), v(acc(ct, 0) + k, 2), v(b + k, 2))
    e("s_waitcnt lgkmcnt(0)")
    stamp("p3_end")
    e("s_barrier")
    stamp("p3_bar")
    LP = 48
    for c3 in range(3):
        for lw in range(4):
            e("ds_read_b128 %s, v40 offset:%d", v(LP + (c3 * 4 + lw) * 4, 4), ZU0 + lw * ZUS + c3 * 4096)
    for ct in range(5):
        for k in range(1, 4):
            e("ds_read_b128 %s, %s offset:%d", v(acc(ct, k), 4), v(40 + k), ct * 1024)
    e("s_waitcnt lgkmcnt(15)")
    for c3 in range(3):
        b = LP + c3 * 16
        for k in (0, 2):
            e("v_pk_add_f32 %s, %s, %s", v(b + k, 2), v(b + k, 2), v(b + 8 + k, 2))
            e("v_pk_add_f32 %s, %s, %s", v(b + 4 + k, 2), v(b + 4 + k, 2), v(b + 12 + k, 2))
        for k in (0, 2):
            if c3 < 2:
                e("v_pk_add_f32 %s, %s, %s neg_lo:[0,1] neg_hi:[0,1]", v(b + 8 + k, 2), v(b + k, 2), v(b + 4 + k, 2))
            e("v_pk_add_f32 %s, %s, %s", v(b + k, 2), v(b + k, 2), v(b + 4 + k, 2))
    zsrc = [LP, LP + 16, LP + 8, LP + 24, LP + 32]
    extra = 0
    for ct in range(5):
        b = acc(ct, 0)
        e("s_waitcnt lgkmcnt(%d)", 12 - 3 * ct + extra)
        for k in (0, 2):
            e("v_pk_add_f32 %s, %s, %s", v(b + k, 2), v(b + k, 2), v(zsrc[ct] + k, 2))
            e("v_pk_add_f32 %s, %s, %s", v(b + 4 + k, 2), v(b + 4 + k, 2), v(b + 8 + k, 2))
        for k in (0, 2):
            e("v_pk_add_f32 %s, %s, %s", v(b + k, 2), v(b + k, 2), v(b + 12 + k, 2))
        for k in (0, 2):
            e("v_pk_add_f32 %s, %s, %s", v(b + k, 2), v(b + k, 2), v(b + 4 + k, 2))
        e("v_cvt_pk_bf16_f32 %s, %s, %s", v(b + 8), v(b), v(b + 1))
        e("v_cvt_pk_bf16_f32 %s, %s, %s", v(b + 9), v(b + 2), v(b + 3))
        if not XQ:
            e("buffer_store_dwordx2 %s, %s, %s, %s offen offset:%d%s", v(b + 8, 2), v(vO), s(sOUT, 4), s(OFF[ct][0]), OFF[ct][1], OUTF)
            continue
        e("ds_write_b64 %s, %s offset:%d", v(dl(ct)[0]), v(b + 8, 2), dl(ct)[1] + 2560)
        extra += 1
        if ct in (1, 3, 4):
            e("ds_read_b128 %s, %s offset:%d", v(8 + 4 * (ct >> 1), 4), v(vWJ), 15360 + 2560 + (ct >> 1) * 1024)
            extra += 1
        if ct == 3:
            e("s_waitcnt lgkmcnt(3)")
            e("buffer_store_dwordx4 v[8:11], %s, %s, %s offen%s", v(vO), s(sOUT, 4), s(sOo), OUTF)
        if ct == 4:
            e("s_waitcnt lgkmcnt(2)")
            e("buffer_store_dwordx4 v[12:15], %s, %s, %s offen offset:640%s", v(vO), s(sOUT, 4), s(sOo), OUTF)
            e("s_waitcnt lgkmcnt(0)")
            e("s_mov_b32 exec_hi, 0")
            e("buffer_store_dwordx4 v[16:19], %s, %s, %s offen%s", v(vXC), s(sOUT, 4), s(sOc), OUTF)
            e("s_mov_b32 exec_hi, -1")
    lab = A.newlabel("L_noep")
    e("s_lshl_b32 %s, s2, 3", s(sTmp))
    e("s_add_u32 %s, %s, %s", s(sTmp), s(sTmp), s(sW))
    e("s_cmp_eq_u32 %s, 0", s(sTmp))
    e("s_cbranch_scc0 %s", lab)
    e("s_mov_b32 %s, 0x%x", s(sTmp), WS_EP)
    flag_store(sTmp, 5, 6)
    A.label(lab)


def pf3(part):
    e("s_lshr_b32 %s, s2, 3", s(sCnt))
    e("s_lshl_b32 %s, %s, 2", s(sCnt), s(sCnt))
    e("s_add_u32 %s, %s, %s", s(sCnt), s(sCnt), s(sLW))
    ntau = 40 if MAP8 else 20
    n = 0
    if part == 0:
        per = (ntau * 256 + 95) // 96
        for k in range((per + 63) // 64):
            e("s_mul_i32 %s, %s, %d", s(sTmp), s(sCnt), per)
            e("v_min_u32 v12, %d, v0", min(63, per - 64 * k - 1))
            e("v_add_u32 v12, %s, v12", s(sTmp))
            if k:
                e("v_add_u32 v12, %d, v12", 64 * k)
            e("v_lshrrev_b32 v13, 8, v12")
            e("v_and_b32 v12, 255, v12")
            if not MAP8:
                e("s_and_b32 %s, s2, 1", s(sTmp))
                e("s_lshl_b32 %s, %s, 3", s(sTmp2), s(sTmp))
                e("s_lshl_b32 %s, %s, 1", s(sTmp), s(sTmp))
                e("s_add_u32 %s, %s, 16", s(sTmp), s(sTmp))
                e("v_cmp_gt_u32 vcc, 16, v13")
                e("v_and_b32 v14, 7, v13")
                e("v_add_u32 v14, %s, v14", s(sTmp2))
                e("v_bfe_u32 v17, v13, 3, 1")
                e("v_mad_u32_u24 v14, v17, 20, v14")
                e("v_and_b32 v16, 1, v13")
                e("v_add_u32 v16, %s, v16", s(sTmp))
                e("v_bfe_u32 v17, v13, 1, 1")
                e("v_mad_u32_u24 v16, v17, 20, v16")
                e("v_cndmask_b32 v13, v16, v14, vcc")
            e("v_mul_u32_u24 v13, 49152, v13")
            e("v_lshl_add_u32 v60, v12, 7, v13")
            n += 1
    else:
        per = (4032 if MAP8 else 2016) // 96
        e("s_mul_i32 %s, %s, %d", s(sTmp), s(sCnt), per * 128)
        if not MAP8:
            e("s_and_b32 %s, s2, 1", s(sTmp2))
            e("s_mul_i32 %s, %s, %d", s(sTmp2), s(sTmp2), 4 * 63 * 1024)
            e("s_add_u32 %s, %s, %s", s(sTmp), s(sTmp), s(sTmp2))
        e("s_add_u32 %s, %s, %d", s(sTmp), s(sTmp), TB.CI_OFF)
        e("v_min_u32 v12, %d, v0", per - 1)
        e("v_lshlrev_b32 v12, 7, v12")
        e("v_add_u32 v61, %s, v12", s(sTmp))
        n = 1
    assert n == 1


def pf3_go(q, m):
    if m & 1:
        e("buffer_load_dword v63, v61, %s, 0 offen", s(sTAB, 4))
        q.issue("pf")
    if m & 2:
        e("s_mov_b32 %s, 0x%x", s(sTmp), WS_WD + 16384)
        e("buffer_load_dword v62, v60, %s, %s offen sc1", s(sWS, 4), s(sTmp))
        q.issue("pf")


def code_touch():
    lab = A.newlabel("L_ct")
    e("s_getpc_b64 s[4:5]")
    A.label(lab)
    e("s_sub_u32 s4, s4, %s - %s", lab, NAME + "_kernel")
    e("s_subb_u32 s5, s5, 0")
    e("s_mov_b32 %s, s4", s(sG))
    e("s_and_b32 %s, s5, 0xffff", s(sG + 1))
    e("s_mov_b32 %s, L_code_end - %s", s(sG + 2), NAME + "_kernel")
    e("s_mov_b32 %s, 0x00020000", s(sG + 3))
    if CT == 3:
        e("s_lshr_b32 %s, s2, 3", s(sTmp))
    else:
        e("s_bfe_u32 %s, s2, 0x30003", s(sTmp))
        e("s_lshl_b32 %s, %s, 2", s(sTmp), s(sTmp))
        e("s_add_u32 %s, %s, %s", s(sTmp), s(sTmp), s(sW))
    e("s_lshl_b32 %s, %s, 11", s(sTmp), s(sTmp))
    e("v_and_b32 v5, 15, v0")
    e("v_lshlrev_b32 v5, 7, v5")
    e("buffer_load_dword v15, v5, %s, %s offen", s(sG, 4), s(sTmp))


def warm_touch():
    e("s_lshl_b32 %s, s2, 1", s(sTmp))
    e("s_and_b32 %s, %s, 1", s(sTmp2), s(sLW))
    e("s_add_u32 %s, %s, %s", s(sTmp), s(sTmp), s(sTmp2))
    e("s_mul_i32 %s, %s, %d", s(sTmp), s(sTmp), 27 * 128)
    e("v_min_u32 v12, 26, v0")
    e("v_lshlrev_b32 v12, 7, v12")
    lab, lab2 = A.newlabel("L_wt"), A.newlabel("L_wt")
    e("s_cmp_ge_u32 %s, 2", s(sLW))
    e("s_cbranch_scc1 %s", lab)
    e("buffer_load_dword v250, v12, %s, %s offen", s(sWR, 4), s(sTmp))
    e("s_branch %s", lab2)
    A.label(lab)
    e("buffer_load_dword v250, v12, %s, %s offen", s(sWI, 4), s(sTmp))
    A.label(lab2)
    e("s_lshl_b32 %s, s2, 2", s(sTmp))
    e("s_add_u32 %s, %s, %s", s(sTmp), s(sTmp), s(sLW))
    e("s_mul_i32 %s, %s, %d", s(sTmp), s(sTmp), 6 * 128)
    e("s_add_u32 %s, %s, %d", s(sTmp), s(sTmp), TB.CI_OFF)
    e("v_min_u32 v12, 5, v0")
    e("v_lshlrev_b32 v12, 7, v12")
    e("buffer_load_dword v251, v12, %s, %s offen", s(sTAB, 4), s(sTmp))


def p1_ffn():
    vXA, vWA, FR, ACC = 8, 10, 16, 112

    def tab_touch():
        tab_srd()
        e("s_lshr_b32 %s, s2, 3", s(sJB))
        e("s_lshl_b32 %s, %s, 2", s(sJB), s(sJB))
        e("s_add_u32 %s, %s, %s", s(sJB), s(sJB), s(sW))
        e("s_mul_i32 %s, %s, 9", s(sTmp), s(sJB))
        e("v_min_u32 v5, 8, v0")
        e("v_add_u32 v5, %s, v5", s(sTmp))
        e("v_min_u32 v5, 799, v5")
        e("v_lshlrev_b32 v5, 7, v5")
        e("s_bfe_u32 %s, s2, 0x20001", s(sTmp))
        e("s_mul_i32 %s, %s, 102400", s(sTmp), s(sTmp))
        e("buffer_load_dword v1, v5, %s, %s offen", s(sTAB, 4), s(sTmp))
    if XT & 8:
        tab_touch()
    stats_addr(16)
    e("s_and_b32 %s, %s, 1", s(sWM), s(sW))
    e("s_lshr_b32 %s, %s, 1", s(sWN), s(sW))
    karg_wait(["X"], ["WS", "OUT"])
    lab = A.newlabel("L_nost")
    e("s_cmp_ge_u32 %s, 8", s(sCG))
    e("s_cbranch_scc1 %s", lab)
    stats_issue(16)
    A.label(lab)
    e("s_lshl_b32 %s, %s, 3", s(sFlag), s(sRB))
    e("s_add_u32 %s, %s, %s", s(sFlag), s(sFlag), s(sCG))
    e("s_lshl_b32 %s, %s, 7", s(sFlag), s(sFlag))
    e("s_add_u32 %s, %s, 0x%x", s(sFlag), s(sFlag), WS_FS)
    p3c_setup()
    e("v_and_b32 v5, 15, v0")
    e("v_lshlrev_b32 v5, 7, v5")
    e("s_lshl_b32 %s, %s, 13", s(sTmp), s(sWM))
    e("v_add_u32 v5, %s, v5", s(sTmp))
    e("v_lshrrev_b32 v6, 4, v0")
    e("v_bfe_u32 v7, v0, 1, 3")
    e("v_xor_b32 v6, v6, v7")
    e("v_lshl_add_u32 %s, v6, 4, v5", v(vXA))
    e("v_xor_b32 %s, 64, %s", v(vXA + 1), v(vXA))
    e("v_lshrrev_b32 v5, 4, v0")
    e("v_bfe_u32 v6, v0, 2, 2")
    e("v_lshl_add_u32 v7, v5, 3, v6")
    e("v_lshlrev_b32 v7, 8, v7")
    e("v_and_b32 v5, 1, v5")
    e("v_lshl_add_u32 v5, v6, 1, v5")
    e("s_lshl_b32 %s, %s, 2", s(sTmp), s(sWN))
    e("v_xor_b32 v5, %s, v5", s(sTmp))
    e("v_lshl_add_u32 v7, v5, 5, v7")
    e("v_and_b32 v6, 3, v0")
    e("v_lshl_add_u32 %s, v6, 3, v7", v(vWA))
    for ft in range(1, 4):
        e("v_xor_b32 %s, %d, %s", v(vWA + ft), ft << 5, v(vWA))
    nt = 0
    if XT & 1:
        e("s_lshr_b32 %s, s2, 6", s(sTmp))
        e("s_lshl_b32 %s, %s, 2", s(sTmp), s(sTmp))
        e("s_add_u32 %s, %s, %s", s(sTmp), s(sTmp), s(sW))
        e("s_mul_i32 %s, %s, 107", s(sTmp), s(sTmp))
        e("s_mul_i32 %s, %s, 5120", s(sTmp2), s(sRB))
        for k in range(2):
            e("v_min_u32 v5, %d, v0", 63 if k == 0 else 42)
            e("v_add_u32 v5, %s, v5", s(sTmp))
            if k:
                e("v_add_u32 v5, 64, v5")
            e("v_min_u32 v5, 0x4ff, v5")
            e("v_mul_u32_u24 v6, 6554, v5")
            e("v_lshrrev_b32 v6, 16, v6")
            e("v_mul_u32_u24 v7, 10, v6")
            e("v_sub_u32 v5, v5, v7")
            e("v_lshlrev_b32 v5, 7, v5")
            e("v_lshrrev_b32 v7, 2, v6")
            e("v_mul_u32_u24 v7, 81920, v7")
            e("v_add_u32 v5, v5, v7")
            e("v_and_b32 v6, 3, v6")
            e("v_mul_u32_u24 v6, 1280, v6")
            e("v_add_u32 v5, v5, v6")
            e("buffer_load_dword v1, v5, %s, %s offen", s(sX, 4), s(sTmp2))
        nt += 2
    if XT & 2 and not XT & 8:
        tab_touch()
        nt += 1
    if XT & 4:
        e("s_mul_i32 %s, %s, %d", s(sTmp), s(sJB), 21 * 128)
        e("s_and_b32 %s, s2, 1", s(sTmp2))
        e("s_mul_i32 %s, %s, %d", s(sTmp2), s(sTmp2), 4 * 63 * 1024)
        e("s_add_u32 %s, %s, %s", s(sTmp), s(sTmp), s(sTmp2))
        e("s_add_u32 %s, %s, %d", s(sTmp), s(sTmp), TB.CI_OFF)
        e("v_min_u32 v5, 20, v0")
        e("v_lshlrev_b32 v5, 7, v5")
        e("v_add_u32 v5, %s, v5", s(sTmp))
        e("s_and_b32 %s, %s, 63", s(sTmp), s(sJB))
        e("s_lshl_b32 %s, %s, 7", s(sTmp), s(sTmp))
        e("s_add_u32 %s, %s, %d", s(sTmp), s(sTmp), TB.F64_OFF)
        e("v_mov_b32 v6, %s", s(sTmp))
        e("v_cmp_lt_u32 vcc, 31, v0")
        e("v_cndmask_b32 v5, v5, v6, vcc")
        e("buffer_load_dword v1, v5, %s, 0 offen", s(sTAB, 4))
        nt += 1
    lab = A.newlabel("L_nost")
    e("s_cmp_ge_u32 %s, 8", s(sCG))
    e("s_cbranch_scc1 %s", lab)
    e("s_waitcnt vmcnt(%d)", nt)
    stats_compute(16)
    A.label(lab)
    k_offset(sK1)
    e("s_bfe_u32 %s, s2, 0x20004", s(sPar))
    e("s_add_u32 %s, %s, %s", s(sK1), s(sK1), s(sPar))
    if KG:
        mod10(sK1)
    e("s_mul_i32 %s, %s, 12288", s(sK1), s(sK1))
    e("s_lshl_b32 %s, %s, 2", s(sTmp), s(sCG))
    e("s_lshl_b32 %s, %s, 1", s(sTmp2), s(sWM))
    e("s_add_u32 %s, %s, %s", s(sTmp), s(sTmp), s(sTmp2))
    e("s_add_u32 %s, %s, %s", s(sTmp), s(sTmp), s(sWN))
    e("s_lshl_b32 %s, %s, 8", s(sTmp), s(sTmp))
    e("s_add_u32 %s, %s, %s", s(sK1), s(sK1), s(sTmp))
    e("s_add_u32 %s, %s, 0x%x", s(sK1), s(sK1), WS_CSP)
    e("s_bfe_u32 %s, s2, 0x30003", s(sTmp))
    e("s_cmp_ge_u32 %s, 5", s(sTmp))
    e("s_cselect_b32 %s, 100, %s", s(sPar), s(sPar))
    e("s_cmp_lg_u32 %s, 0", s(sW))
    e("s_cselect_b32 %s, 100, %s", s(sNU), s(sPar))
    for i in range(4):
        e("v_mov_b32 %s, 0x3f803f80", v(2 + i))
    e("v_and_b32 v14, 48, v0")
    stamp("c_set")

    def stat_flag():
        e("s_lshr_b32 %s, %s, 3", s(sTmp), s(sCG))
        e("s_or_b32 %s, %s, %s", s(sTmp), s(sTmp), s(sW))
        rare("s_cbranch_scc0", lambda: flag_store(sFlag, 6, 7))

    def cs_mfma(it, p):
        def body():
            la, lb = A.newlabel("L_csm"), A.newlabel("L_csm")
            e("s_cmp_eq_u32 %s, 1", s(sWM))
            e("s_cbranch_scc1 %s", la)
            for mat in range(2):
                if mat:
                    e("s_branch %s", lb)
                    A.label(la)
                for ft in range(4):
                    mm16(240 + 4 * ft, wf(p, mat, ft), 2, p == 0)
            A.label(lb)
        e("s_cmp_eq_u32 %s, %d", s(sPar), it)
        rare("s_cbranch_scc1", body)

    def cs_store(it):
        def body():
            e("s_mov_b32 exec_lo, 0x00010001")
            e("s_mov_b32 exec_hi, 0x00010001")
            for ft in range(4):
                e("buffer_store_dwordx4 %s, v14, %s, %s offen offset:%d sc1", v(240 + 4 * ft, 4), s(sWS, 4), s(sK1), ft * 64)
            e("s_mov_b64 exec, -1")
        e("s_cmp_eq_u32 %s, %d", s(sPar), it)
        rare("s_cbranch_scc1", body)

    def cs_wait(it):
        e("s_cmp_eq_u32 %s, %d", s(sPar), it)
        rare("s_cbranch_scc1", lambda: e("s_waitcnt vmcnt(0)"))

    def cs_flag(it):
        def body():
            e("s_lshl_b32 %s, s2, 7", s(sTmp))
            e("s_add_u32 %s, %s, 0x%x", s(sTmp), s(sTmp), WS_FSC)
            flag_store(sTmp, 6, 7)
        e("s_cmp_eq_u32 %s, %d", s(sNU), it)
        rare("s_cbranch_scc1", body)

    def acc(mat, ft, st): return ACC + ((mat * 4 + ft) * 4 + st) * 4
    def xf(p, st): return FR + p * 48 + st * 4
    def wf(p, mat, ft): return FR + p * 48 + 16 + (mat * 4 + ft) * 4
    keys = [("x", 0), ("w", 0, 0), ("w", 0, 0), ("x", 1), ("x", 2), ("x", 3)]
    for ft in range(4):
        for mat in range(2):
            if (mat, ft) != (0, 0):
                keys += [("w", mat, ft)] * 2

    def reads(p, t):
        out, seen = [], {}
        for k in keys:
            if k[0] == "x":
                out.append(lambda st=k[1]: e("ds_read_b128 %s, %s offset:%d", v(xf(p, st), 4), v(vXA + t), st * 2048))
            else:
                rd = seen.get(k, 0); seen[k] = rd + 1
                out.append(lambda mat=k[1], ft=k[2], rd=rd: e("ds_read_b64_tr_b16 %s, %s offset:%d", v(wf(p, mat, ft) + 2 * rd, 2), v(vWA + ft), 16384 * (1 + mat) + t * 8192 + rd * 1024))
        return out
    morder, n = [], 0
    for ft in range(4):
        for mat in range(2):
            morder += [(mat, ft, st) for st in ([0, 1, 2, 3] if n % 2 == 0 else [3, 2, 1, 0])]
            n += 1
    need = [max(i + 1 for i, k in enumerate(keys) if k == ("x", m[2]) or k == ("w", m[0], m[1])) for m in morder]

    def mfmas(p, first=False):
        return [(lambda m=m: mm16(acc(*m), wf(p, m[0], m[1]), xf(p, m[2]), first)) for m in morder]
    hooks = []
    for it in range(10):
        h0, h1 = {}, {}
        if it < 3:
            h0[31] = [lambda it=it: cs_mfma(it, 0)]
            h1[8] = [lambda it=it: cs_mfma(it, 1)]
            h1[30] = [lambda it=it: cs_store(it)]
        if it == 0:
            h1[3] = [stat_flag]
        if 2 <= it <= 4:
            h1[2] = [lambda it=it: cs_wait(it - 2)]
            h1[3] = [lambda it=it: cs_flag(it - 2)]
        hooks.append([h0, h1])
    vmw = [0] + [None] * 9
    gemm_loop(10, 2, mfmas, reads, need, [8, 9, 10, 11, 12, 13], 3, 1, unroll=[(None, [])] + [(vmw[i], []) for i in range(9)], hooks=hooks, loop_from=5 if opt("loop", 1) else None)

    RM, CS = 16, 32
    e("v_and_b32 v5, 15, v0")
    e("v_lshlrev_b32 v5, 2, v5")
    e("s_lshl_b32 %s, %s, 8", s(sTmp), s(sWM))
    e("s_add_u32 %s, %s, %d", s(sTmp), s(sTmp), AUX)
    e("v_add_u32 v5, %s, v5", s(sTmp))
    if TL:
        e("s_barrier")
        stamp("c_b9")
    for st in range(4):
        e("ds_read_b32 %s, v5 offset:%d", v(RM + 4 * st), st * 64)
        e("ds_read_b32 %s, v5 offset:%d", v(RM + 4 * st + 2), 512 + st * 64)
    e("v_lshrrev_b32 v6, 4, v0")
    e("v_lshlrev_b32 v6, 4, v6")
    e("s_lshl_b32 %s, %s, 8", s(sTmp), s(sWN))
    e("s_add_u32 %s, %s, %d", s(sTmp), s(sTmp), AUX + 1024)
    e("v_add_u32 v6, %s, v6", s(sTmp))
    for ft in range(4):
        for mat in range(2):
            e("ds_read_b128 %s, v6 offset:%d", v(CS + (mat * 4 + ft) * 4, 4), mat * 512 + ft * 64)
    e("s_lshl_b32 %s, %s, 1", s(sFlag), s(sRB))
    e("s_add_u32 %s, %s, %s", s(sFlag), s(sFlag), s(sWM))
    e("s_mul_i32 %s, %s, %d", s(sTmp), s(sFlag), 2 * 48 * 2048)
    e("s_lshl_b32 s3, %s, 2", s(sCG))
    e("s_lshl_b32 %s, %s, 1", s(sCnt), s(sWN))
    e("s_add_u32 s3, s3, %s", s(sCnt))
    e("s_lshl_b32 s3, s3, 11")
    e("s_add_u32 %s, %s, s3", s(sDelta), s(sTmp))
    e("s_lshl_b32 %s, %s, 1", s(sFlag), s(sFlag))
    e("s_add_u32 %s, %s, %s", s(sFlag), s(sFlag), s(sWN))
    e("s_mul_i32 %s, %s, 12", s(sFlag), s(sFlag))
    e("s_add_u32 %s, %s, %s", s(sFlag), s(sFlag), s(sCG))
    e("s_lshl_b32 %s, %s, 7", s(sFlag), s(sFlag))
    e("s_add_u32 %s, %s, 0x%x", s(sFlag), s(sFlag), WS_FH)
    e("v_lshlrev_b32 v5, 4, v0")
    e("s_waitcnt lgkmcnt(4) vmcnt(0)")
    for st in range(4):
        e("v_mul_f32 %s, %s, %s", v(RM + 4 * st), v(RM + 4 * st), v(RM + 4 * st))
    for ph in range(2):
        if ph == 1:
            e("s_waitcnt lgkmcnt(0)")
        for st in range(4):
            rr, mm_ = RM + 4 * st, RM + 4 * st + 2
            o = 64 + ((ph * 4 + st) & 3) * 4
            for fi in range(2):
                ft = 2 * ph + fi
                g0, u0 = acc(0, ft, st), acc(1, ft, st)
                for k in (0, 2):
                    e("v_pk_fma_f32 %s, %s, %s, %s op_sel_hi:[1,0,1] neg_lo:[0,1,0] neg_hi:[0,1,0]", v(g0 + k, 2), v(CS + ft * 4 + k, 2), v(mm_, 2), v(g0 + k, 2))
                    e("v_pk_fma_f32 %s, %s, %s, %s op_sel_hi:[1,0,1] neg_lo:[0,1,0] neg_hi:[0,1,0]", v(u0 + k, 2), v(CS + 16 + ft * 4 + k, 2), v(mm_, 2), v(u0 + k, 2))
                for k in range(4):
                    e("v_max_f32 %s, 0, %s", v(g0 + k), v(g0 + k))
                for k in (0, 2):
                    e("v_pk_mul_f32 %s, %s, %s op_sel_hi:[1,0]", v(u0 + k, 2), v(u0 + k, 2), v(rr, 2))
                for k in (0, 2):
                    e("v_pk_mul_f32 %s, %s, %s", v(g0 + k, 2), v(g0 + k, 2), v(u0 + k, 2))
                for k in range(2):
                    e("v_cvt_pk_bf16_f32 %s, %s, %s", v(o + 2 * fi + k), v(g0 + 2 * k), v(g0 + 2 * k + 1))
            e("s_add_u32 %s, %s, %d", s(sTmp), s(sDelta), WS_H + (st >> 1) * 48 * 2048 + ph * 2048)
            e("buffer_store_dwordx4 %s, v5, %s, %s offen offset:%d sc1", v(o, 4), s(sWS, 4), s(sTmp), (st & 1) * 1024)
    stamp("c_ep")
    p3_pre()
    e("s_mov_b32 %s, 0", s(sNU))
    e("s_branch L_p3c")


def p1_dft():
    njb = 5
    vXA, vCA, FR, ACC, FC, CO, SI = 8, 12, 16, 80, 208, 176, 192
    tab_srd()
    e("v_lshlrev_b32 v13, 4, v0")
    e("s_mul_i32 %s, %s, %d", s(sBoff), s(sCG), 20 * 5 * 1024)
    e("s_mul_i32 %s, %s, %d", s(sM0), s(sW), 5 * 1024)
    e("s_add_u32 %s, %s, %s", s(sBoff), s(sBoff), s(sM0))
    e("s_lshl_b32 %s, %s, 2", s(sWM), s(sM0))
    cur = [0]

    def cl(i):
        ops = []
        for tl in range(njb):
            def f(tl=tl):
                e("s_add_u32 m0, %s, %d", s(sM0 if CSTR[i] == 5120 else sWM), CBASE[i] + tl * 1024)
                e("s_add_u32 %s, %s, %d", s(sTmp), s(sBoff), i * 4 * njb * 1024 + tl * 1024)
                e("buffer_load_dwordx4 v13, %s, %s offen lds", s(sTAB, 4), s(sTmp))
            ops.append(f)
        return ops
    q = VQ()
    XC = [224, 240, 160, 208, 224]
    NC = 4 - NL

    def xc(i):
        gs = []
        for n in range(NL, 4):
            for hf in range(2):
                def f(n=n, hf=hf):
                    e("s_add_u32 %s, %s, %d", s(sTmp), s(sAoff), n * 8 * 81920 + i * 128)
                    e("buffer_load_dwordx4 %s, v14, %s, %s offen offset:%d", v(XC[i] + (n - NL) * 8 + hf * 4, 4), s(sX, 4), s(sTmp), hf * 640)
                gs.append(cap(f))
        q.issue("x%d" % i, 2 * NC)
        return gs

    def cg(i):
        q.issue("c%d" % i, njb)
        return [cap(f) for f in cl(i)]

    def foldc(i):
        for n in range(NL, 4):
            fold_group(XC[i] + (n - NL) * 8, 64, 72, (1, 2)[n & 1], (1 - (i & 1)) * 5120 + n * 1024)
    if XT & 16:
        e("s_bfe_u32 %s, s2, 0x30003", s(sTmp))
        e("s_lshl_b32 %s, %s, 2", s(sTmp), s(sTmp))
        e("s_add_u32 %s, %s, %s", s(sTmp), s(sTmp), s(sW))
        e("s_mul_i32 %s, %s, 2560", s(sTmp), s(sTmp))
        e("s_mul_i32 %s, %s, 102400", s(sTmp2), s(sCG))
        e("s_add_u32 %s, %s, %s", s(sTmp), s(sTmp), s(sTmp2))
        e("s_add_u32 %s, %s, 20480", s(sTmp), s(sTmp))
        e("v_min_u32 v5, 19, v0")
        e("v_lshlrev_b32 v5, 7, v5")
        e("buffer_load_dword v15, v5, %s, %s offen", s(sTAB, 4), s(sTmp))
        q.issue("t")
    if XO == 1:
        weave([], cg(0))
    fold_addr(14, 1, 3)
    x_src_scalar()
    stamp("dc_pre")
    e("s_waitcnt lgkmcnt(0)")
    stamp("dc_k")
    srd(A, *SRDS["X"])
    weave([], xc(0) + (cg(0) if XO == 0 else []) + xc(1))
    stamp("dc_i0")
    e("s_mul_i32 %s, %s, %d", s(sTmp), s(sW), CPS)
    e("s_add_u32 %s, %s, %d", s(sTmp), s(sTmp), XB + 5120)
    e("v_and_b32 v5, 31, v0")
    e("v_lshlrev_b32 v5, 7, v5")
    e("v_add_u32 v5, %s, v5", s(sTmp))
    e("v_lshrrev_b32 v6, 5, v0")
    e("v_bfe_u32 v7, v0, 1, 3")
    e("v_xor_b32 v6, v6, v7")
    e("v_lshl_add_u32 %s, v6, 4, v5", v(vXA))
    for t in range(1, 4):
        e("v_xor_b32 %s, %d, %s", v(vXA + t), t << 5, v(vXA))
    e("v_mov_b32 %s, v13", v(vCA))
    e("v_add_u32 v3, %d, v13", CP0 + 3 * CPS)
    karg_wait([], ["WS", "OUT"])
    p3c_setup()
    e("s_cmp_ge_u32 %s, 2", s(sCG))
    e("s_cselect_b32 %s, -1.0, 1.0", s(sSgn))
    e("v_mov_b32 v72, 0xffff0000")
    e("s_lshl_b32 %s, %s, 2", s(sS2), s(sRB))
    e("s_add_u32 %s, %s, %s", s(sS2), s(sS2), s(sW))
    e("v_and_b32 v5, 31, v0")
    e("v_lshrrev_b32 v6, 5, v0")
    e("v_lshlrev_b32 v6, 8, v6")
    e("v_add_u32 v6, %s, v6", s(sS2))
    e("v_mul_u32_u24 v6, v6, v5")

    def consts():
        for kap in range(2):
            for i in range(8):
                s0 = 16 * kap + 8 * (i >> 2) + (i & 3)
                e("v_mul_u32_u24 v7, %d, v5", 64 * s0)
                e("v_add_u32 v7, v7, v6")
                e("v_and_b32 v7, 0x7ff, v7")
                e("v_cvt_f32_u32 v7, v7")
                e("v_mul_f32 v7, 0x3a000000, v7")
                e("v_cos_f32 %s, v7", v(CO + 8 * kap + i))
                e("v_sin_f32 %s, v7", v(SI + 8 * kap + i))
    if CX == 0:
        weave(cap(consts), cg(1) + xc(2) + cg(2) + xc(3) + cg(3), skip=10)
        q.wait("x0")
        weave(cap(lambda: foldc(0)), cg(4))
        weave([], xc(4))
        late = {}
    elif CX == 1:
        weave(cap(consts), cg(1) + xc(2) + cg(2), skip=40)
        q.wait("x0")
        weave(cap(lambda: foldc(0)), xc(3) + cg(3))
        late = {0: lambda: xc(4) + cg(4)}
    else:
        stamp("dc_c0")
        weave(cap(consts), cg(1) + xc(2), skip=60)
        stamp("dc_c1")
        q.wait("x0")
        stamp("dc_x0")
        weave(cap(lambda: foldc(0)), cg(2))
        late = {0: lambda: xc(3) + cg(3), 1: lambda: xc(4) + cg(4)}
    stamp("c_set")

    def xf(p): return FR + p * 24
    def cf(p, tl): return FR + p * 24 + 4 + 4 * tl

    def reads(p, t):
        ops = [lambda: e("ds_read_b128 %s, %s", v(xf(p), 4), v(vXA + t))]
        for tl in range(njb):
            if t == 3 and CSTR[cur[0]] == CPS:
                ops.append(lambda tl=tl, o=CBASE[cur[0]] - CP0: e("ds_read_b128 %s, v3 offset:%d", v(cf(p, tl), 4), o + tl * 1024))
            else:
                ops.append(lambda tl=tl, st=CSTR[cur[0]]: e("ds_read_b128 %s, %s offset:%d", v(cf(p, tl), 4), v(vCA), t * st + tl * 1024))
        return ops

    def mfmas(p, first=False):
        return [(lambda tl=tl: e("v_mfma_f32_32x32x16_bf16 %s, %s, %s, %s", v(ACC + 16 * tl, 16), v(xf(p), 4), v(cf(p, tl), 4), "0" if first else v(ACC + 16 * tl, 16))) for tl in range(njb)]

    def vmc(tag):
        last = max([i for i, x in enumerate(q.q) if x == tag], default=-1)
        if last < 0:
            return None
        n = len(q.q) - 1 - last
        q.q = q.q[last + 1:]
        return n

    def fills(i):
        cur[0] = i
        if i == 4:
            return []
        w = cap(lambda: q.wait("x%d" % (i + 1))) if NC else []
        mem = late[i]() if i in late else []
        work = [[ln] for ln in cap(lambda: foldc(i + 1))]
        out, k = [w], 0
        for n, g in enumerate(work):
            out.append(g)
            if n % 5 == 4 and k < len(mem):
                out.append(mem[k]); k += 1
        return out + mem[k:]

    def advf(i):
        for t in range(4):
            e("v_add_u32 %s, %d, %s", v(vXA + t), (5120 if i & 1 else -5120) & 0xffffffff, v(vXA + t))
        e("v_add_u32 %s, %d, %s", v(vCA), (CBASE[i + 1] - CBASE[i]) & 0xffffffff, v(vCA))
    gemm_loop(5, 4, mfmas, reads, [2 + tl for tl in range(njb)], [vXA + i for i in range(5)], 0, 2, buf0=SLAB, advf=advf,
              unroll=[(vmc("c0"), [])] + [((lambda i=i: vmc("c%d" % i)), []) for i in range(1, 5)], fills=fills)

    if EPR:
        e("s_setprio %d", EPR)
    RR, MM = 16, 32
    e("v_lshrrev_b32 v6, 5, v0")
    e("v_lshlrev_b32 v6, 4, v6")
    e("s_lshl_b32 %s, %s, 7", s(sTmp), s(sW))
    e("s_add_u32 %s, %s, %d", s(sTmp), s(sTmp), AUX)
    e("v_add_u32 v7, %s, v6", s(sTmp))
    for jj in range(4):
        e("ds_read_b128 %s, v7 offset:%d", v(RR + 4 * jj, 4), jj * 32)
    e("v_and_b32 v5, 15, v0")
    e("v_lshlrev_b32 v5, 6, v5")
    e("v_bfe_u32 v6, v0, 4, 1")
    e("v_lshl_add_u32 v5, v6, 5, v5")
    e("v_lshrrev_b32 v6, 5, v0")
    e("v_lshl_add_u32 v5, v6, 4, v5")
    e("s_and_b32 %s, %s, 1", s(sJB), s(sCG))
    e("s_mul_i32 %s, %s, 10", s(sJB), s(sJB))
    e("s_lshr_b32 %s, %s, 1", s(sTmp), s(sCG))
    e("s_add_u32 %s, %s, %s", s(sJB), s(sJB), s(sTmp))
    e("s_mul_i32 %s, %s, %d", s(sDelta), s(sS2), TSTR)
    e("s_mul_i32 %s, %s, 10240", s(sTmp), s(sCG))
    if TP == 1:
        e("v_and_b32 v4, 15, v0")
        e("v_lshl_add_u32 v4, v4, 6, v5")
    elif TP == 3:
        e("s_mul_i32 %s, %s, %d", s(sTmp2), s(sW), CPS)
        e("s_add_u32 %s, %s, %d", s(sTmp2), s(sTmp2), CP0)
        e("v_bfe_u32 v1, v5, 4, 2")
        e("v_and_b32 v2, 7, v0")
        e("v_xor_b32 v1, v1, v2")
        e("v_and_b32 v4, 15, v0")
        e("v_lshlrev_b32 v4, 7, v4")
        e("v_lshl_add_u32 v1, v1, 4, v4")
        e("v_add_u32 v1, %s, v1", s(sTmp2))
        e("v_lshrrev_b32 v4, 3, v0")
        e("v_xor_b32 v3, v2, v4")
        e("v_lshlrev_b32 v4, 7, v4")
        e("v_lshl_add_u32 v3, v3, 4, v4")
        e("v_add_u32 v3, %s, v3", s(sTmp2))
        e("v_xor_b32 v2, 64, v1")
        e("v_lshlrev_b32 v4, 4, v0")
    else:
        e("v_and_b32 v4, 7, v0")
        e("v_lshlrev_b32 v4, 7, v4")
        e("v_and_b32 v1, 0x30, v5")
        e("v_add_u32 v4, v4, v1")
        e("v_bfe_u32 v1, v0, 3, 1")
        e("v_lshl_add_u32 v2, v1, 6, v4")
        e("v_xor_b32 v1, 1, v1")
        e("v_lshl_add_u32 v4, v1, 6, v4")
        e("s_mov_b32 s28, 0xff00ff00")
        e("s_mov_b32 s29, 0xff00ff00")
    e("s_add_u32 %s, %s, %s", s(sDelta), s(sDelta), s(sTmp))
    e("s_add_u32 %s, %s, 0x%x", s(sDelta), s(sDelta), WS_T)
    e("s_lshl_b32 %s, %s, 4", s(sFlag), s(sCG))
    e("s_add_u32 %s, %s, %s", s(sFlag), s(sFlag), s(sRB))
    e("s_lshl_b32 %s, %s, 7", s(sFlag), s(sFlag))
    e("s_add_u32 %s, %s, 0x%x", s(sFlag), s(sFlag), WS_FT)
    e("v_bfe_u32 v6, v0, 3, 1")
    e("v_cmp_eq_u32 vcc, 0, v6")
    e("v_mov_b32 v6, 0")
    e("v_mov_b32 v13, 0x80008000")
    e("v_cndmask_b32 v6, v6, v13, vcc")
    DD, AF, AN = [224, 240], [48, 64], 32

    def epilogue(first):
        order = ([4, 2, 3, 1, 0, 5] if TP >= 2 else [1, 2, 3, 4, 0, 5]) if first else [0, 1, 2, 3, 4]
        got, defer = set(), []

        def pack(n):
            tl = order[n]
            if tl == 5:
                e("s_nop 1")
                return
            a0, af = ACC + 16 * tl, AF[n & 1]
            if first and tl == 0:
                for i in range(16):
                    e("v_fma_f32 %s, -%s, v7, %s", v(a0 + i), v(MM + i), v(a0 + i))
            for i in range(8):
                e("v_cvt_pk_bf16_f32 %s, %s, %s", v(af + i), v(a0 + 2 * i), v(a0 + 2 * i + 1))
            if first and tl == 0:
                for i in range(8):
                    e("v_and_b32_dpp %s, %s, v14 row_ror:8 row_mask:0xf bank_mask:0xf", v(AN + i), v(af + i))
                    e("v_and_b32 %s, v15, %s", v(AN + 8 + i), v(af + i))
                for i in range(8):
                    e("v_bfi_b32 %s, v15, 0, %s", v(af + i), v(af + i))
            for i in range(8):
                e("v_xor_b32_dpp %s, %s, v6 row_ror:8 row_mask:0xf bank_mask:0xf", v(af + 8 + i), v(af + i))

        def stage(n):
            d, af = DD[n & 1], AN if order[n] == 5 else AF[n & 1]
            for k in range(4):
                e("v_mfma_f32_32x32x16_bf16 %s, %s, %s, %s", v(d, 16), v(af + 4 * k, 4), v(FC + 4 * k, 4), v(d, 16) if k else "0")

        def finish(n):
            d, tl = DD[n & 1], order[n]
            o = ACC + 16 * tl if TP == 2 and tl < 4 else d
            for i in range(8):
                e("v_cvt_pk_bf16_f32 %s, %s, %s", v(o + i), v(d + 2 * i), v(d + 2 * i + 1))
            e("s_add_u32 %s, %s, %d", s(sTmp), s(sDelta), 40960 if tl == 5 else (tl >> 1) * 4096)
            e("s_nop 0")
            for i in range(4):
                e("v_permlane16_swap_b32 %s, %s", v(o + i), v(o + 4 + i))
            if TP == 3 and tl < 4:
                for q in range(2):
                    e("ds_write_b128 %s, %s offset:%d", v(1 + (tl & 1)), v(d + 4 * q, 4), (tl >> 1) * 4096 + q * 2048)
                got.add(tl)
                if (tl ^ 1) in got:
                    for m in range(4):
                        e("ds_read_b128 %s, v3 offset:%d", v(ACC + 16 * tl + 4 * m, 4), (tl >> 1) * 4096 + m * 1024)

                    def later():
                        e("s_add_u32 %s, %s, %d", s(sTmp), s(sDelta), (tl >> 1) * 4096)
                        for m in range(4):
                            e("s_waitcnt lgkmcnt(%d)", 3 - m)
                            e("buffer_store_dwordx4 %s, v4, %s, %s offen offset:%d sc1", v(ACC + 16 * tl + 4 * m, 4), s(sWS, 4), s(sTmp), m * 1024)
                    defer.append(cap(later))
                return
            if TP == 2 and tl < 4:
                got.add(tl)
                if (tl ^ 1) not in got:
                    return
                a_, b_, t_ = ACC + 16 * (tl & 2), ACC + 16 * (tl | 1), ACC + 16 * tl + 8
                e("s_nop 0")
                for i in range(8):
                    e("v_mov_b32_dpp %s, %s row_ror:8 row_mask:0xf bank_mask:0xf", v(t_ + i), v(b_ + i))
                for q in range(2):
                    for i in range(4 * q, 4 * q + 4):
                        e("v_cndmask_b32 %s, %s, %s, s[28:29]", v(b_ + i), v(t_ + i), v(a_ + i))
                        e("v_cndmask_b32 %s, %s, %s, s[28:29]", v(a_ + i), v(a_ + i), v(t_ + i))
                    e("buffer_store_dwordx4 %s, v2, %s, %s offen offset:%d sc1", v(a_ + 4 * q, 4), s(sWS, 4), s(sTmp), q * 2048)
                    e("buffer_store_dwordx4 %s, v4, %s, %s offen offset:%d sc1", v(b_ + 4 * q, 4), s(sWS, 4), s(sTmp), q * 2048 + 1024)
                return
            for q in range(2):
                if tl < 4:
                    e("buffer_store_dwordx4 %s, v4, %s, %s offen offset:%d sc1", v(d + 4 * q, 4), s(sWS, 4), s(sTmp), q * 2048 + (tl & 1) * 64)
                else:
                    e("buffer_store_dwordx4 %s, v5, %s, %s offen offset:%d sc1", v(d + 4 * q, 4), s(sWS, 4), s(sTmp), q * 1024)
        if first:
            for jj in range(4):
                e("ds_read_b128 %s, v7 offset:%d", v(MM + 4 * jj, 4), 512 + jj * 32)
            e("v_and_b32 v15, 31, v0")
            e("v_cmp_eq_u32 vcc, 0, v15")
            e("v_cmp_eq_u32 s[4:5], 8, v15")
            e("v_mov_b32 v13, 0x44200000")
            e("v_cndmask_b32 v14, 0, -1, vcc")
            e("v_cndmask_b32 v15, 0, -1, s[4:5]")
        pack(0)
        e("s_waitcnt lgkmcnt(0)")
        if first:
            e("v_and_b32 v7, v13, v14")
        for i in range(0, 16, 2):
            e("v_pk_mul_f32 %s, %s, %s", v(CO + i, 2), v(CO + i, 2), v(RR + i, 2))
            e("v_pk_mul_f32 %s, %s, %s neg_lo:[1,0] neg_hi:[1,0]", v(SI + i, 2), v(SI + i, 2), v(RR + i, 2))
        for i in range(8):
            e("v_cvt_pk_bf16_f32 %s, %s, %s", v(FC + i), v(CO + 2 * i), v(CO + 2 * i + 1))
            e("v_cvt_pk_bf16_f32 %s, %s, %s", v(FC + 8 + i), v(SI + 2 * i), v(SI + 2 * i + 1))
        e("s_nop 1")
        if EPI:
            N_ = len(order)
            for n in range(-1, N_):
                S = cap(lambda: stage(n + 1)) if n + 1 < N_ else []
                P_ = cap(lambda: pack(n + 2)) if n + 2 < N_ else []
                D_ = defer.pop() if defer else []
                F_ = cap(lambda: finish(n)) if n >= 0 else []
                if not S:
                    A.lines += (D_ + ["    s_nop 7"] if D_ else ["    s_nop 15"]) + F_
                elif not F_:
                    k = (len(P_) + 2) // 3
                    A.lines += S[:1] + P_[:k] + S[1:2] + P_[k:2 * k] + S[2:3] + P_[2 * k:] + S[3:]
                else:
                    if len(P_) < 12:
                        P_ = P_ + ["    s_nop 10"]
                    k = 16 if len(F_) < 20 else 24
                    A.lines += S[:1] + P_ + D_ + S[1:2] + F_[:9] + S[2:3] + F_[9:k] + S[3:] + F_[k:]
            return
        stage(0)
        for n in range(len(order)):
            if n + 1 < len(order):
                pack(n + 1)
                stage(n + 1)
                if order[n + 1] == 5:
                    e("s_nop 7")
            else:
                e("s_nop 15")
            finish(n)
    e("s_cmp_eq_u32 %s, 0", s(sCG))
    e("s_cbranch_scc1 L_dft_e0")
    epilogue(False)
    e("s_branch L_dft_c")
    A.label("L_dft_e0")
    epilogue(True)


def mid_k1():
    e("s_and_b32 s3, s2, 7")
    e("s_lshl_b32 %s, s3, 2", s(sK1))
    e("s_bfe_u32 s3, s2, 0x20004")
    e("s_add_u32 %s, %s, s3", s(sK1), s(sK1))
    e("s_bfe_u32 s3, s2, 0x10003")


def mid():
    FC, PD = 64, 48
    XU, WY, DF = [128, 160], [192, 224], [16, 40]
    vL, vT, vWr, vUo, vP, vTG = 5, 6, 7, 10, 11, 15
    e("v_lshlrev_b32 %s, 4, v0", v(vL))
    e("v_and_b32 v9, 3, v0")
    e("v_add_u32 v13, %d, %s", FR_L, v(vL))
    for n in range(8):
        e("ds_read_b128 %s, v13 offset:%d", v(FC + 4 * n, 4), n * 1024)
    for i in range(32):
        e("v_mov_b32 %s, 0", v(WY[0] + i))
    e("v_and_b32 v8, 15, v0")
    e("v_lshrrev_b32 v12, 2, v0")
    e("v_lshlrev_b32 %s, 6, v12", v(vT))
    e("v_lshl_add_u32 %s, v9, 4, %s", v(vT), v(vT))
    e("v_add_u32 %s, %s, %s", v(vT), s(sM0), v(vT))
    e("v_and_b32 v13, 12, v12")
    e("v_bfe_u32 v14, v0, 3, 1")
    e("v_lshl_add_u32 v13, v14, 4, v13")
    e("v_bfe_u32 v14, v0, 2, 1")
    e("v_lshl_add_u32 v13, v14, 1, v13")
    e("v_mul_u32_u24 v12, %d, v13", TSTR)
    e("v_lshl_add_u32 %s, v9, 4, v12", v(vTG))
    e("v_lshrrev_b32 v9, 4, v0")
    e("v_lshlrev_b32 %s, 6, v8", v(vUo))
    e("v_lshl_add_u32 %s, v9, 4, %s", v(vUo), v(vUo))
    e("v_mul_u32_u24 v12, %d, v9", 4 * 336)
    e("v_lshl_add_u32 v12, v8, 2, v12")
    e("s_add_u32 %s, %s, %s", s(sTmp), s(sMW), s(sPar))
    e("v_add_u32 %s, %s, v12", v(vWr), s(sTmp))
    e("v_bfe_u32 v12, v0, 3, 1")
    e("v_lshlrev_b32 v12, 1, v12")
    e("v_bfe_u32 v13, v0, 4, 1")
    e("v_lshl_add_u32 v12, v13, 4, v12")
    e("v_lshrrev_b32 v14, 5, v0")
    e("v_lshl_add_u32 v12, v14, 2, v12")
    e("v_mul_u32_u24 v12, %d, v12", TSTR)
    e("v_bfe_u32 v14, v0, 2, 1")
    e("v_xor_b32 v13, v13, v14")
    e("v_lshl_add_u32 v12, v13, 6, v12")
    e("v_and_b32 v13, 3, v0")
    e("v_lshl_add_u32 v1, v13, 4, v12")
    e("v_lshrrev_b32 v12, 2, v0")
    e("v_lshlrev_b32 v12, 7, v12")
    e("v_lshl_add_u32 v12, v13, 4, v12")
    e("v_bfe_u32 v13, v0, 3, 1")
    e("v_lshl_add_u32 v12, v13, 6, v12")
    e("v_add_u32 v2, %s, v12", s(sM0))
    e("v_xor_b32 v4, 64, v2")
    e("v_add_u32 v8, %s, v12", s(sLB2))
    e("v_xor_b32 v9, 64, v8")
    e("s_waitcnt vmcnt(0) lgkmcnt(0)")
    lab = A.newlabel("L_noft")
    e("s_cmp_lg_u32 %s, 3", s(sWN))
    e("s_cbranch_scc1 %s", lab)
    if PPT:
        poll_check_pipe(PD, PPT, vP, WS_FT, PPG)
    else:
        poll_check(PD, 1, vP, WS_FT)
    A.label(lab)
    e("s_barrier")
    stamp("m_B")
    e("s_mul_i32 %s, %s, %d", s(sDelta), s(sK1), USTR)
    e("s_lshl_b32 %s, %s, 12", s(sTmp), s(sJB))
    e("s_add_u32 %s, %s, %s", s(sDelta), s(sDelta), s(sTmp))
    e("s_add_u32 %s, %s, 0x%x", s(sDelta), s(sDelta), WS_U)

    def gather(un):
        for n in range(4):
            e("s_add_u32 m0, %s, %d", s(sM0), n * 1024)
            e("s_add_u32 %s, %s, %d", s(sTmp), s(sTB), WS_T + (32 * (n & 1) + (n >> 1)) * TSTR)
            e("buffer_load_dwordx4 %s, %s, %s offen sc1 lds", v(vTG), s(sWS, 4), s(sTmp))

    def gather2():
        for kap in range(2):
            for n in range(4):
                e("s_add_u32 m0, %s, %d", s(sLB2 if kap else sM0), n * 1024)
                e("s_add_u32 %s, %s, %d", s(sTmp), s(sTB), WS_T + (32 * (n >> 1) + 8 * (n & 1) + kap) * TSTR)
                e("buffer_load_dwordx4 v1, %s, %s offen sc1 lds", s(sWS, 4), s(sTmp))

    def R2(u):
        for ri in range(2):
            for kap in range(2):
                for rd in range(2):
                    e("ds_read_b64_tr_b16 %s, %s offset:%d", v(DF[u] + 8 * ri + 4 * kap + 2 * rd, 2), v((2, 4, 8, 9)[kap * 2 + u]), rd * 2048 + ri * 8)

    def gathered():
        if EST == 3:
            e("v_mov_b32 v12, %d", LGO)
            e("v_mov_b32 v13, 1")
            e("s_mov_b64 exec, 1")
            e("ds_add_u32 v12, v13 offset:8")
            e("s_mov_b64 exec, -1")

    def F(ri, t, par): return FC + ((ri * 2 + t) * 2 + par) * 4

    def R(u):
        for ri in range(2):
            for kap in range(2):
                for rd in range(2):
                    e("ds_read_b64_tr_b16 %s, %s offset:%d", v(DF[u] + 8 * ri + 4 * kap + 2 * rd, 2), v(14 if u else vT), kap * 2048 + rd * 1024 + ri * 8)

    def N(u):
        for i in range(8):
            e("v_xor_b32 %s, 0x80008000, %s", v(DF[u] + 16 + i), v(DF[u] + 8 + i))

    def WR(u):
        for mt in range(4):
            for i in range(4):
                for arr in range(2):
                    e("ds_read_u16_d16_hi %s, %s offset:%d", v(WY[u] + arr * 16 + 4 * mt + i), v(vWr), arr * MWA + (16 * mt + i) * 336 + 64 * u)

    def SA(u):
        Tre, Tim, Tni = DF[u], DF[u] + 8, DF[u] + 16
        for t in range(2):
            for step in range(2):
                for par in range(2):
                    xr, xi = XU[u] + 4 * (t + 2 * par), XU[u] + 16 + 4 * (t + 2 * par)
                    if step == 0:
                        mm16(xr, F(0, t, par), Tre + 4 * par, True)
                        mm16(xi, F(1, t, par), Tre + 4 * par, True)
                    else:
                        mm16(xr, F(1, t, par), Tni + 4 * par)
                        mm16(xi, F(0, t, par), Tim + 4 * par)

    def BF(u):
        for t in range(2):
            for b in (XU[u] + 4 * t, XU[u] + 4 * t + 2, XU[u] + 16 + 4 * t, XU[u] + 18 + 4 * t):
                e("v_pk_add_f32 %s, %s, %s", v(b, 2), v(b, 2), v(b + 8, 2))
            for b in (XU[u] + 4 * t, XU[u] + 4 * t + 2, XU[u] + 16 + 4 * t, XU[u] + 18 + 4 * t):
                e("v_pk_fma_f32 %s, %s, 2.0, %s op_sel_hi:[1,0,1] neg_lo:[1,0,0] neg_hi:[1,0,0]", v(b + 8, 2), v(b + 8, 2), v(b, 2))

    def YP(u):
        BF(u)
        for n in range(0, 16, 4):
            for k in (0, 2):
                e("v_pk_mul_f32 %s, %s, %s", v(8 if k else 12, 2), v(XU[u] + 16 + n + k, 2), v(WY[u] + 16 + n + k, 2))
            for k in (0, 2):
                e("v_pk_mul_f32 %s, %s, %s", v(WY[u] + 16 + n + k, 2), v(XU[u] + n + k, 2), v(WY[u] + 16 + n + k, 2))
            for k in (0, 2):
                e("v_pk_fma_f32 %s, %s, %s, %s", v(WY[u] + 16 + n + k, 2), v(XU[u] + 16 + n + k, 2), v(WY[u] + n + k, 2), v(WY[u] + 16 + n + k, 2))
            for k in (0, 2):
                e("v_pk_fma_f32 %s, %s, %s, %s neg_lo:[0,0,1] neg_hi:[0,0,1]", v(WY[u] + n + k, 2), v(XU[u] + n + k, 2), v(WY[u] + n + k, 2), v(8 if k else 12, 2))

    def CV(u):
        for mt in range(4):
            for par in range(2):
                w_r, w_i = WY[u] + 4 * mt + par, WY[u] + 16 + 4 * mt + par
                e("v_cvt_pk_bf16_f32 %s, %s, %s", v(DF[u] + 8 + 4 * par + mt), v(w_i), v(w_i + 2))
                e("v_cvt_pk_bf16_f32 %s, %s, %s", v(DF[u] + 4 * par + mt), v(w_r), v(w_r + 2))
            for par in range(2):
                e("v_xor_b32 %s, 0x80008000, %s", v(DF[u] + 16 + 4 * par + mt), v(DF[u] + 4 * par + mt))

    def SB(u):
        Yre, Yim, Ynr = DF[u], DF[u] + 8, DF[u] + 16
        for t in range(2):
            for step in range(2):
                for par in range(2):
                    ur, ui = XU[u] + 4 * (t + 2 * par), XU[u] + 16 + 4 * (t + 2 * par)
                    if step == 0:
                        mm16(ur, Yre + 4 * par, F(0, t, par), True)
                        mm16(ui, Yim + 4 * par, F(0, t, par), True)
                    else:
                        mm16(ur, Yim + 4 * par, F(1, t, par))
                        mm16(ui, Ynr + 4 * par, F(1, t, par))

    def O(u):
        if u:
            e("s_add_u32 %s, %s, 8192", s(sDelta), s(sDelta))
        for nt in range(4):
            ur, ui = XU[u] + 4 * nt, XU[u] + 16 + 4 * nt
            e("v_cvt_pk_bf16_f32 %s, %s, %s", v(ur), v(ur), v(ur + 1))
            e("v_cvt_pk_bf16_f32 %s, %s, %s", v(ur + 1), v(ur + 2), v(ur + 3))
            e("v_cvt_pk_bf16_f32 %s, %s, %s", v(ur + 2), v(ui), v(ui + 1))
            e("v_cvt_pk_bf16_f32 %s, %s, %s", v(ur + 3), v(ui + 2), v(ui + 3))
            e("buffer_store_dwordx4 %s, %s, %s, %s offen offset:%d sc1", v(ur, 4), v(vUo), s(sWS, 4), s(sDelta), nt * 1024)

    def lines(*fs):
        return [[ln] for f in fs for ln in cap(f)]

    def mix(a_, b_):
        out = []
        for i in range(max(len(a_), len(b_))):
            out += a_[i:i + 1] + b_[i:i + 1]
        return out
    one, done = A.newlabel("L_one"), A.newlabel("L_midd")
    e("s_cmp_eq_u32 %s, 1", s(sNU))
    e("s_cbranch_scc1 %s", one)
    gather2()
    gathered()
    for i in range(32):
        e("v_mov_b32 %s, 0", v(WY[1] + i))
    if MWE:
        WR(0)
        WR(1)
    e("s_waitcnt vmcnt(0)")
    stamp("m_T")
    R2(0)
    if not MWE:
        WR(0)
    e("s_waitcnt lgkmcnt(%d)", 0 if MWE else 15)
    if not MWE:
        e("s_waitcnt vmcnt(0)")
    N(0)
    if MWE:
        e("s_waitcnt vmcnt(0)")
    w1 = lines(lambda: WR(1)) if not MWE else []
    weave(cap(lambda: SA(0)), lines(lambda: R2(1)) + w1[:24], skip=1)
    e("s_waitcnt lgkmcnt(%d)", 0 if MWE else 15)
    N(1)
    YP(0)
    weave(cap(lambda: SA(1)), mix(lines(lambda: CV(0)), w1[24:]), skip=1)
    e("s_waitcnt lgkmcnt(0)")
    e("s_nop 6")
    stamp("m_u1")
    if EH:
        poll_issue(4, 1, 3, WS_FH)
    YP(1)
    weave(cap(lambda: SB(0)), lines(lambda: CV(1)), skip=1)
    e("s_nop 6")
    BF(0)
    weave(cap(lambda: SB(1)), lines(lambda: O(0)), skip=1)
    e("s_nop 7")
    BF(1)
    O(1)
    e("s_branch %s", done)
    A.label(one)
    gather(0)
    gathered()
    nci = z_ci_sub(CI_EARLY) if ECI == 3 and not CG else 0
    if MWE:
        WR(0)
    e("s_waitcnt vmcnt(%d)", nci)
    stamp("m_T")
    R(0)
    if not MWE:
        WR(0)
    e("s_waitcnt lgkmcnt(%d)", 0 if MWE else 15)
    N(0)
    e("s_nop 0")
    SA(0)
    e("s_waitcnt lgkmcnt(0)")
    e("s_nop 6")
    YP(0)
    CV(0)
    e("s_nop 1")
    SB(0)
    e("s_nop 7")
    BF(0)
    O(0)
    A.label(done)


hdr = open("cdna_kernels/%s.s.ref" % NAME).read().split("; Override launch")[0]
A(hdr.rstrip())
A("; @launch grid=(256,1,1) block=(512,1,1) lds=%d" % LDS_ALL)
A('.amdgcn_target "amdgcn-amd-amdhsa--gfx950"')
KN = NAME + "_kernel"
kernel_header(A, KN)
stamp("start")
if STAMPS:
    for i in range(1, 9):
        e("s_mov_b32 %s, 0", s(84 + 2 * i))
e("s_cmp_ge_u32 s2, 256")
e("s_cbranch_scc1 L_end")
e("s_load_dwordx16 %s, s[0:1], 0", s(P, 16))
e("s_load_dwordx4 %s, s[0:1], 64", s(P + 16, 4))
e("v_lshrrev_b32 v1, 6, v0")
e("v_and_b32 v0, 63, v0")
e("v_readfirstlane_b32 %s, v1", s(sW))
if CT == 3:
    e("s_cmp_lg_u32 %s, 0", s(sW))
    e("s_cbranch_scc1 L_noct")
    code_touch()
    A.label("L_noct")
e("s_and_b32 s3, s2, 1")
e("s_lshl_b32 %s, s3, 3", s(sRB))
e("s_bfe_u32 s3, s2, 0x30003")
e("s_add_u32 %s, %s, s3", s(sRB), s(sRB))
e("s_lshr_b32 %s, s2, 6", s(sTmp2))
e("s_bfe_u32 s3, s2, 0x20001")
e("s_mul_i32 %s, s3, 3", s(sCG))
e("s_add_u32 %s, %s, %s", s(sCG), s(sCG), s(sTmp2))
if opt("cgr", 0):
    e("s_add_u32 %s, %s, %d", s(sCG), s(sCG), opt("cgr", 0))
    e("s_cmp_ge_u32 %s, 12", s(sCG))
    e("s_cselect_b32 %s, 12, 0", s(sTmp))
    e("s_sub_u32 %s, %s, %s", s(sCG), s(sCG), s(sTmp))
e("s_and_b32 %s, %s, 3", s(sLW), s(sW))
e("s_cmp_eq_u32 %s, 3", s(sTmp2))
e("s_cbranch_scc1 L_dft")
e("s_cmp_ge_u32 %s, 4", s(sW))
e("s_cbranch_scc0 L_ffn_c")
ffn_loader()
A.label("L_ffn_c")
p1_ffn()
A.label("L_dft")
if opt("nodft", 0):
    e("s_endpgm")
e("s_mov_b32 %s, s3", s(sCG))
e("s_cmp_ge_u32 %s, 4", s(sW))
e("s_cbranch_scc0 L_dftc")
dft_loader()
A.label("L_dftc")
p1_dft()
A.label("L_dft_c")
stamp("dc_ep")
if EPR:
    e("s_setprio 0")
if ZGL:
    e("v_mov_b32 v12, %d", LGO)
    e("v_mov_b32 v13, 1")
    e("ds_write_b32 v12, v13 offset:12")
e("s_waitcnt vmcnt(0)")
stamp("dc_st")
e("v_mov_b32 v12, %d", LGO)
e("v_mov_b32 v13, 1")
e("s_mov_b64 exec, 1")
e("ds_add_rtn_u32 v13, v12, v13 offset:4")
e("s_mov_b64 exec, -1")
e("v_lshlrev_b32 v11, 7, v0")
e("s_waitcnt lgkmcnt(0)")
e("v_readfirstlane_b32 %s, v13", s(sWN))
e("s_cmp_lg_u32 %s, 3", s(sWN))
e("s_cbranch_scc1 L_noft")
flag_store(sFlag, 12, 13)
if OWN:
    e("s_sub_u32 %s, %s, 0x%x", s(sTmp), s(sFlag), WS_FT)
    e("v_cmp_eq_u32 vcc, %s, v11", s(sTmp))
    e("v_xor_b32 v12, 128, v11")
    e("v_cndmask_b32 v11, v11, v12, vcc")
poll_issue(48, 1, 11, WS_FT)
if EST == 4:
    e("v_mov_b32 v12, %d", LGO)
    e("v_mov_b32 v13, 1")
    e("ds_write_b32 v12, v13 offset:12")
A.label("L_noft")
if EH:
    fh_addr()
mid_k1()
wspec_shift(sMW)
e("s_and_b32 %s, %s, 1", s(sTmp2), s(sW))
e("s_lshl_b32 %s, %s, 7", s(sTmp), s(sTmp2))
e("s_add_u32 %s, %s, %s", s(sMW), s(sMW), s(sTmp))
e("s_add_u32 %s, %s, %d", s(sMW), s(sMW), MW0)
e("s_and_b32 %s, %s, 2", s(sPar), s(sW))
e("s_add_u32 %s, s3, %s", s(sTmp), s(sPar))
e("s_mul_i32 %s, %s, 10240", s(sTB), s(sTmp))
e("s_lshl_b32 %s, %s, 12", s(sTmp), s(sTmp2))
e("s_add_u32 %s, %s, %s", s(sTB), s(sTB), s(sTmp))
e("s_lshl_b32 %s, %s, 7", s(sTmp), s(sK1))
e("s_add_u32 %s, %s, %s", s(sTB), s(sTB), s(sTmp))
e("s_mul_i32 s3, s3, 10")
e("s_lshl_b32 %s, %s, 2", s(sTmp2), s(sTmp2))
e("s_add_u32 s3, s3, %s", s(sTmp2))
e("s_lshr_b32 %s, %s, 1", s(sTmp), s(sW))
e("s_add_u32 %s, s3, %s", s(sJB), s(sTmp))
e("s_mov_b32 %s, 2", s(sNU))
e("s_lshl_b32 %s, %s, 12", s(sM0), s(sW))
e("s_add_u32 %s, %s, %d", s(sM0), s(sM0), MT0)
e("s_mul_i32 %s, %s, %d", s(sLB2), s(sW), CPS)
e("s_add_u32 %s, %s, %d", s(sLB2), s(sLB2), CP0 + 15360)
e("s_branch L_mid")

A.label("L_dft_l")
e("s_mov_b32 %s, 0", s(sWN))
e("v_lshlrev_b32 v11, 7, v0")
mid_k1()
e("s_add_u32 %s, s3, 2", s(sTmp))
e("s_cmp_ge_u32 %s, %s", s(sLW), s(sTmp))
e("s_cbranch_scc1 L_dft_l3")
wspec_shift(sMW)
e("s_add_u32 %s, %s, %d", s(sMW), s(sMW), MW0 + 256)
e("s_lshl_b32 %s, %s, 1", s(sTmp), s(sLW))
e("s_add_u32 %s, %s, s3", s(sTmp), s(sTmp))
e("s_mul_i32 %s, %s, 10240", s(sTB), s(sTmp))
e("s_add_u32 %s, %s, 8192", s(sTB), s(sTB))
e("s_cmp_eq_u32 %s, 2", s(sLW))
e("s_cselect_b32 %s, 40960, %s", s(sTB), s(sTB))
e("s_lshl_b32 %s, %s, 6", s(sTmp), s(sK1))
e("s_add_u32 %s, %s, %s", s(sTB), s(sTB), s(sTmp))
e("s_mul_i32 s3, s3, 10")
e("s_add_u32 s3, s3, 8")
e("s_add_u32 %s, s3, %s", s(sJB), s(sLW))
e("s_lshl_b32 %s, %s, 1", s(sPar), s(sLW))
e("s_cmp_eq_u32 %s, 2", s(sLW))
e("s_cselect_b32 %s, 64, %s", s(sPar), s(sPar))
e("s_mov_b32 %s, 1", s(sNU))
e("s_lshl_b32 %s, %s, 12", s(sM0), s(sLW))
e("s_add_u32 %s, %s, %d", s(sM0), s(sM0), FI_L)
A.label("L_mid")
mid()
stamp("m_end")
e("s_cmp_ge_u32 %s, 4", s(sW))
e("s_cbranch_scc1 L_dft_l2")
p3_pre()
if EH:
    e("s_waitcnt vmcnt(8)")
    e("v_cmp_ne_u32 vcc, %s, v4", s(sTAG))
    e("s_cbranch_vccnz L_eh0")
    for i in range(EH):
        hload_(i)
    e("s_mov_b32 %s, 2", s(sNU))
    e("s_waitcnt vmcnt(%d)", 4 * EH)
    e("s_branch L_eh1")
    A.label("L_eh0")
e("s_mov_b32 %s, 0", s(sNU))
if EFH:
    if not EH:
        fh_addr()
    poll_issue(7, 1, 3, WS_FH)
e("s_waitcnt vmcnt(0)")
A.label("L_eh1")
stamp("m_st")
e("s_barrier")
e("s_cmp_lg_u32 %s, 0", s(sW))
e("s_cbranch_scc1 L_nofu")
e("s_lshl_b32 %s, s2, 7", s(sFlag))
e("s_add_u32 %s, %s, %d", s(sFlag), s(sFlag), WS_FU - 192 * 128)
flag_store(sFlag, 12, 13)
A.label("L_nofu")
A.label("L_p3c")
p3c()
e("s_branch L_fin")

A.label("L_dft_l3")
e("v_lshlrev_b32 v5, 4, v0")
if EST:
    if ECI and EST < 3:
        z_ci_sub(CI_LATE)
    e("s_waitcnt vmcnt(0)")
    if EST >= 3:
        poll_check(41, 1, 10, WS_FW)
    if EST == 4:
        e("s_cmp_lg_u32 %s, 3", s(sLW))
        e("s_cbranch_scc1 L_dft_l7")
        e("v_mov_b32 v12, %d", LGO)
        A.label("L_dft_l8")
        e("ds_read_b32 v13, v12 offset:12")
        e("s_waitcnt lgkmcnt(0)")
        e("v_cmp_ne_u32 vcc, 1, v13")
        e("s_cbranch_vccnz L_dft_l8")
        stage_all()
        stamp("dl_st")
        A.label("L_dft_l7")
    e("s_barrier")
    if EST == 4:
        e("s_waitcnt vmcnt(0)")
    if EST == 3:
        if ECI < 3:
            e("s_cmp_lg_u32 %s, 3", s(sLW))
            e("s_cbranch_scc1 L_dft_l7")
        e("v_mov_b32 v12, %d", LGO)
        e("s_add_u32 s3, s3, 6")
        A.label("L_dft_l8")
        e("ds_read_b32 v13, v12 offset:8")
        e("s_waitcnt lgkmcnt(0)")
        e("v_cmp_ne_u32 vcc, s3, v13")
        e("s_cbranch_vccnz L_dft_l8")
        if ECI == 3:
            e("s_cmp_lg_u32 %s, 3", s(sLW))
            e("s_cbranch_scc1 L_dft_l7")
            stage_all()
            if not CG:
                e("s_waitcnt vmcnt(40)")
            A.label("L_dft_l7")
            if CG:
                ci_gen(CI_LATE)
            nci_ = z_ci_sub(range(18)) if not CG else 0
            e("s_waitcnt vmcnt(%d)", nci_)
            stamp("dl_st")
        else:
            stage_all()
            e("s_waitcnt vmcnt(0)")
            stamp("dl_st")
            A.label("L_dft_l7")
    e("s_barrier")
    stage_wd(3, 4)
    if ECI:
        stage_done(0)
        e("v_lshlrev_b32 v11, 7, v0")
        e("s_branch L_dft_l6")
    else:
        e("s_branch L_dft_l5")
    A.label("L_dft_l2")
    e("s_waitcnt vmcnt(0)")
    e("s_barrier")
    stage_wd(3, 4)
    A.label("L_dft_l5")
    fu_poll_issue()
    if CG:
        ci_setup()
        ci_gen(CI_LATE[:4])
        stage_done(0)
        ci_gen(CI_LATE[4:])
    else:
        stage_done(z_ci_sub(CI_LATE if ECI else range(18)))
    A.label("L_dft_l6")
else:
    e("s_waitcnt vmcnt(0)")
    e("s_barrier")
    e("s_branch L_dft_l4")
    A.label("L_dft_l2")
    stage_wd(0, 3)
    e("s_waitcnt vmcnt(15)")
    e("s_barrier")
    e("s_branch L_dft_l5")
    A.label("L_dft_l4")
    e("s_barrier")
    stage_wd(0, 3)
    A.label("L_dft_l5")
    stage_wd(3, 4)
    fu_poll_issue()
    stage_done(z_ci_sub(CI_LATE if ECI else range(18)))
A.label("L_zpart")
zpart()
A.label("L_fin")
if STAMPS and "--dbg" not in sys.argv:
    stamp("issued_out")
    e("s_waitcnt vmcnt(0)")
    e("%s s[100:101]", "s_memtime" if "--cyc" in sys.argv else "s_memrealtime")
    e("s_waitcnt lgkmcnt(0)")
    for i in range(9):
        e("v_mov_b32 %s, %s", v(16 + i), s(84 + 2 * i))
    e("s_lshl_b32 s3, s2, 3")
    e("s_add_u32 s3, s3, %s", s(sW))
    e("s_lshl_b32 s3, s3, 6")
    e("s_add_u32 s3, s3, 0x%x", WS_STAMP)
    e("v_mov_b32 v5, 0")
    for i in range(3):
        e("buffer_store_dwordx4 %s, v5, %s, s3 offen offset:%d", v(16 + 4 * i, 4), s(sWS, 4), 16 * i)
if "--dbg" in sys.argv:
    e("s_load_dwordx2 s[4:5], s[0:1], 64")
    e("s_waitcnt vmcnt(0) lgkmcnt(0)")
    e("s_memrealtime s[100:101]")
    srd(A, 8, 4, 256)
    e("s_waitcnt lgkmcnt(0)")
    e("s_mov_b64 exec, 1")
    e("s_not_b32 s84, s84")
    e("s_cmp_ge_u32 s2, 192")
    e("s_cselect_b32 s3, 32, 0")
    for i in range(8):
        k = [0, 8, 1, 2, 3, 4, 5, 6][i]
        e("v_mov_b32 v16, %s", s(84 + 2 * k))
        e("v_mov_b32 v17, %d", 4 * i)
        e("buffer_atomic_umax v16, v17, s[8:11], s3 offen sc1")
A.label("L_end")
e("s_endpgm")
flush_cold()
A.label("L_code_end")

kernel_desc(A, KN, 256, accum=256)
TB.emit_tables(A)
out = [x for x in sys.argv[1:] if not x.startswith("--")]
open(out[0] if out else "v31.s", "w").write(A.text())
```

```python
import sys
from asmlib import *
import tables19 as TB
if "--cg=0" not in sys.argv:
    TB.drop_ci()

NAME = "parallel_sum__spectral_gfnet__glu_gated_reglu__prompt"
A = Asm()
e = A.e


def opt(name, default):
    for x in sys.argv:
        if x.startswith("--%s=" % name):
            return int(x.split("=")[1])
    return default


STAMPS = "--stamps" in sys.argv
SLEEP, PX = opt("sleep", 1), opt("px", 1)
ROTA, ROTB = opt("rota", 1), opt("rotb", 3)
CIP1 = opt("cip1", 0)
DROT = opt("drot", 0)
WSP = opt("wsp", 2)
PRL = opt("prl", 0)
WARM = opt("warm", 0)
FOLD = opt("fold", 1)
POLL1 = opt("poll1", 0)
CIL = opt("cil", 1)
STG = opt("stg", 1)
ZPR = opt("zpr", 3)
MPR = opt("mpr", 0)
CT = opt("ct", 3)
DS = opt("ds", 1)
PPT, PPG, OWN = opt("ppt", 0), opt("ppg", 2), opt("own", 1)
EPR, ZGL, EPI = opt("epr", 0), opt("zgl", 1), opt("epi", 1)
XT, WT = opt("xt", 2), opt("wt", 2)
WP = opt("wp", 1)
EPH, MPR = opt("eph", 1), opt("mpr", 0)
P3O, ZE = opt("p3o", 1), opt("ze", 0)
ZPN, ZPF = opt("zpn", 2), opt("zpf", 1)
CG = opt("cg", 1)
TL, SG, WTN = opt("tl", 1), opt("sg", 0), opt("wtn", 4)
XQ = opt("xq", 1)
TP = opt("tp", 3)
ZIL, ZSK, FIL = opt("zil", 1), opt("zsk", 1), opt("fil", 1)
MAP8, PF3, PFP = opt("map8", 0), opt("pf3", 2 if opt("cg", 1) else 3), opt("pfp", 1)
R3A, R3B, RZ = opt("r3a", 0), opt("r3b", 0), opt("rz", 0)
OUTF = ["", " sc1", " nt", " sc0 sc1"][opt("outf", 0)]
NFIX = opt("nfix", 0)

WS_EP = 0x0000
WS_FS = 0x1000
WS_FSC = WS_FS + 128 * 128
WS_FT = 0xC000
WS_FU = 0xE000
WS_FH = 0x10000
WS_FW = 0x50000
WS_STAT = 0x28000
WS_CSP = 0x30000
WS_H = 0x60000
WS_T = 0x660000
TSTR, USTR = 43008 + opt("tpad", 128), 86016 + opt("upad", 128)
WS_U = 0x910000
WS_WD = 0xBC0000
WS_STAMP = 0x2000000

SLAB = 49152
AUX = 3 * SLAB
ZU0, ZUS = 0, 16384
CP0, CPS = 65536, 20480
LGO = AUX + 2048
XB = CP0 + 10240
CBASE, CSTR = [0, 20480, CP0, CP0 + 5120, 45056], [5120, 5120, CPS, CPS, 5120]
FR_L, FI_L = AUX + 2048 + 128, AUX + 2048 + 128
MW0, MWA = 0, 22272
MT0 = 45056
RPK = FI_L
LDS_ALL = FI_L + 12288

sX, sG, sU, sWS, sTAB, sWR, sWI, sWD, sOUT = 8, 12, 16, 20, 24, 28, 32, 36, 40
sW, sRB, sCG, sLW = 44, 45, 46, 47
sTmp, sTmp2, sCnt, sDelta, sBuf, sSLAB = 48, 49, 50, 51, 52, 53
sAoff, sBoff, sM0 = 54, 55, 56
sWM, sWN, sFlag = 57, 58, 59
sK1, sJB, sTAG, sSpin = 60, 61, 62, 63
P = 64
sP, sG3, sHo, sWo, sUo, sCo, sLB, sLB2, sOo, sOc, sOOB = 64, 65, 66, 67, 68, 69, 70, 71, 72, 73, 74
sSgn, sS2, sNU, sWcol, sPar = 76, 78, 79, 80, 81
sWa, sWb, sWc, sMW = 6, 7, 75, 80
sTB = 55
sR3, sRZ, sI4 = 82, 83, 67
SRDS = {"X": (sX, P, 2048 * 1280), "WR": (sWR, P + 2, 2048 * 642), "WI": (sWI, P + 4, 2048 * 642),
        "G": (sG, P + 8, 640 * 3072), "U": (sU, P + 10, 640 * 3072), "WD": (sWD, P + 12, 1536 * 1280),
        "OUT": (sOUT, P + 14, 2048 * 1280), "WS": (sWS, P + 18, 1 << 28)}


class VQ:
    def __init__(self):
        self.q = []
    def issue(self, tag, n=1):
        self.q += [tag] * n
    def wait(self, *tags, extra=""):
        last = max([i for i, t in enumerate(self.q) if t in tags], default=-1)
        n = len(self.q) - 1 - last
        assert n <= 63, n
        e("s_waitcnt vmcnt(%d)%s", n, extra)
        self.q = self.q[last + 1:]
    def drain(self):
        self.q = []


STN = {}
for x in sys.argv:
    if x.startswith("--st="):
        for i_, grp in enumerate(x[5:].split(",")):
            for nm in grp.split("+"):
                STN[nm] = i_ + 1
STN["start"] = 0


def cap(fn):
    keep, A.lines = A.lines, []
    fn()
    out, A.lines = A.lines, keep
    return out


def weave(main, groups, skip=0):
    n = len(groups)
    step = (len(main) - skip) / (n + 0.001) if n else 0
    k = 0
    for i, ln in enumerate(main):
        while k < n and i >= skip + k * step:
            A.lines += groups[k]
            k += 1
        A.lines.append(ln)
    while k < n:
        A.lines += groups[k]
        k += 1


COLD = []


def rare(cond, fn):
    la, lb = A.newlabel("L_rare"), A.newlabel("L_back")
    e("%s %s", cond, la)
    A.label(lb)
    body = cap(fn)
    COLD.append(["%s:" % la] + body + ["    s_branch %s" % lb])


def flush_cold():
    while COLD:
        A.lines += COLD.pop(0)


def stamp(nm):
    if STAMPS and nm in STN:
        e("%s %s", "s_memtime" if "--cyc" in sys.argv else "s_memrealtime", s(84 + 2 * STN[nm], 2))


def make_tag():
    e("s_mul_i32 %s, %s, 0x9E3779B1", s(sTAG), s(sTAG))
    e("s_add_u32 %s, %s, 0x7F4A7C15", s(sTAG), s(sTAG))


def flag_store(soff, t0, t1):
    e("v_mov_b32 %s, %s", v(t0), s(sTAG))
    e("v_mov_b32 %s, 0", v(t1))
    e("s_mov_b64 exec, 1")
    e("buffer_store_dword %s, %s, %s, %s offen sc1", v(t0), v(t1), s(sWS, 4), s(soff))
    e("s_mov_b64 exec, -1")


def poll_issue(dst, n, vaddr, base):
    e("s_mov_b32 %s, 0x%x", s(sTmp), base)
    e("buffer_load_dword%s %s, %s, %s, %s offen sc1", "" if n == 1 else "x%d" % n, v(dst, n), v(vaddr), s(sWS, 4), s(sTmp))


def poll_check(dst, n, vaddr, base):
    assert n == 1

    def spin():
        top, done = A.newlabel("L_poll"), A.newlabel("L_polld")
        e("s_mov_b32 %s, 0", s(sSpin))
        A.label(top)
        if PX:
            e("s_mov_b64 exec, vcc")
        if SLEEP:
            e("s_sleep %d", SLEEP)
        poll_issue(dst, n, vaddr, base)
        e("s_add_u32 %s, %s, 1", s(sSpin), s(sSpin))
        e("s_cmp_ge_u32 %s, %d", s(sSpin), opt("spin", 40000))
        e("s_waitcnt vmcnt(0)")
        e("s_cbranch_scc1 %s", done)
        e("v_cmp_ne_u32 vcc, %s, %s", s(sTAG), v(dst))
        e("s_cbranch_vccnz %s", top)
        A.label(done)
        if PX:
            e("s_mov_b64 exec, -1")
    e("v_cmp_ne_u32 vcc, %s, %s", s(sTAG), v(dst))
    rare("s_cbranch_vccnz", spin)


def poll_check_pipe(dst, depth, vaddr, base, gap):
    def spin():
        top, done = A.newlabel("L_pp"), A.newlabel("L_ppd")
        e("s_mov_b32 %s, 0", s(sSpin))
        for k in range(1, depth):
            poll_issue(dst + k, 1, vaddr, base)
            e("s_sleep %d", gap)
        A.label(top)
        for k in range(depth):
            poll_issue(dst + k, 1, vaddr, base)
            e("s_waitcnt vmcnt(%d)", depth - 1)
            e("v_cmp_ne_u32 vcc, %s, %s", s(sTAG), v(dst + (k + 1) % depth))
            e("s_cbranch_vccz %s", done)
            e("s_sleep %d", gap)
        e("s_add_u32 %s, %s, 1", s(sSpin), s(sSpin))
        e("s_cmp_lt_u32 %s, %d", s(sSpin), opt("spin", 40000))
        e("s_cbranch_scc1 %s", top)
        A.label(done)
    e("v_cmp_ne_u32 vcc, %s, %s", s(sTAG), v(dst))
    rare("s_cbranch_vccnz", spin)


def karg_wait(first, rest=()):
    e("s_waitcnt lgkmcnt(0)")
    for k in first:
        srd(A, *SRDS[k])
    e("s_load_dword %s, %s, 0x%x", s(sTAG), s(P + 18, 2), WS_EP)
    for k in rest:
        srd(A, *SRDS[k])


def tab_srd():
    e("s_getpc_b64 s[4:5]")
    e("s_add_u32 s4, s4, dft_tables@rel32@lo+4")
    e("s_addc_u32 s5, s5, dft_tables@rel32@hi+12")
    srd(A, sTAB, 4, TB.TAB_BYTES)


def dpp_sum16(r_):
    for ctl in ("quad_perm:[1,0,3,2]", "quad_perm:[2,3,0,1]", "row_half_mirror", "row_mirror"):
        e("s_nop 1")
        e("v_add_f32_dpp %s, %s, %s %s row_mask:0xf bank_mask:0xf", v(r_), v(r_), v(r_), ctl)


def round_bf16(r_):
    e("v_cvt_pk_bf16_f32 %s, %s, %s", v(r_), v(r_), v(r_))
    e("v_and_b32 %s, 0xffff0000, %s", v(r_), v(r_))


def mm16(d, a_, b_, first=False):
    e("v_mfma_f32_16x16x32_bf16 %s, %s, %s, %s", v(d, 4), v(a_, 4), v(b_, 4), "0" if first else v(d, 4))


def stats_addr(R):
    e("s_lshl_b32 %s, %s, 2", s(sTmp), s(sCG))
    e("s_add_u32 %s, %s, %s", s(sTmp), s(sTmp), s(sW))
    e("s_lshl_b32 %s, %s, 2", s(sTmp), s(sTmp))
    e("v_lshrrev_b32 %s, 4, v0", v(R + 20))
    e("v_add_u32 %s, %s, %s", v(R + 21), s(sTmp), v(R + 20))
    e("v_and_b32 %s, 31, %s", v(R + 20), v(R + 21))
    e("v_lshlrev_b32 %s, 6, %s", v(R + 20), v(R + 20))
    e("v_lshrrev_b32 %s, 5, %s", v(R + 22), v(R + 21))
    e("v_add_u32 %s, %s, %s", v(R + 20), v(R + 20), v(R + 22))
    e("s_lshl_b32 %s, %s, 2", s(sTmp), s(sRB))
    e("v_add_u32 %s, %s, %s", v(R + 20), s(sTmp), v(R + 20))
    e("v_mul_u32_u24 %s, 1280, %s", v(R + 20), v(R + 20))
    e("v_and_b32 %s, 15, v0", v(R + 22))
    e("v_lshl_add_u32 %s, %s, 4, %s", v(R + 20), v(R + 22), v(R + 20))


def stats_issue(R):
    for n in range(5):
        e("buffer_load_dwordx4 %s, %s, %s, 0 offen offset:%d", v(R + 4 * n, 4), v(R + 20), s(sX, 4), n * 256)


def stats_compute(R):
    F = R + 24
    S_, V_, T_ = R + 64, R + 66, R + 22
    for n in range(20):
        e("v_lshlrev_b32 %s, 16, %s", v(F + 2 * n), v(R + n))
        e("v_and_b32 %s, 0xffff0000, %s", v(F + 2 * n + 1), v(R + n))
    e("v_pk_add_f32 %s, %s, %s", v(S_, 2), v(F, 2), v(F + 2, 2))
    for n in range(2, 20):
        e("v_pk_add_f32 %s, %s, %s", v(S_, 2), v(S_, 2), v(F + 2 * n, 2))
    e("v_add_f32 %s, %s, %s", v(S_), v(S_), v(S_ + 1))
    dpp_sum16(S_)
    e("v_mul_f32 %s, 0x3acccccd, %s", v(S_), v(S_))
    for n in range(20):
        e("v_pk_add_f32 %s, %s, %s op_sel_hi:[1,0] neg_lo:[0,1] neg_hi:[0,1]", v(F + 2 * n, 2), v(F + 2 * n, 2), v(S_, 2))
    e("v_pk_mul_f32 %s, %s, %s", v(V_, 2), v(F, 2), v(F, 2))
    for n in range(1, 20):
        e("v_pk_fma_f32 %s, %s, %s, %s", v(V_, 2), v(F + 2 * n, 2), v(F + 2 * n, 2), v(V_, 2))
    e("v_add_f32 %s, %s, %s", v(V_), v(V_), v(V_ + 1))
    dpp_sum16(V_)
    e("v_mul_f32 %s, 0x3acccccd, %s", v(V_), v(V_))
    round_bf16(V_)
    e("v_add_f32 %s, 0x3727c5ac, %s", v(V_), v(V_))
    round_bf16(V_)
    e("v_sqrt_f32 %s, %s", v(V_), v(V_))
    e("s_nop 0")
    round_bf16(V_)
    e("v_rcp_f32 %s, %s", v(V_), v(V_))
    round_bf16(S_)
    e("v_and_b32 %s, 15, v0", v(T_))
    e("v_cmp_eq_u32 vcc, 1, %s", v(T_))
    e("v_lshlrev_b32 %s, 2, %s", v(R + 1), v(R + 21))
    e("v_lshl_add_u32 %s, %s, 9, %s", v(R + 1), v(T_), v(R + 1))
    e("v_cndmask_b32 %s, %s, %s, vcc", v(V_), v(V_), v(S_))
    e("v_cmp_gt_u32 vcc, 2, %s", v(T_))
    e("s_lshl_b32 %s, %s, 10", s(sTmp), s(sRB))
    e("s_add_u32 %s, %s, 0x%x", s(sTmp), s(sTmp), WS_STAT)
    e("s_and_saveexec_b64 s[4:5], vcc")
    e("buffer_store_dword %s, %s, %s, %s offen sc1", v(V_), v(R + 1), s(sWS, 4), s(sTmp))
    e("s_mov_b64 exec, s[4:5]")


def aux_poll_addr(ffn, dst):
    e("s_lshl_b32 %s, %s, 2", s(sTmp), s(sRB))
    e("s_add_u32 %s, %s, %s", s(sTmp), s(sTmp), s(sLW))
    e("s_lshl_b32 %s, %s, 1", s(sTmp), s(sTmp))
    e("v_and_b32 v6, 1, v0")
    e("v_add_u32 v6, %s, v6", s(sTmp))
    if ffn:
        e("s_and_b32 %s, s2, 0xc6", s(sTmp))
        e("s_add_u32 %s, %s, 128", s(sTmp), s(sTmp))
        e("v_and_b32 v7, 7, v0")
        e("v_bfe_u32 v12, v0, 3, 1")
        e("v_min_u32 v7, 4, v7")
        e("v_lshlrev_b32 v7, 3, v7")
        e("v_add3_u32 v7, v7, v12, %s", s(sTmp))
        e("v_cmp_gt_u32 vcc, 16, v0")
        e("s_nop 1")
        e("v_cndmask_b32 v6, v7, v6, vcc")
    e("v_lshlrev_b32 %s, 7, v6", v(dst))


def fw_poll_addr(dst):
    e("s_lshl_b32 %s, %s, 6", s(sTmp), s(sLW))
    e("v_add_u32 %s, %s, v0", v(dst), s(sTmp))
    e("v_min_u32 %s, 159, %s", v(dst), v(dst))
    e("v_lshlrev_b32 %s, 7, %s", v(dst), v(dst))


def aux_addr(ffn, R):
    e("v_and_b32 %s, 31, v0", v(R))
    e("v_lshrrev_b32 %s, 5, v0", v(R + 1))
    e("v_lshlrev_b32 %s, 2, %s", v(R), v(R))
    e("v_lshl_add_u32 %s, %s, 9, %s", v(R), v(R + 1), v(R))
    e("s_lshl_b32 %s, %s, 7", s(sTmp), s(sLW))
    e("v_add_u32 %s, %s, %s", v(R), s(sTmp), v(R))
    if ffn:
        e("v_lshrrev_b32 %s, 4, v0", v(R + 1))
        e("v_mul_u32_u24 %s, 12288, %s", v(R + 1), v(R + 1))
        e("v_and_b32 %s, 15, v0", v(R + 3))
        e("v_lshl_add_u32 %s, %s, 4, %s", v(R + 1), v(R + 3), v(R + 1))
        e("s_lshl_b32 %s, %s, 8", s(sTmp), s(sLW))
        e("s_lshl_b32 %s, %s, 10", s(sTmp2), s(sCG))
        e("s_add_u32 %s, %s, %s", s(sTmp), s(sTmp), s(sTmp2))
        e("v_add_u32 %s, %s, %s", v(R + 1), s(sTmp), v(R + 1))
        e("v_lshrrev_b32 %s, 5, v0", v(R + 16))
        e("v_lshl_add_u32 %s, %s, 29, %s", v(R + 16), v(R + 16), v(R + 1))


def aux_issue(ffn, R):
    e("s_lshl_b32 %s, %s, 10", s(sTmp), s(sRB))
    e("s_add_u32 %s, %s, 0x%x", s(sTmp), s(sTmp), WS_STAT)
    e("buffer_load_dword %s, %s, %s, %s offen sc1", v(R + 2), v(R), s(sWS, 4), s(sTmp))
    if ffn:
        for n in range(3):
            e("s_mov_b32 %s, 0x%x", s(sTmp), WS_CSP + n * 4 * 12288)
            e("buffer_load_dwordx4 %s, %s, %s, %s offen sc1", v(R + 4 + 4 * n, 4), v(R + 16 if n == 2 else R + 1), s(sWS, 4), s(sTmp))


def aux_finish(ffn, R):
    e("v_add_u32 %s, %d, %s", v(R), AUX, v(R))
    if CG and not ffn:
        e("s_mov_b32 exec_hi, 0")
        e("v_mul_f32 %s, 0x35cccccd, %s", v(R + 2), v(R + 2))
        e("s_mov_b32 exec_hi, -1")
    e("ds_write_b32 %s, %s", v(R), v(R + 2))
    if ffn:
        C_, T_ = R + 4, R + 8
        for n in range(1, 3):
            for k in (0, 2):
                e("v_pk_add_f32 %s, %s, %s", v(C_ + k, 2), v(C_ + k, 2), v(C_ + 4 * n + k, 2))
        for op in ("v_permlane16_swap_b32", "v_permlane32_swap_b32"):
            for i in range(4):
                e("v_mov_b32 %s, %s", v(T_ + i), v(C_ + i))
            e("s_nop 0")
            for i in range(4):
                e("%s %s, %s", op, v(C_ + i), v(T_ + i))
            e("s_nop 0")
            for i in range(4):
                e("v_add_f32 %s, %s, %s", v(C_ + i), v(C_ + i), v(T_ + i))
        e("s_lshl_b32 %s, %s, 8", s(sTmp), s(sLW))
        e("s_add_u32 %s, %s, %d", s(sTmp), s(sTmp), AUX + 1024)
        e("v_lshl_add_u32 %s, %s, 4, %s", v(R + 1), v(R + 3), s(sTmp))
        e("ds_write_b128 %s, %s", v(R + 1), v(C_, 4))
    e("s_waitcnt lgkmcnt(0)")


def p3_map():
    if MAP8:
        e("s_and_b32 %s, s2, 7", s(sP))
        e("s_lshl_b32 %s, %s, 2", s(sP), s(sP))
        e("s_bfe_u32 s3, s2, 0x20003")
        e("s_add_u32 %s, %s, s3", s(sP), s(sP))
        e("s_lshr_b32 %s, s2, 5", s(sG3))
        return
    e("s_and_b32 s3, s2, 7")
    e("s_lshr_b32 %s, s2, 3", s(sTmp))
    e("s_lshr_b32 %s, s3, 1", s(sP))
    e("s_lshl_b32 %s, %s, 3", s(sP), s(sP))
    e("s_and_b32 %s, %s, 7", s(sTmp2), s(sTmp))
    e("s_add_u32 %s, %s, %s", s(sP), s(sP), s(sTmp2))
    e("s_and_b32 s3, s3, 1")
    e("s_lshl_b32 s3, s3, 2")
    e("s_lshr_b32 %s, %s, 3", s(sTmp), s(sTmp))
    e("s_add_u32 %s, s3, %s", s(sG3), s(sTmp))


ZG, ZC, ZAB = [160, 224], 64, [136, 192, 208]


def ZAr(c3, rt): return ZAB[c3] + 4 * rt


def z_setup():
    p3_map()
    e("s_mul_i32 %s, %s, %d", s(sLB), s(sLW), ZUS)
    e("s_lshl_b32 %s, %s, 7", s(sUo), s(sP))
    e("s_lshl_b32 %s, %s, 12", s(sTmp), s(sLW))
    e("s_add_u32 %s, %s, %s", s(sUo), s(sUo), s(sTmp))
    e("s_add_u32 %s, %s, 0x%x", s(sUo), s(sUo), WS_U)
    e("s_mul_i32 %s, %s, 21", s(sCo), s(sG3))
    e("s_add_u32 %s, %s, %s", s(sCo), s(sCo), s(sLW))
    e("s_mul_i32 %s, %s, 3072", s(sCo), s(sCo))
    e("s_add_u32 %s, %s, %d", s(sCo), s(sCo), TB.CI_OFF)
    e("s_lshl_b32 %s, %s, 1", s(sS2), s(sP))


def wd_bases(wreg):
    e("s_lshr_b32 %s, %s, 1", s(sOc), s(sG3))
    e("s_and_b32 %s, %s, 1", s(sTmp), s(sG3))
    e("s_mul_i32 %s, %s, 20", s(sTmp), s(sTmp))
    e("s_add_u32 %s, %s, %s", s(sOc), s(sOc), s(sTmp))
    e("s_add_u32 %s, %s, 16", s(sOc), s(sOc))
    e("s_lshl_b32 %s, %s, 5", s(sOc), s(sOc))
    e("s_lshl_b32 %s, %s, 10", s(sTmp), s(wreg))
    e("s_add_u32 %s, %s, 0x%x", s(sTmp), s(sTmp), WS_WD)
    e("s_mul_i32 %s, %s, %d", s(sWa), s(sG3), 2 * 49152)
    e("s_add_u32 %s, %s, %s", s(sWa), s(sWa), s(sTmp))
    e("s_mul_i32 %s, %s, %d", s(sWc), s(sOc), 49152 // 32)
    e("s_add_u32 %s, %s, %s", s(sWc), s(sWc), s(sTmp))


def rot3():
    e("s_and_b32 %s, %s, 3", s(sR3), s(sG3))
    e("s_mul_i32 %s, %s, %d", s(sR3), s(sR3), R3A)
    e("s_and_b32 %s, %s, 7", s(sTmp), s(sP))
    e("s_mul_i32 %s, %s, %d", s(sTmp), s(sTmp), R3B)
    e("s_add_u32 %s, %s, %s", s(sR3), s(sR3), s(sTmp))
    for _ in range((3 * R3A + 7 * R3B) // 12):
        e("s_cmp_ge_u32 %s, 12", s(sR3))
        e("s_cselect_b32 %s, 12, 0", s(sTmp))
        e("s_sub_u32 %s, %s, %s", s(sR3), s(sR3), s(sTmp))


def item4(i, dst):
    e("s_add_u32 %s, %s, %d", s(dst), s(sR3), i)
    e("s_cmp_ge_u32 %s, 12", s(dst))
    e("s_cselect_b32 %s, 12, 0", s(sTmp))
    e("s_sub_u32 %s, %s, %s", s(dst), s(dst), s(sTmp))
    e("s_lshl_b32 %s, %s, 12", s(dst), s(dst))


WOFF = [(0, 0), (0, 49152), (0, 20 * 49152), (0, 21 * 49152), (1, 0)]


def stage_all():
    rot3()
    for i in range(3):
        item4(i, sI4)
        for w in range(4):
            e("s_add_u32 %s, %s, %d", s(sCnt), s(sI4), ((w - 3) * 1024) & 0xffffffff)
            e("s_add_u32 %s, %s, %s", s(sTmp2), s(sCnt), s(sWa))
            for ct in range(5):
                e("s_mov_b32 m0, %d", CP0 + w * CPS + i * 5120 + ct * 1024)
                if ct < 4:
                    e("s_add_u32 %s, %s, %d", s(sTmp), s(sTmp2), WOFF[ct][1])
                else:
                    e("s_add_u32 %s, %s, %s", s(sTmp), s(sCnt), s(sWc))
                e("buffer_load_dwordx4 v5, %s, %s offen sc1 lds", s(sWS, 4), s(sTmp))


def stage_wd(i0, i1):
    e("s_mul_i32 %s, %s, %d", s(sSLAB), s(sLW), CPS)
    rot3()
    for i in range(i0, i1):
        item4(i, sI4)
        e("s_add_u32 %s, %s, %s", s(sTmp2), s(sI4), s(sWa))
        for ct in range(5):
            e("s_add_u32 m0, %s, %d", s(sSLAB), CP0 + i * 5120 + ct * 1024)
            if ct < 4:
                e("s_add_u32 %s, %s, %d", s(sTmp), s(sTmp2), WOFF[ct][1])
            else:
                e("s_add_u32 %s, %s, %s", s(sTmp), s(sI4), s(sWc))
            e("buffer_load_dwordx4 v5, %s, %s offen sc1 lds", s(sWS, 4), s(sTmp))


def z_ci_sub(idx):
    n = 0
    for z in range(6):
        c = [c3 for c3 in range(3) if z * 3 + c3 in idx]
        lab = A.newlabel("L_noc5")
        if c and z == 5 and ZSK:
            e("s_cmp_lg_u32 %s, 0", s(sLW))
            e("s_cbranch_scc1 %s", lab)
        else:
            n += len(c)
        if c:
            z_item(z, 4 * 3072, sCo, sRZ)
        for c3 in c:
            e("buffer_load_dwordx4 %s, v5, %s, %s offen offset:%d", v(ZC + z * 12 + c3 * 4, 4), s(sTAB, 4), s(sRZ), c3 * 1024)
        A.label(lab)
    return n


def ci_setup():
    e("s_lshr_b32 %s, %s, 1", s(sRZ), s(sLW))
    e("s_lshl_b32 %s, %s, 5", s(sRZ), s(sRZ))
    e("s_and_b32 %s, %s, 1", s(sI4), s(sLW))
    e("s_add_u32 %s, %s, %s", s(sRZ), s(sRZ), s(sI4))
    e("v_lshrrev_b32 v146, 4, v0")
    e("v_lshl_add_u32 v147, v146, 3, %s", s(sRZ))
    e("v_cmp_eq_u32 vcc, 0, v147")
    e("v_cvt_f32_u32 v147, v147")
    e("v_cndmask_b32 v145, 1.0, 0.5, vcc")
    e("s_lshr_b32 %s, %s, 1", s(sRZ), s(sG3))
    e("s_and_b32 %s, %s, 1", s(sI4), s(sG3))
    e("s_mul_i32 %s, %s, 20", s(sI4), s(sI4))
    e("s_add_u32 %s, %s, %s", s(sRZ), s(sRZ), s(sI4))
    e("s_add_u32 %s, %s, 16", s(sRZ), s(sRZ))
    e("s_lshl_b32 %s, %s, 4", s(sRZ), s(sRZ))
    e("s_lshl_b32 %s, %s, 5", s(sI4), s(sG3))
    e("v_and_b32 v146, 15, v0")
    for c3 in range(3):
        e("v_add_u32 v148, %s, v146", s(sRZ if c3 == 2 else sI4))
        if c3 == 1:
            e("v_add_u32 v148, 16, v148")
        e("v_cvt_f32_u32 v148, v148")
        e("v_mul_f32 v149, v147, v148")
        e("v_mul_f32 v149, 0x3acccccd, v149")
        e("v_fract_f32 %s, v149", v(136 + c3))
        e("v_mul_f32 v149, 0x3dcccccd, v148")
        e("v_fract_f32 %s, v149", v(139 + c3))
        e("v_mul_f32 %s, 0x3b4ccccd, v148", v(142 + c3))


def ci_gen(idx):
    for n in idx:
        z, c3 = n // 3, n % 3
        o = ZC + z * 12 + c3 * 4
        if z == 5:
            e("v_and_b32 v146, 1, v0")
            e("v_lshlrev_b32 v146, 15, v146")
            e("v_or_b32 v146, 0x3f00, v146")
            e("v_cmp_gt_u32 vcc, 16, v0")
            e("v_cndmask_b32 %s, 0, v146, vcc", v(o))
            for k in range(1, 4):
                e("v_mov_b32 %s, 0", v(o + k))
            continue
        if z == 0:
            e("v_mov_b32 v146, %s", v(136 + c3))
        elif z == 3:
            e("v_fma_f32 v146, 4.0, %s, %s", v(139 + c3), v(136 + c3))
            e("v_sub_f32 v146, v146, %s", v(139 + c3))
        else:
            e("v_fma_f32 v146, %s, %s, %s", "%d.0" % z, v(139 + c3), v(136 + c3))
        for ii in range(4):
            e("v_cos_f32 %s, v146", v(148 + ii))
            e("v_sin_f32_e64 %s, -v146", v(152 + ii))
            if ii < 3:
                e("v_add_f32 v146, v146, %s", v(142 + c3))
        if z == 0:
            e("v_mul_f32 v148, v145, v148")
        for k in range(4):
            e("v_cvt_pk_bf16_f32 %s, %s, %s", v(o + k), v(148 + 2 * k), v(149 + 2 * k))


def z_ci_all():
    return z_ci_sub(range(18))


def stage_done(n):
    e("s_lshl_b32 %s, %s, 2", s(sTmp), s(sLW))
    e("s_add_u32 %s, %s, %d", s(sTmp), s(sTmp), LGO + 16)
    e("v_mov_b32 v12, %s", s(sTmp))
    e("v_mov_b32 v13, 1")
    e("s_waitcnt vmcnt(%d)", n)
    e("ds_write_b32 v12, v13")


def z_item(z, mul, base, dst):
    e("s_and_b32 %s, %s, 3", s(dst), s(sG3))
    e("s_mul_i32 %s, %s, %d", s(dst), s(dst), RZ)
    e("s_add_u32 %s, %s, %d", s(dst), s(dst), z)
    e("s_cmp_ge_u32 %s, 6", s(dst))
    e("s_cselect_b32 %s, 6, 0", s(sTmp))
    e("s_sub_u32 %s, %s, %s", s(dst), s(dst), s(sTmp))
    e("s_lshl_b32 %s, %s, 2", s(sTmp), s(dst))
    e("s_add_u32 %s, %s, %s", s(sTmp), s(sTmp), s(sLW))
    e("s_cmp_gt_u32 %s, 20", s(sTmp))
    e("s_cselect_b32 %s, 0x20000000, %s", s(sTmp), s(base))
    e("s_mul_i32 %s, %s, %d", s(dst), s(dst), mul)
    e("s_add_u32 %s, %s, %s", s(dst), s(dst), s(sTmp))


def z_ci_loads(z, vL):
    z_item(z, 4 * 3072, sCo, sRZ)
    for c3 in range(3):
        e("buffer_load_dwordx4 %s, %s, %s, %s offen offset:%d", v(ZC + z * 12 + c3 * 4, 4), v(vL), s(sTAB, 4), s(sRZ), c3 * 1024)


def ZGr(u, ro, nh, kap): return ZG[u] + ((ro * 2 + nh) * 2 + kap) * 4


def z_gconst():
    e("v_and_b32 v56, 15, v0")
    e("v_lshlrev_b32 v56, 6, v56")
    e("v_add_u32 v56, %s, v56", s(sS2))
    e("v_cvt_f32_u32 v56, v56")
    e("v_mul_f32 v56, 0x3a000000, v56")
    e("v_lshrrev_b32 v57, 5, v0")
    e("v_lshlrev_b32 v57, 3, v57")
    e("v_cvt_f32_u32 v57, v57")
    e("v_bfe_u32 v58, v0, 4, 1")
    e("v_cvt_f32_u32 v58, v58")
    e("v_mul_f32 v58, 0x3e800000, v58")
    for u in range(2):
        if u:
            e("v_add_f32 v56, 0x3a000000, v56")
        for kap in range(2):
            if kap:
                e("v_add_f32 v59, 0x41800000, v57")
                e("v_fma_f32 v59, v59, v56, v58")
            else:
                e("v_fma_f32 v59, v57, v56, v58")
            for ro in range(2):
                if ro:
                    e("v_add_f32 v60, 0xbe800000, v59")
                else:
                    e("v_mov_b32 v60, v59")
                for i2 in range(4):
                    e("v_cos_f32 v61, v60")
                    e("v_add_f32 v60, v60, v56")
                    e("v_cos_f32 v62, v60")
                    e("v_add_f32 v60, v60, v56")
                    b = ZGr(u, ro, 0, kap) + i2
                    e("v_cvt_pk_bf16_f32 %s, v61, v62", v(b))
                    e("v_xor_b32 %s, 0x80000000, %s", v(b + 8), v(b))


def fu_poll_issue():
    e("v_lshlrev_b32 v11, 7, v0")
    lab0 = A.newlabel("L_nofup")
    e("s_cmp_lg_u32 %s, 0", s(sLW))
    e("s_cbranch_scc1 %s", lab0)
    poll_issue(16, 1, 11, WS_FU)
    A.label(lab0)


def zpart():
    vL, vUG, vTU, vTU1, vPU = 5, 6, 7, 8, 11
    UF, ZT = 16, 32
    e("v_lshlrev_b32 %s, 4, v0", v(vL))
    e("v_lshrrev_b32 v12, 3, v0")
    e("v_mul_u32_u24 v12, %d, v12", USTR)
    e("v_lshrrev_b32 v13, 2, v0")
    e("v_lshrrev_b32 v14, 4, v0")
    e("v_xor_b32 v13, v13, v14")
    e("v_and_b32 v13, 1, v13")
    e("v_lshl_add_u32 v12, v13, 6, v12")
    e("v_and_b32 v13, 3, v0")
    e("v_lshl_add_u32 %s, v13, 4, v12", v(vUG))
    e("v_lshrrev_b32 v12, 5, v0")
    e("v_lshlrev_b32 v12, 3, v12")
    e("v_bfe_u32 v14, v0, 2, 2")
    e("v_add_u32 v12, v12, v14")
    e("v_lshlrev_b32 v12, 7, v12")
    e("v_lshl_add_u32 v12, v13, 4, v12")
    e("v_bfe_u32 v14, v0, 4, 1")
    e("v_lshl_add_u32 v12, v14, 3, v12")
    e("v_bfe_u32 v14, v0, 3, 1")
    e("v_lshl_add_u32 v12, v14, 6, v12")
    e("v_add_u32 %s, %s, v12", v(vTU), s(sLB))
    e("v_xor_b32 %s, 64, %s", v(vTU1), v(vTU))
    e("v_mov_b32 v12, %d", LGO)
    lab1, lab2 = A.newlabel("L_lgo"), A.newlabel("L_lgod")
    e("s_cmp_lg_u32 %s, 0", s(sLW))
    e("s_cbranch_scc1 %s", lab1)
    e("s_waitcnt vmcnt(0)")
    poll_check(UF, 1, vPU, WS_FU)
    e("v_mov_b32 v13, 1")
    e("ds_write_b32 v12, v13")
    e("s_branch %s", lab2)
    A.label(lab1)
    e("s_sleep 1")
    e("ds_read_b32 v13, v12")
    e("s_waitcnt lgkmcnt(0)")
    e("v_cmp_ne_u32 vcc, 1, v13")
    e("s_cbranch_vccnz %s", lab1)
    A.label(lab2)
    stamp("zU")
    if ZPR and ZPF:
        e("s_setprio %d", ZPR)
    q = VQ()

    def udma(z):
        z_item(z, 4 * 4096, sUo, sRZ)
        for n in range(4):
            e("s_add_u32 m0, %s, %d", s(sLB), (z % 4) * 4096 + n * 1024)
            e("s_add_u32 %s, %s, %d", s(sTmp2), s(sRZ), n * 8 * USTR)
            e("buffer_load_dwordx4 %s, %s, %s offen sc1 lds", v(vUG), s(sWS, 4), s(sTmp2))
        q.issue("u%d" % z, 4)
    for z in range(4):
        udma(z)
    def ureads(z):
        q.wait("u%d" % z)
        stamp("z%d" % z)
        for u in range(2):
            for kap in range(2):
                for rd in range(2):
                    e("ds_read_b64_tr_b16 %s, %s offset:%d", v(UF + 8 * u + 4 * kap + 2 * rd, 2), v(vTU1 if u else vTU), (z % 4) * 4096 + kap * 2048 + rd * 512)
    ureads(0)
    skip5 = A.newlabel("L_noz5")

    def cv(rt):
        b = ZT + rt * 8
        return [cap(lambda k=k: e("v_cvt_pk_bf16_f32 %s, %s, %s", v(b + k), v(b + 2 * k), v(b + 2 * k + 1))) for k in range(4)]

    def s1(u):
        return [cap(lambda kap=kap, nh=nh, ro=ro: mm16(ZT + u * 16 + (nh * 2 + ro) * 4, UF + 8 * u + 4 * kap, ZGr(u, ro, nh, kap), kap == 0))
                for kap in range(2) for nh in range(2) for ro in range(2)]

    def s2(z, rt):
        return [cap(lambda c3=c3: mm16(ZAr(c3, rt), ZC + z * 12 + c3 * 4, ZT + rt * 8, z == 0)) for c3 in range(3)]

    def put(gs):
        for g in gs:
            A.lines += g
    for z in range(6):
        if z == ZPN:
            e("s_setprio %d", 0 if ZPF else 3)
        if z == 5 and ZSK:
            e("s_cmp_lg_u32 %s, 0", s(sLW))
            e("s_cbranch_scc1 %s", skip5)
        e("s_waitcnt lgkmcnt(4)")
        put(s1(0))
        e("s_waitcnt lgkmcnt(0)")
        m1 = s1(1)
        if not ZIL:
            put(m1)
        else:
            c0, c1 = cv(0), cv(1)
            put(m1[:5] + c0[:2] + m1[5:6] + c0[2:] + m1[6:7] + c1[:2] + m1[7:] + c1[2:])
        if z + 4 < 6:
            if z == 1 and ZSK:
                lab = A.newlabel("L_nou5")
                e("s_cmp_lg_u32 %s, 0", s(sLW))
                e("s_cbranch_scc1 %s", lab)
                udma(5)
                A.label(lab)
                q.q = q.q[:-4]
            else:
                udma(z + 4)
        if z + 1 < 6:
            if z == 4 and ZSK:
                lab = A.newlabel("L_nor5")
                e("s_cmp_lg_u32 %s, 0", s(sLW))
                e("s_cbranch_scc1 %s", lab)
                q.issue("u5", 4)
                ureads(5)
                A.label(lab)
            else:
                ureads(z + 1)
        if not ZIL:
            put(cv(0) + cv(1) + cv(2) + cv(3))
            e("s_nop 0")
            put(s2(z, 0) + s2(z, 1) + s2(z, 2) + s2(z, 3))
        else:
            if z == 5:
                e("s_nop 1")
            a0, a1, c2, c3_ = s2(z, 0), s2(z, 1), cv(2), cv(3)
            put(a0[:2] + c2[:2] + a0[2:] + c2[2:] + a1[:1] + c3_[:2] + a1[1:2] + c3_[2:] + a1[2:])
            e("s_nop 0")
            put(s2(z, 2) + s2(z, 3))
    A.label(skip5)
    e("v_add_u32 v12, %s, %s", s(sLB), v(vL))
    for rt in range(4):
        for c3 in range(3):
            if rt == 3 and c3 == 0:
                e("s_nop 1")
            e("ds_write_b128 v12, %s offset:%d", v(ZAr(c3, rt), 4), c3 * 4096 + rt * 1024)
    e("v_mov_b32 v12, %d", LGO)
    e("v_mov_b32 v13, 1")
    e("s_waitcnt lgkmcnt(0)")
    if ZE:
        e("s_mov_b64 exec, 1")
        e("ds_add_u32 v12, v13 offset:36")
        e("s_mov_b64 exec, -1")
        e("s_waitcnt lgkmcnt(0)")
    stamp("zend")
    e("s_barrier")


vA0, vA1, vB0, vB1 = 2, 3, 4, 1


def lgo_init():
    e("v_mov_b32 v12, %d", LGO)
    e("v_mov_b32 v13, 0")
    e("ds_write_b32 v12, v13")
    e("ds_write_b32 v12, v13 offset:4")
    e("ds_write_b32 v12, v13 offset:8")
    e("ds_write_b32 v12, v13 offset:12")
    e("ds_write_b32 v12, v13 offset:36")
    for i in range(4):
        e("ds_write_b32 v12, v13 offset:%d", 16 + 4 * i)


def k_offset(dst):
    e("s_and_b32 %s, s2, 1", s(dst))
    e("s_mul_i32 %s, %s, 5", s(dst), s(dst))
    e("s_bfe_u32 %s, s2, 0x10003", s(sTmp))
    e("s_mul_i32 %s, %s, 3", s(sTmp), s(sTmp))
    e("s_add_u32 %s, %s, %s", s(dst), s(dst), s(sTmp))
    if KG:
        e("s_lshr_b32 %s, s2, 6", s(sTmp))
        e("s_lshl_b32 %s, %s, 2", s(sTmp), s(sTmp))
        e("s_lshr_b32 %s, 0x%x, %s", s(sTmp), KG, s(sTmp))
        e("s_and_b32 %s, %s, 15", s(sTmp), s(sTmp))
        e("s_add_u32 %s, %s, %s", s(dst), s(dst), s(sTmp))
        mod10(dst)


KG = int(str(opt("kg", 0)), 16)


def mod10(dst):
    e("s_cmp_ge_u32 %s, 10", s(dst))
    e("s_cselect_b32 %s, 10, 0", s(sTmp))
    e("s_sub_u32 %s, %s, %s", s(dst), s(dst), s(sTmp))


def x_src_scalar():
    e("s_lshl_b32 %s, %s, 2", s(sAoff), s(sRB))
    e("s_add_u32 %s, %s, %s", s(sAoff), s(sAoff), s(sLW))
    e("s_mul_i32 %s, %s, 1280", s(sAoff), s(sAoff))


def ffn_loader():
    if PRL & 2:
        e("s_setprio 2")
    e("v_lshrrev_b32 v6, 3, v0")
    e("v_mul_u32_u24 v6, 81920, v6")
    e("v_and_b32 v7, 7, v0")
    e("v_lshrrev_b32 v8, 4, v0")
    e("v_xor_b32 v7, v7, v8")
    e("v_lshl_add_u32 %s, v7, 4, v6", v(vA0))
    e("v_xor_b32 %s, 64, %s", v(vA1), v(vA0))
    e("v_mul_u32_u24 v6, 3072, v8")
    e("v_and_b32 v7, 15, v0")
    e("v_lshlrev_b32 v8, 2, v8")
    e("v_xor_b32 v7, v7, v8")
    e("v_lshl_add_u32 %s, v7, 4, v6", v(vB0))
    e("v_xor_b32 %s, 32, %s", v(vB1), v(vB0))
    x_src_scalar()
    e("s_mul_i32 %s, %s, %d", s(sBoff), s(sLW), 16 * 3072)
    e("s_lshl_b32 %s, %s, 8", s(sTmp), s(sCG))
    e("s_add_u32 %s, %s, %s", s(sBoff), s(sBoff), s(sTmp))
    e("s_lshl_b32 %s, %s, 12", s(sM0), s(sLW))
    k_offset(sJB)
    XR_ = opt("xrot", 0)
    if XR_:
        e("s_bfe_u32 %s, s2, 0x20003", s(sJB))
        e("s_mul_i32 %s, %s, 5", s(sJB), s(sJB))
        e("s_add_u32 %s, %s, 1", s(sJB), s(sJB))
        e("s_lshr_b32 %s, %s, 1", s(sJB), s(sJB))
        if XR_ & 4:
            e("s_mov_b32 %s, 0", s(sJB))
        e("s_lshr_b32 %s, s2, 6", s(sTmp))
        e("s_mul_i32 %s, %s, %d", s(sTmp), s(sTmp), (XR_ & 3) - 1)
        e("s_add_u32 %s, %s, %s", s(sJB), s(sJB), s(sTmp))
        e("s_cmp_ge_u32 %s, 10", s(sJB))
        e("s_cselect_b32 %s, 10, 0", s(sTmp))
        e("s_sub_u32 %s, %s, %s", s(sJB), s(sJB), s(sTmp))
    NR = 10
    tab_srd()
    stamp("l_pre")
    e("s_waitcnt lgkmcnt(0)")
    stamp("l_k")
    for k in ("X", "G", "U"):
        srd(A, *SRDS[k])
    q = VQ()

    def slab_groups(i):
        b = (i % 3) * SLAB
        gs = []

        def head():
            if i < NFIX:
                e("s_add_u32 %s, %s, %d", s(sWM), s(sAoff), i * 128)
                e("s_add_u32 %s, %s, %d", s(sWN), s(sBoff), i * 64 * 3072)
            else:
                e("s_add_u32 %s, %s, %d", s(sTmp), s(sJB), NFIX)
                e("s_lshl_b32 %s, %s, 7", s(sWM), s(sTmp))
                e("s_add_u32 %s, %s, %s", s(sWM), s(sWM), s(sAoff))
                e("s_mul_i32 %s, %s, %d", s(sWN), s(sTmp), 64 * 3072)
                e("s_add_u32 %s, %s, %s", s(sWN), s(sWN), s(sBoff))
                e("s_add_u32 %s, %s, 1", s(sJB), s(sJB))
                e("s_cmp_eq_u32 %s, %d", s(sJB), NR)
                e("s_cselect_b32 %s, 0, %s", s(sJB), s(sJB))
        for n in range(4):
            def f(n=n):
                if n == 0:
                    head()
                e("s_add_u32 m0, %s, %d", s(sM0), b + n * 1024)
                e("s_add_u32 %s, %s, %d", s(sTmp), s(sWM), n * 8 * 81920)
                e("buffer_load_dwordx4 %s, %s, %s offen lds", v(vA1 if n & 1 else vA0), s(sX, 4), s(sTmp))
            gs.append(cap(f))
        for mat in range(2):
            for n in range(4):
                def f(n=n, mat=mat):
                    e("s_add_u32 m0, %s, %d", s(sM0), b + 16384 * (1 + mat) + n * 1024)
                    e("s_add_u32 %s, %s, %d", s(sTmp), s(sWN), n * 4 * 3072)
                    e("buffer_load_dwordx4 %s, %s, %s offen lds", v(vB1 if n & 2 else vB0), s(sU if mat else sG, 4), s(sTmp))
                gs.append(cap(f))
        q.issue("s%d" % i, 12)
        return gs

    def slab(i, main=()):
        weave(list(main), slab_groups(i))

    def wait2(n):
        la, lb = A.newlabel("L_w2"), A.newlabel("L_w2")
        e("s_cmp_ge_u32 %s, 48", s(sPar))
        e("s_cbranch_scc1 %s", la)
        e("s_waitcnt vmcnt(%d)", n + 4)
        e("s_branch %s", lb)
        A.label(la)
        e("s_waitcnt vmcnt(%d)", n)
        A.label(lb)

    def bar(b):
        stamp("fl_a%d" % b)
        e("s_barrier")
        stamp("fl_b%d" % b)
    slab(0)
    stamp("l_s0")
    lgo_init()
    e("s_load_dword %s, %s, 0x%x", s(sTAG), s(P + 18, 2), WS_EP)
    for k in ("WS", "WD", "WR", "WI"):
        srd(A, *SRDS[k])
    z_setup()
    e("v_lshlrev_b32 v5, 4, v0")
    fw_poll_addr(10)
    aux_poll_addr(True, 15)
    aux_addr(True, 36)
    slab(1, cap(z_gconst))
    if WT:
        e("s_bfe_u32 %s, s2, 0x20001", s(sTmp))
        e("s_lshl_b32 %s, %s, 2", s(sTmp), s(sTmp))
        e("s_lshr_b32 %s, 0x9f51, %s", s(sTmp), s(sTmp))
        e("s_and_b32 %s, %s, 15", s(sNU), s(sTmp))
        e("s_cmp_gt_u32 %s, %s", s(sCG), s(sNU))
        e("s_cselect_b32 %s, 1, 0", s(sTmp))
        e("s_lshr_b32 %s, s2, 6", s(sCnt))
        e("s_sub_u32 %s, %s, %s", s(sCnt), s(sCnt), s(sTmp))
        e("s_lshl_b32 %s, %s, 3", s(sCnt), s(sCnt))
        e("s_bfe_u32 %s, s2, 0x30003", s(sTmp))
        e("s_add_u32 %s, %s, %s", s(sCnt), s(sCnt), s(sTmp))
        e("s_lshl_b32 %s, %s, 2", s(sCnt), s(sCnt))
        e("s_add_u32 %s, %s, %s", s(sCnt), s(sCnt), s(sLW))
        e("s_mul_i32 %s, %s, %d", s(sCnt), s(sCnt), WTN)
        e("s_and_b32 %s, s2, 1", s(sTmp))
        e("s_mul_i32 %s, %s, 320", s(sTmp), s(sTmp))
        e("s_add_u32 %s, %s, %s", s(sCnt), s(sCnt), s(sTmp))
        e("s_add_u32 %s, %s, %d", s(sCnt), s(sCnt), (10 - WTN) * 64)
        e("v_min_u32 v61, %d, v0", 2 * WTN - 1)
        e("v_lshrrev_b32 v60, 1, v61")
        e("v_add_u32 v60, %s, v60", s(sCnt))
        e("v_subrev_u32 v62, 640, v60")
        e("v_min_u32 v60, v60, v62")
        e("v_mul_u32_u24 v60, 3072, v60")
        e("v_and_b32 v61, 1, v61")
        e("v_lshl_add_u32 v60, v61, 7, v60")
        e("s_lshl_b32 %s, %s, 8", s(sTmp), s(sNU))
        e("s_cmp_eq_u32 %s, %s", s(sCG), s(sNU))
        e("s_cselect_b32 %s, 0x20000000, %s", s(sTmp), s(sTmp))
        e("s_cmp_eq_u32 %s, 15", s(sNU))
        e("s_cselect_b32 %s, 0x20000000, %s", s(sTmp), s(sTmp))
        e("v_add_u32 v60, %s, v60", s(sTmp))

    def wtouch():
        e("buffer_load_dword v62, v60, %s, 0 offen", s(sG, 4))
        e("buffer_load_dword v62, v60, %s, 0 offen", s(sU, 4))
    if WT == 2:
        wtouch(); q.issue("wt", 2)
    stamp("l_iss")
    q.wait("s0", extra=" lgkmcnt(0)")
    e("s_barrier")
    stamp("l_bi")
    make_tag()
    slab(2)
    if WT == 1:
        wtouch()
    repack_dma()
    wait2(14 if WT == 1 else 12)
    q.q = ["s2"] * 12
    bar(0)
    slab(3, cap(lambda: (ci_setup(), ci_gen([0, 1, 15, 16, 17]))) if CG else ())
    wait2(14 if WT == 1 else 12)
    q.q = ["s3"] * 12
    bar(1)
    slab(4)
    e("s_waitcnt vmcnt(24)")
    repack_finish()
    wait2(12)
    q.q = ["s4"] * 12
    bar(2)
    slab(5, cap(lambda: ci_gen([2, 3, 4])) if CG else ())
    if WARM == 2:
        warm_touch(); q.issue("wt", 2)
    q.wait("s4")
    bar(3)
    lab = A.newlabel("L_nocf")
    e("s_cmp_lg_u32 %s, 0", s(sLW))
    e("s_cbranch_scc1 %s", lab)
    e("s_lshl_b32 %s, s2, 7", s(sCnt))
    e("s_add_u32 %s, %s, 0x%x", s(sCnt), s(sCnt), WS_FW)
    flag_store(sCnt, 16, 17)
    A.label(lab)
    slab(6, cap(lambda: ci_gen([5, 6, 7])) if CG else ())
    q.wait("s5")
    bar(4)
    slab(7, cap(lambda: ci_gen([8, 9])) if CG else ())
    if PF3 & 1:
        pf3(1)
    if PF3 & 2:
        pf3(0)
    q.wait("s6")
    bar(5)
    if TL:
        slab(8, cap(lambda: ci_gen([10, 11, 12])) if CG else ())
        q.wait("s7")
        bar(6)
        poll_issue(34, 1, 15, WS_FS); poll_issue(35, 1, 10, WS_FW); q.issue("p", 2)
        slab(9, cap(lambda: ci_gen([13, 14])) if CG else ())
        wd_bases(sLW)
        if CIL == 2:
            q.issue("ci", z_ci_all())
        q.wait("s8")
        bar(7)
        q.wait("p")
        poll_check(34, 1, 15, WS_FS)
        poll_check(35, 1, 10, WS_FW)
        aux_issue(True, 36); q.issue("aux", 4)
        pf3_go(q, PF3)
        if CIL == 3:
            q.issue("ci", z_ci_all())
        q.wait("s9")
        bar(8)
        if CIL == 4:
            q.issue("ci", z_ci_all())
        stage_wd(0, SG); q.issue("sg", 5 * SG)
        q.wait("aux")
        aux_finish(True, 36)
        bar(9)
        if SG == 4:
            stage_done(0)
    else:
        poll_issue(34, 1, 15, WS_FS); poll_issue(35, 1, 10, WS_FW); q.issue("p", 2)
        slab(8)
        q.wait("s7")
        bar(6)
        slab(9)
        q.wait("p")
        poll_check(34, 1, 15, WS_FS)
        poll_check(35, 1, 10, WS_FW)
        aux_issue(True, 36); q.issue("aux", 4)
        if PFP == 0:
            pf3_go(q, PF3)
        q.wait("s8")
        bar(7)
        if PFP == 1:
            pf3_go(q, PF3)
        q.wait("aux")
        aux_finish(True, 36)
        bar(8)
        wd_bases(sLW)
        stage_wd(0, 4)
        if CIL == 0:
            z_ci_all()
        stage_done(18 if CIL == 0 else 0)
    e("v_mov_b32 v12, %d", LGO)
    lab = A.newlabel("L_hout")
    A.label(lab)
    e("s_sleep 1")
    e("ds_read_b32 v13, v12 offset:4")
    e("s_waitcnt lgkmcnt(0)")
    e("v_cmp_ne_u32 vcc, 4, v13")
    e("s_cbranch_vccnz %s", lab)
    if TL and SG < 4:
        stage_wd(SG, 4)
        if CIL >= 2 or CG:
            stage_done(0)
            fu_poll_issue()
        else:
            fu_poll_issue()
            stage_done(z_ci_all())
    else:
        fu_poll_issue()
        if CIL == 1 and not CG:
            z_ci_all()
    e("s_branch L_zpart")


def wspec_shift(dst):
    e("s_mul_i32 %s, %s, 642", s(sDelta), s(sK1))
    e("s_mul_i32 %s, s3, 320", s(sTmp))
    e("s_add_u32 %s, %s, %s", s(sDelta), s(sDelta), s(sTmp))
    e("s_and_b32 %s, %s, 15", s(dst), s(sDelta))


def wspec_dma():
    mid_k1()
    e("v_mul_u32_u24 v12, 3121, v0")
    e("v_lshrrev_b32 v12, 16, v12")
    e("v_mul_u32_u24 v12, %d, v12", 32 * 642 - 336)
    e("v_lshl_add_u32 v12, v0, 4, v12")
    wspec_shift(sTmp2)
    e("s_sub_u32 %s, %s, %s", s(sDelta), s(sDelta), s(sTmp2))
    e("s_and_b32 %s, %s, 1", s(sTmp), s(sLW))
    e("s_mul_i32 %s, %s, %d", s(sCnt), s(sTmp), 11 * 1008)
    e("s_mul_i32 %s, %s, %d", s(sTmp), s(sTmp), 33 * 32 * 642)
    e("s_add_u32 %s, %s, %s", s(sDelta), s(sDelta), s(sTmp))
    e("s_cmp_ge_u32 %s, 2", s(sLW))
    e("s_cselect_b32 %s, %s, %s", s(sWR), s(sWI), s(sWR))
    e("s_cselect_b32 %s, %s, %s", s(sWR + 1), s(sWI + 1), s(sWR + 1))
    e("s_cselect_b32 %s, %d, 0", s(sTmp), MWA)
    e("s_add_u32 %s, %s, %s", s(sCnt), s(sCnt), s(sTmp))
    gs = []
    for n in range(11):
        def f(n=n):
            e("s_add_u32 m0, %s, %d", s(sCnt), MW0 + n * 1008)
            e("s_add_u32 %s, %s, %d", s(sTmp), s(sDelta), n * 3 * 32 * 642)
            e("buffer_load_dwordx4 v12, %s, %s offen lds", s(sWR, 4), s(sTmp))
        gs.append(cap(f))
    return gs


def repack_dma():
    e("v_lshrrev_b32 v12, 3, v0")
    e("v_mul_u32_u24 v13, 1280, v12")
    e("v_bfe_u32 v14, v0, 4, 2")
    e("v_lshlrev_b32 v14, 1, v14")
    e("v_and_b32 v12, 7, v0")
    e("v_xor_b32 v12, v12, v14")
    e("v_lshl_add_u32 v12, v12, 4, v13")
    e("s_mul_i32 %s, s2, 3", s(sCnt))
    e("s_add_u32 %s, %s, %s", s(sCnt), s(sCnt), s(sLW))
    e("s_cmp_eq_u32 %s, 3", s(sLW))
    e("s_cselect_b32 %s, 480, %s", s(sCnt), s(sCnt))
    e("s_mul_i32 %s, %s, 52429", s(sBuf), s(sCnt))
    e("s_lshr_b32 %s, %s, 19", s(sBuf), s(sBuf))
    e("s_mul_i32 %s, %s, 10", s(sTmp), s(sBuf))
    e("s_sub_u32 %s, %s, %s", s(sCnt), s(sCnt), s(sTmp))
    e("s_mul_i32 %s, %s, 40960", s(sDelta), s(sBuf))
    e("s_lshl_b32 %s, %s, 7", s(sTmp), s(sCnt))
    e("s_add_u32 %s, %s, %s", s(sDelta), s(sDelta), s(sTmp))
    e("s_min_u32 %s, %s, 2", s(sWa), s(sLW))
    e("s_lshl_b32 %s, %s, 12", s(sWa), s(sWa))
    e("s_add_u32 %s, %s, %d", s(sWa), s(sWa), RPK)
    lab = A.newlabel("L_norp")
    e("s_cmp_ge_u32 %s, 48", s(sBuf))
    e("s_cbranch_scc1 %s", lab)
    for n in range(4):
        e("s_add_u32 m0, %s, %d", s(sWa), n * 1024)
        e("s_add_u32 %s, %s, %d", s(sTmp), s(sDelta), n * 8 * 1280)
        e("buffer_load_dwordx4 v12, %s, %s offen lds", s(sWD, 4), s(sTmp))
    A.label(lab)
    e("s_mul_i32 %s, %s, %d", s(sWb), s(sCnt), 4 * 49152)
    e("s_lshl_b32 %s, %s, 10", s(sTmp), s(sBuf))
    e("s_add_u32 %s, %s, %s", s(sWb), s(sWb), s(sTmp))
    e("s_add_u32 %s, %s, 0x%x", s(sWb), s(sWb), WS_WD)
    e("s_mov_b32 %s, %s", s(sPar), s(sBuf))


def repack_finish():
    lab = A.newlabel("L_norp")
    e("s_cmp_ge_u32 %s, 48", s(sPar))
    e("s_cbranch_scc1 %s", lab)
    e("v_lshrrev_b32 v56, 2, v0")
    e("v_lshlrev_b32 v56, 7, v56")
    e("v_and_b32 v57, 3, v0")
    e("v_lshl_add_u32 v56, v57, 3, v56")
    e("v_bfe_u32 v57, v0, 3, 2")
    e("v_lshl_add_u32 v56, v57, 5, v56")
    e("v_add_u32 v56, %s, v56", s(sWa))
    for tq in range(1, 4):
        e("v_xor_b32 %s, %d, v56", v(56 + tq), tq << 5)
    for tq in range(4):
        for rd in range(2):
            e("ds_read_b64_tr_b16 %s, %s offset:%d", v(16 + tq * 4 + 2 * rd, 2), v(56 + tq), rd * 2048)
    for n in range(4):
        e("s_waitcnt lgkmcnt(%d)", 6 - 2 * n)
        e("s_add_u32 %s, %s, %d", s(sTmp), s(sWb), n * 49152)
        e("buffer_store_dwordx4 %s, v5, %s, %s offen sc1", v(16 + n * 4, 4), s(sWS, 4), s(sTmp))
    A.label(lab)


def fold_group(a0, T, vM, vaddr, off):
    for d in range(4):
        e("v_lshlrev_b32 %s, 16, %s", v(T + d), v(a0 + d))
        e("v_lshlrev_b32 %s, 16, %s", v(T + 4 + d), v(a0 + 4 + d))
    for d in range(8):
        e("v_and_b32 %s, %s, %s", v(a0 + d), v(vM), v(a0 + d))
    for d in range(4):
        e("v_fmac_f32 %s, %s, %s", v(T + d), s(sSgn), v(T + 4 + d))
    for d in range(4):
        e("v_fmac_f32 %s, %s, %s", v(a0 + d), s(sSgn), v(a0 + 4 + d))
    for d in range(4):
        e("v_cvt_pk_bf16_f32 %s, %s, %s", v(a0 + d), v(T + d), v(a0 + d))
    e("ds_write_b128 %s, %s offset:%d", v(vaddr), v(a0, 4), off)


def fold_addr(src, w0, w2):
    e("v_lshrrev_b32 %s, 3, v0", v(w2))
    e("v_mul_u32_u24 %s, 81920, %s", v(w2 + 1), v(w2))
    e("v_and_b32 %s, 7, v0", v(w0))
    e("v_lshl_add_u32 %s, %s, 4, %s", v(src), v(w0), v(w2 + 1))
    e("v_lshrrev_b32 %s, 4, v0", v(w2 + 1))
    e("v_xor_b32 %s, %s, %s", v(w0), v(w0), v(w2 + 1))
    e("v_lshlrev_b32 %s, 7, %s", v(w2), v(w2))
    e("v_lshl_add_u32 %s, %s, 4, %s", v(w2), v(w0), v(w2))
    e("s_mul_i32 %s, %s, %d", s(sTmp), s(sLW), CPS)
    e("s_add_u32 %s, %s, %d", s(sTmp), s(sTmp), XB)
    e("v_add_u32 %s, %s, %s", v(w0), s(sTmp), v(w2))
    e("v_xor_b32 %s, 64, %s", v(w0 + 1), v(w0))


XO = opt("xo", 0)
CI_EARLY = list(range(8, 16))
CI_LATE = [i for i in range(18) if i not in CI_EARLY]
LX = opt("lx", 0)
CX = opt("cx", 2)
MWE = opt("mwe", 1)
EH = opt("eh", 0)
EST = opt("est", 3)
ECI = opt("eci", 3)
EFH = opt("efh", 1)
NL = opt("nl", 2)


def dft_loader():
    if PRL & 1:
        e("s_setprio 2")
    XR = 64
    vW0, vW1 = 8, 9
    fold_addr(vA0, vW0, 6)
    e("v_lshlrev_b32 %s, 4, v0", v(vB0))
    x_src_scalar()
    tab_srd()
    stamp("l_pre")
    e("s_waitcnt lgkmcnt(0)")
    stamp("l_k")
    srd(A, *SRDS["X"])
    q = VQ()

    def ci_touch():
        e("s_bfe_u32 %s, s2, 0x30003", s(sCnt))
        e("s_lshl_b32 %s, %s, 2", s(sCnt), s(sCnt))
        e("s_add_u32 %s, %s, %s", s(sCnt), s(sCnt), s(sLW))
        e("s_mul_i32 %s, %s, %d", s(sTmp), s(sCnt), 63 * 128)
        e("s_and_b32 %s, s2, 1", s(sTmp2))
        e("s_mul_i32 %s, %s, %d", s(sTmp2), s(sTmp2), 4 * 63 * 1024)
        e("s_add_u32 %s, %s, %s", s(sTmp), s(sTmp), s(sTmp2))
        e("s_add_u32 %s, %s, %d", s(sTmp), s(sTmp), TB.CI_OFF)
        e("v_min_u32 v12, 62, v0")
        e("v_lshlrev_b32 v12, 7, v12")
        e("buffer_load_dword v45, v12, %s, %s offen", s(sTAB, 4), s(sTmp))
        e("s_lshl_b32 %s, %s, 8", s(sTmp), s(sCnt))
        e("s_add_u32 %s, %s, %d", s(sTmp), s(sTmp), TB.F64_OFF)
        e("v_and_b32 v12, 128, v12")
        e("buffer_load_dword v45, v12, %s, %s offen", s(sTAB, 4), s(sTmp))
        q.issue("t", 2)

    def xl(i):
        gs = []
        for n in range(NL):
            for hf in range(2):
                def f(n=n, hf=hf):
                    e("s_add_u32 %s, %s, %d", s(sTmp), s(sAoff), n * 8 * 81920 + i * 128)
                    e("buffer_load_dwordx4 %s, %s, %s, %s offen offset:%d", v(XR + i * 32 + n * 8 + hf * 4, 4), v(vA0), s(sX, 4), s(sTmp), hf * 640)
                gs.append(cap(f))
        q.issue("x%d" % i, 2 * NL)
        return gs

    def fl():
        gs = []
        for n in range(2):
            def f(n=n):
                e("s_lshl_b32 %s, %s, 11", s(sTmp), s(sLW))
                e("s_add_u32 m0, %s, %d", s(sTmp), FR_L + n * 1024)
                e("s_add_u32 %s, %s, %d", s(sTmp), s(sTmp), TB.F64_OFF + n * 1024)
                e("buffer_load_dwordx4 %s, %s, %s offen lds", v(vB0), s(sTAB, 4), s(sTmp))
            gs.append(cap(f))
        q.issue("f", 2)
        return gs

    def fold(i):
        for n in range(NL):
            fold_group(XR + i * 32 + n * 8, 28 + 8 * (n & 1), 44, (vW0, vW1)[n & 1], (1 - (i & 1)) * 5120 + n * 1024)

    def bar(b):
        stamp("dl_a%s" % b)
        e("s_barrier")
        stamp("dl_b%s" % b)
    weave([], xl(0))
    if XT & 32:
        ci_touch()
    stamp("l_s0")
    lgo_init()
    e("s_load_dword %s, %s, 0x%x", s(sTAG), s(P + 18, 2), WS_EP)
    for k in ("WS", "WR", "WI", "OUT"):
        srd(A, *SRDS[k])
    e("s_cmp_ge_u32 %s, 2", s(sCG))
    e("s_cselect_b32 %s, -1.0, 1.0", s(sSgn))
    weave([], xl(1) + (xl(2) if LX >= 1 else []) + (xl(3) if LX >= 2 else []))
    e("v_mov_b32 v44, 0xffff0000")
    aux_poll_addr(False, 15)
    fw_poll_addr(10)
    aux_addr(False, 24)
    stamp("l_iss")
    q.wait("x0")
    stamp("dl_x0")
    fold(0)
    e("s_waitcnt lgkmcnt(0)")
    e("s_barrier")
    stamp("l_bi")
    if XT & 64:
        ci_touch()
    make_tag()
    q.wait("x1")
    weave(cap(lambda: fold(1)), (xl(2) if LX < 1 else []) + (xl(3) if LX < 2 else []) + (xl(4) if LX >= 1 else []))
    e("s_waitcnt lgkmcnt(0)")
    bar(0)
    q.wait("x2")
    stamp("dl_x2")
    weave(cap(lambda: fold(2)), xl(4) if LX < 1 else [])
    stamp("dl_f2")
    poll_issue(46, 1, 15, WS_FS); q.issue("p")
    e("s_waitcnt lgkmcnt(0)")
    bar(1)
    q.wait("x3")
    stamp("dl_x3")
    weave(cap(lambda: fold(3)), fl())
    stamp("dl_f3")
    q.wait("p")
    poll_check(46, 1, 15, WS_FS)
    aux_issue(False, 24); q.issue("aux")
    e("s_waitcnt lgkmcnt(0)")
    bar(2)
    gs = wspec_dma()
    if WSP == 2:
        weave(cap(lambda: fold(4)), gs)
        q.issue("w", 11)
    else:
        fold(4)
    q.wait("aux")
    aux_finish(False, 24)
    bar(3)
    poll_issue(41, 1, 10, WS_FW)
    if WSP == 0:
        weave([], gs)
    z_setup()
    wd_bases(sLW)
    e("v_lshlrev_b32 v5, 4, v0")
    if EST >= 3:
        if ECI and ECI < 3:
            z_ci_sub(CI_EARLY)
            lab = A.newlabel("L_cil")
            e("s_bfe_u32 %s, s2, 0x10003", s(sTmp))
            e("s_add_u32 %s, %s, 2", s(sTmp), s(sTmp))
            e("s_cmp_lt_u32 %s, %s", s(sLW), s(sTmp))
            e("s_cbranch_scc1 %s", lab)
            z_ci_sub(CI_LATE)
            A.label(lab)
        if CG == 1:
            ci_setup()
            ci_gen(CI_EARLY)
        if ZGL:
            e("v_mov_b32 v12, %d", LGO)
            lab = A.newlabel("L_zgl")
            A.label(lab)
            e("s_sleep 2")
            e("ds_read_b32 v13, v12 offset:12")
            e("s_waitcnt lgkmcnt(0)")
            e("v_cmp_ne_u32 vcc, 1, v13")
            e("s_cbranch_vccnz %s", lab)
        z_gconst()
        if CG == 2:
            ci_setup()
            ci_gen(CI_EARLY)
        stamp("dl_g")
        e("s_branch L_dft_l")
        return
    if ECI == 2:
        z_ci_sub(CI_EARLY)
    if EST:
        e("s_waitcnt vmcnt(%d)", len(CI_EARLY) if ECI == 2 else 0)
        poll_check(41, 1, 10, WS_FW)
        stamp("dl_fw")
        stage_wd(0, 3)
    if ECI == 1:
        z_ci_sub(CI_EARLY)
    stamp("dl_st")
    z_gconst()
    stamp("dl_g")
    if not EST:
        e("s_waitcnt vmcnt(0)")
        poll_check(41, 1, 10, WS_FW)
    e("s_branch L_dft_l")


def addr_advance(regs):
    e("s_add_u32 %s, %s, %d", s(sBuf), s(sBuf), SLAB)
    e("s_cmp_ge_u32 %s, %d", s(sBuf), 3 * SLAB)
    e("s_cselect_b32 %s, 0, %s", s(sBuf), s(sBuf))
    e("s_cselect_b32 %s, %d, %s", s(sDelta), (-2 * SLAB) & 0xffffffff, s(sSLAB))
    for r_ in regs:
        e("v_add_u32 %s, %s, %s", v(r_), s(sDelta), v(r_))


def gemm_loop(nslab, NT, mfmas, reads, need, areg, bar_gap, per_gap, last_extra=(), first_hook=None, peel=None, buf0=0, body=None, unroll=None, hooks=None, loop_from=None, fills=None, advf=None, last_bar=False):
    nreads = len(reads(0, 0))
    nm = len(need)

    def step(mf, nxt, first_gap=0, pre=None, barg=None):
        issued, done = 0, 0
        for m in range(nm):
            if need[m] > done:
                allowed = nreads - need[m] + issued
                e("s_waitcnt lgkmcnt(%d)", min(15, allowed))
                done = need[m] if allowed <= 15 else min(nreads, nreads + issued - 15)
            mf[m]()
            if pre and m in pre:
                for f in pre[m]:
                    f()
                if m == barg:
                    done = nreads
            if m >= first_gap:
                for k in range(per_gap):
                    if issued < len(nxt):
                        nxt[issued]()
                        issued += 1
        assert issued == len(nxt), (issued, len(nxt))

    def bar(vm=False):
        e("s_waitcnt lgkmcnt(0)%s", " vmcnt(0)" if vm else "")
        e("s_barrier")

    def merge(*ds):
        out = {}
        for d in ds:
            for k, x in d.items():
                out.setdefault(k, [])
                out[k] += x
        return out

    def spread(ops):
        out = {}
        for n, f in enumerate(ops):
            g = nm - 1 - (len(ops) - 1 - n) * max(1, (nm - bar_gap - 1) // max(1, len(ops)))
            out.setdefault(max(g, 0), []).append(f)
        return out

    def slab(last, peeled=False):
        if peeled:
            for t in range(NT - 1):
                step(mfmas(t & 1, t == 0), reads((t + 1) & 1, t + 1), pre=peel[t])
            step(mfmas(1), reads(0, 0), first_gap=bar_gap + (1 if bar_gap else 0),
                 pre=merge({0: [lambda: addr_advance(areg)]}, {bar_gap: [lambda: bar(True)]}, peel[NT - 1]), barg=bar_gap)
            return
        ex = list(last_extra) if last else []
        per = (len(ex) + NT - 1) // NT
        for t in range(NT - 1):
            step(mfmas(t & 1), reads((t + 1) & 1, t + 1), pre=merge(spread(ex[t * per:(t + 1) * per]), body[t] if body and not last else {}))
        if last:
            step(mfmas(1), [], pre=spread(ex[(NT - 1) * per:]))
        else:
            hooks = {bar_gap: ([first_hook[0]] if first_hook else []) + [bar] + ([first_hook[1]] if first_hook else [])}
            step(mfmas(1), reads(0, 0), first_gap=bar_gap + (1 if bar_gap else 0), pre=merge({0: [lambda: addr_advance(areg)]}, hooks, body[NT - 1] if body else {}), barg=bar_gap)
    e("s_mov_b32 %s, %d", s(sBuf), buf0)
    e("s_mov_b32 %s, %d", s(sSLAB), SLAB)
    e("s_mov_b32 %s, 0", s(sCnt))
    e("s_waitcnt lgkmcnt(0)%s", " vmcnt(%d)" % unroll[0][0] if unroll and unroll[0][0] is not None else "")
    make_tag()
    e("s_barrier")
    stamp("c_bi")
    for f in reads(0, 0):
        f()
    if unroll:
        ops = unroll[0][1]
        for i in range(nslab):
            if loop_from is not None and loop_from < i < nslab - 1:
                continue
            if loop_from is not None and i == loop_from:
                e("s_mov_b32 %s, %d", s(sBuf), ((buf0 // SLAB + i) % 3) * SLAB)
                e("s_mov_b32 %s, %d", s(sCnt), i)
                lab = A.newlabel("L_gemm")
                A.label(lab)
                slab(False)
                e("s_add_u32 %s, %s, 1", s(sCnt), s(sCnt))
                e("s_cmp_lt_u32 %s, %d", s(sCnt), nslab - 1)
                e("s_cbranch_scc1 %s", lab)
                continue
            per = (len(ops) + NT - 2) // (NT - 1)
            hk = hooks[i] if hooks else [{}] * NT
            if fills:
                gs = fills(i)
                ngap = (NT - 1) * nm
                hk = [{} for _ in range(NT)]
                for k, g in enumerate(gs):
                    pos = min(ngap - 1, k * ngap // max(1, len(gs)))
                    hk[pos // nm].setdefault(pos % nm, []).append(lambda g=g: A.lines.extend(g))
            for t in range(NT - 1):
                step(mfmas(t & 1, i == 0 and t == 0), reads((t + 1) & 1, t + 1), pre=merge(spread(ops[t * per:(t + 1) * per]), hk[t]))
            if i == nslab - 1:
                if last_bar:
                    step(mfmas(1), [], pre={bar_gap: [bar]}, barg=bar_gap)
                else:
                    step(mfmas(1), [])
            else:
                vm, ops = unroll[i + 1]
                if callable(vm):
                    vm = vm()

                def ubar(vm=vm):
                    e("s_waitcnt lgkmcnt(0)%s", "" if vm is None else " vmcnt(%d)" % vm)
                    e("s_barrier")

                def adv(i=i):
                    if advf:
                        return advf(i)
                    nb = (buf0 // SLAB + i + 1) % 3
                    for r_ in areg:
                        e("v_add_u32 %s, %d, %s", v(r_), (SLAB if nb else -2 * SLAB) & 0xffffffff, v(r_))
                step(mfmas(1), reads(0, 0), first_gap=bar_gap + (1 if bar_gap else 0),
                     pre=merge({0: [adv]}, {bar_gap: [ubar]}, hk[NT - 1]), barg=bar_gap)
        stamp("c_le")
        return
    if peel:
        slab(False, True)
        e("s_mov_b32 %s, 1", s(sCnt))
    lab = A.newlabel("L_gemm")
    A.label(lab)
    slab(False)
    e("s_add_u32 %s, %s, 1", s(sCnt), s(sCnt))
    e("s_cmp_lt_u32 %s, %d", s(sCnt), nslab - 1)
    e("s_cbranch_scc1 %s", lab)
    slab(True)
    stamp("c_le")


vWD = [1, 2, 3, 4, 14]


def p3c_setup():
    p3_map()
    wd_bases(sW)
    e("s_lshl_b32 %s, %s, 6", s(sOo), s(sG3))
    e("s_mul_i32 %s, %s, %d", s(sHo), s(sP), 2 * 48 * 2048)
    e("s_lshl_b32 %s, %s, 11", s(sTmp), s(sW))
    e("s_add_u32 %s, %s, %s", s(sHo), s(sHo), s(sTmp))
    e("s_and_b32 %s, %s, 1", s(sTmp), s(sW))
    e("s_lshl_b32 %s, %s, 10", s(sTmp), s(sTmp))
    e("s_lshl_b32 %s, %s, 1", s(sTmp2), s(sP))
    e("s_add_u32 %s, %s, %s", s(sTmp), s(sTmp), s(sTmp2))
    e("s_lshr_b32 %s, %s, 1", s(sTmp2), s(sW))
    e("s_add_u32 %s, %s, %s", s(sTmp), s(sTmp), s(sTmp2))
    e("s_mul_i32 %s, %s, 1280", s(sTmp), s(sTmp))
    e("s_add_u32 %s, %s, %s", s(sOo), s(sOo), s(sTmp))
    e("s_add_u32 %s, %s, %s", s(sOc), s(sOc), s(sTmp))


def fh_addr():
    e("s_lshl_b32 %s, %s, 1", s(sTmp), s(sP))
    e("s_lshr_b32 %s, %s, 1", s(sTmp2), s(sW))
    e("s_add_u32 %s, %s, %s", s(sTmp), s(sTmp), s(sTmp2))
    e("s_mul_i32 %s, %s, 12", s(sTmp), s(sTmp))
    e("v_min_u32 v5, 11, v0")
    e("v_add_u32 v5, %s, v5", s(sTmp))
    e("v_lshlrev_b32 v3, 7, v5")


sHr = [50, 51, 52, 53]
def hreg(i, rho): return 8 + (i % 4) * 16 + rho * 4
def wreg(i, ct): return 72 + (i % 4) * 20 + ct * 4
WPRE = [(5, 1), (5, 2), (5, 3), (5, 4), (6, 0), (6, 1), (6, 2), (6, 3)]


def p3_pre():
    vL = 1
    e("v_lshlrev_b32 %s, 4, v0", v(vL))
    for rho in range(4):
        e("s_add_u32 %s, %s, %d", s(sTmp), s(sW), rho)
        e("s_bfe_u32 %s, %s, 0x10001", s(sTmp2), s(sTmp))
        e("s_mul_i32 %s, %s, %d", s(sTmp2), s(sTmp2), 48 * 2048)
        e("s_and_b32 %s, %s, 1", s(sTmp), s(sTmp))
        e("s_lshl_b32 %s, %s, 10", s(sTmp), s(sTmp))
        e("s_add_u32 %s, %s, %s", s(sTmp), s(sTmp), s(sTmp2))
        e("s_add_u32 %s, %s, %s", s(sTmp), s(sTmp), s(sHo))
        e("s_add_u32 %s, %s, %d", s(sHr[rho]), s(sTmp), WS_H)

    rot3()


def hload_(i):
    item4(i, sRZ)
    e("s_lshl_b32 %s, %s, 1", s(sRZ), s(sRZ))
    for rho in range(4):
        e("s_add_u32 %s, %s, %s", s(sTmp), s(sHr[rho]), s(sRZ))
        e("buffer_load_dwordx4 %s, v1, %s, %s offen sc1", v(hreg(i, rho), 4), s(sWS, 4), s(sTmp))


def p3c():
    vL, vO, vPH, vWJ = 1, 2, 3, 4
    RS, XR, WJ, ACC = 8, 8, 152, 176
    NI = 12
    q = VQ()
    def wload(i, ct, head=None):
        if head if head is not None else ct == 0:
            item4(i, sI4)
            e("s_add_u32 %s, %s, %s", s(sTmp2), s(sI4), s(sWa))
        if ct < 4:
            e("s_add_u32 %s, %s, %d", s(sTmp), s(sTmp2), WOFF[ct][1])
        else:
            e("s_add_u32 %s, %s, %s", s(sTmp), s(sI4), s(sWc))
        e("buffer_load_dwordx4 %s, %s, %s, %s offen sc1", v(wreg(i, ct), 4), v(vL), s(sWS, 4), s(sTmp))
        q.issue("i%d" % i)

    def hload(i):
        hload_(i)
        q.issue("i%d" % i, 4)

    def wj(i, ct):
        e("ds_read_b128 %s, %s offset:%d", v(WJ + 4 * ct, 4), v(vWJ), i * 5120 + ct * 1024)
    stamp("p3_in")
    if opt("cpr", 0) or opt("p1p", 0):
        e("s_setprio %d", opt("cpr", 0))
    if not XQ:
        e("v_and_b32 v5, 15, v0")
        e("v_mul_u32_u24 v5, 81920, v5")
        e("v_lshrrev_b32 v6, 4, v0")
        e("v_lshl_add_u32 %s, v6, 3, v5", v(vO))
    fh_addr()
    e("s_mul_i32 %s, %s, %d", s(sTmp), s(sW), CPS)
    e("s_add_u32 %s, %s, %d", s(sTmp), s(sTmp), CP0)
    e("v_add_u32 %s, %s, %s", v(vWJ), s(sTmp), v(vL))
    lab = A.newlabel("L_nofh")
    e("s_cmp_ge_u32 s2, 192")
    e("s_cbranch_scc1 %s", lab)
    e("v_mov_b32 v7, %d", LGO)
    e("v_mov_b32 v172, 1")
    e("s_waitcnt vmcnt(0)")
    flag_store(sFlag, 5, 6)
    e("s_mov_b64 exec, 1")
    e("ds_add_u32 v7, v172 offset:4")
    e("s_mov_b64 exec, -1")
    if EFH:
        poll_issue(7, 1, vPH, WS_FH)
        e("s_waitcnt vmcnt(0)")
    A.label(lab)
    stamp("p3_fl")
    if not EFH:
        poll_issue(7, 1, vPH, WS_FH)
    e("s_lshl_b32 %s, %s, 2", s(sTmp), s(sW))
    e("s_add_u32 %s, %s, %d", s(sTmp), s(sTmp), LGO + 16)
    e("v_mov_b32 v5, %s", s(sTmp))
    late, join = A.newlabel("L_hlate"), A.newlabel("L_hjoin")
    if not EFH:
        e("s_waitcnt vmcnt(0)")
    early = A.newlabel("L_hearly")
    if EH:
        e("s_cmp_eq_u32 %s, 2", s(sNU))
        e("s_cbranch_scc1 %s", early)
    e("v_cmp_ne_u32 vcc, %s, v7", s(sTAG))
    e("s_cbranch_vccnz %s", late)
    for i in range(EH):
        hload(i)
    A.label(early)
    e("s_mov_b32 %s, 1", s(sNU))
    for i in range(EH, 4):
        hload(i)
    for i in range(4, 8):
        for ct in range(5):
            if not P3O:
                wload(i, ct)
    qe = VQ()
    qe.q = list(q.q)
    qd = VQ()
    qd.q = list(q.q)
    e("s_branch %s", join)
    A.label(late)
    e("s_mov_b32 %s, 0", s(sNU))
    for i in range(4, 8):
        for ct in range(5):
            wload(i, ct)
    poll_check(7, 1, vPH, WS_FH)
    stamp("hp")
    q.drain()
    for i in range(4):
        hload(i)
    A.label(join)
    stamp("p3_fh")

    def staged(br):
        lab, skip = A.newlabel("L_wst"), A.newlabel("L_wsk")
        if br:
            e("s_cmp_ge_u32 s2, 192")
            e("%s %s", br, skip)
        A.label(lab)
        e("ds_read_b32 v6, v5")
        e("s_waitcnt lgkmcnt(0)")
        e("v_cmp_eq_u32 vcc, 0, v6")
        e("s_cbranch_vccnz %s", lab)
        A.label(skip)
    staged("s_cbranch_scc1" if EST else None)
    for ct in range(5):
        wj(0, ct)
    OFF = [(sOo, 0), (sOo, 32), (sOo, 640), (sOo, 672), (sOc, 0)]
    vXC, vD, vD1, vDC = 172, 173, 174, 175

    def xq_addr():
        e("v_lshrrev_b32 v6, 2, v0")
        e("v_mul_u32_u24 v6, 81920, v6")
        e("v_lshrrev_b32 v7, 4, v0")
        e("v_xor_b32 v7, v7, v0")
        e("v_and_b32 v7, 3, v7")
        e("v_lshl_add_u32 %s, v7, 4, v6", v(vO))
        e("v_bfe_u32 v6, v0, 1, 4")
        e("v_mul_u32_u24 v6, 81920, v6")
        e("v_and_b32 v7, 1, v0")
        e("v_lshl_add_u32 %s, v7, 4, v6", v(vXC))
        e("s_mul_i32 %s, %s, %d", s(sTB), s(sW), CPS)
        e("s_add_u32 %s, %s, %d", s(sTB), s(sTB), CP0 + 15360)
        e("v_and_b32 v6, 15, v0")
        e("v_lshrrev_b32 v7, 4, v0")
        e("v_lshlrev_b32 %s, 5, v6", v(vDC))
        e("v_lshl_add_u32 %s, v7, 3, %s", v(vDC), v(vDC))
        e("v_add_u32 %s, %s, %s", v(vDC), s(sTB), v(vDC))
        e("v_lshlrev_b32 v6, 6, v6")
        e("v_and_b32 v7, 1, v7")
        e("v_lshl_add_u32 v6, v7, 3, v6")
        e("v_lshrrev_b32 v7, 5, v0")
        e("v_bfe_u32 %s, v0, 2, 2", v(vD))
        e("v_xor_b32 v7, v7, %s", v(vD))
        e("v_lshl_add_u32 v6, v7, 4, v6")
        e("v_add_u32 %s, %s, v6", v(vD), s(sTB))
        e("v_xor_b32 %s, 32, %s", v(vD1), v(vD))

    LP = 48
    zsrc = [LP, LP + 16, LP + 8, LP + 24, LP + 32]

    def zreads():
        for c3 in range(3):
            for lw in range(4):
                e("ds_read_b128 %s, v40 offset:%d", v(LP + (c3 * 4 + lw) * 4, 4), ZU0 + lw * ZUS + c3 * 4096)

    def zcombine():
        for c3 in range(3):
            b = LP + c3 * 16
            for k in (0, 2):
                e("v_pk_add_f32 %s, %s, %s", v(b + k, 2), v(b + k, 2), v(b + 8 + k, 2))
                e("v_pk_add_f32 %s, %s, %s", v(b + 4 + k, 2), v(b + 4 + k, 2), v(b + 12 + k, 2))
            for k in (0, 2):
                if c3 < 2:
                    e("v_pk_add_f32 %s, %s, %s neg_lo:[0,1] neg_hi:[0,1]", v(b + 8 + k, 2), v(b + k, 2), v(b + 4 + k, 2))
                e("v_pk_add_f32 %s, %s, %s", v(b + k, 2), v(b + k, 2), v(b + 4 + k, 2))

    def dl(ct): return ((vD, vD1)[ct & 1], (ct >> 1) * 1024) if ct < 4 else (vDC, 2048)

    def x_dma(k):
        e("s_add_u32 m0, %s, %d", s(sTB), k * 1024)
        if k < 2:
            e("buffer_load_dwordx4 %s, %s, %s offen offset:%d lds", v(vO), s(sX, 4), s(sOo), 0) if k == 0 else None
            if k == 1:
                e("s_add_u32 %s, %s, 640", s(sTmp), s(sOo))
                e("buffer_load_dwordx4 %s, %s, %s offen lds", v(vO), s(sX, 4), s(sTmp))
        else:
            e("s_mov_b32 exec_hi, 0")
            e("buffer_load_dwordx4 %s, %s, %s offen lds", v(vXC), s(sX, 4), s(sOc))
            e("s_mov_b32 exec_hi, -1")
        q.issue("x")

    def acc(ct, rt): return ACC + (ct * 4 + rt) * 4
    for i in range(NI):
        rs = RS + (i % 4) * 36
        n0 = len(q.q)
        if i < (8 if P3O else 4):
            la, lb = A.newlabel("L_w3"), A.newlabel("L_w3")
            e("s_cmp_eq_u32 %s, 0", s(sNU))
            e("s_cbranch_scc1 %s", la)
            if P3O and WP:
                lc = A.newlabel("L_w3")
                e("s_cmp_ge_u32 s2, 192")
                e("s_cbranch_scc1 %s", lc)
                qe.wait("i%d" % i)
                e("s_branch %s", lb)
                A.label(lc)
                qd.wait("i%d" % i)
            elif P3O:
                qe.wait("i%d" % i)
            else:
                e("s_waitcnt vmcnt(32)")
            e("s_branch %s", lb)
            A.label(la)
            q.wait("i%d" % i)
            A.label(lb)
        else:
            q.wait("i%d" % i)
        stamp("i%d" % i)
        n0 = len(q.q)
        if XQ and i == 10:
            for ct in range(5):
                e("ds_read_b64 %s, %s offset:%d", v(XR + 2 * ct, 2), v(dl(ct)[0]), dl(ct)[1])
        if XQ and i == 11:
            e("s_waitcnt lgkmcnt(0)")
        if ZE and i == 11:
            lab = A.newlabel("L_zw")
            e("v_mov_b32 v7, %d", LGO)
            e("s_lshl_b32 %s, %s, 10", s(sTmp), s(sW))
            e("v_add_u32 v40, %s, %s", s(sTmp), v(vL))
            A.label(lab)
            e("ds_read_b32 v6, v7 offset:36")
            e("s_waitcnt lgkmcnt(0)")
            e("v_cmp_ne_u32 vcc, 4, v6")
            e("s_cbranch_vccnz %s", lab)
            zreads()
        if i == 2 and EST:
            staged("s_cbranch_scc0")
        for ct in range(5):
            if i < 4:
                e("s_waitcnt lgkmcnt(%d)", 4 if i < 3 else 4 - ct)
            for rt in range(4):
                mm16(acc(ct, rt), WJ + 4 * ct if i < 4 else wreg(i, ct), hreg(i, rt), i == 0)
            if i < 3:
                wj(i + 1, ct)
            if 4 <= i < 8:
                wload(i + 4, ct)
            if i == NI - 1 and FIL and ct >= 2:
                for rho in range(1, 4):
                    e("ds_write_b128 %s, %s offset:%d", v(vWJ), v(acc(ct - 2, rho), 4), (rho - 1) * 5120 + (ct - 2) * 1024)
            if XQ and i == 3 and ct == 0:
                xq_addr()
            if XQ and i == 4 and ct >= 2:
                x_dma(ct - 2)
            if i == 9 and not XQ:
                e("buffer_load_dwordx2 %s, %s, %s, %s offen offset:%d", v(XR + 2 * ct, 2), v(vO), s(sX, 4), s(OFF[ct][0]), OFF[ct][1])
                q.issue("x")
        if P3O and i < 4:
            lab = A.newlabel("L_w4")
            e("s_cmp_eq_u32 %s, 0", s(sNU))
            e("s_cbranch_scc1 %s", lab)
            keep = list(q.q)
            own = [ct for ct in range(5) if (i + 4, ct) not in WPRE]
            order = own + [ct for ct in range(5) if ct not in own]
            for n, ct in enumerate(order):
                if WP and n == len(own):
                    e("s_cmp_ge_u32 s2, 192")
                    e("s_cbranch_scc1 %s", lab)
                wload(i + 4, ct, n == 0)
            q.q = keep
            qe.issue("i%d" % (i + 4), 5)
            qd.issue("i%d" % (i + 4), len(own))
            A.label(lab)
        if i + 4 < NI:
            hload(i + 4)
        qe.q += q.q[n0:]
        qd.q += q.q[n0:]
    for rho in range(1, 4):
        e("s_sub_u32 %s, %s, %d", s(sTmp), s(sW), rho)
        e("s_and_b32 %s, %s, 3", s(sTmp), s(sTmp))
        e("s_mul_i32 %s, %s, %d", s(sTmp), s(sTmp), CPS)
        e("s_add_u32 %s, %s, %d", s(sTmp), s(sTmp), CP0 + (rho - 1) * 5120)
        e("v_add_u32 %s, %s, %s", v(40 + rho), s(sTmp), v(vL))
    for ct in range(3 if FIL else 0, 5):
        for rho in range(1, 4):
            e("ds_write_b128 %s, %s offset:%d", v(vWJ), v(acc(ct, rho), 4), (rho - 1) * 5120 + ct * 1024)
    if ZE:
        e("s_waitcnt lgkmcnt(15)")
        zcombine()
        for ct in range(5):
            for k in (0, 2):
                e("v_pk_add_f32 %s, %s, %s", v(acc(ct, 0) + k, 2), v(acc(ct, 0) + k, 2), v(zsrc[ct] + k, 2))
    else:
        e("s_lshl_b32 %s, %s, 10", s(sTmp), s(sW))
        e("v_add_u32 v40, %s, %s", s(sTmp), v(vL))
    e("s_waitcnt vmcnt(0)")
    for ct in range(5):
        x0, b = XR + 2 * ct, 20 + 4 * ct
        e("v_lshlrev_b32 %s, 16, %s", v(b), v(x0))
        e("v_and_b32 %s, 0xffff0000, %s", v(b + 1), v(x0))
        e("v_lshlrev_b32 %s, 16, %s", v(b + 2), v(x0 + 1))
        e("v_and_b32 %s, 0xffff0000, %s", v(b + 3), v(x0 + 1))
        for k in (0, 2):
            e("v_pk_add_f32 %s, %s, %s", v(acc(ct, 0) + k, 2), v(acc(ct, 0) + k, 2), v(b + k, 2))
    e("s_waitcnt lgkmcnt(0)")
    stamp("p3_end")
    e("s_barrier")
    stamp("p3_bar")
    if not ZE:
        zreads()
    for ct in range(5):
        for k in range(1, 4):
            e("ds_read_b128 %s, %s offset:%d", v(acc(ct, k), 4), v(40 + k), ct * 1024)
    if not ZE:
        e("s_waitcnt lgkmcnt(15)")
        zcombine()
    extra = 0
    for ct in range(5):
        b = acc(ct, 0)
        e("s_waitcnt lgkmcnt(%d)", 12 - 3 * ct + extra)
        for k in (0, 2):
            if not ZE:
                e("v_pk_add_f32 %s, %s, %s", v(b + k, 2), v(b + k, 2), v(zsrc[ct] + k, 2))
            e("v_pk_add_f32 %s, %s, %s", v(b + 4 + k, 2), v(b + 4 + k, 2), v(b + 8 + k, 2))
        for k in (0, 2):
            e("v_pk_add_f32 %s, %s, %s", v(b + k, 2), v(b + k, 2), v(b + 12 + k, 2))
        for k in (0, 2):
            e("v_pk_add_f32 %s, %s, %s", v(b + k, 2), v(b + k, 2), v(b + 4 + k, 2))
        e("v_cvt_pk_bf16_f32 %s, %s, %s", v(b + 8), v(b), v(b + 1))
        e("v_cvt_pk_bf16_f32 %s, %s, %s", v(b + 9), v(b + 2), v(b + 3))
        if not XQ:
            e("buffer_store_dwordx2 %s, %s, %s, %s offen offset:%d%s", v(b + 8, 2), v(vO), s(sOUT, 4), s(OFF[ct][0]), OFF[ct][1], OUTF)
            continue
        e("ds_write_b64 %s, %s offset:%d", v(dl(ct)[0]), v(b + 8, 2), dl(ct)[1] + 2560)
        extra += 1
        if ct in (1, 3, 4):
            e("ds_read_b128 %s, %s offset:%d", v(8 + 4 * (ct >> 1), 4), v(vWJ), 15360 + 2560 + (ct >> 1) * 1024)
            extra += 1
        if ct == 3:
            e("s_waitcnt lgkmcnt(3)")
            e("buffer_store_dwordx4 v[8:11], %s, %s, %s offen%s", v(vO), s(sOUT, 4), s(sOo), OUTF)
        if ct == 4:
            e("s_waitcnt lgkmcnt(2)")
            e("buffer_store_dwordx4 v[12:15], %s, %s, %s offen offset:640%s", v(vO), s(sOUT, 4), s(sOo), OUTF)
            e("s_waitcnt lgkmcnt(0)")
            e("s_mov_b32 exec_hi, 0")
            e("buffer_store_dwordx4 v[16:19], %s, %s, %s offen%s", v(vXC), s(sOUT, 4), s(sOc), OUTF)
            e("s_mov_b32 exec_hi, -1")
    lab = A.newlabel("L_noep")
    e("s_lshl_b32 %s, s2, 3", s(sTmp))
    e("s_add_u32 %s, %s, %s", s(sTmp), s(sTmp), s(sW))
    e("s_cmp_eq_u32 %s, 0", s(sTmp))
    e("s_cbranch_scc0 %s", lab)
    e("s_mov_b32 %s, 0x%x", s(sTmp), WS_EP)
    flag_store(sTmp, 5, 6)
    A.label(lab)


def pf3(part):
    e("s_lshr_b32 %s, s2, 3", s(sCnt))
    e("s_lshl_b32 %s, %s, 2", s(sCnt), s(sCnt))
    e("s_add_u32 %s, %s, %s", s(sCnt), s(sCnt), s(sLW))
    ntau = 40 if MAP8 else 20
    n = 0
    if part == 0:
        per = (ntau * 256 + 95) // 96
        for k in range((per + 63) // 64):
            e("s_mul_i32 %s, %s, %d", s(sTmp), s(sCnt), per)
            e("v_min_u32 v12, %d, v0", min(63, per - 64 * k - 1))
            e("v_add_u32 v12, %s, v12", s(sTmp))
            if k:
                e("v_add_u32 v12, %d, v12", 64 * k)
            e("v_lshrrev_b32 v13, 8, v12")
            e("v_and_b32 v12, 255, v12")
            if not MAP8:
                e("s_and_b32 %s, s2, 1", s(sTmp))
                e("s_lshl_b32 %s, %s, 3", s(sTmp2), s(sTmp))
                e("s_lshl_b32 %s, %s, 1", s(sTmp), s(sTmp))
                e("s_add_u32 %s, %s, 16", s(sTmp), s(sTmp))
                e("v_cmp_gt_u32 vcc, 16, v13")
                e("v_and_b32 v14, 7, v13")
                e("v_add_u32 v14, %s, v14", s(sTmp2))
                e("v_bfe_u32 v17, v13, 3, 1")
                e("v_mad_u32_u24 v14, v17, 20, v14")
                e("v_and_b32 v16, 1, v13")
                e("v_add_u32 v16, %s, v16", s(sTmp))
                e("v_bfe_u32 v17, v13, 1, 1")
                e("v_mad_u32_u24 v16, v17, 20, v16")
                e("v_cndmask_b32 v13, v16, v14, vcc")
            e("v_mul_u32_u24 v13, 49152, v13")
            e("v_lshl_add_u32 v60, v12, 7, v13")
            n += 1
    else:
        per = (4032 if MAP8 else 2016) // 96
        e("s_mul_i32 %s, %s, %d", s(sTmp), s(sCnt), per * 128)
        if not MAP8:
            e("s_and_b32 %s, s2, 1", s(sTmp2))
            e("s_mul_i32 %s, %s, %d", s(sTmp2), s(sTmp2), 4 * 63 * 1024)
            e("s_add_u32 %s, %s, %s", s(sTmp), s(sTmp), s(sTmp2))
        e("s_add_u32 %s, %s, %d", s(sTmp), s(sTmp), TB.CI_OFF)
        e("v_min_u32 v12, %d, v0", per - 1)
        e("v_lshlrev_b32 v12, 7, v12")
        e("v_add_u32 v61, %s, v12", s(sTmp))
        n = 1
    assert n == 1


def pf3_go(q, m):
    if m & 1:
        e("buffer_load_dword v63, v61, %s, 0 offen", s(sTAB, 4))
        q.issue("pf")
    if m & 2:
        e("s_mov_b32 %s, 0x%x", s(sTmp), WS_WD + 16384)
        e("buffer_load_dword v62, v60, %s, %s offen sc1", s(sWS, 4), s(sTmp))
        q.issue("pf")


def code_touch():
    lab = A.newlabel("L_ct")
    e("s_getpc_b64 s[4:5]")
    A.label(lab)
    e("s_sub_u32 s4, s4, %s - %s", lab, NAME + "_kernel")
    e("s_subb_u32 s5, s5, 0")
    e("s_mov_b32 %s, s4", s(sG))
    e("s_and_b32 %s, s5, 0xffff", s(sG + 1))
    e("s_mov_b32 %s, L_code_end - %s", s(sG + 2), NAME + "_kernel")
    e("s_mov_b32 %s, 0x00020000", s(sG + 3))
    if CT == 3:
        e("s_lshr_b32 %s, s2, 3", s(sTmp))
    else:
        e("s_bfe_u32 %s, s2, 0x30003", s(sTmp))
        e("s_lshl_b32 %s, %s, 2", s(sTmp), s(sTmp))
        e("s_add_u32 %s, %s, %s", s(sTmp), s(sTmp), s(sW))
    e("s_lshl_b32 %s, %s, 11", s(sTmp), s(sTmp))
    e("v_and_b32 v5, 15, v0")
    e("v_lshlrev_b32 v5, 7, v5")
    e("buffer_load_dword v15, v5, %s, %s offen", s(sG, 4), s(sTmp))


def warm_touch():
    e("s_lshl_b32 %s, s2, 1", s(sTmp))
    e("s_and_b32 %s, %s, 1", s(sTmp2), s(sLW))
    e("s_add_u32 %s, %s, %s", s(sTmp), s(sTmp), s(sTmp2))
    e("s_mul_i32 %s, %s, %d", s(sTmp), s(sTmp), 27 * 128)
    e("v_min_u32 v12, 26, v0")
    e("v_lshlrev_b32 v12, 7, v12")
    lab, lab2 = A.newlabel("L_wt"), A.newlabel("L_wt")
    e("s_cmp_ge_u32 %s, 2", s(sLW))
    e("s_cbranch_scc1 %s", lab)
    e("buffer_load_dword v250, v12, %s, %s offen", s(sWR, 4), s(sTmp))
    e("s_branch %s", lab2)
    A.label(lab)
    e("buffer_load_dword v250, v12, %s, %s offen", s(sWI, 4), s(sTmp))
    A.label(lab2)
    e("s_lshl_b32 %s, s2, 2", s(sTmp))
    e("s_add_u32 %s, %s, %s", s(sTmp), s(sTmp), s(sLW))
    e("s_mul_i32 %s, %s, %d", s(sTmp), s(sTmp), 6 * 128)
    e("s_add_u32 %s, %s, %d", s(sTmp), s(sTmp), TB.CI_OFF)
    e("v_min_u32 v12, 5, v0")
    e("v_lshlrev_b32 v12, 7, v12")
    e("buffer_load_dword v251, v12, %s, %s offen", s(sTAB, 4), s(sTmp))


def p1_ffn():
    vXA, vWA, FR, ACC = 8, 10, 16, 112
    if opt("p1p", 0) & 1:
        e("s_setprio 1")

    def tab_touch():
        tab_srd()
        e("s_lshr_b32 %s, s2, 3", s(sJB))
        e("s_lshl_b32 %s, %s, 2", s(sJB), s(sJB))
        e("s_add_u32 %s, %s, %s", s(sJB), s(sJB), s(sW))
        e("s_mul_i32 %s, %s, 9", s(sTmp), s(sJB))
        e("v_min_u32 v5, 8, v0")
        e("v_add_u32 v5, %s, v5", s(sTmp))
        e("v_min_u32 v5, 799, v5")
        e("v_lshlrev_b32 v5, 7, v5")
        e("s_bfe_u32 %s, s2, 0x20001", s(sTmp))
        e("s_mul_i32 %s, %s, 102400", s(sTmp), s(sTmp))
        e("buffer_load_dword v1, v5, %s, %s offen", s(sTAB, 4), s(sTmp))
    if XT & 8:
        tab_touch()
    stats_addr(16)
    e("s_and_b32 %s, %s, 1", s(sWM), s(sW))
    e("s_lshr_b32 %s, %s, 1", s(sWN), s(sW))
    karg_wait(["X"], ["WS", "OUT"])
    lab = A.newlabel("L_nost")
    e("s_cmp_ge_u32 %s, 8", s(sCG))
    e("s_cbranch_scc1 %s", lab)
    stats_issue(16)
    A.label(lab)
    e("s_lshl_b32 %s, %s, 3", s(sFlag), s(sRB))
    e("s_add_u32 %s, %s, %s", s(sFlag), s(sFlag), s(sCG))
    e("s_lshl_b32 %s, %s, 7", s(sFlag), s(sFlag))
    e("s_add_u32 %s, %s, 0x%x", s(sFlag), s(sFlag), WS_FS)
    p3c_setup()
    e("v_and_b32 v5, 15, v0")
    e("v_lshlrev_b32 v5, 7, v5")
    e("s_lshl_b32 %s, %s, 13", s(sTmp), s(sWM))
    e("v_add_u32 v5, %s, v5", s(sTmp))
    e("v_lshrrev_b32 v6, 4, v0")
    e("v_bfe_u32 v7, v0, 1, 3")
    e("v_xor_b32 v6, v6, v7")
    e("v_lshl_add_u32 %s, v6, 4, v5", v(vXA))
    e("v_xor_b32 %s, 64, %s", v(vXA + 1), v(vXA))
    e("v_lshrrev_b32 v5, 4, v0")
    e("v_bfe_u32 v6, v0, 2, 2")
    e("v_lshl_add_u32 v7, v5, 3, v6")
    e("v_lshlrev_b32 v7, 8, v7")
    e("v_and_b32 v5, 1, v5")
    e("v_lshl_add_u32 v5, v6, 1, v5")
    e("s_lshl_b32 %s, %s, 2", s(sTmp), s(sWN))
    e("v_xor_b32 v5, %s, v5", s(sTmp))
    e("v_lshl_add_u32 v7, v5, 5, v7")
    e("v_and_b32 v6, 3, v0")
    e("v_lshl_add_u32 %s, v6, 3, v7", v(vWA))
    for ft in range(1, 4):
        e("v_xor_b32 %s, %d, %s", v(vWA + ft), ft << 5, v(vWA))
    nt = 0
    if XT & 1:
        e("s_lshr_b32 %s, s2, 6", s(sTmp))
        e("s_lshl_b32 %s, %s, 2", s(sTmp), s(sTmp))
        e("s_add_u32 %s, %s, %s", s(sTmp), s(sTmp), s(sW))
        e("s_mul_i32 %s, %s, 107", s(sTmp), s(sTmp))
        e("s_mul_i32 %s, %s, 5120", s(sTmp2), s(sRB))
        for k in range(2):
            e("v_min_u32 v5, %d, v0", 63 if k == 0 else 42)
            e("v_add_u32 v5, %s, v5", s(sTmp))
            if k:
                e("v_add_u32 v5, 64, v5")
            e("v_min_u32 v5, 0x4ff, v5")
            e("v_mul_u32_u24 v6, 6554, v5")
            e("v_lshrrev_b32 v6, 16, v6")
            e("v_mul_u32_u24 v7, 10, v6")
            e("v_sub_u32 v5, v5, v7")
            e("v_lshlrev_b32 v5, 7, v5")
            e("v_lshrrev_b32 v7, 2, v6")
            e("v_mul_u32_u24 v7, 81920, v7")
            e("v_add_u32 v5, v5, v7")
            e("v_and_b32 v6, 3, v6")
            e("v_mul_u32_u24 v6, 1280, v6")
            e("v_add_u32 v5, v5, v6")
            e("buffer_load_dword v1, v5, %s, %s offen", s(sX, 4), s(sTmp2))
        nt += 2
    if XT & 2 and not XT & 8:
        tab_touch()
        nt += 1
    if XT & 4:
        e("s_mul_i32 %s, %s, %d", s(sTmp), s(sJB), 21 * 128)
        e("s_and_b32 %s, s2, 1", s(sTmp2))
        e("s_mul_i32 %s, %s, %d", s(sTmp2), s(sTmp2), 4 * 63 * 1024)
        e("s_add_u32 %s, %s, %s", s(sTmp), s(sTmp), s(sTmp2))
        e("s_add_u32 %s, %s, %d", s(sTmp), s(sTmp), TB.CI_OFF)
        e("v_min_u32 v5, 20, v0")
        e("v_lshlrev_b32 v5, 7, v5")
        e("v_add_u32 v5, %s, v5", s(sTmp))
        e("s_and_b32 %s, %s, 63", s(sTmp), s(sJB))
        e("s_lshl_b32 %s, %s, 7", s(sTmp), s(sTmp))
        e("s_add_u32 %s, %s, %d", s(sTmp), s(sTmp), TB.F64_OFF)
        e("v_mov_b32 v6, %s", s(sTmp))
        e("v_cmp_lt_u32 vcc, 31, v0")
        e("v_cndmask_b32 v5, v5, v6, vcc")
        e("buffer_load_dword v1, v5, %s, 0 offen", s(sTAB, 4))
        nt += 1
    lab = A.newlabel("L_nost")
    e("s_cmp_ge_u32 %s, 8", s(sCG))
    e("s_cbranch_scc1 %s", lab)
    e("s_waitcnt vmcnt(%d)", nt)
    stats_compute(16)
    A.label(lab)
    k_offset(sK1)
    e("s_bfe_u32 %s, s2, 0x20004", s(sPar))
    e("s_add_u32 %s, %s, %s", s(sK1), s(sK1), s(sPar))
    if KG:
        mod10(sK1)
    e("s_mul_i32 %s, %s, 12288", s(sK1), s(sK1))
    e("s_lshl_b32 %s, %s, 2", s(sTmp), s(sCG))
    e("s_lshl_b32 %s, %s, 1", s(sTmp2), s(sWM))
    e("s_add_u32 %s, %s, %s", s(sTmp), s(sTmp), s(sTmp2))
    e("s_add_u32 %s, %s, %s", s(sTmp), s(sTmp), s(sWN))
    e("s_lshl_b32 %s, %s, 8", s(sTmp), s(sTmp))
    e("s_add_u32 %s, %s, %s", s(sK1), s(sK1), s(sTmp))
    e("s_add_u32 %s, %s, 0x%x", s(sK1), s(sK1), WS_CSP)
    e("s_bfe_u32 %s, s2, 0x30003", s(sTmp))
    e("s_cmp_ge_u32 %s, 5", s(sTmp))
    e("s_cselect_b32 %s, 100, %s", s(sPar), s(sPar))
    e("s_cmp_lg_u32 %s, 0", s(sW))
    e("s_cselect_b32 %s, 100, %s", s(sNU), s(sPar))
    for i in range(4):
        e("v_mov_b32 %s, 0x3f803f80", v(2 + i))
    e("v_and_b32 v14, 48, v0")
    stamp("c_set")

    def stat_flag():
        e("s_lshr_b32 %s, %s, 3", s(sTmp), s(sCG))
        e("s_or_b32 %s, %s, %s", s(sTmp), s(sTmp), s(sW))
        rare("s_cbranch_scc0", lambda: flag_store(sFlag, 6, 7))

    def cs_mfma(it, p):
        def body():
            la, lb = A.newlabel("L_csm"), A.newlabel("L_csm")
            e("s_cmp_eq_u32 %s, 1", s(sWM))
            e("s_cbranch_scc1 %s", la)
            for mat in range(2):
                if mat:
                    e("s_branch %s", lb)
                    A.label(la)
                for ft in range(4):
                    mm16(240 + 4 * ft, wf(p, mat, ft), 2, p == 0)
            A.label(lb)
        e("s_cmp_eq_u32 %s, %d", s(sPar), it)
        rare("s_cbranch_scc1", body)

    def cs_store(it):
        def body():
            e("s_mov_b32 exec_lo, 0x00010001")
            e("s_mov_b32 exec_hi, 0x00010001")
            for ft in range(4):
                e("buffer_store_dwordx4 %s, v14, %s, %s offen offset:%d sc1", v(240 + 4 * ft, 4), s(sWS, 4), s(sK1), ft * 64)
            e("s_mov_b64 exec, -1")
        e("s_cmp_eq_u32 %s, %d", s(sPar), it)
        rare("s_cbranch_scc1", body)

    def cs_wait(it):
        e("s_cmp_eq_u32 %s, %d", s(sPar), it)
        rare("s_cbranch_scc1", lambda: e("s_waitcnt vmcnt(0)"))

    def cs_flag(it):
        def body():
            e("s_lshl_b32 %s, s2, 7", s(sTmp))
            e("s_add_u32 %s, %s, 0x%x", s(sTmp), s(sTmp), WS_FSC)
            flag_store(sTmp, 6, 7)
        e("s_cmp_eq_u32 %s, %d", s(sNU), it)
        rare("s_cbranch_scc1", body)

    def acc(mat, ft, st): return ACC + ((mat * 4 + ft) * 4 + st) * 4
    def xf(p, st): return FR + p * 48 + st * 4
    def wf(p, mat, ft): return FR + p * 48 + 16 + (mat * 4 + ft) * 4
    keys = [("x", 0), ("w", 0, 0), ("w", 0, 0), ("x", 1), ("x", 2), ("x", 3)]
    for ft in range(4):
        for mat in range(2):
            if (mat, ft) != (0, 0):
                keys += [("w", mat, ft)] * 2

    def reads(p, t):
        out, seen = [], {}
        for k in keys:
            if k[0] == "x":
                out.append(lambda st=k[1]: e("ds_read_b128 %s, %s offset:%d", v(xf(p, st), 4), v(vXA + t), st * 2048))
            else:
                rd = seen.get(k, 0); seen[k] = rd + 1
                out.append(lambda mat=k[1], ft=k[2], rd=rd: e("ds_read_b64_tr_b16 %s, %s offset:%d", v(wf(p, mat, ft) + 2 * rd, 2), v(vWA + ft), 16384 * (1 + mat) + t * 8192 + rd * 1024))
        return out
    morder, n = [], 0
    for ft in range(4):
        for mat in range(2):
            morder += [(mat, ft, st) for st in ([0, 1, 2, 3] if n % 2 == 0 else [3, 2, 1, 0])]
            n += 1
    need = [max(i + 1 for i, k in enumerate(keys) if k == ("x", m[2]) or k == ("w", m[0], m[1])) for m in morder]

    def mfmas(p, first=False):
        return [(lambda m=m: mm16(acc(*m), wf(p, m[0], m[1]), xf(p, m[2]), first)) for m in morder]
    hooks = []
    for it in range(10):
        h0, h1 = {}, {}
        if it < 3:
            h0[31] = [lambda it=it: cs_mfma(it, 0)]
            h1[8] = [lambda it=it: cs_mfma(it, 1)]
            h1[30] = [lambda it=it: cs_store(it)]
        if it == 0:
            h1[3] = [stat_flag]
        if 2 <= it <= 4:
            h1[2] = [lambda it=it: cs_wait(it - 2)]
            h1[3] = [lambda it=it: cs_flag(it - 2)]
        hooks.append([h0, h1])
    vmw = [0] + [None] * 9
    gemm_loop(10, 2, mfmas, reads, need, [8, 9, 10, 11, 12, 13], 3, 1, unroll=[(None, [])] + [(vmw[i], []) for i in range(9)], hooks=hooks, loop_from=5 if opt("loop", 1) else None)

    if opt("fpr", 0):
        e("s_setprio %d", opt("fpr", 0))
    RM, CS = 16, 32
    e("v_and_b32 v5, 15, v0")
    e("v_lshlrev_b32 v5, 2, v5")
    e("s_lshl_b32 %s, %s, 8", s(sTmp), s(sWM))
    e("s_add_u32 %s, %s, %d", s(sTmp), s(sTmp), AUX)
    e("v_add_u32 v5, %s, v5", s(sTmp))
    if TL:
        e("s_barrier")
        stamp("c_b9")
    for st in range(4):
        e("ds_read_b32 %s, v5 offset:%d", v(RM + 4 * st), st * 64)
        e("ds_read_b32 %s, v5 offset:%d", v(RM + 4 * st + 2), 512 + st * 64)
    e("v_lshrrev_b32 v6, 4, v0")
    e("v_lshlrev_b32 v6, 4, v6")
    e("s_lshl_b32 %s, %s, 8", s(sTmp), s(sWN))
    e("s_add_u32 %s, %s, %d", s(sTmp), s(sTmp), AUX + 1024)
    e("v_add_u32 v6, %s, v6", s(sTmp))
    for ft in range(4):
        for mat in range(2):
            e("ds_read_b128 %s, v6 offset:%d", v(CS + (mat * 4 + ft) * 4, 4), mat * 512 + ft * 64)
    e("s_lshl_b32 %s, %s, 1", s(sFlag), s(sRB))
    e("s_add_u32 %s, %s, %s", s(sFlag), s(sFlag), s(sWM))
    e("s_mul_i32 %s, %s, %d", s(sTmp), s(sFlag), 2 * 48 * 2048)
    e("s_lshl_b32 s3, %s, 2", s(sCG))
    e("s_lshl_b32 %s, %s, 1", s(sCnt), s(sWN))
    e("s_add_u32 s3, s3, %s", s(sCnt))
    e("s_lshl_b32 s3, s3, 11")
    e("s_add_u32 %s, %s, s3", s(sDelta), s(sTmp))
    e("s_lshl_b32 %s, %s, 1", s(sFlag), s(sFlag))
    e("s_add_u32 %s, %s, %s", s(sFlag), s(sFlag), s(sWN))
    e("s_mul_i32 %s, %s, 12", s(sFlag), s(sFlag))
    e("s_add_u32 %s, %s, %s", s(sFlag), s(sFlag), s(sCG))
    e("s_lshl_b32 %s, %s, 7", s(sFlag), s(sFlag))
    e("s_add_u32 %s, %s, 0x%x", s(sFlag), s(sFlag), WS_FH)
    e("v_lshlrev_b32 v5, 4, v0")
    e("s_waitcnt lgkmcnt(4) vmcnt(0)")
    for st in range(4):
        e("v_mul_f32 %s, %s, %s", v(RM + 4 * st), v(RM + 4 * st), v(RM + 4 * st))
    for ph in range(2):
        if ph == 1:
            e("s_waitcnt lgkmcnt(0)")
        for st in range(4):
            rr, mm_ = RM + 4 * st, RM + 4 * st + 2
            o = 64 + ((ph * 4 + st) & 3) * 4
            for fi in range(2):
                ft = 2 * ph + fi
                g0, u0 = acc(0, ft, st), acc(1, ft, st)
                for k in (0, 2):
                    e("v_pk_fma_f32 %s, %s, %s, %s op_sel_hi:[1,0,1] neg_lo:[0,1,0] neg_hi:[0,1,0]", v(g0 + k, 2), v(CS + ft * 4 + k, 2), v(mm_, 2), v(g0 + k, 2))
                    e("v_pk_fma_f32 %s, %s, %s, %s op_sel_hi:[1,0,1] neg_lo:[0,1,0] neg_hi:[0,1,0]", v(u0 + k, 2), v(CS + 16 + ft * 4 + k, 2), v(mm_, 2), v(u0 + k, 2))
                for k in range(4):
                    e("v_max_f32 %s, 0, %s", v(g0 + k), v(g0 + k))
                for k in (0, 2):
                    e("v_pk_mul_f32 %s, %s, %s op_sel_hi:[1,0]", v(u0 + k, 2), v(u0 + k, 2), v(rr, 2))
                for k in (0, 2):
                    e("v_pk_mul_f32 %s, %s, %s", v(g0 + k, 2), v(g0 + k, 2), v(u0 + k, 2))
                for k in range(2):
                    e("v_cvt_pk_bf16_f32 %s, %s, %s", v(o + 2 * fi + k), v(g0 + 2 * k), v(g0 + 2 * k + 1))
            e("s_add_u32 %s, %s, %d", s(sTmp), s(sDelta), WS_H + (st >> 1) * 48 * 2048 + ph * 2048)
            e("buffer_store_dwordx4 %s, v5, %s, %s offen offset:%d sc1", v(o, 4), s(sWS, 4), s(sTmp), (st & 1) * 1024)
    stamp("c_ep")
    p3_pre()
    e("s_mov_b32 %s, 0", s(sNU))
    e("s_branch L_p3c")


def p1_dft():
    njb = 5
    vXA, vCA, FR, ACC, FC, CO, SI = 8, 12, 16, 80, 208, 176, 192
    if opt("p1p", 0) & 2:
        e("s_setprio 1")
    tab_srd()
    e("v_lshlrev_b32 v13, 4, v0")
    e("s_mul_i32 %s, %s, %d", s(sBoff), s(sCG), 20 * 5 * 1024)
    e("s_mul_i32 %s, %s, %d", s(sM0), s(sW), 5 * 1024)
    e("s_add_u32 %s, %s, %s", s(sBoff), s(sBoff), s(sM0))
    e("s_lshl_b32 %s, %s, 2", s(sWM), s(sM0))
    cur = [0]

    def cl(i):
        ops = []
        for tl in range(njb):
            def f(tl=tl):
                e("s_add_u32 m0, %s, %d", s(sM0 if CSTR[i] == 5120 else sWM), CBASE[i] + tl * 1024)
                e("s_add_u32 %s, %s, %d", s(sTmp), s(sBoff), i * 4 * njb * 1024 + tl * 1024)
                e("buffer_load_dwordx4 v13, %s, %s offen lds", s(sTAB, 4), s(sTmp))
            ops.append(f)
        return ops
    q = VQ()
    XC = [224, 240, 160, 208, 224]
    NC = 4 - NL

    def xc(i):
        gs = []
        for n in range(NL, 4):
            for hf in range(2):
                def f(n=n, hf=hf):
                    e("s_add_u32 %s, %s, %d", s(sTmp), s(sAoff), n * 8 * 81920 + i * 128)
                    e("buffer_load_dwordx4 %s, v14, %s, %s offen offset:%d", v(XC[i] + (n - NL) * 8 + hf * 4, 4), s(sX, 4), s(sTmp), hf * 640)
                gs.append(cap(f))
        q.issue("x%d" % i, 2 * NC)
        return gs

    def cg(i):
        q.issue("c%d" % i, njb)
        return [cap(f) for f in cl(i)]

    def foldc(i):
        for n in range(NL, 4):
            fold_group(XC[i] + (n - NL) * 8, 64, 72, (1, 2)[n & 1], (1 - (i & 1)) * 5120 + n * 1024)
    if XT & 16:
        e("s_bfe_u32 %s, s2, 0x30003", s(sTmp))
        e("s_lshl_b32 %s, %s, 2", s(sTmp), s(sTmp))
        e("s_add_u32 %s, %s, %s", s(sTmp), s(sTmp), s(sW))
        e("s_mul_i32 %s, %s, 2560", s(sTmp), s(sTmp))
        e("s_mul_i32 %s, %s, 102400", s(sTmp2), s(sCG))
        e("s_add_u32 %s, %s, %s", s(sTmp), s(sTmp), s(sTmp2))
        e("s_add_u32 %s, %s, 20480", s(sTmp), s(sTmp))
        e("v_min_u32 v5, 19, v0")
        e("v_lshlrev_b32 v5, 7, v5")
        e("buffer_load_dword v15, v5, %s, %s offen", s(sTAB, 4), s(sTmp))
        q.issue("t")
    if XO == 1:
        weave([], cg(0))
    fold_addr(14, 1, 3)
    x_src_scalar()
    stamp("dc_pre")
    e("s_waitcnt lgkmcnt(0)")
    stamp("dc_k")
    srd(A, *SRDS["X"])
    weave([], xc(0) + (cg(0) if XO == 0 else []) + xc(1))
    stamp("dc_i0")
    e("s_mul_i32 %s, %s, %d", s(sTmp), s(sW), CPS)
    e("s_add_u32 %s, %s, %d", s(sTmp), s(sTmp), XB + 5120)
    e("v_and_b32 v5, 31, v0")
    e("v_lshlrev_b32 v5, 7, v5")
    e("v_add_u32 v5, %s, v5", s(sTmp))
    e("v_lshrrev_b32 v6, 5, v0")
    e("v_bfe_u32 v7, v0, 1, 3")
    e("v_xor_b32 v6, v6, v7")
    e("v_lshl_add_u32 %s, v6, 4, v5", v(vXA))
    for t in range(1, 4):
        e("v_xor_b32 %s, %d, %s", v(vXA + t), t << 5, v(vXA))
    e("v_mov_b32 %s, v13", v(vCA))
    e("v_add_u32 v3, %d, v13", CP0 + 3 * CPS)
    karg_wait([], ["WS", "OUT"])
    p3c_setup()
    e("s_cmp_ge_u32 %s, 2", s(sCG))
    e("s_cselect_b32 %s, -1.0, 1.0", s(sSgn))
    e("v_mov_b32 v72, 0xffff0000")
    e("s_lshl_b32 %s, %s, 2", s(sS2), s(sRB))
    e("s_add_u32 %s, %s, %s", s(sS2), s(sS2), s(sW))
    e("v_and_b32 v5, 31, v0")
    e("v_lshrrev_b32 v6, 5, v0")
    e("v_lshlrev_b32 v6, 8, v6")
    e("v_add_u32 v6, %s, v6", s(sS2))
    e("v_mul_u32_u24 v6, v6, v5")

    def consts():
        for kap in range(2):
            for i in range(8):
                s0 = 16 * kap + 8 * (i >> 2) + (i & 3)
                e("v_mul_u32_u24 v7, %d, v5", 64 * s0)
                e("v_add_u32 v7, v7, v6")
                e("v_and_b32 v7, 0x7ff, v7")
                e("v_cvt_f32_u32 v7, v7")
                e("v_mul_f32 v7, 0x3a000000, v7")
                e("v_cos_f32 %s, v7", v(CO + 8 * kap + i))
                e("v_sin_f32 %s, v7", v(SI + 8 * kap + i))
    if CX == 0:
        weave(cap(consts), cg(1) + xc(2) + cg(2) + xc(3) + cg(3), skip=10)
        q.wait("x0")
        weave(cap(lambda: foldc(0)), cg(4))
        weave([], xc(4))
        late = {}
    elif CX == 1:
        weave(cap(consts), cg(1) + xc(2) + cg(2), skip=40)
        q.wait("x0")
        weave(cap(lambda: foldc(0)), xc(3) + cg(3))
        late = {0: lambda: xc(4) + cg(4)}
    else:
        stamp("dc_c0")
        weave(cap(consts), cg(1) + xc(2), skip=60)
        stamp("dc_c1")
        q.wait("x0")
        stamp("dc_x0")
        weave(cap(lambda: foldc(0)), cg(2))
        late = {0: lambda: xc(3) + cg(3), 1: lambda: xc(4) + cg(4)}
    stamp("c_set")

    def xf(p): return FR + p * 24
    def cf(p, tl): return FR + p * 24 + 4 + 4 * tl

    def reads(p, t):
        ops = [lambda: e("ds_read_b128 %s, %s", v(xf(p), 4), v(vXA + t))]
        for tl in range(njb):
            if t == 3 and CSTR[cur[0]] == CPS:
                ops.append(lambda tl=tl, o=CBASE[cur[0]] - CP0: e("ds_read_b128 %s, v3 offset:%d", v(cf(p, tl), 4), o + tl * 1024))
            else:
                ops.append(lambda tl=tl, st=CSTR[cur[0]]: e("ds_read_b128 %s, %s offset:%d", v(cf(p, tl), 4), v(vCA), t * st + tl * 1024))
        return ops

    def mfmas(p, first=False):
        return [(lambda tl=tl: e("v_mfma_f32_32x32x16_bf16 %s, %s, %s, %s", v(ACC + 16 * tl, 16), v(xf(p), 4), v(cf(p, tl), 4), "0" if first else v(ACC + 16 * tl, 16))) for tl in range(njb)]

    RR, MM = (64 if EPH else 16), 32

    def preamble():
        e("v_lshrrev_b32 v6, 5, v0")
        e("v_lshlrev_b32 v6, 4, v6")
        e("s_lshl_b32 %s, %s, 7", s(sTmp), s(sW))
        e("s_add_u32 %s, %s, %d", s(sTmp), s(sTmp), AUX)
        e("v_add_u32 v7, %s, v6", s(sTmp))
        for jj in range(4):
            e("ds_read_b128 %s, v7 offset:%d", v(RR + 4 * jj, 4), jj * 32)
        e("v_and_b32 v5, 15, v0")
        e("v_lshlrev_b32 v5, 6, v5")
        e("v_bfe_u32 v6, v0, 4, 1")
        e("v_lshl_add_u32 v5, v6, 5, v5")
        e("v_lshrrev_b32 v6, 5, v0")
        e("v_lshl_add_u32 v5, v6, 4, v5")
        e("s_and_b32 %s, %s, 1", s(sJB), s(sCG))
        e("s_mul_i32 %s, %s, 10", s(sJB), s(sJB))
        e("s_lshr_b32 %s, %s, 1", s(sTmp), s(sCG))
        e("s_add_u32 %s, %s, %s", s(sJB), s(sJB), s(sTmp))
        e("s_mul_i32 %s, %s, %d", s(sDelta), s(sS2), TSTR)
        e("s_mul_i32 %s, %s, 10240", s(sTmp), s(sCG))
        if TP == 1:
            e("v_and_b32 v4, 15, v0")
            e("v_lshl_add_u32 v4, v4, 6, v5")
        elif TP == 3:
            e("s_mul_i32 %s, %s, %d", s(sTmp2), s(sW), CPS)
            e("s_add_u32 %s, %s, %d", s(sTmp2), s(sTmp2), CP0)
            e("v_bfe_u32 v1, v5, 4, 2")
            e("v_and_b32 v2, 7, v0")
            e("v_xor_b32 v1, v1, v2")
            e("v_and_b32 v4, 15, v0")
            e("v_lshlrev_b32 v4, 7, v4")
            e("v_lshl_add_u32 v1, v1, 4, v4")
            e("v_add_u32 v1, %s, v1", s(sTmp2))
            e("v_lshrrev_b32 v4, 3, v0")
            e("v_xor_b32 v3, v2, v4")
            e("v_lshlrev_b32 v4, 7, v4")
            e("v_lshl_add_u32 v3, v3, 4, v4")
            e("v_add_u32 v3, %s, v3", s(sTmp2))
            e("v_xor_b32 v2, 64, v1")
            e("v_lshlrev_b32 v4, 4, v0")
        else:
            e("v_and_b32 v4, 7, v0")
            e("v_lshlrev_b32 v4, 7, v4")
            e("v_and_b32 v1, 0x30, v5")
            e("v_add_u32 v4, v4, v1")
            e("v_bfe_u32 v1, v0, 3, 1")
            e("v_lshl_add_u32 v2, v1, 6, v4")
            e("v_xor_b32 v1, 1, v1")
            e("v_lshl_add_u32 v4, v1, 6, v4")
            e("s_mov_b32 s28, 0xff00ff00")
            e("s_mov_b32 s29, 0xff00ff00")
        e("s_add_u32 %s, %s, %s", s(sDelta), s(sDelta), s(sTmp))
        e("s_add_u32 %s, %s, 0x%x", s(sDelta), s(sDelta), WS_T)
        e("s_lshl_b32 %s, %s, 4", s(sFlag), s(sCG))
        e("s_add_u32 %s, %s, %s", s(sFlag), s(sFlag), s(sRB))
        e("s_lshl_b32 %s, %s, 7", s(sFlag), s(sFlag))
        e("s_add_u32 %s, %s, 0x%x", s(sFlag), s(sFlag), WS_FT)
        e("v_bfe_u32 v6, v0, 3, 1")
        e("v_cmp_eq_u32 vcc, 0, v6")
        e("v_mov_b32 v6, 0")
        e("v_mov_b32 v13, 0x80008000")
        e("v_cndmask_b32 v6, v6, v13, vcc")

    def scale():
        for i in range(16):
            e("v_mul_f32 %s, %s, %s", v(CO + i), v(CO + i), v(RR + i))
            e("v_mul_f32_e64 %s, -%s, %s", v(SI + i), v(SI + i), v(RR + i))
        for i in range(8):
            e("v_cvt_pk_bf16_f32 %s, %s, %s", v(FC + i), v(CO + 2 * i), v(CO + 2 * i + 1))
            e("v_cvt_pk_bf16_f32 %s, %s, %s", v(FC + 8 + i), v(SI + 2 * i), v(SI + 2 * i + 1))

    def vmc(tag):
        last = max([i for i, x in enumerate(q.q) if x == tag], default=-1)
        if last < 0:
            return None
        n = len(q.q) - 1 - last
        q.q = q.q[last + 1:]
        return n

    def fills(i):
        cur[0] = i
        if i == 4:
            if EPH:
                return [[ln] for ln in cap(preamble) + ["    s_waitcnt lgkmcnt(0)"] + cap(scale)]
            return []
        w = cap(lambda: q.wait("x%d" % (i + 1))) if NC else []
        mem = late[i]() if i in late else []
        work = [[ln] for ln in cap(lambda: foldc(i + 1))]
        out, k = [w], 0
        for n, g in enumerate(work):
            out.append(g)
            if n % 5 == 4 and k < len(mem):
                out.append(mem[k]); k += 1
        return out + mem[k:]

    def advf(i):
        for t in range(4):
            e("v_add_u32 %s, %d, %s", v(vXA + t), (5120 if i & 1 else -5120) & 0xffffffff, v(vXA + t))
        e("v_add_u32 %s, %d, %s", v(vCA), (CBASE[i + 1] - CBASE[i]) & 0xffffffff, v(vCA))
    gemm_loop(5, 4, mfmas, reads, [2 + tl for tl in range(njb)], [vXA + i for i in range(5)], 0, 2, buf0=SLAB, advf=advf,
              unroll=[(vmc("c0"), [])] + [((lambda i=i: vmc("c%d" % i)), []) for i in range(1, 5)], fills=fills)

    if EPR:
        e("s_setprio %d", EPR)
    if not EPH:
        preamble()
    DD, AF, AN = [224, 240], [48, 64], 32

    def epilogue(first):
        order = ([4, 2, 3, 1, 0, 5] if TP >= 2 else [1, 2, 3, 4, 0, 5]) if first else [0, 1, 2, 3, 4]
        got, defer = set(), []

        def pack(n):
            tl = order[n]
            if tl == 5:
                e("s_nop 1")
                return
            a0, af = ACC + 16 * tl, AF[n & 1]
            if first and tl == 0:
                for i in range(16):
                    e("v_fma_f32 %s, -%s, v7, %s", v(a0 + i), v(MM + i), v(a0 + i))
            for i in range(8):
                e("v_cvt_pk_bf16_f32 %s, %s, %s", v(af + i), v(a0 + 2 * i), v(a0 + 2 * i + 1))
            if first and tl == 0:
                for i in range(8):
                    e("v_and_b32_dpp %s, %s, v14 row_ror:8 row_mask:0xf bank_mask:0xf", v(AN + i), v(af + i))
                    e("v_and_b32 %s, v15, %s", v(AN + 8 + i), v(af + i))
                for i in range(8):
                    e("v_bfi_b32 %s, v15, 0, %s", v(af + i), v(af + i))
            for i in range(8):
                e("v_xor_b32_dpp %s, %s, v6 row_ror:8 row_mask:0xf bank_mask:0xf", v(af + 8 + i), v(af + i))

        def stage(n):
            d, af = DD[n & 1], AN if order[n] == 5 else AF[n & 1]
            for k in range(4):
                e("v_mfma_f32_32x32x16_bf16 %s, %s, %s, %s", v(d, 16), v(af + 4 * k, 4), v(FC + 4 * k, 4), v(d, 16) if k else "0")

        def finish(n):
            d, tl = DD[n & 1], order[n]
            o = ACC + 16 * tl if TP == 2 and tl < 4 else d
            for i in range(8):
                e("v_cvt_pk_bf16_f32 %s, %s, %s", v(o + i), v(d + 2 * i), v(d + 2 * i + 1))
            e("s_add_u32 %s, %s, %d", s(sTmp), s(sDelta), 40960 if tl == 5 else (tl >> 1) * 4096)
            e("s_nop 0")
            for i in range(4):
                e("v_permlane16_swap_b32 %s, %s", v(o + i), v(o + 4 + i))
            if TP == 3 and tl < 4:
                for q in range(2):
                    e("ds_write_b128 %s, %s offset:%d", v(1 + (tl & 1)), v(d + 4 * q, 4), (tl >> 1) * 4096 + q * 2048)
                got.add(tl)
                if (tl ^ 1) in got:
                    for m in range(4):
                        e("ds_read_b128 %s, v3 offset:%d", v(ACC + 16 * tl + 4 * m, 4), (tl >> 1) * 4096 + m * 1024)

                    def later():
                        e("s_add_u32 %s, %s, %d", s(sTmp), s(sDelta), (tl >> 1) * 4096)
                        for m in range(4):
                            e("s_waitcnt lgkmcnt(%d)", 3 - m)
                            e("buffer_store_dwordx4 %s, v4, %s, %s offen offset:%d sc1", v(ACC + 16 * tl + 4 * m, 4), s(sWS, 4), s(sTmp), m * 1024)
                    defer.append(cap(later))
                return
            if TP == 2 and tl < 4:
                got.add(tl)
                if (tl ^ 1) not in got:
                    return
                a_, b_, t_ = ACC + 16 * (tl & 2), ACC + 16 * (tl | 1), ACC + 16 * tl + 8
                e("s_nop 0")
                for i in range(8):
                    e("v_mov_b32_dpp %s, %s row_ror:8 row_mask:0xf bank_mask:0xf", v(t_ + i), v(b_ + i))
                for q in range(2):
                    for i in range(4 * q, 4 * q + 4):
                        e("v_cndmask_b32 %s, %s, %s, s[28:29]", v(b_ + i), v(t_ + i), v(a_ + i))
                        e("v_cndmask_b32 %s, %s, %s, s[28:29]", v(a_ + i), v(a_ + i), v(t_ + i))
                    e("buffer_store_dwordx4 %s, v2, %s, %s offen offset:%d sc1", v(a_ + 4 * q, 4), s(sWS, 4), s(sTmp), q * 2048)
                    e("buffer_store_dwordx4 %s, v4, %s, %s offen offset:%d sc1", v(b_ + 4 * q, 4), s(sWS, 4), s(sTmp), q * 2048 + 1024)
                return
            for q in range(2):
                if tl < 4:
                    e("buffer_store_dwordx4 %s, v4, %s, %s offen offset:%d sc1", v(d + 4 * q, 4), s(sWS, 4), s(sTmp), q * 2048 + (tl & 1) * 64)
                else:
                    e("buffer_store_dwordx4 %s, v5, %s, %s offen offset:%d sc1", v(d + 4 * q, 4), s(sWS, 4), s(sTmp), q * 1024)
        if first:
            for jj in range(4):
                e("ds_read_b128 %s, v7 offset:%d", v(MM + 4 * jj, 4), 512 + jj * 32)
            e("v_and_b32 v15, 31, v0")
            e("v_cmp_eq_u32 vcc, 0, v15")
            e("v_cmp_eq_u32 s[4:5], 8, v15")
            e("v_mov_b32 v13, 0x44200000")
            e("v_cndmask_b32 v14, 0, -1, vcc")
            e("v_cndmask_b32 v15, 0, -1, s[4:5]")
        if EPH:
            e("s_nop 15")
        pack(0)
        e("s_waitcnt lgkmcnt(0)")
        if first:
            e("v_and_b32 v7, v13, v14")
        for i in range(0, 0 if EPH else 16, 2):
            e("v_pk_mul_f32 %s, %s, %s", v(CO + i, 2), v(CO + i, 2), v(RR + i, 2))
            e("v_pk_mul_f32 %s, %s, %s neg_lo:[1,0] neg_hi:[1,0]", v(SI + i, 2), v(SI + i, 2), v(RR + i, 2))
        for i in range(0 if EPH else 8):
            e("v_cvt_pk_bf16_f32 %s, %s, %s", v(FC + i), v(CO + 2 * i), v(CO + 2 * i + 1))
            e("v_cvt_pk_bf16_f32 %s, %s, %s", v(FC + 8 + i), v(SI + 2 * i), v(SI + 2 * i + 1))
        e("s_nop 1")
        if EPI:
            N_ = len(order)
            for n in range(-1, N_):
                S = cap(lambda: stage(n + 1)) if n + 1 < N_ else []
                P_ = cap(lambda: pack(n + 2)) if n + 2 < N_ else []
                D_ = defer.pop() if defer else []
                F_ = cap(lambda: finish(n)) if n >= 0 else []
                if not S:
                    A.lines += (D_ + ["    s_nop 7"] if D_ else ["    s_nop 15"]) + F_
                elif not F_:
                    k = (len(P_) + 2) // 3
                    A.lines += S[:1] + P_[:k] + S[1:2] + P_[k:2 * k] + S[2:3] + P_[2 * k:] + S[3:]
                else:
                    if len(P_) < 12:
                        P_ = P_ + ["    s_nop 10"]
                    k = 16 if len(F_) < 20 else 24
                    A.lines += S[:1] + P_ + D_ + S[1:2] + F_[:9] + S[2:3] + F_[9:k] + S[3:] + F_[k:]
            return
        stage(0)
        for n in range(len(order)):
            if n + 1 < len(order):
                pack(n + 1)
                stage(n + 1)
                if order[n + 1] == 5:
                    e("s_nop 7")
            else:
                e("s_nop 15")
            finish(n)
    e("s_cmp_eq_u32 %s, 0", s(sCG))
    e("s_cbranch_scc1 L_dft_e0")
    epilogue(False)
    e("s_branch L_dft_c")
    A.label("L_dft_e0")
    epilogue(True)


def mid_k1():
    e("s_and_b32 s3, s2, 7")
    e("s_lshl_b32 %s, s3, 2", s(sK1))
    e("s_bfe_u32 s3, s2, 0x20004")
    e("s_add_u32 %s, %s, s3", s(sK1), s(sK1))
    e("s_bfe_u32 s3, s2, 0x10003")


def mid():
    FC, PD = 64, 48
    XU, WY, DF = [128, 160], [192, 224], [16, 40]
    vL, vT, vWr, vUo, vP, vTG = 5, 6, 7, 10, 11, 15
    e("v_lshlrev_b32 %s, 4, v0", v(vL))
    e("v_and_b32 v9, 3, v0")
    e("v_add_u32 v13, %d, %s", FR_L, v(vL))
    for n in range(8):
        e("ds_read_b128 %s, v13 offset:%d", v(FC + 4 * n, 4), n * 1024)
    for i in range(32):
        e("v_mov_b32 %s, 0", v(WY[0] + i))
    e("v_and_b32 v8, 15, v0")
    e("v_lshrrev_b32 v12, 2, v0")
    e("v_lshlrev_b32 %s, 6, v12", v(vT))
    e("v_lshl_add_u32 %s, v9, 4, %s", v(vT), v(vT))
    e("v_add_u32 %s, %s, %s", v(vT), s(sM0), v(vT))
    e("v_and_b32 v13, 12, v12")
    e("v_bfe_u32 v14, v0, 3, 1")
    e("v_lshl_add_u32 v13, v14, 4, v13")
    e("v_bfe_u32 v14, v0, 2, 1")
    e("v_lshl_add_u32 v13, v14, 1, v13")
    e("v_mul_u32_u24 v12, %d, v13", TSTR)
    e("v_lshl_add_u32 %s, v9, 4, v12", v(vTG))
    e("v_lshrrev_b32 v9, 4, v0")
    e("v_lshlrev_b32 %s, 6, v8", v(vUo))
    e("v_lshl_add_u32 %s, v9, 4, %s", v(vUo), v(vUo))
    e("v_mul_u32_u24 v12, %d, v9", 4 * 336)
    e("v_lshl_add_u32 v12, v8, 2, v12")
    e("s_add_u32 %s, %s, %s", s(sTmp), s(sMW), s(sPar))
    e("v_add_u32 %s, %s, v12", v(vWr), s(sTmp))
    e("v_bfe_u32 v12, v0, 3, 1")
    e("v_lshlrev_b32 v12, 1, v12")
    e("v_bfe_u32 v13, v0, 4, 1")
    e("v_lshl_add_u32 v12, v13, 4, v12")
    e("v_lshrrev_b32 v14, 5, v0")
    e("v_lshl_add_u32 v12, v14, 2, v12")
    e("v_mul_u32_u24 v12, %d, v12", TSTR)
    e("v_bfe_u32 v14, v0, 2, 1")
    e("v_xor_b32 v13, v13, v14")
    e("v_lshl_add_u32 v12, v13, 6, v12")
    e("v_and_b32 v13, 3, v0")
    e("v_lshl_add_u32 v1, v13, 4, v12")
    e("v_lshrrev_b32 v12, 2, v0")
    e("v_lshlrev_b32 v12, 7, v12")
    e("v_lshl_add_u32 v12, v13, 4, v12")
    e("v_bfe_u32 v13, v0, 3, 1")
    e("v_lshl_add_u32 v12, v13, 6, v12")
    e("v_add_u32 v2, %s, v12", s(sM0))
    e("v_xor_b32 v4, 64, v2")
    e("v_add_u32 v8, %s, v12", s(sLB2))
    e("v_xor_b32 v9, 64, v8")
    e("s_waitcnt vmcnt(0) lgkmcnt(0)")
    lab = A.newlabel("L_noft")
    e("s_cmp_lg_u32 %s, 3", s(sWN))
    e("s_cbranch_scc1 %s", lab)
    if PPT:
        poll_check_pipe(PD, PPT, vP, WS_FT, PPG)
    else:
        poll_check(PD, 1, vP, WS_FT)
    A.label(lab)
    e("s_barrier")
    stamp("m_B")
    e("s_mul_i32 %s, %s, %d", s(sDelta), s(sK1), USTR)
    e("s_lshl_b32 %s, %s, 12", s(sTmp), s(sJB))
    e("s_add_u32 %s, %s, %s", s(sDelta), s(sDelta), s(sTmp))
    e("s_add_u32 %s, %s, 0x%x", s(sDelta), s(sDelta), WS_U)

    def gather(un):
        for n in range(4):
            e("s_add_u32 m0, %s, %d", s(sM0), n * 1024)
            e("s_add_u32 %s, %s, %d", s(sTmp), s(sTB), WS_T + (32 * (n & 1) + (n >> 1)) * TSTR)
            e("buffer_load_dwordx4 %s, %s, %s offen sc1 lds", v(vTG), s(sWS, 4), s(sTmp))

    def gather2():
        for kap in range(2):
            for n in range(4):
                e("s_add_u32 m0, %s, %d", s(sLB2 if kap else sM0), n * 1024)
                e("s_add_u32 %s, %s, %d", s(sTmp), s(sTB), WS_T + (32 * (n >> 1) + 8 * (n & 1) + kap) * TSTR)
                e("buffer_load_dwordx4 v1, %s, %s offen sc1 lds", s(sWS, 4), s(sTmp))

    def R2(u):
        for ri in range(2):
            for kap in range(2):
                for rd in range(2):
                    e("ds_read_b64_tr_b16 %s, %s offset:%d", v(DF[u] + 8 * ri + 4 * kap + 2 * rd, 2), v((2, 4, 8, 9)[kap * 2 + u]), rd * 2048 + ri * 8)

    def gathered():
        if EST == 3:
            e("v_mov_b32 v12, %d", LGO)
            e("v_mov_b32 v13, 1")
            e("s_mov_b64 exec, 1")
            e("ds_add_u32 v12, v13 offset:8")
            e("s_mov_b64 exec, -1")

    def F(ri, t, par): return FC + ((ri * 2 + t) * 2 + par) * 4

    def R(u):
        for ri in range(2):
            for kap in range(2):
                for rd in range(2):
                    e("ds_read_b64_tr_b16 %s, %s offset:%d", v(DF[u] + 8 * ri + 4 * kap + 2 * rd, 2), v(14 if u else vT), kap * 2048 + rd * 1024 + ri * 8)

    def N(u):
        for i in range(8):
            e("v_xor_b32 %s, 0x80008000, %s", v(DF[u] + 16 + i), v(DF[u] + 8 + i))

    def WR(u):
        for mt in range(4):
            for i in range(4):
                for arr in range(2):
                    e("ds_read_u16_d16_hi %s, %s offset:%d", v(WY[u] + arr * 16 + 4 * mt + i), v(vWr), arr * MWA + (16 * mt + i) * 336 + 64 * u)

    def SA(u):
        Tre, Tim, Tni = DF[u], DF[u] + 8, DF[u] + 16
        for t in range(2):
            for step in range(2):
                for par in range(2):
                    xr, xi = XU[u] + 4 * (t + 2 * par), XU[u] + 16 + 4 * (t + 2 * par)
                    if step == 0:
                        mm16(xr, F(0, t, par), Tre + 4 * par, True)
                        mm16(xi, F(1, t, par), Tre + 4 * par, True)
                    else:
                        mm16(xr, F(1, t, par), Tni + 4 * par)
                        mm16(xi, F(0, t, par), Tim + 4 * par)

    def BF(u):
        for t in range(2):
            for b in (XU[u] + 4 * t, XU[u] + 4 * t + 2, XU[u] + 16 + 4 * t, XU[u] + 18 + 4 * t):
                e("v_pk_add_f32 %s, %s, %s", v(b, 2), v(b, 2), v(b + 8, 2))
            for b in (XU[u] + 4 * t, XU[u] + 4 * t + 2, XU[u] + 16 + 4 * t, XU[u] + 18 + 4 * t):
                e("v_pk_fma_f32 %s, %s, 2.0, %s op_sel_hi:[1,0,1] neg_lo:[1,0,0] neg_hi:[1,0,0]", v(b + 8, 2), v(b + 8, 2), v(b, 2))

    def YP(u):
        BF(u)
        for n in range(0, 16, 4):
            for k in (0, 2):
                e("v_pk_mul_f32 %s, %s, %s", v(8 if k else 12, 2), v(XU[u] + 16 + n + k, 2), v(WY[u] + 16 + n + k, 2))
            for k in (0, 2):
                e("v_pk_mul_f32 %s, %s, %s", v(WY[u] + 16 + n + k, 2), v(XU[u] + n + k, 2), v(WY[u] + 16 + n + k, 2))
            for k in (0, 2):
                e("v_pk_fma_f32 %s, %s, %s, %s", v(WY[u] + 16 + n + k, 2), v(XU[u] + 16 + n + k, 2), v(WY[u] + n + k, 2), v(WY[u] + 16 + n + k, 2))
            for k in (0, 2):
                e("v_pk_fma_f32 %s, %s, %s, %s neg_lo:[0,0,1] neg_hi:[0,0,1]", v(WY[u] + n + k, 2), v(XU[u] + n + k, 2), v(WY[u] + n + k, 2), v(8 if k else 12, 2))

    def CV(u):
        for mt in range(4):
            for par in range(2):
                w_r, w_i = WY[u] + 4 * mt + par, WY[u] + 16 + 4 * mt + par
                e("v_cvt_pk_bf16_f32 %s, %s, %s", v(DF[u] + 8 + 4 * par + mt), v(w_i), v(w_i + 2))
                e("v_cvt_pk_bf16_f32 %s, %s, %s", v(DF[u] + 4 * par + mt), v(w_r), v(w_r + 2))
            for par in range(2):
                e("v_xor_b32 %s, 0x80008000, %s", v(DF[u] + 16 + 4 * par + mt), v(DF[u] + 4 * par + mt))

    def SB(u):
        Yre, Yim, Ynr = DF[u], DF[u] + 8, DF[u] + 16
        for t in range(2):
            for step in range(2):
                for par in range(2):
                    ur, ui = XU[u] + 4 * (t + 2 * par), XU[u] + 16 + 4 * (t + 2 * par)
                    if step == 0:
                        mm16(ur, Yre + 4 * par, F(0, t, par), True)
                        mm16(ui, Yim + 4 * par, F(0, t, par), True)
                    else:
                        mm16(ur, Yim + 4 * par, F(1, t, par))
                        mm16(ui, Ynr + 4 * par, F(1, t, par))

    def O(u):
        if u:
            e("s_add_u32 %s, %s, 8192", s(sDelta), s(sDelta))
        for nt in range(4):
            ur, ui = XU[u] + 4 * nt, XU[u] + 16 + 4 * nt
            e("v_cvt_pk_bf16_f32 %s, %s, %s", v(ur), v(ur), v(ur + 1))
            e("v_cvt_pk_bf16_f32 %s, %s, %s", v(ur + 1), v(ur + 2), v(ur + 3))
            e("v_cvt_pk_bf16_f32 %s, %s, %s", v(ur + 2), v(ui), v(ui + 1))
            e("v_cvt_pk_bf16_f32 %s, %s, %s", v(ur + 3), v(ui + 2), v(ui + 3))
            e("buffer_store_dwordx4 %s, %s, %s, %s offen offset:%d sc1", v(ur, 4), v(vUo), s(sWS, 4), s(sDelta), nt * 1024)

    def lines(*fs):
        return [[ln] for f in fs for ln in cap(f)]

    def mix(a_, b_):
        out = []
        for i in range(max(len(a_), len(b_))):
            out += a_[i:i + 1] + b_[i:i + 1]
        return out
    one, done = A.newlabel("L_one"), A.newlabel("L_midd")
    e("s_cmp_eq_u32 %s, 1", s(sNU))
    e("s_cbranch_scc1 %s", one)
    gather2()
    gathered()
    if WP:
        assert R3A == 0 and R3B == 0
        for i_, ct in WPRE:
            e("s_add_u32 %s, %s, %d", s(sTmp), s(sWa if ct < 4 else sWc), i_ * 4096 + WOFF[ct][1])
            e("buffer_load_dwordx4 %s, %s, %s, %s offen sc1", v(wreg(i_, ct), 4), v(vL), s(sWS, 4), s(sTmp))
    for i in range(32):
        e("v_mov_b32 %s, 0", v(WY[1] + i))
    if MWE:
        WR(0)
        WR(1)
    e("s_waitcnt vmcnt(%d)", 8 if WP else 0)
    stamp("m_T")
    R2(0)
    if not MWE:
        WR(0)
    e("s_waitcnt lgkmcnt(%d)", 0 if MWE else 15)
    if not MWE:
        e("s_waitcnt vmcnt(0)")
    N(0)
    w1 = lines(lambda: WR(1)) if not MWE else []
    weave(cap(lambda: SA(0)), lines(lambda: R2(1)) + w1[:24], skip=1)
    e("s_waitcnt lgkmcnt(%d)", 0 if MWE else 15)
    N(1)
    YP(0)
    weave(cap(lambda: SA(1)), mix(lines(lambda: CV(0)), w1[24:]), skip=1)
    e("s_waitcnt lgkmcnt(0)")
    e("s_nop 6")
    stamp("m_u1")
    if EH:
        poll_issue(4, 1, 3, WS_FH)
    YP(1)
    weave(cap(lambda: SB(0)), lines(lambda: CV(1)), skip=1)
    e("s_nop 6")
    BF(0)
    weave(cap(lambda: SB(1)), lines(lambda: O(0)), skip=1)
    e("s_nop 7")
    BF(1)
    O(1)
    e("s_branch %s", done)
    A.label(one)
    if MPR:
        e("s_setprio %d", MPR)
    gather(0)
    gathered()
    nci = z_ci_sub(CI_EARLY) if ECI == 3 and not CG else 0
    if MWE:
        WR(0)
    e("s_waitcnt vmcnt(%d)", nci)
    stamp("m_T")
    R(0)
    if not MWE:
        WR(0)
    e("s_waitcnt lgkmcnt(%d)", 0 if MWE else 15)
    N(0)
    e("s_nop 0")
    SA(0)
    e("s_waitcnt lgkmcnt(0)")
    e("s_nop 6")
    YP(0)
    CV(0)
    e("s_nop 1")
    SB(0)
    e("s_nop 7")
    BF(0)
    O(0)
    A.label(done)


hdr = open("cdna_kernels/%s.s.ref" % NAME).read().split("; Override launch")[0]
A(hdr.rstrip())
A("; @launch grid=(256,1,1) block=(512,1,1) lds=%d" % LDS_ALL)
A('.amdgcn_target "amdgcn-amd-amdhsa--gfx950"')
KN = NAME + "_kernel"
kernel_header(A, KN)
stamp("start")
if STAMPS:
    for i in range(1, 9):
        e("s_mov_b32 %s, 0", s(84 + 2 * i))
e("s_cmp_ge_u32 s2, 256")
e("s_cbranch_scc1 L_end")
e("s_load_dwordx16 %s, s[0:1], 0", s(P, 16))
e("s_load_dwordx4 %s, s[0:1], 64", s(P + 16, 4))
e("v_lshrrev_b32 v1, 6, v0")
e("v_and_b32 v0, 63, v0")
e("v_readfirstlane_b32 %s, v1", s(sW))
if CT == 3:
    e("s_cmp_lg_u32 %s, 0", s(sW))
    e("s_cbranch_scc1 L_noct")
    code_touch()
    A.label("L_noct")
e("s_and_b32 s3, s2, 1")
e("s_lshl_b32 %s, s3, 3", s(sRB))
e("s_bfe_u32 s3, s2, 0x30003")
e("s_add_u32 %s, %s, s3", s(sRB), s(sRB))
e("s_lshr_b32 %s, s2, 6", s(sTmp2))
e("s_bfe_u32 s3, s2, 0x20001")
e("s_mul_i32 %s, s3, 3", s(sCG))
e("s_add_u32 %s, %s, %s", s(sCG), s(sCG), s(sTmp2))
if opt("cgr", 0):
    e("s_add_u32 %s, %s, %d", s(sCG), s(sCG), opt("cgr", 0))
    e("s_cmp_ge_u32 %s, 12", s(sCG))
    e("s_cselect_b32 %s, 12, 0", s(sTmp))
    e("s_sub_u32 %s, %s, %s", s(sCG), s(sCG), s(sTmp))
e("s_and_b32 %s, %s, 3", s(sLW), s(sW))
e("s_cmp_eq_u32 %s, 3", s(sTmp2))
e("s_cbranch_scc1 L_dft")
e("s_cmp_ge_u32 %s, 4", s(sW))
e("s_cbranch_scc0 L_ffn_c")
ffn_loader()
A.label("L_ffn_c")
p1_ffn()
A.label("L_dft")
if opt("nodft", 0):
    e("s_endpgm")
e("s_mov_b32 %s, s3", s(sCG))
e("s_cmp_ge_u32 %s, 4", s(sW))
e("s_cbranch_scc0 L_dftc")
dft_loader()
A.label("L_dftc")
p1_dft()
A.label("L_dft_c")
stamp("dc_ep")
if opt("p1p", 0) & 4:
    e("s_setprio 0")
if EPR:
    e("s_setprio 0")
if ZGL:
    e("v_mov_b32 v12, %d", LGO)
    e("v_mov_b32 v13, 1")
    e("ds_write_b32 v12, v13 offset:12")
e("s_waitcnt vmcnt(0)")
stamp("dc_st")
e("v_mov_b32 v12, %d", LGO)
e("v_mov_b32 v13, 1")
e("s_mov_b64 exec, 1")
e("ds_add_rtn_u32 v13, v12, v13 offset:4")
e("s_mov_b64 exec, -1")
e("v_lshlrev_b32 v11, 7, v0")
e("s_waitcnt lgkmcnt(0)")
e("v_readfirstlane_b32 %s, v13", s(sWN))
e("s_cmp_lg_u32 %s, 3", s(sWN))
e("s_cbranch_scc1 L_noft")
flag_store(sFlag, 12, 13)
if OWN:
    e("s_sub_u32 %s, %s, 0x%x", s(sTmp), s(sFlag), WS_FT)
    e("v_cmp_eq_u32 vcc, %s, v11", s(sTmp))
    e("v_xor_b32 v12, 128, v11")
    e("v_cndmask_b32 v11, v11, v12, vcc")
poll_issue(48, 1, 11, WS_FT)
if EST == 4:
    e("v_mov_b32 v12, %d", LGO)
    e("v_mov_b32 v13, 1")
    e("ds_write_b32 v12, v13 offset:12")
A.label("L_noft")
if EH:
    fh_addr()
mid_k1()
wspec_shift(sMW)
e("s_and_b32 %s, %s, 1", s(sTmp2), s(sW))
e("s_lshl_b32 %s, %s, 7", s(sTmp), s(sTmp2))
e("s_add_u32 %s, %s, %s", s(sMW), s(sMW), s(sTmp))
e("s_add_u32 %s, %s, %d", s(sMW), s(sMW), MW0)
e("s_and_b32 %s, %s, 2", s(sPar), s(sW))
e("s_add_u32 %s, s3, %s", s(sTmp), s(sPar))
e("s_mul_i32 %s, %s, 10240", s(sTB), s(sTmp))
e("s_lshl_b32 %s, %s, 12", s(sTmp), s(sTmp2))
e("s_add_u32 %s, %s, %s", s(sTB), s(sTB), s(sTmp))
e("s_lshl_b32 %s, %s, 7", s(sTmp), s(sK1))
e("s_add_u32 %s, %s, %s", s(sTB), s(sTB), s(sTmp))
e("s_mul_i32 s3, s3, 10")
e("s_lshl_b32 %s, %s, 2", s(sTmp2), s(sTmp2))
e("s_add_u32 s3, s3, %s", s(sTmp2))
e("s_lshr_b32 %s, %s, 1", s(sTmp), s(sW))
e("s_add_u32 %s, s3, %s", s(sJB), s(sTmp))
e("s_mov_b32 %s, 2", s(sNU))
e("s_lshl_b32 %s, %s, 12", s(sM0), s(sW))
e("s_add_u32 %s, %s, %d", s(sM0), s(sM0), MT0)
e("s_mul_i32 %s, %s, %d", s(sLB2), s(sW), CPS)
e("s_add_u32 %s, %s, %d", s(sLB2), s(sLB2), CP0 + 15360)
e("s_branch L_mid")

A.label("L_dft_l")
e("s_mov_b32 %s, 0", s(sWN))
e("v_lshlrev_b32 v11, 7, v0")
mid_k1()
e("s_add_u32 %s, s3, 2", s(sTmp))
e("s_cmp_ge_u32 %s, %s", s(sLW), s(sTmp))
e("s_cbranch_scc1 L_dft_l3")
wspec_shift(sMW)
e("s_add_u32 %s, %s, %d", s(sMW), s(sMW), MW0 + 256)
e("s_lshl_b32 %s, %s, 1", s(sTmp), s(sLW))
e("s_add_u32 %s, %s, s3", s(sTmp), s(sTmp))
e("s_mul_i32 %s, %s, 10240", s(sTB), s(sTmp))
e("s_add_u32 %s, %s, 8192", s(sTB), s(sTB))
e("s_cmp_eq_u32 %s, 2", s(sLW))
e("s_cselect_b32 %s, 40960, %s", s(sTB), s(sTB))
e("s_lshl_b32 %s, %s, 6", s(sTmp), s(sK1))
e("s_add_u32 %s, %s, %s", s(sTB), s(sTB), s(sTmp))
e("s_mul_i32 s3, s3, 10")
e("s_add_u32 s3, s3, 8")
e("s_add_u32 %s, s3, %s", s(sJB), s(sLW))
e("s_lshl_b32 %s, %s, 1", s(sPar), s(sLW))
e("s_cmp_eq_u32 %s, 2", s(sLW))
e("s_cselect_b32 %s, 64, %s", s(sPar), s(sPar))
e("s_mov_b32 %s, 1", s(sNU))
e("s_lshl_b32 %s, %s, 12", s(sM0), s(sLW))
e("s_add_u32 %s, %s, %d", s(sM0), s(sM0), FI_L)
A.label("L_mid")
mid()
stamp("m_end")
e("s_cmp_ge_u32 %s, 4", s(sW))
e("s_cbranch_scc1 L_dft_l2")
p3_pre()
if EH:
    e("s_waitcnt vmcnt(8)")
    e("v_cmp_ne_u32 vcc, %s, v4", s(sTAG))
    e("s_cbranch_vccnz L_eh0")
    for i in range(EH):
        hload_(i)
    e("s_mov_b32 %s, 2", s(sNU))
    e("s_waitcnt vmcnt(%d)", 4 * EH)
    e("s_branch L_eh1")
    A.label("L_eh0")
e("s_mov_b32 %s, 0", s(sNU))
if EFH:
    if not EH:
        fh_addr()
    poll_issue(7, 1, 3, WS_FH)
e("s_waitcnt vmcnt(0)")
A.label("L_eh1")
stamp("m_st")
e("s_barrier")
e("s_cmp_lg_u32 %s, 0", s(sW))
e("s_cbranch_scc1 L_nofu")
e("s_lshl_b32 %s, s2, 7", s(sFlag))
e("s_add_u32 %s, %s, %d", s(sFlag), s(sFlag), WS_FU - 192 * 128)
flag_store(sFlag, 12, 13)
A.label("L_nofu")
A.label("L_p3c")
p3c()
e("s_branch L_fin")

A.label("L_dft_l3")
e("v_lshlrev_b32 v5, 4, v0")
if EST:
    if ECI and EST < 3:
        z_ci_sub(CI_LATE)
    e("s_waitcnt vmcnt(0)")
    if EST >= 3:
        poll_check(41, 1, 10, WS_FW)
    if EST == 4:
        e("s_cmp_lg_u32 %s, 3", s(sLW))
        e("s_cbranch_scc1 L_dft_l7")
        e("v_mov_b32 v12, %d", LGO)
        A.label("L_dft_l8")
        e("ds_read_b32 v13, v12 offset:12")
        e("s_waitcnt lgkmcnt(0)")
        e("v_cmp_ne_u32 vcc, 1, v13")
        e("s_cbranch_vccnz L_dft_l8")
        stage_all()
        stamp("dl_st")
        A.label("L_dft_l7")
    e("s_barrier")
    if EST == 4:
        e("s_waitcnt vmcnt(0)")
    if EST == 3:
        if ECI < 3:
            e("s_cmp_lg_u32 %s, 3", s(sLW))
            e("s_cbranch_scc1 L_dft_l7")
        e("v_mov_b32 v12, %d", LGO)
        e("s_add_u32 s3, s3, 6")
        A.label("L_dft_l8")
        e("ds_read_b32 v13, v12 offset:8")
        e("s_waitcnt lgkmcnt(0)")
        e("v_cmp_ne_u32 vcc, s3, v13")
        e("s_cbranch_vccnz L_dft_l8")
        if ECI == 3:
            e("s_cmp_lg_u32 %s, 3", s(sLW))
            e("s_cbranch_scc1 L_dft_l7")
            stage_all()
            if not CG:
                e("s_waitcnt vmcnt(40)")
            A.label("L_dft_l7")
            if CG:
                ci_gen(CI_LATE)
            nci_ = z_ci_sub(range(18)) if not CG else 0
            e("s_waitcnt vmcnt(%d)", nci_)
            stamp("dl_st")
        else:
            stage_all()
            e("s_waitcnt vmcnt(0)")
            stamp("dl_st")
            A.label("L_dft_l7")
    e("s_barrier")
    stage_wd(3, 4)
    if ECI:
        stage_done(0)
        e("v_lshlrev_b32 v11, 7, v0")
        e("s_branch L_dft_l6")
    else:
        e("s_branch L_dft_l5")
    A.label("L_dft_l2")
    if MPR:
        e("s_setprio 0")
    e("s_waitcnt vmcnt(0)")
    e("s_barrier")
    stage_wd(3, 4)
    A.label("L_dft_l5")
    fu_poll_issue()
    if CG:
        ci_setup()
        ci_gen(CI_LATE[:4])
        stage_done(0)
        ci_gen(CI_LATE[4:])
    else:
        stage_done(z_ci_sub(CI_LATE if ECI else range(18)))
    A.label("L_dft_l6")
else:
    e("s_waitcnt vmcnt(0)")
    e("s_barrier")
    e("s_branch L_dft_l4")
    A.label("L_dft_l2")
    stage_wd(0, 3)
    e("s_waitcnt vmcnt(15)")
    e("s_barrier")
    e("s_branch L_dft_l5")
    A.label("L_dft_l4")
    e("s_barrier")
    stage_wd(0, 3)
    A.label("L_dft_l5")
    stage_wd(3, 4)
    fu_poll_issue()
    stage_done(z_ci_sub(CI_LATE if ECI else range(18)))
A.label("L_zpart")
zpart()
A.label("L_fin")
if STAMPS and "--dbg" not in sys.argv:
    stamp("issued_out")
    e("s_waitcnt vmcnt(0)")
    e("%s s[100:101]", "s_memtime" if "--cyc" in sys.argv else "s_memrealtime")
    e("s_waitcnt lgkmcnt(0)")
    for i in range(9):
        e("v_mov_b32 %s, %s", v(16 + i), s(84 + 2 * i))
    e("s_lshl_b32 s3, s2, 3")
    e("s_add_u32 s3, s3, %s", s(sW))
    e("s_lshl_b32 s3, s3, 6")
    e("s_add_u32 s3, s3, 0x%x", WS_STAMP)
    e("v_mov_b32 v5, 0")
    for i in range(3):
        e("buffer_store_dwordx4 %s, v5, %s, s3 offen offset:%d", v(16 + 4 * i, 4), s(sWS, 4), 16 * i)
if "--dbg" in sys.argv:
    e("s_load_dwordx2 s[4:5], s[0:1], 64")
    e("s_waitcnt vmcnt(0) lgkmcnt(0)")
    e("s_memrealtime s[100:101]")
    srd(A, 8, 4, 256)
    e("s_waitcnt lgkmcnt(0)")
    e("s_mov_b64 exec, 1")
    e("s_not_b32 s84, s84")
    e("s_cmp_ge_u32 s2, 192")
    e("s_cselect_b32 s3, 32, 0")
    for i in range(8):
        k = [0, 8, 1, 2, 3, 4, 5, 6][i]
        e("v_mov_b32 v16, %s", s(84 + 2 * k))
        e("v_mov_b32 v17, %d", 4 * i)
        e("buffer_atomic_umax v16, v17, s[8:11], s3 offen sc1")
A.label("L_end")
e("s_endpgm")
flush_cold()
A.label("L_code_end")

kernel_desc(A, KN, 256, accum=256)
TB.emit_tables(A)
out = [x for x in sys.argv[1:] if not x.startswith("--")]
open(out[0] if out else "v34.s", "w").write(A.text())
```

```python
import sys
from asmlib import *
import tables19 as TB
if "--cg=0" not in sys.argv:
    TB.drop_ci()

NAME = "parallel_sum__spectral_gfnet__glu_gated_reglu__prompt"
A = Asm()
e = A.e


def opt(name, default):
    for x in sys.argv:
        if x.startswith("--%s=" % name):
            return int(x.split("=")[1])
    return default


STAMPS = "--stamps" in sys.argv
SLEEP, PX = opt("sleep", 1), opt("px", 1)
ROTA, ROTB = opt("rota", 1), opt("rotb", 3)
CIP1 = opt("cip1", 0)
DROT = opt("drot", 0)
WSP = opt("wsp", 2)
PRL = opt("prl", 0)
WARM = opt("warm", 0)
FOLD = opt("fold", 1)
POLL1 = opt("poll1", 0)
CIL = opt("cil", 1)
STG = opt("stg", 1)
ZPR = opt("zpr", 3)
MPR = opt("mpr", 0)
CT = opt("ct", 3)
DS = opt("ds", 1)
PPT, PPG, OWN = opt("ppt", 0), opt("ppg", 2), opt("own", 1)
EPR, ZGL, EPI = opt("epr", 0), opt("zgl", 1), opt("epi", 1)
XT, WT = opt("xt", 2), opt("wt", 2)
WP, RI = opt("wp", 1), opt("ri", 1)
TB.SPLIT = bool(RI)
EPH, MPR = opt("eph", 1), opt("mpr", 0)
P3O, ZE = opt("p3o", 1), opt("ze", 0)
ZPN, ZPF = opt("zpn", 2), opt("zpf", 1)
CG = opt("cg", 1)
TL, SG, WTN = opt("tl", 1), opt("sg", 0), opt("wtn", 4)
XQ = opt("xq", 1)
TP = opt("tp", 3)
ZIL, ZSK, FIL = opt("zil", 1), opt("zsk", 1), opt("fil", 1)
MAP8, PF3, PFP = opt("map8", 0), opt("pf3", 2 if opt("cg", 1) else 3), opt("pfp", 1)
R3A, R3B, RZ = opt("r3a", 0), opt("r3b", 0), opt("rz", 0)
OUTF = ["", " sc1", " nt", " sc0 sc1"][opt("outf", 0)]
NFIX = opt("nfix", 0)

WS_EP = 0x0000
WS_FS = 0x1000
WS_FSC = WS_FS + 128 * 128
WS_FT = 0xC000
WS_FU = 0xE000
WS_FH = 0x10000
WS_FW = 0x50000
WS_STAT = 0x28000
WS_CSP = 0x30000
WS_H = 0x60000
WS_T = 0x660000
TSTR, USTR = 43008 + opt("tpad", 128), 86016 + opt("upad", 128)
WS_U = 0x910000
WS_WD = 0xBC0000
WS_STAMP = 0x2000000

SLAB = 49152
AUX = 3 * SLAB
ZU0, ZUS = 0, 16384
CP0, CPS = 65536, 20480
LGO = AUX + 2048
XB = CP0 + 10240
CBASE, CSTR = [0, 20480, CP0, CP0 + 5120, 45056], [5120, 5120, CPS, CPS, 5120]
FR_L, FI_L = AUX + 2048 + 128, AUX + 2048 + 128
MW0, MWA = 0, 22272
MT0 = 45056
RPK = FI_L
LDS_ALL = FI_L + 12288

sX, sG, sU, sWS, sTAB, sWR, sWI, sWD, sOUT = 8, 12, 16, 20, 24, 28, 32, 36, 40
sW, sRB, sCG, sLW = 44, 45, 46, 47
sTmp, sTmp2, sCnt, sDelta, sBuf, sSLAB = 48, 49, 50, 51, 52, 53
sAoff, sBoff, sM0 = 54, 55, 56
sWM, sWN, sFlag = 57, 58, 59
sK1, sJB, sTAG, sSpin = 60, 61, 62, 63
P = 64
sP, sG3, sHo, sWo, sUo, sCo, sLB, sLB2, sOo, sOc, sOOB = 64, 65, 66, 67, 68, 69, 70, 71, 72, 73, 74
sSgn, sS2, sNU, sWcol, sPar = 76, 78, 79, 80, 81
sWa, sWb, sWc, sMW = 6, 7, 75, 80
sTB = 55
sR3, sRZ, sI4 = 82, 83, 67
SRDS = {"X": (sX, P, 2048 * 1280), "WR": (sWR, P + 2, 2048 * 642), "WI": (sWI, P + 4, 2048 * 642),
        "G": (sG, P + 8, 640 * 3072), "U": (sU, P + 10, 640 * 3072), "WD": (sWD, P + 12, 1536 * 1280),
        "OUT": (sOUT, P + 14, 2048 * 1280), "WS": (sWS, P + 18, 1 << 28)}


class VQ:
    def __init__(self):
        self.q = []
    def issue(self, tag, n=1):
        self.q += [tag] * n
    def wait(self, *tags, extra=""):
        last = max([i for i, t in enumerate(self.q) if t in tags], default=-1)
        n = len(self.q) - 1 - last
        assert n <= 63, n
        e("s_waitcnt vmcnt(%d)%s", n, extra)
        self.q = self.q[last + 1:]
    def drain(self):
        self.q = []


STN = {}
for x in sys.argv:
    if x.startswith("--st="):
        for i_, grp in enumerate(x[5:].split(",")):
            for nm in grp.split("+"):
                STN[nm] = i_ + 1
STN["start"] = 0


def cap(fn):
    keep, A.lines = A.lines, []
    fn()
    out, A.lines = A.lines, keep
    return out


def weave(main, groups, skip=0):
    n = len(groups)
    step = (len(main) - skip) / (n + 0.001) if n else 0
    k = 0
    for i, ln in enumerate(main):
        while k < n and i >= skip + k * step:
            A.lines += groups[k]
            k += 1
        A.lines.append(ln)
    while k < n:
        A.lines += groups[k]
        k += 1


COLD = []


def rare(cond, fn):
    la, lb = A.newlabel("L_rare"), A.newlabel("L_back")
    e("%s %s", cond, la)
    A.label(lb)
    body = cap(fn)
    COLD.append(["%s:" % la] + body + ["    s_branch %s" % lb])


def flush_cold():
    while COLD:
        A.lines += COLD.pop(0)


def stamp(nm):
    if STAMPS and nm in STN:
        e("%s %s", "s_memtime" if "--cyc" in sys.argv else "s_memrealtime", s(84 + 2 * STN[nm], 2))


def make_tag():
    e("s_mul_i32 %s, %s, 0x9E3779B1", s(sTAG), s(sTAG))
    e("s_add_u32 %s, %s, 0x7F4A7C15", s(sTAG), s(sTAG))


def flag_store(soff, t0, t1):
    e("v_mov_b32 %s, %s", v(t0), s(sTAG))
    e("v_mov_b32 %s, 0", v(t1))
    e("s_mov_b64 exec, 1")
    e("buffer_store_dword %s, %s, %s, %s offen sc1", v(t0), v(t1), s(sWS, 4), s(soff))
    e("s_mov_b64 exec, -1")


def poll_issue(dst, n, vaddr, base):
    e("s_mov_b32 %s, 0x%x", s(sTmp), base)
    e("buffer_load_dword%s %s, %s, %s, %s offen sc1", "" if n == 1 else "x%d" % n, v(dst, n), v(vaddr), s(sWS, 4), s(sTmp))


def poll_check(dst, n, vaddr, base):
    assert n == 1

    def spin():
        top, done = A.newlabel("L_poll"), A.newlabel("L_polld")
        e("s_mov_b32 %s, 0", s(sSpin))
        A.label(top)
        if PX:
            e("s_mov_b64 exec, vcc")
        if SLEEP:
            e("s_sleep %d", SLEEP)
        poll_issue(dst, n, vaddr, base)
        e("s_add_u32 %s, %s, 1", s(sSpin), s(sSpin))
        e("s_cmp_ge_u32 %s, %d", s(sSpin), opt("spin", 40000))
        e("s_waitcnt vmcnt(0)")
        e("s_cbranch_scc1 %s", done)
        e("v_cmp_ne_u32 vcc, %s, %s", s(sTAG), v(dst))
        e("s_cbranch_vccnz %s", top)
        A.label(done)
        if PX:
            e("s_mov_b64 exec, -1")
    e("v_cmp_ne_u32 vcc, %s, %s", s(sTAG), v(dst))
    rare("s_cbranch_vccnz", spin)


def poll_check_pipe(dst, depth, vaddr, base, gap):
    def spin():
        top, done = A.newlabel("L_pp"), A.newlabel("L_ppd")
        e("s_mov_b32 %s, 0", s(sSpin))
        for k in range(1, depth):
            poll_issue(dst + k, 1, vaddr, base)
            e("s_sleep %d", gap)
        A.label(top)
        for k in range(depth):
            poll_issue(dst + k, 1, vaddr, base)
            e("s_waitcnt vmcnt(%d)", depth - 1)
            e("v_cmp_ne_u32 vcc, %s, %s", s(sTAG), v(dst + (k + 1) % depth))
            e("s_cbranch_vccz %s", done)
            e("s_sleep %d", gap)
        e("s_add_u32 %s, %s, 1", s(sSpin), s(sSpin))
        e("s_cmp_lt_u32 %s, %d", s(sSpin), opt("spin", 40000))
        e("s_cbranch_scc1 %s", top)
        A.label(done)
    e("v_cmp_ne_u32 vcc, %s, %s", s(sTAG), v(dst))
    rare("s_cbranch_vccnz", spin)


def karg_wait(first, rest=()):
    e("s_waitcnt lgkmcnt(0)")
    for k in first:
        srd(A, *SRDS[k])
    e("s_load_dword %s, %s, 0x%x", s(sTAG), s(P + 18, 2), WS_EP)
    for k in rest:
        srd(A, *SRDS[k])


def tab_srd():
    e("s_getpc_b64 s[4:5]")
    e("s_add_u32 s4, s4, dft_tables@rel32@lo+4")
    e("s_addc_u32 s5, s5, dft_tables@rel32@hi+12")
    srd(A, sTAB, 4, TB.TAB_BYTES)


def dpp_sum16(r_):
    for ctl in ("quad_perm:[1,0,3,2]", "quad_perm:[2,3,0,1]", "row_half_mirror", "row_mirror"):
        e("s_nop 1")
        e("v_add_f32_dpp %s, %s, %s %s row_mask:0xf bank_mask:0xf", v(r_), v(r_), v(r_), ctl)


def round_bf16(r_):
    e("v_cvt_pk_bf16_f32 %s, %s, %s", v(r_), v(r_), v(r_))
    e("v_and_b32 %s, 0xffff0000, %s", v(r_), v(r_))


def mm16(d, a_, b_, first=False):
    e("v_mfma_f32_16x16x32_bf16 %s, %s, %s, %s", v(d, 4), v(a_, 4), v(b_, 4), "0" if first else v(d, 4))


def stats_addr(R):
    e("s_lshl_b32 %s, %s, 2", s(sTmp), s(sCG))
    e("s_add_u32 %s, %s, %s", s(sTmp), s(sTmp), s(sW))
    e("s_lshl_b32 %s, %s, 2", s(sTmp), s(sTmp))
    e("v_lshrrev_b32 %s, 4, v0", v(R + 20))
    e("v_add_u32 %s, %s, %s", v(R + 21), s(sTmp), v(R + 20))
    e("v_and_b32 %s, 31, %s", v(R + 20), v(R + 21))
    e("v_lshlrev_b32 %s, 6, %s", v(R + 20), v(R + 20))
    e("v_lshrrev_b32 %s, 5, %s", v(R + 22), v(R + 21))
    e("v_add_u32 %s, %s, %s", v(R + 20), v(R + 20), v(R + 22))
    e("s_lshl_b32 %s, %s, 2", s(sTmp), s(sRB))
    e("v_add_u32 %s, %s, %s", v(R + 20), s(sTmp), v(R + 20))
    e("v_mul_u32_u24 %s, 1280, %s", v(R + 20), v(R + 20))
    e("v_and_b32 %s, 15, v0", v(R + 22))
    e("v_lshl_add_u32 %s, %s, 4, %s", v(R + 20), v(R + 22), v(R + 20))


def stats_issue(R):
    for n in range(5):
        e("buffer_load_dwordx4 %s, %s, %s, 0 offen offset:%d", v(R + 4 * n, 4), v(R + 20), s(sX, 4), n * 256)


def stats_compute(R):
    F = R + 24
    S_, V_, T_ = R + 64, R + 66, R + 22
    for n in range(20):
        e("v_lshlrev_b32 %s, 16, %s", v(F + 2 * n), v(R + n))
        e("v_and_b32 %s, 0xffff0000, %s", v(F + 2 * n + 1), v(R + n))
    e("v_pk_add_f32 %s, %s, %s", v(S_, 2), v(F, 2), v(F + 2, 2))
    for n in range(2, 20):
        e("v_pk_add_f32 %s, %s, %s", v(S_, 2), v(S_, 2), v(F + 2 * n, 2))
    e("v_add_f32 %s, %s, %s", v(S_), v(S_), v(S_ + 1))
    dpp_sum16(S_)
    e("v_mul_f32 %s, 0x3acccccd, %s", v(S_), v(S_))
    for n in range(20):
        e("v_pk_add_f32 %s, %s, %s op_sel_hi:[1,0] neg_lo:[0,1] neg_hi:[0,1]", v(F + 2 * n, 2), v(F + 2 * n, 2), v(S_, 2))
    e("v_pk_mul_f32 %s, %s, %s", v(V_, 2), v(F, 2), v(F, 2))
    for n in range(1, 20):
        e("v_pk_fma_f32 %s, %s, %s, %s", v(V_, 2), v(F + 2 * n, 2), v(F + 2 * n, 2), v(V_, 2))
    e("v_add_f32 %s, %s, %s", v(V_), v(V_), v(V_ + 1))
    dpp_sum16(V_)
    e("v_mul_f32 %s, 0x3acccccd, %s", v(V_), v(V_))
    round_bf16(V_)
    e("v_add_f32 %s, 0x3727c5ac, %s", v(V_), v(V_))
    round_bf16(V_)
    e("v_sqrt_f32 %s, %s", v(V_), v(V_))
    e("s_nop 0")
    round_bf16(V_)
    e("v_rcp_f32 %s, %s", v(V_), v(V_))
    round_bf16(S_)
    e("v_and_b32 %s, 15, v0", v(T_))
    e("v_cmp_eq_u32 vcc, 1, %s", v(T_))
    e("v_lshlrev_b32 %s, 2, %s", v(R + 1), v(R + 21))
    e("v_lshl_add_u32 %s, %s, 9, %s", v(R + 1), v(T_), v(R + 1))
    e("v_cndmask_b32 %s, %s, %s, vcc", v(V_), v(V_), v(S_))
    e("v_cmp_gt_u32 vcc, 2, %s", v(T_))
    e("s_lshl_b32 %s, %s, 10", s(sTmp), s(sRB))
    e("s_add_u32 %s, %s, 0x%x", s(sTmp), s(sTmp), WS_STAT)
    e("s_and_saveexec_b64 s[4:5], vcc")
    e("buffer_store_dword %s, %s, %s, %s offen sc1", v(V_), v(R + 1), s(sWS, 4), s(sTmp))
    e("s_mov_b64 exec, s[4:5]")


def aux_poll_addr(ffn, dst):
    e("s_lshl_b32 %s, %s, 2", s(sTmp), s(sRB))
    e("s_add_u32 %s, %s, %s", s(sTmp), s(sTmp), s(sLW))
    e("s_lshl_b32 %s, %s, 1", s(sTmp), s(sTmp))
    e("v_and_b32 v6, 1, v0")
    e("v_add_u32 v6, %s, v6", s(sTmp))
    if ffn:
        e("s_and_b32 %s, s2, 0xc6", s(sTmp))
        e("s_add_u32 %s, %s, 128", s(sTmp), s(sTmp))
        e("v_and_b32 v7, 7, v0")
        e("v_bfe_u32 v12, v0, 3, 1")
        e("v_min_u32 v7, 4, v7")
        e("v_lshlrev_b32 v7, 3, v7")
        e("v_add3_u32 v7, v7, v12, %s", s(sTmp))
        e("v_cmp_gt_u32 vcc, 16, v0")
        e("s_nop 1")
        e("v_cndmask_b32 v6, v7, v6, vcc")
    e("v_lshlrev_b32 %s, 7, v6", v(dst))


def fw_poll_addr(dst):
    e("s_lshl_b32 %s, %s, 6", s(sTmp), s(sLW))
    e("v_add_u32 %s, %s, v0", v(dst), s(sTmp))
    e("v_min_u32 %s, 159, %s", v(dst), v(dst))
    e("v_lshlrev_b32 %s, 7, %s", v(dst), v(dst))


def aux_addr(ffn, R):
    e("v_and_b32 %s, 31, v0", v(R))
    e("v_lshrrev_b32 %s, 5, v0", v(R + 1))
    e("v_lshlrev_b32 %s, 2, %s", v(R), v(R))
    e("v_lshl_add_u32 %s, %s, 9, %s", v(R), v(R + 1), v(R))
    e("s_lshl_b32 %s, %s, 7", s(sTmp), s(sLW))
    e("v_add_u32 %s, %s, %s", v(R), s(sTmp), v(R))
    if ffn:
        e("v_lshrrev_b32 %s, 4, v0", v(R + 1))
        e("v_mul_u32_u24 %s, 12288, %s", v(R + 1), v(R + 1))
        e("v_and_b32 %s, 15, v0", v(R + 3))
        e("v_lshl_add_u32 %s, %s, 4, %s", v(R + 1), v(R + 3), v(R + 1))
        e("s_lshl_b32 %s, %s, 8", s(sTmp), s(sLW))
        e("s_lshl_b32 %s, %s, 10", s(sTmp2), s(sCG))
        e("s_add_u32 %s, %s, %s", s(sTmp), s(sTmp), s(sTmp2))
        e("v_add_u32 %s, %s, %s", v(R + 1), s(sTmp), v(R + 1))
        e("v_lshrrev_b32 %s, 5, v0", v(R + 16))
        e("v_lshl_add_u32 %s, %s, 29, %s", v(R + 16), v(R + 16), v(R + 1))


def aux_issue(ffn, R):
    e("s_lshl_b32 %s, %s, 10", s(sTmp), s(sRB))
    e("s_add_u32 %s, %s, 0x%x", s(sTmp), s(sTmp), WS_STAT)
    e("buffer_load_dword %s, %s, %s, %s offen sc1", v(R + 2), v(R), s(sWS, 4), s(sTmp))
    if ffn:
        for n in range(3):
            e("s_mov_b32 %s, 0x%x", s(sTmp), WS_CSP + n * 4 * 12288)
            e("buffer_load_dwordx4 %s, %s, %s, %s offen sc1", v(R + 4 + 4 * n, 4), v(R + 16 if n == 2 else R + 1), s(sWS, 4), s(sTmp))


def aux_finish(ffn, R):
    e("v_add_u32 %s, %d, %s", v(R), AUX, v(R))
    if CG and not ffn:
        e("s_mov_b32 exec_hi, 0")
        e("v_mul_f32 %s, 0x35cccccd, %s", v(R + 2), v(R + 2))
        e("s_mov_b32 exec_hi, -1")
    e("ds_write_b32 %s, %s", v(R), v(R + 2))
    if ffn:
        C_, T_ = R + 4, R + 8
        for n in range(1, 3):
            for k in (0, 2):
                e("v_pk_add_f32 %s, %s, %s", v(C_ + k, 2), v(C_ + k, 2), v(C_ + 4 * n + k, 2))
        for op in ("v_permlane16_swap_b32", "v_permlane32_swap_b32"):
            for i in range(4):
                e("v_mov_b32 %s, %s", v(T_ + i), v(C_ + i))
            e("s_nop 0")
            for i in range(4):
                e("%s %s, %s", op, v(C_ + i), v(T_ + i))
            e("s_nop 0")
            for i in range(4):
                e("v_add_f32 %s, %s, %s", v(C_ + i), v(C_ + i), v(T_ + i))
        e("s_lshl_b32 %s, %s, 8", s(sTmp), s(sLW))
        e("s_add_u32 %s, %s, %d", s(sTmp), s(sTmp), AUX + 1024)
        e("v_lshl_add_u32 %s, %s, 4, %s", v(R + 1), v(R + 3), s(sTmp))
        e("ds_write_b128 %s, %s", v(R + 1), v(C_, 4))
    e("s_waitcnt lgkmcnt(0)")


def p3_map():
    if MAP8:
        e("s_and_b32 %s, s2, 7", s(sP))
        e("s_lshl_b32 %s, %s, 2", s(sP), s(sP))
        e("s_bfe_u32 s3, s2, 0x20003")
        e("s_add_u32 %s, %s, s3", s(sP), s(sP))
        e("s_lshr_b32 %s, s2, 5", s(sG3))
        return
    e("s_and_b32 s3, s2, 7")
    e("s_lshr_b32 %s, s2, 3", s(sTmp))
    e("s_lshr_b32 %s, s3, 1", s(sP))
    e("s_lshl_b32 %s, %s, 3", s(sP), s(sP))
    e("s_and_b32 %s, %s, 7", s(sTmp2), s(sTmp))
    e("s_add_u32 %s, %s, %s", s(sP), s(sP), s(sTmp2))
    e("s_and_b32 s3, s3, 1")
    e("s_lshl_b32 s3, s3, 2")
    e("s_lshr_b32 %s, %s, 3", s(sTmp), s(sTmp))
    e("s_add_u32 %s, s3, %s", s(sG3), s(sTmp))


ZG, ZC, ZAB = [160, 224], 64, [136, 192, 208]


def ZAr(c3, rt): return ZAB[c3] + 4 * rt


def z_setup():
    p3_map()
    e("s_mul_i32 %s, %s, %d", s(sLB), s(sLW), ZUS)
    e("s_lshl_b32 %s, %s, 7", s(sUo), s(sP))
    e("s_lshl_b32 %s, %s, 12", s(sTmp), s(sLW))
    e("s_add_u32 %s, %s, %s", s(sUo), s(sUo), s(sTmp))
    e("s_add_u32 %s, %s, 0x%x", s(sUo), s(sUo), WS_U)
    e("s_mul_i32 %s, %s, 21", s(sCo), s(sG3))
    e("s_add_u32 %s, %s, %s", s(sCo), s(sCo), s(sLW))
    e("s_mul_i32 %s, %s, 3072", s(sCo), s(sCo))
    e("s_add_u32 %s, %s, %d", s(sCo), s(sCo), TB.CI_OFF)
    e("s_lshl_b32 %s, %s, 1", s(sS2), s(sP))


def wd_bases(wreg):
    e("s_lshr_b32 %s, %s, 1", s(sOc), s(sG3))
    e("s_and_b32 %s, %s, 1", s(sTmp), s(sG3))
    e("s_mul_i32 %s, %s, 20", s(sTmp), s(sTmp))
    e("s_add_u32 %s, %s, %s", s(sOc), s(sOc), s(sTmp))
    e("s_add_u32 %s, %s, 16", s(sOc), s(sOc))
    e("s_lshl_b32 %s, %s, 5", s(sOc), s(sOc))
    e("s_lshl_b32 %s, %s, 10", s(sTmp), s(wreg))
    e("s_add_u32 %s, %s, 0x%x", s(sTmp), s(sTmp), WS_WD)
    e("s_mul_i32 %s, %s, %d", s(sWa), s(sG3), 2 * 49152)
    e("s_add_u32 %s, %s, %s", s(sWa), s(sWa), s(sTmp))
    e("s_mul_i32 %s, %s, %d", s(sWc), s(sOc), 49152 // 32)
    e("s_add_u32 %s, %s, %s", s(sWc), s(sWc), s(sTmp))


def rot3():
    e("s_and_b32 %s, %s, 3", s(sR3), s(sG3))
    e("s_mul_i32 %s, %s, %d", s(sR3), s(sR3), R3A)
    e("s_and_b32 %s, %s, 7", s(sTmp), s(sP))
    e("s_mul_i32 %s, %s, %d", s(sTmp), s(sTmp), R3B)
    e("s_add_u32 %s, %s, %s", s(sR3), s(sR3), s(sTmp))
    for _ in range((3 * R3A + 7 * R3B) // 12):
        e("s_cmp_ge_u32 %s, 12", s(sR3))
        e("s_cselect_b32 %s, 12, 0", s(sTmp))
        e("s_sub_u32 %s, %s, %s", s(sR3), s(sR3), s(sTmp))


def item4(i, dst):
    e("s_add_u32 %s, %s, %d", s(dst), s(sR3), i)
    e("s_cmp_ge_u32 %s, 12", s(dst))
    e("s_cselect_b32 %s, 12, 0", s(sTmp))
    e("s_sub_u32 %s, %s, %s", s(dst), s(dst), s(sTmp))
    e("s_lshl_b32 %s, %s, 12", s(dst), s(dst))


WOFF = [(0, 0), (0, 49152), (0, 20 * 49152), (0, 21 * 49152), (1, 0)]


def stage_all():
    rot3()
    for i in range(3):
        item4(i, sI4)
        for w in range(4):
            e("s_add_u32 %s, %s, %d", s(sCnt), s(sI4), ((w - 3) * 1024) & 0xffffffff)
            e("s_add_u32 %s, %s, %s", s(sTmp2), s(sCnt), s(sWa))
            for ct in range(5):
                e("s_mov_b32 m0, %d", CP0 + w * CPS + i * 5120 + ct * 1024)
                if ct < 4:
                    e("s_add_u32 %s, %s, %d", s(sTmp), s(sTmp2), WOFF[ct][1])
                else:
                    e("s_add_u32 %s, %s, %s", s(sTmp), s(sCnt), s(sWc))
                e("buffer_load_dwordx4 v5, %s, %s offen sc1 lds", s(sWS, 4), s(sTmp))


def stage_wd(i0, i1):
    e("s_mul_i32 %s, %s, %d", s(sSLAB), s(sLW), CPS)
    rot3()
    for i in range(i0, i1):
        item4(i, sI4)
        e("s_add_u32 %s, %s, %s", s(sTmp2), s(sI4), s(sWa))
        for ct in range(5):
            e("s_add_u32 m0, %s, %d", s(sSLAB), CP0 + i * 5120 + ct * 1024)
            if ct < 4:
                e("s_add_u32 %s, %s, %d", s(sTmp), s(sTmp2), WOFF[ct][1])
            else:
                e("s_add_u32 %s, %s, %s", s(sTmp), s(sI4), s(sWc))
            e("buffer_load_dwordx4 v5, %s, %s offen sc1 lds", s(sWS, 4), s(sTmp))


def z_ci_sub(idx):
    n = 0
    for z in range(6):
        c = [c3 for c3 in range(3) if z * 3 + c3 in idx]
        lab = A.newlabel("L_noc5")
        if c and z == 5 and ZSK:
            e("s_cmp_lg_u32 %s, 0", s(sLW))
            e("s_cbranch_scc1 %s", lab)
        else:
            n += len(c)
        if c:
            z_item(z, 4 * 3072, sCo, sRZ)
        for c3 in c:
            e("buffer_load_dwordx4 %s, v5, %s, %s offen offset:%d", v(ZC + z * 12 + c3 * 4, 4), s(sTAB, 4), s(sRZ), c3 * 1024)
        A.label(lab)
    return n


def ci_setup():
    e("s_lshr_b32 %s, %s, 1", s(sRZ), s(sLW))
    e("s_lshl_b32 %s, %s, 5", s(sRZ), s(sRZ))
    e("s_and_b32 %s, %s, 1", s(sI4), s(sLW))
    e("s_add_u32 %s, %s, %s", s(sRZ), s(sRZ), s(sI4))
    e("v_lshrrev_b32 v146, 4, v0")
    e("v_lshl_add_u32 v147, v146, 3, %s", s(sRZ))
    e("v_cmp_eq_u32 vcc, 0, v147")
    e("v_cvt_f32_u32 v147, v147")
    e("v_cndmask_b32 v145, 1.0, 0.5, vcc")
    e("s_lshr_b32 %s, %s, 1", s(sRZ), s(sG3))
    e("s_and_b32 %s, %s, 1", s(sI4), s(sG3))
    e("s_mul_i32 %s, %s, 20", s(sI4), s(sI4))
    e("s_add_u32 %s, %s, %s", s(sRZ), s(sRZ), s(sI4))
    e("s_add_u32 %s, %s, 16", s(sRZ), s(sRZ))
    e("s_lshl_b32 %s, %s, 4", s(sRZ), s(sRZ))
    e("s_lshl_b32 %s, %s, 5", s(sI4), s(sG3))
    e("v_and_b32 v146, 15, v0")
    for c3 in range(3):
        e("v_add_u32 v148, %s, v146", s(sRZ if c3 == 2 else sI4))
        if c3 == 1:
            e("v_add_u32 v148, 16, v148")
        e("v_cvt_f32_u32 v148, v148")
        e("v_mul_f32 v149, v147, v148")
        e("v_mul_f32 v149, 0x3acccccd, v149")
        e("v_fract_f32 %s, v149", v(136 + c3))
        e("v_mul_f32 v149, 0x3dcccccd, v148")
        e("v_fract_f32 %s, v149", v(139 + c3))
        e("v_mul_f32 %s, 0x3b4ccccd, v148", v(142 + c3))


def ci_gen(idx):
    for n in idx:
        z, c3 = n // 3, n % 3
        o = ZC + z * 12 + c3 * 4
        if z == 5:
            e("v_and_b32 v146, 1, v0")
            e("v_lshlrev_b32 v146, 15, v146")
            e("v_or_b32 v146, 0x3f00, v146")
            e("v_cmp_gt_u32 vcc, 16, v0")
            e("v_cndmask_b32 %s, 0, v146, vcc", v(o))
            for k in range(1, 4):
                e("v_mov_b32 %s, 0", v(o + k))
            continue
        if z == 0:
            e("v_mov_b32 v146, %s", v(136 + c3))
        elif z == 3:
            e("v_fma_f32 v146, 4.0, %s, %s", v(139 + c3), v(136 + c3))
            e("v_sub_f32 v146, v146, %s", v(139 + c3))
        else:
            e("v_fma_f32 v146, %s, %s, %s", "%d.0" % z, v(139 + c3), v(136 + c3))
        for ii in range(4):
            e("v_cos_f32 %s, v146", v(148 + ii))
            e("v_sin_f32_e64 %s, -v146", v(152 + ii))
            if ii < 3:
                e("v_add_f32 v146, v146, %s", v(142 + c3))
        if z == 0:
            e("v_mul_f32 v148, v145, v148")
        for k in range(4):
            e("v_cvt_pk_bf16_f32 %s, %s, %s", v(o + k), v(148 + 2 * k), v(149 + 2 * k))


def z_ci_all():
    return z_ci_sub(range(18))


def stage_done(n):
    e("s_lshl_b32 %s, %s, 2", s(sTmp), s(sLW))
    e("s_add_u32 %s, %s, %d", s(sTmp), s(sTmp), LGO + 16)
    e("v_mov_b32 v12, %s", s(sTmp))
    e("v_mov_b32 v13, 1")
    e("s_waitcnt vmcnt(%d)", n)
    e("ds_write_b32 v12, v13")


def z_item(z, mul, base, dst):
    e("s_and_b32 %s, %s, 3", s(dst), s(sG3))
    e("s_mul_i32 %s, %s, %d", s(dst), s(dst), RZ)
    e("s_add_u32 %s, %s, %d", s(dst), s(dst), z)
    e("s_cmp_ge_u32 %s, 6", s(dst))
    e("s_cselect_b32 %s, 6, 0", s(sTmp))
    e("s_sub_u32 %s, %s, %s", s(dst), s(dst), s(sTmp))
    e("s_lshl_b32 %s, %s, 2", s(sTmp), s(dst))
    e("s_add_u32 %s, %s, %s", s(sTmp), s(sTmp), s(sLW))
    e("s_cmp_gt_u32 %s, 20", s(sTmp))
    e("s_cselect_b32 %s, 0x20000000, %s", s(sTmp), s(base))
    e("s_mul_i32 %s, %s, %d", s(dst), s(dst), mul)
    e("s_add_u32 %s, %s, %s", s(dst), s(dst), s(sTmp))


def z_ci_loads(z, vL):
    z_item(z, 4 * 3072, sCo, sRZ)
    for c3 in range(3):
        e("buffer_load_dwordx4 %s, %s, %s, %s offen offset:%d", v(ZC + z * 12 + c3 * 4, 4), v(vL), s(sTAB, 4), s(sRZ), c3 * 1024)


def ZGr(u, ro, nh, kap): return ZG[u] + ((ro * 2 + nh) * 2 + kap) * 4


def z_gconst():
    e("v_and_b32 v56, 15, v0")
    e("v_lshlrev_b32 v56, 6, v56")
    e("v_add_u32 v56, %s, v56", s(sS2))
    e("v_cvt_f32_u32 v56, v56")
    e("v_mul_f32 v56, 0x3a000000, v56")
    e("v_lshrrev_b32 v57, 5, v0")
    e("v_lshlrev_b32 v57, 3, v57")
    e("v_cvt_f32_u32 v57, v57")
    e("v_bfe_u32 v58, v0, 4, 1")
    e("v_cvt_f32_u32 v58, v58")
    e("v_mul_f32 v58, 0x3e800000, v58")
    for u in range(2):
        if u:
            e("v_add_f32 v56, 0x3a000000, v56")
        for kap in range(2):
            if kap:
                e("v_add_f32 v59, 0x41800000, v57")
                e("v_fma_f32 v59, v59, v56, v58")
            else:
                e("v_fma_f32 v59, v57, v56, v58")
            for ro in range(2):
                if ro:
                    e("v_add_f32 v60, 0xbe800000, v59")
                else:
                    e("v_mov_b32 v60, v59")
                for i2 in range(4):
                    e("v_cos_f32 v61, v60")
                    e("v_add_f32 v60, v60, v56")
                    e("v_cos_f32 v62, v60")
                    e("v_add_f32 v60, v60, v56")
                    b = ZGr(u, ro, 0, kap) + i2
                    e("v_cvt_pk_bf16_f32 %s, v61, v62", v(b))
                    e("v_xor_b32 %s, 0x80000000, %s", v(b + 8), v(b))


def fu_poll_issue():
    e("v_lshlrev_b32 v11, 7, v0")
    lab0 = A.newlabel("L_nofup")
    e("s_cmp_lg_u32 %s, 0", s(sLW))
    e("s_cbranch_scc1 %s", lab0)
    poll_issue(16, 1, 11, WS_FU)
    A.label(lab0)


def zpart():
    vL, vUG, vTU, vTU1, vPU = 5, 6, 7, 8, 11
    UF, ZT = 16, 32
    e("v_lshlrev_b32 %s, 4, v0", v(vL))
    e("v_lshrrev_b32 v12, 3, v0")
    e("v_mul_u32_u24 v12, %d, v12", USTR)
    e("v_lshrrev_b32 v13, 2, v0")
    e("v_lshrrev_b32 v14, 4, v0")
    e("v_xor_b32 v13, v13, v14")
    e("v_and_b32 v13, 1, v13")
    e("v_lshl_add_u32 v12, v13, 6, v12")
    e("v_and_b32 v13, 3, v0")
    e("v_lshl_add_u32 %s, v13, 4, v12", v(vUG))
    e("v_lshrrev_b32 v12, 5, v0")
    e("v_lshlrev_b32 v12, 3, v12")
    e("v_bfe_u32 v14, v0, 2, 2")
    e("v_add_u32 v12, v12, v14")
    e("v_lshlrev_b32 v12, 7, v12")
    e("v_lshl_add_u32 v12, v13, 4, v12")
    e("v_bfe_u32 v14, v0, 4, 1")
    e("v_lshl_add_u32 v12, v14, 3, v12")
    e("v_bfe_u32 v14, v0, 3, 1")
    e("v_lshl_add_u32 v12, v14, 6, v12")
    e("v_add_u32 %s, %s, v12", v(vTU), s(sLB))
    e("v_xor_b32 %s, 64, %s", v(vTU1), v(vTU))
    e("v_mov_b32 v12, %d", LGO)
    lab1, lab2 = A.newlabel("L_lgo"), A.newlabel("L_lgod")
    e("s_cmp_lg_u32 %s, 0", s(sLW))
    e("s_cbranch_scc1 %s", lab1)
    e("s_waitcnt vmcnt(0)")
    poll_check(UF, 1, vPU, WS_FU)
    e("v_mov_b32 v13, 1")
    e("ds_write_b32 v12, v13")
    e("s_branch %s", lab2)
    A.label(lab1)
    e("s_sleep 1")
    e("ds_read_b32 v13, v12")
    e("s_waitcnt lgkmcnt(0)")
    e("v_cmp_ne_u32 vcc, 1, v13")
    e("s_cbranch_vccnz %s", lab1)
    A.label(lab2)
    stamp("zU")
    if ZPR and ZPF:
        e("s_setprio %d", ZPR)
    q = VQ()

    def udma(z):
        z_item(z, 4 * 4096, sUo, sRZ)
        for n in range(4):
            e("s_add_u32 m0, %s, %d", s(sLB), (z % 4) * 4096 + n * 1024)
            e("s_add_u32 %s, %s, %d", s(sTmp2), s(sRZ), n * 8 * USTR)
            e("buffer_load_dwordx4 %s, %s, %s offen sc1 lds", v(vUG), s(sWS, 4), s(sTmp2))
        q.issue("u%d" % z, 4)
    for z in range(4):
        udma(z)
    def ureads(z):
        q.wait("u%d" % z)
        stamp("z%d" % z)
        for u in range(2):
            for kap in range(2):
                for rd in range(2):
                    e("ds_read_b64_tr_b16 %s, %s offset:%d", v(UF + 8 * u + 4 * kap + 2 * rd, 2), v(vTU1 if u else vTU), (z % 4) * 4096 + kap * 2048 + rd * 512)
    ureads(0)
    skip5 = A.newlabel("L_noz5")

    def cv(rt):
        b = ZT + rt * 8
        return [cap(lambda k=k: e("v_cvt_pk_bf16_f32 %s, %s, %s", v(b + k), v(b + 2 * k), v(b + 2 * k + 1))) for k in range(4)]

    def s1(u):
        return [cap(lambda kap=kap, nh=nh, ro=ro: mm16(ZT + u * 16 + (nh * 2 + ro) * 4, UF + 8 * u + 4 * kap, ZGr(u, ro, nh, kap), kap == 0))
                for kap in range(2) for nh in range(2) for ro in range(2)]

    def s2(z, rt):
        return [cap(lambda c3=c3: mm16(ZAr(c3, rt), ZC + z * 12 + c3 * 4, ZT + rt * 8, z == 0)) for c3 in range(3)]

    def put(gs):
        for g in gs:
            A.lines += g
    for z in range(6):
        if z == ZPN:
            e("s_setprio %d", 0 if ZPF else 3)
        if z == 5 and ZSK:
            e("s_cmp_lg_u32 %s, 0", s(sLW))
            e("s_cbranch_scc1 %s", skip5)
        e("s_waitcnt lgkmcnt(4)")
        put(s1(0))
        e("s_waitcnt lgkmcnt(0)")
        m1 = s1(1)
        if not ZIL:
            put(m1)
        else:
            c0, c1 = cv(0), cv(1)
            put(m1[:5] + c0[:2] + m1[5:6] + c0[2:] + m1[6:7] + c1[:2] + m1[7:] + c1[2:])
        if z + 4 < 6:
            if z == 1 and ZSK:
                lab = A.newlabel("L_nou5")
                e("s_cmp_lg_u32 %s, 0", s(sLW))
                e("s_cbranch_scc1 %s", lab)
                udma(5)
                A.label(lab)
                q.q = q.q[:-4]
            else:
                udma(z + 4)
        if z + 1 < 6:
            if z == 4 and ZSK:
                lab = A.newlabel("L_nor5")
                e("s_cmp_lg_u32 %s, 0", s(sLW))
                e("s_cbranch_scc1 %s", lab)
                q.issue("u5", 4)
                ureads(5)
                A.label(lab)
            else:
                ureads(z + 1)
        if not ZIL:
            put(cv(0) + cv(1) + cv(2) + cv(3))
            e("s_nop 0")
            put(s2(z, 0) + s2(z, 1) + s2(z, 2) + s2(z, 3))
        else:
            if z == 5:
                e("s_nop 1")
            a0, a1, c2, c3_ = s2(z, 0), s2(z, 1), cv(2), cv(3)
            put(a0[:2] + c2[:2] + a0[2:] + c2[2:] + a1[:1] + c3_[:2] + a1[1:2] + c3_[2:] + a1[2:])
            e("s_nop 0")
            put(s2(z, 2) + s2(z, 3))
    A.label(skip5)
    e("v_add_u32 v12, %s, %s", s(sLB), v(vL))
    for rt in range(4):
        for c3 in range(3):
            if rt == 3 and c3 == 0:
                e("s_nop 1")
            e("ds_write_b128 v12, %s offset:%d", v(ZAr(c3, rt), 4), c3 * 4096 + rt * 1024)
    e("v_mov_b32 v12, %d", LGO)
    e("v_mov_b32 v13, 1")
    e("s_waitcnt lgkmcnt(0)")
    if ZE:
        e("s_mov_b64 exec, 1")
        e("ds_add_u32 v12, v13 offset:36")
        e("s_mov_b64 exec, -1")
        e("s_waitcnt lgkmcnt(0)")
    stamp("zend")
    e("s_barrier")


vA0, vA1, vB0, vB1 = 2, 3, 4, 1


def lgo_init():
    e("v_mov_b32 v12, %d", LGO)
    e("v_mov_b32 v13, 0")
    e("ds_write_b32 v12, v13")
    e("ds_write_b32 v12, v13 offset:4")
    e("ds_write_b32 v12, v13 offset:8")
    e("ds_write_b32 v12, v13 offset:12")
    e("ds_write_b32 v12, v13 offset:36")
    for i in range(4):
        e("ds_write_b32 v12, v13 offset:%d", 16 + 4 * i)


def k_offset(dst):
    e("s_and_b32 %s, s2, 1", s(dst))
    e("s_mul_i32 %s, %s, 5", s(dst), s(dst))
    e("s_bfe_u32 %s, s2, 0x10003", s(sTmp))
    e("s_mul_i32 %s, %s, 3", s(sTmp), s(sTmp))
    e("s_add_u32 %s, %s, %s", s(dst), s(dst), s(sTmp))
    if KG:
        e("s_lshr_b32 %s, s2, 6", s(sTmp))
        e("s_lshl_b32 %s, %s, 2", s(sTmp), s(sTmp))
        e("s_lshr_b32 %s, 0x%x, %s", s(sTmp), KG, s(sTmp))
        e("s_and_b32 %s, %s, 15", s(sTmp), s(sTmp))
        e("s_add_u32 %s, %s, %s", s(dst), s(dst), s(sTmp))
        mod10(dst)


KG = int(str(opt("kg", 0)), 16)


def mod10(dst):
    e("s_cmp_ge_u32 %s, 10", s(dst))
    e("s_cselect_b32 %s, 10, 0", s(sTmp))
    e("s_sub_u32 %s, %s, %s", s(dst), s(dst), s(sTmp))


def x_src_scalar():
    e("s_lshl_b32 %s, %s, 2", s(sAoff), s(sRB))
    e("s_add_u32 %s, %s, %s", s(sAoff), s(sAoff), s(sLW))
    e("s_mul_i32 %s, %s, 1280", s(sAoff), s(sAoff))


def ffn_loader():
    if PRL & 2:
        e("s_setprio 2")
    e("v_lshrrev_b32 v6, 3, v0")
    e("v_mul_u32_u24 v6, 81920, v6")
    e("v_and_b32 v7, 7, v0")
    e("v_lshrrev_b32 v8, 4, v0")
    e("v_xor_b32 v7, v7, v8")
    e("v_lshl_add_u32 %s, v7, 4, v6", v(vA0))
    e("v_xor_b32 %s, 64, %s", v(vA1), v(vA0))
    e("v_mul_u32_u24 v6, 3072, v8")
    e("v_and_b32 v7, 15, v0")
    e("v_lshlrev_b32 v8, 2, v8")
    e("v_xor_b32 v7, v7, v8")
    e("v_lshl_add_u32 %s, v7, 4, v6", v(vB0))
    e("v_xor_b32 %s, 32, %s", v(vB1), v(vB0))
    x_src_scalar()
    e("s_mul_i32 %s, %s, %d", s(sBoff), s(sLW), 16 * 3072)
    e("s_lshl_b32 %s, %s, 8", s(sTmp), s(sCG))
    e("s_add_u32 %s, %s, %s", s(sBoff), s(sBoff), s(sTmp))
    e("s_lshl_b32 %s, %s, 12", s(sM0), s(sLW))
    k_offset(sJB)
    XR_ = opt("xrot", 0)
    if XR_:
        e("s_bfe_u32 %s, s2, 0x20003", s(sJB))
        e("s_mul_i32 %s, %s, 5", s(sJB), s(sJB))
        e("s_add_u32 %s, %s, 1", s(sJB), s(sJB))
        e("s_lshr_b32 %s, %s, 1", s(sJB), s(sJB))
        if XR_ & 4:
            e("s_mov_b32 %s, 0", s(sJB))
        e("s_lshr_b32 %s, s2, 6", s(sTmp))
        e("s_mul_i32 %s, %s, %d", s(sTmp), s(sTmp), (XR_ & 3) - 1)
        e("s_add_u32 %s, %s, %s", s(sJB), s(sJB), s(sTmp))
        e("s_cmp_ge_u32 %s, 10", s(sJB))
        e("s_cselect_b32 %s, 10, 0", s(sTmp))
        e("s_sub_u32 %s, %s, %s", s(sJB), s(sJB), s(sTmp))
    NR = 10
    tab_srd()
    stamp("l_pre")
    e("s_waitcnt lgkmcnt(0)")
    stamp("l_k")
    for k in ("X", "G", "U"):
        srd(A, *SRDS[k])
    q = VQ()

    def slab_groups(i):
        b = (i % 3) * SLAB
        gs = []

        def head():
            if i < NFIX:
                e("s_add_u32 %s, %s, %d", s(sWM), s(sAoff), i * 128)
                e("s_add_u32 %s, %s, %d", s(sWN), s(sBoff), i * 64 * 3072)
            else:
                e("s_add_u32 %s, %s, %d", s(sTmp), s(sJB), NFIX)
                e("s_lshl_b32 %s, %s, 7", s(sWM), s(sTmp))
                e("s_add_u32 %s, %s, %s", s(sWM), s(sWM), s(sAoff))
                e("s_mul_i32 %s, %s, %d", s(sWN), s(sTmp), 64 * 3072)
                e("s_add_u32 %s, %s, %s", s(sWN), s(sWN), s(sBoff))
                e("s_add_u32 %s, %s, 1", s(sJB), s(sJB))
                e("s_cmp_eq_u32 %s, %d", s(sJB), NR)
                e("s_cselect_b32 %s, 0, %s", s(sJB), s(sJB))
        for n in range(4):
            def f(n=n):
                if n == 0:
                    head()
                e("s_add_u32 m0, %s, %d", s(sM0), b + n * 1024)
                e("s_add_u32 %s, %s, %d", s(sTmp), s(sWM), n * 8 * 81920)
                e("buffer_load_dwordx4 %s, %s, %s offen lds", v(vA1 if n & 1 else vA0), s(sX, 4), s(sTmp))
            gs.append(cap(f))
        for mat in range(2):
            for n in range(4):
                def f(n=n, mat=mat):
                    e("s_add_u32 m0, %s, %d", s(sM0), b + 16384 * (1 + mat) + n * 1024)
                    e("s_add_u32 %s, %s, %d", s(sTmp), s(sWN), n * 4 * 3072)
                    e("buffer_load_dwordx4 %s, %s, %s offen lds", v(vB1 if n & 2 else vB0), s(sU if mat else sG, 4), s(sTmp))
                gs.append(cap(f))
        q.issue("s%d" % i, 12)
        return gs

    def slab(i, main=()):
        weave(list(main), slab_groups(i))

    def wait2(n):
        la, lb = A.newlabel("L_w2"), A.newlabel("L_w2")
        e("s_cmp_ge_u32 %s, 48", s(sPar))
        e("s_cbranch_scc1 %s", la)
        e("s_waitcnt vmcnt(%d)", n + 4)
        e("s_branch %s", lb)
        A.label(la)
        e("s_waitcnt vmcnt(%d)", n)
        A.label(lb)

    def bar(b):
        stamp("fl_a%d" % b)
        e("s_barrier")
        stamp("fl_b%d" % b)
    slab(0)
    stamp("l_s0")
    lgo_init()
    e("s_load_dword %s, %s, 0x%x", s(sTAG), s(P + 18, 2), WS_EP)
    for k in ("WS", "WD", "WR", "WI"):
        srd(A, *SRDS[k])
    z_setup()
    e("v_lshlrev_b32 v5, 4, v0")
    fw_poll_addr(10)
    aux_poll_addr(True, 15)
    aux_addr(True, 36)
    slab(1, cap(z_gconst))
    if WT:
        e("s_bfe_u32 %s, s2, 0x20001", s(sTmp))
        e("s_lshl_b32 %s, %s, 2", s(sTmp), s(sTmp))
        e("s_lshr_b32 %s, 0x9f51, %s", s(sTmp), s(sTmp))
        e("s_and_b32 %s, %s, 15", s(sNU), s(sTmp))
        e("s_cmp_gt_u32 %s, %s", s(sCG), s(sNU))
        e("s_cselect_b32 %s, 1, 0", s(sTmp))
        e("s_lshr_b32 %s, s2, 6", s(sCnt))
        e("s_sub_u32 %s, %s, %s", s(sCnt), s(sCnt), s(sTmp))
        e("s_lshl_b32 %s, %s, 3", s(sCnt), s(sCnt))
        e("s_bfe_u32 %s, s2, 0x30003", s(sTmp))
        e("s_add_u32 %s, %s, %s", s(sCnt), s(sCnt), s(sTmp))
        e("s_lshl_b32 %s, %s, 2", s(sCnt), s(sCnt))
        e("s_add_u32 %s, %s, %s", s(sCnt), s(sCnt), s(sLW))
        e("s_mul_i32 %s, %s, %d", s(sCnt), s(sCnt), WTN)
        e("s_and_b32 %s, s2, 1", s(sTmp))
        e("s_mul_i32 %s, %s, 320", s(sTmp), s(sTmp))
        e("s_add_u32 %s, %s, %s", s(sCnt), s(sCnt), s(sTmp))
        e("s_add_u32 %s, %s, %d", s(sCnt), s(sCnt), (10 - WTN) * 64)
        e("v_min_u32 v61, %d, v0", 2 * WTN - 1)
        e("v_lshrrev_b32 v60, 1, v61")
        e("v_add_u32 v60, %s, v60", s(sCnt))
        e("v_subrev_u32 v62, 640, v60")
        e("v_min_u32 v60, v60, v62")
        e("v_mul_u32_u24 v60, 3072, v60")
        e("v_and_b32 v61, 1, v61")
        e("v_lshl_add_u32 v60, v61, 7, v60")
        e("s_lshl_b32 %s, %s, 8", s(sTmp), s(sNU))
        e("s_cmp_eq_u32 %s, %s", s(sCG), s(sNU))
        e("s_cselect_b32 %s, 0x20000000, %s", s(sTmp), s(sTmp))
        e("s_cmp_eq_u32 %s, 15", s(sNU))
        e("s_cselect_b32 %s, 0x20000000, %s", s(sTmp), s(sTmp))
        e("v_add_u32 v60, %s, v60", s(sTmp))

    def wtouch():
        e("buffer_load_dword v62, v60, %s, 0 offen", s(sG, 4))
        e("buffer_load_dword v62, v60, %s, 0 offen", s(sU, 4))
    if WT == 2:
        wtouch(); q.issue("wt", 2)
    stamp("l_iss")
    q.wait("s0", extra=" lgkmcnt(0)")
    e("s_barrier")
    stamp("l_bi")
    make_tag()
    slab(2)
    if WT == 1:
        wtouch()
    repack_dma()
    wait2(14 if WT == 1 else 12)
    q.q = ["s2"] * 12
    bar(0)
    slab(3, cap(lambda: (ci_setup(), ci_gen([0, 1, 15, 16, 17]))) if CG else ())
    wait2(14 if WT == 1 else 12)
    q.q = ["s3"] * 12
    bar(1)
    slab(4)
    e("s_waitcnt vmcnt(24)")
    repack_finish()
    wait2(12)
    q.q = ["s4"] * 12
    bar(2)
    slab(5, cap(lambda: ci_gen([2, 3, 4])) if CG else ())
    if WARM == 2:
        warm_touch(); q.issue("wt", 2)
    q.wait("s4")
    bar(3)
    lab = A.newlabel("L_nocf")
    e("s_cmp_lg_u32 %s, 0", s(sLW))
    e("s_cbranch_scc1 %s", lab)
    e("s_lshl_b32 %s, s2, 7", s(sCnt))
    e("s_add_u32 %s, %s, 0x%x", s(sCnt), s(sCnt), WS_FW)
    flag_store(sCnt, 16, 17)
    A.label(lab)
    slab(6, cap(lambda: ci_gen([5, 6, 7])) if CG else ())
    q.wait("s5")
    bar(4)
    slab(7, cap(lambda: ci_gen([8, 9])) if CG else ())
    if PF3 & 1:
        pf3(1)
    if PF3 & 2:
        pf3(0)
    q.wait("s6")
    bar(5)
    if TL:
        slab(8, cap(lambda: ci_gen([10, 11, 12])) if CG else ())
        q.wait("s7")
        bar(6)
        poll_issue(34, 1, 15, WS_FS); poll_issue(35, 1, 10, WS_FW); q.issue("p", 2)
        slab(9, cap(lambda: ci_gen([13, 14])) if CG else ())
        wd_bases(sLW)
        if CIL == 2:
            q.issue("ci", z_ci_all())
        q.wait("s8")
        bar(7)
        q.wait("p")
        poll_check(34, 1, 15, WS_FS)
        poll_check(35, 1, 10, WS_FW)
        aux_issue(True, 36); q.issue("aux", 4)
        pf3_go(q, PF3)
        if CIL == 3:
            q.issue("ci", z_ci_all())
        q.wait("s9")
        bar(8)
        if CIL == 4:
            q.issue("ci", z_ci_all())
        stage_wd(0, SG); q.issue("sg", 5 * SG)
        q.wait("aux")
        aux_finish(True, 36)
        bar(9)
        if SG == 4:
            stage_done(0)
    else:
        poll_issue(34, 1, 15, WS_FS); poll_issue(35, 1, 10, WS_FW); q.issue("p", 2)
        slab(8)
        q.wait("s7")
        bar(6)
        slab(9)
        q.wait("p")
        poll_check(34, 1, 15, WS_FS)
        poll_check(35, 1, 10, WS_FW)
        aux_issue(True, 36); q.issue("aux", 4)
        if PFP == 0:
            pf3_go(q, PF3)
        q.wait("s8")
        bar(7)
        if PFP == 1:
            pf3_go(q, PF3)
        q.wait("aux")
        aux_finish(True, 36)
        bar(8)
        wd_bases(sLW)
        stage_wd(0, 4)
        if CIL == 0:
            z_ci_all()
        stage_done(18 if CIL == 0 else 0)
    e("v_mov_b32 v12, %d", LGO)
    lab = A.newlabel("L_hout")
    A.label(lab)
    e("s_sleep 1")
    e("ds_read_b32 v13, v12 offset:4")
    e("s_waitcnt lgkmcnt(0)")
    e("v_cmp_ne_u32 vcc, 4, v13")
    e("s_cbranch_vccnz %s", lab)
    if TL and SG < 4:
        stage_wd(SG, 4)
        if CIL >= 2 or CG:
            stage_done(0)
            fu_poll_issue()
        else:
            fu_poll_issue()
            stage_done(z_ci_all())
    else:
        fu_poll_issue()
        if CIL == 1 and not CG:
            z_ci_all()
    e("s_branch L_zpart")


def wspec_shift(dst):
    e("s_mul_i32 %s, %s, 642", s(sDelta), s(sK1))
    e("s_mul_i32 %s, s3, 320", s(sTmp))
    e("s_add_u32 %s, %s, %s", s(sDelta), s(sDelta), s(sTmp))
    e("s_and_b32 %s, %s, 15", s(dst), s(sDelta))


def wspec_dma():
    mid_k1()
    e("v_mul_u32_u24 v12, 3121, v0")
    e("v_lshrrev_b32 v12, 16, v12")
    e("v_mul_u32_u24 v12, %d, v12", 32 * 642 - 336)
    e("v_lshl_add_u32 v12, v0, 4, v12")
    wspec_shift(sTmp2)
    e("s_sub_u32 %s, %s, %s", s(sDelta), s(sDelta), s(sTmp2))
    e("s_and_b32 %s, %s, 1", s(sTmp), s(sLW))
    e("s_mul_i32 %s, %s, %d", s(sCnt), s(sTmp), 11 * 1008)
    e("s_mul_i32 %s, %s, %d", s(sTmp), s(sTmp), 33 * 32 * 642)
    e("s_add_u32 %s, %s, %s", s(sDelta), s(sDelta), s(sTmp))
    e("s_cmp_ge_u32 %s, 2", s(sLW))
    e("s_cselect_b32 %s, %s, %s", s(sWR), s(sWI), s(sWR))
    e("s_cselect_b32 %s, %s, %s", s(sWR + 1), s(sWI + 1), s(sWR + 1))
    e("s_cselect_b32 %s, %d, 0", s(sTmp), MWA)
    e("s_add_u32 %s, %s, %s", s(sCnt), s(sCnt), s(sTmp))
    gs = []
    for n in range(11):
        def f(n=n):
            e("s_add_u32 m0, %s, %d", s(sCnt), MW0 + n * 1008)
            e("s_add_u32 %s, %s, %d", s(sTmp), s(sDelta), n * 3 * 32 * 642)
            e("buffer_load_dwordx4 v12, %s, %s offen lds", s(sWR, 4), s(sTmp))
        gs.append(cap(f))
    return gs


def repack_dma():
    e("v_lshrrev_b32 v12, 3, v0")
    e("v_mul_u32_u24 v13, 1280, v12")
    e("v_bfe_u32 v14, v0, 4, 2")
    e("v_lshlrev_b32 v14, 1, v14")
    e("v_and_b32 v12, 7, v0")
    e("v_xor_b32 v12, v12, v14")
    e("v_lshl_add_u32 v12, v12, 4, v13")
    e("s_mul_i32 %s, s2, 3", s(sCnt))
    e("s_add_u32 %s, %s, %s", s(sCnt), s(sCnt), s(sLW))
    e("s_cmp_eq_u32 %s, 3", s(sLW))
    e("s_cselect_b32 %s, 480, %s", s(sCnt), s(sCnt))
    e("s_mul_i32 %s, %s, 52429", s(sBuf), s(sCnt))
    e("s_lshr_b32 %s, %s, 19", s(sBuf), s(sBuf))
    e("s_mul_i32 %s, %s, 10", s(sTmp), s(sBuf))
    e("s_sub_u32 %s, %s, %s", s(sCnt), s(sCnt), s(sTmp))
    e("s_mul_i32 %s, %s, 40960", s(sDelta), s(sBuf))
    e("s_lshl_b32 %s, %s, 7", s(sTmp), s(sCnt))
    e("s_add_u32 %s, %s, %s", s(sDelta), s(sDelta), s(sTmp))
    e("s_min_u32 %s, %s, 2", s(sWa), s(sLW))
    e("s_lshl_b32 %s, %s, 12", s(sWa), s(sWa))
    e("s_add_u32 %s, %s, %d", s(sWa), s(sWa), RPK)
    lab = A.newlabel("L_norp")
    e("s_cmp_ge_u32 %s, 48", s(sBuf))
    e("s_cbranch_scc1 %s", lab)
    for n in range(4):
        e("s_add_u32 m0, %s, %d", s(sWa), n * 1024)
        e("s_add_u32 %s, %s, %d", s(sTmp), s(sDelta), n * 8 * 1280)
        e("buffer_load_dwordx4 v12, %s, %s offen lds", s(sWD, 4), s(sTmp))
    A.label(lab)
    e("s_mul_i32 %s, %s, %d", s(sWb), s(sCnt), 4 * 49152)
    e("s_lshl_b32 %s, %s, 10", s(sTmp), s(sBuf))
    e("s_add_u32 %s, %s, %s", s(sWb), s(sWb), s(sTmp))
    e("s_add_u32 %s, %s, 0x%x", s(sWb), s(sWb), WS_WD)
    e("s_mov_b32 %s, %s", s(sPar), s(sBuf))


def repack_finish():
    lab = A.newlabel("L_norp")
    e("s_cmp_ge_u32 %s, 48", s(sPar))
    e("s_cbranch_scc1 %s", lab)
    e("v_lshrrev_b32 v56, 2, v0")
    e("v_lshlrev_b32 v56, 7, v56")
    e("v_and_b32 v57, 3, v0")
    e("v_lshl_add_u32 v56, v57, 3, v56")
    e("v_bfe_u32 v57, v0, 3, 2")
    e("v_lshl_add_u32 v56, v57, 5, v56")
    e("v_add_u32 v56, %s, v56", s(sWa))
    for tq in range(1, 4):
        e("v_xor_b32 %s, %d, v56", v(56 + tq), tq << 5)
    for tq in range(4):
        for rd in range(2):
            e("ds_read_b64_tr_b16 %s, %s offset:%d", v(16 + tq * 4 + 2 * rd, 2), v(56 + tq), rd * 2048)
    for n in range(4):
        e("s_waitcnt lgkmcnt(%d)", 6 - 2 * n)
        e("s_add_u32 %s, %s, %d", s(sTmp), s(sWb), n * 49152)
        e("buffer_store_dwordx4 %s, v5, %s, %s offen sc1", v(16 + n * 4, 4), s(sWS, 4), s(sTmp))
    A.label(lab)


def fold_group(a0, T, vM, vaddr, off):
    for d in range(4):
        e("v_lshlrev_b32 %s, 16, %s", v(T + d), v(a0 + d))
        e("v_lshlrev_b32 %s, 16, %s", v(T + 4 + d), v(a0 + 4 + d))
    for d in range(8):
        e("v_and_b32 %s, %s, %s", v(a0 + d), v(vM), v(a0 + d))
    for d in range(4):
        e("v_fmac_f32 %s, %s, %s", v(T + d), s(sSgn), v(T + 4 + d))
    for d in range(4):
        e("v_fmac_f32 %s, %s, %s", v(a0 + d), s(sSgn), v(a0 + 4 + d))
    for d in range(4):
        e("v_cvt_pk_bf16_f32 %s, %s, %s", v(a0 + d), v(T + d), v(a0 + d))
    e("ds_write_b128 %s, %s offset:%d", v(vaddr), v(a0, 4), off)


def fold_addr(src, w0, w2):
    e("v_lshrrev_b32 %s, 3, v0", v(w2))
    e("v_mul_u32_u24 %s, 81920, %s", v(w2 + 1), v(w2))
    e("v_and_b32 %s, 7, v0", v(w0))
    e("v_lshl_add_u32 %s, %s, 4, %s", v(src), v(w0), v(w2 + 1))
    e("v_lshrrev_b32 %s, 4, v0", v(w2 + 1))
    e("v_xor_b32 %s, %s, %s", v(w0), v(w0), v(w2 + 1))
    e("v_lshlrev_b32 %s, 7, %s", v(w2), v(w2))
    e("v_lshl_add_u32 %s, %s, 4, %s", v(w2), v(w0), v(w2))
    e("s_mul_i32 %s, %s, %d", s(sTmp), s(sLW), CPS)
    e("s_add_u32 %s, %s, %d", s(sTmp), s(sTmp), XB)
    e("v_add_u32 %s, %s, %s", v(w0), s(sTmp), v(w2))
    e("v_xor_b32 %s, 64, %s", v(w0 + 1), v(w0))


XO = opt("xo", 0)
CI_EARLY = list(range(8, 16))
CI_LATE = [i for i in range(18) if i not in CI_EARLY]
LX = opt("lx", 0)
CX = opt("cx", 2)
MWE = opt("mwe", 1)
EH = opt("eh", 0)
EST = opt("est", 3)
ECI = opt("eci", 3)
EFH = opt("efh", 1)
NL = opt("nl", 2)


def dft_loader():
    if PRL & 1:
        e("s_setprio 2")
    XR = 64
    vW0, vW1 = 8, 9
    fold_addr(vA0, vW0, 6)
    e("v_lshlrev_b32 %s, 4, v0", v(vB0))
    x_src_scalar()
    tab_srd()
    stamp("l_pre")
    e("s_waitcnt lgkmcnt(0)")
    stamp("l_k")
    srd(A, *SRDS["X"])
    q = VQ()

    def ci_touch():
        e("s_bfe_u32 %s, s2, 0x30003", s(sCnt))
        e("s_lshl_b32 %s, %s, 2", s(sCnt), s(sCnt))
        e("s_add_u32 %s, %s, %s", s(sCnt), s(sCnt), s(sLW))
        e("s_mul_i32 %s, %s, %d", s(sTmp), s(sCnt), 63 * 128)
        e("s_and_b32 %s, s2, 1", s(sTmp2))
        e("s_mul_i32 %s, %s, %d", s(sTmp2), s(sTmp2), 4 * 63 * 1024)
        e("s_add_u32 %s, %s, %s", s(sTmp), s(sTmp), s(sTmp2))
        e("s_add_u32 %s, %s, %d", s(sTmp), s(sTmp), TB.CI_OFF)
        e("v_min_u32 v12, 62, v0")
        e("v_lshlrev_b32 v12, 7, v12")
        e("buffer_load_dword v45, v12, %s, %s offen", s(sTAB, 4), s(sTmp))
        e("s_lshl_b32 %s, %s, 8", s(sTmp), s(sCnt))
        e("s_add_u32 %s, %s, %d", s(sTmp), s(sTmp), TB.F64_OFF)
        e("v_and_b32 v12, 128, v12")
        e("buffer_load_dword v45, v12, %s, %s offen", s(sTAB, 4), s(sTmp))
        q.issue("t", 2)

    def xl(i):
        gs = []
        for n in range(NL):
            for hf in range(2):
                def f(n=n, hf=hf):
                    e("s_add_u32 %s, %s, %d", s(sTmp), s(sAoff), n * 8 * 81920 + i * 128)
                    e("buffer_load_dwordx4 %s, %s, %s, %s offen offset:%d", v(XR + i * 32 + n * 8 + hf * 4, 4), v(vA0), s(sX, 4), s(sTmp), hf * 640)
                gs.append(cap(f))
        q.issue("x%d" % i, 2 * NL)
        return gs

    def fl():
        gs = []
        for n in range(2):
            def f(n=n):
                e("s_lshl_b32 %s, %s, 11", s(sTmp), s(sLW))
                e("s_add_u32 m0, %s, %d", s(sTmp), FR_L + n * 1024)
                e("s_add_u32 %s, %s, %d", s(sTmp), s(sTmp), TB.F64_OFF + n * 1024)
                e("buffer_load_dwordx4 %s, %s, %s offen lds", v(vB0), s(sTAB, 4), s(sTmp))
            gs.append(cap(f))
        q.issue("f", 2)
        return gs

    def fold(i):
        for n in range(NL):
            fold_group(XR + i * 32 + n * 8, 28 + 8 * (n & 1), 44, (vW0, vW1)[n & 1], (1 - (i & 1)) * 5120 + n * 1024)

    def bar(b):
        stamp("dl_a%s" % b)
        e("s_barrier")
        stamp("dl_b%s" % b)
    weave([], xl(0))
    if XT & 32:
        ci_touch()
    stamp("l_s0")
    lgo_init()
    e("s_load_dword %s, %s, 0x%x", s(sTAG), s(P + 18, 2), WS_EP)
    for k in ("WS", "WR", "WI", "OUT"):
        srd(A, *SRDS[k])
    e("s_cmp_ge_u32 %s, 2", s(sCG))
    e("s_cselect_b32 %s, -1.0, 1.0", s(sSgn))
    weave([], xl(1) + (xl(2) if LX >= 1 else []) + (xl(3) if LX >= 2 else []))
    e("v_mov_b32 v44, 0xffff0000")
    aux_poll_addr(False, 15)
    fw_poll_addr(10)
    aux_addr(False, 24)
    stamp("l_iss")
    q.wait("x0")
    stamp("dl_x0")
    fold(0)
    e("s_waitcnt lgkmcnt(0)")
    e("s_barrier")
    stamp("l_bi")
    if XT & 64:
        ci_touch()
    make_tag()
    q.wait("x1")
    weave(cap(lambda: fold(1)), (xl(2) if LX < 1 else []) + (xl(3) if LX < 2 else []) + (xl(4) if LX >= 1 else []))
    e("s_waitcnt lgkmcnt(0)")
    bar(0)
    q.wait("x2")
    stamp("dl_x2")
    weave(cap(lambda: fold(2)), xl(4) if LX < 1 else [])
    stamp("dl_f2")
    poll_issue(46, 1, 15, WS_FS); q.issue("p")
    e("s_waitcnt lgkmcnt(0)")
    bar(1)
    q.wait("x3")
    stamp("dl_x3")
    weave(cap(lambda: fold(3)), fl())
    stamp("dl_f3")
    q.wait("p")
    poll_check(46, 1, 15, WS_FS)
    aux_issue(False, 24); q.issue("aux")
    e("s_waitcnt lgkmcnt(0)")
    bar(2)
    gs = wspec_dma()
    if WSP == 2:
        weave(cap(lambda: fold(4)), gs)
        q.issue("w", 11)
    else:
        fold(4)
    q.wait("aux")
    aux_finish(False, 24)
    bar(3)
    poll_issue(41, 1, 10, WS_FW)
    if WSP == 0:
        weave([], gs)
    z_setup()
    wd_bases(sLW)
    e("v_lshlrev_b32 v5, 4, v0")
    if EST >= 3:
        if ECI and ECI < 3:
            z_ci_sub(CI_EARLY)
            lab = A.newlabel("L_cil")
            e("s_bfe_u32 %s, s2, 0x10003", s(sTmp))
            e("s_add_u32 %s, %s, 2", s(sTmp), s(sTmp))
            e("s_cmp_lt_u32 %s, %s", s(sLW), s(sTmp))
            e("s_cbranch_scc1 %s", lab)
            z_ci_sub(CI_LATE)
            A.label(lab)
        if CG == 1:
            ci_setup()
            ci_gen(CI_EARLY)
        if ZGL:
            e("v_mov_b32 v12, %d", LGO)
            lab = A.newlabel("L_zgl")
            A.label(lab)
            e("s_sleep 2")
            e("ds_read_b32 v13, v12 offset:12")
            e("s_waitcnt lgkmcnt(0)")
            e("v_cmp_ne_u32 vcc, 1, v13")
            e("s_cbranch_vccnz %s", lab)
        z_gconst()
        if CG == 2:
            ci_setup()
            ci_gen(CI_EARLY)
        stamp("dl_g")
        e("s_branch L_dft_l")
        return
    if ECI == 2:
        z_ci_sub(CI_EARLY)
    if EST:
        e("s_waitcnt vmcnt(%d)", len(CI_EARLY) if ECI == 2 else 0)
        poll_check(41, 1, 10, WS_FW)
        stamp("dl_fw")
        stage_wd(0, 3)
    if ECI == 1:
        z_ci_sub(CI_EARLY)
    stamp("dl_st")
    z_gconst()
    stamp("dl_g")
    if not EST:
        e("s_waitcnt vmcnt(0)")
        poll_check(41, 1, 10, WS_FW)
    e("s_branch L_dft_l")


def addr_advance(regs):
    e("s_add_u32 %s, %s, %d", s(sBuf), s(sBuf), SLAB)
    e("s_cmp_ge_u32 %s, %d", s(sBuf), 3 * SLAB)
    e("s_cselect_b32 %s, 0, %s", s(sBuf), s(sBuf))
    e("s_cselect_b32 %s, %d, %s", s(sDelta), (-2 * SLAB) & 0xffffffff, s(sSLAB))
    for r_ in regs:
        e("v_add_u32 %s, %s, %s", v(r_), s(sDelta), v(r_))


def gemm_loop(nslab, NT, mfmas, reads, need, areg, bar_gap, per_gap, last_extra=(), first_hook=None, peel=None, buf0=0, body=None, unroll=None, hooks=None, loop_from=None, fills=None, advf=None, last_bar=False):
    nreads = len(reads(0, 0))
    nm = len(need)

    def step(mf, nxt, first_gap=0, pre=None, barg=None):
        issued, done = 0, 0
        for m in range(nm):
            if need[m] > done:
                allowed = nreads - need[m] + issued
                e("s_waitcnt lgkmcnt(%d)", min(15, allowed))
                done = need[m] if allowed <= 15 else min(nreads, nreads + issued - 15)
            mf[m]()
            if pre and m in pre:
                for f in pre[m]:
                    f()
                if m == barg:
                    done = nreads
            if m >= first_gap:
                for k in range(per_gap):
                    if issued < len(nxt):
                        nxt[issued]()
                        issued += 1
        assert issued == len(nxt), (issued, len(nxt))

    def bar(vm=False):
        e("s_waitcnt lgkmcnt(0)%s", " vmcnt(0)" if vm else "")
        e("s_barrier")

    def merge(*ds):
        out = {}
        for d in ds:
            for k, x in d.items():
                out.setdefault(k, [])
                out[k] += x
        return out

    def spread(ops):
        out = {}
        for n, f in enumerate(ops):
            g = nm - 1 - (len(ops) - 1 - n) * max(1, (nm - bar_gap - 1) // max(1, len(ops)))
            out.setdefault(max(g, 0), []).append(f)
        return out

    def slab(last, peeled=False):
        if peeled:
            for t in range(NT - 1):
                step(mfmas(t & 1, t == 0), reads((t + 1) & 1, t + 1), pre=peel[t])
            step(mfmas(1), reads(0, 0), first_gap=bar_gap + (1 if bar_gap else 0),
                 pre=merge({0: [lambda: addr_advance(areg)]}, {bar_gap: [lambda: bar(True)]}, peel[NT - 1]), barg=bar_gap)
            return
        ex = list(last_extra) if last else []
        per = (len(ex) + NT - 1) // NT
        for t in range(NT - 1):
            step(mfmas(t & 1), reads((t + 1) & 1, t + 1), pre=merge(spread(ex[t * per:(t + 1) * per]), body[t] if body and not last else {}))
        if last:
            step(mfmas(1), [], pre=spread(ex[(NT - 1) * per:]))
        else:
            hooks = {bar_gap: ([first_hook[0]] if first_hook else []) + [bar] + ([first_hook[1]] if first_hook else [])}
            step(mfmas(1), reads(0, 0), first_gap=bar_gap + (1 if bar_gap else 0), pre=merge({0: [lambda: addr_advance(areg)]}, hooks, body[NT - 1] if body else {}), barg=bar_gap)
    e("s_mov_b32 %s, %d", s(sBuf), buf0)
    e("s_mov_b32 %s, %d", s(sSLAB), SLAB)
    e("s_mov_b32 %s, 0", s(sCnt))
    e("s_waitcnt lgkmcnt(0)%s", " vmcnt(%d)" % unroll[0][0] if unroll and unroll[0][0] is not None else "")
    make_tag()
    e("s_barrier")
    stamp("c_bi")
    for f in reads(0, 0):
        f()
    if unroll:
        ops = unroll[0][1]
        for i in range(nslab):
            if loop_from is not None and loop_from < i < nslab - 1:
                continue
            if loop_from is not None and i == loop_from:
                e("s_mov_b32 %s, %d", s(sBuf), ((buf0 // SLAB + i) % 3) * SLAB)
                e("s_mov_b32 %s, %d", s(sCnt), i)
                lab = A.newlabel("L_gemm")
                A.label(lab)
                slab(False)
                e("s_add_u32 %s, %s, 1", s(sCnt), s(sCnt))
                e("s_cmp_lt_u32 %s, %d", s(sCnt), nslab - 1)
                e("s_cbranch_scc1 %s", lab)
                continue
            per = (len(ops) + NT - 2) // (NT - 1)
            hk = hooks[i] if hooks else [{}] * NT
            if fills:
                gs = fills(i)
                ngap = (NT - 1) * nm
                hk = [{} for _ in range(NT)]
                for k, g in enumerate(gs):
                    pos = min(ngap - 1, k * ngap // max(1, len(gs)))
                    hk[pos // nm].setdefault(pos % nm, []).append(lambda g=g: A.lines.extend(g))
            for t in range(NT - 1):
                step(mfmas(t & 1, i == 0 and t == 0), reads((t + 1) & 1, t + 1), pre=merge(spread(ops[t * per:(t + 1) * per]), hk[t]))
            if i == nslab - 1:
                if last_bar:
                    step(mfmas(1), [], pre={bar_gap: [bar]}, barg=bar_gap)
                else:
                    step(mfmas(1), [])
            else:
                vm, ops = unroll[i + 1]
                if callable(vm):
                    vm = vm()

                def ubar(vm=vm):
                    e("s_waitcnt lgkmcnt(0)%s", "" if vm is None else " vmcnt(%d)" % vm)
                    e("s_barrier")

                def adv(i=i):
                    if advf:
                        return advf(i)
                    nb = (buf0 // SLAB + i + 1) % 3
                    for r_ in areg:
                        e("v_add_u32 %s, %d, %s", v(r_), (SLAB if nb else -2 * SLAB) & 0xffffffff, v(r_))
                step(mfmas(1), reads(0, 0), first_gap=bar_gap + (1 if bar_gap else 0),
                     pre=merge({0: [adv]}, {bar_gap: [ubar]}, hk[NT - 1]), barg=bar_gap)
        stamp("c_le")
        return
    if peel:
        slab(False, True)
        e("s_mov_b32 %s, 1", s(sCnt))
    lab = A.newlabel("L_gemm")
    A.label(lab)
    slab(False)
    e("s_add_u32 %s, %s, 1", s(sCnt), s(sCnt))
    e("s_cmp_lt_u32 %s, %d", s(sCnt), nslab - 1)
    e("s_cbranch_scc1 %s", lab)
    slab(True)
    stamp("c_le")


vWD = [1, 2, 3, 4, 14]


def p3c_setup():
    p3_map()
    wd_bases(sW)
    e("s_lshl_b32 %s, %s, 6", s(sOo), s(sG3))
    e("s_mul_i32 %s, %s, %d", s(sHo), s(sP), 2 * 48 * 2048)
    e("s_lshl_b32 %s, %s, 11", s(sTmp), s(sW))
    e("s_add_u32 %s, %s, %s", s(sHo), s(sHo), s(sTmp))
    e("s_and_b32 %s, %s, 1", s(sTmp), s(sW))
    e("s_lshl_b32 %s, %s, 10", s(sTmp), s(sTmp))
    e("s_lshl_b32 %s, %s, 1", s(sTmp2), s(sP))
    e("s_add_u32 %s, %s, %s", s(sTmp), s(sTmp), s(sTmp2))
    e("s_lshr_b32 %s, %s, 1", s(sTmp2), s(sW))
    e("s_add_u32 %s, %s, %s", s(sTmp), s(sTmp), s(sTmp2))
    e("s_mul_i32 %s, %s, 1280", s(sTmp), s(sTmp))
    e("s_add_u32 %s, %s, %s", s(sOo), s(sOo), s(sTmp))
    e("s_add_u32 %s, %s, %s", s(sOc), s(sOc), s(sTmp))


def fh_addr():
    e("s_lshl_b32 %s, %s, 1", s(sTmp), s(sP))
    e("s_lshr_b32 %s, %s, 1", s(sTmp2), s(sW))
    e("s_add_u32 %s, %s, %s", s(sTmp), s(sTmp), s(sTmp2))
    e("s_mul_i32 %s, %s, 12", s(sTmp), s(sTmp))
    e("v_min_u32 v5, 11, v0")
    e("v_add_u32 v5, %s, v5", s(sTmp))
    e("v_lshlrev_b32 v3, 7, v5")


sHr = [50, 51, 52, 53]
def hreg(i, rho): return 8 + (i % 4) * 16 + rho * 4
def wreg(i, ct): return 72 + (i % 4) * 20 + ct * 4
WPRE = [(5, 1), (5, 2), (5, 3), (5, 4), (6, 0), (6, 1), (6, 2), (6, 3)]


def p3_pre():
    vL = 1
    e("v_lshlrev_b32 %s, 4, v0", v(vL))
    for rho in range(4):
        e("s_add_u32 %s, %s, %d", s(sTmp), s(sW), rho)
        e("s_bfe_u32 %s, %s, 0x10001", s(sTmp2), s(sTmp))
        e("s_mul_i32 %s, %s, %d", s(sTmp2), s(sTmp2), 48 * 2048)
        e("s_and_b32 %s, %s, 1", s(sTmp), s(sTmp))
        e("s_lshl_b32 %s, %s, 10", s(sTmp), s(sTmp))
        e("s_add_u32 %s, %s, %s", s(sTmp), s(sTmp), s(sTmp2))
        e("s_add_u32 %s, %s, %s", s(sTmp), s(sTmp), s(sHo))
        e("s_add_u32 %s, %s, %d", s(sHr[rho]), s(sTmp), WS_H)

    rot3()


def hload_(i):
    item4(i, sRZ)
    e("s_lshl_b32 %s, %s, 1", s(sRZ), s(sRZ))
    for rho in range(4):
        e("s_add_u32 %s, %s, %s", s(sTmp), s(sHr[rho]), s(sRZ))
        e("buffer_load_dwordx4 %s, v1, %s, %s offen sc1", v(hreg(i, rho), 4), s(sWS, 4), s(sTmp))


def p3c():
    vL, vO, vPH, vWJ = 1, 2, 3, 4
    RS, XR, WJ, ACC = 8, 8, 152, 176
    NI = 12
    q = VQ()
    def wload(i, ct, head=None):
        if head if head is not None else ct == 0:
            item4(i, sI4)
            e("s_add_u32 %s, %s, %s", s(sTmp2), s(sI4), s(sWa))
        if ct < 4:
            e("s_add_u32 %s, %s, %d", s(sTmp), s(sTmp2), WOFF[ct][1])
        else:
            e("s_add_u32 %s, %s, %s", s(sTmp), s(sI4), s(sWc))
        e("buffer_load_dwordx4 %s, %s, %s, %s offen sc1", v(wreg(i, ct), 4), v(vL), s(sWS, 4), s(sTmp))
        q.issue("i%d" % i)

    def hload(i):
        hload_(i)
        q.issue("i%d" % i, 4)

    def wj(i, ct):
        e("ds_read_b128 %s, %s offset:%d", v(WJ + 4 * ct, 4), v(vWJ), i * 5120 + ct * 1024)
    stamp("p3_in")
    if opt("cpr", 0) or opt("p1p", 0):
        e("s_setprio %d", opt("cpr", 0))
    if not XQ:
        e("v_and_b32 v5, 15, v0")
        e("v_mul_u32_u24 v5, 81920, v5")
        e("v_lshrrev_b32 v6, 4, v0")
        e("v_lshl_add_u32 %s, v6, 3, v5", v(vO))
    fh_addr()
    e("s_mul_i32 %s, %s, %d", s(sTmp), s(sW), CPS)
    e("s_add_u32 %s, %s, %d", s(sTmp), s(sTmp), CP0)
    e("v_add_u32 %s, %s, %s", v(vWJ), s(sTmp), v(vL))
    lab = A.newlabel("L_nofh")
    e("s_cmp_ge_u32 s2, 192")
    e("s_cbranch_scc1 %s", lab)
    e("v_mov_b32 v7, %d", LGO)
    e("v_mov_b32 v172, 1")
    e("s_waitcnt vmcnt(0)")
    flag_store(sFlag, 5, 6)
    e("s_mov_b64 exec, 1")
    e("ds_add_u32 v7, v172 offset:4")
    e("s_mov_b64 exec, -1")
    if EFH:
        poll_issue(7, 1, vPH, WS_FH)
        e("s_waitcnt vmcnt(0)")
    A.label(lab)
    stamp("p3_fl")
    if not EFH:
        poll_issue(7, 1, vPH, WS_FH)
    e("s_lshl_b32 %s, %s, 2", s(sTmp), s(sW))
    e("s_add_u32 %s, %s, %d", s(sTmp), s(sTmp), LGO + 16)
    e("v_mov_b32 v5, %s", s(sTmp))
    late, join = A.newlabel("L_hlate"), A.newlabel("L_hjoin")
    if not EFH:
        e("s_waitcnt vmcnt(0)")
    early = A.newlabel("L_hearly")
    if EH:
        e("s_cmp_eq_u32 %s, 2", s(sNU))
        e("s_cbranch_scc1 %s", early)
    e("v_cmp_ne_u32 vcc, %s, v7", s(sTAG))
    e("s_cbranch_vccnz %s", late)
    for i in range(EH):
        hload(i)
    A.label(early)
    e("s_mov_b32 %s, 1", s(sNU))
    for i in range(EH, 4):
        hload(i)
    for i in range(4, 8):
        for ct in range(5):
            if not P3O:
                wload(i, ct)
    qe = VQ()
    qe.q = list(q.q)
    qd = VQ()
    qd.q = list(q.q)
    e("s_branch %s", join)
    A.label(late)
    e("s_mov_b32 %s, 0", s(sNU))
    for i in range(4, 8):
        for ct in range(5):
            wload(i, ct)
    poll_check(7, 1, vPH, WS_FH)
    stamp("hp")
    q.drain()
    for i in range(4):
        hload(i)
    A.label(join)
    stamp("p3_fh")

    def staged(br):
        lab, skip = A.newlabel("L_wst"), A.newlabel("L_wsk")
        if br:
            e("s_cmp_ge_u32 s2, 192")
            e("%s %s", br, skip)
        A.label(lab)
        e("ds_read_b32 v6, v5")
        e("s_waitcnt lgkmcnt(0)")
        e("v_cmp_eq_u32 vcc, 0, v6")
        e("s_cbranch_vccnz %s", lab)
        A.label(skip)
    staged("s_cbranch_scc1" if EST else None)
    for ct in range(5):
        wj(0, ct)
    OFF = [(sOo, 0), (sOo, 32), (sOo, 640), (sOo, 672), (sOc, 0)]
    vXC, vD, vD1, vDC = 172, 173, 174, 175

    def xq_addr():
        e("v_lshrrev_b32 v6, 2, v0")
        e("v_mul_u32_u24 v6, 81920, v6")
        e("v_lshrrev_b32 v7, 4, v0")
        e("v_xor_b32 v7, v7, v0")
        e("v_and_b32 v7, 3, v7")
        e("v_lshl_add_u32 %s, v7, 4, v6", v(vO))
        e("v_bfe_u32 v6, v0, 1, 4")
        e("v_mul_u32_u24 v6, 81920, v6")
        e("v_and_b32 v7, 1, v0")
        e("v_lshl_add_u32 %s, v7, 4, v6", v(vXC))
        e("s_mul_i32 %s, %s, %d", s(sTB), s(sW), CPS)
        e("s_add_u32 %s, %s, %d", s(sTB), s(sTB), CP0 + 15360)
        e("v_and_b32 v6, 15, v0")
        e("v_lshrrev_b32 v7, 4, v0")
        e("v_lshlrev_b32 %s, 5, v6", v(vDC))
        e("v_lshl_add_u32 %s, v7, 3, %s", v(vDC), v(vDC))
        e("v_add_u32 %s, %s, %s", v(vDC), s(sTB), v(vDC))
        e("v_lshlrev_b32 v6, 6, v6")
        e("v_and_b32 v7, 1, v7")
        e("v_lshl_add_u32 v6, v7, 3, v6")
        e("v_lshrrev_b32 v7, 5, v0")
        e("v_bfe_u32 %s, v0, 2, 2", v(vD))
        e("v_xor_b32 v7, v7, %s", v(vD))
        e("v_lshl_add_u32 v6, v7, 4, v6")
        e("v_add_u32 %s, %s, v6", v(vD), s(sTB))
        e("v_xor_b32 %s, 32, %s", v(vD1), v(vD))

    LP = 48
    zsrc = [LP, LP + 16, LP + 8, LP + 24, LP + 32]

    def zreads():
        for c3 in range(3):
            for lw in range(4):
                e("ds_read_b128 %s, v40 offset:%d", v(LP + (c3 * 4 + lw) * 4, 4), ZU0 + lw * ZUS + c3 * 4096)

    def zcombine():
        for c3 in range(3):
            b = LP + c3 * 16
            for k in (0, 2):
                e("v_pk_add_f32 %s, %s, %s", v(b + k, 2), v(b + k, 2), v(b + 8 + k, 2))
                e("v_pk_add_f32 %s, %s, %s", v(b + 4 + k, 2), v(b + 4 + k, 2), v(b + 12 + k, 2))
            for k in (0, 2):
                if c3 < 2:
                    e("v_pk_add_f32 %s, %s, %s neg_lo:[0,1] neg_hi:[0,1]", v(b + 8 + k, 2), v(b + k, 2), v(b + 4 + k, 2))
                e("v_pk_add_f32 %s, %s, %s", v(b + k, 2), v(b + k, 2), v(b + 4 + k, 2))

    def dl(ct): return ((vD, vD1)[ct & 1], (ct >> 1) * 1024) if ct < 4 else (vDC, 2048)

    def x_dma(k):
        e("s_add_u32 m0, %s, %d", s(sTB), k * 1024)
        if k < 2:
            e("buffer_load_dwordx4 %s, %s, %s offen offset:%d lds", v(vO), s(sX, 4), s(sOo), 0) if k == 0 else None
            if k == 1:
                e("s_add_u32 %s, %s, 640", s(sTmp), s(sOo))
                e("buffer_load_dwordx4 %s, %s, %s offen lds", v(vO), s(sX, 4), s(sTmp))
        else:
            e("s_mov_b32 exec_hi, 0")
            e("buffer_load_dwordx4 %s, %s, %s offen lds", v(vXC), s(sX, 4), s(sOc))
            e("s_mov_b32 exec_hi, -1")
        q.issue("x")

    def acc(ct, rt): return ACC + (ct * 4 + rt) * 4
    for i in range(NI):
        rs = RS + (i % 4) * 36
        n0 = len(q.q)
        if i < (8 if P3O else 4):
            la, lb = A.newlabel("L_w3"), A.newlabel("L_w3")
            e("s_cmp_eq_u32 %s, 0", s(sNU))
            e("s_cbranch_scc1 %s", la)
            if P3O and WP:
                lc = A.newlabel("L_w3")
                e("s_cmp_ge_u32 s2, 192")
                e("s_cbranch_scc1 %s", lc)
                qe.wait("i%d" % i)
                e("s_branch %s", lb)
                A.label(lc)
                qd.wait("i%d" % i)
            elif P3O:
                qe.wait("i%d" % i)
            else:
                e("s_waitcnt vmcnt(32)")
            e("s_branch %s", lb)
            A.label(la)
            q.wait("i%d" % i)
            A.label(lb)
        else:
            q.wait("i%d" % i)
        stamp("i%d" % i)
        n0 = len(q.q)
        if XQ and i == 10:
            for ct in range(5):
                e("ds_read_b64 %s, %s offset:%d", v(XR + 2 * ct, 2), v(dl(ct)[0]), dl(ct)[1])
        if XQ and i == 11:
            e("s_waitcnt lgkmcnt(0)")
        if ZE and i == 11:
            lab = A.newlabel("L_zw")
            e("v_mov_b32 v7, %d", LGO)
            e("s_lshl_b32 %s, %s, 10", s(sTmp), s(sW))
            e("v_add_u32 v40, %s, %s", s(sTmp), v(vL))
            A.label(lab)
            e("ds_read_b32 v6, v7 offset:36")
            e("s_waitcnt lgkmcnt(0)")
            e("v_cmp_ne_u32 vcc, 4, v6")
            e("s_cbranch_vccnz %s", lab)
            zreads()
        if i == 2 and EST:
            staged("s_cbranch_scc0")
        for ct in range(5):
            if i < 4:
                e("s_waitcnt lgkmcnt(%d)", 4 if i < 3 else 4 - ct)
            for rt in range(4):
                mm16(acc(ct, rt), WJ + 4 * ct if i < 4 else wreg(i, ct), hreg(i, rt), i == 0)
            if i < 3:
                wj(i + 1, ct)
            if 4 <= i < 8:
                wload(i + 4, ct)
            if i == NI - 1 and FIL and ct >= 2:
                for rho in range(1, 4):
                    e("ds_write_b128 %s, %s offset:%d", v(vWJ), v(acc(ct - 2, rho), 4), (rho - 1) * 5120 + (ct - 2) * 1024)
            if XQ and i == 3 and ct == 0:
                xq_addr()
            if XQ and i == 4 and ct >= 2:
                x_dma(ct - 2)
            if i == 9 and not XQ:
                e("buffer_load_dwordx2 %s, %s, %s, %s offen offset:%d", v(XR + 2 * ct, 2), v(vO), s(sX, 4), s(OFF[ct][0]), OFF[ct][1])
                q.issue("x")
        if P3O and i < 4:
            lab = A.newlabel("L_w4")
            e("s_cmp_eq_u32 %s, 0", s(sNU))
            e("s_cbranch_scc1 %s", lab)
            keep = list(q.q)
            own = [ct for ct in range(5) if (i + 4, ct) not in WPRE]
            order = own + [ct for ct in range(5) if ct not in own]
            for n, ct in enumerate(order):
                if WP and n == len(own):
                    e("s_cmp_ge_u32 s2, 192")
                    e("s_cbranch_scc1 %s", lab)
                wload(i + 4, ct, n == 0)
            q.q = keep
            qe.issue("i%d" % (i + 4), 5)
            qd.issue("i%d" % (i + 4), len(own))
            A.label(lab)
        if i + 4 < NI:
            hload(i + 4)
        qe.q += q.q[n0:]
        qd.q += q.q[n0:]
    for rho in range(1, 4):
        e("s_sub_u32 %s, %s, %d", s(sTmp), s(sW), rho)
        e("s_and_b32 %s, %s, 3", s(sTmp), s(sTmp))
        e("s_mul_i32 %s, %s, %d", s(sTmp), s(sTmp), CPS)
        e("s_add_u32 %s, %s, %d", s(sTmp), s(sTmp), CP0 + (rho - 1) * 5120)
        e("v_add_u32 %s, %s, %s", v(40 + rho), s(sTmp), v(vL))
    for ct in range(3 if FIL else 0, 5):
        for rho in range(1, 4):
            e("ds_write_b128 %s, %s offset:%d", v(vWJ), v(acc(ct, rho), 4), (rho - 1) * 5120 + ct * 1024)
    if ZE:
        e("s_waitcnt lgkmcnt(15)")
        zcombine()
        for ct in range(5):
            for k in (0, 2):
                e("v_pk_add_f32 %s, %s, %s", v(acc(ct, 0) + k, 2), v(acc(ct, 0) + k, 2), v(zsrc[ct] + k, 2))
    else:
        e("s_lshl_b32 %s, %s, 10", s(sTmp), s(sW))
        e("v_add_u32 v40, %s, %s", s(sTmp), v(vL))
    e("s_waitcnt vmcnt(0)")
    for ct in range(5):
        x0, b = XR + 2 * ct, 20 + 4 * ct
        e("v_lshlrev_b32 %s, 16, %s", v(b), v(x0))
        e("v_and_b32 %s, 0xffff0000, %s", v(b + 1), v(x0))
        e("v_lshlrev_b32 %s, 16, %s", v(b + 2), v(x0 + 1))
        e("v_and_b32 %s, 0xffff0000, %s", v(b + 3), v(x0 + 1))
        for k in (0, 2):
            e("v_pk_add_f32 %s, %s, %s", v(acc(ct, 0) + k, 2), v(acc(ct, 0) + k, 2), v(b + k, 2))
    e("s_waitcnt lgkmcnt(0)")
    stamp("p3_end")
    e("s_barrier")
    stamp("p3_bar")
    if not ZE:
        zreads()
    for ct in range(5):
        for k in range(1, 4):
            e("ds_read_b128 %s, %s offset:%d", v(acc(ct, k), 4), v(40 + k), ct * 1024)
    if not ZE:
        e("s_waitcnt lgkmcnt(15)")
        zcombine()
    extra = 0
    for ct in range(5):
        b = acc(ct, 0)
        e("s_waitcnt lgkmcnt(%d)", 12 - 3 * ct + extra)
        for k in (0, 2):
            if not ZE:
                e("v_pk_add_f32 %s, %s, %s", v(b + k, 2), v(b + k, 2), v(zsrc[ct] + k, 2))
            e("v_pk_add_f32 %s, %s, %s", v(b + 4 + k, 2), v(b + 4 + k, 2), v(b + 8 + k, 2))
        for k in (0, 2):
            e("v_pk_add_f32 %s, %s, %s", v(b + k, 2), v(b + k, 2), v(b + 12 + k, 2))
        for k in (0, 2):
            e("v_pk_add_f32 %s, %s, %s", v(b + k, 2), v(b + k, 2), v(b + 4 + k, 2))
        e("v_cvt_pk_bf16_f32 %s, %s, %s", v(b + 8), v(b), v(b + 1))
        e("v_cvt_pk_bf16_f32 %s, %s, %s", v(b + 9), v(b + 2), v(b + 3))
        if not XQ:
            e("buffer_store_dwordx2 %s, %s, %s, %s offen offset:%d%s", v(b + 8, 2), v(vO), s(sOUT, 4), s(OFF[ct][0]), OFF[ct][1], OUTF)
            continue
        e("ds_write_b64 %s, %s offset:%d", v(dl(ct)[0]), v(b + 8, 2), dl(ct)[1] + 2560)
        extra += 1
        if ct in (1, 3, 4):
            e("ds_read_b128 %s, %s offset:%d", v(8 + 4 * (ct >> 1), 4), v(vWJ), 15360 + 2560 + (ct >> 1) * 1024)
            extra += 1
        if ct == 3:
            e("s_waitcnt lgkmcnt(3)")
            e("buffer_store_dwordx4 v[8:11], %s, %s, %s offen%s", v(vO), s(sOUT, 4), s(sOo), OUTF)
        if ct == 4:
            e("s_waitcnt lgkmcnt(2)")
            e("buffer_store_dwordx4 v[12:15], %s, %s, %s offen offset:640%s", v(vO), s(sOUT, 4), s(sOo), OUTF)
            e("s_waitcnt lgkmcnt(0)")
            e("s_mov_b32 exec_hi, 0")
            e("buffer_store_dwordx4 v[16:19], %s, %s, %s offen%s", v(vXC), s(sOUT, 4), s(sOc), OUTF)
            e("s_mov_b32 exec_hi, -1")
    lab = A.newlabel("L_noep")
    e("s_lshl_b32 %s, s2, 3", s(sTmp))
    e("s_add_u32 %s, %s, %s", s(sTmp), s(sTmp), s(sW))
    e("s_cmp_eq_u32 %s, 0", s(sTmp))
    e("s_cbranch_scc0 %s", lab)
    e("s_mov_b32 %s, 0x%x", s(sTmp), WS_EP)
    flag_store(sTmp, 5, 6)
    A.label(lab)


def pf3(part):
    e("s_lshr_b32 %s, s2, 3", s(sCnt))
    e("s_lshl_b32 %s, %s, 2", s(sCnt), s(sCnt))
    e("s_add_u32 %s, %s, %s", s(sCnt), s(sCnt), s(sLW))
    ntau = 40 if MAP8 else 20
    n = 0
    if part == 0:
        per = (ntau * 256 + 95) // 96
        for k in range((per + 63) // 64):
            e("s_mul_i32 %s, %s, %d", s(sTmp), s(sCnt), per)
            e("v_min_u32 v12, %d, v0", min(63, per - 64 * k - 1))
            e("v_add_u32 v12, %s, v12", s(sTmp))
            if k:
                e("v_add_u32 v12, %d, v12", 64 * k)
            e("v_lshrrev_b32 v13, 8, v12")
            e("v_and_b32 v12, 255, v12")
            if not MAP8:
                e("s_and_b32 %s, s2, 1", s(sTmp))
                e("s_lshl_b32 %s, %s, 3", s(sTmp2), s(sTmp))
                e("s_lshl_b32 %s, %s, 1", s(sTmp), s(sTmp))
                e("s_add_u32 %s, %s, 16", s(sTmp), s(sTmp))
                e("v_cmp_gt_u32 vcc, 16, v13")
                e("v_and_b32 v14, 7, v13")
                e("v_add_u32 v14, %s, v14", s(sTmp2))
                e("v_bfe_u32 v17, v13, 3, 1")
                e("v_mad_u32_u24 v14, v17, 20, v14")
                e("v_and_b32 v16, 1, v13")
                e("v_add_u32 v16, %s, v16", s(sTmp))
                e("v_bfe_u32 v17, v13, 1, 1")
                e("v_mad_u32_u24 v16, v17, 20, v16")
                e("v_cndmask_b32 v13, v16, v14, vcc")
            e("v_mul_u32_u24 v13, 49152, v13")
            e("v_lshl_add_u32 v60, v12, 7, v13")
            n += 1
    else:
        per = (4032 if MAP8 else 2016) // 96
        e("s_mul_i32 %s, %s, %d", s(sTmp), s(sCnt), per * 128)
        if not MAP8:
            e("s_and_b32 %s, s2, 1", s(sTmp2))
            e("s_mul_i32 %s, %s, %d", s(sTmp2), s(sTmp2), 4 * 63 * 1024)
            e("s_add_u32 %s, %s, %s", s(sTmp), s(sTmp), s(sTmp2))
        e("s_add_u32 %s, %s, %d", s(sTmp), s(sTmp), TB.CI_OFF)
        e("v_min_u32 v12, %d, v0", per - 1)
        e("v_lshlrev_b32 v12, 7, v12")
        e("v_add_u32 v61, %s, v12", s(sTmp))
        n = 1
    assert n == 1


def pf3_go(q, m):
    if m & 1:
        e("buffer_load_dword v63, v61, %s, 0 offen", s(sTAB, 4))
        q.issue("pf")
    if m & 2:
        e("s_mov_b32 %s, 0x%x", s(sTmp), WS_WD + 16384)
        e("buffer_load_dword v62, v60, %s, %s offen sc1", s(sWS, 4), s(sTmp))
        q.issue("pf")


def code_touch():
    lab = A.newlabel("L_ct")
    e("s_getpc_b64 s[4:5]")
    A.label(lab)
    e("s_sub_u32 s4, s4, %s - %s", lab, NAME + "_kernel")
    e("s_subb_u32 s5, s5, 0")
    e("s_mov_b32 %s, s4", s(sG))
    e("s_and_b32 %s, s5, 0xffff", s(sG + 1))
    e("s_mov_b32 %s, L_code_end - %s", s(sG + 2), NAME + "_kernel")
    e("s_mov_b32 %s, 0x00020000", s(sG + 3))
    if CT == 3:
        e("s_lshr_b32 %s, s2, 3", s(sTmp))
    else:
        e("s_bfe_u32 %s, s2, 0x30003", s(sTmp))
        e("s_lshl_b32 %s, %s, 2", s(sTmp), s(sTmp))
        e("s_add_u32 %s, %s, %s", s(sTmp), s(sTmp), s(sW))
    e("s_lshl_b32 %s, %s, 11", s(sTmp), s(sTmp))
    e("v_and_b32 v5, 15, v0")
    e("v_lshlrev_b32 v5, 7, v5")
    e("buffer_load_dword v15, v5, %s, %s offen", s(sG, 4), s(sTmp))


def warm_touch():
    e("s_lshl_b32 %s, s2, 1", s(sTmp))
    e("s_and_b32 %s, %s, 1", s(sTmp2), s(sLW))
    e("s_add_u32 %s, %s, %s", s(sTmp), s(sTmp), s(sTmp2))
    e("s_mul_i32 %s, %s, %d", s(sTmp), s(sTmp), 27 * 128)
    e("v_min_u32 v12, 26, v0")
    e("v_lshlrev_b32 v12, 7, v12")
    lab, lab2 = A.newlabel("L_wt"), A.newlabel("L_wt")
    e("s_cmp_ge_u32 %s, 2", s(sLW))
    e("s_cbranch_scc1 %s", lab)
    e("buffer_load_dword v250, v12, %s, %s offen", s(sWR, 4), s(sTmp))
    e("s_branch %s", lab2)
    A.label(lab)
    e("buffer_load_dword v250, v12, %s, %s offen", s(sWI, 4), s(sTmp))
    A.label(lab2)
    e("s_lshl_b32 %s, s2, 2", s(sTmp))
    e("s_add_u32 %s, %s, %s", s(sTmp), s(sTmp), s(sLW))
    e("s_mul_i32 %s, %s, %d", s(sTmp), s(sTmp), 6 * 128)
    e("s_add_u32 %s, %s, %d", s(sTmp), s(sTmp), TB.CI_OFF)
    e("v_min_u32 v12, 5, v0")
    e("v_lshlrev_b32 v12, 7, v12")
    e("buffer_load_dword v251, v12, %s, %s offen", s(sTAB, 4), s(sTmp))


def p1_ffn():
    vXA, vWA, FR, ACC = 8, 10, 16, 112
    if opt("p1p", 0) & 1:
        e("s_setprio 1")

    def tab_touch():
        tab_srd()
        e("s_lshr_b32 %s, s2, 3", s(sJB))
        e("s_lshl_b32 %s, %s, 2", s(sJB), s(sJB))
        e("s_add_u32 %s, %s, %s", s(sJB), s(sJB), s(sW))
        e("s_mul_i32 %s, %s, 9", s(sTmp), s(sJB))
        e("v_min_u32 v5, 8, v0")
        e("v_add_u32 v5, %s, v5", s(sTmp))
        e("v_min_u32 v5, 799, v5")
        e("v_lshlrev_b32 v5, 7, v5")
        e("s_bfe_u32 %s, s2, 0x20001", s(sTmp))
        e("s_mul_i32 %s, %s, 102400", s(sTmp), s(sTmp))
        e("buffer_load_dword v1, v5, %s, %s offen", s(sTAB, 4), s(sTmp))
    if XT & 8:
        tab_touch()
    stats_addr(16)
    e("s_and_b32 %s, %s, 1", s(sWM), s(sW))
    e("s_lshr_b32 %s, %s, 1", s(sWN), s(sW))
    karg_wait(["X"], ["WS", "OUT"])
    lab = A.newlabel("L_nost")
    e("s_cmp_ge_u32 %s, 8", s(sCG))
    e("s_cbranch_scc1 %s", lab)
    stats_issue(16)
    A.label(lab)
    e("s_lshl_b32 %s, %s, 3", s(sFlag), s(sRB))
    e("s_add_u32 %s, %s, %s", s(sFlag), s(sFlag), s(sCG))
    e("s_lshl_b32 %s, %s, 7", s(sFlag), s(sFlag))
    e("s_add_u32 %s, %s, 0x%x", s(sFlag), s(sFlag), WS_FS)
    p3c_setup()
    e("v_and_b32 v5, 15, v0")
    e("v_lshlrev_b32 v5, 7, v5")
    e("s_lshl_b32 %s, %s, 13", s(sTmp), s(sWM))
    e("v_add_u32 v5, %s, v5", s(sTmp))
    e("v_lshrrev_b32 v6, 4, v0")
    e("v_bfe_u32 v7, v0, 1, 3")
    e("v_xor_b32 v6, v6, v7")
    e("v_lshl_add_u32 %s, v6, 4, v5", v(vXA))
    e("v_xor_b32 %s, 64, %s", v(vXA + 1), v(vXA))
    e("v_lshrrev_b32 v5, 4, v0")
    e("v_bfe_u32 v6, v0, 2, 2")
    e("v_lshl_add_u32 v7, v5, 3, v6")
    e("v_lshlrev_b32 v7, 8, v7")
    e("v_and_b32 v5, 1, v5")
    e("v_lshl_add_u32 v5, v6, 1, v5")
    e("s_lshl_b32 %s, %s, 2", s(sTmp), s(sWN))
    e("v_xor_b32 v5, %s, v5", s(sTmp))
    e("v_lshl_add_u32 v7, v5, 5, v7")
    e("v_and_b32 v6, 3, v0")
    e("v_lshl_add_u32 %s, v6, 3, v7", v(vWA))
    for ft in range(1, 4):
        e("v_xor_b32 %s, %d, %s", v(vWA + ft), ft << 5, v(vWA))
    nt = 0
    if XT & 1:
        e("s_lshr_b32 %s, s2, 6", s(sTmp))
        e("s_lshl_b32 %s, %s, 2", s(sTmp), s(sTmp))
        e("s_add_u32 %s, %s, %s", s(sTmp), s(sTmp), s(sW))
        e("s_mul_i32 %s, %s, 107", s(sTmp), s(sTmp))
        e("s_mul_i32 %s, %s, 5120", s(sTmp2), s(sRB))
        for k in range(2):
            e("v_min_u32 v5, %d, v0", 63 if k == 0 else 42)
            e("v_add_u32 v5, %s, v5", s(sTmp))
            if k:
                e("v_add_u32 v5, 64, v5")
            e("v_min_u32 v5, 0x4ff, v5")
            e("v_mul_u32_u24 v6, 6554, v5")
            e("v_lshrrev_b32 v6, 16, v6")
            e("v_mul_u32_u24 v7, 10, v6")
            e("v_sub_u32 v5, v5, v7")
            e("v_lshlrev_b32 v5, 7, v5")
            e("v_lshrrev_b32 v7, 2, v6")
            e("v_mul_u32_u24 v7, 81920, v7")
            e("v_add_u32 v5, v5, v7")
            e("v_and_b32 v6, 3, v6")
            e("v_mul_u32_u24 v6, 1280, v6")
            e("v_add_u32 v5, v5, v6")
            e("buffer_load_dword v1, v5, %s, %s offen", s(sX, 4), s(sTmp2))
        nt += 2
    if XT & 2 and not XT & 8:
        tab_touch()
        nt += 1
    if XT & 4:
        e("s_mul_i32 %s, %s, %d", s(sTmp), s(sJB), 21 * 128)
        e("s_and_b32 %s, s2, 1", s(sTmp2))
        e("s_mul_i32 %s, %s, %d", s(sTmp2), s(sTmp2), 4 * 63 * 1024)
        e("s_add_u32 %s, %s, %s", s(sTmp), s(sTmp), s(sTmp2))
        e("s_add_u32 %s, %s, %d", s(sTmp), s(sTmp), TB.CI_OFF)
        e("v_min_u32 v5, 20, v0")
        e("v_lshlrev_b32 v5, 7, v5")
        e("v_add_u32 v5, %s, v5", s(sTmp))
        e("s_and_b32 %s, %s, 63", s(sTmp), s(sJB))
        e("s_lshl_b32 %s, %s, 7", s(sTmp), s(sTmp))
        e("s_add_u32 %s, %s, %d", s(sTmp), s(sTmp), TB.F64_OFF)
        e("v_mov_b32 v6, %s", s(sTmp))
        e("v_cmp_lt_u32 vcc, 31, v0")
        e("v_cndmask_b32 v5, v5, v6, vcc")
        e("buffer_load_dword v1, v5, %s, 0 offen", s(sTAB, 4))
        nt += 1
    lab = A.newlabel("L_nost")
    e("s_cmp_ge_u32 %s, 8", s(sCG))
    e("s_cbranch_scc1 %s", lab)
    e("s_waitcnt vmcnt(%d)", nt)
    stats_compute(16)
    A.label(lab)
    k_offset(sK1)
    e("s_bfe_u32 %s, s2, 0x20004", s(sPar))
    e("s_add_u32 %s, %s, %s", s(sK1), s(sK1), s(sPar))
    if KG:
        mod10(sK1)
    e("s_mul_i32 %s, %s, 12288", s(sK1), s(sK1))
    e("s_lshl_b32 %s, %s, 2", s(sTmp), s(sCG))
    e("s_lshl_b32 %s, %s, 1", s(sTmp2), s(sWM))
    e("s_add_u32 %s, %s, %s", s(sTmp), s(sTmp), s(sTmp2))
    e("s_add_u32 %s, %s, %s", s(sTmp), s(sTmp), s(sWN))
    e("s_lshl_b32 %s, %s, 8", s(sTmp), s(sTmp))
    e("s_add_u32 %s, %s, %s", s(sK1), s(sK1), s(sTmp))
    e("s_add_u32 %s, %s, 0x%x", s(sK1), s(sK1), WS_CSP)
    e("s_bfe_u32 %s, s2, 0x30003", s(sTmp))
    e("s_cmp_ge_u32 %s, 5", s(sTmp))
    e("s_cselect_b32 %s, 100, %s", s(sPar), s(sPar))
    e("s_cmp_lg_u32 %s, 0", s(sW))
    e("s_cselect_b32 %s, 100, %s", s(sNU), s(sPar))
    for i in range(4):
        e("v_mov_b32 %s, 0x3f803f80", v(2 + i))
    e("v_and_b32 v14, 48, v0")
    stamp("c_set")

    def stat_flag():
        e("s_lshr_b32 %s, %s, 3", s(sTmp), s(sCG))
        e("s_or_b32 %s, %s, %s", s(sTmp), s(sTmp), s(sW))
        rare("s_cbranch_scc0", lambda: flag_store(sFlag, 6, 7))

    def cs_mfma(it, p):
        def body():
            la, lb = A.newlabel("L_csm"), A.newlabel("L_csm")
            e("s_cmp_eq_u32 %s, 1", s(sWM))
            e("s_cbranch_scc1 %s", la)
            for mat in range(2):
                if mat:
                    e("s_branch %s", lb)
                    A.label(la)
                for ft in range(4):
                    mm16(240 + 4 * ft, wf(p, mat, ft), 2, p == 0)
            A.label(lb)
        e("s_cmp_eq_u32 %s, %d", s(sPar), it)
        rare("s_cbranch_scc1", body)

    def cs_store(it):
        def body():
            e("s_mov_b32 exec_lo, 0x00010001")
            e("s_mov_b32 exec_hi, 0x00010001")
            for ft in range(4):
                e("buffer_store_dwordx4 %s, v14, %s, %s offen offset:%d sc1", v(240 + 4 * ft, 4), s(sWS, 4), s(sK1), ft * 64)
            e("s_mov_b64 exec, -1")
        e("s_cmp_eq_u32 %s, %d", s(sPar), it)
        rare("s_cbranch_scc1", body)

    def cs_wait(it):
        e("s_cmp_eq_u32 %s, %d", s(sPar), it)
        rare("s_cbranch_scc1", lambda: e("s_waitcnt vmcnt(0)"))

    def cs_flag(it):
        def body():
            e("s_lshl_b32 %s, s2, 7", s(sTmp))
            e("s_add_u32 %s, %s, 0x%x", s(sTmp), s(sTmp), WS_FSC)
            flag_store(sTmp, 6, 7)
        e("s_cmp_eq_u32 %s, %d", s(sNU), it)
        rare("s_cbranch_scc1", body)

    def acc(mat, ft, st): return ACC + ((mat * 4 + ft) * 4 + st) * 4
    def xf(p, st): return FR + p * 48 + st * 4
    def wf(p, mat, ft): return FR + p * 48 + 16 + (mat * 4 + ft) * 4
    keys = [("x", 0), ("w", 0, 0), ("w", 0, 0), ("x", 1), ("x", 2), ("x", 3)]
    for ft in range(4):
        for mat in range(2):
            if (mat, ft) != (0, 0):
                keys += [("w", mat, ft)] * 2

    def reads(p, t):
        out, seen = [], {}
        for k in keys:
            if k[0] == "x":
                out.append(lambda st=k[1]: e("ds_read_b128 %s, %s offset:%d", v(xf(p, st), 4), v(vXA + t), st * 2048))
            else:
                rd = seen.get(k, 0); seen[k] = rd + 1
                out.append(lambda mat=k[1], ft=k[2], rd=rd: e("ds_read_b64_tr_b16 %s, %s offset:%d", v(wf(p, mat, ft) + 2 * rd, 2), v(vWA + ft), 16384 * (1 + mat) + t * 8192 + rd * 1024))
        return out
    morder, n = [], 0
    for ft in range(4):
        for mat in range(2):
            morder += [(mat, ft, st) for st in ([0, 1, 2, 3] if n % 2 == 0 else [3, 2, 1, 0])]
            n += 1
    need = [max(i + 1 for i, k in enumerate(keys) if k == ("x", m[2]) or k == ("w", m[0], m[1])) for m in morder]

    def mfmas(p, first=False):
        return [(lambda m=m: mm16(acc(*m), wf(p, m[0], m[1]), xf(p, m[2]), first)) for m in morder]
    hooks = []
    for it in range(10):
        h0, h1 = {}, {}
        if it < 3:
            h0[31] = [lambda it=it: cs_mfma(it, 0)]
            h1[8] = [lambda it=it: cs_mfma(it, 1)]
            h1[30] = [lambda it=it: cs_store(it)]
        if it == 0:
            h1[3] = [stat_flag]
        if 2 <= it <= 4:
            h1[2] = [lambda it=it: cs_wait(it - 2)]
            h1[3] = [lambda it=it: cs_flag(it - 2)]
        hooks.append([h0, h1])
    vmw = [0] + [None] * 9
    gemm_loop(10, 2, mfmas, reads, need, [8, 9, 10, 11, 12, 13], 3, 1, unroll=[(None, [])] + [(vmw[i], []) for i in range(9)], hooks=hooks, loop_from=5 if opt("loop", 1) else None)

    if opt("fpr", 0):
        e("s_setprio %d", opt("fpr", 0))
    RM, CS = 16, 32
    e("v_and_b32 v5, 15, v0")
    e("v_lshlrev_b32 v5, 2, v5")
    e("s_lshl_b32 %s, %s, 8", s(sTmp), s(sWM))
    e("s_add_u32 %s, %s, %d", s(sTmp), s(sTmp), AUX)
    e("v_add_u32 v5, %s, v5", s(sTmp))
    if TL:
        e("s_barrier")
        stamp("c_b9")
    for st in range(4):
        e("ds_read_b32 %s, v5 offset:%d", v(RM + 4 * st), st * 64)
        e("ds_read_b32 %s, v5 offset:%d", v(RM + 4 * st + 2), 512 + st * 64)
    e("v_lshrrev_b32 v6, 4, v0")
    e("v_lshlrev_b32 v6, 4, v6")
    e("s_lshl_b32 %s, %s, 8", s(sTmp), s(sWN))
    e("s_add_u32 %s, %s, %d", s(sTmp), s(sTmp), AUX + 1024)
    e("v_add_u32 v6, %s, v6", s(sTmp))
    for ft in range(4):
        for mat in range(2):
            e("ds_read_b128 %s, v6 offset:%d", v(CS + (mat * 4 + ft) * 4, 4), mat * 512 + ft * 64)
    e("s_lshl_b32 %s, %s, 1", s(sFlag), s(sRB))
    e("s_add_u32 %s, %s, %s", s(sFlag), s(sFlag), s(sWM))
    e("s_mul_i32 %s, %s, %d", s(sTmp), s(sFlag), 2 * 48 * 2048)
    e("s_lshl_b32 s3, %s, 2", s(sCG))
    e("s_lshl_b32 %s, %s, 1", s(sCnt), s(sWN))
    e("s_add_u32 s3, s3, %s", s(sCnt))
    e("s_lshl_b32 s3, s3, 11")
    e("s_add_u32 %s, %s, s3", s(sDelta), s(sTmp))
    e("s_lshl_b32 %s, %s, 1", s(sFlag), s(sFlag))
    e("s_add_u32 %s, %s, %s", s(sFlag), s(sFlag), s(sWN))
    e("s_mul_i32 %s, %s, 12", s(sFlag), s(sFlag))
    e("s_add_u32 %s, %s, %s", s(sFlag), s(sFlag), s(sCG))
    e("s_lshl_b32 %s, %s, 7", s(sFlag), s(sFlag))
    e("s_add_u32 %s, %s, 0x%x", s(sFlag), s(sFlag), WS_FH)
    e("v_lshlrev_b32 v5, 4, v0")
    e("s_waitcnt lgkmcnt(4) vmcnt(0)")
    for st in range(4):
        e("v_mul_f32 %s, %s, %s", v(RM + 4 * st), v(RM + 4 * st), v(RM + 4 * st))
    for ph in range(2):
        if ph == 1:
            e("s_waitcnt lgkmcnt(0)")
        for st in range(4):
            rr, mm_ = RM + 4 * st, RM + 4 * st + 2
            o = 64 + ((ph * 4 + st) & 3) * 4
            for fi in range(2):
                ft = 2 * ph + fi
                g0, u0 = acc(0, ft, st), acc(1, ft, st)
                for k in (0, 2):
                    e("v_pk_fma_f32 %s, %s, %s, %s op_sel_hi:[1,0,1] neg_lo:[0,1,0] neg_hi:[0,1,0]", v(g0 + k, 2), v(CS + ft * 4 + k, 2), v(mm_, 2), v(g0 + k, 2))
                    e("v_pk_fma_f32 %s, %s, %s, %s op_sel_hi:[1,0,1] neg_lo:[0,1,0] neg_hi:[0,1,0]", v(u0 + k, 2), v(CS + 16 + ft * 4 + k, 2), v(mm_, 2), v(u0 + k, 2))
                for k in range(4):
                    e("v_max_f32 %s, 0, %s", v(g0 + k), v(g0 + k))
                for k in (0, 2):
                    e("v_pk_mul_f32 %s, %s, %s op_sel_hi:[1,0]", v(u0 + k, 2), v(u0 + k, 2), v(rr, 2))
                for k in (0, 2):
                    e("v_pk_mul_f32 %s, %s, %s", v(g0 + k, 2), v(g0 + k, 2), v(u0 + k, 2))
                for k in range(2):
                    e("v_cvt_pk_bf16_f32 %s, %s, %s", v(o + 2 * fi + k), v(g0 + 2 * k), v(g0 + 2 * k + 1))
            e("s_add_u32 %s, %s, %d", s(sTmp), s(sDelta), WS_H + (st >> 1) * 48 * 2048 + ph * 2048)
            e("buffer_store_dwordx4 %s, v5, %s, %s offen offset:%d sc1", v(o, 4), s(sWS, 4), s(sTmp), (st & 1) * 1024)
    stamp("c_ep")
    p3_pre()
    e("s_mov_b32 %s, 0", s(sNU))
    e("s_branch L_p3c")


def p1_dft():
    njb = 5
    vXA, vCA, FR, ACC, FC, CO, SI = 8, 12, 16, 80, 208, 176, 192
    if opt("p1p", 0) & 2:
        e("s_setprio 1")
    tab_srd()
    e("v_lshlrev_b32 v13, 4, v0")
    e("s_mul_i32 %s, %s, %d", s(sBoff), s(sCG), 20 * 5 * 1024)
    e("s_mul_i32 %s, %s, %d", s(sM0), s(sW), 5 * 1024)
    e("s_add_u32 %s, %s, %s", s(sBoff), s(sBoff), s(sM0))
    e("s_lshl_b32 %s, %s, 2", s(sWM), s(sM0))
    cur = [0]

    def cl(i):
        ops = []
        for tl in range(njb):
            def f(tl=tl):
                e("s_add_u32 m0, %s, %d", s(sM0 if CSTR[i] == 5120 else sWM), CBASE[i] + tl * 1024)
                e("s_add_u32 %s, %s, %d", s(sTmp), s(sBoff), i * 4 * njb * 1024 + tl * 1024)
                e("buffer_load_dwordx4 v13, %s, %s offen lds", s(sTAB, 4), s(sTmp))
            ops.append(f)
        return ops
    q = VQ()
    XC = [224, 240, 160, 208, 224]
    NC = 4 - NL

    def xc(i):
        gs = []
        for n in range(NL, 4):
            for hf in range(2):
                def f(n=n, hf=hf):
                    e("s_add_u32 %s, %s, %d", s(sTmp), s(sAoff), n * 8 * 81920 + i * 128)
                    e("buffer_load_dwordx4 %s, v14, %s, %s offen offset:%d", v(XC[i] + (n - NL) * 8 + hf * 4, 4), s(sX, 4), s(sTmp), hf * 640)
                gs.append(cap(f))
        q.issue("x%d" % i, 2 * NC)
        return gs

    def cg(i):
        q.issue("c%d" % i, njb)
        return [cap(f) for f in cl(i)]

    def foldc(i):
        for n in range(NL, 4):
            fold_group(XC[i] + (n - NL) * 8, 64, 72, (1, 2)[n & 1], (1 - (i & 1)) * 5120 + n * 1024)
    if XT & 16:
        e("s_bfe_u32 %s, s2, 0x30003", s(sTmp))
        e("s_lshl_b32 %s, %s, 2", s(sTmp), s(sTmp))
        e("s_add_u32 %s, %s, %s", s(sTmp), s(sTmp), s(sW))
        e("s_mul_i32 %s, %s, 2560", s(sTmp), s(sTmp))
        e("s_mul_i32 %s, %s, 102400", s(sTmp2), s(sCG))
        e("s_add_u32 %s, %s, %s", s(sTmp), s(sTmp), s(sTmp2))
        e("s_add_u32 %s, %s, 20480", s(sTmp), s(sTmp))
        e("v_min_u32 v5, 19, v0")
        e("v_lshlrev_b32 v5, 7, v5")
        e("buffer_load_dword v15, v5, %s, %s offen", s(sTAB, 4), s(sTmp))
        q.issue("t")
    if XO == 1:
        weave([], cg(0))
    fold_addr(14, 1, 3)
    x_src_scalar()
    stamp("dc_pre")
    e("s_waitcnt lgkmcnt(0)")
    stamp("dc_k")
    srd(A, *SRDS["X"])
    weave([], xc(0) + (cg(0) if XO == 0 else []) + xc(1))
    stamp("dc_i0")
    e("s_mul_i32 %s, %s, %d", s(sTmp), s(sW), CPS)
    e("s_add_u32 %s, %s, %d", s(sTmp), s(sTmp), XB + 5120)
    e("v_and_b32 v5, 31, v0")
    e("v_lshlrev_b32 v5, 7, v5")
    e("v_add_u32 v5, %s, v5", s(sTmp))
    e("v_lshrrev_b32 v6, 5, v0")
    e("v_bfe_u32 v7, v0, 1, 3")
    e("v_xor_b32 v6, v6, v7")
    e("v_lshl_add_u32 %s, v6, 4, v5", v(vXA))
    for t in range(1, 4):
        e("v_xor_b32 %s, %d, %s", v(vXA + t), t << 5, v(vXA))
    e("v_mov_b32 %s, v13", v(vCA))
    e("v_add_u32 v3, %d, v13", CP0 + 3 * CPS)
    karg_wait([], ["WS", "OUT"])
    p3c_setup()
    e("s_cmp_ge_u32 %s, 2", s(sCG))
    e("s_cselect_b32 %s, -1.0, 1.0", s(sSgn))
    e("v_mov_b32 v72, 0xffff0000")
    e("s_lshl_b32 %s, %s, 2", s(sS2), s(sRB))
    e("s_add_u32 %s, %s, %s", s(sS2), s(sS2), s(sW))
    e("v_and_b32 v5, 31, v0")
    e("v_lshrrev_b32 v6, 5, v0")
    e("v_lshlrev_b32 v6, 8, v6")
    e("v_add_u32 v6, %s, v6", s(sS2))
    e("v_mul_u32_u24 v6, v6, v5")

    def consts():
        for kap in range(2):
            for i in range(8):
                s0 = 16 * kap + 8 * (i >> 2) + (i & 3)
                e("v_mul_u32_u24 v7, %d, v5", 64 * s0)
                e("v_add_u32 v7, v7, v6")
                e("v_and_b32 v7, 0x7ff, v7")
                e("v_cvt_f32_u32 v7, v7")
                e("v_mul_f32 v7, 0x3a000000, v7")
                e("v_cos_f32 %s, v7", v(CO + 8 * kap + i))
                e("v_sin_f32 %s, v7", v(SI + 8 * kap + i))
    if CX == 0:
        weave(cap(consts), cg(1) + xc(2) + cg(2) + xc(3) + cg(3), skip=10)
        q.wait("x0")
        weave(cap(lambda: foldc(0)), cg(4))
        weave([], xc(4))
        late = {}
    elif CX == 1:
        weave(cap(consts), cg(1) + xc(2) + cg(2), skip=40)
        q.wait("x0")
        weave(cap(lambda: foldc(0)), xc(3) + cg(3))
        late = {0: lambda: xc(4) + cg(4)}
    else:
        stamp("dc_c0")
        weave(cap(consts), cg(1) + xc(2), skip=60)
        stamp("dc_c1")
        q.wait("x0")
        stamp("dc_x0")
        weave(cap(lambda: foldc(0)), cg(2))
        late = {0: lambda: xc(3) + cg(3), 1: lambda: xc(4) + cg(4)}
    stamp("c_set")

    def xf(p): return FR + p * 24
    def cf(p, tl): return FR + p * 24 + 4 + 4 * tl

    def reads(p, t):
        ops = [lambda: e("ds_read_b128 %s, %s", v(xf(p), 4), v(vXA + t))]
        for tl in range(njb):
            if t == 3 and CSTR[cur[0]] == CPS:
                ops.append(lambda tl=tl, o=CBASE[cur[0]] - CP0: e("ds_read_b128 %s, v3 offset:%d", v(cf(p, tl), 4), o + tl * 1024))
            else:
                ops.append(lambda tl=tl, st=CSTR[cur[0]]: e("ds_read_b128 %s, %s offset:%d", v(cf(p, tl), 4), v(vCA), t * st + tl * 1024))
        return ops

    def mfmas(p, first=False):
        return [(lambda tl=tl: e("v_mfma_f32_32x32x16_bf16 %s, %s, %s, %s", v(ACC + 16 * tl, 16), v(xf(p), 4), v(cf(p, tl), 4), "0" if first else v(ACC + 16 * tl, 16))) for tl in range(njb)]

    RR, MM = (64 if EPH else 16), 32

    def preamble():
        e("v_lshrrev_b32 v6, 5, v0")
        e("v_lshlrev_b32 v6, 4, v6")
        e("s_lshl_b32 %s, %s, 7", s(sTmp), s(sW))
        e("s_add_u32 %s, %s, %d", s(sTmp), s(sTmp), AUX)
        e("v_add_u32 v7, %s, v6", s(sTmp))
        for jj in range(4):
            e("ds_read_b128 %s, v7 offset:%d", v(RR + 4 * jj, 4), jj * 32)
        e("v_and_b32 v5, 15, v0")
        e("v_lshlrev_b32 v5, 6, v5")
        e("v_bfe_u32 v6, v0, 4, 1")
        e("v_lshl_add_u32 v5, v6, 5, v5")
        e("v_lshrrev_b32 v6, 5, v0")
        e("v_lshl_add_u32 v5, v6, 4, v5")
        e("s_and_b32 %s, %s, 1", s(sJB), s(sCG))
        e("s_mul_i32 %s, %s, 10", s(sJB), s(sJB))
        e("s_lshr_b32 %s, %s, 1", s(sTmp), s(sCG))
        e("s_add_u32 %s, %s, %s", s(sJB), s(sJB), s(sTmp))
        e("s_mul_i32 %s, %s, %d", s(sDelta), s(sS2), TSTR)
        e("s_mul_i32 %s, %s, 10240", s(sTmp), s(sCG))
        if TP == 1:
            e("v_and_b32 v4, 15, v0")
            e("v_lshl_add_u32 v4, v4, 6, v5")
        elif TP == 3:
            e("s_mul_i32 %s, %s, %d", s(sTmp2), s(sW), CPS)
            e("s_add_u32 %s, %s, %d", s(sTmp2), s(sTmp2), CP0)
            e("v_lshrrev_b32 v1, 5, v0" if RI else "v_bfe_u32 v1, v5, 4, 2")
            e("v_and_b32 v2, 7, v0")
            e("v_xor_b32 v1, v1, v2")
            e("v_and_b32 v4, %d, v0", 31 if RI else 15)
            e("v_lshlrev_b32 v4, 7, v4")
            e("v_lshl_add_u32 v1, v1, 4, v4")
            e("v_add_u32 v1, %s, v1", s(sTmp2))
            e("v_lshrrev_b32 v4, 3, v0")
            e("v_xor_b32 v3, v2, v4")
            e("v_lshlrev_b32 v4, 7, v4")
            e("v_lshl_add_u32 v3, v3, 4, v4")
            e("v_add_u32 v3, %s, v3", s(sTmp2))
            e("v_xor_b32 v2, 64, v1")
            e("v_lshlrev_b32 v4, 4, v0")
        else:
            e("v_and_b32 v4, 7, v0")
            e("v_lshlrev_b32 v4, 7, v4")
            e("v_and_b32 v1, 0x30, v5")
            e("v_add_u32 v4, v4, v1")
            e("v_bfe_u32 v1, v0, 3, 1")
            e("v_lshl_add_u32 v2, v1, 6, v4")
            e("v_xor_b32 v1, 1, v1")
            e("v_lshl_add_u32 v4, v1, 6, v4")
            e("s_mov_b32 s28, 0xff00ff00")
            e("s_mov_b32 s29, 0xff00ff00")
        e("s_add_u32 %s, %s, %s", s(sDelta), s(sDelta), s(sTmp))
        e("s_add_u32 %s, %s, 0x%x", s(sDelta), s(sDelta), WS_T)
        e("s_lshl_b32 %s, %s, 4", s(sFlag), s(sCG))
        e("s_add_u32 %s, %s, %s", s(sFlag), s(sFlag), s(sRB))
        e("s_lshl_b32 %s, %s, 7", s(sFlag), s(sFlag))
        e("s_add_u32 %s, %s, 0x%x", s(sFlag), s(sFlag), WS_FT)
        e("v_bfe_u32 v6, v0, 3, 1")
        e("v_cmp_eq_u32 vcc, 0, v6")
        e("v_mov_b32 v6, 0")
        e("v_mov_b32 v13, 0x80008000")
        e("v_cndmask_b32 v6, v6, v13, vcc")

    def scale():
        for i in range(16):
            e("v_mul_f32 %s, %s, %s", v(CO + i), v(CO + i), v(RR + i))
            e("v_mul_f32_e64 %s, -%s, %s", v(SI + i), v(SI + i), v(RR + i))
        for i in range(8):
            e("v_cvt_pk_bf16_f32 %s, %s, %s", v(FC + i), v(CO + 2 * i), v(CO + 2 * i + 1))
            e("v_cvt_pk_bf16_f32 %s, %s, %s", v(FC + 8 + i), v(SI + 2 * i), v(SI + 2 * i + 1))
        for i in range(8 if RI else 0):
            e("v_xor_b32 %s, 0x80008000, %s", v(CO + i), v(FC + 8 + i))

    def vmc(tag):
        last = max([i for i, x in enumerate(q.q) if x == tag], default=-1)
        if last < 0:
            return None
        n = len(q.q) - 1 - last
        q.q = q.q[last + 1:]
        return n

    def fills(i):
        cur[0] = i
        if i == 4:
            if EPH:
                return [[ln] for ln in cap(preamble) + ["    s_waitcnt lgkmcnt(0)"] + cap(scale)]
            return []
        w = cap(lambda: q.wait("x%d" % (i + 1))) if NC else []
        mem = late[i]() if i in late else []
        work = [[ln] for ln in cap(lambda: foldc(i + 1))]
        out, k = [w], 0
        for n, g in enumerate(work):
            out.append(g)
            if n % 5 == 4 and k < len(mem):
                out.append(mem[k]); k += 1
        return out + mem[k:]

    def advf(i):
        for t in range(4):
            e("v_add_u32 %s, %d, %s", v(vXA + t), (5120 if i & 1 else -5120) & 0xffffffff, v(vXA + t))
        e("v_add_u32 %s, %d, %s", v(vCA), (CBASE[i + 1] - CBASE[i]) & 0xffffffff, v(vCA))
    gemm_loop(5, 4, mfmas, reads, [2 + tl for tl in range(njb)], [vXA + i for i in range(5)], 0, 2, buf0=SLAB, advf=advf,
              unroll=[(vmc("c0"), [])] + [((lambda i=i: vmc("c%d" % i)), []) for i in range(1, 5)], fills=fills)

    if EPR:
        e("s_setprio %d", EPR)
    if not EPH:
        preamble()
    DD, AF, AN = [224, 240], [48, 64], 32

    def epilogue(first):
        order = ([4, 2, 3, 1, 0, 5] if TP >= 2 else [1, 2, 3, 4, 0, 5]) if first else [0, 1, 2, 3, 4]
        got, defer = set(), []

        def pack(n):
            tl = order[n]
            if tl == 5:
                e("s_nop 1")
                return
            a0, af = ACC + 16 * tl, AF[n & 1]
            if first and tl == 0:
                for i in range(16):
                    e("v_fma_f32 %s, -%s, v7, %s", v(a0 + i), v(MM + i), v(a0 + i))
            for i in range(8):
                e("v_cvt_pk_bf16_f32 %s, %s, %s", v(af + i), v(a0 + 2 * i), v(a0 + 2 * i + 1))
            if first and tl == 0:
                for i in range(8):
                    e("v_and_b32_dpp %s, %s, v14 row_ror:8 row_mask:0xf bank_mask:0xf", v(AN + i), v(af + i))
                    e("v_and_b32 %s, v15, %s", v(AN + 8 + i), v(af + i))
                for i in range(8):
                    e("v_bfi_b32 %s, v15, 0, %s", v(af + i), v(af + i))
            for i in range(8):
                e("v_xor_b32_dpp %s, %s, v6 row_ror:8 row_mask:0xf bank_mask:0xf", v(af + 8 + i), v(af + i))

        def stage(n):
            d, af = DD[n & 1], AN if order[n] == 5 else AF[n & 1]
            for k in range(4):
                e("v_mfma_f32_32x32x16_bf16 %s, %s, %s, %s", v(d, 16), v(af + 4 * k, 4), v(FC + 4 * k, 4), v(d, 16) if k else "0")

        def finish(n):
            d, tl = DD[n & 1], order[n]
            o = ACC + 16 * tl if TP == 2 and tl < 4 else d
            for i in range(8):
                e("v_cvt_pk_bf16_f32 %s, %s, %s", v(o + i), v(d + 2 * i), v(d + 2 * i + 1))
            e("s_add_u32 %s, %s, %d", s(sTmp), s(sDelta), 40960 if tl == 5 else (tl >> 1) * 4096)
            e("s_nop 0")
            for i in range(4):
                e("v_permlane16_swap_b32 %s, %s", v(o + i), v(o + 4 + i))
            if TP == 3 and tl < 4:
                for q in range(2):
                    e("ds_write_b128 %s, %s offset:%d", v(1 + (tl & 1)), v(d + 4 * q, 4), (tl >> 1) * 4096 + q * 2048)
                got.add(tl)
                if (tl ^ 1) in got:
                    for m in range(4):
                        e("ds_read_b128 %s, v3 offset:%d", v(ACC + 16 * tl + 4 * m, 4), (tl >> 1) * 4096 + m * 1024)

                    def later():
                        e("s_add_u32 %s, %s, %d", s(sTmp), s(sDelta), (tl >> 1) * 4096)
                        for m in range(4):
                            e("s_waitcnt lgkmcnt(%d)", 3 - m)
                            e("buffer_store_dwordx4 %s, v4, %s, %s offen offset:%d sc1", v(ACC + 16 * tl + 4 * m, 4), s(sWS, 4), s(sTmp), m * 1024)
                    defer.append(cap(later))
                return
            if TP == 2 and tl < 4:
                got.add(tl)
                if (tl ^ 1) not in got:
                    return
                a_, b_, t_ = ACC + 16 * (tl & 2), ACC + 16 * (tl | 1), ACC + 16 * tl + 8
                e("s_nop 0")
                for i in range(8):
                    e("v_mov_b32_dpp %s, %s row_ror:8 row_mask:0xf bank_mask:0xf", v(t_ + i), v(b_ + i))
                for q in range(2):
                    for i in range(4 * q, 4 * q + 4):
                        e("v_cndmask_b32 %s, %s, %s, s[28:29]", v(b_ + i), v(t_ + i), v(a_ + i))
                        e("v_cndmask_b32 %s, %s, %s, s[28:29]", v(a_ + i), v(a_ + i), v(t_ + i))
                    e("buffer_store_dwordx4 %s, v2, %s, %s offen offset:%d sc1", v(a_ + 4 * q, 4), s(sWS, 4), s(sTmp), q * 2048)
                    e("buffer_store_dwordx4 %s, v4, %s, %s offen offset:%d sc1", v(b_ + 4 * q, 4), s(sWS, 4), s(sTmp), q * 2048 + 1024)
                return
            for q in range(2):
                if tl < 4:
                    e("buffer_store_dwordx4 %s, v4, %s, %s offen offset:%d sc1", v(d + 4 * q, 4), s(sWS, 4), s(sTmp), q * 2048 + (tl & 1) * 64)
                else:
                    e("buffer_store_dwordx4 %s, v5, %s, %s offen offset:%d sc1", v(d + 4 * q, 4), s(sWS, 4), s(sTmp), q * 1024)
        if first:
            for jj in range(4):
                e("ds_read_b128 %s, v7 offset:%d", v(MM + 4 * jj, 4), 512 + jj * 32)
            e("v_and_b32 v15, 31, v0")
            e("v_cmp_eq_u32 vcc, 0, v15")
            e("v_cmp_eq_u32 s[4:5], 8, v15")
            e("v_mov_b32 v13, 0x44200000")
            e("v_cndmask_b32 v14, 0, -1, vcc")
            e("v_cndmask_b32 v15, 0, -1, s[4:5]")
        if EPH:
            e("s_nop 15")
        if RI:
            assert EPH and TP == 3
            order[:] = [4, 5]

            def pack2(pi):
                af = AF[pi]
                for hf in range(2):
                    a0 = ACC + 16 * (2 * pi + hf)
                    if first and pi == 0 and hf == 0:
                        e("s_waitcnt lgkmcnt(0)")
                        e("v_and_b32 v7, v13, v14")
                        for i in range(16):
                            e("v_fma_f32 %s, -%s, v7, %s", v(a0 + i), v(MM + i), v(a0 + i))
                    for i in range(8):
                        e("v_cvt_pk_bf16_f32 %s, %s, %s", v(af + 8 * hf + i), v(a0 + 2 * i), v(a0 + 2 * i + 1))
                if first and pi == 0:
                    for i in range(8):
                        e("v_and_b32 %s, v14, %s", v(AN + i), v(af + 8 + i))
                    for i in range(8):
                        e("v_and_b32_dpp %s, %s, v15 row_ror:8 row_mask:0xf bank_mask:0xf", v(AN + 8 + i), v(af + 8 + i))
                    for i in range(8):
                        e("v_bfi_b32 %s, v14, 0, %s", v(af + 8 + i), v(af + 8 + i))

            def stage2(pi):
                af, dr, di = AF[pi], ACC + 32 * pi, ACC + 32 * pi + 16
                for k in range(4):
                    for d, a_, b_ in ((dr, af + 4 * k, (FC + 4 * k) if k < 2 else CO + 4 * (k - 2)),
                                      (di, af + (4 * k + 8) % 16, FC + 4 * k)):
                        e("v_mfma_f32_32x32x16_bf16 %s, %s, %s, %s", v(d, 16), v(a_, 4), v(b_, 4), v(d, 16) if k else "0")

            def finish2(pi):
                dr, di, o = ACC + 32 * pi, ACC + 32 * pi + 16, DD[1]
                for b in range(4):
                    for k in range(2):
                        e("v_cvt_pk_bf16_f32 %s, %s, %s", v(o + 4 * b + k), v(dr + 4 * b + 2 * k), v(dr + 4 * b + 2 * k + 1))
                        e("v_cvt_pk_bf16_f32 %s, %s, %s", v(o + 4 * b + 2 + k), v(di + 4 * b + 2 * k), v(di + 4 * b + 2 * k + 1))
                    e("ds_write_b128 %s, %s offset:%d", v((1, 8, 2, 9)[b]), v(o + 4 * b, 4), pi * 4096)
                for m in range(4):
                    e("ds_read_b128 %s, v3 offset:%d", v(dr + 4 * m, 4), pi * 4096 + m * 1024)

            def out2(pi):
                e("s_add_u32 %s, %s, %d", s(sTmp), s(sDelta), pi * 4096)
                for m in range(4):
                    e("s_waitcnt lgkmcnt(%d)", 3 - m)
                    e("buffer_store_dwordx4 %s, v4, %s, %s offen offset:%d sc1", v(ACC + 32 * pi + 4 * m, 4), s(sWS, 4), s(sTmp), m * 1024)
            pa, pb = (1, 0) if first else (0, 1)
            e("v_xor_b32 v8, 32, v1")
            e("v_xor_b32 v9, 32, v2")
            pack2(pa)
            e("s_nop 1")
            weave(cap(lambda: pack2(pb)), [[ln] for ln in cap(lambda: stage2(pa))])
            e("s_nop 1")
            S = cap(lambda: stage2(pb))
            A.lines += S[:2] + ["    s_nop 10"]
            weave(cap(lambda: finish2(pa)), [[ln] for ln in S[2:]], skip=2)
            AF[0] = AF[pa]
            pack(0)
            out2(pa)
            S = cap(lambda: stage(0))
            weave(cap(lambda: finish2(pb)), [[ln] for ln in S])
            if first:
                S = cap(lambda: stage(1))
                A.lines += S[:1]
                out2(pb)
                A.lines += S[1:2] + ["    s_nop 7"]
                weave(cap(lambda: finish(0)), [[ln] for ln in S[2:]])
                e("s_nop 15")
                finish(1)
            else:
                out2(pb)
                e("s_nop 7")
                finish(0)
            AF[0] = 48
            return
        pack(0)
        e("s_waitcnt lgkmcnt(0)")
        if first:
            e("v_and_b32 v7, v13, v14")
        for i in range(0, 0 if EPH else 16, 2):
            e("v_pk_mul_f32 %s, %s, %s", v(CO + i, 2), v(CO + i, 2), v(RR + i, 2))
            e("v_pk_mul_f32 %s, %s, %s neg_lo:[1,0] neg_hi:[1,0]", v(SI + i, 2), v(SI + i, 2), v(RR + i, 2))
        for i in range(0 if EPH else 8):
            e("v_cvt_pk_bf16_f32 %s, %s, %s", v(FC + i), v(CO + 2 * i), v(CO + 2 * i + 1))
            e("v_cvt_pk_bf16_f32 %s, %s, %s", v(FC + 8 + i), v(SI + 2 * i), v(SI + 2 * i + 1))
        e("s_nop 1")
        if EPI:
            N_ = len(order)
            for n in range(-1, N_):
                S = cap(lambda: stage(n + 1)) if n + 1 < N_ else []
                P_ = cap(lambda: pack(n + 2)) if n + 2 < N_ else []
                D_ = defer.pop() if defer else []
                F_ = cap(lambda: finish(n)) if n >= 0 else []
                if not S:
                    A.lines += (D_ + ["    s_nop 7"] if D_ else ["    s_nop 15"]) + F_
                elif not F_:
                    k = (len(P_) + 2) // 3
                    A.lines += S[:1] + P_[:k] + S[1:2] + P_[k:2 * k] + S[2:3] + P_[2 * k:] + S[3:]
                else:
                    if len(P_) < 12:
                        P_ = P_ + ["    s_nop 10"]
                    k = 16 if len(F_) < 20 else 24
                    A.lines += S[:1] + P_ + D_ + S[1:2] + F_[:9] + S[2:3] + F_[9:k] + S[3:] + F_[k:]
            return
        stage(0)
        for n in range(len(order)):
            if n + 1 < len(order):
                pack(n + 1)
                stage(n + 1)
                if order[n + 1] == 5:
                    e("s_nop 7")
            else:
                e("s_nop 15")
            finish(n)
    e("s_cmp_eq_u32 %s, 0", s(sCG))
    e("s_cbranch_scc1 L_dft_e0")
    epilogue(False)
    e("s_branch L_dft_c")
    A.label("L_dft_e0")
    epilogue(True)


def mid_k1():
    e("s_and_b32 s3, s2, 7")
    e("s_lshl_b32 %s, s3, 2", s(sK1))
    e("s_bfe_u32 s3, s2, 0x20004")
    e("s_add_u32 %s, %s, s3", s(sK1), s(sK1))
    e("s_bfe_u32 s3, s2, 0x10003")


def mid():
    FC, PD = 64, 48
    XU, WY, DF = [128, 160], [192, 224], [16, 40]
    vL, vT, vWr, vUo, vP, vTG = 5, 6, 7, 10, 11, 15
    e("v_lshlrev_b32 %s, 4, v0", v(vL))
    e("v_and_b32 v9, 3, v0")
    e("v_add_u32 v13, %d, %s", FR_L, v(vL))
    for n in range(8):
        e("ds_read_b128 %s, v13 offset:%d", v(FC + 4 * n, 4), n * 1024)
    for i in range(32):
        e("v_mov_b32 %s, 0", v(WY[0] + i))
    e("v_and_b32 v8, 15, v0")
    e("v_lshrrev_b32 v12, 2, v0")
    e("v_lshlrev_b32 %s, 6, v12", v(vT))
    e("v_lshl_add_u32 %s, v9, 4, %s", v(vT), v(vT))
    e("v_add_u32 %s, %s, %s", v(vT), s(sM0), v(vT))
    e("v_and_b32 v13, 12, v12")
    e("v_bfe_u32 v14, v0, 3, 1")
    e("v_lshl_add_u32 v13, v14, 4, v13")
    e("v_bfe_u32 v14, v0, 2, 1")
    e("v_lshl_add_u32 v13, v14, 1, v13")
    e("v_mul_u32_u24 v12, %d, v13", TSTR)
    e("v_lshl_add_u32 %s, v9, 4, v12", v(vTG))
    e("v_lshrrev_b32 v9, 4, v0")
    e("v_lshlrev_b32 %s, 6, v8", v(vUo))
    e("v_lshl_add_u32 %s, v9, 4, %s", v(vUo), v(vUo))
    e("v_mul_u32_u24 v12, %d, v9", 4 * 336)
    e("v_lshl_add_u32 v12, v8, 2, v12")
    e("s_add_u32 %s, %s, %s", s(sTmp), s(sMW), s(sPar))
    e("v_add_u32 %s, %s, v12", v(vWr), s(sTmp))
    e("v_bfe_u32 v12, v0, 3, 1")
    e("v_lshlrev_b32 v12, 1, v12")
    e("v_bfe_u32 v13, v0, 4, 1")
    e("v_lshl_add_u32 v12, v13, 4, v12")
    e("v_lshrrev_b32 v14, 5, v0")
    e("v_lshl_add_u32 v12, v14, 2, v12")
    e("v_mul_u32_u24 v12, %d, v12", TSTR)
    e("v_bfe_u32 v14, v0, 2, 1")
    e("v_xor_b32 v13, v13, v14")
    e("v_lshl_add_u32 v12, v13, 6, v12")
    e("v_and_b32 v13, 3, v0")
    e("v_lshl_add_u32 v1, v13, 4, v12")
    e("v_lshrrev_b32 v12, 2, v0")
    e("v_lshlrev_b32 v12, 7, v12")
    e("v_lshl_add_u32 v12, v13, 4, v12")
    e("v_bfe_u32 v13, v0, 3, 1")
    e("v_lshl_add_u32 v12, v13, 6, v12")
    e("v_add_u32 v2, %s, v12", s(sM0))
    e("v_xor_b32 v4, 64, v2")
    e("v_add_u32 v8, %s, v12", s(sLB2))
    e("v_xor_b32 v9, 64, v8")
    e("s_waitcnt vmcnt(0) lgkmcnt(0)")
    lab = A.newlabel("L_noft")
    e("s_cmp_lg_u32 %s, 3", s(sWN))
    e("s_cbranch_scc1 %s", lab)
    if PPT:
        poll_check_pipe(PD, PPT, vP, WS_FT, PPG)
    else:
        poll_check(PD, 1, vP, WS_FT)
    A.label(lab)
    e("s_barrier")
    stamp("m_B")
    e("s_mul_i32 %s, %s, %d", s(sDelta), s(sK1), USTR)
    e("s_lshl_b32 %s, %s, 12", s(sTmp), s(sJB))
    e("s_add_u32 %s, %s, %s", s(sDelta), s(sDelta), s(sTmp))
    e("s_add_u32 %s, %s, 0x%x", s(sDelta), s(sDelta), WS_U)

    def gather(un):
        for n in range(4):
            e("s_add_u32 m0, %s, %d", s(sM0), n * 1024)
            e("s_add_u32 %s, %s, %d", s(sTmp), s(sTB), WS_T + (32 * (n & 1) + (n >> 1)) * TSTR)
            e("buffer_load_dwordx4 %s, %s, %s offen sc1 lds", v(vTG), s(sWS, 4), s(sTmp))

    def gather2():
        for kap in range(2):
            for n in range(4):
                e("s_add_u32 m0, %s, %d", s(sLB2 if kap else sM0), n * 1024)
                e("s_add_u32 %s, %s, %d", s(sTmp), s(sTB), WS_T + (32 * (n >> 1) + 8 * (n & 1) + kap) * TSTR)
                e("buffer_load_dwordx4 v1, %s, %s offen sc1 lds", s(sWS, 4), s(sTmp))

    def R2(u):
        for ri in range(2):
            for kap in range(2):
                for rd in range(2):
                    e("ds_read_b64_tr_b16 %s, %s offset:%d", v(DF[u] + 8 * ri + 4 * kap + 2 * rd, 2), v((2, 4, 8, 9)[kap * 2 + u]), rd * 2048 + ri * 8)

    def gathered():
        if EST == 3:
            e("v_mov_b32 v12, %d", LGO)
            e("v_mov_b32 v13, 1")
            e("s_mov_b64 exec, 1")
            e("ds_add_u32 v12, v13 offset:8")
            e("s_mov_b64 exec, -1")

    def F(ri, t, par): return FC + ((ri * 2 + t) * 2 + par) * 4

    def R(u):
        for ri in range(2):
            for kap in range(2):
                for rd in range(2):
                    e("ds_read_b64_tr_b16 %s, %s offset:%d", v(DF[u] + 8 * ri + 4 * kap + 2 * rd, 2), v(14 if u else vT), kap * 2048 + rd * 1024 + ri * 8)

    def N(u):
        for i in range(8):
            e("v_xor_b32 %s, 0x80008000, %s", v(DF[u] + 16 + i), v(DF[u] + 8 + i))

    def WR(u):
        for mt in range(4):
            for i in range(4):
                for arr in range(2):
                    e("ds_read_u16_d16_hi %s, %s offset:%d", v(WY[u] + arr * 16 + 4 * mt + i), v(vWr), arr * MWA + (16 * mt + i) * 336 + 64 * u)

    def SA(u):
        Tre, Tim, Tni = DF[u], DF[u] + 8, DF[u] + 16
        for t in range(2):
            for step in range(2):
                for par in range(2):
                    xr, xi = XU[u] + 4 * (t + 2 * par), XU[u] + 16 + 4 * (t + 2 * par)
                    if step == 0:
                        mm16(xr, F(0, t, par), Tre + 4 * par, True)
                        mm16(xi, F(1, t, par), Tre + 4 * par, True)
                    else:
                        mm16(xr, F(1, t, par), Tni + 4 * par)
                        mm16(xi, F(0, t, par), Tim + 4 * par)

    def BF(u):
        for t in range(2):
            for b in (XU[u] + 4 * t, XU[u] + 4 * t + 2, XU[u] + 16 + 4 * t, XU[u] + 18 + 4 * t):
                e("v_pk_add_f32 %s, %s, %s", v(b, 2), v(b, 2), v(b + 8, 2))
            for b in (XU[u] + 4 * t, XU[u] + 4 * t + 2, XU[u] + 16 + 4 * t, XU[u] + 18 + 4 * t):
                e("v_pk_fma_f32 %s, %s, 2.0, %s op_sel_hi:[1,0,1] neg_lo:[1,0,0] neg_hi:[1,0,0]", v(b + 8, 2), v(b + 8, 2), v(b, 2))

    def YP(u):
        BF(u)
        for n in range(0, 16, 4):
            for k in (0, 2):
                e("v_pk_mul_f32 %s, %s, %s", v(8 if k else 12, 2), v(XU[u] + 16 + n + k, 2), v(WY[u] + 16 + n + k, 2))
            for k in (0, 2):
                e("v_pk_mul_f32 %s, %s, %s", v(WY[u] + 16 + n + k, 2), v(XU[u] + n + k, 2), v(WY[u] + 16 + n + k, 2))
            for k in (0, 2):
                e("v_pk_fma_f32 %s, %s, %s, %s", v(WY[u] + 16 + n + k, 2), v(XU[u] + 16 + n + k, 2), v(WY[u] + n + k, 2), v(WY[u] + 16 + n + k, 2))
            for k in (0, 2):
                e("v_pk_fma_f32 %s, %s, %s, %s neg_lo:[0,0,1] neg_hi:[0,0,1]", v(WY[u] + n + k, 2), v(XU[u] + n + k, 2), v(WY[u] + n + k, 2), v(8 if k else 12, 2))

    def CV(u):
        for mt in range(4):
            for par in range(2):
                w_r, w_i = WY[u] + 4 * mt + par, WY[u] + 16 + 4 * mt + par
                e("v_cvt_pk_bf16_f32 %s, %s, %s", v(DF[u] + 8 + 4 * par + mt), v(w_i), v(w_i + 2))
                e("v_cvt_pk_bf16_f32 %s, %s, %s", v(DF[u] + 4 * par + mt), v(w_r), v(w_r + 2))
            for par in range(2):
                e("v_xor_b32 %s, 0x80008000, %s", v(DF[u] + 16 + 4 * par + mt), v(DF[u] + 4 * par + mt))

    def SB(u):
        Yre, Yim, Ynr = DF[u], DF[u] + 8, DF[u] + 16
        for t in range(2):
            for step in range(2):
                for par in range(2):
                    ur, ui = XU[u] + 4 * (t + 2 * par), XU[u] + 16 + 4 * (t + 2 * par)
                    if step == 0:
                        mm16(ur, Yre + 4 * par, F(0, t, par), True)
                        mm16(ui, Yim + 4 * par, F(0, t, par), True)
                    else:
                        mm16(ur, Yim + 4 * par, F(1, t, par))
                        mm16(ui, Ynr + 4 * par, F(1, t, par))

    def O(u):
        if u:
            e("s_add_u32 %s, %s, 8192", s(sDelta), s(sDelta))
        for nt in range(4):
            ur, ui = XU[u] + 4 * nt, XU[u] + 16 + 4 * nt
            e("v_cvt_pk_bf16_f32 %s, %s, %s", v(ur), v(ur), v(ur + 1))
            e("v_cvt_pk_bf16_f32 %s, %s, %s", v(ur + 1), v(ur + 2), v(ur + 3))
            e("v_cvt_pk_bf16_f32 %s, %s, %s", v(ur + 2), v(ui), v(ui + 1))
            e("v_cvt_pk_bf16_f32 %s, %s, %s", v(ur + 3), v(ui + 2), v(ui + 3))
            e("buffer_store_dwordx4 %s, %s, %s, %s offen offset:%d sc1", v(ur, 4), v(vUo), s(sWS, 4), s(sDelta), nt * 1024)

    def lines(*fs):
        return [[ln] for f in fs for ln in cap(f)]

    def mix(a_, b_):
        out = []
        for i in range(max(len(a_), len(b_))):
            out += a_[i:i + 1] + b_[i:i + 1]
        return out
    one, done = A.newlabel("L_one"), A.newlabel("L_midd")
    e("s_cmp_eq_u32 %s, 1", s(sNU))
    e("s_cbranch_scc1 %s", one)
    gather2()
    gathered()
    if WP:
        assert R3A == 0 and R3B == 0
        for i_, ct in WPRE:
            e("s_add_u32 %s, %s, %d", s(sTmp), s(sWa if ct < 4 else sWc), i_ * 4096 + WOFF[ct][1])
            e("buffer_load_dwordx4 %s, %s, %s, %s offen sc1", v(wreg(i_, ct), 4), v(vL), s(sWS, 4), s(sTmp))
    for i in range(32):
        e("v_mov_b32 %s, 0", v(WY[1] + i))
    if MWE:
        WR(0)
        WR(1)
    e("s_waitcnt vmcnt(%d)", 8 if WP else 0)
    stamp("m_T")
    R2(0)
    if not MWE:
        WR(0)
    e("s_waitcnt lgkmcnt(%d)", 0 if MWE else 15)
    if not MWE:
        e("s_waitcnt vmcnt(0)")
    N(0)
    w1 = lines(lambda: WR(1)) if not MWE else []
    weave(cap(lambda: SA(0)), lines(lambda: R2(1)) + w1[:24], skip=1)
    e("s_waitcnt lgkmcnt(%d)", 0 if MWE else 15)
    N(1)
    YP(0)
    weave(cap(lambda: SA(1)), mix(lines(lambda: CV(0)), w1[24:]), skip=1)
    e("s_waitcnt lgkmcnt(0)")
    e("s_nop 6")
    stamp("m_u1")
    if EH:
        poll_issue(4, 1, 3, WS_FH)
    YP(1)
    weave(cap(lambda: SB(0)), lines(lambda: CV(1)), skip=1)
    e("s_nop 6")
    BF(0)
    weave(cap(lambda: SB(1)), lines(lambda: O(0)), skip=1)
    e("s_nop 7")
    BF(1)
    O(1)
    e("s_branch %s", done)
    A.label(one)
    if MPR:
        e("s_setprio %d", MPR)
    gather(0)
    gathered()
    nci = z_ci_sub(CI_EARLY) if ECI == 3 and not CG else 0
    if MWE:
        WR(0)
    e("s_waitcnt vmcnt(%d)", nci)
    stamp("m_T")
    R(0)
    if not MWE:
        WR(0)
    e("s_waitcnt lgkmcnt(%d)", 0 if MWE else 15)
    N(0)
    e("s_nop 0")
    SA(0)
    e("s_waitcnt lgkmcnt(0)")
    e("s_nop 6")
    YP(0)
    CV(0)
    e("s_nop 1")
    SB(0)
    e("s_nop 7")
    BF(0)
    O(0)
    A.label(done)


hdr = open("cdna_kernels/%s.s.ref" % NAME).read().split("; Override launch")[0]
A(hdr.rstrip())
A("; @launch grid=(256,1,1) block=(512,1,1) lds=%d" % LDS_ALL)
A('.amdgcn_target "amdgcn-amd-amdhsa--gfx950"')
KN = NAME + "_kernel"
kernel_header(A, KN)
stamp("start")
if STAMPS:
    for i in range(1, 9):
        e("s_mov_b32 %s, 0", s(84 + 2 * i))
e("s_cmp_ge_u32 s2, 256")
e("s_cbranch_scc1 L_end")
e("s_load_dwordx16 %s, s[0:1], 0", s(P, 16))
e("s_load_dwordx4 %s, s[0:1], 64", s(P + 16, 4))
e("v_lshrrev_b32 v1, 6, v0")
e("v_and_b32 v0, 63, v0")
e("v_readfirstlane_b32 %s, v1", s(sW))
if CT == 3:
    e("s_cmp_lg_u32 %s, 0", s(sW))
    e("s_cbranch_scc1 L_noct")
    code_touch()
    A.label("L_noct")
e("s_and_b32 s3, s2, 1")
e("s_lshl_b32 %s, s3, 3", s(sRB))
e("s_bfe_u32 s3, s2, 0x30003")
e("s_add_u32 %s, %s, s3", s(sRB), s(sRB))
e("s_lshr_b32 %s, s2, 6", s(sTmp2))
e("s_bfe_u32 s3, s2, 0x20001")
e("s_mul_i32 %s, s3, 3", s(sCG))
e("s_add_u32 %s, %s, %s", s(sCG), s(sCG), s(sTmp2))
if opt("cgr", 0):
    e("s_add_u32 %s, %s, %d", s(sCG), s(sCG), opt("cgr", 0))
    e("s_cmp_ge_u32 %s, 12", s(sCG))
    e("s_cselect_b32 %s, 12, 0", s(sTmp))
    e("s_sub_u32 %s, %s, %s", s(sCG), s(sCG), s(sTmp))
e("s_and_b32 %s, %s, 3", s(sLW), s(sW))
e("s_cmp_eq_u32 %s, 3", s(sTmp2))
e("s_cbranch_scc1 L_dft")
e("s_cmp_ge_u32 %s, 4", s(sW))
e("s_cbranch_scc0 L_ffn_c")
ffn_loader()
A.label("L_ffn_c")
p1_ffn()
A.label("L_dft")
if opt("nodft", 0):
    e("s_endpgm")
e("s_mov_b32 %s, s3", s(sCG))
e("s_cmp_ge_u32 %s, 4", s(sW))
e("s_cbranch_scc0 L_dftc")
dft_loader()
A.label("L_dftc")
p1_dft()
A.label("L_dft_c")
stamp("dc_ep")
if opt("p1p", 0) & 4:
    e("s_setprio 0")
if EPR:
    e("s_setprio 0")
if ZGL:
    e("v_mov_b32 v12, %d", LGO)
    e("v_mov_b32 v13, 1")
    e("ds_write_b32 v12, v13 offset:12")
e("s_waitcnt vmcnt(0)")
stamp("dc_st")
e("v_mov_b32 v12, %d", LGO)
e("v_mov_b32 v13, 1")
e("s_mov_b64 exec, 1")
e("ds_add_rtn_u32 v13, v12, v13 offset:4")
e("s_mov_b64 exec, -1")
e("v_lshlrev_b32 v11, 7, v0")
e("s_waitcnt lgkmcnt(0)")
e("v_readfirstlane_b32 %s, v13", s(sWN))
e("s_cmp_lg_u32 %s, 3", s(sWN))
e("s_cbranch_scc1 L_noft")
flag_store(sFlag, 12, 13)
if OWN:
    e("s_sub_u32 %s, %s, 0x%x", s(sTmp), s(sFlag), WS_FT)
    e("v_cmp_eq_u32 vcc, %s, v11", s(sTmp))
    e("v_xor_b32 v12, 128, v11")
    e("v_cndmask_b32 v11, v11, v12, vcc")
poll_issue(48, 1, 11, WS_FT)
if EST == 4:
    e("v_mov_b32 v12, %d", LGO)
    e("v_mov_b32 v13, 1")
    e("ds_write_b32 v12, v13 offset:12")
A.label("L_noft")
if EH:
    fh_addr()
mid_k1()
wspec_shift(sMW)
e("s_and_b32 %s, %s, 1", s(sTmp2), s(sW))
e("s_lshl_b32 %s, %s, 7", s(sTmp), s(sTmp2))
e("s_add_u32 %s, %s, %s", s(sMW), s(sMW), s(sTmp))
e("s_add_u32 %s, %s, %d", s(sMW), s(sMW), MW0)
e("s_and_b32 %s, %s, 2", s(sPar), s(sW))
e("s_add_u32 %s, s3, %s", s(sTmp), s(sPar))
e("s_mul_i32 %s, %s, 10240", s(sTB), s(sTmp))
e("s_lshl_b32 %s, %s, 12", s(sTmp), s(sTmp2))
e("s_add_u32 %s, %s, %s", s(sTB), s(sTB), s(sTmp))
e("s_lshl_b32 %s, %s, 7", s(sTmp), s(sK1))
e("s_add_u32 %s, %s, %s", s(sTB), s(sTB), s(sTmp))
e("s_mul_i32 s3, s3, 10")
e("s_lshl_b32 %s, %s, 2", s(sTmp2), s(sTmp2))
e("s_add_u32 s3, s3, %s", s(sTmp2))
e("s_lshr_b32 %s, %s, 1", s(sTmp), s(sW))
e("s_add_u32 %s, s3, %s", s(sJB), s(sTmp))
e("s_mov_b32 %s, 2", s(sNU))
e("s_lshl_b32 %s, %s, 12", s(sM0), s(sW))
e("s_add_u32 %s, %s, %d", s(sM0), s(sM0), MT0)
e("s_mul_i32 %s, %s, %d", s(sLB2), s(sW), CPS)
e("s_add_u32 %s, %s, %d", s(sLB2), s(sLB2), CP0 + 15360)
e("s_branch L_mid")

A.label("L_dft_l")
e("s_mov_b32 %s, 0", s(sWN))
e("v_lshlrev_b32 v11, 7, v0")
mid_k1()
e("s_add_u32 %s, s3, 2", s(sTmp))
e("s_cmp_ge_u32 %s, %s", s(sLW), s(sTmp))
e("s_cbranch_scc1 L_dft_l3")
wspec_shift(sMW)
e("s_add_u32 %s, %s, %d", s(sMW), s(sMW), MW0 + 256)
e("s_lshl_b32 %s, %s, 1", s(sTmp), s(sLW))
e("s_add_u32 %s, %s, s3", s(sTmp), s(sTmp))
e("s_mul_i32 %s, %s, 10240", s(sTB), s(sTmp))
e("s_add_u32 %s, %s, 8192", s(sTB), s(sTB))
e("s_cmp_eq_u32 %s, 2", s(sLW))
e("s_cselect_b32 %s, 40960, %s", s(sTB), s(sTB))
e("s_lshl_b32 %s, %s, 6", s(sTmp), s(sK1))
e("s_add_u32 %s, %s, %s", s(sTB), s(sTB), s(sTmp))
e("s_mul_i32 s3, s3, 10")
e("s_add_u32 s3, s3, 8")
e("s_add_u32 %s, s3, %s", s(sJB), s(sLW))
e("s_lshl_b32 %s, %s, 1", s(sPar), s(sLW))
e("s_cmp_eq_u32 %s, 2", s(sLW))
e("s_cselect_b32 %s, 64, %s", s(sPar), s(sPar))
e("s_mov_b32 %s, 1", s(sNU))
e("s_lshl_b32 %s, %s, 12", s(sM0), s(sLW))
e("s_add_u32 %s, %s, %d", s(sM0), s(sM0), FI_L)
A.label("L_mid")
mid()
stamp("m_end")
e("s_cmp_ge_u32 %s, 4", s(sW))
e("s_cbranch_scc1 L_dft_l2")
p3_pre()
if EH:
    e("s_waitcnt vmcnt(8)")
    e("v_cmp_ne_u32 vcc, %s, v4", s(sTAG))
    e("s_cbranch_vccnz L_eh0")
    for i in range(EH):
        hload_(i)
    e("s_mov_b32 %s, 2", s(sNU))
    e("s_waitcnt vmcnt(%d)", 4 * EH)
    e("s_branch L_eh1")
    A.label("L_eh0")
e("s_mov_b32 %s, 0", s(sNU))
if EFH:
    if not EH:
        fh_addr()
    poll_issue(7, 1, 3, WS_FH)
e("s_waitcnt vmcnt(0)")
A.label("L_eh1")
stamp("m_st")
e("s_barrier")
e("s_cmp_lg_u32 %s, 0", s(sW))
e("s_cbranch_scc1 L_nofu")
e("s_lshl_b32 %s, s2, 7", s(sFlag))
e("s_add_u32 %s, %s, %d", s(sFlag), s(sFlag), WS_FU - 192 * 128)
flag_store(sFlag, 12, 13)
A.label("L_nofu")
A.label("L_p3c")
p3c()
e("s_branch L_fin")

A.label("L_dft_l3")
e("v_lshlrev_b32 v5, 4, v0")
if EST:
    if ECI and EST < 3:
        z_ci_sub(CI_LATE)
    e("s_waitcnt vmcnt(0)")
    if EST >= 3:
        poll_check(41, 1, 10, WS_FW)
    if EST == 4:
        e("s_cmp_lg_u32 %s, 3", s(sLW))
        e("s_cbranch_scc1 L_dft_l7")
        e("v_mov_b32 v12, %d", LGO)
        A.label("L_dft_l8")
        e("ds_read_b32 v13, v12 offset:12")
        e("s_waitcnt lgkmcnt(0)")
        e("v_cmp_ne_u32 vcc, 1, v13")
        e("s_cbranch_vccnz L_dft_l8")
        stage_all()
        stamp("dl_st")
        A.label("L_dft_l7")
    e("s_barrier")
    if EST == 4:
        e("s_waitcnt vmcnt(0)")
    if EST == 3:
        if ECI < 3:
            e("s_cmp_lg_u32 %s, 3", s(sLW))
            e("s_cbranch_scc1 L_dft_l7")
        e("v_mov_b32 v12, %d", LGO)
        e("s_add_u32 s3, s3, 6")
        A.label("L_dft_l8")
        e("ds_read_b32 v13, v12 offset:8")
        e("s_waitcnt lgkmcnt(0)")
        e("v_cmp_ne_u32 vcc, s3, v13")
        e("s_cbranch_vccnz L_dft_l8")
        if ECI == 3:
            e("s_cmp_lg_u32 %s, 3", s(sLW))
            e("s_cbranch_scc1 L_dft_l7")
            stage_all()
            if not CG:
                e("s_waitcnt vmcnt(40)")
            A.label("L_dft_l7")
            if CG:
                ci_gen(CI_LATE)
            nci_ = z_ci_sub(range(18)) if not CG else 0
            e("s_waitcnt vmcnt(%d)", nci_)
            stamp("dl_st")
        else:
            stage_all()
            e("s_waitcnt vmcnt(0)")
            stamp("dl_st")
            A.label("L_dft_l7")
    e("s_barrier")
    stage_wd(3, 4)
    if ECI:
        stage_done(0)
        e("v_lshlrev_b32 v11, 7, v0")
        e("s_branch L_dft_l6")
    else:
        e("s_branch L_dft_l5")
    A.label("L_dft_l2")
    if MPR:
        e("s_setprio 0")
    e("s_waitcnt vmcnt(0)")
    e("s_barrier")
    stage_wd(3, 4)
    A.label("L_dft_l5")
    fu_poll_issue()
    if CG:
        ci_setup()
        ci_gen(CI_LATE[:4])
        stage_done(0)
        ci_gen(CI_LATE[4:])
    else:
        stage_done(z_ci_sub(CI_LATE if ECI else range(18)))
    A.label("L_dft_l6")
else:
    e("s_waitcnt vmcnt(0)")
    e("s_barrier")
    e("s_branch L_dft_l4")
    A.label("L_dft_l2")
    stage_wd(0, 3)
    e("s_waitcnt vmcnt(15)")
    e("s_barrier")
    e("s_branch L_dft_l5")
    A.label("L_dft_l4")
    e("s_barrier")
    stage_wd(0, 3)
    A.label("L_dft_l5")
    stage_wd(3, 4)
    fu_poll_issue()
    stage_done(z_ci_sub(CI_LATE if ECI else range(18)))
A.label("L_zpart")
zpart()
A.label("L_fin")
if STAMPS and "--dbg" not in sys.argv:
    stamp("issued_out")
    e("s_waitcnt vmcnt(0)")
    e("%s s[100:101]", "s_memtime" if "--cyc" in sys.argv else "s_memrealtime")
    e("s_waitcnt lgkmcnt(0)")
    for i in range(9):
        e("v_mov_b32 %s, %s", v(16 + i), s(84 + 2 * i))
    e("s_lshl_b32 s3, s2, 3")
    e("s_add_u32 s3, s3, %s", s(sW))
    e("s_lshl_b32 s3, s3, 6")
    e("s_add_u32 s3, s3, 0x%x", WS_STAMP)
    e("v_mov_b32 v5, 0")
    for i in range(3):
        e("buffer_store_dwordx4 %s, v5, %s, s3 offen offset:%d", v(16 + 4 * i, 4), s(sWS, 4), 16 * i)
if "--dbg" in sys.argv:
    e("s_load_dwordx2 s[4:5], s[0:1], 64")
    e("s_waitcnt vmcnt(0) lgkmcnt(0)")
    e("s_memrealtime s[100:101]")
    srd(A, 8, 4, 256)
    e("s_waitcnt lgkmcnt(0)")
    e("s_mov_b64 exec, 1")
    e("s_not_b32 s84, s84")
    e("s_cmp_ge_u32 s2, 192")
    e("s_cselect_b32 s3, 32, 0")
    for i in range(8):
        k = [0, 8, 1, 2, 3, 4, 5, 6][i]
        e("v_mov_b32 v16, %s", s(84 + 2 * k))
        e("v_mov_b32 v17, %d", 4 * i)
        e("buffer_atomic_umax v16, v17, s[8:11], s3 offen sc1")
A.label("L_end")
e("s_endpgm")
flush_cold()
A.label("L_code_end")

kernel_desc(A, KN, 256, accum=256)
TB.emit_tables(A)
out = [x for x in sys.argv[1:] if not x.startswith("--")]
open(out[0] if out else "v35.s", "w").write(A.text())
```

```python
import sys
from asmlib import *
import tables19 as TB
if "--cg=0" not in sys.argv:
    TB.drop_ci()

NAME = "parallel_sum__spectral_gfnet__glu_gated_reglu__prompt"
A = Asm()
e = A.e


def opt(name, default):
    for x in sys.argv:
        if x.startswith("--%s=" % name):
            return int(x.split("=")[1])
    return default


STAMPS = "--stamps" in sys.argv
SLEEP, PX = opt("sleep", 1), opt("px", 1)
ROTA, ROTB = opt("rota", 1), opt("rotb", 3)
CIP1 = opt("cip1", 0)
DROT = opt("drot", 0)
WSP = opt("wsp", 2)
PRL = opt("prl", 0)
WARM = opt("warm", 0)
FOLD = opt("fold", 1)
POLL1 = opt("poll1", 0)
CIL = opt("cil", 1)
STG = opt("stg", 1)
ZPR = opt("zpr", 3)
MPR = opt("mpr", 0)
CT = opt("ct", 3)
DS = opt("ds", 1)
PPT, PPG, OWN = opt("ppt", 0), opt("ppg", 2), opt("own", 1)
EPR, ZGL, EPI = opt("epr", 0), opt("zgl", 0), opt("epi", 1)
XT, WT = opt("xt", 2), opt("wt", 2)
RX = opt("rx", 1)
WP, RI = opt("wp", 1), opt("ri", 1)
TB.SPLIT = bool(RI)
EPH, MPR = opt("eph", 1), opt("mpr", 0)
P3O, ZE = opt("p3o", 1), opt("ze", 0)
ZPN, ZPF = opt("zpn", 2), opt("zpf", 1)
CG = opt("cg", 2)
TL, SG, WTN = opt("tl", 1), opt("sg", 0), opt("wtn", 6)
XQ = opt("xq", 1)
TP = opt("tp", 3)
ZIL, ZSK, FIL = opt("zil", 1), opt("zsk", 1), opt("fil", 1)
MAP8, PF3, PFP = opt("map8", 0), opt("pf3", 2 if opt("cg", 1) else 3), opt("pfp", 1)
R3A, R3B, RZ = opt("r3a", 0), opt("r3b", 0), opt("rz", 0)
OUTF = ["", " sc1", " nt", " sc0 sc1"][opt("outf", 0)]
NFIX = opt("nfix", 0)

WS_EP = 0x0000
WS_FS = 0x1000
WS_FSC = WS_FS + 128 * 128
WS_FT = 0xC000
WS_FU = 0xE000
WS_FH = 0x10000
WS_FW = 0x50000
WS_STAT = 0x28000
WS_CSP = 0x30000
WS_H = 0x60000
WS_T = 0x660000
TSTR, USTR = 43008 + opt("tpad", 128), 86016 + opt("upad", 128)
WS_U = 0x910000
WS_WD = 0xBC0000
WS_STAMP = 0x2000000

SLAB = 49152
AUX = 3 * SLAB
ZU0, ZUS = 0, 16384
CP0, CPS = 65536, 20480
LGO = AUX + 2048
XB = CP0 + 10240
CBASE, CSTR = [0, 20480, CP0, CP0 + 5120, 45056], [5120, 5120, CPS, CPS, 5120]
FR_L, FI_L = AUX + 2048 + 128, AUX + 2048 + 128
MW0, MWA = 0, 22272
MT0 = 45056
RPK = FI_L
LDS_ALL = FI_L + 12288

sX, sG, sU, sWS, sTAB, sWR, sWI, sWD, sOUT = 8, 12, 16, 20, 24, 28, 32, 36, 40
sW, sRB, sCG, sLW = 44, 45, 46, 47
sTmp, sTmp2, sCnt, sDelta, sBuf, sSLAB = 48, 49, 50, 51, 52, 53
sAoff, sBoff, sM0 = 54, 55, 56
sWM, sWN, sFlag = 57, 58, 59
sK1, sJB, sTAG, sSpin = 60, 61, 62, 63
P = 64
sP, sG3, sHo, sWo, sUo, sCo, sLB, sLB2, sOo, sOc, sOOB = 64, 65, 66, 67, 68, 69, 70, 71, 72, 73, 74
sSgn, sS2, sNU, sWcol, sPar = 76, 78, 79, 80, 81
sWa, sWb, sWc, sMW = 6, 7, 75, 80
sTB = 55
sR3, sRZ, sI4 = 82, 83, 67
SRDS = {"X": (sX, P, 2048 * 1280), "WR": (sWR, P + 2, 2048 * 642), "WI": (sWI, P + 4, 2048 * 642),
        "G": (sG, P + 8, 640 * 3072), "U": (sU, P + 10, 640 * 3072), "WD": (sWD, P + 12, 1536 * 1280),
        "OUT": (sOUT, P + 14, 2048 * 1280), "WS": (sWS, P + 18, 1 << 28)}


class VQ:
    def __init__(self):
        self.q = []
    def issue(self, tag, n=1):
        self.q += [tag] * n
    def wait(self, *tags, extra=""):
        last = max([i for i, t in enumerate(self.q) if t in tags], default=-1)
        n = len(self.q) - 1 - last
        assert n <= 63, n
        e("s_waitcnt vmcnt(%d)%s", n, extra)
        self.q = self.q[last + 1:]
    def drain(self):
        self.q = []


STN = {}
for x in sys.argv:
    if x.startswith("--st="):
        for i_, grp in enumerate(x[5:].split(",")):
            for nm in grp.split("+"):
                STN[nm] = i_ + 1
STN["start"] = 0


def cap(fn):
    keep, A.lines = A.lines, []
    fn()
    out, A.lines = A.lines, keep
    return out


def weave(main, groups, skip=0):
    n = len(groups)
    step = (len(main) - skip) / (n + 0.001) if n else 0
    k = 0
    for i, ln in enumerate(main):
        while k < n and i >= skip + k * step:
            A.lines += groups[k]
            k += 1
        A.lines.append(ln)
    while k < n:
        A.lines += groups[k]
        k += 1


COLD = []


def rare(cond, fn):
    la, lb = A.newlabel("L_rare"), A.newlabel("L_back")
    e("%s %s", cond, la)
    A.label(lb)
    body = cap(fn)
    COLD.append(["%s:" % la] + body + ["    s_branch %s" % lb])


def flush_cold():
    while COLD:
        A.lines += COLD.pop(0)


def stamp(nm):
    if STAMPS and nm in STN:
        e("%s %s", "s_memtime" if "--cyc" in sys.argv else "s_memrealtime", s(84 + 2 * STN[nm], 2))


def make_tag():
    e("s_mul_i32 %s, %s, 0x9E3779B1", s(sTAG), s(sTAG))
    e("s_add_u32 %s, %s, 0x7F4A7C15", s(sTAG), s(sTAG))


def flag_store(soff, t0, t1):
    e("v_mov_b32 %s, %s", v(t0), s(sTAG))
    e("v_mov_b32 %s, 0", v(t1))
    e("s_mov_b64 exec, 1")
    e("buffer_store_dword %s, %s, %s, %s offen sc1", v(t0), v(t1), s(sWS, 4), s(soff))
    e("s_mov_b64 exec, -1")


def poll_issue(dst, n, vaddr, base):
    e("s_mov_b32 %s, 0x%x", s(sTmp), base)
    e("buffer_load_dword%s %s, %s, %s, %s offen sc1", "" if n == 1 else "x%d" % n, v(dst, n), v(vaddr), s(sWS, 4), s(sTmp))


def poll_check(dst, n, vaddr, base):
    assert n == 1

    def spin():
        top, done = A.newlabel("L_poll"), A.newlabel("L_polld")
        e("s_mov_b32 %s, 0", s(sSpin))
        A.label(top)
        if PX:
            e("s_mov_b64 exec, vcc")
        if SLEEP:
            e("s_sleep %d", SLEEP)
        poll_issue(dst, n, vaddr, base)
        e("s_add_u32 %s, %s, 1", s(sSpin), s(sSpin))
        e("s_cmp_ge_u32 %s, %d", s(sSpin), opt("spin", 40000))
        e("s_waitcnt vmcnt(0)")
        e("s_cbranch_scc1 %s", done)
        e("v_cmp_ne_u32 vcc, %s, %s", s(sTAG), v(dst))
        e("s_cbranch_vccnz %s", top)
        A.label(done)
        if PX:
            e("s_mov_b64 exec, -1")
    e("v_cmp_ne_u32 vcc, %s, %s", s(sTAG), v(dst))
    rare("s_cbranch_vccnz", spin)


def poll_check_pipe(dst, depth, vaddr, base, gap):
    def spin():
        top, done = A.newlabel("L_pp"), A.newlabel("L_ppd")
        e("s_mov_b32 %s, 0", s(sSpin))
        for k in range(1, depth):
            poll_issue(dst + k, 1, vaddr, base)
            e("s_sleep %d", gap)
        A.label(top)
        for k in range(depth):
            poll_issue(dst + k, 1, vaddr, base)
            e("s_waitcnt vmcnt(%d)", depth - 1)
            e("v_cmp_ne_u32 vcc, %s, %s", s(sTAG), v(dst + (k + 1) % depth))
            e("s_cbranch_vccz %s", done)
            e("s_sleep %d", gap)
        e("s_add_u32 %s, %s, 1", s(sSpin), s(sSpin))
        e("s_cmp_lt_u32 %s, %d", s(sSpin), opt("spin", 40000))
        e("s_cbranch_scc1 %s", top)
        A.label(done)
    e("v_cmp_ne_u32 vcc, %s, %s", s(sTAG), v(dst))
    rare("s_cbranch_vccnz", spin)


def karg_wait(first, rest=()):
    e("s_waitcnt lgkmcnt(0)")
    for k in first:
        srd(A, *SRDS[k])
    e("s_load_dword %s, %s, 0x%x", s(sTAG), s(P + 18, 2), WS_EP)
    for k in rest:
        srd(A, *SRDS[k])


def tab_srd():
    e("s_getpc_b64 s[4:5]")
    e("s_add_u32 s4, s4, dft_tables@rel32@lo+4")
    e("s_addc_u32 s5, s5, dft_tables@rel32@hi+12")
    srd(A, sTAB, 4, TB.TAB_BYTES)


def dpp_sum16(r_):
    for ctl in ("quad_perm:[1,0,3,2]", "quad_perm:[2,3,0,1]", "row_half_mirror", "row_mirror"):
        e("s_nop 1")
        e("v_add_f32_dpp %s, %s, %s %s row_mask:0xf bank_mask:0xf", v(r_), v(r_), v(r_), ctl)


def round_bf16(r_):
    e("v_cvt_pk_bf16_f32 %s, %s, %s", v(r_), v(r_), v(r_))
    e("v_and_b32 %s, 0xffff0000, %s", v(r_), v(r_))


def mm16(d, a_, b_, first=False):
    e("v_mfma_f32_16x16x32_bf16 %s, %s, %s, %s", v(d, 4), v(a_, 4), v(b_, 4), "0" if first else v(d, 4))


def stats_addr(R):
    e("s_lshl_b32 %s, %s, 2", s(sTmp), s(sCG))
    e("s_add_u32 %s, %s, %s", s(sTmp), s(sTmp), s(sW))
    e("s_lshl_b32 %s, %s, 2", s(sTmp), s(sTmp))
    e("v_lshrrev_b32 %s, 4, v0", v(R + 20))
    e("v_add_u32 %s, %s, %s", v(R + 21), s(sTmp), v(R + 20))
    e("v_and_b32 %s, 31, %s", v(R + 20), v(R + 21))
    e("v_lshlrev_b32 %s, 6, %s", v(R + 20), v(R + 20))
    e("v_lshrrev_b32 %s, 5, %s", v(R + 22), v(R + 21))
    e("v_add_u32 %s, %s, %s", v(R + 20), v(R + 20), v(R + 22))
    e("s_lshl_b32 %s, %s, 2", s(sTmp), s(sRB))
    e("v_add_u32 %s, %s, %s", v(R + 20), s(sTmp), v(R + 20))
    e("v_mul_u32_u24 %s, 1280, %s", v(R + 20), v(R + 20))
    e("v_and_b32 %s, 15, v0", v(R + 22))
    e("v_lshl_add_u32 %s, %s, 4, %s", v(R + 20), v(R + 22), v(R + 20))


def stats_issue(R):
    for n in range(5):
        e("buffer_load_dwordx4 %s, %s, %s, 0 offen offset:%d", v(R + 4 * n, 4), v(R + 20), s(sX, 4), n * 256)


def stats_compute(R):
    F = R + 24
    S_, V_, T_ = R + 64, R + 66, R + 22
    for n in range(20):
        e("v_lshlrev_b32 %s, 16, %s", v(F + 2 * n), v(R + n))
        e("v_and_b32 %s, 0xffff0000, %s", v(F + 2 * n + 1), v(R + n))
    e("v_pk_add_f32 %s, %s, %s", v(S_, 2), v(F, 2), v(F + 2, 2))
    for n in range(2, 20):
        e("v_pk_add_f32 %s, %s, %s", v(S_, 2), v(S_, 2), v(F + 2 * n, 2))
    e("v_add_f32 %s, %s, %s", v(S_), v(S_), v(S_ + 1))
    dpp_sum16(S_)
    e("v_mul_f32 %s, 0x3acccccd, %s", v(S_), v(S_))
    for n in range(20):
        e("v_pk_add_f32 %s, %s, %s op_sel_hi:[1,0] neg_lo:[0,1] neg_hi:[0,1]", v(F + 2 * n, 2), v(F + 2 * n, 2), v(S_, 2))
    e("v_pk_mul_f32 %s, %s, %s", v(V_, 2), v(F, 2), v(F, 2))
    for n in range(1, 20):
        e("v_pk_fma_f32 %s, %s, %s, %s", v(V_, 2), v(F + 2 * n, 2), v(F + 2 * n, 2), v(V_, 2))
    e("v_add_f32 %s, %s, %s", v(V_), v(V_), v(V_ + 1))
    dpp_sum16(V_)
    e("v_mul_f32 %s, 0x3acccccd, %s", v(V_), v(V_))
    round_bf16(V_)
    e("v_add_f32 %s, 0x3727c5ac, %s", v(V_), v(V_))
    round_bf16(V_)
    e("v_sqrt_f32 %s, %s", v(V_), v(V_))
    e("s_nop 0")
    round_bf16(V_)
    e("v_rcp_f32 %s, %s", v(V_), v(V_))
    round_bf16(S_)
    e("v_and_b32 %s, 15, v0", v(T_))
    e("v_cmp_eq_u32 vcc, 1, %s", v(T_))
    e("v_lshlrev_b32 %s, 2, %s", v(R + 1), v(R + 21))
    e("v_lshl_add_u32 %s, %s, 9, %s", v(R + 1), v(T_), v(R + 1))
    e("v_cndmask_b32 %s, %s, %s, vcc", v(V_), v(V_), v(S_))
    e("v_cmp_gt_u32 vcc, 2, %s", v(T_))
    e("s_lshl_b32 %s, %s, 10", s(sTmp), s(sRB))
    e("s_add_u32 %s, %s, 0x%x", s(sTmp), s(sTmp), WS_STAT)
    e("s_and_saveexec_b64 s[4:5], vcc")
    e("buffer_store_dword %s, %s, %s, %s offen sc1", v(V_), v(R + 1), s(sWS, 4), s(sTmp))
    e("s_mov_b64 exec, s[4:5]")


def aux_poll_addr(ffn, dst):
    e("s_lshl_b32 %s, %s, 2", s(sTmp), s(sRB))
    e("s_add_u32 %s, %s, %s", s(sTmp), s(sTmp), s(sLW))
    e("s_lshl_b32 %s, %s, 1", s(sTmp), s(sTmp))
    e("v_and_b32 v6, 1, v0")
    e("v_add_u32 v6, %s, v6", s(sTmp))
    if ffn:
        e("s_and_b32 %s, s2, 0xc6", s(sTmp))
        e("s_add_u32 %s, %s, 128", s(sTmp), s(sTmp))
        e("v_and_b32 v7, 7, v0")
        e("v_bfe_u32 v12, v0, 3, 1")
        e("v_min_u32 v7, 4, v7")
        e("v_lshlrev_b32 v7, 3, v7")
        e("v_add3_u32 v7, v7, v12, %s", s(sTmp))
        e("v_cmp_gt_u32 vcc, 16, v0")
        e("s_nop 1")
        e("v_cndmask_b32 v6, v7, v6, vcc")
    e("v_lshlrev_b32 %s, 7, v6", v(dst))


def fw_poll_addr(dst):
    e("s_lshl_b32 %s, %s, 6", s(sTmp), s(sLW))
    e("v_add_u32 %s, %s, v0", v(dst), s(sTmp))
    e("v_min_u32 %s, 159, %s", v(dst), v(dst))
    e("v_lshlrev_b32 %s, 7, %s", v(dst), v(dst))


def aux_addr(ffn, R):
    e("v_and_b32 %s, 31, v0", v(R))
    e("v_lshrrev_b32 %s, 5, v0", v(R + 1))
    e("v_lshlrev_b32 %s, 2, %s", v(R), v(R))
    e("v_lshl_add_u32 %s, %s, 9, %s", v(R), v(R + 1), v(R))
    e("s_lshl_b32 %s, %s, 7", s(sTmp), s(sLW))
    e("v_add_u32 %s, %s, %s", v(R), s(sTmp), v(R))
    if ffn:
        e("v_lshrrev_b32 %s, 4, v0", v(R + 1))
        e("v_mul_u32_u24 %s, 12288, %s", v(R + 1), v(R + 1))
        e("v_and_b32 %s, 15, v0", v(R + 3))
        e("v_lshl_add_u32 %s, %s, 4, %s", v(R + 1), v(R + 3), v(R + 1))
        e("s_lshl_b32 %s, %s, 8", s(sTmp), s(sLW))
        e("s_lshl_b32 %s, %s, 10", s(sTmp2), s(sCG))
        e("s_add_u32 %s, %s, %s", s(sTmp), s(sTmp), s(sTmp2))
        e("v_add_u32 %s, %s, %s", v(R + 1), s(sTmp), v(R + 1))
        e("v_lshrrev_b32 %s, 5, v0", v(R + 16))
        e("v_lshl_add_u32 %s, %s, 29, %s", v(R + 16), v(R + 16), v(R + 1))


def aux_issue(ffn, R):
    e("s_lshl_b32 %s, %s, 10", s(sTmp), s(sRB))
    e("s_add_u32 %s, %s, 0x%x", s(sTmp), s(sTmp), WS_STAT)
    e("buffer_load_dword %s, %s, %s, %s offen sc1", v(R + 2), v(R), s(sWS, 4), s(sTmp))
    if ffn:
        for n in range(3):
            e("s_mov_b32 %s, 0x%x", s(sTmp), WS_CSP + n * 4 * 12288)
            e("buffer_load_dwordx4 %s, %s, %s, %s offen sc1", v(R + 4 + 4 * n, 4), v(R + 16 if n == 2 else R + 1), s(sWS, 4), s(sTmp))


def aux_finish(ffn, R):
    e("v_add_u32 %s, %d, %s", v(R), AUX, v(R))
    if CG and not ffn:
        e("s_mov_b32 exec_hi, 0")
        e("v_mul_f32 %s, 0x35cccccd, %s", v(R + 2), v(R + 2))
        e("s_mov_b32 exec_hi, -1")
    e("ds_write_b32 %s, %s", v(R), v(R + 2))
    if ffn:
        C_, T_ = R + 4, R + 8
        for n in range(1, 3):
            for k in (0, 2):
                e("v_pk_add_f32 %s, %s, %s", v(C_ + k, 2), v(C_ + k, 2), v(C_ + 4 * n + k, 2))
        for op in ("v_permlane16_swap_b32", "v_permlane32_swap_b32"):
            for i in range(4):
                e("v_mov_b32 %s, %s", v(T_ + i), v(C_ + i))
            e("s_nop 0")
            for i in range(4):
                e("%s %s, %s", op, v(C_ + i), v(T_ + i))
            e("s_nop 0")
            for i in range(4):
                e("v_add_f32 %s, %s, %s", v(C_ + i), v(C_ + i), v(T_ + i))
        e("s_lshl_b32 %s, %s, 8", s(sTmp), s(sLW))
        e("s_add_u32 %s, %s, %d", s(sTmp), s(sTmp), AUX + 1024)
        e("v_lshl_add_u32 %s, %s, 4, %s", v(R + 1), v(R + 3), s(sTmp))
        e("ds_write_b128 %s, %s", v(R + 1), v(C_, 4))
    e("s_waitcnt lgkmcnt(0)")


def p3_map():
    if MAP8:
        e("s_and_b32 %s, s2, 7", s(sP))
        e("s_lshl_b32 %s, %s, 2", s(sP), s(sP))
        e("s_bfe_u32 s3, s2, 0x20003")
        e("s_add_u32 %s, %s, s3", s(sP), s(sP))
        e("s_lshr_b32 %s, s2, 5", s(sG3))
        return
    e("s_and_b32 s3, s2, 7")
    e("s_lshr_b32 %s, s2, 3", s(sTmp))
    e("s_lshr_b32 %s, s3, 1", s(sP))
    e("s_lshl_b32 %s, %s, 3", s(sP), s(sP))
    e("s_and_b32 %s, %s, 7", s(sTmp2), s(sTmp))
    e("s_add_u32 %s, %s, %s", s(sP), s(sP), s(sTmp2))
    e("s_and_b32 s3, s3, 1")
    e("s_lshl_b32 s3, s3, 2")
    e("s_lshr_b32 %s, %s, 3", s(sTmp), s(sTmp))
    e("s_add_u32 %s, s3, %s", s(sG3), s(sTmp))


ZG, ZC, ZAB = [160, 224], 64, [136, 192, 208]


def ZAr(c3, rt): return ZAB[c3] + 4 * rt


def z_setup():
    p3_map()
    e("s_mul_i32 %s, %s, %d", s(sLB), s(sLW), ZUS)
    e("s_lshl_b32 %s, %s, 7", s(sUo), s(sP))
    e("s_lshl_b32 %s, %s, 12", s(sTmp), s(sLW))
    e("s_add_u32 %s, %s, %s", s(sUo), s(sUo), s(sTmp))
    e("s_add_u32 %s, %s, 0x%x", s(sUo), s(sUo), WS_U)
    e("s_mul_i32 %s, %s, 21", s(sCo), s(sG3))
    e("s_add_u32 %s, %s, %s", s(sCo), s(sCo), s(sLW))
    e("s_mul_i32 %s, %s, 3072", s(sCo), s(sCo))
    e("s_add_u32 %s, %s, %d", s(sCo), s(sCo), TB.CI_OFF)
    e("s_lshl_b32 %s, %s, 1", s(sS2), s(sP))


def wd_bases(wreg):
    e("s_lshr_b32 %s, %s, 1", s(sOc), s(sG3))
    e("s_and_b32 %s, %s, 1", s(sTmp), s(sG3))
    e("s_mul_i32 %s, %s, 20", s(sTmp), s(sTmp))
    e("s_add_u32 %s, %s, %s", s(sOc), s(sOc), s(sTmp))
    e("s_add_u32 %s, %s, 16", s(sOc), s(sOc))
    e("s_lshl_b32 %s, %s, 5", s(sOc), s(sOc))
    e("s_lshl_b32 %s, %s, 10", s(sTmp), s(wreg))
    e("s_add_u32 %s, %s, 0x%x", s(sTmp), s(sTmp), WS_WD)
    e("s_mul_i32 %s, %s, %d", s(sWa), s(sG3), 2 * 49152)
    e("s_add_u32 %s, %s, %s", s(sWa), s(sWa), s(sTmp))
    e("s_mul_i32 %s, %s, %d", s(sWc), s(sOc), 49152 // 32)
    e("s_add_u32 %s, %s, %s", s(sWc), s(sWc), s(sTmp))


def rot3():
    e("s_and_b32 %s, %s, 3", s(sR3), s(sG3))
    e("s_mul_i32 %s, %s, %d", s(sR3), s(sR3), R3A)
    e("s_and_b32 %s, %s, 7", s(sTmp), s(sP))
    e("s_mul_i32 %s, %s, %d", s(sTmp), s(sTmp), R3B)
    e("s_add_u32 %s, %s, %s", s(sR3), s(sR3), s(sTmp))
    for _ in range((3 * R3A + 7 * R3B) // 12):
        e("s_cmp_ge_u32 %s, 12", s(sR3))
        e("s_cselect_b32 %s, 12, 0", s(sTmp))
        e("s_sub_u32 %s, %s, %s", s(sR3), s(sR3), s(sTmp))


def item4(i, dst):
    e("s_add_u32 %s, %s, %d", s(dst), s(sR3), i)
    e("s_cmp_ge_u32 %s, 12", s(dst))
    e("s_cselect_b32 %s, 12, 0", s(sTmp))
    e("s_sub_u32 %s, %s, %s", s(dst), s(dst), s(sTmp))
    e("s_lshl_b32 %s, %s, 12", s(dst), s(dst))


WOFF = [(0, 0), (0, 49152), (0, 20 * 49152), (0, 21 * 49152), (1, 0)]


def stage_all():
    rot3()
    for i in range(3):
        item4(i, sI4)
        for w in range(4):
            e("s_add_u32 %s, %s, %d", s(sCnt), s(sI4), ((w - 3) * 1024) & 0xffffffff)
            e("s_add_u32 %s, %s, %s", s(sTmp2), s(sCnt), s(sWa))
            for ct in range(5):
                e("s_mov_b32 m0, %d", CP0 + w * CPS + i * 5120 + ct * 1024)
                if ct < 4:
                    e("s_add_u32 %s, %s, %d", s(sTmp), s(sTmp2), WOFF[ct][1])
                else:
                    e("s_add_u32 %s, %s, %s", s(sTmp), s(sCnt), s(sWc))
                e("buffer_load_dwordx4 v5, %s, %s offen sc1 lds", s(sWS, 4), s(sTmp))


def stage_wd(i0, i1):
    e("s_mul_i32 %s, %s, %d", s(sSLAB), s(sLW), CPS)
    rot3()
    for i in range(i0, i1):
        item4(i, sI4)
        e("s_add_u32 %s, %s, %s", s(sTmp2), s(sI4), s(sWa))
        for ct in range(5):
            e("s_add_u32 m0, %s, %d", s(sSLAB), CP0 + i * 5120 + ct * 1024)
            if ct < 4:
                e("s_add_u32 %s, %s, %d", s(sTmp), s(sTmp2), WOFF[ct][1])
            else:
                e("s_add_u32 %s, %s, %s", s(sTmp), s(sI4), s(sWc))
            e("buffer_load_dwordx4 v5, %s, %s offen sc1 lds", s(sWS, 4), s(sTmp))


def z_ci_sub(idx):
    n = 0
    for z in range(6):
        c = [c3 for c3 in range(3) if z * 3 + c3 in idx]
        lab = A.newlabel("L_noc5")
        if c and z == 5 and ZSK:
            e("s_cmp_lg_u32 %s, 0", s(sLW))
            e("s_cbranch_scc1 %s", lab)
        else:
            n += len(c)
        if c:
            z_item(z, 4 * 3072, sCo, sRZ)
        for c3 in c:
            e("buffer_load_dwordx4 %s, v5, %s, %s offen offset:%d", v(ZC + z * 12 + c3 * 4, 4), s(sTAB, 4), s(sRZ), c3 * 1024)
        A.label(lab)
    return n


def ci_setup():
    e("s_lshr_b32 %s, %s, 1", s(sRZ), s(sLW))
    e("s_lshl_b32 %s, %s, 5", s(sRZ), s(sRZ))
    e("s_and_b32 %s, %s, 1", s(sI4), s(sLW))
    e("s_add_u32 %s, %s, %s", s(sRZ), s(sRZ), s(sI4))
    e("v_lshrrev_b32 v146, 4, v0")
    e("v_lshl_add_u32 v147, v146, 3, %s", s(sRZ))
    e("v_cmp_eq_u32 vcc, 0, v147")
    e("v_cvt_f32_u32 v147, v147")
    e("v_cndmask_b32 v145, 1.0, 0.5, vcc")
    e("s_lshr_b32 %s, %s, 1", s(sRZ), s(sG3))
    e("s_and_b32 %s, %s, 1", s(sI4), s(sG3))
    e("s_mul_i32 %s, %s, 20", s(sI4), s(sI4))
    e("s_add_u32 %s, %s, %s", s(sRZ), s(sRZ), s(sI4))
    e("s_add_u32 %s, %s, 16", s(sRZ), s(sRZ))
    e("s_lshl_b32 %s, %s, 4", s(sRZ), s(sRZ))
    e("s_lshl_b32 %s, %s, 5", s(sI4), s(sG3))
    e("v_and_b32 v146, 15, v0")
    for c3 in range(3):
        e("v_add_u32 v148, %s, v146", s(sRZ if c3 == 2 else sI4))
        if c3 == 1:
            e("v_add_u32 v148, 16, v148")
        e("v_cvt_f32_u32 v148, v148")
        e("v_mul_f32 v149, v147, v148")
        e("v_mul_f32 v149, 0x3acccccd, v149")
        e("v_fract_f32 %s, v149", v(136 + c3))
        e("v_mul_f32 v149, 0x3dcccccd, v148")
        e("v_fract_f32 %s, v149", v(139 + c3))
        e("v_mul_f32 %s, 0x3b4ccccd, v148", v(142 + c3))


def ci_gen(idx):
    for n in idx:
        z, c3 = n // 3, n % 3
        o = ZC + z * 12 + c3 * 4
        if z == 5:
            e("v_and_b32 v146, 1, v0")
            e("v_lshlrev_b32 v146, 15, v146")
            e("v_or_b32 v146, 0x3f00, v146")
            e("v_cmp_gt_u32 vcc, 16, v0")
            e("v_cndmask_b32 %s, 0, v146, vcc", v(o))
            for k in range(1, 4):
                e("v_mov_b32 %s, 0", v(o + k))
            continue
        if z == 0:
            e("v_mov_b32 v146, %s", v(136 + c3))
        elif z == 3:
            e("v_fma_f32 v146, 4.0, %s, %s", v(139 + c3), v(136 + c3))
            e("v_sub_f32 v146, v146, %s", v(139 + c3))
        else:
            e("v_fma_f32 v146, %s, %s, %s", "%d.0" % z, v(139 + c3), v(136 + c3))
        for ii in range(4):
            e("v_cos_f32 %s, v146", v(148 + ii))
            e("v_sin_f32_e64 %s, -v146", v(152 + ii))
            if ii < 3:
                e("v_add_f32 v146, v146, %s", v(142 + c3))
        if z == 0:
            e("v_mul_f32 v148, v145, v148")
        for k in range(4):
            e("v_cvt_pk_bf16_f32 %s, %s, %s", v(o + k), v(148 + 2 * k), v(149 + 2 * k))


def z_ci_all():
    return z_ci_sub(range(18))


def stage_done(n):
    e("s_lshl_b32 %s, %s, 2", s(sTmp), s(sLW))
    e("s_add_u32 %s, %s, %d", s(sTmp), s(sTmp), LGO + 16)
    e("v_mov_b32 v12, %s", s(sTmp))
    e("v_mov_b32 v13, 1")
    e("s_waitcnt vmcnt(%d)", n)
    e("ds_write_b32 v12, v13")


def z_item(z, mul, base, dst):
    e("s_and_b32 %s, %s, 3", s(dst), s(sG3))
    e("s_mul_i32 %s, %s, %d", s(dst), s(dst), RZ)
    e("s_add_u32 %s, %s, %d", s(dst), s(dst), z)
    e("s_cmp_ge_u32 %s, 6", s(dst))
    e("s_cselect_b32 %s, 6, 0", s(sTmp))
    e("s_sub_u32 %s, %s, %s", s(dst), s(dst), s(sTmp))
    e("s_lshl_b32 %s, %s, 2", s(sTmp), s(dst))
    e("s_add_u32 %s, %s, %s", s(sTmp), s(sTmp), s(sLW))
    e("s_cmp_gt_u32 %s, 20", s(sTmp))
    e("s_cselect_b32 %s, 0x20000000, %s", s(sTmp), s(base))
    e("s_mul_i32 %s, %s, %d", s(dst), s(dst), mul)
    e("s_add_u32 %s, %s, %s", s(dst), s(dst), s(sTmp))


def z_ci_loads(z, vL):
    z_item(z, 4 * 3072, sCo, sRZ)
    for c3 in range(3):
        e("buffer_load_dwordx4 %s, %s, %s, %s offen offset:%d", v(ZC + z * 12 + c3 * 4, 4), v(vL), s(sTAB, 4), s(sRZ), c3 * 1024)


def ZGr(u, ro, nh, kap): return ZG[u] + ((ro * 2 + nh) * 2 + kap) * 4


def z_gconst():
    e("v_and_b32 v56, 15, v0")
    e("v_lshlrev_b32 v56, 6, v56")
    e("v_add_u32 v56, %s, v56", s(sS2))
    e("v_cvt_f32_u32 v56, v56")
    e("v_mul_f32 v56, 0x3a000000, v56")
    e("v_lshrrev_b32 v57, 5, v0")
    e("v_lshlrev_b32 v57, 3, v57")
    e("v_cvt_f32_u32 v57, v57")
    e("v_bfe_u32 v58, v0, 4, 1")
    e("v_cvt_f32_u32 v58, v58")
    e("v_mul_f32 v58, 0x3e800000, v58")
    for u in range(2):
        if u:
            e("v_add_f32 v56, 0x3a000000, v56")
        for kap in range(2):
            if kap:
                e("v_add_f32 v59, 0x41800000, v57")
                e("v_fma_f32 v59, v59, v56, v58")
            else:
                e("v_fma_f32 v59, v57, v56, v58")
            for ro in range(2):
                if ro:
                    e("v_add_f32 v60, 0xbe800000, v59")
                else:
                    e("v_mov_b32 v60, v59")
                for i2 in range(4):
                    e("v_cos_f32 v61, v60")
                    e("v_add_f32 v60, v60, v56")
                    e("v_cos_f32 v62, v60")
                    e("v_add_f32 v60, v60, v56")
                    b = ZGr(u, ro, 0, kap) + i2
                    e("v_cvt_pk_bf16_f32 %s, v61, v62", v(b))
                    e("v_xor_b32 %s, 0x80000000, %s", v(b + 8), v(b))


def fu_poll_issue():
    e("v_lshlrev_b32 v11, 7, v0")
    lab0 = A.newlabel("L_nofup")
    e("s_cmp_lg_u32 %s, 0", s(sLW))
    e("s_cbranch_scc1 %s", lab0)
    poll_issue(16, 1, 11, WS_FU)
    A.label(lab0)


def zpart():
    vL, vUG, vTU, vTU1, vPU = 5, 6, 7, 8, 11
    UF, ZT = 16, 32
    e("v_lshlrev_b32 %s, 4, v0", v(vL))
    e("v_lshrrev_b32 v12, 3, v0")
    e("v_mul_u32_u24 v12, %d, v12", USTR)
    e("v_lshrrev_b32 v13, 2, v0")
    e("v_lshrrev_b32 v14, 4, v0")
    e("v_xor_b32 v13, v13, v14")
    e("v_and_b32 v13, 1, v13")
    e("v_lshl_add_u32 v12, v13, 6, v12")
    e("v_and_b32 v13, 3, v0")
    e("v_lshl_add_u32 %s, v13, 4, v12", v(vUG))
    e("v_lshrrev_b32 v12, 5, v0")
    e("v_lshlrev_b32 v12, 3, v12")
    e("v_bfe_u32 v14, v0, 2, 2")
    e("v_add_u32 v12, v12, v14")
    e("v_lshlrev_b32 v12, 7, v12")
    e("v_lshl_add_u32 v12, v13, 4, v12")
    e("v_bfe_u32 v14, v0, 4, 1")
    e("v_lshl_add_u32 v12, v14, 3, v12")
    e("v_bfe_u32 v14, v0, 3, 1")
    e("v_lshl_add_u32 v12, v14, 6, v12")
    e("v_add_u32 %s, %s, v12", v(vTU), s(sLB))
    e("v_xor_b32 %s, 64, %s", v(vTU1), v(vTU))
    e("v_mov_b32 v12, %d", LGO)
    lab1, lab2 = A.newlabel("L_lgo"), A.newlabel("L_lgod")
    e("s_cmp_lg_u32 %s, 0", s(sLW))
    e("s_cbranch_scc1 %s", lab1)
    e("s_waitcnt vmcnt(0)")
    poll_check(UF, 1, vPU, WS_FU)
    e("v_mov_b32 v13, 1")
    e("ds_write_b32 v12, v13")
    e("s_branch %s", lab2)
    A.label(lab1)
    e("s_sleep 1")
    e("ds_read_b32 v13, v12")
    e("s_waitcnt lgkmcnt(0)")
    e("v_cmp_ne_u32 vcc, 1, v13")
    e("s_cbranch_vccnz %s", lab1)
    A.label(lab2)
    stamp("zU")
    if ZPR and ZPF:
        e("s_setprio %d", ZPR)
    q = VQ()

    def udma(z):
        z_item(z, 4 * 4096, sUo, sRZ)
        for n in range(4):
            e("s_add_u32 m0, %s, %d", s(sLB), (z % 4) * 4096 + n * 1024)
            e("s_add_u32 %s, %s, %d", s(sTmp2), s(sRZ), n * 8 * USTR)
            e("buffer_load_dwordx4 %s, %s, %s offen sc1 lds", v(vUG), s(sWS, 4), s(sTmp2))
        q.issue("u%d" % z, 4)
    for z in range(4):
        udma(z)
    def ureads(z):
        q.wait("u%d" % z)
        stamp("z%d" % z)
        for u in range(2):
            for kap in range(2):
                for rd in range(2):
                    e("ds_read_b64_tr_b16 %s, %s offset:%d", v(UF + 8 * u + 4 * kap + 2 * rd, 2), v(vTU1 if u else vTU), (z % 4) * 4096 + kap * 2048 + rd * 512)
    ureads(0)
    skip5 = A.newlabel("L_noz5")

    def cv(rt):
        b = ZT + rt * 8
        return [cap(lambda k=k: e("v_cvt_pk_bf16_f32 %s, %s, %s", v(b + k), v(b + 2 * k), v(b + 2 * k + 1))) for k in range(4)]

    def s1(u):
        return [cap(lambda kap=kap, nh=nh, ro=ro: mm16(ZT + u * 16 + (nh * 2 + ro) * 4, UF + 8 * u + 4 * kap, ZGr(u, ro, nh, kap), kap == 0))
                for kap in range(2) for nh in range(2) for ro in range(2)]

    def s2(z, rt):
        return [cap(lambda c3=c3: mm16(ZAr(c3, rt), ZC + z * 12 + c3 * 4, ZT + rt * 8, z == 0)) for c3 in range(3)]

    def put(gs):
        for g in gs:
            A.lines += g
    for z in range(6):
        if z == ZPN:
            e("s_setprio %d", 0 if ZPF else 3)
        if z == 5 and ZSK:
            e("s_cmp_lg_u32 %s, 0", s(sLW))
            e("s_cbranch_scc1 %s", skip5)
        e("s_waitcnt lgkmcnt(4)")
        put(s1(0))
        e("s_waitcnt lgkmcnt(0)")
        m1 = s1(1)
        if not ZIL:
            put(m1)
        else:
            c0, c1 = cv(0), cv(1)
            put(m1[:5] + c0[:2] + m1[5:6] + c0[2:] + m1[6:7] + c1[:2] + m1[7:] + c1[2:])
        if z + 4 < 6:
            if z == 1 and ZSK:
                lab = A.newlabel("L_nou5")
                e("s_cmp_lg_u32 %s, 0", s(sLW))
                e("s_cbranch_scc1 %s", lab)
                udma(5)
                A.label(lab)
                q.q = q.q[:-4]
            else:
                udma(z + 4)
        if z + 1 < 6:
            if z == 4 and ZSK:
                lab = A.newlabel("L_nor5")
                e("s_cmp_lg_u32 %s, 0", s(sLW))
                e("s_cbranch_scc1 %s", lab)
                q.issue("u5", 4)
                ureads(5)
                A.label(lab)
            else:
                ureads(z + 1)
        if not ZIL:
            put(cv(0) + cv(1) + cv(2) + cv(3))
            e("s_nop 0")
            put(s2(z, 0) + s2(z, 1) + s2(z, 2) + s2(z, 3))
        else:
            if z == 5:
                e("s_nop 1")
            a0, a1, c2, c3_ = s2(z, 0), s2(z, 1), cv(2), cv(3)
            put(a0[:2] + c2[:2] + a0[2:] + c2[2:] + a1[:1] + c3_[:2] + a1[1:2] + c3_[2:] + a1[2:])
            e("s_nop 0")
            put(s2(z, 2) + s2(z, 3))
    A.label(skip5)
    e("v_add_u32 v12, %s, %s", s(sLB), v(vL))
    for rt in range(4):
        for c3 in range(3):
            if rt == 3 and c3 == 0:
                e("s_nop 1")
            e("ds_write_b128 v12, %s offset:%d", v(ZAr(c3, rt), 4), c3 * 4096 + rt * 1024)
    e("v_mov_b32 v12, %d", LGO)
    e("v_mov_b32 v13, 1")
    e("s_waitcnt lgkmcnt(0)")
    if ZE:
        e("s_mov_b64 exec, 1")
        e("ds_add_u32 v12, v13 offset:36")
        e("s_mov_b64 exec, -1")
        e("s_waitcnt lgkmcnt(0)")
    stamp("zend")
    e("s_barrier")


vA0, vA1, vB0, vB1 = 2, 3, 4, 1


def lgo_init():
    e("v_mov_b32 v12, %d", LGO)
    e("v_mov_b32 v13, 0")
    e("ds_write_b32 v12, v13")
    e("ds_write_b32 v12, v13 offset:4")
    e("ds_write_b32 v12, v13 offset:8")
    e("ds_write_b32 v12, v13 offset:12")
    e("ds_write_b32 v12, v13 offset:36")
    for i in range(4):
        e("ds_write_b32 v12, v13 offset:%d", 16 + 4 * i)


def k_offset(dst):
    e("s_and_b32 %s, s2, 1", s(dst))
    e("s_mul_i32 %s, %s, 5", s(dst), s(dst))
    e("s_bfe_u32 %s, s2, 0x10003", s(sTmp))
    e("s_mul_i32 %s, %s, 3", s(sTmp), s(sTmp))
    e("s_add_u32 %s, %s, %s", s(dst), s(dst), s(sTmp))
    if KG:
        e("s_lshr_b32 %s, s2, 6", s(sTmp))
        e("s_lshl_b32 %s, %s, 2", s(sTmp), s(sTmp))
        e("s_lshr_b32 %s, 0x%x, %s", s(sTmp), KG, s(sTmp))
        e("s_and_b32 %s, %s, 15", s(sTmp), s(sTmp))
        e("s_add_u32 %s, %s, %s", s(dst), s(dst), s(sTmp))
        mod10(dst)


KG = int(str(opt("kg", 0)), 16)


def mod10(dst):
    e("s_cmp_ge_u32 %s, 10", s(dst))
    e("s_cselect_b32 %s, 10, 0", s(sTmp))
    e("s_sub_u32 %s, %s, %s", s(dst), s(dst), s(sTmp))


def x_src_scalar():
    e("s_lshl_b32 %s, %s, 2", s(sAoff), s(sRB))
    e("s_add_u32 %s, %s, %s", s(sAoff), s(sAoff), s(sLW))
    e("s_mul_i32 %s, %s, 1280", s(sAoff), s(sAoff))


def ffn_loader():
    if PRL & 2:
        e("s_setprio 2")
    e("v_lshrrev_b32 v6, 3, v0")
    e("v_mul_u32_u24 v6, 81920, v6")
    e("v_and_b32 v7, 7, v0")
    e("v_lshrrev_b32 v8, 4, v0")
    e("v_xor_b32 v7, v7, v8")
    e("v_lshl_add_u32 %s, v7, 4, v6", v(vA0))
    e("v_xor_b32 %s, 64, %s", v(vA1), v(vA0))
    e("v_mul_u32_u24 v6, 3072, v8")
    e("v_and_b32 v7, 15, v0")
    e("v_lshlrev_b32 v8, 2, v8")
    e("v_xor_b32 v7, v7, v8")
    e("v_lshl_add_u32 %s, v7, 4, v6", v(vB0))
    e("v_xor_b32 %s, 32, %s", v(vB1), v(vB0))
    x_src_scalar()
    e("s_mul_i32 %s, %s, %d", s(sBoff), s(sLW), 16 * 3072)
    e("s_lshl_b32 %s, %s, 8", s(sTmp), s(sCG))
    e("s_add_u32 %s, %s, %s", s(sBoff), s(sBoff), s(sTmp))
    e("s_lshl_b32 %s, %s, 12", s(sM0), s(sLW))
    k_offset(sJB)
    XR_ = opt("xrot", 0)
    if XR_:
        e("s_bfe_u32 %s, s2, 0x20003", s(sJB))
        e("s_mul_i32 %s, %s, 5", s(sJB), s(sJB))
        e("s_add_u32 %s, %s, 1", s(sJB), s(sJB))
        e("s_lshr_b32 %s, %s, 1", s(sJB), s(sJB))
        if XR_ & 4:
            e("s_mov_b32 %s, 0", s(sJB))
        e("s_lshr_b32 %s, s2, 6", s(sTmp))
        e("s_mul_i32 %s, %s, %d", s(sTmp), s(sTmp), (XR_ & 3) - 1)
        e("s_add_u32 %s, %s, %s", s(sJB), s(sJB), s(sTmp))
        e("s_cmp_ge_u32 %s, 10", s(sJB))
        e("s_cselect_b32 %s, 10, 0", s(sTmp))
        e("s_sub_u32 %s, %s, %s", s(sJB), s(sJB), s(sTmp))
    NR = 10
    tab_srd()
    stamp("l_pre")
    e("s_waitcnt lgkmcnt(0)")
    stamp("l_k")
    for k in ("X", "G", "U"):
        srd(A, *SRDS[k])
    q = VQ()

    def slab_groups(i):
        b = (i % 3) * SLAB
        gs = []

        def head():
            if i < NFIX:
                e("s_add_u32 %s, %s, %d", s(sWM), s(sAoff), i * 128)
                e("s_add_u32 %s, %s, %d", s(sWN), s(sBoff), i * 64 * 3072)
            else:
                e("s_add_u32 %s, %s, %d", s(sTmp), s(sJB), NFIX)
                e("s_lshl_b32 %s, %s, 7", s(sWM), s(sTmp))
                e("s_add_u32 %s, %s, %s", s(sWM), s(sWM), s(sAoff))
                e("s_mul_i32 %s, %s, %d", s(sWN), s(sTmp), 64 * 3072)
                e("s_add_u32 %s, %s, %s", s(sWN), s(sWN), s(sBoff))
                e("s_add_u32 %s, %s, 1", s(sJB), s(sJB))
                e("s_cmp_eq_u32 %s, %d", s(sJB), NR)
                e("s_cselect_b32 %s, 0, %s", s(sJB), s(sJB))
        for n in range(4):
            def f(n=n):
                if n == 0:
                    head()
                e("s_add_u32 m0, %s, %d", s(sM0), b + n * 1024)
                e("s_add_u32 %s, %s, %d", s(sTmp), s(sWM), n * 8 * 81920)
                e("buffer_load_dwordx4 %s, %s, %s offen lds", v(vA1 if n & 1 else vA0), s(sX, 4), s(sTmp))
            gs.append(cap(f))
        for mat in range(2):
            for n in range(4):
                def f(n=n, mat=mat):
                    e("s_add_u32 m0, %s, %d", s(sM0), b + 16384 * (1 + mat) + n * 1024)
                    e("s_add_u32 %s, %s, %d", s(sTmp), s(sWN), n * 4 * 3072)
                    e("buffer_load_dwordx4 %s, %s, %s offen lds", v(vB1 if n & 2 else vB0), s(sU if mat else sG, 4), s(sTmp))
                gs.append(cap(f))
        q.issue("s%d" % i, 12)
        return gs

    def slab(i, main=()):
        weave(list(main), slab_groups(i))

    def wait2(n):
        la, lb = A.newlabel("L_w2"), A.newlabel("L_w2")
        e("s_cmp_ge_u32 %s, 48", s(sPar))
        e("s_cbranch_scc1 %s", la)
        e("s_waitcnt vmcnt(%d)", n + 4)
        e("s_branch %s", lb)
        A.label(la)
        e("s_waitcnt vmcnt(%d)", n)
        A.label(lb)

    def bar(b):
        stamp("fl_a%d" % b)
        e("s_barrier")
        stamp("fl_b%d" % b)
    slab(0)
    stamp("l_s0")
    lgo_init()
    e("s_load_dword %s, %s, 0x%x", s(sTAG), s(P + 18, 2), WS_EP)
    for k in ("WS", "WD", "WR", "WI"):
        srd(A, *SRDS[k])
    z_setup()
    e("v_lshlrev_b32 v5, 4, v0")
    fw_poll_addr(10)
    aux_poll_addr(True, 15)
    aux_addr(True, 36)
    slab(1, cap(z_gconst))
    if WT:
        e("s_bfe_u32 %s, s2, 0x20001", s(sTmp))
        e("s_lshl_b32 %s, %s, 2", s(sTmp), s(sTmp))
        e("s_lshr_b32 %s, 0x9f51, %s", s(sTmp), s(sTmp))
        e("s_and_b32 %s, %s, 15", s(sNU), s(sTmp))
        e("s_cmp_gt_u32 %s, %s", s(sCG), s(sNU))
        e("s_cselect_b32 %s, 1, 0", s(sTmp))
        e("s_lshr_b32 %s, s2, 6", s(sCnt))
        e("s_sub_u32 %s, %s, %s", s(sCnt), s(sCnt), s(sTmp))
        e("s_lshl_b32 %s, %s, 3", s(sCnt), s(sCnt))
        e("s_bfe_u32 %s, s2, 0x30003", s(sTmp))
        e("s_add_u32 %s, %s, %s", s(sCnt), s(sCnt), s(sTmp))
        e("s_lshl_b32 %s, %s, 2", s(sCnt), s(sCnt))
        e("s_add_u32 %s, %s, %s", s(sCnt), s(sCnt), s(sLW))
        e("s_mul_i32 %s, %s, %d", s(sCnt), s(sCnt), WTN)
        e("s_and_b32 %s, s2, 1", s(sTmp))
        e("s_mul_i32 %s, %s, 320", s(sTmp), s(sTmp))
        e("s_add_u32 %s, %s, %s", s(sCnt), s(sCnt), s(sTmp))
        e("s_add_u32 %s, %s, %d", s(sCnt), s(sCnt), (10 - WTN) * 64)
        e("v_min_u32 v61, %d, v0", 2 * WTN - 1)
        e("v_lshrrev_b32 v60, 1, v61")
        e("v_add_u32 v60, %s, v60", s(sCnt))
        e("v_subrev_u32 v62, 640, v60")
        e("v_min_u32 v60, v60, v62")
        e("v_mul_u32_u24 v60, 3072, v60")
        e("v_and_b32 v61, 1, v61")
        e("v_lshl_add_u32 v60, v61, 7, v60")
        e("s_lshl_b32 %s, %s, 8", s(sTmp), s(sNU))
        e("s_cmp_eq_u32 %s, %s", s(sCG), s(sNU))
        e("s_cselect_b32 %s, 0x20000000, %s", s(sTmp), s(sTmp))
        e("s_cmp_eq_u32 %s, 15", s(sNU))
        e("s_cselect_b32 %s, 0x20000000, %s", s(sTmp), s(sTmp))
        e("v_add_u32 v60, %s, v60", s(sTmp))

    def wtouch():
        e("buffer_load_dword v62, v60, %s, 0 offen", s(sG, 4))
        e("buffer_load_dword v62, v60, %s, 0 offen", s(sU, 4))
    if WT == 2:
        wtouch(); q.issue("wt", 2)
    stamp("l_iss")
    q.wait("s0", extra=" lgkmcnt(0)")
    e("s_barrier")
    stamp("l_bi")
    make_tag()
    slab(2)
    if WT == 1:
        wtouch()
    repack_dma()
    wait2(14 if WT == 1 else 12)
    q.q = ["s2"] * 12
    bar(0)
    slab(3, cap(lambda: (ci_setup(), ci_gen([0, 1, 15, 16, 17]))) if CG else ())
    wait2(14 if WT == 1 else 12)
    q.q = ["s3"] * 12
    bar(1)
    slab(4)
    e("s_waitcnt vmcnt(24)")
    repack_finish()
    wait2(12)
    q.q = ["s4"] * 12
    bar(2)
    slab(5, cap(lambda: ci_gen([2, 3, 4])) if CG else ())
    if WARM == 2:
        warm_touch(); q.issue("wt", 2)
    q.wait("s4")
    bar(3)
    lab = A.newlabel("L_nocf")
    e("s_cmp_lg_u32 %s, 0", s(sLW))
    e("s_cbranch_scc1 %s", lab)
    e("s_lshl_b32 %s, s77, 7", s(sCnt))
    e("s_add_u32 %s, %s, 0x%x", s(sCnt), s(sCnt), WS_FW)
    flag_store(sCnt, 16, 17)
    A.label(lab)
    slab(6, cap(lambda: ci_gen([5, 6, 7])) if CG else ())
    q.wait("s5")
    bar(4)
    slab(7, cap(lambda: ci_gen([8, 9])) if CG else ())
    if PF3 & 1:
        pf3(1)
    if PF3 & 2:
        pf3(0)
    q.wait("s6")
    bar(5)
    if TL:
        slab(8, cap(lambda: ci_gen([10, 11, 12])) if CG else ())
        q.wait("s7")
        bar(6)
        poll_issue(34, 1, 15, WS_FS); poll_issue(35, 1, 10, WS_FW); q.issue("p", 2)
        slab(9, cap(lambda: ci_gen([13, 14])) if CG else ())
        wd_bases(sLW)
        if CIL == 2:
            q.issue("ci", z_ci_all())
        q.wait("s8")
        bar(7)
        q.wait("p")
        poll_check(34, 1, 15, WS_FS)
        poll_check(35, 1, 10, WS_FW)
        aux_issue(True, 36); q.issue("aux", 4)
        pf3_go(q, PF3)
        if CIL == 3:
            q.issue("ci", z_ci_all())
        q.wait("s9")
        bar(8)
        if CIL == 4:
            q.issue("ci", z_ci_all())
        stage_wd(0, SG); q.issue("sg", 5 * SG)
        q.wait("aux")
        aux_finish(True, 36)
        bar(9)
        if SG == 4:
            stage_done(0)
    else:
        poll_issue(34, 1, 15, WS_FS); poll_issue(35, 1, 10, WS_FW); q.issue("p", 2)
        slab(8)
        q.wait("s7")
        bar(6)
        slab(9)
        q.wait("p")
        poll_check(34, 1, 15, WS_FS)
        poll_check(35, 1, 10, WS_FW)
        aux_issue(True, 36); q.issue("aux", 4)
        if PFP == 0:
            pf3_go(q, PF3)
        q.wait("s8")
        bar(7)
        if PFP == 1:
            pf3_go(q, PF3)
        q.wait("aux")
        aux_finish(True, 36)
        bar(8)
        wd_bases(sLW)
        stage_wd(0, 4)
        if CIL == 0:
            z_ci_all()
        stage_done(18 if CIL == 0 else 0)
    e("v_mov_b32 v12, %d", LGO)
    lab = A.newlabel("L_hout")
    A.label(lab)
    e("s_sleep 1")
    e("ds_read_b32 v13, v12 offset:4")
    e("s_waitcnt lgkmcnt(0)")
    e("v_cmp_ne_u32 vcc, 4, v13")
    e("s_cbranch_vccnz %s", lab)
    if TL and SG < 4:
        stage_wd(SG, 4)
        if CIL >= 2 or CG:
            stage_done(0)
            fu_poll_issue()
        else:
            fu_poll_issue()
            stage_done(z_ci_all())
    else:
        fu_poll_issue()
        if CIL == 1 and not CG:
            z_ci_all()
    e("s_branch L_zpart")


def wspec_shift(dst):
    e("s_mul_i32 %s, %s, 642", s(sDelta), s(sK1))
    e("s_mul_i32 %s, s3, 320", s(sTmp))
    e("s_add_u32 %s, %s, %s", s(sDelta), s(sDelta), s(sTmp))
    e("s_and_b32 %s, %s, 15", s(dst), s(sDelta))


def wspec_dma():
    mid_k1()
    e("v_mul_u32_u24 v12, 3121, v0")
    e("v_lshrrev_b32 v12, 16, v12")
    e("v_mul_u32_u24 v12, %d, v12", 32 * 642 - 336)
    e("v_lshl_add_u32 v12, v0, 4, v12")
    wspec_shift(sTmp2)
    e("s_sub_u32 %s, %s, %s", s(sDelta), s(sDelta), s(sTmp2))
    e("s_and_b32 %s, %s, 1", s(sTmp), s(sLW))
    e("s_mul_i32 %s, %s, %d", s(sCnt), s(sTmp), 11 * 1008)
    e("s_mul_i32 %s, %s, %d", s(sTmp), s(sTmp), 33 * 32 * 642)
    e("s_add_u32 %s, %s, %s", s(sDelta), s(sDelta), s(sTmp))
    e("s_cmp_ge_u32 %s, 2", s(sLW))
    e("s_cselect_b32 %s, %s, %s", s(sWR), s(sWI), s(sWR))
    e("s_cselect_b32 %s, %s, %s", s(sWR + 1), s(sWI + 1), s(sWR + 1))
    e("s_cselect_b32 %s, %d, 0", s(sTmp), MWA)
    e("s_add_u32 %s, %s, %s", s(sCnt), s(sCnt), s(sTmp))
    gs = []
    for n in range(11):
        def f(n=n):
            e("s_add_u32 m0, %s, %d", s(sCnt), MW0 + n * 1008)
            e("s_add_u32 %s, %s, %d", s(sTmp), s(sDelta), n * 3 * 32 * 642)
            e("buffer_load_dwordx4 v12, %s, %s offen lds", s(sWR, 4), s(sTmp))
        gs.append(cap(f))
    return gs


def repack_dma():
    e("v_lshrrev_b32 v12, 3, v0")
    e("v_mul_u32_u24 v13, 1280, v12")
    e("v_bfe_u32 v14, v0, 4, 2")
    e("v_lshlrev_b32 v14, 1, v14")
    e("v_and_b32 v12, 7, v0")
    e("v_xor_b32 v12, v12, v14")
    e("v_lshl_add_u32 v12, v12, 4, v13")
    e("s_mov_b32 s77, s2")
    if RX:
        e("s_bfe_u32 %s, s2, 0x20001", s(sTmp))
        e("s_lshl_b32 %s, %s, 3", s(sTmp), s(sTmp))
        e("s_lshr_b32 %s, 0x5a3c0082, %s", s(sTmp), s(sTmp))
        e("s_and_b32 %s, %s, 255", s(sTmp), s(sTmp))
        e("s_add_u32 %s, %s, s2", s(sTmp), s(sTmp))
        e("s_sub_u32 %s, %s, 160", s(sTmp), s(sTmp))
        e("s_cmp_ge_u32 s2, 160")
        e("s_cselect_b32 s77, %s, s77", s(sTmp))
        e("s_and_b32 %s, s2, 31", s(sTmp))
        e("s_add_u32 %s, %s, 160", s(sTmp), s(sTmp))
        e("s_and_b32 %s, %s, 11", s(sCnt), s(sCG))
        e("s_cmp_eq_u32 %s, 1", s(sCnt))
        e("s_cselect_b32 s77, %s, s77", s(sTmp))
    e("s_mul_i32 %s, s77, 3", s(sCnt))
    e("s_add_u32 %s, %s, %s", s(sCnt), s(sCnt), s(sLW))
    e("s_cmp_eq_u32 %s, 3", s(sLW))
    e("s_cselect_b32 %s, 480, %s", s(sCnt), s(sCnt))
    e("s_mul_i32 %s, %s, 52429", s(sBuf), s(sCnt))
    e("s_lshr_b32 %s, %s, 19", s(sBuf), s(sBuf))
    e("s_mul_i32 %s, %s, 10", s(sTmp), s(sBuf))
    e("s_sub_u32 %s, %s, %s", s(sCnt), s(sCnt), s(sTmp))
    e("s_mul_i32 %s, %s, 40960", s(sDelta), s(sBuf))
    e("s_lshl_b32 %s, %s, 7", s(sTmp), s(sCnt))
    e("s_add_u32 %s, %s, %s", s(sDelta), s(sDelta), s(sTmp))
    e("s_min_u32 %s, %s, 2", s(sWa), s(sLW))
    e("s_lshl_b32 %s, %s, 12", s(sWa), s(sWa))
    e("s_add_u32 %s, %s, %d", s(sWa), s(sWa), RPK)
    lab = A.newlabel("L_norp")
    e("s_cmp_ge_u32 %s, 48", s(sBuf))
    e("s_cbranch_scc1 %s", lab)
    for n in range(4):
        e("s_add_u32 m0, %s, %d", s(sWa), n * 1024)
        e("s_add_u32 %s, %s, %d", s(sTmp), s(sDelta), n * 8 * 1280)
        e("buffer_load_dwordx4 v12, %s, %s offen lds", s(sWD, 4), s(sTmp))
    A.label(lab)
    e("s_mul_i32 %s, %s, %d", s(sWb), s(sCnt), 4 * 49152)
    e("s_lshl_b32 %s, %s, 10", s(sTmp), s(sBuf))
    e("s_add_u32 %s, %s, %s", s(sWb), s(sWb), s(sTmp))
    e("s_add_u32 %s, %s, 0x%x", s(sWb), s(sWb), WS_WD)
    e("s_mov_b32 %s, %s", s(sPar), s(sBuf))


def repack_finish():
    lab = A.newlabel("L_norp")
    e("s_cmp_ge_u32 %s, 48", s(sPar))
    e("s_cbranch_scc1 %s", lab)
    e("v_lshrrev_b32 v56, 2, v0")
    e("v_lshlrev_b32 v56, 7, v56")
    e("v_and_b32 v57, 3, v0")
    e("v_lshl_add_u32 v56, v57, 3, v56")
    e("v_bfe_u32 v57, v0, 3, 2")
    e("v_lshl_add_u32 v56, v57, 5, v56")
    e("v_add_u32 v56, %s, v56", s(sWa))
    for tq in range(1, 4):
        e("v_xor_b32 %s, %d, v56", v(56 + tq), tq << 5)
    for tq in range(4):
        for rd in range(2):
            e("ds_read_b64_tr_b16 %s, %s offset:%d", v(16 + tq * 4 + 2 * rd, 2), v(56 + tq), rd * 2048)
    for n in range(4):
        e("s_waitcnt lgkmcnt(%d)", 6 - 2 * n)
        e("s_add_u32 %s, %s, %d", s(sTmp), s(sWb), n * 49152)
        e("buffer_store_dwordx4 %s, v5, %s, %s offen sc1", v(16 + n * 4, 4), s(sWS, 4), s(sTmp))
    A.label(lab)


def fold_group(a0, T, vM, vaddr, off):
    for d in range(4):
        e("v_lshlrev_b32 %s, 16, %s", v(T + d), v(a0 + d))
        e("v_lshlrev_b32 %s, 16, %s", v(T + 4 + d), v(a0 + 4 + d))
    for d in range(8):
        e("v_and_b32 %s, %s, %s", v(a0 + d), v(vM), v(a0 + d))
    for d in range(4):
        e("v_fmac_f32 %s, %s, %s", v(T + d), s(sSgn), v(T + 4 + d))
    for d in range(4):
        e("v_fmac_f32 %s, %s, %s", v(a0 + d), s(sSgn), v(a0 + 4 + d))
    for d in range(4):
        e("v_cvt_pk_bf16_f32 %s, %s, %s", v(a0 + d), v(T + d), v(a0 + d))
    e("ds_write_b128 %s, %s offset:%d", v(vaddr), v(a0, 4), off)


def fold_addr(src, w0, w2):
    e("v_lshrrev_b32 %s, 3, v0", v(w2))
    e("v_mul_u32_u24 %s, 81920, %s", v(w2 + 1), v(w2))
    e("v_and_b32 %s, 7, v0", v(w0))
    e("v_lshl_add_u32 %s, %s, 4, %s", v(src), v(w0), v(w2 + 1))
    e("v_lshrrev_b32 %s, 4, v0", v(w2 + 1))
    e("v_xor_b32 %s, %s, %s", v(w0), v(w0), v(w2 + 1))
    e("v_lshlrev_b32 %s, 7, %s", v(w2), v(w2))
    e("v_lshl_add_u32 %s, %s, 4, %s", v(w2), v(w0), v(w2))
    e("s_mul_i32 %s, %s, %d", s(sTmp), s(sLW), CPS)
    e("s_add_u32 %s, %s, %d", s(sTmp), s(sTmp), XB)
    e("v_add_u32 %s, %s, %s", v(w0), s(sTmp), v(w2))
    e("v_xor_b32 %s, 64, %s", v(w0 + 1), v(w0))


XO = opt("xo", 0)
CI_EARLY = list(range(8, 16))
CI_LATE = [i for i in range(18) if i not in CI_EARLY]
LX = opt("lx", 0)
CX = opt("cx", 2)
MWE = opt("mwe", 1)
EH = opt("eh", 0)
EST = opt("est", 3)
ECI = opt("eci", 3)
EFH = opt("efh", 1)
NL = opt("nl", 3)


def dft_loader():
    if PRL & 1:
        e("s_setprio 2")
    XR = 64
    vW0, vW1 = 8, 9
    fold_addr(vA0, vW0, 6)
    e("v_lshlrev_b32 %s, 4, v0", v(vB0))
    x_src_scalar()
    tab_srd()
    stamp("l_pre")
    e("s_waitcnt lgkmcnt(0)")
    stamp("l_k")
    srd(A, *SRDS["X"])
    q = VQ()

    def ci_touch():
        e("s_bfe_u32 %s, s2, 0x30003", s(sCnt))
        e("s_lshl_b32 %s, %s, 2", s(sCnt), s(sCnt))
        e("s_add_u32 %s, %s, %s", s(sCnt), s(sCnt), s(sLW))
        e("s_mul_i32 %s, %s, %d", s(sTmp), s(sCnt), 63 * 128)
        e("s_and_b32 %s, s2, 1", s(sTmp2))
        e("s_mul_i32 %s, %s, %d", s(sTmp2), s(sTmp2), 4 * 63 * 1024)
        e("s_add_u32 %s, %s, %s", s(sTmp), s(sTmp), s(sTmp2))
        e("s_add_u32 %s, %s, %d", s(sTmp), s(sTmp), TB.CI_OFF)
        e("v_min_u32 v12, 62, v0")
        e("v_lshlrev_b32 v12, 7, v12")
        e("buffer_load_dword v45, v12, %s, %s offen", s(sTAB, 4), s(sTmp))
        e("s_lshl_b32 %s, %s, 8", s(sTmp), s(sCnt))
        e("s_add_u32 %s, %s, %d", s(sTmp), s(sTmp), TB.F64_OFF)
        e("v_and_b32 v12, 128, v12")
        e("buffer_load_dword v45, v12, %s, %s offen", s(sTAB, 4), s(sTmp))
        q.issue("t", 2)

    def xl(i):
        gs = []
        for n in range(NL):
            for hf in range(2):
                def f(n=n, hf=hf):
                    e("s_add_u32 %s, %s, %d", s(sTmp), s(sAoff), n * 8 * 81920 + i * 128)
                    e("buffer_load_dwordx4 %s, %s, %s, %s offen offset:%d", v(XR + i * 32 + n * 8 + hf * 4, 4), v(vA0), s(sX, 4), s(sTmp), hf * 640)
                gs.append(cap(f))
        q.issue("x%d" % i, 2 * NL)
        return gs

    def fl():
        gs = []
        for n in range(2):
            def f(n=n):
                e("s_lshl_b32 %s, %s, 11", s(sTmp), s(sLW))
                e("s_add_u32 m0, %s, %d", s(sTmp), FR_L + n * 1024)
                e("s_add_u32 %s, %s, %d", s(sTmp), s(sTmp), TB.F64_OFF + n * 1024)
                e("buffer_load_dwordx4 %s, %s, %s offen lds", v(vB0), s(sTAB, 4), s(sTmp))
            gs.append(cap(f))
        q.issue("f", 2)
        return gs

    def fold(i):
        for n in range(NL):
            fold_group(XR + i * 32 + n * 8, 28 + 8 * (n & 1), 44, (vW0, vW1)[n & 1], (1 - (i & 1)) * 5120 + n * 1024)

    def bar(b):
        stamp("dl_a%s" % b)
        e("s_barrier")
        stamp("dl_b%s" % b)
    weave([], xl(0))
    if XT & 32:
        ci_touch()
    stamp("l_s0")
    lgo_init()
    e("s_load_dword %s, %s, 0x%x", s(sTAG), s(P + 18, 2), WS_EP)
    for k in ("WS", "WR", "WI", "OUT"):
        srd(A, *SRDS[k])
    e("s_cmp_ge_u32 %s, 2", s(sCG))
    e("s_cselect_b32 %s, -1.0, 1.0", s(sSgn))
    weave([], xl(1) + (xl(2) if LX >= 1 else []) + (xl(3) if LX >= 2 else []))
    e("v_mov_b32 v44, 0xffff0000")
    aux_poll_addr(False, 15)
    fw_poll_addr(10)
    aux_addr(False, 24)
    stamp("l_iss")
    q.wait("x0")
    stamp("dl_x0")
    fold(0)
    e("s_waitcnt lgkmcnt(0)")
    e("s_barrier")
    stamp("l_bi")
    if XT & 64:
        ci_touch()
    make_tag()
    q.wait("x1")
    weave(cap(lambda: fold(1)), (xl(2) if LX < 1 else []) + (xl(3) if LX < 2 else []) + (xl(4) if LX >= 1 else []))
    e("s_waitcnt lgkmcnt(0)")
    bar(0)
    q.wait("x2")
    stamp("dl_x2")
    weave(cap(lambda: fold(2)), xl(4) if LX < 1 else [])
    stamp("dl_f2")
    poll_issue(46, 1, 15, WS_FS); q.issue("p")
    e("s_waitcnt lgkmcnt(0)")
    bar(1)
    q.wait("x3")
    stamp("dl_x3")
    weave(cap(lambda: fold(3)), fl())
    stamp("dl_f3")
    q.wait("p")
    poll_check(46, 1, 15, WS_FS)
    aux_issue(False, 24); q.issue("aux")
    e("s_waitcnt lgkmcnt(0)")
    bar(2)
    gs = wspec_dma()
    if WSP == 2:
        weave(cap(lambda: fold(4)), gs)
        q.issue("w", 11)
    else:
        fold(4)
    q.wait("aux")
    aux_finish(False, 24)
    bar(3)
    poll_issue(41, 1, 10, WS_FW)
    if WSP == 0:
        weave([], gs)
    z_setup()
    wd_bases(sLW)
    e("v_lshlrev_b32 v5, 4, v0")
    if EST >= 3:
        if ECI and ECI < 3:
            z_ci_sub(CI_EARLY)
            lab = A.newlabel("L_cil")
            e("s_bfe_u32 %s, s2, 0x10003", s(sTmp))
            e("s_add_u32 %s, %s, 2", s(sTmp), s(sTmp))
            e("s_cmp_lt_u32 %s, %s", s(sLW), s(sTmp))
            e("s_cbranch_scc1 %s", lab)
            z_ci_sub(CI_LATE)
            A.label(lab)
        if CG == 1:
            ci_setup()
            ci_gen(CI_EARLY)
        if ZGL:
            e("v_mov_b32 v12, %d", LGO)
            lab = A.newlabel("L_zgl")
            A.label(lab)
            e("s_sleep 2")
            e("ds_read_b32 v13, v12 offset:12")
            e("s_waitcnt lgkmcnt(0)")
            e("v_cmp_ne_u32 vcc, 1, v13")
            e("s_cbranch_vccnz %s", lab)
        z_gconst()
        if CG == 2:
            ci_setup()
            ci_gen(CI_EARLY)
        stamp("dl_g")
        e("s_branch L_dft_l")
        return
    if ECI == 2:
        z_ci_sub(CI_EARLY)
    if EST:
        e("s_waitcnt vmcnt(%d)", len(CI_EARLY) if ECI == 2 else 0)
        poll_check(41, 1, 10, WS_FW)
        stamp("dl_fw")
        stage_wd(0, 3)
    if ECI == 1:
        z_ci_sub(CI_EARLY)
    stamp("dl_st")
    z_gconst()
    stamp("dl_g")
    if not EST:
        e("s_waitcnt vmcnt(0)")
        poll_check(41, 1, 10, WS_FW)
    e("s_branch L_dft_l")


def addr_advance(regs):
    e("s_add_u32 %s, %s, %d", s(sBuf), s(sBuf), SLAB)
    e("s_cmp_ge_u32 %s, %d", s(sBuf), 3 * SLAB)
    e("s_cselect_b32 %s, 0, %s", s(sBuf), s(sBuf))
    e("s_cselect_b32 %s, %d, %s", s(sDelta), (-2 * SLAB) & 0xffffffff, s(sSLAB))
    for r_ in regs:
        e("v_add_u32 %s, %s, %s", v(r_), s(sDelta), v(r_))


def gemm_loop(nslab, NT, mfmas, reads, need, areg, bar_gap, per_gap, last_extra=(), first_hook=None, peel=None, buf0=0, body=None, unroll=None, hooks=None, loop_from=None, fills=None, advf=None, last_bar=False):
    nreads = len(reads(0, 0))
    nm = len(need)

    def step(mf, nxt, first_gap=0, pre=None, barg=None):
        issued, done = 0, 0
        for m in range(nm):
            if need[m] > done:
                allowed = nreads - need[m] + issued
                e("s_waitcnt lgkmcnt(%d)", min(15, allowed))
                done = need[m] if allowed <= 15 else min(nreads, nreads + issued - 15)
            mf[m]()
            if pre and m in pre:
                for f in pre[m]:
                    f()
                if m == barg:
                    done = nreads
            if m >= first_gap:
                for k in range(per_gap):
                    if issued < len(nxt):
                        nxt[issued]()
                        issued += 1
        assert issued == len(nxt), (issued, len(nxt))

    def bar(vm=False):
        e("s_waitcnt lgkmcnt(0)%s", " vmcnt(0)" if vm else "")
        e("s_barrier")

    def merge(*ds):
        out = {}
        for d in ds:
            for k, x in d.items():
                out.setdefault(k, [])
                out[k] += x
        return out

    def spread(ops):
        out = {}
        for n, f in enumerate(ops):
            g = nm - 1 - (len(ops) - 1 - n) * max(1, (nm - bar_gap - 1) // max(1, len(ops)))
            out.setdefault(max(g, 0), []).append(f)
        return out

    def slab(last, peeled=False):
        if peeled:
            for t in range(NT - 1):
                step(mfmas(t & 1, t == 0), reads((t + 1) & 1, t + 1), pre=peel[t])
            step(mfmas(1), reads(0, 0), first_gap=bar_gap + (1 if bar_gap else 0),
                 pre=merge({0: [lambda: addr_advance(areg)]}, {bar_gap: [lambda: bar(True)]}, peel[NT - 1]), barg=bar_gap)
            return
        ex = list(last_extra) if last else []
        per = (len(ex) + NT - 1) // NT
        for t in range(NT - 1):
            step(mfmas(t & 1), reads((t + 1) & 1, t + 1), pre=merge(spread(ex[t * per:(t + 1) * per]), body[t] if body and not last else {}))
        if last:
            step(mfmas(1), [], pre=spread(ex[(NT - 1) * per:]))
        else:
            hooks = {bar_gap: ([first_hook[0]] if first_hook else []) + [bar] + ([first_hook[1]] if first_hook else [])}
            step(mfmas(1), reads(0, 0), first_gap=bar_gap + (1 if bar_gap else 0), pre=merge({0: [lambda: addr_advance(areg)]}, hooks, body[NT - 1] if body else {}), barg=bar_gap)
    e("s_mov_b32 %s, %d", s(sBuf), buf0)
    e("s_mov_b32 %s, %d", s(sSLAB), SLAB)
    e("s_mov_b32 %s, 0", s(sCnt))
    e("s_waitcnt lgkmcnt(0)%s", " vmcnt(%d)" % unroll[0][0] if unroll and unroll[0][0] is not None else "")
    make_tag()
    e("s_barrier")
    stamp("c_bi")
    for f in reads(0, 0):
        f()
    if unroll:
        ops = unroll[0][1]
        for i in range(nslab):
            if loop_from is not None and loop_from < i < nslab - 1:
                continue
            if loop_from is not None and i == loop_from:
                e("s_mov_b32 %s, %d", s(sBuf), ((buf0 // SLAB + i) % 3) * SLAB)
                e("s_mov_b32 %s, %d", s(sCnt), i)
                lab = A.newlabel("L_gemm")
                A.label(lab)
                slab(False)
                e("s_add_u32 %s, %s, 1", s(sCnt), s(sCnt))
                e("s_cmp_lt_u32 %s, %d", s(sCnt), nslab - 1)
                e("s_cbranch_scc1 %s", lab)
                continue
            per = (len(ops) + NT - 2) // (NT - 1)
            hk = hooks[i] if hooks else [{}] * NT
            if fills:
                gs = fills(i)
                ngap = (NT - 1) * nm
                hk = [{} for _ in range(NT)]
                for k, g in enumerate(gs):
                    pos = min(ngap - 1, k * ngap // max(1, len(gs)))
                    hk[pos // nm].setdefault(pos % nm, []).append(lambda g=g: A.lines.extend(g))
            for t in range(NT - 1):
                step(mfmas(t & 1, i == 0 and t == 0), reads((t + 1) & 1, t + 1), pre=merge(spread(ops[t * per:(t + 1) * per]), hk[t]))
            if i == nslab - 1:
                if last_bar:
                    step(mfmas(1), [], pre={bar_gap: [bar]}, barg=bar_gap)
                else:
                    step(mfmas(1), [])
            else:
                vm, ops = unroll[i + 1]
                if callable(vm):
                    vm = vm()

                def ubar(vm=vm):
                    e("s_waitcnt lgkmcnt(0)%s", "" if vm is None else " vmcnt(%d)" % vm)
                    e("s_barrier")

                def adv(i=i):
                    if advf:
                        return advf(i)
                    nb = (buf0 // SLAB + i + 1) % 3
                    for r_ in areg:
                        e("v_add_u32 %s, %d, %s", v(r_), (SLAB if nb else -2 * SLAB) & 0xffffffff, v(r_))
                step(mfmas(1), reads(0, 0), first_gap=bar_gap + (1 if bar_gap else 0),
                     pre=merge({0: [adv]}, {bar_gap: [ubar]}, hk[NT - 1]), barg=bar_gap)
        stamp("c_le")
        return
    if peel:
        slab(False, True)
        e("s_mov_b32 %s, 1", s(sCnt))
    lab = A.newlabel("L_gemm")
    A.label(lab)
    slab(False)
    e("s_add_u32 %s, %s, 1", s(sCnt), s(sCnt))
    e("s_cmp_lt_u32 %s, %d", s(sCnt), nslab - 1)
    e("s_cbranch_scc1 %s", lab)
    slab(True)
    stamp("c_le")


vWD = [1, 2, 3, 4, 14]


def p3c_setup():
    p3_map()
    wd_bases(sW)
    e("s_lshl_b32 %s, %s, 6", s(sOo), s(sG3))
    e("s_mul_i32 %s, %s, %d", s(sHo), s(sP), 2 * 48 * 2048)
    e("s_lshl_b32 %s, %s, 11", s(sTmp), s(sW))
    e("s_add_u32 %s, %s, %s", s(sHo), s(sHo), s(sTmp))
    e("s_and_b32 %s, %s, 1", s(sTmp), s(sW))
    e("s_lshl_b32 %s, %s, 10", s(sTmp), s(sTmp))
    e("s_lshl_b32 %s, %s, 1", s(sTmp2), s(sP))
    e("s_add_u32 %s, %s, %s", s(sTmp), s(sTmp), s(sTmp2))
    e("s_lshr_b32 %s, %s, 1", s(sTmp2), s(sW))
    e("s_add_u32 %s, %s, %s", s(sTmp), s(sTmp), s(sTmp2))
    e("s_mul_i32 %s, %s, 1280", s(sTmp), s(sTmp))
    e("s_add_u32 %s, %s, %s", s(sOo), s(sOo), s(sTmp))
    e("s_add_u32 %s, %s, %s", s(sOc), s(sOc), s(sTmp))


def fh_addr():
    e("s_lshl_b32 %s, %s, 1", s(sTmp), s(sP))
    e("s_lshr_b32 %s, %s, 1", s(sTmp2), s(sW))
    e("s_add_u32 %s, %s, %s", s(sTmp), s(sTmp), s(sTmp2))
    e("s_mul_i32 %s, %s, 12", s(sTmp), s(sTmp))
    e("v_min_u32 v5, 11, v0")
    e("v_add_u32 v5, %s, v5", s(sTmp))
    e("v_lshlrev_b32 v3, 7, v5")


sHr = [50, 51, 52, 53]
def hreg(i, rho): return 8 + (i % 4) * 16 + rho * 4
def wreg(i, ct): return 72 + (i % 4) * 20 + ct * 4
WPRE = [(5, 1), (5, 2), (5, 3), (5, 4), (6, 0), (6, 1), (6, 2), (6, 3)]


def p3_pre():
    vL = 1
    e("v_lshlrev_b32 %s, 4, v0", v(vL))
    for rho in range(4):
        e("s_add_u32 %s, %s, %d", s(sTmp), s(sW), rho)
        e("s_bfe_u32 %s, %s, 0x10001", s(sTmp2), s(sTmp))
        e("s_mul_i32 %s, %s, %d", s(sTmp2), s(sTmp2), 48 * 2048)
        e("s_and_b32 %s, %s, 1", s(sTmp), s(sTmp))
        e("s_lshl_b32 %s, %s, 10", s(sTmp), s(sTmp))
        e("s_add_u32 %s, %s, %s", s(sTmp), s(sTmp), s(sTmp2))
        e("s_add_u32 %s, %s, %s", s(sTmp), s(sTmp), s(sHo))
        e("s_add_u32 %s, %s, %d", s(sHr[rho]), s(sTmp), WS_H)

    rot3()


def hload_(i):
    item4(i, sRZ)
    e("s_lshl_b32 %s, %s, 1", s(sRZ), s(sRZ))
    for rho in range(4):
        e("s_add_u32 %s, %s, %s", s(sTmp), s(sHr[rho]), s(sRZ))
        e("buffer_load_dwordx4 %s, v1, %s, %s offen sc1", v(hreg(i, rho), 4), s(sWS, 4), s(sTmp))


def p3c():
    vL, vO, vPH, vWJ = 1, 2, 3, 4
    RS, XR, WJ, ACC = 8, 8, 152, 176
    NI = 12
    q = VQ()
    def wload(i, ct, head=None):
        if head if head is not None else ct == 0:
            item4(i, sI4)
            e("s_add_u32 %s, %s, %s", s(sTmp2), s(sI4), s(sWa))
        if ct < 4:
            e("s_add_u32 %s, %s, %d", s(sTmp), s(sTmp2), WOFF[ct][1])
        else:
            e("s_add_u32 %s, %s, %s", s(sTmp), s(sI4), s(sWc))
        e("buffer_load_dwordx4 %s, %s, %s, %s offen sc1", v(wreg(i, ct), 4), v(vL), s(sWS, 4), s(sTmp))
        q.issue("i%d" % i)

    def hload(i):
        hload_(i)
        q.issue("i%d" % i, 4)

    def wj(i, ct):
        e("ds_read_b128 %s, %s offset:%d", v(WJ + 4 * ct, 4), v(vWJ), i * 5120 + ct * 1024)
    stamp("p3_in")
    if opt("cpr", 0) or opt("p1p", 0):
        e("s_setprio %d", opt("cpr", 0))
    if not XQ:
        e("v_and_b32 v5, 15, v0")
        e("v_mul_u32_u24 v5, 81920, v5")
        e("v_lshrrev_b32 v6, 4, v0")
        e("v_lshl_add_u32 %s, v6, 3, v5", v(vO))
    fh_addr()
    e("s_mul_i32 %s, %s, %d", s(sTmp), s(sW), CPS)
    e("s_add_u32 %s, %s, %d", s(sTmp), s(sTmp), CP0)
    e("v_add_u32 %s, %s, %s", v(vWJ), s(sTmp), v(vL))
    lab = A.newlabel("L_nofh")
    e("s_cmp_ge_u32 s2, 192")
    e("s_cbranch_scc1 %s", lab)
    e("v_mov_b32 v7, %d", LGO)
    e("v_mov_b32 v172, 1")
    e("s_waitcnt vmcnt(0)")
    flag_store(sFlag, 5, 6)
    e("s_mov_b64 exec, 1")
    e("ds_add_u32 v7, v172 offset:4")
    e("s_mov_b64 exec, -1")
    if EFH:
        poll_issue(7, 1, vPH, WS_FH)
        e("s_waitcnt vmcnt(0)")
    A.label(lab)
    stamp("p3_fl")
    if not EFH:
        poll_issue(7, 1, vPH, WS_FH)
    e("s_lshl_b32 %s, %s, 2", s(sTmp), s(sW))
    e("s_add_u32 %s, %s, %d", s(sTmp), s(sTmp), LGO + 16)
    e("v_mov_b32 v5, %s", s(sTmp))
    late, join = A.newlabel("L_hlate"), A.newlabel("L_hjoin")
    if not EFH:
        e("s_waitcnt vmcnt(0)")
    early = A.newlabel("L_hearly")
    if EH:
        e("s_cmp_eq_u32 %s, 2", s(sNU))
        e("s_cbranch_scc1 %s", early)
    e("v_cmp_ne_u32 vcc, %s, v7", s(sTAG))
    e("s_cbranch_vccnz %s", late)
    for i in range(EH):
        hload(i)
    A.label(early)
    e("s_mov_b32 %s, 1", s(sNU))
    for i in range(EH, 4):
        hload(i)
    for i in range(4, 8):
        for ct in range(5):
            if not P3O:
                wload(i, ct)
    qe = VQ()
    qe.q = list(q.q)
    qd = VQ()
    qd.q = list(q.q)
    e("s_branch %s", join)
    A.label(late)
    e("s_mov_b32 %s, 0", s(sNU))
    for i in range(4, 8):
        for ct in range(5):
            wload(i, ct)
    poll_check(7, 1, vPH, WS_FH)
    stamp("hp")
    q.drain()
    for i in range(4):
        hload(i)
    A.label(join)
    stamp("p3_fh")

    def staged(br):
        lab, skip = A.newlabel("L_wst"), A.newlabel("L_wsk")
        if br:
            e("s_cmp_ge_u32 s2, 192")
            e("%s %s", br, skip)
        A.label(lab)
        e("ds_read_b32 v6, v5")
        e("s_waitcnt lgkmcnt(0)")
        e("v_cmp_eq_u32 vcc, 0, v6")
        e("s_cbranch_vccnz %s", lab)
        A.label(skip)
    staged("s_cbranch_scc1" if EST else None)
    for ct in range(5):
        wj(0, ct)
    OFF = [(sOo, 0), (sOo, 32), (sOo, 640), (sOo, 672), (sOc, 0)]
    vXC, vD, vD1, vDC = 172, 173, 174, 175

    def xq_addr():
        e("v_lshrrev_b32 v6, 2, v0")
        e("v_mul_u32_u24 v6, 81920, v6")
        e("v_lshrrev_b32 v7, 4, v0")
        e("v_xor_b32 v7, v7, v0")
        e("v_and_b32 v7, 3, v7")
        e("v_lshl_add_u32 %s, v7, 4, v6", v(vO))
        e("v_bfe_u32 v6, v0, 1, 4")
        e("v_mul_u32_u24 v6, 81920, v6")
        e("v_and_b32 v7, 1, v0")
        e("v_lshl_add_u32 %s, v7, 4, v6", v(vXC))
        e("s_mul_i32 %s, %s, %d", s(sTB), s(sW), CPS)
        e("s_add_u32 %s, %s, %d", s(sTB), s(sTB), CP0 + 15360)
        e("v_and_b32 v6, 15, v0")
        e("v_lshrrev_b32 v7, 4, v0")
        e("v_lshlrev_b32 %s, 5, v6", v(vDC))
        e("v_lshl_add_u32 %s, v7, 3, %s", v(vDC), v(vDC))
        e("v_add_u32 %s, %s, %s", v(vDC), s(sTB), v(vDC))
        e("v_lshlrev_b32 v6, 6, v6")
        e("v_and_b32 v7, 1, v7")
        e("v_lshl_add_u32 v6, v7, 3, v6")
        e("v_lshrrev_b32 v7, 5, v0")
        e("v_bfe_u32 %s, v0, 2, 2", v(vD))
        e("v_xor_b32 v7, v7, %s", v(vD))
        e("v_lshl_add_u32 v6, v7, 4, v6")
        e("v_add_u32 %s, %s, v6", v(vD), s(sTB))
        e("v_xor_b32 %s, 32, %s", v(vD1), v(vD))

    LP = 48
    zsrc = [LP, LP + 16, LP + 8, LP + 24, LP + 32]

    def zreads():
        for c3 in range(3):
            for lw in range(4):
                e("ds_read_b128 %s, v40 offset:%d", v(LP + (c3 * 4 + lw) * 4, 4), ZU0 + lw * ZUS + c3 * 4096)

    def zcombine():
        for c3 in range(3):
            b = LP + c3 * 16
            for k in (0, 2):
                e("v_pk_add_f32 %s, %s, %s", v(b + k, 2), v(b + k, 2), v(b + 8 + k, 2))
                e("v_pk_add_f32 %s, %s, %s", v(b + 4 + k, 2), v(b + 4 + k, 2), v(b + 12 + k, 2))
            for k in (0, 2):
                if c3 < 2:
                    e("v_pk_add_f32 %s, %s, %s neg_lo:[0,1] neg_hi:[0,1]", v(b + 8 + k, 2), v(b + k, 2), v(b + 4 + k, 2))
                e("v_pk_add_f32 %s, %s, %s", v(b + k, 2), v(b + k, 2), v(b + 4 + k, 2))

    def dl(ct): return ((vD, vD1)[ct & 1], (ct >> 1) * 1024) if ct < 4 else (vDC, 2048)

    def x_dma(k):
        e("s_add_u32 m0, %s, %d", s(sTB), k * 1024)
        if k < 2:
            e("buffer_load_dwordx4 %s, %s, %s offen offset:%d lds", v(vO), s(sX, 4), s(sOo), 0) if k == 0 else None
            if k == 1:
                e("s_add_u32 %s, %s, 640", s(sTmp), s(sOo))
                e("buffer_load_dwordx4 %s, %s, %s offen lds", v(vO), s(sX, 4), s(sTmp))
        else:
            e("s_mov_b32 exec_hi, 0")
            e("buffer_load_dwordx4 %s, %s, %s offen lds", v(vXC), s(sX, 4), s(sOc))
            e("s_mov_b32 exec_hi, -1")
        q.issue("x")

    def acc(ct, rt): return ACC + (ct * 4 + rt) * 4
    for i in range(NI):
        rs = RS + (i % 4) * 36
        n0 = len(q.q)
        if i < (8 if P3O else 4):
            la, lb = A.newlabel("L_w3"), A.newlabel("L_w3")
            e("s_cmp_eq_u32 %s, 0", s(sNU))
            e("s_cbranch_scc1 %s", la)
            if P3O and WP:
                lc = A.newlabel("L_w3")
                e("s_cmp_ge_u32 s2, 192")
                e("s_cbranch_scc1 %s", lc)
                qe.wait("i%d" % i)
                e("s_branch %s", lb)
                A.label(lc)
                qd.wait("i%d" % i)
            elif P3O:
                qe.wait("i%d" % i)
            else:
                e("s_waitcnt vmcnt(32)")
            e("s_branch %s", lb)
            A.label(la)
            q.wait("i%d" % i)
            A.label(lb)
        else:
            q.wait("i%d" % i)
        stamp("i%d" % i)
        n0 = len(q.q)
        if XQ and i == 10:
            for ct in range(5):
                e("ds_read_b64 %s, %s offset:%d", v(XR + 2 * ct, 2), v(dl(ct)[0]), dl(ct)[1])
        if XQ and i == 11:
            e("s_waitcnt lgkmcnt(0)")
        if ZE and i == 11:
            lab = A.newlabel("L_zw")
            e("v_mov_b32 v7, %d", LGO)
            e("s_lshl_b32 %s, %s, 10", s(sTmp), s(sW))
            e("v_add_u32 v40, %s, %s", s(sTmp), v(vL))
            A.label(lab)
            e("ds_read_b32 v6, v7 offset:36")
            e("s_waitcnt lgkmcnt(0)")
            e("v_cmp_ne_u32 vcc, 4, v6")
            e("s_cbranch_vccnz %s", lab)
            zreads()
        if i == 2 and EST:
            staged("s_cbranch_scc0")
        for ct in range(5):
            if i < 4:
                e("s_waitcnt lgkmcnt(%d)", 4 if i < 3 else 4 - ct)
            for rt in range(4):
                mm16(acc(ct, rt), WJ + 4 * ct if i < 4 else wreg(i, ct), hreg(i, rt), i == 0)
            if i < 3:
                wj(i + 1, ct)
            if 4 <= i < 8:
                wload(i + 4, ct)
            if i == NI - 1 and FIL and ct >= 2:
                for rho in range(1, 4):
                    e("ds_write_b128 %s, %s offset:%d", v(vWJ), v(acc(ct - 2, rho), 4), (rho - 1) * 5120 + (ct - 2) * 1024)
            if XQ and i == 3 and ct == 0:
                xq_addr()
            if XQ and i == 4 and ct >= 2:
                x_dma(ct - 2)
            if i == 9 and not XQ:
                e("buffer_load_dwordx2 %s, %s, %s, %s offen offset:%d", v(XR + 2 * ct, 2), v(vO), s(sX, 4), s(OFF[ct][0]), OFF[ct][1])
                q.issue("x")
        if P3O and i < 4:
            lab = A.newlabel("L_w4")
            e("s_cmp_eq_u32 %s, 0", s(sNU))
            e("s_cbranch_scc1 %s", lab)
            keep = list(q.q)
            own = [ct for ct in range(5) if (i + 4, ct) not in WPRE]
            order = own + [ct for ct in range(5) if ct not in own]
            for n, ct in enumerate(order):
                if WP and n == len(own):
                    e("s_cmp_ge_u32 s2, 192")
                    e("s_cbranch_scc1 %s", lab)
                wload(i + 4, ct, n == 0)
            q.q = keep
            qe.issue("i%d" % (i + 4), 5)
            qd.issue("i%d" % (i + 4), len(own))
            A.label(lab)
        if i + 4 < NI:
            hload(i + 4)
        qe.q += q.q[n0:]
        qd.q += q.q[n0:]
    for rho in range(1, 4):
        e("s_sub_u32 %s, %s, %d", s(sTmp), s(sW), rho)
        e("s_and_b32 %s, %s, 3", s(sTmp), s(sTmp))
        e("s_mul_i32 %s, %s, %d", s(sTmp), s(sTmp), CPS)
        e("s_add_u32 %s, %s, %d", s(sTmp), s(sTmp), CP0 + (rho - 1) * 5120)
        e("v_add_u32 %s, %s, %s", v(40 + rho), s(sTmp), v(vL))
    for ct in range(3 if FIL else 0, 5):
        for rho in range(1, 4):
            e("ds_write_b128 %s, %s offset:%d", v(vWJ), v(acc(ct, rho), 4), (rho - 1) * 5120 + ct * 1024)
    if ZE:
        e("s_waitcnt lgkmcnt(15)")
        zcombine()
        for ct in range(5):
            for k in (0, 2):
                e("v_pk_add_f32 %s, %s, %s", v(acc(ct, 0) + k, 2), v(acc(ct, 0) + k, 2), v(zsrc[ct] + k, 2))
    else:
        e("s_lshl_b32 %s, %s, 10", s(sTmp), s(sW))
        e("v_add_u32 v40, %s, %s", s(sTmp), v(vL))
    e("s_waitcnt vmcnt(0)")
    for ct in range(5):
        x0, b = XR + 2 * ct, 20 + 4 * ct
        e("v_lshlrev_b32 %s, 16, %s", v(b), v(x0))
        e("v_and_b32 %s, 0xffff0000, %s", v(b + 1), v(x0))
        e("v_lshlrev_b32 %s, 16, %s", v(b + 2), v(x0 + 1))
        e("v_and_b32 %s, 0xffff0000, %s", v(b + 3), v(x0 + 1))
        for k in (0, 2):
            e("v_pk_add_f32 %s, %s, %s", v(acc(ct, 0) + k, 2), v(acc(ct, 0) + k, 2), v(b + k, 2))
    e("s_waitcnt lgkmcnt(0)")
    stamp("p3_end")
    e("s_barrier")
    stamp("p3_bar")
    if not ZE:
        zreads()
    for ct in range(5):
        for k in range(1, 4):
            e("ds_read_b128 %s, %s offset:%d", v(acc(ct, k), 4), v(40 + k), ct * 1024)
    if not ZE:
        e("s_waitcnt lgkmcnt(15)")
        zcombine()
    extra = 0
    for ct in range(5):
        b = acc(ct, 0)
        e("s_waitcnt lgkmcnt(%d)", 12 - 3 * ct + extra)
        for k in (0, 2):
            if not ZE:
                e("v_pk_add_f32 %s, %s, %s", v(b + k, 2), v(b + k, 2), v(zsrc[ct] + k, 2))
            e("v_pk_add_f32 %s, %s, %s", v(b + 4 + k, 2), v(b + 4 + k, 2), v(b + 8 + k, 2))
        for k in (0, 2):
            e("v_pk_add_f32 %s, %s, %s", v(b + k, 2), v(b + k, 2), v(b + 12 + k, 2))
        for k in (0, 2):
            e("v_pk_add_f32 %s, %s, %s", v(b + k, 2), v(b + k, 2), v(b + 4 + k, 2))
        e("v_cvt_pk_bf16_f32 %s, %s, %s", v(b + 8), v(b), v(b + 1))
        e("v_cvt_pk_bf16_f32 %s, %s, %s", v(b + 9), v(b + 2), v(b + 3))
        if not XQ:
            e("buffer_store_dwordx2 %s, %s, %s, %s offen offset:%d%s", v(b + 8, 2), v(vO), s(sOUT, 4), s(OFF[ct][0]), OFF[ct][1], OUTF)
            continue
        e("ds_write_b64 %s, %s offset:%d", v(dl(ct)[0]), v(b + 8, 2), dl(ct)[1] + 2560)
        extra += 1
        if ct in (1, 3, 4):
            e("ds_read_b128 %s, %s offset:%d", v(8 + 4 * (ct >> 1), 4), v(vWJ), 15360 + 2560 + (ct >> 1) * 1024)
            extra += 1
        if ct == 3:
            e("s_waitcnt lgkmcnt(3)")
            e("buffer_store_dwordx4 v[8:11], %s, %s, %s offen%s", v(vO), s(sOUT, 4), s(sOo), OUTF)
        if ct == 4:
            e("s_waitcnt lgkmcnt(2)")
            e("buffer_store_dwordx4 v[12:15], %s, %s, %s offen offset:640%s", v(vO), s(sOUT, 4), s(sOo), OUTF)
            e("s_waitcnt lgkmcnt(0)")
            e("s_mov_b32 exec_hi, 0")
            e("buffer_store_dwordx4 v[16:19], %s, %s, %s offen%s", v(vXC), s(sOUT, 4), s(sOc), OUTF)
            e("s_mov_b32 exec_hi, -1")
    lab = A.newlabel("L_noep")
    e("s_lshl_b32 %s, s2, 3", s(sTmp))
    e("s_add_u32 %s, %s, %s", s(sTmp), s(sTmp), s(sW))
    e("s_cmp_eq_u32 %s, 0", s(sTmp))
    e("s_cbranch_scc0 %s", lab)
    e("s_mov_b32 %s, 0x%x", s(sTmp), WS_EP)
    flag_store(sTmp, 5, 6)
    A.label(lab)


def pf3(part):
    e("s_lshr_b32 %s, s2, 3", s(sCnt))
    e("s_lshl_b32 %s, %s, 2", s(sCnt), s(sCnt))
    e("s_add_u32 %s, %s, %s", s(sCnt), s(sCnt), s(sLW))
    ntau = 40 if MAP8 else 20
    n = 0
    if part == 0:
        per = (ntau * 256 + 95) // 96
        for k in range((per + 63) // 64):
            e("s_mul_i32 %s, %s, %d", s(sTmp), s(sCnt), per)
            e("v_min_u32 v12, %d, v0", min(63, per - 64 * k - 1))
            e("v_add_u32 v12, %s, v12", s(sTmp))
            if k:
                e("v_add_u32 v12, %d, v12", 64 * k)
            e("v_lshrrev_b32 v13, 8, v12")
            e("v_and_b32 v12, 255, v12")
            if not MAP8:
                e("s_and_b32 %s, s2, 1", s(sTmp))
                e("s_lshl_b32 %s, %s, 3", s(sTmp2), s(sTmp))
                e("s_lshl_b32 %s, %s, 1", s(sTmp), s(sTmp))
                e("s_add_u32 %s, %s, 16", s(sTmp), s(sTmp))
                e("v_cmp_gt_u32 vcc, 16, v13")
                e("v_and_b32 v14, 7, v13")
                e("v_add_u32 v14, %s, v14", s(sTmp2))
                e("v_bfe_u32 v17, v13, 3, 1")
                e("v_mad_u32_u24 v14, v17, 20, v14")
                e("v_and_b32 v16, 1, v13")
                e("v_add_u32 v16, %s, v16", s(sTmp))
                e("v_bfe_u32 v17, v13, 1, 1")
                e("v_mad_u32_u24 v16, v17, 20, v16")
                e("v_cndmask_b32 v13, v16, v14, vcc")
            e("v_mul_u32_u24 v13, 49152, v13")
            e("v_lshl_add_u32 v60, v12, 7, v13")
            n += 1
    else:
        per = (4032 if MAP8 else 2016) // 96
        e("s_mul_i32 %s, %s, %d", s(sTmp), s(sCnt), per * 128)
        if not MAP8:
            e("s_and_b32 %s, s2, 1", s(sTmp2))
            e("s_mul_i32 %s, %s, %d", s(sTmp2), s(sTmp2), 4 * 63 * 1024)
            e("s_add_u32 %s, %s, %s", s(sTmp), s(sTmp), s(sTmp2))
        e("s_add_u32 %s, %s, %d", s(sTmp), s(sTmp), TB.CI_OFF)
        e("v_min_u32 v12, %d, v0", per - 1)
        e("v_lshlrev_b32 v12, 7, v12")
        e("v_add_u32 v61, %s, v12", s(sTmp))
        n = 1
    assert n == 1


def pf3_go(q, m):
    if m & 1:
        e("buffer_load_dword v63, v61, %s, 0 offen", s(sTAB, 4))
        q.issue("pf")
    if m & 2:
        e("s_mov_b32 %s, 0x%x", s(sTmp), WS_WD + 16384)
        e("buffer_load_dword v62, v60, %s, %s offen sc1", s(sWS, 4), s(sTmp))
        q.issue("pf")


def code_touch():
    lab = A.newlabel("L_ct")
    e("s_getpc_b64 s[4:5]")
    A.label(lab)
    e("s_sub_u32 s4, s4, %s - %s", lab, NAME + "_kernel")
    e("s_subb_u32 s5, s5, 0")
    e("s_mov_b32 %s, s4", s(sG))
    e("s_and_b32 %s, s5, 0xffff", s(sG + 1))
    e("s_mov_b32 %s, L_code_end - %s", s(sG + 2), NAME + "_kernel")
    e("s_mov_b32 %s, 0x00020000", s(sG + 3))
    if CT == 3:
        e("s_lshr_b32 %s, s2, 3", s(sTmp))
    else:
        e("s_bfe_u32 %s, s2, 0x30003", s(sTmp))
        e("s_lshl_b32 %s, %s, 2", s(sTmp), s(sTmp))
        e("s_add_u32 %s, %s, %s", s(sTmp), s(sTmp), s(sW))
    e("s_lshl_b32 %s, %s, 11", s(sTmp), s(sTmp))
    e("v_and_b32 v5, 15, v0")
    e("v_lshlrev_b32 v5, 7, v5")
    e("buffer_load_dword v15, v5, %s, %s offen", s(sG, 4), s(sTmp))


def warm_touch():
    e("s_lshl_b32 %s, s2, 1", s(sTmp))
    e("s_and_b32 %s, %s, 1", s(sTmp2), s(sLW))
    e("s_add_u32 %s, %s, %s", s(sTmp), s(sTmp), s(sTmp2))
    e("s_mul_i32 %s, %s, %d", s(sTmp), s(sTmp), 27 * 128)
    e("v_min_u32 v12, 26, v0")
    e("v_lshlrev_b32 v12, 7, v12")
    lab, lab2 = A.newlabel("L_wt"), A.newlabel("L_wt")
    e("s_cmp_ge_u32 %s, 2", s(sLW))
    e("s_cbranch_scc1 %s", lab)
    e("buffer_load_dword v250, v12, %s, %s offen", s(sWR, 4), s(sTmp))
    e("s_branch %s", lab2)
    A.label(lab)
    e("buffer_load_dword v250, v12, %s, %s offen", s(sWI, 4), s(sTmp))
    A.label(lab2)
    e("s_lshl_b32 %s, s2, 2", s(sTmp))
    e("s_add_u32 %s, %s, %s", s(sTmp), s(sTmp), s(sLW))
    e("s_mul_i32 %s, %s, %d", s(sTmp), s(sTmp), 6 * 128)
    e("s_add_u32 %s, %s, %d", s(sTmp), s(sTmp), TB.CI_OFF)
    e("v_min_u32 v12, 5, v0")
    e("v_lshlrev_b32 v12, 7, v12")
    e("buffer_load_dword v251, v12, %s, %s offen", s(sTAB, 4), s(sTmp))


def p1_ffn():
    vXA, vWA, FR, ACC = 8, 10, 16, 112
    if opt("p1p", 0) & 1:
        e("s_setprio 1")

    def tab_touch():
        tab_srd()
        e("s_lshr_b32 %s, s2, 3", s(sJB))
        e("s_lshl_b32 %s, %s, 2", s(sJB), s(sJB))
        e("s_add_u32 %s, %s, %s", s(sJB), s(sJB), s(sW))
        e("s_mul_i32 %s, %s, 9", s(sTmp), s(sJB))
        e("v_min_u32 v5, 8, v0")
        e("v_add_u32 v5, %s, v5", s(sTmp))
        e("v_min_u32 v5, 799, v5")
        e("v_lshlrev_b32 v5, 7, v5")
        e("s_bfe_u32 %s, s2, 0x20001", s(sTmp))
        e("s_mul_i32 %s, %s, 102400", s(sTmp), s(sTmp))
        e("buffer_load_dword v1, v5, %s, %s offen", s(sTAB, 4), s(sTmp))
    if XT & 8:
        tab_touch()
    stats_addr(16)
    e("s_and_b32 %s, %s, 1", s(sWM), s(sW))
    e("s_lshr_b32 %s, %s, 1", s(sWN), s(sW))
    karg_wait(["X"], ["WS", "OUT"])
    lab = A.newlabel("L_nost")
    e("s_cmp_ge_u32 %s, 8", s(sCG))
    e("s_cbranch_scc1 %s", lab)
    stats_issue(16)
    A.label(lab)
    e("s_lshl_b32 %s, %s, 3", s(sFlag), s(sRB))
    e("s_add_u32 %s, %s, %s", s(sFlag), s(sFlag), s(sCG))
    e("s_lshl_b32 %s, %s, 7", s(sFlag), s(sFlag))
    e("s_add_u32 %s, %s, 0x%x", s(sFlag), s(sFlag), WS_FS)
    p3c_setup()
    e("v_and_b32 v5, 15, v0")
    e("v_lshlrev_b32 v5, 7, v5")
    e("s_lshl_b32 %s, %s, 13", s(sTmp), s(sWM))
    e("v_add_u32 v5, %s, v5", s(sTmp))
    e("v_lshrrev_b32 v6, 4, v0")
    e("v_bfe_u32 v7, v0, 1, 3")
    e("v_xor_b32 v6, v6, v7")
    e("v_lshl_add_u32 %s, v6, 4, v5", v(vXA))
    e("v_xor_b32 %s, 64, %s", v(vXA + 1), v(vXA))
    e("v_lshrrev_b32 v5, 4, v0")
    e("v_bfe_u32 v6, v0, 2, 2")
    e("v_lshl_add_u32 v7, v5, 3, v6")
    e("v_lshlrev_b32 v7, 8, v7")
    e("v_and_b32 v5, 1, v5")
    e("v_lshl_add_u32 v5, v6, 1, v5")
    e("s_lshl_b32 %s, %s, 2", s(sTmp), s(sWN))
    e("v_xor_b32 v5, %s, v5", s(sTmp))
    e("v_lshl_add_u32 v7, v5, 5, v7")
    e("v_and_b32 v6, 3, v0")
    e("v_lshl_add_u32 %s, v6, 3, v7", v(vWA))
    for ft in range(1, 4):
        e("v_xor_b32 %s, %d, %s", v(vWA + ft), ft << 5, v(vWA))
    nt = 0
    if XT & 1:
        e("s_lshr_b32 %s, s2, 6", s(sTmp))
        e("s_lshl_b32 %s, %s, 2", s(sTmp), s(sTmp))
        e("s_add_u32 %s, %s, %s", s(sTmp), s(sTmp), s(sW))
        e("s_mul_i32 %s, %s, 107", s(sTmp), s(sTmp))
        e("s_mul_i32 %s, %s, 5120", s(sTmp2), s(sRB))
        for k in range(2):
            e("v_min_u32 v5, %d, v0", 63 if k == 0 else 42)
            e("v_add_u32 v5, %s, v5", s(sTmp))
            if k:
                e("v_add_u32 v5, 64, v5")
            e("v_min_u32 v5, 0x4ff, v5")
            e("v_mul_u32_u24 v6, 6554, v5")
            e("v_lshrrev_b32 v6, 16, v6")
            e("v_mul_u32_u24 v7, 10, v6")
            e("v_sub_u32 v5, v5, v7")
            e("v_lshlrev_b32 v5, 7, v5")
            e("v_lshrrev_b32 v7, 2, v6")
            e("v_mul_u32_u24 v7, 81920, v7")
            e("v_add_u32 v5, v5, v7")
            e("v_and_b32 v6, 3, v6")
            e("v_mul_u32_u24 v6, 1280, v6")
            e("v_add_u32 v5, v5, v6")
            e("buffer_load_dword v1, v5, %s, %s offen", s(sX, 4), s(sTmp2))
        nt += 2
    if XT & 2 and not XT & 8:
        tab_touch()
        nt += 1
    if XT & 4:
        e("s_mul_i32 %s, %s, %d", s(sTmp), s(sJB), 21 * 128)
        e("s_and_b32 %s, s2, 1", s(sTmp2))
        e("s_mul_i32 %s, %s, %d", s(sTmp2), s(sTmp2), 4 * 63 * 1024)
        e("s_add_u32 %s, %s, %s", s(sTmp), s(sTmp), s(sTmp2))
        e("s_add_u32 %s, %s, %d", s(sTmp), s(sTmp), TB.CI_OFF)
        e("v_min_u32 v5, 20, v0")
        e("v_lshlrev_b32 v5, 7, v5")
        e("v_add_u32 v5, %s, v5", s(sTmp))
        e("s_and_b32 %s, %s, 63", s(sTmp), s(sJB))
        e("s_lshl_b32 %s, %s, 7", s(sTmp), s(sTmp))
        e("s_add_u32 %s, %s, %d", s(sTmp), s(sTmp), TB.F64_OFF)
        e("v_mov_b32 v6, %s", s(sTmp))
        e("v_cmp_lt_u32 vcc, 31, v0")
        e("v_cndmask_b32 v5, v5, v6, vcc")
        e("buffer_load_dword v1, v5, %s, 0 offen", s(sTAB, 4))
        nt += 1
    lab = A.newlabel("L_nost")
    e("s_cmp_ge_u32 %s, 8", s(sCG))
    e("s_cbranch_scc1 %s", lab)
    e("s_waitcnt vmcnt(%d)", nt)
    stats_compute(16)
    A.label(lab)
    k_offset(sK1)
    e("s_bfe_u32 %s, s2, 0x20004", s(sPar))
    e("s_add_u32 %s, %s, %s", s(sK1), s(sK1), s(sPar))
    if KG:
        mod10(sK1)
    e("s_mul_i32 %s, %s, 12288", s(sK1), s(sK1))
    e("s_lshl_b32 %s, %s, 2", s(sTmp), s(sCG))
    e("s_lshl_b32 %s, %s, 1", s(sTmp2), s(sWM))
    e("s_add_u32 %s, %s, %s", s(sTmp), s(sTmp), s(sTmp2))
    e("s_add_u32 %s, %s, %s", s(sTmp), s(sTmp), s(sWN))
    e("s_lshl_b32 %s, %s, 8", s(sTmp), s(sTmp))
    e("s_add_u32 %s, %s, %s", s(sK1), s(sK1), s(sTmp))
    e("s_add_u32 %s, %s, 0x%x", s(sK1), s(sK1), WS_CSP)
    e("s_bfe_u32 %s, s2, 0x30003", s(sTmp))
    e("s_cmp_ge_u32 %s, 5", s(sTmp))
    e("s_cselect_b32 %s, 100, %s", s(sPar), s(sPar))
    e("s_cmp_lg_u32 %s, 0", s(sW))
    e("s_cselect_b32 %s, 100, %s", s(sNU), s(sPar))
    for i in range(4):
        e("v_mov_b32 %s, 0x3f803f80", v(2 + i))
    e("v_and_b32 v14, 48, v0")
    stamp("c_set")

    def stat_flag():
        e("s_lshr_b32 %s, %s, 3", s(sTmp), s(sCG))
        e("s_or_b32 %s, %s, %s", s(sTmp), s(sTmp), s(sW))
        rare("s_cbranch_scc0", lambda: flag_store(sFlag, 6, 7))

    def cs_mfma(it, p):
        def body():
            la, lb = A.newlabel("L_csm"), A.newlabel("L_csm")
            e("s_cmp_eq_u32 %s, 1", s(sWM))
            e("s_cbranch_scc1 %s", la)
            for mat in range(2):
                if mat:
                    e("s_branch %s", lb)
                    A.label(la)
                for ft in range(4):
                    mm16(240 + 4 * ft, wf(p, mat, ft), 2, p == 0)
            A.label(lb)
        e("s_cmp_eq_u32 %s, %d", s(sPar), it)
        rare("s_cbranch_scc1", body)

    def cs_store(it):
        def body():
            e("s_mov_b32 exec_lo, 0x00010001")
            e("s_mov_b32 exec_hi, 0x00010001")
            for ft in range(4):
                e("buffer_store_dwordx4 %s, v14, %s, %s offen offset:%d sc1", v(240 + 4 * ft, 4), s(sWS, 4), s(sK1), ft * 64)
            e("s_mov_b64 exec, -1")
        e("s_cmp_eq_u32 %s, %d", s(sPar), it)
        rare("s_cbranch_scc1", body)

    def cs_wait(it):
        e("s_cmp_eq_u32 %s, %d", s(sPar), it)
        rare("s_cbranch_scc1", lambda: e("s_waitcnt vmcnt(0)"))

    def cs_flag(it):
        def body():
            e("s_lshl_b32 %s, s2, 7", s(sTmp))
            e("s_add_u32 %s, %s, 0x%x", s(sTmp), s(sTmp), WS_FSC)
            flag_store(sTmp, 6, 7)
        e("s_cmp_eq_u32 %s, %d", s(sNU), it)
        rare("s_cbranch_scc1", body)

    def acc(mat, ft, st): return ACC + ((mat * 4 + ft) * 4 + st) * 4
    def xf(p, st): return FR + p * 48 + st * 4
    def wf(p, mat, ft): return FR + p * 48 + 16 + (mat * 4 + ft) * 4
    keys = [("x", 0), ("w", 0, 0), ("w", 0, 0), ("x", 1), ("x", 2), ("x", 3)]
    for ft in range(4):
        for mat in range(2):
            if (mat, ft) != (0, 0):
                keys += [("w", mat, ft)] * 2

    def reads(p, t):
        out, seen = [], {}
        for k in keys:
            if k[0] == "x":
                out.append(lambda st=k[1]: e("ds_read_b128 %s, %s offset:%d", v(xf(p, st), 4), v(vXA + t), st * 2048))
            else:
                rd = seen.get(k, 0); seen[k] = rd + 1
                out.append(lambda mat=k[1], ft=k[2], rd=rd: e("ds_read_b64_tr_b16 %s, %s offset:%d", v(wf(p, mat, ft) + 2 * rd, 2), v(vWA + ft), 16384 * (1 + mat) + t * 8192 + rd * 1024))
        return out
    morder, n = [], 0
    for ft in range(4):
        for mat in range(2):
            morder += [(mat, ft, st) for st in ([0, 1, 2, 3] if n % 2 == 0 else [3, 2, 1, 0])]
            n += 1
    need = [max(i + 1 for i, k in enumerate(keys) if k == ("x", m[2]) or k == ("w", m[0], m[1])) for m in morder]

    def mfmas(p, first=False):
        return [(lambda m=m: mm16(acc(*m), wf(p, m[0], m[1]), xf(p, m[2]), first)) for m in morder]
    hooks = []
    for it in range(10):
        h0, h1 = {}, {}
        if it < 3:
            h0[31] = [lambda it=it: cs_mfma(it, 0)]
            h1[8] = [lambda it=it: cs_mfma(it, 1)]
            h1[30] = [lambda it=it: cs_store(it)]
        if it == 0:
            h1[3] = [stat_flag]
        if 2 <= it <= 4:
            h1[2] = [lambda it=it: cs_wait(it - 2)]
            h1[3] = [lambda it=it: cs_flag(it - 2)]
        hooks.append([h0, h1])
    vmw = [0] + [None] * 9
    gemm_loop(10, 2, mfmas, reads, need, [8, 9, 10, 11, 12, 13], 3, 1, unroll=[(None, [])] + [(vmw[i], []) for i in range(9)], hooks=hooks, loop_from=5 if opt("loop", 1) else None)

    if opt("fpr", 0):
        e("s_setprio %d", opt("fpr", 0))
    RM, CS = 16, 32
    e("v_and_b32 v5, 15, v0")
    e("v_lshlrev_b32 v5, 2, v5")
    e("s_lshl_b32 %s, %s, 8", s(sTmp), s(sWM))
    e("s_add_u32 %s, %s, %d", s(sTmp), s(sTmp), AUX)
    e("v_add_u32 v5, %s, v5", s(sTmp))
    if TL:
        e("s_barrier")
        stamp("c_b9")
    for st in range(4):
        e("ds_read_b32 %s, v5 offset:%d", v(RM + 4 * st), st * 64)
        e("ds_read_b32 %s, v5 offset:%d", v(RM + 4 * st + 2), 512 + st * 64)
    e("v_lshrrev_b32 v6, 4, v0")
    e("v_lshlrev_b32 v6, 4, v6")
    e("s_lshl_b32 %s, %s, 8", s(sTmp), s(sWN))
    e("s_add_u32 %s, %s, %d", s(sTmp), s(sTmp), AUX + 1024)
    e("v_add_u32 v6, %s, v6", s(sTmp))
    for ft in range(4):
        for mat in range(2):
            e("ds_read_b128 %s, v6 offset:%d", v(CS + (mat * 4 + ft) * 4, 4), mat * 512 + ft * 64)
    e("s_lshl_b32 %s, %s, 1", s(sFlag), s(sRB))
    e("s_add_u32 %s, %s, %s", s(sFlag), s(sFlag), s(sWM))
    e("s_mul_i32 %s, %s, %d", s(sTmp), s(sFlag), 2 * 48 * 2048)
    e("s_lshl_b32 s3, %s, 2", s(sCG))
    e("s_lshl_b32 %s, %s, 1", s(sCnt), s(sWN))
    e("s_add_u32 s3, s3, %s", s(sCnt))
    e("s_lshl_b32 s3, s3, 11")
    e("s_add_u32 %s, %s, s3", s(sDelta), s(sTmp))
    e("s_lshl_b32 %s, %s, 1", s(sFlag), s(sFlag))
    e("s_add_u32 %s, %s, %s", s(sFlag), s(sFlag), s(sWN))
    e("s_mul_i32 %s, %s, 12", s(sFlag), s(sFlag))
    e("s_add_u32 %s, %s, %s", s(sFlag), s(sFlag), s(sCG))
    e("s_lshl_b32 %s, %s, 7", s(sFlag), s(sFlag))
    e("s_add_u32 %s, %s, 0x%x", s(sFlag), s(sFlag), WS_FH)
    e("v_lshlrev_b32 v5, 4, v0")
    e("s_waitcnt lgkmcnt(4) vmcnt(0)")
    for st in range(4):
        e("v_mul_f32 %s, %s, %s", v(RM + 4 * st), v(RM + 4 * st), v(RM + 4 * st))
    for ph in range(2):
        if ph == 1:
            e("s_waitcnt lgkmcnt(0)")
        for st in range(4):
            rr, mm_ = RM + 4 * st, RM + 4 * st + 2
            o = 64 + ((ph * 4 + st) & 3) * 4
            for fi in range(2):
                ft = 2 * ph + fi
                g0, u0 = acc(0, ft, st), acc(1, ft, st)
                for k in (0, 2):
                    e("v_pk_fma_f32 %s, %s, %s, %s op_sel_hi:[1,0,1] neg_lo:[0,1,0] neg_hi:[0,1,0]", v(g0 + k, 2), v(CS + ft * 4 + k, 2), v(mm_, 2), v(g0 + k, 2))
                    e("v_pk_fma_f32 %s, %s, %s, %s op_sel_hi:[1,0,1] neg_lo:[0,1,0] neg_hi:[0,1,0]", v(u0 + k, 2), v(CS + 16 + ft * 4 + k, 2), v(mm_, 2), v(u0 + k, 2))
                for k in range(4):
                    e("v_max_f32 %s, 0, %s", v(g0 + k), v(g0 + k))
                for k in (0, 2):
                    e("v_pk_mul_f32 %s, %s, %s op_sel_hi:[1,0]", v(u0 + k, 2), v(u0 + k, 2), v(rr, 2))
                for k in (0, 2):
                    e("v_pk_mul_f32 %s, %s, %s", v(g0 + k, 2), v(g0 + k, 2), v(u0 + k, 2))
                for k in range(2):
                    e("v_cvt_pk_bf16_f32 %s, %s, %s", v(o + 2 * fi + k), v(g0 + 2 * k), v(g0 + 2 * k + 1))
            e("s_add_u32 %s, %s, %d", s(sTmp), s(sDelta), WS_H + (st >> 1) * 48 * 2048 + ph * 2048)
            e("buffer_store_dwordx4 %s, v5, %s, %s offen offset:%d sc1", v(o, 4), s(sWS, 4), s(sTmp), (st & 1) * 1024)
    stamp("c_ep")
    p3_pre()
    e("s_mov_b32 %s, 0", s(sNU))
    e("s_branch L_p3c")


def p1_dft():
    njb = 5
    vXA, vCA, FR, ACC, FC, CO, SI = 8, 12, 16, 80, 208, 176, 192
    if opt("p1p", 0) & 2:
        e("s_setprio 1")
    tab_srd()
    e("v_lshlrev_b32 v13, 4, v0")
    e("s_mul_i32 %s, %s, %d", s(sBoff), s(sCG), 20 * 5 * 1024)
    e("s_mul_i32 %s, %s, %d", s(sM0), s(sW), 5 * 1024)
    e("s_add_u32 %s, %s, %s", s(sBoff), s(sBoff), s(sM0))
    e("s_lshl_b32 %s, %s, 2", s(sWM), s(sM0))
    cur = [0]

    def cl(i):
        ops = []
        for tl in range(njb):
            def f(tl=tl):
                e("s_add_u32 m0, %s, %d", s(sM0 if CSTR[i] == 5120 else sWM), CBASE[i] + tl * 1024)
                e("s_add_u32 %s, %s, %d", s(sTmp), s(sBoff), i * 4 * njb * 1024 + tl * 1024)
                e("buffer_load_dwordx4 v13, %s, %s offen lds", s(sTAB, 4), s(sTmp))
            ops.append(f)
        return ops
    q = VQ()
    XC = [224, 240, 160, 208, 224]
    NC = 4 - NL

    def xc(i):
        gs = []
        for n in range(NL, 4):
            for hf in range(2):
                def f(n=n, hf=hf):
                    e("s_add_u32 %s, %s, %d", s(sTmp), s(sAoff), n * 8 * 81920 + i * 128)
                    e("buffer_load_dwordx4 %s, v14, %s, %s offen offset:%d", v(XC[i] + (n - NL) * 8 + hf * 4, 4), s(sX, 4), s(sTmp), hf * 640)
                gs.append(cap(f))
        q.issue("x%d" % i, 2 * NC)
        return gs

    def cg(i):
        q.issue("c%d" % i, njb)
        return [cap(f) for f in cl(i)]

    def foldc(i):
        for n in range(NL, 4):
            fold_group(XC[i] + (n - NL) * 8, 64, 72, (1, 2)[n & 1], (1 - (i & 1)) * 5120 + n * 1024)
    if XT & 16:
        e("s_bfe_u32 %s, s2, 0x30003", s(sTmp))
        e("s_lshl_b32 %s, %s, 2", s(sTmp), s(sTmp))
        e("s_add_u32 %s, %s, %s", s(sTmp), s(sTmp), s(sW))
        e("s_mul_i32 %s, %s, 2560", s(sTmp), s(sTmp))
        e("s_mul_i32 %s, %s, 102400", s(sTmp2), s(sCG))
        e("s_add_u32 %s, %s, %s", s(sTmp), s(sTmp), s(sTmp2))
        e("s_add_u32 %s, %s, 20480", s(sTmp), s(sTmp))
        e("v_min_u32 v5, 19, v0")
        e("v_lshlrev_b32 v5, 7, v5")
        e("buffer_load_dword v15, v5, %s, %s offen", s(sTAB, 4), s(sTmp))
        q.issue("t")
    if XO == 1:
        weave([], cg(0))
    fold_addr(14, 1, 3)
    x_src_scalar()
    stamp("dc_pre")
    e("s_waitcnt lgkmcnt(0)")
    stamp("dc_k")
    srd(A, *SRDS["X"])
    weave([], xc(0) + (cg(0) if XO == 0 else []) + xc(1))
    stamp("dc_i0")
    e("s_mul_i32 %s, %s, %d", s(sTmp), s(sW), CPS)
    e("s_add_u32 %s, %s, %d", s(sTmp), s(sTmp), XB + 5120)
    e("v_and_b32 v5, 31, v0")
    e("v_lshlrev_b32 v5, 7, v5")
    e("v_add_u32 v5, %s, v5", s(sTmp))
    e("v_lshrrev_b32 v6, 5, v0")
    e("v_bfe_u32 v7, v0, 1, 3")
    e("v_xor_b32 v6, v6, v7")
    e("v_lshl_add_u32 %s, v6, 4, v5", v(vXA))
    for t in range(1, 4):
        e("v_xor_b32 %s, %d, %s", v(vXA + t), t << 5, v(vXA))
    e("v_mov_b32 %s, v13", v(vCA))
    e("v_add_u32 v3, %d, v13", CP0 + 3 * CPS)
    karg_wait([], ["WS", "OUT"])
    p3c_setup()
    e("s_cmp_ge_u32 %s, 2", s(sCG))
    e("s_cselect_b32 %s, -1.0, 1.0", s(sSgn))
    e("v_mov_b32 v72, 0xffff0000")
    e("s_lshl_b32 %s, %s, 2", s(sS2), s(sRB))
    e("s_add_u32 %s, %s, %s", s(sS2), s(sS2), s(sW))
    e("v_and_b32 v5, 31, v0")
    e("v_lshrrev_b32 v6, 5, v0")
    e("v_lshlrev_b32 v6, 8, v6")
    e("v_add_u32 v6, %s, v6", s(sS2))
    e("v_mul_u32_u24 v6, v6, v5")

    def consts():
        for kap in range(2):
            for i in range(8):
                s0 = 16 * kap + 8 * (i >> 2) + (i & 3)
                e("v_mul_u32_u24 v7, %d, v5", 64 * s0)
                e("v_add_u32 v7, v7, v6")
                e("v_and_b32 v7, 0x7ff, v7")
                e("v_cvt_f32_u32 v7, v7")
                e("v_mul_f32 v7, 0x3a000000, v7")
                e("v_cos_f32 %s, v7", v(CO + 8 * kap + i))
                e("v_sin_f32 %s, v7", v(SI + 8 * kap + i))
    if CX == 0:
        weave(cap(consts), cg(1) + xc(2) + cg(2) + xc(3) + cg(3), skip=10)
        q.wait("x0")
        weave(cap(lambda: foldc(0)), cg(4))
        weave([], xc(4))
        late = {}
    elif CX == 1:
        weave(cap(consts), cg(1) + xc(2) + cg(2), skip=40)
        q.wait("x0")
        weave(cap(lambda: foldc(0)), xc(3) + cg(3))
        late = {0: lambda: xc(4) + cg(4)}
    else:
        stamp("dc_c0")
        weave(cap(consts), cg(1) + xc(2), skip=60)
        stamp("dc_c1")
        q.wait("x0")
        stamp("dc_x0")
        weave(cap(lambda: foldc(0)), cg(2))
        late = {0: lambda: xc(3) + cg(3), 1: lambda: xc(4) + cg(4)}
    stamp("c_set")

    def xf(p): return FR + p * 24
    def cf(p, tl): return FR + p * 24 + 4 + 4 * tl

    def reads(p, t):
        ops = [lambda: e("ds_read_b128 %s, %s", v(xf(p), 4), v(vXA + t))]
        for tl in range(njb):
            if t == 3 and CSTR[cur[0]] == CPS:
                ops.append(lambda tl=tl, o=CBASE[cur[0]] - CP0: e("ds_read_b128 %s, v3 offset:%d", v(cf(p, tl), 4), o + tl * 1024))
            else:
                ops.append(lambda tl=tl, st=CSTR[cur[0]]: e("ds_read_b128 %s, %s offset:%d", v(cf(p, tl), 4), v(vCA), t * st + tl * 1024))
        return ops

    def mfmas(p, first=False):
        return [(lambda tl=tl: e("v_mfma_f32_32x32x16_bf16 %s, %s, %s, %s", v(ACC + 16 * tl, 16), v(xf(p), 4), v(cf(p, tl), 4), "0" if first else v(ACC + 16 * tl, 16))) for tl in range(njb)]

    RR, MM = (64 if EPH else 16), 32

    def preamble():
        e("v_lshrrev_b32 v6, 5, v0")
        e("v_lshlrev_b32 v6, 4, v6")
        e("s_lshl_b32 %s, %s, 7", s(sTmp), s(sW))
        e("s_add_u32 %s, %s, %d", s(sTmp), s(sTmp), AUX)
        e("v_add_u32 v7, %s, v6", s(sTmp))
        for jj in range(4):
            e("ds_read_b128 %s, v7 offset:%d", v(RR + 4 * jj, 4), jj * 32)
        e("v_and_b32 v5, 15, v0")
        e("v_lshlrev_b32 v5, 6, v5")
        e("v_bfe_u32 v6, v0, 4, 1")
        e("v_lshl_add_u32 v5, v6, 5, v5")
        e("v_lshrrev_b32 v6, 5, v0")
        e("v_lshl_add_u32 v5, v6, 4, v5")
        e("s_and_b32 %s, %s, 1", s(sJB), s(sCG))
        e("s_mul_i32 %s, %s, 10", s(sJB), s(sJB))
        e("s_lshr_b32 %s, %s, 1", s(sTmp), s(sCG))
        e("s_add_u32 %s, %s, %s", s(sJB), s(sJB), s(sTmp))
        e("s_mul_i32 %s, %s, %d", s(sDelta), s(sS2), TSTR)
        e("s_mul_i32 %s, %s, 10240", s(sTmp), s(sCG))
        if TP == 1:
            e("v_and_b32 v4, 15, v0")
            e("v_lshl_add_u32 v4, v4, 6, v5")
        elif TP == 3:
            e("s_mul_i32 %s, %s, %d", s(sTmp2), s(sW), CPS)
            e("s_add_u32 %s, %s, %d", s(sTmp2), s(sTmp2), CP0)
            e("v_lshrrev_b32 v1, 5, v0" if RI else "v_bfe_u32 v1, v5, 4, 2")
            e("v_and_b32 v2, 7, v0")
            e("v_xor_b32 v1, v1, v2")
            e("v_and_b32 v4, %d, v0", 31 if RI else 15)
            e("v_lshlrev_b32 v4, 7, v4")
            e("v_lshl_add_u32 v1, v1, 4, v4")
            e("v_add_u32 v1, %s, v1", s(sTmp2))
            e("v_lshrrev_b32 v4, 3, v0")
            e("v_xor_b32 v3, v2, v4")
            e("v_lshlrev_b32 v4, 7, v4")
            e("v_lshl_add_u32 v3, v3, 4, v4")
            e("v_add_u32 v3, %s, v3", s(sTmp2))
            e("v_xor_b32 v2, 64, v1")
            e("v_lshlrev_b32 v4, 4, v0")
        else:
            e("v_and_b32 v4, 7, v0")
            e("v_lshlrev_b32 v4, 7, v4")
            e("v_and_b32 v1, 0x30, v5")
            e("v_add_u32 v4, v4, v1")
            e("v_bfe_u32 v1, v0, 3, 1")
            e("v_lshl_add_u32 v2, v1, 6, v4")
            e("v_xor_b32 v1, 1, v1")
            e("v_lshl_add_u32 v4, v1, 6, v4")
            e("s_mov_b32 s28, 0xff00ff00")
            e("s_mov_b32 s29, 0xff00ff00")
        e("s_add_u32 %s, %s, %s", s(sDelta), s(sDelta), s(sTmp))
        e("s_add_u32 %s, %s, 0x%x", s(sDelta), s(sDelta), WS_T)
        e("s_lshl_b32 %s, %s, 4", s(sFlag), s(sCG))
        e("s_add_u32 %s, %s, %s", s(sFlag), s(sFlag), s(sRB))
        e("s_lshl_b32 %s, %s, 7", s(sFlag), s(sFlag))
        e("s_add_u32 %s, %s, 0x%x", s(sFlag), s(sFlag), WS_FT)
        e("v_bfe_u32 v6, v0, 3, 1")
        e("v_cmp_eq_u32 vcc, 0, v6")
        e("v_mov_b32 v6, 0")
        e("v_mov_b32 v13, 0x80008000")
        e("v_cndmask_b32 v6, v6, v13, vcc")

    def scale():
        for i in range(16):
            e("v_mul_f32 %s, %s, %s", v(CO + i), v(CO + i), v(RR + i))
            e("v_mul_f32_e64 %s, -%s, %s", v(SI + i), v(SI + i), v(RR + i))
        for i in range(8):
            e("v_cvt_pk_bf16_f32 %s, %s, %s", v(FC + i), v(CO + 2 * i), v(CO + 2 * i + 1))
            e("v_cvt_pk_bf16_f32 %s, %s, %s", v(FC + 8 + i), v(SI + 2 * i), v(SI + 2 * i + 1))
        for i in range(8 if RI else 0):
            e("v_xor_b32 %s, 0x80008000, %s", v(CO + i), v(FC + 8 + i))

    def vmc(tag):
        last = max([i for i, x in enumerate(q.q) if x == tag], default=-1)
        if last < 0:
            return None
        n = len(q.q) - 1 - last
        q.q = q.q[last + 1:]
        return n

    def fills(i):
        cur[0] = i
        if i == 4:
            if EPH:
                return [[ln] for ln in cap(preamble) + ["    s_waitcnt lgkmcnt(0)"] + cap(scale)]
            return []
        w = cap(lambda: q.wait("x%d" % (i + 1))) if NC else []
        mem = late[i]() if i in late else []
        work = [[ln] for ln in cap(lambda: foldc(i + 1))]
        out, k = [w], 0
        for n, g in enumerate(work):
            out.append(g)
            if n % 5 == 4 and k < len(mem):
                out.append(mem[k]); k += 1
        return out + mem[k:]

    def advf(i):
        for t in range(4):
            e("v_add_u32 %s, %d, %s", v(vXA + t), (5120 if i & 1 else -5120) & 0xffffffff, v(vXA + t))
        e("v_add_u32 %s, %d, %s", v(vCA), (CBASE[i + 1] - CBASE[i]) & 0xffffffff, v(vCA))
    gemm_loop(5, 4, mfmas, reads, [2 + tl for tl in range(njb)], [vXA + i for i in range(5)], 0, 2, buf0=SLAB, advf=advf,
              unroll=[(vmc("c0"), [])] + [((lambda i=i: vmc("c%d" % i)), []) for i in range(1, 5)], fills=fills)

    if EPR:
        e("s_setprio %d", EPR)
    if not EPH:
        preamble()
    DD, AF, AN = [224, 240], [48, 64], 32

    def epilogue(first):
        order = ([4, 2, 3, 1, 0, 5] if TP >= 2 else [1, 2, 3, 4, 0, 5]) if first else [0, 1, 2, 3, 4]
        got, defer = set(), []

        def pack(n):
            tl = order[n]
            if tl == 5:
                e("s_nop 1")
                return
            a0, af = ACC + 16 * tl, AF[n & 1]
            if first and tl == 0:
                for i in range(16):
                    e("v_fma_f32 %s, -%s, v7, %s", v(a0 + i), v(MM + i), v(a0 + i))
            for i in range(8):
                e("v_cvt_pk_bf16_f32 %s, %s, %s", v(af + i), v(a0 + 2 * i), v(a0 + 2 * i + 1))
            if first and tl == 0:
                for i in range(8):
                    e("v_and_b32_dpp %s, %s, v14 row_ror:8 row_mask:0xf bank_mask:0xf", v(AN + i), v(af + i))
                    e("v_and_b32 %s, v15, %s", v(AN + 8 + i), v(af + i))
                for i in range(8):
                    e("v_bfi_b32 %s, v15, 0, %s", v(af + i), v(af + i))
            for i in range(8):
                e("v_xor_b32_dpp %s, %s, v6 row_ror:8 row_mask:0xf bank_mask:0xf", v(af + 8 + i), v(af + i))

        def stage(n):
            d, af = DD[n & 1], AN if order[n] == 5 else AF[n & 1]
            for k in range(4):
                e("v_mfma_f32_32x32x16_bf16 %s, %s, %s, %s", v(d, 16), v(af + 4 * k, 4), v(FC + 4 * k, 4), v(d, 16) if k else "0")

        def finish(n):
            d, tl = DD[n & 1], order[n]
            o = ACC + 16 * tl if TP == 2 and tl < 4 else d
            for i in range(8):
                e("v_cvt_pk_bf16_f32 %s, %s, %s", v(o + i), v(d + 2 * i), v(d + 2 * i + 1))
            e("s_add_u32 %s, %s, %d", s(sTmp), s(sDelta), 40960 if tl == 5 else (tl >> 1) * 4096)
            e("s_nop 0")
            for i in range(4):
                e("v_permlane16_swap_b32 %s, %s", v(o + i), v(o + 4 + i))
            if TP == 3 and tl < 4:
                for q in range(2):
                    e("ds_write_b128 %s, %s offset:%d", v(1 + (tl & 1)), v(d + 4 * q, 4), (tl >> 1) * 4096 + q * 2048)
                got.add(tl)
                if (tl ^ 1) in got:
                    for m in range(4):
                        e("ds_read_b128 %s, v3 offset:%d", v(ACC + 16 * tl + 4 * m, 4), (tl >> 1) * 4096 + m * 1024)

                    def later():
                        e("s_add_u32 %s, %s, %d", s(sTmp), s(sDelta), (tl >> 1) * 4096)
                        for m in range(4):
                            e("s_waitcnt lgkmcnt(%d)", 3 - m)
                            e("buffer_store_dwordx4 %s, v4, %s, %s offen offset:%d sc1", v(ACC + 16 * tl + 4 * m, 4), s(sWS, 4), s(sTmp), m * 1024)
                    defer.append(cap(later))
                return
            if TP == 2 and tl < 4:
                got.add(tl)
                if (tl ^ 1) not in got:
                    return
                a_, b_, t_ = ACC + 16 * (tl & 2), ACC + 16 * (tl | 1), ACC + 16 * tl + 8
                e("s_nop 0")
                for i in range(8):
                    e("v_mov_b32_dpp %s, %s row_ror:8 row_mask:0xf bank_mask:0xf", v(t_ + i), v(b_ + i))
                for q in range(2):
                    for i in range(4 * q, 4 * q + 4):
                        e("v_cndmask_b32 %s, %s, %s, s[28:29]", v(b_ + i), v(t_ + i), v(a_ + i))
                        e("v_cndmask_b32 %s, %s, %s, s[28:29]", v(a_ + i), v(a_ + i), v(t_ + i))
                    e("buffer_store_dwordx4 %s, v2, %s, %s offen offset:%d sc1", v(a_ + 4 * q, 4), s(sWS, 4), s(sTmp), q * 2048)
                    e("buffer_store_dwordx4 %s, v4, %s, %s offen offset:%d sc1", v(b_ + 4 * q, 4), s(sWS, 4), s(sTmp), q * 2048 + 1024)
                return
            for q in range(2):
                if tl < 4:
                    e("buffer_store_dwordx4 %s, v4, %s, %s offen offset:%d sc1", v(d + 4 * q, 4), s(sWS, 4), s(sTmp), q * 2048 + (tl & 1) * 64)
                else:
                    e("buffer_store_dwordx4 %s, v5, %s, %s offen offset:%d sc1", v(d + 4 * q, 4), s(sWS, 4), s(sTmp), q * 1024)
        if first:
            for jj in range(4):
                e("ds_read_b128 %s, v7 offset:%d", v(MM + 4 * jj, 4), 512 + jj * 32)
            e("v_and_b32 v15, 31, v0")
            e("v_cmp_eq_u32 vcc, 0, v15")
            e("v_cmp_eq_u32 s[4:5], 8, v15")
            e("v_mov_b32 v13, 0x44200000")
            e("v_cndmask_b32 v14, 0, -1, vcc")
            e("v_cndmask_b32 v15, 0, -1, s[4:5]")
        if EPH:
            e("s_nop 15")
        if RI:
            assert EPH and TP == 3
            order[:] = [4, 5]

            def pack2(pi):
                af = AF[pi]
                for hf in range(2):
                    a0 = ACC + 16 * (2 * pi + hf)
                    if first and pi == 0 and hf == 0:
                        e("s_waitcnt lgkmcnt(0)")
                        e("v_and_b32 v7, v13, v14")
                        for i in range(16):
                            e("v_fma_f32 %s, -%s, v7, %s", v(a0 + i), v(MM + i), v(a0 + i))
                    for i in range(8):
                        e("v_cvt_pk_bf16_f32 %s, %s, %s", v(af + 8 * hf + i), v(a0 + 2 * i), v(a0 + 2 * i + 1))
                if first and pi == 0:
                    for i in range(8):
                        e("v_and_b32 %s, v14, %s", v(AN + i), v(af + 8 + i))
                    for i in range(8):
                        e("v_and_b32_dpp %s, %s, v15 row_ror:8 row_mask:0xf bank_mask:0xf", v(AN + 8 + i), v(af + 8 + i))
                    for i in range(8):
                        e("v_bfi_b32 %s, v14, 0, %s", v(af + 8 + i), v(af + 8 + i))

            def stage2(pi):
                af, dr, di = AF[pi], ACC + 32 * pi, ACC + 32 * pi + 16
                for k in range(4):
                    for d, a_, b_ in ((dr, af + 4 * k, (FC + 4 * k) if k < 2 else CO + 4 * (k - 2)),
                                      (di, af + (4 * k + 8) % 16, FC + 4 * k)):
                        e("v_mfma_f32_32x32x16_bf16 %s, %s, %s, %s", v(d, 16), v(a_, 4), v(b_, 4), v(d, 16) if k else "0")

            def finish2(pi):
                dr, di, o = ACC + 32 * pi, ACC + 32 * pi + 16, DD[1]
                for b in range(4):
                    for k in range(2):
                        e("v_cvt_pk_bf16_f32 %s, %s, %s", v(o + 4 * b + k), v(dr + 4 * b + 2 * k), v(dr + 4 * b + 2 * k + 1))
                        e("v_cvt_pk_bf16_f32 %s, %s, %s", v(o + 4 * b + 2 + k), v(di + 4 * b + 2 * k), v(di + 4 * b + 2 * k + 1))
                    e("ds_write_b128 %s, %s offset:%d", v((1, 8, 2, 9)[b]), v(o + 4 * b, 4), pi * 4096)
                for m in range(4):
                    e("ds_read_b128 %s, v3 offset:%d", v(dr + 4 * m, 4), pi * 4096 + m * 1024)

            def out2(pi):
                e("s_add_u32 %s, %s, %d", s(sTmp), s(sDelta), pi * 4096)
                for m in range(4):
                    e("s_waitcnt lgkmcnt(%d)", 3 - m)
                    e("buffer_store_dwordx4 %s, v4, %s, %s offen offset:%d sc1", v(ACC + 32 * pi + 4 * m, 4), s(sWS, 4), s(sTmp), m * 1024)
            pa, pb = (1, 0) if first else (0, 1)
            e("v_xor_b32 v8, 32, v1")
            e("v_xor_b32 v9, 32, v2")
            pack2(pa)
            e("s_nop 1")
            weave(cap(lambda: pack2(pb)), [[ln] for ln in cap(lambda: stage2(pa))])
            e("s_nop 1")
            S = cap(lambda: stage2(pb))
            A.lines += S[:2] + ["    s_nop 10"]
            weave(cap(lambda: finish2(pa)), [[ln] for ln in S[2:]], skip=2)
            AF[0] = AF[pa]
            pack(0)
            out2(pa)
            S = cap(lambda: stage(0))
            weave(cap(lambda: finish2(pb)), [[ln] for ln in S])
            if first:
                S = cap(lambda: stage(1))
                A.lines += S[:1]
                out2(pb)
                A.lines += S[1:2] + ["    s_nop 7"]
                weave(cap(lambda: finish(0)), [[ln] for ln in S[2:]])
                e("s_nop 15")
                finish(1)
            else:
                out2(pb)
                e("s_nop 7")
                finish(0)
            AF[0] = 48
            return
        pack(0)
        e("s_waitcnt lgkmcnt(0)")
        if first:
            e("v_and_b32 v7, v13, v14")
        for i in range(0, 0 if EPH else 16, 2):
            e("v_pk_mul_f32 %s, %s, %s", v(CO + i, 2), v(CO + i, 2), v(RR + i, 2))
            e("v_pk_mul_f32 %s, %s, %s neg_lo:[1,0] neg_hi:[1,0]", v(SI + i, 2), v(SI + i, 2), v(RR + i, 2))
        for i in range(0 if EPH else 8):
            e("v_cvt_pk_bf16_f32 %s, %s, %s", v(FC + i), v(CO + 2 * i), v(CO + 2 * i + 1))
            e("v_cvt_pk_bf16_f32 %s, %s, %s", v(FC + 8 + i), v(SI + 2 * i), v(SI + 2 * i + 1))
        e("s_nop 1")
        if EPI:
            N_ = len(order)
            for n in range(-1, N_):
                S = cap(lambda: stage(n + 1)) if n + 1 < N_ else []
                P_ = cap(lambda: pack(n + 2)) if n + 2 < N_ else []
                D_ = defer.pop() if defer else []
                F_ = cap(lambda: finish(n)) if n >= 0 else []
                if not S:
                    A.lines += (D_ + ["    s_nop 7"] if D_ else ["    s_nop 15"]) + F_
                elif not F_:
                    k = (len(P_) + 2) // 3
                    A.lines += S[:1] + P_[:k] + S[1:2] + P_[k:2 * k] + S[2:3] + P_[2 * k:] + S[3:]
                else:
                    if len(P_) < 12:
                        P_ = P_ + ["    s_nop 10"]
                    k = 16 if len(F_) < 20 else 24
                    A.lines += S[:1] + P_ + D_ + S[1:2] + F_[:9] + S[2:3] + F_[9:k] + S[3:] + F_[k:]
            return
        stage(0)
        for n in range(len(order)):
            if n + 1 < len(order):
                pack(n + 1)
                stage(n + 1)
                if order[n + 1] == 5:
                    e("s_nop 7")
            else:
                e("s_nop 15")
            finish(n)
    e("s_cmp_eq_u32 %s, 0", s(sCG))
    e("s_cbranch_scc1 L_dft_e0")
    epilogue(False)
    e("s_branch L_dft_c")
    A.label("L_dft_e0")
    epilogue(True)


def mid_k1():
    e("s_and_b32 s3, s2, 7")
    e("s_lshl_b32 %s, s3, 2", s(sK1))
    e("s_bfe_u32 s3, s2, 0x20004")
    e("s_add_u32 %s, %s, s3", s(sK1), s(sK1))
    e("s_bfe_u32 s3, s2, 0x10003")


def mid():
    FC, PD = 64, 48
    XU, WY, DF = [128, 160], [192, 224], [16, 40]
    vL, vT, vWr, vUo, vP, vTG = 5, 6, 7, 10, 11, 15
    e("v_lshlrev_b32 %s, 4, v0", v(vL))
    e("v_and_b32 v9, 3, v0")
    e("v_add_u32 v13, %d, %s", FR_L, v(vL))
    for n in range(8):
        e("ds_read_b128 %s, v13 offset:%d", v(FC + 4 * n, 4), n * 1024)
    for i in range(32):
        e("v_mov_b32 %s, 0", v(WY[0] + i))
    e("v_and_b32 v8, 15, v0")
    e("v_lshrrev_b32 v12, 2, v0")
    e("v_lshlrev_b32 %s, 6, v12", v(vT))
    e("v_lshl_add_u32 %s, v9, 4, %s", v(vT), v(vT))
    e("v_add_u32 %s, %s, %s", v(vT), s(sM0), v(vT))
    e("v_and_b32 v13, 12, v12")
    e("v_bfe_u32 v14, v0, 3, 1")
    e("v_lshl_add_u32 v13, v14, 4, v13")
    e("v_bfe_u32 v14, v0, 2, 1")
    e("v_lshl_add_u32 v13, v14, 1, v13")
    e("v_mul_u32_u24 v12, %d, v13", TSTR)
    e("v_lshl_add_u32 %s, v9, 4, v12", v(vTG))
    e("v_lshrrev_b32 v9, 4, v0")
    e("v_lshlrev_b32 %s, 6, v8", v(vUo))
    e("v_lshl_add_u32 %s, v9, 4, %s", v(vUo), v(vUo))
    e("v_mul_u32_u24 v12, %d, v9", 4 * 336)
    e("v_lshl_add_u32 v12, v8, 2, v12")
    e("s_add_u32 %s, %s, %s", s(sTmp), s(sMW), s(sPar))
    e("v_add_u32 %s, %s, v12", v(vWr), s(sTmp))
    e("v_bfe_u32 v12, v0, 3, 1")
    e("v_lshlrev_b32 v12, 1, v12")
    e("v_bfe_u32 v13, v0, 4, 1")
    e("v_lshl_add_u32 v12, v13, 4, v12")
    e("v_lshrrev_b32 v14, 5, v0")
    e("v_lshl_add_u32 v12, v14, 2, v12")
    e("v_mul_u32_u24 v12, %d, v12", TSTR)
    e("v_bfe_u32 v14, v0, 2, 1")
    e("v_xor_b32 v13, v13, v14")
    e("v_lshl_add_u32 v12, v13, 6, v12")
    e("v_and_b32 v13, 3, v0")
    e("v_lshl_add_u32 v1, v13, 4, v12")
    e("v_lshrrev_b32 v12, 2, v0")
    e("v_lshlrev_b32 v12, 7, v12")
    e("v_lshl_add_u32 v12, v13, 4, v12")
    e("v_bfe_u32 v13, v0, 3, 1")
    e("v_lshl_add_u32 v12, v13, 6, v12")
    e("v_add_u32 v2, %s, v12", s(sM0))
    e("v_xor_b32 v4, 64, v2")
    e("v_add_u32 v8, %s, v12", s(sLB2))
    e("v_xor_b32 v9, 64, v8")
    e("s_waitcnt vmcnt(0) lgkmcnt(0)")
    lab = A.newlabel("L_noft")
    e("s_cmp_lg_u32 %s, 3", s(sWN))
    e("s_cbranch_scc1 %s", lab)
    if PPT:
        poll_check_pipe(PD, PPT, vP, WS_FT, PPG)
    else:
        poll_check(PD, 1, vP, WS_FT)
    A.label(lab)
    e("s_barrier")
    stamp("m_B")
    e("s_mul_i32 %s, %s, %d", s(sDelta), s(sK1), USTR)
    e("s_lshl_b32 %s, %s, 12", s(sTmp), s(sJB))
    e("s_add_u32 %s, %s, %s", s(sDelta), s(sDelta), s(sTmp))
    e("s_add_u32 %s, %s, 0x%x", s(sDelta), s(sDelta), WS_U)

    def gather(un):
        for n in range(4):
            e("s_add_u32 m0, %s, %d", s(sM0), n * 1024)
            e("s_add_u32 %s, %s, %d", s(sTmp), s(sTB), WS_T + (32 * (n & 1) + (n >> 1)) * TSTR)
            e("buffer_load_dwordx4 %s, %s, %s offen sc1 lds", v(vTG), s(sWS, 4), s(sTmp))

    def gather2():
        for kap in range(2):
            for n in range(4):
                e("s_add_u32 m0, %s, %d", s(sLB2 if kap else sM0), n * 1024)
                e("s_add_u32 %s, %s, %d", s(sTmp), s(sTB), WS_T + (32 * (n >> 1) + 8 * (n & 1) + kap) * TSTR)
                e("buffer_load_dwordx4 v1, %s, %s offen sc1 lds", s(sWS, 4), s(sTmp))

    def R2(u):
        for ri in range(2):
            for kap in range(2):
                for rd in range(2):
                    e("ds_read_b64_tr_b16 %s, %s offset:%d", v(DF[u] + 8 * ri + 4 * kap + 2 * rd, 2), v((2, 4, 8, 9)[kap * 2 + u]), rd * 2048 + ri * 8)

    def gathered():
        if EST == 3:
            e("v_mov_b32 v12, %d", LGO)
            e("v_mov_b32 v13, 1")
            e("s_mov_b64 exec, 1")
            e("ds_add_u32 v12, v13 offset:8")
            e("s_mov_b64 exec, -1")

    def F(ri, t, par): return FC + ((ri * 2 + t) * 2 + par) * 4

    def R(u):
        for ri in range(2):
            for kap in range(2):
                for rd in range(2):
                    e("ds_read_b64_tr_b16 %s, %s offset:%d", v(DF[u] + 8 * ri + 4 * kap + 2 * rd, 2), v(14 if u else vT), kap * 2048 + rd * 1024 + ri * 8)

    def N(u):
        for i in range(8):
            e("v_xor_b32 %s, 0x80008000, %s", v(DF[u] + 16 + i), v(DF[u] + 8 + i))

    def WR(u):
        for mt in range(4):
            for i in range(4):
                for arr in range(2):
                    e("ds_read_u16_d16_hi %s, %s offset:%d", v(WY[u] + arr * 16 + 4 * mt + i), v(vWr), arr * MWA + (16 * mt + i) * 336 + 64 * u)

    def SA(u):
        Tre, Tim, Tni = DF[u], DF[u] + 8, DF[u] + 16
        for t in range(2):
            for step in range(2):
                for par in range(2):
                    xr, xi = XU[u] + 4 * (t + 2 * par), XU[u] + 16 + 4 * (t + 2 * par)
                    if step == 0:
                        mm16(xr, F(0, t, par), Tre + 4 * par, True)
                        mm16(xi, F(1, t, par), Tre + 4 * par, True)
                    else:
                        mm16(xr, F(1, t, par), Tni + 4 * par)
                        mm16(xi, F(0, t, par), Tim + 4 * par)

    def BF(u):
        for t in range(2):
            for b in (XU[u] + 4 * t, XU[u] + 4 * t + 2, XU[u] + 16 + 4 * t, XU[u] + 18 + 4 * t):
                e("v_pk_add_f32 %s, %s, %s", v(b, 2), v(b, 2), v(b + 8, 2))
            for b in (XU[u] + 4 * t, XU[u] + 4 * t + 2, XU[u] + 16 + 4 * t, XU[u] + 18 + 4 * t):
                e("v_pk_fma_f32 %s, %s, 2.0, %s op_sel_hi:[1,0,1] neg_lo:[1,0,0] neg_hi:[1,0,0]", v(b + 8, 2), v(b + 8, 2), v(b, 2))

    def YP(u):
        BF(u)
        for n in range(0, 16, 4):
            for k in (0, 2):
                e("v_pk_mul_f32 %s, %s, %s", v(8 if k else 12, 2), v(XU[u] + 16 + n + k, 2), v(WY[u] + 16 + n + k, 2))
            for k in (0, 2):
                e("v_pk_mul_f32 %s, %s, %s", v(WY[u] + 16 + n + k, 2), v(XU[u] + n + k, 2), v(WY[u] + 16 + n + k, 2))
            for k in (0, 2):
                e("v_pk_fma_f32 %s, %s, %s, %s", v(WY[u] + 16 + n + k, 2), v(XU[u] + 16 + n + k, 2), v(WY[u] + n + k, 2), v(WY[u] + 16 + n + k, 2))
            for k in (0, 2):
                e("v_pk_fma_f32 %s, %s, %s, %s neg_lo:[0,0,1] neg_hi:[0,0,1]", v(WY[u] + n + k, 2), v(XU[u] + n + k, 2), v(WY[u] + n + k, 2), v(8 if k else 12, 2))

    def CV(u):
        for mt in range(4):
            for par in range(2):
                w_r, w_i = WY[u] + 4 * mt + par, WY[u] + 16 + 4 * mt + par
                e("v_cvt_pk_bf16_f32 %s, %s, %s", v(DF[u] + 8 + 4 * par + mt), v(w_i), v(w_i + 2))
                e("v_cvt_pk_bf16_f32 %s, %s, %s", v(DF[u] + 4 * par + mt), v(w_r), v(w_r + 2))
            for par in range(2):
                e("v_xor_b32 %s, 0x80008000, %s", v(DF[u] + 16 + 4 * par + mt), v(DF[u] + 4 * par + mt))

    def SB(u):
        Yre, Yim, Ynr = DF[u], DF[u] + 8, DF[u] + 16
        for t in range(2):
            for step in range(2):
                for par in range(2):
                    ur, ui = XU[u] + 4 * (t + 2 * par), XU[u] + 16 + 4 * (t + 2 * par)
                    if step == 0:
                        mm16(ur, Yre + 4 * par, F(0, t, par), True)
                        mm16(ui, Yim + 4 * par, F(0, t, par), True)
                    else:
                        mm16(ur, Yim + 4 * par, F(1, t, par))
                        mm16(ui, Ynr + 4 * par, F(1, t, par))

    def O(u):
        if u:
            e("s_add_u32 %s, %s, 8192", s(sDelta), s(sDelta))
        for nt in range(4):
            ur, ui = XU[u] + 4 * nt, XU[u] + 16 + 4 * nt
            e("v_cvt_pk_bf16_f32 %s, %s, %s", v(ur), v(ur), v(ur + 1))
            e("v_cvt_pk_bf16_f32 %s, %s, %s", v(ur + 1), v(ur + 2), v(ur + 3))
            e("v_cvt_pk_bf16_f32 %s, %s, %s", v(ur + 2), v(ui), v(ui + 1))
            e("v_cvt_pk_bf16_f32 %s, %s, %s", v(ur + 3), v(ui + 2), v(ui + 3))
            e("buffer_store_dwordx4 %s, %s, %s, %s offen offset:%d sc1", v(ur, 4), v(vUo), s(sWS, 4), s(sDelta), nt * 1024)

    def lines(*fs):
        return [[ln] for f in fs for ln in cap(f)]

    def mix(a_, b_):
        out = []
        for i in range(max(len(a_), len(b_))):
            out += a_[i:i + 1] + b_[i:i + 1]
        return out
    one, done = A.newlabel("L_one"), A.newlabel("L_midd")
    e("s_cmp_eq_u32 %s, 1", s(sNU))
    e("s_cbranch_scc1 %s", one)
    gather2()
    gathered()
    if WP:
        assert R3A == 0 and R3B == 0
        for i_, ct in WPRE:
            e("s_add_u32 %s, %s, %d", s(sTmp), s(sWa if ct < 4 else sWc), i_ * 4096 + WOFF[ct][1])
            e("buffer_load_dwordx4 %s, %s, %s, %s offen sc1", v(wreg(i_, ct), 4), v(vL), s(sWS, 4), s(sTmp))
    for i in range(32):
        e("v_mov_b32 %s, 0", v(WY[1] + i))
    if MWE:
        WR(0)
        WR(1)
    e("s_waitcnt vmcnt(%d)", 8 if WP else 0)
    stamp("m_T")
    R2(0)
    if not MWE:
        WR(0)
    e("s_waitcnt lgkmcnt(%d)", 0 if MWE else 15)
    if not MWE:
        e("s_waitcnt vmcnt(0)")
    N(0)
    w1 = lines(lambda: WR(1)) if not MWE else []
    weave(cap(lambda: SA(0)), lines(lambda: R2(1)) + w1[:24], skip=1)
    e("s_waitcnt lgkmcnt(%d)", 0 if MWE else 15)
    N(1)
    YP(0)
    weave(cap(lambda: SA(1)), mix(lines(lambda: CV(0)), w1[24:]), skip=1)
    e("s_waitcnt lgkmcnt(0)")
    e("s_nop 6")
    stamp("m_u1")
    if EH:
        poll_issue(4, 1, 3, WS_FH)
    YP(1)
    weave(cap(lambda: SB(0)), lines(lambda: CV(1)), skip=1)
    e("s_nop 6")
    BF(0)
    weave(cap(lambda: SB(1)), lines(lambda: O(0)), skip=1)
    e("s_nop 7")
    BF(1)
    O(1)
    e("s_branch %s", done)
    A.label(one)
    if MPR:
        e("s_setprio %d", MPR)
    gather(0)
    gathered()
    nci = z_ci_sub(CI_EARLY) if ECI == 3 and not CG else 0
    if MWE:
        WR(0)
    e("s_waitcnt vmcnt(%d)", nci)
    stamp("m_T")
    R(0)
    if not MWE:
        WR(0)
    e("s_waitcnt lgkmcnt(%d)", 0 if MWE else 15)
    N(0)
    e("s_nop 0")
    SA(0)
    e("s_waitcnt lgkmcnt(0)")
    e("s_nop 6")
    YP(0)
    CV(0)
    e("s_nop 1")
    SB(0)
    e("s_nop 7")
    BF(0)
    O(0)
    A.label(done)


hdr = open("cdna_kernels/%s.s.ref" % NAME).read().split("; Override launch")[0]
A(hdr.rstrip())
A("; @launch grid=(256,1,1) block=(512,1,1) lds=%d" % LDS_ALL)
A('.amdgcn_target "amdgcn-amd-amdhsa--gfx950"')
KN = NAME + "_kernel"
kernel_header(A, KN)
stamp("start")
if STAMPS:
    for i in range(1, 9):
        e("s_mov_b32 %s, 0", s(84 + 2 * i))
e("s_cmp_ge_u32 s2, 256")
e("s_cbranch_scc1 L_end")
e("s_load_dwordx16 %s, s[0:1], 0", s(P, 16))
e("s_load_dwordx4 %s, s[0:1], 64", s(P + 16, 4))
e("v_lshrrev_b32 v1, 6, v0")
e("v_and_b32 v0, 63, v0")
e("v_readfirstlane_b32 %s, v1", s(sW))
if CT == 3:
    e("s_cmp_lg_u32 %s, 0", s(sW))
    e("s_cbranch_scc1 L_noct")
    code_touch()
    A.label("L_noct")
e("s_and_b32 s3, s2, 1")
e("s_lshl_b32 %s, s3, 3", s(sRB))
e("s_bfe_u32 s3, s2, 0x30003")
e("s_add_u32 %s, %s, s3", s(sRB), s(sRB))
e("s_lshr_b32 %s, s2, 6", s(sTmp2))
e("s_bfe_u32 s3, s2, 0x20001")
e("s_mul_i32 %s, s3, 3", s(sCG))
e("s_add_u32 %s, %s, %s", s(sCG), s(sCG), s(sTmp2))
if opt("cgr", 0):
    e("s_add_u32 %s, %s, %d", s(sCG), s(sCG), opt("cgr", 0))
    e("s_cmp_ge_u32 %s, 12", s(sCG))
    e("s_cselect_b32 %s, 12, 0", s(sTmp))
    e("s_sub_u32 %s, %s, %s", s(sCG), s(sCG), s(sTmp))
e("s_and_b32 %s, %s, 3", s(sLW), s(sW))
e("s_cmp_eq_u32 %s, 3", s(sTmp2))
e("s_cbranch_scc1 L_dft")
e("s_cmp_ge_u32 %s, 4", s(sW))
e("s_cbranch_scc0 L_ffn_c")
ffn_loader()
A.label("L_ffn_c")
p1_ffn()
A.label("L_dft")
if opt("nodft", 0):
    e("s_endpgm")
e("s_mov_b32 %s, s3", s(sCG))
e("s_cmp_ge_u32 %s, 4", s(sW))
e("s_cbranch_scc0 L_dftc")
dft_loader()
A.label("L_dftc")
p1_dft()
A.label("L_dft_c")
stamp("dc_ep")
if opt("p1p", 0) & 4:
    e("s_setprio 0")
if EPR:
    e("s_setprio 0")
if ZGL:
    e("v_mov_b32 v12, %d", LGO)
    e("v_mov_b32 v13, 1")
    e("ds_write_b32 v12, v13 offset:12")
e("s_waitcnt vmcnt(0)")
stamp("dc_st")
e("v_mov_b32 v12, %d", LGO)
e("v_mov_b32 v13, 1")
e("s_mov_b64 exec, 1")
e("ds_add_rtn_u32 v13, v12, v13 offset:4")
e("s_mov_b64 exec, -1")
e("v_lshlrev_b32 v11, 7, v0")
e("s_waitcnt lgkmcnt(0)")
e("v_readfirstlane_b32 %s, v13", s(sWN))
e("s_cmp_lg_u32 %s, 3", s(sWN))
e("s_cbranch_scc1 L_noft")
flag_store(sFlag, 12, 13)
if OWN:
    e("s_sub_u32 %s, %s, 0x%x", s(sTmp), s(sFlag), WS_FT)
    e("v_cmp_eq_u32 vcc, %s, v11", s(sTmp))
    e("v_xor_b32 v12, 128, v11")
    e("v_cndmask_b32 v11, v11, v12, vcc")
poll_issue(48, 1, 11, WS_FT)
if EST == 4:
    e("v_mov_b32 v12, %d", LGO)
    e("v_mov_b32 v13, 1")
    e("ds_write_b32 v12, v13 offset:12")
A.label("L_noft")
if EH:
    fh_addr()
mid_k1()
wspec_shift(sMW)
e("s_and_b32 %s, %s, 1", s(sTmp2), s(sW))
e("s_lshl_b32 %s, %s, 7", s(sTmp), s(sTmp2))
e("s_add_u32 %s, %s, %s", s(sMW), s(sMW), s(sTmp))
e("s_add_u32 %s, %s, %d", s(sMW), s(sMW), MW0)
e("s_and_b32 %s, %s, 2", s(sPar), s(sW))
e("s_add_u32 %s, s3, %s", s(sTmp), s(sPar))
e("s_mul_i32 %s, %s, 10240", s(sTB), s(sTmp))
e("s_lshl_b32 %s, %s, 12", s(sTmp), s(sTmp2))
e("s_add_u32 %s, %s, %s", s(sTB), s(sTB), s(sTmp))
e("s_lshl_b32 %s, %s, 7", s(sTmp), s(sK1))
e("s_add_u32 %s, %s, %s", s(sTB), s(sTB), s(sTmp))
e("s_mul_i32 s3, s3, 10")
e("s_lshl_b32 %s, %s, 2", s(sTmp2), s(sTmp2))
e("s_add_u32 s3, s3, %s", s(sTmp2))
e("s_lshr_b32 %s, %s, 1", s(sTmp), s(sW))
e("s_add_u32 %s, s3, %s", s(sJB), s(sTmp))
e("s_mov_b32 %s, 2", s(sNU))
e("s_lshl_b32 %s, %s, 12", s(sM0), s(sW))
e("s_add_u32 %s, %s, %d", s(sM0), s(sM0), MT0)
e("s_mul_i32 %s, %s, %d", s(sLB2), s(sW), CPS)
e("s_add_u32 %s, %s, %d", s(sLB2), s(sLB2), CP0 + 15360)
e("s_branch L_mid")

A.label("L_dft_l")
e("s_mov_b32 %s, 0", s(sWN))
e("v_lshlrev_b32 v11, 7, v0")
mid_k1()
e("s_add_u32 %s, s3, 2", s(sTmp))
e("s_cmp_ge_u32 %s, %s", s(sLW), s(sTmp))
e("s_cbranch_scc1 L_dft_l3")
wspec_shift(sMW)
e("s_add_u32 %s, %s, %d", s(sMW), s(sMW), MW0 + 256)
e("s_lshl_b32 %s, %s, 1", s(sTmp), s(sLW))
e("s_add_u32 %s, %s, s3", s(sTmp), s(sTmp))
e("s_mul_i32 %s, %s, 10240", s(sTB), s(sTmp))
e("s_add_u32 %s, %s, 8192", s(sTB), s(sTB))
e("s_cmp_eq_u32 %s, 2", s(sLW))
e("s_cselect_b32 %s, 40960, %s", s(sTB), s(sTB))
e("s_lshl_b32 %s, %s, 6", s(sTmp), s(sK1))
e("s_add_u32 %s, %s, %s", s(sTB), s(sTB), s(sTmp))
e("s_mul_i32 s3, s3, 10")
e("s_add_u32 s3, s3, 8")
e("s_add_u32 %s, s3, %s", s(sJB), s(sLW))
e("s_lshl_b32 %s, %s, 1", s(sPar), s(sLW))
e("s_cmp_eq_u32 %s, 2", s(sLW))
e("s_cselect_b32 %s, 64, %s", s(sPar), s(sPar))
e("s_mov_b32 %s, 1", s(sNU))
e("s_lshl_b32 %s, %s, 12", s(sM0), s(sLW))
e("s_add_u32 %s, %s, %d", s(sM0), s(sM0), FI_L)
A.label("L_mid")
mid()
stamp("m_end")
e("s_cmp_ge_u32 %s, 4", s(sW))
e("s_cbranch_scc1 L_dft_l2")
p3_pre()
if EH:
    e("s_waitcnt vmcnt(8)")
    e("v_cmp_ne_u32 vcc, %s, v4", s(sTAG))
    e("s_cbranch_vccnz L_eh0")
    for i in range(EH):
        hload_(i)
    e("s_mov_b32 %s, 2", s(sNU))
    e("s_waitcnt vmcnt(%d)", 4 * EH)
    e("s_branch L_eh1")
    A.label("L_eh0")
e("s_mov_b32 %s, 0", s(sNU))
if EFH:
    if not EH:
        fh_addr()
    poll_issue(7, 1, 3, WS_FH)
e("s_waitcnt vmcnt(0)")
A.label("L_eh1")
stamp("m_st")
e("s_barrier")
e("s_cmp_lg_u32 %s, 0", s(sW))
e("s_cbranch_scc1 L_nofu")
e("s_lshl_b32 %s, s2, 7", s(sFlag))
e("s_add_u32 %s, %s, %d", s(sFlag), s(sFlag), WS_FU - 192 * 128)
flag_store(sFlag, 12, 13)
A.label("L_nofu")
A.label("L_p3c")
p3c()
e("s_branch L_fin")

A.label("L_dft_l3")
e("v_lshlrev_b32 v5, 4, v0")
if EST:
    if ECI and EST < 3:
        z_ci_sub(CI_LATE)
    e("s_waitcnt vmcnt(0)")
    if EST >= 3:
        poll_check(41, 1, 10, WS_FW)
    if EST == 4:
        e("s_cmp_lg_u32 %s, 3", s(sLW))
        e("s_cbranch_scc1 L_dft_l7")
        e("v_mov_b32 v12, %d", LGO)
        A.label("L_dft_l8")
        e("ds_read_b32 v13, v12 offset:12")
        e("s_waitcnt lgkmcnt(0)")
        e("v_cmp_ne_u32 vcc, 1, v13")
        e("s_cbranch_vccnz L_dft_l8")
        stage_all()
        stamp("dl_st")
        A.label("L_dft_l7")
    e("s_barrier")
    if EST == 4:
        e("s_waitcnt vmcnt(0)")
    if EST == 3:
        if ECI < 3:
            e("s_cmp_lg_u32 %s, 3", s(sLW))
            e("s_cbranch_scc1 L_dft_l7")
        e("v_mov_b32 v12, %d", LGO)
        e("s_add_u32 s3, s3, 6")
        A.label("L_dft_l8")
        e("ds_read_b32 v13, v12 offset:8")
        e("s_waitcnt lgkmcnt(0)")
        e("v_cmp_ne_u32 vcc, s3, v13")
        e("s_cbranch_vccnz L_dft_l8")
        if ECI == 3:
            e("s_cmp_lg_u32 %s, 3", s(sLW))
            e("s_cbranch_scc1 L_dft_l7")
            stage_all()
            if not CG:
                e("s_waitcnt vmcnt(40)")
            A.label("L_dft_l7")
            if CG:
                ci_gen(CI_LATE)
            nci_ = z_ci_sub(range(18)) if not CG else 0
            e("s_waitcnt vmcnt(%d)", nci_)
            stamp("dl_st")
        else:
            stage_all()
            e("s_waitcnt vmcnt(0)")
            stamp("dl_st")
            A.label("L_dft_l7")
    e("s_barrier")
    stage_wd(3, 4)
    if ECI:
        stage_done(0)
        e("v_lshlrev_b32 v11, 7, v0")
        e("s_branch L_dft_l6")
    else:
        e("s_branch L_dft_l5")
    A.label("L_dft_l2")
    if MPR:
        e("s_setprio 0")
    e("s_waitcnt vmcnt(0)")
    e("s_barrier")
    stage_wd(3, 4)
    A.label("L_dft_l5")
    fu_poll_issue()
    if CG:
        ci_setup()
        ci_gen(CI_LATE[:4])
        stage_done(0)
        ci_gen(CI_LATE[4:])
    else:
        stage_done(z_ci_sub(CI_LATE if ECI else range(18)))
    A.label("L_dft_l6")
else:
    e("s_waitcnt vmcnt(0)")
    e("s_barrier")
    e("s_branch L_dft_l4")
    A.label("L_dft_l2")
    stage_wd(0, 3)
    e("s_waitcnt vmcnt(15)")
    e("s_barrier")
    e("s_branch L_dft_l5")
    A.label("L_dft_l4")
    e("s_barrier")
    stage_wd(0, 3)
    A.label("L_dft_l5")
    stage_wd(3, 4)
    fu_poll_issue()
    stage_done(z_ci_sub(CI_LATE if ECI else range(18)))
A.label("L_zpart")
zpart()
A.label("L_fin")
if STAMPS and "--dbg" not in sys.argv:
    stamp("issued_out")
    e("s_waitcnt vmcnt(0)")
    e("%s s[100:101]", "s_memtime" if "--cyc" in sys.argv else "s_memrealtime")
    e("s_waitcnt lgkmcnt(0)")
    for i in range(9):
        e("v_mov_b32 %s, %s", v(16 + i), s(84 + 2 * i))
    e("s_lshl_b32 s3, s2, 3")
    e("s_add_u32 s3, s3, %s", s(sW))
    e("s_lshl_b32 s3, s3, 6")
    e("s_add_u32 s3, s3, 0x%x", WS_STAMP)
    e("v_mov_b32 v5, 0")
    for i in range(3):
        e("buffer_store_dwordx4 %s, v5, %s, s3 offen offset:%d", v(16 + 4 * i, 4), s(sWS, 4), 16 * i)
if "--dbg" in sys.argv:
    e("s_load_dwordx2 s[4:5], s[0:1], 64")
    e("s_waitcnt vmcnt(0) lgkmcnt(0)")
    e("s_memrealtime s[100:101]")
    srd(A, 8, 4, 256)
    e("s_waitcnt lgkmcnt(0)")
    e("s_mov_b64 exec, 1")
    e("s_not_b32 s84, s84")
    e("s_cmp_ge_u32 s2, 192")
    e("s_cselect_b32 s3, 32, 0")
    for i in range(8):
        k = [0, 8, 1, 2, 3, 4, 5, 6][i]
        e("v_mov_b32 v16, %s", s(84 + 2 * k))
        e("v_mov_b32 v17, %d", 4 * i)
        e("buffer_atomic_umax v16, v17, s[8:11], s3 offen sc1")
A.label("L_end")
e("s_endpgm")
flush_cold()
A.label("L_code_end")

kernel_desc(A, KN, 256, accum=256)
TB.emit_tables(A)
out = [x for x in sys.argv[1:] if not x.startswith("--")]
open(out[0] if out else "v37.s", "w").write(A.text())
```
